```python
import torch

def _softmax(x, axis=-1):
    return torch.softmax(x, dim=axis)

def _gelu(x):
    return torch.nn.functional.gelu(x, approximate='tanh')

def _silu(x):
    return torch.nn.functional.silu(x)

def _sigmoid(x):
    return torch.sigmoid(x)

def _layernorm(x, axis=-1, eps=1e-05):
    m = x.mean(dim=axis, keepdim=True)
    v = x.var(dim=axis, keepdim=True, unbiased=False)
    return (x - m) / torch.sqrt(v + eps)

def _scatter_add(tgt, idx, src, axis=0):
    return tgt.clone().index_add_(axis, idx, src)

def _segment_sum(src, seg, n):
    out = torch.zeros((n,) + src.shape[1:], dtype=src.dtype)
    return out.index_add_(0, seg, src)

def _pad(x, pw):
    flat = tuple((v for pair in reversed(pw) for v in pair))
    return torch.nn.functional.pad(x, flat)
kernel_name = 'parallel_sum__ssm_conv_s4d__mixer_gmlp__prompt'

def setup_inputs():

    _w = lambda a: (lambda t: t.to(torch.bfloat16) if t.is_floating_point() else t)(torch.as_tensor(a))

    def _A_setup():
        Bsz, L, D, N = (1, 2048, 640, 128)
        return {'u': _w((lambda *s: torch.randn(*s, dtype=torch.bfloat16) * 0.05)(Bsz, L, D)), 'log_A_real': _w((lambda *s: torch.randn(*s, dtype=torch.bfloat16) * 3.2)(D, N) * 0.5), 'A_imag': _w((lambda *s: torch.randn(*s, dtype=torch.bfloat16) * 0.1)(D, N) * 3.14), 'C_real': _w((lambda *s: torch.randn(*s, dtype=torch.bfloat16) * 3.2)(D, N) / N ** 0.5), 'C_imag': _w((lambda *s: torch.randn(*s, dtype=torch.bfloat16) * 3.2)(D, N) / N ** 0.5), 'log_dt': _w((lambda *s: torch.randn(*s, dtype=torch.bfloat16) * 0.1)(D) * 0.5 - 4.0), 'D_skip': _w((lambda *s: torch.randn(*s, dtype=torch.bfloat16) * 0.4)(D))}
    _A_in = _A_setup()

    def _B_setup():
        B, S, D, F = (1, 2048, 640, 1728)
        Fh = F // 2
        return {'x': _w((lambda *s: torch.randn(*s, dtype=torch.bfloat16) * 0.05)(B, S, D)), 'w_in': _w((lambda *s: torch.randn(*s, dtype=torch.bfloat16) * 0.2)(D, 2 * Fh)), 'w_sp': _w(0.01 * (lambda *s: torch.randn(*s, dtype=torch.bfloat16) * 0.2)(S, S)), 'b_sp': _w(1.0 + 0.01 * (lambda *s: torch.randn(*s, dtype=torch.bfloat16) * 0.05)(S)), 'w_out': _w((lambda *s: torch.randn(*s, dtype=torch.bfloat16) * 0.05)(Fh, D))}
    _B_in = _B_setup()
    return {'A_u': _A_in['u'], 'A_log_A_real': _A_in['log_A_real'], 'A_A_imag': _A_in['A_imag'], 'A_C_real': _A_in['C_real'], 'A_C_imag': _A_in['C_imag'], 'A_log_dt': _A_in['log_dt'], 'A_D_skip': _A_in['D_skip'], 'B_x': _B_in['x'], 'B_w_in': _B_in['w_in'], 'B_w_sp': _B_in['w_sp'], 'B_b_sp': _B_in['b_sp'], 'B_w_out': _B_in['w_out']}

def reference(A_u, A_log_A_real, A_A_imag, A_C_real, A_C_imag, A_log_dt, A_D_skip, B_x, B_w_in, B_w_sp, B_b_sp, B_w_out):

    def _A_ref(u, log_A_real, A_imag, C_real, C_imag, log_dt, D_skip):
        L = u.shape[1]
        dt = torch.exp(log_dt)
        A = -torch.exp(log_A_real) + 1j * A_imag
        C = (C_real + 1j * C_imag) * dt[:, None]
        pos = (lambda x, dt: x.to(dt))(torch.arange(L), log_dt.dtype)
        P = torch.exp((A * dt[:, None])[:, :, None] * pos[None, None, :])
        K = 2.0 * torch.einsum('dn,dnl->dl', C, P).real
        L2 = 2 * L
        u_t = (lambda x, *d: x.permute(*d))(u, 0, 2, 1)
        Kf = (lambda x, *a, **k: torch.fft.rfft(x.float(), *a, **k))(K, L2)
        Uf = (lambda x, *a, **k: torch.fft.rfft(x.float(), *a, **k))(u_t, L2)
        y = (lambda x, *a, **k: torch.fft.irfft(x, *a, **k).to(torch.bfloat16))(Uf * Kf[None, :, :], L2)[:, :, :L]
        y = (lambda x, *d: x.permute(*d))(y, 0, 2, 1)
        return y + u * D_skip[None, None, :]

    def _B_ref(x, w_in, w_sp, b_sp, w_out):
        B, S, D = x.shape
        F = w_in.shape[-1]
        Fh = F // 2
        z = _gelu(torch.einsum('bsd,df->bsf', x, w_in))
        z1 = z[..., :Fh].clone()
        z2 = _layernorm(z[..., Fh:], axis=-1)
        g = torch.einsum('ts,bsf->btf', w_sp, z2) + b_sp[None, :, None]
        return torch.einsum('bsf,fd->bsd', z1 * g, w_out)
    x = A_u
    xn = _layernorm(x, axis=-1)
    return x + _A_ref(xn, A_log_A_real, A_A_imag, A_C_real, A_C_imag, A_log_dt, A_D_skip) + _B_ref(xn, B_w_in, B_w_sp, B_b_sp, B_w_out)
```

```python
import struct
def f32(x): return "0x%08x" % struct.unpack("<I", struct.pack("<f", x))[0]

class Kern:
    def __init__(self, name):
        self.name = name; self.lines = []; self.vm = []; self.lg = []; self.nlab = 0
        self.maxv = 0
    def e(self, s):
        self.lines.append("    " + s)
    def c(self, s): self.lines.append("    ; " + s)
    def label(self, l): self.lines.append(l + ":")
    def newlabel(self, base="L"):
        self.nlab += 1; return f"{self.name}_{base}{self.nlab}"
    def vmem(self, s, tag=None):
        self.e(s); self.vm.append(tag)
    def wait_vm(self, tag):
        idx = max(i for i, t in enumerate(self.vm) if t == tag)
        n = len(self.vm) - 1 - idx
        assert n <= 63
        self.e(f"s_waitcnt vmcnt({n})"); self.vm = self.vm[idx + 1:]
    def wait_vm_all(self):
        self.e("s_waitcnt vmcnt(0)"); self.vm = []
    def lds(self, s, tag=None):
        self.e(s); self.lg.append(tag)
    def wait_lg(self, tag):
        idxs = [i for i, t in enumerate(self.lg) if t == tag]
        if not idxs: return
        idx = max(idxs)
        n = min(len(self.lg) - 1 - idx, 15)
        self.e(f"s_waitcnt lgkmcnt({n})"); self.lg = self.lg[len(self.lg) - n:] if n else []
    def wait_lg_all(self):
        self.e("s_waitcnt lgkmcnt(0)"); self.lg = []
    def batch(self, seqs):
        n = max(len(s) for s in seqs)
        for i in range(n):
            for s in seqs:
                if i < len(s) and s[i]: self.e(s[i])
    def srd(self, d, lo, hi, nbytes, add=0):
        if add:
            self.e(f"s_add_u32 s{d}, s{lo}, {add}")
            self.e(f"s_addc_u32 s{d+1}, s{hi}, 0")
        else:
            self.e(f"s_mov_b32 s{d}, s{lo}")
            self.e(f"s_mov_b32 s{d+1}, s{hi}")
        self.e(f"s_mov_b32 s{d+2}, {nbytes}")
        self.e(f"s_mov_b32 s{d+3}, 0x00020000")
    def text(self, nvgpr, nsgpr=96, accum=None):
        acc = accum if accum is not None else ((nvgpr + 3) // 4) * 4
        head = [f".globl {self.name}", ".p2align 8", f".type {self.name},@function", f"{self.name}:"]
        kd = [".amdhsa_kernel " + self.name,
              f"  .amdhsa_next_free_vgpr {nvgpr}", f"  .amdhsa_next_free_sgpr {nsgpr}", f"  .amdhsa_accum_offset {acc}",
              "  .amdhsa_group_segment_fixed_size 0", "  .amdhsa_kernarg_size 120", "  .amdhsa_user_sgpr_count 2",
              "  .amdhsa_user_sgpr_kernarg_segment_ptr 1", "  .amdhsa_system_sgpr_workgroup_id_x 1",
              "  .amdhsa_float_denorm_mode_32 3",
              ".end_amdhsa_kernel"]
        return "\n".join(head + self.lines), "\n".join(kd)

def v(n, cnt=1): return f"v{n}" if cnt == 1 else f"v[{n}:{n+cnt-1}]"
def s(n, cnt=1): return f"s{n}" if cnt == 1 else f"s[{n}:{n+cnt-1}]"
```

```python
from asmlib import *
MB = 1 << 20
WS_XNT, WS_Z2F, WS_Z1F, WS_HF, WS_YT, WS_ST2 = 0, 4*MB, 8*MB, 12*MB, 16*MB, 20*MB
ZF_BYTES = 54 * 65536
XT_BYTES = 640 * 4096
HUGE = 0x40000000
GC0 = -2.0 * 0.7978845608028654 * 1.4426950408889634
GC1 = GC0 * 0.044715
MFMA = "v_mfma_f32_16x16x32_bf16"

def gelu_seq(a, t, vc1):
    return [f"v_mul_f32 {t}, {a}, {a}",
            f"v_fmaak_f32 {t}, {vc1}, {t}, {f32(GC0)}",
            f"v_mul_f32 {t}, {t}, {a}",
            f"v_exp_f32 {t}, {t}",
            f"v_add_f32 {t}, 1.0, {t}",
            f"v_rcp_f32 {t}, {t}",
            f"v_mul_f32 {a}, {a}, {t}"]

def ln_finish(k, mean, var, t):
    k.e(f"v_max_f32 {var}, 0, {var}")
    k.e(f"v_cvt_pk_bf16_f32 {t}, {mean}, {var}")
    k.e(f"v_lshlrev_b32 {mean}, 16, {t}")
    k.e(f"v_and_b32 {var}, 0xffff0000, {t}")
    k.e(f"v_add_f32 {var}, {f32(1e-5)}, {var}")
    k.e(f"v_cvt_pk_bf16_f32 {t}, {var}, {var}")
    k.e(f"v_lshlrev_b32 {var}, 16, {t}")
    k.e(f"v_sqrt_f32 {var}, {var}")
    k.e("s_nop 0")
    k.e(f"v_cvt_pk_bf16_f32 {t}, {var}, {var}")
    k.e(f"v_lshlrev_b32 {var}, 16, {t}")
    k.e(f"v_rcp_f32 {var}, {var}")
    k.e("s_nop 0")

K1_LDS = 131072 + 1536
def gen_k1():
    k = Kern("k1_kernel")
    e = k.e
    e("s_cmp_ge_u32 s2, 256"); e("s_cbranch_scc1 k1_end")
    e("s_load_dwordx2 s[4:5], s[0:1], 0")
    e("s_load_dwordx2 s[6:7], s[0:1], 64")
    e("s_load_dwordx2 s[8:9], s[0:1], 112")
    e("s_load_dwordx2 s[10:11], s[0:1], 72")
    e("s_load_dwordx2 s[12:13], s[0:1], 88")
    e("v_and_b32 v1, 63, v0")
    e("v_lshrrev_b32 v2, 6, v0")
    e("s_and_b32 s41, s2, 7")
    e("v_readfirstlane_b32 s32, v2")
    e("s_lshr_b32 s42, s2, 3")
    e("s_cmp_ge_u32 s42, 28"); e("s_cbranch_scc1 k1_helper")
    e("s_mul_i32 s43, s42, 37"); e("s_lshr_b32 s43, s43, 8")
    e("s_mul_i32 s44, s43, 7"); e("s_sub_u32 s44, s42, s44")
    e("s_lshr_b32 s35, s41, 1"); e("s_lshl_b32 s35, s35, 2"); e("s_add_u32 s35, s35, s43")
    e("s_and_b32 s36, s41, 1"); e("s_mul_i32 s36, s36, 7"); e("s_add_u32 s36, s36, s44")
    e("s_and_b32 s33, s32, 3"); e("s_lshr_b32 s34, s32, 2")
    e("s_lshl_b32 s43, s35, 7"); e("s_lshr_b32 s44, s32, 1"); e("s_lshl_b32 s44, s44, 5"); e("s_add_u32 s43, s43, s44")
    e("s_and_b32 s44, s32, 1"); e("s_lshl_b32 s44, s44, 2"); e("s_add_u32 s43, s43, s44")
    e("v_lshrrev_b32 v2, 5, v1"); e("v_lshlrev_b32 v2, 3, v2")
    e("v_bfe_u32 v3, v1, 3, 2"); e("v_add3_u32 v2, v2, v3, s43")
    e("v_mul_u32_u24 v2, 1280, v2")
    e("v_and_b32 v3, 7, v1"); e("v_lshrrev_b32 v4, 4, v1"); e("v_xor_b32 v3, v3, v4")
    e("v_lshl_add_u32 v10, v3, 4, v2")
    e("v_xor_b32 v3, 4, v3")
    e("v_lshl_add_u32 v11, v3, 4, v2"); e(f"v_add_u32 v11, {16*1280 - 1024}, v11")
    e("s_lshl_b32 s43, s33, 4")
    e("v_lshrrev_b32 v2, 3, v1"); e("v_add_u32 v2, s43, v2"); e("v_mul_u32_u24 v2, 3456, v2")
    e("s_cmp_eq_u32 s34, 0"); e("s_cselect_b32 s43, 1728, 0"); e("s_lshl_b32 s44, s36, 7"); e("s_add_u32 s43, s43, s44")
    e("v_add_u32 v2, s43, v2")
    e("v_and_b32 v3, 7, v1"); e("v_bfe_u32 v4, v1, 4, 1"); e("v_lshlrev_b32 v4, 1, v4"); e("v_xor_b32 v3, v3, v4")
    e("v_lshl_add_u32 v12, v3, 4, v2")
    e("v_xor_b32 v3, 4, v3")
    e("v_lshl_add_u32 v13, v3, 4, v2"); e(f"v_add_u32 v13, {8*3456 - 1024}, v13")
    e("s_waitcnt lgkmcnt(0)")
    k.srd(16, 4, 5, 2048*1280)
    k.srd(20, 6, 7, 640*3456)
    e("s_mov_b32 s37, 0"); e("s_mov_b32 s38, 0"); e("s_lshl_b32 s39, s32, 11")
    def dma():
        e("s_mov_b32 m0, s39")
        e("s_add_u32 s43, s39, 16384")
        e("buffer_load_dwordx4 v10, s[16:19], s37 offen lds")
        e("buffer_load_dwordx4 v11, s[16:19], s37 offen offset:1024 lds")
        e("s_mov_b32 m0, s43")
        e("s_add_u32 s39, s39, 32768")
        e("buffer_load_dwordx4 v12, s[20:23], s38 offen lds")
        e("buffer_load_dwordx4 v13, s[20:23], s38 offen offset:1024 lds")
        e("s_and_b32 s39, s39, 0x1ffff")
        e("s_add_u32 s37, s37, 128")
        e(f"s_add_u32 s38, s38, {64*3456}")
        e("s_cmp_ge_u32 s37, 1280")
        e(f"s_cselect_b32 s37, {HUGE}, s37")
    for _ in range(3): dma()
    e("v_and_b32 v2, 15, v1"); e("v_lshrrev_b32 v3, 4, v1")
    e("s_lshl_b32 s43, s33, 5")
    e("v_add_u32 v4, s43, v2"); e("v_lshlrev_b32 v4, 7, v4")
    e("v_lshrrev_b32 v5, 1, v2"); e("v_xor_b32 v5, v5, v3")
    e("v_lshl_add_u32 v14, v5, 4, v4")
    e("v_xor_b32 v15, 64, v14")
    e("v_bfe_u32 v4, v1, 2, 2")
    e("v_lshl_add_u32 v5, v3, 3, v4"); e("v_lshlrev_b32 v5, 7, v5")
    e("v_and_b32 v6, 3, v1"); e("v_lshl_add_u32 v5, v6, 3, v5")
    e("s_lshl_b32 s43, s34, 13"); e("s_add_u32 s43, s43, 16384"); e("v_add_u32 v5, s43, v5")
    e("v_lshrrev_b32 v6, 1, v4"); e("v_and_b32 v7, 1, v3"); e("v_lshl_or_b32 v6, v7, 1, v6")
    e("v_xor_b32 v6, s33, v6")
    for c in range(4):
        e(f"v_xor_b32 v7, {c}, v6"); e(f"v_lshl_add_u32 v{16+c}, v7, 5, v5")
    for i in range(4): e(f"v_mov_b32 v{20+i}, 0x3f803f80")
    for i in range(72, 116): e(f"v_mov_b32 v{i}, 0")
    e("s_mov_b32 s40, 10")
    e("s_cmp_eq_u32 s34, 1"); e("s_cbranch_scc1 k1_loop1")
    def xf(ks, b): return v(24 + 24*ks + 4*b, 4)
    def wf(ks, c): return v(24 + 24*ks + 8 + 4*c, 4)
    def acc(b, c): return v(72 + (b*4 + c)*4, 4)
    for wc in range(2):
        k.label(f"k1_loop{wc}")
        e("s_waitcnt vmcnt(8)")
        e("s_barrier")
        for ks in range(2):
            for b in range(2):
                e(f"ds_read_b128 {xf(ks,b)}, v{14+ks} offset:{2048*b}")
            for c in range(4):
                base = 24 + 24*ks + 8 + 4*c
                for hh in range(2):
                    e(f"ds_read_b64_tr_b16 {v(base+2*hh,2)}, v{16+c} offset:{ks*4096+hh*512}")
            if ks == 0: dma()
        for ks in range(2):
            e(f"s_waitcnt lgkmcnt({10 if ks == 0 else 0})")
            for c in range(4):
                for b in range(2):
                    if wc == 0: e(f"{MFMA} {acc(b,c)}, {xf(ks,b)}, {wf(ks,c)}, {acc(b,c)}")
                    else:       e(f"{MFMA} {acc(b,c)}, {wf(ks,c)}, {xf(ks,b)}, {acc(b,c)}")
            e(f"{MFMA} v[104:107], v[20:23], {xf(ks,wc)}, v[104:107]")
            e(f"{MFMA} v[108:111], {xf(ks,wc)}, {xf(ks,wc)}, v[108:111]")
            e(f"{MFMA} v[112:115], v[20:23], {wf(ks,0)}, v[112:115]")
            if ks == 0:
                for r in range(14, 20):
                    e(f"v_add_u32 v{r}, 0x8000, v{r}")
                    e(f"v_and_b32 v{r}, 0x1ffff, v{r}")
        e("s_sub_u32 s40, s40, 1"); e("s_cmp_lg_u32 s40, 0"); e(f"s_cbranch_scc1 k1_loop{wc}")
        if wc == 0: e("s_branch k1_stats")
    k.label("k1_stats")
    e("s_nop 7")
    e("v_and_b32 v4, 3, v1")
    e("v_mov_b32 v5, v108")
    for r in range(1, 4):
        e(f"v_cmp_eq_u32 vcc, {r}, v4"); e("s_nop 1"); e(f"v_cndmask_b32 v5, v5, v{108+r}, vcc")
    e(f"v_mul_f32 v6, {f32(1/640)}, v104")
    e(f"v_mul_f32 v5, {f32(1/640)}, v5")
    e("v_fma_f32 v5, -v6, v6, v5")
    ln_finish(k, "v6", "v5", "v7")
    e("s_lshl_b32 s43, s33, 5"); e("s_lshl_b32 s44, s34, 4"); e("s_add_u32 s43, s43, s44")
    e("v_add_u32 v7, s43, v2"); e("v_lshlrev_b32 v7, 2, v7"); e("v_add_u32 v7, 0x20000, v7")
    e("s_lshl_b32 s43, s34, 6"); e("s_lshl_b32 s44, s33, 4"); e("s_add_u32 s43, s43, s44")
    e("v_add_u32 v8, s43, v2"); e("v_lshlrev_b32 v8, 2, v8"); e("v_add_u32 v8, 0x20000, v8")
    e("ds_write_b32 v8, v112 offset:1024")
    e("v_lshrrev_b32 v4, 2, v2")
    e("v_cmp_eq_u32 vcc, v4, v3")
    e("s_and_saveexec_b64 s[44:45], vcc")
    e("ds_write_b32 v7, v6")
    e("ds_write_b32 v7, v5 offset:512")
    e("s_mov_b64 exec, s[44:45]")
    e("s_waitcnt lgkmcnt(0)")
    e("s_barrier")
    e(f"v_mov_b32 v68, {f32(GC1)}")
    e("v_lshlrev_b32 v69, 4, v1")
    e("s_cmp_eq_u32 s34, 1"); e("s_cbranch_scc1 k1_epi1")
    k.srd(24, 8, 9, ZF_BYTES, WS_Z2F)
    k.srd(28, 8, 9, 262144, WS_ST2)
    e("s_lshl_b32 s43, s33, 7"); e("s_add_u32 s43, s43, 0x20000")
    e("v_lshl_add_u32 v4, v3, 4, s43")
    e("ds_read_b128 v[24:27], v4"); e("ds_read_b128 v[28:31], v4 offset:64")
    e("ds_read_b128 v[32:35], v4 offset:512"); e("ds_read_b128 v[36:39], v4 offset:576")
    for c in range(4):
        e(f"s_xor_b32 s43, s33, {c}")
        e(f"s_lshl_b32 s44, s43, 6"); e("s_add_u32 s44, s44, 0x20400")
        e(f"v_lshl_add_u32 v5, v2, 2, s44")
        e(f"ds_read_b32 v{40+c}, v5")
        e("s_lshl_b32 s44, s36, 2"); e("s_add_u32 s43, s43, s44")
        e(f"s_cmp_lt_u32 s43, 54"); e(f"s_cselect_b32 s{50+c}, -1, 0")
        e(f"s_lshl_b32 s{46+c}, s43, 16")
        e("s_lshl_b32 s44, s35, 2"); e("s_add_u32 s44, s44, s33"); e("s_lshl_b32 s44, s44, 10")
        e(f"s_add_u32 s{46+c}, s{46+c}, s44")
    for i in range(44, 60): e(f"v_mov_b32 v{i}, 0")
    e("s_waitcnt lgkmcnt(0)")
    for c in range(4):
        A = [72 + (b*4 + c)*4 + r for b in range(2) for r in range(4)]
        k.batch([[f"v_fma_f32 v{A[n]}, -v{24+n}, v{40+c}, v{A[n]}", f"v_mul_f32 v{A[n]}, v{A[n]}, v{32+n}"] for n in range(8)])
        for p in range(4): e(f"v_cvt_pk_bf16_f32 v{60+p}, v{A[2*p]}, v{A[2*p+1]}")
        for p in range(4):
            e(f"v_lshlrev_b32 v{A[2*p]}, 16, v{60+p}"); e(f"v_and_b32 v{A[2*p+1]}, 0xffff0000, v{60+p}")
        k.batch([gelu_seq(f"v{A[n]}", f"v{60+n}", "v68") for n in range(8)])
        for p in range(4): e(f"v_cvt_pk_bf16_f32 v{104+4*c+p}, v{A[2*p]}, v{A[2*p+1]}")
        for p in range(4): e(f"v_and_b32 v{104+4*c+p}, s{50+c}, v{104+4*c+p}")
        e(f"buffer_store_dwordx4 {v(104+4*c,4)}, v69, s[24:27], s{46+c} offen")
        for p in range(4):
            e(f"v_lshlrev_b32 v{A[2*p]}, 16, v{104+4*c+p}"); e(f"v_and_b32 v{A[2*p+1]}, 0xffff0000, v{104+4*c+p}")
        k.batch([[f"v_add_f32 v{44+n}, v{44+n}, v{A[n]}", f"v_fmac_f32 v{52+n}, v{A[n]}, v{A[n]}"] for n in range(8)])
    for sh in (8, 4, 2, 1):
        for i in range(44, 60):
            e(f"v_add_f32_dpp v{i}, v{i}, v{i} row_ror:{sh} row_mask:0xf bank_mask:0xf")
    e("s_lshl_b32 s43, s36, 13"); e("s_lshl_b32 s44, s35, 9"); e("s_add_u32 s43, s43, s44")
    e("s_lshl_b32 s44, s33, 7"); e("s_add_u32 s43, s43, s44"); e("s_add_u32 s44, s43, 131072")
    e("v_lshlrev_b32 v4, 5, v3")
    e("v_cmp_eq_u32 vcc, 0, v2")
    e("s_and_saveexec_b64 s[46:47], vcc")
    e("buffer_store_dwordx4 v[44:47], v4, s[28:31], s43 offen")
    e("buffer_store_dwordx4 v[48:51], v4, s[28:31], s43 offen offset:16")
    e("buffer_store_dwordx4 v[52:55], v4, s[28:31], s44 offen")
    e("buffer_store_dwordx4 v[56:59], v4, s[28:31], s44 offen offset:16")
    e("s_endpgm")
    k.label("k1_epi1")
    k.srd(24, 8, 9, ZF_BYTES, WS_Z1F)
    e("s_lshl_b32 s43, s33, 7"); e("s_add_u32 s43, s43, 0x20000")
    e("v_lshl_add_u32 v4, v2, 2, s43")
    e("ds_read_b32 v24, v4"); e("ds_read_b32 v25, v4 offset:64")
    e("ds_read_b32 v26, v4 offset:512"); e("ds_read_b32 v27, v4 offset:576")
    for c in range(4):
        e(f"s_xor_b32 s43, s33, {c}")
        e(f"s_lshl_b32 s44, s43, 6"); e("s_add_u32 s44, s44, 0x20500")
        e(f"v_lshl_add_u32 v5, v3, 4, s44")
        e(f"ds_read_b128 {v(28+4*c,4)}, v5")
    for b in range(2):
        for g in range(2):
            e("s_lshr_b32 s43, s33, 1"); e(f"s_xor_b32 s43, s43, {g}"); e("s_lshl_b32 s44, s36, 1"); e("s_add_u32 s43, s43, s44")
            e("s_lshl_b32 s44, s35, 3"); e("s_lshl_b32 s45, s33, 1"); e("s_add_u32 s44, s44, s45"); e(f"s_add_u32 s44, s44, {b}")
            e("s_mul_i32 s44, s44, 27"); e("s_add_u32 s44, s44, s43"); e("s_lshl_b32 s44, s44, 10")
            e("s_cmp_lt_u32 s43, 27"); e(f"s_cselect_b32 s{46+b*2+g}, s44, {HUGE}")
    e("s_waitcnt lgkmcnt(0)")
    for c in range(4):
        A = [72 + (b*4 + c)*4 + r for b in range(2) for r in range(4)]
        k.batch([[f"v_fma_f32 v{A[n]}, -v{24+n//4}, v{28+4*c+n%4}, v{A[n]}", f"v_mul_f32 v{A[n]}, v{A[n]}, v{26+n//4}"] for n in range(8)])
        for p in range(4): e(f"v_cvt_pk_bf16_f32 v{60+p}, v{A[2*p]}, v{A[2*p+1]}")
        for p in range(4):
            e(f"v_lshlrev_b32 v{A[2*p]}, 16, v{60+p}"); e(f"v_and_b32 v{A[2*p+1]}, 0xffff0000, v{60+p}")
        k.batch([gelu_seq(f"v{A[n]}", f"v{60+n}", "v68") for n in range(8)])
        for p in range(4): e(f"v_cvt_pk_bf16_f32 v{104+(p//2)*8+c*2+p%2}, v{A[2*p]}, v{A[2*p+1]}")
    e("s_bitcmp1_b32 s33, 0"); e("s_cbranch_scc0 k1_noswap")
    for b in range(2):
        for g in range(2):
            for p in range(2):
                r0 = 104 + b*8 + g*4 + p
                e(f"v_swap_b32 v{r0}, v{r0+2}")
    k.label("k1_noswap")
    e("s_nop 0")
    for b in range(2):
        for g in range(2):
            e(f"buffer_store_dwordx4 {v(104+b*8+g*4,4)}, v69, s[24:27], s{46+b*2+g} offen")
    e("s_endpgm")
    k.label("k1_helper")
    e("s_lshl_b32 s35, s41, 2"); e("s_add_u32 s35, s35, s42"); e("s_sub_u32 s35, s35, 28")
    e("v_and_b32 v2, 15, v1"); e("v_lshrrev_b32 v3, 4, v1")
    e("s_lshl_b32 s43, s32, 3")
    e("v_add_u32 v4, s43, v3")
    e("s_lshl_b32 s44, s35, 6")
    e("v_add_u32 v5, s44, v4"); e("v_mul_u32_u24 v5, 1280, v5"); e("v_lshl_add_u32 v5, v2, 4, v5")
    e("v_add_u32 v6, 5120, v5")
    e("v_mul_u32_u24 v7, 1296, v4"); e("v_lshl_add_u32 v7, v2, 4, v7")
    e("s_waitcnt lgkmcnt(0)")
    k.srd(16, 4, 5, 2048*1280)
    k.srd(20, 10, 11, 2048*4096)
    k.srd(24, 12, 13, 864*1280)
    k.srd(28, 8, 9, XT_BYTES, WS_XNT)
    for g in range(2):
        for n in range(5):
            k.vmem(f"buffer_load_dwordx4 {v(8+g*20+n*4,4)}, v{5+g}, s[16:19], 0 offen offset:{n*256}", f"x{g}")
    e("v_lshlrev_b32 v120, 4, v1")
    e("s_lshl_b32 s43, s35, 18"); e("s_lshl_b32 s44, s32, 15"); e("s_add_u32 s43, s43, s44")
    for n in range(32):
        k.vmem(f"buffer_load_dwordx4 v[124:127], v120, s[20:23], s43 offen offset:{(n%4)*1024}", "pf")
        if n % 4 == 3: e("s_add_u32 s43, s43, 4096")
    e("s_lshl_b32 s43, s35, 3"); e("s_add_u32 s43, s43, s32"); e("s_mul_i32 s43, s43, 4352")
    for n in range(4):
        k.vmem(f"buffer_load_dwordx4 v[124:127], v120, s[24:27], s43 offen offset:{n*1024}", "pf")
    e("s_add_u32 s43, s43, 4096")
    k.vmem(f"buffer_load_dwordx4 v[124:127], v120, s[24:27], s43 offen", "pf")
    for g in range(2):
        k.wait_vm(f"x{g}")
        X = 48
        src = 8 + g*20
        for n in range(20):
            e(f"v_lshlrev_b32 v{X+2*n}, 16, v{src+n}"); e(f"v_and_b32 v{X+2*n+1}, 0xffff0000, v{src+n}")
        for a in range(4): e(f"v_add_f32 v{88+a}, v{X+a}, v{X+4+a}")
        for n in range(8, 40): e(f"v_add_f32 v{88+n%4}, v{88+n%4}, v{X+n}")
        e("v_add_f32 v88, v88, v89"); e("v_add_f32 v90, v90, v91"); e("s_nop 0"); e("v_add_f32 v88, v88, v90")
        for sh in (8, 4, 2, 1):
            e("s_nop 1"); e(f"v_add_f32_dpp v88, v88, v88 row_ror:{sh} row_mask:0xf bank_mask:0xf")
        e(f"v_mul_f32 v88, {f32(1/640)}, v88")
        for a in range(4): e(f"v_mov_b32 v{92+a}, 0")
        for n0 in range(0, 40, 4):
            for a in range(4): e(f"v_sub_f32 v{96+a}, v{X+n0+a}, v88")
            for a in range(4): e(f"v_fmac_f32 v{92+a}, v{96+a}, v{96+a}")
        e("v_add_f32 v92, v92, v93"); e("v_add_f32 v94, v94, v95"); e("s_nop 0"); e("v_add_f32 v92, v92, v94")
        for sh in (8, 4, 2, 1):
            e("s_nop 1"); e(f"v_add_f32_dpp v92, v92, v92 row_ror:{sh} row_mask:0xf bank_mask:0xf")
        e(f"v_mul_f32 v92, {f32(1/640)}, v92")
        ln_finish(k, "v88", "v92", "v89")
        for n in range(40): e(f"v_sub_f32 v{X+n}, v{X+n}, v88")
        for n in range(20): e(f"v_cvt_pk_bf16_f32 v{src+n}, v{X+2*n}, v{X+2*n+1}")
        for n in range(20):
            e(f"v_lshlrev_b32 v{X+2*n}, 16, v{src+n}"); e(f"v_and_b32 v{X+2*n+1}, 0xffff0000, v{src+n}")
        for n in range(40): e(f"v_mul_f32 v{X+n}, v{X+n}, v92")
        for n in range(20): e(f"v_cvt_pk_bf16_f32 v{src+n}, v{X+2*n}, v{X+2*n+1}")
        for n in range(5):
            e(f"ds_write_b128 v7, {v(src+4*n,4)} offset:{g*4*1296 + n*256}")
    e("s_waitcnt lgkmcnt(0)")
    e("s_barrier")
    e("v_bfe_u32 v4, v1, 2, 2"); e("v_lshl_add_u32 v4, v3, 3, v4"); e("v_mul_u32_u24 v4, 1296, v4")
    e("v_and_b32 v5, 3, v1"); e("v_lshl_add_u32 v4, v5, 3, v4")
    e("s_lshl_b32 s43, s32, 5"); e("v_add_u32 v4, s43, v4")
    e(f"v_add_u32 v5, {32*1296}, v4")
    e("v_lshlrev_b32 v6, 12, v2"); e("v_lshl_add_u32 v6, v3, 4, v6")
    e("s_lshl_b32 s43, s32, 16"); e("s_lshl_b32 s44, s35, 7"); e("s_add_u32 s43, s43, s44")
    for n in range(5):
        for th in range(2):
            for hh in range(2):
                e(f"ds_read_b64_tr_b16 {v(8+(n*2+th)*4+hh*2,2)}, v{4+th} offset:{hh*4*1296 + n*256}")
    e("s_waitcnt lgkmcnt(0)")
    for n in range(5):
        for th in range(2):
            e(f"buffer_store_dwordx4 {v(8+(n*2+th)*4,4)}, v6, s[28:31], s43 offen offset:{th*64}")
        e(f"s_add_u32 s43, s43, {8*65536}")
    k.label("k1_end")
    e("s_endpgm")
    return k.text(128)

def gen_k1b():
    k = Kern("k1b_kernel"); e = k.e
    e("s_cmp_ge_u32 s2, 256"); e("s_cbranch_scc1 k1b_end")
    e("s_load_dwordx2 s[8:9], s[0:1], 112")
    e("v_and_b32 v1, 63, v0"); e("v_lshrrev_b32 v2, 6, v0"); e("s_nop 0"); e("v_readfirstlane_b32 s32, v2")
    e("s_lshr_b32 s33, s2, 2"); e("s_and_b32 s34, s2, 3")
    e("s_waitcnt lgkmcnt(0)")
    k.srd(24, 8, 9, ZF_BYTES, WS_Z2F)
    k.srd(28, 8, 9, 262144, WS_ST2)
    e("v_and_b32 v2, 31, v1"); e("v_lshrrev_b32 v3, 5, v1")
    e("v_lshlrev_b32 v2, 2, v2"); e("v_lshl_add_u32 v2, v3, 17, v2")
    e("s_lshl_b32 s35, s33, 7")
    for c in range(14):
        e(f"buffer_load_dword v{8+c}, v2, s[28:31], s35 offen")
        e("s_add_u32 s35, s35, 8192")
    e("v_lshlrev_b32 v4, 4, v1")
    for i in range(4):
        e(f"s_add_u32 s36, s32, {4*i}"); e("s_cmp_lt_u32 s36, 14")
        e("s_mul_i32 s37, s34, 14"); e("s_cselect_b32 s38, 0, 64"); e("s_add_u32 s36, s36, s37"); e("s_add_u32 s36, s36, s38")
        e("s_lshl_b32 s36, s36, 16"); e("s_lshl_b32 s37, s33, 10"); e(f"s_add_u32 s{40+i}, s36, s37")
        e(f"buffer_load_dwordx4 {v(24+4*i,4)}, v4, s[24:27], s{40+i} offen")
    e("s_waitcnt vmcnt(4)")
    for c in range(1, 14): e(f"v_add_f32 v8, v8, v{8+c}")
    e(f"v_mul_f32 v8, {f32(1/864)}, v8")
    e("v_mov_b32 v9, v8"); e("s_nop 1")
    e("v_permlane32_swap_b32 v8, v9")
    e("s_nop 1")
    e("v_fma_f32 v9, -v8, v8, v9")
    ln_finish(k, "v8", "v9", "v10")
    e("v_lshrrev_b32 v3, 4, v1"); e("v_lshlrev_b32 v3, 5, v3")
    for n in range(8):
        e(f"v_add_u32 v5, {4*n}, v3")
        e(f"ds_bpermute_b32 v{40+n}, v5, v8"); e(f"ds_bpermute_b32 v{48+n}, v5, v9")
    e("s_waitcnt vmcnt(0) lgkmcnt(0)")
    for i in range(4):
        for p in range(4):
            e(f"v_lshlrev_b32 v{56+2*p}, 16, v{24+4*i+p}"); e(f"v_and_b32 v{57+2*p}, 0xffff0000, v{24+4*i+p}")
        for n in range(8): e(f"v_sub_f32 v{56+n}, v{56+n}, v{40+n}")
        for p in range(4): e(f"v_cvt_pk_bf16_f32 v{24+4*i+p}, v{56+2*p}, v{57+2*p}")
        for p in range(4):
            e(f"v_lshlrev_b32 v{56+2*p}, 16, v{24+4*i+p}"); e(f"v_and_b32 v{57+2*p}, 0xffff0000, v{24+4*i+p}")
        for n in range(8): e(f"v_mul_f32 v{56+n}, v{56+n}, v{48+n}")
        for p in range(4): e(f"v_cvt_pk_bf16_f32 v{24+4*i+p}, v{56+2*p}, v{57+2*p}")
        e(f"buffer_store_dwordx4 {v(24+4*i,4)}, v4, s[24:27], s{40+i} offen")
    k.label("k1b_end")
    e("s_endpgm")
    return k.text(64)
```

```python
from asmlib import *
from gen_k1 import *
CONV_B = 22784
K2_LDS = 65536 + 4 * CONV_B
LOG2E = 1.4426950408889634
import numpy as np
L_HI = float(np.float32(LOG2E)); L_LO = LOG2E - L_HI

def exp_precise(k, dst, x, t0, t1):
    e = k.e
    e(f"v_mul_f32 {t0}, {f32(L_HI)}, {x}")
    e(f"v_mov_b32 {t1}, {f32(L_HI)}")
    e(f"v_fma_f32 {t1}, {x}, {t1}, -{t0}")
    e(f"v_fmac_f32 {t1}, {f32(L_LO)}, {x}")
    e(f"v_exp_f32 {t0}, {t0}")
    e(f"v_mul_f32 {t1}, {f32(0.6931471805599453)}, {t1}")
    e(f"v_fma_f32 {dst}, {t0}, {t1}, {t0}")

def gen_k2():
    k = Kern("k2_kernel"); e = k.e
    e("s_cmp_ge_u32 s2, 256"); e("s_cbranch_scc1 k2_end")
    e("s_load_dwordx2 s[8:9], s[0:1], 112")
    e("s_load_dwordx4 s[4:7], s[0:1], 72")
    e("v_and_b32 v1, 63, v0")
    e("v_lshrrev_b32 v2, 6, v0")
    e("s_and_b32 s41, s2, 7")
    e("v_readfirstlane_b32 s32, v2")
    e("s_lshr_b32 s42, s2, 3")
    e("s_cmp_ge_u32 s32, 4"); e("s_cbranch_scc1 k2_conv")
    e("s_lshr_b32 s35, s41, 1"); e("s_lshl_b32 s35, s35, 3"); e("s_lshr_b32 s43, s42, 2"); e("s_add_u32 s35, s35, s43")
    e("s_and_b32 s36, s42, 3")
    e("s_and_b32 s43, s41, 1"); e("s_mul_i32 s43, s43, 27"); e("s_mul_i32 s44, s36, 7"); e("s_add_u32 s37, s43, s44")
    e("v_lshrrev_b32 v2, 5, v1"); e("v_lshlrev_b32 v2, 3, v2"); e("v_bfe_u32 v3, v1, 3, 2"); e("v_add_u32 v2, v2, v3")
    e("v_lshlrev_b32 v2, 12, v2")
    e("v_and_b32 v3, 7, v1"); e("v_lshrrev_b32 v4, 4, v1"); e("v_xor_b32 v3, v3, v4")
    e("v_lshl_add_u32 v242, v3, 4, v2")
    e("v_xor_b32 v3, 4, v3")
    e("v_lshl_add_u32 v243, v3, 4, v2"); e(f"v_add_u32 v243, {16*4096 - 1024}, v243")
    e("v_lshlrev_b32 v244, 4, v1")
    e("s_lshl_b32 s43, s35, 18"); e("s_lshl_b32 s44, s32, 10"); e("s_add_u32 s48, s43, s44")
    e(f"s_add_u32 s49, s48, {4*4096}"); e(f"s_add_u32 s50, s48, {32*4096}"); e(f"s_add_u32 s51, s48, {36*4096}")
    e("s_lshl_b32 s43, s37, 16"); e("s_lshl_b32 s44, s32, 14"); e("s_add_u32 s52, s43, s44")
    for c in range(1, 7): e(f"s_add_u32 s{52+c}, s52, {c*65536}")
    e("s_cmp_eq_u32 s36, 3"); e(f"s_cselect_b32 s58, {HUGE}, s58")
    e("s_lshl_b32 s39, s32, 14")
    e("s_waitcnt lgkmcnt(0)")
    k.srd(16, 4, 5, 2048*4096)
    k.srd(20, 8, 9, ZF_BYTES, WS_Z2F)
    def Z(st, c): return v(112 + st*28 + c*4, 4)
    def acc(c, sg): return v((c*4 + sg)*4, 4)
    def wf(sg): return v(224 + 4*sg, 4)
    def issueZ(st):
        for c in range(7): e(f"buffer_load_dwordx4 {Z(st,c)}, v244, s[20:23], s{52+c} offen offset:{st*1024}")
    def issueA(slot):
        for t in range(4):
            e(f"s_add_u32 m0, s39, {slot*8192 + t*2048}")
            e("s_nop 0")
            e(f"buffer_load_dwordx4 v242, s[16:19], s{48+t} offen lds")
            e(f"buffer_load_dwordx4 v243, s[16:19], s{48+t} offen offset:1024 lds")
        for t in range(4): e(f"s_add_u32 s{48+t}, s{48+t}, s59")
    e("s_mov_b32 s59, 128")
    issueZ(0); issueA(0); issueZ(1); issueZ(2); issueA(1); issueZ(3)
    e("v_and_b32 v2, 15, v1"); e("v_lshrrev_b32 v3, 4, v1")
    e("v_lshrrev_b32 v5, 1, v2"); e("v_xor_b32 v5, v5, v3")
    e("v_lshlrev_b32 v4, 7, v2"); e("v_lshl_add_u32 v4, v5, 4, v4"); e("v_add_u32 v4, s39, v4")
    for sg in range(4):
        e(f"s_xor_b32 s43, s32, {sg}"); e("s_lshl_b32 s43, s43, 11")
        e(f"v_add_u32 v{246+sg}, s43, v4")
        e(f"v_xor_b32 v{250+sg}, 64, v{246+sg}")
    e("v_mov_b32 v240, v2"); e("v_mov_b32 v241, v3"); e("v_mov_b32 v245, v1")
    for i in range(112): e(f"v_mov_b32 v{i}, 0")
    e("s_mov_b32 s40, 4")
    k.label("k2_loop")
    e("s_cmp_eq_u32 s40, 1"); e(f"s_cselect_b32 s43, {HUGE}, 4096")
    for c in range(7): e(f"s_add_u32 s{52+c}, s{52+c}, s43")
    e("s_cmp_eq_u32 s40, 1"); e(f"s_cselect_b32 s43, {HUGE}, 0")
    for t in range(4): e(f"s_add_u32 s{48+t}, s{48+t}, s43")
    for n in range(4):
        slot, ks = n >> 1, n & 1
        e("s_waitcnt vmcnt(29)")
        for sg in range(4):
            e(f"ds_read_b128 {wf(sg)}, v{(250 if ks else 246)+sg} offset:{slot*8192}")
        for sg in range(4):
            e(f"s_waitcnt lgkmcnt({3-sg})")
            if sg == 3 and ks == 1: issueA(slot)
            for c in range(7):
                e(f"{MFMA} {acc(c,sg)}, {Z(n,c)}, {wf(sg)}, {acc(c,sg)}")
        issueZ(n)
    e("s_sub_u32 s40, s40, 1"); e("s_cmp_lg_u32 s40, 0"); e("s_cbranch_scc1 k2_loop")
    e("s_waitcnt vmcnt(0)")
    k.srd(24, 8, 9, ZF_BYTES, WS_Z1F)
    k.srd(28, 8, 9, ZF_BYTES, WS_HF)
    k.srd(16, 6, 7, 4096)
    e("s_lshl_b32 s43, s35, 2"); e("s_add_u32 s43, s43, s32"); e("s_mul_i32 s44, s43, 27648")
    for c in range(7):
        e(f"s_add_u32 s45, s37, {c}"); e("s_lshr_b32 s46, s45, 1"); e("s_lshl_b32 s46, s46, 10"); e("s_and_b32 s45, s45, 1"); e("s_lshl_b32 s45, s45, 3")
        e("s_add_u32 s45, s45, s46"); e(f"s_add_u32 s{52+c}, s45, s44")
    e("s_cmp_eq_u32 s36, 3"); e(f"s_cselect_b32 s58, {HUGE}, s58")
    for c in range(7): e(f"buffer_load_dwordx2 {v(200+2*c,2)}, v244, s[24:27], s{52+c} offen")
    e("s_lshr_b32 s44, s43, 1"); e("s_lshl_b32 s44, s44, 5"); e("s_and_b32 s45, s43, 1"); e("s_lshl_b32 s45, s45, 2"); e("s_add_u32 s44, s44, s45")
    e("v_lshrrev_b32 v216, 2, v240"); e("v_and_b32 v217, 3, v240"); e("v_lshl_add_u32 v216, v216, 3, v217"); e("v_add_u32 v216, s44, v216")
    e("v_lshlrev_b32 v216, 1, v216")
    e("buffer_load_ushort v214, v216, s[16:19], 0 offen")
    e("v_add_u32 v220, s39, v244")
    e("s_xor_b32 s43, s39, 0x4000"); e("v_add_u32 v221, s43, v244")
    e("s_xor_b32 s43, s39, 0xc000"); e("v_add_u32 v222, s43, v244")
    for c in range(7):
        for h in range(2): e(f"ds_write_b128 v220, {acc(c,1+2*h)} offset:{(c*2+h)*1024}")
    e("s_waitcnt lgkmcnt(0)"); e("s_barrier")
    for c in range(7):
        for h in range(2): e(f"ds_read_b128 {v(112+(c*2+h)*4,4)}, v221 offset:{(c*2+h)*1024}")
    e("s_waitcnt lgkmcnt(0)")
    for c in range(7):
        for h in (1, 0):
            for r in range(4):
                a = (c*4 + 2*h)*4 + r
                e(f"v_add_f32 v{a}, v{a}, v{112+(c*2+h)*4+r}")
    for c in range(7): e(f"ds_write_b128 v221, {acc(c,2)} offset:{c*1024}")
    e("s_waitcnt lgkmcnt(0)"); e("s_barrier")
    for c in range(7): e(f"ds_read_b128 {v(112+c*4,4)}, v222 offset:{c*1024}")
    e("s_waitcnt vmcnt(0) lgkmcnt(0)")
    e("v_lshlrev_b32 v214, 16, v214")
    for c in range(7):
        A = [c*16 + r for r in range(4)]
        for r in range(4): e(f"v_add_f32 v{A[r]}, v{A[r]}, v{112+c*4+r}")
        for p in range(2): e(f"v_cvt_pk_bf16_f32 v{150+p}, v{A[2*p]}, v{A[2*p+1]}")
        for p in range(2):
            e(f"v_lshlrev_b32 v{A[2*p]}, 16, v{150+p}"); e(f"v_and_b32 v{A[2*p+1]}, 0xffff0000, v{150+p}")
        for r in range(4): e(f"v_add_f32 v{A[r]}, v{A[r]}, v214")
        for p in range(2): e(f"v_cvt_pk_bf16_f32 v{150+p}, v{A[2*p]}, v{A[2*p+1]}")
        for p in range(2):
            e(f"v_lshlrev_b32 v{A[2*p]}, 16, v{150+p}"); e(f"v_and_b32 v{A[2*p+1]}, 0xffff0000, v{150+p}")
            e(f"v_lshlrev_b32 v{152+2*p}, 16, v{200+2*c+p}"); e(f"v_and_b32 v{153+2*p}, 0xffff0000, v{200+2*c+p}")
        for r in range(4): e(f"v_mul_f32 v{A[r]}, v{A[r]}, v{152+r}")
        for p in range(2): e(f"v_cvt_pk_bf16_f32 v{160+2*c+p}, v{A[2*p]}, v{A[2*p+1]}")
        e(f"buffer_store_dwordx2 {v(160+2*c,2)}, v244, s[28:31], s{52+c} offen")
    e("s_endpgm")

    k.label("k2_conv")
    e("s_cmp_ge_u32 s42, 20"); e("s_cbranch_scc1 k2_end")
    e("s_load_dwordx8 s[64:71], s[0:1], 8")
    e("s_load_dwordx4 s[72:75], s[0:1], 40")
    e("s_mul_i32 s35, s41, 20"); e("s_add_u32 s35, s35, s42"); e("s_lshl_b32 s35, s35, 2"); e("s_add_u32 s35, s35, s32"); e("s_sub_u32 s35, s35, 4")
    e("s_sub_u32 s43, s32, 4"); e(f"s_mul_i32 s39, s43, {CONV_B}"); e("s_add_u32 s39, s39, 65536")
    e("v_and_b32 v2, 15, v1"); e("v_lshrrev_b32 v3, 4, v1")
    e("v_lshlrev_b32 v4, 2, v1"); e("v_lshlrev_b32 v5, 4, v1"); e("v_mov_b32 v6, 0"); e("v_mov_b32 v7, 0")
    e("s_lshl_b32 s43, s35, 8"); e("s_lshl_b32 s44, s35, 1"); e("s_lshl_b32 s45, s35, 12")
    e("s_waitcnt lgkmcnt(0)")
    for a in range(4):
        k.srd(16, 64+2*a, 65+2*a, 640*256)
        k.vmem(f"buffer_load_dword v{8+a}, v4, s[16:19], s43 offen", "p")
    k.srd(16, 72, 73, 1280); k.vmem("buffer_load_ushort v12, v6, s[16:19], s44 offen", "p")
    k.srd(16, 74, 75, 1280); k.vmem("buffer_load_ushort v13, v6, s[16:19], s44 offen", "p")
    k.srd(20, 8, 9, XT_BYTES, WS_XNT)
    k.srd(24, 8, 9, XT_BYTES, WS_YT)
    e(f"s_add_u32 m0, s39, {16640+512}")
    e("s_nop 0")
    for n in range(4): k.vmem(f"buffer_load_dwordx4 v5, s[20:23], s45 offen offset:{n*1024} lds", "u")
    e("v_lshl_add_u32 v14, v1, 3, s39")
    e("ds_write_b64 v14, v[6:7] offset:16640")
    e("v_cvt_f32_u32 v15, v2")
    for i, p in ((8, 512), (9, 516), (10, 1024), (11, 1536), (12, 1792), (13, 4097), (14, 4097), (15, 4097)):
        e(f"v_mov_b32 v16, {f32(p)}"); e(f"v_cmp_eq_u32 vcc, {i}, v2"); e("s_nop 1"); e("v_cndmask_b32 v15, v15, v16, vcc")
    e("v_lshlrev_b32 v16, 3, v2"); e("v_cvt_f32_u32 v16, v16")
    k.wait_vm("p")
    e("v_lshlrev_b32 v12, 16, v12"); e("v_lshlrev_b32 v13, 16, v13")
    exp_precise(k, "v12", "v12", "v20", "v21")
    e("v_cvt_pk_bf16_f32 v12, v12, v12"); e("v_lshlrev_b32 v12, 16, v12")
    e("v_lshl_add_u32 v14, v1, 6, s39")
    for mm in range(2):
        P = 32 + 8*mm
        def unp(dst, src): e(f"v_lshlrev_b32 {dst}, 16, {src}" if mm == 0 else f"v_and_b32 {dst}, 0xffff0000, {src}")
        unp("v22", "v8")
        exp_precise(k, "v22", "v22", "v20", "v21")
        e("v_cvt_pk_bf16_f32 v22, v22, v22"); e("v_lshlrev_b32 v22, 16, v22")
        e("v_mul_f32 v22, v22, v12")
        e(f"v_mul_f32 v{P}, {f32(-LOG2E)}, v22")
        unp("v22", "v9"); e("v_mul_f32 v22, v22, v12"); e(f"v_mul_f32 v{P+1}, 0.15915494, v22")
        unp("v22", "v10"); e("v_mul_f32 v22, v22, v12"); e(f"v_add_f32 v{P+2}, v22, v22")
        unp("v22", "v11"); e("v_mul_f32 v22, v22, v12"); e(f"v_add_f32 v{P+3}, v22, v22")
        for n, pw in ((0, 256.0), (1, 128.0)):
            e(f"v_mul_f32 v20, {f32(pw)}, v{P}"); e(f"v_mul_f32 v21, {f32(pw)}, v{P+1}")
            e("v_exp_f32 v20, v20"); e("v_fract_f32 v21, v21")
            e("v_cos_f32 v22, v21"); e("v_sin_f32 v23, v21"); e("s_nop 0")
            e(f"v_mul_f32 v{P+4+2*n}, v22, v20"); e(f"v_mul_f32 v{P+5+2*n}, v23, v20")
        e(f"ds_write_b128 v14, {v(P,4)} offset:{mm*32}"); e(f"ds_write_b128 v14, {v(P+4,4)} offset:{mm*32+16}")
    for i in range(16): e(f"v_mov_b32 v{128+i}, 0")
    e("v_lshl_add_u32 v14, v3, 7, s39")
    e("s_mov_b32 s40, 8")
    e("s_waitcnt lgkmcnt(0)")
    k.label("k2_kgen")
    for mm in range(4):
        e(f"ds_read_b128 {v(32+8*mm,4)}, v14 offset:{mm*32}"); e(f"ds_read_b128 {v(36+8*mm,4)}, v14 offset:{mm*32+16}")
    e("v_add_u32 v14, 512, v14")
    e("s_waitcnt lgkmcnt(0)")
    seqs = []
    for mm in range(4):
        al, be, cr, ci, zr, zi, yr, yi = [f"v{32+8*mm+i}" for i in range(8)]
        T = [f"v{80+12*mm+i}" for i in range(12)]
        seqs.append([f"v_mul_f32 {T[0]}, {al}, v15", f"v_mul_f32 {T[1]}, {be}, v15", f"v_fract_f32 {T[1]}, {T[1]}", f"v_exp_f32 {T[0]}, {T[0]}",
                     f"v_sin_f32 {T[2]}, {T[1]}", f"v_cos_f32 {T[3]}, {T[1]}",
                     f"v_mul_f32 {T[5]}, {cr}, {T[2]}", f"v_mul_f32 {T[4]}, {cr}, {T[3]}", f"v_fma_f32 {T[4]}, -{ci}, {T[2]}, {T[4]}", f"v_fmac_f32 {T[5]}, {ci}, {T[3]}",
                     f"v_mul_f32 {T[4]}, {T[4]}, {T[0]}", f"v_mul_f32 {T[5]}, -{T[5]}, {T[0]}",
                     f"v_cvt_pk_bf16_f32 v{64+mm}, {T[4]}, {T[5]}",
                     f"v_mul_f32 {T[2]}, {T[4]}, {zr}", f"v_mul_f32 {T[3]}, {T[5]}, {zr}", f"v_fmac_f32 {T[2]}, {T[5]}, {zi}", f"v_fma_f32 {T[3]}, -{T[4]}, {zi}, {T[3]}",
                     f"v_cvt_pk_bf16_f32 v{68+mm}, {T[2]}, {T[3]}"])
        seqs.append([f"v_mul_f32 {T[6]}, {al}, v16", f"v_mul_f32 {T[7]}, {be}, v16", f"v_fract_f32 {T[7]}, {T[7]}", f"v_exp_f32 {T[6]}, {T[6]}",
                     f"v_sin_f32 {T[8]}, {T[7]}", f"v_cos_f32 {T[9]}, {T[7]}",
                     f"v_mul_f32 {T[8]}, {T[8]}, {T[6]}", f"v_mul_f32 {T[9]}, {T[9]}, {T[6]}",
                     f"v_cvt_pk_bf16_f32 v{72+mm}, {T[9]}, {T[8]}",
                     f"v_mul_f32 {T[10]}, {T[9]}, {yr}", f"v_mul_f32 {T[11]}, {T[9]}, {yi}", f"v_fma_f32 {T[10]}, -{T[8]}, {yi}, {T[10]}", f"v_fmac_f32 {T[11]}, {T[8]}, {yr}",
                     f"v_cvt_pk_bf16_f32 v{76+mm}, {T[10]}, {T[11]}"])
    k.batch(seqs)
    e("s_nop 1")
    for ab in range(2):
        for bb in range(2):
            D = v(128 + (ab*2+bb)*4, 4)
            e(f"{MFMA} {D}, {v(64+4*ab,4)}, {v(72+4*bb,4)}, {D}")
    e("s_sub_u32 s40, s40, 1"); e("s_cmp_lg_u32 s40, 0"); e("s_cbranch_scc1 k2_kgen")
    KC = 21248
    e("v_lshlrev_b32 v20, 4, v3")
    for r in range(4):
        e(f"v_add_u32 v21, {4*r}, v20"); e(f"ds_bpermute_b32 v{24+r}, v21, v15")
    e(f"s_add_u32 s43, s39, {KC}")
    e(f"s_add_u32 s44, s39, {KC + 256 - 2*0x4300}")
    e(f"s_add_u32 s45, s39, {KC + 1500}")
    e("v_mov_b32 v30, s45"); e(f"v_mov_b32 v31, {f32(128.0)}")
    e("s_waitcnt lgkmcnt(0)")
    for r in range(4): e(f"v_add_f32 v{24+r}, v{24+r}, v16")
    for ab in range(2):
        for bb in range(2):
            for r in range(4):
                D = 128 + (ab*2+bb)*4 + r
                e(f"v_add_f32 v20, {f32(256.0*ab + 128.0*bb)}, v{24+r}")
                e("v_lshrrev_b32 v21, 16, v20"); e("v_lshl_add_u32 v21, v21, 1, s44")
                if ab == 0 and bb == 0:
                    e("v_cvt_u32_f32 v22, v20"); e("v_lshl_add_u32 v22, v22, 1, s43")
                    e("v_cmp_lt_f32 vcc, v20, v31"); e("s_nop 1"); e("v_cndmask_b32 v21, v21, v22, vcc")
                e("v_and_b32 v22, 0xffff, v20"); e("v_cmp_eq_u32 vcc, 0, v22")
                e(f"v_cvt_pk_bf16_f32 v23, v{D}, v{D}"); e("s_nop 0")
                e("v_cndmask_b32 v21, v30, v21, vcc")
                e("ds_write_b16 v21, v23")
    e("v_mov_b32 v8, 0"); e("v_mov_b32 v9, 0"); e("v_mov_b32 v10, 0"); e("v_mov_b32 v11, 0")
    e("v_lshl_add_u32 v14, v1, 4, s39")
    e("v_cmp_gt_u32 vcc, 5, v1"); e("s_and_saveexec_b64 s[46:47], vcc")
    for c in range(4): e(f"ds_write_b128 v14, v[8:11] offset:{c*4160}")
    e("s_mov_b64 exec, s[46:47]")
    e("v_lshlrev_b32 v20, 3, v1"); e("v_cvt_f32_u32 v20, v20")
    e("s_waitcnt lgkmcnt(0)")
    for m in range(4):
        W = 32 + 16*m
        for pr in range(5):
            lo = 512*m - 1 + 2*pr
            e(f"v_add_f32 v{96+2*pr}, {f32(lo)}, v20"); e(f"v_add_f32 v{97+2*pr}, {f32(lo+1)}, v20")
        if m == 0: e("v_max_f32 v96, 0, v96")
        for pr in range(5): e(f"v_cvt_pk_bf16_f32 v{108+pr}, v{96+2*pr}, v{97+2*pr}")
        for el in range(9):
            a = f"v{114+el}"
            if el % 2 == 0: e(f"v_and_b32 {a}, 0xffff, v{108+el//2}")
            else: e(f"v_lshrrev_b32 {a}, 16, v{108+el//2}")
            e(f"v_lshl_add_u32 {a}, {a}, 1, s44")
            if m == 0:
                e(f"v_cvt_u32_f32 v21, v{96+el}"); e("v_lshl_add_u32 v21, v21, 1, s43")
                e(f"v_cmp_lt_f32 vcc, v{96+el}, v31"); e("s_nop 1"); e(f"v_cndmask_b32 {a}, {a}, v21, vcc")
        for el in range(9): e(f"ds_read_u16 v{144+9*m+el}, v{114+el}")
    e("s_waitcnt lgkmcnt(0)")
    e("v_cmp_eq_u32 vcc, 0, v1"); e("s_nop 1"); e("v_cndmask_b32 v144, v144, v8, vcc")
    for m in range(4):
        W = 32 + 16*m
        E = 144 + 9*m
        for p in range(4):
            e(f"v_lshl_or_b32 v{W+p}, v{E+2*p+2}, 16, v{E+2*p+1}")
            e(f"v_lshl_or_b32 v{W+8+p}, v{E+2*p+1}, 16, v{E+2*p}")
        o = 64 + 1024*m
        e(f"ds_write_b128 v14, {v(W,4)} offset:{o}")
        e(f"ds_write_b128 v14, {v(W+8,4)} offset:{4160+o}")
        for cpy, src in ((2, W), (3, W+8)):
            for p in range(4): e(f"ds_write_b32 v14, v{src+p} offset:{cpy*4160+o+4+4*p}")
    e("v_bfe_u32 v20, v1, 2, 2"); e("v_mul_u32_u24 v20, 4160, v20")
    e("v_and_b32 v21, 3, v1"); e("v_lshl_add_u32 v20, v21, 3, v20")
    e("v_lshlrev_b32 v21, 4, v3"); e("v_sub_u32 v20, v20, v21")
    e("s_add_u32 s43, s39, 88"); e("v_add_u32 v17, s43, v20")
    e("v_lshlrev_b32 v20, 5, v2"); e("v_lshl_add_u32 v20, v3, 4, v20")
    e(f"s_add_u32 s43, s39, {16640+480}"); e("v_add_u32 v18, s43, v20")
    def Af(m): return 32 + 4*m
    def Bf(r): return 64 + 4*r
    def ac(cb): return v(96 + 4*cb, 4)
    for i in range(32): e(f"v_mov_b32 v{96+i}, 0")
    k.wait_vm("u")
    e("s_waitcnt lgkmcnt(0)")
    def rdA(m):
        e(f"ds_read_b64_tr_b16 {v(Af(m),2)}, v17 offset:{512*m+8}"); e(f"ds_read_b64_tr_b16 {v(Af(m)+2,2)}, v17 offset:{512*m}")
    def rdB(r): e(f"ds_read_b128 {v(Bf(r),4)}, v18 offset:{512*r}")
    for m in range(8): rdA(m); rdB(7-m)
    e("s_mov_b32 s40, 8")
    k.label("k2_cloop")
    e("v_add_u32 v17, 64, v17"); e("v_subrev_u32 v18, 64, v18")
    for m in range(8):
        for cb in (range(7, -1, -1) if m == 0 else range(m, 8)):
            if m == 0: e(f"s_waitcnt lgkmcnt({min(3*cb, 15)})")
            e(f"{MFMA} {ac(cb)}, {v(Af(m),4)}, {v(Bf(cb-m),4)}, {ac(cb)}")
        rdA(m); rdB(7-m)
    e("s_sub_u32 s40, s40, 1"); e("s_cmp_lg_u32 s40, 0"); e("s_cbranch_scc1 k2_cloop")
    e("s_waitcnt lgkmcnt(0)")
    e("v_lshlrev_b32 v20, 5, v2"); e("v_lshl_add_u32 v20, v3, 3, v20")
    e(f"s_add_u32 s43, s39, {16640+512}"); e("v_add_u32 v21, s43, v20")
    for cb in range(8): e(f"ds_read_b64 {v(32+2*cb,2)}, v21 offset:{512*cb}")
    e("s_lshl_b32 s45, s35, 12")
    e("s_waitcnt lgkmcnt(0)")
    for cb in range(8):
        A = [96 + 4*cb + r for r in range(4)]
        for p in range(2): e(f"v_cvt_pk_bf16_f32 v{64+p}, v{A[2*p]}, v{A[2*p+1]}")
        for p in range(2):
            e(f"v_lshlrev_b32 v{66+2*p}, 16, v{32+2*cb+p}"); e(f"v_and_b32 v{67+2*p}, 0xffff0000, v{32+2*cb+p}")
            e(f"v_lshlrev_b32 v{A[2*p]}, 16, v{64+p}"); e(f"v_and_b32 v{A[2*p+1]}, 0xffff0000, v{64+p}")
        for r in range(4): e(f"v_mul_f32 v{66+r}, v{66+r}, v13")
        for p in range(2): e(f"v_cvt_pk_bf16_f32 v{64+p}, v{66+2*p}, v{67+2*p}")
        for p in range(2):
            e(f"v_lshlrev_b32 v{66+2*p}, 16, v{64+p}"); e(f"v_and_b32 v{67+2*p}, 0xffff0000, v{64+p}")
        for r in range(4): e(f"v_add_f32 v{A[r]}, v{A[r]}, v{66+r}")
        for p in range(2): e(f"v_cvt_pk_bf16_f32 v{32+2*cb+p}, v{A[2*p]}, v{A[2*p+1]}")
        e(f"buffer_store_dwordx2 {v(32+2*cb,2)}, v20, s[24:27], s45 offen offset:{512*cb}")
    k.label("k2_end")
    e("s_endpgm")
    return k.text(256)
```

```python
from asmlib import *
from gen_k1 import *
K3_Y = 28 * 5120
K3_LDS = K3_Y + 12288
def gen_k3():
    k = Kern("k3_kernel"); e = k.e
    e("s_cmp_ge_u32 s2, 256"); e("s_cbranch_scc1 k3_end")
    e("s_load_dwordx2 s[4:5], s[0:1], 0")
    e("s_load_dwordx4 s[8:11], s[0:1], 88")
    e("s_load_dwordx2 s[12:13], s[0:1], 112")
    e("v_and_b32 v1, 63, v0"); e("v_lshrrev_b32 v2, 6, v0")
    e("s_and_b32 s41, s2, 7")
    e("v_readfirstlane_b32 s32, v2")
    e("s_lshr_b32 s42, s2, 3")
    e("s_lshl_b32 s35, s41, 2"); e("s_lshr_b32 s43, s42, 3"); e("s_add_u32 s35, s35, s43")
    e("s_and_b32 s36, s42, 7")
    e("s_mul_i32 s43, s36, 160")
    for ee in range(5):
        e(f"v_add_u32 v2, {64*ee}, v1"); e("v_mul_u32_u24 v3, 205, v2"); e("v_lshrrev_b32 v3, 11, v3")
        e("v_mul_u32_u24 v4, 10, v3"); e("v_sub_u32 v4, v2, v4")
        e("v_mul_u32_u24 v3, 1280, v3"); e("v_lshl_add_u32 v3, v4, 4, v3")
        e(f"v_add_u32 v{10+ee}, s43, v3")
        if ee % 4: e(f"v_subrev_u32 v{10+ee}, {(ee%4)*1024}, v{10+ee}")
    e("v_lshlrev_b32 v15, 4, v1")
    e("s_lshl_b32 s37, s35, 2"); e("s_add_u32 s37, s37, s32")
    e("s_mul_i32 s38, s37, 27648")
    e(f"s_mul_i32 s39, s32, {32*1280}")
    e("s_mul_i32 s40, s32, 5120")
    e("s_waitcnt lgkmcnt(0)")
    k.srd(16, 8, 9, 864*1280)
    k.srd(20, 12, 13, ZF_BYTES, WS_HF)
    k.srd(24, 12, 13, XT_BYTES, WS_YT)
    k.srd(28, 4, 5, 2048*1280)
    k.srd(44, 10, 11, 2048*1280)
    def H(G): return v(48 + 4*G, 4)
    def issue_round(i):
        e("s_mov_b32 m0, s40"); e("s_add_u32 s43, s40, 4096")
        for ee in range(4): k.vmem(f"buffer_load_dwordx4 v{10+ee}, s[16:19], s39 offen offset:{ee*1024} lds", f"w{i}")
        e("s_mov_b32 m0, s43"); e(f"s_add_u32 s40, s40, {4*5120}")
        k.vmem(f"buffer_load_dwordx4 v14, s[16:19], s39 offen lds", f"w{i}")
        e(f"s_add_u32 s39, s39, {4*32*1280}")
        for g in range(4):
            G = 4*i + g
            if G < 27: k.vmem(f"buffer_load_dwordx4 {H(G)}, v15, s[20:23], s38 offen offset:{g*1024}", f"h{i}")
        e("s_add_u32 s38, s38, 4096")
    for i in range(5): issue_round(i)
    e("v_and_b32 v2, 15, v1"); e("v_lshrrev_b32 v3, 4, v1")
    e("v_bfe_u32 v4, v1, 2, 2"); e("v_lshl_add_u32 v4, v3, 2, v4")
    e("v_and_b32 v5, 3, v1")
    e("v_mul_u32_u24 v16, 160, v4"); e("v_lshl_add_u32 v16, v5, 3, v16")
    e("v_add_u32 v17, 0xa000, v16"); e("v_add_u32 v18, 0x14000, v16"); e("v_add_u32 v19, 0x1e000, v16")
    e("s_lshr_b32 s43, s32, 1"); e("s_lshl_b32 s43, s43, 6"); e("s_and_b32 s33, s32, 1"); e("s_lshl_b32 s33, s33, 3"); e("s_add_u32 s43, s43, s33")
    e(f"s_add_u32 s33, s43, {K3_Y}")
    e("v_lshlrev_b32 v20, 7, v4"); e("v_lshl_add_u32 v20, v5, 4, v20"); e("v_add_u32 v20, s33, v20")
    e("s_lshr_b32 s43, s43, 1"); e("s_lshl_b32 s33, s35, 6"); e("s_add_u32 s43, s43, s33")
    e("v_lshrrev_b32 v6, 2, v2"); e("v_and_b32 v7, 3, v2"); e("v_lshl_add_u32 v6, v6, 3, v7"); e("v_add_u32 v6, s43, v6")
    e("v_mul_u32_u24 v6, 1280, v6"); e("v_lshl_add_u32 v6, v3, 3, v6"); e("s_mul_i32 s43, s36, 160"); e("v_add_u32 v21, s43, v6")
    e("v_lshrrev_b32 v6, 3, v1"); e("v_lshlrev_b32 v6, 12, v6"); e("v_and_b32 v7, 7, v1"); e("v_lshl_add_u32 v22, v7, 4, v6")
    e("s_mul_i32 s33, s36, 80"); e("s_lshl_b32 s43, s32, 3"); e("s_add_u32 s33, s33, s43"); e("s_lshl_b32 s33, s33, 12"); e("s_lshl_b32 s43, s35, 7"); e("s_add_u32 s33, s33, s43")
    e("s_lshl_b32 s34, s32, 10"); e(f"s_add_u32 s34, s34, {K3_Y}")
    for i in range(24, 44): e(f"v_mov_b32 v{i}, 0")
    def acc(db): return v(24 + 4*db, 4)
    WF = 160
    for i in range(7):
        k.wait_vm(f"h{i}")
        e("s_barrier")
        ng = 4 if i < 6 else 3
        def reads(g):
            G = 4*i + g
            off = G*5120; ar = 16 + off // 0xa000; off %= 0xa000
            for db in range(5):
                for hh in range(2):
                    k.lds(f"ds_read_b64_tr_b16 {v(WF+(g%2)*20+db*4+hh*2,2)}, v{ar} offset:{off + hh*2560 + db*32}", f"f{g}")
        reads(0)
        for g in range(ng):
            if g + 1 < ng: reads(g + 1)
            k.wait_lg(f"f{g}")
            for db in range(5):
                e(f"{MFMA} {acc(db)}, {v(WF+(g%2)*20+db*4,4)}, {H(4*i+g)}, {acc(db)}")
        if i < 2: issue_round(5 + i)
        if i == 2:
            for n in range(3):
                e("s_mov_b32 m0, s34"); e("s_add_u32 s34, s34, 4096")
                k.vmem("buffer_load_dwordx4 v22, s[24:27], s33 offen lds", "y")
                e(f"s_add_u32 s33, s33, {32*4096}")
            for db in range(5): k.vmem(f"buffer_load_dwordx2 {v(200+2*db,2)}, v21, s[28:31], 0 offen offset:{db*32}", "x")
    k.wait_vm_all()
    e("s_barrier")
    for db in range(5): e(f"ds_read_b64_tr_b16 {v(210+2*db,2)}, v20 offset:{db*2048}")
    e("s_waitcnt lgkmcnt(0)")
    for db in range(5):
        A = [24 + 4*db + r for r in range(4)]
        for p in range(2): e(f"v_cvt_pk_bf16_f32 v{48+p}, v{A[2*p]}, v{A[2*p+1]}")
        for p in range(2):
            e(f"v_lshlrev_b32 v{50+2*p}, 16, v{200+2*db+p}"); e(f"v_and_b32 v{51+2*p}, 0xffff0000, v{200+2*db+p}")
            e(f"v_lshlrev_b32 v{54+2*p}, 16, v{210+2*db+p}"); e(f"v_and_b32 v{55+2*p}, 0xffff0000, v{210+2*db+p}")
            e(f"v_lshlrev_b32 v{A[2*p]}, 16, v{48+p}"); e(f"v_and_b32 v{A[2*p+1]}, 0xffff0000, v{48+p}")
        for r in range(4): e(f"v_add_f32 v{50+r}, v{50+r}, v{54+r}")
        for p in range(2): e(f"v_cvt_pk_bf16_f32 v{48+p}, v{50+2*p}, v{51+2*p}")
        for p in range(2):
            e(f"v_lshlrev_b32 v{50+2*p}, 16, v{48+p}"); e(f"v_and_b32 v{51+2*p}, 0xffff0000, v{48+p}")
        for r in range(4): e(f"v_add_f32 v{A[r]}, v{A[r]}, v{50+r}")
        for p in range(2): e(f"v_cvt_pk_bf16_f32 v{60+2*db+p}, v{A[2*p]}, v{A[2*p+1]}")
        e(f"buffer_store_dwordx2 {v(60+2*db,2)}, v21, s[44:47], 0 offen offset:{db*32}")
    k.label("k3_end")
    e("s_endpgm")
    return k.text(224)
```

```python
import sys
from gen_k1 import *
NAME = "parallel_sum__ssm_conv_s4d__mixer_gmlp__prompt"
def build(kernels, launches, path):
    hdr = open(f"cdna_kernels/{NAME}.s.ref").read().split("; Override launch")[0]
    out = hdr
    for (kn, grid, block, lds) in launches:
        out += f"; @launch kernel={kn} grid=({grid},1,1) block=({block},1,1) lds={lds}\n"
    out += '.amdgcn_target "amdgcn-amd-amdhsa--gfx950"\n.text\n'
    for t, kd in kernels: out += t + "\n"
    out += '.section .rodata,"a"\n'
    for t, kd in kernels: out += ".p2align 6\n" + kd + "\n"
    open(path, "w").write(out)
if __name__ == "__main__":
    path = sys.argv[1] if len(sys.argv) > 1 else f"cdna_kernels/{NAME}.s"
    ks = [gen_k1(), gen_k1b()]
    ls = [("k1_kernel", 256, 512, K1_LDS), ("k1b_kernel", 256, 256, 0)]
    try:
        from gen_k2 import *
        ks.append(gen_k2()); ls.append(("k2_kernel", 256, 512, K2_LDS))
        from gen_k3 import *
        ks.append(gen_k3()); ls.append(("k3_kernel", 256, 256, K3_LDS))
    except ImportError as ex:
        print("partial build:", ex)
    build(ks, ls, path)
```

```python
import struct, os
PROFILE = int(os.environ.get('PROFILE', '0'))
def f32(x): return "0x%08x" % struct.unpack("<I", struct.pack("<f", x))[0]

class Kern:
    def __init__(self, name):
        self.name = name; self.lines = []; self.vm = []; self.lg = []; self.nlab = 0
        self.maxv = 0
    def e(self, s):
        self.lines.append("    " + s)
    def c(self, s): self.lines.append("    ; " + s)
    def label(self, l): self.lines.append(l + ":")
    def newlabel(self, base="L"):
        self.nlab += 1; return f"{self.name}_{base}{self.nlab}"
    def vmem(self, s, tag=None):
        self.e(s); self.vm.append(tag)
    def wait_vm(self, tag):
        idx = max(i for i, t in enumerate(self.vm) if t == tag)
        n = len(self.vm) - 1 - idx
        assert n <= 63
        self.e(f"s_waitcnt vmcnt({n})"); self.vm = self.vm[idx + 1:]
    def wait_vm_all(self):
        self.e("s_waitcnt vmcnt(0)"); self.vm = []
    def lds(self, s, tag=None):
        self.e(s); self.lg.append(tag)
    def wait_lg(self, tag):
        idxs = [i for i, t in enumerate(self.lg) if t == tag]
        if not idxs: return
        idx = max(idxs)
        n = min(len(self.lg) - 1 - idx, 15)
        self.e(f"s_waitcnt lgkmcnt({n})"); self.lg = self.lg[len(self.lg) - n:] if n else []
    def wait_lg_all(self):
        self.e("s_waitcnt lgkmcnt(0)"); self.lg = []
    def batch(self, seqs):
        n = max(len(s) for s in seqs)
        for i in range(n):
            for s in seqs:
                if i < len(s) and s[i]: self.e(s[i])
    def srd(self, d, lo, hi, nbytes, add=0):
        if add:
            self.e(f"s_add_u32 s{d}, s{lo}, {add}")
            self.e(f"s_addc_u32 s{d+1}, s{hi}, 0")
        else:
            self.e(f"s_mov_b32 s{d}, s{lo}")
            self.e(f"s_mov_b32 s{d+1}, s{hi}")
        self.e(f"s_mov_b32 s{d+2}, {nbytes}")
        self.e(f"s_mov_b32 s{d+3}, 0x00020000")
    def stamp(self, idx):
        if not PROFILE: return
        self.e("s_memrealtime s[94:95]"); self.e("s_waitcnt lgkmcnt(0)"); self.e(f"s_mov_b32 s{76+idx}, s94")
        self.lg = []
    def cyc(self, idx):
        if not PROFILE: return
        self.e("s_memtime s[94:95]"); self.e("s_waitcnt lgkmcnt(0)"); self.e(f"s_mov_b32 s{76+idx}, s94")
    def stamp_init(self):
        if not PROFILE: return
        for i in range(16): self.e(f"s_mov_b32 s{76+i}, 0")
        self.stamp(0)
    def end(self, kidx, wave_s="s32"):
        if PROFILE:
            e = self.e
            self.stamp(15)
            e("s_getreg_b32 s90, hwreg(HW_REG_HW_ID)")
            e("s_mov_b64 exec, 1")
            e("s_load_dwordx2 s[92:93], s[0:1], 112"); e("s_waitcnt lgkmcnt(0)")
            self.srd(72, 92, 93, 1 << 20, 32 << 20)
            e(f"s_lshl_b32 s92, s2, 4"); e(f"s_add_u32 s92, s92, {wave_s}"); e(f"s_add_u32 s92, s92, {kidx*4096}"); e("s_lshl_b32 s92, s92, 6")
            e("v_mov_b32 v1, 0")
            for i in range(16):
                e(f"v_mov_b32 v0, s{76+i}"); e(f"buffer_store_dword v0, v1, s[72:75], s92 offen offset:{4*i}")
        self.e("s_endpgm")
    def text(self, nvgpr, nsgpr=96, accum=None):
        acc = accum if accum is not None else ((nvgpr + 3) // 4) * 4
        head = [f".globl {self.name}", ".p2align 8", f".type {self.name},@function", f"{self.name}:"]
        kd = [".amdhsa_kernel " + self.name,
              f"  .amdhsa_next_free_vgpr {nvgpr}", f"  .amdhsa_next_free_sgpr {nsgpr}", f"  .amdhsa_accum_offset {acc}",
              "  .amdhsa_group_segment_fixed_size 0", "  .amdhsa_kernarg_size 120", "  .amdhsa_user_sgpr_count 2",
              "  .amdhsa_user_sgpr_kernarg_segment_ptr 1", "  .amdhsa_system_sgpr_workgroup_id_x 1",
              "  .amdhsa_float_denorm_mode_32 3",
              ".end_amdhsa_kernel"]
        return "\n".join(head + self.lines), "\n".join(kd)

def v(n, cnt=1): return f"v{n}" if cnt == 1 else f"v[{n}:{n+cnt-1}]"
def s(n, cnt=1): return f"s{n}" if cnt == 1 else f"s[{n}:{n+cnt-1}]"
```

```python
from asmlib import *
MB = 1 << 20
import os
CODEPF = int(os.environ.get('CODEPF', '0'))
WS_XNT, WS_Z2F, WS_Z1F, WS_HF, WS_YT, WS_ST2 = 0, 4*MB, 8*MB, 12*MB, 16*MB, 20*MB
ZF_BYTES = 54 * 65536
XT_BYTES = 640 * 4096
HUGE = 0x40000000
GC0 = -2.0 * 0.7978845608028654 * 1.4426950408889634
GC1 = GC0 * 0.044715
MFMA = "v_mfma_f32_16x16x32_bf16"

def gelu_seq(a, t, vc1):
    return [f"v_mul_f32 {t}, {a}, {a}",
            f"v_fmaak_f32 {t}, {vc1}, {t}, {f32(GC0)}",
            f"v_mul_f32 {t}, {t}, {a}",
            f"v_exp_f32 {t}, {t}",
            f"v_add_f32 {t}, 1.0, {t}",
            f"v_rcp_f32 {t}, {t}",
            f"v_mul_f32 {a}, {a}, {t}"]

def ln_finish(k, mean, var, t):
    k.e(f"v_max_f32 {var}, 0, {var}")
    k.e(f"v_cvt_pk_bf16_f32 {t}, {mean}, {var}")
    k.e(f"v_lshlrev_b32 {mean}, 16, {t}")
    k.e(f"v_and_b32 {var}, 0xffff0000, {t}")
    k.e(f"v_add_f32 {var}, {f32(1e-5)}, {var}")
    k.e(f"v_cvt_pk_bf16_f32 {t}, {var}, {var}")
    k.e(f"v_lshlrev_b32 {var}, 16, {t}")
    k.e(f"v_sqrt_f32 {var}, {var}")
    k.e("s_nop 0")
    k.e(f"v_cvt_pk_bf16_f32 {t}, {var}, {var}")
    k.e(f"v_lshlrev_b32 {var}, 16, {t}")
    k.e(f"v_rcp_f32 {var}, {var}")
    k.e("s_nop 0")

K1_LDS = 131072 + 1536
def gen_k1():
    k = Kern("k1_kernel")
    e = k.e
    e("s_cmp_ge_u32 s2, 256"); e("s_cbranch_scc1 k1_end")
    k.stamp_init()
    e("s_load_dwordx2 s[4:5], s[0:1], 0")
    e("s_load_dwordx2 s[6:7], s[0:1], 64")
    e("s_load_dwordx2 s[8:9], s[0:1], 112")
    e("s_load_dwordx2 s[10:11], s[0:1], 72")
    e("s_load_dwordx2 s[12:13], s[0:1], 88")
    e("v_and_b32 v1, 63, v0")
    e("v_lshrrev_b32 v2, 6, v0")
    e("s_and_b32 s41, s2, 7")
    e("v_readfirstlane_b32 s32, v2")
    e("s_lshr_b32 s42, s2, 3")
    if CODEPF:
        e("s_getpc_b64 s[60:61]")
        k.label("k1_pc")
        e("s_mov_b32 s62, text_end-k1_pc"); e("s_mov_b32 s63, 0x00020000")
        e("v_lshlrev_b32 v3, 4, v1"); e("s_lshl_b32 s43, s32, 12")
        for n in range(4): e(f"buffer_load_dwordx4 v[120:123], v3, s[60:63], s43 offen offset:{n*1024}")
    e("s_cmp_ge_u32 s42, 28"); e("s_cbranch_scc1 k1_helper")
    e("s_mul_i32 s43, s42, 37"); e("s_lshr_b32 s43, s43, 8")
    e("s_mul_i32 s44, s43, 7"); e("s_sub_u32 s44, s42, s44")
    e("s_lshr_b32 s35, s41, 1"); e("s_lshl_b32 s35, s35, 2"); e("s_add_u32 s35, s35, s43")
    e("s_and_b32 s36, s41, 1"); e("s_mul_i32 s36, s36, 7"); e("s_add_u32 s36, s36, s44")
    e("s_and_b32 s33, s32, 3"); e("s_lshr_b32 s34, s32, 2")
    e("s_lshl_b32 s43, s35, 7"); e("s_lshr_b32 s44, s32, 1"); e("s_lshl_b32 s44, s44, 5"); e("s_add_u32 s43, s43, s44")
    e("s_and_b32 s44, s32, 1"); e("s_lshl_b32 s44, s44, 2"); e("s_add_u32 s43, s43, s44")
    e("v_lshrrev_b32 v2, 5, v1"); e("v_lshlrev_b32 v2, 3, v2")
    e("v_bfe_u32 v3, v1, 3, 2"); e("v_add3_u32 v2, v2, v3, s43")
    e("v_mul_u32_u24 v2, 1280, v2")
    e("v_and_b32 v3, 7, v1"); e("v_lshrrev_b32 v4, 4, v1"); e("v_xor_b32 v3, v3, v4")
    e("v_lshl_add_u32 v10, v3, 4, v2")
    e("v_xor_b32 v3, 4, v3")
    e("v_lshl_add_u32 v11, v3, 4, v2"); e(f"v_add_u32 v11, {16*1280 - 1024}, v11")
    e("s_lshl_b32 s43, s33, 4")
    e("v_lshrrev_b32 v2, 3, v1"); e("v_add_u32 v2, s43, v2"); e("v_mul_u32_u24 v2, 3456, v2")
    e("s_cmp_eq_u32 s34, 0"); e("s_cselect_b32 s43, 1728, 0"); e("s_lshl_b32 s44, s36, 7"); e("s_add_u32 s43, s43, s44")
    e("v_add_u32 v2, s43, v2")
    e("v_and_b32 v3, 7, v1"); e("v_bfe_u32 v4, v1, 4, 1"); e("v_lshlrev_b32 v4, 1, v4"); e("v_xor_b32 v3, v3, v4")
    e("v_lshl_add_u32 v12, v3, 4, v2")
    e("v_xor_b32 v3, 4, v3")
    e("v_lshl_add_u32 v13, v3, 4, v2"); e(f"v_add_u32 v13, {8*3456 - 1024}, v13")
    e("s_waitcnt lgkmcnt(0)")
    k.srd(16, 4, 5, 2048*1280)
    k.srd(20, 6, 7, 640*3456)
    e("s_mov_b32 s37, 0"); e("s_mov_b32 s38, 0"); e("s_lshl_b32 s39, s32, 11")
    def dma():
        e("s_mov_b32 m0, s39")
        e("s_add_u32 s43, s39, 16384")
        e("buffer_load_dwordx4 v10, s[16:19], s37 offen lds")
        e("buffer_load_dwordx4 v11, s[16:19], s37 offen offset:1024 lds")
        e("s_mov_b32 m0, s43")
        e("s_add_u32 s39, s39, 32768")
        e("buffer_load_dwordx4 v12, s[20:23], s38 offen lds")
        e("buffer_load_dwordx4 v13, s[20:23], s38 offen offset:1024 lds")
        e("s_and_b32 s39, s39, 0x1ffff")
        e("s_add_u32 s37, s37, 128")
        e(f"s_add_u32 s38, s38, {64*3456}")
        e("s_cmp_ge_u32 s37, 1280")
        e(f"s_cselect_b32 s37, {HUGE}, s37")
    for _ in range(3): dma()
    e("v_and_b32 v2, 15, v1"); e("v_lshrrev_b32 v3, 4, v1")
    e("s_lshl_b32 s43, s33, 5")
    e("v_add_u32 v4, s43, v2"); e("v_lshlrev_b32 v4, 7, v4")
    e("v_lshrrev_b32 v5, 1, v2"); e("v_xor_b32 v5, v5, v3")
    e("v_lshl_add_u32 v14, v5, 4, v4")
    e("v_xor_b32 v15, 64, v14")
    e("v_bfe_u32 v4, v1, 2, 2")
    e("v_lshl_add_u32 v5, v3, 3, v4"); e("v_lshlrev_b32 v5, 7, v5")
    e("v_and_b32 v6, 3, v1"); e("v_lshl_add_u32 v5, v6, 3, v5")
    e("s_lshl_b32 s43, s34, 13"); e("s_add_u32 s43, s43, 16384"); e("v_add_u32 v5, s43, v5")
    e("v_lshrrev_b32 v6, 1, v4"); e("v_and_b32 v7, 1, v3"); e("v_lshl_or_b32 v6, v7, 1, v6")
    e("v_xor_b32 v6, s33, v6")
    for c in range(4):
        e(f"v_xor_b32 v7, {c}, v6"); e(f"v_lshl_add_u32 v{16+c}, v7, 5, v5")
    for i in range(4): e(f"v_mov_b32 v{20+i}, 0x3f803f80")
    for i in range(72, 116): e(f"v_mov_b32 v{i}, 0")
    k.stamp(1)
    e("s_waitcnt vmcnt(8)") if PROFILE else None
    k.stamp(2)
    e("s_mov_b32 s40, 10")
    e("s_cmp_eq_u32 s34, 1"); e("s_cbranch_scc1 k1_loop1")
    def xf(ks, b): return v(24 + 24*ks + 4*b, 4)
    def wf(ks, c): return v(24 + 24*ks + 8 + 4*c, 4)
    def acc(b, c): return v(72 + (b*4 + c)*4, 4)
    for wc in range(2):
        k.label(f"k1_loop{wc}")
        e("s_waitcnt vmcnt(8)")
        e("s_barrier")
        for ks in range(2):
            for b in range(2):
                e(f"ds_read_b128 {xf(ks,b)}, v{14+ks} offset:{2048*b}")
            for c in range(4):
                base = 24 + 24*ks + 8 + 4*c
                for hh in range(2):
                    e(f"ds_read_b64_tr_b16 {v(base+2*hh,2)}, v{16+c} offset:{ks*4096+hh*512}")
            if ks == 0: dma()
        for ks in range(2):
            e(f"s_waitcnt lgkmcnt({10 if ks == 0 else 0})")
            for c in range(4):
                for b in range(2):
                    if wc == 0: e(f"{MFMA} {acc(b,c)}, {xf(ks,b)}, {wf(ks,c)}, {acc(b,c)}")
                    else:       e(f"{MFMA} {acc(b,c)}, {wf(ks,c)}, {xf(ks,b)}, {acc(b,c)}")
            e(f"{MFMA} v[104:107], v[20:23], {xf(ks,wc)}, v[104:107]")
            e(f"{MFMA} v[108:111], {xf(ks,wc)}, {xf(ks,wc)}, v[108:111]")
            e(f"{MFMA} v[112:115], v[20:23], {wf(ks,0)}, v[112:115]")
            if ks == 0:
                for r in range(14, 20):
                    e(f"v_add_u32 v{r}, 0x8000, v{r}")
                    e(f"v_and_b32 v{r}, 0x1ffff, v{r}")
        e("s_sub_u32 s40, s40, 1"); e("s_cmp_lg_u32 s40, 0"); e(f"s_cbranch_scc1 k1_loop{wc}")
        if wc == 0: e("s_branch k1_stats")
    k.label("k1_stats")
    e("s_nop 7")
    k.stamp(3)
    e("v_and_b32 v4, 3, v1")
    e("v_mov_b32 v5, v108")
    for r in range(1, 4):
        e(f"v_cmp_eq_u32 vcc, {r}, v4"); e("s_nop 1"); e(f"v_cndmask_b32 v5, v5, v{108+r}, vcc")
    e(f"v_mul_f32 v6, {f32(1/640)}, v104")
    e(f"v_mul_f32 v5, {f32(1/640)}, v5")
    e("v_fma_f32 v5, -v6, v6, v5")
    ln_finish(k, "v6", "v5", "v7")
    e("s_lshl_b32 s43, s33, 5"); e("s_lshl_b32 s44, s34, 4"); e("s_add_u32 s43, s43, s44")
    e("v_add_u32 v7, s43, v2"); e("v_lshlrev_b32 v7, 2, v7"); e("v_add_u32 v7, 0x20000, v7")
    e("s_lshl_b32 s43, s34, 6"); e("s_lshl_b32 s44, s33, 4"); e("s_add_u32 s43, s43, s44")
    e("v_add_u32 v8, s43, v2"); e("v_lshlrev_b32 v8, 2, v8"); e("v_add_u32 v8, 0x20000, v8")
    e("ds_write_b32 v8, v112 offset:1024")
    e("v_lshrrev_b32 v4, 2, v2")
    e("v_cmp_eq_u32 vcc, v4, v3")
    e("s_and_saveexec_b64 s[44:45], vcc")
    e("ds_write_b32 v7, v6")
    e("ds_write_b32 v7, v5 offset:512")
    e("s_mov_b64 exec, s[44:45]")
    e("s_waitcnt lgkmcnt(0)")
    e("s_barrier")
    k.stamp(4)
    e(f"v_mov_b32 v68, {f32(GC1)}")
    e("v_lshlrev_b32 v69, 4, v1")
    e("s_cmp_eq_u32 s34, 1"); e("s_cbranch_scc1 k1_epi1")
    k.srd(24, 8, 9, ZF_BYTES, WS_Z2F)
    k.srd(28, 8, 9, 262144, WS_ST2)
    e("s_lshl_b32 s43, s33, 7"); e("s_add_u32 s43, s43, 0x20000")
    e("v_lshl_add_u32 v4, v3, 4, s43")
    e("ds_read_b128 v[24:27], v4"); e("ds_read_b128 v[28:31], v4 offset:64")
    e("ds_read_b128 v[32:35], v4 offset:512"); e("ds_read_b128 v[36:39], v4 offset:576")
    for c in range(4):
        e(f"s_xor_b32 s43, s33, {c}")
        e(f"s_lshl_b32 s44, s43, 6"); e("s_add_u32 s44, s44, 0x20400")
        e(f"v_lshl_add_u32 v5, v2, 2, s44")
        e(f"ds_read_b32 v{40+c}, v5")
        e("s_lshl_b32 s44, s36, 2"); e("s_add_u32 s43, s43, s44")
        e(f"s_cmp_lt_u32 s43, 54"); e(f"s_cselect_b32 s{50+c}, -1, 0")
        e(f"s_lshl_b32 s{46+c}, s43, 16")
        e("s_lshl_b32 s44, s35, 2"); e("s_add_u32 s44, s44, s33"); e("s_lshl_b32 s44, s44, 10")
        e(f"s_add_u32 s{46+c}, s{46+c}, s44")
    for i in range(44, 60): e(f"v_mov_b32 v{i}, 0")
    e("s_waitcnt lgkmcnt(0)")
    for c in range(4):
        A = [72 + (b*4 + c)*4 + r for b in range(2) for r in range(4)]
        k.batch([[f"v_fma_f32 v{A[n]}, -v{24+n}, v{40+c}, v{A[n]}", f"v_mul_f32 v{A[n]}, v{A[n]}, v{32+n}"] for n in range(8)])
        for p in range(4): e(f"v_cvt_pk_bf16_f32 v{60+p}, v{A[2*p]}, v{A[2*p+1]}")
        for p in range(4):
            e(f"v_lshlrev_b32 v{A[2*p]}, 16, v{60+p}"); e(f"v_and_b32 v{A[2*p+1]}, 0xffff0000, v{60+p}")
        k.batch([gelu_seq(f"v{A[n]}", f"v{60+n}", "v68") for n in range(8)])
        for p in range(4): e(f"v_cvt_pk_bf16_f32 v{104+4*c+p}, v{A[2*p]}, v{A[2*p+1]}")
        for p in range(4): e(f"v_and_b32 v{104+4*c+p}, s{50+c}, v{104+4*c+p}")
        e(f"buffer_store_dwordx4 {v(104+4*c,4)}, v69, s[24:27], s{46+c} offen")
        for p in range(4):
            e(f"v_lshlrev_b32 v{A[2*p]}, 16, v{104+4*c+p}"); e(f"v_and_b32 v{A[2*p+1]}, 0xffff0000, v{104+4*c+p}")
        k.batch([[f"v_add_f32 v{44+n}, v{44+n}, v{A[n]}", f"v_fmac_f32 v{52+n}, v{A[n]}, v{A[n]}"] for n in range(8)])
    for sh in (8, 4, 2, 1):
        for i in range(44, 60):
            e(f"v_add_f32_dpp v{i}, v{i}, v{i} row_ror:{sh} row_mask:0xf bank_mask:0xf")
    e("s_lshl_b32 s43, s36, 13"); e("s_lshl_b32 s44, s35, 9"); e("s_add_u32 s43, s43, s44")
    e("s_lshl_b32 s44, s33, 7"); e("s_add_u32 s43, s43, s44"); e("s_add_u32 s44, s43, 131072")
    e("v_lshlrev_b32 v4, 5, v3")
    e("v_cmp_eq_u32 vcc, 0, v2")
    e("s_and_saveexec_b64 s[46:47], vcc")
    e("buffer_store_dwordx4 v[44:47], v4, s[28:31], s43 offen")
    e("buffer_store_dwordx4 v[48:51], v4, s[28:31], s43 offen offset:16")
    e("buffer_store_dwordx4 v[52:55], v4, s[28:31], s44 offen")
    e("buffer_store_dwordx4 v[56:59], v4, s[28:31], s44 offen offset:16")
    k.end(0)
    k.label("k1_epi1")
    k.srd(24, 8, 9, ZF_BYTES, WS_Z1F)
    e("s_lshl_b32 s43, s33, 7"); e("s_add_u32 s43, s43, 0x20000")
    e("v_lshl_add_u32 v4, v2, 2, s43")
    e("ds_read_b32 v24, v4"); e("ds_read_b32 v25, v4 offset:64")
    e("ds_read_b32 v26, v4 offset:512"); e("ds_read_b32 v27, v4 offset:576")
    for c in range(4):
        e(f"s_xor_b32 s43, s33, {c}")
        e(f"s_lshl_b32 s44, s43, 6"); e("s_add_u32 s44, s44, 0x20500")
        e(f"v_lshl_add_u32 v5, v3, 4, s44")
        e(f"ds_read_b128 {v(28+4*c,4)}, v5")
    for b in range(2):
        for g in range(2):
            e("s_lshr_b32 s43, s33, 1"); e(f"s_xor_b32 s43, s43, {g}"); e("s_lshl_b32 s44, s36, 1"); e("s_add_u32 s43, s43, s44")
            e("s_lshl_b32 s44, s35, 3"); e("s_lshl_b32 s45, s33, 1"); e("s_add_u32 s44, s44, s45"); e(f"s_add_u32 s44, s44, {b}")
            e("s_mul_i32 s44, s44, 27"); e("s_add_u32 s44, s44, s43"); e("s_lshl_b32 s44, s44, 10")
            e("s_cmp_lt_u32 s43, 27"); e(f"s_cselect_b32 s{46+b*2+g}, s44, {HUGE}")
    e("s_waitcnt lgkmcnt(0)")
    for c in range(4):
        A = [72 + (b*4 + c)*4 + r for b in range(2) for r in range(4)]
        k.batch([[f"v_fma_f32 v{A[n]}, -v{24+n//4}, v{28+4*c+n%4}, v{A[n]}", f"v_mul_f32 v{A[n]}, v{A[n]}, v{26+n//4}"] for n in range(8)])
        for p in range(4): e(f"v_cvt_pk_bf16_f32 v{60+p}, v{A[2*p]}, v{A[2*p+1]}")
        for p in range(4):
            e(f"v_lshlrev_b32 v{A[2*p]}, 16, v{60+p}"); e(f"v_and_b32 v{A[2*p+1]}, 0xffff0000, v{60+p}")
        k.batch([gelu_seq(f"v{A[n]}", f"v{60+n}", "v68") for n in range(8)])
        for p in range(4): e(f"v_cvt_pk_bf16_f32 v{104+(p//2)*8+c*2+p%2}, v{A[2*p]}, v{A[2*p+1]}")
    e("s_bitcmp1_b32 s33, 0"); e("s_cbranch_scc0 k1_noswap")
    for b in range(2):
        for g in range(2):
            for p in range(2):
                r0 = 104 + b*8 + g*4 + p
                e(f"v_swap_b32 v{r0}, v{r0+2}")
    k.label("k1_noswap")
    e("s_nop 0")
    for b in range(2):
        for g in range(2):
            e(f"buffer_store_dwordx4 {v(104+b*8+g*4,4)}, v69, s[24:27], s{46+b*2+g} offen")
    k.end(0)
    k.label("k1_helper")
    e("s_lshl_b32 s35, s41, 2"); e("s_add_u32 s35, s35, s42"); e("s_sub_u32 s35, s35, 28")
    e("v_and_b32 v2, 15, v1"); e("v_lshrrev_b32 v3, 4, v1")
    e("s_lshl_b32 s43, s32, 3")
    e("v_add_u32 v4, s43, v3")
    e("s_lshl_b32 s44, s35, 6")
    e("v_add_u32 v5, s44, v4"); e("v_mul_u32_u24 v5, 1280, v5"); e("v_lshl_add_u32 v5, v2, 4, v5")
    e("v_add_u32 v6, 5120, v5")
    e("v_mul_u32_u24 v7, 1296, v4"); e("v_lshl_add_u32 v7, v2, 4, v7")
    e("s_waitcnt lgkmcnt(0)")
    k.srd(16, 4, 5, 2048*1280)
    k.srd(20, 10, 11, 2048*4096)
    k.srd(24, 12, 13, 864*1280)
    k.srd(28, 8, 9, XT_BYTES, WS_XNT)
    for g in range(2):
        for n in range(5):
            k.vmem(f"buffer_load_dwordx4 {v(8+g*20+n*4,4)}, v{5+g}, s[16:19], 0 offen offset:{n*256}", f"x{g}")
    e("v_lshlrev_b32 v120, 4, v1")
    e("s_lshl_b32 s43, s35, 18"); e("s_lshl_b32 s44, s32, 15"); e("s_add_u32 s43, s43, s44")
    for n in range(32):
        k.vmem(f"buffer_load_dwordx4 v[124:127], v120, s[20:23], s43 offen offset:{(n%4)*1024}", "pf")
        if n % 4 == 3: e("s_add_u32 s43, s43, 4096")
    e("s_lshl_b32 s43, s35, 3"); e("s_add_u32 s43, s43, s32"); e("s_mul_i32 s43, s43, 4352")
    for n in range(4):
        k.vmem(f"buffer_load_dwordx4 v[124:127], v120, s[24:27], s43 offen offset:{n*1024}", "pf")
    e("s_add_u32 s43, s43, 4096")
    k.vmem(f"buffer_load_dwordx4 v[124:127], v120, s[24:27], s43 offen", "pf")
    for g in range(2):
        k.stamp(1+2*g)
        k.wait_vm(f"x{g}")
        k.stamp(2+2*g)
        X = 48
        src = 8 + g*20
        for n in range(20):
            e(f"v_lshlrev_b32 v{X+2*n}, 16, v{src+n}"); e(f"v_and_b32 v{X+2*n+1}, 0xffff0000, v{src+n}")
        for a in range(4): e(f"v_add_f32 v{88+a}, v{X+a}, v{X+4+a}")
        for n in range(8, 40): e(f"v_add_f32 v{88+n%4}, v{88+n%4}, v{X+n}")
        e("v_add_f32 v88, v88, v89"); e("v_add_f32 v90, v90, v91"); e("s_nop 0"); e("v_add_f32 v88, v88, v90")
        for sh in (8, 4, 2, 1):
            e("s_nop 1"); e(f"v_add_f32_dpp v88, v88, v88 row_ror:{sh} row_mask:0xf bank_mask:0xf")
        e(f"v_mul_f32 v88, {f32(1/640)}, v88")
        for a in range(4): e(f"v_mov_b32 v{92+a}, 0")
        for n0 in range(0, 40, 4):
            for a in range(4): e(f"v_sub_f32 v{96+a}, v{X+n0+a}, v88")
            for a in range(4): e(f"v_fmac_f32 v{92+a}, v{96+a}, v{96+a}")
        e("v_add_f32 v92, v92, v93"); e("v_add_f32 v94, v94, v95"); e("s_nop 0"); e("v_add_f32 v92, v92, v94")
        for sh in (8, 4, 2, 1):
            e("s_nop 1"); e(f"v_add_f32_dpp v92, v92, v92 row_ror:{sh} row_mask:0xf bank_mask:0xf")
        e(f"v_mul_f32 v92, {f32(1/640)}, v92")
        ln_finish(k, "v88", "v92", "v89")
        for n in range(40): e(f"v_sub_f32 v{X+n}, v{X+n}, v88")
        for n in range(20): e(f"v_cvt_pk_bf16_f32 v{src+n}, v{X+2*n}, v{X+2*n+1}")
        for n in range(20):
            e(f"v_lshlrev_b32 v{X+2*n}, 16, v{src+n}"); e(f"v_and_b32 v{X+2*n+1}, 0xffff0000, v{src+n}")
        for n in range(40): e(f"v_mul_f32 v{X+n}, v{X+n}, v92")
        for n in range(20): e(f"v_cvt_pk_bf16_f32 v{src+n}, v{X+2*n}, v{X+2*n+1}")
        for n in range(5):
            e(f"ds_write_b128 v7, {v(src+4*n,4)} offset:{g*4*1296 + n*256}")
    e("s_waitcnt lgkmcnt(0)")
    e("s_barrier")
    k.stamp(5)
    e("v_bfe_u32 v4, v1, 2, 2"); e("v_lshl_add_u32 v4, v3, 3, v4"); e("v_mul_u32_u24 v4, 1296, v4")
    e("v_and_b32 v5, 3, v1"); e("v_lshl_add_u32 v4, v5, 3, v4")
    e("s_lshl_b32 s43, s32, 5"); e("v_add_u32 v4, s43, v4")
    e(f"v_add_u32 v5, {32*1296}, v4")
    e("v_lshlrev_b32 v6, 12, v2"); e("v_lshl_add_u32 v6, v3, 4, v6")
    e("s_lshl_b32 s43, s32, 16"); e("s_lshl_b32 s44, s35, 7"); e("s_add_u32 s43, s43, s44")
    for n in range(5):
        for th in range(2):
            for hh in range(2):
                e(f"ds_read_b64_tr_b16 {v(8+(n*2+th)*4+hh*2,2)}, v{4+th} offset:{hh*4*1296 + n*256}")
    e("s_waitcnt lgkmcnt(0)")
    for n in range(5):
        for th in range(2):
            e(f"buffer_store_dwordx4 {v(8+(n*2+th)*4,4)}, v6, s[28:31], s43 offen offset:{th*64}")
        e(f"s_add_u32 s43, s43, {8*65536}")
    k.stamp(6)
    e("s_waitcnt vmcnt(0)") if PROFILE else None
    k.end(0)
    k.label("k1_end")
    e("s_endpgm")
    return k.text(128)

def gen_k1b():
    k = Kern("k1b_kernel"); e = k.e
    e("s_cmp_ge_u32 s2, 256"); e("s_cbranch_scc1 k1b_end")
    k.stamp_init()
    e("s_load_dwordx2 s[8:9], s[0:1], 112")
    e("v_and_b32 v1, 63, v0"); e("v_lshrrev_b32 v2, 6, v0"); e("s_nop 0"); e("v_readfirstlane_b32 s32, v2")
    e("s_lshr_b32 s33, s2, 2"); e("s_and_b32 s34, s2, 3")
    e("s_waitcnt lgkmcnt(0)")
    k.srd(24, 8, 9, ZF_BYTES, WS_Z2F)
    k.srd(28, 8, 9, 262144, WS_ST2)
    e("v_and_b32 v2, 31, v1"); e("v_lshrrev_b32 v3, 5, v1")
    e("v_lshlrev_b32 v2, 2, v2"); e("v_lshl_add_u32 v2, v3, 17, v2")
    e("s_lshl_b32 s35, s33, 7")
    for c in range(14):
        e(f"buffer_load_dword v{8+c}, v2, s[28:31], s35 offen")
        e("s_add_u32 s35, s35, 8192")
    e("v_lshlrev_b32 v4, 4, v1")
    for i in range(4):
        e(f"s_add_u32 s36, s32, {4*i}"); e("s_cmp_lt_u32 s36, 14")
        e("s_mul_i32 s37, s34, 14"); e("s_cselect_b32 s38, 0, 64"); e("s_add_u32 s36, s36, s37"); e("s_add_u32 s36, s36, s38")
        e("s_lshl_b32 s36, s36, 16"); e("s_lshl_b32 s37, s33, 10"); e(f"s_add_u32 s{40+i}, s36, s37")
        e(f"buffer_load_dwordx4 {v(24+4*i,4)}, v4, s[24:27], s{40+i} offen")
    e("s_waitcnt vmcnt(4)")
    for c in range(1, 14): e(f"v_add_f32 v8, v8, v{8+c}")
    e(f"v_mul_f32 v8, {f32(1/864)}, v8")
    e("v_mov_b32 v9, v8"); e("s_nop 1")
    e("v_permlane32_swap_b32 v8, v9")
    e("s_nop 1")
    e("v_fma_f32 v9, -v8, v8, v9")
    ln_finish(k, "v8", "v9", "v10")
    e("v_lshrrev_b32 v3, 4, v1"); e("v_lshlrev_b32 v3, 5, v3")
    for n in range(8):
        e(f"v_add_u32 v5, {4*n}, v3")
        e(f"ds_bpermute_b32 v{40+n}, v5, v8"); e(f"ds_bpermute_b32 v{48+n}, v5, v9")
    e("s_waitcnt vmcnt(0) lgkmcnt(0)")
    for i in range(4):
        for p in range(4):
            e(f"v_lshlrev_b32 v{56+2*p}, 16, v{24+4*i+p}"); e(f"v_and_b32 v{57+2*p}, 0xffff0000, v{24+4*i+p}")
        for n in range(8): e(f"v_sub_f32 v{56+n}, v{56+n}, v{40+n}")
        for p in range(4): e(f"v_cvt_pk_bf16_f32 v{24+4*i+p}, v{56+2*p}, v{57+2*p}")
        for p in range(4):
            e(f"v_lshlrev_b32 v{56+2*p}, 16, v{24+4*i+p}"); e(f"v_and_b32 v{57+2*p}, 0xffff0000, v{24+4*i+p}")
        for n in range(8): e(f"v_mul_f32 v{56+n}, v{56+n}, v{48+n}")
        for p in range(4): e(f"v_cvt_pk_bf16_f32 v{24+4*i+p}, v{56+2*p}, v{57+2*p}")
        e(f"buffer_store_dwordx4 {v(24+4*i,4)}, v4, s[24:27], s{40+i} offen")
    k.end(1)
    k.label("k1b_end")
    e("s_endpgm")
    return k.text(64)
```

```python
from asmlib import *
from gen_k1 import *
CONV_B = 22784
K2_LDS = 65536 + 4 * CONV_B
LOG2E = 1.4426950408889634
import numpy as np
L_HI = float(np.float32(LOG2E)); L_LO = LOG2E - L_HI

def exp_precise(k, dst, x, t0, t1):
    e = k.e
    e(f"v_mul_f32 {t0}, {f32(L_HI)}, {x}")
    e(f"v_mov_b32 {t1}, {f32(L_HI)}")
    e(f"v_fma_f32 {t1}, {x}, {t1}, -{t0}")
    e(f"v_fmac_f32 {t1}, {f32(L_LO)}, {x}")
    e(f"v_exp_f32 {t0}, {t0}")
    e(f"v_mul_f32 {t1}, {f32(0.6931471805599453)}, {t1}")
    e(f"v_fma_f32 {dst}, {t0}, {t1}, {t0}")

def gen_k2():
    k = Kern("k2_kernel"); e = k.e
    e("s_cmp_ge_u32 s2, 256"); e("s_cbranch_scc1 k2_end")
    k.stamp_init()
    e("s_load_dwordx2 s[8:9], s[0:1], 112")
    e("s_load_dwordx4 s[4:7], s[0:1], 72")
    e("v_and_b32 v1, 63, v0")
    e("v_lshrrev_b32 v2, 6, v0")
    e("s_and_b32 s41, s2, 7")
    e("v_readfirstlane_b32 s32, v2")
    e("s_lshr_b32 s42, s2, 3")
    e("s_cmp_ge_u32 s32, 4"); e("s_cbranch_scc1 k2_conv")
    e("s_lshr_b32 s35, s41, 1"); e("s_lshl_b32 s35, s35, 3"); e("s_lshr_b32 s43, s42, 2"); e("s_add_u32 s35, s35, s43")
    e("s_and_b32 s36, s42, 3")
    e("s_and_b32 s43, s41, 1"); e("s_mul_i32 s43, s43, 27"); e("s_mul_i32 s44, s36, 7"); e("s_add_u32 s37, s43, s44")
    e("v_lshrrev_b32 v2, 5, v1"); e("v_lshlrev_b32 v2, 3, v2"); e("v_bfe_u32 v3, v1, 3, 2"); e("v_add_u32 v2, v2, v3")
    e("v_lshlrev_b32 v2, 12, v2")
    e("v_and_b32 v3, 7, v1"); e("v_lshrrev_b32 v4, 4, v1"); e("v_xor_b32 v3, v3, v4")
    e("v_lshl_add_u32 v242, v3, 4, v2")
    e("v_xor_b32 v3, 4, v3")
    e("v_lshl_add_u32 v243, v3, 4, v2"); e(f"v_add_u32 v243, {16*4096 - 1024}, v243")
    e("v_lshlrev_b32 v244, 4, v1")
    e("s_lshl_b32 s43, s35, 18"); e("s_lshl_b32 s44, s32, 10"); e("s_add_u32 s48, s43, s44")
    e(f"s_add_u32 s49, s48, {4*4096}"); e(f"s_add_u32 s50, s48, {32*4096}"); e(f"s_add_u32 s51, s48, {36*4096}")
    e("s_lshl_b32 s43, s37, 16"); e("s_lshl_b32 s44, s32, 14"); e("s_add_u32 s52, s43, s44")
    for c in range(1, 7): e(f"s_add_u32 s{52+c}, s52, {c*65536}")
    e("s_cmp_eq_u32 s36, 3"); e(f"s_cselect_b32 s58, {HUGE}, s58")
    e("s_lshl_b32 s39, s32, 14")
    e("s_waitcnt lgkmcnt(0)")
    k.srd(16, 4, 5, 2048*4096)
    k.srd(20, 8, 9, ZF_BYTES, WS_Z2F)
    def Z(st, c): return v(112 + st*28 + c*4, 4)
    def acc(c, sg): return v((c*4 + sg)*4, 4)
    def wf(sg): return v(224 + 4*sg, 4)
    def issueZ(st):
        for c in range(7): e(f"buffer_load_dwordx4 {Z(st,c)}, v244, s[20:23], s{52+c} offen offset:{st*1024}")
    def issueA(slot):
        for t in range(4):
            e(f"s_add_u32 m0, s39, {slot*8192 + t*2048}")
            e("s_nop 0")
            e(f"buffer_load_dwordx4 v242, s[16:19], s{48+t} offen lds")
            e(f"buffer_load_dwordx4 v243, s[16:19], s{48+t} offen offset:1024 lds")
        for t in range(4): e(f"s_add_u32 s{48+t}, s{48+t}, s59")
    e("s_mov_b32 s59, 128")
    issueZ(0); issueA(0); issueZ(1); issueZ(2); issueA(1); issueZ(3)
    e("v_and_b32 v2, 15, v1"); e("v_lshrrev_b32 v3, 4, v1")
    e("v_lshrrev_b32 v5, 1, v2"); e("v_xor_b32 v5, v5, v3")
    e("v_lshlrev_b32 v4, 7, v2"); e("v_lshl_add_u32 v4, v5, 4, v4"); e("v_add_u32 v4, s39, v4")
    for sg in range(4):
        e(f"s_xor_b32 s43, s32, {sg}"); e("s_lshl_b32 s43, s43, 11")
        e(f"v_add_u32 v{246+sg}, s43, v4")
        e(f"v_xor_b32 v{250+sg}, 64, v{246+sg}")
    e("v_mov_b32 v240, v2"); e("v_mov_b32 v241, v3"); e("v_mov_b32 v245, v1")
    for i in range(112): e(f"v_mov_b32 v{i}, 0")
    k.stamp(1)
    e("s_waitcnt vmcnt(29)") if PROFILE else None
    k.stamp(2)
    e("s_mov_b32 s40, 4")
    k.label("k2_loop")
    e("s_cmp_eq_u32 s40, 1"); e(f"s_cselect_b32 s43, {HUGE}, 4096")
    for c in range(7): e(f"s_add_u32 s{52+c}, s{52+c}, s43")
    e("s_cmp_eq_u32 s40, 1"); e(f"s_cselect_b32 s43, {HUGE}, 0")
    for t in range(4): e(f"s_add_u32 s{48+t}, s{48+t}, s43")
    for n in range(4):
        slot, ks = n >> 1, n & 1
        e("s_waitcnt vmcnt(29)")
        for sg in range(4):
            e(f"ds_read_b128 {wf(sg)}, v{(250 if ks else 246)+sg} offset:{slot*8192}")
        for sg in range(4):
            e(f"s_waitcnt lgkmcnt({3-sg})")
            if sg == 3 and ks == 1: issueA(slot)
            for c in range(7):
                e(f"{MFMA} {acc(c,sg)}, {Z(n,c)}, {wf(sg)}, {acc(c,sg)}")
        issueZ(n)
    e("s_sub_u32 s40, s40, 1"); e("s_cmp_lg_u32 s40, 0"); e("s_cbranch_scc1 k2_loop")
    k.stamp(3)
    e("s_waitcnt vmcnt(0)")
    k.srd(24, 8, 9, ZF_BYTES, WS_Z1F)
    k.srd(28, 8, 9, ZF_BYTES, WS_HF)
    k.srd(16, 6, 7, 4096)
    e("s_lshl_b32 s43, s35, 2"); e("s_add_u32 s43, s43, s32"); e("s_mul_i32 s44, s43, 27648")
    for c in range(7):
        e(f"s_add_u32 s45, s37, {c}"); e("s_lshr_b32 s46, s45, 1"); e("s_lshl_b32 s46, s46, 10"); e("s_and_b32 s45, s45, 1"); e("s_lshl_b32 s45, s45, 3")
        e("s_add_u32 s45, s45, s46"); e(f"s_add_u32 s{52+c}, s45, s44")
    e("s_cmp_eq_u32 s36, 3"); e(f"s_cselect_b32 s58, {HUGE}, s58")
    for c in range(7): e(f"buffer_load_dwordx2 {v(200+2*c,2)}, v244, s[24:27], s{52+c} offen")
    e("s_lshr_b32 s44, s43, 1"); e("s_lshl_b32 s44, s44, 5"); e("s_and_b32 s45, s43, 1"); e("s_lshl_b32 s45, s45, 2"); e("s_add_u32 s44, s44, s45")
    e("v_lshrrev_b32 v216, 2, v240"); e("v_and_b32 v217, 3, v240"); e("v_lshl_add_u32 v216, v216, 3, v217"); e("v_add_u32 v216, s44, v216")
    e("v_lshlrev_b32 v216, 1, v216")
    e("buffer_load_ushort v214, v216, s[16:19], 0 offen")
    e("v_add_u32 v220, s39, v244")
    e("s_xor_b32 s43, s39, 0x4000"); e("v_add_u32 v221, s43, v244")
    e("s_xor_b32 s43, s39, 0xc000"); e("v_add_u32 v222, s43, v244")
    for c in range(7):
        for h in range(2): e(f"ds_write_b128 v220, {acc(c,1+2*h)} offset:{(c*2+h)*1024}")
    e("s_waitcnt lgkmcnt(0)"); k.stamp(4); e("s_barrier"); k.stamp(5)
    for c in range(7):
        for h in range(2): e(f"ds_read_b128 {v(112+(c*2+h)*4,4)}, v221 offset:{(c*2+h)*1024}")
    e("s_waitcnt lgkmcnt(0)")
    for c in range(7):
        for h in (1, 0):
            for r in range(4):
                a = (c*4 + 2*h)*4 + r
                e(f"v_add_f32 v{a}, v{a}, v{112+(c*2+h)*4+r}")
    for c in range(7): e(f"ds_write_b128 v221, {acc(c,2)} offset:{c*1024}")
    e("s_waitcnt lgkmcnt(0)"); e("s_barrier")
    for c in range(7): e(f"ds_read_b128 {v(112+c*4,4)}, v222 offset:{c*1024}")
    e("s_waitcnt vmcnt(0) lgkmcnt(0)")
    k.stamp(6)
    e("v_lshlrev_b32 v214, 16, v214")
    for c in range(7):
        A = [c*16 + r for r in range(4)]
        for r in range(4): e(f"v_add_f32 v{A[r]}, v{A[r]}, v{112+c*4+r}")
        for p in range(2): e(f"v_cvt_pk_bf16_f32 v{150+p}, v{A[2*p]}, v{A[2*p+1]}")
        for p in range(2):
            e(f"v_lshlrev_b32 v{A[2*p]}, 16, v{150+p}"); e(f"v_and_b32 v{A[2*p+1]}, 0xffff0000, v{150+p}")
        for r in range(4): e(f"v_add_f32 v{A[r]}, v{A[r]}, v214")
        for p in range(2): e(f"v_cvt_pk_bf16_f32 v{150+p}, v{A[2*p]}, v{A[2*p+1]}")
        for p in range(2):
            e(f"v_lshlrev_b32 v{A[2*p]}, 16, v{150+p}"); e(f"v_and_b32 v{A[2*p+1]}, 0xffff0000, v{150+p}")
            e(f"v_lshlrev_b32 v{152+2*p}, 16, v{200+2*c+p}"); e(f"v_and_b32 v{153+2*p}, 0xffff0000, v{200+2*c+p}")
        for r in range(4): e(f"v_mul_f32 v{A[r]}, v{A[r]}, v{152+r}")
        for p in range(2): e(f"v_cvt_pk_bf16_f32 v{160+2*c+p}, v{A[2*p]}, v{A[2*p+1]}")
        e(f"buffer_store_dwordx2 {v(160+2*c,2)}, v244, s[28:31], s{52+c} offen")
    k.end(2)

    k.label("k2_conv")
    e("s_cmp_ge_u32 s42, 20"); e("s_cbranch_scc1 k2_end")
    e("s_load_dwordx8 s[64:71], s[0:1], 8")
    e("s_load_dwordx4 s[72:75], s[0:1], 40")
    e("s_mul_i32 s35, s41, 20"); e("s_add_u32 s35, s35, s42"); e("s_lshl_b32 s35, s35, 2"); e("s_add_u32 s35, s35, s32"); e("s_sub_u32 s35, s35, 4")
    e("s_sub_u32 s43, s32, 4"); e(f"s_mul_i32 s39, s43, {CONV_B}"); e("s_add_u32 s39, s39, 65536")
    e("v_and_b32 v2, 15, v1"); e("v_lshrrev_b32 v3, 4, v1")
    e("v_lshlrev_b32 v4, 2, v1"); e("v_lshlrev_b32 v5, 4, v1"); e("v_mov_b32 v6, 0"); e("v_mov_b32 v7, 0")
    e("s_lshl_b32 s43, s35, 8"); e("s_lshl_b32 s44, s35, 1"); e("s_lshl_b32 s45, s35, 12")
    e("s_waitcnt lgkmcnt(0)")
    for a in range(4):
        k.srd(16, 64+2*a, 65+2*a, 640*256)
        k.vmem(f"buffer_load_dword v{8+a}, v4, s[16:19], s43 offen", "p")
    k.srd(16, 72, 73, 1280); k.vmem("buffer_load_ushort v12, v6, s[16:19], s44 offen", "p")
    k.srd(16, 74, 75, 1280); k.vmem("buffer_load_ushort v13, v6, s[16:19], s44 offen", "p")
    k.srd(20, 8, 9, XT_BYTES, WS_XNT)
    k.srd(24, 8, 9, XT_BYTES, WS_YT)
    e(f"s_add_u32 m0, s39, {16640+512}")
    e("s_nop 0")
    for n in range(4): k.vmem(f"buffer_load_dwordx4 v5, s[20:23], s45 offen offset:{n*1024} lds", "u")
    e("v_lshl_add_u32 v14, v1, 3, s39")
    e("ds_write_b64 v14, v[6:7] offset:16640")
    e("v_cvt_f32_u32 v15, v2")
    for i, p in ((8, 512), (9, 516), (10, 1024), (11, 1536), (12, 1792), (13, 4097), (14, 4097), (15, 4097)):
        e(f"v_mov_b32 v16, {f32(p)}"); e(f"v_cmp_eq_u32 vcc, {i}, v2"); e("s_nop 1"); e("v_cndmask_b32 v15, v15, v16, vcc")
    e("v_lshlrev_b32 v16, 3, v2"); e("v_cvt_f32_u32 v16, v16")
    k.stamp(1)
    k.wait_vm("p")
    k.stamp(2)
    e("v_lshlrev_b32 v12, 16, v12"); e("v_lshlrev_b32 v13, 16, v13")
    exp_precise(k, "v12", "v12", "v20", "v21")
    e("v_cvt_pk_bf16_f32 v12, v12, v12"); e("v_lshlrev_b32 v12, 16, v12")
    e("v_lshl_add_u32 v14, v1, 6, s39")
    for mm in range(2):
        P = 32 + 8*mm
        def unp(dst, src): e(f"v_lshlrev_b32 {dst}, 16, {src}" if mm == 0 else f"v_and_b32 {dst}, 0xffff0000, {src}")
        unp("v22", "v8")
        exp_precise(k, "v22", "v22", "v20", "v21")
        e("v_cvt_pk_bf16_f32 v22, v22, v22"); e("v_lshlrev_b32 v22, 16, v22")
        e("v_mul_f32 v22, v22, v12")
        e(f"v_mul_f32 v{P}, {f32(-LOG2E)}, v22")
        unp("v22", "v9"); e("v_mul_f32 v22, v22, v12"); e(f"v_mul_f32 v{P+1}, 0.15915494, v22")
        unp("v22", "v10"); e("v_mul_f32 v22, v22, v12"); e(f"v_add_f32 v{P+2}, v22, v22")
        unp("v22", "v11"); e("v_mul_f32 v22, v22, v12"); e(f"v_add_f32 v{P+3}, v22, v22")
        for n, pw in ((0, 256.0), (1, 128.0)):
            e(f"v_mul_f32 v20, {f32(pw)}, v{P}"); e(f"v_mul_f32 v21, {f32(pw)}, v{P+1}")
            e("v_exp_f32 v20, v20"); e("v_fract_f32 v21, v21")
            e("v_cos_f32 v22, v21"); e("v_sin_f32 v23, v21"); e("s_nop 0")
            e(f"v_mul_f32 v{P+4+2*n}, v22, v20"); e(f"v_mul_f32 v{P+5+2*n}, v23, v20")
        e(f"ds_write_b128 v14, {v(P,4)} offset:{mm*32}"); e(f"ds_write_b128 v14, {v(P+4,4)} offset:{mm*32+16}")
    for i in range(16): e(f"v_mov_b32 v{128+i}, 0")
    e("v_lshl_add_u32 v14, v3, 7, s39")
    e("s_mov_b32 s40, 8")
    e("s_waitcnt lgkmcnt(0)")
    k.stamp(3)
    k.label("k2_kgen")
    for mm in range(4):
        e(f"ds_read_b128 {v(32+8*mm,4)}, v14 offset:{mm*32}"); e(f"ds_read_b128 {v(36+8*mm,4)}, v14 offset:{mm*32+16}")
    e("v_add_u32 v14, 512, v14")
    e("s_waitcnt lgkmcnt(0)")
    seqs = []
    for mm in range(4):
        al, be, cr, ci, zr, zi, yr, yi = [f"v{32+8*mm+i}" for i in range(8)]
        T = [f"v{80+12*mm+i}" for i in range(12)]
        seqs.append([f"v_mul_f32 {T[0]}, {al}, v15", f"v_mul_f32 {T[1]}, {be}, v15", f"v_fract_f32 {T[1]}, {T[1]}", f"v_exp_f32 {T[0]}, {T[0]}",
                     f"v_sin_f32 {T[2]}, {T[1]}", f"v_cos_f32 {T[3]}, {T[1]}",
                     f"v_mul_f32 {T[5]}, {cr}, {T[2]}", f"v_mul_f32 {T[4]}, {cr}, {T[3]}", f"v_fma_f32 {T[4]}, -{ci}, {T[2]}, {T[4]}", f"v_fmac_f32 {T[5]}, {ci}, {T[3]}",
                     f"v_mul_f32 {T[4]}, {T[4]}, {T[0]}", f"v_mul_f32 {T[5]}, -{T[5]}, {T[0]}",
                     f"v_cvt_pk_bf16_f32 v{64+mm}, {T[4]}, {T[5]}",
                     f"v_mul_f32 {T[2]}, {T[4]}, {zr}", f"v_mul_f32 {T[3]}, {T[5]}, {zr}", f"v_fmac_f32 {T[2]}, {T[5]}, {zi}", f"v_fma_f32 {T[3]}, -{T[4]}, {zi}, {T[3]}",
                     f"v_cvt_pk_bf16_f32 v{68+mm}, {T[2]}, {T[3]}"])
        seqs.append([f"v_mul_f32 {T[6]}, {al}, v16", f"v_mul_f32 {T[7]}, {be}, v16", f"v_fract_f32 {T[7]}, {T[7]}", f"v_exp_f32 {T[6]}, {T[6]}",
                     f"v_sin_f32 {T[8]}, {T[7]}", f"v_cos_f32 {T[9]}, {T[7]}",
                     f"v_mul_f32 {T[8]}, {T[8]}, {T[6]}", f"v_mul_f32 {T[9]}, {T[9]}, {T[6]}",
                     f"v_cvt_pk_bf16_f32 v{72+mm}, {T[9]}, {T[8]}",
                     f"v_mul_f32 {T[10]}, {T[9]}, {yr}", f"v_mul_f32 {T[11]}, {T[9]}, {yi}", f"v_fma_f32 {T[10]}, -{T[8]}, {yi}, {T[10]}", f"v_fmac_f32 {T[11]}, {T[8]}, {yr}",
                     f"v_cvt_pk_bf16_f32 v{76+mm}, {T[10]}, {T[11]}"])
    k.batch(seqs)
    e("s_nop 1")
    for ab in range(2):
        for bb in range(2):
            D = v(128 + (ab*2+bb)*4, 4)
            e(f"{MFMA} {D}, {v(64+4*ab,4)}, {v(72+4*bb,4)}, {D}")
    e("s_sub_u32 s40, s40, 1"); e("s_cmp_lg_u32 s40, 0"); e("s_cbranch_scc1 k2_kgen")
    k.stamp(4)
    KC = 21248
    e("v_lshlrev_b32 v20, 4, v3")
    for r in range(4):
        e(f"v_add_u32 v21, {4*r}, v20"); e(f"ds_bpermute_b32 v{24+r}, v21, v15")
    e(f"s_add_u32 s43, s39, {KC}")
    e(f"s_add_u32 s44, s39, {KC + 256 - 2*0x4300}")
    e(f"s_add_u32 s45, s39, {KC + 1500}")
    e("v_mov_b32 v30, s45"); e(f"v_mov_b32 v31, {f32(128.0)}")
    e("s_waitcnt lgkmcnt(0)")
    for r in range(4): e(f"v_add_f32 v{24+r}, v{24+r}, v16")
    for ab in range(2):
        for bb in range(2):
            for r in range(4):
                D = 128 + (ab*2+bb)*4 + r
                e(f"v_add_f32 v20, {f32(256.0*ab + 128.0*bb)}, v{24+r}")
                e("v_lshrrev_b32 v21, 16, v20"); e("v_lshl_add_u32 v21, v21, 1, s44")
                if ab == 0 and bb == 0:
                    e("v_cvt_u32_f32 v22, v20"); e("v_lshl_add_u32 v22, v22, 1, s43")
                    e("v_cmp_lt_f32 vcc, v20, v31"); e("s_nop 1"); e("v_cndmask_b32 v21, v21, v22, vcc")
                e("v_and_b32 v22, 0xffff, v20"); e("v_cmp_eq_u32 vcc, 0, v22")
                e(f"v_cvt_pk_bf16_f32 v23, v{D}, v{D}"); e("s_nop 0")
                e("v_cndmask_b32 v21, v30, v21, vcc")
                e("ds_write_b16 v21, v23")
    e("v_mov_b32 v8, 0"); e("v_mov_b32 v9, 0"); e("v_mov_b32 v10, 0"); e("v_mov_b32 v11, 0")
    e("v_lshl_add_u32 v14, v1, 4, s39")
    e("v_cmp_gt_u32 vcc, 5, v1"); e("s_and_saveexec_b64 s[46:47], vcc")
    for c in range(4): e(f"ds_write_b128 v14, v[8:11] offset:{c*4160}")
    e("s_mov_b64 exec, s[46:47]")
    k.stamp(5)
    e("v_lshlrev_b32 v20, 3, v1"); e("v_cvt_f32_u32 v20, v20")
    e("s_waitcnt lgkmcnt(0)")
    for m in range(4):
        W = 32 + 16*m
        for pr in range(5):
            lo = 512*m - 1 + 2*pr
            e(f"v_add_f32 v{96+2*pr}, {f32(lo)}, v20"); e(f"v_add_f32 v{97+2*pr}, {f32(lo+1)}, v20")
        if m == 0: e("v_max_f32 v96, 0, v96")
        for pr in range(5): e(f"v_cvt_pk_bf16_f32 v{108+pr}, v{96+2*pr}, v{97+2*pr}")
        for el in range(9):
            a = f"v{114+el}"
            if el % 2 == 0: e(f"v_and_b32 {a}, 0xffff, v{108+el//2}")
            else: e(f"v_lshrrev_b32 {a}, 16, v{108+el//2}")
            e(f"v_lshl_add_u32 {a}, {a}, 1, s44")
            if m == 0:
                e(f"v_cvt_u32_f32 v21, v{96+el}"); e("v_lshl_add_u32 v21, v21, 1, s43")
                e(f"v_cmp_lt_f32 vcc, v{96+el}, v31"); e("s_nop 1"); e(f"v_cndmask_b32 {a}, {a}, v21, vcc")
        for el in range(9): e(f"ds_read_u16 v{144+9*m+el}, v{114+el}")
    e("s_waitcnt lgkmcnt(0)")
    e("v_cmp_eq_u32 vcc, 0, v1"); e("s_nop 1"); e("v_cndmask_b32 v144, v144, v8, vcc")
    for m in range(4):
        W = 32 + 16*m
        E = 144 + 9*m
        for p in range(4):
            e(f"v_lshl_or_b32 v{W+p}, v{E+2*p+2}, 16, v{E+2*p+1}")
            e(f"v_lshl_or_b32 v{W+8+p}, v{E+2*p+1}, 16, v{E+2*p}")
        o = 64 + 1024*m
        e(f"ds_write_b128 v14, {v(W,4)} offset:{o}")
        e(f"ds_write_b128 v14, {v(W+8,4)} offset:{4160+o}")
        for cpy, src in ((2, W), (3, W+8)):
            for p in range(4): e(f"ds_write_b32 v14, v{src+p} offset:{cpy*4160+o+4+4*p}")
    k.stamp(6)
    e("v_bfe_u32 v20, v1, 2, 2"); e("v_mul_u32_u24 v20, 4160, v20")
    e("v_and_b32 v21, 3, v1"); e("v_lshl_add_u32 v20, v21, 3, v20")
    e("v_lshlrev_b32 v21, 4, v3"); e("v_sub_u32 v20, v20, v21")
    e("s_add_u32 s43, s39, 88"); e("v_add_u32 v17, s43, v20")
    e("v_lshlrev_b32 v20, 5, v2"); e("v_lshl_add_u32 v20, v3, 4, v20")
    e(f"s_add_u32 s43, s39, {16640+480}"); e("v_add_u32 v18, s43, v20")
    def Af(m): return 32 + 4*m
    def Bf(r): return 64 + 4*r
    def ac(cb): return v(96 + 4*cb, 4)
    for i in range(32): e(f"v_mov_b32 v{96+i}, 0")
    k.wait_vm("u")
    e("s_waitcnt lgkmcnt(0)")
    def rdA(m):
        e(f"ds_read_b64_tr_b16 {v(Af(m),2)}, v17 offset:{512*m+8}"); e(f"ds_read_b64_tr_b16 {v(Af(m)+2,2)}, v17 offset:{512*m}")
    def rdB(r): e(f"ds_read_b128 {v(Bf(r),4)}, v18 offset:{512*r}")
    for m in range(8): rdA(m); rdB(7-m)
    e("s_mov_b32 s40, 8")
    k.label("k2_cloop")
    e("v_add_u32 v17, 64, v17"); e("v_subrev_u32 v18, 64, v18")
    for m in range(8):
        for cb in (range(7, -1, -1) if m == 0 else range(m, 8)):
            if m == 0: e(f"s_waitcnt lgkmcnt({min(3*cb, 15)})")
            e(f"{MFMA} {ac(cb)}, {v(Af(m),4)}, {v(Bf(cb-m),4)}, {ac(cb)}")
        rdA(m); rdB(7-m)
    e("s_sub_u32 s40, s40, 1"); e("s_cmp_lg_u32 s40, 0"); e("s_cbranch_scc1 k2_cloop")
    k.stamp(7)
    e("s_waitcnt lgkmcnt(0)")
    e("v_lshlrev_b32 v20, 5, v2"); e("v_lshl_add_u32 v20, v3, 3, v20")
    e(f"s_add_u32 s43, s39, {16640+512}"); e("v_add_u32 v21, s43, v20")
    for cb in range(8): e(f"ds_read_b64 {v(32+2*cb,2)}, v21 offset:{512*cb}")
    e("s_lshl_b32 s45, s35, 12")
    e("s_waitcnt lgkmcnt(0)")
    for cb in range(8):
        A = [96 + 4*cb + r for r in range(4)]
        for p in range(2): e(f"v_cvt_pk_bf16_f32 v{64+p}, v{A[2*p]}, v{A[2*p+1]}")
        for p in range(2):
            e(f"v_lshlrev_b32 v{66+2*p}, 16, v{32+2*cb+p}"); e(f"v_and_b32 v{67+2*p}, 0xffff0000, v{32+2*cb+p}")
            e(f"v_lshlrev_b32 v{A[2*p]}, 16, v{64+p}"); e(f"v_and_b32 v{A[2*p+1]}, 0xffff0000, v{64+p}")
        for r in range(4): e(f"v_mul_f32 v{66+r}, v{66+r}, v13")
        for p in range(2): e(f"v_cvt_pk_bf16_f32 v{64+p}, v{66+2*p}, v{67+2*p}")
        for p in range(2):
            e(f"v_lshlrev_b32 v{66+2*p}, 16, v{64+p}"); e(f"v_and_b32 v{67+2*p}, 0xffff0000, v{64+p}")
        for r in range(4): e(f"v_add_f32 v{A[r]}, v{A[r]}, v{66+r}")
        for p in range(2): e(f"v_cvt_pk_bf16_f32 v{32+2*cb+p}, v{A[2*p]}, v{A[2*p+1]}")
        e(f"buffer_store_dwordx2 {v(32+2*cb,2)}, v20, s[24:27], s45 offen offset:{512*cb}")
    k.end(2)
    k.label("k2_end")
    e("s_endpgm")
    return k.text(256)
```

```python
from asmlib import *
from gen_k1 import *
K3_Y = 28 * 5120
K3_LDS = K3_Y + 12288
def gen_k3():
    k = Kern("k3_kernel"); e = k.e
    e("s_cmp_ge_u32 s2, 256"); e("s_cbranch_scc1 k3_end")
    k.stamp_init()
    e("s_load_dwordx2 s[4:5], s[0:1], 0")
    e("s_load_dwordx4 s[8:11], s[0:1], 88")
    e("s_load_dwordx2 s[12:13], s[0:1], 112")
    e("v_and_b32 v1, 63, v0"); e("v_lshrrev_b32 v2, 6, v0")
    e("s_and_b32 s41, s2, 7")
    e("v_readfirstlane_b32 s32, v2")
    e("s_lshr_b32 s42, s2, 3")
    e("s_lshl_b32 s35, s41, 2"); e("s_lshr_b32 s43, s42, 3"); e("s_add_u32 s35, s35, s43")
    e("s_and_b32 s36, s42, 7")
    e("s_mul_i32 s43, s36, 160")
    for ee in range(5):
        e(f"v_add_u32 v2, {64*ee}, v1"); e("v_mul_u32_u24 v3, 205, v2"); e("v_lshrrev_b32 v3, 11, v3")
        e("v_mul_u32_u24 v4, 10, v3"); e("v_sub_u32 v4, v2, v4")
        e("v_mul_u32_u24 v3, 1280, v3"); e("v_lshl_add_u32 v3, v4, 4, v3")
        e(f"v_add_u32 v{10+ee}, s43, v3")
        if ee % 4: e(f"v_subrev_u32 v{10+ee}, {(ee%4)*1024}, v{10+ee}")
    e("v_lshlrev_b32 v15, 4, v1")
    e("s_lshl_b32 s37, s35, 2"); e("s_add_u32 s37, s37, s32")
    e("s_mul_i32 s38, s37, 27648")
    e(f"s_mul_i32 s39, s32, {32*1280}")
    e("s_mul_i32 s40, s32, 5120")
    e("s_waitcnt lgkmcnt(0)")
    k.srd(16, 8, 9, 864*1280)
    k.srd(20, 12, 13, ZF_BYTES, WS_HF)
    k.srd(24, 12, 13, XT_BYTES, WS_YT)
    k.srd(28, 4, 5, 2048*1280)
    k.srd(44, 10, 11, 2048*1280)
    def H(G): return v(48 + 4*G, 4)
    def issue_round(i):
        e("s_mov_b32 m0, s40"); e("s_add_u32 s43, s40, 4096")
        for ee in range(4): k.vmem(f"buffer_load_dwordx4 v{10+ee}, s[16:19], s39 offen offset:{ee*1024} lds", f"w{i}")
        e("s_mov_b32 m0, s43"); e(f"s_add_u32 s40, s40, {4*5120}")
        k.vmem(f"buffer_load_dwordx4 v14, s[16:19], s39 offen lds", f"w{i}")
        e(f"s_add_u32 s39, s39, {4*32*1280}")
        for g in range(4):
            G = 4*i + g
            if G < 27: k.vmem(f"buffer_load_dwordx4 {H(G)}, v15, s[20:23], s38 offen offset:{g*1024}", f"h{i}")
        e("s_add_u32 s38, s38, 4096")
    for i in range(5): issue_round(i)
    e("v_and_b32 v2, 15, v1"); e("v_lshrrev_b32 v3, 4, v1")
    e("v_bfe_u32 v4, v1, 2, 2"); e("v_lshl_add_u32 v4, v3, 2, v4")
    e("v_and_b32 v5, 3, v1")
    e("v_mul_u32_u24 v16, 160, v4"); e("v_lshl_add_u32 v16, v5, 3, v16")
    e("v_add_u32 v17, 0xa000, v16"); e("v_add_u32 v18, 0x14000, v16"); e("v_add_u32 v19, 0x1e000, v16")
    e("s_lshr_b32 s43, s32, 1"); e("s_lshl_b32 s43, s43, 6"); e("s_and_b32 s33, s32, 1"); e("s_lshl_b32 s33, s33, 3"); e("s_add_u32 s43, s43, s33")
    e(f"s_add_u32 s33, s43, {K3_Y}")
    e("v_lshlrev_b32 v20, 7, v4"); e("v_lshl_add_u32 v20, v5, 4, v20"); e("v_add_u32 v20, s33, v20")
    e("s_lshr_b32 s43, s43, 1"); e("s_lshl_b32 s33, s35, 6"); e("s_add_u32 s43, s43, s33")
    e("v_lshrrev_b32 v6, 2, v2"); e("v_and_b32 v7, 3, v2"); e("v_lshl_add_u32 v6, v6, 3, v7"); e("v_add_u32 v6, s43, v6")
    e("v_mul_u32_u24 v6, 1280, v6"); e("v_lshl_add_u32 v6, v3, 3, v6"); e("s_mul_i32 s43, s36, 160"); e("v_add_u32 v21, s43, v6")
    e("v_lshrrev_b32 v6, 3, v1"); e("v_lshlrev_b32 v6, 12, v6"); e("v_and_b32 v7, 7, v1"); e("v_lshl_add_u32 v22, v7, 4, v6")
    e("s_mul_i32 s33, s36, 80"); e("s_lshl_b32 s43, s32, 3"); e("s_add_u32 s33, s33, s43"); e("s_lshl_b32 s33, s33, 12"); e("s_lshl_b32 s43, s35, 7"); e("s_add_u32 s33, s33, s43")
    e("s_lshl_b32 s34, s32, 10"); e(f"s_add_u32 s34, s34, {K3_Y}")
    for i in range(24, 44): e(f"v_mov_b32 v{i}, 0")
    def acc(db): return v(24 + 4*db, 4)
    WF = 160
    for i in range(7):
        if i == 0: k.stamp(1)
        k.wait_vm(f"h{i}")
        e("s_barrier")
        k.stamp(2+i)
        ng = 4 if i < 6 else 3
        def reads(g):
            G = 4*i + g
            off = G*5120; ar = 16 + off // 0xa000; off %= 0xa000
            for db in range(5):
                for hh in range(2):
                    k.lds(f"ds_read_b64_tr_b16 {v(WF+(g%2)*20+db*4+hh*2,2)}, v{ar} offset:{off + hh*2560 + db*32}", f"f{g}")
        reads(0)
        for g in range(ng):
            if g + 1 < ng: reads(g + 1)
            k.wait_lg(f"f{g}")
            for db in range(5):
                e(f"{MFMA} {acc(db)}, {v(WF+(g%2)*20+db*4,4)}, {H(4*i+g)}, {acc(db)}")
        if i < 2: issue_round(5 + i)
        if i == 2:
            for n in range(3):
                e("s_mov_b32 m0, s34"); e("s_add_u32 s34, s34, 4096")
                k.vmem("buffer_load_dwordx4 v22, s[24:27], s33 offen lds", "y")
                e(f"s_add_u32 s33, s33, {32*4096}")
            for db in range(5): k.vmem(f"buffer_load_dwordx2 {v(200+2*db,2)}, v21, s[28:31], 0 offen offset:{db*32}", "x")
    k.stamp(9)
    k.wait_vm_all()
    e("s_barrier")
    k.stamp(10)
    for db in range(5): e(f"ds_read_b64_tr_b16 {v(210+2*db,2)}, v20 offset:{db*2048}")
    e("s_waitcnt lgkmcnt(0)")
    for db in range(5):
        A = [24 + 4*db + r for r in range(4)]
        for p in range(2): e(f"v_cvt_pk_bf16_f32 v{48+p}, v{A[2*p]}, v{A[2*p+1]}")
        for p in range(2):
            e(f"v_lshlrev_b32 v{50+2*p}, 16, v{200+2*db+p}"); e(f"v_and_b32 v{51+2*p}, 0xffff0000, v{200+2*db+p}")
            e(f"v_lshlrev_b32 v{54+2*p}, 16, v{210+2*db+p}"); e(f"v_and_b32 v{55+2*p}, 0xffff0000, v{210+2*db+p}")
            e(f"v_lshlrev_b32 v{A[2*p]}, 16, v{48+p}"); e(f"v_and_b32 v{A[2*p+1]}, 0xffff0000, v{48+p}")
        for r in range(4): e(f"v_add_f32 v{50+r}, v{50+r}, v{54+r}")
        for p in range(2): e(f"v_cvt_pk_bf16_f32 v{48+p}, v{50+2*p}, v{51+2*p}")
        for p in range(2):
            e(f"v_lshlrev_b32 v{50+2*p}, 16, v{48+p}"); e(f"v_and_b32 v{51+2*p}, 0xffff0000, v{48+p}")
        for r in range(4): e(f"v_add_f32 v{A[r]}, v{A[r]}, v{50+r}")
        for p in range(2): e(f"v_cvt_pk_bf16_f32 v{60+2*db+p}, v{A[2*p]}, v{A[2*p+1]}")
        e(f"buffer_store_dwordx2 {v(60+2*db,2)}, v21, s[44:47], 0 offen offset:{db*32}")
    k.end(3)
    k.label("k3_end")
    e("s_endpgm")
    return k.text(224)
```

```python
import sys
from gen_k1 import *
NAME = "parallel_sum__ssm_conv_s4d__mixer_gmlp__prompt"
def build(kernels, launches, path):
    hdr = open(f"cdna_kernels/{NAME}.s.ref").read().split("; Override launch")[0]
    out = hdr
    for (kn, grid, block, lds) in launches:
        out += f"; @launch kernel={kn} grid=({grid},1,1) block=({block},1,1) lds={lds}\n"
    out += '.amdgcn_target "amdgcn-amd-amdhsa--gfx950"\n.text\n'
    for t, kd in kernels: out += t + "\n"
    out += "text_end:\n"
    out += '.section .rodata,"a"\n'
    for t, kd in kernels: out += ".p2align 6\n" + kd + "\n"
    open(path, "w").write(out)
if __name__ == "__main__":
    path = sys.argv[1] if len(sys.argv) > 1 else f"cdna_kernels/{NAME}.s"
    ks = [gen_k1()]
    ls = [("k1_kernel", 256, K1_THREADS, K1_LDS)]
    try:
        from gen_k2 import *
        ks.append(gen_k2()); ls.append(("k2_kernel", 256, 512, K2_LDS))
        from gen_k3 import *
        ks.append(gen_k3()); ls.append(("k3_kernel", 256, 256, K3_LDS))
    except ImportError as ex:
        print("partial build:", ex)
    import os
    nd = int(os.environ.get("DUMMY", "0"))
    if nd:
        k = Kern("dummy_kernel"); k.e("s_endpgm"); ks.append(k.text(8))
        for _ in range(nd): ls.append(("dummy_kernel", 256, 256, 0))
    build(ks, ls, path)
```

```python
from asmlib import *
MB = 1 << 20
import os
import numpy as np
WS_XNT, WS_Z2F, WS_Z1F, WS_HF, WS_YT, WS_ST2, WS_KC = 0, 4*MB, 8*MB, 12*MB, 16*MB, 20*MB, 21*MB
ZF_BYTES = 54 * 65536
XT_BYTES = 640 * 4096
ST2_BYTES = 64 * 14 * 512
KC_BYTES = 640 * 1536
HUGE = 0x40000000
GC0 = -2.0 * 0.7978845608028654 * 1.4426950408889634
GC1 = GC0 * 0.044715
MFMA = "v_mfma_f32_16x16x32_bf16"
LOG2E = 1.4426950408889634
L_HI = float(np.float32(LOG2E)); L_LO = LOG2E - L_HI

def exp_precise(k, dst, x, t0, t1):
    e = k.e
    e(f"v_mul_f32 {t0}, {f32(L_HI)}, {x}")
    e(f"v_mov_b32 {t1}, {f32(L_HI)}")
    e(f"v_fma_f32 {t1}, {x}, {t1}, -{t0}")
    e(f"v_fmac_f32 {t1}, {f32(L_LO)}, {x}")
    e(f"v_exp_f32 {t0}, {t0}")
    e(f"v_mul_f32 {t1}, {f32(0.6931471805599453)}, {t1}")
    e(f"v_fma_f32 {dst}, {t0}, {t1}, {t0}")

def gelu_seq(a, t, vc1):
    return [f"v_mul_f32 {t}, {a}, {a}",
            f"v_fmaak_f32 {t}, {vc1}, {t}, {f32(GC0)}",
            f"v_mul_f32 {t}, {t}, {a}",
            f"v_exp_f32 {t}, {t}",
            f"v_add_f32 {t}, 1.0, {t}",
            f"v_rcp_f32 {t}, {t}",
            f"v_mul_f32 {a}, {a}, {t}"]

def ln_finish(k, mean, var, t):
    k.e(f"v_max_f32 {var}, 0, {var}")
    k.e(f"v_cvt_pk_bf16_f32 {t}, {mean}, {var}")
    k.e(f"v_lshlrev_b32 {mean}, 16, {t}")
    k.e(f"v_and_b32 {var}, 0xffff0000, {t}")
    k.e(f"v_add_f32 {var}, {f32(1e-5)}, {var}")
    k.e(f"v_cvt_pk_bf16_f32 {t}, {var}, {var}")
    k.e(f"v_and_b32 {var}, 0xffff0000, {t}")
    k.e(f"v_sqrt_f32 {var}, {var}")
    k.e("s_nop 0")
    k.e(f"v_cvt_pk_bf16_f32 {t}, {var}, {var}")
    k.e(f"v_and_b32 {var}, 0xffff0000, {t}")
    k.e(f"v_rcp_f32 {var}, {var}")
    k.e("s_nop 0")

def unpack(k, lo, hi, src):
    k.e(f"v_lshlrev_b32 {lo}, 16, {src}"); k.e(f"v_and_b32 {hi}, 0xffff0000, {src}")

K1_LDS = 131072 + 1536 + 1024
K1_THREADS = 640

def kgen(k, tab_s, par, dtv, lane_i, lane_q, lane):
    e = k.e
    PITCH = 272
    e(f"v_lshlrev_b32 {dtv}, 16, {dtv}")
    exp_precise(k, dtv, dtv, "v4", "v5")
    e(f"v_cvt_pk_bf16_f32 {dtv}, {dtv}, {dtv}"); e(f"v_and_b32 {dtv}, 0xffff0000, {dtv}")
    e(f"v_lshl_add_u32 v10, {lane}, 2, {tab_s}")
    e(f"v_mul_u32_u24 v11, {PITCH}, {lane_i}"); e(f"v_lshl_add_u32 v11, {lane_q}, 4, v11"); e(f"v_add_u32 v11, {tab_s}, v11")
    for i in range(136, 152): e(f"v_mov_b32 v{i}, 0")
    e("v_mov_b32 v12, 0x00003f80")
    e(f"ds_write_b32 v10, v12 offset:{21*PITCH}")
    names = {}
    nxt = [24]
    def pair(n):
        if n not in names:
            names[n] = nxt[0]; nxt[0] += 2; assert nxt[0] <= 136
        return names[n]
    def P(n): r = pair(n); return f"v[{r}:{r+1}]"
    urow = {"U0":0,"U1":1,"U2":2,"U3":3,"U4":4,"U5":5,"U6":6,"U7":7,"R256":8,"R258":9,"R260":10,"R262":11,"R512":12,"R516":13,"R768":14,"R772":15,
            "R1024":16,"R1280":17,"R1536":18,"R1792":19,"R2048":20}
    tmp = [0]
    def out(n, row, neg):
        r = pair(n); t = 152 + tmp[0] % 12; tmp[0] += 1
        e(f"v_cvt_pk_bf16_f32 v{t}, v{r}, {'-' if neg else ''}v{r+1}")
        return f"ds_write_b32 v10, v{t} offset:{row*PITCH}"
    def level(ops):
        for d, a, b in ops: e(f"v_pk_mul_f32 {P('t_'+str(ops.index((d,a,b))))}, {P(a)}, {P(b)} op_sel:[0,0] op_sel_hi:[1,0]")
        for d, a, b in ops: e(f"v_pk_fma_f32 {P(d)}, {P(a)}, {P(b)}, {P('t_'+str(ops.index((d,a,b))))} op_sel:[1,1,0] op_sel_hi:[0,1,1] neg_lo:[0,1,0]")
    for hf in range(2):
        def unp(dst, src): e(f"v_lshlrev_b32 {dst}, 16, {src}" if hf == 0 else f"v_and_b32 {dst}, 0xffff0000, {src}")
        unp("v6", f"v{par}")
        exp_precise(k, "v6", "v6", "v4", "v5")
        e("v_cvt_pk_bf16_f32 v6, v6, v6"); e("v_and_b32 v6, 0xffff0000, v6")
        e(f"v_mul_f32 v6, v6, {dtv}"); e(f"v_mul_f32 v6, {f32(-LOG2E)}, v6")
        unp("v7", f"v{par+1}"); e(f"v_mul_f32 v7, v7, {dtv}"); e("v_mul_f32 v7, 0.15915494, v7")
        u0 = pair("U0")
        unp(f"v{u0}", f"v{par+2}"); unp(f"v{u0+1}", f"v{par+3}")
        e(f"v_mul_f32 v{u0}, v{u0}, {dtv}"); e(f"v_mul_f32 v{u0+1}, v{u0+1}, {dtv}")
        e(f"v_add_f32 v{u0}, v{u0}, v{u0}"); e(f"v_add_f32 v{u0+1}, v{u0+1}, v{u0+1}")
        seqs = []
        for n, (nm, pw) in enumerate((("Z1", 1.0), ("W1", 8.0), ("Z256", 256.0))):
            r = pair(nm); a, b = 152 + 2*n, 153 + 2*n
            seqs.append([f"v_mul_f32 v{a}, {f32(pw)}, v6", f"v_mul_f32 v{b}, {f32(pw)}, v7", f"v_exp_f32 v{a}, v{a}", f"v_fract_f32 v{b}, v{b}",
                         f"v_cos_f32 v{r}, v{b}", f"v_sin_f32 v{r+1}, v{b}", f"v_mul_f32 v{r}, v{r}, v{a}", f"v_mul_f32 v{r+1}, v{r+1}, v{a}"])
        k.batch(seqs)
        if hf == 1: e("s_waitcnt lgkmcnt(0)")
        def emit_out(lst):
            ws = [out(n, row, neg) for n, row, neg in lst]
            for w in ws: e(w)
        emit_out([("U0", 0, True), ("W1", 22, False)])
        levels = [
            [("U1","U0","Z1"), ("Z2","Z1","Z1"), ("W2","W1","W1"), ("Z512","Z256","Z256"), ("R256","U0","Z256")],
            [("U2","U0","Z2"), ("U3","U1","Z2"), ("Z4","Z2","Z2"), ("W3","W2","W1"), ("Y4","W2","W2"), ("R512","U0","Z512")],
            [("U4","U0","Z4"), ("U5","U1","Z4"), ("U6","U2","Z4"), ("U7","U3","Z4"), ("R258","U2","Z256"), ("R768","R512","Z256"), ("R1024","R512","Z512"),
             ("W1","W1","Y4"), ("W2","W2","Y4"), ("W3","W3","Y4"), ("W4","Y4","Y4")],
            [("R260","U4","Z256"), ("R262","U6","Z256"), ("R516","U4","Z512"), ("R1280","R768","Z512"), ("R1536","R1024","Z512"),
             ("W1","W1","Y4"), ("W2","W2","Y4"), ("W3","W3","Y4"), ("W4","W4","Y4")],
            [("R772","R516","Z256"), ("R1792","R1280","Z512"), ("R2048","R1536","Z512"),
             ("W1","W1","Y4"), ("W2","W2","Y4"), ("W3","W3","Y4"), ("W4","W4","Y4")],
        ] + [[("W1","W1","Y4"), ("W2","W2","Y4"), ("W3","W3","Y4"), ("W4","W4","Y4")]] * 3 + [[("W1","W1","Y4"), ("W2","W2","Y4"), ("W3","W3","Y4")]]
        vidx = {"W1": 1, "W2": -2, "W3": -1, "W4": 4}
        for lv in levels:
            level(lv)
            lst = []
            for d, a, b in lv:
                if d in urow: lst.append((d, urow[d], True))
                elif d == "Y4": lst.append((d, 21 + 4, False))
                elif d in vidx:
                    vidx[d] += 4; lst.append((d, 21 + vidx[d], False))
            emit_out(lst)
        e("s_waitcnt lgkmcnt(0)")
        for half in range(2):
            for st in range(2):
                for f, row in enumerate((0, 16, 21, 37)):
                    e(f"ds_read_b128 {v(104+st*16+f*4,4)}, v11 offset:{row*PITCH + (half*2+st)*64}")
            for st in range(2):
                e(f"s_waitcnt lgkmcnt({4 if st == 0 else 0})")
                F = 104 + st*16
                for bb in range(2):
                    e(f"{MFMA} {v(136+4*bb,4)}, {v(F,4)}, {v(F+8+4*bb,4)}, {v(136+4*bb,4)}")
                    e(f"{MFMA} {v(144+4*bb,4)}, {v(F+8+4*bb,4)}, {v(F+4,4)}, {v(144+4*bb,4)}")

def gen_k1():
    k = Kern("k1_kernel")
    e = k.e
    e("s_cmp_ge_u32 s2, 256"); e("s_cbranch_scc1 k1_end")
    k.stamp_init()
    e("s_load_dwordx2 s[4:5], s[0:1], 0")
    e("s_load_dwordx4 s[8:11], s[0:1], 64")
    e("s_load_dwordx4 s[12:15], s[0:1], 104")
    e("v_and_b32 v1, 63, v0")
    e("v_lshrrev_b32 v2, 6, v0")
    e("s_and_b32 s41, s2, 7")
    e("v_readfirstlane_b32 s32, v2")
    e("s_lshr_b32 s42, s2, 3")
    e("s_cmp_ge_u32 s42, 28"); e("s_cbranch_scc1 k1_helper")
    e("s_mul_i32 s43, s42, 37"); e("s_lshr_b32 s43, s43, 8")
    e("s_mul_i32 s44, s43, 7"); e("s_sub_u32 s44, s42, s44")
    e("s_lshr_b32 s35, s41, 1"); e("s_lshl_b32 s35, s35, 2"); e("s_add_u32 s35, s35, s43")
    e("s_and_b32 s36, s41, 1"); e("s_mul_i32 s36, s36, 7"); e("s_add_u32 s36, s36, s44")
    e("s_cmp_ge_u32 s32, 2"); e("s_cbranch_scc1 k1_gemm")
    e("s_mul_i32 s45, s44, 3"); e("s_mul_i32 s46, s43, 5"); e("s_lshr_b32 s46, s46, 1"); e("s_add_u32 s45, s45, s46")
    e("s_cmp_ge_u32 s45, 20"); e("s_cselect_b32 s46, 20, 0"); e("s_sub_u32 s45, s45, s46")
    e("s_cmp_ge_u32 s45, 10"); e("s_cselect_b32 s46, 10, 0"); e("s_sub_u32 s45, s45, s46")
    e("v_and_b32 v3, 7, v1")
    e("s_cmp_eq_u32 s32, 1"); e("s_cbranch_scc1 k1_ldB")
    e("s_lshl_b32 s43, s35, 7")
    e("v_lshrrev_b32 v2, 5, v1"); e("v_lshlrev_b32 v2, 3, v2")
    e("v_bfe_u32 v4, v1, 3, 2"); e("v_add3_u32 v2, v2, v4, s43")
    e("v_mul_u32_u24 v2, 1280, v2")
    e("v_lshrrev_b32 v4, 4, v1"); e("v_xor_b32 v3, v3, v4")
    e("v_lshl_add_u32 v4, v3, 4, v2")
    e("v_xor_b32 v3, 4, v3"); e("v_lshl_add_u32 v5, v3, 4, v2")
    for n in range(16):
        ee, b, Pp = n & 1, (n >> 1) & 1, n >> 2
        e(f"v_add_u32 v{16+n}, {(32*Pp + 4*b + 16*ee)*1280 - (n & 3)*1024}, v{4+ee}")
    e("s_waitcnt lgkmcnt(0)")
    k.srd(16, 4, 5, 2048*1280)
    e("s_mov_b32 s38, 128"); e("s_mov_b32 s39, 0")
    e("s_branch k1_ld")
    k.label("k1_ldB")
    e("v_lshrrev_b32 v2, 3, v1"); e("v_mul_u32_u24 v2, 3456, v2")
    e("s_lshl_b32 s43, s36, 7"); e("v_add_u32 v2, s43, v2")
    e("v_bfe_u32 v4, v1, 4, 1"); e("v_lshlrev_b32 v4, 1, v4"); e("v_xor_b32 v3, v3, v4")
    e("v_lshl_add_u32 v4, v3, 4, v2")
    e("v_xor_b32 v3, 4, v3"); e("v_lshl_add_u32 v5, v3, 4, v2")
    for n in range(16):
        e(f"v_add_u32 v{16+n}, {8*(n & 7)*3456 + (1664 if n < 8 else 0) - (n & 3)*1024}, v{4+(n & 1)}")
    e("s_waitcnt lgkmcnt(0)")
    k.srd(16, 8, 9, 640*3456)
    e(f"s_mov_b32 s38, {64*3456}"); e("s_mov_b32 s39, 16384")
    k.label("k1_ld")
    e("s_mul_i32 s37, s45, s38"); e("s_mul_i32 s46, s38, 10"); e("s_mov_b32 s40, 0")
    k.label("k1_ldloop")
    e("s_cmp_lt_u32 s40, 2"); e("s_cbranch_scc1 k1_ldissue")
    e("s_cmp_eq_u32 s40, 3"); e("s_cbranch_scc1 k1_ldissue")
    e("s_cmp_eq_u32 s40, 2"); e("s_cbranch_scc0 k1_ldw32")
    e("s_waitcnt vmcnt(16)")
    k.label("k1_ldw32")
    e("s_waitcnt vmcnt(32)")
    e("s_barrier")
    k.label("k1_ldissue")
    for g in range(4):
        e(f"s_add_u32 m0, s39, {g*4096}")
        e("s_nop 0")
        for n in range(4): e(f"buffer_load_dwordx4 v{16+g*4+n}, s[16:19], s37 offen offset:{n*1024} lds")
    e("s_add_u32 s39, s39, 32768"); e("s_and_b32 s39, s39, 0x1ffff")
    e("s_add_u32 s37, s37, s38"); e("s_cmp_eq_u32 s37, s46"); e("s_cselect_b32 s37, 0, s37")
    e("s_add_u32 s40, s40, 1"); e("s_cmp_lt_u32 s40, 10"); e("s_cbranch_scc1 k1_ldloop")
    k.stamp(1)
    for n in (32, 16, 0):
        e(f"s_waitcnt vmcnt({n})"); e("s_barrier")
    e("s_barrier")
    k.stamp(2)
    k.srd(16, 10, 11, 2048*4096)
    e("s_lshl_b32 s43, s42, 1"); e("s_add_u32 s43, s43, s32"); e(f"s_mul_i32 s43, s43, {37*1024+512}")
    e("s_lshr_b32 s44, s41, 1"); e("s_lshl_b32 s44, s44, 21"); e("s_add_u32 s43, s43, s44")
    e("v_lshlrev_b32 v2, 4, v1")
    e("s_mov_b32 s40, 0")
    k.label("k1_pfloop")
    for n in range(2): e(f"buffer_load_dwordx4 v[4:7], v2, s[16:19], s43 offen offset:{n*1024}")
    e("s_add_u32 s43, s43, 2048"); e("s_add_u32 s40, s40, 1"); e("s_cmp_lt_u32 s40, 19"); e("s_cbranch_scc1 k1_pfloop")
    if PROFILE: e("s_waitcnt vmcnt(0)")
    k.end(0)
    k.label("k1_gemm")
    e("s_sub_u32 s43, s32, 2"); e("s_and_b32 s33, s43, 3"); e("s_lshr_b32 s34, s43, 2")
    e("v_and_b32 v2, 15, v1"); e("v_lshrrev_b32 v3, 4, v1")
    e("v_lshlrev_b32 v69, 4, v1")
    e("s_cmp_eq_u32 s34, 1"); e("s_cbranch_scc1 k1_pre1")
    e("s_lshl_b32 s43, s35, 2"); e("s_add_u32 s43, s43, s33"); e(f"s_mul_i32 s60, s43, {14*512}")
    e("s_lshl_b32 s62, s43, 2")
    e("s_lshl_b32 s44, s36, 9"); e("s_add_u32 s61, s60, s44")
    e("v_and_b32 v4, 7, v1"); e("v_lshl_add_u32 v4, v3, 3, v4"); e("v_bfe_u32 v5, v1, 3, 1"); e("v_lshlrev_b32 v5, 3, v5")
    e("v_lshl_add_u32 v158, v4, 4, v5")
    e("v_add_u32 v159, 4096, v69")
    e("s_waitcnt lgkmcnt(0)")
    k.srd(28, 14, 15, ST2_BYTES, WS_ST2)
    k.srd(64, 12, 13, 256)
    def poll_loads(base):
        for i in range(7):
            e(f"buffer_load_dwordx4 {v(base+4*i,4)}, v{69 if i < 4 else 159}, s[28:31], s60 offen offset:{(i%4)*1024} sc1")
    poll_loads(128)
    e("buffer_load_dwordx2 v[156:157], v158, s[28:31], s61 offen sc1")
    e("s_branch k1_pre")
    k.label("k1_pre1")
    e("s_load_dwordx8 s[64:71], s[0:1], 8")
    e("s_load_dwordx2 s[72:73], s[0:1], 40")
    e("s_mul_i32 s60, s41, 28"); e("s_add_u32 s60, s60, s42"); e("s_mul_i32 s60, s60, 3"); e("s_add_u32 s60, s60, s33")
    e("s_cmp_eq_u32 s33, 3"); e("s_cselect_b32 s60, 1000, s60")
    e("s_lshl_b32 s43, s60, 8"); e("s_lshl_b32 s44, s60, 1")
    e("v_lshlrev_b32 v4, 2, v1"); e("v_mov_b32 v5, 0")
    e("s_waitcnt lgkmcnt(0)")
    for a in range(4):
        k.srd(28, 64+2*a, 65+2*a, 640*256)
        e(f"buffer_load_dword v{164+a}, v4, s[28:31], s43 offen")
    k.srd(28, 72, 73, 1280); e("buffer_load_ushort v13, v5, s[28:31], s44 offen")
    k.label("k1_pre")
    e("s_lshl_b32 s43, s33, 5")
    e("v_add_u32 v4, s43, v2"); e("v_lshlrev_b32 v4, 7, v4")
    e("v_lshrrev_b32 v5, 1, v2"); e("v_xor_b32 v5, v5, v3")
    e("v_lshl_add_u32 v14, v5, 4, v4")
    e("v_xor_b32 v15, 64, v14")
    e("v_bfe_u32 v4, v1, 2, 2")
    e("v_lshl_add_u32 v5, v3, 3, v4"); e("v_lshlrev_b32 v5, 7, v5")
    e("v_and_b32 v6, 3, v1"); e("v_lshl_add_u32 v5, v6, 3, v5")
    e("s_lshl_b32 s43, s34, 13"); e("s_add_u32 s43, s43, 16384"); e("v_add_u32 v5, s43, v5")
    e("v_lshrrev_b32 v6, 1, v4"); e("v_and_b32 v7, 1, v3"); e("v_lshl_or_b32 v6, v7, 1, v6")
    e("v_xor_b32 v6, s33, v6")
    for c in range(4):
        e(f"v_xor_b32 v7, {c}, v6"); e(f"v_lshl_add_u32 v{16+c}, v7, 5, v5")
    for i in range(4): e(f"v_mov_b32 v{20+i}, 0x3f803f80")
    for i in range(72, 116): e(f"v_mov_b32 v{i}, 0")
    def xf(ks, b): return v(24 + 24*ks + 4*b, 4) if ks == 0 else v(48 + 4*b, 4)
    def wfb(ks, c): return (32 + 4*c) if ks == 0 else ((56 + 4*c) if c < 3 else 120)
    def wf(ks, c): return v(wfb(ks, c), 4)
    def acc(b, c): return v(72 + (b*4 + c)*4, 4)
    def reads(ks):
        for b in range(2):
            e(f"ds_read_b128 {xf(ks,b)}, v{14+ks} offset:{2048*b}")
        for c in range(4):
            for hh in range(2):
                e(f"ds_read_b64_tr_b16 {v(wfb(ks,c)+2*hh,2)}, v{16+c} offset:{ks*4096+hh*512}")
    def mfmas(ks, wc):
        for c in range(4):
            for b in range(2):
                if wc == 0: e(f"{MFMA} {acc(b,c)}, {xf(ks,b)}, {wf(ks,c)}, {acc(b,c)}")
                else:       e(f"{MFMA} {acc(b,c)}, {wf(ks,c)}, {xf(ks,b)}, {acc(b,c)}")
        e(f"{MFMA} v[104:107], v[20:23], {xf(ks,wc)}, v[104:107]")
        e(f"{MFMA} v[108:111], {xf(ks,wc)}, {xf(ks,wc)}, v[108:111]")
        e(f"{MFMA} v[112:115], v[20:23], {wf(ks,0)}, v[112:115]")
    k.stamp(1)
    e("s_mov_b32 s40, 10")
    e("s_barrier")
    k.stamp(2)
    reads(0)
    e("s_cmp_eq_u32 s34, 1"); e("s_cbranch_scc1 k1_loop1")
    for wc in range(2):
        k.label(f"k1_loop{wc}")
        reads(1)
        e("s_waitcnt lgkmcnt(10)")
        mfmas(0, wc)
        for r in range(14, 20):
            e(f"v_add_u32 v{r}, 0x8000, v{r}")
        for r in range(14, 20):
            e(f"v_and_b32 v{r}, 0x1ffff, v{r}")
        e("s_sub_u32 s40, s40, 1"); e("s_cmp_eq_u32 s40, 0")
        e("s_waitcnt lgkmcnt(0)")
        e(f"s_cbranch_scc1 k1_tail{wc}")
        e("s_barrier")
        reads(0)
        mfmas(1, wc)
        e(f"s_branch k1_loop{wc}")
        k.label(f"k1_tail{wc}")
        mfmas(1, wc)
        if wc == 0: e("s_setprio 2"); e("s_branch k1_stats")
    k.label("k1_stats")
    e("s_nop 7")
    k.stamp(3)
    e("v_and_b32 v4, 3, v1")
    e("v_mov_b32 v5, v108")
    for r in range(1, 4):
        e(f"v_cmp_eq_u32 vcc, {r}, v4"); e("s_nop 1"); e(f"v_cndmask_b32 v5, v5, v{108+r}, vcc")
    e(f"v_mul_f32 v6, {f32(1/640)}, v104")
    e(f"v_mul_f32 v5, {f32(1/640)}, v5")
    e("v_fma_f32 v5, -v6, v6, v5")
    ln_finish(k, "v6", "v5", "v7")
    e("s_lshl_b32 s43, s33, 5"); e("s_lshl_b32 s44, s34, 4"); e("s_add_u32 s43, s43, s44")
    e("v_add_u32 v7, s43, v2"); e("v_lshlrev_b32 v7, 2, v7"); e("v_add_u32 v7, 0x20000, v7")
    e("s_lshl_b32 s43, s34, 6"); e("s_lshl_b32 s44, s33, 4"); e("s_add_u32 s43, s43, s44")
    e("v_add_u32 v8, s43, v2"); e("v_lshlrev_b32 v8, 2, v8"); e("v_add_u32 v8, 0x20000, v8")
    e("ds_write_b32 v8, v112 offset:1024")
    e("v_lshrrev_b32 v4, 2, v2")
    e("v_cmp_eq_u32 vcc, v4, v3")
    e("s_and_saveexec_b64 s[44:45], vcc")
    e("ds_write_b32 v7, v6")
    e("ds_write_b32 v7, v5 offset:512")
    e("s_mov_b64 exec, s[44:45]")
    e("s_waitcnt lgkmcnt(0)")
    e("s_barrier")
    k.stamp(4)
    e(f"v_mov_b32 v68, {f32(GC1)}")
    e("s_cmp_eq_u32 s34, 1"); e("s_cbranch_scc1 k1_epi1")
    e("s_lshl_b32 s43, s33, 7"); e("s_add_u32 s43, s43, 0x20000")
    e("v_lshl_add_u32 v4, v3, 4, s43")
    e("ds_read_b128 v[24:27], v4"); e("ds_read_b128 v[28:31], v4 offset:64")
    e("ds_read_b128 v[32:35], v4 offset:512"); e("ds_read_b128 v[36:39], v4 offset:576")
    for c in range(4):
        e(f"s_xor_b32 s43, s33, {c}")
        e(f"s_lshl_b32 s44, s43, 6"); e("s_add_u32 s44, s44, 0x20400")
        e(f"v_lshl_add_u32 v5, v2, 2, s44")
        e(f"ds_read_b32 v{40+c}, v5")
        e("s_lshl_b32 s44, s36, 2"); e("s_add_u32 s43, s43, s44"); e("s_sub_u32 s43, s43, 2")
        e(f"s_cmp_lt_u32 s43, 54"); e(f"s_cselect_b32 s{50+c}, -1, 0")
        e("s_cselect_b32 s43, s43, 60")
        e(f"s_lshl_b32 s{46+c}, s43, 16")
        e("s_lshl_b32 s44, s35, 2"); e("s_add_u32 s44, s44, s33"); e("s_lshl_b32 s44, s44, 10")
        e(f"s_add_u32 s{46+c}, s{46+c}, s44")
    k.srd(24, 14, 15, ZF_BYTES, WS_Z2F)
    for i in range(44, 60): e(f"v_mov_b32 v{i}, 0")
    e("s_waitcnt lgkmcnt(0)")
    for c in range(4):
        A = [72 + (b*4 + c)*4 + r for b in range(2) for r in range(4)]
        k.batch([[f"v_fma_f32 v{A[n]}, -v{24+n}, v{40+c}, v{A[n]}", f"v_mul_f32 v{A[n]}, v{A[n]}, v{32+n}"] for n in range(8)])
        for p in range(4): e(f"v_cvt_pk_bf16_f32 v{60+p}, v{A[2*p]}, v{A[2*p+1]}")
        for p in range(4): unpack(k, f"v{A[2*p]}", f"v{A[2*p+1]}", f"v{60+p}")
        k.batch([gelu_seq(f"v{A[n]}", f"v{60+n}", "v68") for n in range(8)])
        for p in range(4): e(f"v_cvt_pk_bf16_f32 v{104+4*c+p}, v{A[2*p]}, v{A[2*p+1]}")
        for p in range(4): e(f"v_and_b32 v{104+4*c+p}, s{50+c}, v{104+4*c+p}")
        for p in range(4): unpack(k, f"v{A[2*p]}", f"v{A[2*p+1]}", f"v{104+4*c+p}")
        k.batch([[f"v_add_f32 v{44+n}, v{44+n}, v{A[n]}", f"v_fmac_f32 v{52+n}, v{A[n]}, v{A[n]}"] for n in range(8)])
    e("v_and_b32 v4, 2, v1"); e("v_and_b32 v5, 1, v1")
    e("v_cmp_ne_u32 s[54:55], 0, v4"); e("v_cmp_ne_u32 s[56:57], 0, v5")
    for n in range(8): e(f"v_add_f32_dpp v{60+n}, v{44+n}, v{44+n} row_ror:8 row_mask:0xf bank_mask:0x3")
    for n in range(8): e(f"v_add_f32_dpp v{60+n}, v{52+n}, v{52+n} row_ror:8 row_mask:0xf bank_mask:0xc")
    for n in range(4): e(f"v_add_f32_dpp v{44+n}, v{60+n}, v{60+n} row_half_mirror row_mask:0xf bank_mask:0x5")
    for n in range(4): e(f"v_add_f32_dpp v{44+n}, v{64+n}, v{64+n} row_half_mirror row_mask:0xf bank_mask:0xa")
    for n in range(2):
        e(f"v_cndmask_b32 v{48+n}, v{46+n}, v{44+n}, s[54:55]")
        e(f"v_cndmask_b32 v{50+n}, v{44+n}, v{46+n}, s[54:55]")
    e("s_nop 0")
    for n in range(2): e(f"v_add_f32_dpp v{52+n}, v{48+n}, v{50+n} quad_perm:[2,3,0,1] row_mask:0xf bank_mask:0xf")
    e("v_cndmask_b32 v48, v53, v52, s[56:57]"); e("v_cndmask_b32 v50, v52, v53, s[56:57]")
    e("s_waitcnt vmcnt(0)")
    e("v_add_u32 v157, 1, v157")
    e("v_add_f32_dpp v156, v48, v50 quad_perm:[1,0,3,2] row_mask:0xf bank_mask:0xf")
    e("buffer_store_dwordx2 v[156:157], v158, s[28:31], s61 offen sc1")
    k.stamp(5)
    for i in range(7):
        e(f"v_add_u32 v{129+4*i}, 1, v{129+4*i}"); e(f"v_add_u32 v{131+4*i}, 1, v{131+4*i}")
    e("v_mov_b32 v6, 0"); e("v_mov_b32 v7, 1")
    e("s_mov_b32 s40, 0"); e("s_mov_b32 s59, 0")
    k.label("k1_poll")
    poll_loads(24)
    e("s_waitcnt vmcnt(0)")
    e("s_cmp_eq_u32 s59, 14"); e("s_cbranch_scc1 k1_poll_done")
    e("v_xor_b32 v4, v25, v129"); e("v_xor_b32 v5, v27, v131")
    for i in range(1, 7):
        e(f"v_xor_b32 v9, v{25+4*i}, v{129+4*i}"); e(f"v_xor_b32 v10, v{27+4*i}, v{131+4*i}")
        e("v_or3_b32 v4, v4, v9, v10")
    e("v_or_b32 v4, v4, v5")
    e("v_cmp_ne_u32 vcc, 0, v4")
    e("s_add_u32 s40, s40, 1")
    e("s_nop 0")
    e("s_cbranch_vccz k1_poll_done")
    e("s_cmp_lt_u32 s40, 32"); e("s_cbranch_scc1 k1_poll")
    e("s_cmp_lg_u32 s40, 32"); e("s_cbranch_scc1 k1_poll_noat")
    e("s_mov_b64 exec, 1")
    e("buffer_atomic_add v7, v6, s[64:67], s62 offen sc1")
    e("s_mov_b64 exec, -1")
    k.label("k1_poll_noat")
    e("s_sleep 32")
    e("buffer_load_dword v8, v6, s[64:67], s62 offen sc1")
    e("s_waitcnt vmcnt(0)")
    e("v_readfirstlane_b32 s59, v8")
    e("s_cmp_lt_u32 s40, 0x80000"); e("s_cbranch_scc1 k1_poll")
    k.label("k1_poll_done")
    k.stamp(6)
    for i in range(1, 7):
        e(f"v_add_f32 v24, v24, v{24+4*i}"); e(f"v_add_f32 v26, v26, v{26+4*i}")
    e("v_mov_b32 v25, v24"); e("v_mov_b32 v27, v26"); e("s_nop 1")
    e("v_permlane32_swap_b32 v24, v25"); e("v_permlane32_swap_b32 v26, v27"); e("s_nop 1")
    e("v_add_f32 v24, v24, v25"); e("v_add_f32 v26, v26, v27")
    e(f"v_mul_f32 v24, {f32(1/864)}, v24"); e(f"v_mul_f32 v26, {f32(1/864)}, v26")
    e("v_fma_f32 v26, -v24, v24, v26")
    ln_finish(k, "v24", "v26", "v25")
    e("s_lshl_b32 s43, s33, 8"); e("s_add_u32 s43, s43, 0x20600")
    e("v_and_b32 v4, 31, v1"); e("v_lshl_add_u32 v4, v4, 2, s43"); e("v_lshl_add_u32 v5, v3, 5, s43")
    e("ds_write_b32 v4, v24"); e("ds_write_b32 v4, v26 offset:128")
    e("ds_read_b128 v[28:31], v5"); e("ds_read_b128 v[32:35], v5 offset:16")
    e("ds_read_b128 v[36:39], v5 offset:128"); e("ds_read_b128 v[40:43], v5 offset:144")
    e("s_waitcnt lgkmcnt(0)")
    for c in range(4):
        A = [72 + (b*4 + c)*4 + r for b in range(2) for r in range(4)]
        for n in range(8): e(f"v_sub_f32 v{A[n]}, v{A[n]}, v{28+n}")
        for p in range(4): e(f"v_cvt_pk_bf16_f32 v{60+p}, v{A[2*p]}, v{A[2*p+1]}")
        for p in range(4): unpack(k, f"v{A[2*p]}", f"v{A[2*p+1]}", f"v{60+p}")
        for n in range(8): e(f"v_mul_f32 v{A[n]}, v{A[n]}, v{36+n}")
        for p in range(4): e(f"v_cvt_pk_bf16_f32 v{104+4*c+p}, v{A[2*p]}, v{A[2*p+1]}")
        e(f"buffer_store_dwordx4 {v(104+4*c,4)}, v69, s[24:27], s{46+c} offen")
    e("s_cmp_ge_u32 s40, 33"); e("s_cbranch_scc1 k1_z2end")
    e("s_cmp_eq_u32 s59, 14"); e("s_cbranch_scc1 k1_z2end")
    e("s_mov_b64 exec, 1")
    e("buffer_atomic_add v7, v6, s[64:67], s62 offen sc1")
    k.label("k1_z2end")
    k.end(0)
    k.label("k1_epi1")
    k.srd(24, 14, 15, ZF_BYTES, WS_Z1F)
    e("s_lshl_b32 s43, s33, 7"); e("s_add_u32 s43, s43, 0x20000")
    e("v_lshl_add_u32 v4, v2, 2, s43")
    e("ds_read_b32 v24, v4"); e("ds_read_b32 v25, v4 offset:64")
    e("ds_read_b32 v26, v4 offset:512"); e("ds_read_b32 v27, v4 offset:576")
    for c in range(4):
        e(f"s_xor_b32 s43, s33, {c}")
        e(f"s_lshl_b32 s44, s43, 6"); e("s_add_u32 s44, s44, 0x20500")
        e(f"v_lshl_add_u32 v5, v3, 4, s44")
        e(f"ds_read_b128 {v(28+4*c,4)}, v5")
    for b in range(2):
        for g in range(2):
            e("s_lshr_b32 s43, s33, 1"); e(f"s_xor_b32 s43, s43, {g}"); e("s_lshl_b32 s44, s36, 1"); e("s_add_u32 s43, s43, s44")
            e("s_lshl_b32 s44, s35, 3"); e("s_lshl_b32 s45, s33, 1"); e("s_add_u32 s44, s44, s45"); e(f"s_add_u32 s44, s44, {b}")
            e("s_mul_i32 s44, s44, 27"); e("s_add_u32 s44, s44, s43"); e("s_lshl_b32 s44, s44, 10")
            e("s_cmp_lt_u32 s43, 27"); e(f"s_cselect_b32 s{46+b*2+g}, s44, {HUGE}")
    e("s_waitcnt lgkmcnt(0)")
    for c in range(4):
        A = [72 + (b*4 + c)*4 + r for b in range(2) for r in range(4)]
        k.batch([[f"v_fma_f32 v{A[n]}, -v{24+n//4}, v{28+4*c+n%4}, v{A[n]}", f"v_mul_f32 v{A[n]}, v{A[n]}, v{26+n//4}"] for n in range(8)])
        for p in range(4): e(f"v_cvt_pk_bf16_f32 v{60+p}, v{A[2*p]}, v{A[2*p+1]}")
        for p in range(4): unpack(k, f"v{A[2*p]}", f"v{A[2*p+1]}", f"v{60+p}")
        k.batch([gelu_seq(f"v{A[n]}", f"v{60+n}", "v68") for n in range(8)])
        for p in range(4): e(f"v_cvt_pk_bf16_f32 v{104+(p//2)*8+c*2+p%2}, v{A[2*p]}, v{A[2*p+1]}")
    e("s_bitcmp1_b32 s33, 0"); e("s_cbranch_scc0 k1_noswap")
    for b in range(2):
        for g in range(2):
            for p in range(2):
                r0 = 104 + b*8 + g*4 + p
                e(f"v_swap_b32 v{r0}, v{r0+2}")
    k.label("k1_noswap")
    e("s_waitcnt vmcnt(0)")
    for b in range(2):
        for g in range(2):
            e(f"buffer_store_dwordx4 {v(104+b*8+g*4,4)}, v69, s[24:27], s{46+b*2+g} offen")
    k.stamp(5)
    e("s_cmp_ge_u32 s60, 640"); e("s_cbranch_scc1 k1_z1end")
    e("s_lshl_b32 s61, s33, 14")
    kgen(k, "s61", 164, "v13", "v2", "v3", "v1")
    k.srd(24, 14, 15, KC_BYTES, WS_KC)
    e("s_mul_i32 s43, s60, 1536")
    e("v_max_u32 v4, 1, v3"); e("v_sub_u32 v4, 5, v4")
    e("v_lshlrev_b32 v5, v4, v2")
    e("v_lshlrev_b32 v6, 3, v3")
    e("v_mov_b32 v7, 512"); e("v_cmp_eq_u32 vcc, 2, v3"); e("s_nop 1"); e("v_cndmask_b32 v6, v6, v7, vcc")
    e("v_mov_b32 v7, 768"); e("v_mov_b32 v8, 4"); e("v_mov_b32 v9, 128"); e("v_cmp_eq_u32 vcc, 3, v3"); e("s_nop 1")
    e("v_cndmask_b32 v6, v6, v7, vcc"); e("v_cndmask_b32 v8, v8, v9, vcc")
    e("v_add_u32 v5, v5, v6")
    e("v_lshlrev_b32 v6, v4, 16")
    e("v_add_u32 v6, v5, v6")
    e("v_add_u32 v7, v5, v8"); e("v_add_u32 v8, v6, v8")
    for n in range(8): e(f"v_cvt_pk_bf16_f32 v{24+n}, v{136+2*n}, v{137+2*n}")
    e("buffer_store_dword v24, v5, s[24:27], s43 offen"); e("buffer_store_dword v25, v7, s[24:27], s43 offen")
    e("buffer_store_dword v26, v6, s[24:27], s43 offen"); e("buffer_store_dword v27, v8, s[24:27], s43 offen")
    e("v_lshlrev_b32 v9, 6, v2"); e("v_lshl_add_u32 v9, v3, 3, v9")
    e("v_cmp_gt_u32 vcc, 5, v2"); e("s_and_saveexec_b64 s[44:45], vcc")
    e("buffer_store_dwordx2 v[28:29], v9, s[24:27], s43 offen offset:1024")
    e("buffer_store_dwordx2 v[30:31], v9, s[24:27], s43 offen offset:1056")
    k.label("k1_z1end")
    k.end(0)
    k.label("k1_helper")
    e("s_lshl_b32 s35, s41, 2"); e("s_add_u32 s35, s35, s42"); e("s_sub_u32 s35, s35, 28")
    e("s_cmp_ge_u32 s32, 2"); e("s_cbranch_scc1 k1_hln")
    e("s_load_dwordx2 s[6:7], s[0:1], 88")
    e("v_lshlrev_b32 v2, 4, v1")
    e("s_lshl_b32 s43, s35, 1"); e("s_add_u32 s43, s43, s32"); e("s_mul_i32 s43, s43, 17408")
    e("s_waitcnt lgkmcnt(0)")
    k.srd(24, 6, 7, 864*1280)
    for n in range(17):
        e(f"buffer_load_dwordx4 v[4:7], v2, s[24:27], s43 offen offset:{(n%4)*1024}")
        if n % 4 == 3: e("s_add_u32 s43, s43, 4096")
    k.end(0)
    k.label("k1_hln")
    e("s_sub_u32 s33, s32, 2")
    e("v_and_b32 v2, 15, v1"); e("v_lshrrev_b32 v3, 4, v1")
    e("s_lshl_b32 s43, s33, 3")
    e("v_add_u32 v4, s43, v3")
    e("s_lshl_b32 s44, s35, 6")
    e("v_add_u32 v5, s44, v4"); e("v_mul_u32_u24 v5, 1280, v5"); e("v_lshl_add_u32 v5, v2, 4, v5")
    e("v_add_u32 v6, 5120, v5")
    e("v_mul_u32_u24 v7, 1296, v4"); e("v_lshl_add_u32 v7, v2, 4, v7")
    e("s_waitcnt lgkmcnt(0)")
    k.srd(16, 4, 5, 2048*1280)
    k.srd(28, 14, 15, XT_BYTES, WS_XNT)
    k.vm = []
    for g in range(2):
        for n in range(5):
            k.vmem(f"buffer_load_dwordx4 {v(8+g*20+n*4,4)}, v{5+g}, s[16:19], 0 offen offset:{n*256}", f"x{g}")
    for g in range(2):
        k.stamp(1+2*g)
        k.wait_vm(f"x{g}")
        k.stamp(2+2*g)
        X = 48
        src = 8 + g*20
        for n in range(20): unpack(k, f"v{X+2*n}", f"v{X+2*n+1}", f"v{src+n}")
        for a in range(4): e(f"v_add_f32 v{88+a}, v{X+a}, v{X+4+a}")
        for n in range(8, 40): e(f"v_add_f32 v{88+n%4}, v{88+n%4}, v{X+n}")
        e("v_add_f32 v88, v88, v89"); e("v_add_f32 v90, v90, v91"); e("s_nop 0"); e("v_add_f32 v88, v88, v90")
        for sh in (8, 4, 2, 1):
            e("s_nop 1"); e(f"v_add_f32_dpp v88, v88, v88 row_ror:{sh} row_mask:0xf bank_mask:0xf")
        e(f"v_mul_f32 v88, {f32(1/640)}, v88")
        for a in range(4): e(f"v_mov_b32 v{92+a}, 0")
        for n0 in range(0, 40, 4):
            for a in range(4): e(f"v_sub_f32 v{96+a}, v{X+n0+a}, v88")
            for a in range(4): e(f"v_fmac_f32 v{92+a}, v{96+a}, v{96+a}")
        e("v_add_f32 v92, v92, v93"); e("v_add_f32 v94, v94, v95"); e("s_nop 0"); e("v_add_f32 v92, v92, v94")
        for sh in (8, 4, 2, 1):
            e("s_nop 1"); e(f"v_add_f32_dpp v92, v92, v92 row_ror:{sh} row_mask:0xf bank_mask:0xf")
        e(f"v_mul_f32 v92, {f32(1/640)}, v92")
        ln_finish(k, "v88", "v92", "v89")
        for n in range(40): e(f"v_sub_f32 v{X+n}, v{X+n}, v88")
        for n in range(20): e(f"v_cvt_pk_bf16_f32 v{src+n}, v{X+2*n}, v{X+2*n+1}")
        for n in range(20): unpack(k, f"v{X+2*n}", f"v{X+2*n+1}", f"v{src+n}")
        for n in range(40): e(f"v_mul_f32 v{X+n}, v{X+n}, v92")
        for n in range(20): e(f"v_cvt_pk_bf16_f32 v{src+n}, v{X+2*n}, v{X+2*n+1}")
        for n in range(5):
            e(f"ds_write_b128 v7, {v(src+4*n,4)} offset:{g*4*1296 + n*256}")
    e("s_waitcnt lgkmcnt(0)")
    e("s_barrier")
    k.stamp(5)
    e("v_bfe_u32 v4, v1, 2, 2"); e("v_lshl_add_u32 v4, v3, 3, v4"); e("v_mul_u32_u24 v4, 1296, v4")
    e("v_and_b32 v5, 3, v1"); e("v_lshl_add_u32 v4, v5, 3, v4")
    e("s_lshl_b32 s43, s33, 5"); e("v_add_u32 v4, s43, v4")
    e(f"v_add_u32 v5, {32*1296}, v4")
    e("v_lshlrev_b32 v6, 12, v2"); e("v_lshl_add_u32 v6, v3, 4, v6")
    e("s_lshl_b32 s43, s33, 16"); e("s_lshl_b32 s44, s35, 7"); e("s_add_u32 s43, s43, s44")
    for n in range(5):
        for th in range(2):
            for hh in range(2):
                e(f"ds_read_b64_tr_b16 {v(8+(n*2+th)*4+hh*2,2)}, v{4+th} offset:{hh*4*1296 + n*256}")
    e("s_waitcnt lgkmcnt(0)")
    for n in range(5):
        for th in range(2):
            e(f"buffer_store_dwordx4 {v(8+(n*2+th)*4,4)}, v6, s[28:31], s43 offen offset:{th*64}")
        e(f"s_add_u32 s43, s43, {8*65536}")
    k.stamp(6)
    if PROFILE: e("s_waitcnt vmcnt(0)")
    k.end(0)
    k.label("k1_end")
    e("s_endpgm")
    return k.text(168)
```

```python
from asmlib import *
from gen_k1 import *
CONV_B = 22784
K2_LDS = 65536 + 4 * CONV_B
def gen_k2():
    k = Kern("k2_kernel"); e = k.e
    e("s_cmp_ge_u32 s2, 256"); e("s_cbranch_scc1 k2_end")
    k.stamp_init()
    e("s_load_dwordx2 s[8:9], s[0:1], 112")
    e("s_load_dwordx4 s[4:7], s[0:1], 72")
    e("v_and_b32 v1, 63, v0")
    e("v_lshrrev_b32 v2, 6, v0")
    e("s_and_b32 s41, s2, 7")
    e("v_readfirstlane_b32 s32, v2")
    e("s_lshr_b32 s42, s2, 3")
    e("s_xor_b32 s32, s32, 4")
    e("s_cmp_ge_u32 s32, 4"); e("s_cbranch_scc1 k2_conv")
    e("s_lshr_b32 s35, s41, 1"); e("s_lshl_b32 s35, s35, 3"); e("s_lshr_b32 s43, s42, 2"); e("s_add_u32 s35, s35, s43")
    e("s_and_b32 s36, s42, 3")
    e("s_and_b32 s43, s41, 1"); e("s_mul_i32 s43, s43, 27"); e("s_mul_i32 s44, s36, 7"); e("s_add_u32 s37, s43, s44")
    e("v_lshrrev_b32 v2, 5, v1"); e("v_lshlrev_b32 v2, 3, v2"); e("v_bfe_u32 v3, v1, 3, 2"); e("v_add_u32 v2, v2, v3")
    e("v_lshlrev_b32 v2, 12, v2")
    e("v_and_b32 v3, 7, v1"); e("v_lshrrev_b32 v4, 4, v1"); e("v_xor_b32 v3, v3, v4")
    e("v_lshl_add_u32 v242, v3, 4, v2")
    e("v_xor_b32 v3, 4, v3")
    e("v_lshl_add_u32 v243, v3, 4, v2"); e(f"v_add_u32 v243, {16*4096 - 1024}, v243")
    e("v_lshlrev_b32 v244, 4, v1")
    e("s_lshl_b32 s43, s35, 18"); e("s_lshl_b32 s44, s32, 10"); e("s_add_u32 s48, s43, s44")
    e(f"s_add_u32 s49, s48, {4*4096}"); e(f"s_add_u32 s50, s48, {32*4096}"); e(f"s_add_u32 s51, s48, {36*4096}")
    e("s_lshl_b32 s43, s37, 16"); e("s_lshl_b32 s44, s32, 14"); e("s_add_u32 s52, s43, s44")
    for c in range(1, 7): e(f"s_add_u32 s{52+c}, s52, {c*65536}")
    e("s_cmp_eq_u32 s36, 3"); e(f"s_cselect_b32 s58, {HUGE}, s58")
    e("s_lshl_b32 s39, s32, 14")
    e("s_waitcnt lgkmcnt(0)")
    k.srd(16, 4, 5, 2048*4096)
    k.srd(20, 8, 9, ZF_BYTES, WS_Z2F)
    def Z(st, c): return v(112 + st*28 + c*4, 4)
    def acc(c, sg): return v((c*4 + sg)*4, 4)
    def wf(sg): return v(224 + 4*sg, 4)
    def issueZ(st):
        for c in range(7): e(f"buffer_load_dwordx4 {Z(st,c)}, v244, s[20:23], s{52+c} offen offset:{st*1024}")
    def issueA(slot):
        for t in range(4):
            e(f"s_add_u32 m0, s39, {slot*8192 + t*2048}")
            e("s_nop 0")
            e(f"buffer_load_dwordx4 v242, s[16:19], s{48+t} offen lds")
            e(f"buffer_load_dwordx4 v243, s[16:19], s{48+t} offen offset:1024 lds")
        for t in range(4): e(f"s_add_u32 s{48+t}, s{48+t}, s59")
    e("s_mov_b32 s59, 128")
    issueZ(0); issueA(0); issueZ(1); issueZ(2); issueA(1); issueZ(3)
    e("v_and_b32 v2, 15, v1"); e("v_lshrrev_b32 v3, 4, v1")
    e("v_lshrrev_b32 v5, 1, v2"); e("v_xor_b32 v5, v5, v3")
    e("v_lshlrev_b32 v4, 7, v2"); e("v_lshl_add_u32 v4, v5, 4, v4"); e("v_add_u32 v4, s39, v4")
    for sg in range(4):
        e(f"s_xor_b32 s43, s32, {sg}"); e("s_lshl_b32 s43, s43, 11")
        e(f"v_add_u32 v{246+sg}, s43, v4")
        e(f"v_xor_b32 v{250+sg}, 64, v{246+sg}")
    e("v_mov_b32 v240, v2"); e("v_mov_b32 v241, v3"); e("v_mov_b32 v245, v1")
    for i in range(112): e(f"v_mov_b32 v{i}, 0")
    k.stamp(1)
    e("s_waitcnt vmcnt(29)") if PROFILE else None
    k.stamp(2)
    e("s_mov_b32 s40, 4")
    k.label("k2_loop")
    e("s_cmp_eq_u32 s40, 1"); e(f"s_cselect_b32 s43, {HUGE}, 4096")
    for c in range(7): e(f"s_add_u32 s{52+c}, s{52+c}, s43")
    e("s_cmp_eq_u32 s40, 1"); e(f"s_cselect_b32 s43, {HUGE}, 0")
    for t in range(4): e(f"s_add_u32 s{48+t}, s{48+t}, s43")
    for n in range(4):
        slot, ks = n >> 1, n & 1
        e("s_waitcnt vmcnt(29)")
        for sg in range(4):
            e(f"ds_read_b128 {wf(sg)}, v{(250 if ks else 246)+sg} offset:{slot*8192}")
        for sg in range(4):
            e(f"s_waitcnt lgkmcnt({3-sg})")
            if sg == 3 and ks == 1: issueA(slot)
            for c in range(7):
                e(f"{MFMA} {acc(c,sg)}, {Z(n,c)}, {wf(sg)}, {acc(c,sg)}")
        issueZ(n)
    e("s_sub_u32 s40, s40, 1"); e("s_cmp_lg_u32 s40, 0"); e("s_cbranch_scc1 k2_loop")
    k.stamp(3)
    e("s_waitcnt vmcnt(0)")
    k.srd(24, 8, 9, ZF_BYTES, WS_Z1F)
    k.srd(28, 8, 9, ZF_BYTES, WS_HF)
    k.srd(16, 6, 7, 4096)
    e("s_lshl_b32 s43, s35, 2"); e("s_add_u32 s43, s43, s32"); e("s_mul_i32 s44, s43, 27648")
    for c in range(7):
        e(f"s_add_u32 s45, s37, {c}"); e("s_lshr_b32 s46, s45, 1"); e("s_lshl_b32 s46, s46, 10"); e("s_and_b32 s45, s45, 1"); e("s_lshl_b32 s45, s45, 3")
        e("s_add_u32 s45, s45, s46"); e(f"s_add_u32 s{52+c}, s45, s44")
    e("s_cmp_eq_u32 s36, 3"); e(f"s_cselect_b32 s58, {HUGE}, s58")
    for c in range(7): e(f"buffer_load_dwordx2 {v(200+2*c,2)}, v244, s[24:27], s{52+c} offen")
    e("s_lshr_b32 s44, s43, 1"); e("s_lshl_b32 s44, s44, 5"); e("s_and_b32 s45, s43, 1"); e("s_lshl_b32 s45, s45, 2"); e("s_add_u32 s44, s44, s45")
    e("v_lshrrev_b32 v216, 2, v240"); e("v_and_b32 v217, 3, v240"); e("v_lshl_add_u32 v216, v216, 3, v217"); e("v_add_u32 v216, s44, v216")
    e("v_lshlrev_b32 v216, 1, v216")
    e("buffer_load_ushort v214, v216, s[16:19], 0 offen")
    e("v_add_u32 v220, s39, v244")
    e("s_xor_b32 s43, s39, 0x4000"); e("v_add_u32 v221, s43, v244")
    e("s_xor_b32 s43, s39, 0xc000"); e("v_add_u32 v222, s43, v244")
    for c in range(7):
        for h in range(2): e(f"ds_write_b128 v220, {acc(c,1+2*h)} offset:{(c*2+h)*1024}")
    e("s_waitcnt lgkmcnt(0)"); k.stamp(4); e("s_barrier"); k.stamp(5)
    for c in range(7):
        for h in range(2): e(f"ds_read_b128 {v(112+(c*2+h)*4,4)}, v221 offset:{(c*2+h)*1024}")
    e("s_waitcnt lgkmcnt(0)")
    for c in range(7):
        for h in (1, 0):
            for r in range(4):
                a = (c*4 + 2*h)*4 + r
                e(f"v_add_f32 v{a}, v{a}, v{112+(c*2+h)*4+r}")
    for c in range(7): e(f"ds_write_b128 v221, {acc(c,2)} offset:{c*1024}")
    e("s_waitcnt lgkmcnt(0)"); e("s_barrier")
    for c in range(7): e(f"ds_read_b128 {v(112+c*4,4)}, v222 offset:{c*1024}")
    e("s_waitcnt vmcnt(0) lgkmcnt(0)")
    k.stamp(6)
    e("v_lshlrev_b32 v214, 16, v214")
    for c in range(7):
        A = [c*16 + r for r in range(4)]
        for r in range(4): e(f"v_add_f32 v{A[r]}, v{A[r]}, v{112+c*4+r}")
        for p in range(2): e(f"v_cvt_pk_bf16_f32 v{150+p}, v{A[2*p]}, v{A[2*p+1]}")
        for p in range(2):
            e(f"v_lshlrev_b32 v{A[2*p]}, 16, v{150+p}"); e(f"v_and_b32 v{A[2*p+1]}, 0xffff0000, v{150+p}")
        for r in range(4): e(f"v_add_f32 v{A[r]}, v{A[r]}, v214")
        for p in range(2): e(f"v_cvt_pk_bf16_f32 v{150+p}, v{A[2*p]}, v{A[2*p+1]}")
        for p in range(2):
            e(f"v_lshlrev_b32 v{A[2*p]}, 16, v{150+p}"); e(f"v_and_b32 v{A[2*p+1]}, 0xffff0000, v{150+p}")
            e(f"v_lshlrev_b32 v{152+2*p}, 16, v{200+2*c+p}"); e(f"v_and_b32 v{153+2*p}, 0xffff0000, v{200+2*c+p}")
        for r in range(4): e(f"v_mul_f32 v{A[r]}, v{A[r]}, v{152+r}")
        for p in range(2): e(f"v_cvt_pk_bf16_f32 v{160+2*c+p}, v{A[2*p]}, v{A[2*p+1]}")
        e(f"buffer_store_dwordx2 {v(160+2*c,2)}, v244, s[28:31], s{52+c} offen")
    k.end(2)

    k.label("k2_conv")
    e("s_cmp_ge_u32 s42, 20"); e("s_cbranch_scc1 k2_end")
    e("s_load_dwordx2 s[74:75], s[0:1], 48")
    e("s_mul_i32 s35, s41, 20"); e("s_add_u32 s35, s35, s42"); e("s_lshl_b32 s35, s35, 2"); e("s_add_u32 s35, s35, s32"); e("s_sub_u32 s35, s35, 4")
    e("s_sub_u32 s43, s32, 4"); e(f"s_mul_i32 s39, s43, {CONV_B}"); e("s_add_u32 s39, s39, 65536")
    e("v_and_b32 v2, 15, v1"); e("v_lshrrev_b32 v3, 4, v1")
    e("v_lshlrev_b32 v5, 4, v1"); e("v_mov_b32 v6, 0"); e("v_mov_b32 v7, 0")
    e("s_mul_i32 s43, s35, 1536"); e("s_lshl_b32 s44, s35, 1"); e("s_lshl_b32 s45, s35, 12")
    KC = 21248
    e(f"s_add_u32 m0, s39, {KC}")
    e("s_waitcnt lgkmcnt(0)")
    k.srd(28, 8, 9, KC_BYTES, WS_KC)
    k.vmem("buffer_load_dwordx4 v5, s[28:31], s43 offen lds", "p")
    e("s_mov_b32 exec_hi, 0")
    k.vmem("buffer_load_dwordx4 v5, s[28:31], s43 offen offset:1024 lds", "p")
    e("s_mov_b64 exec, -1")
    k.srd(16, 74, 75, 1280); k.vmem("buffer_load_ushort v13, v6, s[16:19], s44 offen", "u")
    k.srd(20, 8, 9, XT_BYTES, WS_XNT)
    k.srd(24, 8, 9, XT_BYTES, WS_YT)
    e(f"s_add_u32 m0, s39, {16640+512}")
    e("s_nop 0")
    for n in range(4): k.vmem(f"buffer_load_dwordx4 v5, s[20:23], s45 offen offset:{n*1024} lds", "u")
    e("v_lshl_add_u32 v14, v1, 3, s39")
    e("ds_write_b64 v14, v[6:7] offset:16640")
    e(f"s_add_u32 s43, s39, {KC}")
    e(f"s_add_u32 s44, s39, {KC + 256 - 2*0x4300}")
    e(f"v_mov_b32 v31, {f32(128.0)}")
    e("v_mov_b32 v8, 0"); e("v_mov_b32 v9, 0"); e("v_mov_b32 v10, 0"); e("v_mov_b32 v11, 0")
    e("v_lshl_add_u32 v14, v1, 4, s39")
    e("v_cmp_gt_u32 vcc, 5, v1"); e("s_and_saveexec_b64 s[46:47], vcc")
    for c in range(4): e(f"ds_write_b128 v14, v[8:11] offset:{c*4160}")
    e("s_mov_b64 exec, s[46:47]")
    k.stamp(5)
    e("v_lshlrev_b32 v20, 3, v1"); e("v_cvt_f32_u32 v20, v20")
    k.stamp(1)
    k.wait_vm("p")
    k.stamp(2)
    for m in range(4):
        W = 32 + 16*m
        for pr in range(5):
            lo = 512*m - 1 + 2*pr
            e(f"v_add_f32 v{96+2*pr}, {f32(lo)}, v20"); e(f"v_add_f32 v{97+2*pr}, {f32(lo+1)}, v20")
        if m == 0: e("v_max_f32 v96, 0, v96")
        for pr in range(5): e(f"v_cvt_pk_bf16_f32 v{108+pr}, v{96+2*pr}, v{97+2*pr}")
        for el in range(9):
            a = f"v{114+el}"
            if el % 2 == 0: e(f"v_and_b32 {a}, 0xffff, v{108+el//2}")
            else: e(f"v_lshrrev_b32 {a}, 16, v{108+el//2}")
            e(f"v_lshl_add_u32 {a}, {a}, 1, s44")
            if m == 0:
                e(f"v_cvt_u32_f32 v21, v{96+el}"); e("v_lshl_add_u32 v21, v21, 1, s43")
                e(f"v_cmp_lt_f32 vcc, v{96+el}, v31"); e("s_nop 1"); e(f"v_cndmask_b32 {a}, {a}, v21, vcc")
        for el in range(9): e(f"ds_read_u16 v{144+9*m+el}, v{114+el}")
    e("s_waitcnt lgkmcnt(0)")
    e("v_cmp_eq_u32 vcc, 0, v1"); e("s_nop 1"); e("v_cndmask_b32 v144, v144, v8, vcc")
    for m in range(4):
        W = 32 + 16*m
        E = 144 + 9*m
        for p in range(4):
            e(f"v_lshl_or_b32 v{W+p}, v{E+2*p+2}, 16, v{E+2*p+1}")
            e(f"v_lshl_or_b32 v{W+8+p}, v{E+2*p+1}, 16, v{E+2*p}")
        o = 64 + 1024*m
        e(f"ds_write_b128 v14, {v(W,4)} offset:{o}")
        e(f"ds_write_b128 v14, {v(W+8,4)} offset:{4160+o}")
        for cpy, src in ((2, W), (3, W+8)):
            for p in range(4): e(f"ds_write_b32 v14, v{src+p} offset:{cpy*4160+o+4+4*p}")
    k.stamp(6)
    e("v_bfe_u32 v20, v1, 2, 2"); e("v_mul_u32_u24 v20, 4160, v20")
    e("v_and_b32 v21, 3, v1"); e("v_lshl_add_u32 v20, v21, 3, v20")
    e("v_lshlrev_b32 v21, 4, v3"); e("v_sub_u32 v20, v20, v21")
    e("s_add_u32 s43, s39, 88"); e("v_add_u32 v17, s43, v20")
    e("v_lshlrev_b32 v20, 5, v2"); e("v_lshl_add_u32 v20, v3, 4, v20")
    e(f"s_add_u32 s43, s39, {16640+480}"); e("v_add_u32 v18, s43, v20")
    def Af(m): return 32 + 4*m
    def Bf(r): return 64 + 4*r
    def ac(cb): return v(96 + 4*cb, 4)
    for i in range(32): e(f"v_mov_b32 v{96+i}, 0")
    k.wait_vm("u")
    e("v_lshlrev_b32 v13, 16, v13")
    e("s_waitcnt lgkmcnt(0)")
    def rdA(m):
        e(f"ds_read_b64_tr_b16 {v(Af(m),2)}, v17 offset:{512*m+8}"); e(f"ds_read_b64_tr_b16 {v(Af(m)+2,2)}, v17 offset:{512*m}")
    def rdB(r): e(f"ds_read_b128 {v(Bf(r),4)}, v18 offset:{512*r}")
    for m in range(8): rdA(m); rdB(7-m)
    e("s_mov_b32 s40, 8")
    k.label("k2_cloop")
    e("v_add_u32 v17, 64, v17"); e("v_subrev_u32 v18, 64, v18")
    for m in range(8):
        for cb in (range(7, -1, -1) if m == 0 else range(m, 8)):
            if m == 0: e(f"s_waitcnt lgkmcnt({min(3*cb, 15)})")
            e(f"{MFMA} {ac(cb)}, {v(Af(m),4)}, {v(Bf(cb-m),4)}, {ac(cb)}")
        rdA(m); rdB(7-m)
    e("s_sub_u32 s40, s40, 1"); e("s_cmp_lg_u32 s40, 0"); e("s_cbranch_scc1 k2_cloop")
    k.stamp(7)
    e("s_waitcnt lgkmcnt(0)")
    e("v_lshlrev_b32 v20, 5, v2"); e("v_lshl_add_u32 v20, v3, 3, v20")
    e(f"s_add_u32 s43, s39, {16640+512}"); e("v_add_u32 v21, s43, v20")
    for cb in range(8): e(f"ds_read_b64 {v(32+2*cb,2)}, v21 offset:{512*cb}")
    e("s_lshl_b32 s45, s35, 12")
    e("s_waitcnt lgkmcnt(0)")
    for cb in range(8):
        A = [96 + 4*cb + r for r in range(4)]
        for p in range(2): e(f"v_cvt_pk_bf16_f32 v{64+p}, v{A[2*p]}, v{A[2*p+1]}")
        for p in range(2):
            e(f"v_lshlrev_b32 v{66+2*p}, 16, v{32+2*cb+p}"); e(f"v_and_b32 v{67+2*p}, 0xffff0000, v{32+2*cb+p}")
            e(f"v_lshlrev_b32 v{A[2*p]}, 16, v{64+p}"); e(f"v_and_b32 v{A[2*p+1]}, 0xffff0000, v{64+p}")
        for r in range(4): e(f"v_mul_f32 v{66+r}, v{66+r}, v13")
        for p in range(2): e(f"v_cvt_pk_bf16_f32 v{64+p}, v{66+2*p}, v{67+2*p}")
        for p in range(2):
            e(f"v_lshlrev_b32 v{66+2*p}, 16, v{64+p}"); e(f"v_and_b32 v{67+2*p}, 0xffff0000, v{64+p}")
        for r in range(4): e(f"v_add_f32 v{A[r]}, v{A[r]}, v{66+r}")
        for p in range(2): e(f"v_cvt_pk_bf16_f32 v{32+2*cb+p}, v{A[2*p]}, v{A[2*p+1]}")
        e(f"buffer_store_dwordx2 {v(32+2*cb,2)}, v20, s[24:27], s45 offen offset:{512*cb}")
    k.end(2)
    k.label("k2_end")
    e("s_endpgm")
    return k.text(256)
```

```python
from asmlib import *
MB = 1 << 20
import os
import numpy as np
WS_XNT, WS_Z2F, WS_Z1F, WS_HF, WS_YT, WS_ST2, WS_KC = 0, 4*MB, 8*MB, 12*MB, 16*MB, 20*MB, 21*MB
ZF_BYTES = 54 * 65536
XT_BYTES = 640 * 4096
ST2_BYTES = 64 * 14 * 512
KC_BYTES = 640 * 1536
HUGE = 0x40000000
GC0 = -2.0 * 0.7978845608028654 * 1.4426950408889634
GC1 = GC0 * 0.044715
MFMA = "v_mfma_f32_16x16x32_bf16"
LOG2E = 1.4426950408889634
L_HI = float(np.float32(LOG2E)); L_LO = LOG2E - L_HI

def exp_precise(k, dst, x, t0, t1):
    e = k.e
    e(f"v_mul_f32 {t0}, {f32(L_HI)}, {x}")
    e(f"v_mov_b32 {t1}, {f32(L_HI)}")
    e(f"v_fma_f32 {t1}, {x}, {t1}, -{t0}")
    e(f"v_fmac_f32 {t1}, {f32(L_LO)}, {x}")
    e(f"v_exp_f32 {t0}, {t0}")
    e(f"v_mul_f32 {t1}, {f32(0.6931471805599453)}, {t1}")
    e(f"v_fma_f32 {dst}, {t0}, {t1}, {t0}")

def gelu_seq(a, t, vc1):
    return [f"v_mul_f32 {t}, {a}, {a}",
            f"v_fmaak_f32 {t}, {vc1}, {t}, {f32(GC0)}",
            f"v_mul_f32 {t}, {t}, {a}",
            f"v_exp_f32 {t}, {t}",
            f"v_add_f32 {t}, 1.0, {t}",
            f"v_rcp_f32 {t}, {t}",
            f"v_mul_f32 {a}, {a}, {t}"]

def ln_finish(k, mean, var, t):
    k.e(f"v_max_f32 {var}, 0, {var}")
    k.e(f"v_cvt_pk_bf16_f32 {t}, {mean}, {var}")
    k.e(f"v_lshlrev_b32 {mean}, 16, {t}")
    k.e(f"v_and_b32 {var}, 0xffff0000, {t}")
    k.e(f"v_add_f32 {var}, {f32(1e-5)}, {var}")
    k.e(f"v_cvt_pk_bf16_f32 {t}, {var}, {var}")
    k.e(f"v_and_b32 {var}, 0xffff0000, {t}")
    k.e(f"v_sqrt_f32 {var}, {var}")
    k.e("s_nop 0")
    k.e(f"v_cvt_pk_bf16_f32 {t}, {var}, {var}")
    k.e(f"v_and_b32 {var}, 0xffff0000, {t}")
    k.e(f"v_rcp_f32 {var}, {var}")
    k.e("s_nop 0")

def unpack(k, lo, hi, src):
    k.e(f"v_lshlrev_b32 {lo}, 16, {src}"); k.e(f"v_and_b32 {hi}, 0xffff0000, {src}")

K1_LDS = 131072 + 1536 + 1024
K1_THREADS = 640

def kgen(k, tab_s, par, dtv, lane_i, lane_q, lane):
    e = k.e
    PITCH = 272
    e(f"v_lshlrev_b32 {dtv}, 16, {dtv}")
    exp_precise(k, dtv, dtv, "v4", "v5")
    e(f"v_cvt_pk_bf16_f32 {dtv}, {dtv}, {dtv}"); e(f"v_and_b32 {dtv}, 0xffff0000, {dtv}")
    e(f"v_lshl_add_u32 v10, {lane}, 2, {tab_s}")
    e(f"v_mul_u32_u24 v11, {PITCH}, {lane_i}"); e(f"v_lshl_add_u32 v11, {lane_q}, 4, v11"); e(f"v_add_u32 v11, {tab_s}, v11")
    for i in range(136, 152): e(f"v_mov_b32 v{i}, 0")
    e("v_mov_b32 v12, 0x00003f80")
    e(f"ds_write_b32 v10, v12 offset:{21*PITCH}")
    names = {}
    nxt = [24]
    def pair(n):
        if n not in names:
            names[n] = nxt[0]; nxt[0] += 2; assert nxt[0] <= 136
        return names[n]
    def P(n): r = pair(n); return f"v[{r}:{r+1}]"
    urow = {"U0":0,"U1":1,"U2":2,"U3":3,"U4":4,"U5":5,"U6":6,"U7":7,"R256":8,"R258":9,"R260":10,"R262":11,"R512":12,"R516":13,"R768":14,"R772":15,
            "R1024":16,"R1280":17,"R1536":18,"R1792":19,"R2048":20}
    tmp = [0]
    def out(n, row, neg):
        r = pair(n); t = 152 + tmp[0] % 12; tmp[0] += 1
        e(f"v_cvt_pk_bf16_f32 v{t}, v{r}, {'-' if neg else ''}v{r+1}")
        return f"ds_write_b32 v10, v{t} offset:{row*PITCH}"
    def level(ops):
        for d, a, b in ops: e(f"v_pk_mul_f32 {P('t_'+str(ops.index((d,a,b))))}, {P(a)}, {P(b)} op_sel:[0,0] op_sel_hi:[1,0]")
        for d, a, b in ops: e(f"v_pk_fma_f32 {P(d)}, {P(a)}, {P(b)}, {P('t_'+str(ops.index((d,a,b))))} op_sel:[1,1,0] op_sel_hi:[0,1,1] neg_lo:[0,1,0]")
    for hf in range(2):
        def unp(dst, src): e(f"v_lshlrev_b32 {dst}, 16, {src}" if hf == 0 else f"v_and_b32 {dst}, 0xffff0000, {src}")
        unp("v6", f"v{par}")
        exp_precise(k, "v6", "v6", "v4", "v5")
        e("v_cvt_pk_bf16_f32 v6, v6, v6"); e("v_and_b32 v6, 0xffff0000, v6")
        e(f"v_mul_f32 v6, v6, {dtv}"); e(f"v_mul_f32 v6, {f32(-LOG2E)}, v6")
        unp("v7", f"v{par+1}"); e(f"v_mul_f32 v7, v7, {dtv}"); e("v_mul_f32 v7, 0.15915494, v7")
        u0 = pair("U0")
        unp(f"v{u0}", f"v{par+2}"); unp(f"v{u0+1}", f"v{par+3}")
        e(f"v_mul_f32 v{u0}, v{u0}, {dtv}"); e(f"v_mul_f32 v{u0+1}, v{u0+1}, {dtv}")
        e(f"v_add_f32 v{u0}, v{u0}, v{u0}"); e(f"v_add_f32 v{u0+1}, v{u0+1}, v{u0+1}")
        seqs = []
        for n, (nm, pw) in enumerate((("Z1", 1.0), ("W1", 8.0), ("Z256", 256.0))):
            r = pair(nm); a, b = 152 + 2*n, 153 + 2*n
            seqs.append([f"v_mul_f32 v{a}, {f32(pw)}, v6", f"v_mul_f32 v{b}, {f32(pw)}, v7", f"v_exp_f32 v{a}, v{a}", f"v_fract_f32 v{b}, v{b}",
                         f"v_cos_f32 v{r}, v{b}", f"v_sin_f32 v{r+1}, v{b}", f"v_mul_f32 v{r}, v{r}, v{a}", f"v_mul_f32 v{r+1}, v{r+1}, v{a}"])
        k.batch(seqs)
        if hf == 1: e("s_waitcnt lgkmcnt(0)")
        def emit_out(lst):
            ws = [out(n, row, neg) for n, row, neg in lst]
            for w in ws: e(w)
        emit_out([("U0", 0, True), ("W1", 22, False)])
        levels = [
            [("U1","U0","Z1"), ("Z2","Z1","Z1"), ("W2","W1","W1"), ("Z512","Z256","Z256"), ("R256","U0","Z256")],
            [("U2","U0","Z2"), ("U3","U1","Z2"), ("Z4","Z2","Z2"), ("W3","W2","W1"), ("Y4","W2","W2"), ("R512","U0","Z512")],
            [("U4","U0","Z4"), ("U5","U1","Z4"), ("U6","U2","Z4"), ("U7","U3","Z4"), ("R258","U2","Z256"), ("R768","R512","Z256"), ("R1024","R512","Z512"),
             ("W1","W1","Y4"), ("W2","W2","Y4"), ("W3","W3","Y4"), ("W4","Y4","Y4")],
            [("R260","U4","Z256"), ("R262","U6","Z256"), ("R516","U4","Z512"), ("R1280","R768","Z512"), ("R1536","R1024","Z512"),
             ("W1","W1","Y4"), ("W2","W2","Y4"), ("W3","W3","Y4"), ("W4","W4","Y4")],
            [("R772","R516","Z256"), ("R1792","R1280","Z512"), ("R2048","R1536","Z512"),
             ("W1","W1","Y4"), ("W2","W2","Y4"), ("W3","W3","Y4"), ("W4","W4","Y4")],
        ] + [[("W1","W1","Y4"), ("W2","W2","Y4"), ("W3","W3","Y4"), ("W4","W4","Y4")]] * 3 + [[("W1","W1","Y4"), ("W2","W2","Y4"), ("W3","W3","Y4")]]
        vidx = {"W1": 1, "W2": -2, "W3": -1, "W4": 4}
        for lv in levels:
            level(lv)
            lst = []
            for d, a, b in lv:
                if d in urow: lst.append((d, urow[d], True))
                elif d == "Y4": lst.append((d, 21 + 4, False))
                elif d in vidx:
                    vidx[d] += 4; lst.append((d, 21 + vidx[d], False))
            emit_out(lst)
        e("s_waitcnt lgkmcnt(0)")
        for half in range(2):
            for st in range(2):
                for f, row in enumerate((0, 16, 21, 37)):
                    e(f"ds_read_b128 {v(104+st*16+f*4,4)}, v11 offset:{row*PITCH + (half*2+st)*64}")
            for st in range(2):
                e(f"s_waitcnt lgkmcnt({4 if st == 0 else 0})")
                F = 104 + st*16
                for bb in range(2):
                    e(f"{MFMA} {v(136+4*bb,4)}, {v(F,4)}, {v(F+8+4*bb,4)}, {v(136+4*bb,4)}")
                    e(f"{MFMA} {v(144+4*bb,4)}, {v(F+8+4*bb,4)}, {v(F+4,4)}, {v(144+4*bb,4)}")

def gen_k1():
    k = Kern("k1_kernel")
    e = k.e
    e("s_cmp_ge_u32 s2, 256"); e("s_cbranch_scc1 k1_end")
    k.stamp_init()
    e("s_load_dwordx2 s[4:5], s[0:1], 0")
    e("s_load_dwordx4 s[8:11], s[0:1], 64")
    e("s_load_dwordx4 s[12:15], s[0:1], 104")
    e("v_and_b32 v1, 63, v0")
    e("v_lshrrev_b32 v2, 6, v0")
    e("s_and_b32 s41, s2, 7")
    e("v_readfirstlane_b32 s32, v2")
    e("s_lshr_b32 s42, s2, 3")
    e("s_cmp_ge_u32 s42, 28"); e("s_cbranch_scc1 k1_helper")
    e("s_mul_i32 s43, s42, 37"); e("s_lshr_b32 s43, s43, 8")
    e("s_mul_i32 s44, s43, 7"); e("s_sub_u32 s44, s42, s44")
    e("s_lshr_b32 s35, s41, 1"); e("s_lshl_b32 s35, s35, 2"); e("s_add_u32 s35, s35, s43")
    e("s_and_b32 s36, s41, 1"); e("s_mul_i32 s36, s36, 7"); e("s_add_u32 s36, s36, s44")
    e("s_cmp_ge_u32 s32, 2"); e("s_cbranch_scc1 k1_gemm")
    e("s_mul_i32 s45, s44, 3"); e("s_mul_i32 s46, s43, 5"); e("s_lshr_b32 s46, s46, 1"); e("s_add_u32 s45, s45, s46")
    e("s_cmp_ge_u32 s45, 20"); e("s_cselect_b32 s46, 20, 0"); e("s_sub_u32 s45, s45, s46")
    e("s_cmp_ge_u32 s45, 10"); e("s_cselect_b32 s46, 10, 0"); e("s_sub_u32 s45, s45, s46")
    e("v_and_b32 v3, 7, v1")
    e("s_cmp_eq_u32 s32, 1"); e("s_cbranch_scc1 k1_ldB")
    e("s_lshl_b32 s43, s35, 7")
    e("v_lshrrev_b32 v2, 5, v1"); e("v_lshlrev_b32 v2, 3, v2")
    e("v_bfe_u32 v4, v1, 3, 2"); e("v_add3_u32 v2, v2, v4, s43")
    e("v_mul_u32_u24 v2, 1280, v2")
    e("v_lshrrev_b32 v4, 4, v1"); e("v_xor_b32 v3, v3, v4")
    e("v_lshl_add_u32 v4, v3, 4, v2")
    e("v_xor_b32 v3, 4, v3"); e("v_lshl_add_u32 v5, v3, 4, v2")
    for n in range(16):
        ee, b, Pp = n & 1, (n >> 1) & 1, n >> 2
        e(f"v_add_u32 v{16+n}, {(32*Pp + 4*b + 16*ee)*1280 - (n & 3)*1024}, v{4+ee}")
    e("s_waitcnt lgkmcnt(0)")
    k.srd(16, 4, 5, 2048*1280)
    e("s_mov_b32 s38, 128"); e("s_mov_b32 s39, 0")
    e("s_branch k1_ld")
    k.label("k1_ldB")
    e("v_lshrrev_b32 v2, 3, v1"); e("v_mul_u32_u24 v2, 3456, v2")
    e("s_lshl_b32 s43, s36, 7"); e("v_add_u32 v2, s43, v2")
    e("v_bfe_u32 v4, v1, 4, 1"); e("v_lshlrev_b32 v4, 1, v4"); e("v_xor_b32 v3, v3, v4")
    e("v_lshl_add_u32 v4, v3, 4, v2")
    e("v_xor_b32 v3, 4, v3"); e("v_lshl_add_u32 v5, v3, 4, v2")
    for n in range(16):
        e(f"v_add_u32 v{16+n}, {8*(n & 7)*3456 + (1664 if n < 8 else 0) - (n & 3)*1024}, v{4+(n & 1)}")
    e("s_waitcnt lgkmcnt(0)")
    k.srd(16, 8, 9, 640*3456)
    e(f"s_mov_b32 s38, {64*3456}"); e("s_mov_b32 s39, 16384")
    k.label("k1_ld")
    if "norot" in os.environ.get("EXP", ""): e("s_mov_b32 s45, 0")
    e("s_mul_i32 s37, s45, s38"); e("s_mul_i32 s46, s38, 10"); e("s_mov_b32 s40, 0")
    k.label("k1_ldloop")
    e("s_cmp_lt_u32 s40, 2"); e("s_cbranch_scc1 k1_ldissue")
    e("s_cmp_eq_u32 s40, 3"); e("s_cbranch_scc1 k1_ldissue")
    e("s_cmp_eq_u32 s40, 2"); e("s_cbranch_scc0 k1_ldw32")
    e("s_waitcnt vmcnt(16)")
    k.label("k1_ldw32")
    e("s_waitcnt vmcnt(32)")
    e("s_barrier")
    k.label("k1_ldissue")
    for g in range(4):
        e(f"s_add_u32 m0, s39, {g*4096}")
        e("s_nop 0")
        for n in range(4): e(f"buffer_load_dwordx4 v{16+g*4+n}, s[16:19], s37 offen offset:{n*1024} lds")
    e("s_add_u32 s39, s39, 32768"); e("s_and_b32 s39, s39, 0x1ffff")
    e("s_add_u32 s37, s37, s38"); e("s_cmp_eq_u32 s37, s46"); e("s_cselect_b32 s37, 0, s37")
    e("s_add_u32 s40, s40, 1"); e("s_cmp_lt_u32 s40, 10"); e("s_cbranch_scc1 k1_ldloop")
    k.stamp(1)
    k.srd(20, 10, 11, 0 if "nopf" in os.environ.get("EXP", "") else 2048*4096)
    e("s_lshl_b32 s43, s42, 1"); e("s_add_u32 s43, s43, s32"); e(f"s_mul_i32 s43, s43, {18*1024+768}")
    e("s_lshl_b32 s44, s41, 20"); e("s_add_u32 s43, s43, s44")
    e("v_lshlrev_b32 v2, 4, v1")
    def pf(n):
        for i in range(n):
            e(f"buffer_load_dwordx4 v[4:7], v2, s[20:23], s43 offen offset:{(i%4)*1024}")
            if i % 4 == 3 or i == n - 1: e(f"s_add_u32 s43, s43, {(i%4+1)*1024}")
    e("s_waitcnt vmcnt(32)"); e("s_barrier"); pf(6)
    e("s_waitcnt vmcnt(22)"); e("s_barrier"); pf(6)
    e("s_waitcnt vmcnt(12)"); e("s_barrier"); pf(7)
    e("s_barrier")
    k.stamp(2)
    if PROFILE: e("s_waitcnt vmcnt(0)")
    k.end(0)
    k.label("k1_gemm")
    e("s_sub_u32 s43, s32, 2"); e("s_and_b32 s33, s43, 3"); e("s_lshr_b32 s34, s43, 2")
    e("v_and_b32 v2, 15, v1"); e("v_lshrrev_b32 v3, 4, v1")
    e("v_lshlrev_b32 v69, 4, v1")
    e("s_load_dwordx8 s[64:71], s[0:1], 8")
    e("s_load_dwordx2 s[72:73], s[0:1], 40")
    def poll_loads(base):
        for i in range(7):
            e(f"buffer_load_dwordx4 {v(base+4*i,4)}, v{69 if i < 4 else 159}, s[28:31], s60 offen offset:{(i%4)*1024} sc1")
    def side(wc):
        if wc == 0:
            e("s_lshl_b32 s43, s35, 2"); e("s_add_u32 s43, s43, s33"); e(f"s_mul_i32 s60, s43, {14*512}")
            e("s_lshl_b32 s62, s43, 2")
            e("s_lshl_b32 s44, s36, 9"); e("s_add_u32 s61, s60, s44")
            e("v_and_b32 v4, 7, v1"); e("v_lshl_add_u32 v4, v3, 3, v4"); e("v_bfe_u32 v5, v1, 3, 1"); e("v_lshlrev_b32 v5, 3, v5")
            e("v_lshl_add_u32 v158, v4, 4, v5")
            e("v_add_u32 v159, 4096, v69")
            k.srd(28, 14, 15, ST2_BYTES, WS_ST2)
            k.srd(64, 12, 13, 256)
            poll_loads(128)
            e("buffer_load_dwordx2 v[156:157], v158, s[28:31], s61 offen sc1")
        else:
            e("s_mul_i32 s60, s41, 28"); e("s_add_u32 s60, s60, s42"); e("s_mul_i32 s60, s60, 3"); e("s_add_u32 s60, s60, s33")
            e("s_cmp_eq_u32 s33, 3"); e("s_cselect_b32 s60, 1000, s60")
            e("s_lshl_b32 s43, s60, 8"); e("s_lshl_b32 s44, s60, 1")
            e("v_lshlrev_b32 v4, 2, v1"); e("v_mov_b32 v5, 0")
            for a in range(4):
                k.srd(28, 64+2*a, 65+2*a, 640*256)
                e(f"buffer_load_dword v{164+a}, v4, s[28:31], s43 offen")
            k.srd(28, 72, 73, 1280); e("buffer_load_ushort v13, v5, s[28:31], s44 offen")
    e("s_lshl_b32 s43, s33, 5")
    e("v_add_u32 v4, s43, v2"); e("v_lshlrev_b32 v4, 7, v4")
    e("v_lshrrev_b32 v5, 1, v2"); e("v_xor_b32 v5, v5, v3")
    e("v_lshl_add_u32 v14, v5, 4, v4")
    e("v_xor_b32 v15, 64, v14")
    e("v_bfe_u32 v4, v1, 2, 2")
    e("v_lshl_add_u32 v5, v3, 3, v4"); e("v_lshlrev_b32 v5, 7, v5")
    e("v_and_b32 v6, 3, v1"); e("v_lshl_add_u32 v5, v6, 3, v5")
    e("s_lshl_b32 s43, s34, 13"); e("s_add_u32 s43, s43, 16384"); e("v_add_u32 v5, s43, v5")
    e("v_lshrrev_b32 v6, 1, v4"); e("v_and_b32 v7, 1, v3"); e("v_lshl_or_b32 v6, v7, 1, v6")
    e("v_xor_b32 v6, s33, v6")
    for c in range(4):
        e(f"v_xor_b32 v7, {c}, v6"); e(f"v_lshl_add_u32 v{16+c}, v7, 5, v5")
    for i in range(4): e(f"v_mov_b32 v{20+i}, 0x3f803f80")
    for i in range(72, 116): e(f"v_mov_b32 v{i}, 0")
    def xf(ks, b): return v(24 + 24*ks + 4*b, 4) if ks == 0 else v(48 + 4*b, 4)
    def wfb(ks, c): return (32 + 4*c) if ks == 0 else ((56 + 4*c) if c < 3 else 120)
    def wf(ks, c): return v(wfb(ks, c), 4)
    def acc(b, c): return v(72 + (b*4 + c)*4, 4)
    EXP = os.environ.get("EXP", "")
    def rlist(ks):
        L = [f"ds_read_b128 {xf(ks,b)}, v{14+ks} offset:{2048*b}" for b in range(2)]
        for c in range(4):
            for hh in range(2):
                L.append(f"ds_read_b64_tr_b16 {v(wfb(ks,c)+2*hh,2)}, v{16+c} offset:{ks*4096+hh*512}")
        return L
    def mlist(ks, wc):
        L = []
        L.append(f"{MFMA} v[104:107], v[20:23], {xf(ks,wc)}, v[104:107]")
        L.append(f"{MFMA} v[108:111], {xf(ks,wc)}, {xf(ks,wc)}, v[108:111]")
        L.append(f"{MFMA} v[112:115], v[20:23], {wf(ks,0)}, v[112:115]")
        for c in range(4):
            for b in range(2):
                if wc == 0: L.append(f"{MFMA} {acc(b,c)}, {xf(ks,b)}, {wf(ks,c)}, {acc(b,c)}")
                else:       L.append(f"{MFMA} {acc(b,c)}, {wf(ks,c)}, {xf(ks,b)}, {acc(b,c)}")
        if "nostat" in EXP: L = L[2:]
        return L
    def phase(ks, wc, rd, extra=()):
        M = mlist(ks, wc); R = list(rd); X = list(extra)
        if "nomf" in EXP: M = ["s_nop 0"] * len(M)
        if "nord" in EXP: R = []
        for i, m in enumerate(M):
            e(m)
            for _ in range(2):
                if R: e(R.pop(0))
            if not R and i >= 5:
                for _ in range(3):
                    if X: e(X.pop(0))
        for x in X: e(x)
    bump = [f"v_add_u32 v{r}, 0x8000, v{r}" for r in range(14, 20)]
    wrap = [f"v_and_b32 v{r}, 0x1ffff, v{r}" for r in range(14, 20)]
    k.stamp(1)
    e("s_mov_b32 s40, 10")
    e("s_waitcnt lgkmcnt(0)")
    e("s_barrier")
    k.stamp(2)
    for r in rlist(0): e(r)
    e("s_cmp_eq_u32 s34, 1"); e("s_cbranch_scc1 k1_first1")
    for wc in range(2):
        k.label(f"k1_first{wc}")
        e("s_waitcnt lgkmcnt(0)")
        phase(0, wc, rlist(1), bump)
        e("s_sub_u32 s40, s40, 1"); e("s_cmp_eq_u32 s40, 7")
        e("s_waitcnt lgkmcnt(0)")
        e("s_barrier")
        phase(1, wc, rlist(0))
        e(f"s_cbranch_scc0 k1_first{wc}")
        side(wc)
        k.label(f"k1_loop{wc}")
        e("s_waitcnt lgkmcnt(0)")
        phase(0, wc, rlist(1), bump + wrap)
        e("s_sub_u32 s40, s40, 1"); e("s_cmp_eq_u32 s40, 0")
        e("s_waitcnt lgkmcnt(0)")
        e(f"s_cbranch_scc1 k1_tail{wc}")
        e("s_barrier")
        phase(1, wc, rlist(0))
        e(f"s_branch k1_loop{wc}")
        k.label(f"k1_tail{wc}")
        phase(1, wc, [])
        if wc == 0: e("s_setprio 2"); e("s_branch k1_stats")
    k.label("k1_stats")
    e("s_nop 7")
    k.stamp(3)
    e("v_and_b32 v4, 3, v1")
    e("v_mov_b32 v5, v108")
    for r in range(1, 4):
        e(f"v_cmp_eq_u32 vcc, {r}, v4"); e("s_nop 1"); e(f"v_cndmask_b32 v5, v5, v{108+r}, vcc")
    e(f"v_mul_f32 v6, {f32(1/640)}, v104")
    e(f"v_mul_f32 v5, {f32(1/640)}, v5")
    e("v_fma_f32 v5, -v6, v6, v5")
    ln_finish(k, "v6", "v5", "v7")
    e("s_lshl_b32 s43, s33, 5"); e("s_lshl_b32 s44, s34, 4"); e("s_add_u32 s43, s43, s44")
    e("v_add_u32 v7, s43, v2"); e("v_lshlrev_b32 v7, 2, v7"); e("v_add_u32 v7, 0x20000, v7")
    e("s_lshl_b32 s43, s34, 6"); e("s_lshl_b32 s44, s33, 4"); e("s_add_u32 s43, s43, s44")
    e("v_add_u32 v8, s43, v2"); e("v_lshlrev_b32 v8, 2, v8"); e("v_add_u32 v8, 0x20000, v8")
    e("ds_write_b32 v8, v112 offset:1024")
    e("v_lshrrev_b32 v4, 2, v2")
    e("v_cmp_eq_u32 vcc, v4, v3")
    e("s_and_saveexec_b64 s[44:45], vcc")
    e("ds_write_b32 v7, v6")
    e("ds_write_b32 v7, v5 offset:512")
    e("s_mov_b64 exec, s[44:45]")
    e("s_waitcnt lgkmcnt(0)")
    e("s_barrier")
    k.stamp(4)
    e(f"v_mov_b32 v68, {f32(GC1)}")
    e("s_cmp_eq_u32 s34, 1"); e("s_cbranch_scc1 k1_epi1")
    e("s_lshl_b32 s43, s33, 7"); e("s_add_u32 s43, s43, 0x20000")
    e("v_lshl_add_u32 v4, v3, 4, s43")
    e("ds_read_b128 v[24:27], v4"); e("ds_read_b128 v[28:31], v4 offset:64")
    e("ds_read_b128 v[32:35], v4 offset:512"); e("ds_read_b128 v[36:39], v4 offset:576")
    for c in range(4):
        e(f"s_xor_b32 s43, s33, {c}")
        e(f"s_lshl_b32 s44, s43, 6"); e("s_add_u32 s44, s44, 0x20400")
        e(f"v_lshl_add_u32 v5, v2, 2, s44")
        e(f"ds_read_b32 v{40+c}, v5")
        e("s_lshl_b32 s44, s36, 2"); e("s_add_u32 s43, s43, s44"); e("s_sub_u32 s43, s43, 2")
        e(f"s_cmp_lt_u32 s43, 54"); e(f"s_cselect_b32 s{50+c}, -1, 0")
        e("s_cselect_b32 s43, s43, 60")
        e(f"s_lshl_b32 s{46+c}, s43, 16")
        e("s_lshl_b32 s44, s35, 2"); e("s_add_u32 s44, s44, s33"); e("s_lshl_b32 s44, s44, 10")
        e(f"s_add_u32 s{46+c}, s{46+c}, s44")
    k.srd(24, 14, 15, ZF_BYTES, WS_Z2F)
    for i in range(44, 60): e(f"v_mov_b32 v{i}, 0")
    e("s_waitcnt lgkmcnt(0)")
    for c in range(4):
        A = [72 + (b*4 + c)*4 + r for b in range(2) for r in range(4)]
        k.batch([[f"v_fma_f32 v{A[n]}, -v{24+n}, v{40+c}, v{A[n]}", f"v_mul_f32 v{A[n]}, v{A[n]}, v{32+n}"] for n in range(8)])
        for p in range(4): e(f"v_cvt_pk_bf16_f32 v{60+p}, v{A[2*p]}, v{A[2*p+1]}")
        for p in range(4): unpack(k, f"v{A[2*p]}", f"v{A[2*p+1]}", f"v{60+p}")
        k.batch([gelu_seq(f"v{A[n]}", f"v{60+n}", "v68") for n in range(8)])
        for p in range(4): e(f"v_cvt_pk_bf16_f32 v{104+4*c+p}, v{A[2*p]}, v{A[2*p+1]}")
        for p in range(4): e(f"v_and_b32 v{104+4*c+p}, s{50+c}, v{104+4*c+p}")
        for p in range(4): unpack(k, f"v{A[2*p]}", f"v{A[2*p+1]}", f"v{104+4*c+p}")
        k.batch([[f"v_add_f32 v{44+n}, v{44+n}, v{A[n]}", f"v_fmac_f32 v{52+n}, v{A[n]}, v{A[n]}"] for n in range(8)])
    e("v_and_b32 v4, 2, v1"); e("v_and_b32 v5, 1, v1")
    e("v_cmp_ne_u32 s[54:55], 0, v4"); e("v_cmp_ne_u32 s[56:57], 0, v5")
    for n in range(8): e(f"v_add_f32_dpp v{60+n}, v{44+n}, v{44+n} row_ror:8 row_mask:0xf bank_mask:0x3")
    for n in range(8): e(f"v_add_f32_dpp v{60+n}, v{52+n}, v{52+n} row_ror:8 row_mask:0xf bank_mask:0xc")
    for n in range(4): e(f"v_add_f32_dpp v{44+n}, v{60+n}, v{60+n} row_half_mirror row_mask:0xf bank_mask:0x5")
    for n in range(4): e(f"v_add_f32_dpp v{44+n}, v{64+n}, v{64+n} row_half_mirror row_mask:0xf bank_mask:0xa")
    for n in range(2):
        e(f"v_cndmask_b32 v{48+n}, v{46+n}, v{44+n}, s[54:55]")
        e(f"v_cndmask_b32 v{50+n}, v{44+n}, v{46+n}, s[54:55]")
    e("s_nop 0")
    for n in range(2): e(f"v_add_f32_dpp v{52+n}, v{48+n}, v{50+n} quad_perm:[2,3,0,1] row_mask:0xf bank_mask:0xf")
    e("v_cndmask_b32 v48, v53, v52, s[56:57]"); e("v_cndmask_b32 v50, v52, v53, s[56:57]")
    e("s_waitcnt vmcnt(0)")
    e("v_add_u32 v157, 1, v157")
    e("v_add_f32_dpp v156, v48, v50 quad_perm:[1,0,3,2] row_mask:0xf bank_mask:0xf")
    e("buffer_store_dwordx2 v[156:157], v158, s[28:31], s61 offen sc1")
    k.stamp(5)
    for i in range(7):
        e(f"v_add_u32 v{129+4*i}, 1, v{129+4*i}"); e(f"v_add_u32 v{131+4*i}, 1, v{131+4*i}")
    e("v_mov_b32 v6, 0"); e("v_mov_b32 v7, 1")
    e("s_mov_b32 s40, 0"); e("s_mov_b32 s59, 0")
    k.label("k1_poll")
    poll_loads(24)
    e("s_waitcnt vmcnt(0)")
    e("s_cmp_eq_u32 s59, 14"); e("s_cbranch_scc1 k1_poll_done")
    e("v_xor_b32 v4, v25, v129"); e("v_xor_b32 v5, v27, v131")
    for i in range(1, 7):
        e(f"v_xor_b32 v9, v{25+4*i}, v{129+4*i}"); e(f"v_xor_b32 v10, v{27+4*i}, v{131+4*i}")
        e("v_or3_b32 v4, v4, v9, v10")
    e("v_or_b32 v4, v4, v5")
    e("v_cmp_ne_u32 vcc, 0, v4")
    e("s_add_u32 s40, s40, 1")
    e("s_nop 0")
    e("s_cbranch_vccz k1_poll_done")
    e("s_cmp_lt_u32 s40, 32"); e("s_cbranch_scc1 k1_poll")
    e("s_cmp_lg_u32 s40, 32"); e("s_cbranch_scc1 k1_poll_noat")
    e("s_mov_b64 exec, 1")
    e("buffer_atomic_add v7, v6, s[64:67], s62 offen sc1")
    e("s_mov_b64 exec, -1")
    k.label("k1_poll_noat")
    e("s_sleep 32")
    e("buffer_load_dword v8, v6, s[64:67], s62 offen sc1")
    e("s_waitcnt vmcnt(0)")
    e("v_readfirstlane_b32 s59, v8")
    e("s_cmp_lt_u32 s40, 0x80000"); e("s_cbranch_scc1 k1_poll")
    k.label("k1_poll_done")
    k.stamp(6)
    for i in range(1, 7):
        e(f"v_add_f32 v24, v24, v{24+4*i}"); e(f"v_add_f32 v26, v26, v{26+4*i}")
    e("v_mov_b32 v25, v24"); e("v_mov_b32 v27, v26"); e("s_nop 1")
    e("v_permlane32_swap_b32 v24, v25"); e("v_permlane32_swap_b32 v26, v27"); e("s_nop 1")
    e("v_add_f32 v24, v24, v25"); e("v_add_f32 v26, v26, v27")
    e(f"v_mul_f32 v24, {f32(1/864)}, v24"); e(f"v_mul_f32 v26, {f32(1/864)}, v26")
    e("v_fma_f32 v26, -v24, v24, v26")
    ln_finish(k, "v24", "v26", "v25")
    e("s_lshl_b32 s43, s33, 8"); e("s_add_u32 s43, s43, 0x20600")
    e("v_and_b32 v4, 31, v1"); e("v_lshl_add_u32 v4, v4, 2, s43"); e("v_lshl_add_u32 v5, v3, 5, s43")
    e("ds_write_b32 v4, v24"); e("ds_write_b32 v4, v26 offset:128")
    e("ds_read_b128 v[28:31], v5"); e("ds_read_b128 v[32:35], v5 offset:16")
    e("ds_read_b128 v[36:39], v5 offset:128"); e("ds_read_b128 v[40:43], v5 offset:144")
    e("s_waitcnt lgkmcnt(0)")
    for c in range(4):
        A = [72 + (b*4 + c)*4 + r for b in range(2) for r in range(4)]
        for n in range(8): e(f"v_sub_f32 v{A[n]}, v{A[n]}, v{28+n}")
        for p in range(4): e(f"v_cvt_pk_bf16_f32 v{60+p}, v{A[2*p]}, v{A[2*p+1]}")
        for p in range(4): unpack(k, f"v{A[2*p]}", f"v{A[2*p+1]}", f"v{60+p}")
        for n in range(8): e(f"v_mul_f32 v{A[n]}, v{A[n]}, v{36+n}")
        for p in range(4): e(f"v_cvt_pk_bf16_f32 v{104+4*c+p}, v{A[2*p]}, v{A[2*p+1]}")
        e(f"buffer_store_dwordx4 {v(104+4*c,4)}, v69, s[24:27], s{46+c} offen")
    e("s_cmp_ge_u32 s40, 33"); e("s_cbranch_scc1 k1_z2end")
    e("s_cmp_eq_u32 s59, 14"); e("s_cbranch_scc1 k1_z2end")
    e("s_mov_b64 exec, 1")
    e("buffer_atomic_add v7, v6, s[64:67], s62 offen sc1")
    k.label("k1_z2end")
    k.end(0)
    k.label("k1_epi1")
    k.srd(24, 14, 15, ZF_BYTES, WS_Z1F)
    e("s_lshl_b32 s43, s33, 7"); e("s_add_u32 s43, s43, 0x20000")
    e("v_lshl_add_u32 v4, v2, 2, s43")
    e("ds_read_b32 v24, v4"); e("ds_read_b32 v25, v4 offset:64")
    e("ds_read_b32 v26, v4 offset:512"); e("ds_read_b32 v27, v4 offset:576")
    for c in range(4):
        e(f"s_xor_b32 s43, s33, {c}")
        e(f"s_lshl_b32 s44, s43, 6"); e("s_add_u32 s44, s44, 0x20500")
        e(f"v_lshl_add_u32 v5, v3, 4, s44")
        e(f"ds_read_b128 {v(28+4*c,4)}, v5")
    for b in range(2):
        for g in range(2):
            e("s_lshr_b32 s43, s33, 1"); e(f"s_xor_b32 s43, s43, {g}"); e("s_lshl_b32 s44, s36, 1"); e("s_add_u32 s43, s43, s44")
            e("s_lshl_b32 s44, s35, 3"); e("s_lshl_b32 s45, s33, 1"); e("s_add_u32 s44, s44, s45"); e(f"s_add_u32 s44, s44, {b}")
            e("s_mul_i32 s44, s44, 27"); e("s_add_u32 s44, s44, s43"); e("s_lshl_b32 s44, s44, 10")
            e("s_cmp_lt_u32 s43, 27"); e(f"s_cselect_b32 s{46+b*2+g}, s44, {HUGE}")
    e("s_waitcnt lgkmcnt(0)")
    for c in range(4):
        A = [72 + (b*4 + c)*4 + r for b in range(2) for r in range(4)]
        k.batch([[f"v_fma_f32 v{A[n]}, -v{24+n//4}, v{28+4*c+n%4}, v{A[n]}", f"v_mul_f32 v{A[n]}, v{A[n]}, v{26+n//4}"] for n in range(8)])
        for p in range(4): e(f"v_cvt_pk_bf16_f32 v{60+p}, v{A[2*p]}, v{A[2*p+1]}")
        for p in range(4): unpack(k, f"v{A[2*p]}", f"v{A[2*p+1]}", f"v{60+p}")
        k.batch([gelu_seq(f"v{A[n]}", f"v{60+n}", "v68") for n in range(8)])
        for p in range(4): e(f"v_cvt_pk_bf16_f32 v{104+(p//2)*8+c*2+p%2}, v{A[2*p]}, v{A[2*p+1]}")
    e("s_bitcmp1_b32 s33, 0"); e("s_cbranch_scc0 k1_noswap")
    for b in range(2):
        for g in range(2):
            for p in range(2):
                r0 = 104 + b*8 + g*4 + p
                e(f"v_swap_b32 v{r0}, v{r0+2}")
    k.label("k1_noswap")
    e("s_waitcnt vmcnt(0)")
    for b in range(2):
        for g in range(2):
            e(f"buffer_store_dwordx4 {v(104+b*8+g*4,4)}, v69, s[24:27], s{46+b*2+g} offen")
    k.stamp(5)
    e("s_cmp_ge_u32 s60, 640"); e("s_cbranch_scc1 k1_z1end")
    e("s_lshl_b32 s61, s33, 14")
    kgen(k, "s61", 164, "v13", "v2", "v3", "v1")
    k.srd(24, 14, 15, KC_BYTES, WS_KC)
    e("s_mul_i32 s43, s60, 1536")
    e("v_max_u32 v4, 1, v3"); e("v_sub_u32 v4, 5, v4")
    e("v_lshlrev_b32 v5, v4, v2")
    e("v_lshlrev_b32 v6, 3, v3")
    e("v_mov_b32 v7, 512"); e("v_cmp_eq_u32 vcc, 2, v3"); e("s_nop 1"); e("v_cndmask_b32 v6, v6, v7, vcc")
    e("v_mov_b32 v7, 768"); e("v_mov_b32 v8, 4"); e("v_mov_b32 v9, 128"); e("v_cmp_eq_u32 vcc, 3, v3"); e("s_nop 1")
    e("v_cndmask_b32 v6, v6, v7, vcc"); e("v_cndmask_b32 v8, v8, v9, vcc")
    e("v_add_u32 v5, v5, v6")
    e("v_lshlrev_b32 v6, v4, 16")
    e("v_add_u32 v6, v5, v6")
    e("v_add_u32 v7, v5, v8"); e("v_add_u32 v8, v6, v8")
    for n in range(8): e(f"v_cvt_pk_bf16_f32 v{24+n}, v{136+2*n}, v{137+2*n}")
    e("buffer_store_dword v24, v5, s[24:27], s43 offen"); e("buffer_store_dword v25, v7, s[24:27], s43 offen")
    e("buffer_store_dword v26, v6, s[24:27], s43 offen"); e("buffer_store_dword v27, v8, s[24:27], s43 offen")
    e("v_lshlrev_b32 v9, 6, v2"); e("v_lshl_add_u32 v9, v3, 3, v9")
    e("v_cmp_gt_u32 vcc, 5, v2"); e("s_and_saveexec_b64 s[44:45], vcc")
    e("buffer_store_dwordx2 v[28:29], v9, s[24:27], s43 offen offset:1024")
    e("buffer_store_dwordx2 v[30:31], v9, s[24:27], s43 offen offset:1056")
    k.label("k1_z1end")
    k.end(0)
    k.label("k1_helper")
    e("s_lshl_b32 s35, s41, 2"); e("s_add_u32 s35, s35, s42"); e("s_sub_u32 s35, s35, 28")
    e("s_cmp_ge_u32 s32, 2"); e("s_cbranch_scc1 k1_hln")
    e("s_load_dwordx2 s[6:7], s[0:1], 88")
    e("v_lshlrev_b32 v2, 4, v1")
    e("s_lshl_b32 s43, s35, 1"); e("s_add_u32 s43, s43, s32"); e("s_mul_i32 s43, s43, 17408")
    e("s_waitcnt lgkmcnt(0)")
    k.srd(24, 6, 7, 864*1280)
    for n in range(17):
        e(f"buffer_load_dwordx4 v[4:7], v2, s[24:27], s43 offen offset:{(n%4)*1024}")
        if n % 4 == 3: e("s_add_u32 s43, s43, 4096")
    k.end(0)
    k.label("k1_hln")
    e("s_sub_u32 s33, s32, 2")
    e("v_and_b32 v2, 15, v1"); e("v_lshrrev_b32 v3, 4, v1")
    e("s_lshl_b32 s43, s33, 3")
    e("v_add_u32 v4, s43, v3")
    e("s_lshl_b32 s44, s35, 6")
    e("v_add_u32 v5, s44, v4"); e("v_mul_u32_u24 v5, 1280, v5"); e("v_lshl_add_u32 v5, v2, 4, v5")
    e("v_add_u32 v6, 5120, v5")
    e("v_mul_u32_u24 v7, 1296, v4"); e("v_lshl_add_u32 v7, v2, 4, v7")
    e("s_waitcnt lgkmcnt(0)")
    k.srd(16, 4, 5, 2048*1280)
    k.srd(28, 14, 15, XT_BYTES, WS_XNT)
    k.vm = []
    for g in range(2):
        for n in range(5):
            k.vmem(f"buffer_load_dwordx4 {v(8+g*20+n*4,4)}, v{5+g}, s[16:19], 0 offen offset:{n*256}", f"x{g}")
    for g in range(2):
        k.stamp(1+2*g)
        k.wait_vm(f"x{g}")
        k.stamp(2+2*g)
        X = 48
        src = 8 + g*20
        for n in range(20): unpack(k, f"v{X+2*n}", f"v{X+2*n+1}", f"v{src+n}")
        for a in range(4): e(f"v_add_f32 v{88+a}, v{X+a}, v{X+4+a}")
        for n in range(8, 40): e(f"v_add_f32 v{88+n%4}, v{88+n%4}, v{X+n}")
        e("v_add_f32 v88, v88, v89"); e("v_add_f32 v90, v90, v91"); e("s_nop 0"); e("v_add_f32 v88, v88, v90")
        for sh in (8, 4, 2, 1):
            e("s_nop 1"); e(f"v_add_f32_dpp v88, v88, v88 row_ror:{sh} row_mask:0xf bank_mask:0xf")
        e(f"v_mul_f32 v88, {f32(1/640)}, v88")
        for a in range(4): e(f"v_mov_b32 v{92+a}, 0")
        for n0 in range(0, 40, 4):
            for a in range(4): e(f"v_sub_f32 v{96+a}, v{X+n0+a}, v88")
            for a in range(4): e(f"v_fmac_f32 v{92+a}, v{96+a}, v{96+a}")
        e("v_add_f32 v92, v92, v93"); e("v_add_f32 v94, v94, v95"); e("s_nop 0"); e("v_add_f32 v92, v92, v94")
        for sh in (8, 4, 2, 1):
            e("s_nop 1"); e(f"v_add_f32_dpp v92, v92, v92 row_ror:{sh} row_mask:0xf bank_mask:0xf")
        e(f"v_mul_f32 v92, {f32(1/640)}, v92")
        ln_finish(k, "v88", "v92", "v89")
        for n in range(40): e(f"v_sub_f32 v{X+n}, v{X+n}, v88")
        for n in range(20): e(f"v_cvt_pk_bf16_f32 v{src+n}, v{X+2*n}, v{X+2*n+1}")
        for n in range(20): unpack(k, f"v{X+2*n}", f"v{X+2*n+1}", f"v{src+n}")
        for n in range(40): e(f"v_mul_f32 v{X+n}, v{X+n}, v92")
        for n in range(20): e(f"v_cvt_pk_bf16_f32 v{src+n}, v{X+2*n}, v{X+2*n+1}")
        for n in range(5):
            e(f"ds_write_b128 v7, {v(src+4*n,4)} offset:{g*4*1296 + n*256}")
    e("s_waitcnt lgkmcnt(0)")
    e("s_barrier")
    k.stamp(5)
    e("v_bfe_u32 v4, v1, 2, 2"); e("v_lshl_add_u32 v4, v3, 3, v4"); e("v_mul_u32_u24 v4, 1296, v4")
    e("v_and_b32 v5, 3, v1"); e("v_lshl_add_u32 v4, v5, 3, v4")
    e("s_lshl_b32 s43, s33, 5"); e("v_add_u32 v4, s43, v4")
    e(f"v_add_u32 v5, {32*1296}, v4")
    e("v_lshlrev_b32 v6, 12, v2"); e("v_lshl_add_u32 v6, v3, 4, v6")
    e("s_lshl_b32 s43, s33, 16"); e("s_lshl_b32 s44, s35, 7"); e("s_add_u32 s43, s43, s44")
    for n in range(5):
        for th in range(2):
            for hh in range(2):
                e(f"ds_read_b64_tr_b16 {v(8+(n*2+th)*4+hh*2,2)}, v{4+th} offset:{hh*4*1296 + n*256}")
    e("s_waitcnt lgkmcnt(0)")
    for n in range(5):
        for th in range(2):
            e(f"buffer_store_dwordx4 {v(8+(n*2+th)*4,4)}, v6, s[28:31], s43 offen offset:{th*64}")
        e(f"s_add_u32 s43, s43, {8*65536}")
    k.stamp(6)
    if PROFILE: e("s_waitcnt vmcnt(0)")
    k.end(0)
    k.label("k1_end")
    e("s_endpgm")
    return k.text(168)
```

```python
from asmlib import *
import os
import numpy as np
MB = 1 << 20
WS_XNT, WS_Z2F, WS_Z1F, WS_HF, WS_YT, WS_ST2, WS_WOF, WS_FL = 0, 4*MB, 8*MB, 12*MB, 16*MB, 20*MB, 22*MB, 24*MB
ZF_BYTES = 54 * 65536
XT_BYTES = 640 * 4096
ST2_BYTES = 64 * 14 * 512
WOF_BYTES = 40 * 27 * 1024
FZ, FX, FW, FY, FH = 0, 4096, 5120, 6144, 10240
FL_BYTES = 16384
HUGE = 0x40000000
GC0 = -2.0 * 0.7978845608028654 * 1.4426950408889634
GC1 = GC0 * 0.044715
MFMA = "v_mfma_f32_16x16x32_bf16"
LOG2E = 1.4426950408889634
L_HI = float(np.float32(LOG2E)); L_LO = LOG2E - L_HI
EXP = os.environ.get("EXP", "")
LDS_TOTAL = 163840
RING2 = 24576
CONV0 = 98304; CONV_B = 14592
YTILE = CONV0 + 3 * CONV_B
MISC = 161216
W_EPOCH, W_PF, W_GL, W_R1, W_R2 = MISC + 2560, MISC + 2564, MISC + 2576, MISC + 2592, MISC + 2608
SPIN = 0x100000

def exp_precise(k, dst, x, t0, t1):
    e = k.e
    e(f"v_mul_f32 {t0}, {f32(L_HI)}, {x}")
    e(f"v_mov_b32 {t1}, {f32(L_HI)}")
    e(f"v_fma_f32 {t1}, {x}, {t1}, -{t0}")
    e(f"v_fmac_f32 {t1}, {f32(L_LO)}, {x}")
    e(f"v_exp_f32 {t0}, {t0}")
    e(f"v_mul_f32 {t1}, {f32(0.6931471805599453)}, {t1}")
    e(f"v_fma_f32 {dst}, {t0}, {t1}, {t0}")

def ln_finish(k, mean, var, t):
    k.e(f"v_max_f32 {var}, 0, {var}")
    k.e(f"v_cvt_pk_bf16_f32 {t}, {mean}, {var}")
    k.e(f"v_lshlrev_b32 {mean}, 16, {t}")
    k.e(f"v_and_b32 {var}, 0xffff0000, {t}")
    k.e(f"v_add_f32 {var}, {f32(1e-5)}, {var}")
    k.e(f"v_cvt_pk_bf16_f32 {t}, {var}, {var}")
    k.e(f"v_and_b32 {var}, 0xffff0000, {t}")
    k.e(f"v_sqrt_f32 {var}, {var}")
    k.e("s_nop 0")
    k.e(f"v_cvt_pk_bf16_f32 {t}, {var}, {var}")
    k.e(f"v_and_b32 {var}, 0xffff0000, {t}")
    k.e(f"v_rcp_f32 {var}, {var}")
    k.e("s_nop 0")

def unpack(k, lo, hi, src):
    k.e(f"v_lshlrev_b32 {lo}, 16, {src}"); k.e(f"v_and_b32 {hi}, 0xffff0000, {src}")
def pr(r): return f"v[{r}:{r+1}]"

def poll_flags(k, name, voff, srd, ndw, dst, tmp, soff="0", imm=0, sleep=0, preloaded=False):
    e = k.e
    e("s_mov_b32 s40, 0")
    if preloaded: e(f"s_branch {name}_pre")
    elif sleep: e(f"s_branch {name}_1st")
    k.label(name)
    if sleep:
        e(f"s_sleep {sleep}"); k.label(name + "_1st")
    sfx = {1: "dword", 2: "dwordx2", 4: "dwordx4"}[ndw]
    e(f"buffer_load_{sfx} {v(dst, ndw)}, {voff}, s[{srd}:{srd+3}], {soff} offen offset:{imm} sc1")
    e("s_add_u32 s40, s40, 1")
    if preloaded: k.label(name + "_pre")
    e("s_waitcnt vmcnt(0)")
    e(f"v_xor_b32 {tmp}, s3, v{dst}")
    for i in range(1, ndw):
        e(f"v_xor_b32 v{dst+i}, s3, v{dst+i}"); e(f"v_or_b32 {tmp}, {tmp}, v{dst+i}")
    e(f"v_cmp_ne_u32 vcc, 0, {tmp}")
    e(f"s_cmp_ge_u32 s40, {SPIN}")
    e(f"s_cbranch_scc1 {name}_ok")
    e(f"s_cbranch_vccnz {name}")
    k.label(name + "_ok")
    k.vm = []

def set_flag(k, srd, soff, imm, va, vb):
    e = k.e
    e(f"v_mov_b32 {va}, 0"); e(f"v_mov_b32 {vb}, s3")
    e("s_waitcnt vmcnt(0)")
    e("s_mov_b64 exec, 1")
    e(f"buffer_store_dword {vb}, {va}, s[{srd}:{srd+3}], {soff} offen offset:{imm} sc1")
    e("s_mov_b64 exec, -1")
    k.vm = [None]

def lds_wait(k, name, vaddr, vt, sleep=0):
    e = k.e
    e("s_mov_b32 s40, 0")
    k.label(name)
    if sleep: e(f"s_sleep {sleep}")
    e(f"ds_read_b32 {vt}, {vaddr}")
    e("s_add_u32 s40, s40, 1")
    e("s_waitcnt lgkmcnt(0)")
    e(f"v_readfirstlane_b32 s43, {vt}")
    e(f"s_cmp_ge_u32 s40, {SPIN*8}")
    e(f"s_cbranch_scc1 {name}_ok")
    e("s_cmp_eq_u32 s43, 0")
    e(f"s_cbranch_scc1 {name}")
    k.label(name + "_ok")
    k.lg = []

def lds_wait_ge(k, name, vaddr, vt, ndw, val, sleep=0, preloaded=False):
    e = k.e
    e("s_mov_b32 s75, 0")
    if preloaded: e(f"s_branch {name}_chk")
    k.label(name)
    if sleep: e(f"s_sleep {sleep}")
    e(f"ds_read_b{32*ndw} {v(vt, ndw)}, {vaddr}")
    e("s_add_u32 s75, s75, 1")
    e("s_waitcnt lgkmcnt(0)")
    e(f"s_cmp_ge_u32 s75, {SPIN*8}")
    e(f"s_cbranch_scc1 {name}_ok")
    k.label(name + "_chk")
    if ndw == 4: e(f"v_min_u32 v{vt}, v{vt}, v{vt+2}"); e(f"v_min_u32 v{vt+1}, v{vt+1}, v{vt+3}")
    if ndw >= 2: e(f"v_min_u32 v{vt}, v{vt}, v{vt+1}"); e("s_nop 0")
    e(f"v_readfirstlane_b32 s43, v{vt}")
    e(f"s_cmp_lt_u32 s43, {val}")
    e(f"s_cbranch_scc1 {name}")
    k.label(name + "_ok")
    k.lg = []

def kgen(k, tab_s, par, dtv, lane_i, lane_q, lane):
    e = k.e
    PITCH = 272
    e(f"v_lshlrev_b32 {dtv}, 16, {dtv}")
    exp_precise(k, dtv, dtv, "v4", "v5")
    e(f"v_cvt_pk_bf16_f32 {dtv}, {dtv}, {dtv}"); e(f"v_and_b32 {dtv}, 0xffff0000, {dtv}")
    e(f"v_lshl_add_u32 v10, {lane}, 2, {tab_s}")
    e(f"v_mul_u32_u24 v11, {PITCH}, {lane_i}"); e(f"v_lshl_add_u32 v11, {lane_q}, 4, v11"); e(f"v_add_u32 v11, {tab_s}, v11")
    for i in range(136, 152): e(f"v_mov_b32 v{i}, 0")
    e("v_mov_b32 v12, 0x00003f80")
    e(f"ds_write_b32 v10, v12 offset:{21*PITCH}")
    names = {}
    nxt = [24]
    def pair(n):
        if n not in names:
            names[n] = nxt[0]; nxt[0] += 2; assert nxt[0] <= 136
        return names[n]
    def P(n): r = pair(n); return f"v[{r}:{r+1}]"
    urow = {"U0":0,"U1":1,"U2":2,"U3":3,"U4":4,"U5":5,"U6":6,"U7":7,"R256":8,"R258":9,"R260":10,"R262":11,"R512":12,"R516":13,"R768":14,"R772":15,
            "R1024":16,"R1280":17,"R1536":18,"R1792":19,"R2048":20}
    tmp = [0]
    def out(n, row, neg):
        r = pair(n); t = 152 + tmp[0] % 12; tmp[0] += 1
        e(f"v_cvt_pk_bf16_f32 v{t}, v{r}, {'-' if neg else ''}v{r+1}")
        return f"ds_write_b32 v10, v{t} offset:{row*PITCH}"
    def level(ops):
        for d, a, b in ops: e(f"v_pk_mul_f32 {P('t_'+str(ops.index((d,a,b))))}, {P(a)}, {P(b)} op_sel:[0,0] op_sel_hi:[1,0]")
        for d, a, b in ops: e(f"v_pk_fma_f32 {P(d)}, {P(a)}, {P(b)}, {P('t_'+str(ops.index((d,a,b))))} op_sel:[1,1,0] op_sel_hi:[0,1,1] neg_lo:[0,1,0]")
    e("s_mov_b32 s40, 0")
    lab = k.newlabel("kg")
    k.label(lab)
    def unp(dst, src): e(f"v_lshlrev_b32 {dst}, 16, {src}")
    unp("v6", f"v{par}")
    exp_precise(k, "v6", "v6", "v4", "v5")
    e("v_cvt_pk_bf16_f32 v6, v6, v6"); e("v_and_b32 v6, 0xffff0000, v6")
    e(f"v_mul_f32 v6, v6, {dtv}"); e(f"v_mul_f32 v6, {f32(-LOG2E)}, v6")
    unp("v7", f"v{par+1}"); e(f"v_mul_f32 v7, v7, {dtv}"); e("v_mul_f32 v7, 0.15915494, v7")
    u0 = pair("U0")
    unp(f"v{u0}", f"v{par+2}"); unp(f"v{u0+1}", f"v{par+3}")
    for a in range(4): e(f"v_lshrrev_b32 v{par+a}, 16, v{par+a}")
    e(f"v_mul_f32 v{u0}, v{u0}, {dtv}"); e(f"v_mul_f32 v{u0+1}, v{u0+1}, {dtv}")
    e(f"v_add_f32 v{u0}, v{u0}, v{u0}"); e(f"v_add_f32 v{u0+1}, v{u0+1}, v{u0+1}")
    seqs = []
    for n, (nm, pw) in enumerate((("Z1", 1.0), ("W1", 8.0), ("Z256", 256.0))):
        r = pair(nm); a, b = 152 + 2*n, 153 + 2*n
        seqs.append([f"v_mul_f32 v{a}, {f32(pw)}, v6", f"v_mul_f32 v{b}, {f32(pw)}, v7", f"v_exp_f32 v{a}, v{a}", f"v_fract_f32 v{b}, v{b}",
                     f"v_cos_f32 v{r}, v{b}", f"v_sin_f32 v{r+1}, v{b}", f"v_mul_f32 v{r}, v{r}, v{a}", f"v_mul_f32 v{r+1}, v{r+1}, v{a}"])
    k.batch(seqs)
    def emit_out(lst):
        ws = [out(n, row, neg) for n, row, neg in lst]
        for w in ws: e(w)
    emit_out([("U0", 0, True), ("W1", 22, False)])
    levels = [
        [("U1","U0","Z1"), ("Z2","Z1","Z1"), ("W2","W1","W1"), ("Z512","Z256","Z256"), ("R256","U0","Z256")],
        [("U2","U0","Z2"), ("U3","U1","Z2"), ("Z4","Z2","Z2"), ("W3","W2","W1"), ("Y4","W2","W2"), ("R512","U0","Z512")],
        [("U4","U0","Z4"), ("U5","U1","Z4"), ("U6","U2","Z4"), ("U7","U3","Z4"), ("R258","U2","Z256"), ("R768","R512","Z256"), ("R1024","R512","Z512"),
         ("W1","W1","Y4"), ("W2","W2","Y4"), ("W3","W3","Y4"), ("W4","Y4","Y4")],
        [("R260","U4","Z256"), ("R262","U6","Z256"), ("R516","U4","Z512"), ("R1280","R768","Z512"), ("R1536","R1024","Z512"),
         ("W1","W1","Y4"), ("W2","W2","Y4"), ("W3","W3","Y4"), ("W4","W4","Y4")],
        [("R772","R516","Z256"), ("R1792","R1280","Z512"), ("R2048","R1536","Z512"),
         ("W1","W1","Y4"), ("W2","W2","Y4"), ("W3","W3","Y4"), ("W4","W4","Y4")],
    ] + [[("W1","W1","Y4"), ("W2","W2","Y4"), ("W3","W3","Y4"), ("W4","W4","Y4")]] * 3 + [[("W1","W1","Y4"), ("W2","W2","Y4"), ("W3","W3","Y4")]]
    vidx = {"W1": 1, "W2": -2, "W3": -1, "W4": 4}
    for lv in levels:
        level(lv)
        lst = []
        for d, a, b in lv:
            if d in urow: lst.append((d, urow[d], True))
            elif d == "Y4": lst.append((d, 21 + 4, False))
            elif d in vidx:
                vidx[d] += 4; lst.append((d, 21 + vidx[d], False))
        emit_out(lst)
    e("s_waitcnt lgkmcnt(0)")
    for half in range(2):
        for st in range(2):
            for f, row in enumerate((0, 16, 21, 37)):
                e(f"ds_read_b128 {v(104+st*16+f*4,4)}, v11 offset:{row*PITCH + (half*2+st)*64}")
        for st in range(2):
            e(f"s_waitcnt lgkmcnt({4 if st == 0 else 0})")
            F = 104 + st*16
            for bb in range(2):
                e(f"{MFMA} {v(136+4*bb,4)}, {v(F,4)}, {v(F+8+4*bb,4)}, {v(136+4*bb,4)}")
                e(f"{MFMA} {v(144+4*bb,4)}, {v(F+8+4*bb,4)}, {v(F+4,4)}, {v(144+4*bb,4)}")
    e("s_add_u32 s40, s40, 1"); e("s_cmp_lt_u32 s40, 2"); e(f"s_cbranch_scc1 {lab}")
```

```python
from mega_common import *
FLS = 60

def conv_params(k):
    e = k.e
    e("s_load_dwordx8 s[44:51], s[0:1], 8")
    e("s_load_dwordx4 s[52:55], s[0:1], 40")
    e("s_lshl_b32 s34, s2, 1"); e("s_add_u32 s34, s34, s32")
    e("s_lshl_b32 s56, s41, 4"); e("s_lshr_b32 s57, s42, 1"); e("s_add_u32 s56, s56, s57"); e("s_add_u32 s56, s56, 512")
    e("s_bitcmp1_b32 s42, 0"); e("s_cselect_b32 s56, s56, 1000")
    e("s_cmp_eq_u32 s32, 2"); e("s_cselect_b32 s34, s56, s34")
    e("s_cmp_eq_u32 s32, 3"); e("s_cselect_b32 s34, 1000, s34")
    e("s_lshl_b32 s56, s34, 8"); e("s_lshl_b32 s57, s34, 1")
    e("v_lshlrev_b32 v4, 2, v1"); e("v_mov_b32 v5, 0")
    e("s_waitcnt lgkmcnt(0)")
    for a in range(4):
        k.srd(28, 44+2*a, 45+2*a, 640*256)
        e(f"buffer_load_dword v{164+a}, v4, s[28:31], s56 offen")
    k.srd(28, 52, 53, 1280); e("buffer_load_ushort v13, v5, s[28:31], s57 offen")
    k.srd(28, 54, 55, 1280); e("buffer_load_ushort v14, v5, s[28:31], s57 offen")

def gen_mega(name):
    k = Kern(name)
    e = k.e
    e("s_cmp_ge_u32 s2, 256"); e("s_cbranch_scc1 m_end")
    k.stamp_init()
    e("s_load_dwordx2 s[4:5], s[0:1], 0")
    e("s_load_dwordx4 s[8:11], s[0:1], 64")
    e("s_load_dwordx4 s[12:15], s[0:1], 104")
    e("s_load_dwordx4 s[96:99], s[0:1], 88")
    e("v_and_b32 v1, 63, v0")
    e("v_lshrrev_b32 v2, 6, v0")
    e("s_and_b32 s41, s2, 7")
    e("v_readfirstlane_b32 s32, v2")
    e("s_lshr_b32 s42, s2, 3")
    e("s_and_b32 s33, s32, 3")
    e("s_cmp_ge_u32 s42, 28"); e("s_cbranch_scc1 m_helper")
    e("s_mul_i32 s43, s42, 37"); e("s_lshr_b32 s43, s43, 8")
    e("s_mul_i32 s44, s43, 7"); e("s_sub_u32 s44, s42, s44")
    e("s_lshr_b32 s35, s41, 1"); e("s_lshl_b32 s35, s35, 2"); e("s_add_u32 s35, s35, s43")
    e("s_and_b32 s36, s41, 1"); e("s_mul_i32 s36, s36, 7"); e("s_add_u32 s36, s36, s44")
    e("s_cmp_ge_u32 s32, 4"); e("s_cbranch_scc1 m_gemm1")
    e("s_mul_i32 s45, s44, 3"); e("s_mul_i32 s46, s43, 5"); e("s_lshr_b32 s46, s46, 1"); e("s_add_u32 s45, s45, s46")
    e("s_cmp_ge_u32 s45, 20"); e("s_cselect_b32 s46, 20, 0"); e("s_sub_u32 s45, s45, s46")
    e("s_cmp_ge_u32 s45, 10"); e("s_cselect_b32 s46, 10, 0"); e("s_sub_u32 s45, s45, s46")
    e("v_and_b32 v3, 7, v1")
    e("s_lshl_b32 s39, s32, 13")
    e("s_cmp_ge_u32 s32, 2"); e("s_cbranch_scc1 m_ldB")
    e("s_lshl_b32 s43, s35, 7"); e("s_lshl_b32 s44, s32, 6"); e("s_add_u32 s43, s43, s44")
    e("v_lshrrev_b32 v2, 5, v1"); e("v_lshlrev_b32 v2, 3, v2")
    e("v_bfe_u32 v4, v1, 3, 2"); e("v_add3_u32 v2, v2, v4, s43")
    e("v_mul_u32_u24 v2, 1280, v2")
    e("v_lshrrev_b32 v4, 4, v1"); e("v_xor_b32 v3, v3, v4")
    e("v_lshl_add_u32 v4, v3, 4, v2")
    e("v_xor_b32 v3, 4, v3"); e("v_lshl_add_u32 v5, v3, 4, v2")
    for n in range(8):
        ee, b, Pp = n & 1, (n >> 1) & 1, n >> 2
        e(f"v_add_u32 v{16+n}, {(32*Pp + 4*b + 16*ee)*1280 - (n & 3)*1024}, v{4+ee}")
    e("s_waitcnt lgkmcnt(0)")
    k.srd(16, 4, 5, 2048*1280)
    e("s_mov_b32 s38, 128")
    e("s_branch m_ld")
    k.label("m_ldB")
    e("v_lshrrev_b32 v2, 3, v1"); e("v_mul_u32_u24 v2, 3456, v2")
    e("s_cmp_eq_u32 s32, 2"); e("s_cselect_b32 s44, 1664, 0")
    e("s_lshl_b32 s43, s36, 7"); e("s_add_u32 s43, s43, s44"); e("v_add_u32 v2, s43, v2")
    e("v_bfe_u32 v4, v1, 4, 1"); e("v_lshlrev_b32 v4, 1, v4"); e("v_xor_b32 v3, v3, v4")
    e("v_lshl_add_u32 v4, v3, 4, v2")
    e("v_xor_b32 v3, 4, v3"); e("v_lshl_add_u32 v5, v3, 4, v2")
    for n in range(8):
        e(f"v_add_u32 v{16+n}, {8*n*3456 - (n & 3)*1024}, v{4+(n & 1)}")
    e("s_waitcnt lgkmcnt(0)")
    k.srd(16, 8, 9, 640*3456)
    e(f"s_mov_b32 s38, {64*3456}")
    k.label("m_ld")
    e("s_mul_i32 s37, s45, s38"); e("s_mul_i32 s46, s38, 10"); e("s_mov_b32 s40, 0")
    k.label("m_ldloop")
    e("s_cmp_lt_u32 s40, 3"); e("s_cbranch_scc1 m_ldissue")
    e("s_waitcnt vmcnt(16)")
    e("s_barrier")
    k.label("m_ldissue")
    for g in range(2):
        e(f"s_add_u32 m0, s39, {g*4096}")
        e("s_nop 0")
        for n in range(4): e(f"buffer_load_dwordx4 v{16+g*4+n}, s[16:19], s37 offen offset:{n*1024} lds")
    e("s_add_u32 s39, s39, 32768"); e("s_and_b32 s39, s39, 0x1ffff")
    e("s_add_u32 s37, s37, s38"); e("s_cmp_eq_u32 s37, s46"); e("s_cselect_b32 s37, 0, s37")
    e("s_add_u32 s40, s40, 1"); e("s_cmp_lt_u32 s40, 10"); e("s_cbranch_scc1 m_ldloop")
    k.stamp(1)
    conv_params(k)
    e("s_waitcnt vmcnt(22)"); e("s_barrier")
    e("s_waitcnt vmcnt(14)"); e("s_barrier")
    e("s_waitcnt vmcnt(6)"); e("s_barrier")
    e("s_barrier")
    k.label("m_Lpost")
    k.stamp(2)
    e(f"v_mov_b32 v4, {W_EPOCH}"); e("ds_read_b32 v5, v4")
    k.srd(FLS, 14, 15, FL_BYTES, WS_FL)
    e("v_and_b32 v2, 15, v1"); e("v_lshrrev_b32 v3, 4, v1")
    e("s_lshr_b32 s35, s41, 1"); e("s_lshl_b32 s35, s35, 3"); e("s_lshr_b32 s43, s42, 2"); e("s_add_u32 s35, s35, s43")
    e("s_waitcnt lgkmcnt(0)")
    e("v_readfirstlane_b32 s3, v5")
    e("s_cmp_lg_u32 s32, 3"); e("s_cbranch_scc1 m_conv")
    k.srd(16, 10, 11, 2048*4096)
    e("v_lshrrev_b32 v4, 5, v1"); e("v_lshlrev_b32 v4, 3, v4"); e("v_bfe_u32 v5, v1, 3, 2"); e("v_add_u32 v4, v4, v5")
    e("v_lshlrev_b32 v4, 12, v4")
    e("v_and_b32 v5, 7, v1"); e("v_xor_b32 v5, v5, v3")
    e("v_lshl_add_u32 v6, v5, 4, v4")
    e("v_xor_b32 v5, 4, v5"); e("v_lshl_add_u32 v7, v5, 4, v4")
    for n in range(8):
        ee, t = n & 1, n >> 1
        e(f"v_add_u32 v{16+n}, {(32*(t >> 1) + 4*(t & 1) + 16*ee)*4096 - (n & 3)*1024}, v{6+ee}")
    e("s_lshl_b32 s37, s35, 18")
    e("s_mov_b32 s40, 0")
    k.label("m_pfloop")
    e("s_and_b32 s43, s40, 3"); e("s_lshr_b32 s44, s40, 2")
    e(f"s_mul_i32 s45, s43, {RING2}"); e("s_lshl_b32 s46, s44, 13"); e("s_add_u32 s45, s45, s46")
    e("s_lshl_b32 s43, s43, 10"); e("s_lshl_b32 s44, s44, 7"); e("s_add_u32 s43, s43, s44"); e("s_add_u32 s43, s43, s37")
    for g in range(2):
        e(f"s_add_u32 m0, s45, {g*4096}")
        e("s_nop 0")
        for n in range(4): e(f"buffer_load_dwordx4 v{16+g*4+n}, s[16:19], s43 offen offset:{n*1024} lds")
    e("s_waitcnt vmcnt(40)")
    e("s_add_u32 s40, s40, 1"); e("s_cmp_lt_u32 s40, 12"); e("s_cbranch_scc1 m_pfloop")
    e(f"v_mov_b32 v4, {W_PF}"); e("v_mov_b32 v5, 1")
    e("s_waitcnt vmcnt(0)")
    e("ds_write_b32 v4, v5")
    k.stamp(3)
    e("s_branch m_L3prep")
    k.label("m_conv")
    e("s_cmp_ge_u32 s34, 640"); e("s_cbranch_scc1 m_L3prep")
    e(f"s_mul_i32 s39, s32, {CONV_B}"); e(f"s_add_u32 s39, s39, {CONV0}")
    e("s_waitcnt vmcnt(0)")
    kgen(k, "s39", 164, "v13", "v2", "v3", "v1")
    k.stamp(3)
    UO, KC = 8320, 12928
    e("v_lshlrev_b32 v15, 4, v1")
    e(f"s_mov_b32 s44, {FX}")
    e("buffer_load_dwordx4 v[216:219], v15, s[60:63], s44 offen sc1")
    e(f"s_add_u32 s43, s39, {KC}")
    e("v_max_u32 v4, 1, v3"); e("v_sub_u32 v4, 5, v4")
    e("v_lshlrev_b32 v5, v4, v2")
    e("v_lshlrev_b32 v6, 3, v3")
    e("v_mov_b32 v7, 512"); e("v_cmp_eq_u32 vcc, 2, v3"); e("s_nop 1"); e("v_cndmask_b32 v6, v6, v7, vcc")
    e("v_mov_b32 v7, 768"); e("v_mov_b32 v8, 4"); e("v_mov_b32 v9, 128"); e("v_cmp_eq_u32 vcc, 3, v3"); e("s_nop 1")
    e("v_cndmask_b32 v6, v6, v7, vcc"); e("v_cndmask_b32 v8, v8, v9, vcc")
    e("v_add3_u32 v5, v5, v6, s43")
    e("v_lshlrev_b32 v6, v4, 16"); e("v_add_u32 v6, v5, v6")
    e("v_add_u32 v7, v5, v8"); e("v_add_u32 v8, v6, v8")
    for n in range(8): e(f"v_cvt_pk_bf16_f32 v{24+n}, v{136+2*n}, v{137+2*n}")
    e("ds_write_b32 v5, v24"); e("ds_write_b32 v7, v25"); e("ds_write_b32 v6, v26"); e("ds_write_b32 v8, v27")
    e("v_lshlrev_b32 v9, 6, v2"); e("v_lshl_add_u32 v9, v3, 3, v9"); e("v_add_u32 v9, s43, v9")
    e("v_mov_b32 v20, 0"); e("v_mov_b32 v21, 0"); e("v_mov_b32 v22, 0"); e("v_mov_b32 v23, 0")
    e("v_add_u32 v16, s39, v15")
    e("v_lshl_add_u32 v17, v1, 3, s39")
    e(f"ds_write_b64 v17, v[20:21] offset:{UO}")
    e("v_cmp_gt_u32 vcc, 5, v2"); e("s_and_saveexec_b64 s[46:47], vcc")
    e("ds_write_b64 v9, v[28:29] offset:1024"); e("ds_write_b64 v9, v[30:31] offset:1056")
    e("s_mov_b64 exec, 3")
    e("ds_write_b128 v16, v[20:23] offset:4096"); e(f"ds_write_b128 v16, v[20:23] offset:{4160+4096}")
    e("s_mov_b64 exec, -1")
    e(f"s_add_u32 s44, s39, {KC + 256 - 2*0x4300}")
    e(f"v_mov_b32 v31, {f32(128.0)}")
    e("v_lshlrev_b32 v18, 3, v1"); e("v_cvt_f32_u32 v18, v18")
    e("s_waitcnt lgkmcnt(0)")
    for m in range(4):
        for el in range(10): e(f"v_sub_f32 v{96+el}, {f32(2047 - 512*m - el)}, v18")
        if m == 3: e("v_max_f32 v104, 0, v104")
        for p in range(5): e(f"v_cvt_pk_bf16_f32 v{108+p}, v{96+2*p}, v{97+2*p}")
        for el in range(9):
            a = f"v{114+el}"
            if el % 2 == 0: e(f"v_and_b32 {a}, 0xffff, v{108+el//2}")
            else: e(f"v_lshrrev_b32 {a}, 16, v{108+el//2}")
            e(f"v_lshl_add_u32 {a}, {a}, 1, s44")
            if m == 3:
                e(f"v_cvt_u32_f32 v19, v{96+el}"); e("v_lshl_add_u32 v19, v19, 1, s43")
                e(f"v_cmp_lt_f32 vcc, v{96+el}, v31"); e("s_nop 1"); e(f"v_cndmask_b32 {a}, {a}, v19, vcc")
        for el in range(9): e(f"ds_read_u16 v{144+9*m+el}, v{114+el}")
    e(f"s_mov_b32 s46, {FX}")
    poll_flags(k, "m_pollx", "v15", FLS, 4, 216, "v4", soff="s46", sleep=8, preloaded=True)
    k.stamp(4)
    k.srd(20, 14, 15, XT_BYTES, WS_XNT)
    k.srd(24, 14, 15, XT_BYTES, WS_YT)
    e("s_lshl_b32 s45, s34, 12")
    for n in range(4): e(f"buffer_load_dwordx4 {v(200+4*n,4)}, v15, s[20:23], s45 offen offset:{n*1024} sc1")
    e("s_waitcnt lgkmcnt(0)")
    e("v_cmp_eq_u32 vcc, 63, v1"); e("s_nop 1"); e(f"v_cndmask_b32 v{144+35}, v{144+35}, v20, vcc")
    for m in range(4):
        W = 32 + 16*m; E = 144 + 9*m
        for p in range(4):
            e(f"v_lshl_or_b32 v{W+p}, v{E+2*p+1}, 16, v{E+2*p}")
            e(f"v_lshl_or_b32 v{W+8+p}, v{E+2*p+2}, 16, v{E+2*p+1}")
        e(f"ds_write_b128 v16, {v(W,4)} offset:{1024*m}")
        e(f"ds_write_b128 v16, {v(W+8,4)} offset:{4160+1024*m}")
    e("s_waitcnt vmcnt(0)")
    for n in range(4): e(f"ds_write_b128 v16, {v(200+4*n,4)} offset:{UO+512+1024*n}")
    k.stamp(5)
    e("v_and_b32 v4, 1, v2"); e("v_xor_b32 v4, 1, v4"); e("v_mul_u32_u24 v4, 4160, v4")
    e("v_lshrrev_b32 v5, 1, v2"); e("v_lshlrev_b32 v6, 2, v3"); e("v_sub_u32 v5, v6, v5")
    e("v_lshl_add_u32 v4, v5, 2, v4"); e("v_add_u32 v4, s39, v4")
    for mp in range(4): e(f"v_add_u32 v{24+mp}, {4*(1023 - 8 - 128*(2*mp+1))}, v4")
    e("v_lshlrev_b32 v5, 5, v2"); e("v_lshl_add_u32 v5, v3, 4, v5")
    e(f"s_add_u32 s43, s39, {UO+480}"); e("v_add_u32 v28, s43, v5")
    def Af(m): return 32 + 4*m
    def Bf(r): return 64 + 4*r
    def ac(cb): return v(96 + 4*cb, 4)
    for i in range(32): e(f"v_mov_b32 v{96+i}, 0")
    e("v_lshlrev_b32 v14, 16, v14")
    e("s_waitcnt lgkmcnt(0)")
    def rdA(m):
        o = 0 if m & 1 else 128
        e(f"ds_read2_b32 {v(Af(m),2)}, v{24+m//2} offset0:{o} offset1:{o+1}"); e(f"ds_read2_b32 {v(Af(m)+2,2)}, v{24+m//2} offset0:{o+2} offset1:{o+3}")
    def rdB(r): e(f"ds_read_b128 {v(Bf(r),4)}, v28 offset:{512*r}")
    for m in range(8): rdA(m); rdB(7-m)
    e("s_mov_b32 s40, 8")
    k.label("m_cloop")
    for r in range(24, 29): e(f"v_subrev_u32 v{r}, 64, v{r}")
    for m in range(8):
        for cb in (range(7, -1, -1) if m == 0 else range(m, 8)):
            if m == 0: e(f"s_waitcnt lgkmcnt({min(3*cb, 15)})")
            e(f"{MFMA} {ac(cb)}, {v(Af(m),4)}, {v(Bf(cb-m),4)}, {ac(cb)}")
        rdA(m); rdB(7-m)
    e("s_sub_u32 s40, s40, 1"); e("s_cmp_lg_u32 s40, 0"); e("s_cbranch_scc1 m_cloop")
    k.stamp(6)
    e("s_waitcnt lgkmcnt(0)")
    e("v_lshlrev_b32 v20, 5, v2"); e("v_lshl_add_u32 v20, v3, 3, v20")
    e(f"s_add_u32 s43, s39, {UO+512}"); e("v_add_u32 v21, s43, v20")
    for cb in range(8): e(f"ds_read_b64 {v(32+2*cb,2)}, v21 offset:{512*cb}")
    e("s_waitcnt lgkmcnt(0)")
    for c0 in (0, 4):
        A = [96 + 4*cb + 2*p for cb in range(c0, c0+4) for p in range(2)]
        U = [32 + 2*cb + p for cb in range(c0, c0+4) for p in range(2)]
        for i in range(8): e(f"v_cvt_pk_bf16_f32 v{64+i}, v{A[i]}, v{A[i]+1}")
        for i in range(8): unpack(k, f"v{72+2*i}", f"v{73+2*i}", f"v{U[i]}")
        for i in range(8): unpack(k, f"v{A[i]}", f"v{A[i]+1}", f"v{64+i}")
        for i in range(8): e(f"v_pk_mul_f32 {pr(72+2*i)}, {pr(72+2*i)}, v[14:15] op_sel_hi:[1,0]")
        for i in range(8): e(f"v_cvt_pk_bf16_f32 v{64+i}, v{72+2*i}, v{73+2*i}")
        for i in range(8): unpack(k, f"v{72+2*i}", f"v{73+2*i}", f"v{64+i}")
        for i in range(8): e(f"v_pk_add_f32 {pr(A[i])}, {pr(A[i])}, {pr(72+2*i)}")
        for i in range(8): e(f"v_cvt_pk_bf16_f32 v{U[i]}, v{A[i]}, v{A[i]+1}")
        for cb in range(c0, c0+4): e(f"buffer_store_dwordx2 {v(32+2*cb,2)}, v20, s[24:27], s45 offen offset:{512*cb} sc1")
    e("s_lshl_b32 s43, s34, 2"); e(f"s_add_u32 s43, s43, {FY}")
    set_flag(k, FLS, "s43", 0, "v4", "v5")
    k.stamp(7)
    k.label("m_L3prep")
    e("s_and_b32 s36, s41, 1"); e("s_lshl_b32 s36, s36, 2"); e("s_and_b32 s43, s42, 3"); e("s_add_u32 s36, s36, s43")
    e("s_lshl_b32 s43, s33, 2"); e(f"s_add_u32 s43, s43, {W_GL}"); e("v_mov_b32 v4, s43")
    lds_wait(k, "m_wgl", "v4", "v5", sleep=8)
    k.stamp(8)
    e("s_branch m_P3")

    k.label("m_gemm1")
    e("v_and_b32 v2, 15, v1"); e("v_lshrrev_b32 v3, 4, v1")
    e("v_lshlrev_b32 v12, 4, v1")
    e("v_add_u32 v13, 4096, v12")
    PL = 200
    def poll_loads():
        for i in range(7):
            e(f"buffer_load_dwordx4 {v(PL+4*i,4)}, v{12 if i < 4 else 13}, s[28:31], s72 offen offset:{(i%4)*1024} sc1")
    e("v_mov_b32 v10, 0")
    e(f"v_lshlrev_b32 v4, 2, v2"); e(f"v_add_u32 v4, {W_EPOCH}, v4")
    e("ds_write_b32 v4, v10")
    e("s_waitcnt lgkmcnt(0)")
    k.srd(64, 12, 13, 256)
    e("s_cmp_lg_u32 s2, 0"); e("s_cbranch_scc1 m_noep")
    e("s_cmp_lg_u32 s32, 4"); e("s_cbranch_scc1 m_noep")
    e("s_memrealtime s[44:45]"); e("s_waitcnt lgkmcnt(0)"); e("s_or_b32 s44, s44, 1"); e("v_mov_b32 v4, s44")
    e("s_mov_b64 exec, 1")
    e("buffer_store_dword v4, v10, s[64:67], 0 offen sc1")
    e("s_mov_b64 exec, -1")
    k.label("m_noep")
    e("s_lshl_b32 s43, s35, 2"); e("s_add_u32 s43, s43, s33"); e(f"s_mul_i32 s72, s43, {14*512}")
    e("s_lshl_b32 s44, s36, 9"); e("s_add_u32 s73, s72, s44")
    e("s_lshl_b32 s74, s36, 6"); e("s_add_u32 s74, s74, s43"); e("s_lshl_b32 s74, s74, 2")
    e("v_and_b32 v4, 7, v1"); e("v_lshl_add_u32 v4, v3, 3, v4"); e("v_bfe_u32 v5, v1, 3, 1"); e("v_lshlrev_b32 v5, 3, v5")
    e("v_lshl_add_u32 v230, v4, 4, v5")
    k.srd(28, 14, 15, ST2_BYTES, WS_ST2)
    k.srd(24, 14, 15, ZF_BYTES, WS_Z2F)
    k.srd(20, 14, 15, ZF_BYTES, WS_Z1F)
    k.srd(FLS, 14, 15, FL_BYTES, WS_FL)
    for c in range(4):
        e(f"s_xor_b32 s43, s33, {c}")
        e("s_lshl_b32 s44, s36, 2"); e("s_add_u32 s43, s43, s44"); e("s_sub_u32 s43, s43, 2")
        e(f"s_cmp_lt_u32 s43, 54"); e(f"s_cselect_b32 s{50+c}, -1, 0")
        e("s_cselect_b32 s43, s43, 60")
        e(f"s_lshl_b32 s{46+c}, s43, 16")
        e("s_lshl_b32 s44, s35, 2"); e("s_add_u32 s44, s44, s33"); e("s_lshl_b32 s44, s44, 10")
        e(f"s_add_u32 s{46+c}, s{46+c}, s44")
    for b in range(2):
        for g in range(2):
            e("s_lshr_b32 s43, s33, 1"); e(f"s_xor_b32 s43, s43, {g}"); e("s_lshl_b32 s44, s36, 1"); e("s_add_u32 s43, s43, s44")
            e("s_lshl_b32 s44, s35, 3"); e("s_lshl_b32 s45, s33, 1"); e("s_add_u32 s44, s44, s45"); e(f"s_add_u32 s44, s44, {b}")
            e("s_mul_i32 s44, s44, 27"); e("s_add_u32 s44, s44, s43"); e("s_lshl_b32 s44, s44, 10")
            e("s_cmp_lt_u32 s43, 27"); e(f"s_cselect_b32 s{68+b*2+g}, s44, {HUGE}")
    e("v_and_b32 v4, 2, v1"); e("v_and_b32 v5, 1, v1")
    e("v_cmp_ne_u32 s[54:55], 0, v4"); e("v_cmp_ne_u32 s[56:57], 0, v5")
    e("s_lshl_b32 s43, s33, 5")
    e("v_add_u32 v4, s43, v2"); e("v_lshlrev_b32 v4, 7, v4")
    e("v_lshrrev_b32 v5, 1, v2"); e("v_xor_b32 v5, v5, v3")
    e("v_lshl_add_u32 v14, v5, 4, v4")
    e("v_xor_b32 v15, 64, v14")
    e("v_bfe_u32 v4, v1, 2, 2")
    e("v_lshl_add_u32 v5, v3, 3, v4"); e("v_lshlrev_b32 v5, 7, v5")
    e("v_and_b32 v6, 3, v1"); e("v_lshl_add_u32 v5, v6, 3, v5")
    e("v_add_u32 v5, 16384, v5")
    e("v_lshrrev_b32 v6, 1, v4"); e("v_and_b32 v7, 1, v3"); e("v_lshl_or_b32 v6, v7, 1, v6")
    e("v_xor_b32 v6, s33, v6")
    for c in range(4):
        e(f"v_xor_b32 v7, {c}, v6"); e(f"v_lshl_add_u32 v{16+c}, v7, 5, v5")
    for i in range(4): e(f"v_mov_b32 v{20+i}, 0x3f803f80")
    ACC = 104
    for i in range(ACC, 192): e(f"v_mov_b32 v{i}, 0")
    def xf(ks, b): return v(24 + 40*ks + 4*b, 4)
    def wfb(ks, h, c): return 24 + 40*ks + 8 + 16*h + 4*c
    def wf(ks, h, c): return v(wfb(ks, h, c), 4)
    def accb(h, b, c): return ACC + 32*h + (b*4 + c)*4
    def acc(h, b, c): return v(accb(h, b, c), 4)
    def rlist(ks):
        L = [f"ds_read_b128 {xf(ks,b)}, v{14+ks} offset:{2048*b}" for b in range(2)]
        for h in range(2):
            for c in range(4):
                for hh in range(2):
                    L.append(f"ds_read_b64_tr_b16 {v(wfb(ks,h,c)+2*hh,2)}, v{16+c} offset:{h*8192+ks*4096+hh*512}")
        return L
    def mlist(ks):
        L = []
        for b in range(2):
            L.append(f"{MFMA} {v(168+4*b,4)}, v[20:23], {xf(ks,b)}, {v(168+4*b,4)}")
            L.append(f"{MFMA} {v(176+4*b,4)}, {xf(ks,b)}, {xf(ks,b)}, {v(176+4*b,4)}")
        for h in range(2):
            L.append(f"{MFMA} {v(184+4*h,4)}, v[20:23], {wf(ks,h,0)}, {v(184+4*h,4)}")
            for c in range(4):
                for b in range(2):
                    if h == 0: L.append(f"{MFMA} {acc(h,b,c)}, {xf(ks,b)}, {wf(ks,h,c)}, {acc(h,b,c)}")
                    else:      L.append(f"{MFMA} {acc(h,b,c)}, {wf(ks,h,c)}, {xf(ks,b)}, {acc(h,b,c)}")
        return L
    def phase(ks, rd, extra=()):
        M = mlist(ks); R = list(rd); X = list(extra)
        for i, m in enumerate(M):
            e(m)
            if R: e(R.pop(0))
            elif X:
                for _ in range(2):
                    if X: e(X.pop(0))
        for x in X: e(x)
    bump = [f"v_add_u32 v{r}, 0x8000, v{r}" for r in range(14, 20)]
    wrap = [f"v_and_b32 v{r}, 0x1ffff, v{r}" for r in range(14, 20)]
    k.stamp(1)
    e("s_mov_b32 s40, 10")
    e("s_barrier")
    k.stamp(2)
    for r in rlist(0): e(r)
    k.label("m_loop1")
    e("s_waitcnt lgkmcnt(0)")
    phase(0, rlist(1), bump + wrap)
    e("s_sub_u32 s40, s40, 1"); e("s_cmp_eq_u32 s40, 0")
    e("s_waitcnt lgkmcnt(0)")
    e(f"s_cbranch_scc1 m_tail1")
    e("s_barrier")
    phase(1, rlist(0))
    e("s_cmp_lg_u32 s40, 5"); e("s_cbranch_scc1 m_loop1")
    e("s_cmp_lg_u32 s33, 0"); e("s_cbranch_scc1 m_loop1")
    e("buffer_load_dword v11, v10, s[64:67], 0 offen sc1")
    e(f"s_branch m_loop1")
    k.label(f"m_tail1")
    phase(1, [])
    e("s_setprio 2")
    k.stamp(3)
    e("s_lshl_b32 s43, s33, 6"); e(f"s_add_u32 s43, s43, {MISC+1024}")
    e("v_lshl_add_u32 v8, v2, 2, s43")
    e("v_and_b32 v4, 3, v1")
    e("v_cmp_eq_u32 s[44:45], 1, v4"); e("v_cmp_eq_u32 s[58:59], 2, v4"); e("v_cmp_eq_u32 vcc, 3, v4")
    e("s_nop 2")
    e("ds_write_b32 v8, v184"); e("ds_write_b32 v8, v188 offset:256")
    e(f"v_mov_b32 v9, {W_EPOCH}")
    def epoch_poll(tag):
        e("s_mov_b32 s40, 0")
        k.label(f"m_eppoll{tag}")
        e("s_waitcnt vmcnt(0)")
        e("v_readfirstlane_b32 s43, v11")
        e("s_add_u32 s40, s40, 1")
        e("s_cmp_lg_u32 s43, 0"); e(f"s_cbranch_scc1 m_epok{tag}")
        e("buffer_load_dword v11, v10, s[64:67], 0 offen sc1")
        e(f"s_cmp_lt_u32 s40, {SPIN}"); e(f"s_cbranch_scc1 m_eppoll{tag}")
        k.label(f"m_epok{tag}")
        e("ds_write_b32 v9, v11")
    e("s_cmp_lg_u32 s33, 0"); e("s_cbranch_scc1 m_epdone")
    epoch_poll("g")
    k.label("m_epdone")
    e("s_waitcnt lgkmcnt(0)")
    e("s_barrier")
    for b in range(2):
        q0 = 176 + 4*b
        e(f"v_cndmask_b32 v{q0}, v{q0}, v{q0+1}, s[44:45]"); e(f"v_cndmask_b32 v{q0}, v{q0}, v{q0+2}, s[58:59]"); e(f"v_cndmask_b32 v{q0}, v{q0}, v{q0+3}, vcc")
        e(f"v_mul_f32 v{168+4*b}, {f32(1/640)}, v{168+4*b}")
        e(f"v_mul_f32 v{q0}, {f32(1/640)}, v{q0}")
        e(f"v_fma_f32 v{q0}, -v{168+4*b}, v{168+4*b}, v{q0}")
    for c in range(4):
        e(f"s_xor_b32 s43, s33, {c}"); e(f"s_lshl_b32 s43, s43, 6"); e(f"s_add_u32 s43, s43, {MISC+1024}")
        e(f"v_lshl_add_u32 v5, v2, 2, s43"); e(f"v_lshl_add_u32 v6, v3, 4, s43")
        e(f"ds_read_b32 v{40+2*c}, v5")
        e(f"ds_read_b128 {v(64+4*c,4)}, v6 offset:256")
    e("ds_read_b32 v229, v9")
    for b in range(2): ln_finish(k, f"v{168+4*b}", f"v{176+4*b}", "v7")
    e("s_lshl_b32 s43, s33, 7"); e(f"s_add_u32 s43, s43, {MISC}")
    e("v_lshl_add_u32 v7, v2, 2, s43")
    e("v_lshl_add_u32 v8, v3, 4, s43")
    e("v_lshrrev_b32 v4, 2, v2")
    e("v_cmp_eq_u32 vcc, v4, v3")
    e("s_and_saveexec_b64 s[44:45], vcc")
    for b in range(2):
        e(f"ds_write_b32 v7, v{168+4*b} offset:{64*b}"); e(f"ds_write_b32 v7, v{176+4*b} offset:{512+64*b}")
    e("s_mov_b64 exec, s[44:45]")
    e("ds_read_b128 v[24:27], v8"); e("ds_read_b128 v[28:31], v8 offset:64")
    e("ds_read_b128 v[32:35], v8 offset:512"); e("ds_read_b128 v[36:39], v8 offset:576")
    e("ds_read_b32 v80, v7"); e("ds_read_b32 v82, v7 offset:64"); e("ds_read_b32 v84, v7 offset:512"); e("ds_read_b32 v86, v7 offset:576")
    e(f"v_mov_b32 v88, {f32(GC1)}"); e(f"v_mov_b32 v90, {f32(GC0)}")
    for i in range(168, 184): e(f"v_mov_b32 v{i}, 0")
    e("s_waitcnt lgkmcnt(0)")
    e("v_readfirstlane_b32 s3, v229")
    def gelu_pairs(A):
        n = len(A); T = [48 + 2*i for i in range(n)]
        for i in range(n): e(f"v_cvt_pk_bf16_f32 v{T[i]}, v{A[i]}, v{A[i]+1}")
        for i in range(n): unpack(k, f"v{A[i]}", f"v{A[i]+1}", f"v{T[i]}")
        for i in range(n): e(f"v_pk_mul_f32 {pr(T[i])}, {pr(A[i])}, {pr(A[i])}")
        for i in range(n): e(f"v_pk_fma_f32 {pr(T[i])}, {pr(T[i])}, v[88:89], v[90:91] op_sel_hi:[1,0,0]")
        for i in range(n): e(f"v_pk_mul_f32 {pr(T[i])}, {pr(T[i])}, {pr(A[i])}")
        for i in range(n): e(f"v_exp_f32 v{T[i]}, v{T[i]}"); e(f"v_exp_f32 v{T[i]+1}, v{T[i]+1}")
        for i in range(n): e(f"v_pk_add_f32 {pr(T[i])}, {pr(T[i])}, 1.0 op_sel_hi:[1,0]")
        for i in range(n): e(f"v_rcp_f32 v{T[i]}, v{T[i]}"); e(f"v_rcp_f32 v{T[i]+1}, v{T[i]+1}")
        for i in range(n): e(f"v_pk_mul_f32 {pr(A[i])}, {pr(A[i])}, {pr(T[i])}")
    for c0 in (0, 2):
        A = [accb(0, b, c) + 2*p for c in (c0, c0+1) for b in range(2) for p in range(2)]
        M = [24 + 4*b + 2*p for c in (c0, c0+1) for b in range(2) for p in range(2)]
        C = [40 + 2*c for c in (c0, c0+1) for b in range(2) for p in range(2)]
        for i in range(8): e(f"v_pk_fma_f32 {pr(A[i])}, {pr(M[i])}, {pr(C[i])}, {pr(A[i])} op_sel_hi:[1,0,1] neg_lo:[1,0,0] neg_hi:[1,0,0]")
        for i in range(8): e(f"v_pk_mul_f32 {pr(A[i])}, {pr(A[i])}, {pr(M[i]+8)}")
        gelu_pairs(A)
        for i in range(8): e(f"v_cvt_pk_bf16_f32 v{48+i}, v{A[i]}, v{A[i]+1}")
        for i in range(8): e(f"v_and_b32 v{48+i}, s{50+c0+i//4}, v{48+i}")
        for i in range(8): unpack(k, f"v{A[i]}", f"v{A[i]+1}", f"v{48+i}")
        for i in range(8):
            n = (i % 4) * 2
            e(f"v_pk_add_f32 {pr(168+n)}, {pr(168+n)}, {pr(A[i])}")
            e(f"v_pk_fma_f32 {pr(176+n)}, {pr(A[i])}, {pr(A[i])}, {pr(176+n)}")
    e("s_nop 0")
    for n in range(8): e(f"v_add_f32_dpp v{48+n}, v{168+n}, v{168+n} row_ror:8 row_mask:0xf bank_mask:0x3")
    for n in range(8): e(f"v_add_f32_dpp v{48+n}, v{176+n}, v{176+n} row_ror:8 row_mask:0xf bank_mask:0xc")
    for n in range(4): e(f"v_add_f32_dpp v{168+n}, v{48+n}, v{48+n} row_half_mirror row_mask:0xf bank_mask:0x5")
    for n in range(4): e(f"v_add_f32_dpp v{168+n}, v{52+n}, v{52+n} row_half_mirror row_mask:0xf bank_mask:0xa")
    for n in range(2):
        e(f"v_cndmask_b32 v{172+n}, v{170+n}, v{168+n}, s[54:55]")
        e(f"v_cndmask_b32 v{174+n}, v{168+n}, v{170+n}, s[54:55]")
    e("s_nop 0")
    for n in range(2): e(f"v_add_f32_dpp v{176+n}, v{172+n}, v{174+n} quad_perm:[2,3,0,1] row_mask:0xf bank_mask:0xf")
    e("v_cndmask_b32 v172, v177, v176, s[56:57]"); e("v_cndmask_b32 v174, v176, v177, s[56:57]")
    e("s_nop 1")
    e("v_add_f32_dpp v228, v172, v174 quad_perm:[1,0,3,2] row_mask:0xf bank_mask:0xf")
    e("buffer_store_dwordx2 v[228:229], v230, s[28:31], s73 offen sc1")
    k.stamp(4)
    P1 = 168
    for c0 in (0, 2):
        A = [accb(1, b, c) + 2*p for c in (c0, c0+1) for b in range(2) for p in range(2)]
        M = [80 + 2*b for c in (c0, c0+1) for b in range(2) for p in range(2)]
        C = [64 + 4*c + 2*p for c in (c0, c0+1) for b in range(2) for p in range(2)]
        for i in range(8): e(f"v_pk_fma_f32 {pr(A[i])}, {pr(M[i])}, {pr(C[i])}, {pr(A[i])} op_sel_hi:[0,1,1] neg_lo:[1,0,0] neg_hi:[1,0,0]")
        for i in range(8): e(f"v_pk_mul_f32 {pr(A[i])}, {pr(A[i])}, {pr(M[i]+4)} op_sel_hi:[1,0]")
        gelu_pairs(A)
        i = 0
        for c in (c0, c0+1):
            for b in range(2):
                for p in range(2):
                    e(f"v_cvt_pk_bf16_f32 v{P1+b*8+c*2+p}, v{A[i]}, v{A[i]+1}"); i += 1
        if c0 == 0: poll_loads()
    e("s_bitcmp1_b32 s33, 0"); e("s_cbranch_scc0 m_noswap")
    for b in range(2):
        for g in range(2):
            for p in range(2):
                r0 = P1 + b*8 + g*4 + p
                e(f"v_swap_b32 v{r0}, v{r0+2}")
    k.label("m_noswap")
    e("s_mov_b32 s40, 0")
    e("s_waitcnt vmcnt(0)")
    for b in range(2):
        for g in range(2):
            e(f"buffer_store_dwordx4 {v(P1+b*8+g*4,4)}, v12, s[20:23], s{68+b*2+g} offen sc1")
    e("s_branch m_check")
    k.label("m_poll")
    poll_loads()
    e("s_waitcnt vmcnt(0)")
    k.label("m_check")
    e(f"v_xor_b32 v4, v{PL+1}, v229"); e(f"v_xor_b32 v5, v{PL+3}, v229")
    for i in range(1, 7):
        e(f"v_xor_b32 v9, v{PL+1+4*i}, v229"); e(f"v_xor_b32 v10, v{PL+3+4*i}, v229")
        e("v_or3_b32 v4, v4, v9, v10")
    e("v_or_b32 v4, v4, v5")
    e("v_cmp_ne_u32 vcc, 0, v4")
    e("s_add_u32 s40, s40, 1")
    e("s_nop 0")
    e("s_cbranch_vccz m_poll_done")
    e(f"s_cmp_lt_u32 s40, {SPIN}"); e("s_cbranch_scc1 m_poll")
    k.label("m_poll_done")
    k.stamp(5)
    for i in range(1, 7):
        e(f"v_add_f32 v{PL}, v{PL}, v{PL+4*i}"); e(f"v_add_f32 v{PL+2}, v{PL+2}, v{PL+2+4*i}")
    e(f"v_mov_b32 v{PL+1}, v{PL}"); e(f"v_mov_b32 v{PL+3}, v{PL+2}"); e("s_nop 1")
    e(f"v_permlane32_swap_b32 v{PL}, v{PL+1}"); e(f"v_permlane32_swap_b32 v{PL+2}, v{PL+3}"); e("s_nop 1")
    e(f"v_add_f32 v24, v{PL}, v{PL+1}"); e(f"v_add_f32 v26, v{PL+2}, v{PL+3}")
    e(f"v_mul_f32 v24, {f32(1/864)}, v24"); e(f"v_mul_f32 v26, {f32(1/864)}, v26")
    e("v_fma_f32 v26, -v24, v24, v26")
    ln_finish(k, "v24", "v26", "v25")
    e("s_lshl_b32 s43, s33, 8"); e(f"s_add_u32 s43, s43, {MISC+1536}")
    e("v_and_b32 v4, 31, v1"); e("v_lshl_add_u32 v4, v4, 2, s43"); e("v_lshl_add_u32 v5, v3, 5, s43")
    e("ds_write_b32 v4, v24"); e("ds_write_b32 v4, v26 offset:128")
    e("ds_read_b128 v[28:31], v5"); e("ds_read_b128 v[32:35], v5 offset:16")
    e("ds_read_b128 v[36:39], v5 offset:128"); e("ds_read_b128 v[40:43], v5 offset:144")
    e("s_waitcnt lgkmcnt(0)")
    for c0 in (0, 2):
        A = [accb(0, b, c) + 2*p for c in (c0, c0+1) for b in range(2) for p in range(2)]
        M = [28 + (i % 4)*2 for i in range(8)]
        for i in range(8): e(f"v_pk_add_f32 {pr(A[i])}, {pr(A[i])}, {pr(M[i])} neg_lo:[0,1] neg_hi:[0,1]")
        for i in range(8): e(f"v_cvt_pk_bf16_f32 v{48+i}, v{A[i]}, v{A[i]+1}")
        for i in range(8): unpack(k, f"v{A[i]}", f"v{A[i]+1}", f"v{48+i}")
        for i in range(8): e(f"v_pk_mul_f32 {pr(A[i])}, {pr(A[i])}, {pr(M[i]+8)}")
        for i in range(8): e(f"v_cvt_pk_bf16_f32 v{64+4*c0+i}, v{A[i]}, v{A[i]+1}")
        for c in (c0, c0+1): e(f"buffer_store_dwordx4 {v(64+4*c,4)}, v12, s[24:27], s{46+c} offen sc1")
    set_flag(k, FLS, "s74", FZ, "v4", "v5")
    gen_p2(k)
    gen_p3(k)
    gen_helper(k, epoch_poll)
    k.label("m_end")
    e("s_endpgm")
    return k.text(256, nsgpr=100)

def gen_p2(k):
    e = k.e
    k.label("m_P2")
    k.stamp(6)
    e("s_setprio 3")
    e("s_load_dwordx2 s[6:7], s[0:1], 80")
    e("s_lshr_b32 s35, s41, 1"); e("s_lshl_b32 s35, s35, 3"); e("s_lshr_b32 s43, s42, 2"); e("s_add_u32 s35, s35, s43")
    e("s_and_b32 s36, s42, 3")
    e("s_and_b32 s43, s41, 1"); e("s_mul_i32 s43, s43, 27"); e("s_mul_i32 s44, s36, 7"); e("s_add_u32 s37, s43, s44")
    e("v_and_b32 v240, 15, v1"); e("v_lshrrev_b32 v241, 4, v1"); e("v_mov_b32 v245, v1")
    e("s_cmp_eq_u32 s36, 3"); e("s_cselect_b32 s44, 5, 6"); e("s_add_u32 s44, s44, s37")
    e("s_add_u32 s45, s37, 2"); e("s_lshr_b32 s45, s45, 2"); e("s_add_u32 s46, s44, 2"); e("s_lshr_b32 s46, s46, 2")
    e("v_add_u32 v2, s45, v241"); e("v_min_u32 v2, s46, v2"); e("v_lshlrev_b32 v2, 6, v2")
    e("s_lshl_b32 s45, s33, 4"); e("v_add3_u32 v2, v2, v240, s45")
    e("s_lshr_b32 s45, s37, 2"); e("s_lshr_b32 s46, s44, 2")
    e("v_add_u32 v3, s45, v240"); e("v_min_u32 v3, s46, v3"); e("v_lshlrev_b32 v3, 6, v3")
    e("s_lshl_b32 s45, s35, 1"); e("s_lshr_b32 s46, s33, 1"); e("s_add_u32 s45, s45, s46"); e("v_add_u32 v3, s45, v3")
    e("v_cmp_eq_u32 vcc, 3, v241"); e("s_nop 1"); e("v_cndmask_b32 v2, v2, v3, vcc"); e("v_lshlrev_b32 v254, 2, v2")
    e("v_lshrrev_b32 v2, 5, v1"); e("v_lshlrev_b32 v2, 3, v2"); e("v_bfe_u32 v3, v1, 3, 2"); e("v_add_u32 v2, v2, v3")
    e("v_lshlrev_b32 v2, 12, v2")
    e("v_and_b32 v3, 7, v1"); e("v_xor_b32 v3, v3, v241")
    e("v_lshl_add_u32 v242, v3, 4, v2")
    e("v_xor_b32 v3, 4, v3")
    e("v_lshl_add_u32 v243, v3, 4, v2"); e(f"v_add_u32 v243, {16*4096 - 1024}, v243")
    e("v_lshlrev_b32 v244, 4, v1")
    e("s_lshl_b32 s43, s35, 18"); e("s_lshl_b32 s44, s33, 10"); e("s_add_u32 s48, s43, s44"); e("s_add_u32 s48, s48, 384")
    e(f"s_add_u32 s49, s48, {4*4096}"); e(f"s_add_u32 s50, s48, {32*4096}"); e(f"s_add_u32 s51, s48, {36*4096}")
    e("s_lshl_b32 s43, s37, 16"); e("s_lshl_b32 s44, s33, 14"); e("s_add_u32 s52, s43, s44")
    for c in range(1, 7): e(f"s_add_u32 s{52+c}, s52, {c*65536}")
    e("s_cmp_eq_u32 s36, 3"); e(f"s_cselect_b32 s58, {HUGE}, s58")
    e(f"s_mul_i32 s39, s33, {RING2}")
    k.srd(16, 10, 11, 2048*4096)
    k.srd(20, 14, 15, ZF_BYTES, WS_Z2F)
    k.srd(24, 14, 15, ZF_BYTES, WS_Z1F)
    k.srd(28, 14, 15, ZF_BYTES, WS_HF)
    e("v_lshrrev_b32 v5, 1, v240"); e("v_xor_b32 v5, v5, v241")
    e("v_lshlrev_b32 v4, 7, v240"); e("v_lshl_add_u32 v4, v5, 4, v4"); e("v_add_u32 v4, s39, v4")
    for sg in range(4):
        e(f"s_xor_b32 s43, s33, {sg}"); e("s_lshl_b32 s43, s43, 11")
        e(f"v_add_u32 v{246+sg}, s43, v4")
        e(f"v_xor_b32 v{250+sg}, 64, v{246+sg}")
    e(f"v_mov_b32 v4, {W_PF}")
    lds_wait(k, "m_wpf", "v4", "v5")
    k.srd(64, 6, 7, 4096)
    poll_flags(k, "m_pollz", "v254", FLS, 1, 4, "v5", imm=FZ, sleep=4)
    k.stamp(7)
    def Z(st, c): return v(112 + st*28 + c*4, 4)
    def acc(c, sg): return v((c*4 + sg)*4, 4)
    def wf(sg): return v(224 + 4*sg, 4)
    def issueZ(n):
        if n % 4 == 0 and n:
            for c in range(7): e(f"s_add_u32 s{52+c}, s{52+c}, 4096")
        for c in range(7): k.vmem(f"buffer_load_dwordx4 {Z(n%4,c)}, v244, s[20:23], s{52+c} offen offset:{(n%4)*1024} sc1", f"Z{n}")
    def issueA(c):
        for t in range(4):
            e(f"s_add_u32 m0, s39, {(c%3)*8192 + t*2048}")
            e("s_nop 0")
            k.vmem(f"buffer_load_dwordx4 v242, s[16:19], s{48+t} offen lds", f"A{c}")
            k.vmem(f"buffer_load_dwordx4 v243, s[16:19], s{48+t} offen offset:1024 lds", f"A{c}")
        for t in range(4): e(f"s_add_u32 s{48+t}, s{48+t}, 128")
    for n in range(4): issueZ(n)
    k.cyc(12)
    for n in range(16):
        c, ks = n >> 1, n & 1
        if c >= 3 and ks == 0 and f"A{c}" in k.vm: k.wait_vm(f"A{c}")
        for sg in range(4):
            e(f"ds_read_b128 {wf(sg)}, v{(250 if ks else 246)+sg} offset:{(c%3)*8192}")
        if f"Z{n}" in k.vm: k.wait_vm(f"Z{n}")
        if n == 0: k.stamp(8)
        order = (1, 3, 2, 0) if n == 15 else (0, 1, 2, 3)
        for ii, sg in enumerate(order):
            if n == 15:
                if ii == 0: e("s_waitcnt lgkmcnt(0)")
            else:
                e(f"s_waitcnt lgkmcnt({3-sg})")
            if ii == 3 and ks == 1 and c + 3 < 8: issueA(c + 3)
            for cc in range(7):
                e(f"{MFMA} {acc(cc,sg)}, {Z(n%4,cc)}, {wf(sg)}, {'0' if n == 0 else acc(cc,sg)}")
        if n + 4 < 16: issueZ(n + 4)
        if n == 11:
            e("s_lshl_b32 s43, s33, 2"); e(f"s_add_u32 s43, s43, {W_GL}"); e("v_mov_b32 v254, s43"); e("v_mov_b32 v255, 1")
            e("ds_write_b32 v254, v255")
        if n == 12:
            e("s_lshl_b32 s43, s35, 2"); e("s_add_u32 s43, s43, s33"); e("s_mul_i32 s44, s43, 27648")
            for cc in range(7):
                e(f"s_add_u32 s45, s37, {cc}"); e("s_lshr_b32 s46, s45, 1"); e("s_lshl_b32 s46, s46, 10"); e("s_and_b32 s45, s45, 1"); e("s_lshl_b32 s45, s45, 3")
                e("s_add_u32 s45, s45, s46"); e(f"s_add_u32 s{52+cc}, s45, s44")
            e("s_cmp_eq_u32 s36, 3"); e(f"s_cselect_b32 s58, {HUGE}, s58")
            for cc in range(7): k.vmem(f"buffer_load_dwordx2 {v(112+2*cc,2)}, v244, s[24:27], s{52+cc} offen sc1", "z1")
            e("s_lshr_b32 s44, s43, 1"); e("s_lshl_b32 s44, s44, 5"); e("s_and_b32 s45, s43, 1"); e("s_lshl_b32 s45, s45, 2"); e("s_add_u32 s44, s44, s45")
            e("v_lshrrev_b32 v128, 2, v240"); e("v_and_b32 v129, 3, v240"); e("v_lshl_add_u32 v128, v128, 3, v129"); e("v_add_u32 v128, s44, v128")
            e("v_lshlrev_b32 v128, 1, v128")
            k.vmem("buffer_load_ushort v126, v128, s[64:67], 0 offen", "z1")
    k.stamp(9); k.cyc(13)
    e("v_add_u32 v130, s39, v244")
    e("s_xor_b32 s43, s33, 1"); e(f"s_mul_i32 s43, s43, {RING2}"); e("v_add_u32 v131, s43, v244")
    e("s_xor_b32 s43, s33, 3"); e(f"s_mul_i32 s43, s43, {RING2}"); e("v_add_u32 v132, s43, v244")
    e(f"v_add_u32 v133, {W_R1 - W_GL}, v254")
    e("v_xor_b32 v134, 4, v133"); e("v_xor_b32 v135, 8, v133"); e("v_add_u32 v135, 16, v135")
    for c in range(7):
        for h in range(2): e(f"ds_write_b128 v130, {acc(c,1+2*h)} offset:{(c*2+h)*1024}")
    e("ds_write_b32 v133, v255")
    lds_wait(k, "m_wr1", "v134", "v136")
    T = 140
    for h in (1, 0):
        for c in range(7): e(f"ds_read_b128 {v(T+(c*2+h)*4,4)}, v131 offset:{(c*2+h)*1024}")
    e("s_waitcnt lgkmcnt(7)")
    for c in range(7):
        for p in range(2):
            a = (c*4 + 2)*4 + 2*p
            e(f"v_pk_add_f32 {pr(a)}, {pr(a)}, {pr(T+(c*2+1)*4+2*p)}")
    e("s_waitcnt lgkmcnt(0)")
    for c in range(7): e(f"ds_write_b128 v131, {acc(c,2)} offset:{c*1024}")
    e("ds_write_b32 v133, v255 offset:16")
    for c in range(7):
        for p in range(2):
            a = (c*4)*4 + 2*p
            e(f"v_pk_add_f32 {pr(a)}, {pr(a)}, {pr(T+(c*2)*4+2*p)}")
    lds_wait(k, "m_wr2", "v135", "v136")
    for c in range(7): e(f"ds_read_b128 {v(T+c*4,4)}, v132 offset:{c*1024}")
    e("s_waitcnt vmcnt(0)")
    k.vm = []
    e("v_lshlrev_b32 v126, 16, v126")
    for i in range(14): unpack(k, f"v{170+2*i}", f"v{171+2*i}", f"v{112+i}")
    e("s_waitcnt lgkmcnt(0)")
    A = [c*16 + 2*p for c in range(7) for p in range(2)]
    for i in range(14): e(f"v_pk_add_f32 {pr(A[i])}, {pr(A[i])}, {pr(T+2*i)}")
    for i in range(14): e(f"v_cvt_pk_bf16_f32 v{T+i}, v{A[i]}, v{A[i]+1}")
    for i in range(14): unpack(k, f"v{A[i]}", f"v{A[i]+1}", f"v{T+i}")
    for i in range(14): e(f"v_pk_add_f32 {pr(A[i])}, {pr(A[i])}, v[126:127] op_sel_hi:[1,0]")
    for i in range(14): e(f"v_cvt_pk_bf16_f32 v{T+i}, v{A[i]}, v{A[i]+1}")
    for i in range(14): unpack(k, f"v{A[i]}", f"v{A[i]+1}", f"v{T+i}")
    for i in range(14): e(f"v_pk_mul_f32 {pr(A[i])}, {pr(A[i])}, {pr(170+2*i)}")
    for i in range(14): e(f"v_cvt_pk_bf16_f32 v{200+i}, v{A[i]}, v{A[i]+1}")
    for c in range(7): e(f"buffer_store_dwordx2 {v(200+2*c,2)}, v244, s[28:31], s{52+c} offen sc1")
    e("v_mov_b32 v1, v245")
    e("s_and_b32 s43, s41, 1"); e("s_lshl_b32 s43, s43, 2"); e("s_add_u32 s36, s36, s43")
    e("s_lshl_b32 s43, s35, 5"); e("s_lshl_b32 s44, s36, 2"); e("s_add_u32 s43, s43, s44"); e("s_add_u32 s43, s43, s33"); e("s_lshl_b32 s43, s43, 2")
    e(f"s_add_u32 s43, s43, {FH}")
    set_flag(k, FLS, "s43", 0, "v4", "v5")
    e("s_setprio 0")
    e("v_and_b32 v2, 15, v1"); e("v_lshrrev_b32 v3, 4, v1")

def gen_p3(k):
    e = k.e
    k.label("m_P3")
    k.stamp(10)
    e("s_lshr_b32 s34, s32, 2")
    e("v_lshlrev_b32 v15, 4, v1")
    e(f"s_mov_b32 s44, {FW}")
    poll_flags(k, "m_pollw", "v15", FLS, 4, 8, "v4", soff="s44")
    k.srd(16, 14, 15, WOF_BYTES, WS_WOF)
    k.srd(20, 14, 15, ZF_BYTES, WS_HF)
    k.srd(24, 4, 5, 2048*1280)
    k.srd(28, 98, 99, 2048*1280)
    def WO(g, db): return v(16 + (g*5 + db)*4, 4)
    def H(g, sg): return v(156 + (g*2 + sg)*4, 4)
    def acc(sg, db): return v(212 + (sg*5 + db)*4, 4)
    e("s_mul_i32 s43, s36, 135"); e("s_mul_i32 s44, s33, 7"); e("s_add_u32 s43, s43, s44"); e("s_lshl_b32 s43, s43, 10")
    e("s_cmp_eq_u32 s33, 3"); e(f"s_cselect_b32 s45, {HUGE}, 6144")
    for db in range(5):
        e(f"s_add_u32 s{46+db}, s43, {db*27*1024}")
    for g in range(7):
        if g == 4:
            for db in range(5): e(f"s_add_u32 s{52+db}, s{46+db}, 4096")
        if g == 6:
            for db in range(5): e(f"s_add_u32 s{52+db}, s{46+db}, s45")
        for db in range(5):
            so = 46 + db if g < 4 else 52 + db
            k.vmem(f"buffer_load_dwordx4 {WO(g,db)}, v15, s[16:19], s{so} offen offset:{(g%4)*1024 if g < 6 else 0} sc1", "wo")
    e("s_and_b32 s43, s33, 1"); e("s_lshl_b32 s44, s34, 1"); e("s_add_u32 s57, s43, s44")
    e("s_lshr_b32 s58, s33, 1"); e("s_mul_i32 s58, s58, 3")
    e("s_lshr_b32 s43, s57, 1"); e("s_lshl_b32 s43, s43, 5"); e("s_and_b32 s44, s57, 1"); e("s_lshl_b32 s44, s44, 2"); e("s_add_u32 s59, s43, s44")
    e("s_lshl_b32 s43, s35, 6"); e("s_add_u32 s43, s43, s59")
    e("v_lshrrev_b32 v6, 2, v2"); e("v_and_b32 v7, 3, v2"); e("v_lshl_add_u32 v6, v6, 3, v7"); e("v_add_u32 v6, s43, v6")
    e("v_mul_u32_u24 v6, 1280, v6"); e("v_lshl_add_u32 v6, v3, 3, v6"); e("s_mul_i32 s43, s36, 160"); e("v_add_u32 v14, s43, v6")
    for i in range(3):
        e(f"s_add_u32 s43, s58, {i}"); e(f"s_min_u32 s{68+i}, s43, 4")
        e(f"s_lshl_b32 s{72+i}, s{68+i}, 5")
    for i in range(3): k.vmem(f"buffer_load_dwordx2 {v(8+2*i,2)}, v14, s[24:27], s{72+i} offen", "wo")
    e("s_cmp_ge_u32 s32, 4"); e("s_cbranch_scc1 m_noy")
    e("v_min_u32 v4, 39, v1"); e("v_lshlrev_b32 v4, 3, v4")
    e("s_mul_i32 s44, s36, 320"); e(f"s_add_u32 s44, s44, {FY}")
    poll_flags(k, "m_polly", "v4", FLS, 2, 6, "v5", soff="s44", sleep=8)
    k.srd(64, 14, 15, XT_BYTES, WS_YT)
    e("v_lshrrev_b32 v6, 3, v1"); e("v_lshlrev_b32 v6, 12, v6"); e("v_and_b32 v7, 7, v1"); e("v_lshl_add_u32 v6, v7, 4, v6")
    e("s_mul_i32 s44, s36, 80"); e("s_lshl_b32 s43, s33, 3"); e("s_add_u32 s44, s44, s43"); e("s_lshl_b32 s44, s44, 12"); e("s_lshl_b32 s43, s35, 7"); e("s_add_u32 s44, s44, s43")
    for n in range(3):
        e(f"buffer_load_dwordx4 {v(156+4*n,4)}, v6, s[64:67], s44 offen sc1")
        e(f"s_add_u32 s44, s44, {32*4096}")
    e("s_lshl_b32 s43, s33, 10"); e(f"s_add_u32 s43, s43, {YTILE}"); e("v_lshl_add_u32 v6, v1, 4, s43")
    e("s_waitcnt vmcnt(0)")
    for n in range(3): e(f"ds_write_b128 v6, {v(156+4*n,4)} offset:{4096*n}")
    k.label("m_noy")
    e("v_and_b32 v4, 31, v1"); e("v_lshlrev_b32 v4, 2, v4")
    e("s_lshl_b32 s44, s35, 7"); e(f"s_add_u32 s44, s44, {FH}")
    poll_flags(k, "m_pollh", "v4", FLS, 1, 5, "v6", soff="s44", sleep=4)
    k.stamp(11)
    e("s_lshl_b32 s43, s35, 2"); e("s_lshl_b32 s44, s34, 1"); e("s_add_u32 s43, s43, s44"); e("s_mul_i32 s43, s43, 27"); e("s_mul_i32 s44, s33, 7"); e("s_add_u32 s43, s43, s44")
    e("s_lshl_b32 s46, s43, 10"); e("s_add_u32 s47, s46, 27648")
    e("s_add_u32 s48, s46, 4096"); e("s_add_u32 s49, s47, 4096"); e("s_add_u32 s50, s46, s45"); e("s_add_u32 s51, s47, s45")
    for g in range(7):
        for sg in range(2):
            so = 46 + sg + (0 if g < 4 else 2 if g < 6 else 4)
            k.vmem(f"buffer_load_dwordx4 {H(g,sg)}, v15, s[20:23], s{so} offen offset:{(g%4)*1024 if g < 6 else 0} sc1", f"h{g}")
    e("s_mul_i32 s43, s32, 10240"); e("v_add_u32 v252, s43, v15")
    for g in range(7):
        k.wait_vm(f"h{g}")
        for sg in range(2):
            for db in range(5):
                e(f"{MFMA} {acc(sg,db)}, {WO(g,db)}, {H(g,sg)}, {'0' if g == 0 else acc(sg,db)}")
    e("s_mul_i32 s43, s34, 40960"); e("s_and_b32 s44, s33, 1"); e("s_mul_i32 s44, s44, 5120"); e("s_add_u32 s43, s43, s44")
    e("v_bfe_u32 v4, v1, 2, 2"); e("v_lshl_add_u32 v4, v3, 2, v4"); e("v_lshlrev_b32 v4, 7, v4")
    e("v_and_b32 v5, 3, v1"); e("v_lshl_add_u32 v4, v5, 4, v4")
    e("s_lshl_b32 s44, s59, 1"); e(f"s_add_u32 s44, s44, {YTILE}"); e("v_add_u32 v4, s44, v4")
    for i in range(3):
        e(f"s_lshl_b32 s44, s{68+i}, 10"); e("s_add_u32 s44, s44, s43"); e(f"v_add_u32 v{16+i}, s44, v15")
        e(f"s_lshl_b32 s44, s{68+i}, 11"); e(f"v_add_u32 v{20+i}, s44, v4")
    for b in range(10): e(f"ds_write_b128 v252, {v(212+4*b,4)} offset:{b*1024}")
    e("s_waitcnt lgkmcnt(0)")
    e("s_barrier")
    for i in range(3):
        for kq in range(4): e(f"ds_read_b128 {v(32+(i*4+kq)*4,4)}, v{16+i} offset:{kq*10240}")
    for i in range(3): e(f"ds_read_b64_tr_b16 {v(24+2*i,2)}, v{20+i}")
    for i in range(6): unpack(k, f"v{96+2*i}", f"v{97+2*i}", f"v{8+i}")
    e("s_waitcnt lgkmcnt(0)")
    A = [32 + i*16 + 2*p for i in range(3) for p in range(2)]
    for n in range(6): e(f"v_pk_add_f32 {pr(A[n])}, {pr(A[n])}, {pr(A[n]+4)}"); e(f"v_pk_add_f32 {pr(A[n]+8)}, {pr(A[n]+8)}, {pr(A[n]+12)}")
    for n in range(6): unpack(k, f"v{112+2*n}", f"v{113+2*n}", f"v{24+n}")
    for n in range(6): e(f"v_pk_add_f32 {pr(A[n])}, {pr(A[n])}, {pr(A[n]+8)}")
    for n in range(6): e(f"v_pk_add_f32 {pr(96+2*n)}, {pr(96+2*n)}, {pr(112+2*n)}")
    for n in range(6): e(f"v_cvt_pk_bf16_f32 v{24+n}, v{A[n]}, v{A[n]+1}")
    for n in range(6): e(f"v_cvt_pk_bf16_f32 v{8+n}, v{96+2*n}, v{97+2*n}")
    for n in range(6): unpack(k, f"v{A[n]}", f"v{A[n]+1}", f"v{24+n}")
    for n in range(6): unpack(k, f"v{96+2*n}", f"v{97+2*n}", f"v{8+n}")
    for n in range(6): e(f"v_pk_add_f32 {pr(A[n])}, {pr(A[n])}, {pr(96+2*n)}")
    for n in range(6): e(f"v_cvt_pk_bf16_f32 v{24+n}, v{A[n]}, v{A[n]+1}")
    for i in range(3): e(f"buffer_store_dwordx2 {v(24+2*i,2)}, v14, s[28:31], s{72+i} offen")
    k.end(0)

def gen_helper(k, epoch_poll):
    e = k.e
    k.label("m_helper")
    e("s_lshl_b32 s35, s41, 2"); e("s_add_u32 s35, s35, s42"); e("s_sub_u32 s35, s35, 28")
    e("v_and_b32 v2, 15, v1"); e("v_lshrrev_b32 v3, 4, v1")
    e("s_lshl_b32 s43, s32, 3")
    e("v_add_u32 v4, s43, v3")
    e("s_lshl_b32 s44, s35, 6")
    e("v_add_u32 v5, s44, v4"); e("v_mul_u32_u24 v5, 1280, v5"); e("v_lshl_add_u32 v5, v2, 4, v5")
    e("v_add_u32 v6, 5120, v5")
    e("v_mul_u32_u24 v7, 1296, v4"); e("v_lshl_add_u32 v7, v2, 4, v7")
    e("v_mov_b32 v110, 0")
    e(f"v_lshlrev_b32 v4, 2, v2"); e(f"v_add_u32 v4, {W_EPOCH}, v4")
    e("s_cmp_lg_u32 s32, 4"); e("s_cbranch_scc1 m_hnoclr")
    e("ds_write_b32 v4, v110")
    k.label("m_hnoclr")
    e("s_waitcnt lgkmcnt(0)")
    k.srd(16, 4, 5, 2048*1280)
    k.srd(28, 14, 15, XT_BYTES, WS_XNT)
    k.srd(64, 12, 13, 256)
    k.srd(FLS, 14, 15, FL_BYTES, WS_FL)
    k.srd(20, 96, 97, 864*1280)
    k.srd(24, 14, 15, WOF_BYTES, WS_WOF)
    k.vm = []
    for g in range(2):
        for n in range(5):
            k.vmem(f"buffer_load_dwordx4 {v(8+g*20+n*4,4)}, v{5+g}, s[16:19], 0 offen offset:{n*256}", f"x{g}")
    e("s_lshl_b32 s36, s35, 3"); e("s_add_u32 s36, s36, s32")
    e("v_lshrrev_b32 v111, 3, v1"); e("v_mul_u32_u24 v111, 1280, v111"); e("v_and_b32 v112, 7, v1"); e("v_lshl_add_u32 v111, v112, 4, v111")
    for it in range(2):
        e(f"s_add_u32 s43, s36, {256*it}"); e("s_mul_i32 s44, s43, 205"); e("s_lshr_b32 s44, s44, 11"); e("s_mul_i32 s45, s44, 10"); e("s_sub_u32 s45, s43, s45")
        e("s_mul_i32 s46, s44, 40960"); e("s_lshl_b32 s47, s45, 7"); e("s_add_u32 s46, s46, s47")
        e(f"s_mul_i32 s47, s45, {4*27}"); e("s_add_u32 s47, s47, s44"); e("s_lshl_b32 s47, s47, 10")
        e("s_cmp_lt_u32 s43, 270"); e(f"s_cselect_b32 s{48+it}, s47, {HUGE}")
        for n in range(4):
            k.vmem(f"buffer_load_dwordx4 {v(120+it*16+n*4,4)}, v111, s[20:23], s46 offen", "wo")
            e("s_add_u32 s46, s46, 10240")
    for g in range(2):
        k.stamp(1+2*g)
        k.wait_vm(f"x{g}")
        X = 48
        src = 8 + g*20
        for n in range(20): unpack(k, f"v{X+2*n}", f"v{X+2*n+1}", f"v{src+n}")
        e(f"v_pk_add_f32 v[88:89], {pr(X)}, {pr(X+4)}"); e(f"v_pk_add_f32 v[90:91], {pr(X+2)}, {pr(X+6)}")
        for n in range(4, 20): e(f"v_pk_add_f32 {pr(88+2*(n%2))}, {pr(88+2*(n%2))}, {pr(X+2*n)}")
        e("v_pk_add_f32 v[88:89], v[88:89], v[90:91]"); e("s_nop 0"); e("v_add_f32 v88, v88, v89")
        for sh in (8, 4, 2, 1):
            e("s_nop 1"); e(f"v_add_f32_dpp v88, v88, v88 row_ror:{sh} row_mask:0xf bank_mask:0xf")
        e(f"v_mul_f32 v88, {f32(1/640)}, v88")
        for a in range(4): e(f"v_mov_b32 v{92+a}, 0")
        for n0 in range(0, 20, 4):
            for a in range(4): e(f"v_pk_add_f32 {pr(96+2*a)}, {pr(X+2*(n0+a))}, v[88:89] op_sel_hi:[1,0] neg_lo:[0,1] neg_hi:[0,1]")
            for a in range(4): e(f"v_pk_fma_f32 {pr(92+2*(a%2))}, {pr(96+2*a)}, {pr(96+2*a)}, {pr(92+2*(a%2))}")
        e("v_pk_add_f32 v[92:93], v[92:93], v[94:95]"); e("s_nop 0"); e("v_add_f32 v92, v92, v93")
        for sh in (8, 4, 2, 1):
            e("s_nop 1"); e(f"v_add_f32_dpp v92, v92, v92 row_ror:{sh} row_mask:0xf bank_mask:0xf")
        e(f"v_mul_f32 v92, {f32(1/640)}, v92")
        ln_finish(k, "v88", "v92", "v89")
        for n in range(20): e(f"v_pk_add_f32 {pr(X+2*n)}, {pr(X+2*n)}, v[88:89] op_sel_hi:[1,0] neg_lo:[0,1] neg_hi:[0,1]")
        for n in range(20): e(f"v_cvt_pk_bf16_f32 v{src+n}, v{X+2*n}, v{X+2*n+1}")
        for n in range(20): unpack(k, f"v{X+2*n}", f"v{X+2*n+1}", f"v{src+n}")
        for n in range(20): e(f"v_pk_mul_f32 {pr(X+2*n)}, {pr(X+2*n)}, v[92:93] op_sel_hi:[1,0]")
        for n in range(20): e(f"v_cvt_pk_bf16_f32 v{src+n}, v{X+2*n}, v{X+2*n+1}")
        for n in range(5):
            e(f"ds_write_b128 v7, {v(src+4*n,4)} offset:{g*4*1296 + n*256}")
    e(f"v_mov_b32 v9, {W_EPOCH}"); e("v_mov_b32 v10, 0")
    e("s_cmp_lg_u32 s32, 4"); e("s_cbranch_scc1 m_hepdone")
    e("buffer_load_dword v11, v10, s[64:67], 0 offen sc1")
    epoch_poll("h")
    k.label("m_hepdone")
    e("s_waitcnt lgkmcnt(0)")
    e("s_barrier")
    k.stamp(4)
    e("ds_read_b32 v113, v9")
    e("v_bfe_u32 v4, v1, 2, 2"); e("v_lshl_add_u32 v4, v3, 3, v4"); e("v_mul_u32_u24 v4, 1296, v4")
    e("v_and_b32 v5, 3, v1"); e("v_lshl_add_u32 v4, v5, 3, v4")
    e("s_lshl_b32 s43, s32, 5"); e("v_add_u32 v4, s43, v4")
    e(f"v_add_u32 v5, {32*1296}, v4")
    for n in range(5):
        for th in range(2):
            for hh in range(2):
                e(f"ds_read_b64_tr_b16 {v(16+(n*2+th)*4+hh*2,2)}, v{4+th} offset:{hh*4*1296 + n*256}")
    e("s_mul_i32 s43, s32, 4608"); e("s_add_u32 s43, s43, 90112")
    e("v_mul_u32_u24 v5, 144, v2"); e("v_lshl_add_u32 v5, v3, 4, v5"); e("v_add_u32 v5, s43, v5")
    e("v_lshrrev_b32 v4, 3, v1"); e("v_lshlrev_b32 v6, 12, v4"); e("v_mul_u32_u24 v4, 144, v4"); e("v_and_b32 v7, 7, v1"); e("v_lshl_add_u32 v4, v7, 4, v4"); e("v_add_u32 v4, s43, v4")
    e("v_lshl_add_u32 v6, v7, 4, v6")
    e("s_lshl_b32 s46, s32, 16"); e("s_lshl_b32 s44, s35, 7"); e("s_add_u32 s46, s46, s44"); e("s_add_u32 s47, s46, 32768")
    e("s_waitcnt vmcnt(0) lgkmcnt(0)")
    e("v_readfirstlane_b32 s3, v113")
    for n in range(5):
        o = (n % 2) * 2304
        for th in range(2): e(f"ds_write_b128 v5, {v(16+(n*2+th)*4,4)} offset:{o + th*64}")
        for hf in range(2): e(f"ds_read_b128 {v(56+(n*2+hf)*4,4)}, v4 offset:{o + hf*8*144}")
    for n in range(5):
        e(f"s_waitcnt lgkmcnt({min(15, 4*(4-n))})")
        for hf in range(2):
            e(f"buffer_store_dwordx4 {v(56+(n*2+hf)*4,4)}, v6, s[28:31], s{46+hf} offen sc1")
        e(f"s_add_u32 s46, s46, {8*65536}"); e(f"s_add_u32 s47, s47, {8*65536}")
    e("v_bfe_u32 v5, v1, 2, 2"); e("v_lshl_add_u32 v5, v3, 2, v5"); e("v_mul_u32_u24 v5, 144, v5"); e("v_and_b32 v6, 3, v1"); e("v_lshl_add_u32 v5, v6, 3, v5"); e("v_add_u32 v5, s43, v5")
    e("v_lshlrev_b32 v6, 4, v1")
    for it in range(2):
        for n in range(4): e(f"ds_write_b128 v4, {v(120+it*16+n*4,4)} offset:{n*8*144}")
        for d in range(4):
            for hh in range(2): e(f"ds_read_b64_tr_b16 {v(160+it*16+d*4+hh*2,2)}, v5 offset:{hh*16*144 + d*32}")
    e("s_lshl_b32 s45, s36, 2"); e(f"s_add_u32 s45, s45, {FX}")
    set_flag(k, FLS, "s45", 0, "v7", "v8")
    k.stamp(5)
    e("s_waitcnt lgkmcnt(0)")
    for it in range(2):
        for d in range(4):
            e(f"buffer_store_dwordx4 {v(160+it*16+d*4,4)}, v6, s[24:27], s{48+it} offen sc1")
            e(f"s_add_u32 s{48+it}, s{48+it}, {27*1024}")
    set_flag(k, FLS, "s45", FW - FX, "v7", "v8")
    e("s_cmp_ge_u32 s32, 4"); e("s_cbranch_scc1 m_hG")
    conv_params(k)
    e("s_barrier")
    e("s_branch m_Lpost")
    k.label("m_hG")
    e("s_barrier")
    e("s_branch m_P2")

if __name__ == "__main__":
    import sys
    NAME = "parallel_sum__ssm_conv_s4d__mixer_gmlp__prompt"
    path = sys.argv[1] if len(sys.argv) > 1 else f"cdna_kernels/{NAME}.s"
    t, kd = gen_mega(NAME + "_kernel")
    hdr = open(f"cdna_kernels/{NAME}.s.ref").read().split("; Override launch")[0]
    lst = os.environ.get("LIST", "0") == "1"
    out = hdr + (f"; @launch kernel={NAME}_kernel grid=(256,1,1) block=(512,1,1) lds={LDS_TOTAL}\n" if lst else f"; @launch grid=(256,1,1) block=(512,1,1) lds={LDS_TOTAL}\n")
    out += '.amdgcn_target "amdgcn-amd-amdhsa--gfx950"\n.text\n' + t + '\n.section .rodata,"a"\n.p2align 6\n' + kd + "\n"
    open(path, "w").write(out)
```

```python
import struct, os
PROFILE = int(os.environ.get('PROFILE', '0'))
def f32(x): return "0x%08x" % struct.unpack("<I", struct.pack("<f", x))[0]

class Kern:
    def __init__(self, name):
        self.name = name; self.lines = []; self.vm = []; self.lg = []; self.nlab = 0
        self.maxv = 0
    def e(self, s):
        self.lines.append("    " + s)
    def c(self, s): self.lines.append("    ; " + s)
    def label(self, l): self.lines.append(l + ":")
    def newlabel(self, base="L"):
        self.nlab += 1; return f"{self.name}_{base}{self.nlab}"
    def vmem(self, s, tag=None):
        self.e(s); self.vm.append(tag)
    def wait_vm(self, tag):
        idx = max(i for i, t in enumerate(self.vm) if t == tag)
        n = len(self.vm) - 1 - idx
        assert n <= 63
        self.e(f"s_waitcnt vmcnt({n})"); self.vm = self.vm[idx + 1:]
    def wait_vm_all(self):
        self.e("s_waitcnt vmcnt(0)"); self.vm = []
    def lds(self, s, tag=None):
        self.e(s); self.lg.append(tag)
    def wait_lg(self, tag):
        idxs = [i for i, t in enumerate(self.lg) if t == tag]
        if not idxs: return
        idx = max(idxs)
        n = min(len(self.lg) - 1 - idx, 15)
        self.e(f"s_waitcnt lgkmcnt({n})"); self.lg = self.lg[len(self.lg) - n:] if n else []
    def wait_lg_all(self):
        self.e("s_waitcnt lgkmcnt(0)"); self.lg = []
    def batch(self, seqs):
        n = max(len(s) for s in seqs)
        for i in range(n):
            for s in seqs:
                if i < len(s) and s[i]: self.e(s[i])
    def srd(self, d, lo, hi, nbytes, add=0):
        if add:
            self.e(f"s_add_u32 s{d}, s{lo}, {add}")
            self.e(f"s_addc_u32 s{d+1}, s{hi}, 0")
        else:
            self.e(f"s_mov_b32 s{d}, s{lo}")
            self.e(f"s_mov_b32 s{d+1}, s{hi}")
        self.e(f"s_mov_b32 s{d+2}, {nbytes}")
        self.e(f"s_mov_b32 s{d+3}, 0x00020000")
    def stamp(self, idx):
        if not PROFILE: return
        self.e("s_memrealtime s[94:95]"); self.e("s_waitcnt lgkmcnt(0)"); self.e(f"s_mov_b32 s{76+idx}, s94")
        self.lg = []
    def cyc(self, idx):
        if not PROFILE: return
        self.e("s_memtime s[94:95]"); self.e("s_waitcnt lgkmcnt(0)"); self.e(f"s_mov_b32 s{76+idx}, s94")
    def stamp_init(self):
        if not PROFILE: return
        for i in range(16): self.e(f"s_mov_b32 s{76+i}, 0")
        self.stamp(0)
    def end(self, kidx, wave_s="s32"):
        if PROFILE == 2:
            e = self.e
            self.stamp(15)
            lab = self.newlabel("dbg")
            e("s_cmp_lg_u32 s2, 9"); e(f"s_cbranch_scc1 {lab}")
            e(f"s_cmp_lg_u32 {wave_s}, 4"); e(f"s_cbranch_scc1 {lab}")
            e("s_mov_b64 exec, 1")
            e("s_load_dwordx2 s[92:93], s[0:1], 104"); e("s_waitcnt lgkmcnt(0)")
            self.srd(72, 92, 93, 256)
            e("v_mov_b32 v1, 0")
            for i in range(1, 16):
                e(f"s_sub_u32 s92, s{76+i}, s76"); e(f"v_mov_b32 v0, s92"); e(f"buffer_store_dword v0, v1, s[72:75], 0 offen offset:{4*i}")
            self.label(lab)
        elif PROFILE:
            e = self.e
            self.stamp(15)
            e("s_getreg_b32 s90, hwreg(HW_REG_HW_ID)")
            e("s_mov_b64 exec, 1")
            e("s_load_dwordx2 s[92:93], s[0:1], 112"); e("s_waitcnt lgkmcnt(0)")
            self.srd(72, 92, 93, 1 << 20, 32 << 20)
            e(f"s_lshl_b32 s92, s2, 4"); e(f"s_add_u32 s92, s92, {wave_s}"); e(f"s_add_u32 s92, s92, {kidx*4096}"); e("s_lshl_b32 s92, s92, 6")
            e("v_mov_b32 v1, 0")
            for i in range(16):
                e(f"v_mov_b32 v0, s{76+i}"); e(f"buffer_store_dword v0, v1, s[72:75], s92 offen offset:{4*i}")
        self.e("s_endpgm")
    def text(self, nvgpr, nsgpr=96, accum=None):
        acc = accum if accum is not None else ((nvgpr + 3) // 4) * 4
        head = [f".globl {self.name}", ".p2align 8", f".type {self.name},@function", f"{self.name}:"]
        kd = [".amdhsa_kernel " + self.name,
              f"  .amdhsa_next_free_vgpr {nvgpr}", f"  .amdhsa_next_free_sgpr {nsgpr}", f"  .amdhsa_accum_offset {acc}",
              "  .amdhsa_group_segment_fixed_size 0", "  .amdhsa_kernarg_size 120", "  .amdhsa_user_sgpr_count 2",
              "  .amdhsa_user_sgpr_kernarg_segment_ptr 1", "  .amdhsa_system_sgpr_workgroup_id_x 1",
              "  .amdhsa_float_denorm_mode_32 3",
              ".end_amdhsa_kernel"]
        return "\n".join(head + self.lines), "\n".join(kd)

def v(n, cnt=1): return f"v{n}" if cnt == 1 else f"v[{n}:{n+cnt-1}]"
def s(n, cnt=1): return f"s{n}" if cnt == 1 else f"s[{n}:{n+cnt-1}]"
```

```python
from mega_common import *
FLS = 60
WS_KC = 26*MB
KC_BYTES = 640 * 1536

def conv_params(k):
    e = k.e
    e("s_load_dwordx8 s[44:51], s[0:1], 8")
    e("s_load_dwordx4 s[52:55], s[0:1], 40")
    e("s_lshl_b32 s34, s2, 1"); e("s_add_u32 s34, s34, s32")
    e("s_lshl_b32 s56, s41, 4"); e("s_lshr_b32 s57, s42, 1"); e("s_add_u32 s56, s56, s57"); e("s_add_u32 s56, s56, 512")
    e("s_bitcmp1_b32 s42, 0"); e("s_cselect_b32 s56, s56, 1000")
    e("s_cmp_eq_u32 s32, 2"); e("s_cselect_b32 s34, s56, s34")
    e("s_cmp_eq_u32 s32, 3"); e("s_cselect_b32 s34, 1000, s34")
    e("s_lshl_b32 s56, s34, 8"); e("s_lshl_b32 s57, s34, 1")
    e("v_lshlrev_b32 v4, 2, v1"); e("v_mov_b32 v5, 0")
    e("s_waitcnt lgkmcnt(0)")
    for a in range(4):
        k.srd(28, 44+2*a, 45+2*a, 640*256)
        e(f"buffer_load_dword v{164+a}, v4, s[28:31], s56 offen")
    k.srd(28, 52, 53, 1280); e("buffer_load_ushort v13, v5, s[28:31], s57 offen")
    k.srd(28, 54, 55, 1280); e("buffer_load_ushort v14, v5, s[28:31], s57 offen")

def gen_mega(name):
    k = Kern(name)
    e = k.e
    e("s_cmp_ge_u32 s2, 256"); e("s_cbranch_scc1 m_end")
    k.stamp_init()
    e("s_load_dwordx2 s[4:5], s[0:1], 0")
    e("s_load_dwordx4 s[8:11], s[0:1], 64")
    e("s_load_dwordx4 s[12:15], s[0:1], 104")
    e("s_load_dwordx4 s[96:99], s[0:1], 88")
    e("v_and_b32 v1, 63, v0")
    e("v_lshrrev_b32 v2, 6, v0")
    e("s_and_b32 s41, s2, 7")
    e("v_readfirstlane_b32 s32, v2")
    e("s_lshr_b32 s42, s2, 3")
    e("s_and_b32 s33, s32, 3")
    e("s_cmp_ge_u32 s42, 28"); e("s_cbranch_scc1 m_helper")
    e("s_mul_i32 s43, s42, 37"); e("s_lshr_b32 s43, s43, 8")
    e("s_mul_i32 s44, s43, 7"); e("s_sub_u32 s44, s42, s44")
    e("s_lshr_b32 s35, s41, 1"); e("s_lshl_b32 s35, s35, 2"); e("s_add_u32 s35, s35, s43")
    e("s_and_b32 s36, s41, 1"); e("s_mul_i32 s36, s36, 7"); e("s_add_u32 s36, s36, s44")
    e("s_cmp_ge_u32 s32, 4"); e("s_cbranch_scc1 m_gemm1")
    e("s_mul_i32 s45, s44, 3"); e("s_mul_i32 s46, s43, 5"); e("s_lshr_b32 s46, s46, 1"); e("s_add_u32 s45, s45, s46")
    e("s_cmp_ge_u32 s45, 20"); e("s_cselect_b32 s46, 20, 0"); e("s_sub_u32 s45, s45, s46")
    e("s_cmp_ge_u32 s45, 10"); e("s_cselect_b32 s46, 10, 0"); e("s_sub_u32 s45, s45, s46")
    e("v_and_b32 v3, 7, v1")
    e("s_lshl_b32 s39, s32, 13")
    e("s_cmp_ge_u32 s32, 2"); e("s_cbranch_scc1 m_ldB")
    e("s_lshl_b32 s43, s35, 7"); e("s_lshl_b32 s44, s32, 6"); e("s_add_u32 s43, s43, s44")
    e("v_lshrrev_b32 v2, 5, v1"); e("v_lshlrev_b32 v2, 3, v2")
    e("v_bfe_u32 v4, v1, 3, 2"); e("v_add3_u32 v2, v2, v4, s43")
    e("v_mul_u32_u24 v2, 1280, v2")
    e("v_lshrrev_b32 v4, 4, v1"); e("v_xor_b32 v3, v3, v4")
    e("v_lshl_add_u32 v4, v3, 4, v2")
    e("v_xor_b32 v3, 4, v3"); e("v_lshl_add_u32 v5, v3, 4, v2")
    for n in range(8):
        ee, b, Pp = n & 1, (n >> 1) & 1, n >> 2
        e(f"v_add_u32 v{16+n}, {(32*Pp + 4*b + 16*ee)*1280 - (n & 3)*1024}, v{4+ee}")
    e("s_waitcnt lgkmcnt(0)")
    k.srd(16, 4, 5, 2048*1280)
    e("s_mov_b32 s38, 128")
    e("s_branch m_ld")
    k.label("m_ldB")
    e("v_lshrrev_b32 v2, 3, v1"); e("v_mul_u32_u24 v2, 3456, v2")
    e("s_cmp_eq_u32 s32, 2"); e("s_cselect_b32 s44, 1664, 0")
    e("s_lshl_b32 s43, s36, 7"); e("s_add_u32 s43, s43, s44"); e("v_add_u32 v2, s43, v2")
    e("v_bfe_u32 v4, v1, 4, 1"); e("v_lshlrev_b32 v4, 1, v4"); e("v_xor_b32 v3, v3, v4")
    e("v_lshl_add_u32 v4, v3, 4, v2")
    e("v_xor_b32 v3, 4, v3"); e("v_lshl_add_u32 v5, v3, 4, v2")
    for n in range(8):
        e(f"v_add_u32 v{16+n}, {8*n*3456 - (n & 3)*1024}, v{4+(n & 1)}")
    e("s_waitcnt lgkmcnt(0)")
    k.srd(16, 8, 9, 640*3456)
    e(f"s_mov_b32 s38, {64*3456}")
    k.label("m_ld")
    e("s_mul_i32 s37, s45, s38"); e("s_mul_i32 s46, s38, 10"); e("s_mov_b32 s40, 0")
    k.label("m_ldloop")
    e("s_cmp_lt_u32 s40, 3"); e("s_cbranch_scc1 m_ldissue")
    e("s_waitcnt vmcnt(16)")
    e("s_barrier")
    k.label("m_ldissue")
    for g in range(2):
        e(f"s_add_u32 m0, s39, {g*4096}")
        e("s_nop 0")
        for n in range(4): e(f"buffer_load_dwordx4 v{16+g*4+n}, s[16:19], s37 offen offset:{n*1024} lds")
    e("s_add_u32 s39, s39, 32768"); e("s_and_b32 s39, s39, 0x1ffff")
    e("s_add_u32 s37, s37, s38"); e("s_cmp_eq_u32 s37, s46"); e("s_cselect_b32 s37, 0, s37")
    e("s_add_u32 s40, s40, 1"); e("s_cmp_lt_u32 s40, 10"); e("s_cbranch_scc1 m_ldloop")
    k.stamp(1)
    conv_params(k)
    k.srd(20, 10, 11, 2048*4096)
    e("s_lshl_b32 s43, s42, 2"); e("s_add_u32 s43, s43, s32"); e(f"s_mul_i32 s43, s43, {9*1024+384}")
    e("s_lshl_b32 s44, s41, 20"); e("s_add_u32 s43, s43, s44")
    e("v_lshlrev_b32 v2, 4, v1")
    def pf(n):
        for i in range(n):
            e(f"buffer_load_dwordx4 v[16:19], v2, s[20:23], s43 offen offset:{(i%4)*1024}")
            if i % 4 == 3 or i == n - 1: e(f"s_add_u32 s43, s43, {(i%4+1)*1024}")
    e("s_waitcnt vmcnt(22)"); e("s_barrier"); pf(4)
    e("s_waitcnt vmcnt(18)"); e("s_barrier"); pf(6)
    e("s_waitcnt vmcnt(16)"); e("s_barrier")
    e("s_barrier")
    k.label("m_Lpost")
    k.stamp(2)
    e("v_and_b32 v2, 15, v1"); e("v_lshrrev_b32 v3, 4, v1")
    e("s_cmp_ge_u32 s34, 640"); e("s_cbranch_scc1 m_Lend")
    e("s_lshl_b32 s39, s32, 14")
    e("s_waitcnt vmcnt(10)")
    kgen(k, "s39", 164, "v13", "v2", "v3", "v1")
    k.srd(24, 14, 15, KC_BYTES, WS_KC)
    e("s_mul_i32 s43, s34, 1536")
    e("v_max_u32 v4, 1, v3"); e("v_sub_u32 v4, 5, v4")
    e("v_lshlrev_b32 v5, v4, v2")
    e("v_lshlrev_b32 v6, 3, v3")
    e("v_mov_b32 v7, 512"); e("v_cmp_eq_u32 vcc, 2, v3"); e("s_nop 1"); e("v_cndmask_b32 v6, v6, v7, vcc")
    e("v_mov_b32 v7, 768"); e("v_mov_b32 v8, 4"); e("v_mov_b32 v9, 128"); e("v_cmp_eq_u32 vcc, 3, v3"); e("s_nop 1")
    e("v_cndmask_b32 v6, v6, v7, vcc"); e("v_cndmask_b32 v8, v8, v9, vcc")
    e("v_add_u32 v5, v5, v6")
    e("v_lshlrev_b32 v6, v4, 16"); e("v_add_u32 v6, v5, v6")
    e("v_add_u32 v7, v5, v8"); e("v_add_u32 v8, v6, v8")
    for n in range(8): e(f"v_cvt_pk_bf16_f32 v{24+n}, v{136+2*n}, v{137+2*n}")
    e("buffer_store_dword v24, v5, s[24:27], s43 offen"); e("buffer_store_dword v25, v7, s[24:27], s43 offen")
    e("buffer_store_dword v26, v6, s[24:27], s43 offen"); e("buffer_store_dword v27, v8, s[24:27], s43 offen")
    e("v_lshlrev_b32 v9, 6, v2"); e("v_lshl_add_u32 v9, v3, 3, v9")
    e("v_cmp_gt_u32 vcc, 5, v2"); e("s_and_saveexec_b64 s[44:45], vcc")
    e("buffer_store_dwordx2 v[28:29], v9, s[24:27], s43 offen offset:1024")
    e("buffer_store_dwordx2 v[30:31], v9, s[24:27], s43 offen offset:1056")
    k.label("m_Lend")
    k.end(0)

    k.label("m_gemm1")
    e("v_and_b32 v2, 15, v1"); e("v_lshrrev_b32 v3, 4, v1")
    e("v_lshlrev_b32 v12, 4, v1")
    e("v_add_u32 v13, 4096, v12")
    PL = 200
    def poll_loads():
        for i in range(7):
            e(f"buffer_load_dwordx4 {v(PL+4*i,4)}, v{12 if i < 4 else 13}, s[28:31], s72 offen offset:{(i%4)*1024} sc1")
    e("v_mov_b32 v10, 0")
    e(f"v_lshlrev_b32 v4, 2, v2"); e(f"v_add_u32 v4, {W_EPOCH}, v4")
    e("ds_write_b32 v4, v10")
    e("s_waitcnt lgkmcnt(0)")
    k.srd(64, 12, 13, 256)
    e("s_cmp_lg_u32 s2, 0"); e("s_cbranch_scc1 m_noep")
    e("s_cmp_lg_u32 s32, 4"); e("s_cbranch_scc1 m_noep")
    e("s_memrealtime s[44:45]"); e("s_waitcnt lgkmcnt(0)"); e("s_or_b32 s44, s44, 1"); e("v_mov_b32 v4, s44")
    e("s_mov_b64 exec, 1")
    e("buffer_store_dword v4, v10, s[64:67], 0 offen sc1")
    e("s_mov_b64 exec, -1")
    k.label("m_noep")
    e("s_lshl_b32 s43, s35, 2"); e("s_add_u32 s43, s43, s33"); e(f"s_mul_i32 s72, s43, {14*512}")
    e("s_lshl_b32 s44, s36, 9"); e("s_add_u32 s73, s72, s44")
    e("s_lshl_b32 s74, s36, 6"); e("s_add_u32 s74, s74, s43"); e("s_lshl_b32 s74, s74, 2")
    e("v_and_b32 v4, 7, v1"); e("v_lshl_add_u32 v4, v3, 3, v4"); e("v_bfe_u32 v5, v1, 3, 1"); e("v_lshlrev_b32 v5, 3, v5")
    e("v_lshl_add_u32 v230, v4, 4, v5")
    k.srd(28, 14, 15, ST2_BYTES, WS_ST2)
    k.srd(24, 14, 15, ZF_BYTES, WS_Z2F)
    k.srd(20, 14, 15, ZF_BYTES, WS_Z1F)
    k.srd(FLS, 14, 15, FL_BYTES, WS_FL)
    for c in range(4):
        e(f"s_xor_b32 s43, s33, {c}")
        e("s_lshl_b32 s44, s36, 2"); e("s_add_u32 s43, s43, s44"); e("s_sub_u32 s43, s43, 2")
        e(f"s_cmp_lt_u32 s43, 54"); e(f"s_cselect_b32 s{50+c}, -1, 0")
        e("s_cselect_b32 s43, s43, 60")
        e(f"s_lshl_b32 s{46+c}, s43, 16")
        e("s_lshl_b32 s44, s35, 2"); e("s_add_u32 s44, s44, s33"); e("s_lshl_b32 s44, s44, 10")
        e(f"s_add_u32 s{46+c}, s{46+c}, s44")
    for b in range(2):
        for g in range(2):
            e("s_lshr_b32 s43, s33, 1"); e(f"s_xor_b32 s43, s43, {g}"); e("s_lshl_b32 s44, s36, 1"); e("s_add_u32 s43, s43, s44")
            e("s_lshl_b32 s44, s35, 3"); e("s_lshl_b32 s45, s33, 1"); e("s_add_u32 s44, s44, s45"); e(f"s_add_u32 s44, s44, {b}")
            e("s_mul_i32 s44, s44, 27"); e("s_add_u32 s44, s44, s43"); e("s_lshl_b32 s44, s44, 10")
            e("s_cmp_lt_u32 s43, 27"); e(f"s_cselect_b32 s{68+b*2+g}, s44, {HUGE}")
    e("v_and_b32 v4, 2, v1"); e("v_and_b32 v5, 1, v1")
    e("v_cmp_ne_u32 s[54:55], 0, v4"); e("v_cmp_ne_u32 s[56:57], 0, v5")
    e("s_lshl_b32 s43, s33, 5")
    e("v_add_u32 v4, s43, v2"); e("v_lshlrev_b32 v4, 7, v4")
    e("v_lshrrev_b32 v5, 1, v2"); e("v_xor_b32 v5, v5, v3")
    e("v_lshl_add_u32 v14, v5, 4, v4")
    e("v_xor_b32 v15, 64, v14")
    e("v_bfe_u32 v4, v1, 2, 2")
    e("v_lshl_add_u32 v5, v3, 3, v4"); e("v_lshlrev_b32 v5, 7, v5")
    e("v_and_b32 v6, 3, v1"); e("v_lshl_add_u32 v5, v6, 3, v5")
    e("v_add_u32 v5, 16384, v5")
    e("v_lshrrev_b32 v6, 1, v4"); e("v_and_b32 v7, 1, v3"); e("v_lshl_or_b32 v6, v7, 1, v6")
    e("v_xor_b32 v6, s33, v6")
    for c in range(4):
        e(f"v_xor_b32 v7, {c}, v6"); e(f"v_lshl_add_u32 v{16+c}, v7, 5, v5")
    for i in range(4): e(f"v_mov_b32 v{20+i}, 0x3f803f80")
    ACC = 104
    for i in range(ACC, 192): e(f"v_mov_b32 v{i}, 0")
    def xf(ks, b): return v(24 + 40*ks + 4*b, 4)
    def wfb(ks, h, c): return 24 + 40*ks + 8 + 16*h + 4*c
    def wf(ks, h, c): return v(wfb(ks, h, c), 4)
    def accb(h, b, c): return ACC + 32*h + (b*4 + c)*4
    def acc(h, b, c): return v(accb(h, b, c), 4)
    def rlist(ks):
        L = [f"ds_read_b128 {xf(ks,b)}, v{14+ks} offset:{2048*b}" for b in range(2)]
        for h in range(2):
            for c in range(4):
                for hh in range(2):
                    L.append(f"ds_read_b64_tr_b16 {v(wfb(ks,h,c)+2*hh,2)}, v{16+c} offset:{h*8192+ks*4096+hh*512}")
        return L
    def mlist(ks):
        L = []
        for b in range(2):
            L.append(f"{MFMA} {v(168+4*b,4)}, v[20:23], {xf(ks,b)}, {v(168+4*b,4)}")
            L.append(f"{MFMA} {v(176+4*b,4)}, {xf(ks,b)}, {xf(ks,b)}, {v(176+4*b,4)}")
        for h in range(2):
            L.append(f"{MFMA} {v(184+4*h,4)}, v[20:23], {wf(ks,h,0)}, {v(184+4*h,4)}")
            for c in range(4):
                for b in range(2):
                    if h == 0: L.append(f"{MFMA} {acc(h,b,c)}, {xf(ks,b)}, {wf(ks,h,c)}, {acc(h,b,c)}")
                    else:      L.append(f"{MFMA} {acc(h,b,c)}, {wf(ks,h,c)}, {xf(ks,b)}, {acc(h,b,c)}")
        return L
    def phase(ks, rd, extra=()):
        M = mlist(ks); R = list(rd); X = list(extra)
        for i, m in enumerate(M):
            e(m)
            if R: e(R.pop(0))
            elif X:
                for _ in range(2):
                    if X: e(X.pop(0))
        for x in X: e(x)
    bump = [f"v_add_u32 v{r}, 0x8000, v{r}" for r in range(14, 20)]
    wrap = [f"v_and_b32 v{r}, 0x1ffff, v{r}" for r in range(14, 20)]
    k.stamp(1)
    e("s_mov_b32 s40, 10")
    e("s_barrier")
    k.stamp(2)
    for r in rlist(0): e(r)
    k.label("m_loop1")
    e("s_waitcnt lgkmcnt(0)")
    phase(0, rlist(1), bump + wrap)
    e("s_sub_u32 s40, s40, 1"); e("s_cmp_eq_u32 s40, 0")
    e("s_waitcnt lgkmcnt(0)")
    e(f"s_cbranch_scc1 m_tail1")
    e("s_barrier")
    phase(1, rlist(0))
    e("s_cmp_lg_u32 s40, 5"); e("s_cbranch_scc1 m_loop1")
    e("s_cmp_lg_u32 s33, 0"); e("s_cbranch_scc1 m_loop1")
    e("buffer_load_dword v11, v10, s[64:67], 0 offen sc1")
    e(f"s_branch m_loop1")
    k.label(f"m_tail1")
    phase(1, [])
    e("s_setprio 2")
    k.stamp(3)
    e("s_lshl_b32 s43, s33, 6"); e(f"s_add_u32 s43, s43, {MISC+1024}")
    e("v_lshl_add_u32 v8, v2, 2, s43")
    e("v_and_b32 v4, 3, v1")
    e("v_cmp_eq_u32 s[44:45], 1, v4"); e("v_cmp_eq_u32 s[58:59], 2, v4"); e("v_cmp_eq_u32 vcc, 3, v4")
    e("s_nop 2")
    e("ds_write_b32 v8, v184"); e("ds_write_b32 v8, v188 offset:256")
    e(f"v_mov_b32 v9, {W_EPOCH}")
    def epoch_poll(tag):
        e("s_mov_b32 s40, 0")
        k.label(f"m_eppoll{tag}")
        e("s_waitcnt vmcnt(0)")
        e("v_readfirstlane_b32 s43, v11")
        e("s_add_u32 s40, s40, 1")
        e("s_cmp_lg_u32 s43, 0"); e(f"s_cbranch_scc1 m_epok{tag}")
        e("buffer_load_dword v11, v10, s[64:67], 0 offen sc1")
        e(f"s_cmp_lt_u32 s40, {SPIN}"); e(f"s_cbranch_scc1 m_eppoll{tag}")
        k.label(f"m_epok{tag}")
        e("ds_write_b32 v9, v11")
    e("s_cmp_lg_u32 s33, 0"); e("s_cbranch_scc1 m_epdone")
    epoch_poll("g")
    k.label("m_epdone")
    e("s_waitcnt lgkmcnt(0)")
    e("s_barrier")
    for b in range(2):
        q0 = 176 + 4*b
        e(f"v_cndmask_b32 v{q0}, v{q0}, v{q0+1}, s[44:45]"); e(f"v_cndmask_b32 v{q0}, v{q0}, v{q0+2}, s[58:59]"); e(f"v_cndmask_b32 v{q0}, v{q0}, v{q0+3}, vcc")
        e(f"v_mul_f32 v{168+4*b}, {f32(1/640)}, v{168+4*b}")
        e(f"v_mul_f32 v{q0}, {f32(1/640)}, v{q0}")
        e(f"v_fma_f32 v{q0}, -v{168+4*b}, v{168+4*b}, v{q0}")
    for c in range(4):
        e(f"s_xor_b32 s43, s33, {c}"); e(f"s_lshl_b32 s43, s43, 6"); e(f"s_add_u32 s43, s43, {MISC+1024}")
        e(f"v_lshl_add_u32 v5, v2, 2, s43"); e(f"v_lshl_add_u32 v6, v3, 4, s43")
        e(f"ds_read_b32 v{40+2*c}, v5")
        e(f"ds_read_b128 {v(64+4*c,4)}, v6 offset:256")
    e("ds_read_b32 v229, v9")
    for b in range(2): ln_finish(k, f"v{168+4*b}", f"v{176+4*b}", "v7")
    e("s_lshl_b32 s43, s33, 7"); e(f"s_add_u32 s43, s43, {MISC}")
    e("v_lshl_add_u32 v7, v2, 2, s43")
    e("v_lshl_add_u32 v8, v3, 4, s43")
    e("v_lshrrev_b32 v4, 2, v2")
    e("v_cmp_eq_u32 vcc, v4, v3")
    e("s_and_saveexec_b64 s[44:45], vcc")
    for b in range(2):
        e(f"ds_write_b32 v7, v{168+4*b} offset:{64*b}"); e(f"ds_write_b32 v7, v{176+4*b} offset:{512+64*b}")
    e("s_mov_b64 exec, s[44:45]")
    e("ds_read_b128 v[24:27], v8"); e("ds_read_b128 v[28:31], v8 offset:64")
    e("ds_read_b128 v[32:35], v8 offset:512"); e("ds_read_b128 v[36:39], v8 offset:576")
    e("ds_read_b32 v80, v7"); e("ds_read_b32 v82, v7 offset:64"); e("ds_read_b32 v84, v7 offset:512"); e("ds_read_b32 v86, v7 offset:576")
    e(f"v_mov_b32 v88, {f32(GC1)}"); e(f"v_mov_b32 v90, {f32(GC0)}")
    for i in range(168, 184): e(f"v_mov_b32 v{i}, 0")
    e("s_waitcnt lgkmcnt(0)")
    e("v_readfirstlane_b32 s3, v229")
    def gelu_pairs(A):
        n = len(A); T = [48 + 2*i for i in range(n)]
        for i in range(n): e(f"v_cvt_pk_bf16_f32 v{T[i]}, v{A[i]}, v{A[i]+1}")
        for i in range(n): unpack(k, f"v{A[i]}", f"v{A[i]+1}", f"v{T[i]}")
        for i in range(n): e(f"v_pk_mul_f32 {pr(T[i])}, {pr(A[i])}, {pr(A[i])}")
        for i in range(n): e(f"v_pk_fma_f32 {pr(T[i])}, {pr(T[i])}, v[88:89], v[90:91] op_sel_hi:[1,0,0]")
        for i in range(n): e(f"v_pk_mul_f32 {pr(T[i])}, {pr(T[i])}, {pr(A[i])}")
        for i in range(n): e(f"v_exp_f32 v{T[i]}, v{T[i]}"); e(f"v_exp_f32 v{T[i]+1}, v{T[i]+1}")
        for i in range(n): e(f"v_pk_add_f32 {pr(T[i])}, {pr(T[i])}, 1.0 op_sel_hi:[1,0]")
        for i in range(n): e(f"v_rcp_f32 v{T[i]}, v{T[i]}"); e(f"v_rcp_f32 v{T[i]+1}, v{T[i]+1}")
        for i in range(n): e(f"v_pk_mul_f32 {pr(A[i])}, {pr(A[i])}, {pr(T[i])}")
    for c0 in (0, 2):
        A = [accb(0, b, c) + 2*p for c in (c0, c0+1) for b in range(2) for p in range(2)]
        M = [24 + 4*b + 2*p for c in (c0, c0+1) for b in range(2) for p in range(2)]
        C = [40 + 2*c for c in (c0, c0+1) for b in range(2) for p in range(2)]
        for i in range(8): e(f"v_pk_fma_f32 {pr(A[i])}, {pr(M[i])}, {pr(C[i])}, {pr(A[i])} op_sel_hi:[1,0,1] neg_lo:[1,0,0] neg_hi:[1,0,0]")
        for i in range(8): e(f"v_pk_mul_f32 {pr(A[i])}, {pr(A[i])}, {pr(M[i]+8)}")
        gelu_pairs(A)
        for i in range(8): e(f"v_cvt_pk_bf16_f32 v{48+i}, v{A[i]}, v{A[i]+1}")
        for i in range(8): e(f"v_and_b32 v{48+i}, s{50+c0+i//4}, v{48+i}")
        for i in range(8): unpack(k, f"v{A[i]}", f"v{A[i]+1}", f"v{48+i}")
        for i in range(8):
            n = (i % 4) * 2
            e(f"v_pk_add_f32 {pr(168+n)}, {pr(168+n)}, {pr(A[i])}")
            e(f"v_pk_fma_f32 {pr(176+n)}, {pr(A[i])}, {pr(A[i])}, {pr(176+n)}")
    e("s_nop 0")
    for n in range(8): e(f"v_add_f32_dpp v{48+n}, v{168+n}, v{168+n} row_ror:8 row_mask:0xf bank_mask:0x3")
    for n in range(8): e(f"v_add_f32_dpp v{48+n}, v{176+n}, v{176+n} row_ror:8 row_mask:0xf bank_mask:0xc")
    for n in range(4): e(f"v_add_f32_dpp v{168+n}, v{48+n}, v{48+n} row_half_mirror row_mask:0xf bank_mask:0x5")
    for n in range(4): e(f"v_add_f32_dpp v{168+n}, v{52+n}, v{52+n} row_half_mirror row_mask:0xf bank_mask:0xa")
    for n in range(2):
        e(f"v_cndmask_b32 v{172+n}, v{170+n}, v{168+n}, s[54:55]")
        e(f"v_cndmask_b32 v{174+n}, v{168+n}, v{170+n}, s[54:55]")
    e("s_nop 0")
    for n in range(2): e(f"v_add_f32_dpp v{176+n}, v{172+n}, v{174+n} quad_perm:[2,3,0,1] row_mask:0xf bank_mask:0xf")
    e("v_cndmask_b32 v172, v177, v176, s[56:57]"); e("v_cndmask_b32 v174, v176, v177, s[56:57]")
    e("s_nop 1")
    e("v_add_f32_dpp v228, v172, v174 quad_perm:[1,0,3,2] row_mask:0xf bank_mask:0xf")
    e("buffer_store_dwordx2 v[228:229], v230, s[28:31], s73 offen sc1")
    k.stamp(4)
    P1 = 168
    for c0 in (0, 2):
        A = [accb(1, b, c) + 2*p for c in (c0, c0+1) for b in range(2) for p in range(2)]
        M = [80 + 2*b for c in (c0, c0+1) for b in range(2) for p in range(2)]
        C = [64 + 4*c + 2*p for c in (c0, c0+1) for b in range(2) for p in range(2)]
        for i in range(8): e(f"v_pk_fma_f32 {pr(A[i])}, {pr(M[i])}, {pr(C[i])}, {pr(A[i])} op_sel_hi:[0,1,1] neg_lo:[1,0,0] neg_hi:[1,0,0]")
        for i in range(8): e(f"v_pk_mul_f32 {pr(A[i])}, {pr(A[i])}, {pr(M[i]+4)} op_sel_hi:[1,0]")
        gelu_pairs(A)
        i = 0
        for c in (c0, c0+1):
            for b in range(2):
                for p in range(2):
                    e(f"v_cvt_pk_bf16_f32 v{P1+b*8+c*2+p}, v{A[i]}, v{A[i]+1}"); i += 1
        if c0 == 0: poll_loads()
    e("s_bitcmp1_b32 s33, 0"); e("s_cbranch_scc0 m_noswap")
    for b in range(2):
        for g in range(2):
            for p in range(2):
                r0 = P1 + b*8 + g*4 + p
                e(f"v_swap_b32 v{r0}, v{r0+2}")
    k.label("m_noswap")
    e("s_mov_b32 s40, 0")
    e("s_waitcnt vmcnt(0)")
    for b in range(2):
        for g in range(2):
            e(f"buffer_store_dwordx4 {v(P1+b*8+g*4,4)}, v12, s[20:23], s{68+b*2+g} offen sc1")
    e("s_branch m_check")
    k.label("m_poll")
    poll_loads()
    e("s_waitcnt vmcnt(0)")
    k.label("m_check")
    e(f"v_xor_b32 v4, v{PL+1}, v229"); e(f"v_xor_b32 v5, v{PL+3}, v229")
    for i in range(1, 7):
        e(f"v_xor_b32 v9, v{PL+1+4*i}, v229"); e(f"v_xor_b32 v10, v{PL+3+4*i}, v229")
        e("v_or3_b32 v4, v4, v9, v10")
    e("v_or_b32 v4, v4, v5")
    e("v_cmp_ne_u32 vcc, 0, v4")
    e("s_add_u32 s40, s40, 1")
    e("s_nop 0")
    e("s_cbranch_vccz m_poll_done")
    e(f"s_cmp_lt_u32 s40, {SPIN}"); e("s_cbranch_scc1 m_poll")
    k.label("m_poll_done")
    k.stamp(5)
    for i in range(1, 7):
        e(f"v_add_f32 v{PL}, v{PL}, v{PL+4*i}"); e(f"v_add_f32 v{PL+2}, v{PL+2}, v{PL+2+4*i}")
    e(f"v_mov_b32 v{PL+1}, v{PL}"); e(f"v_mov_b32 v{PL+3}, v{PL+2}"); e("s_nop 1")
    e(f"v_permlane32_swap_b32 v{PL}, v{PL+1}"); e(f"v_permlane32_swap_b32 v{PL+2}, v{PL+3}"); e("s_nop 1")
    e(f"v_add_f32 v24, v{PL}, v{PL+1}"); e(f"v_add_f32 v26, v{PL+2}, v{PL+3}")
    e(f"v_mul_f32 v24, {f32(1/864)}, v24"); e(f"v_mul_f32 v26, {f32(1/864)}, v26")
    e("v_fma_f32 v26, -v24, v24, v26")
    ln_finish(k, "v24", "v26", "v25")
    e("s_lshl_b32 s43, s33, 8"); e(f"s_add_u32 s43, s43, {MISC+1536}")
    e("v_and_b32 v4, 31, v1"); e("v_lshl_add_u32 v4, v4, 2, s43"); e("v_lshl_add_u32 v5, v3, 5, s43")
    e("ds_write_b32 v4, v24"); e("ds_write_b32 v4, v26 offset:128")
    e("ds_read_b128 v[28:31], v5"); e("ds_read_b128 v[32:35], v5 offset:16")
    e("ds_read_b128 v[36:39], v5 offset:128"); e("ds_read_b128 v[40:43], v5 offset:144")
    e("s_waitcnt lgkmcnt(0)")
    for c0 in (0, 2):
        A = [accb(0, b, c) + 2*p for c in (c0, c0+1) for b in range(2) for p in range(2)]
        M = [28 + (i % 4)*2 for i in range(8)]
        for i in range(8): e(f"v_pk_add_f32 {pr(A[i])}, {pr(A[i])}, {pr(M[i])} neg_lo:[0,1] neg_hi:[0,1]")
        for i in range(8): e(f"v_cvt_pk_bf16_f32 v{48+i}, v{A[i]}, v{A[i]+1}")
        for i in range(8): unpack(k, f"v{A[i]}", f"v{A[i]+1}", f"v{48+i}")
        for i in range(8): e(f"v_pk_mul_f32 {pr(A[i])}, {pr(A[i])}, {pr(M[i]+8)}")
        for i in range(8): e(f"v_cvt_pk_bf16_f32 v{64+4*c0+i}, v{A[i]}, v{A[i]+1}")
        for c in (c0, c0+1): e(f"buffer_store_dwordx4 {v(64+4*c,4)}, v12, s[24:27], s{46+c} offen sc1")
    k.end(0)
    gen_helper(k, epoch_poll)
    k.label("m_end")
    e("s_endpgm")
    return k.text(232, nsgpr=100)

def gen_b(name):
    k = Kern(name)
    e = k.e
    e("s_cmp_ge_u32 s2, 256"); e("s_cbranch_scc1 b_end")
    k.stamp_init()
    e("s_load_dwordx2 s[4:5], s[0:1], 0")
    e("s_load_dwordx4 s[8:11], s[0:1], 64")
    e("s_load_dwordx4 s[12:15], s[0:1], 104")
    e("s_load_dwordx4 s[96:99], s[0:1], 88")
    e("s_load_dwordx2 s[54:55], s[0:1], 48")
    e("v_and_b32 v1, 63, v0")
    e("v_lshrrev_b32 v2, 6, v0")
    e("s_and_b32 s41, s2, 7")
    e("v_readfirstlane_b32 s32, v2")
    e("s_lshr_b32 s42, s2, 3")
    e("s_and_b32 s33, s32, 3")
    e("v_and_b32 v2, 15, v1"); e("v_lshrrev_b32 v3, 4, v1")
    e("s_lshr_b32 s35, s41, 1"); e("s_lshl_b32 s35, s35, 3"); e("s_lshr_b32 s43, s42, 2"); e("s_add_u32 s35, s35, s43")
    e("s_waitcnt lgkmcnt(0)")
    k.srd(FLS, 14, 15, FL_BYTES, WS_FL)
    e("s_cmp_ge_u32 s32, 4"); e("s_cbranch_scc1 m_P2")
    e("s_cmp_lg_u32 s32, 3"); e("s_cbranch_scc1 b_conv")
    e("v_mov_b32 v10, 0"); e(f"v_lshlrev_b32 v4, 2, v2"); e(f"v_add_u32 v4, {W_EPOCH}, v4")
    e("ds_write_b32 v4, v10")
    e("s_waitcnt lgkmcnt(0)")
    e("s_barrier")
    k.end(1)
    k.label("b_conv")
    e("s_lshl_b32 s34, s2, 1"); e("s_add_u32 s34, s34, s32")
    e("s_lshl_b32 s56, s41, 4"); e("s_lshr_b32 s57, s42, 1"); e("s_add_u32 s56, s56, s57"); e("s_add_u32 s56, s56, 512")
    e("s_bitcmp1_b32 s42, 0"); e("s_cselect_b32 s56, s56, 1000")
    e("s_cmp_eq_u32 s32, 2"); e("s_cselect_b32 s34, s56, s34")
    e(f"s_mul_i32 s39, s32, {CONV_B}"); e(f"s_add_u32 s39, s39, {CONV0}")
    UO, KC = 8320, 12928
    e("v_lshlrev_b32 v15, 4, v1"); e("v_mov_b32 v5, 0")
    e("s_mul_i32 s43, s34, 1536"); e("s_lshl_b32 s44, s34, 1"); e("s_lshl_b32 s45, s34, 12")
    e(f"s_add_u32 m0, s39, {KC}")
    k.srd(28, 14, 15, KC_BYTES, WS_KC)
    e("buffer_load_dwordx4 v15, s[28:31], s43 offen lds")
    e("s_mov_b32 exec_hi, 0")
    e("buffer_load_dwordx4 v15, s[28:31], s43 offen offset:1024 lds")
    e("s_mov_b64 exec, -1")
    k.srd(20, 14, 15, XT_BYTES, WS_XNT)
    k.srd(24, 14, 15, XT_BYTES, WS_YT)
    e(f"s_add_u32 m0, s39, {UO+512}")
    k.srd(28, 54, 55, 1280)
    for n in range(4): e(f"buffer_load_dwordx4 v15, s[20:23], s45 offen offset:{n*1024} lds")
    e("buffer_load_ushort v14, v5, s[28:31], s44 offen")
    e("s_barrier")
    e("s_cmp_ge_u32 s34, 640"); e("s_cbranch_scc1 b_noconv")
    e(f"s_add_u32 s43, s39, {KC}")
    e("v_mov_b32 v20, 0"); e("v_mov_b32 v21, 0"); e("v_mov_b32 v22, 0"); e("v_mov_b32 v23, 0")
    e("v_add_u32 v16, s39, v15")
    e("v_lshl_add_u32 v17, v1, 3, s39")
    e(f"ds_write_b64 v17, v[20:21] offset:{UO}")
    e("s_mov_b64 exec, 3")
    e("ds_write_b128 v16, v[20:23] offset:4096"); e(f"ds_write_b128 v16, v[20:23] offset:{4160+4096}")
    e("s_mov_b64 exec, -1")
    e(f"s_add_u32 s44, s39, {KC + 256 - 2*0x4300}")
    e(f"v_mov_b32 v31, {f32(128.0)}")
    e("v_lshlrev_b32 v18, 3, v1"); e("v_cvt_f32_u32 v18, v18")
    k.stamp(3)
    for m in range(4):
        for el in range(10): e(f"v_sub_f32 v{96+el}, {f32(2047 - 512*m - el)}, v18")
        if m == 3: e("v_max_f32 v104, 0, v104")
        for p in range(5): e(f"v_cvt_pk_bf16_f32 v{108+p}, v{96+2*p}, v{97+2*p}")
        for el in range(9):
            a = f"v{114+el}"
            if el % 2 == 0: e(f"v_and_b32 {a}, 0xffff, v{108+el//2}")
            else: e(f"v_lshrrev_b32 {a}, 16, v{108+el//2}")
            e(f"v_lshl_add_u32 {a}, {a}, 1, s44")
            if m == 3:
                e(f"v_cvt_u32_f32 v19, v{96+el}"); e("v_lshl_add_u32 v19, v19, 1, s43")
                e(f"v_cmp_lt_f32 vcc, v{96+el}, v31"); e("s_nop 1"); e(f"v_cndmask_b32 {a}, {a}, v19, vcc")
        if m == 0: e("s_waitcnt vmcnt(5)"); k.stamp(4)
        for el in range(9): e(f"ds_read_u16 v{144+9*m+el}, v{114+el}")
    e("s_waitcnt lgkmcnt(0)")
    e("v_cmp_eq_u32 vcc, 63, v1"); e("s_nop 1"); e(f"v_cndmask_b32 v{144+35}, v{144+35}, v20, vcc")
    for m in range(4):
        W = 32 + 16*m; E = 144 + 9*m
        for p in range(4):
            e(f"v_lshl_or_b32 v{W+p}, v{E+2*p+1}, 16, v{E+2*p}")
            e(f"v_lshl_or_b32 v{W+8+p}, v{E+2*p+2}, 16, v{E+2*p+1}")
        e(f"ds_write_b128 v16, {v(W,4)} offset:{1024*m}")
        e(f"ds_write_b128 v16, {v(W+8,4)} offset:{4160+1024*m}")
    e("s_waitcnt vmcnt(0)")
    k.stamp(5)
    e("v_and_b32 v4, 1, v2"); e("v_xor_b32 v4, 1, v4"); e("v_mul_u32_u24 v4, 4160, v4")
    e("v_lshrrev_b32 v5, 1, v2"); e("v_lshlrev_b32 v6, 2, v3"); e("v_sub_u32 v5, v6, v5")
    e("v_lshl_add_u32 v4, v5, 2, v4"); e("v_add_u32 v4, s39, v4")
    for mp in range(4): e(f"v_add_u32 v{24+mp}, {4*(1023 - 8 - 128*(2*mp+1))}, v4")
    e("v_lshlrev_b32 v5, 5, v2"); e("v_lshl_add_u32 v5, v3, 4, v5")
    e(f"s_add_u32 s43, s39, {UO+480}"); e("v_add_u32 v28, s43, v5")
    def Af(m): return 32 + 4*m
    def Bf(r): return 64 + 4*r
    def ac(cb): return v(96 + 4*cb, 4)
    for i in range(32): e(f"v_mov_b32 v{96+i}, 0")
    e("v_lshlrev_b32 v14, 16, v14")
    e("s_waitcnt lgkmcnt(0)")
    def rdA(m):
        o = 0 if m & 1 else 128
        e(f"ds_read2_b32 {v(Af(m),2)}, v{24+m//2} offset0:{o} offset1:{o+1}"); e(f"ds_read2_b32 {v(Af(m)+2,2)}, v{24+m//2} offset0:{o+2} offset1:{o+3}")
    def rdB(r): e(f"ds_read_b128 {v(Bf(r),4)}, v28 offset:{512*r}")
    for m in range(8): rdA(m); rdB(7-m)
    e("s_mov_b32 s40, 8")
    k.label("m_cloop")
    for r in range(24, 29): e(f"v_subrev_u32 v{r}, 64, v{r}")
    for m in range(8):
        for cb in (range(7, -1, -1) if m == 0 else range(m, 8)):
            if m == 0: e(f"s_waitcnt lgkmcnt({min(3*cb, 15)})")
            e(f"{MFMA} {ac(cb)}, {v(Af(m),4)}, {v(Bf(cb-m),4)}, {ac(cb)}")
        rdA(m); rdB(7-m)
    e("s_sub_u32 s40, s40, 1"); e("s_cmp_lg_u32 s40, 0"); e("s_cbranch_scc1 m_cloop")
    k.stamp(6)
    e("s_waitcnt lgkmcnt(0)")
    e("v_lshlrev_b32 v20, 5, v2"); e("v_lshl_add_u32 v20, v3, 3, v20")
    e(f"s_add_u32 s43, s39, {UO+512}"); e("v_add_u32 v21, s43, v20")
    for cb in range(8): e(f"ds_read_b64 {v(32+2*cb,2)}, v21 offset:{512*cb}")
    e("s_waitcnt lgkmcnt(0)")
    for c0 in (0, 4):
        A = [96 + 4*cb + 2*p for cb in range(c0, c0+4) for p in range(2)]
        U = [32 + 2*cb + p for cb in range(c0, c0+4) for p in range(2)]
        for i in range(8): e(f"v_cvt_pk_bf16_f32 v{64+i}, v{A[i]}, v{A[i]+1}")
        for i in range(8): unpack(k, f"v{72+2*i}", f"v{73+2*i}", f"v{U[i]}")
        for i in range(8): unpack(k, f"v{A[i]}", f"v{A[i]+1}", f"v{64+i}")
        for i in range(8): e(f"v_pk_mul_f32 {pr(72+2*i)}, {pr(72+2*i)}, v[14:15] op_sel_hi:[1,0]")
        for i in range(8): e(f"v_cvt_pk_bf16_f32 v{64+i}, v{72+2*i}, v{73+2*i}")
        for i in range(8): unpack(k, f"v{72+2*i}", f"v{73+2*i}", f"v{64+i}")
        for i in range(8): e(f"v_pk_add_f32 {pr(A[i])}, {pr(A[i])}, {pr(72+2*i)}")
        for i in range(8): e(f"v_cvt_pk_bf16_f32 v{U[i]}, v{A[i]}, v{A[i]+1}")
        for cb in range(c0, c0+4): e(f"ds_write_b64 v21, {v(32+2*cb,2)} offset:{512*cb}")
    for n in range(4): e(f"ds_read_b128 {v(64+4*n,4)}, v16 offset:{UO+512+1024*n}")
    for n in range(4):
        e(f"s_waitcnt lgkmcnt({3-n})")
        e(f"buffer_store_dwordx4 {v(64+4*n,4)}, v15, s[24:27], s45 offen offset:{1024*n} sc1")
    k.label("b_noconv")
    k.end(1)
    gen_p2(k)
    k.label("b_end")
    e("s_endpgm")
    return k.text(256, nsgpr=100)

def gen_p2(k):
    e = k.e
    k.label("m_P2")
    k.stamp(6)
    e("s_load_dwordx2 s[6:7], s[0:1], 80")
    e("s_lshr_b32 s35, s41, 1"); e("s_lshl_b32 s35, s35, 3"); e("s_lshr_b32 s43, s42, 2"); e("s_add_u32 s35, s35, s43")
    e("s_and_b32 s36, s42, 3")
    e("s_and_b32 s43, s41, 1"); e("s_mul_i32 s43, s43, 27"); e("s_mul_i32 s44, s36, 7"); e("s_add_u32 s37, s43, s44")
    e("v_and_b32 v240, 15, v1"); e("v_lshrrev_b32 v241, 4, v1"); e("v_mov_b32 v245, v1")
    e("v_lshrrev_b32 v2, 5, v1"); e("v_lshlrev_b32 v2, 3, v2"); e("v_bfe_u32 v3, v1, 3, 2"); e("v_add_u32 v2, v2, v3")
    e("v_lshlrev_b32 v2, 12, v2")
    e("v_and_b32 v3, 7, v1"); e("v_xor_b32 v3, v3, v241")
    e("v_lshl_add_u32 v242, v3, 4, v2")
    e("v_xor_b32 v3, 4, v3")
    e("v_lshl_add_u32 v243, v3, 4, v2"); e(f"v_add_u32 v243, {16*4096 - 1024}, v243")
    e("v_lshlrev_b32 v244, 4, v1")
    e("s_lshl_b32 s43, s35, 18"); e("s_lshl_b32 s44, s33, 10"); e("s_add_u32 s48, s43, s44")
    e(f"s_add_u32 s49, s48, {4*4096}"); e(f"s_add_u32 s50, s48, {32*4096}"); e(f"s_add_u32 s51, s48, {36*4096}")
    e("s_lshl_b32 s43, s37, 16"); e("s_lshl_b32 s44, s33, 14"); e("s_add_u32 s52, s43, s44")
    for c in range(1, 7): e(f"s_add_u32 s{52+c}, s52, {c*65536}")
    e("s_cmp_eq_u32 s36, 3"); e(f"s_cselect_b32 s58, {HUGE}, s58")
    e(f"s_mul_i32 s39, s33, {RING2}")
    k.srd(16, 10, 11, 2048*4096)
    k.srd(20, 14, 15, ZF_BYTES, WS_Z2F)
    k.srd(24, 14, 15, ZF_BYTES, WS_Z1F)
    k.srd(28, 14, 15, ZF_BYTES, WS_HF)
    def Z(st, c): return v(112 + st*28 + c*4, 4)
    def acc(c, sg): return v((c*4 + sg)*4, 4)
    def wf(sg): return v(224 + 4*sg, 4)
    def issueZ(n):
        if n % 4 == 0 and n:
            for c in range(7): e(f"s_add_u32 s{52+c}, s{52+c}, 4096")
        for c in range(7): k.vmem(f"buffer_load_dwordx4 {Z(n%4,c)}, v244, s[20:23], s{52+c} offen offset:{(n%4)*1024} sc1", f"Z{n}")
    def issueA(c):
        for t in range(4):
            e(f"s_add_u32 m0, s39, {(c%3)*8192 + t*2048}")
            e("s_nop 0")
            k.vmem(f"buffer_load_dwordx4 v242, s[16:19], s{48+t} offen lds", f"A{c}")
            k.vmem(f"buffer_load_dwordx4 v243, s[16:19], s{48+t} offen offset:1024 lds", f"A{c}")
        for t in range(4): e(f"s_add_u32 s{48+t}, s{48+t}, 128")
    k.vm = []
    issueZ(0); issueA(0); issueZ(1)
    e("s_barrier")
    issueZ(2); issueA(1); issueZ(3); issueA(2)
    e("v_lshrrev_b32 v5, 1, v240"); e("v_xor_b32 v5, v5, v241")
    e("v_lshlrev_b32 v4, 7, v240"); e("v_lshl_add_u32 v4, v5, 4, v4"); e("v_add_u32 v4, s39, v4")
    for sg in range(4):
        e(f"s_xor_b32 s43, s33, {sg}"); e("s_lshl_b32 s43, s43, 11")
        e(f"v_add_u32 v{246+sg}, s43, v4")
        e(f"v_xor_b32 v{250+sg}, 64, v{246+sg}")
    e("s_waitcnt lgkmcnt(0)")
    k.srd(64, 6, 7, 4096)
    e("s_setprio 3")
    k.stamp(7); k.cyc(12)
    for n in range(16):
        c, ks = n >> 1, n & 1
        if ks == 0 and f"A{c}" in k.vm: k.wait_vm(f"A{c}")
        for sg in range(4):
            e(f"ds_read_b128 {wf(sg)}, v{(250 if ks else 246)+sg} offset:{(c%3)*8192}")
        if f"Z{n}" in k.vm: k.wait_vm(f"Z{n}")
        if n == 0: k.stamp(8)
        order = (1, 3, 2, 0) if n == 15 else (0, 1, 2, 3)
        for ii, sg in enumerate(order):
            if n == 15:
                if ii == 0: e("s_waitcnt lgkmcnt(0)")
            else:
                e(f"s_waitcnt lgkmcnt({3-sg})")
            if ii == 3 and ks == 1 and c + 3 < 8: issueA(c + 3)
            for cc in range(7):
                e(f"{MFMA} {acc(cc,sg)}, {Z(n%4,cc)}, {wf(sg)}, {'0' if n == 0 else acc(cc,sg)}")
        if n + 4 < 16: issueZ(n + 4)
        if n == 12:
            e("s_lshl_b32 s43, s35, 2"); e("s_add_u32 s43, s43, s33"); e("s_mul_i32 s44, s43, 27648")
            for cc in range(7):
                e(f"s_add_u32 s45, s37, {cc}"); e("s_lshr_b32 s46, s45, 1"); e("s_lshl_b32 s46, s46, 10"); e("s_and_b32 s45, s45, 1"); e("s_lshl_b32 s45, s45, 3")
                e("s_add_u32 s45, s45, s46"); e(f"s_add_u32 s{52+cc}, s45, s44")
            e("s_cmp_eq_u32 s36, 3"); e(f"s_cselect_b32 s58, {HUGE}, s58")
            for cc in range(7): k.vmem(f"buffer_load_dwordx2 {v(112+2*cc,2)}, v244, s[24:27], s{52+cc} offen sc1", "z1")
            e("s_lshr_b32 s44, s43, 1"); e("s_lshl_b32 s44, s44, 5"); e("s_and_b32 s45, s43, 1"); e("s_lshl_b32 s45, s45, 2"); e("s_add_u32 s44, s44, s45")
            e("v_lshrrev_b32 v128, 2, v240"); e("v_and_b32 v129, 3, v240"); e("v_lshl_add_u32 v128, v128, 3, v129"); e("v_add_u32 v128, s44, v128")
            e("v_lshlrev_b32 v128, 1, v128")
            k.vmem("buffer_load_ushort v126, v128, s[64:67], 0 offen", "z1")
        if n == 12:
            e("s_lshl_b32 s43, s33, 2"); e(f"s_add_u32 s43, s43, {W_GL}"); e("v_mov_b32 v254, s43"); e("v_mov_b32 v255, 1")
            e("ds_write_b32 v254, v255")
    k.stamp(9); k.cyc(13)
    e("v_add_u32 v130, s39, v244")
    e("s_xor_b32 s43, s33, 1"); e(f"s_mul_i32 s43, s43, {RING2}"); e("v_add_u32 v131, s43, v244")
    e("s_xor_b32 s43, s33, 3"); e(f"s_mul_i32 s43, s43, {RING2}"); e("v_add_u32 v132, s43, v244")
    e(f"v_add_u32 v133, {W_R1 - W_GL}, v254")
    e("v_xor_b32 v134, 4, v133"); e("v_xor_b32 v135, 8, v133"); e("v_add_u32 v135, 16, v135")
    for c in range(7):
        for h in range(2): e(f"ds_write_b128 v130, {acc(c,1+2*h)} offset:{(c*2+h)*1024}")
    e("ds_write_b32 v133, v255")
    lds_wait(k, "m_wr1", "v134", "v136")
    T = 140
    for h in (1, 0):
        for c in range(7): e(f"ds_read_b128 {v(T+(c*2+h)*4,4)}, v131 offset:{(c*2+h)*1024}")
    e("s_waitcnt lgkmcnt(7)")
    for c in range(7):
        for p in range(2):
            a = (c*4 + 2)*4 + 2*p
            e(f"v_pk_add_f32 {pr(a)}, {pr(a)}, {pr(T+(c*2+1)*4+2*p)}")
    e("s_waitcnt lgkmcnt(0)")
    for c in range(7): e(f"ds_write_b128 v131, {acc(c,2)} offset:{c*1024}")
    e("ds_write_b32 v133, v255 offset:16")
    for c in range(7):
        for p in range(2):
            a = (c*4)*4 + 2*p
            e(f"v_pk_add_f32 {pr(a)}, {pr(a)}, {pr(T+(c*2)*4+2*p)}")
    lds_wait(k, "m_wr2", "v135", "v136")
    for c in range(7): e(f"ds_read_b128 {v(T+c*4,4)}, v132 offset:{c*1024}")
    e("s_waitcnt vmcnt(0)")
    k.vm = []
    e("v_lshlrev_b32 v126, 16, v126")
    for i in range(14): unpack(k, f"v{170+2*i}", f"v{171+2*i}", f"v{112+i}")
    e("s_waitcnt lgkmcnt(0)")
    A = [c*16 + 2*p for c in range(7) for p in range(2)]
    for i in range(14): e(f"v_pk_add_f32 {pr(A[i])}, {pr(A[i])}, {pr(T+2*i)}")
    for i in range(14): e(f"v_cvt_pk_bf16_f32 v{T+i}, v{A[i]}, v{A[i]+1}")
    for i in range(14): unpack(k, f"v{A[i]}", f"v{A[i]+1}", f"v{T+i}")
    for i in range(14): e(f"v_pk_add_f32 {pr(A[i])}, {pr(A[i])}, v[126:127] op_sel_hi:[1,0]")
    for i in range(14): e(f"v_cvt_pk_bf16_f32 v{T+i}, v{A[i]}, v{A[i]+1}")
    for i in range(14): unpack(k, f"v{A[i]}", f"v{A[i]+1}", f"v{T+i}")
    for i in range(14): e(f"v_pk_mul_f32 {pr(A[i])}, {pr(A[i])}, {pr(170+2*i)}")
    for i in range(14): e(f"v_cvt_pk_bf16_f32 v{200+i}, v{A[i]}, v{A[i]+1}")
    e("s_bitcmp1_b32 s37, 0"); e("s_cbranch_scc1 m_hodd")
    for c in (0, 2, 4): e(f"buffer_store_dwordx4 {v(200+2*c,4)}, v244, s[28:31], s{52+c} offen sc1")
    e(f"buffer_store_dwordx2 {v(212,2)}, v244, s[28:31], s58 offen sc1")
    e("s_branch m_hdone")
    k.label("m_hodd")
    e(f"buffer_store_dwordx2 {v(200,2)}, v244, s[28:31], s52 offen sc1")
    for c in (1, 3): e(f"buffer_store_dwordx4 {v(200+2*c,4)}, v244, s[28:31], s{52+c} offen sc1")
    e("s_cmp_eq_u32 s36, 3"); e("s_cbranch_scc1 m_hodd6")
    e(f"buffer_store_dwordx4 {v(210,4)}, v244, s[28:31], s57 offen sc1")
    e("s_branch m_hdone")
    k.label("m_hodd6")
    e(f"buffer_store_dwordx2 {v(210,2)}, v244, s[28:31], s57 offen sc1")
    k.label("m_hdone")
    k.end(1)

K3_Y = 4 * 7 * 5120
K3_LDS = K3_Y + 12288
def gen_c(name):
    k = Kern(name); e = k.e
    e("s_cmp_ge_u32 s2, 256"); e("s_cbranch_scc1 c_end")
    k.stamp_init()
    e("s_load_dwordx2 s[4:5], s[0:1], 0")
    e("s_load_dwordx2 s[14:15], s[0:1], 112")
    e("s_load_dwordx2 s[98:99], s[0:1], 96")
    e("v_and_b32 v1, 63, v0"); e("v_lshrrev_b32 v2, 6, v0")
    e("s_and_b32 s41, s2, 7")
    e("v_readfirstlane_b32 s32, v2")
    e("s_lshr_b32 s42, s2, 3")
    e("s_and_b32 s33, s32, 3"); e("s_lshr_b32 s34, s32, 2")
    e("s_lshr_b32 s35, s41, 1"); e("s_lshl_b32 s35, s35, 3"); e("s_lshr_b32 s43, s42, 2"); e("s_add_u32 s35, s35, s43")
    e("s_and_b32 s36, s41, 1"); e("s_lshl_b32 s36, s36, 2"); e("s_and_b32 s43, s42, 3"); e("s_add_u32 s36, s36, s43")
    e("v_lshlrev_b32 v15, 4, v1")
    e("s_mul_i32 s43, s36, 135"); e("s_mul_i32 s44, s33, 7"); e("s_add_u32 s43, s43, s44"); e("s_mul_i32 s44, s34, 81"); e("s_add_u32 s43, s43, s44"); e("s_lshl_b32 s46, s43, 10")
    e(f"s_add_u32 s47, s46, {27*1024 - 1024}"); e(f"s_add_u32 s48, s46, {54*1024}")
    e("s_cmp_eq_u32 s34, 1"); e(f"s_cselect_b32 s48, {HUGE}, s48")
    e("s_mul_i32 s39, s33, 35840"); e("s_mul_i32 s43, s34, 3072"); e("s_add_u32 s39, s39, s43")
    e("s_lshl_b32 s43, s35, 2"); e("s_lshl_b32 s44, s34, 1"); e("s_add_u32 s43, s43, s44"); e("s_mul_i32 s43, s43, 27"); e("s_mul_i32 s44, s33, 7"); e("s_add_u32 s43, s43, s44")
    e("s_lshl_b32 s49, s43, 10"); e("s_add_u32 s50, s49, 27648")
    e("s_cmp_eq_u32 s33, 3"); e(f"s_cselect_b32 s45, {HUGE}, 1024")
    e("s_waitcnt lgkmcnt(0)")
    k.srd(16, 14, 15, WOF_BYTES, WS_WOF)
    k.srd(20, 14, 15, ZF_BYTES, WS_HF)
    def H(g, sg): return v(16 + (g*2 + sg)*4, 4)
    def WF(p, db): return v(72 + (p*5 + db)*4, 4)
    def acc(sg, db): return v(112 + (sg*5 + db)*4, 4)
    def issue(g):
        e("s_mov_b32 m0, s39"); e("s_add_u32 s43, s39, 2048"); e("s_cmp_eq_u32 s34, 1"); e(f"s_cselect_b32 s43, {K3_Y + 10240}, s43")
        k.vmem("buffer_load_dwordx4 v15, s[16:19], s46 offen lds", f"g{g}")
        k.vmem("buffer_load_dwordx4 v15, s[16:19], s47 offen offset:1024 lds", f"g{g}")
        e("s_mov_b32 m0, s43"); e("s_nop 0")
        k.vmem("buffer_load_dwordx4 v15, s[16:19], s48 offen lds", f"g{g}")
        for sg in range(2): k.vmem(f"buffer_load_dwordx4 {H(g,sg)}, v15, s[20:23], s{49+sg} offen", f"g{g}")
        e("s_add_u32 s39, s39, 5120")
        for r in range(46, 51): e(f"s_add_u32 s{r}, s{r}, {'s45' if g == 5 else 1024}")
    for g in range(4): issue(g)
    k.srd(24, 4, 5, 2048*1280)
    k.srd(28, 98, 99, 2048*1280)
    k.srd(64, 14, 15, XT_BYTES, WS_YT)
    e("v_and_b32 v2, 15, v1"); e("v_lshrrev_b32 v3, 4, v1")
    e("s_mul_i32 s43, s33, 35840"); e("v_add_u32 v12, s43, v15")
    e("s_and_b32 s43, s33, 1"); e("s_lshl_b32 s44, s34, 1"); e("s_add_u32 s57, s43, s44")
    e("s_lshr_b32 s58, s33, 1"); e("s_mul_i32 s58, s58, 3")
    e("s_lshr_b32 s43, s57, 1"); e("s_lshl_b32 s43, s43, 5"); e("s_and_b32 s44, s57, 1"); e("s_lshl_b32 s44, s44, 2"); e("s_add_u32 s59, s43, s44")
    e("s_lshl_b32 s43, s35, 6"); e("s_add_u32 s43, s43, s59")
    e("v_lshrrev_b32 v6, 2, v2"); e("v_and_b32 v7, 3, v2"); e("v_lshl_add_u32 v6, v6, 3, v7"); e("v_add_u32 v6, s43, v6")
    e("v_mul_u32_u24 v6, 1280, v6"); e("v_lshl_add_u32 v6, v3, 3, v6"); e("s_mul_i32 s43, s36, 160"); e("v_add_u32 v14, s43, v6")
    for i in range(3):
        e(f"s_add_u32 s43, s58, {i}"); e(f"s_min_u32 s{68+i}, s43, 4")
        e(f"s_lshl_b32 s{72+i}, s{68+i}, 5")
    e("v_lshrrev_b32 v6, 3, v1"); e("v_lshlrev_b32 v6, 12, v6"); e("v_and_b32 v7, 7, v1"); e("v_lshl_add_u32 v13, v7, 4, v6")
    e("s_mul_i32 s51, s36, 80"); e("s_lshl_b32 s43, s32, 3"); e("s_add_u32 s51, s51, s43"); e("s_lshl_b32 s51, s51, 12"); e("s_lshl_b32 s43, s35, 7"); e("s_add_u32 s51, s51, s43")
    e("s_lshl_b32 s52, s32, 10"); e(f"s_add_u32 s52, s52, {K3_Y}")
    k.stamp(1)
    for g in range(7):
        k.wait_vm(f"g{g}")
        e("s_barrier")
        if g == 0: k.stamp(2)
        for db in range(5): e(f"ds_read_b128 {WF(g%2,db)}, v12 offset:{g*5120 + db*1024}")
        if g + 4 < 7: issue(g + 4)
        if g == 3:
            e("s_mov_b32 m0, s52"); e("s_nop 0")
            k.vmem("buffer_load_dwordx4 v13, s[64:67], s51 offen lds", "y")
            e("s_cmp_lt_u32 s32, 2"); e(f"s_cselect_b32 s43, {64*4096}, 0"); e("s_cselect_b32 s44, 8192, 0")
            e("s_add_u32 m0, s52, s44"); e("s_add_u32 s51, s51, s43")
            k.vmem("buffer_load_dwordx4 v13, s[64:67], s51 offen lds", "y")
            for i in range(3): k.vmem(f"buffer_load_dwordx2 {v(152+2*i,2)}, v14, s[24:27], s{72+i} offen", "y")
        for db in range(5):
            e(f"s_waitcnt lgkmcnt({4-db})")
            for sg in range(2):
                e(f"{MFMA} {acc(sg,db)}, {WF(g%2,db)}, {H(g,sg)}, {'0' if g == 0 else acc(sg,db)}")
    k.stamp(3)
    e("s_mul_i32 s43, s32, 10240"); e("v_add_u32 v11, s43, v15")
    e("s_mul_i32 s43, s34, 40960"); e("s_and_b32 s44, s33, 1"); e("s_mul_i32 s44, s44, 5120"); e("s_add_u32 s43, s43, s44")
    e("v_bfe_u32 v4, v1, 2, 2"); e("v_lshl_add_u32 v4, v3, 2, v4"); e("v_lshlrev_b32 v4, 7, v4")
    e("v_and_b32 v5, 3, v1"); e("v_lshl_add_u32 v4, v5, 4, v4")
    e("s_lshl_b32 s44, s59, 1"); e(f"s_add_u32 s44, s44, {K3_Y}"); e("v_add_u32 v4, s44, v4")
    for i in range(3):
        e(f"s_lshl_b32 s44, s{68+i}, 10"); e("s_add_u32 s44, s44, s43"); e(f"v_add_u32 v{16+i}, s44, v15")
        e(f"s_lshl_b32 s44, s{68+i}, 11"); e(f"v_add_u32 v{20+i}, s44, v4")
    e("s_barrier")
    for b in range(10): e(f"ds_write_b128 v11, {v(112+4*b,4)} offset:{b*1024}")
    e("s_waitcnt vmcnt(0) lgkmcnt(0)")
    e("s_barrier")
    k.stamp(4)
    for i in range(3):
        for kq in range(4): e(f"ds_read_b128 {v(32+(i*4+kq)*4,4)}, v{16+i} offset:{kq*10240}")
    for i in range(3): e(f"ds_read_b64_tr_b16 {v(24+2*i,2)}, v{20+i}")
    for i in range(6): unpack(k, f"v{96+2*i}", f"v{97+2*i}", f"v{152+i}")
    e("s_waitcnt lgkmcnt(0)")
    A = [32 + i*16 + 2*p for i in range(3) for p in range(2)]
    for n in range(6): e(f"v_pk_add_f32 {pr(A[n])}, {pr(A[n])}, {pr(A[n]+4)}"); e(f"v_pk_add_f32 {pr(A[n]+8)}, {pr(A[n]+8)}, {pr(A[n]+12)}")
    for n in range(6): unpack(k, f"v{112+2*n}", f"v{113+2*n}", f"v{24+n}")
    for n in range(6): e(f"v_pk_add_f32 {pr(A[n])}, {pr(A[n])}, {pr(A[n]+8)}")
    for n in range(6): e(f"v_pk_add_f32 {pr(96+2*n)}, {pr(96+2*n)}, {pr(112+2*n)}")
    for n in range(6): e(f"v_cvt_pk_bf16_f32 v{24+n}, v{A[n]}, v{A[n]+1}")
    for n in range(6): e(f"v_cvt_pk_bf16_f32 v{152+n}, v{96+2*n}, v{97+2*n}")
    for n in range(6): unpack(k, f"v{A[n]}", f"v{A[n]+1}", f"v{24+n}")
    for n in range(6): unpack(k, f"v{96+2*n}", f"v{97+2*n}", f"v{152+n}")
    for n in range(6): e(f"v_pk_add_f32 {pr(A[n])}, {pr(A[n])}, {pr(96+2*n)}")
    for n in range(6): e(f"v_cvt_pk_bf16_f32 v{24+n}, v{A[n]}, v{A[n]+1}")
    for i in range(3): e(f"buffer_store_dwordx2 {v(24+2*i,2)}, v14, s[28:31], s{72+i} offen")
    k.end(2)
    k.label("c_end")
    e("s_endpgm")
    return k.text(160, nsgpr=100)

def gen_helper(k, epoch_poll):
    e = k.e
    k.label("m_helper")
    e("s_lshl_b32 s35, s41, 2"); e("s_add_u32 s35, s35, s42"); e("s_sub_u32 s35, s35, 28")
    e("v_and_b32 v2, 15, v1"); e("v_lshrrev_b32 v3, 4, v1")
    e("s_lshl_b32 s43, s32, 3")
    e("v_add_u32 v4, s43, v3")
    e("s_lshl_b32 s44, s35, 6")
    e("v_add_u32 v5, s44, v4"); e("v_mul_u32_u24 v5, 1280, v5"); e("v_lshl_add_u32 v5, v2, 4, v5")
    e("v_add_u32 v6, 5120, v5")
    e("v_mul_u32_u24 v7, 1296, v4"); e("v_lshl_add_u32 v7, v2, 4, v7")
    e("v_mov_b32 v110, 0")
    e(f"v_lshlrev_b32 v4, 2, v2"); e(f"v_add_u32 v4, {W_EPOCH}, v4")
    e("s_cmp_lg_u32 s32, 4"); e("s_cbranch_scc1 m_hnoclr")
    e("ds_write_b32 v4, v110")
    k.label("m_hnoclr")
    e("s_waitcnt lgkmcnt(0)")
    k.srd(16, 4, 5, 2048*1280)
    k.srd(28, 14, 15, XT_BYTES, WS_XNT)
    k.srd(64, 12, 13, 256)
    k.srd(FLS, 14, 15, FL_BYTES, WS_FL)
    k.srd(20, 96, 97, 864*1280)
    k.srd(24, 14, 15, WOF_BYTES, WS_WOF)
    k.vm = []
    for g in range(2):
        for n in range(5):
            k.vmem(f"buffer_load_dwordx4 {v(8+g*20+n*4,4)}, v{5+g}, s[16:19], 0 offen offset:{n*256}", f"x{g}")
    e("s_lshl_b32 s36, s35, 3"); e("s_add_u32 s36, s36, s32")
    e("v_lshrrev_b32 v111, 3, v1"); e("v_mul_u32_u24 v111, 1280, v111"); e("v_and_b32 v112, 7, v1"); e("v_lshl_add_u32 v111, v112, 4, v111")
    for it in range(2):
        e(f"s_add_u32 s43, s36, {256*it}"); e("s_mul_i32 s44, s43, 205"); e("s_lshr_b32 s44, s44, 11"); e("s_mul_i32 s45, s44, 10"); e("s_sub_u32 s45, s43, s45")
        e("s_mul_i32 s46, s44, 40960"); e("s_lshl_b32 s47, s45, 7"); e("s_add_u32 s46, s46, s47")
        e(f"s_mul_i32 s47, s45, {4*27}"); e("s_add_u32 s47, s47, s44"); e("s_lshl_b32 s47, s47, 10")
        e("s_cmp_lt_u32 s43, 270"); e(f"s_cselect_b32 s{48+it}, s47, {HUGE}")
        for n in range(4):
            k.vmem(f"buffer_load_dwordx4 {v(120+it*16+n*4,4)}, v111, s[20:23], s46 offen", "wo")
            e("s_add_u32 s46, s46, 10240")
    for g in range(2):
        k.stamp(1+2*g)
        k.wait_vm(f"x{g}")
        X = 48
        src = 8 + g*20
        for n in range(20): unpack(k, f"v{X+2*n}", f"v{X+2*n+1}", f"v{src+n}")
        e(f"v_pk_add_f32 v[88:89], {pr(X)}, {pr(X+4)}"); e(f"v_pk_add_f32 v[90:91], {pr(X+2)}, {pr(X+6)}")
        for n in range(4, 20): e(f"v_pk_add_f32 {pr(88+2*(n%2))}, {pr(88+2*(n%2))}, {pr(X+2*n)}")
        e("v_pk_add_f32 v[88:89], v[88:89], v[90:91]"); e("s_nop 0"); e("v_add_f32 v88, v88, v89")
        for sh in (8, 4, 2, 1):
            e("s_nop 1"); e(f"v_add_f32_dpp v88, v88, v88 row_ror:{sh} row_mask:0xf bank_mask:0xf")
        e(f"v_mul_f32 v88, {f32(1/640)}, v88")
        for a in range(4): e(f"v_mov_b32 v{92+a}, 0")
        for n0 in range(0, 20, 4):
            for a in range(4): e(f"v_pk_add_f32 {pr(96+2*a)}, {pr(X+2*(n0+a))}, v[88:89] op_sel_hi:[1,0] neg_lo:[0,1] neg_hi:[0,1]")
            for a in range(4): e(f"v_pk_fma_f32 {pr(92+2*(a%2))}, {pr(96+2*a)}, {pr(96+2*a)}, {pr(92+2*(a%2))}")
        e("v_pk_add_f32 v[92:93], v[92:93], v[94:95]"); e("s_nop 0"); e("v_add_f32 v92, v92, v93")
        for sh in (8, 4, 2, 1):
            e("s_nop 1"); e(f"v_add_f32_dpp v92, v92, v92 row_ror:{sh} row_mask:0xf bank_mask:0xf")
        e(f"v_mul_f32 v92, {f32(1/640)}, v92")
        ln_finish(k, "v88", "v92", "v89")
        for n in range(20): e(f"v_pk_add_f32 {pr(X+2*n)}, {pr(X+2*n)}, v[88:89] op_sel_hi:[1,0] neg_lo:[0,1] neg_hi:[0,1]")
        for n in range(20): e(f"v_cvt_pk_bf16_f32 v{src+n}, v{X+2*n}, v{X+2*n+1}")
        for n in range(20): unpack(k, f"v{X+2*n}", f"v{X+2*n+1}", f"v{src+n}")
        for n in range(20): e(f"v_pk_mul_f32 {pr(X+2*n)}, {pr(X+2*n)}, v[92:93] op_sel_hi:[1,0]")
        for n in range(20): e(f"v_cvt_pk_bf16_f32 v{src+n}, v{X+2*n}, v{X+2*n+1}")
        for n in range(5):
            e(f"ds_write_b128 v7, {v(src+4*n,4)} offset:{g*4*1296 + n*256}")
    e("s_waitcnt lgkmcnt(0)")
    e("s_barrier")
    k.stamp(4)
    e("v_bfe_u32 v4, v1, 2, 2"); e("v_lshl_add_u32 v4, v3, 3, v4"); e("v_mul_u32_u24 v4, 1296, v4")
    e("v_and_b32 v5, 3, v1"); e("v_lshl_add_u32 v4, v5, 3, v4")
    e("s_lshl_b32 s43, s32, 5"); e("v_add_u32 v4, s43, v4")
    e(f"v_add_u32 v5, {32*1296}, v4")
    for n in range(5):
        for th in range(2):
            for hh in range(2):
                e(f"ds_read_b64_tr_b16 {v(16+(n*2+th)*4+hh*2,2)}, v{4+th} offset:{hh*4*1296 + n*256}")
    e("s_mul_i32 s43, s32, 4608"); e("s_add_u32 s43, s43, 90112")
    e("v_mul_u32_u24 v5, 144, v2"); e("v_lshl_add_u32 v5, v3, 4, v5"); e("v_add_u32 v5, s43, v5")
    e("v_lshrrev_b32 v4, 3, v1"); e("v_lshlrev_b32 v6, 12, v4"); e("v_mul_u32_u24 v4, 144, v4"); e("v_and_b32 v7, 7, v1"); e("v_lshl_add_u32 v4, v7, 4, v4"); e("v_add_u32 v4, s43, v4")
    e("v_lshl_add_u32 v6, v7, 4, v6")
    e("s_lshl_b32 s46, s32, 16"); e("s_lshl_b32 s44, s35, 7"); e("s_add_u32 s46, s46, s44"); e("s_add_u32 s47, s46, 32768")
    e("s_waitcnt vmcnt(0) lgkmcnt(0)")
    for n in range(5):
        o = (n % 2) * 2304
        for th in range(2): e(f"ds_write_b128 v5, {v(16+(n*2+th)*4,4)} offset:{o + th*64}")
        for hf in range(2): e(f"ds_read_b128 {v(56+(n*2+hf)*4,4)}, v4 offset:{o + hf*8*144}")
    for n in range(5):
        e(f"s_waitcnt lgkmcnt({min(15, 4*(4-n))})")
        for hf in range(2):
            e(f"buffer_store_dwordx4 {v(56+(n*2+hf)*4,4)}, v6, s[28:31], s{46+hf} offen sc1")
        e(f"s_add_u32 s46, s46, {8*65536}"); e(f"s_add_u32 s47, s47, {8*65536}")
    e("v_bfe_u32 v5, v1, 2, 2"); e("v_lshl_add_u32 v5, v3, 2, v5"); e("v_mul_u32_u24 v5, 144, v5"); e("v_and_b32 v6, 3, v1"); e("v_lshl_add_u32 v5, v6, 3, v5"); e("v_add_u32 v5, s43, v5")
    e("v_lshlrev_b32 v6, 4, v1")
    for it in range(2):
        for n in range(4): e(f"ds_write_b128 v4, {v(120+it*16+n*4,4)} offset:{n*8*144}")
        for d in range(4):
            for hh in range(2): e(f"ds_read_b64_tr_b16 {v(160+it*16+d*4+hh*2,2)}, v5 offset:{hh*16*144 + d*32}")
    k.stamp(5)
    e("s_waitcnt lgkmcnt(0)")
    for it in range(2):
        for d in range(4):
            e(f"buffer_store_dwordx4 {v(160+it*16+d*4,4)}, v6, s[24:27], s{48+it} offen sc1")
            e(f"s_add_u32 s{48+it}, s{48+it}, {27*1024}")
    e("s_cmp_ge_u32 s32, 4"); e("s_cbranch_scc1 m_hG")
    conv_params(k)
    e("s_barrier")
    e("s_waitcnt vmcnt(0)")
    e("s_branch m_Lpost")
    k.label("m_hG")
    e("s_barrier")
    k.end(0)

if __name__ == "__main__":
    import sys
    NAME = "parallel_sum__ssm_conv_s4d__mixer_gmlp__prompt"
    path = sys.argv[1] if len(sys.argv) > 1 else f"cdna_kernels/{NAME}.s"
    ks = [gen_mega("ka_kernel"), gen_b("kb_kernel"), gen_c("kc_kernel")]
    hdr = open(f"cdna_kernels/{NAME}.s.ref").read().split("; Override launch")[0]
    out = hdr
    for n, l in (("ka_kernel", LDS_TOTAL), ("kb_kernel", LDS_TOTAL), ("kc_kernel", K3_LDS)): out += f"; @launch kernel={n} grid=(256,1,1) block=(512,1,1) lds={l}\n"
    out += '.amdgcn_target "amdgcn-amd-amdhsa--gfx950"\n.text\n'
    for t, kd in ks: out += t + "\n"
    out += '.section .rodata,"a"\n'
    for t, kd in ks: out += ".p2align 6\n" + kd + "\n"
    open(path, "w").write(out)
```

```python
from asmlib import *
import os
import numpy as np
MB = 1 << 20
WS_XNT, WS_Z2F, WS_Z1F, WS_HF, WS_YT, WS_ST2, WS_WOF, WS_FL = 0, 4*MB, 8*MB, 12*MB, 16*MB, 20*MB, 22*MB, 24*MB
ZF_BYTES = 54 * 65536
XT_BYTES = 640 * 4096
ST2_BYTES = 64 * 14 * 512
WOF_BYTES = 40 * 27 * 1024
FZ, FX, FW, FY, FH = 0, 4096, 5120, 6144, 10240
FL_BYTES = 65536
FH2 = 16384
HUGE = 0x40000000
GC0 = -2.0 * 0.7978845608028654 * 1.4426950408889634
GC1 = GC0 * 0.044715
MFMA = "v_mfma_f32_16x16x32_bf16"
LOG2E = 1.4426950408889634
L_HI = float(np.float32(LOG2E)); L_LO = LOG2E - L_HI
EXP = os.environ.get("EXP", "")
LDS_TOTAL = 163840
RING2 = 24576
CONV0 = 98304; CONV_B = 14592
YTILE = CONV0 + 3 * CONV_B
MISC = 161216
W_EPOCH, W_PF, W_GL, W_R1, W_R2 = MISC + 2560, MISC + 2564, MISC + 2576, MISC + 2592, MISC + 2608
SPIN = 0x100000

def exp_precise(k, dst, x, t0, t1):
    e = k.e
    e(f"v_mul_f32 {t0}, {f32(L_HI)}, {x}")
    e(f"v_mov_b32 {t1}, {f32(L_HI)}")
    e(f"v_fma_f32 {t1}, {x}, {t1}, -{t0}")
    e(f"v_fmac_f32 {t1}, {f32(L_LO)}, {x}")
    e(f"v_exp_f32 {t0}, {t0}")
    e(f"v_mul_f32 {t1}, {f32(0.6931471805599453)}, {t1}")
    e(f"v_fma_f32 {dst}, {t0}, {t1}, {t0}")

def ln_finish(k, mean, var, t):
    k.e(f"v_max_f32 {var}, 0, {var}")
    k.e(f"v_cvt_pk_bf16_f32 {t}, {mean}, {var}")
    k.e(f"v_lshlrev_b32 {mean}, 16, {t}")
    k.e(f"v_and_b32 {var}, 0xffff0000, {t}")
    k.e(f"v_add_f32 {var}, {f32(1e-5)}, {var}")
    k.e(f"v_cvt_pk_bf16_f32 {t}, {var}, {var}")
    k.e(f"v_and_b32 {var}, 0xffff0000, {t}")
    k.e(f"v_sqrt_f32 {var}, {var}")
    k.e("s_nop 0")
    k.e(f"v_cvt_pk_bf16_f32 {t}, {var}, {var}")
    k.e(f"v_and_b32 {var}, 0xffff0000, {t}")
    k.e(f"v_rcp_f32 {var}, {var}")
    k.e("s_nop 0")

def unpack(k, lo, hi, src):
    k.e(f"v_lshlrev_b32 {lo}, 16, {src}"); k.e(f"v_and_b32 {hi}, 0xffff0000, {src}")
def pr(r): return f"v[{r}:{r+1}]"

def poll_flags(k, name, voff, srd, ndw, dst, tmp, soff="0", imm=0, sleep=0, preloaded=False):
    e = k.e
    e("s_mov_b32 s40, 0")
    if preloaded: e(f"s_branch {name}_pre")
    elif sleep: e(f"s_branch {name}_1st")
    k.label(name)
    if sleep:
        e(f"s_sleep {sleep}"); k.label(name + "_1st")
    sfx = {1: "dword", 2: "dwordx2", 4: "dwordx4"}[ndw]
    e(f"buffer_load_{sfx} {v(dst, ndw)}, {voff}, s[{srd}:{srd+3}], {soff} offen offset:{imm} sc1")
    e("s_add_u32 s40, s40, 1")
    if preloaded: k.label(name + "_pre")
    e("s_waitcnt vmcnt(0)")
    e(f"v_xor_b32 {tmp}, s3, v{dst}")
    for i in range(1, ndw):
        e(f"v_xor_b32 v{dst+i}, s3, v{dst+i}"); e(f"v_or_b32 {tmp}, {tmp}, v{dst+i}")
    e(f"v_cmp_ne_u32 vcc, 0, {tmp}")
    e(f"s_cmp_ge_u32 s40, {SPIN}")
    e(f"s_cbranch_scc1 {name}_ok")
    e(f"s_cbranch_vccnz {name}")
    k.label(name + "_ok")
    k.vm = []

def set_flag(k, srd, soff, imm, va, vb):
    e = k.e
    e(f"v_mov_b32 {va}, 0"); e(f"v_mov_b32 {vb}, s3")
    e("s_waitcnt vmcnt(0)")
    e("s_mov_b64 exec, 1")
    e(f"buffer_store_dword {vb}, {va}, s[{srd}:{srd+3}], {soff} offen offset:{imm} sc1")
    e("s_mov_b64 exec, -1")
    k.vm = [None]

def lds_wait(k, name, vaddr, vt, sleep=0):
    e = k.e
    e("s_mov_b32 s40, 0")
    k.label(name)
    if sleep: e(f"s_sleep {sleep}")
    e(f"ds_read_b32 {vt}, {vaddr}")
    e("s_add_u32 s40, s40, 1")
    e("s_waitcnt lgkmcnt(0)")
    e(f"v_readfirstlane_b32 s43, {vt}")
    e(f"s_cmp_ge_u32 s40, {SPIN*8}")
    e(f"s_cbranch_scc1 {name}_ok")
    e("s_cmp_eq_u32 s43, 0")
    e(f"s_cbranch_scc1 {name}")
    k.label(name + "_ok")
    k.lg = []

def lds_wait_ge(k, name, vaddr, vt, ndw, val, sleep=0, preloaded=False):
    e = k.e
    e("s_mov_b32 s75, 0")
    if preloaded: e(f"s_branch {name}_chk")
    k.label(name)
    if sleep: e(f"s_sleep {sleep}")
    e(f"ds_read_b{32*ndw} {v(vt, ndw)}, {vaddr}")
    e("s_add_u32 s75, s75, 1")
    e("s_waitcnt lgkmcnt(0)")
    e(f"s_cmp_ge_u32 s75, {SPIN*8}")
    e(f"s_cbranch_scc1 {name}_ok")
    k.label(name + "_chk")
    if ndw == 4: e(f"v_min_u32 v{vt}, v{vt}, v{vt+2}"); e(f"v_min_u32 v{vt+1}, v{vt+1}, v{vt+3}")
    if ndw >= 2: e(f"v_min_u32 v{vt}, v{vt}, v{vt+1}"); e("s_nop 0")
    e(f"v_readfirstlane_b32 s43, v{vt}")
    e(f"s_cmp_lt_u32 s43, {val}")
    e(f"s_cbranch_scc1 {name}")
    k.label(name + "_ok")
    k.lg = []

KG_PITCH = 272
KG_HOLD = 168
def kgen_dt(k, dtv):
    e = k.e
    e(f"v_lshlrev_b32 {dtv}, 16, {dtv}")
    exp_precise(k, dtv, dtv, "v4", "v5")
    e(f"v_cvt_pk_bf16_f32 {dtv}, {dtv}, {dtv}"); e(f"v_and_b32 {dtv}, 0xffff0000, {dtv}")

def kgen_chains(k, par, dtv, hf, hold):
    e = k.e
    names = {}; nxt = [24]; held = []
    def pair(n):
        if n not in names:
            names[n] = nxt[0]; nxt[0] += 2; assert nxt[0] <= 136
        return names[n]
    def P(n): r = pair(n); return f"v[{r}:{r+1}]"
    urow = {"U0":0,"U1":1,"U2":2,"U3":3,"U4":4,"U5":5,"U6":6,"U7":7,"R256":8,"R258":9,"R260":10,"R262":11,"R512":12,"R516":13,"R768":14,"R772":15,
            "R1024":16,"R1280":17,"R1536":18,"R1792":19,"R2048":20}
    tmp = [0]
    def out(n, row, neg):
        r = pair(n)
        t = (KG_HOLD + tmp[0]) if hold else (152 + tmp[0] % 12)
        tmp[0] += 1
        e(f"v_cvt_pk_bf16_f32 v{t}, v{r}, {'-' if neg else ''}v{r+1}")
        held.append((t, row))
        return None if hold else f"ds_write_b32 v10, v{t} offset:{row*KG_PITCH}"
    def level(ops):
        for d, a, b in ops: e(f"v_pk_mul_f32 {P('t_'+str(ops.index((d,a,b))))}, {P(a)}, {P(b)} op_sel:[0,0] op_sel_hi:[1,0]")
        for d, a, b in ops: e(f"v_pk_fma_f32 {P(d)}, {P(a)}, {P(b)}, {P('t_'+str(ops.index((d,a,b))))} op_sel:[1,1,0] op_sel_hi:[0,1,1] neg_lo:[0,1,0]")
    def unp(dst, src): e(f"v_lshlrev_b32 {dst}, 16, {src}" if hf == 0 else f"v_and_b32 {dst}, 0xffff0000, {src}")
    unp("v6", f"v{par}")
    exp_precise(k, "v6", "v6", "v4", "v5")
    e("v_cvt_pk_bf16_f32 v6, v6, v6"); e("v_and_b32 v6, 0xffff0000, v6")
    e(f"v_mul_f32 v6, v6, {dtv}"); e(f"v_mul_f32 v6, {f32(-LOG2E)}, v6")
    unp("v7", f"v{par+1}"); e(f"v_mul_f32 v7, v7, {dtv}"); e("v_mul_f32 v7, 0.15915494, v7")
    u0 = pair("U0")
    unp(f"v{u0}", f"v{par+2}"); unp(f"v{u0+1}", f"v{par+3}")
    e(f"v_mul_f32 v{u0}, v{u0}, {dtv}"); e(f"v_mul_f32 v{u0+1}, v{u0+1}, {dtv}")
    e(f"v_add_f32 v{u0}, v{u0}, v{u0}"); e(f"v_add_f32 v{u0+1}, v{u0+1}, v{u0+1}")
    seqs = []
    for n, (nm, pw) in enumerate((("Z1", 1.0), ("W1", 8.0), ("Z256", 256.0))):
        r = pair(nm); a, b = 152 + 2*n, 153 + 2*n
        seqs.append([f"v_mul_f32 v{a}, {f32(pw)}, v6", f"v_mul_f32 v{b}, {f32(pw)}, v7", f"v_exp_f32 v{a}, v{a}", f"v_fract_f32 v{b}, v{b}",
                     f"v_cos_f32 v{r}, v{b}", f"v_sin_f32 v{r+1}, v{b}", f"v_mul_f32 v{r}, v{r}, v{a}", f"v_mul_f32 v{r+1}, v{r+1}, v{a}"])
    k.batch(seqs)
    def emit_out(lst):
        ws = [out(n, row, neg) for n, row, neg in lst]
        for w in ws:
            if w: e(w)
    emit_out([("U0", 0, True), ("W1", 22, False)])
    levels = [
        [("U1","U0","Z1"), ("Z2","Z1","Z1"), ("W2","W1","W1"), ("Z512","Z256","Z256"), ("R256","U0","Z256")],
        [("U2","U0","Z2"), ("U3","U1","Z2"), ("Z4","Z2","Z2"), ("W3","W2","W1"), ("Y4","W2","W2"), ("R512","U0","Z512")],
        [("U4","U0","Z4"), ("U5","U1","Z4"), ("U6","U2","Z4"), ("U7","U3","Z4"), ("R258","U2","Z256"), ("R768","R512","Z256"), ("R1024","R512","Z512"),
         ("W1","W1","Y4"), ("W2","W2","Y4"), ("W3","W3","Y4"), ("W4","Y4","Y4")],
        [("R260","U4","Z256"), ("R262","U6","Z256"), ("R516","U4","Z512"), ("R1280","R768","Z512"), ("R1536","R1024","Z512"),
         ("W1","W1","Y4"), ("W2","W2","Y4"), ("W3","W3","Y4"), ("W4","W4","Y4")],
        [("R772","R516","Z256"), ("R1792","R1280","Z512"), ("R2048","R1536","Z512"),
         ("W1","W1","Y4"), ("W2","W2","Y4"), ("W3","W3","Y4"), ("W4","W4","Y4")],
    ] + [[("W1","W1","Y4"), ("W2","W2","Y4"), ("W3","W3","Y4"), ("W4","W4","Y4")]] * 3 + [[("W1","W1","Y4"), ("W2","W2","Y4"), ("W3","W3","Y4")]]
    vidx = {"W1": 1, "W2": -2, "W3": -1, "W4": 4}
    for lv in levels:
        level(lv)
        lst = []
        for d, a, b in lv:
            if d in urow: lst.append((d, urow[d], True))
            elif d == "Y4": lst.append((d, 21 + 4, False))
            elif d in vidx:
                vidx[d] += 4; lst.append((d, 21 + vidx[d], False))
        emit_out(lst)
    return held

def kgen_mm(k, first, toff=0, F0=104):
    e = k.e
    for half in range(2):
        for st in range(2):
            for f, row in enumerate((0, 16, 21, 37)):
                e(f"ds_read_b128 {v(F0+st*16+f*4,4)}, v11 offset:{toff + row*KG_PITCH + (half*2+st)*64}")
        for st in range(2):
            e(f"s_waitcnt lgkmcnt({4 if st == 0 else 0})")
            F = F0 + st*16
            z = first and half == 0 and st == 0
            for bb in range(2):
                e(f"{MFMA} {v(136+4*bb,4)}, {v(F,4)}, {v(F+8+4*bb,4)}, {'0' if z else v(136+4*bb,4)}")
                e(f"{MFMA} {v(144+4*bb,4)}, {v(F+8+4*bb,4)}, {v(F+4,4)}, {'0' if z else v(144+4*bb,4)}")

def kgen_finish(k, tab_s, par, dtv, lane_i, lane_q, lane, held):
    e = k.e
    T2 = 14464
    e(f"v_lshl_add_u32 v10, {lane}, 2, {tab_s}")
    e(f"v_mul_u32_u24 v11, {KG_PITCH}, {lane_i}"); e(f"v_lshl_add_u32 v11, {lane_q}, 4, v11"); e(f"v_add_u32 v11, {tab_s}, v11")
    e("v_mov_b32 v12, 0x00003f80")
    e(f"ds_write_b32 v10, v12 offset:{21*KG_PITCH}"); e(f"ds_write_b32 v10, v12 offset:{T2 + 21*KG_PITCH}")
    for t, row in held: e(f"ds_write_b32 v10, v{t} offset:{T2 + row*KG_PITCH}")
    kgen_chains(k, par, dtv, 1, False)
    kgen_mm(k, True, T2)
    kgen_mm(k, False, 0)
```

```python
from mega_common import *
FLS = 60
RING2 = 16384
CONV0 = 65536
CONV_B = 15360
YTILE = 81920
IMG = 22528
NSLOT = 2
WS_KC = 26*MB
KC_BYTES = 640 * 1536

def conv_params(k):
    e = k.e
    e("s_mul_i32 s34, s41, 28"); e("s_add_u32 s34, s34, s42"); e("s_mul_i32 s34, s34, 3"); e("s_add_u32 s34, s34, s32")
    e("s_cmp_eq_u32 s32, 3"); e("s_cselect_b32 s34, 1000, s34")
    e("s_lshl_b32 s56, s34, 8"); e("s_lshl_b32 s57, s34, 1")
    e("v_lshlrev_b32 v4, 2, v1"); e("v_mov_b32 v5, 0")
    e("s_waitcnt lgkmcnt(0)")
    for a in range(4):
        k.srd(28, 64+2*a, 65+2*a, 640*256)
        e(f"buffer_load_dword v{164+a}, v4, s[28:31], s56 offen")
    k.srd(28, 72, 73, 1280); e("buffer_load_ushort v13, v5, s[28:31], s57 offen")

def gen_mega(name):
    k = Kern(name)
    e = k.e
    e("s_cmp_ge_u32 s2, 256"); e("s_cbranch_scc1 m_end")
    k.stamp_init()
    e("s_load_dwordx2 s[4:5], s[0:1], 0")
    e("s_load_dwordx4 s[8:11], s[0:1], 64")
    e("s_load_dwordx4 s[12:15], s[0:1], 104")
    e("s_load_dwordx4 s[96:99], s[0:1], 88")
    e("v_and_b32 v1, 63, v0")
    e("v_lshrrev_b32 v2, 6, v0")
    e("s_and_b32 s41, s2, 7")
    e("v_readfirstlane_b32 s32, v2")
    e("s_lshr_b32 s42, s2, 3")
    e("s_and_b32 s33, s32, 3")
    e("s_cmp_ge_u32 s42, 28"); e("s_cbranch_scc1 m_helper")
    e("s_mul_i32 s43, s42, 37"); e("s_lshr_b32 s43, s43, 8")
    e("s_mul_i32 s44, s43, 7"); e("s_sub_u32 s44, s42, s44")
    e("s_lshr_b32 s35, s41, 1"); e("s_lshl_b32 s35, s35, 2"); e("s_add_u32 s35, s35, s43")
    e("s_and_b32 s36, s41, 1"); e("s_mul_i32 s36, s36, 7"); e("s_add_u32 s36, s36, s44")
    e("s_cmp_ge_u32 s32, 4"); e("s_cbranch_scc1 m_gemm1")
    e("s_mul_i32 s45, s44, 3"); e("s_mul_i32 s46, s43, 5"); e("s_lshr_b32 s46, s46, 1"); e("s_add_u32 s45, s45, s46")
    e("s_cmp_ge_u32 s45, 20"); e("s_cselect_b32 s46, 20, 0"); e("s_sub_u32 s45, s45, s46")
    e("s_cmp_ge_u32 s45, 10"); e("s_cselect_b32 s46, 10, 0"); e("s_sub_u32 s45, s45, s46")
    e("s_load_dwordx8 s[64:71], s[0:1], 8")
    e("s_load_dwordx2 s[72:73], s[0:1], 40")
    e("v_and_b32 v3, 7, v1")
    e("s_lshl_b32 s39, s32, 13")
    e("s_cmp_ge_u32 s32, 2"); e("s_cbranch_scc1 m_ldB")
    e("s_lshl_b32 s43, s35, 7"); e("s_lshl_b32 s44, s32, 6"); e("s_add_u32 s43, s43, s44")
    e("v_lshrrev_b32 v2, 5, v1"); e("v_lshlrev_b32 v2, 3, v2")
    e("v_bfe_u32 v4, v1, 3, 2"); e("v_add3_u32 v2, v2, v4, s43")
    e("v_mul_u32_u24 v2, 1280, v2")
    e("v_lshrrev_b32 v4, 4, v1"); e("v_xor_b32 v3, v3, v4")
    e("v_lshl_add_u32 v4, v3, 4, v2")
    e("v_xor_b32 v3, 4, v3"); e("v_lshl_add_u32 v5, v3, 4, v2")
    for n in range(8):
        ee, b, Pp = n & 1, (n >> 1) & 1, n >> 2
        e(f"v_add_u32 v{16+n}, {(32*Pp + 4*b + 16*ee)*1280 - (n & 3)*1024}, v{4+ee}")
    e("s_waitcnt lgkmcnt(0)")
    k.srd(16, 4, 5, 2048*1280)
    e("s_mov_b32 s38, 128")
    e("s_branch m_ld")
    k.label("m_ldB")
    e("v_lshrrev_b32 v2, 3, v1"); e("v_mul_u32_u24 v2, 3456, v2")
    e("s_cmp_eq_u32 s32, 2"); e("s_cselect_b32 s44, 1664, 0")
    e("s_lshl_b32 s43, s36, 7"); e("s_add_u32 s43, s43, s44"); e("v_add_u32 v2, s43, v2")
    e("v_bfe_u32 v4, v1, 4, 1"); e("v_lshlrev_b32 v4, 1, v4"); e("v_xor_b32 v3, v3, v4")
    e("v_lshl_add_u32 v4, v3, 4, v2")
    e("v_xor_b32 v3, 4, v3"); e("v_lshl_add_u32 v5, v3, 4, v2")
    for n in range(8):
        e(f"v_add_u32 v{16+n}, {8*n*3456 - (n & 3)*1024}, v{4+(n & 1)}")
    e("s_waitcnt lgkmcnt(0)")
    k.srd(16, 8, 9, 640*3456)
    e(f"s_mov_b32 s38, {64*3456}")
    k.label("m_ld")
    e("s_mul_i32 s37, s45, s38"); e("s_mul_i32 s46, s38, 10"); e("s_mov_b32 s40, 0")
    k.label("m_ldloop")
    e("s_cmp_lt_u32 s40, 3"); e("s_cbranch_scc1 m_ldissue")
    e("s_waitcnt vmcnt(16)")
    e("s_barrier")
    k.label("m_ldissue")
    for g in range(2):
        e(f"s_add_u32 m0, s39, {g*4096}")
        e("s_nop 0")
        for n in range(4): e(f"buffer_load_dwordx4 v{16+g*4+n}, s[16:19], s37 offen offset:{n*1024} lds")
    e("s_add_u32 s39, s39, 32768"); e("s_and_b32 s39, s39, 0x1ffff")
    e("s_add_u32 s37, s37, s38"); e("s_cmp_eq_u32 s37, s46"); e("s_cselect_b32 s37, 0, s37")
    e("s_add_u32 s40, s40, 1"); e("s_cmp_lt_u32 s40, 10"); e("s_cbranch_scc1 m_ldloop")
    k.stamp(1)
    conv_params(k)
    k.srd(20, 10, 11, 2048*4096)
    e("s_lshl_b32 s43, s42, 2"); e("s_add_u32 s43, s43, s32"); e(f"s_mul_i32 s43, s43, {9*1024+384}")
    e("s_lshl_b32 s44, s41, 20"); e("s_add_u32 s43, s43, s44")
    e("v_lshlrev_b32 v2, 4, v1")
    def pf(n):
        for i in range(n):
            e(f"buffer_load_dwordx4 v[16:19], v2, s[20:23], s43 offen offset:{(i%4)*1024}")
            if i % 4 == 3 or i == n - 1: e(f"s_add_u32 s43, s43, {(i%4+1)*1024}")
    e("s_waitcnt vmcnt(21)"); e("s_barrier"); pf(4)
    e("s_waitcnt vmcnt(17)"); e("s_barrier"); pf(6)
    e("s_waitcnt vmcnt(10)"); e("s_barrier")
    e("s_cmp_ge_u32 s34, 640"); e("s_cbranch_scc1 m_nokg")
    kgen_dt(k, "v13")
    if "kgearly" in EXP: held = kgen_chains(k, 164, "v13", 0, True)
    k.label("m_nokg")
    e("s_barrier")
    k.label("m_Lpost")
    k.stamp(2)
    e("v_and_b32 v2, 15, v1"); e("v_lshrrev_b32 v3, 4, v1")
    e("s_cmp_ge_u32 s34, 640"); e("s_cbranch_scc1 m_Lend")
    e("s_lshl_b32 s39, s32, 15")
    if "kgearly" not in EXP: held = kgen_chains(k, 164, "v13", 0, True)
    kgen_finish(k, "s39", 164, "v13", "v2", "v3", "v1", held)
    k.srd(24, 14, 15, KC_BYTES, WS_KC)
    e("s_mul_i32 s43, s34, 1536")
    e("v_max_u32 v4, 1, v3"); e("v_sub_u32 v4, 5, v4")
    e("v_lshlrev_b32 v5, v4, v2")
    e("v_lshlrev_b32 v6, 3, v3")
    e("v_mov_b32 v7, 512"); e("v_cmp_eq_u32 vcc, 2, v3"); e("s_nop 1"); e("v_cndmask_b32 v6, v6, v7, vcc")
    e("v_mov_b32 v7, 768"); e("v_mov_b32 v8, 4"); e("v_mov_b32 v9, 128"); e("v_cmp_eq_u32 vcc, 3, v3"); e("s_nop 1")
    e("v_cndmask_b32 v6, v6, v7, vcc"); e("v_cndmask_b32 v8, v8, v9, vcc")
    e("v_add_u32 v5, v5, v6")
    e("v_lshlrev_b32 v6, v4, 16"); e("v_add_u32 v6, v5, v6")
    e("v_add_u32 v7, v5, v8"); e("v_add_u32 v8, v6, v8")
    for n in range(8): e(f"v_cvt_pk_bf16_f32 v{24+n}, v{136+2*n}, v{137+2*n}")
    e("buffer_store_dword v24, v5, s[24:27], s43 offen"); e("buffer_store_dword v25, v7, s[24:27], s43 offen")
    e("buffer_store_dword v26, v6, s[24:27], s43 offen"); e("buffer_store_dword v27, v8, s[24:27], s43 offen")
    e("v_lshlrev_b32 v9, 6, v2"); e("v_lshl_add_u32 v9, v3, 3, v9")
    e("v_cmp_gt_u32 vcc, 5, v2"); e("s_and_saveexec_b64 s[44:45], vcc")
    e("buffer_store_dwordx2 v[28:29], v9, s[24:27], s43 offen offset:1024")
    e("buffer_store_dwordx2 v[30:31], v9, s[24:27], s43 offen offset:1056")
    k.label("m_Lend")
    k.end(0)

    k.label("m_gemm1")
    e("v_and_b32 v2, 15, v1"); e("v_lshrrev_b32 v3, 4, v1")
    e("v_lshlrev_b32 v12, 4, v1")
    e("v_add_u32 v13, 4096, v12")
    PL = 200
    def poll_loads():
        for i in range(7):
            e(f"buffer_load_dwordx4 {v(PL+4*i,4)}, v{12 if i < 4 else 13}, s[28:31], s72 offen offset:{(i%4)*1024} sc1")
    e("v_mov_b32 v10, 0")
    e(f"v_lshlrev_b32 v4, 2, v2"); e(f"v_add_u32 v4, {W_EPOCH}, v4")
    e("ds_write_b32 v4, v10")
    e("s_waitcnt lgkmcnt(0)")
    k.srd(64, 12, 13, 256)
    e("s_cmp_lg_u32 s2, 0"); e("s_cbranch_scc1 m_noep")
    e("s_cmp_lg_u32 s32, 4"); e("s_cbranch_scc1 m_noep")
    e("s_memrealtime s[44:45]"); e("s_waitcnt lgkmcnt(0)"); e("s_or_b32 s44, s44, 1"); e("v_mov_b32 v4, s44")
    e("s_mov_b64 exec, 1")
    e("buffer_store_dword v4, v10, s[64:67], 0 offen sc1")
    e("s_mov_b64 exec, -1")
    k.label("m_noep")
    if "cpf" in EXP:
        e("s_getpc_b64 s[44:45]")
        k.label("m_pc")
        e("s_mov_b32 s46, text_end-m_pc"); e("s_mov_b32 s47, 0x00020000")
        e("s_and_b32 s43, s42, 15"); e("s_lshl_b32 s43, s43, 2"); e("s_add_u32 s43, s43, s33"); e("s_lshl_b32 s43, s43, 10")
        e("buffer_load_dwordx4 v[24:27], v12, s[44:47], s43 offen")
    e("s_lshl_b32 s43, s35, 2"); e("s_add_u32 s43, s43, s33"); e(f"s_mul_i32 s72, s43, {14*512}")
    e("s_lshl_b32 s44, s36, 9"); e("s_add_u32 s73, s72, s44")
    e("s_lshl_b32 s74, s36, 6"); e("s_add_u32 s74, s74, s43"); e("s_lshl_b32 s74, s74, 2")
    e("v_and_b32 v4, 7, v1"); e("v_lshl_add_u32 v4, v3, 3, v4"); e("v_bfe_u32 v5, v1, 3, 1"); e("v_lshlrev_b32 v5, 3, v5")
    e("v_lshl_add_u32 v230, v4, 4, v5")
    k.srd(28, 14, 15, ST2_BYTES, WS_ST2)
    k.srd(24, 14, 15, ZF_BYTES, WS_Z2F)
    k.srd(20, 14, 15, ZF_BYTES, WS_Z1F)
    k.srd(FLS, 14, 15, FL_BYTES, WS_FL)
    for c in range(4):
        e(f"s_xor_b32 s43, s33, {c}")
        e("s_lshl_b32 s44, s36, 2"); e("s_add_u32 s43, s43, s44"); e("s_sub_u32 s43, s43, 2")
        e(f"s_cmp_lt_u32 s43, 54"); e(f"s_cselect_b32 s{50+c}, -1, 0")
        e("s_cselect_b32 s43, s43, 60")
        e(f"s_lshl_b32 s{46+c}, s43, 16")
        e("s_lshl_b32 s44, s35, 2"); e("s_add_u32 s44, s44, s33"); e("s_lshl_b32 s44, s44, 10")
        e(f"s_add_u32 s{46+c}, s{46+c}, s44")
    for b in range(2):
        for g in range(2):
            e("s_lshr_b32 s43, s33, 1"); e(f"s_xor_b32 s43, s43, {g}"); e("s_lshl_b32 s44, s36, 1"); e("s_add_u32 s43, s43, s44")
            e("s_lshl_b32 s44, s35, 3"); e("s_lshl_b32 s45, s33, 1"); e("s_add_u32 s44, s44, s45"); e(f"s_add_u32 s44, s44, {b}")
            e("s_mul_i32 s44, s44, 27"); e("s_add_u32 s44, s44, s43"); e("s_lshl_b32 s44, s44, 10")
            e("s_cmp_lt_u32 s43, 27"); e(f"s_cselect_b32 s{68+b*2+g}, s44, {HUGE}")
    e("v_and_b32 v4, 2, v1"); e("v_and_b32 v5, 1, v1")
    e("v_cmp_ne_u32 s[54:55], 0, v4"); e("v_cmp_ne_u32 s[56:57], 0, v5")
    e("s_lshl_b32 s43, s33, 5")
    e("v_add_u32 v4, s43, v2"); e("v_lshlrev_b32 v4, 7, v4")
    e("v_lshrrev_b32 v5, 1, v2"); e("v_xor_b32 v5, v5, v3")
    e("v_lshl_add_u32 v14, v5, 4, v4")
    e("v_xor_b32 v15, 64, v14")
    e("v_bfe_u32 v4, v1, 2, 2")
    e("v_lshl_add_u32 v5, v3, 3, v4"); e("v_lshlrev_b32 v5, 7, v5")
    e("v_and_b32 v6, 3, v1"); e("v_lshl_add_u32 v5, v6, 3, v5")
    e("v_add_u32 v5, 16384, v5")
    e("v_lshrrev_b32 v6, 1, v4"); e("v_and_b32 v7, 1, v3"); e("v_lshl_or_b32 v6, v7, 1, v6")
    e("v_xor_b32 v6, s33, v6")
    for c in range(4):
        e(f"v_xor_b32 v7, {c}, v6"); e(f"v_lshl_add_u32 v{16+c}, v7, 5, v5")
    for i in range(4): e(f"v_mov_b32 v{20+i}, 0x3f803f80")
    ACC = 104
    for i in range(ACC, 192): e(f"v_mov_b32 v{i}, 0")
    def xf(ks, b): return v(24 + 40*ks + 4*b, 4)
    def wfb(ks, h, c): return 24 + 40*ks + 8 + 16*h + 4*c
    def wf(ks, h, c): return v(wfb(ks, h, c), 4)
    def accb(h, b, c): return ACC + 32*h + (b*4 + c)*4
    def acc(h, b, c): return v(accb(h, b, c), 4)
    def rlist(ks):
        L = [f"ds_read_b128 {xf(ks,b)}, v{14+ks} offset:{2048*b}" for b in range(2)]
        for h in range(2):
            for c in range(4):
                for hh in range(2):
                    L.append(f"ds_read_b64_tr_b16 {v(wfb(ks,h,c)+2*hh,2)}, v{16+c} offset:{h*8192+ks*4096+hh*512}")
        return L
    def mlist(ks):
        L = []
        for b in range(2):
            L.append(f"{MFMA} {v(168+4*b,4)}, v[20:23], {xf(ks,b)}, {v(168+4*b,4)}")
            L.append(f"{MFMA} {v(176+4*b,4)}, {xf(ks,b)}, {xf(ks,b)}, {v(176+4*b,4)}")
        for h in range(2):
            L.append(f"{MFMA} {v(184+4*h,4)}, v[20:23], {wf(ks,h,0)}, {v(184+4*h,4)}")
            for c in range(4):
                for b in range(2):
                    if h == 0: L.append(f"{MFMA} {acc(h,b,c)}, {xf(ks,b)}, {wf(ks,h,c)}, {acc(h,b,c)}")
                    else:      L.append(f"{MFMA} {acc(h,b,c)}, {wf(ks,h,c)}, {xf(ks,b)}, {acc(h,b,c)}")
        return L
    def phase(ks, rd, extra=()):
        M = mlist(ks); R = list(rd); X = list(extra)
        for i, m in enumerate(M):
            e(m)
            if R: e(R.pop(0))
            elif X:
                for _ in range(2):
                    if X: e(X.pop(0))
        for x in X: e(x)
    bump = [f"v_add_u32 v{r}, 0x8000, v{r}" for r in range(14, 20)]
    wrap = [f"v_and_b32 v{r}, 0x1ffff, v{r}" for r in range(14, 20)]
    k.stamp(1)
    e("s_mov_b32 s40, 10")
    e("s_barrier")
    k.stamp(2)
    for r in rlist(0): e(r)
    k.label("m_loop1")
    e("s_waitcnt lgkmcnt(0)")
    phase(0, rlist(1), bump + wrap)
    e("s_sub_u32 s40, s40, 1"); e("s_cmp_eq_u32 s40, 0")
    e("s_waitcnt lgkmcnt(0)")
    e(f"s_cbranch_scc1 m_tail1")
    e("s_barrier")
    phase(1, rlist(0))
    e("s_cmp_lg_u32 s40, 5"); e("s_cbranch_scc1 m_loop1")
    e("s_cmp_lg_u32 s33, 0"); e("s_cbranch_scc1 m_loop1")
    e("buffer_load_dword v11, v10, s[64:67], 0 offen sc1")
    e(f"s_branch m_loop1")
    k.label(f"m_tail1")
    phase(1, [])
    e("s_setprio 2")
    k.stamp(3)
    e("s_lshl_b32 s43, s33, 6"); e(f"s_add_u32 s43, s43, {MISC+1024}")
    e("v_lshl_add_u32 v8, v2, 2, s43")
    e("v_and_b32 v4, 3, v1")
    e("v_cmp_eq_u32 s[44:45], 1, v4"); e("v_cmp_eq_u32 s[58:59], 2, v4"); e("v_cmp_eq_u32 vcc, 3, v4")
    e("s_nop 2")
    e("ds_write_b32 v8, v184"); e("ds_write_b32 v8, v188 offset:256")
    e(f"v_mov_b32 v9, {W_EPOCH}")
    def epoch_poll(tag):
        e("s_mov_b32 s40, 0")
        k.label(f"m_eppoll{tag}")
        e("s_waitcnt vmcnt(0)")
        e("v_readfirstlane_b32 s43, v11")
        e("s_add_u32 s40, s40, 1")
        e("s_cmp_lg_u32 s43, 0"); e(f"s_cbranch_scc1 m_epok{tag}")
        e("buffer_load_dword v11, v10, s[64:67], 0 offen sc1")
        e(f"s_cmp_lt_u32 s40, {SPIN}"); e(f"s_cbranch_scc1 m_eppoll{tag}")
        k.label(f"m_epok{tag}")
        e("ds_write_b32 v9, v11")
    e("s_cmp_lg_u32 s33, 0"); e("s_cbranch_scc1 m_epdone")
    epoch_poll("g")
    k.label("m_epdone")
    e("s_waitcnt lgkmcnt(0)")
    e("s_barrier")
    for b in range(2):
        q0 = 176 + 4*b
        e(f"v_cndmask_b32 v{q0}, v{q0}, v{q0+1}, s[44:45]"); e(f"v_cndmask_b32 v{q0}, v{q0}, v{q0+2}, s[58:59]"); e(f"v_cndmask_b32 v{q0}, v{q0}, v{q0+3}, vcc")
        e(f"v_mul_f32 v{168+4*b}, {f32(1/640)}, v{168+4*b}")
        e(f"v_mul_f32 v{q0}, {f32(1/640)}, v{q0}")
        e(f"v_fma_f32 v{q0}, -v{168+4*b}, v{168+4*b}, v{q0}")
    for c in range(4):
        e(f"s_xor_b32 s43, s33, {c}"); e(f"s_lshl_b32 s43, s43, 6"); e(f"s_add_u32 s43, s43, {MISC+1024}")
        e(f"v_lshl_add_u32 v5, v2, 2, s43"); e(f"v_lshl_add_u32 v6, v3, 4, s43")
        e(f"ds_read_b32 v{40+2*c}, v5")
        e(f"ds_read_b128 {v(64+4*c,4)}, v6 offset:256")
    e("ds_read_b32 v229, v9")
    for b in range(2): ln_finish(k, f"v{168+4*b}", f"v{176+4*b}", "v7")
    e("s_lshl_b32 s43, s33, 7"); e(f"s_add_u32 s43, s43, {MISC}")
    e("v_lshl_add_u32 v7, v2, 2, s43")
    e("v_lshl_add_u32 v8, v3, 4, s43")
    e("v_lshrrev_b32 v4, 2, v2")
    e("v_cmp_eq_u32 vcc, v4, v3")
    e("s_and_saveexec_b64 s[44:45], vcc")
    for b in range(2):
        e(f"ds_write_b32 v7, v{168+4*b} offset:{64*b}"); e(f"ds_write_b32 v7, v{176+4*b} offset:{512+64*b}")
    e("s_mov_b64 exec, s[44:45]")
    e("ds_read_b128 v[24:27], v8"); e("ds_read_b128 v[28:31], v8 offset:64")
    e("ds_read_b128 v[32:35], v8 offset:512"); e("ds_read_b128 v[36:39], v8 offset:576")
    e("ds_read_b32 v80, v7"); e("ds_read_b32 v82, v7 offset:64"); e("ds_read_b32 v84, v7 offset:512"); e("ds_read_b32 v86, v7 offset:576")
    e(f"v_mov_b32 v88, {f32(GC1)}"); e(f"v_mov_b32 v90, {f32(GC0)}")
    for i in range(168, 184): e(f"v_mov_b32 v{i}, 0")
    e("s_waitcnt lgkmcnt(0)")
    e("v_readfirstlane_b32 s3, v229")
    def gelu_pairs(A):
        n = len(A); T = [48 + 2*i for i in range(n)]
        for i in range(n): e(f"v_cvt_pk_bf16_f32 v{T[i]}, v{A[i]}, v{A[i]+1}")
        for i in range(n): unpack(k, f"v{A[i]}", f"v{A[i]+1}", f"v{T[i]}")
        for i in range(n): e(f"v_pk_mul_f32 {pr(T[i])}, {pr(A[i])}, {pr(A[i])}")
        for i in range(n): e(f"v_pk_fma_f32 {pr(T[i])}, {pr(T[i])}, v[88:89], v[90:91] op_sel_hi:[1,0,0]")
        for i in range(n): e(f"v_pk_mul_f32 {pr(T[i])}, {pr(T[i])}, {pr(A[i])}")
        for i in range(n): e(f"v_exp_f32 v{T[i]}, v{T[i]}"); e(f"v_exp_f32 v{T[i]+1}, v{T[i]+1}")
        for i in range(n): e(f"v_pk_add_f32 {pr(T[i])}, {pr(T[i])}, 1.0 op_sel_hi:[1,0]")
        for i in range(n): e(f"v_rcp_f32 v{T[i]}, v{T[i]}"); e(f"v_rcp_f32 v{T[i]+1}, v{T[i]+1}")
        for i in range(n): e(f"v_pk_mul_f32 {pr(A[i])}, {pr(A[i])}, {pr(T[i])}")
    for c0 in (0, 2):
        A = [accb(0, b, c) + 2*p for c in (c0, c0+1) for b in range(2) for p in range(2)]
        M = [24 + 4*b + 2*p for c in (c0, c0+1) for b in range(2) for p in range(2)]
        C = [40 + 2*c for c in (c0, c0+1) for b in range(2) for p in range(2)]
        for i in range(8): e(f"v_pk_fma_f32 {pr(A[i])}, {pr(M[i])}, {pr(C[i])}, {pr(A[i])} op_sel_hi:[1,0,1] neg_lo:[1,0,0] neg_hi:[1,0,0]")
        for i in range(8): e(f"v_pk_mul_f32 {pr(A[i])}, {pr(A[i])}, {pr(M[i]+8)}")
        gelu_pairs(A)
        for i in range(8): e(f"v_cvt_pk_bf16_f32 v{48+i}, v{A[i]}, v{A[i]+1}")
        for i in range(8): e(f"v_and_b32 v{48+i}, s{50+c0+i//4}, v{48+i}")
        for i in range(8): unpack(k, f"v{A[i]}", f"v{A[i]+1}", f"v{48+i}")
        for i in range(8):
            n = (i % 4) * 2
            e(f"v_pk_add_f32 {pr(168+n)}, {pr(168+n)}, {pr(A[i])}")
            e(f"v_pk_fma_f32 {pr(176+n)}, {pr(A[i])}, {pr(A[i])}, {pr(176+n)}")
    e("s_nop 0")
    for n in range(8): e(f"v_add_f32_dpp v{48+n}, v{168+n}, v{168+n} row_ror:8 row_mask:0xf bank_mask:0x3")
    for n in range(8): e(f"v_add_f32_dpp v{48+n}, v{176+n}, v{176+n} row_ror:8 row_mask:0xf bank_mask:0xc")
    for n in range(4): e(f"v_add_f32_dpp v{168+n}, v{48+n}, v{48+n} row_half_mirror row_mask:0xf bank_mask:0x5")
    for n in range(4): e(f"v_add_f32_dpp v{168+n}, v{52+n}, v{52+n} row_half_mirror row_mask:0xf bank_mask:0xa")
    for n in range(2):
        e(f"v_cndmask_b32 v{172+n}, v{170+n}, v{168+n}, s[54:55]")
        e(f"v_cndmask_b32 v{174+n}, v{168+n}, v{170+n}, s[54:55]")
    e("s_nop 0")
    for n in range(2): e(f"v_add_f32_dpp v{176+n}, v{172+n}, v{174+n} quad_perm:[2,3,0,1] row_mask:0xf bank_mask:0xf")
    e("v_cndmask_b32 v172, v177, v176, s[56:57]"); e("v_cndmask_b32 v174, v176, v177, s[56:57]")
    e("s_nop 1")
    e("v_add_f32_dpp v228, v172, v174 quad_perm:[1,0,3,2] row_mask:0xf bank_mask:0xf")
    e("buffer_store_dwordx2 v[228:229], v230, s[28:31], s73 offen sc1")
    e("s_setprio 0")
    k.stamp(4)
    P1 = 168
    for c0 in (0, 2):
        A = [accb(1, b, c) + 2*p for c in (c0, c0+1) for b in range(2) for p in range(2)]
        M = [80 + 2*b for c in (c0, c0+1) for b in range(2) for p in range(2)]
        C = [64 + 4*c + 2*p for c in (c0, c0+1) for b in range(2) for p in range(2)]
        for i in range(8): e(f"v_pk_fma_f32 {pr(A[i])}, {pr(M[i])}, {pr(C[i])}, {pr(A[i])} op_sel_hi:[0,1,1] neg_lo:[1,0,0] neg_hi:[1,0,0]")
        for i in range(8): e(f"v_pk_mul_f32 {pr(A[i])}, {pr(A[i])}, {pr(M[i]+4)} op_sel_hi:[1,0]")
        gelu_pairs(A)
        i = 0
        for c in (c0, c0+1):
            for b in range(2):
                for p in range(2):
                    e(f"v_cvt_pk_bf16_f32 v{P1+b*8+c*2+p}, v{A[i]}, v{A[i]+1}"); i += 1
        if c0 == 0: poll_loads()
    e("s_bitcmp1_b32 s33, 0"); e("s_cbranch_scc0 m_noswap")
    for b in range(2):
        for g in range(2):
            for p in range(2):
                r0 = P1 + b*8 + g*4 + p
                e(f"v_swap_b32 v{r0}, v{r0+2}")
    k.label("m_noswap")
    e("s_setprio 2")
    e("s_mov_b32 s40, 0")
    e("s_waitcnt vmcnt(0)")
    for b in range(2):
        for g in range(2):
            e(f"buffer_store_dwordx4 {v(P1+b*8+g*4,4)}, v12, s[20:23], s{68+b*2+g} offen sc1")
    e("s_branch m_check")
    k.label("m_poll")
    poll_loads()
    e("s_waitcnt vmcnt(0)")
    k.label("m_check")
    e(f"v_xor_b32 v4, v{PL+1}, v229"); e(f"v_xor_b32 v5, v{PL+3}, v229")
    for i in range(1, 7):
        e(f"v_xor_b32 v9, v{PL+1+4*i}, v229"); e(f"v_xor_b32 v10, v{PL+3+4*i}, v229")
        e("v_or3_b32 v4, v4, v9, v10")
    e("v_or_b32 v4, v4, v5")
    e("v_cmp_ne_u32 vcc, 0, v4")
    e("s_add_u32 s40, s40, 1")
    e("s_nop 0")
    e("s_cbranch_vccz m_poll_done")
    e(f"s_cmp_lt_u32 s40, {SPIN}"); e("s_cbranch_scc1 m_poll")
    k.label("m_poll_done")
    k.stamp(5)
    for i in range(1, 7):
        e(f"v_add_f32 v{PL}, v{PL}, v{PL+4*i}"); e(f"v_add_f32 v{PL+2}, v{PL+2}, v{PL+2+4*i}")
    e(f"v_mov_b32 v{PL+1}, v{PL}"); e(f"v_mov_b32 v{PL+3}, v{PL+2}"); e("s_nop 1")
    e(f"v_permlane32_swap_b32 v{PL}, v{PL+1}"); e(f"v_permlane32_swap_b32 v{PL+2}, v{PL+3}"); e("s_nop 1")
    e(f"v_add_f32 v24, v{PL}, v{PL+1}"); e(f"v_add_f32 v26, v{PL+2}, v{PL+3}")
    e(f"v_mul_f32 v24, {f32(1/864)}, v24"); e(f"v_mul_f32 v26, {f32(1/864)}, v26")
    e("v_fma_f32 v26, -v24, v24, v26")
    ln_finish(k, "v24", "v26", "v25")
    e("s_lshl_b32 s43, s33, 8"); e(f"s_add_u32 s43, s43, {MISC+1536}")
    e("v_and_b32 v4, 31, v1"); e("v_lshl_add_u32 v4, v4, 2, s43"); e("v_lshl_add_u32 v5, v3, 5, s43")
    e("ds_write_b32 v4, v24"); e("ds_write_b32 v4, v26 offset:128")
    e("ds_read_b128 v[28:31], v5"); e("ds_read_b128 v[32:35], v5 offset:16")
    e("ds_read_b128 v[36:39], v5 offset:128"); e("ds_read_b128 v[40:43], v5 offset:144")
    e("s_waitcnt lgkmcnt(0)")
    for c0 in (0, 2):
        A = [accb(0, b, c) + 2*p for c in (c0, c0+1) for b in range(2) for p in range(2)]
        M = [28 + (i % 4)*2 for i in range(8)]
        for i in range(8): e(f"v_pk_add_f32 {pr(A[i])}, {pr(A[i])}, {pr(M[i])} neg_lo:[0,1] neg_hi:[0,1]")
        for i in range(8): e(f"v_cvt_pk_bf16_f32 v{48+i}, v{A[i]}, v{A[i]+1}")
        for i in range(8): unpack(k, f"v{A[i]}", f"v{A[i]+1}", f"v{48+i}")
        for i in range(8): e(f"v_pk_mul_f32 {pr(A[i])}, {pr(A[i])}, {pr(M[i]+8)}")
        for i in range(8): e(f"v_cvt_pk_bf16_f32 v{64+4*c0+i}, v{A[i]}, v{A[i]+1}")
        for c in (c0, c0+1): e(f"buffer_store_dwordx4 {v(64+4*c,4)}, v12, s[24:27], s{46+c} offen sc1")
    k.end(0)
    gen_helper(k, epoch_poll)
    k.label("m_end")
    e("s_endpgm")
    return k.text(232, nsgpr=100)

def gen_b(name):
    k = Kern(name)
    e = k.e
    e("s_cmp_ge_u32 s2, 256"); e("s_cbranch_scc1 b_end")
    k.stamp_init()
    e("s_load_dwordx2 s[4:5], s[0:1], 0")
    e("s_load_dwordx4 s[8:11], s[0:1], 64")
    e("s_load_dwordx4 s[12:15], s[0:1], 104")
    e("s_load_dwordx4 s[96:99], s[0:1], 88")
    e("s_load_dwordx2 s[54:55], s[0:1], 48")
    e("v_and_b32 v1, 63, v0")
    e("v_lshrrev_b32 v2, 6, v0")
    e("s_and_b32 s41, s2, 7")
    e("v_readfirstlane_b32 s32, v2")
    e("s_lshr_b32 s42, s2, 3")
    e("s_and_b32 s33, s32, 3")
    e("v_and_b32 v2, 15, v1"); e("v_lshrrev_b32 v3, 4, v1")
    e("s_lshr_b32 s35, s41, 1"); e("s_lshl_b32 s35, s35, 3"); e("s_lshr_b32 s43, s42, 2"); e("s_add_u32 s35, s35, s43")
    e("s_waitcnt lgkmcnt(0)")
    k.srd(FLS, 14, 15, FL_BYTES, WS_FL)
    e("s_cmp_ge_u32 s32, 4"); e("s_cbranch_scc1 m_P2")
    e("s_cmp_lg_u32 s32, 3"); e("s_cbranch_scc1 b_conv")
    e("v_mov_b32 v10, 0"); e(f"v_lshlrev_b32 v4, 2, v2"); e(f"v_add_u32 v4, {W_EPOCH}, v4")
    e("ds_write_b32 v4, v10")
    k.srd(64, 12, 13, 256)
    e("s_cmp_lg_u32 s2, 0"); e("s_cbranch_scc1 b_noep")
    e("s_memrealtime s[44:45]"); e("s_waitcnt lgkmcnt(0)"); e("s_or_b32 s44, s44, 1"); e("v_mov_b32 v4, s44")
    e("s_mov_b64 exec, 1")
    e("buffer_store_dword v4, v10, s[64:67], 0 offen sc1")
    e("s_mov_b64 exec, -1")
    k.label("b_noep")
    e("s_waitcnt lgkmcnt(0)")
    e("s_barrier")
    e(f"v_mov_b32 v9, {W_EPOCH}"); e("s_mov_b32 s40, 0")
    k.label("b_eppoll")
    e("s_sleep 16")
    e("buffer_load_dword v11, v10, s[64:67], 0 offen sc1")
    e("s_add_u32 s40, s40, 1")
    e("s_waitcnt vmcnt(0)")
    e("v_readfirstlane_b32 s3, v11")
    e(f"s_cmp_ge_u32 s40, {SPIN}"); e("s_cbranch_scc1 b_epok")
    e("s_cmp_eq_u32 s3, 0"); e("s_cbranch_scc1 b_eppoll")
    k.label("b_epok")
    e("ds_write_b32 v9, v11")
    e("s_branch m_L3prep")
    k.label("b_conv")
    e("s_lshl_b32 s34, s2, 1"); e("s_add_u32 s34, s34, s32")
    e("s_lshl_b32 s56, s41, 4"); e("s_lshr_b32 s57, s42, 1"); e("s_add_u32 s56, s56, s57"); e("s_add_u32 s56, s56, 512")
    e("s_bitcmp1_b32 s42, 0"); e("s_cselect_b32 s56, s56, 1000")
    e("s_cmp_eq_u32 s32, 2"); e("s_cselect_b32 s34, s56, s34")
    e(f"s_mul_i32 s39, s32, {CONV_B}"); e(f"s_add_u32 s39, s39, {CONV0}")
    UO, KC = 8320, 12928
    e("v_lshlrev_b32 v15, 4, v1"); e("v_mov_b32 v5, 0")
    e("s_mul_i32 s43, s34, 1536"); e("s_lshl_b32 s44, s34, 1"); e("s_lshl_b32 s45, s34, 12")
    e(f"s_add_u32 m0, s39, {KC}")
    k.srd(28, 14, 15, KC_BYTES, WS_KC)
    e("buffer_load_dwordx4 v15, s[28:31], s43 offen lds")
    e("s_mov_b32 exec_hi, 0")
    e("buffer_load_dwordx4 v15, s[28:31], s43 offen offset:1024 lds")
    e("s_mov_b64 exec, -1")
    k.srd(20, 14, 15, XT_BYTES, WS_XNT)
    k.srd(24, 14, 15, XT_BYTES, WS_YT)
    e(f"s_add_u32 m0, s39, {UO+512}")
    k.srd(28, 54, 55, 1280)
    for n in range(4): e(f"buffer_load_dwordx4 v15, s[20:23], s45 offen offset:{n*1024} lds")
    e("buffer_load_ushort v14, v5, s[28:31], s44 offen")
    e("s_barrier")
    e("s_cmp_ge_u32 s34, 640"); e("s_cbranch_scc1 b_noconv")
    e(f"s_add_u32 s43, s39, {KC}")
    e("v_mov_b32 v20, 0"); e("v_mov_b32 v21, 0"); e("v_mov_b32 v22, 0"); e("v_mov_b32 v23, 0")
    e("v_add_u32 v16, s39, v15")
    e("v_lshl_add_u32 v17, v1, 3, s39")
    e(f"ds_write_b64 v17, v[20:21] offset:{UO}")
    e("s_mov_b64 exec, 3")
    e("ds_write_b128 v16, v[20:23] offset:4096"); e(f"ds_write_b128 v16, v[20:23] offset:{4160+4096}")
    e("s_mov_b64 exec, -1")
    e(f"s_add_u32 s44, s39, {KC + 256 - 2*0x4300}")
    e(f"v_mov_b32 v31, {f32(128.0)}")
    e("v_lshlrev_b32 v18, 3, v1"); e("v_cvt_f32_u32 v18, v18")
    k.stamp(3)
    for m in range(4):
        for el in range(10): e(f"v_sub_f32 v{96+el}, {f32(2047 - 512*m - el)}, v18")
        if m == 3: e("v_max_f32 v104, 0, v104")
        for p in range(5): e(f"v_cvt_pk_bf16_f32 v{108+p}, v{96+2*p}, v{97+2*p}")
        for el in range(9):
            a = f"v{114+el}"
            if el % 2 == 0: e(f"v_and_b32 {a}, 0xffff, v{108+el//2}")
            else: e(f"v_lshrrev_b32 {a}, 16, v{108+el//2}")
            e(f"v_lshl_add_u32 {a}, {a}, 1, s44")
            if m == 3:
                e(f"v_cvt_u32_f32 v19, v{96+el}"); e("v_lshl_add_u32 v19, v19, 1, s43")
                e(f"v_cmp_lt_f32 vcc, v{96+el}, v31"); e("s_nop 1"); e(f"v_cndmask_b32 {a}, {a}, v19, vcc")
        if m == 0: e("s_waitcnt vmcnt(5)"); k.stamp(4)
        for el in range(9): e(f"ds_read_u16 v{144+9*m+el}, v{114+el}")
    e("s_waitcnt lgkmcnt(0)")
    e("v_cmp_eq_u32 vcc, 63, v1"); e("s_nop 1"); e(f"v_cndmask_b32 v{144+35}, v{144+35}, v20, vcc")
    for m in range(4):
        W = 32 + 16*m; E = 144 + 9*m
        for p in range(4):
            e(f"v_lshl_or_b32 v{W+p}, v{E+2*p+1}, 16, v{E+2*p}")
            e(f"v_lshl_or_b32 v{W+8+p}, v{E+2*p+2}, 16, v{E+2*p+1}")
        e(f"ds_write_b128 v16, {v(W,4)} offset:{1024*m}")
        e(f"ds_write_b128 v16, {v(W+8,4)} offset:{4160+1024*m}")
    e("s_waitcnt vmcnt(0)")
    k.stamp(5)
    e("v_and_b32 v4, 1, v2"); e("v_xor_b32 v4, 1, v4"); e("v_mul_u32_u24 v4, 4160, v4")
    e("v_lshrrev_b32 v5, 1, v2"); e("v_lshlrev_b32 v6, 2, v3"); e("v_sub_u32 v5, v6, v5")
    e("v_lshl_add_u32 v4, v5, 2, v4"); e("v_add_u32 v4, s39, v4")
    for mp in range(4): e(f"v_add_u32 v{24+mp}, {4*(1023 - 8 - 128*(2*mp+1))}, v4")
    e("v_lshlrev_b32 v5, 5, v2"); e("v_lshl_add_u32 v5, v3, 4, v5")
    e(f"s_add_u32 s43, s39, {UO+480}"); e("v_add_u32 v28, s43, v5")
    def Af(m): return 32 + 4*m
    def Bf(r): return 64 + 4*r
    def ac(cb): return v(96 + 4*cb, 4)
    for i in range(32): e(f"v_mov_b32 v{96+i}, 0")
    e("v_lshlrev_b32 v14, 16, v14")
    e("s_waitcnt lgkmcnt(0)")
    def rdA(m):
        o = 0 if m & 1 else 128
        e(f"ds_read2_b32 {v(Af(m),2)}, v{24+m//2} offset0:{o} offset1:{o+1}"); e(f"ds_read2_b32 {v(Af(m)+2,2)}, v{24+m//2} offset0:{o+2} offset1:{o+3}")
    def rdB(r): e(f"ds_read_b128 {v(Bf(r),4)}, v28 offset:{512*r}")
    for m in range(8): rdA(m); rdB(7-m)
    e("s_mov_b32 s40, 8")
    k.label("m_cloop")
    for r in range(24, 29): e(f"v_subrev_u32 v{r}, 64, v{r}")
    for m in range(8):
        for cb in (range(7, -1, -1) if m == 0 else range(m, 8)):
            if m == 0: e(f"s_waitcnt lgkmcnt({min(3*cb, 15)})")
            e(f"{MFMA} {ac(cb)}, {v(Af(m),4)}, {v(Bf(cb-m),4)}, {ac(cb)}")
        rdA(m); rdB(7-m)
    e("s_sub_u32 s40, s40, 1"); e("s_cmp_lg_u32 s40, 0"); e("s_cbranch_scc1 m_cloop")
    k.stamp(6)
    e("s_waitcnt lgkmcnt(0)")
    e("v_lshlrev_b32 v20, 5, v2"); e("v_lshl_add_u32 v20, v3, 3, v20")
    e(f"s_add_u32 s43, s39, {UO+512}"); e("v_add_u32 v21, s43, v20")
    for cb in range(8): e(f"ds_read_b64 {v(32+2*cb,2)}, v21 offset:{512*cb}")
    e("s_waitcnt lgkmcnt(0)")
    for c0 in (0, 4):
        A = [96 + 4*cb + 2*p for cb in range(c0, c0+4) for p in range(2)]
        U = [32 + 2*cb + p for cb in range(c0, c0+4) for p in range(2)]
        for i in range(8): e(f"v_cvt_pk_bf16_f32 v{64+i}, v{A[i]}, v{A[i]+1}")
        for i in range(8): unpack(k, f"v{72+2*i}", f"v{73+2*i}", f"v{U[i]}")
        for i in range(8): unpack(k, f"v{A[i]}", f"v{A[i]+1}", f"v{64+i}")
        for i in range(8): e(f"v_pk_mul_f32 {pr(72+2*i)}, {pr(72+2*i)}, v[14:15] op_sel_hi:[1,0]")
        for i in range(8): e(f"v_cvt_pk_bf16_f32 v{64+i}, v{72+2*i}, v{73+2*i}")
        for i in range(8): unpack(k, f"v{72+2*i}", f"v{73+2*i}", f"v{64+i}")
        for i in range(8): e(f"v_pk_add_f32 {pr(A[i])}, {pr(A[i])}, {pr(72+2*i)}")
        for i in range(8): e(f"v_cvt_pk_bf16_f32 v{U[i]}, v{A[i]}, v{A[i]+1}")
        for cb in range(c0, c0+4): e(f"ds_write_b64 v21, {v(32+2*cb,2)} offset:{512*cb}")
    for n in range(4): e(f"ds_read_b128 {v(64+4*n,4)}, v16 offset:{UO+512+1024*n}")
    for n in range(4):
        e(f"s_waitcnt lgkmcnt({3-n})")
        e(f"buffer_store_dwordx4 {v(64+4*n,4)}, v15, s[24:27], s45 offen offset:{1024*n} sc1")
    e(f"v_mov_b32 v4, {W_EPOCH}")
    lds_wait(k, "b_wep", "v4", "v5")
    e("s_mov_b32 s3, s43")
    e("s_lshl_b32 s43, s34, 2"); e(f"s_add_u32 s43, s43, {FY}")
    set_flag(k, FLS, "s43", 0, "v4", "v5")
    k.stamp(7)
    k.label("b_noconv")
    e(f"v_mov_b32 v4, {W_EPOCH}")
    lds_wait(k, "b_wep2", "v4", "v5", sleep=4)
    e("s_mov_b32 s3, s43")
    k.label("m_L3prep")
    e("s_and_b32 s36, s41, 1"); e("s_lshl_b32 s36, s36, 2"); e("s_and_b32 s43, s42, 3"); e("s_add_u32 s36, s36, s43")
    e("s_lshl_b32 s43, s33, 2"); e(f"s_add_u32 s43, s43, {W_GL}"); e("v_mov_b32 v4, s43")
    lds_wait(k, "m_wgl", "v4", "v5", sleep=8)
    k.stamp(8)
    e("s_mul_i32 s46, s33, 15"); e("s_add_u32 s46, s46, 42")
    e("s_cmp_eq_u32 s33, 3"); e("s_cselect_b32 s47, 48, 15")
    e("s_branch m_P3")
    gen_p2(k)
    gen_p3(k)
    k.label("b_end")
    e("s_endpgm")
    return k.text(256, nsgpr=100)

def gen_p2(k):
    e = k.e
    k.label("m_P2")
    k.stamp(6)
    e("s_load_dwordx2 s[6:7], s[0:1], 80")
    e("s_lshr_b32 s35, s41, 1"); e("s_lshl_b32 s35, s35, 3"); e("s_lshr_b32 s43, s42, 2"); e("s_add_u32 s35, s35, s43")
    e("s_and_b32 s36, s42, 3")
    e("s_and_b32 s43, s41, 1"); e("s_mul_i32 s43, s43, 27"); e("s_mul_i32 s44, s36, 7"); e("s_add_u32 s37, s43, s44")
    e("v_and_b32 v240, 15, v1"); e("v_lshrrev_b32 v241, 4, v1"); e("v_mov_b32 v245, v1")
    e("v_lshrrev_b32 v2, 5, v1"); e("v_lshlrev_b32 v2, 3, v2"); e("v_bfe_u32 v3, v1, 3, 2"); e("v_add_u32 v2, v2, v3")
    e("v_lshlrev_b32 v2, 12, v2")
    e("v_and_b32 v3, 7, v1"); e("v_xor_b32 v3, v3, v241")
    e("v_lshl_add_u32 v242, v3, 4, v2")
    e("v_xor_b32 v3, 4, v3")
    e("v_lshl_add_u32 v243, v3, 4, v2"); e(f"v_add_u32 v243, {16*4096 - 1024}, v243")
    e("v_lshlrev_b32 v244, 4, v1")
    e("s_lshl_b32 s43, s35, 18"); e("s_lshl_b32 s44, s33, 10"); e("s_add_u32 s48, s43, s44")
    e(f"s_add_u32 s49, s48, {4*4096}"); e(f"s_add_u32 s50, s48, {32*4096}"); e(f"s_add_u32 s51, s48, {36*4096}")
    e("s_lshl_b32 s43, s37, 16"); e("s_lshl_b32 s44, s33, 14"); e("s_add_u32 s52, s43, s44")
    for c in range(1, 7): e(f"s_add_u32 s{52+c}, s52, {c*65536}")
    e("s_cmp_eq_u32 s36, 3"); e(f"s_cselect_b32 s58, {HUGE}, s58")
    e(f"s_mul_i32 s39, s33, {RING2}")
    k.srd(16, 10, 11, 2048*4096)
    k.srd(20, 14, 15, ZF_BYTES, WS_Z2F)
    k.srd(24, 14, 15, ZF_BYTES, WS_Z1F)
    k.srd(28, 14, 15, ZF_BYTES, WS_HF)
    def Z(st, c): return v(112 + st*28 + c*4, 4)
    def acc(c, sg): return v((c*4 + sg)*4, 4)
    def wf(sg): return v(224 + 4*sg, 4)
    def issueZ(n):
        if n % 4 == 0 and n:
            for c in range(7): e(f"s_add_u32 s{52+c}, s{52+c}, 4096")
        for c in range(7): k.vmem(f"buffer_load_dwordx4 {Z(n%4,c)}, v244, s[20:23], s{52+c} offen offset:{(n%4)*1024} sc1", f"Z{n}")
    def issueA(c):
        for t in range(4):
            e(f"s_add_u32 m0, s39, {(c%NSLOT)*8192 + t*2048}")
            e("s_nop 0")
            k.vmem(f"buffer_load_dwordx4 v242, s[16:19], s{48+t} offen lds", f"A{c}")
            k.vmem(f"buffer_load_dwordx4 v243, s[16:19], s{48+t} offen offset:1024 lds", f"A{c}")
        for t in range(4): e(f"s_add_u32 s{48+t}, s{48+t}, 128")
    k.vm = []
    issueZ(0); issueA(0); issueZ(1)
    e("s_barrier")
    issueZ(2); issueA(1); issueZ(3)
    e("v_lshrrev_b32 v5, 1, v240"); e("v_xor_b32 v5, v5, v241")
    e("v_lshlrev_b32 v4, 7, v240"); e("v_lshl_add_u32 v4, v5, 4, v4"); e("v_add_u32 v4, s39, v4")
    for sg in range(4):
        e(f"s_xor_b32 s43, s33, {sg}"); e("s_lshl_b32 s43, s43, 11")
        e(f"v_add_u32 v{246+sg}, s43, v4")
        e(f"v_xor_b32 v{250+sg}, 64, v{246+sg}")
    e("s_waitcnt lgkmcnt(0)")
    k.srd(64, 6, 7, 4096)
    e("s_setprio 3")
    k.stamp(7); k.cyc(12)
    for n in range(16):
        c, ks = n >> 1, n & 1
        if ks == 0 and f"A{c}" in k.vm: k.wait_vm(f"A{c}")
        for sg in range(4):
            e(f"ds_read_b128 {wf(sg)}, v{(250 if ks else 246)+sg} offset:{(c%NSLOT)*8192}")
        if f"Z{n}" in k.vm: k.wait_vm(f"Z{n}")
        if n == 0: k.stamp(8)
        order = (1, 3, 2, 0) if n == 15 else (0, 1, 2, 3)
        for ii, sg in enumerate(order):
            if n == 15:
                if ii == 0: e("s_waitcnt lgkmcnt(0)")
            else:
                e(f"s_waitcnt lgkmcnt({3-sg})")
            if ii == 3 and ks == 1 and c + NSLOT < 8: issueA(c + NSLOT)
            for cc in range(7):
                e(f"{MFMA} {acc(cc,sg)}, {Z(n%4,cc)}, {wf(sg)}, {'0' if n == 0 else acc(cc,sg)}")
        if n + 4 < 16: issueZ(n + 4)
        if n == 12:
            e("s_lshl_b32 s43, s35, 2"); e("s_add_u32 s43, s43, s33"); e("s_mul_i32 s44, s43, 27648")
            for cc in range(7):
                e(f"s_add_u32 s45, s37, {cc}"); e("s_lshr_b32 s46, s45, 1"); e("s_lshl_b32 s46, s46, 10"); e("s_and_b32 s45, s45, 1"); e("s_lshl_b32 s45, s45, 3")
                e("s_add_u32 s45, s45, s46"); e(f"s_add_u32 s{52+cc}, s45, s44")
            e("s_cmp_eq_u32 s36, 3"); e(f"s_cselect_b32 s58, {HUGE}, s58")
            for cc in range(7): k.vmem(f"buffer_load_dwordx2 {v(112+2*cc,2)}, v244, s[24:27], s{52+cc} offen sc1", "z1")
            e("s_lshr_b32 s44, s43, 1"); e("s_lshl_b32 s44, s44, 5"); e("s_and_b32 s45, s43, 1"); e("s_lshl_b32 s45, s45, 2"); e("s_add_u32 s44, s44, s45")
            e("v_lshrrev_b32 v128, 2, v240"); e("v_and_b32 v129, 3, v240"); e("v_lshl_add_u32 v128, v128, 3, v129"); e("v_add_u32 v128, s44, v128")
            e("v_lshlrev_b32 v128, 1, v128")
            k.vmem("buffer_load_ushort v126, v128, s[64:67], 0 offen", "z1")
        if n == 12:
            e("s_lshl_b32 s43, s33, 2"); e(f"s_add_u32 s43, s43, {W_GL}"); e("v_mov_b32 v254, s43"); e("v_mov_b32 v255, 1")
            e("ds_write_b32 v254, v255")
    k.stamp(9); k.cyc(13)
    e("v_add_u32 v130, s39, v244")
    e("s_xor_b32 s43, s33, 1"); e(f"s_mul_i32 s43, s43, {RING2}"); e("v_add_u32 v131, s43, v244")
    e("s_xor_b32 s43, s33, 3"); e(f"s_mul_i32 s43, s43, {RING2}"); e("v_add_u32 v132, s43, v244")
    e(f"v_add_u32 v133, {W_R1 - W_GL}, v254")
    e("v_xor_b32 v134, 4, v133"); e("v_xor_b32 v135, 8, v133"); e("v_add_u32 v135, 16, v135")
    for c in range(7):
        for h in range(2): e(f"ds_write_b128 v130, {acc(c,1+2*h)} offset:{(c*2+h)*1024}")
    e("ds_write_b32 v133, v255")
    lds_wait(k, "m_wr1", "v134", "v136")
    T = 140
    for h in (1, 0):
        for c in range(7): e(f"ds_read_b128 {v(T+(c*2+h)*4,4)}, v131 offset:{(c*2+h)*1024}")
    e("s_waitcnt lgkmcnt(7)")
    for c in range(7):
        for p in range(2):
            a = (c*4 + 2)*4 + 2*p
            e(f"v_pk_add_f32 {pr(a)}, {pr(a)}, {pr(T+(c*2+1)*4+2*p)}")
    e("s_waitcnt lgkmcnt(0)")
    for c in range(7): e(f"ds_write_b128 v131, {acc(c,2)} offset:{c*1024}")
    e("ds_write_b32 v133, v255 offset:16")
    for c in range(7):
        for p in range(2):
            a = (c*4)*4 + 2*p
            e(f"v_pk_add_f32 {pr(a)}, {pr(a)}, {pr(T+(c*2)*4+2*p)}")
    lds_wait(k, "m_wr2", "v135", "v136")
    for c in range(7): e(f"ds_read_b128 {v(T+c*4,4)}, v132 offset:{c*1024}")
    e("s_waitcnt vmcnt(0)")
    k.vm = []
    e("v_lshlrev_b32 v126, 16, v126")
    for i in range(14): unpack(k, f"v{170+2*i}", f"v{171+2*i}", f"v{112+i}")
    k.srd(16, 14, 15, WOF_BYTES, WS_WOF)
    e("s_and_b32 s43, s41, 1"); e("s_lshl_b32 s43, s43, 2"); e("s_add_u32 s45, s36, s43")
    e("s_xor_b32 s43, s33, 3"); e("s_lshl_b32 s46, s43, 4"); e("s_sub_i32 s46, s46, 22"); e("s_max_i32 s46, s46, 0")
    e("s_cmp_eq_u32 s43, 1"); e("s_cselect_b32 s47, 10, 16"); e("s_cmp_eq_u32 s43, 0"); e("s_cselect_b32 s47, 0, s47")
    e("s_lshl_b32 s46, s46, 10"); e("s_mul_i32 s48, s45, 138240"); e("s_add_u32 s48, s48, s46"); e(f"s_add_u32 s46, s46, {IMG}")
    e("s_waitcnt lgkmcnt(0)")
    e("s_cmp_eq_u32 s47, 0"); e("s_cbranch_scc1 m_gwodone")
    k.label("m_gwoloop")
    e("s_mov_b32 m0, s46"); e("s_add_u32 s46, s46, 2048")
    e("buffer_load_dwordx4 v244, s[16:19], s48 offen lds"); e("buffer_load_dwordx4 v244, s[16:19], s48 offen offset:1024 lds")
    e("s_add_u32 s48, s48, 2048"); e("s_sub_u32 s47, s47, 2"); e("s_cmp_lg_u32 s47, 0"); e("s_cbranch_scc1 m_gwoloop")
    k.label("m_gwodone")
    A = [c*16 + 2*p for c in range(7) for p in range(2)]
    for i in range(14): e(f"v_pk_add_f32 {pr(A[i])}, {pr(A[i])}, {pr(T+2*i)}")
    for i in range(14): e(f"v_cvt_pk_bf16_f32 v{T+i}, v{A[i]}, v{A[i]+1}")
    for i in range(14): unpack(k, f"v{A[i]}", f"v{A[i]+1}", f"v{T+i}")
    for i in range(14): e(f"v_pk_add_f32 {pr(A[i])}, {pr(A[i])}, v[126:127] op_sel_hi:[1,0]")
    for i in range(14): e(f"v_cvt_pk_bf16_f32 v{T+i}, v{A[i]}, v{A[i]+1}")
    for i in range(14): unpack(k, f"v{A[i]}", f"v{A[i]+1}", f"v{T+i}")
    for i in range(14): e(f"v_pk_mul_f32 {pr(A[i])}, {pr(A[i])}, {pr(170+2*i)}")
    for i in range(14): e(f"v_cvt_pk_bf16_f32 v{200+i}, v{A[i]}, v{A[i]+1}")
    e("s_bitcmp1_b32 s37, 0"); e("s_cbranch_scc1 m_hodd")
    for c in (0, 2, 4): e(f"buffer_store_dwordx4 {v(200+2*c,4)}, v244, s[28:31], s{52+c} offen sc1")
    e(f"buffer_store_dwordx2 {v(212,2)}, v244, s[28:31], s58 offen sc1")
    e("s_branch m_hdone")
    k.label("m_hodd")
    e(f"buffer_store_dwordx2 {v(200,2)}, v244, s[28:31], s52 offen sc1")
    for c in (1, 3): e(f"buffer_store_dwordx4 {v(200+2*c,4)}, v244, s[28:31], s{52+c} offen sc1")
    e("s_cmp_eq_u32 s36, 3"); e("s_cbranch_scc1 m_hodd6")
    e(f"buffer_store_dwordx4 {v(210,4)}, v244, s[28:31], s57 offen sc1")
    e("s_branch m_hdone")
    k.label("m_hodd6")
    e(f"buffer_store_dwordx2 {v(210,2)}, v244, s[28:31], s57 offen sc1")
    k.label("m_hdone")
    e("v_mov_b32 v1, v245")
    e(f"v_mov_b32 v4, {W_EPOCH}")
    lds_wait(k, "b_wep3", "v4", "v5")
    e("s_mov_b32 s3, s43")
    e("s_and_b32 s43, s41, 1"); e("s_lshl_b32 s43, s43, 2"); e("s_add_u32 s36, s36, s43")
    e(f"v_mov_b32 v4, {W_PF + 4}"); e("v_mov_b32 v5, 1"); e("v_lshlrev_b32 v6, 7, v1"); e("v_mov_b32 v7, s3")
    e("s_lshl_b32 s44, s35, 10"); e("s_lshl_b32 s45, s36, 2"); e("s_add_u32 s44, s44, s45"); e(f"s_add_u32 s44, s44, {FH2}")
    e("s_mov_b64 exec, 1")
    e("s_waitcnt vmcnt(0)")
    e("ds_add_rtn_u32 v8, v4, v5")
    e("s_waitcnt lgkmcnt(0)")
    e("v_readfirstlane_b32 s43, v8")
    e("s_mov_b64 exec, 0xff")
    e("s_cmp_lg_u32 s43, 3"); e("s_cbranch_scc1 m_nopub")
    e("buffer_store_dword v7, v6, s[60:63], s44 offen sc1")
    k.label("m_nopub")
    e("s_mov_b64 exec, -1")
    e("s_setprio 0")
    e("v_and_b32 v2, 15, v1"); e("v_lshrrev_b32 v3, 4, v1")
    e("s_mov_b32 s47, 0"); e("s_mov_b32 s46, 0")

def gen_p3(k):
    e = k.e
    k.label("m_P3")
    k.stamp(10)
    e("s_lshr_b32 s34, s32, 2")
    e("v_lshlrev_b32 v15, 4, v1")
    k.srd(16, 14, 15, WOF_BYTES, WS_WOF)
    k.srd(20, 14, 15, ZF_BYTES, WS_HF)
    k.srd(24, 4, 5, 2048*1280)
    k.srd(28, 98, 99, 2048*1280)
    e("s_lshl_b32 s46, s46, 10"); e("s_mul_i32 s48, s36, 138240"); e("s_add_u32 s48, s48, s46"); e(f"s_add_u32 s46, s46, {IMG}")
    e("s_cmp_eq_u32 s47, 0"); e("s_cbranch_scc1 m_wodone")
    k.label("m_woloop")
    e("s_mov_b32 m0, s46"); e("s_add_u32 s46, s46, 1024")
    e("buffer_load_dwordx4 v15, s[16:19], s48 offen lds")
    e("s_add_u32 s48, s48, 1024"); e("s_sub_u32 s47, s47, 1"); e("s_cmp_lg_u32 s47, 0"); e("s_cbranch_scc1 m_woloop")
    k.label("m_wodone")
    def H(g, sg): return v(16 + (g*2 + sg)*4, 4)
    def WF(g, db): return v(72 + (g*5 + db)*4, 4)
    def acc(sg, db): return v(212 + (sg*5 + db)*4, 4)
    e("s_cmp_eq_u32 s33, 3"); e(f"s_cselect_b32 s45, {HUGE}, 6144")
    e("s_and_b32 s43, s33, 1"); e("s_lshl_b32 s44, s34, 1"); e("s_add_u32 s57, s43, s44")
    e("s_lshr_b32 s58, s33, 1"); e("s_mul_i32 s58, s58, 3")
    e("s_lshr_b32 s43, s57, 1"); e("s_lshl_b32 s43, s43, 5"); e("s_and_b32 s44, s57, 1"); e("s_lshl_b32 s44, s44, 2"); e("s_add_u32 s59, s43, s44")
    e("s_lshl_b32 s43, s35, 6"); e("s_add_u32 s43, s43, s59")
    e("v_lshrrev_b32 v6, 2, v2"); e("v_and_b32 v7, 3, v2"); e("v_lshl_add_u32 v6, v6, 3, v7"); e("v_add_u32 v6, s43, v6")
    e("v_mul_u32_u24 v6, 1280, v6"); e("v_lshl_add_u32 v6, v3, 3, v6"); e("s_mul_i32 s43, s36, 160"); e("v_add_u32 v14, s43, v6")
    for i in range(3):
        e(f"s_add_u32 s43, s58, {i}"); e(f"s_min_u32 s{68+i}, s43, 4")
        e(f"s_lshl_b32 s{72+i}, s{68+i}, 5")
    k.srd(64, 14, 15, XT_BYTES, WS_YT)
    e("s_lshl_b32 s43, s35, 2"); e("s_lshl_b32 s44, s34, 1"); e("s_add_u32 s43, s43, s44"); e("s_mul_i32 s43, s43, 27"); e("s_mul_i32 s44, s33, 7"); e("s_add_u32 s43, s43, s44")
    e("s_lshl_b32 s46, s43, 10"); e("s_add_u32 s47, s46, 27648")
    e("s_add_u32 s48, s46, 4096"); e("s_add_u32 s49, s47, 4096"); e("s_add_u32 s50, s46, s45"); e("s_add_u32 s51, s47, s45")
    e("s_mul_i32 s43, s33, 35840"); e(f"s_add_u32 s43, s43, {IMG}"); e("v_add_u32 v252, s43, v15")
    e("s_cmp_eq_u32 s33, 3"); e("s_cselect_b32 s43, 5120, 0"); e("v_subrev_u32 v253, s43, v252")
    e("v_and_b32 v4, 7, v1"); e("v_lshlrev_b32 v4, 2, v4")
    e("s_lshl_b32 s44, s35, 10"); e("s_lshl_b32 s43, s36, 7"); e("s_add_u32 s44, s44, s43"); e(f"s_add_u32 s44, s44, {FH2}")
    e("v_min_u32 v254, 39, v1"); e("v_lshlrev_b32 v254, 3, v254")
    e("s_mul_i32 s52, s36, 320"); e(f"s_add_u32 s52, s52, {FY}")
    e("s_cmp_ge_u32 s32, 4"); e("s_cbranch_scc1 m_nwv")
    e("s_waitcnt vmcnt(0)")
    k.label("m_nwv")
    e("s_barrier")
    k.stamp(4)
    e("s_cmp_lg_u32 s32, 3"); e("s_cbranch_scc1 m_nhp")
    e("buffer_load_dword v5, v4, s[60:63], s44 offen sc1")
    k.label("m_nhp")
    e("s_cmp_lg_u32 s32, 2"); e("s_cbranch_scc1 m_nyp")
    e("buffer_load_dwordx2 v[248:249], v254, s[60:63], s52 offen sc1")
    k.label("m_nyp")
    for g in range(7):
        for db in range(5): e(f"ds_read_b128 {WF(g,db)}, v{253 if g == 6 else 252} offset:{g*5120 + db*1024}")
    for i in range(3): e(f"buffer_load_dwordx2 {v(8+2*i,2)}, v14, s[24:27], s{72+i} offen")
    e("v_lshrrev_b32 v244, 3, v1"); e("v_lshlrev_b32 v244, 12, v244"); e("v_and_b32 v245, 7, v1"); e("v_lshl_add_u32 v244, v245, 4, v244")
    e("s_mul_i32 s53, s36, 80"); e("s_lshl_b32 s43, s32, 3"); e("s_add_u32 s53, s53, s43"); e("s_lshl_b32 s53, s53, 12"); e("s_lshl_b32 s43, s35, 7"); e("s_add_u32 s53, s53, s43")
    e("s_cmp_lt_u32 s32, 2"); e(f"s_cselect_b32 s54, {64*4096}, 0"); e("s_cselect_b32 s55, 8192, 0"); e("s_add_u32 s54, s54, s53")
    e("s_lshl_b32 s43, s32, 10"); e(f"s_add_u32 s43, s43, {YTILE}"); e("v_add_u32 v246, s43, v15"); e("v_add_u32 v247, s55, v246")
    e("s_cmp_lg_u32 s32, 3"); e("s_cbranch_scc1 m_hw")
    poll_flags(k, "m_pollh", "v4", FLS, 1, 5, "v6", soff="s44", sleep=2, preloaded=True)
    k.label("m_hw")
    e("s_cmp_lg_u32 s32, 2"); e("s_cbranch_scc1 m_noy")
    poll_flags(k, "m_polly", "v254", FLS, 2, 248, "v5", soff="s52", sleep=8, preloaded=True)
    k.label("m_noy")
    e("s_waitcnt lgkmcnt(0)")
    e("s_barrier")
    k.stamp(11)
    k.vm = []
    k.vmem("buffer_load_dwordx4 v[236:239], v244, s[64:67], s53 offen sc1", "y")
    k.vmem("buffer_load_dwordx4 v[240:243], v244, s[64:67], s54 offen sc1", "y")
    for g in range(7):
        for sg in range(2):
            so = 46 + sg + (0 if g < 4 else 2 if g < 6 else 4)
            k.vmem(f"buffer_load_dwordx4 {H(g,sg)}, v15, s[20:23], s{so} offen offset:{(g%4)*1024 if g < 6 else 0} sc1", f"h{g}")
    e("s_mul_i32 s43, s32, 10240"); e("v_add_u32 v252, s43, v15")
    e("s_mul_i32 s43, s34, 40960"); e("s_and_b32 s44, s33, 1"); e("s_mul_i32 s44, s44, 5120"); e("s_add_u32 s43, s43, s44")
    e("v_bfe_u32 v4, v1, 2, 2"); e("v_lshl_add_u32 v4, v3, 2, v4"); e("v_lshlrev_b32 v4, 7, v4")
    e("v_and_b32 v5, 3, v1"); e("v_lshl_add_u32 v4, v5, 4, v4")
    e("s_lshl_b32 s44, s59, 1"); e(f"s_add_u32 s44, s44, {YTILE}"); e("v_add_u32 v4, s44, v4")
    for i in range(3):
        e(f"s_lshl_b32 s44, s{68+i}, 10"); e("s_add_u32 s44, s44, s43"); e(f"v_add_u32 v{253+i}, s44, v15")
        e(f"s_lshl_b32 s44, s{68+i}, 11"); e(f"v_add_u32 v{5+i}, s44, v4")
    for g in range(7):
        k.wait_vm(f"h{g}")
        if g == 0: e("ds_write_b128 v246, v[236:239]"); e("ds_write_b128 v247, v[240:243]"); e("s_waitcnt lgkmcnt(0)")
        for db in range(5):
            for sg in range(2):
                e(f"{MFMA} {acc(sg,db)}, {WF(g,db)}, {H(g,sg)}, {'0' if g == 0 else acc(sg,db)}")
    e("s_nop 2")
    e("s_nop 1")
    for db in range(5):
        for sg in range(2): e(f"ds_write_b128 v252, {acc(sg,db)} offset:{(sg*5+db)*1024}")
    for i in range(6): unpack(k, f"v{96+2*i}", f"v{97+2*i}", f"v{8+i}")
    e("s_waitcnt lgkmcnt(0)")
    e("s_barrier")
    for i in range(3): e(f"ds_read_b64_tr_b16 {v(24+2*i,2)}, v{5+i}")
    for i in range(3):
        for kq in range(4): e(f"ds_read_b128 {v(32+(i*4+kq)*4,4)}, v{253+i} offset:{kq*10240}")
    e("s_waitcnt lgkmcnt(12)")
    for n in range(6): unpack(k, f"v{112+2*n}", f"v{113+2*n}", f"v{24+n}")
    for n in range(6): e(f"v_pk_add_f32 {pr(96+2*n)}, {pr(96+2*n)}, {pr(112+2*n)}")
    for n in range(6): e(f"v_cvt_pk_bf16_f32 v{8+n}, v{96+2*n}, v{97+2*n}")
    for n in range(6): unpack(k, f"v{96+2*n}", f"v{97+2*n}", f"v{8+n}")
    e("s_waitcnt lgkmcnt(0)")
    A = [32 + i*16 + 2*p for i in range(3) for p in range(2)]
    for n in range(6): e(f"v_pk_add_f32 {pr(A[n])}, {pr(A[n])}, {pr(A[n]+4)}"); e(f"v_pk_add_f32 {pr(A[n]+8)}, {pr(A[n]+8)}, {pr(A[n]+12)}")
    for n in range(6): e(f"v_pk_add_f32 {pr(A[n])}, {pr(A[n])}, {pr(A[n]+8)}")
    for n in range(6): e(f"v_cvt_pk_bf16_f32 v{24+n}, v{A[n]}, v{A[n]+1}")
    for n in range(6): unpack(k, f"v{A[n]}", f"v{A[n]+1}", f"v{24+n}")
    for n in range(6): e(f"v_pk_add_f32 {pr(A[n])}, {pr(A[n])}, {pr(96+2*n)}")
    for n in range(6): e(f"v_cvt_pk_bf16_f32 v{24+n}, v{A[n]}, v{A[n]+1}")
    for i in range(3): e(f"buffer_store_dwordx2 {v(24+2*i,2)}, v14, s[28:31], s{72+i} offen")
    k.end(1)

def gen_helper(k, epoch_poll):
    e = k.e
    k.label("m_helper")
    e("s_lshl_b32 s35, s41, 2"); e("s_add_u32 s35, s35, s42"); e("s_sub_u32 s35, s35, 28")
    e("v_and_b32 v2, 15, v1"); e("v_lshrrev_b32 v3, 4, v1")
    e("s_lshl_b32 s43, s32, 3")
    e("v_add_u32 v4, s43, v3")
    e("s_lshl_b32 s44, s35, 6")
    e("v_add_u32 v5, s44, v4"); e("v_mul_u32_u24 v5, 1280, v5"); e("v_lshl_add_u32 v5, v2, 4, v5")
    e("v_add_u32 v6, 5120, v5")
    e("v_mul_u32_u24 v7, 1296, v4"); e("v_lshl_add_u32 v7, v2, 4, v7")
    e("v_mov_b32 v110, 0")
    e(f"v_lshlrev_b32 v4, 2, v2"); e(f"v_add_u32 v4, {W_EPOCH}, v4")
    e("s_cmp_lg_u32 s32, 4"); e("s_cbranch_scc1 m_hnoclr")
    e("ds_write_b32 v4, v110")
    k.label("m_hnoclr")
    e("s_waitcnt lgkmcnt(0)")
    k.srd(16, 4, 5, 2048*1280)
    k.srd(28, 14, 15, XT_BYTES, WS_XNT)
    k.srd(64, 12, 13, 256)
    k.srd(FLS, 14, 15, FL_BYTES, WS_FL)
    k.srd(20, 96, 97, 864*1280)
    k.srd(24, 14, 15, WOF_BYTES, WS_WOF)
    k.vm = []
    for g in range(2):
        for n in range(5):
            k.vmem(f"buffer_load_dwordx4 {v(8+g*20+n*4,4)}, v{5+g}, s[16:19], 0 offen offset:{n*256}", f"x{g}")
    e("s_lshl_b32 s36, s35, 3"); e("s_add_u32 s36, s36, s32")
    e("v_lshrrev_b32 v111, 3, v1"); e("v_mul_u32_u24 v111, 1280, v111"); e("v_and_b32 v112, 7, v1"); e("v_lshl_add_u32 v111, v112, 4, v111")
    for it in range(2):
        e(f"s_add_u32 s43, s36, {256*it}"); e("s_mul_i32 s44, s43, 205"); e("s_lshr_b32 s44, s44, 11"); e("s_mul_i32 s45, s44, 10"); e("s_sub_u32 s45, s43, s45")
        e("s_mul_i32 s46, s44, 40960"); e("s_lshl_b32 s47, s45, 7"); e("s_add_u32 s46, s46, s47")
        for d in range(4):
            e(f"s_lshl_b32 s47, s45, 2"); e(f"s_add_u32 s47, s47, {d}"); e("s_mul_i32 s56, s47, 52"); e("s_lshr_b32 s56, s56, 8")
            e("s_mul_i32 s56, s56, 130"); e("s_add_u32 s47, s47, s56"); e("s_mul_i32 s56, s44, 5"); e("s_add_u32 s47, s47, s56"); e("s_lshl_b32 s47, s47, 10")
            e("s_cmp_lt_u32 s43, 270"); e(f"s_cselect_b32 s{48+it*4+d}, s47, {HUGE}")
        for n in range(4):
            k.vmem(f"buffer_load_dwordx4 {v(120+it*16+n*4,4)}, v111, s[20:23], s46 offen", "wo")
            e("s_add_u32 s46, s46, 10240")
    for g in range(2):
        k.stamp(1+2*g)
        k.wait_vm(f"x{g}")
        X = 48
        src = 8 + g*20
        for n in range(20): unpack(k, f"v{X+2*n}", f"v{X+2*n+1}", f"v{src+n}")
        e(f"v_pk_add_f32 v[88:89], {pr(X)}, {pr(X+4)}"); e(f"v_pk_add_f32 v[90:91], {pr(X+2)}, {pr(X+6)}")
        for n in range(4, 20): e(f"v_pk_add_f32 {pr(88+2*(n%2))}, {pr(88+2*(n%2))}, {pr(X+2*n)}")
        e("v_pk_add_f32 v[88:89], v[88:89], v[90:91]"); e("s_nop 0"); e("v_add_f32 v88, v88, v89")
        for sh in (8, 4, 2, 1):
            e("s_nop 1"); e(f"v_add_f32_dpp v88, v88, v88 row_ror:{sh} row_mask:0xf bank_mask:0xf")
        e(f"v_mul_f32 v88, {f32(1/640)}, v88")
        for a in range(4): e(f"v_mov_b32 v{92+a}, 0")
        for n0 in range(0, 20, 4):
            for a in range(4): e(f"v_pk_add_f32 {pr(96+2*a)}, {pr(X+2*(n0+a))}, v[88:89] op_sel_hi:[1,0] neg_lo:[0,1] neg_hi:[0,1]")
            for a in range(4): e(f"v_pk_fma_f32 {pr(92+2*(a%2))}, {pr(96+2*a)}, {pr(96+2*a)}, {pr(92+2*(a%2))}")
        e("v_pk_add_f32 v[92:93], v[92:93], v[94:95]"); e("s_nop 0"); e("v_add_f32 v92, v92, v93")
        for sh in (8, 4, 2, 1):
            e("s_nop 1"); e(f"v_add_f32_dpp v92, v92, v92 row_ror:{sh} row_mask:0xf bank_mask:0xf")
        e(f"v_mul_f32 v92, {f32(1/640)}, v92")
        ln_finish(k, "v88", "v92", "v89")
        for n in range(20): e(f"v_pk_add_f32 {pr(X+2*n)}, {pr(X+2*n)}, v[88:89] op_sel_hi:[1,0] neg_lo:[0,1] neg_hi:[0,1]")
        for n in range(20): e(f"v_cvt_pk_bf16_f32 v{src+n}, v{X+2*n}, v{X+2*n+1}")
        for n in range(20): unpack(k, f"v{X+2*n}", f"v{X+2*n+1}", f"v{src+n}")
        for n in range(20): e(f"v_pk_mul_f32 {pr(X+2*n)}, {pr(X+2*n)}, v[92:93] op_sel_hi:[1,0]")
        for n in range(20): e(f"v_cvt_pk_bf16_f32 v{src+n}, v{X+2*n}, v{X+2*n+1}")
        for n in range(5):
            e(f"ds_write_b128 v7, {v(src+4*n,4)} offset:{g*4*1296 + n*256}")
    e("s_waitcnt lgkmcnt(0)")
    e("s_barrier")
    k.stamp(4)
    e("v_bfe_u32 v4, v1, 2, 2"); e("v_lshl_add_u32 v4, v3, 3, v4"); e("v_mul_u32_u24 v4, 1296, v4")
    e("v_and_b32 v5, 3, v1"); e("v_lshl_add_u32 v4, v5, 3, v4")
    e("s_lshl_b32 s43, s32, 5"); e("v_add_u32 v4, s43, v4")
    e(f"v_add_u32 v5, {32*1296}, v4")
    for n in range(5):
        for th in range(2):
            for hh in range(2):
                e(f"ds_read_b64_tr_b16 {v(16+(n*2+th)*4+hh*2,2)}, v{4+th} offset:{hh*4*1296 + n*256}")
    e("s_mul_i32 s43, s32, 4608"); e("s_add_u32 s43, s43, 90112")
    e("v_mul_u32_u24 v5, 144, v2"); e("v_lshl_add_u32 v5, v3, 4, v5"); e("v_add_u32 v5, s43, v5")
    e("v_lshrrev_b32 v4, 3, v1"); e("v_lshlrev_b32 v6, 12, v4"); e("v_mul_u32_u24 v4, 144, v4"); e("v_and_b32 v7, 7, v1"); e("v_lshl_add_u32 v4, v7, 4, v4"); e("v_add_u32 v4, s43, v4")
    e("v_lshl_add_u32 v6, v7, 4, v6")
    e("s_lshl_b32 s46, s32, 16"); e("s_lshl_b32 s44, s35, 7"); e("s_add_u32 s46, s46, s44"); e("s_add_u32 s47, s46, 32768")
    e("s_waitcnt vmcnt(0) lgkmcnt(0)")
    for n in range(5):
        o = (n % 2) * 2304
        for th in range(2): e(f"ds_write_b128 v5, {v(16+(n*2+th)*4,4)} offset:{o + th*64}")
        for hf in range(2): e(f"ds_read_b128 {v(56+(n*2+hf)*4,4)}, v4 offset:{o + hf*8*144}")
    for n in range(5):
        e(f"s_waitcnt lgkmcnt({min(15, 4*(4-n))})")
        for hf in range(2):
            e(f"buffer_store_dwordx4 {v(56+(n*2+hf)*4,4)}, v6, s[28:31], s{46+hf} offen sc1")
        e(f"s_add_u32 s46, s46, {8*65536}"); e(f"s_add_u32 s47, s47, {8*65536}")
    e("v_bfe_u32 v5, v1, 2, 2"); e("v_lshl_add_u32 v5, v3, 2, v5"); e("v_mul_u32_u24 v5, 144, v5"); e("v_and_b32 v6, 3, v1"); e("v_lshl_add_u32 v5, v6, 3, v5"); e("v_add_u32 v5, s43, v5")
    e("v_lshlrev_b32 v6, 4, v1")
    for it in range(2):
        for n in range(4): e(f"ds_write_b128 v4, {v(120+it*16+n*4,4)} offset:{n*8*144}")
        for d in range(4):
            for hh in range(2): e(f"ds_read_b64_tr_b16 {v(160+it*16+d*4+hh*2,2)}, v5 offset:{hh*16*144 + d*32}")
    k.stamp(5)
    e("s_waitcnt lgkmcnt(0)")
    for it in range(2):
        for d in range(4):
            e(f"buffer_store_dwordx4 {v(160+it*16+d*4,4)}, v6, s[24:27], s{48+it*4+d} offen sc1")
    k.end(0)

if __name__ == "__main__":
    import sys
    NAME = "parallel_sum__ssm_conv_s4d__mixer_gmlp__prompt"
    path = sys.argv[1] if len(sys.argv) > 1 else f"cdna_kernels/{NAME}.s"
    ks = [gen_mega("ka_kernel"), gen_b("kb_kernel")]
    hdr = open(f"cdna_kernels/{NAME}.s.ref").read().split("; Override launch")[0]
    out = hdr
    for n, l in (("ka_kernel", LDS_TOTAL), ("kb_kernel", LDS_TOTAL)): out += f"; @launch kernel={n} grid=(256,1,1) block=(512,1,1) lds={l}\n"
    out += '.amdgcn_target "amdgcn-amd-amdhsa--gfx950"\n.text\n'
    for t, kd in ks: out += t + "\n"
    out += "text_end:\n"
    out += '.section .rodata,"a"\n'
    for t, kd in ks: out += ".p2align 6\n" + kd + "\n"
    open(path, "w").write(out)
```

```python
from asmlib import *
import os
import numpy as np
MB = 1 << 20
WS_XNT, WS_Z2F, WS_Z1F, WS_HF, WS_YT, WS_ST2, WS_WOF, WS_FL = 0, 4*MB, 8*MB, 12*MB, 16*MB, 20*MB, 22*MB, 24*MB
ZF_BYTES = 54 * 65536
XT_BYTES = 640 * 4096
ST2_BYTES = 64 * 14 * 512
WOF_BYTES = 40 * 27 * 1024
FZ, FX, FW, FY, FH = 0, 4096, 5120, 6144, 10240
FL_BYTES = 131072
FZ2 = 65536
FH2 = 16384
HUGE = 0x40000000
GC0 = -2.0 * 0.7978845608028654 * 1.4426950408889634
GC1 = GC0 * 0.044715
MFMA = "v_mfma_f32_16x16x32_bf16"
LOG2E = 1.4426950408889634
L_HI = float(np.float32(LOG2E)); L_LO = LOG2E - L_HI
EXP = os.environ.get("EXP", "")
LDS_TOTAL = 163840
RING2 = 24576
CONV0 = 98304; CONV_B = 14592
YTILE = CONV0 + 3 * CONV_B
MISC = 161216
W_EPOCH, W_PF, W_GL, W_R1, W_R2 = MISC + 2560, MISC + 2564, MISC + 2576, MISC + 2592, MISC + 2608
SPIN = 0x100000

def exp_precise(k, dst, x, t0, t1):
    e = k.e
    e(f"v_mul_f32 {t0}, {f32(L_HI)}, {x}")
    e(f"v_mov_b32 {t1}, {f32(L_HI)}")
    e(f"v_fma_f32 {t1}, {x}, {t1}, -{t0}")
    e(f"v_fmac_f32 {t1}, {f32(L_LO)}, {x}")
    e(f"v_exp_f32 {t0}, {t0}")
    e(f"v_mul_f32 {t1}, {f32(0.6931471805599453)}, {t1}")
    e(f"v_fma_f32 {dst}, {t0}, {t1}, {t0}")

def ln_finish(k, mean, var, t):
    k.e(f"v_max_f32 {var}, 0, {var}")
    k.e(f"v_cvt_pk_bf16_f32 {t}, {mean}, {var}")
    k.e(f"v_lshlrev_b32 {mean}, 16, {t}")
    k.e(f"v_and_b32 {var}, 0xffff0000, {t}")
    k.e(f"v_add_f32 {var}, {f32(1e-5)}, {var}")
    k.e(f"v_cvt_pk_bf16_f32 {t}, {var}, {var}")
    k.e(f"v_and_b32 {var}, 0xffff0000, {t}")
    k.e(f"v_sqrt_f32 {var}, {var}")
    k.e("s_nop 0")
    k.e(f"v_cvt_pk_bf16_f32 {t}, {var}, {var}")
    k.e(f"v_and_b32 {var}, 0xffff0000, {t}")
    k.e(f"v_rcp_f32 {var}, {var}")
    k.e("s_nop 0")

def unpack(k, lo, hi, src):
    k.e(f"v_lshlrev_b32 {lo}, 16, {src}"); k.e(f"v_and_b32 {hi}, 0xffff0000, {src}")
def pr(r): return f"v[{r}:{r+1}]"

def poll_flags(k, name, voff, srd, ndw, dst, tmp, soff="0", imm=0, sleep=0, preloaded=False):
    e = k.e
    e("s_mov_b32 s40, 0")
    if preloaded: e(f"s_branch {name}_pre")
    elif sleep: e(f"s_branch {name}_1st")
    k.label(name)
    if sleep:
        e(f"s_sleep {sleep}"); k.label(name + "_1st")
    sfx = {1: "dword", 2: "dwordx2", 4: "dwordx4"}[ndw]
    e(f"buffer_load_{sfx} {v(dst, ndw)}, {voff}, s[{srd}:{srd+3}], {soff} offen offset:{imm} sc1")
    e("s_add_u32 s40, s40, 1")
    if preloaded: k.label(name + "_pre")
    e("s_waitcnt vmcnt(0)")
    e(f"v_xor_b32 {tmp}, s3, v{dst}")
    for i in range(1, ndw):
        e(f"v_xor_b32 v{dst+i}, s3, v{dst+i}"); e(f"v_or_b32 {tmp}, {tmp}, v{dst+i}")
    e(f"v_cmp_ne_u32 vcc, 0, {tmp}")
    e(f"s_cmp_ge_u32 s40, {SPIN}")
    e(f"s_cbranch_scc1 {name}_ok")
    e(f"s_cbranch_vccnz {name}")
    k.label(name + "_ok")
    k.vm = []

def set_flag(k, srd, soff, imm, va, vb):
    e = k.e
    e(f"v_mov_b32 {va}, 0"); e(f"v_mov_b32 {vb}, s3")
    e("s_waitcnt vmcnt(0)")
    e("s_mov_b64 exec, 1")
    e(f"buffer_store_dword {vb}, {va}, s[{srd}:{srd+3}], {soff} offen offset:{imm} sc1")
    e("s_mov_b64 exec, -1")
    k.vm = [None]

def lds_wait(k, name, vaddr, vt, sleep=0):
    e = k.e
    e("s_mov_b32 s40, 0")
    k.label(name)
    if sleep: e(f"s_sleep {sleep}")
    e(f"ds_read_b32 {vt}, {vaddr}")
    e("s_add_u32 s40, s40, 1")
    e("s_waitcnt lgkmcnt(0)")
    e(f"v_readfirstlane_b32 s43, {vt}")
    e(f"s_cmp_ge_u32 s40, {SPIN*8}")
    e(f"s_cbranch_scc1 {name}_ok")
    e("s_cmp_eq_u32 s43, 0")
    e(f"s_cbranch_scc1 {name}")
    k.label(name + "_ok")
    k.lg = []

def lds_wait_ge(k, name, vaddr, vt, ndw, val, sleep=0, preloaded=False):
    e = k.e
    e("s_mov_b32 s75, 0")
    if preloaded: e(f"s_branch {name}_chk")
    k.label(name)
    if sleep: e(f"s_sleep {sleep}")
    e(f"ds_read_b{32*ndw} {v(vt, ndw)}, {vaddr}")
    e("s_add_u32 s75, s75, 1")
    e("s_waitcnt lgkmcnt(0)")
    e(f"s_cmp_ge_u32 s75, {SPIN*8}")
    e(f"s_cbranch_scc1 {name}_ok")
    k.label(name + "_chk")
    if ndw == 4: e(f"v_min_u32 v{vt}, v{vt}, v{vt+2}"); e(f"v_min_u32 v{vt+1}, v{vt+1}, v{vt+3}")
    if ndw >= 2: e(f"v_min_u32 v{vt}, v{vt}, v{vt+1}"); e("s_nop 0")
    e(f"v_readfirstlane_b32 s43, v{vt}")
    e(f"s_cmp_lt_u32 s43, {val}")
    e(f"s_cbranch_scc1 {name}")
    k.label(name + "_ok")
    k.lg = []

KG_PITCH = 272
KG_HOLD = 168
def kgen_dt(k, dtv):
    e = k.e
    e(f"v_lshlrev_b32 {dtv}, 16, {dtv}")
    exp_precise(k, dtv, dtv, "v4", "v5")
    e(f"v_cvt_pk_bf16_f32 {dtv}, {dtv}, {dtv}"); e(f"v_and_b32 {dtv}, 0xffff0000, {dtv}")

def kgen_chains(k, par, dtv, hf, hold):
    e = k.e
    names = {}; nxt = [24]; held = []
    def pair(n):
        if n not in names:
            names[n] = nxt[0]; nxt[0] += 2; assert nxt[0] <= 136
        return names[n]
    def P(n): r = pair(n); return f"v[{r}:{r+1}]"
    urow = {"U0":0,"U1":1,"U2":2,"U3":3,"U4":4,"U5":5,"U6":6,"U7":7,"R256":8,"R258":9,"R260":10,"R262":11,"R512":12,"R516":13,"R768":14,"R772":15,
            "R1024":16,"R1280":17,"R1536":18,"R1792":19,"R2048":20}
    tmp = [0]
    def out(n, row, neg):
        r = pair(n)
        t = (KG_HOLD + tmp[0]) if hold else (152 + tmp[0] % 12)
        tmp[0] += 1
        e(f"v_cvt_pk_bf16_f32 v{t}, v{r}, {'-' if neg else ''}v{r+1}")
        held.append((t, row))
        return None if hold else f"ds_write_b32 v10, v{t} offset:{row*KG_PITCH}"
    def level(ops):
        for d, a, b in ops: e(f"v_pk_mul_f32 {P('t_'+str(ops.index((d,a,b))))}, {P(a)}, {P(b)} op_sel:[0,0] op_sel_hi:[1,0]")
        for d, a, b in ops: e(f"v_pk_fma_f32 {P(d)}, {P(a)}, {P(b)}, {P('t_'+str(ops.index((d,a,b))))} op_sel:[1,1,0] op_sel_hi:[0,1,1] neg_lo:[0,1,0]")
    def unp(dst, src): e(f"v_lshlrev_b32 {dst}, 16, {src}" if hf == 0 else f"v_and_b32 {dst}, 0xffff0000, {src}")
    unp("v6", f"v{par}")
    exp_precise(k, "v6", "v6", "v4", "v5")
    e("v_cvt_pk_bf16_f32 v6, v6, v6"); e("v_and_b32 v6, 0xffff0000, v6")
    e(f"v_mul_f32 v6, v6, {dtv}"); e(f"v_mul_f32 v6, {f32(-LOG2E)}, v6")
    unp("v7", f"v{par+1}"); e(f"v_mul_f32 v7, v7, {dtv}"); e("v_mul_f32 v7, 0.15915494, v7")
    u0 = pair("U0")
    unp(f"v{u0}", f"v{par+2}"); unp(f"v{u0+1}", f"v{par+3}")
    e(f"v_mul_f32 v{u0}, v{u0}, {dtv}"); e(f"v_mul_f32 v{u0+1}, v{u0+1}, {dtv}")
    e(f"v_add_f32 v{u0}, v{u0}, v{u0}"); e(f"v_add_f32 v{u0+1}, v{u0+1}, v{u0+1}")
    seqs = []
    for n, (nm, pw) in enumerate((("Z1", 1.0), ("W1", 8.0), ("Z256", 256.0))):
        r = pair(nm); a, b = 152 + 2*n, 153 + 2*n
        seqs.append([f"v_mul_f32 v{a}, {f32(pw)}, v6", f"v_mul_f32 v{b}, {f32(pw)}, v7", f"v_exp_f32 v{a}, v{a}", f"v_fract_f32 v{b}, v{b}",
                     f"v_cos_f32 v{r}, v{b}", f"v_sin_f32 v{r+1}, v{b}", f"v_mul_f32 v{r}, v{r}, v{a}", f"v_mul_f32 v{r+1}, v{r+1}, v{a}"])
    k.batch(seqs)
    def emit_out(lst):
        ws = [out(n, row, neg) for n, row, neg in lst]
        for w in ws:
            if w: e(w)
    emit_out([("U0", 0, True), ("W1", 22, False)])
    levels = [
        [("U1","U0","Z1"), ("Z2","Z1","Z1"), ("W2","W1","W1"), ("Z512","Z256","Z256"), ("R256","U0","Z256")],
        [("U2","U0","Z2"), ("U3","U1","Z2"), ("Z4","Z2","Z2"), ("W3","W2","W1"), ("Y4","W2","W2"), ("R512","U0","Z512")],
        [("U4","U0","Z4"), ("U5","U1","Z4"), ("U6","U2","Z4"), ("U7","U3","Z4"), ("R258","U2","Z256"), ("R768","R512","Z256"), ("R1024","R512","Z512"),
         ("W1","W1","Y4"), ("W2","W2","Y4"), ("W3","W3","Y4"), ("W4","Y4","Y4")],
        [("R260","U4","Z256"), ("R262","U6","Z256"), ("R516","U4","Z512"), ("R1280","R768","Z512"), ("R1536","R1024","Z512"),
         ("W1","W1","Y4"), ("W2","W2","Y4"), ("W3","W3","Y4"), ("W4","W4","Y4")],
        [("R772","R516","Z256"), ("R1792","R1280","Z512"), ("R2048","R1536","Z512"),
         ("W1","W1","Y4"), ("W2","W2","Y4"), ("W3","W3","Y4"), ("W4","W4","Y4")],
    ] + [[("W1","W1","Y4"), ("W2","W2","Y4"), ("W3","W3","Y4"), ("W4","W4","Y4")]] * 3 + [[("W1","W1","Y4"), ("W2","W2","Y4"), ("W3","W3","Y4")]]
    vidx = {"W1": 1, "W2": -2, "W3": -1, "W4": 4}
    for lv in levels:
        level(lv)
        lst = []
        for d, a, b in lv:
            if d in urow: lst.append((d, urow[d], True))
            elif d == "Y4": lst.append((d, 21 + 4, False))
            elif d in vidx:
                vidx[d] += 4; lst.append((d, 21 + vidx[d], False))
        emit_out(lst)
    return held

def kgen_mm(k, first, toff=0, F0=104):
    e = k.e
    for half in range(2):
        for st in range(2):
            for f, row in enumerate((0, 16, 21, 37)):
                e(f"ds_read_b128 {v(F0+st*16+f*4,4)}, v11 offset:{toff + row*KG_PITCH + (half*2+st)*64}")
        for st in range(2):
            e(f"s_waitcnt lgkmcnt({4 if st == 0 else 0})")
            F = F0 + st*16
            z = first and half == 0 and st == 0
            for bb in range(2):
                e(f"{MFMA} {v(136+4*bb,4)}, {v(F,4)}, {v(F+8+4*bb,4)}, {'0' if z else v(136+4*bb,4)}")
                e(f"{MFMA} {v(144+4*bb,4)}, {v(F+8+4*bb,4)}, {v(F+4,4)}, {'0' if z else v(144+4*bb,4)}")

def kgen_finish(k, tab_s, par, dtv, lane_i, lane_q, lane, held):
    e = k.e
    T2 = 14464
    e(f"v_lshl_add_u32 v10, {lane}, 2, {tab_s}")
    e(f"v_mul_u32_u24 v11, {KG_PITCH}, {lane_i}"); e(f"v_lshl_add_u32 v11, {lane_q}, 4, v11"); e(f"v_add_u32 v11, {tab_s}, v11")
    e("v_mov_b32 v12, 0x00003f80")
    e(f"ds_write_b32 v10, v12 offset:{21*KG_PITCH}"); e(f"ds_write_b32 v10, v12 offset:{T2 + 21*KG_PITCH}")
    for t, row in held: e(f"ds_write_b32 v10, v{t} offset:{T2 + row*KG_PITCH}")
    kgen_chains(k, par, dtv, 1, False)
    kgen_mm(k, True, T2)
    kgen_mm(k, False, 0)

def kgen_single(k, tab_s, par, dtv, lane_i, lane_q, lane):
    e = k.e
    e(f"v_lshl_add_u32 v10, {lane}, 2, {tab_s}")
    e(f"v_mul_u32_u24 v11, {KG_PITCH}, {lane_i}"); e(f"v_lshl_add_u32 v11, {lane_q}, 4, v11"); e(f"v_add_u32 v11, {tab_s}, v11")
    e("v_mov_b32 v12, 0x00003f80")
    e(f"ds_write_b32 v10, v12 offset:{21*KG_PITCH}")
    for i in range(136, 152): e(f"v_mov_b32 v{i}, 0")
    e("s_mov_b32 s40, 0")
    lab = k.newlabel("kg"); k.label(lab)
    kgen_chains(k, par, dtv, 0, False)
    for a in range(4): e(f"v_lshrrev_b32 v{par+a}, 16, v{par+a}")
    kgen_mm(k, False, 0)
    e("s_add_u32 s40, s40, 1"); e("s_cmp_lt_u32 s40, 2"); e(f"s_cbranch_scc1 {lab}")
```

```python
from mega_common import *
FLS = 60
RING2 = 16384
CONV0 = 65536
CONV_B = 15360
YTILE = 81920
IMG = 22528
NSLOT = 2
WS_KC = 26*MB
KC_BYTES = 640 * 1536

def conv_params(k):
    e = k.e
    e("s_lshl_b32 s34, s2, 1"); e("s_add_u32 s34, s34, s32")
    e("s_lshl_b32 s56, s41, 4"); e("s_lshr_b32 s57, s42, 1"); e("s_add_u32 s56, s56, s57"); e("s_add_u32 s56, s56, 512")
    e("s_bitcmp1_b32 s42, 0"); e("s_cselect_b32 s56, s56, 1000")
    e("s_cmp_eq_u32 s32, 2"); e("s_cselect_b32 s34, s56, s34")
    e("s_cmp_eq_u32 s32, 3"); e("s_cselect_b32 s34, 1000, s34")
    e("s_lshl_b32 s56, s34, 8"); e("s_lshl_b32 s57, s34, 1")
    e("v_lshlrev_b32 v4, 2, v1"); e("v_mov_b32 v5, 0")
    e("s_waitcnt lgkmcnt(0)")
    for a in range(4):
        k.srd(28, 64+2*a, 65+2*a, 640*256)
        e(f"buffer_load_dword v{164+a}, v4, s[28:31], s56 offen")
    k.srd(28, 72, 73, 1280); e("buffer_load_ushort v13, v5, s[28:31], s57 offen")
    k.srd(28, 74, 75, 1280); e("buffer_load_ushort v14, v5, s[28:31], s57 offen")

def gen_mega(name):
    k = Kern(name)
    e = k.e
    e("s_cmp_ge_u32 s2, 256"); e("s_cbranch_scc1 m_end")
    k.stamp_init()
    e("s_load_dwordx2 s[4:5], s[0:1], 0")
    e("s_load_dwordx4 s[8:11], s[0:1], 64")
    e("s_load_dwordx4 s[12:15], s[0:1], 104")
    e("s_load_dwordx4 s[96:99], s[0:1], 88")
    e("v_and_b32 v1, 63, v0")
    e("v_lshrrev_b32 v2, 6, v0")
    e("s_and_b32 s41, s2, 7")
    e("v_readfirstlane_b32 s32, v2")
    e("s_lshr_b32 s42, s2, 3")
    e("s_and_b32 s33, s32, 3")
    e("s_cmp_ge_u32 s42, 28"); e("s_cbranch_scc1 m_helper")
    e("s_mul_i32 s43, s42, 37"); e("s_lshr_b32 s43, s43, 8")
    e("s_mul_i32 s44, s43, 7"); e("s_sub_u32 s44, s42, s44")
    e("s_lshr_b32 s35, s41, 1"); e("s_lshl_b32 s35, s35, 2"); e("s_add_u32 s35, s35, s43")
    e("s_and_b32 s36, s41, 1"); e("s_mul_i32 s36, s36, 7"); e("s_add_u32 s36, s36, s44")
    e("s_cmp_ge_u32 s32, 4"); e("s_cbranch_scc1 m_gemm1")
    e("s_mul_i32 s45, s44, 3"); e("s_mul_i32 s46, s43, 5"); e("s_lshr_b32 s46, s46, 1"); e("s_add_u32 s45, s45, s46")
    e("s_cmp_ge_u32 s45, 20"); e("s_cselect_b32 s46, 20, 0"); e("s_sub_u32 s45, s45, s46")
    e("s_cmp_ge_u32 s45, 10"); e("s_cselect_b32 s46, 10, 0"); e("s_sub_u32 s45, s45, s46")
    e("s_load_dwordx8 s[64:71], s[0:1], 8")
    e("s_load_dwordx4 s[72:75], s[0:1], 40")
    e("v_and_b32 v3, 7, v1")
    e("s_lshl_b32 s39, s32, 13")
    e("s_cmp_ge_u32 s32, 2"); e("s_cbranch_scc1 m_ldB")
    e("s_lshl_b32 s43, s35, 7"); e("s_lshl_b32 s44, s32, 6"); e("s_add_u32 s43, s43, s44")
    e("v_lshrrev_b32 v2, 5, v1"); e("v_lshlrev_b32 v2, 3, v2")
    e("v_bfe_u32 v4, v1, 3, 2"); e("v_add3_u32 v2, v2, v4, s43")
    e("v_mul_u32_u24 v2, 1280, v2")
    e("v_lshrrev_b32 v4, 4, v1"); e("v_xor_b32 v3, v3, v4")
    e("v_lshl_add_u32 v4, v3, 4, v2")
    e("v_xor_b32 v3, 4, v3"); e("v_lshl_add_u32 v5, v3, 4, v2")
    for n in range(8):
        ee, b, Pp = n & 1, (n >> 1) & 1, n >> 2
        e(f"v_add_u32 v{16+n}, {(32*Pp + 4*b + 16*ee)*1280 - (n & 3)*1024}, v{4+ee}")
    e("s_waitcnt lgkmcnt(0)")
    k.srd(16, 4, 5, 2048*1280)
    e("s_mov_b32 s38, 128")
    e("s_branch m_ld")
    k.label("m_ldB")
    e("v_lshrrev_b32 v2, 3, v1"); e("v_mul_u32_u24 v2, 3456, v2")
    e("s_cmp_eq_u32 s32, 2"); e("s_cselect_b32 s44, 1664, 0")
    e("s_lshl_b32 s43, s36, 7"); e("s_add_u32 s43, s43, s44"); e("v_add_u32 v2, s43, v2")
    e("v_bfe_u32 v4, v1, 4, 1"); e("v_lshlrev_b32 v4, 1, v4"); e("v_xor_b32 v3, v3, v4")
    e("v_lshl_add_u32 v4, v3, 4, v2")
    e("v_xor_b32 v3, 4, v3"); e("v_lshl_add_u32 v5, v3, 4, v2")
    for n in range(8):
        e(f"v_add_u32 v{16+n}, {8*n*3456 - (n & 3)*1024}, v{4+(n & 1)}")
    e("s_waitcnt lgkmcnt(0)")
    k.srd(16, 8, 9, 640*3456)
    e(f"s_mov_b32 s38, {64*3456}")
    k.label("m_ld")
    e("s_mul_i32 s37, s45, s38"); e("s_mul_i32 s46, s38, 10"); e("s_mov_b32 s40, 0")
    k.label("m_ldloop")
    e("s_cmp_lt_u32 s40, 3"); e("s_cbranch_scc1 m_ldissue")
    e("s_waitcnt vmcnt(16)")
    e("s_barrier")
    k.label("m_ldissue")
    for g in range(2):
        e(f"s_add_u32 m0, s39, {g*4096}")
        e("s_nop 0")
        for n in range(4): e(f"buffer_load_dwordx4 v{16+g*4+n}, s[16:19], s37 offen offset:{n*1024} lds")
    e("s_add_u32 s39, s39, 32768"); e("s_and_b32 s39, s39, 0x1ffff")
    e("s_add_u32 s37, s37, s38"); e("s_cmp_eq_u32 s37, s46"); e("s_cselect_b32 s37, 0, s37")
    e("s_add_u32 s40, s40, 1"); e("s_cmp_lt_u32 s40, 10"); e("s_cbranch_scc1 m_ldloop")
    k.stamp(1)
    conv_params(k)
    k.srd(20, 10, 11, 2048*4096)
    e("s_lshl_b32 s43, s42, 2"); e("s_add_u32 s43, s43, s32"); e(f"s_mul_i32 s43, s43, {9*1024+384}")
    e("s_lshl_b32 s44, s41, 20"); e("s_add_u32 s43, s43, s44")
    e("v_lshlrev_b32 v2, 4, v1")
    def pf(n):
        for i in range(n):
            e(f"buffer_load_dwordx4 v[224:227], v2, s[20:23], s43 offen offset:{(i%4)*1024}")
            if i % 4 == 3 or i == n - 1: e(f"s_add_u32 s43, s43, {(i%4+1)*1024}")
    e("s_waitcnt vmcnt(22)"); e("s_barrier"); pf(4)
    e("s_waitcnt vmcnt(18)"); e("s_barrier"); pf(6)
    e("s_waitcnt vmcnt(10)"); e("s_barrier")
    e("s_barrier")
    k.label("m_Lpost")
    k.stamp(2)
    e(f"v_mov_b32 v4, {W_EPOCH}"); e("ds_read_b32 v5, v4")
    k.srd(FLS, 14, 15, FL_BYTES, WS_FL)
    e("v_and_b32 v2, 15, v1"); e("v_lshrrev_b32 v3, 4, v1")
    e("s_lshr_b32 s35, s41, 1"); e("s_lshl_b32 s35, s35, 3"); e("s_lshr_b32 s43, s42, 2"); e("s_add_u32 s35, s35, s43")
    e("s_waitcnt lgkmcnt(0)")
    e("v_readfirstlane_b32 s3, v5")
    e("s_cmp_lg_u32 s32, 3"); e("s_cbranch_scc1 m_conv")
    k.srd(16, 10, 11, 2048*4096)
    e("v_lshrrev_b32 v4, 5, v1"); e("v_lshlrev_b32 v4, 3, v4"); e("v_bfe_u32 v5, v1, 3, 2"); e("v_add_u32 v4, v4, v5")
    e("v_lshlrev_b32 v4, 12, v4")
    e("v_and_b32 v5, 7, v1"); e("v_xor_b32 v5, v5, v3")
    e("v_lshl_add_u32 v6, v5, 4, v4")
    e("v_xor_b32 v5, 4, v5"); e("v_lshl_add_u32 v7, v5, 4, v4")
    for n in range(8):
        ee, t = n & 1, n >> 1
        e(f"v_add_u32 v{16+n}, {(32*(t >> 1) + 4*(t & 1) + 16*ee)*4096 - (n & 3)*1024}, v{6+ee}")
    e("s_lshl_b32 s37, s35, 18")
    e("s_mov_b32 s40, 0")
    k.label("m_pfloop")
    e("s_and_b32 s43, s40, 3"); e("s_lshr_b32 s44, s40, 2")
    e(f"s_mul_i32 s45, s43, {RING2}"); e("s_lshl_b32 s46, s44, 13"); e("s_add_u32 s45, s45, s46")
    e("s_lshl_b32 s43, s43, 10"); e("s_lshl_b32 s44, s44, 7"); e("s_add_u32 s43, s43, s44"); e("s_add_u32 s43, s43, s37")
    for g in range(2):
        e(f"s_add_u32 m0, s45, {g*4096}")
        e("s_nop 0")
        for n in range(4): e(f"buffer_load_dwordx4 v{16+g*4+n}, s[16:19], s43 offen offset:{n*1024} lds")
    e("s_waitcnt vmcnt(16)")
    e("s_add_u32 s40, s40, 1"); e("s_cmp_lt_u32 s40, 8"); e("s_cbranch_scc1 m_pfloop")
    k.stamp(3)
    e(f"v_mov_b32 v4, {W_PF + 8}")
    lds_wait_ge(k, "m_wown1", "v4", 5, 1, 4, sleep=4)
    e("v_and_b32 v4, 31, v1"); e("v_lshlrev_b32 v4, 2, v4"); e(f"s_mov_b32 s44, {FX}")
    poll_flags(k, "m_pollx3", "v4", FLS, 1, 5, "v6", soff="s44", sleep=16)
    e("s_and_b32 s36, s41, 1"); e("s_lshl_b32 s36, s36, 2"); e("s_and_b32 s43, s42, 3"); e("s_add_u32 s36, s36, s43")
    e("s_cmp_eq_u32 s36, 7"); e("s_cselect_b32 s43, 31, 47")
    e("v_min_u32 v4, s43, v1"); e("v_lshlrev_b32 v4, 2, v4")
    e("s_lshl_b32 s44, s35, 3"); e("s_add_u32 s44, s44, s36"); e("s_lshl_b32 s44, s44, 8"); e(f"s_add_u32 s44, s44, {FZ2}")
    poll_flags(k, "m_pollz", "v4", FLS, 1, 5, "v6", soff="s44", sleep=2)
    e(f"v_mov_b32 v4, {W_PF}"); e("v_mov_b32 v5, 1")
    e("ds_write_b32 v4, v5")
    k.stamp(4)
    e("s_branch m_L3prep")
    k.label("m_conv")
    e("s_cmp_ge_u32 s34, 640"); e("s_cbranch_scc1 m_L3prep")
    e(f"s_mul_i32 s39, s32, {CONV_B}"); e(f"s_add_u32 s39, s39, {CONV0}")
    e("s_waitcnt vmcnt(10)")
    kgen_dt(k, "v13")
    kgen_single(k, "s39", 164, "v13", "v2", "v3", "v1")
    k.stamp(3)
    UO, KC = 8320, 12928
    e("v_lshlrev_b32 v15, 4, v1")
    e(f"s_mov_b32 s44, {FX}")
    e("v_and_b32 v220, 31, v1"); e("v_lshlrev_b32 v220, 2, v220")
    e("buffer_load_dword v216, v220, s[60:63], s44 offen sc1")
    e(f"s_add_u32 s43, s39, {KC}")
    e("v_max_u32 v4, 1, v3"); e("v_sub_u32 v4, 5, v4")
    e("v_lshlrev_b32 v5, v4, v2")
    e("v_lshlrev_b32 v6, 3, v3")
    e("v_mov_b32 v7, 512"); e("v_cmp_eq_u32 vcc, 2, v3"); e("s_nop 1"); e("v_cndmask_b32 v6, v6, v7, vcc")
    e("v_mov_b32 v7, 768"); e("v_mov_b32 v8, 4"); e("v_mov_b32 v9, 128"); e("v_cmp_eq_u32 vcc, 3, v3"); e("s_nop 1")
    e("v_cndmask_b32 v6, v6, v7, vcc"); e("v_cndmask_b32 v8, v8, v9, vcc")
    e("v_add3_u32 v5, v5, v6, s43")
    e("v_lshlrev_b32 v6, v4, 16"); e("v_add_u32 v6, v5, v6")
    e("v_add_u32 v7, v5, v8"); e("v_add_u32 v8, v6, v8")
    for n in range(8): e(f"v_cvt_pk_bf16_f32 v{24+n}, v{136+2*n}, v{137+2*n}")
    e("ds_write_b32 v5, v24"); e("ds_write_b32 v7, v25"); e("ds_write_b32 v6, v26"); e("ds_write_b32 v8, v27")
    e("v_lshlrev_b32 v9, 6, v2"); e("v_lshl_add_u32 v9, v3, 3, v9"); e("v_add_u32 v9, s43, v9")
    e("v_mov_b32 v20, 0"); e("v_mov_b32 v21, 0"); e("v_mov_b32 v22, 0"); e("v_mov_b32 v23, 0")
    e("v_add_u32 v16, s39, v15")
    e("v_lshl_add_u32 v17, v1, 3, s39")
    e(f"ds_write_b64 v17, v[20:21] offset:{UO}")
    e("v_cmp_gt_u32 vcc, 5, v2"); e("s_and_saveexec_b64 s[46:47], vcc")
    e("ds_write_b64 v9, v[28:29] offset:1024"); e("ds_write_b64 v9, v[30:31] offset:1056")
    e("s_mov_b64 exec, 3")
    e("ds_write_b128 v16, v[20:23] offset:4096"); e(f"ds_write_b128 v16, v[20:23] offset:{4160+4096}")
    e("s_mov_b64 exec, -1")
    e(f"s_add_u32 s44, s39, {KC + 256 - 2*0x4300}")
    e(f"v_mov_b32 v31, {f32(128.0)}")
    e("v_lshlrev_b32 v18, 3, v1"); e("v_cvt_f32_u32 v18, v18")
    e("s_waitcnt lgkmcnt(0)")
    for m in range(4):
        for el in range(10): e(f"v_sub_f32 v{96+el}, {f32(2047 - 512*m - el)}, v18")
        if m == 3: e("v_max_f32 v104, 0, v104")
        for p in range(5): e(f"v_cvt_pk_bf16_f32 v{108+p}, v{96+2*p}, v{97+2*p}")
        for el in range(9):
            a = f"v{114+el}"
            if el % 2 == 0: e(f"v_and_b32 {a}, 0xffff, v{108+el//2}")
            else: e(f"v_lshrrev_b32 {a}, 16, v{108+el//2}")
            e(f"v_lshl_add_u32 {a}, {a}, 1, s44")
            if m == 3:
                e(f"v_cvt_u32_f32 v19, v{96+el}"); e("v_lshl_add_u32 v19, v19, 1, s43")
                e(f"v_cmp_lt_f32 vcc, v{96+el}, v31"); e("s_nop 1"); e(f"v_cndmask_b32 {a}, {a}, v19, vcc")
        for el in range(9): e(f"ds_read_u16 v{144+9*m+el}, v{114+el}")
    e(f"s_mov_b32 s46, {FX}")
    poll_flags(k, "m_pollx", "v220", FLS, 1, 216, "v4", soff="s46", sleep=8, preloaded=True)
    k.stamp(4)
    k.srd(20, 14, 15, XT_BYTES, WS_XNT)
    k.srd(24, 14, 15, XT_BYTES, WS_YT)
    e("s_lshl_b32 s45, s34, 12")
    for n in range(4): e(f"buffer_load_dwordx4 {v(200+4*n,4)}, v15, s[20:23], s45 offen offset:{n*1024} sc1")
    e("s_waitcnt lgkmcnt(0)")
    e("v_cmp_eq_u32 vcc, 63, v1"); e("s_nop 1"); e(f"v_cndmask_b32 v{144+35}, v{144+35}, v20, vcc")
    for m in range(4):
        W = 32 + 16*m; E = 144 + 9*m
        for p in range(4):
            e(f"v_lshl_or_b32 v{W+p}, v{E+2*p+1}, 16, v{E+2*p}")
            e(f"v_lshl_or_b32 v{W+8+p}, v{E+2*p+2}, 16, v{E+2*p+1}")
        e(f"ds_write_b128 v16, {v(W,4)} offset:{1024*m}")
        e(f"ds_write_b128 v16, {v(W+8,4)} offset:{4160+1024*m}")
    e("s_waitcnt vmcnt(0)")
    for n in range(4): e(f"ds_write_b128 v16, {v(200+4*n,4)} offset:{UO+512+1024*n}")
    k.stamp(5)
    e("v_and_b32 v4, 1, v2"); e("v_xor_b32 v4, 1, v4"); e("v_mul_u32_u24 v4, 4160, v4")
    e("v_lshrrev_b32 v5, 1, v2"); e("v_lshlrev_b32 v6, 2, v3"); e("v_sub_u32 v5, v6, v5")
    e("v_lshl_add_u32 v4, v5, 2, v4"); e("v_add_u32 v4, s39, v4")
    for mp in range(4): e(f"v_add_u32 v{24+mp}, {4*(1023 - 8 - 128*(2*mp+1))}, v4")
    e("v_lshlrev_b32 v5, 5, v2"); e("v_lshl_add_u32 v5, v3, 4, v5")
    e(f"s_add_u32 s43, s39, {UO+480}"); e("v_add_u32 v28, s43, v5")
    def Af(m): return 32 + 4*m
    def Bf(r): return 64 + 4*r
    def ac(cb): return v(96 + 4*cb, 4)
    for i in range(32): e(f"v_mov_b32 v{96+i}, 0")
    e("v_lshlrev_b32 v14, 16, v14")
    e("s_waitcnt lgkmcnt(0)")
    def rdA(m):
        o = 0 if m & 1 else 128
        e(f"ds_read2_b32 {v(Af(m),2)}, v{24+m//2} offset0:{o} offset1:{o+1}"); e(f"ds_read2_b32 {v(Af(m)+2,2)}, v{24+m//2} offset0:{o+2} offset1:{o+3}")
    def rdB(r): e(f"ds_read_b128 {v(Bf(r),4)}, v28 offset:{512*r}")
    for m in range(8): rdA(m); rdB(7-m)
    e("s_mov_b32 s40, 8")
    k.label("m_cloop")
    for r in range(24, 29): e(f"v_subrev_u32 v{r}, 64, v{r}")
    for m in range(8):
        for cb in (range(7, -1, -1) if m == 0 else range(m, 8)):
            if m == 0: e(f"s_waitcnt lgkmcnt({min(3*cb, 15)})")
            e(f"{MFMA} {ac(cb)}, {v(Af(m),4)}, {v(Bf(cb-m),4)}, {ac(cb)}")
        rdA(m); rdB(7-m)
    e("s_sub_u32 s40, s40, 1"); e("s_cmp_lg_u32 s40, 0"); e("s_cbranch_scc1 m_cloop")
    k.stamp(6)
    e("s_waitcnt lgkmcnt(0)")
    e("v_lshlrev_b32 v20, 5, v2"); e("v_lshl_add_u32 v20, v3, 3, v20")
    e(f"s_add_u32 s43, s39, {UO+512}"); e("v_add_u32 v21, s43, v20")
    for cb in range(8): e(f"ds_read_b64 {v(32+2*cb,2)}, v21 offset:{512*cb}")
    e("s_waitcnt lgkmcnt(0)")
    for c0 in (0, 4):
        A = [96 + 4*cb + 2*p for cb in range(c0, c0+4) for p in range(2)]
        U = [32 + 2*cb + p for cb in range(c0, c0+4) for p in range(2)]
        for i in range(8): e(f"v_cvt_pk_bf16_f32 v{64+i}, v{A[i]}, v{A[i]+1}")
        for i in range(8): unpack(k, f"v{72+2*i}", f"v{73+2*i}", f"v{U[i]}")
        for i in range(8): unpack(k, f"v{A[i]}", f"v{A[i]+1}", f"v{64+i}")
        for i in range(8): e(f"v_pk_mul_f32 {pr(72+2*i)}, {pr(72+2*i)}, v[14:15] op_sel_hi:[1,0]")
        for i in range(8): e(f"v_cvt_pk_bf16_f32 v{64+i}, v{72+2*i}, v{73+2*i}")
        for i in range(8): unpack(k, f"v{72+2*i}", f"v{73+2*i}", f"v{64+i}")
        for i in range(8): e(f"v_pk_add_f32 {pr(A[i])}, {pr(A[i])}, {pr(72+2*i)}")
        for i in range(8): e(f"v_cvt_pk_bf16_f32 v{U[i]}, v{A[i]}, v{A[i]+1}")
        for cb in range(c0, c0+4): e(f"ds_write_b64 v21, {v(32+2*cb,2)} offset:{512*cb}")
    for n in range(4): e(f"ds_read_b128 {v(64+4*n,4)}, v16 offset:{UO+512+1024*n}")
    for n in range(4):
        e(f"s_waitcnt lgkmcnt({3-n})")
        e(f"buffer_store_dwordx4 {v(64+4*n,4)}, v15, s[24:27], s45 offen offset:{1024*n} sc1")
    e("s_lshl_b32 s43, s34, 2"); e(f"s_add_u32 s43, s43, {FY}")
    set_flag(k, FLS, "s43", 0, "v4", "v5")
    k.stamp(7)
    k.label("m_L3prep")
    e("s_and_b32 s36, s41, 1"); e("s_lshl_b32 s36, s36, 2"); e("s_and_b32 s43, s42, 3"); e("s_add_u32 s36, s36, s43")
    e("s_lshl_b32 s43, s33, 2"); e(f"s_add_u32 s43, s43, {W_GL}"); e("v_mov_b32 v4, s43")
    lds_wait(k, "m_wgl", "v4", "v5", sleep=8)
    k.stamp(8)
    e("s_mul_i32 s46, s33, 15"); e("s_add_u32 s46, s46, 42")
    e("s_cmp_eq_u32 s33, 3"); e("s_cselect_b32 s47, 48, 15")
    e("s_branch m_P3")

    k.label("m_gemm1")
    e("v_and_b32 v2, 15, v1"); e("v_lshrrev_b32 v3, 4, v1")
    e("v_lshlrev_b32 v12, 4, v1")
    e("v_add_u32 v13, 4096, v12")
    PL = 200
    def poll_loads():
        for i in range(7):
            e(f"buffer_load_dwordx4 {v(PL+4*i,4)}, v{12 if i < 4 else 13}, s[28:31], s72 offen offset:{(i%4)*1024} sc1")
    e("v_mov_b32 v10, 0")
    e(f"v_lshlrev_b32 v4, 2, v2"); e(f"v_add_u32 v4, {W_EPOCH}, v4")
    e("ds_write_b32 v4, v10")
    e("s_waitcnt lgkmcnt(0)")
    k.srd(64, 12, 13, 256)
    e("s_cmp_lg_u32 s2, 0"); e("s_cbranch_scc1 m_noep")
    e("s_cmp_lg_u32 s32, 4"); e("s_cbranch_scc1 m_noep")
    e("s_memrealtime s[44:45]"); e("s_waitcnt lgkmcnt(0)"); e("s_or_b32 s44, s44, 1"); e("v_mov_b32 v4, s44")
    e("s_mov_b64 exec, 1")
    e("buffer_store_dword v4, v10, s[64:67], 0 offen sc1")
    e("s_mov_b64 exec, -1")
    k.label("m_noep")
    if "cpf" in EXP:
        e("s_getpc_b64 s[44:45]")
        k.label("m_pc")
        e("s_mov_b32 s46, text_end-m_pc"); e("s_mov_b32 s47, 0x00020000")
        e("s_and_b32 s43, s42, 15"); e("s_lshl_b32 s43, s43, 2"); e("s_add_u32 s43, s43, s33"); e("s_lshl_b32 s43, s43, 10")
        e("buffer_load_dwordx4 v[192:195], v12, s[44:47], s43 offen")
    e("s_lshl_b32 s43, s35, 2"); e("s_add_u32 s43, s43, s33"); e(f"s_mul_i32 s72, s43, {14*512}")
    e("s_lshl_b32 s44, s36, 9"); e("s_add_u32 s73, s72, s44")
    e("s_lshl_b32 s74, s36, 6"); e("s_add_u32 s74, s74, s43"); e("s_lshl_b32 s74, s74, 2")
    e("v_and_b32 v4, 7, v1"); e("v_lshl_add_u32 v4, v3, 3, v4"); e("v_bfe_u32 v5, v1, 3, 1"); e("v_lshlrev_b32 v5, 3, v5")
    e("v_lshl_add_u32 v230, v4, 4, v5")
    k.srd(28, 14, 15, ST2_BYTES, WS_ST2)
    k.srd(24, 14, 15, ZF_BYTES, WS_Z2F)
    k.srd(20, 14, 15, ZF_BYTES, WS_Z1F)
    k.srd(FLS, 14, 15, FL_BYTES, WS_FL)
    for c in range(4):
        e(f"s_xor_b32 s43, s33, {c}")
        e("s_lshl_b32 s44, s36, 2"); e("s_add_u32 s43, s43, s44"); e("s_sub_u32 s43, s43, 2")
        e(f"s_cmp_lt_u32 s43, 54"); e(f"s_cselect_b32 s{50+c}, -1, 0")
        e("s_cselect_b32 s43, s43, 60")
        e(f"s_lshl_b32 s{46+c}, s43, 16")
        e("s_lshl_b32 s44, s35, 2"); e("s_add_u32 s44, s44, s33"); e("s_lshl_b32 s44, s44, 10")
        e(f"s_add_u32 s{46+c}, s{46+c}, s44")
    for b in range(2):
        for g in range(2):
            e("s_lshr_b32 s43, s33, 1"); e(f"s_xor_b32 s43, s43, {g}"); e("s_lshl_b32 s44, s36, 1"); e("s_add_u32 s43, s43, s44")
            e("s_lshl_b32 s44, s35, 3"); e("s_lshl_b32 s45, s33, 1"); e("s_add_u32 s44, s44, s45"); e(f"s_add_u32 s44, s44, {b}")
            e("s_mul_i32 s44, s44, 27"); e("s_add_u32 s44, s44, s43"); e("s_lshl_b32 s44, s44, 10")
            e("s_cmp_lt_u32 s43, 27"); e(f"s_cselect_b32 s{68+b*2+g}, s44, {HUGE}")
    e("v_and_b32 v4, 2, v1"); e("v_and_b32 v5, 1, v1")
    e("v_cmp_ne_u32 s[54:55], 0, v4"); e("v_cmp_ne_u32 s[56:57], 0, v5")
    e("s_lshl_b32 s43, s33, 5")
    e("v_add_u32 v4, s43, v2"); e("v_lshlrev_b32 v4, 7, v4")
    e("v_lshrrev_b32 v5, 1, v2"); e("v_xor_b32 v5, v5, v3")
    e("v_lshl_add_u32 v14, v5, 4, v4")
    e("v_xor_b32 v15, 64, v14")
    e("v_bfe_u32 v4, v1, 2, 2")
    e("v_lshl_add_u32 v5, v3, 3, v4"); e("v_lshlrev_b32 v5, 7, v5")
    e("v_and_b32 v6, 3, v1"); e("v_lshl_add_u32 v5, v6, 3, v5")
    e("v_add_u32 v5, 16384, v5")
    e("v_lshrrev_b32 v6, 1, v4"); e("v_and_b32 v7, 1, v3"); e("v_lshl_or_b32 v6, v7, 1, v6")
    e("v_xor_b32 v6, s33, v6")
    for c in range(4):
        e(f"v_xor_b32 v7, {c}, v6"); e(f"v_lshl_add_u32 v{16+c}, v7, 5, v5")
    for i in range(4): e(f"v_mov_b32 v{20+i}, 0x3f803f80")
    ACC = 104
    for i in range(ACC, 192): e(f"v_mov_b32 v{i}, 0")
    def xf(ks, b): return v(24 + 40*ks + 4*b, 4)
    def wfb(ks, h, c): return 24 + 40*ks + 8 + 16*h + 4*c
    def wf(ks, h, c): return v(wfb(ks, h, c), 4)
    def accb(h, b, c): return ACC + 32*h + (b*4 + c)*4
    def acc(h, b, c): return v(accb(h, b, c), 4)
    def rlist(ks):
        L = [f"ds_read_b128 {xf(ks,b)}, v{14+ks} offset:{2048*b}" for b in range(2)]
        for h in range(2):
            for c in range(4):
                for hh in range(2):
                    L.append(f"ds_read_b64_tr_b16 {v(wfb(ks,h,c)+2*hh,2)}, v{16+c} offset:{h*8192+ks*4096+hh*512}")
        return L
    def mlist(ks):
        L = []
        for b in range(2):
            L.append(f"{MFMA} {v(168+4*b,4)}, v[20:23], {xf(ks,b)}, {v(168+4*b,4)}")
            L.append(f"{MFMA} {v(176+4*b,4)}, {xf(ks,b)}, {xf(ks,b)}, {v(176+4*b,4)}")
        for h in range(2):
            L.append(f"{MFMA} {v(184+4*h,4)}, v[20:23], {wf(ks,h,0)}, {v(184+4*h,4)}")
            for c in range(4):
                for b in range(2):
                    if h == 0: L.append(f"{MFMA} {acc(h,b,c)}, {xf(ks,b)}, {wf(ks,h,c)}, {acc(h,b,c)}")
                    else:      L.append(f"{MFMA} {acc(h,b,c)}, {wf(ks,h,c)}, {xf(ks,b)}, {acc(h,b,c)}")
        return L
    def phase(ks, rd, extra=()):
        M = mlist(ks); R = list(rd); X = list(extra)
        for i, m in enumerate(M):
            e(m)
            if R: e(R.pop(0))
            elif X:
                for _ in range(2):
                    if X: e(X.pop(0))
        for x in X: e(x)
    bump = [f"v_add_u32 v{r}, 0x8000, v{r}" for r in range(14, 20)]
    wrap = [f"v_and_b32 v{r}, 0x1ffff, v{r}" for r in range(14, 20)]
    k.stamp(1)
    e("s_mov_b32 s40, 10")
    e("s_barrier")
    k.stamp(2)
    for r in rlist(0): e(r)
    k.label("m_loop1")
    e("s_waitcnt lgkmcnt(0)")
    phase(0, rlist(1), bump + wrap)
    e("s_sub_u32 s40, s40, 1"); e("s_cmp_eq_u32 s40, 0")
    e("s_waitcnt lgkmcnt(0)")
    e(f"s_cbranch_scc1 m_tail1")
    e("s_barrier")
    phase(1, rlist(0))
    e("s_cmp_lg_u32 s40, 5"); e("s_cbranch_scc1 m_loop1")
    e("s_cmp_lg_u32 s33, 0"); e("s_cbranch_scc1 m_loop1")
    e("buffer_load_dword v11, v10, s[64:67], 0 offen sc1")
    e(f"s_branch m_loop1")
    k.label(f"m_tail1")
    phase(1, [])
    e("s_setprio 2")
    k.stamp(3)
    e("s_lshl_b32 s43, s33, 6"); e(f"s_add_u32 s43, s43, {MISC+1024}")
    e("v_lshl_add_u32 v8, v2, 2, s43")
    e("v_and_b32 v4, 3, v1")
    e("v_cmp_eq_u32 s[44:45], 1, v4"); e("v_cmp_eq_u32 s[58:59], 2, v4"); e("v_cmp_eq_u32 vcc, 3, v4")
    e("s_nop 2")
    e("ds_write_b32 v8, v184"); e("ds_write_b32 v8, v188 offset:256")
    e(f"v_mov_b32 v9, {W_EPOCH}")
    def epoch_poll(tag):
        e("s_mov_b32 s40, 0")
        k.label(f"m_eppoll{tag}")
        e("s_waitcnt vmcnt(0)")
        e("v_readfirstlane_b32 s43, v11")
        e("s_add_u32 s40, s40, 1")
        e("s_cmp_lg_u32 s43, 0"); e(f"s_cbranch_scc1 m_epok{tag}")
        e("buffer_load_dword v11, v10, s[64:67], 0 offen sc1")
        e(f"s_cmp_lt_u32 s40, {SPIN}"); e(f"s_cbranch_scc1 m_eppoll{tag}")
        k.label(f"m_epok{tag}")
        e("ds_write_b32 v9, v11")
    e("s_cmp_lg_u32 s33, 0"); e("s_cbranch_scc1 m_epdone")
    epoch_poll("g")
    k.label("m_epdone")
    e("s_waitcnt lgkmcnt(0)")
    e("s_barrier")
    for b in range(2):
        q0 = 176 + 4*b
        e(f"v_cndmask_b32 v{q0}, v{q0}, v{q0+1}, s[44:45]"); e(f"v_cndmask_b32 v{q0}, v{q0}, v{q0+2}, s[58:59]"); e(f"v_cndmask_b32 v{q0}, v{q0}, v{q0+3}, vcc")
        e(f"v_mul_f32 v{168+4*b}, {f32(1/640)}, v{168+4*b}")
        e(f"v_mul_f32 v{q0}, {f32(1/640)}, v{q0}")
        e(f"v_fma_f32 v{q0}, -v{168+4*b}, v{168+4*b}, v{q0}")
    for c in range(4):
        e(f"s_xor_b32 s43, s33, {c}"); e(f"s_lshl_b32 s43, s43, 6"); e(f"s_add_u32 s43, s43, {MISC+1024}")
        e(f"v_lshl_add_u32 v5, v2, 2, s43"); e(f"v_lshl_add_u32 v6, v3, 4, s43")
        e(f"ds_read_b32 v{40+2*c}, v5")
        e(f"ds_read_b128 {v(64+4*c,4)}, v6 offset:256")
    e("ds_read_b32 v229, v9")
    for b in range(2): ln_finish(k, f"v{168+4*b}", f"v{176+4*b}", "v7")
    e("s_lshl_b32 s43, s33, 7"); e(f"s_add_u32 s43, s43, {MISC}")
    e("v_lshl_add_u32 v7, v2, 2, s43")
    e("v_lshl_add_u32 v8, v3, 4, s43")
    e("v_lshrrev_b32 v4, 2, v2")
    e("v_cmp_eq_u32 vcc, v4, v3")
    e("s_and_saveexec_b64 s[44:45], vcc")
    for b in range(2):
        e(f"ds_write_b32 v7, v{168+4*b} offset:{64*b}"); e(f"ds_write_b32 v7, v{176+4*b} offset:{512+64*b}")
    e("s_mov_b64 exec, s[44:45]")
    e("ds_read_b128 v[24:27], v8"); e("ds_read_b128 v[28:31], v8 offset:64")
    e("ds_read_b128 v[32:35], v8 offset:512"); e("ds_read_b128 v[36:39], v8 offset:576")
    e("ds_read_b32 v80, v7"); e("ds_read_b32 v82, v7 offset:64"); e("ds_read_b32 v84, v7 offset:512"); e("ds_read_b32 v86, v7 offset:576")
    e(f"v_mov_b32 v88, {f32(GC1)}"); e(f"v_mov_b32 v90, {f32(GC0)}")
    for i in range(168, 184): e(f"v_mov_b32 v{i}, 0")
    e("s_waitcnt lgkmcnt(0)")
    e("v_readfirstlane_b32 s3, v229")
    def gelu_pairs(A):
        n = len(A); T = [48 + 2*i for i in range(n)]
        for i in range(n): e(f"v_cvt_pk_bf16_f32 v{T[i]}, v{A[i]}, v{A[i]+1}")
        for i in range(n): unpack(k, f"v{A[i]}", f"v{A[i]+1}", f"v{T[i]}")
        for i in range(n): e(f"v_pk_mul_f32 {pr(T[i])}, {pr(A[i])}, {pr(A[i])}")
        for i in range(n): e(f"v_pk_fma_f32 {pr(T[i])}, {pr(T[i])}, v[88:89], v[90:91] op_sel_hi:[1,0,0]")
        for i in range(n): e(f"v_pk_mul_f32 {pr(T[i])}, {pr(T[i])}, {pr(A[i])}")
        for i in range(n): e(f"v_exp_f32 v{T[i]}, v{T[i]}"); e(f"v_exp_f32 v{T[i]+1}, v{T[i]+1}")
        for i in range(n): e(f"v_pk_add_f32 {pr(T[i])}, {pr(T[i])}, 1.0 op_sel_hi:[1,0]")
        for i in range(n): e(f"v_rcp_f32 v{T[i]}, v{T[i]}"); e(f"v_rcp_f32 v{T[i]+1}, v{T[i]+1}")
        for i in range(n): e(f"v_pk_mul_f32 {pr(A[i])}, {pr(A[i])}, {pr(T[i])}")
    for c0 in (0, 2):
        A = [accb(0, b, c) + 2*p for c in (c0, c0+1) for b in range(2) for p in range(2)]
        M = [24 + 4*b + 2*p for c in (c0, c0+1) for b in range(2) for p in range(2)]
        C = [40 + 2*c for c in (c0, c0+1) for b in range(2) for p in range(2)]
        for i in range(8): e(f"v_pk_fma_f32 {pr(A[i])}, {pr(M[i])}, {pr(C[i])}, {pr(A[i])} op_sel_hi:[1,0,1] neg_lo:[1,0,0] neg_hi:[1,0,0]")
        for i in range(8): e(f"v_pk_mul_f32 {pr(A[i])}, {pr(A[i])}, {pr(M[i]+8)}")
        gelu_pairs(A)
        for i in range(8): e(f"v_cvt_pk_bf16_f32 v{48+i}, v{A[i]}, v{A[i]+1}")
        for i in range(8): e(f"v_and_b32 v{48+i}, s{50+c0+i//4}, v{48+i}")
        for i in range(8): unpack(k, f"v{A[i]}", f"v{A[i]+1}", f"v{48+i}")
        for i in range(8):
            n = (i % 4) * 2
            e(f"v_pk_add_f32 {pr(168+n)}, {pr(168+n)}, {pr(A[i])}")
            e(f"v_pk_fma_f32 {pr(176+n)}, {pr(A[i])}, {pr(A[i])}, {pr(176+n)}")
    e("s_nop 0")
    for n in range(8): e(f"v_add_f32_dpp v{48+n}, v{168+n}, v{168+n} row_ror:8 row_mask:0xf bank_mask:0x3")
    for n in range(8): e(f"v_add_f32_dpp v{48+n}, v{176+n}, v{176+n} row_ror:8 row_mask:0xf bank_mask:0xc")
    for n in range(4): e(f"v_add_f32_dpp v{168+n}, v{48+n}, v{48+n} row_half_mirror row_mask:0xf bank_mask:0x5")
    for n in range(4): e(f"v_add_f32_dpp v{168+n}, v{52+n}, v{52+n} row_half_mirror row_mask:0xf bank_mask:0xa")
    for n in range(2):
        e(f"v_cndmask_b32 v{172+n}, v{170+n}, v{168+n}, s[54:55]")
        e(f"v_cndmask_b32 v{174+n}, v{168+n}, v{170+n}, s[54:55]")
    e("s_nop 0")
    for n in range(2): e(f"v_add_f32_dpp v{176+n}, v{172+n}, v{174+n} quad_perm:[2,3,0,1] row_mask:0xf bank_mask:0xf")
    e("v_cndmask_b32 v172, v177, v176, s[56:57]"); e("v_cndmask_b32 v174, v176, v177, s[56:57]")
    e("s_nop 1")
    e("v_add_f32_dpp v228, v172, v174 quad_perm:[1,0,3,2] row_mask:0xf bank_mask:0xf")
    e("buffer_store_dwordx2 v[228:229], v230, s[28:31], s73 offen sc1")
    e("s_setprio 0")
    k.stamp(4)
    P1 = 168
    for c0 in (0, 2):
        A = [accb(1, b, c) + 2*p for c in (c0, c0+1) for b in range(2) for p in range(2)]
        M = [80 + 2*b for c in (c0, c0+1) for b in range(2) for p in range(2)]
        C = [64 + 4*c + 2*p for c in (c0, c0+1) for b in range(2) for p in range(2)]
        for i in range(8): e(f"v_pk_fma_f32 {pr(A[i])}, {pr(M[i])}, {pr(C[i])}, {pr(A[i])} op_sel_hi:[0,1,1] neg_lo:[1,0,0] neg_hi:[1,0,0]")
        for i in range(8): e(f"v_pk_mul_f32 {pr(A[i])}, {pr(A[i])}, {pr(M[i]+4)} op_sel_hi:[1,0]")
        gelu_pairs(A)
        i = 0
        for c in (c0, c0+1):
            for b in range(2):
                for p in range(2):
                    e(f"v_cvt_pk_bf16_f32 v{P1+b*8+c*2+p}, v{A[i]}, v{A[i]+1}"); i += 1
        if c0 == 0: poll_loads()
    e("s_bitcmp1_b32 s33, 0"); e("s_cbranch_scc0 m_noswap")
    for b in range(2):
        for g in range(2):
            for p in range(2):
                r0 = P1 + b*8 + g*4 + p
                e(f"v_swap_b32 v{r0}, v{r0+2}")
    k.label("m_noswap")
    e("s_setprio 2")
    e("s_mov_b32 s40, 0")
    e("s_waitcnt vmcnt(0)")
    for b in range(2):
        for g in range(2):
            e(f"buffer_store_dwordx4 {v(P1+b*8+g*4,4)}, v12, s[20:23], s{68+b*2+g} offen sc1")
    e("s_branch m_check")
    k.label("m_poll")
    poll_loads()
    e("s_waitcnt vmcnt(0)")
    k.label("m_check")
    e(f"v_xor_b32 v4, v{PL+1}, v229"); e(f"v_xor_b32 v5, v{PL+3}, v229")
    for i in range(1, 7):
        e(f"v_xor_b32 v9, v{PL+1+4*i}, v229"); e(f"v_xor_b32 v10, v{PL+3+4*i}, v229")
        e("v_or3_b32 v4, v4, v9, v10")
    e("v_or_b32 v4, v4, v5")
    e("v_cmp_ne_u32 vcc, 0, v4")
    e("s_add_u32 s40, s40, 1")
    e("s_nop 0")
    e("s_cbranch_vccz m_poll_done")
    e(f"s_cmp_lt_u32 s40, {SPIN}"); e("s_cbranch_scc1 m_poll")
    k.label("m_poll_done")
    k.stamp(5)
    for i in range(1, 7):
        e(f"v_add_f32 v{PL}, v{PL}, v{PL+4*i}"); e(f"v_add_f32 v{PL+2}, v{PL+2}, v{PL+2+4*i}")
    e(f"v_mov_b32 v{PL+1}, v{PL}"); e(f"v_mov_b32 v{PL+3}, v{PL+2}"); e("s_nop 1")
    e(f"v_permlane32_swap_b32 v{PL}, v{PL+1}"); e(f"v_permlane32_swap_b32 v{PL+2}, v{PL+3}"); e("s_nop 1")
    e(f"v_add_f32 v24, v{PL}, v{PL+1}"); e(f"v_add_f32 v26, v{PL+2}, v{PL+3}")
    e(f"v_mul_f32 v24, {f32(1/864)}, v24"); e(f"v_mul_f32 v26, {f32(1/864)}, v26")
    e("v_fma_f32 v26, -v24, v24, v26")
    ln_finish(k, "v24", "v26", "v25")
    e("s_lshl_b32 s43, s33, 8"); e(f"s_add_u32 s43, s43, {MISC+1536}")
    e("v_and_b32 v4, 31, v1"); e("v_lshl_add_u32 v4, v4, 2, s43"); e("v_lshl_add_u32 v5, v3, 5, s43")
    e("ds_write_b32 v4, v24"); e("ds_write_b32 v4, v26 offset:128")
    e("ds_read_b128 v[28:31], v5"); e("ds_read_b128 v[32:35], v5 offset:16")
    e("ds_read_b128 v[36:39], v5 offset:128"); e("ds_read_b128 v[40:43], v5 offset:144")
    e("s_waitcnt lgkmcnt(0)")
    for c0 in (0, 2):
        A = [accb(0, b, c) + 2*p for c in (c0, c0+1) for b in range(2) for p in range(2)]
        M = [28 + (i % 4)*2 for i in range(8)]
        for i in range(8): e(f"v_pk_add_f32 {pr(A[i])}, {pr(A[i])}, {pr(M[i])} neg_lo:[0,1] neg_hi:[0,1]")
        for i in range(8): e(f"v_cvt_pk_bf16_f32 v{48+i}, v{A[i]}, v{A[i]+1}")
        for i in range(8): unpack(k, f"v{A[i]}", f"v{A[i]+1}", f"v{48+i}")
        for i in range(8): e(f"v_pk_mul_f32 {pr(A[i])}, {pr(A[i])}, {pr(M[i]+8)}")
        for i in range(8): e(f"v_cvt_pk_bf16_f32 v{64+4*c0+i}, v{A[i]}, v{A[i]+1}")
        for c in (c0, c0+1): e(f"buffer_store_dwordx4 {v(64+4*c,4)}, v12, s[24:27], s{46+c} offen sc1")
    e("s_lshl_b32 s43, s36, 2")
    e("s_mov_b32 s44, 0x33221000"); e("s_mov_b32 s45, 0x00766554"); e("s_lshr_b64 s[44:45], s[44:45], s43"); e("s_and_b32 s46, s44, 15")
    e("s_mov_b32 s44, 0x44322110"); e("s_mov_b32 s45, 0x00776655"); e("s_lshr_b64 s[44:45], s[44:45], s43"); e("s_and_b32 s47, s44, 15")
    for r in (46, 47):
        e(f"s_lshl_b32 s43, s{r}, 2"); e("s_lshr_b32 s44, 0xca865310, s43"); e("s_and_b32 s44, s44, 15")
        e("s_sub_u32 s44, s36, s44"); e("s_lshl_b32 s44, s44, 4"); e("s_add_u32 s44, s44, s35"); e("s_lshl_b32 s44, s44, 2")
        e(f"s_lshl_b32 s{r}, s{r}, 8"); e(f"s_add_u32 s{r}, s{r}, s44")
    e("v_mov_b32 v6, s46"); e("v_mov_b32 v7, s47"); e("v_cmp_lt_u32 vcc, 31, v1"); e("v_and_b32 v8, 31, v1"); e("v_lshlrev_b32 v8, 11, v8")
    e("v_cndmask_b32 v6, v6, v7, vcc"); e("v_add_u32 v6, v6, v8")
    e(f"v_mov_b32 v4, {W_PF + 8}"); e("v_mov_b32 v5, 1"); e("v_mov_b32 v7, s3"); e(f"s_mov_b32 s44, {FZ2}")
    e("s_mov_b64 exec, 1")
    e("s_waitcnt vmcnt(0)")
    e("ds_add_rtn_u32 v8, v4, v5")
    e("s_waitcnt lgkmcnt(0)")
    e("v_readfirstlane_b32 s43, v8")
    e("s_mov_b64 exec, -1")
    e("s_cmp_lg_u32 s43, 3"); e("s_cbranch_scc1 m_P2")
    e("buffer_store_dword v7, v6, s[60:63], s44 offen sc1")
    gen_p2(k)
    gen_p3(k)
    gen_helper(k, epoch_poll)
    k.label("m_end")
    e("s_endpgm")
    return k.text(256, nsgpr=100)

def gen_p2(k):
    e = k.e
    k.label("m_P2")
    k.stamp(6)
    e("s_load_dwordx2 s[6:7], s[0:1], 80")
    e("s_lshr_b32 s35, s41, 1"); e("s_lshl_b32 s35, s35, 3"); e("s_lshr_b32 s43, s42, 2"); e("s_add_u32 s35, s35, s43")
    e("s_and_b32 s36, s42, 3")
    e("s_and_b32 s43, s41, 1"); e("s_mul_i32 s43, s43, 27"); e("s_mul_i32 s44, s36, 7"); e("s_add_u32 s37, s43, s44")
    e("v_and_b32 v240, 15, v1"); e("v_lshrrev_b32 v241, 4, v1"); e("v_mov_b32 v245, v1")
    e("v_lshrrev_b32 v2, 5, v1"); e("v_lshlrev_b32 v2, 3, v2"); e("v_bfe_u32 v3, v1, 3, 2"); e("v_add_u32 v2, v2, v3")
    e("v_lshlrev_b32 v2, 12, v2")
    e("v_and_b32 v3, 7, v1"); e("v_xor_b32 v3, v3, v241")
    e("v_lshl_add_u32 v242, v3, 4, v2")
    e("v_xor_b32 v3, 4, v3")
    e("v_lshl_add_u32 v243, v3, 4, v2"); e(f"v_add_u32 v243, {16*4096 - 1024}, v243")
    e("v_lshlrev_b32 v244, 4, v1")
    e("s_lshl_b32 s43, s35, 18"); e("s_lshl_b32 s44, s33, 10"); e("s_add_u32 s48, s43, s44"); e("s_add_u32 s48, s48, 256")
    e(f"s_add_u32 s49, s48, {4*4096}"); e(f"s_add_u32 s50, s48, {32*4096}"); e(f"s_add_u32 s51, s48, {36*4096}")
    e("s_lshl_b32 s43, s37, 16"); e("s_lshl_b32 s44, s33, 14"); e("s_add_u32 s52, s43, s44")
    for c in range(1, 7): e(f"s_add_u32 s{52+c}, s52, {c*65536}")
    e("s_cmp_eq_u32 s36, 3"); e(f"s_cselect_b32 s58, {HUGE}, s58")
    e(f"s_mul_i32 s39, s33, {RING2}")
    k.srd(16, 10, 11, 2048*4096)
    k.srd(20, 14, 15, ZF_BYTES, WS_Z2F)
    k.srd(24, 14, 15, ZF_BYTES, WS_Z1F)
    k.srd(28, 14, 15, ZF_BYTES, WS_HF)
    def Z(st, c): return v(112 + st*28 + c*4, 4)
    def acc(c, sg): return v((c*4 + sg)*4, 4)
    def wf(sg): return v(224 + 4*sg, 4)
    def issueZ(n):
        if n % 4 == 0 and n:
            for c in range(7): e(f"s_add_u32 s{52+c}, s{52+c}, 4096")
        for c in range(7): k.vmem(f"buffer_load_dwordx4 {Z(n%4,c)}, v244, s[20:23], s{52+c} offen offset:{(n%4)*1024} sc1", f"Z{n}")
    def issueA(c):
        for t in range(4):
            e(f"s_add_u32 m0, s39, {(c%NSLOT)*8192 + t*2048}")
            e("s_nop 0")
            k.vmem(f"buffer_load_dwordx4 v242, s[16:19], s{48+t} offen lds", f"A{c}")
            k.vmem(f"buffer_load_dwordx4 v243, s[16:19], s{48+t} offen offset:1024 lds", f"A{c}")
        for t in range(4): e(f"s_add_u32 s{48+t}, s{48+t}, 128")
    k.vm = []
    e("v_lshrrev_b32 v5, 1, v240"); e("v_xor_b32 v5, v5, v241")
    e("v_lshlrev_b32 v4, 7, v240"); e("v_lshl_add_u32 v4, v5, 4, v4"); e("v_add_u32 v4, s39, v4")
    for sg in range(4):
        e(f"s_xor_b32 s43, s33, {sg}"); e("s_lshl_b32 s43, s43, 11")
        e(f"v_add_u32 v{246+sg}, s43, v4")
        e(f"v_xor_b32 v{250+sg}, 64, v{246+sg}")
    e("s_setprio 0")
    e(f"v_mov_b32 v4, {W_PF}")
    lds_wait(k, "m_wpf", "v4", "v5", sleep=1)
    k.srd(64, 6, 7, 4096)
    e("s_setprio 3")
    k.stamp(7); k.cyc(12)
    k.vm = []
    for n in range(4): issueZ(n)
    for n in range(16):
        c, ks = n >> 1, n & 1
        if ks == 0 and f"A{c}" in k.vm: k.wait_vm(f"A{c}")
        for sg in range(4):
            e(f"ds_read_b128 {wf(sg)}, v{(250 if ks else 246)+sg} offset:{(c%NSLOT)*8192}")
        if f"Z{n}" in k.vm: k.wait_vm(f"Z{n}")
        if n == 0: k.stamp(8)
        order = (1, 3, 2, 0) if n == 15 else (0, 1, 2, 3)
        for ii, sg in enumerate(order):
            if n == 15:
                if ii == 0: e("s_waitcnt lgkmcnt(0)")
            else:
                e(f"s_waitcnt lgkmcnt({3-sg})")
            if ii == 3 and ks == 1 and c + NSLOT < 8: issueA(c + NSLOT)
            for cc in range(7):
                e(f"{MFMA} {acc(cc,sg)}, {Z(n%4,cc)}, {wf(sg)}, {'0' if n == 0 else acc(cc,sg)}")
        if n + 4 < 16: issueZ(n + 4)
        if n == 12:
            e("s_lshl_b32 s43, s35, 2"); e("s_add_u32 s43, s43, s33"); e("s_mul_i32 s44, s43, 27648")
            for cc in range(7):
                e(f"s_add_u32 s45, s37, {cc}"); e("s_lshr_b32 s46, s45, 1"); e("s_lshl_b32 s46, s46, 10"); e("s_and_b32 s45, s45, 1"); e("s_lshl_b32 s45, s45, 3")
                e("s_add_u32 s45, s45, s46"); e(f"s_add_u32 s{52+cc}, s45, s44")
            e("s_cmp_eq_u32 s36, 3"); e(f"s_cselect_b32 s58, {HUGE}, s58")
            for cc in range(7): k.vmem(f"buffer_load_dwordx2 {v(112+2*cc,2)}, v244, s[24:27], s{52+cc} offen sc1", "z1")
            e("s_lshr_b32 s44, s43, 1"); e("s_lshl_b32 s44, s44, 5"); e("s_and_b32 s45, s43, 1"); e("s_lshl_b32 s45, s45, 2"); e("s_add_u32 s44, s44, s45")
            e("v_lshrrev_b32 v128, 2, v240"); e("v_and_b32 v129, 3, v240"); e("v_lshl_add_u32 v128, v128, 3, v129"); e("v_add_u32 v128, s44, v128")
            e("v_lshlrev_b32 v128, 1, v128")
            k.vmem("buffer_load_ushort v126, v128, s[64:67], 0 offen", "z1")
        if n == 12:
            e("s_lshl_b32 s43, s33, 2"); e(f"s_add_u32 s43, s43, {W_GL}"); e("v_mov_b32 v254, s43"); e("v_mov_b32 v255, 1")
            e("ds_write_b32 v254, v255")
    k.stamp(9); k.cyc(13)
    e("v_add_u32 v130, s39, v244")
    e("s_xor_b32 s43, s33, 1"); e(f"s_mul_i32 s43, s43, {RING2}"); e("v_add_u32 v131, s43, v244")
    e("s_xor_b32 s43, s33, 3"); e(f"s_mul_i32 s43, s43, {RING2}"); e("v_add_u32 v132, s43, v244")
    e(f"v_add_u32 v133, {W_R1 - W_GL}, v254")
    e("v_xor_b32 v134, 4, v133"); e("v_xor_b32 v135, 8, v133"); e("v_add_u32 v135, 16, v135")
    for c in range(7):
        for h in range(2): e(f"ds_write_b128 v130, {acc(c,1+2*h)} offset:{(c*2+h)*1024}")
    e("ds_write_b32 v133, v255")
    lds_wait(k, "m_wr1", "v134", "v136")
    T = 140
    for h in (1, 0):
        for c in range(7): e(f"ds_read_b128 {v(T+(c*2+h)*4,4)}, v131 offset:{(c*2+h)*1024}")
    e("s_waitcnt lgkmcnt(7)")
    for c in range(7):
        for p in range(2):
            a = (c*4 + 2)*4 + 2*p
            e(f"v_pk_add_f32 {pr(a)}, {pr(a)}, {pr(T+(c*2+1)*4+2*p)}")
    e("s_waitcnt lgkmcnt(0)")
    for c in range(7): e(f"ds_write_b128 v131, {acc(c,2)} offset:{c*1024}")
    e("ds_write_b32 v133, v255 offset:16")
    for c in range(7):
        for p in range(2):
            a = (c*4)*4 + 2*p
            e(f"v_pk_add_f32 {pr(a)}, {pr(a)}, {pr(T+(c*2)*4+2*p)}")
    lds_wait(k, "m_wr2", "v135", "v136")
    for c in range(7): e(f"ds_read_b128 {v(T+c*4,4)}, v132 offset:{c*1024}")
    e("s_waitcnt vmcnt(0)")
    k.vm = []
    e("v_lshlrev_b32 v126, 16, v126")
    for i in range(14): unpack(k, f"v{170+2*i}", f"v{171+2*i}", f"v{112+i}")
    k.srd(16, 14, 15, WOF_BYTES, WS_WOF)
    e("s_and_b32 s43, s41, 1"); e("s_lshl_b32 s43, s43, 2"); e("s_add_u32 s45, s36, s43")
    e("s_xor_b32 s43, s33, 3"); e("s_lshl_b32 s46, s43, 4"); e("s_sub_i32 s46, s46, 22"); e("s_max_i32 s46, s46, 0")
    e("s_cmp_eq_u32 s43, 1"); e("s_cselect_b32 s47, 10, 16"); e("s_cmp_eq_u32 s43, 0"); e("s_cselect_b32 s47, 0, s47")
    e("s_lshl_b32 s46, s46, 10"); e("s_mul_i32 s48, s45, 138240"); e("s_add_u32 s48, s48, s46"); e(f"s_add_u32 s46, s46, {IMG}")
    e("s_waitcnt lgkmcnt(0)")
    e("s_cmp_eq_u32 s47, 0"); e("s_cbranch_scc1 m_gwodone")
    k.label("m_gwoloop")
    e("s_mov_b32 m0, s46"); e("s_add_u32 s46, s46, 2048")
    e("buffer_load_dwordx4 v244, s[16:19], s48 offen sc1 lds"); e("buffer_load_dwordx4 v244, s[16:19], s48 offen offset:1024 sc1 lds")
    e("s_add_u32 s48, s48, 2048"); e("s_sub_u32 s47, s47, 2"); e("s_cmp_lg_u32 s47, 0"); e("s_cbranch_scc1 m_gwoloop")
    k.label("m_gwodone")
    A = [c*16 + 2*p for c in range(7) for p in range(2)]
    for i in range(14): e(f"v_pk_add_f32 {pr(A[i])}, {pr(A[i])}, {pr(T+2*i)}")
    for i in range(14): e(f"v_cvt_pk_bf16_f32 v{T+i}, v{A[i]}, v{A[i]+1}")
    for i in range(14): unpack(k, f"v{A[i]}", f"v{A[i]+1}", f"v{T+i}")
    for i in range(14): e(f"v_pk_add_f32 {pr(A[i])}, {pr(A[i])}, v[126:127] op_sel_hi:[1,0]")
    for i in range(14): e(f"v_cvt_pk_bf16_f32 v{T+i}, v{A[i]}, v{A[i]+1}")
    for i in range(14): unpack(k, f"v{A[i]}", f"v{A[i]+1}", f"v{T+i}")
    for i in range(14): e(f"v_pk_mul_f32 {pr(A[i])}, {pr(A[i])}, {pr(170+2*i)}")
    for i in range(14): e(f"v_cvt_pk_bf16_f32 v{200+i}, v{A[i]}, v{A[i]+1}")
    e("s_bitcmp1_b32 s37, 0"); e("s_cbranch_scc1 m_hodd")
    for c in (0, 2, 4): e(f"buffer_store_dwordx4 {v(200+2*c,4)}, v244, s[28:31], s{52+c} offen sc1")
    e(f"buffer_store_dwordx2 {v(212,2)}, v244, s[28:31], s58 offen sc1")
    e("s_branch m_hdone")
    k.label("m_hodd")
    e(f"buffer_store_dwordx2 {v(200,2)}, v244, s[28:31], s52 offen sc1")
    for c in (1, 3): e(f"buffer_store_dwordx4 {v(200+2*c,4)}, v244, s[28:31], s{52+c} offen sc1")
    e("s_cmp_eq_u32 s36, 3"); e("s_cbranch_scc1 m_hodd6")
    e(f"buffer_store_dwordx4 {v(210,4)}, v244, s[28:31], s57 offen sc1")
    e("s_branch m_hdone")
    k.label("m_hodd6")
    e(f"buffer_store_dwordx2 {v(210,2)}, v244, s[28:31], s57 offen sc1")
    k.label("m_hdone")
    e("v_mov_b32 v1, v245")
    e("s_and_b32 s43, s41, 1"); e("s_lshl_b32 s43, s43, 2"); e("s_add_u32 s36, s36, s43")
    e(f"v_mov_b32 v4, {W_PF + 4}"); e("v_mov_b32 v5, 1"); e("v_lshlrev_b32 v6, 7, v1"); e("v_mov_b32 v7, s3")
    e("s_lshl_b32 s44, s35, 10"); e("s_lshl_b32 s45, s36, 2"); e("s_add_u32 s44, s44, s45"); e(f"s_add_u32 s44, s44, {FH2}")
    e("s_mov_b64 exec, 1")
    e("s_waitcnt vmcnt(0)")
    e("ds_add_rtn_u32 v8, v4, v5")
    e("s_waitcnt lgkmcnt(0)")
    e("v_readfirstlane_b32 s43, v8")
    e("s_mov_b64 exec, 0xff")
    e("s_cmp_lg_u32 s43, 3"); e("s_cbranch_scc1 m_nopub")
    e("buffer_store_dword v7, v6, s[60:63], s44 offen sc1")
    k.label("m_nopub")
    e("s_mov_b64 exec, -1")
    e("s_setprio 0")
    e("v_and_b32 v2, 15, v1"); e("v_lshrrev_b32 v3, 4, v1")
    e("s_mov_b32 s47, 0"); e("s_mov_b32 s46, 0")

def gen_p3(k):
    e = k.e
    k.label("m_P3")
    k.stamp(10)
    e("s_lshr_b32 s34, s32, 2")
    e("v_lshlrev_b32 v15, 4, v1")
    k.srd(16, 14, 15, WOF_BYTES, WS_WOF)
    k.srd(20, 14, 15, ZF_BYTES, WS_HF)
    k.srd(24, 4, 5, 2048*1280)
    k.srd(28, 98, 99, 2048*1280)
    e("s_lshl_b32 s46, s46, 10"); e("s_mul_i32 s48, s36, 138240"); e("s_add_u32 s48, s48, s46"); e(f"s_add_u32 s46, s46, {IMG}")
    e("s_cmp_eq_u32 s47, 0"); e("s_cbranch_scc1 m_wodone")
    k.label("m_woloop")
    e("s_mov_b32 m0, s46"); e("s_add_u32 s46, s46, 1024")
    e("buffer_load_dwordx4 v15, s[16:19], s48 offen sc1 lds")
    e("s_add_u32 s48, s48, 1024"); e("s_sub_u32 s47, s47, 1"); e("s_cmp_lg_u32 s47, 0"); e("s_cbranch_scc1 m_woloop")
    k.label("m_wodone")
    def H(g, sg): return v(16 + (g*2 + sg)*4, 4)
    def WF(g, db): return v(72 + (g*5 + db)*4, 4)
    def acc(sg, db): return v(212 + (sg*5 + db)*4, 4)
    e("s_cmp_eq_u32 s33, 3"); e(f"s_cselect_b32 s45, {HUGE}, 6144")
    e("s_and_b32 s43, s33, 1"); e("s_lshl_b32 s44, s34, 1"); e("s_add_u32 s57, s43, s44")
    e("s_lshr_b32 s58, s33, 1"); e("s_mul_i32 s58, s58, 3")
    e("s_lshr_b32 s43, s57, 1"); e("s_lshl_b32 s43, s43, 5"); e("s_and_b32 s44, s57, 1"); e("s_lshl_b32 s44, s44, 2"); e("s_add_u32 s59, s43, s44")
    e("s_lshl_b32 s43, s35, 6"); e("s_add_u32 s43, s43, s59")
    e("v_lshrrev_b32 v6, 2, v2"); e("v_and_b32 v7, 3, v2"); e("v_lshl_add_u32 v6, v6, 3, v7"); e("v_add_u32 v6, s43, v6")
    e("v_mul_u32_u24 v6, 1280, v6"); e("v_lshl_add_u32 v6, v3, 3, v6"); e("s_mul_i32 s43, s36, 160"); e("v_add_u32 v14, s43, v6")
    for i in range(3):
        e(f"s_add_u32 s43, s58, {i}"); e(f"s_min_u32 s{68+i}, s43, 4")
        e(f"s_lshl_b32 s{72+i}, s{68+i}, 5")
    k.srd(64, 14, 15, XT_BYTES, WS_YT)
    e("s_lshl_b32 s43, s35, 2"); e("s_lshl_b32 s44, s34, 1"); e("s_add_u32 s43, s43, s44"); e("s_mul_i32 s43, s43, 27"); e("s_mul_i32 s44, s33, 7"); e("s_add_u32 s43, s43, s44")
    e("s_lshl_b32 s46, s43, 10"); e("s_add_u32 s47, s46, 27648")
    e("s_add_u32 s48, s46, 4096"); e("s_add_u32 s49, s47, 4096"); e("s_add_u32 s50, s46, s45"); e("s_add_u32 s51, s47, s45")
    e("s_mul_i32 s43, s33, 35840"); e(f"s_add_u32 s43, s43, {IMG}"); e("v_add_u32 v252, s43, v15")
    e("s_cmp_eq_u32 s33, 3"); e("s_cselect_b32 s43, 5120, 0"); e("v_subrev_u32 v253, s43, v252")
    e("v_and_b32 v4, 7, v1"); e("v_lshlrev_b32 v4, 2, v4")
    e("s_lshl_b32 s44, s35, 10"); e("s_lshl_b32 s43, s36, 7"); e("s_add_u32 s44, s44, s43"); e(f"s_add_u32 s44, s44, {FH2}")
    e("v_min_u32 v254, 39, v1"); e("v_lshlrev_b32 v254, 3, v254")
    e("s_mul_i32 s52, s36, 320"); e(f"s_add_u32 s52, s52, {FY}")
    e("s_cmp_ge_u32 s32, 4"); e("s_cbranch_scc1 m_nwv")
    e("s_waitcnt vmcnt(0)")
    k.label("m_nwv")
    e("s_barrier")
    k.stamp(4)
    e("s_cmp_lg_u32 s32, 3"); e("s_cbranch_scc1 m_nhp")
    e("buffer_load_dword v5, v4, s[60:63], s44 offen sc1")
    k.label("m_nhp")
    e("s_cmp_lg_u32 s32, 2"); e("s_cbranch_scc1 m_nyp")
    e("buffer_load_dwordx2 v[248:249], v254, s[60:63], s52 offen sc1")
    k.label("m_nyp")
    for g in range(7):
        for db in range(5): e(f"ds_read_b128 {WF(g,db)}, v{253 if g == 6 else 252} offset:{g*5120 + db*1024}")
    for i in range(3): e(f"buffer_load_dwordx2 {v(8+2*i,2)}, v14, s[24:27], s{72+i} offen")
    e("v_lshrrev_b32 v244, 3, v1"); e("v_lshlrev_b32 v244, 12, v244"); e("v_and_b32 v245, 7, v1"); e("v_lshl_add_u32 v244, v245, 4, v244")
    e("s_mul_i32 s53, s36, 80"); e("s_lshl_b32 s43, s32, 3"); e("s_add_u32 s53, s53, s43"); e("s_lshl_b32 s53, s53, 12"); e("s_lshl_b32 s43, s35, 7"); e("s_add_u32 s53, s53, s43")
    e("s_cmp_lt_u32 s32, 2"); e(f"s_cselect_b32 s54, {64*4096}, 0"); e("s_cselect_b32 s55, 8192, 0"); e("s_add_u32 s54, s54, s53")
    e("s_lshl_b32 s43, s32, 10"); e(f"s_add_u32 s43, s43, {YTILE}"); e("v_add_u32 v246, s43, v15"); e("v_add_u32 v247, s55, v246")
    e("s_cmp_lg_u32 s32, 3"); e("s_cbranch_scc1 m_hw")
    poll_flags(k, "m_pollh", "v4", FLS, 1, 5, "v6", soff="s44", sleep=2, preloaded=True)
    k.label("m_hw")
    e("s_cmp_lg_u32 s32, 2"); e("s_cbranch_scc1 m_noy")
    poll_flags(k, "m_polly", "v254", FLS, 2, 248, "v5", soff="s52", sleep=8, preloaded=True)
    k.label("m_noy")
    e("s_waitcnt lgkmcnt(0)")
    e("s_barrier")
    k.stamp(11)
    k.vm = []
    k.vmem("buffer_load_dwordx4 v[236:239], v244, s[64:67], s53 offen sc1", "y")
    k.vmem("buffer_load_dwordx4 v[240:243], v244, s[64:67], s54 offen sc1", "y")
    for g in range(7):
        for sg in range(2):
            so = 46 + sg + (0 if g < 4 else 2 if g < 6 else 4)
            k.vmem(f"buffer_load_dwordx4 {H(g,sg)}, v15, s[20:23], s{so} offen offset:{(g%4)*1024 if g < 6 else 0} sc1", f"h{g}")
    e("s_mul_i32 s43, s32, 10240"); e("v_add_u32 v252, s43, v15")
    e("s_mul_i32 s43, s34, 40960"); e("s_and_b32 s44, s33, 1"); e("s_mul_i32 s44, s44, 5120"); e("s_add_u32 s43, s43, s44")
    e("v_bfe_u32 v4, v1, 2, 2"); e("v_lshl_add_u32 v4, v3, 2, v4"); e("v_lshlrev_b32 v4, 7, v4")
    e("v_and_b32 v5, 3, v1"); e("v_lshl_add_u32 v4, v5, 4, v4")
    e("s_lshl_b32 s44, s59, 1"); e(f"s_add_u32 s44, s44, {YTILE}"); e("v_add_u32 v4, s44, v4")
    for i in range(3):
        e(f"s_lshl_b32 s44, s{68+i}, 10"); e("s_add_u32 s44, s44, s43"); e(f"v_add_u32 v{253+i}, s44, v15")
        e(f"s_lshl_b32 s44, s{68+i}, 11"); e(f"v_add_u32 v{5+i}, s44, v4")
    for g in range(7):
        k.wait_vm(f"h{g}")
        if g == 0: e("ds_write_b128 v246, v[236:239]"); e("ds_write_b128 v247, v[240:243]"); e("s_waitcnt lgkmcnt(0)")
        for db in range(5):
            for sg in range(2):
                e(f"{MFMA} {acc(sg,db)}, {WF(g,db)}, {H(g,sg)}, {'0' if g == 0 else acc(sg,db)}")
    e("s_nop 2")
    e("s_nop 1")
    for db in range(5):
        for sg in range(2): e(f"ds_write_b128 v252, {acc(sg,db)} offset:{(sg*5+db)*1024}")
    for i in range(6): unpack(k, f"v{96+2*i}", f"v{97+2*i}", f"v{8+i}")
    e("s_waitcnt lgkmcnt(0)")
    e("s_barrier")
    for i in range(3): e(f"ds_read_b64_tr_b16 {v(24+2*i,2)}, v{5+i}")
    for i in range(3):
        for kq in range(4): e(f"ds_read_b128 {v(32+(i*4+kq)*4,4)}, v{253+i} offset:{kq*10240}")
    e("s_waitcnt lgkmcnt(12)")
    for n in range(6): unpack(k, f"v{112+2*n}", f"v{113+2*n}", f"v{24+n}")
    for n in range(6): e(f"v_pk_add_f32 {pr(96+2*n)}, {pr(96+2*n)}, {pr(112+2*n)}")
    for n in range(6): e(f"v_cvt_pk_bf16_f32 v{8+n}, v{96+2*n}, v{97+2*n}")
    for n in range(6): unpack(k, f"v{96+2*n}", f"v{97+2*n}", f"v{8+n}")
    e("s_waitcnt lgkmcnt(0)")
    A = [32 + i*16 + 2*p for i in range(3) for p in range(2)]
    for n in range(6): e(f"v_pk_add_f32 {pr(A[n])}, {pr(A[n])}, {pr(A[n]+4)}"); e(f"v_pk_add_f32 {pr(A[n]+8)}, {pr(A[n]+8)}, {pr(A[n]+12)}")
    for n in range(6): e(f"v_pk_add_f32 {pr(A[n])}, {pr(A[n])}, {pr(A[n]+8)}")
    for n in range(6): e(f"v_cvt_pk_bf16_f32 v{24+n}, v{A[n]}, v{A[n]+1}")
    for n in range(6): unpack(k, f"v{A[n]}", f"v{A[n]+1}", f"v{24+n}")
    for n in range(6): e(f"v_pk_add_f32 {pr(A[n])}, {pr(A[n])}, {pr(96+2*n)}")
    for n in range(6): e(f"v_cvt_pk_bf16_f32 v{24+n}, v{A[n]}, v{A[n]+1}")
    for i in range(3): e(f"buffer_store_dwordx2 {v(24+2*i,2)}, v14, s[28:31], s{72+i} offen")
    k.end(0)

def gen_helper(k, epoch_poll):
    e = k.e
    k.label("m_helper")
    e("s_lshl_b32 s35, s41, 2"); e("s_add_u32 s35, s35, s42"); e("s_sub_u32 s35, s35, 28")
    e("v_and_b32 v2, 15, v1"); e("v_lshrrev_b32 v3, 4, v1")
    e("s_lshl_b32 s43, s32, 3")
    e("v_add_u32 v4, s43, v3")
    e("s_lshl_b32 s44, s35, 6")
    e("v_add_u32 v5, s44, v4"); e("v_mul_u32_u24 v5, 1280, v5"); e("v_lshl_add_u32 v5, v2, 4, v5")
    e("v_add_u32 v6, 5120, v5")
    e("v_mul_u32_u24 v7, 1296, v4"); e("v_lshl_add_u32 v7, v2, 4, v7")
    e("v_mov_b32 v110, 0")
    e(f"v_lshlrev_b32 v4, 2, v2"); e(f"v_add_u32 v4, {W_EPOCH}, v4")
    e("s_cmp_lg_u32 s32, 4"); e("s_cbranch_scc1 m_hnoclr")
    e("ds_write_b32 v4, v110")
    k.label("m_hnoclr")
    e("s_waitcnt lgkmcnt(0)")
    k.srd(16, 4, 5, 2048*1280)
    k.srd(28, 14, 15, XT_BYTES, WS_XNT)
    k.srd(64, 12, 13, 256)
    k.srd(FLS, 14, 15, FL_BYTES, WS_FL)
    k.srd(20, 96, 97, 864*1280)
    k.srd(24, 14, 15, WOF_BYTES, WS_WOF)
    k.vm = []
    for g in range(2):
        for n in range(5):
            k.vmem(f"buffer_load_dwordx4 {v(8+g*20+n*4,4)}, v{5+g}, s[16:19], 0 offen offset:{n*256}", f"x{g}")
    e("s_lshl_b32 s36, s35, 3"); e("s_add_u32 s36, s36, s32")
    e("v_lshrrev_b32 v111, 3, v1"); e("v_mul_u32_u24 v111, 1280, v111"); e("v_and_b32 v112, 7, v1"); e("v_lshl_add_u32 v111, v112, 4, v111")
    for it in range(2):
        e(f"s_add_u32 s43, s36, {256*it}"); e("s_mul_i32 s44, s43, 205"); e("s_lshr_b32 s44, s44, 11"); e("s_mul_i32 s45, s44, 10"); e("s_sub_u32 s45, s43, s45")
        e("s_mul_i32 s46, s44, 40960"); e("s_lshl_b32 s47, s45, 7"); e("s_add_u32 s46, s46, s47")
        for d in range(4):
            e(f"s_lshl_b32 s47, s45, 2"); e(f"s_add_u32 s47, s47, {d}"); e("s_mul_i32 s56, s47, 52"); e("s_lshr_b32 s56, s56, 8")
            e("s_mul_i32 s56, s56, 130"); e("s_add_u32 s47, s47, s56"); e("s_mul_i32 s56, s44, 5"); e("s_add_u32 s47, s47, s56"); e("s_lshl_b32 s47, s47, 10")
            e("s_cmp_lt_u32 s43, 270"); e(f"s_cselect_b32 s{48+it*4+d}, s47, {HUGE}")
        for n in range(4):
            k.vmem(f"buffer_load_dwordx4 {v(120+it*16+n*4,4)}, v111, s[20:23], s46 offen", "wo")
            e("s_add_u32 s46, s46, 10240")
    for g in range(2):
        k.stamp(1+2*g)
        k.wait_vm(f"x{g}")
        X = 48
        src = 8 + g*20
        for n in range(20): unpack(k, f"v{X+2*n}", f"v{X+2*n+1}", f"v{src+n}")
        e(f"v_pk_add_f32 v[88:89], {pr(X)}, {pr(X+4)}"); e(f"v_pk_add_f32 v[90:91], {pr(X+2)}, {pr(X+6)}")
        for n in range(4, 20): e(f"v_pk_add_f32 {pr(88+2*(n%2))}, {pr(88+2*(n%2))}, {pr(X+2*n)}")
        e("v_pk_add_f32 v[88:89], v[88:89], v[90:91]"); e("s_nop 0"); e("v_add_f32 v88, v88, v89")
        for sh in (8, 4, 2, 1):
            e("s_nop 1"); e(f"v_add_f32_dpp v88, v88, v88 row_ror:{sh} row_mask:0xf bank_mask:0xf")
        e(f"v_mul_f32 v88, {f32(1/640)}, v88")
        for a in range(4): e(f"v_mov_b32 v{92+a}, 0")
        for n0 in range(0, 20, 4):
            for a in range(4): e(f"v_pk_add_f32 {pr(96+2*a)}, {pr(X+2*(n0+a))}, v[88:89] op_sel_hi:[1,0] neg_lo:[0,1] neg_hi:[0,1]")
            for a in range(4): e(f"v_pk_fma_f32 {pr(92+2*(a%2))}, {pr(96+2*a)}, {pr(96+2*a)}, {pr(92+2*(a%2))}")
        e("v_pk_add_f32 v[92:93], v[92:93], v[94:95]"); e("s_nop 0"); e("v_add_f32 v92, v92, v93")
        for sh in (8, 4, 2, 1):
            e("s_nop 1"); e(f"v_add_f32_dpp v92, v92, v92 row_ror:{sh} row_mask:0xf bank_mask:0xf")
        e(f"v_mul_f32 v92, {f32(1/640)}, v92")
        ln_finish(k, "v88", "v92", "v89")
        for n in range(20): e(f"v_pk_add_f32 {pr(X+2*n)}, {pr(X+2*n)}, v[88:89] op_sel_hi:[1,0] neg_lo:[0,1] neg_hi:[0,1]")
        for n in range(20): e(f"v_cvt_pk_bf16_f32 v{src+n}, v{X+2*n}, v{X+2*n+1}")
        for n in range(20): unpack(k, f"v{X+2*n}", f"v{X+2*n+1}", f"v{src+n}")
        for n in range(20): e(f"v_pk_mul_f32 {pr(X+2*n)}, {pr(X+2*n)}, v[92:93] op_sel_hi:[1,0]")
        for n in range(20): e(f"v_cvt_pk_bf16_f32 v{src+n}, v{X+2*n}, v{X+2*n+1}")
        for n in range(5):
            e(f"ds_write_b128 v7, {v(src+4*n,4)} offset:{g*4*1296 + n*256}")
    e(f"v_mov_b32 v9, {W_EPOCH}"); e("v_mov_b32 v10, 0")
    e("s_cmp_lg_u32 s32, 4"); e("s_cbranch_scc1 m_hepdone")
    e("buffer_load_dword v11, v10, s[64:67], 0 offen sc1")
    epoch_poll("h")
    k.label("m_hepdone")
    e("s_waitcnt lgkmcnt(0)")
    e("s_barrier")
    k.stamp(4)
    e("ds_read_b32 v113, v9")
    e("v_bfe_u32 v4, v1, 2, 2"); e("v_lshl_add_u32 v4, v3, 3, v4"); e("v_mul_u32_u24 v4, 1296, v4")
    e("v_and_b32 v5, 3, v1"); e("v_lshl_add_u32 v4, v5, 3, v4")
    e("s_lshl_b32 s43, s32, 5"); e("v_add_u32 v4, s43, v4")
    e(f"v_add_u32 v5, {32*1296}, v4")
    for n in range(5):
        for th in range(2):
            for hh in range(2):
                e(f"ds_read_b64_tr_b16 {v(16+(n*2+th)*4+hh*2,2)}, v{4+th} offset:{hh*4*1296 + n*256}")
    e("s_mul_i32 s43, s32, 4608"); e("s_add_u32 s43, s43, 90112")
    e("v_mul_u32_u24 v5, 144, v2"); e("v_lshl_add_u32 v5, v3, 4, v5"); e("v_add_u32 v5, s43, v5")
    e("v_lshrrev_b32 v4, 3, v1"); e("v_lshlrev_b32 v6, 12, v4"); e("v_mul_u32_u24 v4, 144, v4"); e("v_and_b32 v7, 7, v1"); e("v_lshl_add_u32 v4, v7, 4, v4"); e("v_add_u32 v4, s43, v4")
    e("v_lshl_add_u32 v6, v7, 4, v6")
    e("s_lshl_b32 s46, s32, 16"); e("s_lshl_b32 s44, s35, 7"); e("s_add_u32 s46, s46, s44"); e("s_add_u32 s47, s46, 32768")
    e("s_waitcnt vmcnt(0) lgkmcnt(0)")
    e("v_readfirstlane_b32 s3, v113")
    for n in range(5):
        o = (n % 2) * 2304
        for th in range(2): e(f"ds_write_b128 v5, {v(16+(n*2+th)*4,4)} offset:{o + th*64}")
        for hf in range(2): e(f"ds_read_b128 {v(56+(n*2+hf)*4,4)}, v4 offset:{o + hf*8*144}")
    for n in range(5):
        e(f"s_waitcnt lgkmcnt({min(15, 4*(4-n))})")
        for hf in range(2):
            e(f"buffer_store_dwordx4 {v(56+(n*2+hf)*4,4)}, v6, s[28:31], s{46+hf} offen sc1")
        e(f"s_add_u32 s46, s46, {8*65536}"); e(f"s_add_u32 s47, s47, {8*65536}")
    e("v_bfe_u32 v5, v1, 2, 2"); e("v_lshl_add_u32 v5, v3, 2, v5"); e("v_mul_u32_u24 v5, 144, v5"); e("v_and_b32 v6, 3, v1"); e("v_lshl_add_u32 v5, v6, 3, v5"); e("v_add_u32 v5, s43, v5")
    e("v_lshlrev_b32 v6, 4, v1")
    for it in range(2):
        for n in range(4): e(f"ds_write_b128 v4, {v(120+it*16+n*4,4)} offset:{n*8*144}")
        for d in range(4):
            for hh in range(2): e(f"ds_read_b64_tr_b16 {v(160+it*16+d*4+hh*2,2)}, v5 offset:{hh*16*144 + d*32}")
    k.stamp(5)
    e("s_waitcnt lgkmcnt(0)")
    for it in range(2):
        for d in range(4):
            e(f"buffer_store_dwordx4 {v(160+it*16+d*4,4)}, v6, s[24:27], s{48+it*4+d} offen sc1")
    e("s_load_dwordx8 s[64:71], s[0:1], 8")
    e("s_load_dwordx4 s[72:75], s[0:1], 40")
    e("s_cmp_ge_u32 s32, 4"); e("s_cbranch_scc1 m_hG")
    conv_params(k)
    e("s_waitcnt vmcnt(0)")
    e("s_barrier")
    e("s_branch m_Lpost")
    k.label("m_hG")
    e("s_waitcnt vmcnt(0) lgkmcnt(0)")
    e("s_barrier")
    e(f"v_mov_b32 v4, {W_PF + 8}"); e("v_mov_b32 v5, 4"); e("ds_write_b32 v4, v5")
    e("s_cmp_lg_u32 s32, 4"); e("s_cbranch_scc1 m_P2")
    e("s_lshl_b32 s45, s35, 2"); e(f"s_add_u32 s45, s45, {FX}")
    set_flag(k, FLS, "s45", 0, "v7", "v8")
    e("s_branch m_P2")

if __name__ == "__main__":
    import sys
    NAME = "parallel_sum__ssm_conv_s4d__mixer_gmlp__prompt"
    path = sys.argv[1] if len(sys.argv) > 1 else f"cdna_kernels/{NAME}.s"
    t, kd = gen_mega(NAME + "_kernel")
    hdr = open(f"cdna_kernels/{NAME}.s.ref").read().split("; Override launch")[0]
    lst = os.environ.get("LIST", "0") == "1"
    out = hdr + (f"; @launch kernel={NAME}_kernel grid=(256,1,1) block=(512,1,1) lds={LDS_TOTAL}\n" if lst else f"; @launch grid=(256,1,1) block=(512,1,1) lds={LDS_TOTAL}\n")
    out += '.amdgcn_target "amdgcn-amd-amdhsa--gfx950"\n.text\n' + t + '\n.section .rodata,"a"\n.p2align 6\n' + kd + "\n"
    open(path, "w").write(out)
```

```python
from asmlib import *
import os
import numpy as np
MB = 1 << 20
WS_XNT, WS_Z2F, WS_Z1F, WS_HF, WS_YT, WS_ST2, WS_WOF, WS_FL = 0, 4*MB, 8*MB, 12*MB, 16*MB, 20*MB, 22*MB, 24*MB
ZF_BYTES = 54 * 65536
XT_BYTES = 640 * 4096
ST2_BYTES = 64 * 14 * 512
WOF_BYTES = 40 * 27 * 1024
FZ, FX, FK, FY, FH = 0, 4096, 5120, 6144, 10240
FL_BYTES = 131072
FZ2 = 65536
FH2 = 16384
HUGE = 0x40000000
GC0 = -2.0 * 0.7978845608028654 * 1.4426950408889634
GC1 = GC0 * 0.044715
MFMA = "v_mfma_f32_16x16x32_bf16"
LOG2E = 1.4426950408889634
L_HI = float(np.float32(LOG2E)); L_LO = LOG2E - L_HI
EXP = os.environ.get("EXP", "")
LDS_TOTAL = 163840
RING2 = 24576
CONV0 = 98304; CONV_B = 14592
YTILE = CONV0 + 3 * CONV_B
MISC = 161216
W_EPOCH, W_PF, W_GL, W_R1, W_R2 = MISC + 2560, MISC + 2564, MISC + 2576, MISC + 2592, MISC + 2608
SPIN = 0x100000

def exp_precise(k, dst, x, t0, t1):
    e = k.e
    e(f"v_mul_f32 {t0}, {f32(L_HI)}, {x}")
    e(f"v_mov_b32 {t1}, {f32(L_HI)}")
    e(f"v_fma_f32 {t1}, {x}, {t1}, -{t0}")
    e(f"v_fmac_f32 {t1}, {f32(L_LO)}, {x}")
    e(f"v_exp_f32 {t0}, {t0}")
    e(f"v_mul_f32 {t1}, {f32(0.6931471805599453)}, {t1}")
    e(f"v_fma_f32 {dst}, {t0}, {t1}, {t0}")

def ln_finish(k, mean, var, t):
    k.e(f"v_max_f32 {var}, 0, {var}")
    k.e(f"v_cvt_pk_bf16_f32 {t}, {mean}, {var}")
    k.e(f"v_lshlrev_b32 {mean}, 16, {t}")
    k.e(f"v_and_b32 {var}, 0xffff0000, {t}")
    k.e(f"v_add_f32 {var}, {f32(1e-5)}, {var}")
    k.e(f"v_cvt_pk_bf16_f32 {t}, {var}, {var}")
    k.e(f"v_and_b32 {var}, 0xffff0000, {t}")
    k.e(f"v_sqrt_f32 {var}, {var}")
    k.e("s_nop 0")
    k.e(f"v_cvt_pk_bf16_f32 {t}, {var}, {var}")
    k.e(f"v_and_b32 {var}, 0xffff0000, {t}")
    k.e(f"v_rcp_f32 {var}, {var}")
    k.e("s_nop 0")

def unpack(k, lo, hi, src):
    k.e(f"v_lshlrev_b32 {lo}, 16, {src}"); k.e(f"v_and_b32 {hi}, 0xffff0000, {src}")
def pr(r): return f"v[{r}:{r+1}]"

def poll_flags(k, name, voff, srd, ndw, dst, tmp, soff="0", imm=0, sleep=0, preloaded=False):
    e = k.e
    e("s_mov_b32 s40, 0")
    if preloaded: e(f"s_branch {name}_pre")
    elif sleep: e(f"s_branch {name}_1st")
    k.label(name)
    if sleep:
        e(f"s_sleep {sleep}"); k.label(name + "_1st")
    sfx = {1: "dword", 2: "dwordx2", 4: "dwordx4"}[ndw]
    e(f"buffer_load_{sfx} {v(dst, ndw)}, {voff}, s[{srd}:{srd+3}], {soff} offen offset:{imm} sc1")
    e("s_add_u32 s40, s40, 1")
    if preloaded: k.label(name + "_pre")
    e("s_waitcnt vmcnt(0)")
    e(f"v_xor_b32 {tmp}, s3, v{dst}")
    for i in range(1, ndw):
        e(f"v_xor_b32 v{dst+i}, s3, v{dst+i}"); e(f"v_or_b32 {tmp}, {tmp}, v{dst+i}")
    e(f"v_cmp_ne_u32 vcc, 0, {tmp}")
    e(f"s_cmp_ge_u32 s40, {SPIN}")
    e(f"s_cbranch_scc1 {name}_ok")
    e(f"s_cbranch_vccnz {name}")
    k.label(name + "_ok")
    k.vm = []

def set_flag(k, srd, soff, imm, va, vb):
    e = k.e
    e(f"v_mov_b32 {va}, 0"); e(f"v_mov_b32 {vb}, s3")
    e("s_waitcnt vmcnt(0)")
    e("s_mov_b64 exec, 1")
    e(f"buffer_store_dword {vb}, {va}, s[{srd}:{srd+3}], {soff} offen offset:{imm} sc1")
    e("s_mov_b64 exec, -1")
    k.vm = [None]

def lds_wait(k, name, vaddr, vt, sleep=0):
    e = k.e
    e("s_mov_b32 s40, 0")
    k.label(name)
    if sleep: e(f"s_sleep {sleep}")
    e(f"ds_read_b32 {vt}, {vaddr}")
    e("s_add_u32 s40, s40, 1")
    e("s_waitcnt lgkmcnt(0)")
    e(f"v_readfirstlane_b32 s43, {vt}")
    e(f"s_cmp_ge_u32 s40, {SPIN*8}")
    e(f"s_cbranch_scc1 {name}_ok")
    e("s_cmp_eq_u32 s43, 0")
    e(f"s_cbranch_scc1 {name}")
    k.label(name + "_ok")
    k.lg = []

def lds_wait_ge(k, name, vaddr, vt, ndw, val, sleep=0, preloaded=False):
    e = k.e
    e("s_mov_b32 s75, 0")
    if preloaded: e(f"s_branch {name}_chk")
    k.label(name)
    if sleep: e(f"s_sleep {sleep}")
    e(f"ds_read_b{32*ndw} {v(vt, ndw)}, {vaddr}")
    e("s_add_u32 s75, s75, 1")
    e("s_waitcnt lgkmcnt(0)")
    e(f"s_cmp_ge_u32 s75, {SPIN*8}")
    e(f"s_cbranch_scc1 {name}_ok")
    k.label(name + "_chk")
    if ndw == 4: e(f"v_min_u32 v{vt}, v{vt}, v{vt+2}"); e(f"v_min_u32 v{vt+1}, v{vt+1}, v{vt+3}")
    if ndw >= 2: e(f"v_min_u32 v{vt}, v{vt}, v{vt+1}"); e("s_nop 0")
    e(f"v_readfirstlane_b32 s43, v{vt}")
    e(f"s_cmp_lt_u32 s43, {val}")
    e(f"s_cbranch_scc1 {name}")
    k.label(name + "_ok")
    k.lg = []

KG_PITCH = 272
KGW, KGR = 'v8', 'v9'
KG_HOLD = 168
def kgen_dt(k, dtv):
    e = k.e
    e(f"v_lshlrev_b32 {dtv}, 16, {dtv}")
    exp_precise(k, dtv, dtv, "v4", "v5")
    e(f"v_cvt_pk_bf16_f32 {dtv}, {dtv}, {dtv}"); e(f"v_and_b32 {dtv}, 0xffff0000, {dtv}")

def kgen_chains(k, par, dtv, hf, hold):
    e = k.e
    names = {}; nxt = [24]; held = []
    def pair(n):
        if n not in names:
            names[n] = nxt[0]; nxt[0] += 2; assert nxt[0] <= 136
        return names[n]
    def P(n): r = pair(n); return f"v[{r}:{r+1}]"
    urow = {"U0":0,"U1":1,"U2":2,"U3":3,"U4":4,"U5":5,"U6":6,"U7":7,"R256":8,"R258":9,"R260":10,"R262":11,"R512":12,"R516":13,"R768":14,"R772":15,
            "R1024":16,"R1280":17,"R1536":18,"R1792":19,"R2048":20}
    tmp = [0]
    def out(n, row, neg):
        r = pair(n)
        t = (KG_HOLD + tmp[0]) if hold else (152 + tmp[0] % 12)
        tmp[0] += 1
        e(f"v_cvt_pk_bf16_f32 v{t}, v{r}, {'-' if neg else ''}v{r+1}")
        held.append((t, row))
        return None if hold else f"ds_write_b32 {KGW}, v{t} offset:{row*KG_PITCH}"
    def level(ops):
        for d, a, b in ops: e(f"v_pk_mul_f32 {P('t_'+str(ops.index((d,a,b))))}, {P(a)}, {P(b)} op_sel:[0,0] op_sel_hi:[1,0]")
        for d, a, b in ops: e(f"v_pk_fma_f32 {P(d)}, {P(a)}, {P(b)}, {P('t_'+str(ops.index((d,a,b))))} op_sel:[1,1,0] op_sel_hi:[0,1,1] neg_lo:[0,1,0]")
    def unp(dst, src): e(f"v_lshlrev_b32 {dst}, 16, {src}" if hf == 0 else f"v_and_b32 {dst}, 0xffff0000, {src}")
    unp("v6", f"v{par}")
    exp_precise(k, "v6", "v6", "v4", "v5")
    e("v_cvt_pk_bf16_f32 v6, v6, v6"); e("v_and_b32 v6, 0xffff0000, v6")
    e(f"v_mul_f32 v6, v6, {dtv}"); e(f"v_mul_f32 v6, {f32(-LOG2E)}, v6")
    unp("v7", f"v{par+1}"); e(f"v_mul_f32 v7, v7, {dtv}"); e("v_mul_f32 v7, 0.15915494, v7")
    u0 = pair("U0")
    unp(f"v{u0}", f"v{par+2}"); unp(f"v{u0+1}", f"v{par+3}")
    e(f"v_mul_f32 v{u0}, v{u0}, {dtv}"); e(f"v_mul_f32 v{u0+1}, v{u0+1}, {dtv}")
    e(f"v_add_f32 v{u0}, v{u0}, v{u0}"); e(f"v_add_f32 v{u0+1}, v{u0+1}, v{u0+1}")
    seqs = []
    for n, (nm, pw) in enumerate((("Z1", 1.0), ("W1", 8.0), ("Z256", 256.0))):
        r = pair(nm); a, b = 152 + 2*n, 153 + 2*n
        seqs.append([f"v_mul_f32 v{a}, {f32(pw)}, v6", f"v_mul_f32 v{b}, {f32(pw)}, v7", f"v_exp_f32 v{a}, v{a}", f"v_fract_f32 v{b}, v{b}",
                     f"v_cos_f32 v{r}, v{b}", f"v_sin_f32 v{r+1}, v{b}", f"v_mul_f32 v{r}, v{r}, v{a}", f"v_mul_f32 v{r+1}, v{r+1}, v{a}"])
    k.batch(seqs)
    def emit_out(lst):
        ws = [out(n, row, neg) for n, row, neg in lst]
        for w in ws:
            if w: e(w)
    emit_out([("U0", 0, True), ("W1", 22, False)])
    levels = [
        [("U1","U0","Z1"), ("Z2","Z1","Z1"), ("W2","W1","W1"), ("Z512","Z256","Z256"), ("R256","U0","Z256")],
        [("U2","U0","Z2"), ("U3","U1","Z2"), ("Z4","Z2","Z2"), ("W3","W2","W1"), ("Y4","W2","W2"), ("R512","U0","Z512")],
        [("U4","U0","Z4"), ("U5","U1","Z4"), ("U6","U2","Z4"), ("U7","U3","Z4"), ("R258","U2","Z256"), ("R768","R512","Z256"), ("R1024","R512","Z512"),
         ("W1","W1","Y4"), ("W2","W2","Y4"), ("W3","W3","Y4"), ("W4","Y4","Y4")],
        [("R260","U4","Z256"), ("R262","U6","Z256"), ("R516","U4","Z512"), ("R1280","R768","Z512"), ("R1536","R1024","Z512"),
         ("W1","W1","Y4"), ("W2","W2","Y4"), ("W3","W3","Y4"), ("W4","W4","Y4")],
        [("R772","R516","Z256"), ("R1792","R1280","Z512"), ("R2048","R1536","Z512"),
         ("W1","W1","Y4"), ("W2","W2","Y4"), ("W3","W3","Y4"), ("W4","W4","Y4")],
    ] + [[("W1","W1","Y4"), ("W2","W2","Y4"), ("W3","W3","Y4"), ("W4","W4","Y4")]] * 3 + [[("W1","W1","Y4"), ("W2","W2","Y4"), ("W3","W3","Y4")]]
    vidx = {"W1": 1, "W2": -2, "W3": -1, "W4": 4}
    for lv in levels:
        level(lv)
        lst = []
        for d, a, b in lv:
            if d in urow: lst.append((d, urow[d], True))
            elif d == "Y4": lst.append((d, 21 + 4, False))
            elif d in vidx:
                vidx[d] += 4; lst.append((d, 21 + vidx[d], False))
        emit_out(lst)
    return held

def kgen_mm(k, first, toff=0, F0=104):
    e = k.e
    for half in range(2):
        for st in range(2):
            for f, row in enumerate((0, 16, 21, 37)):
                e(f"ds_read_b128 {v(F0+st*16+f*4,4)}, {KGR} offset:{toff + row*KG_PITCH + (half*2+st)*64}")
        for st in range(2):
            e(f"s_waitcnt lgkmcnt({4 if st == 0 else 0})")
            F = F0 + st*16
            z = first and half == 0 and st == 0
            for bb in range(2):
                e(f"{MFMA} {v(136+4*bb,4)}, {v(F,4)}, {v(F+8+4*bb,4)}, {'0' if z else v(136+4*bb,4)}")
                e(f"{MFMA} {v(144+4*bb,4)}, {v(F+8+4*bb,4)}, {v(F+4,4)}, {'0' if z else v(144+4*bb,4)}")

def kgen_addr(k, tab_s, lane_i, lane_q, lane):
    e = k.e
    e(f"v_lshl_add_u32 {KGW}, {lane}, 2, {tab_s}")
    e(f"v_mul_u32_u24 {KGR}, {KG_PITCH}, {lane_i}"); e(f"v_lshl_add_u32 {KGR}, {lane_q}, 4, {KGR}"); e(f"v_add_u32 {KGR}, {tab_s}, {KGR}")
    e("v_mov_b32 v4, 0x00003f80")
    e(f"ds_write_b32 {KGW}, v4 offset:{21*KG_PITCH}")

def kgen_loop(k, par, dtv, npass_s):
    e = k.e
    for i in range(136, 152): e(f"v_mov_b32 v{i}, 0")
    lab = k.newlabel("kg"); k.label(lab)
    kgen_chains(k, par, dtv, 0, False)
    for a in range(4): e(f"v_lshrrev_b32 v{par+a}, 16, v{par+a}")
    kgen_mm(k, False, 0)
    e(f"s_sub_u32 {npass_s}, {npass_s}, 1"); e(f"s_cmp_lg_u32 {npass_s}, 0"); e(f"s_cbranch_scc1 {lab}")

def compact_to_lds(k, kc_s):
    e = k.e
    e("v_max_u32 v4, 1, v3"); e("v_sub_u32 v4, 5, v4")
    e("v_lshlrev_b32 v5, v4, v2")
    e("v_lshlrev_b32 v6, 3, v3")
    e("v_mov_b32 v7, 512"); e("v_cmp_eq_u32 vcc, 2, v3"); e("s_nop 1"); e("v_cndmask_b32 v6, v6, v7, vcc")
    e("v_mov_b32 v7, 768"); e("v_mov_b32 v8, 4"); e("v_mov_b32 v9, 128"); e("v_cmp_eq_u32 vcc, 3, v3"); e("s_nop 1")
    e("v_cndmask_b32 v6, v6, v7, vcc"); e("v_cndmask_b32 v8, v8, v9, vcc")
    e(f"v_add3_u32 v5, v5, v6, {kc_s}")
    e("v_lshlrev_b32 v6, v4, 16"); e("v_add_u32 v6, v5, v6")
    e("v_add_u32 v7, v5, v8"); e("v_add_u32 v8, v6, v8")
    for n in range(8): e(f"v_cvt_pk_bf16_f32 v{24+n}, v{136+2*n}, v{137+2*n}")
    e("ds_write_b32 v5, v24"); e("ds_write_b32 v7, v25"); e("ds_write_b32 v6, v26"); e("ds_write_b32 v8, v27")
    e("v_lshlrev_b32 v9, 6, v2"); e("v_lshl_add_u32 v9, v3, 3, v9"); e(f"v_add_u32 v9, {kc_s}, v9")
    e("v_cmp_gt_u32 vcc, 5, v2"); e("s_and_saveexec_b64 s[46:47], vcc")
    e("ds_write_b64 v9, v[28:29] offset:1024"); e("ds_write_b64 v9, v[30:31] offset:1056")
    e("s_mov_b64 exec, -1")
```

```python
from mega_common import *
FLS = 60
RING2 = 16384
CONV0 = 65536
CONV_B = 15360
YTILE = 81920
IMG = 22528
NSLOT = 2
WS_KC = 26*MB
KC_BYTES = 640 * 1536

def conv_params(k):
    e = k.e
    e("s_lshl_b32 s34, s2, 1"); e("s_add_u32 s34, s34, s32")
    e("s_lshl_b32 s56, s41, 4"); e("s_lshr_b32 s57, s42, 1"); e("s_add_u32 s56, s56, s57"); e("s_add_u32 s56, s56, 512")
    e("s_bitcmp1_b32 s42, 0"); e("s_cselect_b32 s56, s56, 1000")
    e("s_cmp_eq_u32 s32, 2"); e("s_cselect_b32 s34, s56, s34")
    e("s_cmp_eq_u32 s32, 3"); e("s_cselect_b32 s34, 1000, s34")
    e("s_lshl_b32 s56, s34, 8"); e("s_lshl_b32 s57, s34, 1")
    e("v_lshlrev_b32 v4, 2, v1"); e("v_mov_b32 v5, 0")
    e("s_waitcnt lgkmcnt(0)")
    for a in range(4):
        k.srd(28, 64+2*a, 65+2*a, 640*256)
        e(f"buffer_load_dword v{164+a}, v4, s[28:31], s56 offen")
    k.srd(28, 72, 73, 1280); e("buffer_load_ushort v13, v5, s[28:31], s57 offen")
    k.srd(28, 74, 75, 1280); e("buffer_load_ushort v14, v5, s[28:31], s57 offen")

def gen_mega(name):
    k = Kern(name)
    e = k.e
    e("s_cmp_ge_u32 s2, 256"); e("s_cbranch_scc1 m_end")
    k.stamp_init()
    e("s_load_dwordx2 s[4:5], s[0:1], 0")
    e("s_load_dwordx4 s[8:11], s[0:1], 64")
    e("s_load_dwordx4 s[12:15], s[0:1], 104")
    e("s_load_dwordx4 s[96:99], s[0:1], 88")
    e("v_and_b32 v1, 63, v0")
    e("v_lshrrev_b32 v2, 6, v0")
    e("s_and_b32 s41, s2, 7")
    e("v_readfirstlane_b32 s32, v2")
    e("s_lshr_b32 s42, s2, 3")
    e("s_and_b32 s33, s32, 3")
    e("s_cmp_ge_u32 s42, 28"); e("s_cbranch_scc1 m_helper")
    e("s_mul_i32 s43, s42, 37"); e("s_lshr_b32 s43, s43, 8")
    e("s_mul_i32 s44, s43, 7"); e("s_sub_u32 s44, s42, s44")
    e("s_lshr_b32 s35, s41, 1"); e("s_lshl_b32 s35, s35, 2"); e("s_add_u32 s35, s35, s43")
    e("s_and_b32 s36, s41, 1"); e("s_mul_i32 s36, s36, 7"); e("s_add_u32 s36, s36, s44")
    e("s_cmp_ge_u32 s32, 4"); e("s_cbranch_scc1 m_gemm1")
    e("s_mul_i32 s45, s44, 3"); e("s_mul_i32 s46, s43, 5"); e("s_lshr_b32 s46, s46, 1"); e("s_add_u32 s45, s45, s46")
    e("s_cmp_ge_u32 s45, 20"); e("s_cselect_b32 s46, 20, 0"); e("s_sub_u32 s45, s45, s46")
    e("s_cmp_ge_u32 s45, 10"); e("s_cselect_b32 s46, 10, 0"); e("s_sub_u32 s45, s45, s46")
    e("s_load_dwordx8 s[64:71], s[0:1], 8")
    e("s_load_dwordx4 s[72:75], s[0:1], 40")
    e("v_and_b32 v3, 7, v1")
    e("s_lshl_b32 s39, s32, 13")
    e("s_cmp_ge_u32 s32, 2"); e("s_cbranch_scc1 m_ldB")
    e("s_lshl_b32 s43, s35, 7"); e("s_lshl_b32 s44, s32, 6"); e("s_add_u32 s43, s43, s44")
    e("v_lshrrev_b32 v2, 5, v1"); e("v_lshlrev_b32 v2, 3, v2")
    e("v_bfe_u32 v4, v1, 3, 2"); e("v_add3_u32 v2, v2, v4, s43")
    e("v_mul_u32_u24 v2, 1280, v2")
    e("v_lshrrev_b32 v4, 4, v1"); e("v_xor_b32 v3, v3, v4")
    e("v_lshl_add_u32 v4, v3, 4, v2")
    e("v_xor_b32 v3, 4, v3"); e("v_lshl_add_u32 v5, v3, 4, v2")
    for n in range(8):
        ee, b, Pp = n & 1, (n >> 1) & 1, n >> 2
        e(f"v_add_u32 v{16+n}, {(32*Pp + 4*b + 16*ee)*1280 - (n & 3)*1024}, v{4+ee}")
    e("s_waitcnt lgkmcnt(0)")
    k.srd(16, 4, 5, 2048*1280)
    e("s_mov_b32 s38, 128")
    e("s_branch m_ld")
    k.label("m_ldB")
    e("v_lshrrev_b32 v2, 3, v1"); e("v_mul_u32_u24 v2, 3456, v2")
    e("s_cmp_eq_u32 s32, 2"); e("s_cselect_b32 s44, 1664, 0")
    e("s_lshl_b32 s43, s36, 7"); e("s_add_u32 s43, s43, s44"); e("v_add_u32 v2, s43, v2")
    e("v_bfe_u32 v4, v1, 4, 1"); e("v_lshlrev_b32 v4, 1, v4"); e("v_xor_b32 v3, v3, v4")
    e("v_lshl_add_u32 v4, v3, 4, v2")
    e("v_xor_b32 v3, 4, v3"); e("v_lshl_add_u32 v5, v3, 4, v2")
    for n in range(8):
        e(f"v_add_u32 v{16+n}, {8*n*3456 - (n & 3)*1024}, v{4+(n & 1)}")
    e("s_waitcnt lgkmcnt(0)")
    k.srd(16, 8, 9, 640*3456)
    e(f"s_mov_b32 s38, {64*3456}")
    k.label("m_ld")
    if "norot" in EXP: e("s_mov_b32 s45, 0")
    if "rot2" in EXP: e("s_and_b32 s45, s42, 1"); e("s_mul_i32 s45, s45, 5")
    e("s_mul_i32 s37, s45, s38"); e("s_mul_i32 s46, s38, 10"); e("s_mov_b32 s40, 0")
    k.label("m_ldloop")
    e("s_cmp_lt_u32 s40, 3"); e("s_cbranch_scc1 m_ldissue")
    e("s_waitcnt vmcnt(16)")
    e("s_barrier")
    k.label("m_ldissue")
    for g in range(2):
        e(f"s_add_u32 m0, s39, {g*4096}")
        e("s_nop 0")
        for n in range(4): e(f"buffer_load_dwordx4 v{16+g*4+n}, s[16:19], s37 offen offset:{n*1024} lds")
    e("s_add_u32 s39, s39, 32768"); e("s_and_b32 s39, s39, 0x1ffff")
    e("s_add_u32 s37, s37, s38"); e("s_cmp_eq_u32 s37, s46"); e("s_cselect_b32 s37, 0, s37")
    e("s_add_u32 s40, s40, 1"); e("s_cmp_lt_u32 s40, 10"); e("s_cbranch_scc1 m_ldloop")
    k.stamp(1)
    conv_params(k)
    k.srd(20, 10, 11, 2048*4096)
    e("s_lshl_b32 s43, s42, 2"); e("s_add_u32 s43, s43, s32"); e(f"s_mul_i32 s43, s43, {9*1024+384}")
    e("s_lshl_b32 s44, s41, 20"); e("s_add_u32 s43, s43, s44")
    e("v_lshlrev_b32 v2, 4, v1")
    def pf(n):
        for i in range(n):
            e(f"buffer_load_dwordx4 v[224:227], v2, s[20:23], s43 offen offset:{(i%4)*1024}")
            if i % 4 == 3 or i == n - 1: e(f"s_add_u32 s43, s43, {(i%4+1)*1024}")
    e("s_waitcnt vmcnt(22)"); e("s_barrier"); pf(4)
    e("s_waitcnt vmcnt(18)"); e("s_barrier"); pf(6)
    e("s_waitcnt vmcnt(10)"); e("s_barrier")
    e("s_barrier")
    k.label("m_Lpost")
    k.stamp(2)
    e(f"v_mov_b32 v4, {W_EPOCH}"); e("ds_read_b32 v5, v4")
    k.srd(FLS, 14, 15, FL_BYTES, WS_FL)
    e("v_and_b32 v2, 15, v1"); e("v_lshrrev_b32 v3, 4, v1")
    e("s_lshr_b32 s35, s41, 1"); e("s_lshl_b32 s35, s35, 3"); e("s_lshr_b32 s43, s42, 2"); e("s_add_u32 s35, s35, s43")
    e("s_waitcnt lgkmcnt(0)")
    e("v_readfirstlane_b32 s3, v5")
    e("s_cmp_lg_u32 s32, 3"); e("s_cbranch_scc1 m_conv")
    k.srd(16, 10, 11, 2048*4096)
    e("v_lshrrev_b32 v4, 5, v1"); e("v_lshlrev_b32 v4, 3, v4"); e("v_bfe_u32 v5, v1, 3, 2"); e("v_add_u32 v4, v4, v5")
    e("v_lshlrev_b32 v4, 12, v4")
    e("v_and_b32 v5, 7, v1"); e("v_xor_b32 v5, v5, v3")
    e("v_lshl_add_u32 v6, v5, 4, v4")
    e("v_xor_b32 v5, 4, v5"); e("v_lshl_add_u32 v7, v5, 4, v4")
    for n in range(8):
        ee, t = n & 1, n >> 1
        e(f"v_add_u32 v{16+n}, {(32*(t >> 1) + 4*(t & 1) + 16*ee)*4096 - (n & 3)*1024}, v{6+ee}")
    e("s_lshl_b32 s37, s35, 18")
    e("s_mov_b32 s40, 0")
    k.label("m_pfloop")
    e("s_and_b32 s43, s40, 3"); e("s_lshr_b32 s44, s40, 2")
    e(f"s_mul_i32 s45, s43, {RING2}"); e("s_lshl_b32 s46, s44, 13"); e("s_add_u32 s45, s45, s46")
    e("s_lshl_b32 s43, s43, 10"); e("s_lshl_b32 s44, s44, 7"); e("s_add_u32 s43, s43, s44"); e("s_add_u32 s43, s43, s37")
    for g in range(2):
        e(f"s_add_u32 m0, s45, {g*4096}")
        e("s_nop 0")
        for n in range(4): e(f"buffer_load_dwordx4 v{16+g*4+n}, s[16:19], s43 offen offset:{n*1024} lds")
    e("s_waitcnt vmcnt(16)")
    e("s_add_u32 s40, s40, 1"); e("s_cmp_lt_u32 s40, 8"); e("s_cbranch_scc1 m_pfloop")
    k.stamp(3)
    e(f"v_mov_b32 v4, {W_PF + 8}")
    lds_wait_ge(k, "m_wown1", "v4", 5, 1, 4, sleep=4)
    e("v_and_b32 v4, 31, v1"); e("v_lshlrev_b32 v4, 2, v4"); e(f"s_mov_b32 s44, {FX}")
    poll_flags(k, "m_pollx3", "v4", FLS, 1, 5, "v6", soff="s44", sleep=16)
    e("s_and_b32 s36, s41, 1"); e("s_lshl_b32 s36, s36, 2"); e("s_and_b32 s43, s42, 3"); e("s_add_u32 s36, s36, s43")
    e("s_cmp_eq_u32 s36, 7"); e("s_cselect_b32 s43, 31, 47")
    e("v_min_u32 v4, s43, v1"); e("v_lshlrev_b32 v4, 2, v4")
    e("s_lshl_b32 s44, s35, 3"); e("s_add_u32 s44, s44, s36"); e("s_lshl_b32 s44, s44, 8"); e(f"s_add_u32 s44, s44, {FZ2}")
    poll_flags(k, "m_pollz", "v4", FLS, 1, 5, "v6", soff="s44", sleep=2)
    e(f"v_mov_b32 v4, {W_PF}"); e("v_mov_b32 v5, 1")
    e("ds_write_b32 v4, v5")
    k.stamp(4)
    e("s_branch m_L3prep")
    k.label("m_conv")
    e("s_cmp_ge_u32 s34, 640"); e("s_cbranch_scc1 m_L3prep")
    e(f"s_mul_i32 s39, s32, {CONV_B}"); e(f"s_add_u32 s39, s39, {CONV0}")
    e("s_waitcnt vmcnt(10)")
    kgen_dt(k, "v13")
    kgen_addr(k, "s39", "v2", "v3", "v1")
    e("s_mov_b32 s40, 2")
    kgen_loop(k, 164, "v13", "s40")
    k.stamp(3)
    UO, KC = 8320, 12928
    e("v_lshlrev_b32 v15, 4, v1")
    e(f"s_mov_b32 s44, {FX}")
    e("v_and_b32 v220, 31, v1"); e("v_lshlrev_b32 v220, 2, v220")
    e("buffer_load_dword v216, v220, s[60:63], s44 offen sc1")
    e(f"s_add_u32 s43, s39, {KC}")
    e("v_max_u32 v4, 1, v3"); e("v_sub_u32 v4, 5, v4")
    e("v_lshlrev_b32 v5, v4, v2")
    e("v_lshlrev_b32 v6, 3, v3")
    e("v_mov_b32 v7, 512"); e("v_cmp_eq_u32 vcc, 2, v3"); e("s_nop 1"); e("v_cndmask_b32 v6, v6, v7, vcc")
    e("v_mov_b32 v7, 768"); e("v_mov_b32 v8, 4"); e("v_mov_b32 v9, 128"); e("v_cmp_eq_u32 vcc, 3, v3"); e("s_nop 1")
    e("v_cndmask_b32 v6, v6, v7, vcc"); e("v_cndmask_b32 v8, v8, v9, vcc")
    e("v_add3_u32 v5, v5, v6, s43")
    e("v_lshlrev_b32 v6, v4, 16"); e("v_add_u32 v6, v5, v6")
    e("v_add_u32 v7, v5, v8"); e("v_add_u32 v8, v6, v8")
    for n in range(8): e(f"v_cvt_pk_bf16_f32 v{24+n}, v{136+2*n}, v{137+2*n}")
    e("ds_write_b32 v5, v24"); e("ds_write_b32 v7, v25"); e("ds_write_b32 v6, v26"); e("ds_write_b32 v8, v27")
    e("v_lshlrev_b32 v9, 6, v2"); e("v_lshl_add_u32 v9, v3, 3, v9"); e("v_add_u32 v9, s43, v9")
    e("v_mov_b32 v20, 0"); e("v_mov_b32 v21, 0"); e("v_mov_b32 v22, 0"); e("v_mov_b32 v23, 0")
    e("v_add_u32 v16, s39, v15")
    e("v_lshl_add_u32 v17, v1, 3, s39")
    e(f"ds_write_b64 v17, v[20:21] offset:{UO}")
    e("v_cmp_gt_u32 vcc, 5, v2"); e("s_and_saveexec_b64 s[46:47], vcc")
    e("ds_write_b64 v9, v[28:29] offset:1024"); e("ds_write_b64 v9, v[30:31] offset:1056")
    e("s_mov_b64 exec, 3")
    e("ds_write_b128 v16, v[20:23] offset:4096"); e(f"ds_write_b128 v16, v[20:23] offset:{4160+4096}")
    e("s_mov_b64 exec, -1")
    e(f"s_add_u32 s44, s39, {KC + 256 - 2*0x4300}")
    e(f"v_mov_b32 v31, {f32(128.0)}")
    e("v_lshlrev_b32 v18, 3, v1"); e("v_cvt_f32_u32 v18, v18")
    e("s_waitcnt lgkmcnt(0)")
    for m in range(4):
        for el in range(10): e(f"v_sub_f32 v{96+el}, {f32(2047 - 512*m - el)}, v18")
        if m == 3: e("v_max_f32 v104, 0, v104")
        for p in range(5): e(f"v_cvt_pk_bf16_f32 v{108+p}, v{96+2*p}, v{97+2*p}")
        for el in range(9):
            a = f"v{114+el}"
            if el % 2 == 0: e(f"v_and_b32 {a}, 0xffff, v{108+el//2}")
            else: e(f"v_lshrrev_b32 {a}, 16, v{108+el//2}")
            e(f"v_lshl_add_u32 {a}, {a}, 1, s44")
            if m == 3:
                e(f"v_cvt_u32_f32 v19, v{96+el}"); e("v_lshl_add_u32 v19, v19, 1, s43")
                e(f"v_cmp_lt_f32 vcc, v{96+el}, v31"); e("s_nop 1"); e(f"v_cndmask_b32 {a}, {a}, v19, vcc")
        for el in range(9): e(f"ds_read_u16 v{144+9*m+el}, v{114+el}")
    e(f"s_mov_b32 s46, {FX}")
    poll_flags(k, "m_pollx", "v220", FLS, 1, 216, "v4", soff="s46", sleep=8, preloaded=True)
    k.stamp(4)
    k.srd(20, 14, 15, XT_BYTES, WS_XNT)
    k.srd(24, 14, 15, XT_BYTES, WS_YT)
    e("s_lshl_b32 s45, s34, 12")
    for n in range(4): e(f"buffer_load_dwordx4 {v(200+4*n,4)}, v15, s[20:23], s45 offen offset:{n*1024} sc1")
    e("s_waitcnt lgkmcnt(0)")
    e("v_cmp_eq_u32 vcc, 63, v1"); e("s_nop 1"); e(f"v_cndmask_b32 v{144+35}, v{144+35}, v20, vcc")
    for m in range(4):
        W = 32 + 16*m; E = 144 + 9*m
        for p in range(4):
            e(f"v_lshl_or_b32 v{W+p}, v{E+2*p+1}, 16, v{E+2*p}")
            e(f"v_lshl_or_b32 v{W+8+p}, v{E+2*p+2}, 16, v{E+2*p+1}")
        e(f"ds_write_b128 v16, {v(W,4)} offset:{1024*m}")
        e(f"ds_write_b128 v16, {v(W+8,4)} offset:{4160+1024*m}")
    e("s_waitcnt vmcnt(0)")
    for n in range(4): e(f"ds_write_b128 v16, {v(200+4*n,4)} offset:{UO+512+1024*n}")
    k.stamp(5)
    e("v_and_b32 v4, 1, v2"); e("v_xor_b32 v4, 1, v4"); e("v_mul_u32_u24 v4, 4160, v4")
    e("v_lshrrev_b32 v5, 1, v2"); e("v_lshlrev_b32 v6, 2, v3"); e("v_sub_u32 v5, v6, v5")
    e("v_lshl_add_u32 v4, v5, 2, v4"); e("v_add_u32 v4, s39, v4")
    for mp in range(4): e(f"v_add_u32 v{24+mp}, {4*(1023 - 8 - 128*(2*mp+1))}, v4")
    e("v_lshlrev_b32 v5, 5, v2"); e("v_lshl_add_u32 v5, v3, 4, v5")
    e(f"s_add_u32 s43, s39, {UO+480}"); e("v_add_u32 v28, s43, v5")
    def Af(m): return 32 + 4*m
    def Bf(r): return 64 + 4*r
    def ac(cb): return v(96 + 4*cb, 4)
    for i in range(32): e(f"v_mov_b32 v{96+i}, 0")
    e("v_lshlrev_b32 v14, 16, v14")
    e("s_waitcnt lgkmcnt(0)")
    def rdA(m):
        o = 0 if m & 1 else 128
        e(f"ds_read2_b32 {v(Af(m),2)}, v{24+m//2} offset0:{o} offset1:{o+1}"); e(f"ds_read2_b32 {v(Af(m)+2,2)}, v{24+m//2} offset0:{o+2} offset1:{o+3}")
    def rdB(r): e(f"ds_read_b128 {v(Bf(r),4)}, v28 offset:{512*r}")
    for m in range(8): rdA(m); rdB(7-m)
    e("s_mov_b32 s40, 8")
    k.label("m_cloop")
    for r in range(24, 29): e(f"v_subrev_u32 v{r}, 64, v{r}")
    for m in range(8):
        for cb in (range(7, -1, -1) if m == 0 else range(m, 8)):
            if m == 0: e(f"s_waitcnt lgkmcnt({min(3*cb, 15)})")
            e(f"{MFMA} {ac(cb)}, {v(Af(m),4)}, {v(Bf(cb-m),4)}, {ac(cb)}")
        rdA(m); rdB(7-m)
    e("s_sub_u32 s40, s40, 1"); e("s_cmp_lg_u32 s40, 0"); e("s_cbranch_scc1 m_cloop")
    k.stamp(6)
    e("s_waitcnt lgkmcnt(0)")
    e("v_lshlrev_b32 v20, 5, v2"); e("v_lshl_add_u32 v20, v3, 3, v20")
    e(f"s_add_u32 s43, s39, {UO+512}"); e("v_add_u32 v21, s43, v20")
    for cb in range(8): e(f"ds_read_b64 {v(32+2*cb,2)}, v21 offset:{512*cb}")
    e("s_waitcnt lgkmcnt(0)")
    for c0 in (0, 4):
        A = [96 + 4*cb + 2*p for cb in range(c0, c0+4) for p in range(2)]
        U = [32 + 2*cb + p for cb in range(c0, c0+4) for p in range(2)]
        for i in range(8): e(f"v_cvt_pk_bf16_f32 v{64+i}, v{A[i]}, v{A[i]+1}")
        for i in range(8): unpack(k, f"v{72+2*i}", f"v{73+2*i}", f"v{U[i]}")
        for i in range(8): unpack(k, f"v{A[i]}", f"v{A[i]+1}", f"v{64+i}")
        for i in range(8): e(f"v_pk_mul_f32 {pr(72+2*i)}, {pr(72+2*i)}, v[14:15] op_sel_hi:[1,0]")
        for i in range(8): e(f"v_cvt_pk_bf16_f32 v{64+i}, v{72+2*i}, v{73+2*i}")
        for i in range(8): unpack(k, f"v{72+2*i}", f"v{73+2*i}", f"v{64+i}")
        for i in range(8): e(f"v_pk_add_f32 {pr(A[i])}, {pr(A[i])}, {pr(72+2*i)}")
        for i in range(8): e(f"v_cvt_pk_bf16_f32 v{U[i]}, v{A[i]}, v{A[i]+1}")
        for cb in range(c0, c0+4): e(f"ds_write_b64 v21, {v(32+2*cb,2)} offset:{512*cb}")
    for n in range(4): e(f"ds_read_b128 {v(64+4*n,4)}, v16 offset:{UO+512+1024*n}")
    for n in range(4):
        e(f"s_waitcnt lgkmcnt({3-n})")
        e(f"buffer_store_dwordx4 {v(64+4*n,4)}, v15, s[24:27], s45 offen offset:{1024*n} sc1")
    e("s_lshl_b32 s43, s34, 2"); e(f"s_add_u32 s43, s43, {FY}")
    set_flag(k, FLS, "s43", 0, "v4", "v5")
    k.stamp(7)
    k.label("m_L3prep")
    e("s_and_b32 s36, s41, 1"); e("s_lshl_b32 s36, s36, 2"); e("s_and_b32 s43, s42, 3"); e("s_add_u32 s36, s36, s43")
    e("s_lshl_b32 s43, s33, 2"); e(f"s_add_u32 s43, s43, {W_GL}"); e("v_mov_b32 v4, s43")
    lds_wait(k, "m_wgl", "v4", "v5", sleep=8)
    k.stamp(8)
    e("s_mul_i32 s46, s33, 15"); e("s_add_u32 s46, s46, 42")
    e("s_cmp_eq_u32 s33, 3"); e("s_cselect_b32 s47, 48, 15")
    e("s_branch m_P3")

    k.label("m_gemm1")
    e("v_and_b32 v2, 15, v1"); e("v_lshrrev_b32 v3, 4, v1")
    e("v_lshlrev_b32 v12, 4, v1")
    e("v_add_u32 v13, 4096, v12")
    PL = 200
    def poll_loads():
        for i in range(7):
            e(f"buffer_load_dwordx4 {v(PL+4*i,4)}, v{12 if i < 4 else 13}, s[28:31], s72 offen offset:{(i%4)*1024} sc1")
    e("v_mov_b32 v10, 0")
    e(f"v_lshlrev_b32 v4, 2, v2"); e(f"v_add_u32 v4, {W_EPOCH}, v4")
    e("ds_write_b32 v4, v10")
    e("s_waitcnt lgkmcnt(0)")
    k.srd(64, 12, 13, 256)
    e("s_cmp_lg_u32 s2, 0"); e("s_cbranch_scc1 m_noep")
    e("s_cmp_lg_u32 s32, 4"); e("s_cbranch_scc1 m_noep")
    e("s_memrealtime s[44:45]"); e("s_waitcnt lgkmcnt(0)"); e("s_or_b32 s44, s44, 1"); e("v_mov_b32 v4, s44")
    e("s_mov_b64 exec, 1")
    e("buffer_store_dword v4, v10, s[64:67], 0 offen sc1")
    e("s_mov_b64 exec, -1")
    k.label("m_noep")
    if "cpf" in EXP:
        e("s_getpc_b64 s[44:45]")
        k.label("m_pc")
        e(f"s_sub_u32 s44, s44, m_pc-{name}"); e("s_subb_u32 s45, s45, 0")
        e(f"s_mov_b32 s46, text_end-{name}"); e("s_mov_b32 s47, 0x00020000")
        e("s_and_b32 s43, s42, 15"); e("s_lshl_b32 s43, s43, 2"); e("s_add_u32 s43, s43, s33"); e("s_lshl_b32 s43, s43, 10")
        e("buffer_load_dwordx4 v[192:195], v12, s[44:47], s43 offen")
    e("s_lshl_b32 s43, s35, 2"); e("s_add_u32 s43, s43, s33"); e(f"s_mul_i32 s72, s43, {14*512}")
    e("s_lshl_b32 s44, s36, 9"); e("s_add_u32 s73, s72, s44")
    e("s_lshl_b32 s74, s36, 6"); e("s_add_u32 s74, s74, s43"); e("s_lshl_b32 s74, s74, 2")
    e("v_and_b32 v4, 7, v1"); e("v_lshl_add_u32 v4, v3, 3, v4"); e("v_bfe_u32 v5, v1, 3, 1"); e("v_lshlrev_b32 v5, 3, v5")
    e("v_lshl_add_u32 v230, v4, 4, v5")
    k.srd(28, 14, 15, ST2_BYTES, WS_ST2)
    k.srd(24, 14, 15, ZF_BYTES, WS_Z2F)
    k.srd(20, 14, 15, ZF_BYTES, WS_Z1F)
    k.srd(FLS, 14, 15, FL_BYTES, WS_FL)
    for c in range(4):
        e(f"s_xor_b32 s43, s33, {c}")
        e("s_lshl_b32 s44, s36, 2"); e("s_add_u32 s43, s43, s44"); e("s_sub_u32 s43, s43, 2")
        e(f"s_cmp_lt_u32 s43, 54"); e(f"s_cselect_b32 s{50+c}, -1, 0")
        e("s_cselect_b32 s43, s43, 60")
        e(f"s_lshl_b32 s{46+c}, s43, 16")
        e("s_lshl_b32 s44, s35, 2"); e("s_add_u32 s44, s44, s33"); e("s_lshl_b32 s44, s44, 10")
        e(f"s_add_u32 s{46+c}, s{46+c}, s44")
    for b in range(2):
        for g in range(2):
            e("s_lshr_b32 s43, s33, 1"); e(f"s_xor_b32 s43, s43, {g}"); e("s_lshl_b32 s44, s36, 1"); e("s_add_u32 s43, s43, s44")
            e("s_lshl_b32 s44, s35, 3"); e("s_lshl_b32 s45, s33, 1"); e("s_add_u32 s44, s44, s45"); e(f"s_add_u32 s44, s44, {b}")
            e("s_mul_i32 s44, s44, 27"); e("s_add_u32 s44, s44, s43"); e("s_lshl_b32 s44, s44, 10")
            e("s_cmp_lt_u32 s43, 27"); e(f"s_cselect_b32 s{68+b*2+g}, s44, {HUGE}")
    e("v_and_b32 v4, 2, v1"); e("v_and_b32 v5, 1, v1")
    e("v_cmp_ne_u32 s[54:55], 0, v4"); e("v_cmp_ne_u32 s[56:57], 0, v5")
    e("s_lshl_b32 s43, s33, 5")
    e("v_add_u32 v4, s43, v2"); e("v_lshlrev_b32 v4, 7, v4")
    e("v_lshrrev_b32 v5, 1, v2"); e("v_xor_b32 v5, v5, v3")
    e("v_lshl_add_u32 v14, v5, 4, v4")
    e("v_xor_b32 v15, 64, v14")
    e("v_bfe_u32 v4, v1, 2, 2")
    e("v_lshl_add_u32 v5, v3, 3, v4"); e("v_lshlrev_b32 v5, 7, v5")
    e("v_and_b32 v6, 3, v1"); e("v_lshl_add_u32 v5, v6, 3, v5")
    e("v_add_u32 v5, 16384, v5")
    e("v_lshrrev_b32 v6, 1, v4"); e("v_and_b32 v7, 1, v3"); e("v_lshl_or_b32 v6, v7, 1, v6")
    e("v_xor_b32 v6, s33, v6")
    for c in range(4):
        e(f"v_xor_b32 v7, {c}, v6"); e(f"v_lshl_add_u32 v{16+c}, v7, 5, v5")
    for i in range(4): e(f"v_mov_b32 v{20+i}, 0x3f803f80")
    ACC = 104
    for i in range(ACC, 192): e(f"v_mov_b32 v{i}, 0")
    def xf(ks, b): return v(24 + 40*ks + 4*b, 4)
    def wfb(ks, h, c): return 24 + 40*ks + 8 + 16*h + 4*c
    def wf(ks, h, c): return v(wfb(ks, h, c), 4)
    def accb(h, b, c): return ACC + 32*h + (b*4 + c)*4
    def acc(h, b, c): return v(accb(h, b, c), 4)
    def rlist(ks):
        L = [f"ds_read_b128 {xf(ks,b)}, v{14+ks} offset:{2048*b}" for b in range(2)]
        for h in range(2):
            for c in range(4):
                for hh in range(2):
                    L.append(f"ds_read_b64_tr_b16 {v(wfb(ks,h,c)+2*hh,2)}, v{16+c} offset:{h*8192+ks*4096+hh*512}")
        return L
    def mlist(ks):
        L = []
        for b in range(2):
            L.append(f"{MFMA} {v(168+4*b,4)}, v[20:23], {xf(ks,b)}, {v(168+4*b,4)}")
            L.append(f"{MFMA} {v(176+4*b,4)}, {xf(ks,b)}, {xf(ks,b)}, {v(176+4*b,4)}")
        for h in range(2):
            L.append(f"{MFMA} {v(184+4*h,4)}, v[20:23], {wf(ks,h,0)}, {v(184+4*h,4)}")
            for c in range(4):
                for b in range(2):
                    if h == 0: L.append(f"{MFMA} {acc(h,b,c)}, {xf(ks,b)}, {wf(ks,h,c)}, {acc(h,b,c)}")
                    else:      L.append(f"{MFMA} {acc(h,b,c)}, {wf(ks,h,c)}, {xf(ks,b)}, {acc(h,b,c)}")
        return L
    def phase(ks, rd, extra=()):
        M = mlist(ks); R = list(rd); X = list(extra)
        for i, m in enumerate(M):
            e(m)
            if R: e(R.pop(0))
            elif X:
                for _ in range(2):
                    if X: e(X.pop(0))
        for x in X: e(x)
    bump = [f"v_add_u32 v{r}, 0x8000, v{r}" for r in range(14, 20)]
    wrap = [f"v_and_b32 v{r}, 0x1ffff, v{r}" for r in range(14, 20)]
    k.stamp(1)
    e("s_mov_b32 s40, 10")
    e("s_barrier")
    k.stamp(2)
    for r in rlist(0): e(r)
    k.label("m_loop1")
    e("s_waitcnt lgkmcnt(0)")
    phase(0, rlist(1), bump + wrap)
    e("s_sub_u32 s40, s40, 1"); e("s_cmp_eq_u32 s40, 0")
    e("s_waitcnt lgkmcnt(0)")
    e(f"s_cbranch_scc1 m_tail1")
    e("s_barrier")
    phase(1, rlist(0))
    e("s_cmp_lg_u32 s40, 5"); e("s_cbranch_scc1 m_loop1")
    e("s_cmp_lg_u32 s33, 0"); e("s_cbranch_scc1 m_loop1")
    e("buffer_load_dword v11, v10, s[64:67], 0 offen sc1")
    e(f"s_branch m_loop1")
    k.label(f"m_tail1")
    phase(1, [])
    e("s_setprio 2")
    k.stamp(3)
    e("s_lshl_b32 s43, s33, 6"); e(f"s_add_u32 s43, s43, {MISC+1024}")
    e("v_lshl_add_u32 v8, v2, 2, s43")
    e("v_and_b32 v4, 3, v1")
    e("v_cmp_eq_u32 s[44:45], 1, v4"); e("v_cmp_eq_u32 s[58:59], 2, v4"); e("v_cmp_eq_u32 vcc, 3, v4")
    e("s_nop 2")
    e("ds_write_b32 v8, v184"); e("ds_write_b32 v8, v188 offset:256")
    e(f"v_mov_b32 v9, {W_EPOCH}")
    def epoch_poll(tag):
        e("s_mov_b32 s40, 0")
        k.label(f"m_eppoll{tag}")
        e("s_waitcnt vmcnt(0)")
        e("v_readfirstlane_b32 s43, v11")
        e("s_add_u32 s40, s40, 1")
        e("s_cmp_lg_u32 s43, 0"); e(f"s_cbranch_scc1 m_epok{tag}")
        e("buffer_load_dword v11, v10, s[64:67], 0 offen sc1")
        e(f"s_cmp_lt_u32 s40, {SPIN}"); e(f"s_cbranch_scc1 m_eppoll{tag}")
        k.label(f"m_epok{tag}")
        e("ds_write_b32 v9, v11")
    e("s_cmp_lg_u32 s33, 0"); e("s_cbranch_scc1 m_epdone")
    epoch_poll("g")
    k.label("m_epdone")
    e("s_waitcnt lgkmcnt(0)")
    e("s_barrier")
    for b in range(2):
        q0 = 176 + 4*b
        e(f"v_cndmask_b32 v{q0}, v{q0}, v{q0+1}, s[44:45]"); e(f"v_cndmask_b32 v{q0}, v{q0}, v{q0+2}, s[58:59]"); e(f"v_cndmask_b32 v{q0}, v{q0}, v{q0+3}, vcc")
        e(f"v_mul_f32 v{168+4*b}, {f32(1/640)}, v{168+4*b}")
        e(f"v_mul_f32 v{q0}, {f32(1/640)}, v{q0}")
        e(f"v_fma_f32 v{q0}, -v{168+4*b}, v{168+4*b}, v{q0}")
    for c in range(4):
        e(f"s_xor_b32 s43, s33, {c}"); e(f"s_lshl_b32 s43, s43, 6"); e(f"s_add_u32 s43, s43, {MISC+1024}")
        e(f"v_lshl_add_u32 v5, v2, 2, s43"); e(f"v_lshl_add_u32 v6, v3, 4, s43")
        e(f"ds_read_b32 v{40+2*c}, v5")
        e(f"ds_read_b128 {v(64+4*c,4)}, v6 offset:256")
    e("ds_read_b32 v229, v9")
    for b in range(2): ln_finish(k, f"v{168+4*b}", f"v{176+4*b}", "v7")
    e("s_lshl_b32 s43, s33, 7"); e(f"s_add_u32 s43, s43, {MISC}")
    e("v_lshl_add_u32 v7, v2, 2, s43")
    e("v_lshl_add_u32 v8, v3, 4, s43")
    e("v_lshrrev_b32 v4, 2, v2")
    e("v_cmp_eq_u32 vcc, v4, v3")
    e("s_and_saveexec_b64 s[44:45], vcc")
    for b in range(2):
        e(f"ds_write_b32 v7, v{168+4*b} offset:{64*b}"); e(f"ds_write_b32 v7, v{176+4*b} offset:{512+64*b}")
    e("s_mov_b64 exec, s[44:45]")
    e("ds_read_b128 v[24:27], v8"); e("ds_read_b128 v[28:31], v8 offset:64")
    e("ds_read_b128 v[32:35], v8 offset:512"); e("ds_read_b128 v[36:39], v8 offset:576")
    e("ds_read_b32 v80, v7"); e("ds_read_b32 v82, v7 offset:64"); e("ds_read_b32 v84, v7 offset:512"); e("ds_read_b32 v86, v7 offset:576")
    e(f"v_mov_b32 v88, {f32(GC1)}"); e(f"v_mov_b32 v90, {f32(GC0)}")
    for i in range(168, 184): e(f"v_mov_b32 v{i}, 0")
    e("s_waitcnt lgkmcnt(0)")
    e("v_readfirstlane_b32 s3, v229")
    def gelu_pairs(A):
        n = len(A); T = [48 + 2*i for i in range(n)]
        for i in range(n): e(f"v_cvt_pk_bf16_f32 v{T[i]}, v{A[i]}, v{A[i]+1}")
        for i in range(n): unpack(k, f"v{A[i]}", f"v{A[i]+1}", f"v{T[i]}")
        for i in range(n): e(f"v_pk_mul_f32 {pr(T[i])}, {pr(A[i])}, {pr(A[i])}")
        for i in range(n): e(f"v_pk_fma_f32 {pr(T[i])}, {pr(T[i])}, v[88:89], v[90:91] op_sel_hi:[1,0,0]")
        for i in range(n): e(f"v_pk_mul_f32 {pr(T[i])}, {pr(T[i])}, {pr(A[i])}")
        for i in range(n): e(f"v_exp_f32 v{T[i]}, v{T[i]}"); e(f"v_exp_f32 v{T[i]+1}, v{T[i]+1}")
        for i in range(n): e(f"v_pk_add_f32 {pr(T[i])}, {pr(T[i])}, 1.0 op_sel_hi:[1,0]")
        for i in range(n): e(f"v_rcp_f32 v{T[i]}, v{T[i]}"); e(f"v_rcp_f32 v{T[i]+1}, v{T[i]+1}")
        for i in range(n): e(f"v_pk_mul_f32 {pr(A[i])}, {pr(A[i])}, {pr(T[i])}")
    for c0 in (0, 2):
        A = [accb(0, b, c) + 2*p for c in (c0, c0+1) for b in range(2) for p in range(2)]
        M = [24 + 4*b + 2*p for c in (c0, c0+1) for b in range(2) for p in range(2)]
        C = [40 + 2*c for c in (c0, c0+1) for b in range(2) for p in range(2)]
        for i in range(8): e(f"v_pk_fma_f32 {pr(A[i])}, {pr(M[i])}, {pr(C[i])}, {pr(A[i])} op_sel_hi:[1,0,1] neg_lo:[1,0,0] neg_hi:[1,0,0]")
        for i in range(8): e(f"v_pk_mul_f32 {pr(A[i])}, {pr(A[i])}, {pr(M[i]+8)}")
        gelu_pairs(A)
        for i in range(8): e(f"v_cvt_pk_bf16_f32 v{48+i}, v{A[i]}, v{A[i]+1}")
        for i in range(8): e(f"v_and_b32 v{48+i}, s{50+c0+i//4}, v{48+i}")
        for i in range(8): unpack(k, f"v{A[i]}", f"v{A[i]+1}", f"v{48+i}")
        for i in range(8):
            n = (i % 4) * 2
            e(f"v_pk_add_f32 {pr(168+n)}, {pr(168+n)}, {pr(A[i])}")
            e(f"v_pk_fma_f32 {pr(176+n)}, {pr(A[i])}, {pr(A[i])}, {pr(176+n)}")
    e("s_nop 0")
    for n in range(8): e(f"v_add_f32_dpp v{48+n}, v{168+n}, v{168+n} row_ror:8 row_mask:0xf bank_mask:0x3")
    for n in range(8): e(f"v_add_f32_dpp v{48+n}, v{176+n}, v{176+n} row_ror:8 row_mask:0xf bank_mask:0xc")
    for n in range(4): e(f"v_add_f32_dpp v{168+n}, v{48+n}, v{48+n} row_half_mirror row_mask:0xf bank_mask:0x5")
    for n in range(4): e(f"v_add_f32_dpp v{168+n}, v{52+n}, v{52+n} row_half_mirror row_mask:0xf bank_mask:0xa")
    for n in range(2):
        e(f"v_cndmask_b32 v{172+n}, v{170+n}, v{168+n}, s[54:55]")
        e(f"v_cndmask_b32 v{174+n}, v{168+n}, v{170+n}, s[54:55]")
    e("s_nop 0")
    for n in range(2): e(f"v_add_f32_dpp v{176+n}, v{172+n}, v{174+n} quad_perm:[2,3,0,1] row_mask:0xf bank_mask:0xf")
    e("v_cndmask_b32 v172, v177, v176, s[56:57]"); e("v_cndmask_b32 v174, v176, v177, s[56:57]")
    e("s_nop 1")
    e("v_add_f32_dpp v228, v172, v174 quad_perm:[1,0,3,2] row_mask:0xf bank_mask:0xf")
    e("buffer_store_dwordx2 v[228:229], v230, s[28:31], s73 offen sc1")
    if "lowp" in EXP: e("s_setprio 0")
    k.stamp(4)
    P1 = 168
    for c0 in (0, 2):
        A = [accb(1, b, c) + 2*p for c in (c0, c0+1) for b in range(2) for p in range(2)]
        M = [80 + 2*b for c in (c0, c0+1) for b in range(2) for p in range(2)]
        C = [64 + 4*c + 2*p for c in (c0, c0+1) for b in range(2) for p in range(2)]
        for i in range(8): e(f"v_pk_fma_f32 {pr(A[i])}, {pr(M[i])}, {pr(C[i])}, {pr(A[i])} op_sel_hi:[0,1,1] neg_lo:[1,0,0] neg_hi:[1,0,0]")
        for i in range(8): e(f"v_pk_mul_f32 {pr(A[i])}, {pr(A[i])}, {pr(M[i]+4)} op_sel_hi:[1,0]")
        gelu_pairs(A)
        i = 0
        for c in (c0, c0+1):
            for b in range(2):
                for p in range(2):
                    e(f"v_cvt_pk_bf16_f32 v{P1+b*8+c*2+p}, v{A[i]}, v{A[i]+1}"); i += 1
        if c0 == 0: poll_loads()
    e("s_bitcmp1_b32 s33, 0"); e("s_cbranch_scc0 m_noswap")
    for b in range(2):
        for g in range(2):
            for p in range(2):
                r0 = P1 + b*8 + g*4 + p
                e(f"v_swap_b32 v{r0}, v{r0+2}")
    k.label("m_noswap")
    e("s_setprio 2")
    e("s_mov_b32 s40, 0")
    e("s_waitcnt vmcnt(0)")
    for b in range(2):
        for g in range(2):
            e(f"buffer_store_dwordx4 {v(P1+b*8+g*4,4)}, v12, s[20:23], s{68+b*2+g} offen sc1")
    e("s_branch m_check")
    k.label("m_poll")
    poll_loads()
    e("s_waitcnt vmcnt(0)")
    k.label("m_check")
    e(f"v_xor_b32 v4, v{PL+1}, v229"); e(f"v_xor_b32 v5, v{PL+3}, v229")
    for i in range(1, 7):
        e(f"v_xor_b32 v9, v{PL+1+4*i}, v229"); e(f"v_xor_b32 v10, v{PL+3+4*i}, v229")
        e("v_or3_b32 v4, v4, v9, v10")
    e("v_or_b32 v4, v4, v5")
    e("v_cmp_ne_u32 vcc, 0, v4")
    e("s_add_u32 s40, s40, 1")
    e("s_nop 0")
    e("s_cbranch_vccz m_poll_done")
    e(f"s_cmp_lt_u32 s40, {SPIN}"); e("s_cbranch_scc1 m_poll")
    k.label("m_poll_done")
    k.stamp(5)
    for i in range(1, 7):
        e(f"v_add_f32 v{PL}, v{PL}, v{PL+4*i}"); e(f"v_add_f32 v{PL+2}, v{PL+2}, v{PL+2+4*i}")
    e(f"v_mov_b32 v{PL+1}, v{PL}"); e(f"v_mov_b32 v{PL+3}, v{PL+2}"); e("s_nop 1")
    e(f"v_permlane32_swap_b32 v{PL}, v{PL+1}"); e(f"v_permlane32_swap_b32 v{PL+2}, v{PL+3}"); e("s_nop 1")
    e(f"v_add_f32 v24, v{PL}, v{PL+1}"); e(f"v_add_f32 v26, v{PL+2}, v{PL+3}")
    e(f"v_mul_f32 v24, {f32(1/864)}, v24"); e(f"v_mul_f32 v26, {f32(1/864)}, v26")
    e("v_fma_f32 v26, -v24, v24, v26")
    ln_finish(k, "v24", "v26", "v25")
    e("s_lshl_b32 s43, s33, 8"); e(f"s_add_u32 s43, s43, {MISC+1536}")
    e("v_and_b32 v4, 31, v1"); e("v_lshl_add_u32 v4, v4, 2, s43"); e("v_lshl_add_u32 v5, v3, 5, s43")
    e("ds_write_b32 v4, v24"); e("ds_write_b32 v4, v26 offset:128")
    e("ds_read_b128 v[28:31], v5"); e("ds_read_b128 v[32:35], v5 offset:16")
    e("ds_read_b128 v[36:39], v5 offset:128"); e("ds_read_b128 v[40:43], v5 offset:144")
    e("s_waitcnt lgkmcnt(0)")
    for c0 in (0, 2):
        A = [accb(0, b, c) + 2*p for c in (c0, c0+1) for b in range(2) for p in range(2)]
        M = [28 + (i % 4)*2 for i in range(8)]
        for i in range(8): e(f"v_pk_add_f32 {pr(A[i])}, {pr(A[i])}, {pr(M[i])} neg_lo:[0,1] neg_hi:[0,1]")
        for i in range(8): e(f"v_cvt_pk_bf16_f32 v{48+i}, v{A[i]}, v{A[i]+1}")
        for i in range(8): unpack(k, f"v{A[i]}", f"v{A[i]+1}", f"v{48+i}")
        for i in range(8): e(f"v_pk_mul_f32 {pr(A[i])}, {pr(A[i])}, {pr(M[i]+8)}")
        for i in range(8): e(f"v_cvt_pk_bf16_f32 v{64+4*c0+i}, v{A[i]}, v{A[i]+1}")
        for c in (c0, c0+1): e(f"buffer_store_dwordx4 {v(64+4*c,4)}, v12, s[24:27], s{46+c} offen sc1")
    e("s_lshl_b32 s43, s36, 2")
    e("s_mov_b32 s44, 0x33221000"); e("s_mov_b32 s45, 0x00766554"); e("s_lshr_b64 s[44:45], s[44:45], s43"); e("s_and_b32 s46, s44, 15")
    e("s_mov_b32 s44, 0x44322110"); e("s_mov_b32 s45, 0x00776655"); e("s_lshr_b64 s[44:45], s[44:45], s43"); e("s_and_b32 s47, s44, 15")
    for r in (46, 47):
        e(f"s_lshl_b32 s43, s{r}, 2"); e("s_lshr_b32 s44, 0xca865310, s43"); e("s_and_b32 s44, s44, 15")
        e("s_sub_u32 s44, s36, s44"); e("s_lshl_b32 s44, s44, 4"); e("s_add_u32 s44, s44, s35"); e("s_lshl_b32 s44, s44, 2")
        e(f"s_lshl_b32 s{r}, s{r}, 8"); e(f"s_add_u32 s{r}, s{r}, s44")
    e("v_mov_b32 v6, s46"); e("v_mov_b32 v7, s47"); e("v_cmp_lt_u32 vcc, 31, v1"); e("v_and_b32 v8, 31, v1"); e("v_lshlrev_b32 v8, 11, v8")
    e("v_cndmask_b32 v6, v6, v7, vcc"); e("v_add_u32 v6, v6, v8")
    e(f"v_mov_b32 v4, {W_PF + 8}"); e("v_mov_b32 v5, 1"); e("v_mov_b32 v7, s3"); e(f"s_mov_b32 s44, {FZ2}")
    e("s_mov_b64 exec, 1")
    e("s_waitcnt vmcnt(0)")
    e("ds_add_rtn_u32 v8, v4, v5")
    e("s_waitcnt lgkmcnt(0)")
    e("v_readfirstlane_b32 s43, v8")
    e("s_mov_b64 exec, -1")
    e("s_cmp_lg_u32 s43, 3"); e("s_cbranch_scc1 m_P2")
    e("buffer_store_dword v7, v6, s[60:63], s44 offen sc1")
    gen_p2(k)
    gen_p3(k)
    gen_helper(k, epoch_poll)
    k.label("m_end")
    e("s_endpgm")
    return k.text(256, nsgpr=100)

def gen_p2(k):
    e = k.e
    k.label("m_P2")
    k.stamp(6)
    e("s_load_dwordx2 s[6:7], s[0:1], 80")
    e("s_lshr_b32 s35, s41, 1"); e("s_lshl_b32 s35, s35, 3"); e("s_lshr_b32 s43, s42, 2"); e("s_add_u32 s35, s35, s43")
    e("s_and_b32 s36, s42, 3")
    e("s_and_b32 s43, s41, 1"); e("s_mul_i32 s43, s43, 27"); e("s_mul_i32 s44, s36, 7"); e("s_add_u32 s37, s43, s44")
    e("v_and_b32 v240, 15, v1"); e("v_lshrrev_b32 v241, 4, v1"); e("v_mov_b32 v245, v1")
    e("v_lshrrev_b32 v2, 5, v1"); e("v_lshlrev_b32 v2, 3, v2"); e("v_bfe_u32 v3, v1, 3, 2"); e("v_add_u32 v2, v2, v3")
    e("v_lshlrev_b32 v2, 12, v2")
    e("v_and_b32 v3, 7, v1"); e("v_xor_b32 v3, v3, v241")
    e("v_lshl_add_u32 v242, v3, 4, v2")
    e("v_xor_b32 v3, 4, v3")
    e("v_lshl_add_u32 v243, v3, 4, v2"); e(f"v_add_u32 v243, {16*4096 - 1024}, v243")
    e("v_lshlrev_b32 v244, 4, v1")
    e("s_lshl_b32 s43, s35, 18"); e("s_lshl_b32 s44, s33, 10"); e("s_add_u32 s48, s43, s44"); e("s_add_u32 s48, s48, 256")
    e(f"s_add_u32 s49, s48, {4*4096}"); e(f"s_add_u32 s50, s48, {32*4096}"); e(f"s_add_u32 s51, s48, {36*4096}")
    e("s_lshl_b32 s43, s37, 16"); e("s_lshl_b32 s44, s33, 14"); e("s_add_u32 s52, s43, s44")
    for c in range(1, 7): e(f"s_add_u32 s{52+c}, s52, {c*65536}")
    e("s_cmp_eq_u32 s36, 3"); e(f"s_cselect_b32 s58, {HUGE}, s58")
    e(f"s_mul_i32 s39, s33, {RING2}")
    k.srd(16, 10, 11, 2048*4096)
    k.srd(20, 14, 15, ZF_BYTES, WS_Z2F)
    k.srd(24, 14, 15, ZF_BYTES, WS_Z1F)
    k.srd(28, 14, 15, ZF_BYTES, WS_HF)
    def Z(st, c): return v(112 + st*28 + c*4, 4)
    def acc(c, sg): return v((c*4 + sg)*4, 4)
    def wf(sg): return v(224 + 4*sg, 4)
    def issueZ(n):
        if n % 4 == 0 and n:
            for c in range(7): e(f"s_add_u32 s{52+c}, s{52+c}, 4096")
        for c in range(7): k.vmem(f"buffer_load_dwordx4 {Z(n%4,c)}, v244, s[20:23], s{52+c} offen offset:{(n%4)*1024} sc1", f"Z{n}")
    def issueA(c):
        for t in range(4):
            e(f"s_add_u32 m0, s39, {(c%NSLOT)*8192 + t*2048}")
            e("s_nop 0")
            k.vmem(f"buffer_load_dwordx4 v242, s[16:19], s{48+t} offen lds", f"A{c}")
            k.vmem(f"buffer_load_dwordx4 v243, s[16:19], s{48+t} offen offset:1024 lds", f"A{c}")
        for t in range(4): e(f"s_add_u32 s{48+t}, s{48+t}, 128")
    k.vm = []
    e("v_lshrrev_b32 v5, 1, v240"); e("v_xor_b32 v5, v5, v241")
    e("v_lshlrev_b32 v4, 7, v240"); e("v_lshl_add_u32 v4, v5, 4, v4"); e("v_add_u32 v4, s39, v4")
    for sg in range(4):
        e(f"s_xor_b32 s43, s33, {sg}"); e("s_lshl_b32 s43, s43, 11")
        e(f"v_add_u32 v{246+sg}, s43, v4")
        e(f"v_xor_b32 v{250+sg}, 64, v{246+sg}")
    e("s_setprio 0")
    e(f"v_mov_b32 v4, {W_PF}")
    lds_wait(k, "m_wpf", "v4", "v5", sleep=1)
    k.srd(64, 6, 7, 4096)
    e("s_setprio 3")
    k.stamp(7); k.cyc(12)
    k.vm = []
    for n in range(4): issueZ(n)
    for n in range(16):
        c, ks = n >> 1, n & 1
        if ks == 0 and f"A{c}" in k.vm: k.wait_vm(f"A{c}")
        for sg in range(4):
            e(f"ds_read_b128 {wf(sg)}, v{(250 if ks else 246)+sg} offset:{(c%NSLOT)*8192}")
        if f"Z{n}" in k.vm: k.wait_vm(f"Z{n}")
        if n == 0: k.stamp(8)
        order = (1, 3, 2, 0) if n == 15 else (0, 1, 2, 3)
        for ii, sg in enumerate(order):
            if n == 15:
                if ii == 0: e("s_waitcnt lgkmcnt(0)")
            else:
                e(f"s_waitcnt lgkmcnt({3-sg})")
            if ii == 3 and ks == 1 and c + NSLOT < 8: issueA(c + NSLOT)
            for cc in range(7):
                e(f"{MFMA} {acc(cc,sg)}, {Z(n%4,cc)}, {wf(sg)}, {'0' if n == 0 else acc(cc,sg)}")
        if n + 4 < 16: issueZ(n + 4)
        if n == 12:
            e("s_lshl_b32 s43, s35, 2"); e("s_add_u32 s43, s43, s33"); e("s_mul_i32 s44, s43, 27648")
            for cc in range(7):
                e(f"s_add_u32 s45, s37, {cc}"); e("s_lshr_b32 s46, s45, 1"); e("s_lshl_b32 s46, s46, 10"); e("s_and_b32 s45, s45, 1"); e("s_lshl_b32 s45, s45, 3")
                e("s_add_u32 s45, s45, s46"); e(f"s_add_u32 s{52+cc}, s45, s44")
            e("s_cmp_eq_u32 s36, 3"); e(f"s_cselect_b32 s58, {HUGE}, s58")
            for cc in range(7): k.vmem(f"buffer_load_dwordx2 {v(112+2*cc,2)}, v244, s[24:27], s{52+cc} offen sc1", "z1")
            e("s_lshr_b32 s44, s43, 1"); e("s_lshl_b32 s44, s44, 5"); e("s_and_b32 s45, s43, 1"); e("s_lshl_b32 s45, s45, 2"); e("s_add_u32 s44, s44, s45")
            e("v_lshrrev_b32 v128, 2, v240"); e("v_and_b32 v129, 3, v240"); e("v_lshl_add_u32 v128, v128, 3, v129"); e("v_add_u32 v128, s44, v128")
            e("v_lshlrev_b32 v128, 1, v128")
            k.vmem("buffer_load_ushort v126, v128, s[64:67], 0 offen", "z1")
        if n == 12:
            e("s_lshl_b32 s43, s33, 2"); e(f"s_add_u32 s43, s43, {W_GL}"); e("v_mov_b32 v254, s43"); e("v_mov_b32 v255, 1")
            e("ds_write_b32 v254, v255")
    k.stamp(9); k.cyc(13)
    e("v_add_u32 v130, s39, v244")
    e("s_xor_b32 s43, s33, 1"); e(f"s_mul_i32 s43, s43, {RING2}"); e("v_add_u32 v131, s43, v244")
    e("s_xor_b32 s43, s33, 3"); e(f"s_mul_i32 s43, s43, {RING2}"); e("v_add_u32 v132, s43, v244")
    e(f"v_add_u32 v133, {W_R1 - W_GL}, v254")
    e("v_xor_b32 v134, 4, v133"); e("v_xor_b32 v135, 8, v133"); e("v_add_u32 v135, 16, v135")
    for c in range(7):
        for h in range(2): e(f"ds_write_b128 v130, {acc(c,1+2*h)} offset:{(c*2+h)*1024}")
    e("ds_write_b32 v133, v255")
    if "tailp" in EXP: k.stamp(1)
    lds_wait(k, "m_wr1", "v134", "v136")
    if "tailp" in EXP: k.stamp(2)
    T = 140
    for h in (1, 0):
        for c in range(7): e(f"ds_read_b128 {v(T+(c*2+h)*4,4)}, v131 offset:{(c*2+h)*1024}")
    e("s_waitcnt lgkmcnt(7)")
    for c in range(7):
        for p in range(2):
            a = (c*4 + 2)*4 + 2*p
            e(f"v_pk_add_f32 {pr(a)}, {pr(a)}, {pr(T+(c*2+1)*4+2*p)}")
    e("s_waitcnt lgkmcnt(0)")
    for c in range(7): e(f"ds_write_b128 v131, {acc(c,2)} offset:{c*1024}")
    e("ds_write_b32 v133, v255 offset:16")
    for c in range(7):
        for p in range(2):
            a = (c*4)*4 + 2*p
            e(f"v_pk_add_f32 {pr(a)}, {pr(a)}, {pr(T+(c*2)*4+2*p)}")
    lds_wait(k, "m_wr2", "v135", "v136")
    if "tailp" in EXP: k.stamp(3)
    for c in range(7): e(f"ds_read_b128 {v(T+c*4,4)}, v132 offset:{c*1024}")
    e("s_waitcnt vmcnt(0)")
    k.vm = []
    e("v_lshlrev_b32 v126, 16, v126")
    for i in range(14): unpack(k, f"v{170+2*i}", f"v{171+2*i}", f"v{112+i}")
    k.srd(16, 14, 15, WOF_BYTES, WS_WOF)
    e("s_and_b32 s43, s41, 1"); e("s_lshl_b32 s43, s43, 2"); e("s_add_u32 s45, s36, s43")
    e("s_xor_b32 s43, s33, 3"); e("s_lshl_b32 s46, s43, 4"); e("s_sub_i32 s46, s46, 22"); e("s_max_i32 s46, s46, 0")
    e("s_cmp_eq_u32 s43, 1"); e("s_cselect_b32 s47, 10, 16"); e("s_cmp_eq_u32 s43, 0"); e("s_cselect_b32 s47, 0, s47")
    e("s_lshl_b32 s46, s46, 10"); e("s_mul_i32 s48, s45, 138240"); e("s_add_u32 s48, s48, s46"); e(f"s_add_u32 s46, s46, {IMG}")
    e("s_waitcnt lgkmcnt(0)")
    e("s_cmp_eq_u32 s47, 0"); e("s_cbranch_scc1 m_gwodone")
    k.label("m_gwoloop")
    e("s_mov_b32 m0, s46"); e("s_add_u32 s46, s46, 2048")
    e("buffer_load_dwordx4 v244, s[16:19], s48 offen sc1 lds"); e("buffer_load_dwordx4 v244, s[16:19], s48 offen offset:1024 sc1 lds")
    e("s_add_u32 s48, s48, 2048"); e("s_sub_u32 s47, s47, 2"); e("s_cmp_lg_u32 s47, 0"); e("s_cbranch_scc1 m_gwoloop")
    k.label("m_gwodone")
    if "tailp" in EXP: k.stamp(5)
    A = [c*16 + 2*p for c in range(7) for p in range(2)]
    for i in range(14): e(f"v_pk_add_f32 {pr(A[i])}, {pr(A[i])}, {pr(T+2*i)}")
    for i in range(14): e(f"v_cvt_pk_bf16_f32 v{T+i}, v{A[i]}, v{A[i]+1}")
    for i in range(14): unpack(k, f"v{A[i]}", f"v{A[i]+1}", f"v{T+i}")
    for i in range(14): e(f"v_pk_add_f32 {pr(A[i])}, {pr(A[i])}, v[126:127] op_sel_hi:[1,0]")
    for i in range(14): e(f"v_cvt_pk_bf16_f32 v{T+i}, v{A[i]}, v{A[i]+1}")
    for i in range(14): unpack(k, f"v{A[i]}", f"v{A[i]+1}", f"v{T+i}")
    for i in range(14): e(f"v_pk_mul_f32 {pr(A[i])}, {pr(A[i])}, {pr(170+2*i)}")
    for i in range(14): e(f"v_cvt_pk_bf16_f32 v{200+i}, v{A[i]}, v{A[i]+1}")
    e("s_bitcmp1_b32 s37, 0"); e("s_cbranch_scc1 m_hodd")
    for c in (0, 2, 4): e(f"buffer_store_dwordx4 {v(200+2*c,4)}, v244, s[28:31], s{52+c} offen sc1")
    e(f"buffer_store_dwordx2 {v(212,2)}, v244, s[28:31], s58 offen sc1")
    e("s_branch m_hdone")
    k.label("m_hodd")
    e(f"buffer_store_dwordx2 {v(200,2)}, v244, s[28:31], s52 offen sc1")
    for c in (1, 3): e(f"buffer_store_dwordx4 {v(200+2*c,4)}, v244, s[28:31], s{52+c} offen sc1")
    e("s_cmp_eq_u32 s36, 3"); e("s_cbranch_scc1 m_hodd6")
    e(f"buffer_store_dwordx4 {v(210,4)}, v244, s[28:31], s57 offen sc1")
    e("s_branch m_hdone")
    k.label("m_hodd6")
    e(f"buffer_store_dwordx2 {v(210,2)}, v244, s[28:31], s57 offen sc1")
    k.label("m_hdone")
    if "tailp" in EXP: k.stamp(6)
    e("v_mov_b32 v1, v245")
    e("s_and_b32 s43, s41, 1"); e("s_lshl_b32 s43, s43, 2"); e("s_add_u32 s36, s36, s43")
    e(f"v_mov_b32 v4, {W_PF + 4}"); e("v_mov_b32 v5, 1"); e("v_lshlrev_b32 v6, 7, v1"); e("v_mov_b32 v7, s3")
    e("s_lshl_b32 s44, s35, 10"); e("s_lshl_b32 s45, s36, 2"); e("s_add_u32 s44, s44, s45"); e(f"s_add_u32 s44, s44, {FH2}")
    e("s_mov_b64 exec, 1")
    e("s_waitcnt vmcnt(0)")
    e("ds_add_rtn_u32 v8, v4, v5")
    e("s_waitcnt lgkmcnt(0)")
    e("v_readfirstlane_b32 s43, v8")
    e("s_mov_b64 exec, 0xff")
    e("s_cmp_lg_u32 s43, 3"); e("s_cbranch_scc1 m_nopub")
    e("buffer_store_dword v7, v6, s[60:63], s44 offen sc1")
    k.label("m_nopub")
    e("s_mov_b64 exec, -1")
    e("s_setprio 0")
    e("v_and_b32 v2, 15, v1"); e("v_lshrrev_b32 v3, 4, v1")
    e("s_mov_b32 s47, 0"); e("s_mov_b32 s46, 0")

def gen_p3(k):
    e = k.e
    k.label("m_P3")
    k.stamp(10)
    e("s_lshr_b32 s34, s32, 2")
    e("v_lshlrev_b32 v15, 4, v1")
    k.srd(16, 14, 15, WOF_BYTES, WS_WOF)
    k.srd(20, 14, 15, ZF_BYTES, WS_HF)
    k.srd(24, 4, 5, 2048*1280)
    k.srd(28, 98, 99, 2048*1280)
    e("s_lshl_b32 s46, s46, 10"); e("s_mul_i32 s48, s36, 138240"); e("s_add_u32 s48, s48, s46"); e(f"s_add_u32 s46, s46, {IMG}")
    e("s_cmp_eq_u32 s47, 0"); e("s_cbranch_scc1 m_wodone")
    k.label("m_woloop")
    e("s_mov_b32 m0, s46"); e("s_add_u32 s46, s46, 1024")
    e("buffer_load_dwordx4 v15, s[16:19], s48 offen sc1 lds")
    e("s_add_u32 s48, s48, 1024"); e("s_sub_u32 s47, s47, 1"); e("s_cmp_lg_u32 s47, 0"); e("s_cbranch_scc1 m_woloop")
    k.label("m_wodone")
    def H(g, sg): return v(16 + (g*2 + sg)*4, 4)
    def WF(g, db): return v(72 + (g*5 + db)*4, 4)
    def acc(sg, db): return v(212 + (sg*5 + db)*4, 4)
    e("s_cmp_eq_u32 s33, 3"); e(f"s_cselect_b32 s45, {HUGE}, 6144")
    e("s_and_b32 s43, s33, 1"); e("s_lshl_b32 s44, s34, 1"); e("s_add_u32 s57, s43, s44")
    e("s_lshr_b32 s58, s33, 1"); e("s_mul_i32 s58, s58, 3")
    e("s_lshr_b32 s43, s57, 1"); e("s_lshl_b32 s43, s43, 5"); e("s_and_b32 s44, s57, 1"); e("s_lshl_b32 s44, s44, 2"); e("s_add_u32 s59, s43, s44")
    e("s_lshl_b32 s43, s35, 6"); e("s_add_u32 s43, s43, s59")
    e("v_lshrrev_b32 v6, 2, v2"); e("v_and_b32 v7, 3, v2"); e("v_lshl_add_u32 v6, v6, 3, v7"); e("v_add_u32 v6, s43, v6")
    e("v_mul_u32_u24 v6, 1280, v6"); e("v_lshl_add_u32 v6, v3, 3, v6"); e("s_mul_i32 s43, s36, 160"); e("v_add_u32 v14, s43, v6")
    for i in range(3):
        e(f"s_add_u32 s43, s58, {i}"); e(f"s_min_u32 s{68+i}, s43, 4")
        e(f"s_lshl_b32 s{72+i}, s{68+i}, 5")
    k.srd(64, 14, 15, XT_BYTES, WS_YT)
    e("s_lshl_b32 s43, s35, 2"); e("s_lshl_b32 s44, s34, 1"); e("s_add_u32 s43, s43, s44"); e("s_mul_i32 s43, s43, 27"); e("s_mul_i32 s44, s33, 7"); e("s_add_u32 s43, s43, s44")
    e("s_lshl_b32 s46, s43, 10"); e("s_add_u32 s47, s46, 27648")
    e("s_add_u32 s48, s46, 4096"); e("s_add_u32 s49, s47, 4096"); e("s_add_u32 s50, s46, s45"); e("s_add_u32 s51, s47, s45")
    e("s_mul_i32 s43, s33, 35840"); e(f"s_add_u32 s43, s43, {IMG}"); e("v_add_u32 v252, s43, v15")
    e("s_cmp_eq_u32 s33, 3"); e("s_cselect_b32 s43, 5120, 0"); e("v_subrev_u32 v253, s43, v252")
    e("v_and_b32 v4, 7, v1"); e("v_lshlrev_b32 v4, 2, v4")
    e("s_lshl_b32 s44, s35, 10"); e("s_lshl_b32 s43, s36, 7"); e("s_add_u32 s44, s44, s43"); e(f"s_add_u32 s44, s44, {FH2}")
    e("v_min_u32 v254, 39, v1"); e("v_lshlrev_b32 v254, 3, v254")
    e("s_mul_i32 s52, s36, 320"); e(f"s_add_u32 s52, s52, {FY}")
    e("s_cmp_ge_u32 s32, 4"); e("s_cbranch_scc1 m_nwv")
    e("s_waitcnt vmcnt(0)")
    k.label("m_nwv")
    e("s_barrier")
    k.stamp(4)
    e("s_cmp_lg_u32 s32, 3"); e("s_cbranch_scc1 m_nhp")
    e("buffer_load_dword v5, v4, s[60:63], s44 offen sc1")
    k.label("m_nhp")
    e("s_cmp_lg_u32 s32, 2"); e("s_cbranch_scc1 m_nyp")
    e("buffer_load_dwordx2 v[248:249], v254, s[60:63], s52 offen sc1")
    k.label("m_nyp")
    for g in range(7):
        for db in range(5): e(f"ds_read_b128 {WF(g,db)}, v{253 if g == 6 else 252} offset:{g*5120 + db*1024}")
    for i in range(3): e(f"buffer_load_dwordx2 {v(8+2*i,2)}, v14, s[24:27], s{72+i} offen")
    e("v_lshrrev_b32 v244, 3, v1"); e("v_lshlrev_b32 v244, 12, v244"); e("v_and_b32 v245, 7, v1"); e("v_lshl_add_u32 v244, v245, 4, v244")
    e("s_mul_i32 s53, s36, 80"); e("s_lshl_b32 s43, s32, 3"); e("s_add_u32 s53, s53, s43"); e("s_lshl_b32 s53, s53, 12"); e("s_lshl_b32 s43, s35, 7"); e("s_add_u32 s53, s53, s43")
    e("s_cmp_lt_u32 s32, 2"); e(f"s_cselect_b32 s54, {64*4096}, 0"); e("s_cselect_b32 s55, 8192, 0"); e("s_add_u32 s54, s54, s53")
    e("s_lshl_b32 s43, s32, 10"); e(f"s_add_u32 s43, s43, {YTILE}"); e("v_add_u32 v246, s43, v15"); e("v_add_u32 v247, s55, v246")
    e("s_cmp_lg_u32 s32, 3"); e("s_cbranch_scc1 m_hw")
    poll_flags(k, "m_pollh", "v4", FLS, 1, 5, "v6", soff="s44", sleep=2, preloaded=True)
    k.label("m_hw")
    e("s_cmp_lg_u32 s32, 2"); e("s_cbranch_scc1 m_noy")
    poll_flags(k, "m_polly", "v254", FLS, 2, 248, "v5", soff="s52", sleep=8, preloaded=True)
    k.label("m_noy")
    e("s_waitcnt lgkmcnt(0)")
    e("s_barrier")
    k.stamp(11)
    k.vm = []
    k.vmem("buffer_load_dwordx4 v[236:239], v244, s[64:67], s53 offen sc1", "y")
    k.vmem("buffer_load_dwordx4 v[240:243], v244, s[64:67], s54 offen sc1", "y")
    for g in range(7):
        for sg in range(2):
            so = 46 + sg + (0 if g < 4 else 2 if g < 6 else 4)
            k.vmem(f"buffer_load_dwordx4 {H(g,sg)}, v15, s[20:23], s{so} offen offset:{(g%4)*1024 if g < 6 else 0} sc1", f"h{g}")
    e("s_mul_i32 s43, s32, 10240"); e("v_add_u32 v252, s43, v15")
    e("s_mul_i32 s43, s34, 40960"); e("s_and_b32 s44, s33, 1"); e("s_mul_i32 s44, s44, 5120"); e("s_add_u32 s43, s43, s44")
    e("v_bfe_u32 v4, v1, 2, 2"); e("v_lshl_add_u32 v4, v3, 2, v4"); e("v_lshlrev_b32 v4, 7, v4")
    e("v_and_b32 v5, 3, v1"); e("v_lshl_add_u32 v4, v5, 4, v4")
    e("s_lshl_b32 s44, s59, 1"); e(f"s_add_u32 s44, s44, {YTILE}"); e("v_add_u32 v4, s44, v4")
    for i in range(3):
        e(f"s_lshl_b32 s44, s{68+i}, 10"); e("s_add_u32 s44, s44, s43"); e(f"v_add_u32 v{253+i}, s44, v15")
        e(f"s_lshl_b32 s44, s{68+i}, 11"); e(f"v_add_u32 v{5+i}, s44, v4")
    for g in range(7):
        k.wait_vm(f"h{g}")
        if g == 0 and "tailp" in EXP: k.stamp(7)
        if g == 6 and "tailp" in EXP: k.stamp(8)
        if g == 0: e("ds_write_b128 v246, v[236:239]"); e("ds_write_b128 v247, v[240:243]"); e("s_waitcnt lgkmcnt(0)")
        for db in range(5):
            for sg in range(2):
                e(f"{MFMA} {acc(sg,db)}, {WF(g,db)}, {H(g,sg)}, {'0' if g == 0 else acc(sg,db)}")
    e("s_nop 2")
    e("s_nop 1")
    for db in range(5):
        for sg in range(2): e(f"ds_write_b128 v252, {acc(sg,db)} offset:{(sg*5+db)*1024}")
    for i in range(6): unpack(k, f"v{96+2*i}", f"v{97+2*i}", f"v{8+i}")
    e("s_waitcnt lgkmcnt(0)")
    if "tailp" in EXP: k.stamp(12)
    e("s_barrier")
    if "tailp" in EXP: k.stamp(13)
    for i in range(3): e(f"ds_read_b64_tr_b16 {v(24+2*i,2)}, v{5+i}")
    for i in range(3):
        for kq in range(4): e(f"ds_read_b128 {v(32+(i*4+kq)*4,4)}, v{253+i} offset:{kq*10240}")
    e("s_waitcnt lgkmcnt(12)")
    for n in range(6): unpack(k, f"v{112+2*n}", f"v{113+2*n}", f"v{24+n}")
    for n in range(6): e(f"v_pk_add_f32 {pr(96+2*n)}, {pr(96+2*n)}, {pr(112+2*n)}")
    for n in range(6): e(f"v_cvt_pk_bf16_f32 v{8+n}, v{96+2*n}, v{97+2*n}")
    for n in range(6): unpack(k, f"v{96+2*n}", f"v{97+2*n}", f"v{8+n}")
    e("s_waitcnt lgkmcnt(0)")
    A = [32 + i*16 + 2*p for i in range(3) for p in range(2)]
    for n in range(6): e(f"v_pk_add_f32 {pr(A[n])}, {pr(A[n])}, {pr(A[n]+4)}"); e(f"v_pk_add_f32 {pr(A[n]+8)}, {pr(A[n]+8)}, {pr(A[n]+12)}")
    for n in range(6): e(f"v_pk_add_f32 {pr(A[n])}, {pr(A[n])}, {pr(A[n]+8)}")
    for n in range(6): e(f"v_cvt_pk_bf16_f32 v{24+n}, v{A[n]}, v{A[n]+1}")
    for n in range(6): unpack(k, f"v{A[n]}", f"v{A[n]+1}", f"v{24+n}")
    for n in range(6): e(f"v_pk_add_f32 {pr(A[n])}, {pr(A[n])}, {pr(96+2*n)}")
    for n in range(6): e(f"v_cvt_pk_bf16_f32 v{24+n}, v{A[n]}, v{A[n]+1}")
    for i in range(3): e(f"buffer_store_dwordx2 {v(24+2*i,2)}, v14, s[28:31], s{72+i} offen")
    k.end(0)

def gen_helper(k, epoch_poll):
    e = k.e
    k.label("m_helper")
    e("s_lshl_b32 s35, s41, 2"); e("s_add_u32 s35, s35, s42"); e("s_sub_u32 s35, s35, 28")
    e("v_and_b32 v2, 15, v1"); e("v_lshrrev_b32 v3, 4, v1")
    e("s_lshl_b32 s43, s32, 3")
    e("v_add_u32 v4, s43, v3")
    e("s_lshl_b32 s44, s35, 6")
    e("v_add_u32 v5, s44, v4"); e("v_mul_u32_u24 v5, 1280, v5"); e("v_lshl_add_u32 v5, v2, 4, v5")
    e("v_add_u32 v6, 5120, v5")
    e("v_mul_u32_u24 v7, 1296, v4"); e("v_lshl_add_u32 v7, v2, 4, v7")
    e("v_mov_b32 v110, 0")
    e(f"v_lshlrev_b32 v4, 2, v2"); e(f"v_add_u32 v4, {W_EPOCH}, v4")
    e("s_cmp_lg_u32 s32, 4"); e("s_cbranch_scc1 m_hnoclr")
    e("ds_write_b32 v4, v110")
    k.label("m_hnoclr")
    e("s_waitcnt lgkmcnt(0)")
    k.srd(16, 4, 5, 2048*1280)
    k.srd(28, 14, 15, XT_BYTES, WS_XNT)
    k.srd(64, 12, 13, 256)
    k.srd(FLS, 14, 15, FL_BYTES, WS_FL)
    k.srd(20, 96, 97, 864*1280)
    k.srd(24, 14, 15, WOF_BYTES, WS_WOF)
    k.vm = []
    for g in range(2):
        for n in range(5):
            k.vmem(f"buffer_load_dwordx4 {v(8+g*20+n*4,4)}, v{5+g}, s[16:19], 0 offen offset:{n*256}", f"x{g}")
    e("s_lshl_b32 s36, s35, 3"); e("s_add_u32 s36, s36, s32")
    e("v_lshrrev_b32 v111, 3, v1"); e("v_mul_u32_u24 v111, 1280, v111"); e("v_and_b32 v112, 7, v1"); e("v_lshl_add_u32 v111, v112, 4, v111")
    for it in range(2):
        e(f"s_add_u32 s43, s36, {256*it}"); e("s_mul_i32 s44, s43, 205"); e("s_lshr_b32 s44, s44, 11"); e("s_mul_i32 s45, s44, 10"); e("s_sub_u32 s45, s43, s45")
        e("s_mul_i32 s46, s44, 40960"); e("s_lshl_b32 s47, s45, 7"); e("s_add_u32 s46, s46, s47")
        for d in range(4):
            e(f"s_lshl_b32 s47, s45, 2"); e(f"s_add_u32 s47, s47, {d}"); e("s_mul_i32 s56, s47, 52"); e("s_lshr_b32 s56, s56, 8")
            e("s_mul_i32 s56, s56, 130"); e("s_add_u32 s47, s47, s56"); e("s_mul_i32 s56, s44, 5"); e("s_add_u32 s47, s47, s56"); e("s_lshl_b32 s47, s47, 10")
            e("s_cmp_lt_u32 s43, 270"); e(f"s_cselect_b32 s{48+it*4+d}, s47, {HUGE}")
        for n in range(4):
            k.vmem(f"buffer_load_dwordx4 {v(120+it*16+n*4,4)}, v111, s[20:23], s46 offen", "wo")
            e("s_add_u32 s46, s46, 10240")
    for g in range(2):
        k.stamp(1+2*g)
        k.wait_vm(f"x{g}")
        X = 48
        src = 8 + g*20
        for n in range(20): unpack(k, f"v{X+2*n}", f"v{X+2*n+1}", f"v{src+n}")
        e(f"v_pk_add_f32 v[88:89], {pr(X)}, {pr(X+4)}"); e(f"v_pk_add_f32 v[90:91], {pr(X+2)}, {pr(X+6)}")
        for n in range(4, 20): e(f"v_pk_add_f32 {pr(88+2*(n%2))}, {pr(88+2*(n%2))}, {pr(X+2*n)}")
        e("v_pk_add_f32 v[88:89], v[88:89], v[90:91]"); e("s_nop 0"); e("v_add_f32 v88, v88, v89")
        for sh in (8, 4, 2, 1):
            e("s_nop 1"); e(f"v_add_f32_dpp v88, v88, v88 row_ror:{sh} row_mask:0xf bank_mask:0xf")
        e(f"v_mul_f32 v88, {f32(1/640)}, v88")
        for a in range(4): e(f"v_mov_b32 v{92+a}, 0")
        for n0 in range(0, 20, 4):
            for a in range(4): e(f"v_pk_add_f32 {pr(96+2*a)}, {pr(X+2*(n0+a))}, v[88:89] op_sel_hi:[1,0] neg_lo:[0,1] neg_hi:[0,1]")
            for a in range(4): e(f"v_pk_fma_f32 {pr(92+2*(a%2))}, {pr(96+2*a)}, {pr(96+2*a)}, {pr(92+2*(a%2))}")
        e("v_pk_add_f32 v[92:93], v[92:93], v[94:95]"); e("s_nop 0"); e("v_add_f32 v92, v92, v93")
        for sh in (8, 4, 2, 1):
            e("s_nop 1"); e(f"v_add_f32_dpp v92, v92, v92 row_ror:{sh} row_mask:0xf bank_mask:0xf")
        e(f"v_mul_f32 v92, {f32(1/640)}, v92")
        ln_finish(k, "v88", "v92", "v89")
        for n in range(20): e(f"v_pk_add_f32 {pr(X+2*n)}, {pr(X+2*n)}, v[88:89] op_sel_hi:[1,0] neg_lo:[0,1] neg_hi:[0,1]")
        for n in range(20): e(f"v_cvt_pk_bf16_f32 v{src+n}, v{X+2*n}, v{X+2*n+1}")
        for n in range(20): unpack(k, f"v{X+2*n}", f"v{X+2*n+1}", f"v{src+n}")
        for n in range(20): e(f"v_pk_mul_f32 {pr(X+2*n)}, {pr(X+2*n)}, v[92:93] op_sel_hi:[1,0]")
        for n in range(20): e(f"v_cvt_pk_bf16_f32 v{src+n}, v{X+2*n}, v{X+2*n+1}")
        for n in range(5):
            e(f"ds_write_b128 v7, {v(src+4*n,4)} offset:{g*4*1296 + n*256}")
    e(f"v_mov_b32 v9, {W_EPOCH}"); e("v_mov_b32 v10, 0")
    e("s_cmp_lg_u32 s32, 4"); e("s_cbranch_scc1 m_hepdone")
    e("buffer_load_dword v11, v10, s[64:67], 0 offen sc1")
    epoch_poll("h")
    k.label("m_hepdone")
    e("s_waitcnt lgkmcnt(0)")
    e("s_barrier")
    k.stamp(4)
    e("ds_read_b32 v113, v9")
    e("v_bfe_u32 v4, v1, 2, 2"); e("v_lshl_add_u32 v4, v3, 3, v4"); e("v_mul_u32_u24 v4, 1296, v4")
    e("v_and_b32 v5, 3, v1"); e("v_lshl_add_u32 v4, v5, 3, v4")
    e("s_lshl_b32 s43, s32, 5"); e("v_add_u32 v4, s43, v4")
    e(f"v_add_u32 v5, {32*1296}, v4")
    for n in range(5):
        for th in range(2):
            for hh in range(2):
                e(f"ds_read_b64_tr_b16 {v(16+(n*2+th)*4+hh*2,2)}, v{4+th} offset:{hh*4*1296 + n*256}")
    e("s_mul_i32 s43, s32, 4608"); e("s_add_u32 s43, s43, 90112")
    e("v_mul_u32_u24 v5, 144, v2"); e("v_lshl_add_u32 v5, v3, 4, v5"); e("v_add_u32 v5, s43, v5")
    e("v_lshrrev_b32 v4, 3, v1"); e("v_lshlrev_b32 v6, 12, v4"); e("v_mul_u32_u24 v4, 144, v4"); e("v_and_b32 v7, 7, v1"); e("v_lshl_add_u32 v4, v7, 4, v4"); e("v_add_u32 v4, s43, v4")
    e("v_lshl_add_u32 v6, v7, 4, v6")
    e("s_lshl_b32 s46, s32, 16"); e("s_lshl_b32 s44, s35, 7"); e("s_add_u32 s46, s46, s44"); e("s_add_u32 s47, s46, 32768")
    e("s_waitcnt vmcnt(0) lgkmcnt(0)")
    e("v_readfirstlane_b32 s3, v113")
    for n in range(5):
        o = (n % 2) * 2304
        for th in range(2): e(f"ds_write_b128 v5, {v(16+(n*2+th)*4,4)} offset:{o + th*64}")
        for hf in range(2): e(f"ds_read_b128 {v(56+(n*2+hf)*4,4)}, v4 offset:{o + hf*8*144}")
    for n in range(5):
        e(f"s_waitcnt lgkmcnt({min(15, 4*(4-n))})")
        for hf in range(2):
            e(f"buffer_store_dwordx4 {v(56+(n*2+hf)*4,4)}, v6, s[28:31], s{46+hf} offen sc1")
        e(f"s_add_u32 s46, s46, {8*65536}"); e(f"s_add_u32 s47, s47, {8*65536}")
    e("v_bfe_u32 v5, v1, 2, 2"); e("v_lshl_add_u32 v5, v3, 2, v5"); e("v_mul_u32_u24 v5, 144, v5"); e("v_and_b32 v6, 3, v1"); e("v_lshl_add_u32 v5, v6, 3, v5"); e("v_add_u32 v5, s43, v5")
    e("v_lshlrev_b32 v6, 4, v1")
    for it in range(2):
        for n in range(4): e(f"ds_write_b128 v4, {v(120+it*16+n*4,4)} offset:{n*8*144}")
        for d in range(4):
            for hh in range(2): e(f"ds_read_b64_tr_b16 {v(160+it*16+d*4+hh*2,2)}, v5 offset:{hh*16*144 + d*32}")
    k.stamp(5)
    e("s_waitcnt lgkmcnt(0)")
    for it in range(2):
        for d in range(4):
            e(f"buffer_store_dwordx4 {v(160+it*16+d*4,4)}, v6, s[24:27], s{48+it*4+d} offen sc1")
    e("s_load_dwordx8 s[64:71], s[0:1], 8")
    e("s_load_dwordx4 s[72:75], s[0:1], 40")
    e("s_cmp_ge_u32 s32, 4"); e("s_cbranch_scc1 m_hG")
    conv_params(k)
    e("s_waitcnt vmcnt(0)")
    e("s_barrier")
    e("s_branch m_Lpost")
    k.label("m_hG")
    e("s_waitcnt vmcnt(0) lgkmcnt(0)")
    e("s_barrier")
    e(f"v_mov_b32 v4, {W_PF + 8}"); e("v_mov_b32 v5, 4"); e("ds_write_b32 v4, v5")
    e("s_cmp_lg_u32 s32, 4"); e("s_cbranch_scc1 m_P2")
    e("s_lshl_b32 s45, s35, 2"); e(f"s_add_u32 s45, s45, {FX}")
    set_flag(k, FLS, "s45", 0, "v7", "v8")
    e("s_branch m_P2")

if __name__ == "__main__":
    import sys
    NAME = "parallel_sum__ssm_conv_s4d__mixer_gmlp__prompt"
    path = sys.argv[1] if len(sys.argv) > 1 else f"cdna_kernels/{NAME}.s"
    t, kd = gen_mega(NAME + "_kernel")
    hdr = open(f"cdna_kernels/{NAME}.s.ref").read().split("; Override launch")[0]
    lst = os.environ.get("LIST", "0") == "1"
    out = hdr + (f"; @launch kernel={NAME}_kernel grid=(256,1,1) block=(512,1,1) lds={LDS_TOTAL}\n" if lst else f"; @launch grid=(256,1,1) block=(512,1,1) lds={LDS_TOTAL}\n")
    out += '.amdgcn_target "amdgcn-amd-amdhsa--gfx950"\n.text\n' + t + '\ntext_end:\n.section .rodata,"a"\n.p2align 6\n' + kd + "\n"
    open(path, "w").write(out)
```

```python
from mega_common import *
FLS = 60
RING2 = 16384
CONV0 = 65536
CONV_B = 15360
YTILE = 81920
IMG = 22528
NSLOT = 2
WS_KC = 26*MB
KC_BYTES = 640 * 1536

def conv_params(k):
    e = k.e
    e("s_lshl_b32 s34, s2, 1"); e("s_add_u32 s34, s34, s32")
    e("s_lshl_b32 s56, s41, 4"); e("s_lshr_b32 s57, s42, 1"); e("s_add_u32 s56, s56, s57"); e("s_add_u32 s56, s56, 512")
    e("s_bitcmp1_b32 s42, 0"); e("s_cselect_b32 s56, s56, 1000")
    e("s_cmp_eq_u32 s32, 2"); e("s_cselect_b32 s34, s56, s34")
    e("s_cmp_eq_u32 s32, 3"); e("s_cselect_b32 s34, 1000, s34")
    e("s_lshl_b32 s56, s34, 8"); e("s_lshl_b32 s57, s34, 1")
    e("v_lshlrev_b32 v4, 2, v1"); e("v_mov_b32 v5, 0")
    e("s_waitcnt lgkmcnt(0)")
    for a in range(4):
        k.srd(28, 64+2*a, 65+2*a, 640*256)
        e(f"buffer_load_dword v{164+a}, v4, s[28:31], s56 offen")
    k.srd(28, 72, 73, 1280); e("buffer_load_ushort v13, v5, s[28:31], s57 offen")
    k.srd(28, 74, 75, 1280); e("buffer_load_ushort v14, v5, s[28:31], s57 offen")

def gen_mega(name):
    k = Kern(name)
    e = k.e
    e("s_cmp_ge_u32 s2, 256"); e("s_cbranch_scc1 m_end")
    k.stamp_init()
    e("s_load_dwordx2 s[4:5], s[0:1], 0")
    e("s_load_dwordx4 s[8:11], s[0:1], 64")
    e("s_load_dwordx4 s[12:15], s[0:1], 104")
    e("s_load_dwordx4 s[96:99], s[0:1], 88")
    e("v_and_b32 v1, 63, v0")
    e("v_lshrrev_b32 v2, 6, v0")
    e("s_and_b32 s41, s2, 7")
    e("v_readfirstlane_b32 s32, v2")
    e("s_lshr_b32 s42, s2, 3")
    e("s_and_b32 s33, s32, 3")
    e("s_cmp_ge_u32 s42, 28"); e("s_cbranch_scc1 m_helper")
    e("s_mul_i32 s43, s42, 37"); e("s_lshr_b32 s43, s43, 8")
    e("s_mul_i32 s44, s43, 7"); e("s_sub_u32 s44, s42, s44")
    e("s_lshr_b32 s35, s41, 1"); e("s_lshl_b32 s35, s35, 2"); e("s_add_u32 s35, s35, s43")
    e("s_and_b32 s36, s41, 1"); e("s_mul_i32 s36, s36, 7"); e("s_add_u32 s36, s36, s44")
    e("s_cmp_ge_u32 s32, 4"); e("s_cbranch_scc1 m_gemm1")
    e("s_mul_i32 s45, s44, 3"); e("s_mul_i32 s46, s43, 5"); e("s_lshr_b32 s46, s46, 1"); e("s_add_u32 s45, s45, s46")
    e("s_cmp_ge_u32 s45, 20"); e("s_cselect_b32 s46, 20, 0"); e("s_sub_u32 s45, s45, s46")
    e("s_cmp_ge_u32 s45, 10"); e("s_cselect_b32 s46, 10, 0"); e("s_sub_u32 s45, s45, s46")
    e("s_load_dwordx8 s[64:71], s[0:1], 8")
    e("s_load_dwordx4 s[72:75], s[0:1], 40")
    e("v_and_b32 v3, 7, v1")
    e("s_lshl_b32 s39, s32, 13")
    e("s_cmp_ge_u32 s32, 2"); e("s_cbranch_scc1 m_ldB")
    e("s_lshl_b32 s43, s35, 7"); e("s_lshl_b32 s44, s32, 6"); e("s_add_u32 s43, s43, s44")
    e("v_lshrrev_b32 v2, 5, v1"); e("v_lshlrev_b32 v2, 3, v2")
    e("v_bfe_u32 v4, v1, 3, 2"); e("v_add3_u32 v2, v2, v4, s43")
    e("v_mul_u32_u24 v2, 1280, v2")
    e("v_lshrrev_b32 v4, 4, v1"); e("v_xor_b32 v3, v3, v4")
    e("v_lshl_add_u32 v4, v3, 4, v2")
    e("v_xor_b32 v3, 4, v3"); e("v_lshl_add_u32 v5, v3, 4, v2")
    for n in range(8):
        ee, b, Pp = n & 1, (n >> 1) & 1, n >> 2
        e(f"v_add_u32 v{16+n}, {(32*Pp + 4*b + 16*ee)*1280 - (n & 3)*1024}, v{4+ee}")
    e("s_waitcnt lgkmcnt(0)")
    k.srd(16, 4, 5, 2048*1280)
    e("s_mov_b32 s38, 128")
    e("s_branch m_ld")
    k.label("m_ldB")
    e("v_lshrrev_b32 v2, 3, v1"); e("v_mul_u32_u24 v2, 3456, v2")
    e("s_cmp_eq_u32 s32, 2"); e("s_cselect_b32 s44, 1664, 0")
    e("s_lshl_b32 s43, s36, 7"); e("s_add_u32 s43, s43, s44"); e("v_add_u32 v2, s43, v2")
    e("v_bfe_u32 v4, v1, 4, 1"); e("v_lshlrev_b32 v4, 1, v4"); e("v_xor_b32 v3, v3, v4")
    e("v_lshl_add_u32 v4, v3, 4, v2")
    e("v_xor_b32 v3, 4, v3"); e("v_lshl_add_u32 v5, v3, 4, v2")
    for n in range(8):
        e(f"v_add_u32 v{16+n}, {8*n*3456 - (n & 3)*1024}, v{4+(n & 1)}")
    e("s_waitcnt lgkmcnt(0)")
    k.srd(16, 8, 9, 640*3456)
    e(f"s_mov_b32 s38, {64*3456}")
    k.label("m_ld")
    if "norot" in EXP: e("s_mov_b32 s45, 0")
    if "rot2" in EXP: e("s_and_b32 s45, s42, 1"); e("s_mul_i32 s45, s45, 5")
    e("s_mul_i32 s37, s45, s38"); e("s_mul_i32 s46, s38, 10"); e("s_mov_b32 s40, 0")
    k.label("m_ldloop")
    e("s_cmp_lt_u32 s40, 3"); e("s_cbranch_scc1 m_ldissue")
    e("s_waitcnt vmcnt(16)")
    e("s_barrier")
    k.label("m_ldissue")
    for g in range(2):
        e(f"s_add_u32 m0, s39, {g*4096}")
        e("s_nop 0")
        for n in range(4): e(f"buffer_load_dwordx4 v{16+g*4+n}, s[16:19], s37 offen offset:{n*1024} lds")
    e("s_add_u32 s39, s39, 32768"); e("s_and_b32 s39, s39, 0x1ffff")
    e("s_add_u32 s37, s37, s38"); e("s_cmp_eq_u32 s37, s46"); e("s_cselect_b32 s37, 0, s37")
    e("s_add_u32 s40, s40, 1"); e("s_cmp_lt_u32 s40, 10"); e("s_cbranch_scc1 m_ldloop")
    k.stamp(1)
    conv_params(k)
    CP = 1 if "cpf" in EXP else 0
    if CP:
        e("s_getpc_b64 s[44:45]")
        k.label("m_pc")
        e(f"s_sub_u32 s44, s44, m_pc-{name}"); e("s_subb_u32 s45, s45, 0")
        e(f"s_mov_b32 s46, text_end-{name}"); e("s_mov_b32 s47, 0x00020000")
        e("s_and_b32 s43, s42, 15"); e("s_lshl_b32 s43, s43, 2"); e("s_add_u32 s43, s43, s33"); e("s_lshl_b32 s43, s43, 10")
        e("v_lshlrev_b32 v2, 4, v1")
        e("buffer_load_dwordx4 v[224:227], v2, s[44:47], s43 offen")
    k.srd(20, 10, 11, 2048*4096)
    e("s_lshl_b32 s43, s42, 2"); e("s_add_u32 s43, s43, s32"); e(f"s_mul_i32 s43, s43, {9*1024+384}")
    e("s_lshl_b32 s44, s41, 20"); e("s_add_u32 s43, s43, s44")
    e("v_lshlrev_b32 v2, 4, v1")
    def pf(n):
        for i in range(n):
            e(f"buffer_load_dwordx4 v[224:227], v2, s[20:23], s43 offen offset:{(i%4)*1024}")
            if i % 4 == 3 or i == n - 1: e(f"s_add_u32 s43, s43, {(i%4+1)*1024}")
    e(f"s_waitcnt vmcnt({22+CP})"); e("s_barrier"); pf(4)
    e(f"s_waitcnt vmcnt({18+CP})"); e("s_barrier"); pf(6)
    e(f"s_waitcnt vmcnt({16+CP})"); e("s_barrier")
    e("s_barrier")
    k.label("m_Lpost")
    k.stamp(2)
    e(f"v_mov_b32 v4, {W_EPOCH}"); e("ds_read_b32 v5, v4")
    k.srd(FLS, 14, 15, FL_BYTES, WS_FL)
    e("v_and_b32 v2, 15, v1"); e("v_lshrrev_b32 v3, 4, v1")
    e("s_lshr_b32 s35, s41, 1"); e("s_lshl_b32 s35, s35, 3"); e("s_lshr_b32 s43, s42, 2"); e("s_add_u32 s35, s35, s43")
    e("s_waitcnt lgkmcnt(0)")
    e("v_readfirstlane_b32 s3, v5")
    e("s_cmp_lg_u32 s32, 3"); e("s_cbranch_scc1 m_conv")
    k.srd(16, 10, 11, 2048*4096)
    e("v_lshrrev_b32 v4, 5, v1"); e("v_lshlrev_b32 v4, 3, v4"); e("v_bfe_u32 v5, v1, 3, 2"); e("v_add_u32 v4, v4, v5")
    e("v_lshlrev_b32 v4, 12, v4")
    e("v_and_b32 v5, 7, v1"); e("v_xor_b32 v5, v5, v3")
    e("v_lshl_add_u32 v6, v5, 4, v4")
    e("v_xor_b32 v5, 4, v5"); e("v_lshl_add_u32 v7, v5, 4, v4")
    for n in range(8):
        ee, t = n & 1, n >> 1
        e(f"v_add_u32 v{16+n}, {(32*(t >> 1) + 4*(t & 1) + 16*ee)*4096 - (n & 3)*1024}, v{6+ee}")
    e("s_lshl_b32 s37, s35, 18")
    e("s_mov_b32 s40, 0")
    k.label("m_pfloop")
    e("s_and_b32 s43, s40, 3"); e("s_lshr_b32 s44, s40, 2")
    e(f"s_mul_i32 s45, s43, {RING2}"); e("s_lshl_b32 s46, s44, 13"); e("s_add_u32 s45, s45, s46")
    e("s_lshl_b32 s43, s43, 10"); e("s_lshl_b32 s44, s44, 7"); e("s_add_u32 s43, s43, s44"); e("s_add_u32 s43, s43, s37")
    for g in range(2):
        e(f"s_add_u32 m0, s45, {g*4096}")
        e("s_nop 0")
        for n in range(4): e(f"buffer_load_dwordx4 v{16+g*4+n}, s[16:19], s43 offen offset:{n*1024} lds")
    e("s_waitcnt vmcnt(16)")
    e("s_add_u32 s40, s40, 1"); e("s_cmp_lt_u32 s40, 8"); e("s_cbranch_scc1 m_pfloop")
    k.stamp(3)
    e(f"v_mov_b32 v4, {W_PF + 8}")
    lds_wait_ge(k, "m_wown1", "v4", 5, 1, 4, sleep=4)
    e("v_and_b32 v4, 31, v1"); e("v_lshlrev_b32 v4, 2, v4"); e(f"s_mov_b32 s44, {FX}")
    poll_flags(k, "m_pollx3", "v4", FLS, 1, 5, "v6", soff="s44", sleep=16)
    e("s_and_b32 s36, s41, 1"); e("s_lshl_b32 s36, s36, 2"); e("s_and_b32 s43, s42, 3"); e("s_add_u32 s36, s36, s43")
    e("s_cmp_eq_u32 s36, 7"); e("s_cselect_b32 s43, 31, 47")
    e("v_min_u32 v4, s43, v1"); e("v_lshlrev_b32 v4, 2, v4")
    e("s_lshl_b32 s44, s35, 3"); e("s_add_u32 s44, s44, s36"); e("s_lshl_b32 s44, s44, 8"); e(f"s_add_u32 s44, s44, {FZ2}")
    poll_flags(k, "m_pollz", "v4", FLS, 1, 5, "v6", soff="s44", sleep=2)
    e(f"v_mov_b32 v4, {W_PF}"); e("v_mov_b32 v5, 1")
    e("ds_write_b32 v4, v5")
    k.stamp(4)
    e("s_branch m_L3prep")
    k.label("m_conv")
    e("s_cmp_ge_u32 s34, 640"); e("s_cbranch_scc1 m_L3prep")
    e(f"s_mul_i32 s39, s32, {CONV_B}"); e(f"s_add_u32 s39, s39, {CONV0}")
    e("s_waitcnt vmcnt(10)")
    kgen_dt(k, "v13")
    kgen_addr(k, "s39", "v2", "v3", "v1")
    e("s_mov_b32 s40, 2")
    kgen_loop(k, 164, "v13", "s40")
    k.stamp(3)
    UO, KC = 8320, 12928
    e("v_lshlrev_b32 v15, 4, v1")
    e(f"s_mov_b32 s44, {FX}")
    e("v_and_b32 v220, 31, v1"); e("v_lshlrev_b32 v220, 2, v220")
    e("buffer_load_dword v216, v220, s[60:63], s44 offen sc1")
    e(f"s_add_u32 s43, s39, {KC}")
    e("v_max_u32 v4, 1, v3"); e("v_sub_u32 v4, 5, v4")
    e("v_lshlrev_b32 v5, v4, v2")
    e("v_lshlrev_b32 v6, 3, v3")
    e("v_mov_b32 v7, 512"); e("v_cmp_eq_u32 vcc, 2, v3"); e("s_nop 1"); e("v_cndmask_b32 v6, v6, v7, vcc")
    e("v_mov_b32 v7, 768"); e("v_mov_b32 v8, 4"); e("v_mov_b32 v9, 128"); e("v_cmp_eq_u32 vcc, 3, v3"); e("s_nop 1")
    e("v_cndmask_b32 v6, v6, v7, vcc"); e("v_cndmask_b32 v8, v8, v9, vcc")
    e("v_add3_u32 v5, v5, v6, s43")
    e("v_lshlrev_b32 v6, v4, 16"); e("v_add_u32 v6, v5, v6")
    e("v_add_u32 v7, v5, v8"); e("v_add_u32 v8, v6, v8")
    for n in range(8): e(f"v_cvt_pk_bf16_f32 v{24+n}, v{136+2*n}, v{137+2*n}")
    e("ds_write_b32 v5, v24"); e("ds_write_b32 v7, v25"); e("ds_write_b32 v6, v26"); e("ds_write_b32 v8, v27")
    e("v_lshlrev_b32 v9, 6, v2"); e("v_lshl_add_u32 v9, v3, 3, v9"); e("v_add_u32 v9, s43, v9")
    e("v_mov_b32 v20, 0"); e("v_mov_b32 v21, 0"); e("v_mov_b32 v22, 0"); e("v_mov_b32 v23, 0")
    e("v_add_u32 v16, s39, v15")
    e("v_lshl_add_u32 v17, v1, 3, s39")
    e(f"ds_write_b64 v17, v[20:21] offset:{UO}")
    e("v_cmp_gt_u32 vcc, 5, v2"); e("s_and_saveexec_b64 s[46:47], vcc")
    e("ds_write_b64 v9, v[28:29] offset:1024"); e("ds_write_b64 v9, v[30:31] offset:1056")
    e("s_mov_b64 exec, 3")
    e("ds_write_b128 v16, v[20:23] offset:4096"); e(f"ds_write_b128 v16, v[20:23] offset:{4160+4096}")
    e("s_mov_b64 exec, -1")
    e(f"s_add_u32 s44, s39, {KC + 256 - 2*0x4300}")
    e(f"v_mov_b32 v31, {f32(128.0)}")
    e("v_lshlrev_b32 v18, 3, v1"); e("v_cvt_f32_u32 v18, v18")
    e("s_waitcnt lgkmcnt(0)")
    for m in range(4):
        for el in range(10): e(f"v_sub_f32 v{96+el}, {f32(2047 - 512*m - el)}, v18")
        if m == 3: e("v_max_f32 v104, 0, v104")
        for p in range(5): e(f"v_cvt_pk_bf16_f32 v{108+p}, v{96+2*p}, v{97+2*p}")
        for el in range(9):
            a = f"v{114+el}"
            if el % 2 == 0: e(f"v_and_b32 {a}, 0xffff, v{108+el//2}")
            else: e(f"v_lshrrev_b32 {a}, 16, v{108+el//2}")
            e(f"v_lshl_add_u32 {a}, {a}, 1, s44")
            if m == 3:
                e(f"v_cvt_u32_f32 v19, v{96+el}"); e("v_lshl_add_u32 v19, v19, 1, s43")
                e(f"v_cmp_lt_f32 vcc, v{96+el}, v31"); e("s_nop 1"); e(f"v_cndmask_b32 {a}, {a}, v19, vcc")
        for el in range(9): e(f"ds_read_u16 v{144+9*m+el}, v{114+el}")
    e(f"s_mov_b32 s46, {FX}")
    poll_flags(k, "m_pollx", "v220", FLS, 1, 216, "v4", soff="s46", sleep=8, preloaded=True)
    k.stamp(4)
    k.srd(20, 14, 15, XT_BYTES, WS_XNT)
    k.srd(24, 14, 15, XT_BYTES, WS_YT)
    e("s_lshl_b32 s45, s34, 12")
    for n in range(4): e(f"buffer_load_dwordx4 {v(200+4*n,4)}, v15, s[20:23], s45 offen offset:{n*1024} sc1")
    e("s_waitcnt lgkmcnt(0)")
    e("v_cmp_eq_u32 vcc, 63, v1"); e("s_nop 1"); e(f"v_cndmask_b32 v{144+35}, v{144+35}, v20, vcc")
    for m in range(4):
        W = 32 + 16*m; E = 144 + 9*m
        for p in range(4):
            e(f"v_lshl_or_b32 v{W+p}, v{E+2*p+1}, 16, v{E+2*p}")
            e(f"v_lshl_or_b32 v{W+8+p}, v{E+2*p+2}, 16, v{E+2*p+1}")
        e(f"ds_write_b128 v16, {v(W,4)} offset:{1024*m}")
        e(f"ds_write_b128 v16, {v(W+8,4)} offset:{4160+1024*m}")
    e("s_waitcnt vmcnt(0)")
    for n in range(4): e(f"ds_write_b128 v16, {v(200+4*n,4)} offset:{UO+512+1024*n}")
    k.stamp(5)
    e("v_and_b32 v4, 1, v2"); e("v_xor_b32 v4, 1, v4"); e("v_mul_u32_u24 v4, 4160, v4")
    e("v_lshrrev_b32 v5, 1, v2"); e("v_lshlrev_b32 v6, 2, v3"); e("v_sub_u32 v5, v6, v5")
    e("v_lshl_add_u32 v4, v5, 2, v4"); e("v_add_u32 v4, s39, v4")
    for mp in range(4): e(f"v_add_u32 v{24+mp}, {4*(1023 - 8 - 128*(2*mp+1))}, v4")
    e("v_lshlrev_b32 v5, 5, v2"); e("v_lshl_add_u32 v5, v3, 4, v5")
    e(f"s_add_u32 s43, s39, {UO+480}"); e("v_add_u32 v28, s43, v5")
    def Af(m): return 32 + 4*m
    def Bf(r): return 64 + 4*r
    def ac(cb): return v(96 + 4*cb, 4)
    for i in range(32): e(f"v_mov_b32 v{96+i}, 0")
    e("v_lshlrev_b32 v14, 16, v14")
    e("s_waitcnt lgkmcnt(0)")
    def rdA(m):
        o = 0 if m & 1 else 128
        e(f"ds_read2_b32 {v(Af(m),2)}, v{24+m//2} offset0:{o} offset1:{o+1}"); e(f"ds_read2_b32 {v(Af(m)+2,2)}, v{24+m//2} offset0:{o+2} offset1:{o+3}")
    def rdB(r): e(f"ds_read_b128 {v(Bf(r),4)}, v28 offset:{512*r}")
    for m in range(8): rdA(m); rdB(7-m)
    e("s_mov_b32 s40, 8")
    k.label("m_cloop")
    for r in range(24, 29): e(f"v_subrev_u32 v{r}, 64, v{r}")
    for m in range(8):
        for cb in (range(7, -1, -1) if m == 0 else range(m, 8)):
            if m == 0: e(f"s_waitcnt lgkmcnt({min(3*cb, 15)})")
            e(f"{MFMA} {ac(cb)}, {v(Af(m),4)}, {v(Bf(cb-m),4)}, {ac(cb)}")
        rdA(m); rdB(7-m)
    e("s_sub_u32 s40, s40, 1"); e("s_cmp_lg_u32 s40, 0"); e("s_cbranch_scc1 m_cloop")
    k.stamp(6)
    e("s_waitcnt lgkmcnt(0)")
    e("v_lshlrev_b32 v20, 5, v2"); e("v_lshl_add_u32 v20, v3, 3, v20")
    e(f"s_add_u32 s43, s39, {UO+512}"); e("v_add_u32 v21, s43, v20")
    for cb in range(8): e(f"ds_read_b64 {v(32+2*cb,2)}, v21 offset:{512*cb}")
    e("s_waitcnt lgkmcnt(0)")
    for c0 in (0, 4):
        A = [96 + 4*cb + 2*p for cb in range(c0, c0+4) for p in range(2)]
        U = [32 + 2*cb + p for cb in range(c0, c0+4) for p in range(2)]
        for i in range(8): e(f"v_cvt_pk_bf16_f32 v{64+i}, v{A[i]}, v{A[i]+1}")
        for i in range(8): unpack(k, f"v{72+2*i}", f"v{73+2*i}", f"v{U[i]}")
        for i in range(8): unpack(k, f"v{A[i]}", f"v{A[i]+1}", f"v{64+i}")
        for i in range(8): e(f"v_pk_mul_f32 {pr(72+2*i)}, {pr(72+2*i)}, v[14:15] op_sel_hi:[1,0]")
        for i in range(8): e(f"v_cvt_pk_bf16_f32 v{64+i}, v{72+2*i}, v{73+2*i}")
        for i in range(8): unpack(k, f"v{72+2*i}", f"v{73+2*i}", f"v{64+i}")
        for i in range(8): e(f"v_pk_add_f32 {pr(A[i])}, {pr(A[i])}, {pr(72+2*i)}")
        for i in range(8): e(f"v_cvt_pk_bf16_f32 v{U[i]}, v{A[i]}, v{A[i]+1}")
        for cb in range(c0, c0+4): e(f"ds_write_b64 v21, {v(32+2*cb,2)} offset:{512*cb}")
    for n in range(4): e(f"ds_read_b128 {v(64+4*n,4)}, v16 offset:{UO+512+1024*n}")
    for n in range(4):
        e(f"s_waitcnt lgkmcnt({3-n})")
        e(f"buffer_store_dwordx4 {v(64+4*n,4)}, v15, s[24:27], s45 offen offset:{1024*n} sc1")
    e("s_lshl_b32 s43, s34, 2"); e(f"s_add_u32 s43, s43, {FY}")
    set_flag(k, FLS, "s43", 0, "v4", "v5")
    k.stamp(7)
    k.label("m_L3prep")
    e("s_and_b32 s36, s41, 1"); e("s_lshl_b32 s36, s36, 2"); e("s_and_b32 s43, s42, 3"); e("s_add_u32 s36, s36, s43")
    e("s_lshl_b32 s43, s33, 2"); e(f"s_add_u32 s43, s43, {W_GL}"); e("v_mov_b32 v4, s43")
    lds_wait(k, "m_wgl", "v4", "v5", sleep=8)
    k.stamp(8)
    e("s_mul_i32 s46, s33, 15"); e("s_add_u32 s46, s46, 42")
    e("s_cmp_eq_u32 s33, 3"); e("s_cselect_b32 s47, 48, 15")
    e("s_branch m_P3")

    k.label("m_gemm1")
    e("v_and_b32 v2, 15, v1"); e("v_lshrrev_b32 v3, 4, v1")
    e("v_lshlrev_b32 v12, 4, v1")
    e("v_add_u32 v13, 4096, v12")
    PL = 200
    def poll_loads():
        for i in range(7):
            e(f"buffer_load_dwordx4 {v(PL+4*i,4)}, v{12 if i < 4 else 13}, s[28:31], s72 offen offset:{(i%4)*1024} sc1")
    e("v_mov_b32 v10, 0")
    e(f"v_lshlrev_b32 v4, 2, v2"); e(f"v_add_u32 v4, {W_EPOCH}, v4")
    e("ds_write_b32 v4, v10")
    e("s_waitcnt lgkmcnt(0)")
    k.srd(64, 12, 13, 256)
    e("s_cmp_lg_u32 s2, 0"); e("s_cbranch_scc1 m_noep")
    e("s_cmp_lg_u32 s32, 4"); e("s_cbranch_scc1 m_noep")
    e("s_memrealtime s[44:45]"); e("s_waitcnt lgkmcnt(0)"); e("s_or_b32 s44, s44, 1"); e("v_mov_b32 v4, s44")
    e("s_mov_b64 exec, 1")
    e("buffer_store_dword v4, v10, s[64:67], 0 offen sc1")
    e("s_mov_b64 exec, -1")
    k.label("m_noep")
    e("s_lshl_b32 s43, s35, 2"); e("s_add_u32 s43, s43, s33"); e(f"s_mul_i32 s72, s43, {14*512}")
    e("s_lshl_b32 s44, s36, 9"); e("s_add_u32 s73, s72, s44")
    e("s_lshl_b32 s74, s36, 6"); e("s_add_u32 s74, s74, s43"); e("s_lshl_b32 s74, s74, 2")
    e("v_and_b32 v4, 7, v1"); e("v_lshl_add_u32 v4, v3, 3, v4"); e("v_bfe_u32 v5, v1, 3, 1"); e("v_lshlrev_b32 v5, 3, v5")
    e("v_lshl_add_u32 v230, v4, 4, v5")
    k.srd(28, 14, 15, ST2_BYTES, WS_ST2)
    k.srd(24, 14, 15, ZF_BYTES, WS_Z2F)
    k.srd(20, 14, 15, ZF_BYTES, WS_Z1F)
    k.srd(FLS, 14, 15, FL_BYTES, WS_FL)
    for c in range(4):
        e(f"s_xor_b32 s43, s33, {c}")
        e("s_lshl_b32 s44, s36, 2"); e("s_add_u32 s43, s43, s44"); e("s_sub_u32 s43, s43, 2")
        e(f"s_cmp_lt_u32 s43, 54"); e(f"s_cselect_b32 s{50+c}, -1, 0")
        e("s_cselect_b32 s43, s43, 60")
        e(f"s_lshl_b32 s{46+c}, s43, 16")
        e("s_lshl_b32 s44, s35, 2"); e("s_add_u32 s44, s44, s33"); e("s_lshl_b32 s44, s44, 10")
        e(f"s_add_u32 s{46+c}, s{46+c}, s44")
    for b in range(2):
        for g in range(2):
            e("s_lshr_b32 s43, s33, 1"); e(f"s_xor_b32 s43, s43, {g}"); e("s_lshl_b32 s44, s36, 1"); e("s_add_u32 s43, s43, s44")
            e("s_lshl_b32 s44, s35, 3"); e("s_lshl_b32 s45, s33, 1"); e("s_add_u32 s44, s44, s45"); e(f"s_add_u32 s44, s44, {b}")
            e("s_mul_i32 s44, s44, 27"); e("s_add_u32 s44, s44, s43"); e("s_lshl_b32 s44, s44, 10")
            e("s_cmp_lt_u32 s43, 27"); e(f"s_cselect_b32 s{68+b*2+g}, s44, {HUGE}")
    e("v_and_b32 v4, 2, v1"); e("v_and_b32 v5, 1, v1")
    e("v_cmp_ne_u32 s[54:55], 0, v4"); e("v_cmp_ne_u32 s[56:57], 0, v5")
    e("s_lshl_b32 s43, s33, 5")
    e("v_add_u32 v4, s43, v2"); e("v_lshlrev_b32 v4, 7, v4")
    e("v_lshrrev_b32 v5, 1, v2"); e("v_xor_b32 v5, v5, v3")
    e("v_lshl_add_u32 v14, v5, 4, v4")
    e("v_xor_b32 v15, 64, v14")
    e("v_bfe_u32 v4, v1, 2, 2")
    e("v_lshl_add_u32 v5, v3, 3, v4"); e("v_lshlrev_b32 v5, 7, v5")
    e("v_and_b32 v6, 3, v1"); e("v_lshl_add_u32 v5, v6, 3, v5")
    e("v_add_u32 v5, 16384, v5")
    e("v_lshrrev_b32 v6, 1, v4"); e("v_and_b32 v7, 1, v3"); e("v_lshl_or_b32 v6, v7, 1, v6")
    e("v_xor_b32 v6, s33, v6")
    for c in range(4):
        e(f"v_xor_b32 v7, {c}, v6"); e(f"v_lshl_add_u32 v{16+c}, v7, 5, v5")
    for i in range(4): e(f"v_mov_b32 v{20+i}, 0x3f803f80")
    ACC = 104
    for i in range(ACC, 192): e(f"v_mov_b32 v{i}, 0")
    def xf(ks, b): return v(24 + 40*ks + 4*b, 4)
    def wfb(ks, h, c): return 24 + 40*ks + 8 + 16*h + 4*c
    def wf(ks, h, c): return v(wfb(ks, h, c), 4)
    def accb(h, b, c): return ACC + 32*h + (b*4 + c)*4
    def acc(h, b, c): return v(accb(h, b, c), 4)
    def rlist(ks):
        L = [f"ds_read_b128 {xf(ks,b)}, v{14+ks} offset:{2048*b}" for b in range(2)]
        for h in range(2):
            for c in range(4):
                for hh in range(2):
                    L.append(f"ds_read_b64_tr_b16 {v(wfb(ks,h,c)+2*hh,2)}, v{16+c} offset:{h*8192+ks*4096+hh*512}")
        return L
    def mlist(ks):
        L = []
        for b in range(2):
            L.append(f"{MFMA} {v(168+4*b,4)}, v[20:23], {xf(ks,b)}, {v(168+4*b,4)}")
            L.append(f"{MFMA} {v(176+4*b,4)}, {xf(ks,b)}, {xf(ks,b)}, {v(176+4*b,4)}")
        for h in range(2):
            L.append(f"{MFMA} {v(184+4*h,4)}, v[20:23], {wf(ks,h,0)}, {v(184+4*h,4)}")
            for c in range(4):
                for b in range(2):
                    if h == 0: L.append(f"{MFMA} {acc(h,b,c)}, {xf(ks,b)}, {wf(ks,h,c)}, {acc(h,b,c)}")
                    else:      L.append(f"{MFMA} {acc(h,b,c)}, {wf(ks,h,c)}, {xf(ks,b)}, {acc(h,b,c)}")
        return L
    def phase(ks, rd, extra=()):
        M = mlist(ks); R = list(rd); X = list(extra)
        for i, m in enumerate(M):
            e(m)
            if R: e(R.pop(0))
            elif X:
                for _ in range(2):
                    if X: e(X.pop(0))
        for x in X: e(x)
    bump = [f"v_add_u32 v{r}, 0x8000, v{r}" for r in range(14, 20)]
    wrap = [f"v_and_b32 v{r}, 0x1ffff, v{r}" for r in range(14, 20)]
    k.stamp(1)
    e("s_mov_b32 s40, 10")
    e("s_barrier")
    k.stamp(2)
    for r in rlist(0): e(r)
    k.label("m_loop1")
    e("s_waitcnt lgkmcnt(0)")
    phase(0, rlist(1), bump + wrap)
    e("s_sub_u32 s40, s40, 1"); e("s_cmp_eq_u32 s40, 0")
    e("s_waitcnt lgkmcnt(0)")
    e(f"s_cbranch_scc1 m_tail1")
    e("s_barrier")
    phase(1, rlist(0))
    e("s_cmp_lg_u32 s40, 5"); e("s_cbranch_scc1 m_loop1")
    e("s_cmp_lg_u32 s33, 0"); e("s_cbranch_scc1 m_loop1")
    e("buffer_load_dword v11, v10, s[64:67], 0 offen sc1")
    e(f"s_branch m_loop1")
    k.label(f"m_tail1")
    phase(1, [])
    e("s_setprio 2")
    k.stamp(3)
    e("s_lshl_b32 s43, s33, 6"); e(f"s_add_u32 s43, s43, {MISC+1024}")
    e("v_lshl_add_u32 v8, v2, 2, s43")
    e("v_and_b32 v4, 3, v1")
    e("v_cmp_eq_u32 s[44:45], 1, v4"); e("v_cmp_eq_u32 s[58:59], 2, v4"); e("v_cmp_eq_u32 vcc, 3, v4")
    e("s_nop 2")
    e("ds_write_b32 v8, v184"); e("ds_write_b32 v8, v188 offset:256")
    e(f"v_mov_b32 v9, {W_EPOCH}")
    def epoch_poll(tag):
        e("s_mov_b32 s40, 0")
        k.label(f"m_eppoll{tag}")
        e("s_waitcnt vmcnt(0)")
        e("v_readfirstlane_b32 s43, v11")
        e("s_add_u32 s40, s40, 1")
        e("s_cmp_lg_u32 s43, 0"); e(f"s_cbranch_scc1 m_epok{tag}")
        e("buffer_load_dword v11, v10, s[64:67], 0 offen sc1")
        e(f"s_cmp_lt_u32 s40, {SPIN}"); e(f"s_cbranch_scc1 m_eppoll{tag}")
        k.label(f"m_epok{tag}")
        e("ds_write_b32 v9, v11")
    e("s_cmp_lg_u32 s33, 0"); e("s_cbranch_scc1 m_epdone")
    epoch_poll("g")
    k.label("m_epdone")
    e("s_waitcnt lgkmcnt(0)")
    e("s_barrier")
    for b in range(2):
        q0 = 176 + 4*b
        e(f"v_cndmask_b32 v{q0}, v{q0}, v{q0+1}, s[44:45]"); e(f"v_cndmask_b32 v{q0}, v{q0}, v{q0+2}, s[58:59]"); e(f"v_cndmask_b32 v{q0}, v{q0}, v{q0+3}, vcc")
        e(f"v_mul_f32 v{168+4*b}, {f32(1/640)}, v{168+4*b}")
        e(f"v_mul_f32 v{q0}, {f32(1/640)}, v{q0}")
        e(f"v_fma_f32 v{q0}, -v{168+4*b}, v{168+4*b}, v{q0}")
    for c in range(4):
        e(f"s_xor_b32 s43, s33, {c}"); e(f"s_lshl_b32 s43, s43, 6"); e(f"s_add_u32 s43, s43, {MISC+1024}")
        e(f"v_lshl_add_u32 v5, v2, 2, s43"); e(f"v_lshl_add_u32 v6, v3, 4, s43")
        e(f"ds_read_b32 v{40+2*c}, v5")
        e(f"ds_read_b128 {v(64+4*c,4)}, v6 offset:256")
    e("ds_read_b32 v229, v9")
    for b in range(2): ln_finish(k, f"v{168+4*b}", f"v{176+4*b}", "v7")
    e("s_lshl_b32 s43, s33, 7"); e(f"s_add_u32 s43, s43, {MISC}")
    e("v_lshl_add_u32 v7, v2, 2, s43")
    e("v_lshl_add_u32 v8, v3, 4, s43")
    e("v_lshrrev_b32 v4, 2, v2")
    e("v_cmp_eq_u32 vcc, v4, v3")
    e("s_and_saveexec_b64 s[44:45], vcc")
    for b in range(2):
        e(f"ds_write_b32 v7, v{168+4*b} offset:{64*b}"); e(f"ds_write_b32 v7, v{176+4*b} offset:{512+64*b}")
    e("s_mov_b64 exec, s[44:45]")
    e("ds_read_b128 v[24:27], v8"); e("ds_read_b128 v[28:31], v8 offset:64")
    e("ds_read_b128 v[32:35], v8 offset:512"); e("ds_read_b128 v[36:39], v8 offset:576")
    e("ds_read_b32 v80, v7"); e("ds_read_b32 v82, v7 offset:64"); e("ds_read_b32 v84, v7 offset:512"); e("ds_read_b32 v86, v7 offset:576")
    e(f"v_mov_b32 v88, {f32(GC1)}"); e(f"v_mov_b32 v90, {f32(GC0)}")
    for i in range(168, 184): e(f"v_mov_b32 v{i}, 0")
    e("s_waitcnt lgkmcnt(0)")
    e("v_readfirstlane_b32 s3, v229")
    def gelu_pairs(A):
        n = len(A); T = [48 + 2*i for i in range(n)]
        for i in range(n): e(f"v_cvt_pk_bf16_f32 v{T[i]}, v{A[i]}, v{A[i]+1}")
        for i in range(n): unpack(k, f"v{A[i]}", f"v{A[i]+1}", f"v{T[i]}")
        for i in range(n): e(f"v_pk_mul_f32 {pr(T[i])}, {pr(A[i])}, {pr(A[i])}")
        for i in range(n): e(f"v_pk_fma_f32 {pr(T[i])}, {pr(T[i])}, v[88:89], v[90:91] op_sel_hi:[1,0,0]")
        for i in range(n): e(f"v_pk_mul_f32 {pr(T[i])}, {pr(T[i])}, {pr(A[i])}")
        for i in range(n): e(f"v_exp_f32 v{T[i]}, v{T[i]}"); e(f"v_exp_f32 v{T[i]+1}, v{T[i]+1}")
        for i in range(n): e(f"v_pk_add_f32 {pr(T[i])}, {pr(T[i])}, 1.0 op_sel_hi:[1,0]")
        for i in range(n): e(f"v_rcp_f32 v{T[i]}, v{T[i]}"); e(f"v_rcp_f32 v{T[i]+1}, v{T[i]+1}")
        for i in range(n): e(f"v_pk_mul_f32 {pr(A[i])}, {pr(A[i])}, {pr(T[i])}")
    for c0 in (0, 2):
        A = [accb(0, b, c) + 2*p for c in (c0, c0+1) for b in range(2) for p in range(2)]
        M = [24 + 4*b + 2*p for c in (c0, c0+1) for b in range(2) for p in range(2)]
        C = [40 + 2*c for c in (c0, c0+1) for b in range(2) for p in range(2)]
        for i in range(8): e(f"v_pk_fma_f32 {pr(A[i])}, {pr(M[i])}, {pr(C[i])}, {pr(A[i])} op_sel_hi:[1,0,1] neg_lo:[1,0,0] neg_hi:[1,0,0]")
        for i in range(8): e(f"v_pk_mul_f32 {pr(A[i])}, {pr(A[i])}, {pr(M[i]+8)}")
        gelu_pairs(A)
        for i in range(8): e(f"v_cvt_pk_bf16_f32 v{48+i}, v{A[i]}, v{A[i]+1}")
        for i in range(8): e(f"v_and_b32 v{48+i}, s{50+c0+i//4}, v{48+i}")
        for i in range(8): unpack(k, f"v{A[i]}", f"v{A[i]+1}", f"v{48+i}")
        for i in range(8):
            n = (i % 4) * 2
            e(f"v_pk_add_f32 {pr(168+n)}, {pr(168+n)}, {pr(A[i])}")
            e(f"v_pk_fma_f32 {pr(176+n)}, {pr(A[i])}, {pr(A[i])}, {pr(176+n)}")
    e("s_nop 0")
    for n in range(8): e(f"v_add_f32_dpp v{48+n}, v{168+n}, v{168+n} row_ror:8 row_mask:0xf bank_mask:0x3")
    for n in range(8): e(f"v_add_f32_dpp v{48+n}, v{176+n}, v{176+n} row_ror:8 row_mask:0xf bank_mask:0xc")
    for n in range(4): e(f"v_add_f32_dpp v{168+n}, v{48+n}, v{48+n} row_half_mirror row_mask:0xf bank_mask:0x5")
    for n in range(4): e(f"v_add_f32_dpp v{168+n}, v{52+n}, v{52+n} row_half_mirror row_mask:0xf bank_mask:0xa")
    for n in range(2):
        e(f"v_cndmask_b32 v{172+n}, v{170+n}, v{168+n}, s[54:55]")
        e(f"v_cndmask_b32 v{174+n}, v{168+n}, v{170+n}, s[54:55]")
    e("s_nop 0")
    for n in range(2): e(f"v_add_f32_dpp v{176+n}, v{172+n}, v{174+n} quad_perm:[2,3,0,1] row_mask:0xf bank_mask:0xf")
    e("v_cndmask_b32 v172, v177, v176, s[56:57]"); e("v_cndmask_b32 v174, v176, v177, s[56:57]")
    e("s_nop 1")
    e("v_add_f32_dpp v228, v172, v174 quad_perm:[1,0,3,2] row_mask:0xf bank_mask:0xf")
    e("buffer_store_dwordx2 v[228:229], v230, s[28:31], s73 offen sc1")
    if "lowp" in EXP: e("s_setprio 0")
    k.stamp(4)
    P1 = 168
    for c0 in (0, 2):
        A = [accb(1, b, c) + 2*p for c in (c0, c0+1) for b in range(2) for p in range(2)]
        M = [80 + 2*b for c in (c0, c0+1) for b in range(2) for p in range(2)]
        C = [64 + 4*c + 2*p for c in (c0, c0+1) for b in range(2) for p in range(2)]
        for i in range(8): e(f"v_pk_fma_f32 {pr(A[i])}, {pr(M[i])}, {pr(C[i])}, {pr(A[i])} op_sel_hi:[0,1,1] neg_lo:[1,0,0] neg_hi:[1,0,0]")
        for i in range(8): e(f"v_pk_mul_f32 {pr(A[i])}, {pr(A[i])}, {pr(M[i]+4)} op_sel_hi:[1,0]")
        gelu_pairs(A)
        i = 0
        for c in (c0, c0+1):
            for b in range(2):
                for p in range(2):
                    e(f"v_cvt_pk_bf16_f32 v{P1+b*8+c*2+p}, v{A[i]}, v{A[i]+1}"); i += 1
        if c0 == 0: poll_loads()
    e("s_bitcmp1_b32 s33, 0"); e("s_cbranch_scc0 m_noswap")
    for b in range(2):
        for g in range(2):
            for p in range(2):
                r0 = P1 + b*8 + g*4 + p
                e(f"v_swap_b32 v{r0}, v{r0+2}")
    k.label("m_noswap")
    e("s_setprio 2")
    e("s_mov_b32 s40, 0")
    e("s_waitcnt vmcnt(0)")
    for b in range(2):
        for g in range(2):
            e(f"buffer_store_dwordx4 {v(P1+b*8+g*4,4)}, v12, s[20:23], s{68+b*2+g} offen sc1")
    e("s_branch m_check")
    k.label("m_poll")
    poll_loads()
    e("s_waitcnt vmcnt(0)")
    k.label("m_check")
    e(f"v_xor_b32 v4, v{PL+1}, v229"); e(f"v_xor_b32 v5, v{PL+3}, v229")
    for i in range(1, 7):
        e(f"v_xor_b32 v9, v{PL+1+4*i}, v229"); e(f"v_xor_b32 v10, v{PL+3+4*i}, v229")
        e("v_or3_b32 v4, v4, v9, v10")
    e("v_or_b32 v4, v4, v5")
    e("v_cmp_ne_u32 vcc, 0, v4")
    e("s_add_u32 s40, s40, 1")
    e("s_nop 0")
    e("s_cbranch_vccz m_poll_done")
    e(f"s_cmp_lt_u32 s40, {SPIN}"); e("s_cbranch_scc1 m_poll")
    k.label("m_poll_done")
    k.stamp(5)
    for i in range(1, 7):
        e(f"v_add_f32 v{PL}, v{PL}, v{PL+4*i}"); e(f"v_add_f32 v{PL+2}, v{PL+2}, v{PL+2+4*i}")
    e(f"v_mov_b32 v{PL+1}, v{PL}"); e(f"v_mov_b32 v{PL+3}, v{PL+2}"); e("s_nop 1")
    e(f"v_permlane32_swap_b32 v{PL}, v{PL+1}"); e(f"v_permlane32_swap_b32 v{PL+2}, v{PL+3}"); e("s_nop 1")
    e(f"v_add_f32 v24, v{PL}, v{PL+1}"); e(f"v_add_f32 v26, v{PL+2}, v{PL+3}")
    e(f"v_mul_f32 v24, {f32(1/864)}, v24"); e(f"v_mul_f32 v26, {f32(1/864)}, v26")
    e("v_fma_f32 v26, -v24, v24, v26")
    ln_finish(k, "v24", "v26", "v25")
    e("s_lshl_b32 s43, s33, 8"); e(f"s_add_u32 s43, s43, {MISC+1536}")
    e("v_and_b32 v4, 31, v1"); e("v_lshl_add_u32 v4, v4, 2, s43"); e("v_lshl_add_u32 v5, v3, 5, s43")
    e("ds_write_b32 v4, v24"); e("ds_write_b32 v4, v26 offset:128")
    e("ds_read_b128 v[28:31], v5"); e("ds_read_b128 v[32:35], v5 offset:16")
    e("ds_read_b128 v[36:39], v5 offset:128"); e("ds_read_b128 v[40:43], v5 offset:144")
    e("s_waitcnt lgkmcnt(0)")
    for c0 in (0, 2):
        A = [accb(0, b, c) + 2*p for c in (c0, c0+1) for b in range(2) for p in range(2)]
        M = [28 + (i % 4)*2 for i in range(8)]
        for i in range(8): e(f"v_pk_add_f32 {pr(A[i])}, {pr(A[i])}, {pr(M[i])} neg_lo:[0,1] neg_hi:[0,1]")
        for i in range(8): e(f"v_cvt_pk_bf16_f32 v{48+i}, v{A[i]}, v{A[i]+1}")
        for i in range(8): unpack(k, f"v{A[i]}", f"v{A[i]+1}", f"v{48+i}")
        for i in range(8): e(f"v_pk_mul_f32 {pr(A[i])}, {pr(A[i])}, {pr(M[i]+8)}")
        for i in range(8): e(f"v_cvt_pk_bf16_f32 v{64+4*c0+i}, v{A[i]}, v{A[i]+1}")
        for c in (c0, c0+1): e(f"buffer_store_dwordx4 {v(64+4*c,4)}, v12, s[24:27], s{46+c} offen sc1")
    e("s_lshl_b32 s43, s36, 2")
    e("s_mov_b32 s44, 0x33221000"); e("s_mov_b32 s45, 0x00766554"); e("s_lshr_b64 s[44:45], s[44:45], s43"); e("s_and_b32 s46, s44, 15")
    e("s_mov_b32 s44, 0x44322110"); e("s_mov_b32 s45, 0x00776655"); e("s_lshr_b64 s[44:45], s[44:45], s43"); e("s_and_b32 s47, s44, 15")
    for r in (46, 47):
        e(f"s_lshl_b32 s43, s{r}, 2"); e("s_lshr_b32 s44, 0xca865310, s43"); e("s_and_b32 s44, s44, 15")
        e("s_sub_u32 s44, s36, s44"); e("s_lshl_b32 s44, s44, 4"); e("s_add_u32 s44, s44, s35"); e("s_lshl_b32 s44, s44, 2")
        e(f"s_lshl_b32 s{r}, s{r}, 8"); e(f"s_add_u32 s{r}, s{r}, s44")
    e("v_mov_b32 v6, s46"); e("v_mov_b32 v7, s47"); e("v_cmp_lt_u32 vcc, 31, v1"); e("v_and_b32 v8, 31, v1"); e("v_lshlrev_b32 v8, 11, v8")
    e("v_cndmask_b32 v6, v6, v7, vcc"); e("v_add_u32 v6, v6, v8")
    e(f"v_mov_b32 v4, {W_PF + 8}"); e("v_mov_b32 v5, 1"); e("v_mov_b32 v7, s3"); e(f"s_mov_b32 s44, {FZ2}")
    e("s_mov_b64 exec, 1")
    e("s_waitcnt vmcnt(0)")
    e("ds_add_rtn_u32 v8, v4, v5")
    e("s_waitcnt lgkmcnt(0)")
    e("v_readfirstlane_b32 s43, v8")
    e("s_mov_b64 exec, -1")
    e("s_cmp_lg_u32 s43, 3"); e("s_cbranch_scc1 m_P2")
    e("buffer_store_dword v7, v6, s[60:63], s44 offen sc1")
    gen_p2(k)
    gen_p3(k)
    gen_helper(k, epoch_poll)
    k.label("m_end")
    e("s_endpgm")
    return k.text(256, nsgpr=100)

def gen_p2(k):
    e = k.e
    k.label("m_P2")
    k.stamp(6)
    e("s_load_dwordx2 s[6:7], s[0:1], 80")
    e("s_lshr_b32 s35, s41, 1"); e("s_lshl_b32 s35, s35, 3"); e("s_lshr_b32 s43, s42, 2"); e("s_add_u32 s35, s35, s43")
    e("s_and_b32 s36, s42, 3")
    e("s_and_b32 s43, s41, 1"); e("s_mul_i32 s43, s43, 27"); e("s_mul_i32 s44, s36, 7"); e("s_add_u32 s37, s43, s44")
    e("v_and_b32 v240, 15, v1"); e("v_lshrrev_b32 v241, 4, v1"); e("v_mov_b32 v245, v1")
    e("v_lshrrev_b32 v2, 5, v1"); e("v_lshlrev_b32 v2, 3, v2"); e("v_bfe_u32 v3, v1, 3, 2"); e("v_add_u32 v2, v2, v3")
    e("v_lshlrev_b32 v2, 12, v2")
    e("v_and_b32 v3, 7, v1"); e("v_xor_b32 v3, v3, v241")
    e("v_lshl_add_u32 v242, v3, 4, v2")
    e("v_xor_b32 v3, 4, v3")
    e("v_lshl_add_u32 v243, v3, 4, v2"); e(f"v_add_u32 v243, {16*4096 - 1024}, v243")
    e("v_lshlrev_b32 v244, 4, v1")
    e("s_lshl_b32 s43, s35, 18"); e("s_lshl_b32 s44, s33, 10"); e("s_add_u32 s48, s43, s44"); e("s_add_u32 s48, s48, 256")
    e(f"s_add_u32 s49, s48, {4*4096}"); e(f"s_add_u32 s50, s48, {32*4096}"); e(f"s_add_u32 s51, s48, {36*4096}")
    e("s_lshl_b32 s43, s37, 16"); e("s_lshl_b32 s44, s33, 14"); e("s_add_u32 s52, s43, s44")
    for c in range(1, 7): e(f"s_add_u32 s{52+c}, s52, {c*65536}")
    e("s_cmp_eq_u32 s36, 3"); e(f"s_cselect_b32 s58, {HUGE}, s58")
    e(f"s_mul_i32 s39, s33, {RING2}")
    k.srd(16, 10, 11, 2048*4096)
    k.srd(20, 14, 15, ZF_BYTES, WS_Z2F)
    k.srd(24, 14, 15, ZF_BYTES, WS_Z1F)
    k.srd(28, 14, 15, ZF_BYTES, WS_HF)
    def Z(st, c): return v(112 + st*28 + c*4, 4)
    def acc(c, sg): return v((c*4 + sg)*4, 4)
    def wf(sg): return v(224 + 4*sg, 4)
    def issueZ(n):
        if n % 4 == 0 and n:
            for c in range(7): e(f"s_add_u32 s{52+c}, s{52+c}, 4096")
        for c in range(7): k.vmem(f"buffer_load_dwordx4 {Z(n%4,c)}, v244, s[20:23], s{52+c} offen offset:{(n%4)*1024} sc1", f"Z{n}")
    def issueA(c):
        for t in range(4):
            e(f"s_add_u32 m0, s39, {(c%NSLOT)*8192 + t*2048}")
            e("s_nop 0")
            k.vmem(f"buffer_load_dwordx4 v242, s[16:19], s{48+t} offen lds", f"A{c}")
            k.vmem(f"buffer_load_dwordx4 v243, s[16:19], s{48+t} offen offset:1024 lds", f"A{c}")
        for t in range(4): e(f"s_add_u32 s{48+t}, s{48+t}, 128")
    k.vm = []
    e("v_lshrrev_b32 v5, 1, v240"); e("v_xor_b32 v5, v5, v241")
    e("v_lshlrev_b32 v4, 7, v240"); e("v_lshl_add_u32 v4, v5, 4, v4"); e("v_add_u32 v4, s39, v4")
    for sg in range(4):
        e(f"s_xor_b32 s43, s33, {sg}"); e("s_lshl_b32 s43, s43, 11")
        e(f"v_add_u32 v{246+sg}, s43, v4")
        e(f"v_xor_b32 v{250+sg}, 64, v{246+sg}")
    e("s_setprio 0")
    e(f"v_mov_b32 v4, {W_PF}")
    lds_wait(k, "m_wpf", "v4", "v5", sleep=1)
    k.srd(64, 6, 7, 4096)
    e("s_setprio 3")
    k.stamp(7); k.cyc(12)
    k.vm = []
    for n in range(4): issueZ(n)
    for n in range(16):
        c, ks = n >> 1, n & 1
        if ks == 0 and f"A{c}" in k.vm: k.wait_vm(f"A{c}")
        for sg in range(4):
            e(f"ds_read_b128 {wf(sg)}, v{(250 if ks else 246)+sg} offset:{(c%NSLOT)*8192}")
        if f"Z{n}" in k.vm: k.wait_vm(f"Z{n}")
        if n == 0: k.stamp(8)
        order = (1, 3, 2, 0) if n == 15 else (0, 1, 2, 3)
        for ii, sg in enumerate(order):
            if n == 15:
                if ii == 0: e("s_waitcnt lgkmcnt(0)")
            else:
                e(f"s_waitcnt lgkmcnt({3-sg})")
            if ii == 3 and ks == 1 and c + NSLOT < 8: issueA(c + NSLOT)
            for cc in range(7):
                e(f"{MFMA} {acc(cc,sg)}, {Z(n%4,cc)}, {wf(sg)}, {'0' if n == 0 else acc(cc,sg)}")
        if n + 4 < 16: issueZ(n + 4)
        if n == 12:
            e("s_lshl_b32 s43, s35, 2"); e("s_add_u32 s43, s43, s33"); e("s_mul_i32 s44, s43, 27648")
            for cc in range(7):
                e(f"s_add_u32 s45, s37, {cc}"); e("s_lshr_b32 s46, s45, 1"); e("s_lshl_b32 s46, s46, 10"); e("s_and_b32 s45, s45, 1"); e("s_lshl_b32 s45, s45, 3")
                e("s_add_u32 s45, s45, s46"); e(f"s_add_u32 s{52+cc}, s45, s44")
            e("s_cmp_eq_u32 s36, 3"); e(f"s_cselect_b32 s58, {HUGE}, s58")
            for cc in range(7): k.vmem(f"buffer_load_dwordx2 {v(112+2*cc,2)}, v244, s[24:27], s{52+cc} offen sc1", "z1")
            e("s_lshr_b32 s44, s43, 1"); e("s_lshl_b32 s44, s44, 5"); e("s_and_b32 s45, s43, 1"); e("s_lshl_b32 s45, s45, 2"); e("s_add_u32 s44, s44, s45")
            e("v_lshrrev_b32 v128, 2, v240"); e("v_and_b32 v129, 3, v240"); e("v_lshl_add_u32 v128, v128, 3, v129"); e("v_add_u32 v128, s44, v128")
            e("v_lshlrev_b32 v128, 1, v128")
            k.vmem("buffer_load_ushort v126, v128, s[64:67], 0 offen", "z1")
        if n == 12:
            e("s_lshl_b32 s43, s33, 2"); e(f"s_add_u32 s43, s43, {W_GL}"); e("v_mov_b32 v254, s43"); e("v_mov_b32 v255, 1")
            e("ds_write_b32 v254, v255")
    k.stamp(9); k.cyc(13)
    e("v_add_u32 v130, s39, v244")
    e("s_xor_b32 s43, s33, 1"); e(f"s_mul_i32 s43, s43, {RING2}"); e("v_add_u32 v131, s43, v244")
    e("s_xor_b32 s43, s33, 3"); e(f"s_mul_i32 s43, s43, {RING2}"); e("v_add_u32 v132, s43, v244")
    e(f"v_add_u32 v133, {W_R1 - W_GL}, v254")
    e("v_xor_b32 v134, 4, v133"); e("v_xor_b32 v135, 8, v133"); e("v_add_u32 v135, 16, v135")
    for c in range(7):
        for h in range(2): e(f"ds_write_b128 v130, {acc(c,1+2*h)} offset:{(c*2+h)*1024}")
    e("ds_write_b32 v133, v255")
    if "tailp" in EXP: k.stamp(1)
    lds_wait(k, "m_wr1", "v134", "v136")
    if "tailp" in EXP: k.stamp(2)
    T = 140
    for h in (1, 0):
        for c in range(7): e(f"ds_read_b128 {v(T+(c*2+h)*4,4)}, v131 offset:{(c*2+h)*1024}")
    e("s_waitcnt lgkmcnt(7)")
    for c in range(7):
        for p in range(2):
            a = (c*4 + 2)*4 + 2*p
            e(f"v_pk_add_f32 {pr(a)}, {pr(a)}, {pr(T+(c*2+1)*4+2*p)}")
    e("s_waitcnt lgkmcnt(0)")
    for c in range(7): e(f"ds_write_b128 v131, {acc(c,2)} offset:{c*1024}")
    e("ds_write_b32 v133, v255 offset:16")
    for c in range(7):
        for p in range(2):
            a = (c*4)*4 + 2*p
            e(f"v_pk_add_f32 {pr(a)}, {pr(a)}, {pr(T+(c*2)*4+2*p)}")
    lds_wait(k, "m_wr2", "v135", "v136")
    if "tailp" in EXP: k.stamp(3)
    for c in range(7): e(f"ds_read_b128 {v(T+c*4,4)}, v132 offset:{c*1024}")
    e("s_waitcnt vmcnt(0)")
    k.vm = []
    e("v_lshlrev_b32 v126, 16, v126")
    for i in range(14): unpack(k, f"v{170+2*i}", f"v{171+2*i}", f"v{112+i}")
    k.srd(16, 14, 15, WOF_BYTES, WS_WOF)
    e("s_and_b32 s43, s41, 1"); e("s_lshl_b32 s43, s43, 2"); e("s_add_u32 s45, s36, s43")
    e("s_xor_b32 s43, s33, 3"); e("s_lshl_b32 s46, s43, 4"); e("s_sub_i32 s46, s46, 22"); e("s_max_i32 s46, s46, 0")
    e("s_cmp_eq_u32 s43, 1"); e("s_cselect_b32 s47, 10, 16"); e("s_cmp_eq_u32 s43, 0"); e("s_cselect_b32 s47, 0, s47")
    e("s_lshl_b32 s46, s46, 10"); e("s_mul_i32 s48, s45, 138240"); e("s_add_u32 s48, s48, s46"); e(f"s_add_u32 s46, s46, {IMG}")
    e("s_waitcnt lgkmcnt(0)")
    e("s_cmp_eq_u32 s47, 0"); e("s_cbranch_scc1 m_gwodone")
    k.label("m_gwoloop")
    e("s_mov_b32 m0, s46"); e("s_add_u32 s46, s46, 2048")
    e("buffer_load_dwordx4 v244, s[16:19], s48 offen sc1 lds"); e("buffer_load_dwordx4 v244, s[16:19], s48 offen offset:1024 sc1 lds")
    e("s_add_u32 s48, s48, 2048"); e("s_sub_u32 s47, s47, 2"); e("s_cmp_lg_u32 s47, 0"); e("s_cbranch_scc1 m_gwoloop")
    k.label("m_gwodone")
    if "tailp" in EXP: k.stamp(5)
    A = [c*16 + 2*p for c in range(7) for p in range(2)]
    for i in range(14): e(f"v_pk_add_f32 {pr(A[i])}, {pr(A[i])}, {pr(T+2*i)}")
    for i in range(14): e(f"v_cvt_pk_bf16_f32 v{T+i}, v{A[i]}, v{A[i]+1}")
    for i in range(14): unpack(k, f"v{A[i]}", f"v{A[i]+1}", f"v{T+i}")
    for i in range(14): e(f"v_pk_add_f32 {pr(A[i])}, {pr(A[i])}, v[126:127] op_sel_hi:[1,0]")
    for i in range(14): e(f"v_cvt_pk_bf16_f32 v{T+i}, v{A[i]}, v{A[i]+1}")
    for i in range(14): unpack(k, f"v{A[i]}", f"v{A[i]+1}", f"v{T+i}")
    for i in range(14): e(f"v_pk_mul_f32 {pr(A[i])}, {pr(A[i])}, {pr(170+2*i)}")
    for i in range(14): e(f"v_cvt_pk_bf16_f32 v{200+i}, v{A[i]}, v{A[i]+1}")
    e("s_bitcmp1_b32 s37, 0"); e("s_cbranch_scc1 m_hodd")
    for c in (0, 2, 4): e(f"buffer_store_dwordx4 {v(200+2*c,4)}, v244, s[28:31], s{52+c} offen sc1")
    e(f"buffer_store_dwordx2 {v(212,2)}, v244, s[28:31], s58 offen sc1")
    e("s_branch m_hdone")
    k.label("m_hodd")
    e(f"buffer_store_dwordx2 {v(200,2)}, v244, s[28:31], s52 offen sc1")
    for c in (1, 3): e(f"buffer_store_dwordx4 {v(200+2*c,4)}, v244, s[28:31], s{52+c} offen sc1")
    e("s_cmp_eq_u32 s36, 3"); e("s_cbranch_scc1 m_hodd6")
    e(f"buffer_store_dwordx4 {v(210,4)}, v244, s[28:31], s57 offen sc1")
    e("s_branch m_hdone")
    k.label("m_hodd6")
    e(f"buffer_store_dwordx2 {v(210,2)}, v244, s[28:31], s57 offen sc1")
    k.label("m_hdone")
    if "tailp" in EXP: k.stamp(6)
    e("v_mov_b32 v1, v245")
    e("s_and_b32 s43, s41, 1"); e("s_lshl_b32 s43, s43, 2"); e("s_add_u32 s36, s36, s43")
    e(f"v_mov_b32 v4, {W_PF + 4}"); e("v_mov_b32 v5, 1"); e("v_lshlrev_b32 v6, 7, v1"); e("v_mov_b32 v7, s3")
    e("s_lshl_b32 s44, s35, 10"); e("s_lshl_b32 s45, s36, 2"); e("s_add_u32 s44, s44, s45"); e(f"s_add_u32 s44, s44, {FH2}")
    e("s_mov_b64 exec, 1")
    e("s_waitcnt vmcnt(0)")
    e("ds_add_rtn_u32 v8, v4, v5")
    e("s_waitcnt lgkmcnt(0)")
    e("v_readfirstlane_b32 s43, v8")
    e("s_mov_b64 exec, 0xff")
    e("s_cmp_lg_u32 s43, 3"); e("s_cbranch_scc1 m_nopub")
    e("buffer_store_dword v7, v6, s[60:63], s44 offen sc1")
    k.label("m_nopub")
    e("s_mov_b64 exec, -1")
    e("s_setprio 0")
    e("v_and_b32 v2, 15, v1"); e("v_lshrrev_b32 v3, 4, v1")
    e("s_mov_b32 s47, 0"); e("s_mov_b32 s46, 0")

def gen_p3(k):
    e = k.e
    k.label("m_P3")
    k.stamp(10)
    e("s_lshr_b32 s34, s32, 2")
    e("v_lshlrev_b32 v15, 4, v1")
    k.srd(16, 14, 15, WOF_BYTES, WS_WOF)
    k.srd(20, 14, 15, ZF_BYTES, WS_HF)
    k.srd(24, 4, 5, 2048*1280)
    k.srd(28, 98, 99, 2048*1280)
    e("s_lshl_b32 s46, s46, 10"); e("s_mul_i32 s48, s36, 138240"); e("s_add_u32 s48, s48, s46"); e(f"s_add_u32 s46, s46, {IMG}")
    e("s_cmp_eq_u32 s47, 0"); e("s_cbranch_scc1 m_wodone")
    k.label("m_woloop")
    e("s_mov_b32 m0, s46"); e("s_add_u32 s46, s46, 1024")
    e("buffer_load_dwordx4 v15, s[16:19], s48 offen sc1 lds")
    e("s_add_u32 s48, s48, 1024"); e("s_sub_u32 s47, s47, 1"); e("s_cmp_lg_u32 s47, 0"); e("s_cbranch_scc1 m_woloop")
    k.label("m_wodone")
    def H(g, sg): return v(16 + (g*2 + sg)*4, 4)
    def WF(g, db): return v(72 + (g*5 + db)*4, 4)
    def acc(sg, db): return v(212 + (sg*5 + db)*4, 4)
    e("s_cmp_eq_u32 s33, 3"); e(f"s_cselect_b32 s45, {HUGE}, 6144")
    e("s_and_b32 s43, s33, 1"); e("s_lshl_b32 s44, s34, 1"); e("s_add_u32 s57, s43, s44")
    e("s_lshr_b32 s58, s33, 1"); e("s_mul_i32 s58, s58, 3")
    e("s_lshr_b32 s43, s57, 1"); e("s_lshl_b32 s43, s43, 5"); e("s_and_b32 s44, s57, 1"); e("s_lshl_b32 s44, s44, 2"); e("s_add_u32 s59, s43, s44")
    e("s_lshl_b32 s43, s35, 6"); e("s_add_u32 s43, s43, s59")
    e("v_lshrrev_b32 v6, 2, v2"); e("v_and_b32 v7, 3, v2"); e("v_lshl_add_u32 v6, v6, 3, v7"); e("v_add_u32 v6, s43, v6")
    e("v_mul_u32_u24 v6, 1280, v6"); e("v_lshl_add_u32 v6, v3, 3, v6"); e("s_mul_i32 s43, s36, 160"); e("v_add_u32 v14, s43, v6")
    for i in range(3):
        e(f"s_add_u32 s43, s58, {i}"); e(f"s_min_u32 s{68+i}, s43, 4")
        e(f"s_lshl_b32 s{72+i}, s{68+i}, 5")
    k.srd(64, 14, 15, XT_BYTES, WS_YT)
    e("s_lshl_b32 s43, s35, 2"); e("s_lshl_b32 s44, s34, 1"); e("s_add_u32 s43, s43, s44"); e("s_mul_i32 s43, s43, 27"); e("s_mul_i32 s44, s33, 7"); e("s_add_u32 s43, s43, s44")
    e("s_lshl_b32 s46, s43, 10"); e("s_add_u32 s47, s46, 27648")
    e("s_add_u32 s48, s46, 4096"); e("s_add_u32 s49, s47, 4096"); e("s_add_u32 s50, s46, s45"); e("s_add_u32 s51, s47, s45")
    e("s_mul_i32 s43, s33, 35840"); e(f"s_add_u32 s43, s43, {IMG}"); e("v_add_u32 v252, s43, v15")
    e("s_cmp_eq_u32 s33, 3"); e("s_cselect_b32 s43, 5120, 0"); e("v_subrev_u32 v253, s43, v252")
    e("v_and_b32 v4, 7, v1"); e("v_lshlrev_b32 v4, 2, v4")
    e("s_lshl_b32 s44, s35, 10"); e("s_lshl_b32 s43, s36, 7"); e("s_add_u32 s44, s44, s43"); e(f"s_add_u32 s44, s44, {FH2}")
    e("v_min_u32 v254, 39, v1"); e("v_lshlrev_b32 v254, 3, v254")
    e("s_mul_i32 s52, s36, 320"); e(f"s_add_u32 s52, s52, {FY}")
    e("s_cmp_ge_u32 s32, 4"); e("s_cbranch_scc1 m_nwv")
    e("s_waitcnt vmcnt(0)")
    k.label("m_nwv")
    e("s_barrier")
    k.stamp(4)
    e("s_cmp_lg_u32 s32, 3"); e("s_cbranch_scc1 m_nhp")
    e("buffer_load_dword v5, v4, s[60:63], s44 offen sc1")
    k.label("m_nhp")
    e("s_cmp_lg_u32 s32, 2"); e("s_cbranch_scc1 m_nyp")
    e("buffer_load_dwordx2 v[248:249], v254, s[60:63], s52 offen sc1")
    k.label("m_nyp")
    for g in range(7):
        for db in range(5): e(f"ds_read_b128 {WF(g,db)}, v{253 if g == 6 else 252} offset:{g*5120 + db*1024}")
    for i in range(3): e(f"buffer_load_dwordx2 {v(8+2*i,2)}, v14, s[24:27], s{72+i} offen")
    e("v_lshrrev_b32 v244, 3, v1"); e("v_lshlrev_b32 v244, 12, v244"); e("v_and_b32 v245, 7, v1"); e("v_lshl_add_u32 v244, v245, 4, v244")
    e("s_mul_i32 s53, s36, 80"); e("s_lshl_b32 s43, s32, 3"); e("s_add_u32 s53, s53, s43"); e("s_lshl_b32 s53, s53, 12"); e("s_lshl_b32 s43, s35, 7"); e("s_add_u32 s53, s53, s43")
    e("s_cmp_lt_u32 s32, 2"); e(f"s_cselect_b32 s54, {64*4096}, 0"); e("s_cselect_b32 s55, 8192, 0"); e("s_add_u32 s54, s54, s53")
    e("s_lshl_b32 s43, s32, 10"); e(f"s_add_u32 s43, s43, {YTILE}"); e("v_add_u32 v246, s43, v15"); e("v_add_u32 v247, s55, v246")
    e("s_cmp_lg_u32 s32, 3"); e("s_cbranch_scc1 m_hw")
    poll_flags(k, "m_pollh", "v4", FLS, 1, 5, "v6", soff="s44", sleep=2, preloaded=True)
    k.label("m_hw")
    e("s_cmp_lg_u32 s32, 2"); e("s_cbranch_scc1 m_noy")
    poll_flags(k, "m_polly", "v254", FLS, 2, 248, "v5", soff="s52", sleep=8, preloaded=True)
    k.label("m_noy")
    e("s_waitcnt lgkmcnt(0)")
    e("s_barrier")
    k.stamp(11)
    k.vm = []
    k.vmem("buffer_load_dwordx4 v[236:239], v244, s[64:67], s53 offen sc1", "y")
    k.vmem("buffer_load_dwordx4 v[240:243], v244, s[64:67], s54 offen sc1", "y")
    for g in range(7):
        for sg in range(2):
            so = 46 + sg + (0 if g < 4 else 2 if g < 6 else 4)
            k.vmem(f"buffer_load_dwordx4 {H(g,sg)}, v15, s[20:23], s{so} offen offset:{(g%4)*1024 if g < 6 else 0} sc1", f"h{g}")
    e("s_mul_i32 s43, s32, 10240"); e("v_add_u32 v252, s43, v15")
    e("s_mul_i32 s43, s34, 40960"); e("s_and_b32 s44, s33, 1"); e("s_mul_i32 s44, s44, 5120"); e("s_add_u32 s43, s43, s44")
    e("v_bfe_u32 v4, v1, 2, 2"); e("v_lshl_add_u32 v4, v3, 2, v4"); e("v_lshlrev_b32 v4, 7, v4")
    e("v_and_b32 v5, 3, v1"); e("v_lshl_add_u32 v4, v5, 4, v4")
    e("s_lshl_b32 s44, s59, 1"); e(f"s_add_u32 s44, s44, {YTILE}"); e("v_add_u32 v4, s44, v4")
    for i in range(3):
        e(f"s_lshl_b32 s44, s{68+i}, 10"); e("s_add_u32 s44, s44, s43"); e(f"v_add_u32 v{253+i}, s44, v15")
        e(f"s_lshl_b32 s44, s{68+i}, 11"); e(f"v_add_u32 v{5+i}, s44, v4")
    for g in range(7):
        k.wait_vm(f"h{g}")
        if g == 0 and "tailp" in EXP: k.stamp(7)
        if g == 6 and "tailp" in EXP: k.stamp(8)
        if g == 0: e("ds_write_b128 v246, v[236:239]"); e("ds_write_b128 v247, v[240:243]"); e("s_waitcnt lgkmcnt(0)")
        for db in range(5):
            for sg in range(2):
                e(f"{MFMA} {acc(sg,db)}, {WF(g,db)}, {H(g,sg)}, {'0' if g == 0 else acc(sg,db)}")
    e("s_nop 2")
    e("s_nop 1")
    for db in range(5):
        for sg in range(2): e(f"ds_write_b128 v252, {acc(sg,db)} offset:{(sg*5+db)*1024}")
    for i in range(6): unpack(k, f"v{96+2*i}", f"v{97+2*i}", f"v{8+i}")
    e("s_waitcnt lgkmcnt(0)")
    if "tailp" in EXP: k.stamp(12)
    e("s_barrier")
    if "tailp" in EXP: k.stamp(13)
    for i in range(3): e(f"ds_read_b64_tr_b16 {v(24+2*i,2)}, v{5+i}")
    for i in range(3):
        for kq in range(4): e(f"ds_read_b128 {v(32+(i*4+kq)*4,4)}, v{253+i} offset:{kq*10240}")
    e("s_waitcnt lgkmcnt(12)")
    for n in range(6): unpack(k, f"v{112+2*n}", f"v{113+2*n}", f"v{24+n}")
    for n in range(6): e(f"v_pk_add_f32 {pr(96+2*n)}, {pr(96+2*n)}, {pr(112+2*n)}")
    for n in range(6): e(f"v_cvt_pk_bf16_f32 v{8+n}, v{96+2*n}, v{97+2*n}")
    for n in range(6): unpack(k, f"v{96+2*n}", f"v{97+2*n}", f"v{8+n}")
    e("s_waitcnt lgkmcnt(0)")
    A = [32 + i*16 + 2*p for i in range(3) for p in range(2)]
    for n in range(6): e(f"v_pk_add_f32 {pr(A[n])}, {pr(A[n])}, {pr(A[n]+4)}"); e(f"v_pk_add_f32 {pr(A[n]+8)}, {pr(A[n]+8)}, {pr(A[n]+12)}")
    for n in range(6): e(f"v_pk_add_f32 {pr(A[n])}, {pr(A[n])}, {pr(A[n]+8)}")
    for n in range(6): e(f"v_cvt_pk_bf16_f32 v{24+n}, v{A[n]}, v{A[n]+1}")
    for n in range(6): unpack(k, f"v{A[n]}", f"v{A[n]+1}", f"v{24+n}")
    for n in range(6): e(f"v_pk_add_f32 {pr(A[n])}, {pr(A[n])}, {pr(96+2*n)}")
    for n in range(6): e(f"v_cvt_pk_bf16_f32 v{24+n}, v{A[n]}, v{A[n]+1}")
    for i in range(3): e(f"buffer_store_dwordx2 {v(24+2*i,2)}, v14, s[28:31], s{72+i} offen")
    k.end(0)

def gen_helper(k, epoch_poll):
    e = k.e
    k.label("m_helper")
    e("s_lshl_b32 s35, s41, 2"); e("s_add_u32 s35, s35, s42"); e("s_sub_u32 s35, s35, 28")
    e("v_and_b32 v2, 15, v1"); e("v_lshrrev_b32 v3, 4, v1")
    e("s_lshl_b32 s43, s32, 3")
    e("v_add_u32 v4, s43, v3")
    e("s_lshl_b32 s44, s35, 6")
    e("v_add_u32 v5, s44, v4"); e("v_mul_u32_u24 v5, 1280, v5"); e("v_lshl_add_u32 v5, v2, 4, v5")
    e("v_add_u32 v6, 5120, v5")
    e("v_mul_u32_u24 v7, 1296, v4"); e("v_lshl_add_u32 v7, v2, 4, v7")
    e("v_mov_b32 v110, 0")
    e(f"v_lshlrev_b32 v4, 2, v2"); e(f"v_add_u32 v4, {W_EPOCH}, v4")
    e("s_cmp_lg_u32 s32, 4"); e("s_cbranch_scc1 m_hnoclr")
    e("ds_write_b32 v4, v110")
    k.label("m_hnoclr")
    e("s_waitcnt lgkmcnt(0)")
    k.srd(16, 4, 5, 2048*1280)
    k.srd(28, 14, 15, XT_BYTES, WS_XNT)
    k.srd(64, 12, 13, 256)
    k.srd(FLS, 14, 15, FL_BYTES, WS_FL)
    k.srd(20, 96, 97, 864*1280)
    k.srd(24, 14, 15, WOF_BYTES, WS_WOF)
    k.vm = []
    for g in range(2):
        for n in range(5):
            k.vmem(f"buffer_load_dwordx4 {v(8+g*20+n*4,4)}, v{5+g}, s[16:19], 0 offen offset:{n*256}", f"x{g}")
    e("s_lshl_b32 s36, s35, 3"); e("s_add_u32 s36, s36, s32")
    e("v_lshrrev_b32 v111, 3, v1"); e("v_mul_u32_u24 v111, 1280, v111"); e("v_and_b32 v112, 7, v1"); e("v_lshl_add_u32 v111, v112, 4, v111")
    for it in range(2):
        e(f"s_add_u32 s43, s36, {256*it}"); e("s_mul_i32 s44, s43, 205"); e("s_lshr_b32 s44, s44, 11"); e("s_mul_i32 s45, s44, 10"); e("s_sub_u32 s45, s43, s45")
        e("s_mul_i32 s46, s44, 40960"); e("s_lshl_b32 s47, s45, 7"); e("s_add_u32 s46, s46, s47")
        for d in range(4):
            e(f"s_lshl_b32 s47, s45, 2"); e(f"s_add_u32 s47, s47, {d}"); e("s_mul_i32 s56, s47, 52"); e("s_lshr_b32 s56, s56, 8")
            e("s_mul_i32 s56, s56, 130"); e("s_add_u32 s47, s47, s56"); e("s_mul_i32 s56, s44, 5"); e("s_add_u32 s47, s47, s56"); e("s_lshl_b32 s47, s47, 10")
            e("s_cmp_lt_u32 s43, 270"); e(f"s_cselect_b32 s{48+it*4+d}, s47, {HUGE}")
        for n in range(4):
            k.vmem(f"buffer_load_dwordx4 {v(120+it*16+n*4,4)}, v111, s[20:23], s46 offen", "wo")
            e("s_add_u32 s46, s46, 10240")
    for g in range(2):
        k.stamp(1+2*g)
        k.wait_vm(f"x{g}")
        X = 48
        src = 8 + g*20
        for n in range(20): unpack(k, f"v{X+2*n}", f"v{X+2*n+1}", f"v{src+n}")
        e(f"v_pk_add_f32 v[88:89], {pr(X)}, {pr(X+4)}"); e(f"v_pk_add_f32 v[90:91], {pr(X+2)}, {pr(X+6)}")
        for n in range(4, 20): e(f"v_pk_add_f32 {pr(88+2*(n%2))}, {pr(88+2*(n%2))}, {pr(X+2*n)}")
        e("v_pk_add_f32 v[88:89], v[88:89], v[90:91]"); e("s_nop 0"); e("v_add_f32 v88, v88, v89")
        for sh in (8, 4, 2, 1):
            e("s_nop 1"); e(f"v_add_f32_dpp v88, v88, v88 row_ror:{sh} row_mask:0xf bank_mask:0xf")
        e(f"v_mul_f32 v88, {f32(1/640)}, v88")
        for a in range(4): e(f"v_mov_b32 v{92+a}, 0")
        for n0 in range(0, 20, 4):
            for a in range(4): e(f"v_pk_add_f32 {pr(96+2*a)}, {pr(X+2*(n0+a))}, v[88:89] op_sel_hi:[1,0] neg_lo:[0,1] neg_hi:[0,1]")
            for a in range(4): e(f"v_pk_fma_f32 {pr(92+2*(a%2))}, {pr(96+2*a)}, {pr(96+2*a)}, {pr(92+2*(a%2))}")
        e("v_pk_add_f32 v[92:93], v[92:93], v[94:95]"); e("s_nop 0"); e("v_add_f32 v92, v92, v93")
        for sh in (8, 4, 2, 1):
            e("s_nop 1"); e(f"v_add_f32_dpp v92, v92, v92 row_ror:{sh} row_mask:0xf bank_mask:0xf")
        e(f"v_mul_f32 v92, {f32(1/640)}, v92")
        ln_finish(k, "v88", "v92", "v89")
        for n in range(20): e(f"v_pk_add_f32 {pr(X+2*n)}, {pr(X+2*n)}, v[88:89] op_sel_hi:[1,0] neg_lo:[0,1] neg_hi:[0,1]")
        for n in range(20): e(f"v_cvt_pk_bf16_f32 v{src+n}, v{X+2*n}, v{X+2*n+1}")
        for n in range(20): unpack(k, f"v{X+2*n}", f"v{X+2*n+1}", f"v{src+n}")
        for n in range(20): e(f"v_pk_mul_f32 {pr(X+2*n)}, {pr(X+2*n)}, v[92:93] op_sel_hi:[1,0]")
        for n in range(20): e(f"v_cvt_pk_bf16_f32 v{src+n}, v{X+2*n}, v{X+2*n+1}")
        for n in range(5):
            e(f"ds_write_b128 v7, {v(src+4*n,4)} offset:{g*4*1296 + n*256}")
    e(f"v_mov_b32 v9, {W_EPOCH}"); e("v_mov_b32 v10, 0")
    e("s_cmp_lg_u32 s32, 4"); e("s_cbranch_scc1 m_hepdone")
    e("buffer_load_dword v11, v10, s[64:67], 0 offen sc1")
    epoch_poll("h")
    k.label("m_hepdone")
    e("s_waitcnt lgkmcnt(0)")
    e("s_barrier")
    k.stamp(4)
    e("ds_read_b32 v113, v9")
    e("v_bfe_u32 v4, v1, 2, 2"); e("v_lshl_add_u32 v4, v3, 3, v4"); e("v_mul_u32_u24 v4, 1296, v4")
    e("v_and_b32 v5, 3, v1"); e("v_lshl_add_u32 v4, v5, 3, v4")
    e("s_lshl_b32 s43, s32, 5"); e("v_add_u32 v4, s43, v4")
    e(f"v_add_u32 v5, {32*1296}, v4")
    for n in range(5):
        for th in range(2):
            for hh in range(2):
                e(f"ds_read_b64_tr_b16 {v(16+(n*2+th)*4+hh*2,2)}, v{4+th} offset:{hh*4*1296 + n*256}")
    e("s_mul_i32 s43, s32, 4608"); e("s_add_u32 s43, s43, 90112")
    e("v_mul_u32_u24 v5, 144, v2"); e("v_lshl_add_u32 v5, v3, 4, v5"); e("v_add_u32 v5, s43, v5")
    e("v_lshrrev_b32 v4, 3, v1"); e("v_lshlrev_b32 v6, 12, v4"); e("v_mul_u32_u24 v4, 144, v4"); e("v_and_b32 v7, 7, v1"); e("v_lshl_add_u32 v4, v7, 4, v4"); e("v_add_u32 v4, s43, v4")
    e("v_lshl_add_u32 v6, v7, 4, v6")
    e("s_lshl_b32 s46, s32, 16"); e("s_lshl_b32 s44, s35, 7"); e("s_add_u32 s46, s46, s44"); e("s_add_u32 s47, s46, 32768")
    e("s_waitcnt vmcnt(0) lgkmcnt(0)")
    e("v_readfirstlane_b32 s3, v113")
    for n in range(5):
        o = (n % 2) * 2304
        for th in range(2): e(f"ds_write_b128 v5, {v(16+(n*2+th)*4,4)} offset:{o + th*64}")
        for hf in range(2): e(f"ds_read_b128 {v(56+(n*2+hf)*4,4)}, v4 offset:{o + hf*8*144}")
    for n in range(5):
        e(f"s_waitcnt lgkmcnt({min(15, 4*(4-n))})")
        for hf in range(2):
            e(f"buffer_store_dwordx4 {v(56+(n*2+hf)*4,4)}, v6, s[28:31], s{46+hf} offen sc1")
        e(f"s_add_u32 s46, s46, {8*65536}"); e(f"s_add_u32 s47, s47, {8*65536}")
    e("v_bfe_u32 v5, v1, 2, 2"); e("v_lshl_add_u32 v5, v3, 2, v5"); e("v_mul_u32_u24 v5, 144, v5"); e("v_and_b32 v6, 3, v1"); e("v_lshl_add_u32 v5, v6, 3, v5"); e("v_add_u32 v5, s43, v5")
    e("v_lshlrev_b32 v6, 4, v1")
    for it in range(2):
        for n in range(4): e(f"ds_write_b128 v4, {v(120+it*16+n*4,4)} offset:{n*8*144}")
        for d in range(4):
            for hh in range(2): e(f"ds_read_b64_tr_b16 {v(160+it*16+d*4+hh*2,2)}, v5 offset:{hh*16*144 + d*32}")
    k.stamp(5)
    e("s_waitcnt lgkmcnt(0)")
    for it in range(2):
        for d in range(4):
            e(f"buffer_store_dwordx4 {v(160+it*16+d*4,4)}, v6, s[24:27], s{48+it*4+d} offen sc1")
    e("s_load_dwordx8 s[64:71], s[0:1], 8")
    e("s_load_dwordx4 s[72:75], s[0:1], 40")
    e("s_cmp_ge_u32 s32, 4"); e("s_cbranch_scc1 m_hG")
    conv_params(k)
    e("s_waitcnt vmcnt(0)")
    e("s_barrier")
    e("s_branch m_Lpost")
    k.label("m_hG")
    e("s_waitcnt vmcnt(0) lgkmcnt(0)")
    e("s_barrier")
    e(f"v_mov_b32 v4, {W_PF + 8}"); e("v_mov_b32 v5, 4"); e("ds_write_b32 v4, v5")
    e("s_cmp_lg_u32 s32, 4"); e("s_cbranch_scc1 m_P2")
    e("s_lshl_b32 s45, s35, 2"); e(f"s_add_u32 s45, s45, {FX}")
    set_flag(k, FLS, "s45", 0, "v7", "v8")
    e("s_branch m_P2")

if __name__ == "__main__":
    import sys
    NAME = "parallel_sum__ssm_conv_s4d__mixer_gmlp__prompt"
    path = sys.argv[1] if len(sys.argv) > 1 else f"cdna_kernels/{NAME}.s"
    t, kd = gen_mega(NAME + "_kernel")
    hdr = open(f"cdna_kernels/{NAME}.s.ref").read().split("; Override launch")[0]
    lst = os.environ.get("LIST", "0") == "1"
    out = hdr + (f"; @launch kernel={NAME}_kernel grid=(256,1,1) block=(512,1,1) lds={LDS_TOTAL}\n" if lst else f"; @launch grid=(256,1,1) block=(512,1,1) lds={LDS_TOTAL}\n")
    out += '.amdgcn_target "amdgcn-amd-amdhsa--gfx950"\n.text\n' + t + '\ntext_end:\n.section .rodata,"a"\n.p2align 6\n' + kd + "\n"
    open(path, "w").write(out)
```

```python
from asmlib import *
import os
import numpy as np
MB = 1 << 20
WS_XNT, WS_Z2F, WS_Z1F, WS_HF, WS_YT, WS_ST2, WS_WOF, WS_FL = 0, 4*MB, 8*MB, 12*MB, 16*MB, 20*MB, 22*MB, 24*MB
ZF_BYTES = 54 * 65536
XT_BYTES = 640 * 4096
ST2_BYTES = 64 * 14 * 512
WOF_BYTES = 40 * 27 * 1024
FZ, FX, FK, FY, FH = 0, 4096, 5120, 6144, 10240
FL_BYTES = 262144
FZ2 = 65536
FH2 = 16384
HUGE = 0x40000000
GC0 = -2.0 * 0.7978845608028654 * 1.4426950408889634
GC1 = GC0 * 0.044715
MFMA = "v_mfma_f32_16x16x32_bf16"
LOG2E = 1.4426950408889634
L_HI = float(np.float32(LOG2E)); L_LO = LOG2E - L_HI
EXP = os.environ.get("EXP", "")
LDS_TOTAL = 163840
RING2 = 24576
CONV0 = 98304; CONV_B = 14592
YTILE = CONV0 + 3 * CONV_B
MISC = 161152
W_EPOCH, W_PF, W_GL, W_R1, W_R2 = MISC + 2560, MISC + 2564, MISC + 2576, MISC + 2592, MISC + 2608
W_FX = MISC + 2624
SPIN = 0x100000

def exp_precise(k, dst, x, t0, t1):
    e = k.e
    e(f"v_mul_f32 {t0}, {f32(L_HI)}, {x}")
    e(f"v_mov_b32 {t1}, {f32(L_HI)}")
    e(f"v_fma_f32 {t1}, {x}, {t1}, -{t0}")
    e(f"v_fmac_f32 {t1}, {f32(L_LO)}, {x}")
    e(f"v_exp_f32 {t0}, {t0}")
    e(f"v_mul_f32 {t1}, {f32(0.6931471805599453)}, {t1}")
    e(f"v_fma_f32 {dst}, {t0}, {t1}, {t0}")

def ln_finish(k, mean, var, t):
    k.e(f"v_max_f32 {var}, 0, {var}")
    k.e(f"v_cvt_pk_bf16_f32 {t}, {mean}, {var}")
    k.e(f"v_lshlrev_b32 {mean}, 16, {t}")
    k.e(f"v_and_b32 {var}, 0xffff0000, {t}")
    k.e(f"v_add_f32 {var}, {f32(1e-5)}, {var}")
    k.e(f"v_cvt_pk_bf16_f32 {t}, {var}, {var}")
    k.e(f"v_and_b32 {var}, 0xffff0000, {t}")
    k.e(f"v_sqrt_f32 {var}, {var}")
    k.e("s_nop 0")
    k.e(f"v_cvt_pk_bf16_f32 {t}, {var}, {var}")
    k.e(f"v_and_b32 {var}, 0xffff0000, {t}")
    k.e(f"v_rcp_f32 {var}, {var}")
    k.e("s_nop 0")

def unpack(k, lo, hi, src):
    k.e(f"v_lshlrev_b32 {lo}, 16, {src}"); k.e(f"v_and_b32 {hi}, 0xffff0000, {src}")
def pr(r): return f"v[{r}:{r+1}]"

def poll_flags(k, name, voff, srd, ndw, dst, tmp, soff="0", imm=0, sleep=0, preloaded=False):
    e = k.e
    e("s_mov_b32 s40, 0")
    if preloaded: e(f"s_branch {name}_pre")
    elif sleep: e(f"s_branch {name}_1st")
    k.label(name)
    if sleep:
        e(f"s_sleep {sleep}"); k.label(name + "_1st")
    sfx = {1: "dword", 2: "dwordx2", 4: "dwordx4"}[ndw]
    e(f"buffer_load_{sfx} {v(dst, ndw)}, {voff}, s[{srd}:{srd+3}], {soff} offen offset:{imm} sc1")
    e("s_add_u32 s40, s40, 1")
    if preloaded: k.label(name + "_pre")
    e("s_waitcnt vmcnt(0)")
    e(f"v_xor_b32 {tmp}, s3, v{dst}")
    for i in range(1, ndw):
        e(f"v_xor_b32 v{dst+i}, s3, v{dst+i}"); e(f"v_or_b32 {tmp}, {tmp}, v{dst+i}")
    e(f"v_cmp_ne_u32 vcc, 0, {tmp}")
    e(f"s_cmp_ge_u32 s40, {SPIN}")
    e(f"s_cbranch_scc1 {name}_ok")
    e(f"s_cbranch_vccnz {name}")
    k.label(name + "_ok")
    k.vm = []

def set_flag(k, srd, soff, imm, va, vb):
    e = k.e
    e(f"v_mov_b32 {va}, 0"); e(f"v_mov_b32 {vb}, s3")
    e("s_waitcnt vmcnt(0)")
    e("s_mov_b64 exec, 1")
    e(f"buffer_store_dword {vb}, {va}, s[{srd}:{srd+3}], {soff} offen offset:{imm} sc1")
    e("s_mov_b64 exec, -1")
    k.vm = [None]

def lds_wait(k, name, vaddr, vt, sleep=0):
    e = k.e
    e("s_mov_b32 s40, 0")
    k.label(name)
    if sleep: e(f"s_sleep {sleep}")
    e(f"ds_read_b32 {vt}, {vaddr}")
    e("s_add_u32 s40, s40, 1")
    e("s_waitcnt lgkmcnt(0)")
    e(f"v_readfirstlane_b32 s43, {vt}")
    e(f"s_cmp_ge_u32 s40, {SPIN*8}")
    e(f"s_cbranch_scc1 {name}_ok")
    e("s_cmp_eq_u32 s43, 0")
    e(f"s_cbranch_scc1 {name}")
    k.label(name + "_ok")
    k.lg = []

def lds_wait_ge(k, name, vaddr, vt, ndw, val, sleep=0, preloaded=False):
    e = k.e
    e("s_mov_b32 s75, 0")
    if preloaded: e(f"s_branch {name}_chk")
    k.label(name)
    if sleep: e(f"s_sleep {sleep}")
    e(f"ds_read_b{32*ndw} {v(vt, ndw)}, {vaddr}")
    e("s_add_u32 s75, s75, 1")
    e("s_waitcnt lgkmcnt(0)")
    e(f"s_cmp_ge_u32 s75, {SPIN*8}")
    e(f"s_cbranch_scc1 {name}_ok")
    k.label(name + "_chk")
    if ndw == 4: e(f"v_min_u32 v{vt}, v{vt}, v{vt+2}"); e(f"v_min_u32 v{vt+1}, v{vt+1}, v{vt+3}")
    if ndw >= 2: e(f"v_min_u32 v{vt}, v{vt}, v{vt+1}"); e("s_nop 0")
    e(f"v_readfirstlane_b32 s43, v{vt}")
    e(f"s_cmp_lt_u32 s43, {val}")
    e(f"s_cbranch_scc1 {name}")
    k.label(name + "_ok")
    k.lg = []

KG_PITCH = 272
KGW, KGR = 'v8', 'v9'
KG_HOLD = 168
def kgen_dt(k, dtv):
    e = k.e
    e(f"v_lshlrev_b32 {dtv}, 16, {dtv}")
    exp_precise(k, dtv, dtv, "v4", "v5")
    e(f"v_cvt_pk_bf16_f32 {dtv}, {dtv}, {dtv}"); e(f"v_and_b32 {dtv}, 0xffff0000, {dtv}")

def kgen_chains(k, par, dtv, hf, hold):
    e = k.e
    names = {}; nxt = [24]; held = []
    def pair(n):
        if n not in names:
            names[n] = nxt[0]; nxt[0] += 2; assert nxt[0] <= 136
        return names[n]
    def P(n): r = pair(n); return f"v[{r}:{r+1}]"
    urow = {"U0":0,"U1":1,"U2":2,"U3":3,"U4":4,"U5":5,"U6":6,"U7":7,"R256":8,"R258":9,"R260":10,"R262":11,"R512":12,"R516":13,"R768":14,"R772":15,
            "R1024":16,"R1280":17,"R1536":18,"R1792":19,"R2048":20}
    tmp = [0]
    def out(n, row, neg):
        r = pair(n)
        t = (KG_HOLD + tmp[0]) if hold else (152 + tmp[0] % 12)
        tmp[0] += 1
        e(f"v_cvt_pk_bf16_f32 v{t}, v{r}, {'-' if neg else ''}v{r+1}")
        held.append((t, row))
        return None if hold else f"ds_write_b32 {KGW}, v{t} offset:{row*KG_PITCH}"
    def level(ops):
        for d, a, b in ops: e(f"v_pk_mul_f32 {P('t_'+str(ops.index((d,a,b))))}, {P(a)}, {P(b)} op_sel:[0,0] op_sel_hi:[1,0]")
        for d, a, b in ops: e(f"v_pk_fma_f32 {P(d)}, {P(a)}, {P(b)}, {P('t_'+str(ops.index((d,a,b))))} op_sel:[1,1,0] op_sel_hi:[0,1,1] neg_lo:[0,1,0]")
    def unp(dst, src): e(f"v_lshlrev_b32 {dst}, 16, {src}" if hf == 0 else f"v_and_b32 {dst}, 0xffff0000, {src}")
    unp("v6", f"v{par}")
    exp_precise(k, "v6", "v6", "v4", "v5")
    e("v_cvt_pk_bf16_f32 v6, v6, v6"); e("v_and_b32 v6, 0xffff0000, v6")
    e(f"v_mul_f32 v6, v6, {dtv}"); e(f"v_mul_f32 v6, {f32(-LOG2E)}, v6")
    unp("v7", f"v{par+1}"); e(f"v_mul_f32 v7, v7, {dtv}"); e("v_mul_f32 v7, 0.15915494, v7")
    u0 = pair("U0")
    unp(f"v{u0}", f"v{par+2}"); unp(f"v{u0+1}", f"v{par+3}")
    e(f"v_mul_f32 v{u0}, v{u0}, {dtv}"); e(f"v_mul_f32 v{u0+1}, v{u0+1}, {dtv}")
    e(f"v_add_f32 v{u0}, v{u0}, v{u0}"); e(f"v_add_f32 v{u0+1}, v{u0+1}, v{u0+1}")
    seqs = []
    for n, (nm, pw) in enumerate((("Z1", 1.0), ("W1", 8.0), ("Z256", 256.0))):
        r = pair(nm); a, b = 152 + 2*n, 153 + 2*n
        seqs.append([f"v_mul_f32 v{a}, {f32(pw)}, v6", f"v_mul_f32 v{b}, {f32(pw)}, v7", f"v_exp_f32 v{a}, v{a}", f"v_fract_f32 v{b}, v{b}",
                     f"v_cos_f32 v{r}, v{b}", f"v_sin_f32 v{r+1}, v{b}", f"v_mul_f32 v{r}, v{r}, v{a}", f"v_mul_f32 v{r+1}, v{r+1}, v{a}"])
    k.batch(seqs)
    def emit_out(lst):
        ws = [out(n, row, neg) for n, row, neg in lst]
        for w in ws:
            if w: e(w)
    emit_out([("U0", 0, True), ("W1", 22, False)])
    levels = [
        [("U1","U0","Z1"), ("Z2","Z1","Z1"), ("W2","W1","W1"), ("Z512","Z256","Z256"), ("R256","U0","Z256")],
        [("U2","U0","Z2"), ("U3","U1","Z2"), ("Z4","Z2","Z2"), ("W3","W2","W1"), ("Y4","W2","W2"), ("R512","U0","Z512")],
        [("U4","U0","Z4"), ("U5","U1","Z4"), ("U6","U2","Z4"), ("U7","U3","Z4"), ("R258","U2","Z256"), ("R768","R512","Z256"), ("R1024","R512","Z512"),
         ("W1","W1","Y4"), ("W2","W2","Y4"), ("W3","W3","Y4"), ("W4","Y4","Y4")],
        [("R260","U4","Z256"), ("R262","U6","Z256"), ("R516","U4","Z512"), ("R1280","R768","Z512"), ("R1536","R1024","Z512"),
         ("W1","W1","Y4"), ("W2","W2","Y4"), ("W3","W3","Y4"), ("W4","W4","Y4")],
        [("R772","R516","Z256"), ("R1792","R1280","Z512"), ("R2048","R1536","Z512"),
         ("W1","W1","Y4"), ("W2","W2","Y4"), ("W3","W3","Y4"), ("W4","W4","Y4")],
    ] + [[("W1","W1","Y4"), ("W2","W2","Y4"), ("W3","W3","Y4"), ("W4","W4","Y4")]] * 3 + [[("W1","W1","Y4"), ("W2","W2","Y4"), ("W3","W3","Y4")]]
    vidx = {"W1": 1, "W2": -2, "W3": -1, "W4": 4}
    for lv in levels:
        level(lv)
        lst = []
        for d, a, b in lv:
            if d in urow: lst.append((d, urow[d], True))
            elif d == "Y4": lst.append((d, 21 + 4, False))
            elif d in vidx:
                vidx[d] += 4; lst.append((d, 21 + vidx[d], False))
        emit_out(lst)
    return held

def kgen_mm(k, first, toff=0, F0=104):
    e = k.e
    for half in range(2):
        for st in range(2):
            for f, row in enumerate((0, 16, 21, 37)):
                e(f"ds_read_b128 {v(F0+st*16+f*4,4)}, {KGR} offset:{toff + row*KG_PITCH + (half*2+st)*64}")
        for st in range(2):
            e(f"s_waitcnt lgkmcnt({4 if st == 0 else 0})")
            F = F0 + st*16
            z = first and half == 0 and st == 0
            for bb in range(2):
                e(f"{MFMA} {v(136+4*bb,4)}, {v(F,4)}, {v(F+8+4*bb,4)}, {'0' if z else v(136+4*bb,4)}")
                e(f"{MFMA} {v(144+4*bb,4)}, {v(F+8+4*bb,4)}, {v(F+4,4)}, {'0' if z else v(144+4*bb,4)}")

def kgen_addr(k, tab_s, lane_i, lane_q, lane):
    e = k.e
    e(f"v_lshl_add_u32 {KGW}, {lane}, 2, {tab_s}")
    e(f"v_mul_u32_u24 {KGR}, {KG_PITCH}, {lane_i}"); e(f"v_lshl_add_u32 {KGR}, {lane_q}, 4, {KGR}"); e(f"v_add_u32 {KGR}, {tab_s}, {KGR}")
    e("v_mov_b32 v4, 0x00003f80")
    e(f"ds_write_b32 {KGW}, v4 offset:{21*KG_PITCH}")

def kgen_loop(k, par, dtv, npass_s):
    e = k.e
    for i in range(136, 152): e(f"v_mov_b32 v{i}, 0")
    lab = k.newlabel("kg"); k.label(lab)
    kgen_chains(k, par, dtv, 0, False)
    for a in range(4): e(f"v_lshrrev_b32 v{par+a}, 16, v{par+a}")
    kgen_mm(k, False, 0)
    e(f"s_sub_u32 {npass_s}, {npass_s}, 1"); e(f"s_cmp_lg_u32 {npass_s}, 0"); e(f"s_cbranch_scc1 {lab}")

def compact_to_lds(k, kc_s):
    e = k.e
    e("v_max_u32 v4, 1, v3"); e("v_sub_u32 v4, 5, v4")
    e("v_lshlrev_b32 v5, v4, v2")
    e("v_lshlrev_b32 v6, 3, v3")
    e("v_mov_b32 v7, 512"); e("v_cmp_eq_u32 vcc, 2, v3"); e("s_nop 1"); e("v_cndmask_b32 v6, v6, v7, vcc")
    e("v_mov_b32 v7, 768"); e("v_mov_b32 v8, 4"); e("v_mov_b32 v9, 128"); e("v_cmp_eq_u32 vcc, 3, v3"); e("s_nop 1")
    e("v_cndmask_b32 v6, v6, v7, vcc"); e("v_cndmask_b32 v8, v8, v9, vcc")
    e(f"v_add3_u32 v5, v5, v6, {kc_s}")
    e("v_lshlrev_b32 v6, v4, 16"); e("v_add_u32 v6, v5, v6")
    e("v_add_u32 v7, v5, v8"); e("v_add_u32 v8, v6, v8")
    for n in range(8): e(f"v_cvt_pk_bf16_f32 v{24+n}, v{136+2*n}, v{137+2*n}")
    e("ds_write_b32 v5, v24"); e("ds_write_b32 v7, v25"); e("ds_write_b32 v6, v26"); e("ds_write_b32 v8, v27")
    e("v_lshlrev_b32 v9, 6, v2"); e("v_lshl_add_u32 v9, v3, 3, v9"); e(f"v_add_u32 v9, {kc_s}, v9")
    e("v_cmp_gt_u32 vcc, 5, v2"); e("s_and_saveexec_b64 s[46:47], vcc")
    e("ds_write_b64 v9, v[28:29] offset:1024"); e("ds_write_b64 v9, v[30:31] offset:1056")
    e("s_mov_b64 exec, -1")
```

```python
from mega_common import *
FLS = 60
RING2 = 16384
CONV0 = 65536
CONV_B = 15360
YTILE = 81920
IMG = 22528
NSLOT = 2
ROTM = int(os.environ.get('ROTM', '0'))
WS_KC = 26*MB
KC_BYTES = 640 * 1536

def conv_params(k):
    e = k.e
    e("s_lshl_b32 s34, s2, 1"); e("s_add_u32 s34, s34, s32")
    e("s_lshl_b32 s56, s41, 4"); e("s_lshr_b32 s57, s42, 1"); e("s_add_u32 s56, s56, s57"); e("s_add_u32 s56, s56, 512")
    e("s_bitcmp1_b32 s42, 0"); e("s_cselect_b32 s56, s56, 1000")
    e("s_cmp_eq_u32 s32, 2"); e("s_cselect_b32 s34, s56, s34")
    e("s_cmp_eq_u32 s32, 3"); e("s_cselect_b32 s34, 1000, s34")
    e("s_lshl_b32 s56, s34, 8"); e("s_lshl_b32 s57, s34, 1")
    e("v_lshlrev_b32 v4, 2, v1"); e("v_mov_b32 v5, 0")
    e("s_waitcnt lgkmcnt(0)")
    for a in range(4):
        k.srd(28, 64+2*a, 65+2*a, 640*256)
        e(f"buffer_load_dword v{164+a}, v4, s[28:31], s56 offen")
    k.srd(28, 72, 73, 1280); e("buffer_load_ushort v13, v5, s[28:31], s57 offen")
    k.srd(28, 74, 75, 1280); e("buffer_load_ushort v14, v5, s[28:31], s57 offen")

def gen_mega(name):
    k = Kern(name)
    e = k.e
    e("s_cmp_ge_u32 s2, 256"); e("s_cbranch_scc1 m_end")
    k.stamp_init()
    e("s_load_dwordx2 s[4:5], s[0:1], 0")
    e("s_load_dwordx4 s[8:11], s[0:1], 64")
    e("s_load_dwordx4 s[12:15], s[0:1], 104")
    e("s_load_dwordx4 s[96:99], s[0:1], 88")
    e("v_and_b32 v1, 63, v0")
    e("v_lshrrev_b32 v2, 6, v0")
    e("s_and_b32 s41, s2, 7")
    e("v_readfirstlane_b32 s32, v2")
    e("s_lshr_b32 s42, s2, 3")
    e("s_and_b32 s33, s32, 3")
    e("s_cmp_ge_u32 s42, 28"); e("s_cbranch_scc1 m_helper")
    e("s_mul_i32 s43, s42, 37"); e("s_lshr_b32 s43, s43, 8")
    e("s_mul_i32 s44, s43, 7"); e("s_sub_u32 s44, s42, s44")
    e("s_lshr_b32 s35, s41, 1"); e("s_lshl_b32 s35, s35, 2"); e("s_add_u32 s35, s35, s43")
    e("s_and_b32 s36, s41, 1"); e("s_mul_i32 s36, s36, 7"); e("s_add_u32 s36, s36, s44")
    e("s_cmp_ge_u32 s32, 4"); e("s_cbranch_scc1 m_gemm1")
    e("s_mul_i32 s45, s44, 3"); e("s_mul_i32 s46, s43, 5"); e("s_lshr_b32 s46, s46, 1"); e("s_add_u32 s45, s45, s46")
    e("s_cmp_ge_u32 s45, 20"); e("s_cselect_b32 s46, 20, 0"); e("s_sub_u32 s45, s45, s46")
    e("s_cmp_ge_u32 s45, 10"); e("s_cselect_b32 s46, 10, 0"); e("s_sub_u32 s45, s45, s46")
    e("s_load_dwordx8 s[64:71], s[0:1], 8")
    e("s_load_dwordx4 s[72:75], s[0:1], 40")
    e("v_and_b32 v3, 7, v1")
    e("s_lshl_b32 s39, s32, 13")
    e("s_cmp_ge_u32 s32, 2"); e("s_cbranch_scc1 m_ldB")
    e("s_lshl_b32 s43, s35, 7"); e("s_lshl_b32 s44, s32, 6"); e("s_add_u32 s43, s43, s44")
    e("v_lshrrev_b32 v2, 5, v1"); e("v_lshlrev_b32 v2, 3, v2")
    e("v_bfe_u32 v4, v1, 3, 2"); e("v_add3_u32 v2, v2, v4, s43")
    e("v_mul_u32_u24 v2, 1280, v2")
    e("v_lshrrev_b32 v4, 4, v1"); e("v_xor_b32 v3, v3, v4")
    e("v_lshl_add_u32 v4, v3, 4, v2")
    e("v_xor_b32 v3, 4, v3"); e("v_lshl_add_u32 v5, v3, 4, v2")
    for n in range(8):
        ee, b, Pp = n & 1, (n >> 1) & 1, n >> 2
        e(f"v_add_u32 v{16+n}, {(32*Pp + 4*b + 16*ee)*1280 - (n & 3)*1024}, v{4+ee}")
    e("s_waitcnt lgkmcnt(0)")
    k.srd(16, 4, 5, 2048*1280)
    e("s_mov_b32 s38, 128")
    e("s_branch m_ld")
    k.label("m_ldB")
    e("v_lshrrev_b32 v2, 3, v1"); e("v_mul_u32_u24 v2, 3456, v2")
    e("s_cmp_eq_u32 s32, 2"); e("s_cselect_b32 s44, 1664, 0")
    e("s_lshl_b32 s43, s36, 7"); e("s_add_u32 s43, s43, s44"); e("v_add_u32 v2, s43, v2")
    e("v_bfe_u32 v4, v1, 4, 1"); e("v_lshlrev_b32 v4, 1, v4"); e("v_xor_b32 v3, v3, v4")
    e("v_lshl_add_u32 v4, v3, 4, v2")
    e("v_xor_b32 v3, 4, v3"); e("v_lshl_add_u32 v5, v3, 4, v2")
    for n in range(8):
        e(f"v_add_u32 v{16+n}, {8*n*3456 - (n & 3)*1024}, v{4+(n & 1)}")
    e("s_waitcnt lgkmcnt(0)")
    k.srd(16, 8, 9, 640*3456)
    e(f"s_mov_b32 s38, {64*3456}")
    k.label("m_ld")
    e("s_mul_i32 s37, s45, s38"); e("s_mul_i32 s46, s38, 10"); e("s_mov_b32 s40, 0")
    k.label("m_ldloop")
    e("s_cmp_lt_u32 s40, 3"); e("s_cbranch_scc1 m_ldissue")
    e("s_waitcnt vmcnt(16)")
    e("s_barrier")
    k.label("m_ldissue")
    for g in range(2):
        e(f"s_add_u32 m0, s39, {g*4096}")
        e("s_nop 0")
        for n in range(4): e(f"buffer_load_dwordx4 v{16+g*4+n}, s[16:19], s37 offen offset:{n*1024} lds")
    e("s_add_u32 s39, s39, 32768"); e("s_and_b32 s39, s39, 0x1ffff")
    e("s_add_u32 s37, s37, s38"); e("s_cmp_eq_u32 s37, s46"); e("s_cselect_b32 s37, 0, s37")
    e("s_add_u32 s40, s40, 1"); e("s_cmp_lt_u32 s40, 10"); e("s_cbranch_scc1 m_ldloop")
    k.stamp(1)
    conv_params(k)
    e("s_getpc_b64 s[44:45]")
    k.label("m_pc")
    e(f"s_sub_u32 s44, s44, m_pc-{name}"); e("s_subb_u32 s45, s45, 0")
    e(f"s_mov_b32 s46, text_end-{name}"); e("s_mov_b32 s47, 0x00020000")
    e("s_and_b32 s43, s42, 15"); e("s_lshl_b32 s43, s43, 2"); e("s_add_u32 s43, s43, s33"); e("s_lshl_b32 s43, s43, 10")
    e("v_lshlrev_b32 v2, 4, v1")
    e("buffer_load_dwordx4 v[224:227], v2, s[44:47], s43 offen")
    k.srd(20, 10, 11, 2048*4096)
    e("s_lshl_b32 s43, s42, 2"); e("s_add_u32 s43, s43, s32"); e(f"s_mul_i32 s43, s43, {9*1024+384}")
    e("s_lshl_b32 s44, s41, 20"); e("s_add_u32 s43, s43, s44")
    e("v_lshlrev_b32 v2, 4, v1")
    def pf(n):
        for i in range(n):
            e(f"buffer_load_dwordx4 v[224:227], v2, s[20:23], s43 offen offset:{(i%4)*1024}")
            if i % 4 == 3 or i == n - 1: e(f"s_add_u32 s43, s43, {(i%4+1)*1024}")
    e("s_waitcnt vmcnt(23)"); e("s_barrier"); pf(4)
    e("s_waitcnt vmcnt(19)"); e("s_barrier"); pf(6)
    e("s_waitcnt vmcnt(17)"); e("s_barrier")
    e("s_barrier")
    k.label("m_Lpost")
    k.stamp(2)
    e(f"v_mov_b32 v4, {W_EPOCH}"); e("ds_read_b32 v5, v4")
    k.srd(FLS, 14, 15, FL_BYTES, WS_FL)
    e("v_and_b32 v2, 15, v1"); e("v_lshrrev_b32 v3, 4, v1")
    e("s_lshr_b32 s35, s41, 1"); e("s_lshl_b32 s35, s35, 3"); e("s_lshr_b32 s43, s42, 2"); e("s_add_u32 s35, s35, s43")
    e("s_waitcnt lgkmcnt(0)")
    e("v_readfirstlane_b32 s3, v5")
    e("s_cmp_lg_u32 s32, 3"); e("s_cbranch_scc1 m_conv")
    k.srd(16, 10, 11, 2048*4096)
    e("v_lshrrev_b32 v4, 5, v1"); e("v_lshlrev_b32 v4, 3, v4"); e("v_bfe_u32 v5, v1, 3, 2"); e("v_add_u32 v4, v4, v5")
    e("v_lshlrev_b32 v4, 12, v4")
    e("v_and_b32 v5, 7, v1"); e("v_xor_b32 v5, v5, v3")
    e("v_lshl_add_u32 v6, v5, 4, v4")
    e("v_xor_b32 v5, 4, v5"); e("v_lshl_add_u32 v7, v5, 4, v4")
    for n in range(8):
        ee, t = n & 1, n >> 1
        e(f"v_add_u32 v{16+n}, {(32*(t >> 1) + 4*(t & 1) + 16*ee)*4096 - (n & 3)*1024}, v{6+ee}")
    e("s_lshl_b32 s37, s35, 18")
    e(f"s_and_b32 s43, s35, {ROTM}"); e("s_lshl_b32 s43, s43, 8"); e("s_add_u32 s37, s37, s43")
    e("s_mov_b32 s40, 0")
    k.label("m_pfloop")
    e("s_and_b32 s43, s40, 3"); e("s_lshr_b32 s44, s40, 2")
    e(f"s_mul_i32 s45, s43, {RING2}"); e("s_lshl_b32 s46, s44, 13"); e("s_add_u32 s45, s45, s46")
    e("s_lshl_b32 s43, s43, 10"); e("s_lshl_b32 s44, s44, 7"); e("s_add_u32 s43, s43, s44"); e("s_add_u32 s43, s43, s37")
    for g in range(2):
        e(f"s_add_u32 m0, s45, {g*4096}")
        e("s_nop 0")
        for n in range(4): e(f"buffer_load_dwordx4 v{16+g*4+n}, s[16:19], s43 offen offset:{n*1024} lds")
    e("s_waitcnt vmcnt(16)")
    e("s_add_u32 s40, s40, 1"); e("s_cmp_lt_u32 s40, 8"); e("s_cbranch_scc1 m_pfloop")
    k.stamp(3)
    e(f"v_mov_b32 v4, {W_PF + 8}")
    lds_wait_ge(k, "m_wown1", "v4", 5, 1, 4, sleep=4)
    e("v_and_b32 v4, 31, v1"); e("v_lshlrev_b32 v4, 2, v4"); e(f"s_mov_b32 s44, {FX}")
    poll_flags(k, "m_pollx3", "v4", FLS, 1, 5, "v6", soff="s44", sleep=16)
    e("s_and_b32 s36, s41, 1"); e("s_lshl_b32 s36, s36, 2"); e("s_and_b32 s43, s42, 3"); e("s_add_u32 s36, s36, s43")
    e("s_cmp_eq_u32 s36, 7"); e("s_cselect_b32 s43, 31, 47")
    e("v_min_u32 v4, s43, v1"); e("v_lshlrev_b32 v4, 2, v4")
    e("s_lshl_b32 s44, s35, 3"); e("s_add_u32 s44, s44, s36"); e("s_lshl_b32 s44, s44, 8"); e(f"s_add_u32 s44, s44, {FZ2}")
    poll_flags(k, "m_pollz", "v4", FLS, 1, 5, "v6", soff="s44", sleep=2)
    e(f"v_mov_b32 v4, {W_PF}"); e("v_mov_b32 v5, 1")
    e("ds_write_b32 v4, v5")
    k.stamp(4)
    e("s_branch m_L3prep")
    k.label("m_conv")
    e("s_cmp_ge_u32 s34, 640"); e("s_cbranch_scc1 m_L3prep")
    e(f"s_mul_i32 s39, s32, {CONV_B}"); e(f"s_add_u32 s39, s39, {CONV0}")
    e("s_waitcnt vmcnt(10)")
    kgen_dt(k, "v13")
    kgen_addr(k, "s39", "v2", "v3", "v1")
    e("s_mov_b32 s40, 2")
    kgen_loop(k, 164, "v13", "s40")
    k.stamp(3)
    UO, KC = 8320, 12928
    e("v_lshlrev_b32 v15, 4, v1")
    e(f"s_mov_b32 s44, {FX}")
    e("v_and_b32 v220, 31, v1"); e("v_lshlrev_b32 v220, 2, v220")
    e("buffer_load_dword v216, v220, s[60:63], s44 offen sc1")
    e(f"s_add_u32 s43, s39, {KC}")
    e("v_max_u32 v4, 1, v3"); e("v_sub_u32 v4, 5, v4")
    e("v_lshlrev_b32 v5, v4, v2")
    e("v_lshlrev_b32 v6, 3, v3")
    e("v_mov_b32 v7, 512"); e("v_cmp_eq_u32 vcc, 2, v3"); e("s_nop 1"); e("v_cndmask_b32 v6, v6, v7, vcc")
    e("v_mov_b32 v7, 768"); e("v_mov_b32 v8, 4"); e("v_mov_b32 v9, 128"); e("v_cmp_eq_u32 vcc, 3, v3"); e("s_nop 1")
    e("v_cndmask_b32 v6, v6, v7, vcc"); e("v_cndmask_b32 v8, v8, v9, vcc")
    e("v_add3_u32 v5, v5, v6, s43")
    e("v_lshlrev_b32 v6, v4, 16"); e("v_add_u32 v6, v5, v6")
    e("v_add_u32 v7, v5, v8"); e("v_add_u32 v8, v6, v8")
    for n in range(8): e(f"v_cvt_pk_bf16_f32 v{24+n}, v{136+2*n}, v{137+2*n}")
    e("ds_write_b32 v5, v24"); e("ds_write_b32 v7, v25"); e("ds_write_b32 v6, v26"); e("ds_write_b32 v8, v27")
    e("v_lshlrev_b32 v9, 6, v2"); e("v_lshl_add_u32 v9, v3, 3, v9"); e("v_add_u32 v9, s43, v9")
    e("v_mov_b32 v20, 0"); e("v_mov_b32 v21, 0"); e("v_mov_b32 v22, 0"); e("v_mov_b32 v23, 0")
    e("v_add_u32 v16, s39, v15")
    e("v_lshl_add_u32 v17, v1, 3, s39")
    e(f"ds_write_b64 v17, v[20:21] offset:{UO}")
    e("v_cmp_gt_u32 vcc, 5, v2"); e("s_and_saveexec_b64 s[46:47], vcc")
    e("ds_write_b64 v9, v[28:29] offset:1024"); e("ds_write_b64 v9, v[30:31] offset:1056")
    e("s_mov_b64 exec, 3")
    e("ds_write_b128 v16, v[20:23] offset:4096"); e(f"ds_write_b128 v16, v[20:23] offset:{4160+4096}")
    e("s_mov_b64 exec, -1")
    e(f"s_add_u32 s44, s39, {KC + 256 - 2*0x4300}")
    e(f"v_mov_b32 v31, {f32(128.0)}")
    e("v_lshlrev_b32 v18, 3, v1"); e("v_cvt_f32_u32 v18, v18")
    e("s_waitcnt lgkmcnt(0)")
    for m in range(4):
        for el in range(10): e(f"v_sub_f32 v{96+el}, {f32(2047 - 512*m - el)}, v18")
        if m == 3: e("v_max_f32 v104, 0, v104")
        for p in range(5): e(f"v_cvt_pk_bf16_f32 v{108+p}, v{96+2*p}, v{97+2*p}")
        for el in range(9):
            a = f"v{114+el}"
            if el % 2 == 0: e(f"v_and_b32 {a}, 0xffff, v{108+el//2}")
            else: e(f"v_lshrrev_b32 {a}, 16, v{108+el//2}")
            e(f"v_lshl_add_u32 {a}, {a}, 1, s44")
            if m == 3:
                e(f"v_cvt_u32_f32 v19, v{96+el}"); e("v_lshl_add_u32 v19, v19, 1, s43")
                e(f"v_cmp_lt_f32 vcc, v{96+el}, v31"); e("s_nop 1"); e(f"v_cndmask_b32 {a}, {a}, v19, vcc")
        for el in range(9): e(f"ds_read_u16 v{144+9*m+el}, v{114+el}")
    e(f"s_mov_b32 s46, {FX}")
    poll_flags(k, "m_pollx", "v220", FLS, 1, 216, "v4", soff="s46", sleep=8, preloaded=True)
    k.stamp(4)
    k.srd(20, 14, 15, XT_BYTES, WS_XNT)
    k.srd(24, 14, 15, XT_BYTES, WS_YT)
    e("s_lshl_b32 s45, s34, 12")
    for n in range(4): e(f"buffer_load_dwordx4 {v(200+4*n,4)}, v15, s[20:23], s45 offen offset:{n*1024} sc1")
    e("s_waitcnt lgkmcnt(0)")
    e("v_cmp_eq_u32 vcc, 63, v1"); e("s_nop 1"); e(f"v_cndmask_b32 v{144+35}, v{144+35}, v20, vcc")
    for m in range(4):
        W = 32 + 16*m; E = 144 + 9*m
        for p in range(4):
            e(f"v_lshl_or_b32 v{W+p}, v{E+2*p+1}, 16, v{E+2*p}")
            e(f"v_lshl_or_b32 v{W+8+p}, v{E+2*p+2}, 16, v{E+2*p+1}")
        e(f"ds_write_b128 v16, {v(W,4)} offset:{1024*m}")
        e(f"ds_write_b128 v16, {v(W+8,4)} offset:{4160+1024*m}")
    e("s_waitcnt vmcnt(0)")
    for n in range(4): e(f"ds_write_b128 v16, {v(200+4*n,4)} offset:{UO+512+1024*n}")
    k.stamp(5)
    e("v_and_b32 v4, 1, v2"); e("v_xor_b32 v4, 1, v4"); e("v_mul_u32_u24 v4, 4160, v4")
    e("v_lshrrev_b32 v5, 1, v2"); e("v_lshlrev_b32 v6, 2, v3"); e("v_sub_u32 v5, v6, v5")
    e("v_lshl_add_u32 v4, v5, 2, v4"); e("v_add_u32 v4, s39, v4")
    for mp in range(4): e(f"v_add_u32 v{24+mp}, {4*(1023 - 8 - 128*(2*mp+1))}, v4")
    e("v_lshlrev_b32 v5, 5, v2"); e("v_lshl_add_u32 v5, v3, 4, v5")
    e(f"s_add_u32 s43, s39, {UO+480}"); e("v_add_u32 v28, s43, v5")
    def Af(m): return 32 + 4*m
    def Bf(r): return 64 + 4*r
    def ac(cb): return v(96 + 4*cb, 4)
    for i in range(32): e(f"v_mov_b32 v{96+i}, 0")
    e("v_lshlrev_b32 v14, 16, v14")
    e("s_waitcnt lgkmcnt(0)")
    def rdA(m):
        o = 0 if m & 1 else 128
        e(f"ds_read2_b32 {v(Af(m),2)}, v{24+m//2} offset0:{o} offset1:{o+1}"); e(f"ds_read2_b32 {v(Af(m)+2,2)}, v{24+m//2} offset0:{o+2} offset1:{o+3}")
    def rdB(r): e(f"ds_read_b128 {v(Bf(r),4)}, v28 offset:{512*r}")
    for m in range(8): rdA(m); rdB(7-m)
    e("s_mov_b32 s40, 8")
    k.label("m_cloop")
    for r in range(24, 29): e(f"v_subrev_u32 v{r}, 64, v{r}")
    for m in range(8):
        for cb in (range(7, -1, -1) if m == 0 else range(m, 8)):
            if m == 0: e(f"s_waitcnt lgkmcnt({min(3*cb, 15)})")
            e(f"{MFMA} {ac(cb)}, {v(Af(m),4)}, {v(Bf(cb-m),4)}, {ac(cb)}")
        rdA(m); rdB(7-m)
    e("s_sub_u32 s40, s40, 1"); e("s_cmp_lg_u32 s40, 0"); e("s_cbranch_scc1 m_cloop")
    k.stamp(6)
    e("s_waitcnt lgkmcnt(0)")
    e("v_lshlrev_b32 v20, 5, v2"); e("v_lshl_add_u32 v20, v3, 3, v20")
    e(f"s_add_u32 s43, s39, {UO+512}"); e("v_add_u32 v21, s43, v20")
    for cb in range(8): e(f"ds_read_b64 {v(32+2*cb,2)}, v21 offset:{512*cb}")
    e("s_waitcnt lgkmcnt(0)")
    for c0 in (0, 4):
        A = [96 + 4*cb + 2*p for cb in range(c0, c0+4) for p in range(2)]
        U = [32 + 2*cb + p for cb in range(c0, c0+4) for p in range(2)]
        for i in range(8): unpack(k, f"v{72+2*i}", f"v{73+2*i}", f"v{U[i]}")
        for i in range(8): e(f"v_pk_fma_f32 {pr(A[i])}, {pr(72+2*i)}, v[14:15], {pr(A[i])} op_sel_hi:[1,0,1]")
        for i in range(8): e(f"v_cvt_pk_bf16_f32 v{U[i]}, v{A[i]}, v{A[i]+1}")
        for cb in range(c0, c0+4): e(f"ds_write_b64 v21, {v(32+2*cb,2)} offset:{512*cb}")
    for n in range(4): e(f"ds_read_b128 {v(64+4*n,4)}, v16 offset:{UO+512+1024*n}")
    for n in range(4):
        e(f"s_waitcnt lgkmcnt({3-n})")
        e(f"buffer_store_dwordx4 {v(64+4*n,4)}, v15, s[24:27], s45 offen offset:{1024*n} sc1")
    e("s_lshl_b32 s43, s34, 2"); e(f"s_add_u32 s43, s43, {FY}")
    set_flag(k, FLS, "s43", 0, "v4", "v5")
    k.stamp(7)
    k.label("m_L3prep")
    e("s_and_b32 s36, s41, 1"); e("s_lshl_b32 s36, s36, 2"); e("s_and_b32 s43, s42, 3"); e("s_add_u32 s36, s36, s43")
    e("s_lshl_b32 s43, s33, 2"); e(f"s_add_u32 s43, s43, {W_GL}"); e("v_mov_b32 v4, s43")
    lds_wait(k, "m_wgl", "v4", "v5", sleep=8)
    k.stamp(8)
    e("s_mul_i32 s46, s33, 15"); e("s_add_u32 s46, s46, 42")
    e("s_cmp_eq_u32 s33, 3"); e("s_cselect_b32 s47, 48, 15")
    e("s_branch m_P3")

    k.label("m_gemm1")
    e("v_and_b32 v2, 15, v1"); e("v_lshrrev_b32 v3, 4, v1")
    e("v_lshlrev_b32 v12, 4, v1")
    e("v_add_u32 v13, 4096, v12")
    PL = 200
    def poll_loads():
        for i in range(7):
            e(f"buffer_load_dwordx4 {v(PL+4*i,4)}, v{12 if i < 4 else 13}, s[28:31], s72 offen offset:{(i%4)*1024} sc1")
    e("v_mov_b32 v10, 0")
    e("v_and_b32 v4, 31, v1"); e(f"v_lshlrev_b32 v4, 2, v4"); e(f"v_add_u32 v4, {W_EPOCH}, v4")
    e("ds_write_b32 v4, v10")
    e("s_waitcnt lgkmcnt(0)")
    k.srd(64, 12, 13, 256)
    e("s_cmp_lg_u32 s2, 0"); e("s_cbranch_scc1 m_noep")
    e("s_cmp_lg_u32 s32, 4"); e("s_cbranch_scc1 m_noep")
    e("s_memrealtime s[44:45]"); e("s_waitcnt lgkmcnt(0)"); e("s_or_b32 s44, s44, 1"); e("v_mov_b32 v4, s44")
    e("s_mov_b64 exec, 1")
    e("buffer_store_dword v4, v10, s[64:67], 0 offen sc1")
    e("s_mov_b64 exec, -1")
    k.label("m_noep")
    e("s_lshl_b32 s43, s35, 2"); e("s_add_u32 s43, s43, s33"); e(f"s_mul_i32 s72, s43, {14*512}")
    e("s_lshl_b32 s44, s36, 9"); e("s_add_u32 s73, s72, s44")
    e("s_lshl_b32 s74, s36, 6"); e("s_add_u32 s74, s74, s43"); e("s_lshl_b32 s74, s74, 2")
    e("v_and_b32 v4, 7, v1"); e("v_lshl_add_u32 v4, v3, 3, v4"); e("v_bfe_u32 v5, v1, 3, 1"); e("v_lshlrev_b32 v5, 3, v5")
    e("v_lshl_add_u32 v230, v4, 4, v5")
    k.srd(28, 14, 15, ST2_BYTES, WS_ST2)
    k.srd(24, 14, 15, ZF_BYTES, WS_Z2F)
    k.srd(20, 14, 15, ZF_BYTES, WS_Z1F)
    k.srd(FLS, 14, 15, FL_BYTES, WS_FL)
    for c in range(4):
        e(f"s_xor_b32 s43, s33, {c}")
        e("s_lshl_b32 s44, s36, 2"); e("s_add_u32 s43, s43, s44"); e("s_sub_u32 s43, s43, 2")
        e(f"s_cmp_lt_u32 s43, 54"); e(f"s_cselect_b32 s{50+c}, -1, 0")
        e("s_cselect_b32 s43, s43, 60")
        e(f"s_lshl_b32 s{46+c}, s43, 16")
        e("s_lshl_b32 s44, s35, 2"); e("s_add_u32 s44, s44, s33"); e("s_lshl_b32 s44, s44, 10")
        e(f"s_add_u32 s{46+c}, s{46+c}, s44")
    for b in range(2):
        for g in range(2):
            e("s_lshr_b32 s43, s33, 1"); e(f"s_xor_b32 s43, s43, {g}"); e("s_lshl_b32 s44, s36, 1"); e("s_add_u32 s43, s43, s44")
            e("s_lshl_b32 s44, s35, 3"); e("s_lshl_b32 s45, s33, 1"); e("s_add_u32 s44, s44, s45"); e(f"s_add_u32 s44, s44, {b}")
            e("s_mul_i32 s44, s44, 27"); e("s_add_u32 s44, s44, s43"); e("s_lshl_b32 s44, s44, 10")
            e("s_cmp_lt_u32 s43, 27"); e(f"s_cselect_b32 s{68+b*2+g}, s44, {HUGE}")
    e("v_and_b32 v4, 2, v1"); e("v_and_b32 v5, 1, v1")
    e("v_cmp_ne_u32 s[54:55], 0, v4"); e("v_cmp_ne_u32 s[56:57], 0, v5")
    e("s_lshl_b32 s43, s33, 5")
    e("v_add_u32 v4, s43, v2"); e("v_lshlrev_b32 v4, 7, v4")
    e("v_lshrrev_b32 v5, 1, v2"); e("v_xor_b32 v5, v5, v3")
    e("v_lshl_add_u32 v14, v5, 4, v4")
    e("v_xor_b32 v15, 64, v14")
    e("v_bfe_u32 v4, v1, 2, 2")
    e("v_lshl_add_u32 v5, v3, 3, v4"); e("v_lshlrev_b32 v5, 7, v5")
    e("v_and_b32 v6, 3, v1"); e("v_lshl_add_u32 v5, v6, 3, v5")
    e("v_add_u32 v5, 16384, v5")
    e("v_lshrrev_b32 v6, 1, v4"); e("v_and_b32 v7, 1, v3"); e("v_lshl_or_b32 v6, v7, 1, v6")
    e("v_xor_b32 v6, s33, v6")
    for c in range(4):
        e(f"v_xor_b32 v7, {c}, v6"); e(f"v_lshl_add_u32 v{16+c}, v7, 5, v5")
    for i in range(4): e(f"v_mov_b32 v{20+i}, 0x3f803f80")
    ACC = 104
    for i in range(ACC, 192): e(f"v_mov_b32 v{i}, 0")
    def xf(ks, b): return v(24 + 40*ks + 4*b, 4)
    def wfb(ks, h, c): return 24 + 40*ks + 8 + 16*h + 4*c
    def wf(ks, h, c): return v(wfb(ks, h, c), 4)
    def accb(h, b, c): return ACC + 32*h + (b*4 + c)*4
    def acc(h, b, c): return v(accb(h, b, c), 4)
    def rlist(ks):
        L = [f"ds_read_b128 {xf(ks,b)}, v{14+ks} offset:{2048*b}" for b in range(2)]
        for h in range(2):
            for c in range(4):
                for hh in range(2):
                    L.append(f"ds_read_b64_tr_b16 {v(wfb(ks,h,c)+2*hh,2)}, v{16+c} offset:{h*8192+ks*4096+hh*512}")
        return L
    def mlist(ks):
        L = []
        for b in range(2):
            L.append(f"{MFMA} {v(168+4*b,4)}, v[20:23], {xf(ks,b)}, {v(168+4*b,4)}")
            L.append(f"{MFMA} {v(176+4*b,4)}, {xf(ks,b)}, {xf(ks,b)}, {v(176+4*b,4)}")
        for h in range(2):
            L.append(f"{MFMA} {v(184+4*h,4)}, v[20:23], {wf(ks,h,0)}, {v(184+4*h,4)}")
            for c in range(4):
                for b in range(2):
                    if h == 0: L.append(f"{MFMA} {acc(h,b,c)}, {xf(ks,b)}, {wf(ks,h,c)}, {acc(h,b,c)}")
                    else:      L.append(f"{MFMA} {acc(h,b,c)}, {wf(ks,h,c)}, {xf(ks,b)}, {acc(h,b,c)}")
        return L
    def phase(ks, rd, extra=()):
        M = mlist(ks); R = list(rd); X = list(extra)
        for i, m in enumerate(M):
            e(m)
            if R: e(R.pop(0))
            elif X:
                for _ in range(2):
                    if X: e(X.pop(0))
        for x in X: e(x)
    bump = [f"v_add_u32 v{r}, 0x8000, v{r}" for r in range(14, 20)]
    wrap = [f"v_and_b32 v{r}, 0x1ffff, v{r}" for r in range(14, 20)]
    k.stamp(1)
    e("s_mov_b32 s40, 10")
    e("s_barrier")
    k.stamp(2)
    for r in rlist(0): e(r)
    k.label("m_loop1")
    e("s_waitcnt lgkmcnt(0)")
    phase(0, rlist(1), bump + wrap)
    e("s_sub_u32 s40, s40, 1"); e("s_cmp_eq_u32 s40, 0")
    e("s_waitcnt lgkmcnt(0)")
    e(f"s_cbranch_scc1 m_tail1")
    e("s_barrier")
    phase(1, rlist(0))
    e("s_cmp_lg_u32 s40, 5"); e("s_cbranch_scc1 m_loop1")
    e("s_cmp_lg_u32 s33, 0"); e("s_cbranch_scc1 m_loop1")
    e("buffer_load_dword v11, v10, s[64:67], 0 offen sc1")
    e(f"s_branch m_loop1")
    k.label(f"m_tail1")
    phase(1, [])
    e("s_setprio 2")
    k.stamp(3)
    e("s_lshl_b32 s43, s33, 6"); e(f"s_add_u32 s43, s43, {MISC+1024}")
    e("v_lshl_add_u32 v8, v2, 2, s43")
    e("v_and_b32 v4, 3, v1")
    e("v_cmp_eq_u32 s[44:45], 1, v4"); e("v_cmp_eq_u32 s[58:59], 2, v4"); e("v_cmp_eq_u32 vcc, 3, v4")
    e("s_nop 2")
    e("ds_write_b32 v8, v184"); e("ds_write_b32 v8, v188 offset:256")
    e(f"v_mov_b32 v9, {W_EPOCH}")
    def epoch_poll(tag):
        e("s_mov_b32 s40, 0")
        k.label(f"m_eppoll{tag}")
        e("s_waitcnt vmcnt(0)")
        e("v_readfirstlane_b32 s43, v11")
        e("s_add_u32 s40, s40, 1")
        e("s_cmp_lg_u32 s43, 0"); e(f"s_cbranch_scc1 m_epok{tag}")
        e("buffer_load_dword v11, v10, s[64:67], 0 offen sc1")
        e(f"s_cmp_lt_u32 s40, {SPIN}"); e(f"s_cbranch_scc1 m_eppoll{tag}")
        k.label(f"m_epok{tag}")
        e("ds_write_b32 v9, v11")
    e("s_cmp_lg_u32 s33, 0"); e("s_cbranch_scc1 m_epdone")
    epoch_poll("g")
    k.label("m_epdone")
    e("s_waitcnt lgkmcnt(0)")
    e("s_barrier")
    for b in range(2):
        q0 = 176 + 4*b
        e(f"v_cndmask_b32 v{q0}, v{q0}, v{q0+1}, s[44:45]"); e(f"v_cndmask_b32 v{q0}, v{q0}, v{q0+2}, s[58:59]"); e(f"v_cndmask_b32 v{q0}, v{q0}, v{q0+3}, vcc")
        e(f"v_mul_f32 v{168+4*b}, {f32(1/640)}, v{168+4*b}")
        e(f"v_mul_f32 v{q0}, {f32(1/640)}, v{q0}")
        e(f"v_fma_f32 v{q0}, -v{168+4*b}, v{168+4*b}, v{q0}")
    for c in range(4):
        e(f"s_xor_b32 s43, s33, {c}"); e(f"s_lshl_b32 s43, s43, 6"); e(f"s_add_u32 s43, s43, {MISC+1024}")
        e(f"v_lshl_add_u32 v5, v2, 2, s43"); e(f"v_lshl_add_u32 v6, v3, 4, s43")
        e(f"ds_read_b32 v{40+2*c}, v5")
        e(f"ds_read_b128 {v(64+4*c,4)}, v6 offset:256")
    e("ds_read_b32 v229, v9")
    for b in range(2): ln_finish(k, f"v{168+4*b}", f"v{176+4*b}", "v7")
    e("s_lshl_b32 s43, s33, 7"); e(f"s_add_u32 s43, s43, {MISC}")
    e("v_lshl_add_u32 v7, v2, 2, s43")
    e("v_lshl_add_u32 v8, v3, 4, s43")
    e("v_lshrrev_b32 v4, 2, v2")
    e("v_cmp_eq_u32 vcc, v4, v3")
    e("s_and_saveexec_b64 s[44:45], vcc")
    for b in range(2):
        e(f"ds_write_b32 v7, v{168+4*b} offset:{64*b}"); e(f"ds_write_b32 v7, v{176+4*b} offset:{512+64*b}")
    e("s_mov_b64 exec, s[44:45]")
    e("ds_read_b128 v[24:27], v8"); e("ds_read_b128 v[28:31], v8 offset:64")
    e("ds_read_b128 v[32:35], v8 offset:512"); e("ds_read_b128 v[36:39], v8 offset:576")
    e("ds_read_b32 v80, v7"); e("ds_read_b32 v82, v7 offset:64"); e("ds_read_b32 v84, v7 offset:512"); e("ds_read_b32 v86, v7 offset:576")
    e(f"v_mov_b32 v88, {f32(GC1)}"); e(f"v_mov_b32 v90, {f32(GC0)}")
    for i in range(168, 184): e(f"v_mov_b32 v{i}, 0")
    e("s_waitcnt lgkmcnt(0)")
    e("v_readfirstlane_b32 s3, v229")
    e("s_cmp_lg_u32 s36, 0"); e("s_cbranch_scc1 m_nomask")
    for c in range(4):
        e(f"v_and_b32 v{40+2*c}, s{50+c}, v{40+2*c}")
        for b in range(2):
            for r in range(4): e(f"v_and_b32 v{accb(0,b,c)+r}, s{50+c}, v{accb(0,b,c)+r}")
    k.label("m_nomask")
    def gelu_pairs(A):
        n = len(A); T = [48 + 2*i for i in range(n)]
        for i in range(n): e(f"v_pk_mul_f32 {pr(T[i])}, {pr(A[i])}, {pr(A[i])}")
        for i in range(n): e(f"v_pk_fma_f32 {pr(T[i])}, {pr(T[i])}, v[88:89], v[90:91] op_sel_hi:[1,0,0]")
        for i in range(n): e(f"v_pk_mul_f32 {pr(T[i])}, {pr(T[i])}, {pr(A[i])}")
        for i in range(n): e(f"v_exp_f32 v{T[i]}, v{T[i]}"); e(f"v_exp_f32 v{T[i]+1}, v{T[i]+1}")
        for i in range(n): e(f"v_pk_add_f32 {pr(T[i])}, {pr(T[i])}, 1.0 op_sel_hi:[1,0]")
        for i in range(n): e(f"v_rcp_f32 v{T[i]}, v{T[i]}"); e(f"v_rcp_f32 v{T[i]+1}, v{T[i]+1}")
        for i in range(n): e(f"v_pk_mul_f32 {pr(A[i])}, {pr(A[i])}, {pr(T[i])}")
    for c0 in (0, 2):
        A = [accb(0, b, c) + 2*p for c in (c0, c0+1) for b in range(2) for p in range(2)]
        M = [24 + 4*b + 2*p for c in (c0, c0+1) for b in range(2) for p in range(2)]
        C = [40 + 2*c for c in (c0, c0+1) for b in range(2) for p in range(2)]
        for i in range(8): e(f"v_pk_fma_f32 {pr(A[i])}, {pr(M[i])}, {pr(C[i])}, {pr(A[i])} op_sel_hi:[1,0,1] neg_lo:[1,0,0] neg_hi:[1,0,0]")
        for i in range(8): e(f"v_pk_mul_f32 {pr(A[i])}, {pr(A[i])}, {pr(M[i]+8)}")
        gelu_pairs(A)
        for i in range(8):
            n = (i % 4) * 2
            e(f"v_pk_add_f32 {pr(168+n)}, {pr(168+n)}, {pr(A[i])}")
            e(f"v_pk_fma_f32 {pr(176+n)}, {pr(A[i])}, {pr(A[i])}, {pr(176+n)}")
    e("s_nop 0")
    for n in range(8): e(f"v_add_f32_dpp v{48+n}, v{168+n}, v{168+n} row_ror:8 row_mask:0xf bank_mask:0x3")
    for n in range(8): e(f"v_add_f32_dpp v{48+n}, v{176+n}, v{176+n} row_ror:8 row_mask:0xf bank_mask:0xc")
    for n in range(4): e(f"v_add_f32_dpp v{168+n}, v{48+n}, v{48+n} row_half_mirror row_mask:0xf bank_mask:0x5")
    for n in range(4): e(f"v_add_f32_dpp v{168+n}, v{52+n}, v{52+n} row_half_mirror row_mask:0xf bank_mask:0xa")
    for n in range(2):
        e(f"v_cndmask_b32 v{172+n}, v{170+n}, v{168+n}, s[54:55]")
        e(f"v_cndmask_b32 v{174+n}, v{168+n}, v{170+n}, s[54:55]")
    e("s_nop 0")
    for n in range(2): e(f"v_add_f32_dpp v{176+n}, v{172+n}, v{174+n} quad_perm:[2,3,0,1] row_mask:0xf bank_mask:0xf")
    e("v_cndmask_b32 v172, v177, v176, s[56:57]"); e("v_cndmask_b32 v174, v176, v177, s[56:57]")
    e("s_nop 1")
    e("v_add_f32_dpp v228, v172, v174 quad_perm:[1,0,3,2] row_mask:0xf bank_mask:0xf")
    e("buffer_store_dwordx2 v[228:229], v230, s[28:31], s73 offen sc1")
    e("s_setprio 0")
    k.stamp(4)
    P1 = 168
    for c0 in (0, 2):
        A = [accb(1, b, c) + 2*p for c in (c0, c0+1) for b in range(2) for p in range(2)]
        M = [80 + 2*b for c in (c0, c0+1) for b in range(2) for p in range(2)]
        C = [64 + 4*c + 2*p for c in (c0, c0+1) for b in range(2) for p in range(2)]
        for i in range(8): e(f"v_pk_fma_f32 {pr(A[i])}, {pr(M[i])}, {pr(C[i])}, {pr(A[i])} op_sel_hi:[0,1,1] neg_lo:[1,0,0] neg_hi:[1,0,0]")
        for i in range(8): e(f"v_pk_mul_f32 {pr(A[i])}, {pr(A[i])}, {pr(M[i]+4)} op_sel_hi:[1,0]")
        gelu_pairs(A)
        i = 0
        for c in (c0, c0+1):
            for b in range(2):
                for p in range(2):
                    e(f"v_cvt_pk_bf16_f32 v{P1+b*8+c*2+p}, v{A[i]}, v{A[i]+1}"); i += 1
        if c0 == 0: poll_loads()
    e("s_bitcmp1_b32 s33, 0"); e("s_cbranch_scc0 m_noswap")
    for b in range(2):
        for g in range(2):
            for p in range(2):
                r0 = P1 + b*8 + g*4 + p
                e(f"v_swap_b32 v{r0}, v{r0+2}")
    k.label("m_noswap")
    e("s_setprio 2")
    e("s_mov_b32 s40, 0")
    e("s_waitcnt vmcnt(0)")
    for b in range(2):
        for g in range(2):
            e(f"buffer_store_dwordx4 {v(P1+b*8+g*4,4)}, v12, s[20:23], s{68+b*2+g} offen sc1")
    e("s_branch m_check")
    k.label("m_poll")
    poll_loads()
    e("s_waitcnt vmcnt(0)")
    k.label("m_check")
    e(f"v_xor_b32 v4, v{PL+1}, v229"); e(f"v_xor_b32 v5, v{PL+3}, v229")
    for i in range(1, 7):
        e(f"v_xor_b32 v9, v{PL+1+4*i}, v229"); e(f"v_xor_b32 v10, v{PL+3+4*i}, v229")
        e("v_or3_b32 v4, v4, v9, v10")
    e("v_or_b32 v4, v4, v5")
    e("v_cmp_ne_u32 vcc, 0, v4")
    e("s_add_u32 s40, s40, 1")
    e("s_nop 0")
    e("s_cbranch_vccz m_poll_done")
    e(f"s_cmp_lt_u32 s40, {SPIN}"); e("s_cbranch_scc1 m_poll")
    k.label("m_poll_done")
    k.stamp(5)
    for i in range(1, 7):
        e(f"v_add_f32 v{PL}, v{PL}, v{PL+4*i}"); e(f"v_add_f32 v{PL+2}, v{PL+2}, v{PL+2+4*i}")
    e(f"v_mov_b32 v{PL+1}, v{PL}"); e(f"v_mov_b32 v{PL+3}, v{PL+2}"); e("s_nop 1")
    e(f"v_permlane32_swap_b32 v{PL}, v{PL+1}"); e(f"v_permlane32_swap_b32 v{PL+2}, v{PL+3}"); e("s_nop 1")
    e(f"v_add_f32 v24, v{PL}, v{PL+1}"); e(f"v_add_f32 v26, v{PL+2}, v{PL+3}")
    e(f"v_mul_f32 v24, {f32(1/864)}, v24"); e(f"v_mul_f32 v26, {f32(1/864)}, v26")
    e("v_fma_f32 v26, -v24, v24, v26")
    ln_finish(k, "v24", "v26", "v25")
    e("s_lshl_b32 s43, s33, 8"); e(f"s_add_u32 s43, s43, {MISC+1536}")
    e("v_and_b32 v4, 31, v1"); e("v_lshl_add_u32 v4, v4, 2, s43"); e("v_lshl_add_u32 v5, v3, 5, s43")
    e("v_mul_f32 v24, v24, v26")
    e("ds_write_b32 v4, v24"); e("ds_write_b32 v4, v26 offset:128")
    e("ds_read_b128 v[28:31], v5"); e("ds_read_b128 v[32:35], v5 offset:16")
    e("ds_read_b128 v[36:39], v5 offset:128"); e("ds_read_b128 v[40:43], v5 offset:144")
    e("s_waitcnt lgkmcnt(0)")
    for c0 in (0, 2):
        A = [accb(0, b, c) + 2*p for c in (c0, c0+1) for b in range(2) for p in range(2)]
        M = [28 + (i % 4)*2 for i in range(8)]
        for i in range(8): e(f"v_pk_fma_f32 {pr(A[i])}, {pr(A[i])}, {pr(M[i]+8)}, {pr(M[i])} neg_lo:[0,0,1] neg_hi:[0,0,1]")
        for i in range(8): e(f"v_cvt_pk_bf16_f32 v{64+4*c0+i}, v{A[i]}, v{A[i]+1}")
        for c in (c0, c0+1): e(f"buffer_store_dwordx4 {v(64+4*c,4)}, v12, s[24:27], s{46+c} offen sc1")
    e("s_lshl_b32 s43, s36, 2")
    e("s_mov_b32 s44, 0x33221000"); e("s_mov_b32 s45, 0x00766554"); e("s_lshr_b64 s[44:45], s[44:45], s43"); e("s_and_b32 s46, s44, 15")
    e("s_mov_b32 s44, 0x44322110"); e("s_mov_b32 s45, 0x00776655"); e("s_lshr_b64 s[44:45], s[44:45], s43"); e("s_and_b32 s47, s44, 15")
    for r in (46, 47):
        e(f"s_lshl_b32 s43, s{r}, 2"); e("s_lshr_b32 s44, 0xca865310, s43"); e("s_and_b32 s44, s44, 15")
        e("s_sub_u32 s44, s36, s44"); e("s_lshl_b32 s44, s44, 4"); e("s_add_u32 s44, s44, s35"); e("s_lshl_b32 s44, s44, 2")
        e(f"s_lshl_b32 s{r}, s{r}, 8"); e(f"s_add_u32 s{r}, s{r}, s44")
    e("v_mov_b32 v6, s46"); e("v_mov_b32 v7, s47"); e("v_cmp_lt_u32 vcc, 31, v1"); e("v_and_b32 v8, 31, v1"); e("v_lshlrev_b32 v8, 11, v8")
    e("v_cndmask_b32 v6, v6, v7, vcc"); e("v_add_u32 v6, v6, v8")
    e(f"v_mov_b32 v4, {W_PF + 8}"); e("v_mov_b32 v5, 1"); e("v_mov_b32 v7, s3"); e(f"s_mov_b32 s44, {FZ2}")
    e("s_mov_b64 exec, 1")
    e("s_waitcnt vmcnt(0)")
    e("ds_add_rtn_u32 v8, v4, v5")
    e("s_waitcnt lgkmcnt(0)")
    e("v_readfirstlane_b32 s43, v8")
    e("s_mov_b64 exec, -1")
    e("s_cmp_lg_u32 s43, 3"); e("s_cbranch_scc1 m_P2")
    e("buffer_store_dword v7, v6, s[60:63], s44 offen sc1")
    gen_p2(k)
    gen_p3(k)
    gen_helper(k, epoch_poll)
    k.label("m_end")
    e("s_endpgm")
    return k.text(256, nsgpr=100)

def gen_p2(k):
    e = k.e
    k.label("m_P2")
    k.stamp(6)
    e("s_load_dwordx2 s[6:7], s[0:1], 80")
    e("s_lshr_b32 s35, s41, 1"); e("s_lshl_b32 s35, s35, 3"); e("s_lshr_b32 s43, s42, 2"); e("s_add_u32 s35, s35, s43")
    e("s_and_b32 s36, s42, 3")
    e("s_and_b32 s43, s41, 1"); e("s_mul_i32 s43, s43, 27"); e("s_mul_i32 s44, s36, 7"); e("s_add_u32 s37, s43, s44")
    e("v_and_b32 v240, 15, v1"); e("v_lshrrev_b32 v241, 4, v1"); e("v_mov_b32 v245, v1")
    e("v_lshrrev_b32 v2, 5, v1"); e("v_lshlrev_b32 v2, 3, v2"); e("v_bfe_u32 v3, v1, 3, 2"); e("v_add_u32 v2, v2, v3")
    e("v_lshlrev_b32 v2, 12, v2")
    e("v_and_b32 v3, 7, v1"); e("v_xor_b32 v3, v3, v241")
    e("v_lshl_add_u32 v242, v3, 4, v2")
    e("v_xor_b32 v3, 4, v3")
    e("v_lshl_add_u32 v243, v3, 4, v2"); e(f"v_add_u32 v243, {16*4096 - 1024}, v243")
    e("v_lshlrev_b32 v244, 4, v1")
    e("s_lshl_b32 s43, s35, 18"); e("s_lshl_b32 s44, s33, 10"); e("s_add_u32 s48, s43, s44")
    e(f"s_add_u32 s49, s48, {4*4096}"); e(f"s_add_u32 s50, s48, {32*4096}"); e(f"s_add_u32 s51, s48, {36*4096}")
    e("s_lshl_b32 s43, s37, 16"); e("s_lshl_b32 s44, s33, 14"); e("s_add_u32 s52, s43, s44")
    for c in range(1, 7): e(f"s_add_u32 s{52+c}, s52, {c*65536}")
    e("s_cmp_eq_u32 s36, 3"); e(f"s_cselect_b32 s58, {HUGE}, s58")
    e(f"s_mul_i32 s39, s33, {RING2}")
    k.srd(16, 10, 11, 2048*4096)
    k.srd(20, 14, 15, ZF_BYTES, WS_Z2F)
    k.srd(24, 14, 15, ZF_BYTES, WS_Z1F)
    k.srd(28, 14, 15, ZF_BYTES, WS_HF)
    def Z(st, c): return v(112 + st*28 + c*4, 4)
    def acc(c, sg): return v((c*4 + sg)*4, 4)
    def wf(sg): return v(224 + 4*sg, 4)
    def issueZ(n):
        if n % 4 == 0 and n:
            for c in range(7): e(f"s_add_u32 s{52+c}, s{52+c}, 4096")
        for c in range(7): k.vmem(f"buffer_load_dwordx4 {Z(n%4,c)}, v244, s[20:23], s{52+c} offen offset:{(n%4)*1024} sc1", f"Z{n}")
    def issueA(c):
        for t in range(4):
            e(f"s_add_u32 m0, s39, {(c%NSLOT)*8192 + t*2048}")
            e("s_nop 0")
            k.vmem(f"buffer_load_dwordx4 v242, s[16:19], s{48+t} offen lds", f"A{c}")
            k.vmem(f"buffer_load_dwordx4 v243, s[16:19], s{48+t} offen offset:1024 lds", f"A{c}")
        for t in range(4): e(f"s_add_u32 s{48+t}, s{48+t}, 128")
    k.vm = []
    e("v_lshrrev_b32 v5, 1, v240"); e("v_xor_b32 v5, v5, v241")
    e("v_lshlrev_b32 v4, 7, v240"); e("v_lshl_add_u32 v4, v5, 4, v4"); e("v_add_u32 v4, s39, v4")
    for sg in range(4):
        e(f"s_xor_b32 s43, s33, {sg}"); e("s_lshl_b32 s43, s43, 11")
        e(f"v_add_u32 v{246+sg}, s43, v4")
        e(f"v_xor_b32 v{250+sg}, 64, v{246+sg}")
    e("s_setprio 0")
    e(f"v_mov_b32 v4, {W_PF}")
    lds_wait(k, "m_wpf", "v4", "v5", sleep=1)
    k.srd(64, 6, 7, 4096)
    e("s_setprio 3")
    k.stamp(7); k.cyc(12)
    k.vm = []
    def issueZ1(n, c):
        if n % 4 == 0 and n and c == 0: e("v_add_u32 v254, 4096, v254"); e("v_and_b32 v254, 0x3fff, v254")
        k.vmem(f"buffer_load_dwordx4 {Z(n%4,c)}, v254, s[20:23], s{52+c} offen offset:{(n%4)*1024} sc1", f"Z{n}_{c}")
    def issueA1(c, t):
        e(f"s_add_u32 m0, s39, {(c%NSLOT)*8192 + t*2048}")
        e("s_nop 0")
        e(f"s_add_u32 s47, s{48+t}, s59")
        k.vmem(f"buffer_load_dwordx4 v242, s[16:19], s47 offen lds", f"A{c}")
        k.vmem(f"buffer_load_dwordx4 v243, s[16:19], s47 offen offset:1024 lds", f"A{c}")
        if t == 3: e("s_add_u32 s59, s59, 128"); e("s_and_b32 s59, s59, 1023")
    e(f"s_and_b32 s43, s35, {ROTM}"); e("s_lshl_b32 s59, s43, 8"); e("s_add_u32 s59, s59, 256"); e("s_and_b32 s59, s59, 1023")
    e("s_lshl_b32 s43, s43, 12"); e("v_add_u32 v254, s43, v244")
    for n in range(4):
        for c in range(7): issueZ1(n, c)
    for n in range(16):
        c, ks = n >> 1, n & 1
        if ks == 0 and f"A{c}" in k.vm: k.wait_vm(f"A{c}")
        for sg in range(4):
            e(f"ds_read_b128 {wf(sg)}, v{(250 if ks else 246)+sg} offset:{(c%NSLOT)*8192}")
        if n == 15:
            if f"Z{n}_6" in k.vm: k.wait_vm(f"Z{n}_6")
            e("s_waitcnt lgkmcnt(0)")
            for sg in (1, 3, 2, 0):
                for cc in range(7): e(f"{MFMA} {acc(cc,sg)}, {Z(n%4,cc)}, {wf(sg)}, {acc(cc,sg)}")
            continue
        for cc in range(7):
            if f"Z{n}_{cc}" in k.vm: k.wait_vm(f"Z{n}_{cc}")
            if n == 0 and cc == 0: k.stamp(8)
            for sg in range(4):
                if cc == 0: e(f"s_waitcnt lgkmcnt({3-sg})")
                e(f"{MFMA} {acc(cc,sg)}, {Z(n%4,cc)}, {wf(sg)}, {'0' if n == 0 else acc(cc,sg)}")
            if n + 4 < 16: issueZ1(n + 4, cc)
            if ks == 1 and c + NSLOT < 8 and cc in (0, 2, 4, 6): issueA1(c + NSLOT, cc // 2)
        if n == 12:
            e("s_lshl_b32 s43, s35, 2"); e("s_add_u32 s43, s43, s33"); e("s_mul_i32 s44, s43, 27648")
            for cc in range(7):
                e(f"s_add_u32 s45, s37, {cc}"); e("s_lshr_b32 s46, s45, 1"); e("s_lshl_b32 s46, s46, 10"); e("s_and_b32 s45, s45, 1"); e("s_lshl_b32 s45, s45, 3")
                e("s_add_u32 s45, s45, s46"); e(f"s_add_u32 s{52+cc}, s45, s44")
            e("s_cmp_eq_u32 s36, 3"); e(f"s_cselect_b32 s58, {HUGE}, s58")
            for cc in range(7): k.vmem(f"buffer_load_dwordx2 {v(112+2*cc,2)}, v244, s[24:27], s{52+cc} offen sc1", "z1")
            e("s_lshr_b32 s44, s43, 1"); e("s_lshl_b32 s44, s44, 5"); e("s_and_b32 s45, s43, 1"); e("s_lshl_b32 s45, s45, 2"); e("s_add_u32 s44, s44, s45")
            e("v_lshrrev_b32 v128, 2, v240"); e("v_and_b32 v129, 3, v240"); e("v_lshl_add_u32 v128, v128, 3, v129"); e("v_add_u32 v128, s44, v128")
            e("v_lshlrev_b32 v128, 1, v128")
            k.vmem("buffer_load_ushort v126, v128, s[64:67], 0 offen", "z1")
        if n == 12:
            e("s_lshl_b32 s43, s33, 2"); e(f"s_add_u32 s43, s43, {W_GL}"); e("v_mov_b32 v254, s43"); e("v_mov_b32 v255, 1")
            e("ds_write_b32 v254, v255")
    k.stamp(9); k.cyc(13)
    e("v_add_u32 v130, s39, v244")
    e("s_xor_b32 s43, s33, 1"); e(f"s_mul_i32 s43, s43, {RING2}"); e("v_add_u32 v131, s43, v244")
    e("s_xor_b32 s43, s33, 3"); e(f"s_mul_i32 s43, s43, {RING2}"); e("v_add_u32 v132, s43, v244")
    e(f"v_add_u32 v133, {W_R1 - W_GL}, v254")
    e("v_xor_b32 v134, 4, v133"); e("v_xor_b32 v135, 8, v133"); e("v_add_u32 v135, 16, v135")
    for c in range(7):
        for h in range(2): e(f"ds_write_b128 v130, {acc(c,1+2*h)} offset:{(c*2+h)*1024}")
    e("ds_write_b32 v133, v255")
    lds_wait(k, "m_wr1", "v134", "v136")
    T = 140
    for h in (1, 0):
        for c in range(7): e(f"ds_read_b128 {v(T+(c*2+h)*4,4)}, v131 offset:{(c*2+h)*1024}")
    e("s_waitcnt lgkmcnt(7)")
    for c in range(7):
        for p in range(2):
            a = (c*4 + 2)*4 + 2*p
            e(f"v_pk_add_f32 {pr(a)}, {pr(a)}, {pr(T+(c*2+1)*4+2*p)}")
    e("s_waitcnt lgkmcnt(0)")
    for c in range(7): e(f"ds_write_b128 v131, {acc(c,2)} offset:{c*1024}")
    e("ds_write_b32 v133, v255 offset:16")
    for c in range(7):
        for p in range(2):
            a = (c*4)*4 + 2*p
            e(f"v_pk_add_f32 {pr(a)}, {pr(a)}, {pr(T+(c*2)*4+2*p)}")
    lds_wait(k, "m_wr2", "v135", "v136")
    for c in range(7): e(f"ds_read_b128 {v(T+c*4,4)}, v132 offset:{c*1024}")
    e("s_waitcnt vmcnt(0)")
    k.vm = []
    e("v_lshlrev_b32 v126, 16, v126")
    for i in range(14): unpack(k, f"v{170+2*i}", f"v{171+2*i}", f"v{112+i}")
    k.srd(16, 14, 15, WOF_BYTES, WS_WOF)
    e("s_and_b32 s43, s41, 1"); e("s_lshl_b32 s43, s43, 2"); e("s_add_u32 s45, s36, s43")
    e("s_xor_b32 s43, s33, 3"); e("s_lshl_b32 s46, s43, 4"); e("s_sub_i32 s46, s46, 22"); e("s_max_i32 s46, s46, 0")
    e("s_cmp_eq_u32 s43, 1"); e("s_cselect_b32 s47, 10, 16"); e("s_cmp_eq_u32 s43, 0"); e("s_cselect_b32 s47, 0, s47")
    e("s_lshl_b32 s46, s46, 10"); e("s_mul_i32 s48, s45, 138240"); e("s_add_u32 s48, s48, s46"); e(f"s_add_u32 s46, s46, {IMG}")
    e("s_waitcnt lgkmcnt(0)")
    e("s_cmp_eq_u32 s47, 0"); e("s_cbranch_scc1 m_gwodone")
    k.label("m_gwoloop")
    e("s_mov_b32 m0, s46"); e("s_add_u32 s46, s46, 2048")
    e("buffer_load_dwordx4 v244, s[16:19], s48 offen sc1 lds"); e("buffer_load_dwordx4 v244, s[16:19], s48 offen offset:1024 sc1 lds")
    e("s_add_u32 s48, s48, 2048"); e("s_sub_u32 s47, s47, 2"); e("s_cmp_lg_u32 s47, 0"); e("s_cbranch_scc1 m_gwoloop")
    k.label("m_gwodone")
    A = [c*16 + 2*p for c in range(7) for p in range(2)]
    for i in range(14): e(f"v_pk_add_f32 {pr(A[i])}, {pr(A[i])}, {pr(T+2*i)}")
    for i in range(14): e(f"v_pk_add_f32 {pr(A[i])}, {pr(A[i])}, v[126:127] op_sel_hi:[1,0]")
    for i in range(14): e(f"v_pk_mul_f32 {pr(A[i])}, {pr(A[i])}, {pr(170+2*i)}")
    for i in range(14): e(f"v_cvt_pk_bf16_f32 v{200+i}, v{A[i]}, v{A[i]+1}")
    e("s_bitcmp1_b32 s37, 0"); e("s_cbranch_scc1 m_hodd")
    for c in (0, 2, 4): e(f"buffer_store_dwordx4 {v(200+2*c,4)}, v244, s[28:31], s{52+c} offen sc1")
    e(f"buffer_store_dwordx2 {v(212,2)}, v244, s[28:31], s58 offen sc1")
    e("s_branch m_hdone")
    k.label("m_hodd")
    e(f"buffer_store_dwordx2 {v(200,2)}, v244, s[28:31], s52 offen sc1")
    for c in (1, 3): e(f"buffer_store_dwordx4 {v(200+2*c,4)}, v244, s[28:31], s{52+c} offen sc1")
    e("s_cmp_eq_u32 s36, 3"); e("s_cbranch_scc1 m_hodd6")
    e(f"buffer_store_dwordx4 {v(210,4)}, v244, s[28:31], s57 offen sc1")
    e("s_branch m_hdone")
    k.label("m_hodd6")
    e(f"buffer_store_dwordx2 {v(210,2)}, v244, s[28:31], s57 offen sc1")
    k.label("m_hdone")
    e("v_mov_b32 v1, v245")
    e("s_and_b32 s43, s41, 1"); e("s_lshl_b32 s43, s43, 2"); e("s_add_u32 s36, s36, s43")
    e(f"v_mov_b32 v4, {W_PF + 4}"); e("v_mov_b32 v5, 1"); e("v_lshlrev_b32 v6, 7, v1"); e("v_mov_b32 v7, s3")
    e("s_lshl_b32 s44, s35, 10"); e("s_lshl_b32 s45, s36, 2"); e("s_add_u32 s44, s44, s45"); e(f"s_add_u32 s44, s44, {FH2}")
    e("s_mov_b64 exec, 1")
    e("s_waitcnt vmcnt(0)")
    e("ds_add_rtn_u32 v8, v4, v5")
    e("s_waitcnt lgkmcnt(0)")
    e("v_readfirstlane_b32 s43, v8")
    e("s_mov_b64 exec, 0xff")
    e("s_cmp_lg_u32 s43, 3"); e("s_cbranch_scc1 m_nopub")
    e("buffer_store_dword v7, v6, s[60:63], s44 offen sc1")
    k.label("m_nopub")
    e("s_mov_b64 exec, -1")
    e("s_setprio 0")
    e("v_and_b32 v2, 15, v1"); e("v_lshrrev_b32 v3, 4, v1")
    e("s_mov_b32 s47, 0"); e("s_mov_b32 s46, 0")

def gen_p3(k):
    e = k.e
    k.label("m_P3")
    k.stamp(10)
    e("s_lshr_b32 s34, s32, 2")
    e("v_lshlrev_b32 v15, 4, v1")
    k.srd(16, 14, 15, WOF_BYTES, WS_WOF)
    k.srd(20, 14, 15, ZF_BYTES, WS_HF)
    k.srd(24, 4, 5, 2048*1280)
    k.srd(28, 98, 99, 2048*1280)
    e("s_lshl_b32 s46, s46, 10"); e("s_mul_i32 s48, s36, 138240"); e("s_add_u32 s48, s48, s46"); e(f"s_add_u32 s46, s46, {IMG}")
    e("s_cmp_eq_u32 s47, 0"); e("s_cbranch_scc1 m_wodone")
    k.label("m_woloop")
    e("s_mov_b32 m0, s46"); e("s_add_u32 s46, s46, 1024")
    e("buffer_load_dwordx4 v15, s[16:19], s48 offen sc1 lds")
    e("s_add_u32 s48, s48, 1024"); e("s_sub_u32 s47, s47, 1"); e("s_cmp_lg_u32 s47, 0"); e("s_cbranch_scc1 m_woloop")
    k.label("m_wodone")
    def H(g, sg): return v(16 + (g*2 + sg)*4, 4)
    def WF(g, db): return v(72 + (g*5 + db)*4, 4)
    def acc(sg, db): return v(212 + (sg*5 + db)*4, 4)
    e("s_cmp_eq_u32 s33, 3"); e(f"s_cselect_b32 s45, {HUGE}, 6144")
    e("s_and_b32 s43, s33, 1"); e("s_lshl_b32 s44, s34, 1"); e("s_add_u32 s57, s43, s44")
    e("s_lshr_b32 s58, s33, 1"); e("s_mul_i32 s58, s58, 3")
    e("s_lshr_b32 s43, s57, 1"); e("s_lshl_b32 s43, s43, 5"); e("s_and_b32 s44, s57, 1"); e("s_lshl_b32 s44, s44, 2"); e("s_add_u32 s59, s43, s44")
    e("s_lshl_b32 s43, s35, 6"); e("s_add_u32 s43, s43, s59")
    e("v_lshrrev_b32 v6, 2, v2"); e("v_and_b32 v7, 3, v2"); e("v_lshl_add_u32 v6, v6, 3, v7"); e("v_add_u32 v6, s43, v6")
    e("v_mul_u32_u24 v6, 1280, v6"); e("v_lshl_add_u32 v6, v3, 3, v6"); e("s_mul_i32 s43, s36, 160"); e("v_add_u32 v14, s43, v6")
    for i in range(3):
        e(f"s_add_u32 s43, s58, {i}"); e(f"s_min_u32 s{68+i}, s43, 4")
        e(f"s_lshl_b32 s{72+i}, s{68+i}, 5")
    k.srd(64, 14, 15, XT_BYTES, WS_YT)
    e("s_lshl_b32 s43, s35, 2"); e("s_lshl_b32 s44, s34, 1"); e("s_add_u32 s43, s43, s44"); e("s_mul_i32 s43, s43, 27"); e("s_mul_i32 s44, s33, 7"); e("s_add_u32 s43, s43, s44")
    e("s_lshl_b32 s46, s43, 10"); e("s_add_u32 s47, s46, 27648")
    e("s_add_u32 s48, s46, 4096"); e("s_add_u32 s49, s47, 4096"); e("s_add_u32 s50, s46, s45"); e("s_add_u32 s51, s47, s45")
    e("s_mul_i32 s43, s33, 35840"); e(f"s_add_u32 s43, s43, {IMG}"); e("v_add_u32 v252, s43, v15")
    e("s_cmp_eq_u32 s33, 3"); e("s_cselect_b32 s43, 5120, 0"); e("v_subrev_u32 v253, s43, v252")
    e("v_and_b32 v4, 7, v1"); e("v_lshlrev_b32 v4, 2, v4")
    e("s_lshl_b32 s44, s35, 10"); e("s_lshl_b32 s43, s36, 7"); e("s_add_u32 s44, s44, s43"); e(f"s_add_u32 s44, s44, {FH2}")
    e("v_min_u32 v254, 39, v1"); e("v_lshlrev_b32 v254, 3, v254")
    e("s_mul_i32 s52, s36, 320"); e(f"s_add_u32 s52, s52, {FY}")
    e("s_cmp_ge_u32 s32, 4"); e("s_cbranch_scc1 m_nwv")
    e("s_waitcnt vmcnt(0)")
    k.label("m_nwv")
    e("s_barrier")
    k.stamp(4)
    e("s_cmp_lg_u32 s32, 3"); e("s_cbranch_scc1 m_nhp")
    e("buffer_load_dword v5, v4, s[60:63], s44 offen sc1")
    k.label("m_nhp")
    e("s_cmp_lg_u32 s32, 2"); e("s_cbranch_scc1 m_nyp")
    e("buffer_load_dwordx2 v[248:249], v254, s[60:63], s52 offen sc1")
    k.label("m_nyp")
    for g in range(7):
        for db in range(5): e(f"ds_read_b128 {WF(g,db)}, v{253 if g == 6 else 252} offset:{g*5120 + db*1024}")
    for i in range(3): e(f"buffer_load_dwordx2 {v(8+2*i,2)}, v14, s[24:27], s{72+i} offen")
    e("v_lshrrev_b32 v244, 3, v1"); e("v_lshlrev_b32 v244, 12, v244"); e("v_and_b32 v245, 7, v1"); e("v_lshl_add_u32 v244, v245, 4, v244")
    e("s_mul_i32 s53, s36, 80"); e("s_lshl_b32 s43, s32, 3"); e("s_add_u32 s53, s53, s43"); e("s_lshl_b32 s53, s53, 12"); e("s_lshl_b32 s43, s35, 7"); e("s_add_u32 s53, s53, s43")
    e("s_cmp_lt_u32 s32, 2"); e(f"s_cselect_b32 s54, {64*4096}, 0"); e("s_cselect_b32 s55, 8192, 0"); e("s_add_u32 s54, s54, s53")
    e("s_lshl_b32 s43, s32, 10"); e(f"s_add_u32 s43, s43, {YTILE}"); e("v_add_u32 v246, s43, v15"); e("v_add_u32 v247, s55, v246")
    e("s_cmp_lg_u32 s32, 3"); e("s_cbranch_scc1 m_hw")
    poll_flags(k, "m_pollh", "v4", FLS, 1, 5, "v6", soff="s44", sleep=2, preloaded=True)
    k.label("m_hw")
    e("s_cmp_lg_u32 s32, 2"); e("s_cbranch_scc1 m_noy")
    poll_flags(k, "m_polly", "v254", FLS, 2, 248, "v5", soff="s52", sleep=8, preloaded=True)
    k.label("m_noy")
    e("s_waitcnt lgkmcnt(0)")
    e("s_barrier")
    k.stamp(11)
    k.vm = []
    k.vmem("buffer_load_dwordx4 v[236:239], v244, s[64:67], s53 offen sc1", "y")
    k.vmem("buffer_load_dwordx4 v[240:243], v244, s[64:67], s54 offen sc1", "y")
    for g in range(7):
        for sg in range(2):
            so = 46 + sg + (0 if g < 4 else 2 if g < 6 else 4)
            k.vmem(f"buffer_load_dwordx4 {H(g,sg)}, v15, s[20:23], s{so} offen offset:{(g%4)*1024 if g < 6 else 0} sc1", f"h{g}")
    e("s_mul_i32 s43, s32, 10240"); e("v_add_u32 v252, s43, v15")
    e("s_mul_i32 s43, s34, 40960"); e("s_and_b32 s44, s33, 1"); e("s_mul_i32 s44, s44, 5120"); e("s_add_u32 s43, s43, s44")
    e("v_bfe_u32 v4, v1, 2, 2"); e("v_lshl_add_u32 v4, v3, 2, v4"); e("v_lshlrev_b32 v4, 7, v4")
    e("v_and_b32 v5, 3, v1"); e("v_lshl_add_u32 v4, v5, 4, v4")
    e("s_lshl_b32 s44, s59, 1"); e(f"s_add_u32 s44, s44, {YTILE}"); e("v_add_u32 v4, s44, v4")
    for i in range(3):
        e(f"s_lshl_b32 s44, s{68+i}, 10"); e("s_add_u32 s44, s44, s43"); e(f"v_add_u32 v{253+i}, s44, v15")
        e(f"s_lshl_b32 s44, s{68+i}, 11"); e(f"v_add_u32 v{5+i}, s44, v4")
    for g in range(7):
        k.wait_vm(f"h{g}")
        if g == 0: e("ds_write_b128 v246, v[236:239]"); e("ds_write_b128 v247, v[240:243]"); e("s_waitcnt lgkmcnt(0)")
        for db in range(5):
            for sg in range(2):
                e(f"{MFMA} {acc(sg,db)}, {WF(g,db)}, {H(g,sg)}, {'0' if g == 0 else acc(sg,db)}")
    e("s_nop 2")
    e("s_nop 1")
    for db in range(5):
        for sg in range(2): e(f"ds_write_b128 v252, {acc(sg,db)} offset:{(sg*5+db)*1024}")
    for i in range(6): unpack(k, f"v{96+2*i}", f"v{97+2*i}", f"v{8+i}")
    e("s_waitcnt lgkmcnt(0)")
    e("s_barrier")
    for i in range(3): e(f"ds_read_b64_tr_b16 {v(24+2*i,2)}, v{5+i}")
    for i in range(3):
        for kq in range(4): e(f"ds_read_b128 {v(32+(i*4+kq)*4,4)}, v{253+i} offset:{kq*10240}")
    e("s_waitcnt lgkmcnt(12)")
    for n in range(6): unpack(k, f"v{112+2*n}", f"v{113+2*n}", f"v{24+n}")
    for n in range(6): e(f"v_pk_add_f32 {pr(96+2*n)}, {pr(96+2*n)}, {pr(112+2*n)}")
    e("s_waitcnt lgkmcnt(0)")
    A = [32 + i*16 + 2*p for i in range(3) for p in range(2)]
    for n in range(6): e(f"v_pk_add_f32 {pr(A[n])}, {pr(A[n])}, {pr(A[n]+4)}"); e(f"v_pk_add_f32 {pr(A[n]+8)}, {pr(A[n]+8)}, {pr(A[n]+12)}")
    for n in range(6): e(f"v_pk_add_f32 {pr(A[n])}, {pr(A[n])}, {pr(A[n]+8)}")
    for n in range(6): e(f"v_pk_add_f32 {pr(A[n])}, {pr(A[n])}, {pr(96+2*n)}")
    for n in range(6): e(f"v_cvt_pk_bf16_f32 v{24+n}, v{A[n]}, v{A[n]+1}")
    for i in range(3): e(f"buffer_store_dwordx2 {v(24+2*i,2)}, v14, s[28:31], s{72+i} offen")
    k.end(0)

def gen_helper(k, epoch_poll):
    e = k.e
    k.label("m_helper")
    e("s_lshl_b32 s35, s41, 2"); e("s_add_u32 s35, s35, s42"); e("s_sub_u32 s35, s35, 28")
    e("v_and_b32 v2, 15, v1"); e("v_lshrrev_b32 v3, 4, v1")
    e("s_lshl_b32 s43, s32, 3")
    e("v_add_u32 v4, s43, v3")
    e("s_lshl_b32 s44, s35, 6")
    e("v_add_u32 v5, s44, v4"); e("v_mul_u32_u24 v5, 1280, v5"); e("v_lshl_add_u32 v5, v2, 4, v5")
    e("v_add_u32 v6, 5120, v5")
    e("v_mul_u32_u24 v7, 1296, v4"); e("v_lshl_add_u32 v7, v2, 4, v7")
    e("v_mov_b32 v110, 0")
    e("v_and_b32 v4, 31, v1"); e(f"v_lshlrev_b32 v4, 2, v4"); e(f"v_add_u32 v4, {W_EPOCH}, v4")
    e("s_cmp_lg_u32 s32, 4"); e("s_cbranch_scc1 m_hnoclr")
    e("ds_write_b32 v4, v110")
    k.label("m_hnoclr")
    e("s_waitcnt lgkmcnt(0)")
    k.srd(16, 4, 5, 2048*1280)
    k.srd(28, 14, 15, XT_BYTES, WS_XNT)
    k.srd(64, 12, 13, 256)
    k.srd(FLS, 14, 15, FL_BYTES, WS_FL)
    k.srd(20, 96, 97, 864*1280)
    k.srd(24, 14, 15, WOF_BYTES, WS_WOF)
    k.vm = []
    for g in range(2):
        for n in range(5):
            k.vmem(f"buffer_load_dwordx4 {v(8+g*20+n*4,4)}, v{5+g}, s[16:19], 0 offen offset:{n*256}", f"x{g}")
    e("s_lshl_b32 s36, s35, 3"); e("s_add_u32 s36, s36, s32")
    e("v_lshrrev_b32 v111, 3, v1"); e("v_mul_u32_u24 v111, 1280, v111"); e("v_and_b32 v112, 7, v1"); e("v_lshl_add_u32 v111, v112, 4, v111")
    for it in range(2):
        e(f"s_add_u32 s43, s36, {256*it}"); e("s_mul_i32 s44, s43, 205"); e("s_lshr_b32 s44, s44, 11"); e("s_mul_i32 s45, s44, 10"); e("s_sub_u32 s45, s43, s45")
        e("s_mul_i32 s46, s44, 40960"); e("s_lshl_b32 s47, s45, 7"); e("s_add_u32 s46, s46, s47")
        for d in range(4):
            e(f"s_lshl_b32 s47, s45, 2"); e(f"s_add_u32 s47, s47, {d}"); e("s_mul_i32 s56, s47, 52"); e("s_lshr_b32 s56, s56, 8")
            e("s_mul_i32 s56, s56, 130"); e("s_add_u32 s47, s47, s56"); e("s_mul_i32 s56, s44, 5"); e("s_add_u32 s47, s47, s56"); e("s_lshl_b32 s47, s47, 10")
            e("s_cmp_lt_u32 s43, 270"); e(f"s_cselect_b32 s{48+it*4+d}, s47, {HUGE}")
        for n in range(4):
            k.vmem(f"buffer_load_dwordx4 {v(120+it*16+n*4,4)}, v111, s[20:23], s46 offen", "wo")
            e("s_add_u32 s46, s46, 10240")
    for g in range(2):
        k.stamp(1+2*g)
        k.wait_vm(f"x{g}")
        X = 48
        src = 8 + g*20
        for n in range(20): unpack(k, f"v{X+2*n}", f"v{X+2*n+1}", f"v{src+n}")
        e(f"v_pk_add_f32 v[88:89], {pr(X)}, {pr(X+4)}"); e(f"v_pk_add_f32 v[90:91], {pr(X+2)}, {pr(X+6)}")
        for n in range(4, 20): e(f"v_pk_add_f32 {pr(88+2*(n%2))}, {pr(88+2*(n%2))}, {pr(X+2*n)}")
        e("v_pk_add_f32 v[88:89], v[88:89], v[90:91]"); e("s_nop 0"); e("v_add_f32 v88, v88, v89")
        for sh in (8, 4, 2, 1):
            e("s_nop 1"); e(f"v_add_f32_dpp v88, v88, v88 row_ror:{sh} row_mask:0xf bank_mask:0xf")
        e(f"v_mul_f32 v88, {f32(1/640)}, v88")
        for a in range(4): e(f"v_mov_b32 v{92+a}, 0")
        for n0 in range(0, 20, 4):
            for a in range(4): e(f"v_pk_add_f32 {pr(96+2*a)}, {pr(X+2*(n0+a))}, v[88:89] op_sel_hi:[1,0] neg_lo:[0,1] neg_hi:[0,1]")
            for a in range(4): e(f"v_pk_fma_f32 {pr(92+2*(a%2))}, {pr(96+2*a)}, {pr(96+2*a)}, {pr(92+2*(a%2))}")
        e("v_pk_add_f32 v[92:93], v[92:93], v[94:95]"); e("s_nop 0"); e("v_add_f32 v92, v92, v93")
        for sh in (8, 4, 2, 1):
            e("s_nop 1"); e(f"v_add_f32_dpp v92, v92, v92 row_ror:{sh} row_mask:0xf bank_mask:0xf")
        e(f"v_mul_f32 v92, {f32(1/640)}, v92")
        ln_finish(k, "v88", "v92", "v89")
        for n in range(20): e(f"v_pk_add_f32 {pr(X+2*n)}, {pr(X+2*n)}, v[88:89] op_sel_hi:[1,0] neg_lo:[0,1] neg_hi:[0,1]")
        for n in range(20): e(f"v_cvt_pk_bf16_f32 v{src+n}, v{X+2*n}, v{X+2*n+1}")
        for n in range(20): unpack(k, f"v{X+2*n}", f"v{X+2*n+1}", f"v{src+n}")
        for n in range(20): e(f"v_pk_mul_f32 {pr(X+2*n)}, {pr(X+2*n)}, v[92:93] op_sel_hi:[1,0]")
        for n in range(20): e(f"v_cvt_pk_bf16_f32 v{src+n}, v{X+2*n}, v{X+2*n+1}")
        for n in range(5):
            e(f"ds_write_b128 v7, {v(src+4*n,4)} offset:{g*4*1296 + n*256}")
    e(f"v_mov_b32 v9, {W_EPOCH}"); e("v_mov_b32 v10, 0")
    e("s_cmp_lg_u32 s32, 4"); e("s_cbranch_scc1 m_hepdone")
    e("buffer_load_dword v11, v10, s[64:67], 0 offen sc1")
    epoch_poll("h")
    k.label("m_hepdone")
    e("s_waitcnt lgkmcnt(0)")
    e("s_barrier")
    k.stamp(4)
    e("ds_read_b32 v113, v9")
    e("v_bfe_u32 v4, v1, 2, 2"); e("v_lshl_add_u32 v4, v3, 3, v4"); e("v_mul_u32_u24 v4, 1296, v4")
    e("v_and_b32 v5, 3, v1"); e("v_lshl_add_u32 v4, v5, 3, v4")
    e("s_lshl_b32 s43, s32, 5"); e("v_add_u32 v4, s43, v4")
    e(f"v_add_u32 v5, {32*1296}, v4")
    for n in range(5):
        for th in range(2):
            for hh in range(2):
                e(f"ds_read_b64_tr_b16 {v(16+(n*2+th)*4+hh*2,2)}, v{4+th} offset:{hh*4*1296 + n*256}")
    e("s_mul_i32 s43, s32, 4608"); e("s_add_u32 s43, s43, 90112")
    e("v_mul_u32_u24 v5, 144, v2"); e("v_lshl_add_u32 v5, v3, 4, v5"); e("v_add_u32 v5, s43, v5")
    e("v_lshrrev_b32 v4, 3, v1"); e("v_lshlrev_b32 v6, 12, v4"); e("v_mul_u32_u24 v4, 144, v4"); e("v_and_b32 v7, 7, v1"); e("v_lshl_add_u32 v4, v7, 4, v4"); e("v_add_u32 v4, s43, v4")
    e("v_lshl_add_u32 v6, v7, 4, v6")
    e("s_lshl_b32 s46, s32, 16"); e("s_lshl_b32 s44, s35, 7"); e("s_add_u32 s46, s46, s44"); e("s_add_u32 s47, s46, 32768")
    e("s_waitcnt vmcnt(0) lgkmcnt(0)")
    e("v_readfirstlane_b32 s3, v113")
    for n in range(5):
        o = (n % 2) * 2304
        for th in range(2): e(f"ds_write_b128 v5, {v(16+(n*2+th)*4,4)} offset:{o + th*64}")
        for hf in range(2): e(f"ds_read_b128 {v(56+(n*2+hf)*4,4)}, v4 offset:{o + hf*8*144}")
    for n in range(5):
        e(f"s_waitcnt lgkmcnt({min(15, 4*(4-n))})")
        for hf in range(2):
            e(f"buffer_store_dwordx4 {v(56+(n*2+hf)*4,4)}, v6, s[28:31], s{46+hf} offen sc1")
        e(f"s_add_u32 s46, s46, {8*65536}"); e(f"s_add_u32 s47, s47, {8*65536}")
    e("v_bfe_u32 v5, v1, 2, 2"); e("v_lshl_add_u32 v5, v3, 2, v5"); e("v_mul_u32_u24 v5, 144, v5"); e("v_and_b32 v6, 3, v1"); e("v_lshl_add_u32 v5, v6, 3, v5"); e("v_add_u32 v5, s43, v5")
    e("v_lshlrev_b32 v6, 4, v1")
    for it in range(2):
        for n in range(4): e(f"ds_write_b128 v4, {v(120+it*16+n*4,4)} offset:{n*8*144}")
        for d in range(4):
            for hh in range(2): e(f"ds_read_b64_tr_b16 {v(160+it*16+d*4+hh*2,2)}, v5 offset:{hh*16*144 + d*32}")
    k.stamp(5)
    e("s_waitcnt lgkmcnt(0)")
    for it in range(2):
        for d in range(4):
            e(f"buffer_store_dwordx4 {v(160+it*16+d*4,4)}, v6, s[24:27], s{48+it*4+d} offen sc1")
    e("s_load_dwordx8 s[64:71], s[0:1], 8")
    e("s_load_dwordx4 s[72:75], s[0:1], 40")
    e("s_cmp_ge_u32 s32, 4"); e("s_cbranch_scc1 m_hG")
    conv_params(k)
    e("s_waitcnt vmcnt(0)")
    e("s_barrier")
    e("s_branch m_Lpost")
    k.label("m_hG")
    e("s_waitcnt vmcnt(0) lgkmcnt(0)")
    e("s_barrier")
    e(f"v_mov_b32 v4, {W_PF + 8}"); e("v_mov_b32 v5, 4"); e("ds_write_b32 v4, v5")
    e("s_cmp_lg_u32 s32, 4"); e("s_cbranch_scc1 m_P2")
    e("s_lshl_b32 s45, s35, 2"); e(f"s_add_u32 s45, s45, {FX}")
    set_flag(k, FLS, "s45", 0, "v7", "v8")
    e("s_branch m_P2")

if __name__ == "__main__":
    import sys
    NAME = "parallel_sum__ssm_conv_s4d__mixer_gmlp__prompt"
    path = sys.argv[1] if len(sys.argv) > 1 else f"cdna_kernels/{NAME}.s"
    t, kd = gen_mega(NAME + "_kernel")
    hdr = open(f"cdna_kernels/{NAME}.s.ref").read().split("; Override launch")[0]
    lst = os.environ.get("LIST", "0") == "1"
    out = hdr + (f"; @launch kernel={NAME}_kernel grid=(256,1,1) block=(512,1,1) lds={LDS_TOTAL}\n" if lst else f"; @launch grid=(256,1,1) block=(512,1,1) lds={LDS_TOTAL}\n")
    out += '.amdgcn_target "amdgcn-amd-amdhsa--gfx950"\n.text\n' + t + '\ntext_end:\n.section .rodata,"a"\n.p2align 6\n' + kd + "\n"
    open(path, "w").write(out)
```

```python
from mega_common import *
FLS = 60
RING2 = 16384
CONV0 = 65536
CONV_B = 15360
YTILE = 81920
IMG = 22528
NSLOT = 2
ZSL = int(os.environ.get('ZSL', '2'))
ROTM = int(os.environ.get('ROTM', '0'))
WS_KC = 26*MB
KC_BYTES = 640 * 1536

def conv_params(k):
    e = k.e
    e("s_lshl_b32 s34, s2, 1"); e("s_add_u32 s34, s34, s32")
    e("s_lshl_b32 s56, s41, 4"); e("s_lshr_b32 s57, s42, 1"); e("s_add_u32 s56, s56, s57"); e("s_add_u32 s56, s56, 512")
    e("s_bitcmp1_b32 s42, 0"); e("s_cselect_b32 s56, s56, 1000")
    e("s_cmp_eq_u32 s32, 2"); e("s_cselect_b32 s34, s56, s34")
    e("s_cmp_eq_u32 s32, 3"); e("s_cselect_b32 s34, 1000, s34")
    e("s_lshl_b32 s56, s34, 8"); e("s_lshl_b32 s57, s34, 1")
    e("v_lshlrev_b32 v4, 2, v1"); e("v_mov_b32 v5, 0")
    e("s_waitcnt lgkmcnt(0)")
    for a in range(4):
        k.srd(28, 64+2*a, 65+2*a, 640*256)
        e(f"buffer_load_dword v{164+a}, v4, s[28:31], s56 offen")
    k.srd(28, 72, 73, 1280); e("buffer_load_ushort v13, v5, s[28:31], s57 offen")
    k.srd(28, 74, 75, 1280); e("buffer_load_ushort v14, v5, s[28:31], s57 offen")

def gen_mega(name):
    k = Kern(name)
    e = k.e
    e("s_cmp_ge_u32 s2, 256"); e("s_cbranch_scc1 m_end")
    k.stamp_init()
    e("s_load_dwordx2 s[4:5], s[0:1], 0")
    e("s_load_dwordx4 s[8:11], s[0:1], 64")
    e("s_load_dwordx4 s[12:15], s[0:1], 104")
    e("s_load_dwordx4 s[96:99], s[0:1], 88")
    e("v_and_b32 v1, 63, v0")
    e("v_lshrrev_b32 v2, 6, v0")
    e("s_and_b32 s41, s2, 7")
    e("v_readfirstlane_b32 s32, v2")
    e("s_lshr_b32 s42, s2, 3")
    e("s_and_b32 s33, s32, 3")
    e("s_cmp_ge_u32 s42, 28"); e("s_cbranch_scc1 m_helper")
    e("s_mul_i32 s43, s42, 37"); e("s_lshr_b32 s43, s43, 8")
    e("s_mul_i32 s44, s43, 7"); e("s_sub_u32 s44, s42, s44")
    e("s_lshr_b32 s35, s41, 1"); e("s_lshl_b32 s35, s35, 2"); e("s_add_u32 s35, s35, s43")
    e("s_and_b32 s36, s41, 1"); e("s_mul_i32 s36, s36, 7"); e("s_add_u32 s36, s36, s44")
    e("s_cmp_ge_u32 s32, 4"); e("s_cbranch_scc1 m_gemm1")
    e("s_mul_i32 s45, s44, 3"); e("s_mul_i32 s46, s43, 5"); e("s_lshr_b32 s46, s46, 1"); e("s_add_u32 s45, s45, s46")
    e("s_cmp_ge_u32 s45, 20"); e("s_cselect_b32 s46, 20, 0"); e("s_sub_u32 s45, s45, s46")
    e("s_cmp_ge_u32 s45, 10"); e("s_cselect_b32 s46, 10, 0"); e("s_sub_u32 s45, s45, s46")
    e("s_load_dwordx8 s[64:71], s[0:1], 8")
    e("s_load_dwordx4 s[72:75], s[0:1], 40")
    e("v_and_b32 v3, 7, v1")
    e("s_lshl_b32 s39, s32, 13")
    e("s_cmp_ge_u32 s32, 2"); e("s_cbranch_scc1 m_ldB")
    e("s_lshl_b32 s43, s35, 7"); e("s_lshl_b32 s44, s32, 6"); e("s_add_u32 s43, s43, s44")
    e("v_lshrrev_b32 v2, 5, v1"); e("v_lshlrev_b32 v2, 3, v2")
    e("v_bfe_u32 v4, v1, 3, 2"); e("v_add3_u32 v2, v2, v4, s43")
    e("v_mul_u32_u24 v2, 1280, v2")
    e("v_lshrrev_b32 v4, 4, v1"); e("v_xor_b32 v3, v3, v4")
    e("v_lshl_add_u32 v4, v3, 4, v2")
    e("v_xor_b32 v3, 4, v3"); e("v_lshl_add_u32 v5, v3, 4, v2")
    for n in range(8):
        ee, b, Pp = n & 1, (n >> 1) & 1, n >> 2
        e(f"v_add_u32 v{16+n}, {(32*Pp + 4*b + 16*ee)*1280 - (n & 3)*1024}, v{4+ee}")
    e("s_waitcnt lgkmcnt(0)")
    k.srd(16, 4, 5, 2048*1280)
    e("s_mov_b32 s38, 128")
    e("s_branch m_ld")
    k.label("m_ldB")
    e("v_lshrrev_b32 v2, 3, v1"); e("v_mul_u32_u24 v2, 3456, v2")
    e("s_cmp_eq_u32 s32, 2"); e("s_cselect_b32 s44, 1664, 0")
    e("s_lshl_b32 s43, s36, 7"); e("s_add_u32 s43, s43, s44"); e("v_add_u32 v2, s43, v2")
    e("v_bfe_u32 v4, v1, 4, 1"); e("v_lshlrev_b32 v4, 1, v4"); e("v_xor_b32 v3, v3, v4")
    e("v_lshl_add_u32 v4, v3, 4, v2")
    e("v_xor_b32 v3, 4, v3"); e("v_lshl_add_u32 v5, v3, 4, v2")
    for n in range(8):
        e(f"v_add_u32 v{16+n}, {8*n*3456 - (n & 3)*1024}, v{4+(n & 1)}")
    e("s_waitcnt lgkmcnt(0)")
    k.srd(16, 8, 9, 640*3456)
    e(f"s_mov_b32 s38, {64*3456}")
    k.label("m_ld")
    e("s_mul_i32 s37, s45, s38"); e("s_mul_i32 s46, s38, 10"); e("s_mov_b32 s40, 0")
    k.label("m_ldloop")
    e("s_cmp_lt_u32 s40, 3"); e("s_cbranch_scc1 m_ldissue")
    e("s_waitcnt vmcnt(16)")
    e("s_barrier")
    k.label("m_ldissue")
    for g in range(2):
        e(f"s_add_u32 m0, s39, {g*4096}")
        e("s_nop 0")
        for n in range(4): e(f"buffer_load_dwordx4 v{16+g*4+n}, s[16:19], s37 offen offset:{n*1024} lds")
    e("s_add_u32 s39, s39, 32768"); e("s_and_b32 s39, s39, 0x1ffff")
    e("s_add_u32 s37, s37, s38"); e("s_cmp_eq_u32 s37, s46"); e("s_cselect_b32 s37, 0, s37")
    e("s_add_u32 s40, s40, 1"); e("s_cmp_lt_u32 s40, 10"); e("s_cbranch_scc1 m_ldloop")
    k.stamp(1)
    conv_params(k)
    e("s_getpc_b64 s[44:45]")
    k.label("m_pc")
    e(f"s_sub_u32 s44, s44, m_pc-{name}"); e("s_subb_u32 s45, s45, 0")
    e(f"s_mov_b32 s46, text_end-{name}"); e("s_mov_b32 s47, 0x00020000")
    e("s_and_b32 s43, s42, 15"); e("s_lshl_b32 s43, s43, 2"); e("s_add_u32 s43, s43, s33"); e("s_lshl_b32 s43, s43, 10")
    e("v_lshlrev_b32 v2, 4, v1")
    e("buffer_load_dwordx4 v[224:227], v2, s[44:47], s43 offen")
    k.srd(20, 10, 11, 2048*4096)
    e("s_lshl_b32 s43, s42, 2"); e("s_add_u32 s43, s43, s32"); e(f"s_mul_i32 s43, s43, {9*1024+384}")
    e("s_lshl_b32 s44, s41, 20"); e("s_add_u32 s43, s43, s44")
    e("v_lshlrev_b32 v2, 4, v1")
    def pf(n):
        for i in range(n):
            e(f"buffer_load_dwordx4 v[224:227], v2, s[20:23], s43 offen offset:{(i%4)*1024}")
            if i % 4 == 3 or i == n - 1: e(f"s_add_u32 s43, s43, {(i%4+1)*1024}")
    e("s_waitcnt vmcnt(23)"); e("s_barrier"); pf(4)
    e("s_waitcnt vmcnt(19)"); e("s_barrier"); pf(6)
    e("s_waitcnt vmcnt(17)"); e("s_barrier")
    e("s_barrier")
    k.label("m_Lpost")
    k.stamp(2)
    e(f"v_mov_b32 v4, {W_EPOCH}"); e("ds_read_b32 v5, v4")
    k.srd(FLS, 14, 15, FL_BYTES, WS_FL)
    e("v_and_b32 v2, 15, v1"); e("v_lshrrev_b32 v3, 4, v1")
    e("s_lshr_b32 s35, s41, 1"); e("s_lshl_b32 s35, s35, 3"); e("s_lshr_b32 s43, s42, 2"); e("s_add_u32 s35, s35, s43")
    e("s_waitcnt lgkmcnt(0)")
    e("v_readfirstlane_b32 s3, v5")
    e("s_cmp_lg_u32 s32, 3"); e("s_cbranch_scc1 m_conv")
    k.srd(16, 10, 11, 2048*4096)
    e("v_lshrrev_b32 v4, 5, v1"); e("v_lshlrev_b32 v4, 3, v4"); e("v_bfe_u32 v5, v1, 3, 2"); e("v_add_u32 v4, v4, v5")
    e("v_lshlrev_b32 v4, 12, v4")
    e("v_and_b32 v5, 7, v1"); e("v_xor_b32 v5, v5, v3")
    e("v_lshl_add_u32 v6, v5, 4, v4")
    e("v_xor_b32 v5, 4, v5"); e("v_lshl_add_u32 v7, v5, 4, v4")
    for n in range(8):
        ee, t = n & 1, n >> 1
        e(f"v_add_u32 v{16+n}, {(32*(t >> 1) + 4*(t & 1) + 16*ee)*4096 - (n & 3)*1024}, v{6+ee}")
    e("s_lshl_b32 s37, s35, 18")
    e(f"s_and_b32 s43, s35, {ROTM}"); e("s_lshl_b32 s43, s43, 8"); e("s_add_u32 s37, s37, s43")
    e("s_mov_b32 s40, 0")
    k.label("m_pfloop")
    e("s_and_b32 s43, s40, 3"); e("s_lshr_b32 s44, s40, 2")
    e(f"s_mul_i32 s45, s43, {RING2}"); e("s_lshl_b32 s46, s44, 13"); e("s_add_u32 s45, s45, s46")
    e("s_lshl_b32 s43, s43, 10"); e("s_lshl_b32 s44, s44, 7"); e("s_add_u32 s43, s43, s44"); e("s_add_u32 s43, s43, s37")
    for g in range(2):
        e(f"s_add_u32 m0, s45, {g*4096}")
        e("s_nop 0")
        for n in range(4): e(f"buffer_load_dwordx4 v{16+g*4+n}, s[16:19], s43 offen offset:{n*1024} lds")
    e("s_waitcnt vmcnt(16)")
    e("s_add_u32 s40, s40, 1"); e("s_cmp_lt_u32 s40, 8"); e("s_cbranch_scc1 m_pfloop")
    k.stamp(3)
    e("s_and_b32 s36, s41, 1"); e("s_lshl_b32 s36, s36, 2"); e("s_and_b32 s43, s42, 3"); e("s_add_u32 s36, s36, s43")
    e("s_cmp_eq_u32 s36, 7"); e("s_cselect_b32 s43, 31, 47")
    e("v_min_u32 v7, s43, v1"); e("v_lshlrev_b32 v7, 2, v7")
    e("s_lshl_b32 s45, s35, 3"); e("s_add_u32 s45, s45, s36"); e("s_lshl_b32 s45, s45, 8"); e(f"s_add_u32 s45, s45, {FZ2}")
    e(f"v_mov_b32 v4, {W_PF + 8}")
    lds_wait_ge(k, "m_wown1", "v4", 5, 1, 4, sleep=2)
    poll_flags(k, "m_pollz", "v7", FLS, 1, 5, "v6", soff="s45", sleep=ZSL)
    e(f"v_mov_b32 v4, {W_PF}"); e("v_mov_b32 v5, 1")
    e("ds_write_b32 v4, v5")
    k.stamp(4)
    e("v_and_b32 v4, 31, v1"); e("v_lshlrev_b32 v4, 2, v4"); e(f"s_mov_b32 s44, {FX}")
    poll_flags(k, "m_pollx3", "v4", FLS, 1, 5, "v6", soff="s44", sleep=16)
    e(f"v_mov_b32 v4, {W_FX}"); e("v_mov_b32 v5, 1"); e("ds_write_b32 v4, v5")
    e("s_branch m_L3prep")
    k.label("m_conv")
    e("s_cmp_ge_u32 s34, 640"); e("s_cbranch_scc1 m_L3prep")
    e(f"s_mul_i32 s39, s32, {CONV_B}"); e(f"s_add_u32 s39, s39, {CONV0}")
    e("s_waitcnt vmcnt(10)")
    kgen_dt(k, "v13")
    kgen_addr(k, "s39", "v2", "v3", "v1")
    e("s_mov_b32 s40, 2")
    kgen_loop(k, 164, "v13", "s40")
    k.stamp(3)
    UO, KC = 8320, 12928
    e("v_lshlrev_b32 v15, 4, v1")
    e(f"s_mov_b32 s44, {FX}")
    e("v_and_b32 v220, 31, v1"); e("v_lshlrev_b32 v220, 2, v220")
    e("buffer_load_dword v216, v220, s[60:63], s44 offen sc1")
    e(f"s_add_u32 s43, s39, {KC}")
    e("v_max_u32 v4, 1, v3"); e("v_sub_u32 v4, 5, v4")
    e("v_lshlrev_b32 v5, v4, v2")
    e("v_lshlrev_b32 v6, 3, v3")
    e("v_mov_b32 v7, 512"); e("v_cmp_eq_u32 vcc, 2, v3"); e("s_nop 1"); e("v_cndmask_b32 v6, v6, v7, vcc")
    e("v_mov_b32 v7, 768"); e("v_mov_b32 v8, 4"); e("v_mov_b32 v9, 128"); e("v_cmp_eq_u32 vcc, 3, v3"); e("s_nop 1")
    e("v_cndmask_b32 v6, v6, v7, vcc"); e("v_cndmask_b32 v8, v8, v9, vcc")
    e("v_add3_u32 v5, v5, v6, s43")
    e("v_lshlrev_b32 v6, v4, 16"); e("v_add_u32 v6, v5, v6")
    e("v_add_u32 v7, v5, v8"); e("v_add_u32 v8, v6, v8")
    for n in range(8): e(f"v_cvt_pk_bf16_f32 v{24+n}, v{136+2*n}, v{137+2*n}")
    e("ds_write_b32 v5, v24"); e("ds_write_b32 v7, v25"); e("ds_write_b32 v6, v26"); e("ds_write_b32 v8, v27")
    e("v_lshlrev_b32 v9, 6, v2"); e("v_lshl_add_u32 v9, v3, 3, v9"); e("v_add_u32 v9, s43, v9")
    e("v_mov_b32 v20, 0"); e("v_mov_b32 v21, 0"); e("v_mov_b32 v22, 0"); e("v_mov_b32 v23, 0")
    e("v_add_u32 v16, s39, v15")
    e("v_lshl_add_u32 v17, v1, 3, s39")
    e(f"ds_write_b64 v17, v[20:21] offset:{UO}")
    e("v_cmp_gt_u32 vcc, 5, v2"); e("s_and_saveexec_b64 s[46:47], vcc")
    e("ds_write_b64 v9, v[28:29] offset:1024"); e("ds_write_b64 v9, v[30:31] offset:1056")
    e("s_mov_b64 exec, 3")
    e("ds_write_b128 v16, v[20:23] offset:4096"); e(f"ds_write_b128 v16, v[20:23] offset:{4160+4096}")
    e("s_mov_b64 exec, -1")
    e(f"s_add_u32 s44, s39, {KC + 256 - 2*0x4300}")
    e(f"v_mov_b32 v31, {f32(128.0)}")
    e("v_lshlrev_b32 v18, 3, v1"); e("v_cvt_f32_u32 v18, v18")
    e("s_waitcnt lgkmcnt(0)")
    for m in range(4):
        for el in range(10): e(f"v_sub_f32 v{96+el}, {f32(2047 - 512*m - el)}, v18")
        if m == 3: e("v_max_f32 v104, 0, v104")
        for p in range(5): e(f"v_cvt_pk_bf16_f32 v{108+p}, v{96+2*p}, v{97+2*p}")
        for el in range(9):
            a = f"v{114+el}"
            if el % 2 == 0: e(f"v_and_b32 {a}, 0xffff, v{108+el//2}")
            else: e(f"v_lshrrev_b32 {a}, 16, v{108+el//2}")
            e(f"v_lshl_add_u32 {a}, {a}, 1, s44")
            if m == 3:
                e(f"v_cvt_u32_f32 v19, v{96+el}"); e("v_lshl_add_u32 v19, v19, 1, s43")
                e(f"v_cmp_lt_f32 vcc, v{96+el}, v31"); e("s_nop 1"); e(f"v_cndmask_b32 {a}, {a}, v19, vcc")
        for el in range(9): e(f"ds_read_u16 v{144+9*m+el}, v{114+el}")
    e(f"s_mov_b32 s46, {FX}")
    poll_flags(k, "m_pollx", "v220", FLS, 1, 216, "v4", soff="s46", sleep=8, preloaded=True)
    k.stamp(4)
    k.srd(20, 14, 15, XT_BYTES, WS_XNT)
    k.srd(24, 14, 15, XT_BYTES, WS_YT)
    e("s_lshl_b32 s45, s34, 12")
    for n in range(4): e(f"buffer_load_dwordx4 {v(200+4*n,4)}, v15, s[20:23], s45 offen offset:{n*1024} sc1")
    e("s_waitcnt lgkmcnt(0)")
    e("v_cmp_eq_u32 vcc, 63, v1"); e("s_nop 1"); e(f"v_cndmask_b32 v{144+35}, v{144+35}, v20, vcc")
    for m in range(4):
        W = 32 + 16*m; E = 144 + 9*m
        for p in range(4):
            e(f"v_lshl_or_b32 v{W+p}, v{E+2*p+1}, 16, v{E+2*p}")
            e(f"v_lshl_or_b32 v{W+8+p}, v{E+2*p+2}, 16, v{E+2*p+1}")
        e(f"ds_write_b128 v16, {v(W,4)} offset:{1024*m}")
        e(f"ds_write_b128 v16, {v(W+8,4)} offset:{4160+1024*m}")
    e("s_waitcnt vmcnt(0)")
    for n in range(4): e(f"ds_write_b128 v16, {v(200+4*n,4)} offset:{UO+512+1024*n}")
    k.stamp(5)
    e("v_and_b32 v4, 1, v2"); e("v_xor_b32 v4, 1, v4"); e("v_mul_u32_u24 v4, 4160, v4")
    e("v_lshrrev_b32 v5, 1, v2"); e("v_lshlrev_b32 v6, 2, v3"); e("v_sub_u32 v5, v6, v5")
    e("v_lshl_add_u32 v4, v5, 2, v4"); e("v_add_u32 v4, s39, v4")
    for mp in range(4): e(f"v_add_u32 v{24+mp}, {4*(1023 - 8 - 128*(2*mp+1))}, v4")
    e("v_lshlrev_b32 v5, 5, v2"); e("v_lshl_add_u32 v5, v3, 4, v5")
    e(f"s_add_u32 s43, s39, {UO+480}"); e("v_add_u32 v28, s43, v5")
    def Af(m): return 32 + 4*m
    def Bf(r): return 64 + 4*r
    def ac(cb): return v(96 + 4*cb, 4)
    for i in range(32): e(f"v_mov_b32 v{96+i}, 0")
    e("v_lshlrev_b32 v14, 16, v14")
    e("s_waitcnt lgkmcnt(0)")
    def rdA(m):
        o = 0 if m & 1 else 128
        e(f"ds_read2_b32 {v(Af(m),2)}, v{24+m//2} offset0:{o} offset1:{o+1}"); e(f"ds_read2_b32 {v(Af(m)+2,2)}, v{24+m//2} offset0:{o+2} offset1:{o+3}")
    def rdB(r): e(f"ds_read_b128 {v(Bf(r),4)}, v28 offset:{512*r}")
    for m in range(8): rdA(m); rdB(7-m)
    e("s_mov_b32 s40, 8")
    k.label("m_cloop")
    for r in range(24, 29): e(f"v_subrev_u32 v{r}, 64, v{r}")
    for m in range(8):
        for cb in (range(7, -1, -1) if m == 0 else range(m, 8)):
            if m == 0: e(f"s_waitcnt lgkmcnt({min(3*cb, 15)})")
            e(f"{MFMA} {ac(cb)}, {v(Af(m),4)}, {v(Bf(cb-m),4)}, {ac(cb)}")
        rdA(m); rdB(7-m)
    e("s_sub_u32 s40, s40, 1"); e("s_cmp_lg_u32 s40, 0"); e("s_cbranch_scc1 m_cloop")
    k.stamp(6)
    e("s_waitcnt lgkmcnt(0)")
    e("v_lshlrev_b32 v20, 5, v2"); e("v_lshl_add_u32 v20, v3, 3, v20")
    e(f"s_add_u32 s43, s39, {UO+512}"); e("v_add_u32 v21, s43, v20")
    for cb in range(8): e(f"ds_read_b64 {v(32+2*cb,2)}, v21 offset:{512*cb}")
    e("s_waitcnt lgkmcnt(0)")
    for c0 in (0, 4):
        A = [96 + 4*cb + 2*p for cb in range(c0, c0+4) for p in range(2)]
        U = [32 + 2*cb + p for cb in range(c0, c0+4) for p in range(2)]
        for i in range(8): unpack(k, f"v{72+2*i}", f"v{73+2*i}", f"v{U[i]}")
        for i in range(8): e(f"v_pk_fma_f32 {pr(A[i])}, {pr(72+2*i)}, v[14:15], {pr(A[i])} op_sel_hi:[1,0,1]")
        for i in range(8): e(f"v_cvt_pk_bf16_f32 v{U[i]}, v{A[i]}, v{A[i]+1}")
        for cb in range(c0, c0+4): e(f"ds_write_b64 v21, {v(32+2*cb,2)} offset:{512*cb}")
    for n in range(4): e(f"ds_read_b128 {v(64+4*n,4)}, v16 offset:{UO+512+1024*n}")
    for n in range(4):
        e(f"s_waitcnt lgkmcnt({3-n})")
        e(f"buffer_store_dwordx4 {v(64+4*n,4)}, v15, s[24:27], s45 offen offset:{1024*n} sc1")
    e("s_lshl_b32 s43, s34, 2"); e(f"s_add_u32 s43, s43, {FY}")
    set_flag(k, FLS, "s43", 0, "v4", "v5")
    k.stamp(7)
    k.label("m_L3prep")
    e("s_and_b32 s36, s41, 1"); e("s_lshl_b32 s36, s36, 2"); e("s_and_b32 s43, s42, 3"); e("s_add_u32 s36, s36, s43")
    e("s_lshl_b32 s43, s33, 2"); e(f"s_add_u32 s43, s43, {W_GL}"); e("v_mov_b32 v4, s43")
    lds_wait(k, "m_wgl", "v4", "v5", sleep=8)
    e(f"v_mov_b32 v4, {W_FX}")
    lds_wait(k, "m_wfw", "v4", "v5")
    k.stamp(8)
    e("s_mul_i32 s46, s33, 15"); e("s_add_u32 s46, s46, 42")
    e("s_cmp_eq_u32 s33, 3"); e("s_cselect_b32 s47, 48, 15")
    e("s_branch m_P3")

    k.label("m_gemm1")
    e("v_and_b32 v2, 15, v1"); e("v_lshrrev_b32 v3, 4, v1")
    e("v_lshlrev_b32 v12, 4, v1")
    e("v_add_u32 v13, 4096, v12")
    PL = 200
    def poll_loads():
        for i in range(7):
            e(f"buffer_load_dwordx4 {v(PL+4*i,4)}, v{12 if i < 4 else 13}, s[28:31], s72 offen offset:{(i%4)*1024} sc1")
    e("v_mov_b32 v10, 0")
    e("v_and_b32 v4, 31, v1"); e(f"v_lshlrev_b32 v4, 2, v4"); e(f"v_add_u32 v4, {W_EPOCH}, v4")
    e("ds_write_b32 v4, v10")
    e("s_waitcnt lgkmcnt(0)")
    k.srd(64, 12, 13, 256)
    e("s_cmp_lg_u32 s2, 0"); e("s_cbranch_scc1 m_noep")
    e("s_cmp_lg_u32 s32, 4"); e("s_cbranch_scc1 m_noep")
    e("s_memrealtime s[44:45]"); e("s_waitcnt lgkmcnt(0)"); e("s_or_b32 s44, s44, 1"); e("v_mov_b32 v4, s44")
    e("s_mov_b64 exec, 1")
    e("buffer_store_dword v4, v10, s[64:67], 0 offen sc1")
    e("s_mov_b64 exec, -1")
    k.label("m_noep")
    e("s_lshl_b32 s43, s35, 2"); e("s_add_u32 s43, s43, s33"); e(f"s_mul_i32 s72, s43, {14*512}")
    e("s_lshl_b32 s44, s36, 9"); e("s_add_u32 s73, s72, s44")
    e("s_lshl_b32 s74, s36, 6"); e("s_add_u32 s74, s74, s43"); e("s_lshl_b32 s74, s74, 2")
    e("v_and_b32 v4, 7, v1"); e("v_lshl_add_u32 v4, v3, 3, v4"); e("v_bfe_u32 v5, v1, 3, 1"); e("v_lshlrev_b32 v5, 3, v5")
    e("v_lshl_add_u32 v230, v4, 4, v5")
    k.srd(28, 14, 15, ST2_BYTES, WS_ST2)
    k.srd(24, 14, 15, ZF_BYTES, WS_Z2F)
    k.srd(20, 14, 15, ZF_BYTES, WS_Z1F)
    k.srd(FLS, 14, 15, FL_BYTES, WS_FL)
    for c in range(4):
        e(f"s_xor_b32 s43, s33, {c}")
        e("s_lshl_b32 s44, s36, 2"); e("s_add_u32 s43, s43, s44"); e("s_sub_u32 s43, s43, 2")
        e(f"s_cmp_lt_u32 s43, 54"); e(f"s_cselect_b32 s{50+c}, -1, 0")
        e("s_cselect_b32 s43, s43, 60")
        e(f"s_lshl_b32 s{46+c}, s43, 16")
        e("s_lshl_b32 s44, s35, 2"); e("s_add_u32 s44, s44, s33"); e("s_lshl_b32 s44, s44, 10")
        e(f"s_add_u32 s{46+c}, s{46+c}, s44")
    for b in range(2):
        for g in range(2):
            e("s_lshr_b32 s43, s33, 1"); e(f"s_xor_b32 s43, s43, {g}"); e("s_lshl_b32 s44, s36, 1"); e("s_add_u32 s43, s43, s44")
            e("s_lshl_b32 s44, s35, 3"); e("s_lshl_b32 s45, s33, 1"); e("s_add_u32 s44, s44, s45"); e(f"s_add_u32 s44, s44, {b}")
            e("s_mul_i32 s44, s44, 27"); e("s_add_u32 s44, s44, s43"); e("s_lshl_b32 s44, s44, 10")
            e("s_cmp_lt_u32 s43, 27"); e(f"s_cselect_b32 s{68+b*2+g}, s44, {HUGE}")
    e("v_and_b32 v4, 2, v1"); e("v_and_b32 v5, 1, v1")
    e("v_cmp_ne_u32 s[54:55], 0, v4"); e("v_cmp_ne_u32 s[56:57], 0, v5")
    e("s_lshl_b32 s43, s33, 5")
    e("v_add_u32 v4, s43, v2"); e("v_lshlrev_b32 v4, 7, v4")
    e("v_lshrrev_b32 v5, 1, v2"); e("v_xor_b32 v5, v5, v3")
    e("v_lshl_add_u32 v14, v5, 4, v4")
    e("v_xor_b32 v15, 64, v14")
    e("v_bfe_u32 v4, v1, 2, 2")
    e("v_lshl_add_u32 v5, v3, 3, v4"); e("v_lshlrev_b32 v5, 7, v5")
    e("v_and_b32 v6, 3, v1"); e("v_lshl_add_u32 v5, v6, 3, v5")
    e("v_add_u32 v5, 16384, v5")
    e("v_lshrrev_b32 v6, 1, v4"); e("v_and_b32 v7, 1, v3"); e("v_lshl_or_b32 v6, v7, 1, v6")
    e("v_xor_b32 v6, s33, v6")
    for c in range(4):
        e(f"v_xor_b32 v7, {c}, v6"); e(f"v_lshl_add_u32 v{16+c}, v7, 5, v5")
    for i in range(4): e(f"v_mov_b32 v{20+i}, 0x3f803f80")
    ACC = 104
    for i in range(ACC, 192): e(f"v_mov_b32 v{i}, 0")
    def xf(ks, b): return v(24 + 40*ks + 4*b, 4)
    def wfb(ks, h, c): return 24 + 40*ks + 8 + 16*h + 4*c
    def wf(ks, h, c): return v(wfb(ks, h, c), 4)
    def accb(h, b, c): return ACC + 32*h + (b*4 + c)*4
    def acc(h, b, c): return v(accb(h, b, c), 4)
    def rlist(ks):
        L = [f"ds_read_b128 {xf(ks,b)}, v{14+ks} offset:{2048*b}" for b in range(2)]
        for h in range(2):
            for c in range(4):
                for hh in range(2):
                    L.append(f"ds_read_b64_tr_b16 {v(wfb(ks,h,c)+2*hh,2)}, v{16+c} offset:{h*8192+ks*4096+hh*512}")
        return L
    def mlist(ks):
        L = []
        for b in range(2):
            L.append(f"{MFMA} {v(168+4*b,4)}, v[20:23], {xf(ks,b)}, {v(168+4*b,4)}")
            L.append(f"{MFMA} {v(176+4*b,4)}, {xf(ks,b)}, {xf(ks,b)}, {v(176+4*b,4)}")
        for h in range(2):
            L.append(f"{MFMA} {v(184+4*h,4)}, v[20:23], {wf(ks,h,0)}, {v(184+4*h,4)}")
            for c in range(4):
                for b in range(2):
                    if h == 0: L.append(f"{MFMA} {acc(h,b,c)}, {xf(ks,b)}, {wf(ks,h,c)}, {acc(h,b,c)}")
                    else:      L.append(f"{MFMA} {acc(h,b,c)}, {wf(ks,h,c)}, {xf(ks,b)}, {acc(h,b,c)}")
        return L
    def phase(ks, rd, extra=()):
        M = mlist(ks); R = list(rd); X = list(extra)
        for i, m in enumerate(M):
            e(m)
            if R: e(R.pop(0))
            elif X:
                for _ in range(2):
                    if X: e(X.pop(0))
        for x in X: e(x)
    bump = [f"v_add_u32 v{r}, 0x8000, v{r}" for r in range(14, 20)]
    wrap = [f"v_and_b32 v{r}, 0x1ffff, v{r}" for r in range(14, 20)]
    k.stamp(1)
    e("s_mov_b32 s40, 10")
    e("s_barrier")
    k.stamp(2)
    for r in rlist(0): e(r)
    k.label("m_loop1")
    e("s_waitcnt lgkmcnt(0)")
    phase(0, rlist(1), bump + wrap)
    e("s_sub_u32 s40, s40, 1"); e("s_cmp_eq_u32 s40, 0")
    e("s_waitcnt lgkmcnt(0)")
    e(f"s_cbranch_scc1 m_tail1")
    e("s_barrier")
    phase(1, rlist(0))
    e("s_cmp_lg_u32 s40, 5"); e("s_cbranch_scc1 m_loop1")
    e("s_cmp_lg_u32 s33, 0"); e("s_cbranch_scc1 m_loop1")
    e("buffer_load_dword v11, v10, s[64:67], 0 offen sc1")
    e(f"s_branch m_loop1")
    k.label(f"m_tail1")
    phase(1, [])
    e("s_setprio 2")
    k.stamp(3)
    e("s_lshl_b32 s43, s33, 6"); e(f"s_add_u32 s43, s43, {MISC+1024}")
    e("v_lshl_add_u32 v8, v2, 2, s43")
    e("v_and_b32 v4, 3, v1")
    e("v_cmp_eq_u32 s[44:45], 1, v4"); e("v_cmp_eq_u32 s[58:59], 2, v4"); e("v_cmp_eq_u32 vcc, 3, v4")
    e("s_nop 2")
    e("ds_write_b32 v8, v184"); e("ds_write_b32 v8, v188 offset:256")
    e(f"v_mov_b32 v9, {W_EPOCH}")
    def epoch_poll(tag):
        e("s_mov_b32 s40, 0")
        k.label(f"m_eppoll{tag}")
        e("s_waitcnt vmcnt(0)")
        e("v_readfirstlane_b32 s43, v11")
        e("s_add_u32 s40, s40, 1")
        e("s_cmp_lg_u32 s43, 0"); e(f"s_cbranch_scc1 m_epok{tag}")
        e("buffer_load_dword v11, v10, s[64:67], 0 offen sc1")
        e(f"s_cmp_lt_u32 s40, {SPIN}"); e(f"s_cbranch_scc1 m_eppoll{tag}")
        k.label(f"m_epok{tag}")
        e("ds_write_b32 v9, v11")
    e("s_cmp_lg_u32 s33, 0"); e("s_cbranch_scc1 m_epdone")
    epoch_poll("g")
    k.label("m_epdone")
    e("s_waitcnt lgkmcnt(0)")
    e("s_barrier")
    for b in range(2):
        q0 = 176 + 4*b
        e(f"v_cndmask_b32 v{q0}, v{q0}, v{q0+1}, s[44:45]"); e(f"v_cndmask_b32 v{q0}, v{q0}, v{q0+2}, s[58:59]"); e(f"v_cndmask_b32 v{q0}, v{q0}, v{q0+3}, vcc")
        e(f"v_mul_f32 v{168+4*b}, {f32(1/640)}, v{168+4*b}")
        e(f"v_mul_f32 v{q0}, {f32(1/640)}, v{q0}")
        e(f"v_fma_f32 v{q0}, -v{168+4*b}, v{168+4*b}, v{q0}")
    for c in range(4):
        e(f"s_xor_b32 s43, s33, {c}"); e(f"s_lshl_b32 s43, s43, 6"); e(f"s_add_u32 s43, s43, {MISC+1024}")
        e(f"v_lshl_add_u32 v5, v2, 2, s43"); e(f"v_lshl_add_u32 v6, v3, 4, s43")
        e(f"ds_read_b32 v{40+2*c}, v5")
        e(f"ds_read_b128 {v(64+4*c,4)}, v6 offset:256")
    e("ds_read_b32 v229, v9")
    for b in range(2): ln_finish(k, f"v{168+4*b}", f"v{176+4*b}", "v7")
    e("s_lshl_b32 s43, s33, 7"); e(f"s_add_u32 s43, s43, {MISC}")
    e("v_lshl_add_u32 v7, v2, 2, s43")
    e("v_lshl_add_u32 v8, v3, 4, s43")
    e("v_lshrrev_b32 v4, 2, v2")
    e("v_cmp_eq_u32 vcc, v4, v3")
    e("s_and_saveexec_b64 s[44:45], vcc")
    for b in range(2):
        e(f"ds_write_b32 v7, v{168+4*b} offset:{64*b}"); e(f"ds_write_b32 v7, v{176+4*b} offset:{512+64*b}")
    e("s_mov_b64 exec, s[44:45]")
    e("ds_read_b128 v[24:27], v8"); e("ds_read_b128 v[28:31], v8 offset:64")
    e("ds_read_b128 v[32:35], v8 offset:512"); e("ds_read_b128 v[36:39], v8 offset:576")
    e("ds_read_b32 v80, v7"); e("ds_read_b32 v82, v7 offset:64"); e("ds_read_b32 v84, v7 offset:512"); e("ds_read_b32 v86, v7 offset:576")
    e(f"v_mov_b32 v88, {f32(GC1)}"); e(f"v_mov_b32 v90, {f32(GC0)}")
    for i in range(168, 184): e(f"v_mov_b32 v{i}, 0")
    e("s_waitcnt lgkmcnt(0)")
    e("v_readfirstlane_b32 s3, v229")
    e("s_cmp_lg_u32 s36, 0"); e("s_cbranch_scc1 m_nomask")
    for c in range(4):
        e(f"v_and_b32 v{40+2*c}, s{50+c}, v{40+2*c}")
        for b in range(2):
            for r in range(4): e(f"v_and_b32 v{accb(0,b,c)+r}, s{50+c}, v{accb(0,b,c)+r}")
    k.label("m_nomask")
    def gelu_pairs(A):
        n = len(A); T = [48 + 2*i for i in range(n)]
        for i in range(n): e(f"v_pk_mul_f32 {pr(T[i])}, {pr(A[i])}, {pr(A[i])}")
        for i in range(n): e(f"v_pk_fma_f32 {pr(T[i])}, {pr(T[i])}, v[88:89], v[90:91] op_sel_hi:[1,0,0]")
        for i in range(n): e(f"v_pk_mul_f32 {pr(T[i])}, {pr(T[i])}, {pr(A[i])}")
        for i in range(n): e(f"v_exp_f32 v{T[i]}, v{T[i]}"); e(f"v_exp_f32 v{T[i]+1}, v{T[i]+1}")
        for i in range(n): e(f"v_pk_add_f32 {pr(T[i])}, {pr(T[i])}, 1.0 op_sel_hi:[1,0]")
        for i in range(n): e(f"v_rcp_f32 v{T[i]}, v{T[i]}"); e(f"v_rcp_f32 v{T[i]+1}, v{T[i]+1}")
        for i in range(n): e(f"v_pk_mul_f32 {pr(A[i])}, {pr(A[i])}, {pr(T[i])}")
    for c0 in (0, 2):
        A = [accb(0, b, c) + 2*p for c in (c0, c0+1) for b in range(2) for p in range(2)]
        M = [24 + 4*b + 2*p for c in (c0, c0+1) for b in range(2) for p in range(2)]
        C = [40 + 2*c for c in (c0, c0+1) for b in range(2) for p in range(2)]
        for i in range(8): e(f"v_pk_fma_f32 {pr(A[i])}, {pr(M[i])}, {pr(C[i])}, {pr(A[i])} op_sel_hi:[1,0,1] neg_lo:[1,0,0] neg_hi:[1,0,0]")
        for i in range(8): e(f"v_pk_mul_f32 {pr(A[i])}, {pr(A[i])}, {pr(M[i]+8)}")
        gelu_pairs(A)
        for i in range(8):
            n = (i % 4) * 2
            e(f"v_pk_add_f32 {pr(168+n)}, {pr(168+n)}, {pr(A[i])}")
            e(f"v_pk_fma_f32 {pr(176+n)}, {pr(A[i])}, {pr(A[i])}, {pr(176+n)}")
    e("s_nop 0")
    for n in range(8): e(f"v_add_f32_dpp v{48+n}, v{168+n}, v{168+n} row_ror:8 row_mask:0xf bank_mask:0x3")
    for n in range(8): e(f"v_add_f32_dpp v{48+n}, v{176+n}, v{176+n} row_ror:8 row_mask:0xf bank_mask:0xc")
    for n in range(4): e(f"v_add_f32_dpp v{168+n}, v{48+n}, v{48+n} row_half_mirror row_mask:0xf bank_mask:0x5")
    for n in range(4): e(f"v_add_f32_dpp v{168+n}, v{52+n}, v{52+n} row_half_mirror row_mask:0xf bank_mask:0xa")
    for n in range(2):
        e(f"v_cndmask_b32 v{172+n}, v{170+n}, v{168+n}, s[54:55]")
        e(f"v_cndmask_b32 v{174+n}, v{168+n}, v{170+n}, s[54:55]")
    e("s_nop 0")
    for n in range(2): e(f"v_add_f32_dpp v{176+n}, v{172+n}, v{174+n} quad_perm:[2,3,0,1] row_mask:0xf bank_mask:0xf")
    e("v_cndmask_b32 v172, v177, v176, s[56:57]"); e("v_cndmask_b32 v174, v176, v177, s[56:57]")
    e("s_nop 1")
    e("v_add_f32_dpp v228, v172, v174 quad_perm:[1,0,3,2] row_mask:0xf bank_mask:0xf")
    e("buffer_store_dwordx2 v[228:229], v230, s[28:31], s73 offen sc1")
    e("s_setprio 0")
    k.stamp(4)
    P1 = 168
    for c0 in (0, 2):
        A = [accb(1, b, c) + 2*p for c in (c0, c0+1) for b in range(2) for p in range(2)]
        M = [80 + 2*b for c in (c0, c0+1) for b in range(2) for p in range(2)]
        C = [64 + 4*c + 2*p for c in (c0, c0+1) for b in range(2) for p in range(2)]
        for i in range(8): e(f"v_pk_fma_f32 {pr(A[i])}, {pr(M[i])}, {pr(C[i])}, {pr(A[i])} op_sel_hi:[0,1,1] neg_lo:[1,0,0] neg_hi:[1,0,0]")
        for i in range(8): e(f"v_pk_mul_f32 {pr(A[i])}, {pr(A[i])}, {pr(M[i]+4)} op_sel_hi:[1,0]")
        gelu_pairs(A)
        i = 0
        for c in (c0, c0+1):
            for b in range(2):
                for p in range(2):
                    e(f"v_cvt_pk_bf16_f32 v{P1+b*8+c*2+p}, v{A[i]}, v{A[i]+1}"); i += 1
        if c0 == 0: poll_loads()
    e("s_bitcmp1_b32 s33, 0"); e("s_cbranch_scc0 m_noswap")
    for b in range(2):
        for g in range(2):
            for p in range(2):
                r0 = P1 + b*8 + g*4 + p
                e(f"v_swap_b32 v{r0}, v{r0+2}")
    k.label("m_noswap")
    e("s_setprio 2")
    e("s_mov_b32 s40, 0")
    e("s_waitcnt vmcnt(0)")
    for b in range(2):
        for g in range(2):
            e(f"buffer_store_dwordx4 {v(P1+b*8+g*4,4)}, v12, s[20:23], s{68+b*2+g} offen sc1")
    e("s_branch m_check")
    k.label("m_poll")
    poll_loads()
    e("s_waitcnt vmcnt(0)")
    k.label("m_check")
    e(f"v_xor_b32 v4, v{PL+1}, v229"); e(f"v_xor_b32 v5, v{PL+3}, v229")
    for i in range(1, 7):
        e(f"v_xor_b32 v9, v{PL+1+4*i}, v229"); e(f"v_xor_b32 v10, v{PL+3+4*i}, v229")
        e("v_or3_b32 v4, v4, v9, v10")
    e("v_or_b32 v4, v4, v5")
    e("v_cmp_ne_u32 vcc, 0, v4")
    e("s_add_u32 s40, s40, 1")
    e("s_nop 0")
    e("s_cbranch_vccz m_poll_done")
    e(f"s_cmp_lt_u32 s40, {SPIN}"); e("s_cbranch_scc1 m_poll")
    k.label("m_poll_done")
    k.stamp(5)
    for i in range(1, 7):
        e(f"v_add_f32 v{PL}, v{PL}, v{PL+4*i}"); e(f"v_add_f32 v{PL+2}, v{PL+2}, v{PL+2+4*i}")
    e(f"v_mov_b32 v{PL+1}, v{PL}"); e(f"v_mov_b32 v{PL+3}, v{PL+2}"); e("s_nop 1")
    e(f"v_permlane32_swap_b32 v{PL}, v{PL+1}"); e(f"v_permlane32_swap_b32 v{PL+2}, v{PL+3}"); e("s_nop 1")
    e(f"v_add_f32 v24, v{PL}, v{PL+1}"); e(f"v_add_f32 v26, v{PL+2}, v{PL+3}")
    e(f"v_mul_f32 v24, {f32(1/864)}, v24"); e(f"v_mul_f32 v26, {f32(1/864)}, v26")
    e("v_fma_f32 v26, -v24, v24, v26")
    ln_finish(k, "v24", "v26", "v25")
    e("s_lshl_b32 s43, s33, 8"); e(f"s_add_u32 s43, s43, {MISC+1536}")
    e("v_and_b32 v4, 31, v1"); e("v_lshl_add_u32 v4, v4, 2, s43"); e("v_lshl_add_u32 v5, v3, 5, s43")
    e("v_mul_f32 v24, v24, v26")
    e("ds_write_b32 v4, v24"); e("ds_write_b32 v4, v26 offset:128")
    e("ds_read_b128 v[28:31], v5"); e("ds_read_b128 v[32:35], v5 offset:16")
    e("ds_read_b128 v[36:39], v5 offset:128"); e("ds_read_b128 v[40:43], v5 offset:144")
    e("s_waitcnt lgkmcnt(0)")
    for c0 in (0, 2):
        A = [accb(0, b, c) + 2*p for c in (c0, c0+1) for b in range(2) for p in range(2)]
        M = [28 + (i % 4)*2 for i in range(8)]
        for i in range(8): e(f"v_pk_fma_f32 {pr(A[i])}, {pr(A[i])}, {pr(M[i]+8)}, {pr(M[i])} neg_lo:[0,0,1] neg_hi:[0,0,1]")
        for i in range(8): e(f"v_cvt_pk_bf16_f32 v{64+4*c0+i}, v{A[i]}, v{A[i]+1}")
        for c in (c0, c0+1): e(f"buffer_store_dwordx4 {v(64+4*c,4)}, v12, s[24:27], s{46+c} offen sc1")
    e("s_lshl_b32 s43, s36, 2")
    e("s_mov_b32 s44, 0x33221000"); e("s_mov_b32 s45, 0x00766554"); e("s_lshr_b64 s[44:45], s[44:45], s43"); e("s_and_b32 s46, s44, 15")
    e("s_mov_b32 s44, 0x44322110"); e("s_mov_b32 s45, 0x00776655"); e("s_lshr_b64 s[44:45], s[44:45], s43"); e("s_and_b32 s47, s44, 15")
    for r in (46, 47):
        e(f"s_lshl_b32 s43, s{r}, 2"); e("s_lshr_b32 s44, 0xca865310, s43"); e("s_and_b32 s44, s44, 15")
        e("s_sub_u32 s44, s36, s44"); e("s_lshl_b32 s44, s44, 4"); e("s_add_u32 s44, s44, s35"); e("s_lshl_b32 s44, s44, 2")
        e(f"s_lshl_b32 s{r}, s{r}, 8"); e(f"s_add_u32 s{r}, s{r}, s44")
    e("v_mov_b32 v6, s46"); e("v_mov_b32 v7, s47"); e("v_cmp_lt_u32 vcc, 31, v1"); e("v_and_b32 v8, 31, v1"); e("v_lshlrev_b32 v8, 11, v8")
    e("v_cndmask_b32 v6, v6, v7, vcc"); e("v_add_u32 v6, v6, v8")
    e(f"v_mov_b32 v4, {W_PF + 8}"); e("v_mov_b32 v5, 1"); e("v_mov_b32 v7, s3"); e(f"s_mov_b32 s44, {FZ2}")
    e("s_mov_b64 exec, 1")
    e("s_waitcnt vmcnt(0)")
    e("ds_add_rtn_u32 v8, v4, v5")
    e("s_waitcnt lgkmcnt(0)")
    e("v_readfirstlane_b32 s43, v8")
    e("s_mov_b64 exec, -1")
    e("s_cmp_lg_u32 s43, 3"); e("s_cbranch_scc1 m_P2")
    e("buffer_store_dword v7, v6, s[60:63], s44 offen sc1")
    gen_p2(k)
    gen_p3(k)
    gen_helper(k, epoch_poll)
    k.label("m_end")
    e("s_endpgm")
    return k.text(256, nsgpr=100)

def gen_p2(k):
    e = k.e
    k.label("m_P2")
    k.stamp(6)
    e("s_load_dwordx2 s[6:7], s[0:1], 80")
    e("s_lshr_b32 s35, s41, 1"); e("s_lshl_b32 s35, s35, 3"); e("s_lshr_b32 s43, s42, 2"); e("s_add_u32 s35, s35, s43")
    e("s_and_b32 s36, s42, 3")
    e("s_and_b32 s43, s41, 1"); e("s_mul_i32 s43, s43, 27"); e("s_mul_i32 s44, s36, 7"); e("s_add_u32 s37, s43, s44")
    e("v_and_b32 v240, 15, v1"); e("v_lshrrev_b32 v241, 4, v1"); e("v_mov_b32 v245, v1")
    e("v_lshrrev_b32 v2, 5, v1"); e("v_lshlrev_b32 v2, 3, v2"); e("v_bfe_u32 v3, v1, 3, 2"); e("v_add_u32 v2, v2, v3")
    e("v_lshlrev_b32 v2, 12, v2")
    e("v_and_b32 v3, 7, v1"); e("v_xor_b32 v3, v3, v241")
    e("v_lshl_add_u32 v242, v3, 4, v2")
    e("v_xor_b32 v3, 4, v3")
    e("v_lshl_add_u32 v243, v3, 4, v2"); e(f"v_add_u32 v243, {16*4096 - 1024}, v243")
    e("v_lshlrev_b32 v244, 4, v1")
    e("s_lshl_b32 s43, s35, 18"); e("s_lshl_b32 s44, s33, 10"); e("s_add_u32 s48, s43, s44")
    e(f"s_add_u32 s49, s48, {4*4096}"); e(f"s_add_u32 s50, s48, {32*4096}"); e(f"s_add_u32 s51, s48, {36*4096}")
    e("s_lshl_b32 s43, s37, 16"); e("s_lshl_b32 s44, s33, 14"); e("s_add_u32 s52, s43, s44")
    for c in range(1, 7): e(f"s_add_u32 s{52+c}, s52, {c*65536}")
    e("s_cmp_eq_u32 s36, 3"); e(f"s_cselect_b32 s58, {HUGE}, s58")
    e(f"s_mul_i32 s39, s33, {RING2}")
    k.srd(16, 10, 11, 2048*4096)
    k.srd(20, 14, 15, ZF_BYTES, WS_Z2F)
    k.srd(24, 14, 15, ZF_BYTES, WS_Z1F)
    k.srd(28, 14, 15, ZF_BYTES, WS_HF)
    def Z(st, c): return v(112 + st*28 + c*4, 4)
    def acc(c, sg): return v((c*4 + sg)*4, 4)
    def wf(sg): return v(224 + 4*sg, 4)
    def issueZ(n):
        if n % 4 == 0 and n:
            for c in range(7): e(f"s_add_u32 s{52+c}, s{52+c}, 4096")
        for c in range(7): k.vmem(f"buffer_load_dwordx4 {Z(n%4,c)}, v244, s[20:23], s{52+c} offen offset:{(n%4)*1024} sc1", f"Z{n}")
    def issueA(c):
        for t in range(4):
            e(f"s_add_u32 m0, s39, {(c%NSLOT)*8192 + t*2048}")
            e("s_nop 0")
            k.vmem(f"buffer_load_dwordx4 v242, s[16:19], s{48+t} offen lds", f"A{c}")
            k.vmem(f"buffer_load_dwordx4 v243, s[16:19], s{48+t} offen offset:1024 lds", f"A{c}")
        for t in range(4): e(f"s_add_u32 s{48+t}, s{48+t}, 128")
    k.vm = []
    e("v_lshrrev_b32 v5, 1, v240"); e("v_xor_b32 v5, v5, v241")
    e("v_lshlrev_b32 v4, 7, v240"); e("v_lshl_add_u32 v4, v5, 4, v4"); e("v_add_u32 v4, s39, v4")
    for sg in range(4):
        e(f"s_xor_b32 s43, s33, {sg}"); e("s_lshl_b32 s43, s43, 11")
        e(f"v_add_u32 v{246+sg}, s43, v4")
        e(f"v_xor_b32 v{250+sg}, 64, v{246+sg}")
    e("s_setprio 0")
    e(f"v_mov_b32 v4, {W_PF}")
    lds_wait(k, "m_wpf", "v4", "v5", sleep=1)
    k.srd(64, 6, 7, 4096)
    e("s_setprio 3")
    k.stamp(7); k.cyc(12)
    k.vm = []
    def issueZ1(n, c):
        if n % 4 == 0 and n and c == 0: e("v_add_u32 v254, 4096, v254"); e("v_and_b32 v254, 0x3fff, v254")
        k.vmem(f"buffer_load_dwordx4 {Z(n%4,c)}, v254, s[20:23], s{52+c} offen offset:{(n%4)*1024} sc1", f"Z{n}_{c}")
    def issueA1(c, t):
        e(f"s_add_u32 m0, s39, {(c%NSLOT)*8192 + t*2048}")
        e("s_nop 0")
        e(f"s_add_u32 s47, s{48+t}, s59")
        k.vmem(f"buffer_load_dwordx4 v242, s[16:19], s47 offen lds", f"A{c}")
        k.vmem(f"buffer_load_dwordx4 v243, s[16:19], s47 offen offset:1024 lds", f"A{c}")
        if t == 3: e("s_add_u32 s59, s59, 128"); e("s_and_b32 s59, s59, 1023")
    e(f"s_and_b32 s43, s35, {ROTM}"); e("s_lshl_b32 s59, s43, 8"); e("s_add_u32 s59, s59, 256"); e("s_and_b32 s59, s59, 1023")
    e("s_lshl_b32 s43, s43, 12"); e("v_add_u32 v254, s43, v244")
    for n in range(4):
        for c in range(7): issueZ1(n, c)
    for n in range(16):
        c, ks = n >> 1, n & 1
        if ks == 0 and f"A{c}" in k.vm: k.wait_vm(f"A{c}")
        for sg in range(4):
            e(f"ds_read_b128 {wf(sg)}, v{(250 if ks else 246)+sg} offset:{(c%NSLOT)*8192}")
        if n == 15:
            if f"Z{n}_6" in k.vm: k.wait_vm(f"Z{n}_6")
            e("s_waitcnt lgkmcnt(0)")
            for sg in (1, 3, 2, 0):
                for cc in range(7): e(f"{MFMA} {acc(cc,sg)}, {Z(n%4,cc)}, {wf(sg)}, {acc(cc,sg)}")
            continue
        for cc in range(7):
            if f"Z{n}_{cc}" in k.vm: k.wait_vm(f"Z{n}_{cc}")
            if n == 0 and cc == 0: k.stamp(8)
            for sg in range(4):
                if cc == 0: e(f"s_waitcnt lgkmcnt({3-sg})")
                e(f"{MFMA} {acc(cc,sg)}, {Z(n%4,cc)}, {wf(sg)}, {'0' if n == 0 else acc(cc,sg)}")
            if n + 4 < 16: issueZ1(n + 4, cc)
            if ks == 1 and c + NSLOT < 8 and cc in (0, 2, 4, 6): issueA1(c + NSLOT, cc // 2)
        if n == 12:
            e("s_lshl_b32 s43, s35, 2"); e("s_add_u32 s43, s43, s33"); e("s_mul_i32 s44, s43, 27648")
            for cc in range(7):
                e(f"s_add_u32 s45, s37, {cc}"); e("s_lshr_b32 s46, s45, 1"); e("s_lshl_b32 s46, s46, 10"); e("s_and_b32 s45, s45, 1"); e("s_lshl_b32 s45, s45, 3")
                e("s_add_u32 s45, s45, s46"); e(f"s_add_u32 s{52+cc}, s45, s44")
            e("s_cmp_eq_u32 s36, 3"); e(f"s_cselect_b32 s58, {HUGE}, s58")
            for cc in range(7): k.vmem(f"buffer_load_dwordx2 {v(112+2*cc,2)}, v244, s[24:27], s{52+cc} offen sc1", "z1")
            e("s_lshr_b32 s44, s43, 1"); e("s_lshl_b32 s44, s44, 5"); e("s_and_b32 s45, s43, 1"); e("s_lshl_b32 s45, s45, 2"); e("s_add_u32 s44, s44, s45")
            e("v_lshrrev_b32 v128, 2, v240"); e("v_and_b32 v129, 3, v240"); e("v_lshl_add_u32 v128, v128, 3, v129"); e("v_add_u32 v128, s44, v128")
            e("v_lshlrev_b32 v128, 1, v128")
            k.vmem("buffer_load_ushort v126, v128, s[64:67], 0 offen", "z1")
        if n == 12:
            e("s_lshl_b32 s43, s33, 2"); e(f"s_add_u32 s43, s43, {W_GL}"); e("v_mov_b32 v254, s43"); e("v_mov_b32 v255, 1")
            e("ds_write_b32 v254, v255")
    k.stamp(9); k.cyc(13)
    e("v_add_u32 v130, s39, v244")
    e("s_xor_b32 s43, s33, 1"); e(f"s_mul_i32 s43, s43, {RING2}"); e("v_add_u32 v131, s43, v244")
    e("s_xor_b32 s43, s33, 3"); e(f"s_mul_i32 s43, s43, {RING2}"); e("v_add_u32 v132, s43, v244")
    e(f"v_add_u32 v133, {W_R1 - W_GL}, v254")
    e("v_xor_b32 v134, 4, v133"); e("v_xor_b32 v135, 8, v133"); e("v_add_u32 v135, 16, v135")
    for c in range(7):
        for h in range(2): e(f"ds_write_b128 v130, {acc(c,1+2*h)} offset:{(c*2+h)*1024}")
    e("ds_write_b32 v133, v255")
    lds_wait(k, "m_wr1", "v134", "v136")
    T = 140
    for h in (1, 0):
        for c in range(7): e(f"ds_read_b128 {v(T+(c*2+h)*4,4)}, v131 offset:{(c*2+h)*1024}")
    e("s_waitcnt lgkmcnt(7)")
    for c in range(7):
        for p in range(2):
            a = (c*4 + 2)*4 + 2*p
            e(f"v_pk_add_f32 {pr(a)}, {pr(a)}, {pr(T+(c*2+1)*4+2*p)}")
    e("s_waitcnt lgkmcnt(0)")
    for c in range(7): e(f"ds_write_b128 v131, {acc(c,2)} offset:{c*1024}")
    e("ds_write_b32 v133, v255 offset:16")
    for c in range(7):
        for p in range(2):
            a = (c*4)*4 + 2*p
            e(f"v_pk_add_f32 {pr(a)}, {pr(a)}, {pr(T+(c*2)*4+2*p)}")
    lds_wait(k, "m_wr2", "v135", "v136")
    for c in range(7): e(f"ds_read_b128 {v(T+c*4,4)}, v132 offset:{c*1024}")
    e("s_waitcnt vmcnt(0)")
    k.vm = []
    e("v_lshlrev_b32 v126, 16, v126")
    for i in range(14): unpack(k, f"v{170+2*i}", f"v{171+2*i}", f"v{112+i}")
    k.srd(16, 14, 15, WOF_BYTES, WS_WOF)
    e("s_and_b32 s43, s41, 1"); e("s_lshl_b32 s43, s43, 2"); e("s_add_u32 s45, s36, s43")
    e("s_xor_b32 s43, s33, 3"); e("s_lshl_b32 s46, s43, 4"); e("s_sub_i32 s46, s46, 22"); e("s_max_i32 s46, s46, 0")
    e("s_cmp_eq_u32 s43, 1"); e("s_cselect_b32 s47, 10, 16"); e("s_cmp_eq_u32 s43, 0"); e("s_cselect_b32 s47, 0, s47")
    e("s_lshl_b32 s46, s46, 10"); e("s_mul_i32 s48, s45, 138240"); e("s_add_u32 s48, s48, s46"); e(f"s_add_u32 s46, s46, {IMG}")
    e(f"v_mov_b32 v136, {W_FX}")
    lds_wait(k, "m_wfw2", "v136", "v137")
    e("s_cmp_eq_u32 s47, 0"); e("s_cbranch_scc1 m_gwodone")
    k.label("m_gwoloop")
    e("s_mov_b32 m0, s46"); e("s_add_u32 s46, s46, 2048")
    e("buffer_load_dwordx4 v244, s[16:19], s48 offen sc1 lds"); e("buffer_load_dwordx4 v244, s[16:19], s48 offen offset:1024 sc1 lds")
    e("s_add_u32 s48, s48, 2048"); e("s_sub_u32 s47, s47, 2"); e("s_cmp_lg_u32 s47, 0"); e("s_cbranch_scc1 m_gwoloop")
    k.label("m_gwodone")
    A = [c*16 + 2*p for c in range(7) for p in range(2)]
    for i in range(14): e(f"v_pk_add_f32 {pr(A[i])}, {pr(A[i])}, {pr(T+2*i)}")
    for i in range(14): e(f"v_pk_add_f32 {pr(A[i])}, {pr(A[i])}, v[126:127] op_sel_hi:[1,0]")
    for i in range(14): e(f"v_pk_mul_f32 {pr(A[i])}, {pr(A[i])}, {pr(170+2*i)}")
    for i in range(14): e(f"v_cvt_pk_bf16_f32 v{200+i}, v{A[i]}, v{A[i]+1}")
    e("s_bitcmp1_b32 s37, 0"); e("s_cbranch_scc1 m_hodd")
    for c in (0, 2, 4): e(f"buffer_store_dwordx4 {v(200+2*c,4)}, v244, s[28:31], s{52+c} offen sc1")
    e(f"buffer_store_dwordx2 {v(212,2)}, v244, s[28:31], s58 offen sc1")
    e("s_branch m_hdone")
    k.label("m_hodd")
    e(f"buffer_store_dwordx2 {v(200,2)}, v244, s[28:31], s52 offen sc1")
    for c in (1, 3): e(f"buffer_store_dwordx4 {v(200+2*c,4)}, v244, s[28:31], s{52+c} offen sc1")
    e("s_cmp_eq_u32 s36, 3"); e("s_cbranch_scc1 m_hodd6")
    e(f"buffer_store_dwordx4 {v(210,4)}, v244, s[28:31], s57 offen sc1")
    e("s_branch m_hdone")
    k.label("m_hodd6")
    e(f"buffer_store_dwordx2 {v(210,2)}, v244, s[28:31], s57 offen sc1")
    k.label("m_hdone")
    e("v_mov_b32 v1, v245")
    e("s_and_b32 s43, s41, 1"); e("s_lshl_b32 s43, s43, 2"); e("s_add_u32 s36, s36, s43")
    e(f"v_mov_b32 v4, {W_PF + 4}"); e("v_mov_b32 v5, 1"); e("v_lshlrev_b32 v6, 7, v1"); e("v_mov_b32 v7, s3")
    e("s_lshl_b32 s44, s35, 10"); e("s_lshl_b32 s45, s36, 2"); e("s_add_u32 s44, s44, s45"); e(f"s_add_u32 s44, s44, {FH2}")
    e("s_mov_b64 exec, 1")
    e("s_waitcnt vmcnt(0)")
    e("ds_add_rtn_u32 v8, v4, v5")
    e("s_waitcnt lgkmcnt(0)")
    e("v_readfirstlane_b32 s43, v8")
    e("s_mov_b64 exec, 0xff")
    e("s_cmp_lg_u32 s43, 3"); e("s_cbranch_scc1 m_nopub")
    e("buffer_store_dword v7, v6, s[60:63], s44 offen sc1")
    k.label("m_nopub")
    e("s_mov_b64 exec, -1")
    e("s_setprio 0")
    e("v_and_b32 v2, 15, v1"); e("v_lshrrev_b32 v3, 4, v1")
    e("s_mov_b32 s47, 0"); e("s_mov_b32 s46, 0")

def gen_p3(k):
    e = k.e
    k.label("m_P3")
    k.stamp(10)
    e("s_lshr_b32 s34, s32, 2")
    e("v_lshlrev_b32 v15, 4, v1")
    k.srd(16, 14, 15, WOF_BYTES, WS_WOF)
    k.srd(20, 14, 15, ZF_BYTES, WS_HF)
    k.srd(24, 4, 5, 2048*1280)
    k.srd(28, 98, 99, 2048*1280)
    e("s_lshl_b32 s46, s46, 10"); e("s_mul_i32 s48, s36, 138240"); e("s_add_u32 s48, s48, s46"); e(f"s_add_u32 s46, s46, {IMG}")
    e("s_cmp_eq_u32 s47, 0"); e("s_cbranch_scc1 m_wodone")
    k.label("m_woloop")
    e("s_mov_b32 m0, s46"); e("s_add_u32 s46, s46, 1024")
    e("buffer_load_dwordx4 v15, s[16:19], s48 offen sc1 lds")
    e("s_add_u32 s48, s48, 1024"); e("s_sub_u32 s47, s47, 1"); e("s_cmp_lg_u32 s47, 0"); e("s_cbranch_scc1 m_woloop")
    k.label("m_wodone")
    def H(g, sg): return v(16 + (g*2 + sg)*4, 4)
    def WF(g, db): return v(72 + (g*5 + db)*4, 4)
    def acc(sg, db): return v(212 + (sg*5 + db)*4, 4)
    e("s_cmp_eq_u32 s33, 3"); e(f"s_cselect_b32 s45, {HUGE}, 6144")
    e("s_and_b32 s43, s33, 1"); e("s_lshl_b32 s44, s34, 1"); e("s_add_u32 s57, s43, s44")
    e("s_lshr_b32 s58, s33, 1"); e("s_mul_i32 s58, s58, 3")
    e("s_lshr_b32 s43, s57, 1"); e("s_lshl_b32 s43, s43, 5"); e("s_and_b32 s44, s57, 1"); e("s_lshl_b32 s44, s44, 2"); e("s_add_u32 s59, s43, s44")
    e("s_lshl_b32 s43, s35, 6"); e("s_add_u32 s43, s43, s59")
    e("v_lshrrev_b32 v6, 2, v2"); e("v_and_b32 v7, 3, v2"); e("v_lshl_add_u32 v6, v6, 3, v7"); e("v_add_u32 v6, s43, v6")
    e("v_mul_u32_u24 v6, 1280, v6"); e("v_lshl_add_u32 v6, v3, 3, v6"); e("s_mul_i32 s43, s36, 160"); e("v_add_u32 v14, s43, v6")
    for i in range(3):
        e(f"s_add_u32 s43, s58, {i}"); e(f"s_min_u32 s{68+i}, s43, 4")
        e(f"s_lshl_b32 s{72+i}, s{68+i}, 5")
    k.srd(64, 14, 15, XT_BYTES, WS_YT)
    e("s_lshl_b32 s43, s35, 2"); e("s_lshl_b32 s44, s34, 1"); e("s_add_u32 s43, s43, s44"); e("s_mul_i32 s43, s43, 27"); e("s_mul_i32 s44, s33, 7"); e("s_add_u32 s43, s43, s44")
    e("s_lshl_b32 s46, s43, 10"); e("s_add_u32 s47, s46, 27648")
    e("s_add_u32 s48, s46, 4096"); e("s_add_u32 s49, s47, 4096"); e("s_add_u32 s50, s46, s45"); e("s_add_u32 s51, s47, s45")
    e("s_mul_i32 s43, s33, 35840"); e(f"s_add_u32 s43, s43, {IMG}"); e("v_add_u32 v252, s43, v15")
    e("s_cmp_eq_u32 s33, 3"); e("s_cselect_b32 s43, 5120, 0"); e("v_subrev_u32 v253, s43, v252")
    e("v_and_b32 v4, 7, v1"); e("v_lshlrev_b32 v4, 2, v4")
    e("s_lshl_b32 s44, s35, 10"); e("s_lshl_b32 s43, s36, 7"); e("s_add_u32 s44, s44, s43"); e(f"s_add_u32 s44, s44, {FH2}")
    e("v_min_u32 v254, 39, v1"); e("v_lshlrev_b32 v254, 3, v254")
    e("s_mul_i32 s52, s36, 320"); e(f"s_add_u32 s52, s52, {FY}")
    e("s_cmp_ge_u32 s32, 4"); e("s_cbranch_scc1 m_nwv")
    e("s_waitcnt vmcnt(0)")
    k.label("m_nwv")
    e("s_barrier")
    k.stamp(4)
    e("s_cmp_lg_u32 s32, 3"); e("s_cbranch_scc1 m_nhp")
    e("buffer_load_dword v5, v4, s[60:63], s44 offen sc1")
    k.label("m_nhp")
    e("s_cmp_lg_u32 s32, 2"); e("s_cbranch_scc1 m_nyp")
    e("buffer_load_dwordx2 v[248:249], v254, s[60:63], s52 offen sc1")
    k.label("m_nyp")
    for g in range(7):
        for db in range(5): e(f"ds_read_b128 {WF(g,db)}, v{253 if g == 6 else 252} offset:{g*5120 + db*1024}")
    for i in range(3): e(f"buffer_load_dwordx2 {v(8+2*i,2)}, v14, s[24:27], s{72+i} offen")
    e("v_lshrrev_b32 v244, 3, v1"); e("v_lshlrev_b32 v244, 12, v244"); e("v_and_b32 v245, 7, v1"); e("v_lshl_add_u32 v244, v245, 4, v244")
    e("s_mul_i32 s53, s36, 80"); e("s_lshl_b32 s43, s32, 3"); e("s_add_u32 s53, s53, s43"); e("s_lshl_b32 s53, s53, 12"); e("s_lshl_b32 s43, s35, 7"); e("s_add_u32 s53, s53, s43")
    e("s_cmp_lt_u32 s32, 2"); e(f"s_cselect_b32 s54, {64*4096}, 0"); e("s_cselect_b32 s55, 8192, 0"); e("s_add_u32 s54, s54, s53")
    e("s_lshl_b32 s43, s32, 10"); e(f"s_add_u32 s43, s43, {YTILE}"); e("v_add_u32 v246, s43, v15"); e("v_add_u32 v247, s55, v246")
    e("s_cmp_lg_u32 s32, 3"); e("s_cbranch_scc1 m_hw")
    poll_flags(k, "m_pollh", "v4", FLS, 1, 5, "v6", soff="s44", sleep=2, preloaded=True)
    k.label("m_hw")
    e("s_cmp_lg_u32 s32, 2"); e("s_cbranch_scc1 m_noy")
    poll_flags(k, "m_polly", "v254", FLS, 2, 248, "v5", soff="s52", sleep=8, preloaded=True)
    k.label("m_noy")
    e("s_waitcnt lgkmcnt(0)")
    e("s_barrier")
    k.stamp(11)
    k.vm = []
    k.vmem("buffer_load_dwordx4 v[236:239], v244, s[64:67], s53 offen sc1", "y")
    k.vmem("buffer_load_dwordx4 v[240:243], v244, s[64:67], s54 offen sc1", "y")
    for g in range(7):
        for sg in range(2):
            so = 46 + sg + (0 if g < 4 else 2 if g < 6 else 4)
            k.vmem(f"buffer_load_dwordx4 {H(g,sg)}, v15, s[20:23], s{so} offen offset:{(g%4)*1024 if g < 6 else 0} sc1", f"h{g}")
    e("s_mul_i32 s43, s32, 10240"); e("v_add_u32 v252, s43, v15")
    e("s_mul_i32 s43, s34, 40960"); e("s_and_b32 s44, s33, 1"); e("s_mul_i32 s44, s44, 5120"); e("s_add_u32 s43, s43, s44")
    e("v_bfe_u32 v4, v1, 2, 2"); e("v_lshl_add_u32 v4, v3, 2, v4"); e("v_lshlrev_b32 v4, 7, v4")
    e("v_and_b32 v5, 3, v1"); e("v_lshl_add_u32 v4, v5, 4, v4")
    e("s_lshl_b32 s44, s59, 1"); e(f"s_add_u32 s44, s44, {YTILE}"); e("v_add_u32 v4, s44, v4")
    for i in range(3):
        e(f"s_lshl_b32 s44, s{68+i}, 10"); e("s_add_u32 s44, s44, s43"); e(f"v_add_u32 v{253+i}, s44, v15")
        e(f"s_lshl_b32 s44, s{68+i}, 11"); e(f"v_add_u32 v{5+i}, s44, v4")
    for g in range(7):
        k.wait_vm(f"h{g}")
        if g == 0: e("ds_write_b128 v246, v[236:239]"); e("ds_write_b128 v247, v[240:243]"); e("s_waitcnt lgkmcnt(0)")
        for db in range(5):
            for sg in range(2):
                e(f"{MFMA} {acc(sg,db)}, {WF(g,db)}, {H(g,sg)}, {'0' if g == 0 else acc(sg,db)}")
    e("s_nop 2")
    e("s_nop 1")
    for db in range(5):
        for sg in range(2): e(f"ds_write_b128 v252, {acc(sg,db)} offset:{(sg*5+db)*1024}")
    for i in range(6): unpack(k, f"v{96+2*i}", f"v{97+2*i}", f"v{8+i}")
    e("s_waitcnt lgkmcnt(0)")
    e("s_barrier")
    for i in range(3): e(f"ds_read_b64_tr_b16 {v(24+2*i,2)}, v{5+i}")
    for i in range(3):
        for kq in range(4): e(f"ds_read_b128 {v(32+(i*4+kq)*4,4)}, v{253+i} offset:{kq*10240}")
    e("s_waitcnt lgkmcnt(12)")
    for n in range(6): unpack(k, f"v{112+2*n}", f"v{113+2*n}", f"v{24+n}")
    for n in range(6): e(f"v_pk_add_f32 {pr(96+2*n)}, {pr(96+2*n)}, {pr(112+2*n)}")
    e("s_waitcnt lgkmcnt(0)")
    A = [32 + i*16 + 2*p for i in range(3) for p in range(2)]
    for n in range(6): e(f"v_pk_add_f32 {pr(A[n])}, {pr(A[n])}, {pr(A[n]+4)}"); e(f"v_pk_add_f32 {pr(A[n]+8)}, {pr(A[n]+8)}, {pr(A[n]+12)}")
    for n in range(6): e(f"v_pk_add_f32 {pr(A[n])}, {pr(A[n])}, {pr(A[n]+8)}")
    for n in range(6): e(f"v_pk_add_f32 {pr(A[n])}, {pr(A[n])}, {pr(96+2*n)}")
    for n in range(6): e(f"v_cvt_pk_bf16_f32 v{24+n}, v{A[n]}, v{A[n]+1}")
    for i in range(3): e(f"buffer_store_dwordx2 {v(24+2*i,2)}, v14, s[28:31], s{72+i} offen")
    k.end(0)

def gen_helper(k, epoch_poll):
    e = k.e
    k.label("m_helper")
    e("s_lshl_b32 s35, s41, 2"); e("s_add_u32 s35, s35, s42"); e("s_sub_u32 s35, s35, 28")
    e("v_and_b32 v2, 15, v1"); e("v_lshrrev_b32 v3, 4, v1")
    e("s_lshl_b32 s43, s32, 3")
    e("v_add_u32 v4, s43, v3")
    e("s_lshl_b32 s44, s35, 6")
    e("v_add_u32 v5, s44, v4"); e("v_mul_u32_u24 v5, 1280, v5"); e("v_lshl_add_u32 v5, v2, 4, v5")
    e("v_add_u32 v6, 5120, v5")
    e("v_mul_u32_u24 v7, 1296, v4"); e("v_lshl_add_u32 v7, v2, 4, v7")
    e("v_mov_b32 v110, 0")
    e("v_and_b32 v4, 31, v1"); e(f"v_lshlrev_b32 v4, 2, v4"); e(f"v_add_u32 v4, {W_EPOCH}, v4")
    e("s_cmp_lg_u32 s32, 4"); e("s_cbranch_scc1 m_hnoclr")
    e("ds_write_b32 v4, v110")
    k.label("m_hnoclr")
    e("s_waitcnt lgkmcnt(0)")
    k.srd(16, 4, 5, 2048*1280)
    k.srd(28, 14, 15, XT_BYTES, WS_XNT)
    k.srd(64, 12, 13, 256)
    k.srd(FLS, 14, 15, FL_BYTES, WS_FL)
    k.srd(20, 96, 97, 864*1280)
    k.srd(24, 14, 15, WOF_BYTES, WS_WOF)
    k.vm = []
    for g in range(2):
        for n in range(5):
            k.vmem(f"buffer_load_dwordx4 {v(8+g*20+n*4,4)}, v{5+g}, s[16:19], 0 offen offset:{n*256}", f"x{g}")
    e("s_lshl_b32 s36, s35, 3"); e("s_add_u32 s36, s36, s32")
    e("v_lshrrev_b32 v111, 3, v1"); e("v_mul_u32_u24 v111, 1280, v111"); e("v_and_b32 v112, 7, v1"); e("v_lshl_add_u32 v111, v112, 4, v111")
    for it in range(2):
        e(f"s_add_u32 s43, s36, {256*it}"); e("s_mul_i32 s44, s43, 205"); e("s_lshr_b32 s44, s44, 11"); e("s_mul_i32 s45, s44, 10"); e("s_sub_u32 s45, s43, s45")
        e("s_mul_i32 s46, s44, 40960"); e("s_lshl_b32 s47, s45, 7"); e("s_add_u32 s46, s46, s47")
        for d in range(4):
            e(f"s_lshl_b32 s47, s45, 2"); e(f"s_add_u32 s47, s47, {d}"); e("s_mul_i32 s56, s47, 52"); e("s_lshr_b32 s56, s56, 8")
            e("s_mul_i32 s56, s56, 130"); e("s_add_u32 s47, s47, s56"); e("s_mul_i32 s56, s44, 5"); e("s_add_u32 s47, s47, s56"); e("s_lshl_b32 s47, s47, 10")
            e("s_cmp_lt_u32 s43, 270"); e(f"s_cselect_b32 s{48+it*4+d}, s47, {HUGE}")
        for n in range(4):
            k.vmem(f"buffer_load_dwordx4 {v(120+it*16+n*4,4)}, v111, s[20:23], s46 offen", "wo")
            e("s_add_u32 s46, s46, 10240")
    for g in range(2):
        k.stamp(1+2*g)
        k.wait_vm(f"x{g}")
        X = 48
        src = 8 + g*20
        for n in range(20): unpack(k, f"v{X+2*n}", f"v{X+2*n+1}", f"v{src+n}")
        e(f"v_pk_add_f32 v[88:89], {pr(X)}, {pr(X+4)}"); e(f"v_pk_add_f32 v[90:91], {pr(X+2)}, {pr(X+6)}")
        for n in range(4, 20): e(f"v_pk_add_f32 {pr(88+2*(n%2))}, {pr(88+2*(n%2))}, {pr(X+2*n)}")
        e("v_pk_add_f32 v[88:89], v[88:89], v[90:91]"); e("s_nop 0"); e("v_add_f32 v88, v88, v89")
        for sh in (8, 4, 2, 1):
            e("s_nop 1"); e(f"v_add_f32_dpp v88, v88, v88 row_ror:{sh} row_mask:0xf bank_mask:0xf")
        e(f"v_mul_f32 v88, {f32(1/640)}, v88")
        for a in range(4): e(f"v_mov_b32 v{92+a}, 0")
        for n0 in range(0, 20, 4):
            for a in range(4): e(f"v_pk_add_f32 {pr(96+2*a)}, {pr(X+2*(n0+a))}, v[88:89] op_sel_hi:[1,0] neg_lo:[0,1] neg_hi:[0,1]")
            for a in range(4): e(f"v_pk_fma_f32 {pr(92+2*(a%2))}, {pr(96+2*a)}, {pr(96+2*a)}, {pr(92+2*(a%2))}")
        e("v_pk_add_f32 v[92:93], v[92:93], v[94:95]"); e("s_nop 0"); e("v_add_f32 v92, v92, v93")
        for sh in (8, 4, 2, 1):
            e("s_nop 1"); e(f"v_add_f32_dpp v92, v92, v92 row_ror:{sh} row_mask:0xf bank_mask:0xf")
        e(f"v_mul_f32 v92, {f32(1/640)}, v92")
        ln_finish(k, "v88", "v92", "v89")
        for n in range(20): e(f"v_pk_add_f32 {pr(X+2*n)}, {pr(X+2*n)}, v[88:89] op_sel_hi:[1,0] neg_lo:[0,1] neg_hi:[0,1]")
        for n in range(20): e(f"v_cvt_pk_bf16_f32 v{src+n}, v{X+2*n}, v{X+2*n+1}")
        for n in range(20): unpack(k, f"v{X+2*n}", f"v{X+2*n+1}", f"v{src+n}")
        for n in range(20): e(f"v_pk_mul_f32 {pr(X+2*n)}, {pr(X+2*n)}, v[92:93] op_sel_hi:[1,0]")
        for n in range(20): e(f"v_cvt_pk_bf16_f32 v{src+n}, v{X+2*n}, v{X+2*n+1}")
        for n in range(5):
            e(f"ds_write_b128 v7, {v(src+4*n,4)} offset:{g*4*1296 + n*256}")
    e(f"v_mov_b32 v9, {W_EPOCH}"); e("v_mov_b32 v10, 0")
    e("s_cmp_lg_u32 s32, 4"); e("s_cbranch_scc1 m_hepdone")
    e("buffer_load_dword v11, v10, s[64:67], 0 offen sc1")
    epoch_poll("h")
    k.label("m_hepdone")
    e("s_waitcnt lgkmcnt(0)")
    e("s_barrier")
    k.stamp(4)
    e("ds_read_b32 v113, v9")
    e("v_bfe_u32 v4, v1, 2, 2"); e("v_lshl_add_u32 v4, v3, 3, v4"); e("v_mul_u32_u24 v4, 1296, v4")
    e("v_and_b32 v5, 3, v1"); e("v_lshl_add_u32 v4, v5, 3, v4")
    e("s_lshl_b32 s43, s32, 5"); e("v_add_u32 v4, s43, v4")
    e(f"v_add_u32 v5, {32*1296}, v4")
    for n in range(5):
        for th in range(2):
            for hh in range(2):
                e(f"ds_read_b64_tr_b16 {v(16+(n*2+th)*4+hh*2,2)}, v{4+th} offset:{hh*4*1296 + n*256}")
    e("s_mul_i32 s43, s32, 4608"); e("s_add_u32 s43, s43, 90112")
    e("v_mul_u32_u24 v5, 144, v2"); e("v_lshl_add_u32 v5, v3, 4, v5"); e("v_add_u32 v5, s43, v5")
    e("v_lshrrev_b32 v4, 3, v1"); e("v_lshlrev_b32 v6, 12, v4"); e("v_mul_u32_u24 v4, 144, v4"); e("v_and_b32 v7, 7, v1"); e("v_lshl_add_u32 v4, v7, 4, v4"); e("v_add_u32 v4, s43, v4")
    e("v_lshl_add_u32 v6, v7, 4, v6")
    e("s_lshl_b32 s46, s32, 16"); e("s_lshl_b32 s44, s35, 7"); e("s_add_u32 s46, s46, s44"); e("s_add_u32 s47, s46, 32768")
    e("s_waitcnt vmcnt(0) lgkmcnt(0)")
    e("v_readfirstlane_b32 s3, v113")
    for n in range(5):
        o = (n % 2) * 2304
        for th in range(2): e(f"ds_write_b128 v5, {v(16+(n*2+th)*4,4)} offset:{o + th*64}")
        for hf in range(2): e(f"ds_read_b128 {v(56+(n*2+hf)*4,4)}, v4 offset:{o + hf*8*144}")
    for n in range(5):
        e(f"s_waitcnt lgkmcnt({min(15, 4*(4-n))})")
        for hf in range(2):
            e(f"buffer_store_dwordx4 {v(56+(n*2+hf)*4,4)}, v6, s[28:31], s{46+hf} offen sc1")
        e(f"s_add_u32 s46, s46, {8*65536}"); e(f"s_add_u32 s47, s47, {8*65536}")
    e("v_bfe_u32 v5, v1, 2, 2"); e("v_lshl_add_u32 v5, v3, 2, v5"); e("v_mul_u32_u24 v5, 144, v5"); e("v_and_b32 v6, 3, v1"); e("v_lshl_add_u32 v5, v6, 3, v5"); e("v_add_u32 v5, s43, v5")
    e("v_lshlrev_b32 v6, 4, v1")
    for it in range(2):
        for n in range(4): e(f"ds_write_b128 v4, {v(120+it*16+n*4,4)} offset:{n*8*144}")
        for d in range(4):
            for hh in range(2): e(f"ds_read_b64_tr_b16 {v(160+it*16+d*4+hh*2,2)}, v5 offset:{hh*16*144 + d*32}")
    k.stamp(5)
    e("s_waitcnt lgkmcnt(0)")
    for it in range(2):
        for d in range(4):
            e(f"buffer_store_dwordx4 {v(160+it*16+d*4,4)}, v6, s[24:27], s{48+it*4+d} offen sc1")
    e("s_load_dwordx8 s[64:71], s[0:1], 8")
    e("s_load_dwordx4 s[72:75], s[0:1], 40")
    e("s_cmp_ge_u32 s32, 4"); e("s_cbranch_scc1 m_hG")
    conv_params(k)
    e("s_waitcnt vmcnt(0)")
    e("s_barrier")
    e("s_branch m_Lpost")
    k.label("m_hG")
    e("s_waitcnt vmcnt(0) lgkmcnt(0)")
    e("s_barrier")
    e(f"v_mov_b32 v4, {W_PF + 8}"); e("v_mov_b32 v5, 4"); e("ds_write_b32 v4, v5")
    e("s_cmp_lg_u32 s32, 4"); e("s_cbranch_scc1 m_P2")
    e("s_lshl_b32 s45, s35, 2"); e(f"s_add_u32 s45, s45, {FX}")
    set_flag(k, FLS, "s45", 0, "v7", "v8")
    e("s_branch m_P2")

if __name__ == "__main__":
    import sys
    NAME = "parallel_sum__ssm_conv_s4d__mixer_gmlp__prompt"
    path = sys.argv[1] if len(sys.argv) > 1 else f"cdna_kernels/{NAME}.s"
    t, kd = gen_mega(NAME + "_kernel")
    hdr = open(f"cdna_kernels/{NAME}.s.ref").read().split("; Override launch")[0]
    lst = os.environ.get("LIST", "0") == "1"
    out = hdr + (f"; @launch kernel={NAME}_kernel grid=(256,1,1) block=(512,1,1) lds={LDS_TOTAL}\n" if lst else f"; @launch grid=(256,1,1) block=(512,1,1) lds={LDS_TOTAL}\n")
    out += '.amdgcn_target "amdgcn-amd-amdhsa--gfx950"\n.text\n' + t + '\ntext_end:\n.section .rodata,"a"\n.p2align 6\n' + kd + "\n"
    open(path, "w").write(out)
```

```python
from mega_common import *
FLS = 60
WS_ST1 = 27*MB
RING2 = 16384
CONV0 = 65536
CONV_B = 15360
YTILE = 81920
IMG = 22528
NSLOT = 2
ZD = int(os.environ.get('ZD', '24'))
ZSL = int(os.environ.get('ZSL', '2'))
ROTM = int(os.environ.get('ROTM', '0'))
WS_KC = 26*MB
KC_BYTES = 640 * 1536

def conv_params(k):
    e = k.e
    e("s_lshl_b32 s34, s2, 1"); e("s_add_u32 s34, s34, s32")
    e("s_lshl_b32 s56, s41, 4"); e("s_lshr_b32 s57, s42, 1"); e("s_add_u32 s56, s56, s57"); e("s_add_u32 s56, s56, 512")
    e("s_bitcmp1_b32 s42, 0"); e("s_cselect_b32 s56, s56, 1000")
    e("s_cmp_eq_u32 s32, 2"); e("s_cselect_b32 s34, s56, s34")
    e("s_cmp_eq_u32 s32, 3"); e("s_cselect_b32 s34, 1000, s34")
    e("s_lshl_b32 s56, s34, 8"); e("s_lshl_b32 s57, s34, 1")
    e("v_lshlrev_b32 v4, 2, v1"); e("v_mov_b32 v5, 0")
    e("s_waitcnt lgkmcnt(0)")
    for a in range(4):
        k.srd(28, 64+2*a, 65+2*a, 640*256)
        e(f"buffer_load_dword v{164+a}, v4, s[28:31], s56 offen")
    k.srd(28, 72, 73, 1280); e("buffer_load_ushort v13, v5, s[28:31], s57 offen")
    k.srd(28, 74, 75, 1280); e("buffer_load_ushort v14, v5, s[28:31], s57 offen")

def gen_mega(name):
    k = Kern(name)
    e = k.e
    e("s_cmp_ge_u32 s2, 256"); e("s_cbranch_scc1 m_end")
    k.stamp_init()
    e("s_load_dwordx2 s[4:5], s[0:1], 0")
    e("s_load_dwordx4 s[8:11], s[0:1], 64")
    e("s_load_dwordx4 s[12:15], s[0:1], 104")
    e("s_load_dwordx4 s[96:99], s[0:1], 88")
    e("v_and_b32 v1, 63, v0")
    e("v_lshrrev_b32 v2, 6, v0")
    e("s_and_b32 s41, s2, 7")
    e("v_readfirstlane_b32 s32, v2")
    e("s_lshr_b32 s42, s2, 3")
    e("s_and_b32 s33, s32, 3")
    e("s_cmp_ge_u32 s42, 28"); e("s_cbranch_scc1 m_helper")
    e("s_mul_i32 s43, s42, 37"); e("s_lshr_b32 s43, s43, 8")
    e("s_mul_i32 s44, s43, 7"); e("s_sub_u32 s44, s42, s44")
    e("s_lshr_b32 s35, s41, 1"); e("s_lshl_b32 s35, s35, 2"); e("s_add_u32 s35, s35, s43")
    e("s_and_b32 s36, s41, 1"); e("s_mul_i32 s36, s36, 7"); e("s_add_u32 s36, s36, s44")
    e("s_cmp_ge_u32 s32, 4"); e("s_cbranch_scc1 m_gemm1")
    e("s_mul_i32 s45, s44, 3"); e("s_mul_i32 s46, s43, 5"); e("s_lshr_b32 s46, s46, 1"); e("s_add_u32 s45, s45, s46")
    e("s_cmp_ge_u32 s45, 20"); e("s_cselect_b32 s46, 20, 0"); e("s_sub_u32 s45, s45, s46")
    e("s_cmp_ge_u32 s45, 10"); e("s_cselect_b32 s46, 10, 0"); e("s_sub_u32 s45, s45, s46")
    e("s_load_dwordx8 s[64:71], s[0:1], 8")
    e("s_load_dwordx4 s[72:75], s[0:1], 40")
    e("v_and_b32 v3, 7, v1")
    e("s_lshl_b32 s39, s32, 13")
    e("s_cmp_ge_u32 s32, 2"); e("s_cbranch_scc1 m_ldB")
    e("s_lshl_b32 s43, s35, 7"); e("s_lshl_b32 s44, s32, 6"); e("s_add_u32 s43, s43, s44")
    e("v_lshrrev_b32 v2, 5, v1"); e("v_lshlrev_b32 v2, 3, v2")
    e("v_bfe_u32 v4, v1, 3, 2"); e("v_add3_u32 v2, v2, v4, s43")
    e("v_mul_u32_u24 v2, 1280, v2")
    e("v_lshrrev_b32 v4, 4, v1"); e("v_xor_b32 v3, v3, v4")
    e("v_lshl_add_u32 v4, v3, 4, v2")
    e("v_xor_b32 v3, 4, v3"); e("v_lshl_add_u32 v5, v3, 4, v2")
    for n in range(8):
        ee, b, Pp = n & 1, (n >> 1) & 1, n >> 2
        e(f"v_add_u32 v{16+n}, {(32*Pp + 4*b + 16*ee)*1280 - (n & 3)*1024}, v{4+ee}")
    e("s_waitcnt lgkmcnt(0)")
    k.srd(16, 4, 5, 2048*1280)
    e("s_mov_b32 s38, 128")
    e("s_branch m_ld")
    k.label("m_ldB")
    e("v_lshrrev_b32 v2, 3, v1"); e("v_mul_u32_u24 v2, 3456, v2")
    e("s_cmp_eq_u32 s32, 2"); e("s_cselect_b32 s44, 1664, 0")
    e("s_lshl_b32 s43, s36, 7"); e("s_add_u32 s43, s43, s44"); e("v_add_u32 v2, s43, v2")
    e("v_bfe_u32 v4, v1, 4, 1"); e("v_lshlrev_b32 v4, 1, v4"); e("v_xor_b32 v3, v3, v4")
    e("v_lshl_add_u32 v4, v3, 4, v2")
    e("v_xor_b32 v3, 4, v3"); e("v_lshl_add_u32 v5, v3, 4, v2")
    for n in range(8):
        e(f"v_add_u32 v{16+n}, {8*n*3456 - (n & 3)*1024}, v{4+(n & 1)}")
    e("s_waitcnt lgkmcnt(0)")
    k.srd(16, 8, 9, 640*3456)
    e(f"s_mov_b32 s38, {64*3456}")
    k.label("m_ld")
    e("s_mul_i32 s37, s45, s38"); e("s_mul_i32 s46, s38, 10"); e("s_mov_b32 s40, 0")
    k.label("m_ldloop")
    e("s_cmp_lt_u32 s40, 3"); e("s_cbranch_scc1 m_ldissue")
    e("s_waitcnt vmcnt(16)")
    e("s_barrier")
    k.label("m_ldissue")
    for g in range(2):
        e(f"s_add_u32 m0, s39, {g*4096}")
        e("s_nop 0")
        for n in range(4): e(f"buffer_load_dwordx4 v{16+g*4+n}, s[16:19], s37 offen offset:{n*1024} lds")
    e("s_add_u32 s39, s39, 32768"); e("s_and_b32 s39, s39, 0x1ffff")
    e("s_add_u32 s37, s37, s38"); e("s_cmp_eq_u32 s37, s46"); e("s_cselect_b32 s37, 0, s37")
    e("s_add_u32 s40, s40, 1"); e("s_cmp_lt_u32 s40, 10"); e("s_cbranch_scc1 m_ldloop")
    k.stamp(1)
    k.srd(24, 14, 15, 32768, WS_ST1)
    k.srd(48, 12, 13, 256)
    e("v_bfe_u32 v4, v1, 2, 2"); e("v_lshlrev_b32 v4, 3, v4"); e("v_bfe_u32 v5, v1, 4, 1"); e("v_lshl_add_u32 v4, v5, 2, v4")
    e("v_and_b32 v5, 0x23, v1"); e("v_add_u32 v4, v4, v5"); e("v_lshlrev_b32 v232, 4, v4"); e("v_mov_b32 v233, 0")
    e("s_lshl_b32 s52, s35, 11"); e("s_and_b32 s43, s32, 1"); e("s_lshl_b32 s43, s43, 10"); e("s_add_u32 s52, s52, s43")
    e("buffer_load_dword v234, v233, s[48:51], 0 offen sc1")
    e("buffer_load_dwordx4 v[236:239], v232, s[24:27], s52 offen sc1")
    conv_params(k)
    e("s_getpc_b64 s[44:45]")
    k.label("m_pc")
    e(f"s_sub_u32 s44, s44, m_pc-{name}"); e("s_subb_u32 s45, s45, 0")
    e(f"s_mov_b32 s46, text_end-{name}"); e("s_mov_b32 s47, 0x00020000")
    e("s_and_b32 s43, s42, 15"); e("s_lshl_b32 s43, s43, 2"); e("s_add_u32 s43, s43, s33"); e("s_lshl_b32 s43, s43, 10")
    e("v_lshlrev_b32 v2, 4, v1")
    e("buffer_load_dwordx4 v[224:227], v2, s[44:47], s43 offen")
    k.srd(20, 10, 11, 2048*4096)
    e("s_lshl_b32 s43, s42, 2"); e("s_add_u32 s43, s43, s32"); e(f"s_mul_i32 s43, s43, {9*1024+384}")
    e("s_lshl_b32 s44, s41, 20"); e("s_add_u32 s43, s43, s44")
    e("v_lshlrev_b32 v2, 4, v1")
    def pf(n):
        for i in range(n):
            e(f"buffer_load_dwordx4 v[224:227], v2, s[20:23], s43 offen offset:{(i%4)*1024}")
            if i % 4 == 3 or i == n - 1: e(f"s_add_u32 s43, s43, {(i%4+1)*1024}")
    e("s_waitcnt vmcnt(25)"); e("s_barrier"); pf(4)
    e("s_waitcnt vmcnt(21)"); e("s_barrier"); pf(6)
    e("s_waitcnt vmcnt(19)"); e("s_barrier")
    e("s_cmp_ge_u32 s32, 2"); e("s_cbranch_scc1 m_st1ok")
    e("s_waitcnt vmcnt(17)")
    e("s_mov_b32 s40, 0")
    e("s_branch m_st1chk")
    k.label("m_st1poll")
    e("buffer_load_dword v234, v233, s[48:51], 0 offen sc1")
    e("buffer_load_dwordx4 v[236:239], v232, s[24:27], s52 offen sc1")
    e("s_waitcnt vmcnt(0)")
    k.label("m_st1chk")
    e("v_xor_b32 v4, v237, v234"); e("v_xor_b32 v5, v239, v234"); e("v_or_b32 v4, v4, v5")
    e("v_cmp_ne_u32 vcc, 0, v4"); e("v_cmp_eq_u32 s[44:45], 0, v234"); e("s_add_u32 s40, s40, 1")
    e("s_or_b64 vcc, vcc, s[44:45]")
    e(f"s_cmp_ge_u32 s40, {SPIN}"); e("s_cbranch_scc1 m_st1w")
    e("s_cbranch_vccnz m_st1poll")
    k.label("m_st1w")
    e("s_lshl_b32 s44, s32, 8"); e(f"s_add_u32 s44, s44, {MISC}"); e("v_lshl_add_u32 v4, v1, 2, s44"); e(f"v_mov_b32 v5, {W_EPOCH}")
    e("ds_write_b32 v4, v236"); e("ds_write_b32 v4, v238 offset:512"); e("ds_write_b32 v5, v234")
    e("s_waitcnt lgkmcnt(0)")
    k.label("m_st1ok")
    e("s_barrier")
    k.label("m_Lpost")
    k.stamp(2)
    e(f"v_mov_b32 v4, {W_EPOCH}"); e("ds_read_b32 v5, v4")
    k.srd(FLS, 14, 15, FL_BYTES, WS_FL)
    e("v_and_b32 v2, 15, v1"); e("v_lshrrev_b32 v3, 4, v1")
    e("s_lshr_b32 s35, s41, 1"); e("s_lshl_b32 s35, s35, 3"); e("s_lshr_b32 s43, s42, 2"); e("s_add_u32 s35, s35, s43")
    e("s_waitcnt lgkmcnt(0)")
    e("v_readfirstlane_b32 s3, v5")
    e("s_cmp_lg_u32 s32, 3"); e("s_cbranch_scc1 m_conv")
    k.srd(16, 10, 11, 2048*4096)
    e("v_lshrrev_b32 v4, 5, v1"); e("v_lshlrev_b32 v4, 3, v4"); e("v_bfe_u32 v5, v1, 3, 2"); e("v_add_u32 v4, v4, v5")
    e("v_lshlrev_b32 v4, 12, v4")
    e("v_and_b32 v5, 7, v1"); e("v_xor_b32 v5, v5, v3")
    e("v_lshl_add_u32 v6, v5, 4, v4")
    e("v_xor_b32 v5, 4, v5"); e("v_lshl_add_u32 v7, v5, 4, v4")
    for n in range(8):
        ee, t = n & 1, n >> 1
        e(f"v_add_u32 v{16+n}, {(32*(t >> 1) + 4*(t & 1) + 16*ee)*4096 - (n & 3)*1024}, v{6+ee}")
    e("s_lshl_b32 s37, s35, 18")
    e(f"s_and_b32 s43, s35, {ROTM}"); e("s_lshl_b32 s43, s43, 8"); e("s_add_u32 s37, s37, s43")
    e("s_mov_b32 s40, 0")
    k.label("m_pfloop")
    e("s_and_b32 s43, s40, 3"); e("s_lshr_b32 s44, s40, 2")
    e(f"s_mul_i32 s45, s43, {RING2}"); e("s_lshl_b32 s46, s44, 13"); e("s_add_u32 s45, s45, s46")
    e("s_lshl_b32 s43, s43, 10"); e("s_lshl_b32 s44, s44, 7"); e("s_add_u32 s43, s43, s44"); e("s_add_u32 s43, s43, s37")
    for g in range(2):
        e(f"s_add_u32 m0, s45, {g*4096}")
        e("s_nop 0")
        for n in range(4): e(f"buffer_load_dwordx4 v{16+g*4+n}, s[16:19], s43 offen offset:{n*1024} lds")
    e("s_waitcnt vmcnt(16)")
    e("s_add_u32 s40, s40, 1"); e("s_cmp_lt_u32 s40, 8"); e("s_cbranch_scc1 m_pfloop")
    k.stamp(3)
    e("s_and_b32 s36, s41, 1"); e("s_lshl_b32 s36, s36, 2"); e("s_and_b32 s43, s42, 3"); e("s_add_u32 s36, s36, s43")
    e("s_cmp_eq_u32 s36, 7"); e("s_cselect_b32 s43, 31, 47")
    e("v_min_u32 v7, s43, v1"); e("v_lshlrev_b32 v7, 2, v7")
    e("s_lshl_b32 s45, s35, 3"); e("s_add_u32 s45, s45, s36"); e("s_lshl_b32 s45, s45, 8"); e(f"s_add_u32 s45, s45, {FZ2}")
    e(f"v_mov_b32 v4, {W_PF + 8}")
    lds_wait_ge(k, "m_wown1", "v4", 5, 1, 4, sleep=2)
    if ZD: e(f"s_sleep {ZD}")
    poll_flags(k, "m_pollz", "v7", FLS, 1, 5, "v6", soff="s45", sleep=ZSL)
    e(f"v_mov_b32 v4, {W_PF}"); e("v_mov_b32 v5, 1")
    e("ds_write_b32 v4, v5")
    k.stamp(4)
    e("s_sleep 64")
    e("v_and_b32 v4, 31, v1"); e("v_lshlrev_b32 v4, 2, v4"); e(f"s_mov_b32 s44, {FK}")
    poll_flags(k, "m_pollx3", "v4", FLS, 1, 5, "v6", soff="s44", sleep=64)
    e(f"v_mov_b32 v4, {W_FX}"); e("v_mov_b32 v5, 1"); e("ds_write_b32 v4, v5")
    e("s_branch m_L3prep")
    k.label("m_conv")
    e("s_cmp_ge_u32 s34, 640"); e("s_cbranch_scc1 m_L3prep")
    e(f"s_mul_i32 s39, s32, {CONV_B}"); e(f"s_add_u32 s39, s39, {CONV0}")
    e("s_waitcnt vmcnt(10)")
    kgen_dt(k, "v13")
    kgen_addr(k, "s39", "v2", "v3", "v1")
    e("s_mov_b32 s40, 2")
    kgen_loop(k, 164, "v13", "s40")
    k.stamp(3)
    UO, KC = 8320, 12928
    e("v_lshlrev_b32 v15, 4, v1")
    e(f"s_mov_b32 s44, {FX}")
    e("v_and_b32 v220, 31, v1"); e("v_lshlrev_b32 v220, 2, v220")
    e("buffer_load_dword v216, v220, s[60:63], s44 offen sc1")
    e(f"s_add_u32 s43, s39, {KC}")
    e("v_max_u32 v4, 1, v3"); e("v_sub_u32 v4, 5, v4")
    e("v_lshlrev_b32 v5, v4, v2")
    e("v_lshlrev_b32 v6, 3, v3")
    e("v_mov_b32 v7, 512"); e("v_cmp_eq_u32 vcc, 2, v3"); e("s_nop 1"); e("v_cndmask_b32 v6, v6, v7, vcc")
    e("v_mov_b32 v7, 768"); e("v_mov_b32 v8, 4"); e("v_mov_b32 v9, 128"); e("v_cmp_eq_u32 vcc, 3, v3"); e("s_nop 1")
    e("v_cndmask_b32 v6, v6, v7, vcc"); e("v_cndmask_b32 v8, v8, v9, vcc")
    e("v_add3_u32 v5, v5, v6, s43")
    e("v_lshlrev_b32 v6, v4, 16"); e("v_add_u32 v6, v5, v6")
    e("v_add_u32 v7, v5, v8"); e("v_add_u32 v8, v6, v8")
    for n in range(8): e(f"v_cvt_pk_bf16_f32 v{24+n}, v{136+2*n}, v{137+2*n}")
    e("ds_write_b32 v5, v24"); e("ds_write_b32 v7, v25"); e("ds_write_b32 v6, v26"); e("ds_write_b32 v8, v27")
    e("v_lshlrev_b32 v9, 6, v2"); e("v_lshl_add_u32 v9, v3, 3, v9"); e("v_add_u32 v9, s43, v9")
    e("v_mov_b32 v20, 0"); e("v_mov_b32 v21, 0"); e("v_mov_b32 v22, 0"); e("v_mov_b32 v23, 0")
    e("v_add_u32 v16, s39, v15")
    e("v_lshl_add_u32 v17, v1, 3, s39")
    e(f"ds_write_b64 v17, v[20:21] offset:{UO}")
    e("v_cmp_gt_u32 vcc, 5, v2"); e("s_and_saveexec_b64 s[46:47], vcc")
    e("ds_write_b64 v9, v[28:29] offset:1024"); e("ds_write_b64 v9, v[30:31] offset:1056")
    e("s_mov_b64 exec, 3")
    e("ds_write_b128 v16, v[20:23] offset:4096"); e(f"ds_write_b128 v16, v[20:23] offset:{4160+4096}")
    e("s_mov_b64 exec, -1")
    e(f"s_add_u32 s44, s39, {KC + 256 - 2*0x4300}")
    e(f"v_mov_b32 v31, {f32(128.0)}")
    e("v_lshlrev_b32 v18, 3, v1"); e("v_cvt_f32_u32 v18, v18")
    e("s_waitcnt lgkmcnt(0)")
    for m in range(4):
        for el in range(10): e(f"v_sub_f32 v{96+el}, {f32(2047 - 512*m - el)}, v18")
        if m == 3: e("v_max_f32 v104, 0, v104")
        for p in range(5): e(f"v_cvt_pk_bf16_f32 v{108+p}, v{96+2*p}, v{97+2*p}")
        for el in range(9):
            a = f"v{114+el}"
            if el % 2 == 0: e(f"v_and_b32 {a}, 0xffff, v{108+el//2}")
            else: e(f"v_lshrrev_b32 {a}, 16, v{108+el//2}")
            e(f"v_lshl_add_u32 {a}, {a}, 1, s44")
            if m == 3:
                e(f"v_cvt_u32_f32 v19, v{96+el}"); e("v_lshl_add_u32 v19, v19, 1, s43")
                e(f"v_cmp_lt_f32 vcc, v{96+el}, v31"); e("s_nop 1"); e(f"v_cndmask_b32 {a}, {a}, v19, vcc")
        for el in range(9): e(f"ds_read_u16 v{144+9*m+el}, v{114+el}")
    e(f"s_mov_b32 s46, {FX}")
    poll_flags(k, "m_pollx", "v220", FLS, 1, 216, "v4", soff="s46", sleep=32, preloaded=True)
    k.stamp(4)
    k.srd(20, 14, 15, XT_BYTES, WS_XNT)
    k.srd(24, 14, 15, XT_BYTES, WS_YT)
    e("s_lshl_b32 s45, s34, 12")
    for n in range(4): e(f"buffer_load_dwordx4 {v(200+4*n,4)}, v15, s[20:23], s45 offen offset:{n*1024} sc1")
    e("s_waitcnt lgkmcnt(0)")
    e("v_cmp_eq_u32 vcc, 63, v1"); e("s_nop 1"); e(f"v_cndmask_b32 v{144+35}, v{144+35}, v20, vcc")
    for m in range(4):
        W = 32 + 16*m; E = 144 + 9*m
        for p in range(4):
            e(f"v_lshl_or_b32 v{W+p}, v{E+2*p+1}, 16, v{E+2*p}")
            e(f"v_lshl_or_b32 v{W+8+p}, v{E+2*p+2}, 16, v{E+2*p+1}")
        e(f"ds_write_b128 v16, {v(W,4)} offset:{1024*m}")
        e(f"ds_write_b128 v16, {v(W+8,4)} offset:{4160+1024*m}")
    e("s_waitcnt vmcnt(0)")
    for n in range(4): e(f"ds_write_b128 v16, {v(200+4*n,4)} offset:{UO+512+1024*n}")
    k.stamp(5)
    e("v_and_b32 v4, 1, v2"); e("v_xor_b32 v4, 1, v4"); e("v_mul_u32_u24 v4, 4160, v4")
    e("v_lshrrev_b32 v5, 1, v2"); e("v_lshlrev_b32 v6, 2, v3"); e("v_sub_u32 v5, v6, v5")
    e("v_lshl_add_u32 v4, v5, 2, v4"); e("v_add_u32 v4, s39, v4")
    for mp in range(4): e(f"v_add_u32 v{24+mp}, {4*(1023 - 8 - 128*(2*mp+1))}, v4")
    e("v_lshlrev_b32 v5, 5, v2"); e("v_lshl_add_u32 v5, v3, 4, v5")
    e(f"s_add_u32 s43, s39, {UO+480}"); e("v_add_u32 v28, s43, v5")
    def Af(m): return 32 + 4*m
    def Bf(r): return 64 + 4*r
    def ac(cb): return v(96 + 4*cb, 4)
    for i in range(32): e(f"v_mov_b32 v{96+i}, 0")
    e("v_lshlrev_b32 v14, 16, v14")
    e("s_waitcnt lgkmcnt(0)")
    def rdA(m):
        o = 0 if m & 1 else 128
        e(f"ds_read2_b32 {v(Af(m),2)}, v{24+m//2} offset0:{o} offset1:{o+1}"); e(f"ds_read2_b32 {v(Af(m)+2,2)}, v{24+m//2} offset0:{o+2} offset1:{o+3}")
    def rdB(r): e(f"ds_read_b128 {v(Bf(r),4)}, v28 offset:{512*r}")
    for m in range(8): rdA(m); rdB(7-m)
    e("s_mov_b32 s40, 8")
    k.label("m_cloop")
    for r in range(24, 29): e(f"v_subrev_u32 v{r}, 64, v{r}")
    for m in range(8):
        for cb in (range(7, -1, -1) if m == 0 else range(m, 8)):
            if m == 0: e(f"s_waitcnt lgkmcnt({min(3*cb, 15)})")
            e(f"{MFMA} {ac(cb)}, {v(Af(m),4)}, {v(Bf(cb-m),4)}, {ac(cb)}")
        rdA(m); rdB(7-m)
    e("s_sub_u32 s40, s40, 1"); e("s_cmp_lg_u32 s40, 0"); e("s_cbranch_scc1 m_cloop")
    k.stamp(6)
    e("s_waitcnt lgkmcnt(0)")
    e("v_lshlrev_b32 v20, 5, v2"); e("v_lshl_add_u32 v20, v3, 3, v20")
    e(f"s_add_u32 s43, s39, {UO+512}"); e("v_add_u32 v21, s43, v20")
    for cb in range(8): e(f"ds_read_b64 {v(32+2*cb,2)}, v21 offset:{512*cb}")
    e("s_waitcnt lgkmcnt(0)")
    for c0 in (0, 4):
        A = [96 + 4*cb + 2*p for cb in range(c0, c0+4) for p in range(2)]
        U = [32 + 2*cb + p for cb in range(c0, c0+4) for p in range(2)]
        for i in range(8): unpack(k, f"v{72+2*i}", f"v{73+2*i}", f"v{U[i]}")
        for i in range(8): e(f"v_pk_fma_f32 {pr(A[i])}, {pr(72+2*i)}, v[14:15], {pr(A[i])} op_sel_hi:[1,0,1]")
        for i in range(8): e(f"v_cvt_pk_bf16_f32 v{U[i]}, v{A[i]}, v{A[i]+1}")
        for cb in range(c0, c0+4): e(f"ds_write_b64 v21, {v(32+2*cb,2)} offset:{512*cb}")
    for n in range(4): e(f"ds_read_b128 {v(64+4*n,4)}, v16 offset:{UO+512+1024*n}")
    for n in range(4):
        e(f"s_waitcnt lgkmcnt({3-n})")
        e(f"buffer_store_dwordx4 {v(64+4*n,4)}, v15, s[24:27], s45 offen offset:{1024*n} sc1")
    e("s_lshl_b32 s43, s34, 2"); e(f"s_add_u32 s43, s43, {FY}")
    set_flag(k, FLS, "s43", 0, "v4", "v5")
    k.stamp(7)
    k.label("m_L3prep")
    e("s_and_b32 s36, s41, 1"); e("s_lshl_b32 s36, s36, 2"); e("s_and_b32 s43, s42, 3"); e("s_add_u32 s36, s36, s43")
    e("s_lshl_b32 s43, s33, 2"); e(f"s_add_u32 s43, s43, {W_GL}"); e("v_mov_b32 v4, s43")
    lds_wait(k, "m_wgl", "v4", "v5", sleep=8)
    e(f"v_mov_b32 v4, {W_FX}")
    lds_wait(k, "m_wfw", "v4", "v5")
    k.stamp(8)
    e("s_mul_i32 s46, s33, 15"); e("s_add_u32 s46, s46, 42")
    e("s_cmp_eq_u32 s33, 3"); e("s_cselect_b32 s47, 48, 15")
    e("s_branch m_P3")

    k.label("m_gemm1")
    e("v_and_b32 v2, 15, v1"); e("v_lshrrev_b32 v3, 4, v1")
    e("v_lshlrev_b32 v12, 4, v1")
    e("v_add_u32 v13, 4096, v12")
    PL = 200
    def poll_loads():
        for i in range(7):
            e(f"buffer_load_dwordx4 {v(PL+4*i,4)}, v{12 if i < 4 else 13}, s[28:31], s72 offen offset:{(i%4)*1024} sc1")
    e("v_mov_b32 v10, 0")
    e("v_and_b32 v4, 31, v1"); e(f"v_lshlrev_b32 v4, 2, v4"); e(f"v_add_u32 v4, {W_EPOCH}, v4")
    e("ds_write_b32 v4, v10")
    e("s_waitcnt lgkmcnt(0)")
    k.srd(64, 12, 13, 256)
    e("s_cmp_lg_u32 s2, 0"); e("s_cbranch_scc1 m_noep")
    e("s_cmp_lg_u32 s32, 4"); e("s_cbranch_scc1 m_noep")
    e("s_memrealtime s[44:45]"); e("s_waitcnt lgkmcnt(0)"); e("s_or_b32 s44, s44, 1"); e("v_mov_b32 v4, s44")
    e("s_mov_b64 exec, 1")
    e("buffer_store_dword v4, v10, s[64:67], 0 offen sc1")
    e("s_mov_b64 exec, -1")
    k.label("m_noep")
    e("s_lshl_b32 s43, s35, 2"); e("s_add_u32 s43, s43, s33"); e(f"s_mul_i32 s72, s43, {14*512}")
    e("s_lshl_b32 s44, s36, 9"); e("s_add_u32 s73, s72, s44")
    e("s_lshl_b32 s74, s36, 6"); e("s_add_u32 s74, s74, s43"); e("s_lshl_b32 s74, s74, 2")
    e("v_and_b32 v4, 7, v1"); e("v_lshl_add_u32 v4, v3, 3, v4"); e("v_bfe_u32 v5, v1, 3, 1"); e("v_lshlrev_b32 v5, 3, v5")
    e("v_lshl_add_u32 v230, v4, 4, v5")
    k.srd(28, 14, 15, ST2_BYTES, WS_ST2)
    k.srd(24, 14, 15, ZF_BYTES, WS_Z2F)
    k.srd(20, 14, 15, ZF_BYTES, WS_Z1F)
    k.srd(FLS, 14, 15, FL_BYTES, WS_FL)
    for c in range(4):
        e(f"s_xor_b32 s43, s33, {c}")
        e("s_lshl_b32 s44, s36, 2"); e("s_add_u32 s43, s43, s44"); e("s_sub_u32 s43, s43, 2")
        e(f"s_cmp_lt_u32 s43, 54"); e(f"s_cselect_b32 s{50+c}, -1, 0")
        e("s_cselect_b32 s43, s43, 60")
        e(f"s_lshl_b32 s{46+c}, s43, 16")
        e("s_lshl_b32 s44, s35, 2"); e("s_add_u32 s44, s44, s33"); e("s_lshl_b32 s44, s44, 10")
        e(f"s_add_u32 s{46+c}, s{46+c}, s44")
    for b in range(2):
        for g in range(2):
            e("s_lshr_b32 s43, s33, 1"); e(f"s_xor_b32 s43, s43, {g}"); e("s_lshl_b32 s44, s36, 1"); e("s_add_u32 s43, s43, s44")
            e("s_lshl_b32 s44, s35, 3"); e("s_lshl_b32 s45, s33, 1"); e("s_add_u32 s44, s44, s45"); e(f"s_add_u32 s44, s44, {b}")
            e("s_mul_i32 s44, s44, 27"); e("s_add_u32 s44, s44, s43"); e("s_lshl_b32 s44, s44, 10")
            e("s_cmp_lt_u32 s43, 27"); e(f"s_cselect_b32 s{68+b*2+g}, s44, {HUGE}")
    e("v_and_b32 v4, 2, v1"); e("v_and_b32 v5, 1, v1")
    e("v_cmp_ne_u32 s[54:55], 0, v4"); e("v_cmp_ne_u32 s[56:57], 0, v5")
    e("s_lshl_b32 s43, s33, 5")
    e("v_add_u32 v4, s43, v2"); e("v_lshlrev_b32 v4, 7, v4")
    e("v_lshrrev_b32 v5, 1, v2"); e("v_xor_b32 v5, v5, v3")
    e("v_lshl_add_u32 v14, v5, 4, v4")
    e("v_xor_b32 v15, 64, v14")
    e("v_bfe_u32 v4, v1, 2, 2")
    e("v_lshl_add_u32 v5, v3, 3, v4"); e("v_lshlrev_b32 v5, 7, v5")
    e("v_and_b32 v6, 3, v1"); e("v_lshl_add_u32 v5, v6, 3, v5")
    e("v_add_u32 v5, 16384, v5")
    e("v_lshrrev_b32 v6, 1, v4"); e("v_and_b32 v7, 1, v3"); e("v_lshl_or_b32 v6, v7, 1, v6")
    e("v_xor_b32 v6, s33, v6")
    for c in range(4):
        e(f"v_xor_b32 v7, {c}, v6"); e(f"v_lshl_add_u32 v{16+c}, v7, 5, v5")
    for i in range(4): e(f"v_mov_b32 v{20+i}, 0x3f803f80")
    ACC = 104
    for i in range(ACC, 192): e(f"v_mov_b32 v{i}, 0")
    def xf(ks, b): return v(24 + 40*ks + 4*b, 4)
    def wfb(ks, h, c): return 24 + 40*ks + 8 + 16*h + 4*c
    def wf(ks, h, c): return v(wfb(ks, h, c), 4)
    def accb(h, b, c): return ACC + 32*h + (b*4 + c)*4
    def acc(h, b, c): return v(accb(h, b, c), 4)
    def rlist(ks):
        L = [f"ds_read_b128 {xf(ks,b)}, v{14+ks} offset:{2048*b}" for b in range(2)]
        for h in range(2):
            for c in range(4):
                for hh in range(2):
                    L.append(f"ds_read_b64_tr_b16 {v(wfb(ks,h,c)+2*hh,2)}, v{16+c} offset:{h*8192+ks*4096+hh*512}")
        return L
    def mlist(ks):
        L = []
        for h in range(2):
            L.append(f"{MFMA} {v(184+4*h,4)}, v[20:23], {wf(ks,h,0)}, {v(184+4*h,4)}")
            for c in range(4):
                for b in range(2):
                    if h == 0: L.append(f"{MFMA} {acc(h,b,c)}, {xf(ks,b)}, {wf(ks,h,c)}, {acc(h,b,c)}")
                    else:      L.append(f"{MFMA} {acc(h,b,c)}, {wf(ks,h,c)}, {xf(ks,b)}, {acc(h,b,c)}")
        return L
    def phase(ks, rd, extra=()):
        M = mlist(ks); R = list(rd); X = list(extra)
        for i, m in enumerate(M):
            e(m)
            if R: e(R.pop(0))
            if R and i < 4: e(R.pop(0))
            elif X and not R:
                for _ in range(3):
                    if X: e(X.pop(0))
        for x in X: e(x)
    bump = [f"v_add_u32 v{r}, 0x8000, v{r}" for r in range(14, 20)]
    wrap = [f"v_and_b32 v{r}, 0x1ffff, v{r}" for r in range(14, 20)]
    e("s_lshl_b32 s43, s33, 6"); e(f"s_add_u32 s43, s43, {MISC+1024}"); e("v_lshl_add_u32 v196, v2, 2, s43")
    for c in range(4):
        e(f"s_xor_b32 s43, s33, {c}"); e(f"s_lshl_b32 s43, s43, 6"); e(f"s_add_u32 s43, s43, {MISC+1024}")
        e(f"v_lshl_add_u32 v{232+c}, v2, 2, s43"); e(f"v_lshl_add_u32 v{236+c}, v3, 4, s43")
    e("s_lshl_b32 s43, s33, 7"); e(f"s_add_u32 s43, s43, {MISC}")
    e("v_lshl_add_u32 v7, v2, 2, s43"); e("v_lshl_add_u32 v8, v3, 4, s43"); e(f"v_mov_b32 v9, {W_EPOCH}")
    k.stamp(1)
    e("s_mov_b32 s40, 10")
    e("s_barrier")
    k.stamp(2)
    for r in rlist(0): e(r)
    k.label("m_loop1")
    e("s_waitcnt lgkmcnt(0)")
    phase(0, rlist(1), bump + wrap)
    e("s_sub_u32 s40, s40, 1"); e("s_cmp_eq_u32 s40, 0")
    e("s_waitcnt lgkmcnt(0)")
    e(f"s_cbranch_scc1 m_tail1")
    e("s_barrier")
    phase(1, rlist(0))
    e(f"s_branch m_loop1")
    k.label(f"m_tail1")
    phase(1, [])
    e("s_setprio 2")
    k.stamp(3)
    epoch_poll = None
    e("ds_write_b32 v196, v184"); e("ds_write_b32 v196, v188 offset:256")
    e("s_waitcnt lgkmcnt(0)")
    e("s_barrier")
    e("ds_read_b128 v[24:27], v8"); e("ds_read_b128 v[28:31], v8 offset:64")
    e("ds_read_b128 v[32:35], v8 offset:512"); e("ds_read_b128 v[36:39], v8 offset:576")
    for c in range(4): e(f"ds_read_b32 v{40+2*c}, v{232+c}")
    e("ds_read_b32 v229, v9")
    for c in range(4): e(f"ds_read_b128 {v(64+4*c,4)}, v{236+c} offset:256")
    e("ds_read_b32 v80, v7"); e("ds_read_b32 v82, v7 offset:64"); e("ds_read_b32 v84, v7 offset:512"); e("ds_read_b32 v86, v7 offset:576")
    e(f"v_mov_b32 v88, {f32(GC1)}"); e(f"v_mov_b32 v90, {f32(GC0)}")
    e("s_waitcnt lgkmcnt(8)")
    e("v_readfirstlane_b32 s3, v229")
    e("s_cmp_lg_u32 s36, 0"); e("s_cbranch_scc1 m_nomask")
    for c in range(4):
        e(f"v_and_b32 v{40+2*c}, s{50+c}, v{40+2*c}")
        for b in range(2):
            for r in range(4): e(f"v_and_b32 v{accb(0,b,c)+r}, s{50+c}, v{accb(0,b,c)+r}")
    k.label("m_nomask")
    def gelu_pairs(A):
        n = len(A); T = [48 + 2*i for i in range(n)]
        for i in range(n): e(f"v_pk_mul_f32 {pr(T[i])}, {pr(A[i])}, {pr(A[i])}")
        for i in range(n): e(f"v_pk_fma_f32 {pr(T[i])}, {pr(T[i])}, v[88:89], v[90:91] op_sel_hi:[1,0,0]")
        for i in range(n): e(f"v_pk_mul_f32 {pr(T[i])}, {pr(T[i])}, {pr(A[i])}")
        for i in range(n): e(f"v_exp_f32 v{T[i]}, v{T[i]}"); e(f"v_exp_f32 v{T[i]+1}, v{T[i]+1}")
        for i in range(n): e(f"v_pk_add_f32 {pr(T[i])}, {pr(T[i])}, 1.0 op_sel_hi:[1,0]")
        for i in range(n): e(f"v_rcp_f32 v{T[i]}, v{T[i]}"); e(f"v_rcp_f32 v{T[i]+1}, v{T[i]+1}")
        for i in range(n): e(f"v_pk_mul_f32 {pr(A[i])}, {pr(A[i])}, {pr(T[i])}")
    for c0 in (0, 2):
        A = [accb(0, b, c) + 2*p for c in (c0, c0+1) for b in range(2) for p in range(2)]
        M = [24 + 4*b + 2*p for c in (c0, c0+1) for b in range(2) for p in range(2)]
        C = [40 + 2*c for c in (c0, c0+1) for b in range(2) for p in range(2)]
        for i in range(8): e(f"v_pk_fma_f32 {pr(A[i])}, {pr(M[i])}, {pr(C[i])}, {pr(A[i])} op_sel_hi:[1,0,1] neg_lo:[1,0,0] neg_hi:[1,0,0]")
        for i in range(8): e(f"v_pk_mul_f32 {pr(A[i])}, {pr(A[i])}, {pr(M[i]+8)}")
        gelu_pairs(A)
        for i in range(8):
            n = (i % 4) * 2
            e(f"v_pk_add_f32 {pr(168+n)}, {pr(168+n)}, {pr(A[i])}")
            e(f"v_pk_fma_f32 {pr(176+n)}, {pr(A[i])}, {pr(A[i])}, {pr(176+n)}")
    e("s_nop 0")
    for n in range(8): e(f"v_add_f32_dpp v{48+n}, v{168+n}, v{168+n} row_ror:8 row_mask:0xf bank_mask:0x3")
    for n in range(8): e(f"v_add_f32_dpp v{48+n}, v{176+n}, v{176+n} row_ror:8 row_mask:0xf bank_mask:0xc")
    for n in range(4): e(f"v_add_f32_dpp v{168+n}, v{48+n}, v{48+n} row_half_mirror row_mask:0xf bank_mask:0x5")
    for n in range(4): e(f"v_add_f32_dpp v{168+n}, v{52+n}, v{52+n} row_half_mirror row_mask:0xf bank_mask:0xa")
    for n in range(2):
        e(f"v_cndmask_b32 v{172+n}, v{170+n}, v{168+n}, s[54:55]")
        e(f"v_cndmask_b32 v{174+n}, v{168+n}, v{170+n}, s[54:55]")
    e("s_nop 0")
    for n in range(2): e(f"v_add_f32_dpp v{176+n}, v{172+n}, v{174+n} quad_perm:[2,3,0,1] row_mask:0xf bank_mask:0xf")
    e("v_cndmask_b32 v172, v177, v176, s[56:57]"); e("v_cndmask_b32 v174, v176, v177, s[56:57]")
    e("s_nop 1")
    e("v_add_f32_dpp v228, v172, v174 quad_perm:[1,0,3,2] row_mask:0xf bank_mask:0xf")
    e("buffer_store_dwordx2 v[228:229], v230, s[28:31], s73 offen sc1")
    e("s_setprio 0")
    k.stamp(4)
    e("s_waitcnt lgkmcnt(0)")
    P1 = 168
    for c0 in (0, 2):
        A = [accb(1, b, c) + 2*p for c in (c0, c0+1) for b in range(2) for p in range(2)]
        M = [80 + 2*b for c in (c0, c0+1) for b in range(2) for p in range(2)]
        C = [64 + 4*c + 2*p for c in (c0, c0+1) for b in range(2) for p in range(2)]
        for i in range(8): e(f"v_pk_fma_f32 {pr(A[i])}, {pr(M[i])}, {pr(C[i])}, {pr(A[i])} op_sel_hi:[0,1,1] neg_lo:[1,0,0] neg_hi:[1,0,0]")
        for i in range(8): e(f"v_pk_mul_f32 {pr(A[i])}, {pr(A[i])}, {pr(M[i]+4)} op_sel_hi:[1,0]")
        gelu_pairs(A)
        i = 0
        for c in (c0, c0+1):
            for b in range(2):
                for p in range(2):
                    e(f"v_cvt_pk_bf16_f32 v{P1+b*8+c*2+p}, v{A[i]}, v{A[i]+1}"); i += 1
        if c0 == 0: poll_loads()
    e("s_bitcmp1_b32 s33, 0"); e("s_cbranch_scc0 m_noswap")
    for b in range(2):
        for g in range(2):
            for p in range(2):
                r0 = P1 + b*8 + g*4 + p
                e(f"v_swap_b32 v{r0}, v{r0+2}")
    k.label("m_noswap")
    e("s_setprio 2")
    e("s_mov_b32 s40, 0")
    e("s_waitcnt vmcnt(0)")
    for b in range(2):
        for g in range(2):
            e(f"buffer_store_dwordx4 {v(P1+b*8+g*4,4)}, v12, s[20:23], s{68+b*2+g} offen sc1")
    e("s_branch m_check")
    k.label("m_poll")
    poll_loads()
    e("s_waitcnt vmcnt(0)")
    k.label("m_check")
    e(f"v_xor_b32 v4, v{PL+1}, v229"); e(f"v_xor_b32 v5, v{PL+3}, v229")
    for i in range(1, 7):
        e(f"v_xor_b32 v9, v{PL+1+4*i}, v229"); e(f"v_xor_b32 v10, v{PL+3+4*i}, v229")
        e("v_or3_b32 v4, v4, v9, v10")
    e("v_or_b32 v4, v4, v5")
    e("v_cmp_ne_u32 vcc, 0, v4")
    e("s_add_u32 s40, s40, 1")
    e("s_nop 0")
    e("s_cbranch_vccz m_poll_done")
    e(f"s_cmp_lt_u32 s40, {SPIN}"); e("s_cbranch_scc1 m_poll")
    k.label("m_poll_done")
    k.stamp(5)
    for i in range(1, 7):
        e(f"v_add_f32 v{PL}, v{PL}, v{PL+4*i}"); e(f"v_add_f32 v{PL+2}, v{PL+2}, v{PL+2+4*i}")
    e(f"v_mov_b32 v{PL+1}, v{PL}"); e(f"v_mov_b32 v{PL+3}, v{PL+2}"); e("s_nop 1")
    e(f"v_permlane32_swap_b32 v{PL}, v{PL+1}"); e(f"v_permlane32_swap_b32 v{PL+2}, v{PL+3}"); e("s_nop 1")
    e(f"v_add_f32 v24, v{PL}, v{PL+1}"); e(f"v_add_f32 v26, v{PL+2}, v{PL+3}")
    e(f"v_mul_f32 v24, {f32(1/864)}, v24"); e(f"v_mul_f32 v26, {f32(1/864)}, v26")
    e("v_fma_f32 v26, -v24, v24, v26")
    ln_finish(k, "v24", "v26", "v25")
    e("s_lshl_b32 s43, s33, 8"); e(f"s_add_u32 s43, s43, {MISC+1536}")
    e("v_and_b32 v4, 31, v1"); e("v_lshl_add_u32 v4, v4, 2, s43"); e("v_lshl_add_u32 v5, v3, 5, s43")
    e("v_mul_f32 v24, v24, v26")
    e("ds_write_b32 v4, v24"); e("ds_write_b32 v4, v26 offset:128")
    e("ds_read_b128 v[28:31], v5"); e("ds_read_b128 v[32:35], v5 offset:16")
    e("ds_read_b128 v[36:39], v5 offset:128"); e("ds_read_b128 v[40:43], v5 offset:144")
    e("s_waitcnt lgkmcnt(0)")
    for c0 in (0, 2):
        A = [accb(0, b, c) + 2*p for c in (c0, c0+1) for b in range(2) for p in range(2)]
        M = [28 + (i % 4)*2 for i in range(8)]
        for i in range(8): e(f"v_pk_fma_f32 {pr(A[i])}, {pr(A[i])}, {pr(M[i]+8)}, {pr(M[i])} neg_lo:[0,0,1] neg_hi:[0,0,1]")
        for i in range(8): e(f"v_cvt_pk_bf16_f32 v{64+4*c0+i}, v{A[i]}, v{A[i]+1}")
        for c in (c0, c0+1): e(f"buffer_store_dwordx4 {v(64+4*c,4)}, v12, s[24:27], s{46+c} offen sc1")
    e("s_lshl_b32 s43, s36, 2")
    e("s_mov_b32 s44, 0x33221000"); e("s_mov_b32 s45, 0x00766554"); e("s_lshr_b64 s[44:45], s[44:45], s43"); e("s_and_b32 s46, s44, 15")
    e("s_mov_b32 s44, 0x44322110"); e("s_mov_b32 s45, 0x00776655"); e("s_lshr_b64 s[44:45], s[44:45], s43"); e("s_and_b32 s47, s44, 15")
    for r in (46, 47):
        e(f"s_lshl_b32 s43, s{r}, 2"); e("s_lshr_b32 s44, 0xca865310, s43"); e("s_and_b32 s44, s44, 15")
        e("s_sub_u32 s44, s36, s44"); e("s_lshl_b32 s44, s44, 4"); e("s_add_u32 s44, s44, s35"); e("s_lshl_b32 s44, s44, 2")
        e(f"s_lshl_b32 s{r}, s{r}, 8"); e(f"s_add_u32 s{r}, s{r}, s44")
    e("v_mov_b32 v6, s46"); e("v_mov_b32 v7, s47"); e("v_cmp_lt_u32 vcc, 31, v1"); e("v_and_b32 v8, 31, v1"); e("v_lshlrev_b32 v8, 11, v8")
    e("v_cndmask_b32 v6, v6, v7, vcc"); e("v_add_u32 v6, v6, v8")
    e(f"v_mov_b32 v4, {W_PF + 8}"); e("v_mov_b32 v5, 1"); e("v_mov_b32 v7, s3"); e(f"s_mov_b32 s44, {FZ2}")
    e("s_mov_b64 exec, 1")
    e("s_waitcnt vmcnt(0)")
    e("ds_add_rtn_u32 v8, v4, v5")
    e("s_waitcnt lgkmcnt(0)")
    e("v_readfirstlane_b32 s43, v8")
    e("s_mov_b64 exec, -1")
    e("s_cmp_lg_u32 s43, 3"); e("s_cbranch_scc1 m_P2")
    e("buffer_store_dword v7, v6, s[60:63], s44 offen sc1")
    gen_p2(k)
    gen_p3(k)
    gen_helper(k, epoch_poll)
    k.label("m_end")
    e("s_endpgm")
    return k.text(256, nsgpr=100)

def gen_p2(k):
    e = k.e
    k.label("m_P2")
    k.stamp(6)
    e("s_load_dwordx2 s[6:7], s[0:1], 80")
    e("s_lshr_b32 s35, s41, 1"); e("s_lshl_b32 s35, s35, 3"); e("s_lshr_b32 s43, s42, 2"); e("s_add_u32 s35, s35, s43")
    e("s_and_b32 s36, s42, 3")
    e("s_and_b32 s43, s41, 1"); e("s_mul_i32 s43, s43, 27"); e("s_mul_i32 s44, s36, 7"); e("s_add_u32 s37, s43, s44")
    e("v_and_b32 v240, 15, v1"); e("v_lshrrev_b32 v241, 4, v1"); e("v_mov_b32 v245, v1")
    e("v_lshrrev_b32 v2, 5, v1"); e("v_lshlrev_b32 v2, 3, v2"); e("v_bfe_u32 v3, v1, 3, 2"); e("v_add_u32 v2, v2, v3")
    e("v_lshlrev_b32 v2, 12, v2")
    e("v_and_b32 v3, 7, v1"); e("v_xor_b32 v3, v3, v241")
    e("v_lshl_add_u32 v242, v3, 4, v2")
    e("v_xor_b32 v3, 4, v3")
    e("v_lshl_add_u32 v243, v3, 4, v2"); e(f"v_add_u32 v243, {16*4096 - 1024}, v243")
    e("v_lshlrev_b32 v244, 4, v1")
    e("s_lshl_b32 s43, s35, 18"); e("s_lshl_b32 s44, s33, 10"); e("s_add_u32 s48, s43, s44")
    e(f"s_add_u32 s49, s48, {4*4096}"); e(f"s_add_u32 s50, s48, {32*4096}"); e(f"s_add_u32 s51, s48, {36*4096}")
    e("s_lshl_b32 s43, s37, 16"); e("s_lshl_b32 s44, s33, 14"); e("s_add_u32 s52, s43, s44")
    for c in range(1, 7): e(f"s_add_u32 s{52+c}, s52, {c*65536}")
    e("s_cmp_eq_u32 s36, 3"); e(f"s_cselect_b32 s58, {HUGE}, s58")
    e(f"s_mul_i32 s39, s33, {RING2}")
    k.srd(16, 10, 11, 2048*4096)
    k.srd(20, 14, 15, ZF_BYTES, WS_Z2F)
    k.srd(24, 14, 15, ZF_BYTES, WS_Z1F)
    k.srd(28, 14, 15, ZF_BYTES, WS_HF)
    def Z(st, c): return v(112 + st*28 + c*4, 4)
    def acc(c, sg): return v((c*4 + sg)*4, 4)
    def wf(sg): return v(224 + 4*sg, 4)
    def issueZ(n):
        if n % 4 == 0 and n:
            for c in range(7): e(f"s_add_u32 s{52+c}, s{52+c}, 4096")
        for c in range(7): k.vmem(f"buffer_load_dwordx4 {Z(n%4,c)}, v244, s[20:23], s{52+c} offen offset:{(n%4)*1024} sc1", f"Z{n}")
    def issueA(c):
        for t in range(4):
            e(f"s_add_u32 m0, s39, {(c%NSLOT)*8192 + t*2048}")
            e("s_nop 0")
            k.vmem(f"buffer_load_dwordx4 v242, s[16:19], s{48+t} offen lds", f"A{c}")
            k.vmem(f"buffer_load_dwordx4 v243, s[16:19], s{48+t} offen offset:1024 lds", f"A{c}")
        for t in range(4): e(f"s_add_u32 s{48+t}, s{48+t}, 128")
    k.vm = []
    e("v_lshrrev_b32 v5, 1, v240"); e("v_xor_b32 v5, v5, v241")
    e("v_lshlrev_b32 v4, 7, v240"); e("v_lshl_add_u32 v4, v5, 4, v4"); e("v_add_u32 v4, s39, v4")
    for sg in range(4):
        e(f"s_xor_b32 s43, s33, {sg}"); e("s_lshl_b32 s43, s43, 11")
        e(f"v_add_u32 v{246+sg}, s43, v4")
        e(f"v_xor_b32 v{250+sg}, 64, v{246+sg}")
    e("s_setprio 0")
    e(f"v_mov_b32 v4, {W_PF}")
    lds_wait(k, "m_wpf", "v4", "v5", sleep=1)
    k.srd(64, 6, 7, 4096)
    e("s_setprio 3")
    k.stamp(7); k.cyc(12)
    k.vm = []
    def issueZ1(n, c):
        if n % 4 == 0 and n and c == 0: e("v_add_u32 v254, 4096, v254"); e("v_and_b32 v254, 0x3fff, v254")
        k.vmem(f"buffer_load_dwordx4 {Z(n%4,c)}, v254, s[20:23], s{52+c} offen offset:{(n%4)*1024} sc1", f"Z{n}_{c}")
    def issueA1(c, t):
        e(f"s_add_u32 m0, s39, {(c%NSLOT)*8192 + t*2048}")
        e("s_nop 0")
        e(f"s_add_u32 s47, s{48+t}, s59")
        k.vmem(f"buffer_load_dwordx4 v242, s[16:19], s47 offen lds", f"A{c}")
        k.vmem(f"buffer_load_dwordx4 v243, s[16:19], s47 offen offset:1024 lds", f"A{c}")
        if t == 3: e("s_add_u32 s59, s59, 128"); e("s_and_b32 s59, s59, 1023")
    e(f"s_and_b32 s43, s35, {ROTM}"); e("s_lshl_b32 s59, s43, 8"); e("s_add_u32 s59, s59, 256"); e("s_and_b32 s59, s59, 1023")
    e("s_lshl_b32 s43, s43, 12"); e("v_add_u32 v254, s43, v244")
    for n in range(4):
        for c in range(7): issueZ1(n, c)
    for n in range(16):
        c, ks = n >> 1, n & 1
        if ks == 0 and f"A{c}" in k.vm: k.wait_vm(f"A{c}")
        for sg in range(4):
            e(f"ds_read_b128 {wf(sg)}, v{(250 if ks else 246)+sg} offset:{(c%NSLOT)*8192}")
        if n == 15:
            if f"Z{n}_6" in k.vm: k.wait_vm(f"Z{n}_6")
            e("s_waitcnt lgkmcnt(0)")
            for sg in (1, 3, 2, 0):
                for cc in range(7): e(f"{MFMA} {acc(cc,sg)}, {Z(n%4,cc)}, {wf(sg)}, {acc(cc,sg)}")
            continue
        for cc in range(7):
            if f"Z{n}_{cc}" in k.vm: k.wait_vm(f"Z{n}_{cc}")
            if n == 0 and cc == 0: k.stamp(8)
            for sg in range(4):
                if cc == 0: e(f"s_waitcnt lgkmcnt({3-sg})")
                e(f"{MFMA} {acc(cc,sg)}, {Z(n%4,cc)}, {wf(sg)}, {'0' if n == 0 else acc(cc,sg)}")
            if n + 4 < 16: issueZ1(n + 4, cc)
            if ks == 1 and c + NSLOT < 8 and cc in (0, 2, 4, 6): issueA1(c + NSLOT, cc // 2)
        if n == 12:
            e("s_lshl_b32 s43, s35, 2"); e("s_add_u32 s43, s43, s33"); e("s_mul_i32 s44, s43, 27648")
            for cc in range(7):
                e(f"s_add_u32 s45, s37, {cc}"); e("s_lshr_b32 s46, s45, 1"); e("s_lshl_b32 s46, s46, 10"); e("s_and_b32 s45, s45, 1"); e("s_lshl_b32 s45, s45, 3")
                e("s_add_u32 s45, s45, s46"); e(f"s_add_u32 s{52+cc}, s45, s44")
            e("s_cmp_eq_u32 s36, 3"); e(f"s_cselect_b32 s58, {HUGE}, s58")
            for cc in range(7): k.vmem(f"buffer_load_dwordx2 {v(112+2*cc,2)}, v244, s[24:27], s{52+cc} offen sc1", "z1")
            e("s_lshr_b32 s44, s43, 1"); e("s_lshl_b32 s44, s44, 5"); e("s_and_b32 s45, s43, 1"); e("s_lshl_b32 s45, s45, 2"); e("s_add_u32 s44, s44, s45")
            e("v_lshrrev_b32 v128, 2, v240"); e("v_and_b32 v129, 3, v240"); e("v_lshl_add_u32 v128, v128, 3, v129"); e("v_add_u32 v128, s44, v128")
            e("v_lshlrev_b32 v128, 1, v128")
            k.vmem("buffer_load_ushort v126, v128, s[64:67], 0 offen", "z1")
        if n == 12:
            e("s_lshl_b32 s43, s33, 2"); e(f"s_add_u32 s43, s43, {W_GL}"); e("v_mov_b32 v254, s43"); e("v_mov_b32 v255, 1")
            e("ds_write_b32 v254, v255")
    k.stamp(9); k.cyc(13)
    e("v_add_u32 v130, s39, v244")
    e("s_xor_b32 s43, s33, 1"); e(f"s_mul_i32 s43, s43, {RING2}"); e("v_add_u32 v131, s43, v244")
    e("s_xor_b32 s43, s33, 3"); e(f"s_mul_i32 s43, s43, {RING2}"); e("v_add_u32 v132, s43, v244")
    e(f"v_add_u32 v133, {W_R1 - W_GL}, v254")
    e("v_xor_b32 v134, 4, v133"); e("v_xor_b32 v135, 8, v133"); e("v_add_u32 v135, 16, v135")
    for c in range(7):
        for h in range(2): e(f"ds_write_b128 v130, {acc(c,1+2*h)} offset:{(c*2+h)*1024}")
    e("ds_write_b32 v133, v255")
    lds_wait(k, "m_wr1", "v134", "v136")
    T = 140
    for h in (1, 0):
        for c in range(7): e(f"ds_read_b128 {v(T+(c*2+h)*4,4)}, v131 offset:{(c*2+h)*1024}")
    e("s_waitcnt lgkmcnt(7)")
    for c in range(7):
        for p in range(2):
            a = (c*4 + 2)*4 + 2*p
            e(f"v_pk_add_f32 {pr(a)}, {pr(a)}, {pr(T+(c*2+1)*4+2*p)}")
    e("s_waitcnt lgkmcnt(0)")
    for c in range(7): e(f"ds_write_b128 v131, {acc(c,2)} offset:{c*1024}")
    e("ds_write_b32 v133, v255 offset:16")
    for c in range(7):
        for p in range(2):
            a = (c*4)*4 + 2*p
            e(f"v_pk_add_f32 {pr(a)}, {pr(a)}, {pr(T+(c*2)*4+2*p)}")
    lds_wait(k, "m_wr2", "v135", "v136")
    for c in range(7): e(f"ds_read_b128 {v(T+c*4,4)}, v132 offset:{c*1024}")
    e("s_waitcnt vmcnt(0)")
    k.vm = []
    e("v_lshlrev_b32 v126, 16, v126")
    for i in range(14): unpack(k, f"v{170+2*i}", f"v{171+2*i}", f"v{112+i}")
    k.srd(16, 14, 15, WOF_BYTES, WS_WOF)
    e("s_and_b32 s43, s41, 1"); e("s_lshl_b32 s43, s43, 2"); e("s_add_u32 s45, s36, s43")
    e("s_xor_b32 s43, s33, 3"); e("s_lshl_b32 s46, s43, 4"); e("s_sub_i32 s46, s46, 22"); e("s_max_i32 s46, s46, 0")
    e("s_cmp_eq_u32 s43, 1"); e("s_cselect_b32 s47, 10, 16"); e("s_cmp_eq_u32 s43, 0"); e("s_cselect_b32 s47, 0, s47")
    e("s_lshl_b32 s46, s46, 10"); e("s_mul_i32 s48, s45, 138240"); e("s_add_u32 s48, s48, s46"); e(f"s_add_u32 s46, s46, {IMG}")
    e(f"v_mov_b32 v136, {W_FX}")
    lds_wait(k, "m_wfw2", "v136", "v137")
    e("s_cmp_eq_u32 s47, 0"); e("s_cbranch_scc1 m_gwodone")
    k.label("m_gwoloop")
    e("s_mov_b32 m0, s46"); e("s_add_u32 s46, s46, 2048")
    e("buffer_load_dwordx4 v244, s[16:19], s48 offen sc1 lds"); e("buffer_load_dwordx4 v244, s[16:19], s48 offen offset:1024 sc1 lds")
    e("s_add_u32 s48, s48, 2048"); e("s_sub_u32 s47, s47, 2"); e("s_cmp_lg_u32 s47, 0"); e("s_cbranch_scc1 m_gwoloop")
    k.label("m_gwodone")
    A = [c*16 + 2*p for c in range(7) for p in range(2)]
    for i in range(14): e(f"v_pk_add_f32 {pr(A[i])}, {pr(A[i])}, {pr(T+2*i)}")
    for i in range(14): e(f"v_pk_add_f32 {pr(A[i])}, {pr(A[i])}, v[126:127] op_sel_hi:[1,0]")
    for i in range(14): e(f"v_pk_mul_f32 {pr(A[i])}, {pr(A[i])}, {pr(170+2*i)}")
    for i in range(14): e(f"v_cvt_pk_bf16_f32 v{200+i}, v{A[i]}, v{A[i]+1}")
    e("s_bitcmp1_b32 s37, 0"); e("s_cbranch_scc1 m_hodd")
    for c in (0, 2, 4): e(f"buffer_store_dwordx4 {v(200+2*c,4)}, v244, s[28:31], s{52+c} offen sc1")
    e(f"buffer_store_dwordx2 {v(212,2)}, v244, s[28:31], s58 offen sc1")
    e("s_branch m_hdone")
    k.label("m_hodd")
    e(f"buffer_store_dwordx2 {v(200,2)}, v244, s[28:31], s52 offen sc1")
    for c in (1, 3): e(f"buffer_store_dwordx4 {v(200+2*c,4)}, v244, s[28:31], s{52+c} offen sc1")
    e("s_cmp_eq_u32 s36, 3"); e("s_cbranch_scc1 m_hodd6")
    e(f"buffer_store_dwordx4 {v(210,4)}, v244, s[28:31], s57 offen sc1")
    e("s_branch m_hdone")
    k.label("m_hodd6")
    e(f"buffer_store_dwordx2 {v(210,2)}, v244, s[28:31], s57 offen sc1")
    k.label("m_hdone")
    e("v_mov_b32 v1, v245")
    e("s_and_b32 s43, s41, 1"); e("s_lshl_b32 s43, s43, 2"); e("s_add_u32 s36, s36, s43")
    e(f"v_mov_b32 v4, {W_PF + 4}"); e("v_mov_b32 v5, 1"); e("v_lshlrev_b32 v6, 7, v1"); e("v_mov_b32 v7, s3")
    e("s_lshl_b32 s44, s35, 10"); e("s_lshl_b32 s45, s36, 2"); e("s_add_u32 s44, s44, s45"); e(f"s_add_u32 s44, s44, {FH2}")
    e("s_mov_b64 exec, 1")
    e("s_waitcnt vmcnt(0)")
    e("ds_add_rtn_u32 v8, v4, v5")
    e("s_waitcnt lgkmcnt(0)")
    e("v_readfirstlane_b32 s43, v8")
    e("s_mov_b64 exec, 0xff")
    e("s_cmp_lg_u32 s43, 3"); e("s_cbranch_scc1 m_nopub")
    e("buffer_store_dword v7, v6, s[60:63], s44 offen sc1")
    k.label("m_nopub")
    e("s_mov_b64 exec, -1")
    e("s_setprio 0")
    e("v_and_b32 v2, 15, v1"); e("v_lshrrev_b32 v3, 4, v1")
    e("s_mov_b32 s47, 0"); e("s_mov_b32 s46, 0")

def gen_p3(k):
    e = k.e
    k.label("m_P3")
    k.stamp(10)
    e("s_lshr_b32 s34, s32, 2")
    e("v_lshlrev_b32 v15, 4, v1")
    k.srd(16, 14, 15, WOF_BYTES, WS_WOF)
    k.srd(20, 14, 15, ZF_BYTES, WS_HF)
    k.srd(24, 4, 5, 2048*1280)
    k.srd(28, 98, 99, 2048*1280)
    e("s_lshl_b32 s46, s46, 10"); e("s_mul_i32 s48, s36, 138240"); e("s_add_u32 s48, s48, s46"); e(f"s_add_u32 s46, s46, {IMG}")
    e("s_cmp_eq_u32 s47, 0"); e("s_cbranch_scc1 m_wodone")
    k.label("m_woloop")
    e("s_mov_b32 m0, s46"); e("s_add_u32 s46, s46, 1024")
    e("buffer_load_dwordx4 v15, s[16:19], s48 offen sc1 lds")
    e("s_add_u32 s48, s48, 1024"); e("s_sub_u32 s47, s47, 1"); e("s_cmp_lg_u32 s47, 0"); e("s_cbranch_scc1 m_woloop")
    k.label("m_wodone")
    def H(g, sg): return v(16 + (g*2 + sg)*4, 4)
    def WF(g, db): return v(72 + (g*5 + db)*4, 4)
    def acc(sg, db): return v(212 + (sg*5 + db)*4, 4)
    e("s_cmp_eq_u32 s33, 3"); e(f"s_cselect_b32 s45, {HUGE}, 6144")
    e("s_and_b32 s43, s33, 1"); e("s_lshl_b32 s44, s34, 1"); e("s_add_u32 s57, s43, s44")
    e("s_lshr_b32 s58, s33, 1"); e("s_mul_i32 s58, s58, 3")
    e("s_lshr_b32 s43, s57, 1"); e("s_lshl_b32 s43, s43, 5"); e("s_and_b32 s44, s57, 1"); e("s_lshl_b32 s44, s44, 2"); e("s_add_u32 s59, s43, s44")
    e("s_lshl_b32 s43, s35, 6"); e("s_add_u32 s43, s43, s59")
    e("v_lshrrev_b32 v6, 2, v2"); e("v_and_b32 v7, 3, v2"); e("v_lshl_add_u32 v6, v6, 3, v7"); e("v_add_u32 v6, s43, v6")
    e("v_mul_u32_u24 v6, 1280, v6"); e("v_lshl_add_u32 v6, v3, 3, v6"); e("s_mul_i32 s43, s36, 160"); e("v_add_u32 v14, s43, v6")
    for i in range(3):
        e(f"s_add_u32 s43, s58, {i}"); e(f"s_min_u32 s{68+i}, s43, 4")
        e(f"s_lshl_b32 s{72+i}, s{68+i}, 5")
    k.srd(64, 14, 15, XT_BYTES, WS_YT)
    e("s_lshl_b32 s43, s35, 2"); e("s_lshl_b32 s44, s34, 1"); e("s_add_u32 s43, s43, s44"); e("s_mul_i32 s43, s43, 27"); e("s_mul_i32 s44, s33, 7"); e("s_add_u32 s43, s43, s44")
    e("s_lshl_b32 s46, s43, 10"); e("s_add_u32 s47, s46, 27648")
    e("s_add_u32 s48, s46, 4096"); e("s_add_u32 s49, s47, 4096"); e("s_add_u32 s50, s46, s45"); e("s_add_u32 s51, s47, s45")
    e("s_mul_i32 s43, s33, 35840"); e(f"s_add_u32 s43, s43, {IMG}"); e("v_add_u32 v252, s43, v15")
    e("s_cmp_eq_u32 s33, 3"); e("s_cselect_b32 s43, 5120, 0"); e("v_subrev_u32 v253, s43, v252")
    e("v_and_b32 v4, 7, v1"); e("v_lshlrev_b32 v4, 2, v4")
    e("s_lshl_b32 s44, s35, 10"); e("s_lshl_b32 s43, s36, 7"); e("s_add_u32 s44, s44, s43"); e(f"s_add_u32 s44, s44, {FH2}")
    e("v_min_u32 v254, 39, v1"); e("v_lshlrev_b32 v254, 3, v254")
    e("s_mul_i32 s52, s36, 320"); e(f"s_add_u32 s52, s52, {FY}")
    e("s_cmp_ge_u32 s32, 4"); e("s_cbranch_scc1 m_nwv")
    e("s_waitcnt vmcnt(0)")
    k.label("m_nwv")
    e("s_barrier")
    k.stamp(4)
    e("s_cmp_lg_u32 s32, 3"); e("s_cbranch_scc1 m_nhp")
    e("buffer_load_dword v5, v4, s[60:63], s44 offen sc1")
    k.label("m_nhp")
    e("s_cmp_lg_u32 s32, 2"); e("s_cbranch_scc1 m_nyp")
    e("buffer_load_dwordx2 v[248:249], v254, s[60:63], s52 offen sc1")
    k.label("m_nyp")
    for g in range(7):
        for db in range(5): e(f"ds_read_b128 {WF(g,db)}, v{253 if g == 6 else 252} offset:{g*5120 + db*1024}")
    for i in range(3): e(f"buffer_load_dwordx2 {v(8+2*i,2)}, v14, s[24:27], s{72+i} offen")
    e("v_lshrrev_b32 v244, 3, v1"); e("v_lshlrev_b32 v244, 12, v244"); e("v_and_b32 v245, 7, v1"); e("v_lshl_add_u32 v244, v245, 4, v244")
    e("s_mul_i32 s53, s36, 80"); e("s_lshl_b32 s43, s32, 3"); e("s_add_u32 s53, s53, s43"); e("s_lshl_b32 s53, s53, 12"); e("s_lshl_b32 s43, s35, 7"); e("s_add_u32 s53, s53, s43")
    e("s_cmp_lt_u32 s32, 2"); e(f"s_cselect_b32 s54, {64*4096}, 0"); e("s_cselect_b32 s55, 8192, 0"); e("s_add_u32 s54, s54, s53")
    e("s_lshl_b32 s43, s32, 10"); e(f"s_add_u32 s43, s43, {YTILE}"); e("v_add_u32 v246, s43, v15"); e("v_add_u32 v247, s55, v246")
    e("s_cmp_lg_u32 s32, 3"); e("s_cbranch_scc1 m_hw")
    poll_flags(k, "m_pollh", "v4", FLS, 1, 5, "v6", soff="s44", sleep=2, preloaded=True)
    k.label("m_hw")
    e("s_cmp_lg_u32 s32, 2"); e("s_cbranch_scc1 m_noy")
    poll_flags(k, "m_polly", "v254", FLS, 2, 248, "v5", soff="s52", sleep=8, preloaded=True)
    k.label("m_noy")
    e("s_waitcnt lgkmcnt(0)")
    e("s_barrier")
    k.stamp(11)
    k.vm = []
    k.vmem("buffer_load_dwordx4 v[236:239], v244, s[64:67], s53 offen sc1", "y")
    k.vmem("buffer_load_dwordx4 v[240:243], v244, s[64:67], s54 offen sc1", "y")
    for g in range(7):
        for sg in range(2):
            so = 46 + sg + (0 if g < 4 else 2 if g < 6 else 4)
            k.vmem(f"buffer_load_dwordx4 {H(g,sg)}, v15, s[20:23], s{so} offen offset:{(g%4)*1024 if g < 6 else 0} sc1", f"h{g}")
    e("s_mul_i32 s43, s32, 10240"); e("v_add_u32 v252, s43, v15")
    e("s_mul_i32 s43, s34, 40960"); e("s_and_b32 s44, s33, 1"); e("s_mul_i32 s44, s44, 5120"); e("s_add_u32 s43, s43, s44")
    e("v_bfe_u32 v4, v1, 2, 2"); e("v_lshl_add_u32 v4, v3, 2, v4"); e("v_lshlrev_b32 v4, 7, v4")
    e("v_and_b32 v5, 3, v1"); e("v_lshl_add_u32 v4, v5, 4, v4")
    e("s_lshl_b32 s44, s59, 1"); e(f"s_add_u32 s44, s44, {YTILE}"); e("v_add_u32 v4, s44, v4")
    for i in range(3):
        e(f"s_lshl_b32 s44, s{68+i}, 10"); e("s_add_u32 s44, s44, s43"); e(f"v_add_u32 v{253+i}, s44, v15")
        e(f"s_lshl_b32 s44, s{68+i}, 11"); e(f"v_add_u32 v{5+i}, s44, v4")
    for g in range(7):
        k.wait_vm(f"h{g}")
        if g == 0: e("ds_write_b128 v246, v[236:239]"); e("ds_write_b128 v247, v[240:243]"); e("s_waitcnt lgkmcnt(0)")
        for db in range(5):
            for sg in range(2):
                e(f"{MFMA} {acc(sg,db)}, {WF(g,db)}, {H(g,sg)}, {'0' if g == 0 else acc(sg,db)}")
    e("s_nop 2")
    e("s_nop 1")
    for db in range(5):
        for sg in range(2): e(f"ds_write_b128 v252, {acc(sg,db)} offset:{(sg*5+db)*1024}")
    for i in range(6): unpack(k, f"v{96+2*i}", f"v{97+2*i}", f"v{8+i}")
    e("s_waitcnt lgkmcnt(0)")
    e("s_barrier")
    for i in range(3): e(f"ds_read_b64_tr_b16 {v(24+2*i,2)}, v{5+i}")
    for i in range(3):
        for kq in range(4): e(f"ds_read_b128 {v(32+(i*4+kq)*4,4)}, v{253+i} offset:{kq*10240}")
    e("s_waitcnt lgkmcnt(12)")
    for n in range(6): unpack(k, f"v{112+2*n}", f"v{113+2*n}", f"v{24+n}")
    for n in range(6): e(f"v_pk_add_f32 {pr(96+2*n)}, {pr(96+2*n)}, {pr(112+2*n)}")
    e("s_waitcnt lgkmcnt(0)")
    A = [32 + i*16 + 2*p for i in range(3) for p in range(2)]
    for n in range(6): e(f"v_pk_add_f32 {pr(A[n])}, {pr(A[n])}, {pr(A[n]+4)}"); e(f"v_pk_add_f32 {pr(A[n]+8)}, {pr(A[n]+8)}, {pr(A[n]+12)}")
    for n in range(6): e(f"v_pk_add_f32 {pr(A[n])}, {pr(A[n])}, {pr(A[n]+8)}")
    for n in range(6): e(f"v_pk_add_f32 {pr(A[n])}, {pr(A[n])}, {pr(96+2*n)}")
    for n in range(6): e(f"v_cvt_pk_bf16_f32 v{24+n}, v{A[n]}, v{A[n]+1}")
    for i in range(3): e(f"buffer_store_dwordx2 {v(24+2*i,2)}, v14, s[28:31], s{72+i} offen")
    k.end(0)

def gen_helper(k, epoch_poll):
    e = k.e
    k.label("m_helper")
    e("s_lshl_b32 s35, s41, 2"); e("s_add_u32 s35, s35, s42"); e("s_sub_u32 s35, s35, 28")
    e("v_and_b32 v2, 15, v1"); e("v_lshrrev_b32 v3, 4, v1")
    e("s_lshl_b32 s43, s32, 3")
    e("v_add_u32 v4, s43, v3")
    e("s_lshl_b32 s44, s35, 6")
    e("v_add_u32 v5, s44, v4"); e("v_mul_u32_u24 v5, 1280, v5"); e("v_lshl_add_u32 v5, v2, 4, v5")
    e("v_add_u32 v6, 5120, v5")
    e("v_mul_u32_u24 v7, 1296, v4"); e("v_lshl_add_u32 v7, v2, 4, v7")
    e("v_mov_b32 v110, 0")
    e("v_and_b32 v4, 31, v1"); e(f"v_lshlrev_b32 v4, 2, v4"); e(f"v_add_u32 v4, {W_EPOCH}, v4")
    e("s_cmp_lg_u32 s32, 4"); e("s_cbranch_scc1 m_hnoclr")
    e("ds_write_b32 v4, v110")
    k.label("m_hnoclr")
    e("s_waitcnt lgkmcnt(0)")
    k.srd(16, 4, 5, 2048*1280)
    k.srd(28, 14, 15, XT_BYTES, WS_XNT)
    k.srd(64, 12, 13, 256)
    k.srd(FLS, 14, 15, FL_BYTES, WS_FL)
    k.srd(20, 96, 97, 864*1280)
    k.vm = []
    for g in range(2):
        for n in range(5):
            k.vmem(f"buffer_load_dwordx4 {v(8+g*20+n*4,4)}, v{5+g}, s[16:19], 0 offen offset:{n*256}", f"x{g}")
    XB = (48, 128)
    for g in range(2):
        k.stamp(1+2*g)
        k.wait_vm(f"x{g}")
        if g == 0: k.vmem("buffer_load_dword v111, v110, s[64:67], 0 offen sc1", "ep")
        X = XB[g]; src = 8 + g*20; M, R = 112 + 4*g, 114 + 4*g
        for n in range(20): unpack(k, f"v{X+2*n}", f"v{X+2*n+1}", f"v{src+n}")
        e(f"v_pk_add_f32 v[88:89], {pr(X)}, {pr(X+4)}"); e(f"v_pk_add_f32 v[90:91], {pr(X+2)}, {pr(X+6)}")
        for n in range(4, 20): e(f"v_pk_add_f32 {pr(88+2*(n%2))}, {pr(88+2*(n%2))}, {pr(X+2*n)}")
        e("v_pk_add_f32 v[88:89], v[88:89], v[90:91]"); e("s_nop 0"); e("v_add_f32 v88, v88, v89")
        for sh in (8, 4, 2, 1):
            e("s_nop 1"); e(f"v_add_f32_dpp v88, v88, v88 row_ror:{sh} row_mask:0xf bank_mask:0xf")
        e(f"v_mul_f32 v{M}, {f32(1/640)}, v88")
        for a_ in range(4): e(f"v_mov_b32 v{92+a_}, 0")
        for n0 in range(0, 20, 4):
            for a_ in range(4): e(f"v_pk_add_f32 {pr(96+2*a_)}, {pr(X+2*(n0+a_))}, {pr(M)} op_sel_hi:[1,0] neg_lo:[0,1] neg_hi:[0,1]")
            for a_ in range(4): e(f"v_pk_fma_f32 {pr(92+2*(a_%2))}, {pr(96+2*a_)}, {pr(96+2*a_)}, {pr(92+2*(a_%2))}")
        e("v_pk_add_f32 v[92:93], v[92:93], v[94:95]"); e("s_nop 0"); e("v_add_f32 v92, v92, v93")
        for sh in (8, 4, 2, 1):
            e("s_nop 1"); e(f"v_add_f32_dpp v92, v92, v92 row_ror:{sh} row_mask:0xf bank_mask:0xf")
        e(f"v_mul_f32 v{R}, {f32(1/640)}, v92")
        ln_finish(k, f"v{M}", f"v{R}", "v89")
    e("s_mov_b32 s40, 0")
    k.label("m_hep")
    e("s_waitcnt vmcnt(0)")
    e("v_readfirstlane_b32 s3, v111")
    e("s_add_u32 s40, s40, 1")
    e("s_cmp_lg_u32 s3, 0"); e("s_cbranch_scc1 m_hepok")
    e("buffer_load_dword v111, v110, s[64:67], 0 offen sc1")
    e(f"s_cmp_lt_u32 s40, {SPIN}"); e("s_cbranch_scc1 m_hep")
    k.label("m_hepok")
    k.vm = []
    k.srd(24, 14, 15, 32768, WS_ST1)
    for r in (113, 115, 117, 119): e(f"v_mov_b32 v{r}, v111")
    e("s_lshl_b32 s43, s35, 10"); e("s_lshl_b32 s44, s32, 7"); e("s_add_u32 s43, s43, s44"); e("v_lshlrev_b32 v5, 4, v3")
    e("v_cmp_eq_u32 vcc, 0, v2"); e("s_and_saveexec_b64 s[44:45], vcc")
    e("buffer_store_dwordx4 v[112:115], v5, s[24:27], s43 offen sc1"); e("buffer_store_dwordx4 v[116:119], v5, s[24:27], s43 offen offset:64 sc1")
    e("s_mov_b64 exec, -1")
    k.stamp(2)
    e("v_lshlrev_b32 v120, 4, v1")
    e("s_lshl_b32 s43, s35, 3"); e("s_add_u32 s43, s43, s32"); e("s_mul_i32 s43, s43, 4352")
    for n in range(4): e(f"buffer_load_dwordx4 v[124:127], v120, s[20:23], s43 offen offset:{n*1024}")
    e("s_add_u32 s43, s43, 4096")
    e(f"buffer_load_dwordx4 v[124:127], v120, s[20:23], s43 offen")
    for g in range(2):
        X = XB[g]; src = 8 + g*20; M, R = 112 + 4*g, 114 + 4*g
        for n in range(20): e(f"v_pk_add_f32 {pr(X+2*n)}, {pr(X+2*n)}, {pr(M)} op_sel_hi:[1,0] neg_lo:[0,1] neg_hi:[0,1]")
        for n in range(20): e(f"v_pk_mul_f32 {pr(X+2*n)}, {pr(X+2*n)}, {pr(R)} op_sel_hi:[1,0]")
        for n in range(20): e(f"v_cvt_pk_bf16_f32 v{src+n}, v{X+2*n}, v{X+2*n+1}")
        for n in range(5):
            e(f"ds_write_b128 v7, {v(src+4*n,4)} offset:{g*4*1296 + n*256}")
    e(f"v_mov_b32 v9, {W_EPOCH}")
    e("s_cmp_lg_u32 s32, 4"); e("s_cbranch_scc1 m_hepdone")
    e("ds_write_b32 v9, v111")
    k.label("m_hepdone")
    e("s_waitcnt lgkmcnt(0)")
    e("s_barrier")
    k.stamp(4)
    e("v_bfe_u32 v4, v1, 2, 2"); e("v_lshl_add_u32 v4, v3, 3, v4"); e("v_mul_u32_u24 v4, 1296, v4")
    e("v_and_b32 v5, 3, v1"); e("v_lshl_add_u32 v4, v5, 3, v4")
    e("s_lshl_b32 s43, s32, 5"); e("v_add_u32 v4, s43, v4")
    e(f"v_add_u32 v5, {32*1296}, v4")
    for n in range(5):
        for th in range(2):
            for hh in range(2):
                e(f"ds_read_b64_tr_b16 {v(16+(n*2+th)*4+hh*2,2)}, v{4+th} offset:{hh*4*1296 + n*256}")
    e("s_mul_i32 s43, s32, 4608"); e("s_add_u32 s43, s43, 90112")
    e("v_mul_u32_u24 v5, 144, v2"); e("v_lshl_add_u32 v5, v3, 4, v5"); e("v_add_u32 v5, s43, v5")
    e("v_lshrrev_b32 v4, 3, v1"); e("v_lshlrev_b32 v6, 12, v4"); e("v_mul_u32_u24 v4, 144, v4"); e("v_and_b32 v7, 7, v1"); e("v_lshl_add_u32 v4, v7, 4, v4"); e("v_add_u32 v4, s43, v4")
    e("v_lshl_add_u32 v6, v7, 4, v6")
    e("s_lshl_b32 s46, s32, 16"); e("s_lshl_b32 s44, s35, 7"); e("s_add_u32 s46, s46, s44"); e("s_add_u32 s47, s46, 32768")
    e("s_waitcnt vmcnt(0) lgkmcnt(0)")
    for n in range(5):
        o = (n % 2) * 2304
        for th in range(2): e(f"ds_write_b128 v5, {v(16+(n*2+th)*4,4)} offset:{o + th*64}")
        for hf in range(2): e(f"ds_read_b128 {v(56+(n*2+hf)*4,4)}, v4 offset:{o + hf*8*144}")
    for n in range(5):
        e(f"s_waitcnt lgkmcnt({min(15, 4*(4-n))})")
        for hf in range(2):
            e(f"buffer_store_dwordx4 {v(56+(n*2+hf)*4,4)}, v6, s[28:31], s{46+hf} offen" + ("" if "wb" in EXP else " sc1"))
        e(f"s_add_u32 s46, s46, {8*65536}"); e(f"s_add_u32 s47, s47, {8*65536}")
    def publish(imm, tag):
        e("s_waitcnt vmcnt(0) lgkmcnt(0)")
        e("s_barrier")
        e("s_cmp_lg_u32 s32, 4"); e(f"s_cbranch_scc1 m_hnp{tag}")
        e("s_lshl_b32 s45, s35, 2"); e(f"s_add_u32 s45, s45, {FX}")
        set_flag(k, FLS, "s45", 0, "v7", "v8")
        k.label(f"m_hnp{tag}")
    e("s_load_dwordx8 s[64:71], s[0:1], 8")
    e("s_load_dwordx4 s[72:75], s[0:1], 40")
    e("s_cmp_ge_u32 s32, 4"); e("s_cbranch_scc1 m_hG")
    conv_params(k)
    k.label("m_hG")
    publish(192, "x")
    k.stamp(5)
    e("s_cmp_lt_u32 s32, 4"); e("s_cbranch_scc1 m_Lpost")
    e(f"v_mov_b32 v4, {W_PF + 8}"); e("v_mov_b32 v5, 4"); e("ds_write_b32 v4, v5")
    k.srd(24, 14, 15, WOF_BYTES, WS_WOF)
    e("s_lshl_b32 s36, s35, 2"); e("s_add_u32 s36, s36, s33")
    e("v_lshrrev_b32 v4, 3, v1"); e("v_mul_u32_u24 v111, 1280, v4"); e("v_and_b32 v5, 7, v1"); e("v_lshl_add_u32 v111, v5, 4, v111")
    e("s_mul_i32 s43, s33, 4608"); e(f"s_add_u32 s43, s43, {CONV0 + 3*CONV_B}")
    e("v_mul_u32_u24 v4, 144, v4"); e("v_lshl_add_u32 v4, v5, 4, v4"); e("v_add_u32 v4, s43, v4")
    e("v_bfe_u32 v5, v1, 2, 2"); e("v_lshl_add_u32 v5, v3, 2, v5"); e("v_mul_u32_u24 v5, 144, v5"); e("v_and_b32 v6, 3, v1"); e("v_lshl_add_u32 v5, v6, 3, v5"); e("v_add_u32 v5, s43, v5")
    e("v_lshlrev_b32 v6, 4, v1")
    k.vm = []
    for it in range(3):
        e(f"s_add_u32 s43, s36, {128*it}"); e("s_mul_i32 s44, s43, 205"); e("s_lshr_b32 s44, s44, 11"); e("s_mul_i32 s45, s44, 10"); e("s_sub_u32 s45, s43, s45")
        e("s_mul_i32 s46, s44, 40960"); e("s_lshl_b32 s47, s45, 7"); e("s_add_u32 s46, s46, s47")
        for d in range(4):
            e(f"s_lshl_b32 s47, s45, 2"); e(f"s_add_u32 s47, s47, {d}"); e("s_mul_i32 s34, s47, 52"); e("s_lshr_b32 s34, s34, 8")
            e("s_mul_i32 s34, s34, 130"); e("s_add_u32 s47, s47, s34"); e("s_mul_i32 s34, s44, 5"); e("s_add_u32 s47, s47, s34"); e("s_lshl_b32 s47, s47, 10")
            e("s_cmp_lt_u32 s43, 270"); e(f"s_cselect_b32 s{48+it*4+d}, s47, {HUGE}")
        for n in range(4):
            k.vmem(f"buffer_load_dwordx4 {v(16+it*16+n*4,4)}, v111, s[20:23], s46 offen", f"wo{it}")
            e("s_add_u32 s46, s46, 10240")
    for it in range(3):
        k.wait_vm(f"wo{it}")
        for n in range(4): e(f"ds_write_b128 v4, {v(16+it*16+n*4,4)} offset:{n*8*144}")
        for d in range(4):
            for hh in range(2): e(f"ds_read_b64_tr_b16 {v(64+it*16+d*4+hh*2,2)}, v5 offset:{hh*16*144 + d*32}")
    e("s_waitcnt lgkmcnt(0)")
    for it in range(3):
        for d in range(4): e(f"buffer_store_dwordx4 {v(64+it*16+d*4,4)}, v6, s[24:27], s{48+it*4+d} offen sc1")
    e(f"v_mov_b32 v4, {W_FX + 8}"); e("v_mov_b32 v5, 1"); e("v_lshlrev_b32 v7, 9, v1"); e("v_mov_b32 v9, s3")
    e("s_lshl_b32 s44, s35, 2"); e(f"s_add_u32 s44, s44, {FZ2}")
    e("s_mov_b64 exec, 1")
    e("s_waitcnt vmcnt(0)")
    e("ds_add_rtn_u32 v8, v4, v5")
    e("s_waitcnt lgkmcnt(0)")
    e("v_readfirstlane_b32 s43, v8")
    e("s_mov_b64 exec, -1")
    e("s_cmp_lg_u32 s43, 3"); e("s_cbranch_scc1 m_P2")
    e("s_lshl_b32 s45, s35, 2"); e(f"s_add_u32 s45, s45, {FK}")
    set_flag(k, FLS, "s45", 0, "v7", "v8")
    e("s_branch m_P2")

if __name__ == "__main__":
    import sys
    NAME = "parallel_sum__ssm_conv_s4d__mixer_gmlp__prompt"
    path = sys.argv[1] if len(sys.argv) > 1 else f"cdna_kernels/{NAME}.s"
    t, kd = gen_mega(NAME + "_kernel")
    hdr = open(f"cdna_kernels/{NAME}.s.ref").read().split("; Override launch")[0]
    lst = os.environ.get("LIST", "0") == "1"
    out = hdr + (f"; @launch kernel={NAME}_kernel grid=(256,1,1) block=(512,1,1) lds={LDS_TOTAL}\n" if lst else f"; @launch grid=(256,1,1) block=(512,1,1) lds={LDS_TOTAL}\n")
    out += '.amdgcn_target "amdgcn-amd-amdhsa--gfx950"\n.text\n' + t + '\ntext_end:\n.section .rodata,"a"\n.p2align 6\n' + kd + "\n"
    open(path, "w").write(out)
```

```python
from mega_common import *
FLS = 60
WS_ST1 = 27*MB
RING2 = 16384
CONV0 = 65536
CONV_B = 15360
YTILE = 81920
IMG = 22528
NSLOT = 2
ZD = int(os.environ.get('ZD', '24'))
ZSL = int(os.environ.get('ZSL', '2'))
ROTM = int(os.environ.get('ROTM', '0'))
WS_KC = 26*MB
KC_BYTES = 640 * 1536

def conv_params(k):
    e = k.e
    e("s_lshl_b32 s34, s2, 1"); e("s_add_u32 s34, s34, s32")
    e("s_lshl_b32 s56, s41, 4"); e("s_lshr_b32 s57, s42, 1"); e("s_add_u32 s56, s56, s57"); e("s_add_u32 s56, s56, 512")
    e("s_bitcmp1_b32 s42, 0"); e("s_cselect_b32 s56, s56, 1000")
    e("s_cmp_eq_u32 s32, 2"); e("s_cselect_b32 s34, s56, s34")
    e("s_cmp_eq_u32 s32, 3"); e("s_cselect_b32 s34, 1000, s34")
    e("s_lshl_b32 s56, s34, 8"); e("s_lshl_b32 s57, s34, 1")
    e("v_lshlrev_b32 v4, 2, v1"); e("v_mov_b32 v5, 0")
    e("s_waitcnt lgkmcnt(0)")
    for a in range(4):
        k.srd(28, 64+2*a, 65+2*a, 640*256)
        e(f"buffer_load_dword v{164+a}, v4, s[28:31], s56 offen")
    k.srd(28, 72, 73, 1280); e("buffer_load_ushort v13, v5, s[28:31], s57 offen")
    k.srd(28, 74, 75, 1280); e("buffer_load_ushort v14, v5, s[28:31], s57 offen")

def gen_mega(name):
    k = Kern(name)
    e = k.e
    e("s_cmp_ge_u32 s2, 256"); e("s_cbranch_scc1 m_end")
    k.stamp_init()
    e("s_load_dwordx2 s[4:5], s[0:1], 0")
    e("s_load_dwordx4 s[8:11], s[0:1], 64")
    e("s_load_dwordx4 s[12:15], s[0:1], 104")
    e("s_load_dwordx4 s[96:99], s[0:1], 88")
    e("v_and_b32 v1, 63, v0")
    e("v_lshrrev_b32 v2, 6, v0")
    e("s_and_b32 s41, s2, 7")
    e("v_readfirstlane_b32 s32, v2")
    e("s_lshr_b32 s42, s2, 3")
    e("s_and_b32 s33, s32, 3")
    e("s_cmp_ge_u32 s42, 28"); e("s_cbranch_scc1 m_helper")
    e("s_mul_i32 s43, s42, 37"); e("s_lshr_b32 s43, s43, 8")
    e("s_mul_i32 s44, s43, 7"); e("s_sub_u32 s44, s42, s44")
    e("s_lshr_b32 s35, s41, 1"); e("s_lshl_b32 s35, s35, 2"); e("s_add_u32 s35, s35, s43")
    e("s_and_b32 s36, s41, 1"); e("s_mul_i32 s36, s36, 7"); e("s_add_u32 s36, s36, s44")
    e("s_cmp_ge_u32 s32, 4"); e("s_cbranch_scc1 m_gemm1")
    e("s_mul_i32 s45, s44, 3"); e("s_mul_i32 s46, s43, 5"); e("s_lshr_b32 s46, s46, 1"); e("s_add_u32 s45, s45, s46")
    e("s_cmp_ge_u32 s45, 20"); e("s_cselect_b32 s46, 20, 0"); e("s_sub_u32 s45, s45, s46")
    e("s_cmp_ge_u32 s45, 10"); e("s_cselect_b32 s46, 10, 0"); e("s_sub_u32 s45, s45, s46")
    e("s_load_dwordx8 s[64:71], s[0:1], 8")
    e("s_load_dwordx4 s[72:75], s[0:1], 40")
    e("v_and_b32 v3, 7, v1")
    e("s_lshl_b32 s39, s32, 13")
    e("s_cmp_ge_u32 s32, 2"); e("s_cbranch_scc1 m_ldB")
    e("s_lshl_b32 s43, s35, 7"); e("s_lshl_b32 s44, s32, 6"); e("s_add_u32 s43, s43, s44")
    e("v_lshrrev_b32 v2, 5, v1"); e("v_lshlrev_b32 v2, 3, v2")
    e("v_bfe_u32 v4, v1, 3, 2"); e("v_add3_u32 v2, v2, v4, s43")
    e("v_mul_u32_u24 v2, 1280, v2")
    e("v_lshrrev_b32 v4, 4, v1"); e("v_xor_b32 v3, v3, v4")
    e("v_lshl_add_u32 v4, v3, 4, v2")
    e("v_xor_b32 v3, 4, v3"); e("v_lshl_add_u32 v5, v3, 4, v2")
    for n in range(8):
        ee, b, Pp = n & 1, (n >> 1) & 1, n >> 2
        e(f"v_add_u32 v{16+n}, {(32*Pp + 4*b + 16*ee)*1280 - (n & 3)*1024}, v{4+ee}")
    e("s_waitcnt lgkmcnt(0)")
    k.srd(16, 4, 5, 2048*1280)
    e("s_mov_b32 s38, 128")
    e("s_branch m_ld")
    k.label("m_ldB")
    e("v_lshrrev_b32 v2, 3, v1"); e("v_mul_u32_u24 v2, 3456, v2")
    e("s_cmp_eq_u32 s32, 2"); e("s_cselect_b32 s44, 1664, 0")
    e("s_lshl_b32 s43, s36, 7"); e("s_add_u32 s43, s43, s44"); e("v_add_u32 v2, s43, v2")
    e("v_bfe_u32 v4, v1, 4, 1"); e("v_lshlrev_b32 v4, 1, v4"); e("v_xor_b32 v3, v3, v4")
    e("v_lshl_add_u32 v4, v3, 4, v2")
    e("v_xor_b32 v3, 4, v3"); e("v_lshl_add_u32 v5, v3, 4, v2")
    for n in range(8):
        e(f"v_add_u32 v{16+n}, {8*n*3456 - (n & 3)*1024}, v{4+(n & 1)}")
    e("s_waitcnt lgkmcnt(0)")
    k.srd(16, 8, 9, 640*3456)
    e(f"s_mov_b32 s38, {64*3456}")
    k.label("m_ld")
    e("s_mul_i32 s37, s45, s38"); e("s_mul_i32 s46, s38, 10"); e("s_mov_b32 s40, 0")
    k.label("m_ldloop")
    e("s_cmp_lt_u32 s40, 3"); e("s_cbranch_scc1 m_ldissue")
    e("s_waitcnt vmcnt(16)")
    e("s_barrier")
    k.label("m_ldissue")
    for g in range(2):
        e(f"s_add_u32 m0, s39, {g*4096}")
        e("s_nop 0")
        for n in range(4): e(f"buffer_load_dwordx4 v{16+g*4+n}, s[16:19], s37 offen offset:{n*1024} lds")
    e("s_add_u32 s39, s39, 32768"); e("s_and_b32 s39, s39, 0x1ffff")
    e("s_add_u32 s37, s37, s38"); e("s_cmp_eq_u32 s37, s46"); e("s_cselect_b32 s37, 0, s37")
    e("s_add_u32 s40, s40, 1"); e("s_cmp_lt_u32 s40, 10"); e("s_cbranch_scc1 m_ldloop")
    k.stamp(1)
    k.srd(24, 14, 15, 32768, WS_ST1)
    k.srd(48, 12, 13, 256)
    e("v_bfe_u32 v4, v1, 2, 2"); e("v_lshlrev_b32 v4, 3, v4"); e("v_bfe_u32 v5, v1, 4, 1"); e("v_lshl_add_u32 v4, v5, 2, v4")
    e("v_and_b32 v5, 0x23, v1"); e("v_add_u32 v4, v4, v5"); e("v_lshlrev_b32 v232, 4, v4"); e("v_mov_b32 v233, 0")
    e("s_lshl_b32 s52, s35, 11"); e("s_and_b32 s43, s32, 1"); e("s_lshl_b32 s43, s43, 10"); e("s_add_u32 s52, s52, s43")
    e("buffer_load_dword v234, v233, s[48:51], 0 offen sc1")
    e("buffer_load_dwordx4 v[236:239], v232, s[24:27], s52 offen sc1")
    conv_params(k)
    e("s_getpc_b64 s[44:45]")
    k.label("m_pc")
    e(f"s_sub_u32 s44, s44, m_pc-{name}"); e("s_subb_u32 s45, s45, 0")
    e(f"s_mov_b32 s46, text_end-{name}"); e("s_mov_b32 s47, 0x00020000")
    e("s_and_b32 s43, s42, 15"); e("s_lshl_b32 s43, s43, 2"); e("s_add_u32 s43, s43, s33"); e("s_lshl_b32 s43, s43, 10")
    e("v_lshlrev_b32 v2, 4, v1")
    e("buffer_load_dwordx4 v[224:227], v2, s[44:47], s43 offen")
    k.srd(20, 10, 11, 2048*4096)
    e("s_lshl_b32 s43, s42, 2"); e("s_add_u32 s43, s43, s32"); e(f"s_mul_i32 s43, s43, {9*1024+384}")
    e("s_lshl_b32 s44, s41, 20"); e("s_add_u32 s43, s43, s44")
    e("v_lshlrev_b32 v2, 4, v1")
    def pf(n):
        for i in range(n):
            e(f"buffer_load_dwordx4 v[224:227], v2, s[20:23], s43 offen offset:{(i%4)*1024}")
            if i % 4 == 3 or i == n - 1: e(f"s_add_u32 s43, s43, {(i%4+1)*1024}")
    e("s_waitcnt vmcnt(25)"); e("s_barrier"); pf(4)
    e("s_waitcnt vmcnt(21)"); e("s_barrier"); pf(6)
    e("s_waitcnt vmcnt(19)"); e("s_barrier")
    e("s_cmp_ge_u32 s32, 2"); e("s_cbranch_scc1 m_st1ok")
    e("s_waitcnt vmcnt(17)")
    e("s_mov_b32 s40, 0")
    e("s_branch m_st1chk")
    k.label("m_st1poll")
    e("buffer_load_dword v234, v233, s[48:51], 0 offen sc1")
    e("buffer_load_dwordx4 v[236:239], v232, s[24:27], s52 offen sc1")
    e("s_waitcnt vmcnt(0)")
    k.label("m_st1chk")
    e("v_xor_b32 v4, v237, v234"); e("v_xor_b32 v5, v239, v234"); e("v_or_b32 v4, v4, v5")
    e("v_cmp_ne_u32 vcc, 0, v4"); e("v_cmp_eq_u32 s[44:45], 0, v234"); e("s_add_u32 s40, s40, 1")
    e("s_or_b64 vcc, vcc, s[44:45]")
    e(f"s_cmp_ge_u32 s40, {SPIN}"); e("s_cbranch_scc1 m_st1w")
    e("s_cbranch_vccnz m_st1poll")
    k.label("m_st1w")
    e("s_lshl_b32 s44, s32, 8"); e(f"s_add_u32 s44, s44, {MISC}"); e("v_lshl_add_u32 v4, v1, 2, s44"); e(f"v_mov_b32 v5, {W_EPOCH}")
    e("ds_write_b32 v4, v236"); e("ds_write_b32 v4, v238 offset:512"); e("ds_write_b32 v5, v234")
    e("s_waitcnt lgkmcnt(0)")
    k.label("m_st1ok")
    e("s_barrier")
    k.label("m_Lpost")
    k.stamp(2)
    e(f"v_mov_b32 v4, {W_EPOCH}"); e("ds_read_b32 v5, v4")
    k.srd(FLS, 14, 15, FL_BYTES, WS_FL)
    e("v_and_b32 v2, 15, v1"); e("v_lshrrev_b32 v3, 4, v1")
    e("s_lshr_b32 s35, s41, 1"); e("s_lshl_b32 s35, s35, 3"); e("s_lshr_b32 s43, s42, 2"); e("s_add_u32 s35, s35, s43")
    e("s_waitcnt lgkmcnt(0)")
    e("v_readfirstlane_b32 s3, v5")
    e("s_cmp_lg_u32 s32, 3"); e("s_cbranch_scc1 m_conv")
    k.srd(16, 10, 11, 2048*4096)
    e("v_lshrrev_b32 v4, 5, v1"); e("v_lshlrev_b32 v4, 3, v4"); e("v_bfe_u32 v5, v1, 3, 2"); e("v_add_u32 v4, v4, v5")
    e("v_lshlrev_b32 v4, 12, v4")
    e("v_and_b32 v5, 7, v1"); e("v_xor_b32 v5, v5, v3")
    e("v_lshl_add_u32 v6, v5, 4, v4")
    e("v_xor_b32 v5, 4, v5"); e("v_lshl_add_u32 v7, v5, 4, v4")
    for n in range(8):
        ee, t = n & 1, n >> 1
        e(f"v_add_u32 v{16+n}, {(32*(t >> 1) + 4*(t & 1) + 16*ee)*4096 - (n & 3)*1024}, v{6+ee}")
    e("s_lshl_b32 s37, s35, 18")
    e(f"s_and_b32 s43, s35, {ROTM}"); e("s_lshl_b32 s43, s43, 8"); e("s_add_u32 s37, s37, s43")
    e("s_mov_b32 s40, 0")
    k.label("m_pfloop")
    e("s_and_b32 s43, s40, 3"); e("s_lshr_b32 s44, s40, 2")
    e(f"s_mul_i32 s45, s43, {RING2}"); e("s_lshl_b32 s46, s44, 13"); e("s_add_u32 s45, s45, s46")
    e("s_lshl_b32 s43, s43, 10"); e("s_lshl_b32 s44, s44, 7"); e("s_add_u32 s43, s43, s44"); e("s_add_u32 s43, s43, s37")
    for g in range(2):
        e(f"s_add_u32 m0, s45, {g*4096}")
        e("s_nop 0")
        for n in range(4): e(f"buffer_load_dwordx4 v{16+g*4+n}, s[16:19], s43 offen offset:{n*1024} lds")
    e("s_waitcnt vmcnt(16)")
    e("s_add_u32 s40, s40, 1"); e("s_cmp_lt_u32 s40, 8"); e("s_cbranch_scc1 m_pfloop")
    k.stamp(3)
    e("s_and_b32 s36, s41, 1"); e("s_lshl_b32 s36, s36, 2"); e("s_and_b32 s43, s42, 3"); e("s_add_u32 s36, s36, s43")
    e("s_cmp_eq_u32 s36, 7"); e("s_cselect_b32 s43, 31, 47")
    e("v_min_u32 v7, s43, v1"); e("v_lshlrev_b32 v7, 2, v7")
    e("s_lshl_b32 s45, s35, 3"); e("s_add_u32 s45, s45, s36"); e("s_lshl_b32 s45, s45, 8"); e(f"s_add_u32 s45, s45, {FZ2}")
    e(f"v_mov_b32 v4, {W_PF + 8}")
    lds_wait_ge(k, "m_wown1", "v4", 5, 1, 4, sleep=2)
    if ZD: e(f"s_sleep {ZD}")
    poll_flags(k, "m_pollz", "v7", FLS, 1, 5, "v6", soff="s45", sleep=ZSL)
    e(f"v_mov_b32 v4, {W_PF}"); e("v_mov_b32 v5, 1")
    e("ds_write_b32 v4, v5")
    k.stamp(4)
    e("s_sleep 64")
    e("v_and_b32 v4, 31, v1"); e("v_lshlrev_b32 v4, 2, v4"); e(f"s_mov_b32 s44, {FK}")
    poll_flags(k, "m_pollx3", "v4", FLS, 1, 5, "v6", soff="s44", sleep=64)
    e(f"v_mov_b32 v4, {W_FX}"); e("v_mov_b32 v5, 1"); e("ds_write_b32 v4, v5")
    e("s_branch m_L3prep")
    k.label("m_conv")
    e("s_cmp_ge_u32 s34, 640"); e("s_cbranch_scc1 m_L3prep")
    e(f"s_mul_i32 s39, s32, {CONV_B}"); e(f"s_add_u32 s39, s39, {CONV0}")
    e("s_waitcnt vmcnt(10)")
    kgen_dt(k, "v13")
    kgen_addr(k, "s39", "v2", "v3", "v1")
    e("s_mov_b32 s40, 2")
    kgen_loop(k, 164, "v13", "s40")
    k.stamp(3)
    UO, KC = 8320, 12928
    e("v_lshlrev_b32 v15, 4, v1")
    e(f"s_mov_b32 s44, {FX}")
    e("v_and_b32 v220, 31, v1"); e("v_lshlrev_b32 v220, 2, v220")
    e("buffer_load_dword v216, v220, s[60:63], s44 offen sc1")
    e(f"s_add_u32 s43, s39, {KC}")
    e("v_max_u32 v4, 1, v3"); e("v_sub_u32 v4, 5, v4")
    e("v_lshlrev_b32 v5, v4, v2")
    e("v_lshlrev_b32 v6, 3, v3")
    e("v_mov_b32 v7, 512"); e("v_cmp_eq_u32 vcc, 2, v3"); e("s_nop 1"); e("v_cndmask_b32 v6, v6, v7, vcc")
    e("v_mov_b32 v7, 768"); e("v_mov_b32 v8, 4"); e("v_mov_b32 v9, 128"); e("v_cmp_eq_u32 vcc, 3, v3"); e("s_nop 1")
    e("v_cndmask_b32 v6, v6, v7, vcc"); e("v_cndmask_b32 v8, v8, v9, vcc")
    e("v_add3_u32 v5, v5, v6, s43")
    e("v_lshlrev_b32 v6, v4, 16"); e("v_add_u32 v6, v5, v6")
    e("v_add_u32 v7, v5, v8"); e("v_add_u32 v8, v6, v8")
    for n in range(8): e(f"v_cvt_pk_bf16_f32 v{24+n}, v{136+2*n}, v{137+2*n}")
    e("ds_write_b32 v5, v24"); e("ds_write_b32 v7, v25"); e("ds_write_b32 v6, v26"); e("ds_write_b32 v8, v27")
    e("v_lshlrev_b32 v9, 6, v2"); e("v_lshl_add_u32 v9, v3, 3, v9"); e("v_add_u32 v9, s43, v9")
    e("v_mov_b32 v20, 0"); e("v_mov_b32 v21, 0"); e("v_mov_b32 v22, 0"); e("v_mov_b32 v23, 0")
    e("v_add_u32 v16, s39, v15")
    e("v_lshl_add_u32 v17, v1, 3, s39")
    e(f"ds_write_b64 v17, v[20:21] offset:{UO}")
    e("v_cmp_gt_u32 vcc, 5, v2"); e("s_and_saveexec_b64 s[46:47], vcc")
    e("ds_write_b64 v9, v[28:29] offset:1024"); e("ds_write_b64 v9, v[30:31] offset:1056")
    e("s_mov_b64 exec, 3")
    e("ds_write_b128 v16, v[20:23] offset:4096"); e(f"ds_write_b128 v16, v[20:23] offset:{4160+4096}")
    e("s_mov_b64 exec, -1")
    e(f"s_add_u32 s44, s39, {KC + 256 - 2*0x4300}")
    e(f"v_mov_b32 v31, {f32(128.0)}")
    e("v_lshlrev_b32 v18, 3, v1"); e("v_cvt_f32_u32 v18, v18")
    e("s_waitcnt lgkmcnt(0)")
    for m in range(4):
        for el in range(10): e(f"v_sub_f32 v{96+el}, {f32(2047 - 512*m - el)}, v18")
        if m == 3: e("v_max_f32 v104, 0, v104")
        for p in range(5): e(f"v_cvt_pk_bf16_f32 v{108+p}, v{96+2*p}, v{97+2*p}")
        for el in range(9):
            a = f"v{114+el}"
            if el % 2 == 0: e(f"v_and_b32 {a}, 0xffff, v{108+el//2}")
            else: e(f"v_lshrrev_b32 {a}, 16, v{108+el//2}")
            e(f"v_lshl_add_u32 {a}, {a}, 1, s44")
            if m == 3:
                e(f"v_cvt_u32_f32 v19, v{96+el}"); e("v_lshl_add_u32 v19, v19, 1, s43")
                e(f"v_cmp_lt_f32 vcc, v{96+el}, v31"); e("s_nop 1"); e(f"v_cndmask_b32 {a}, {a}, v19, vcc")
        for el in range(9): e(f"ds_read_u16 v{144+9*m+el}, v{114+el}")
    e(f"s_mov_b32 s46, {FX}")
    poll_flags(k, "m_pollx", "v220", FLS, 1, 216, "v4", soff="s46", sleep=32, preloaded=True)
    k.stamp(4)
    k.srd(20, 14, 15, XT_BYTES, WS_XNT)
    k.srd(24, 14, 15, XT_BYTES, WS_YT)
    e("s_lshl_b32 s45, s34, 12")
    for n in range(4): e(f"buffer_load_dwordx4 {v(200+4*n,4)}, v15, s[20:23], s45 offen offset:{n*1024} sc1")
    e("s_waitcnt lgkmcnt(0)")
    e("v_cmp_eq_u32 vcc, 63, v1"); e("s_nop 1"); e(f"v_cndmask_b32 v{144+35}, v{144+35}, v20, vcc")
    for m in range(4):
        W = 32 + 16*m; E = 144 + 9*m
        for p in range(4):
            e(f"v_lshl_or_b32 v{W+p}, v{E+2*p+1}, 16, v{E+2*p}")
            e(f"v_lshl_or_b32 v{W+8+p}, v{E+2*p+2}, 16, v{E+2*p+1}")
        e(f"ds_write_b128 v16, {v(W,4)} offset:{1024*m}")
        e(f"ds_write_b128 v16, {v(W+8,4)} offset:{4160+1024*m}")
    e("s_waitcnt vmcnt(0)")
    for n in range(4): e(f"ds_write_b128 v16, {v(200+4*n,4)} offset:{UO+512+1024*n}")
    k.stamp(5)
    e("v_and_b32 v4, 1, v2"); e("v_xor_b32 v4, 1, v4"); e("v_mul_u32_u24 v4, 4160, v4")
    e("v_lshrrev_b32 v5, 1, v2"); e("v_lshlrev_b32 v6, 2, v3"); e("v_sub_u32 v5, v6, v5")
    e("v_lshl_add_u32 v4, v5, 2, v4"); e("v_add_u32 v4, s39, v4")
    for mp in range(4): e(f"v_add_u32 v{24+mp}, {4*(1023 - 8 - 128*(2*mp+1))}, v4")
    e("v_lshlrev_b32 v5, 5, v2"); e("v_lshl_add_u32 v5, v3, 4, v5")
    e(f"s_add_u32 s43, s39, {UO+480}"); e("v_add_u32 v28, s43, v5")
    def Af(m): return 32 + 4*m
    def Bf(r): return 64 + 4*r
    def ac(cb): return v(96 + 4*cb, 4)
    for i in range(32): e(f"v_mov_b32 v{96+i}, 0")
    e("v_lshlrev_b32 v14, 16, v14")
    e("s_waitcnt lgkmcnt(0)")
    def rdA(m):
        o = 0 if m & 1 else 128
        e(f"ds_read2_b32 {v(Af(m),2)}, v{24+m//2} offset0:{o} offset1:{o+1}"); e(f"ds_read2_b32 {v(Af(m)+2,2)}, v{24+m//2} offset0:{o+2} offset1:{o+3}")
    def rdB(r): e(f"ds_read_b128 {v(Bf(r),4)}, v28 offset:{512*r}")
    for m in range(8): rdA(m); rdB(7-m)
    e("s_mov_b32 s40, 8")
    k.label("m_cloop")
    for r in range(24, 29): e(f"v_subrev_u32 v{r}, 64, v{r}")
    for m in range(8):
        for cb in (range(7, -1, -1) if m == 0 else range(m, 8)):
            if m == 0: e(f"s_waitcnt lgkmcnt({min(3*cb, 15)})")
            e(f"{MFMA} {ac(cb)}, {v(Af(m),4)}, {v(Bf(cb-m),4)}, {ac(cb)}")
        rdA(m); rdB(7-m)
    e("s_sub_u32 s40, s40, 1"); e("s_cmp_lg_u32 s40, 0"); e("s_cbranch_scc1 m_cloop")
    k.stamp(6)
    e("s_waitcnt lgkmcnt(0)")
    e("v_lshlrev_b32 v20, 5, v2"); e("v_lshl_add_u32 v20, v3, 3, v20")
    e(f"s_add_u32 s43, s39, {UO+512}"); e("v_add_u32 v21, s43, v20")
    for cb in range(8): e(f"ds_read_b64 {v(32+2*cb,2)}, v21 offset:{512*cb}")
    e("s_waitcnt lgkmcnt(0)")
    for c0 in (0, 4):
        A = [96 + 4*cb + 2*p for cb in range(c0, c0+4) for p in range(2)]
        U = [32 + 2*cb + p for cb in range(c0, c0+4) for p in range(2)]
        for i in range(8): unpack(k, f"v{72+2*i}", f"v{73+2*i}", f"v{U[i]}")
        for i in range(8): e(f"v_pk_fma_f32 {pr(A[i])}, {pr(72+2*i)}, v[14:15], {pr(A[i])} op_sel_hi:[1,0,1]")
        for i in range(8): e(f"v_cvt_pk_bf16_f32 v{U[i]}, v{A[i]}, v{A[i]+1}")
        for cb in range(c0, c0+4): e(f"ds_write_b64 v21, {v(32+2*cb,2)} offset:{512*cb}")
    for n in range(4): e(f"ds_read_b128 {v(64+4*n,4)}, v16 offset:{UO+512+1024*n}")
    for n in range(4):
        e(f"s_waitcnt lgkmcnt({3-n})")
        e(f"buffer_store_dwordx4 {v(64+4*n,4)}, v15, s[24:27], s45 offen offset:{1024*n} sc1")
    e("s_lshl_b32 s43, s34, 2"); e(f"s_add_u32 s43, s43, {FY}")
    set_flag(k, FLS, "s43", 0, "v4", "v5")
    k.stamp(7)
    k.label("m_L3prep")
    e("s_and_b32 s36, s41, 1"); e("s_lshl_b32 s36, s36, 2"); e("s_and_b32 s43, s42, 3"); e("s_add_u32 s36, s36, s43")
    e("s_lshl_b32 s43, s33, 2"); e(f"s_add_u32 s43, s43, {W_GL}"); e("v_mov_b32 v4, s43")
    lds_wait(k, "m_wgl", "v4", "v5", sleep=8)
    e(f"v_mov_b32 v4, {W_FX}")
    lds_wait(k, "m_wfw", "v4", "v5")
    k.stamp(8)
    e("s_mul_i32 s46, s33, 15"); e("s_add_u32 s46, s46, 42")
    e("s_cmp_eq_u32 s33, 3"); e("s_cselect_b32 s47, 48, 15")
    e("s_branch m_P3")

    k.label("m_gemm1")
    e("v_and_b32 v2, 15, v1"); e("v_lshrrev_b32 v3, 4, v1")
    e("v_lshlrev_b32 v12, 4, v1")
    e("v_add_u32 v13, 4096, v12")
    PL = 200
    def poll_loads():
        for i in range(7):
            e(f"buffer_load_dwordx4 {v(PL+4*i,4)}, v{12 if i < 4 else 13}, s[28:31], s72 offen offset:{(i%4)*1024} sc1")
    e("v_mov_b32 v10, 0")
    e("v_and_b32 v4, 31, v1"); e(f"v_lshlrev_b32 v4, 2, v4"); e(f"v_add_u32 v4, {W_EPOCH}, v4")
    e("ds_write_b32 v4, v10")
    e("s_waitcnt lgkmcnt(0)")
    k.srd(64, 12, 13, 256)
    e("s_cmp_lg_u32 s2, 0"); e("s_cbranch_scc1 m_noep")
    e("s_cmp_lg_u32 s32, 4"); e("s_cbranch_scc1 m_noep")
    e("s_memrealtime s[44:45]"); e("s_waitcnt lgkmcnt(0)"); e("s_or_b32 s44, s44, 1"); e("v_mov_b32 v4, s44")
    e("s_mov_b64 exec, 1")
    e("buffer_store_dword v4, v10, s[64:67], 0 offen sc1")
    e("s_mov_b64 exec, -1")
    k.label("m_noep")
    e("s_lshl_b32 s43, s35, 2"); e("s_add_u32 s43, s43, s33"); e(f"s_mul_i32 s72, s43, {14*512}")
    e("s_lshl_b32 s44, s36, 9"); e("s_add_u32 s73, s72, s44")
    e("s_lshl_b32 s74, s36, 6"); e("s_add_u32 s74, s74, s43"); e("s_lshl_b32 s74, s74, 2")
    e("v_and_b32 v4, 7, v1"); e("v_lshl_add_u32 v4, v3, 3, v4"); e("v_bfe_u32 v5, v1, 3, 1"); e("v_lshlrev_b32 v5, 3, v5")
    e("v_lshl_add_u32 v230, v4, 4, v5")
    k.srd(28, 14, 15, ST2_BYTES, WS_ST2)
    k.srd(24, 14, 15, ZF_BYTES, WS_Z2F)
    k.srd(20, 14, 15, ZF_BYTES, WS_Z1F)
    k.srd(FLS, 14, 15, FL_BYTES, WS_FL)
    for c in range(4):
        e(f"s_xor_b32 s43, s33, {c}")
        e("s_lshl_b32 s44, s36, 2"); e("s_add_u32 s43, s43, s44"); e("s_sub_u32 s43, s43, 2")
        e(f"s_cmp_lt_u32 s43, 54"); e(f"s_cselect_b32 s{50+c}, -1, 0")
        e("s_cselect_b32 s43, s43, 60")
        e(f"s_lshl_b32 s{46+c}, s43, 16")
        e("s_lshl_b32 s44, s35, 2"); e("s_add_u32 s44, s44, s33"); e("s_lshl_b32 s44, s44, 10")
        e(f"s_add_u32 s{46+c}, s{46+c}, s44")
    for b in range(2):
        for g in range(2):
            e("s_lshr_b32 s43, s33, 1"); e(f"s_xor_b32 s43, s43, {g}"); e("s_lshl_b32 s44, s36, 1"); e("s_add_u32 s43, s43, s44")
            e("s_lshl_b32 s44, s35, 3"); e("s_lshl_b32 s45, s33, 1"); e("s_add_u32 s44, s44, s45"); e(f"s_add_u32 s44, s44, {b}")
            e("s_mul_i32 s44, s44, 27"); e("s_add_u32 s44, s44, s43"); e("s_lshl_b32 s44, s44, 10")
            e("s_cmp_lt_u32 s43, 27"); e(f"s_cselect_b32 s{68+b*2+g}, s44, {HUGE}")
    e("v_and_b32 v4, 2, v1"); e("v_and_b32 v5, 1, v1")
    e("v_cmp_ne_u32 s[54:55], 0, v4"); e("v_cmp_ne_u32 s[56:57], 0, v5")
    e("s_lshl_b32 s43, s33, 5")
    e("v_add_u32 v4, s43, v2"); e("v_lshlrev_b32 v4, 7, v4")
    e("v_lshrrev_b32 v5, 1, v2"); e("v_xor_b32 v5, v5, v3")
    e("v_lshl_add_u32 v14, v5, 4, v4")
    e("v_xor_b32 v15, 64, v14")
    e("v_bfe_u32 v4, v1, 2, 2")
    e("v_lshl_add_u32 v5, v3, 3, v4"); e("v_lshlrev_b32 v5, 7, v5")
    e("v_and_b32 v6, 3, v1"); e("v_lshl_add_u32 v5, v6, 3, v5")
    e("v_add_u32 v5, 16384, v5")
    e("v_lshrrev_b32 v6, 1, v4"); e("v_and_b32 v7, 1, v3"); e("v_lshl_or_b32 v6, v7, 1, v6")
    e("v_xor_b32 v6, s33, v6")
    for c in range(4):
        e(f"v_xor_b32 v7, {c}, v6"); e(f"v_lshl_add_u32 v{16+c}, v7, 5, v5")
    for i in range(4): e(f"v_mov_b32 v{20+i}, 0x3f803f80")
    ACC = 104
    for i in range(ACC, 192): e(f"v_mov_b32 v{i}, 0")
    def xf(ks, b): return v(24 + 40*ks + 4*b, 4)
    def wfb(ks, h, c): return 24 + 40*ks + 8 + 16*h + 4*c
    def wf(ks, h, c): return v(wfb(ks, h, c), 4)
    def accb(h, b, c): return ACC + 32*h + (b*4 + c)*4
    def acc(h, b, c): return v(accb(h, b, c), 4)
    def rlist(ks):
        L = [f"ds_read_b128 {xf(ks,b)}, v{14+ks} offset:{2048*b}" for b in range(2)]
        for h in range(2):
            for c in range(4):
                for hh in range(2):
                    L.append(f"ds_read_b64_tr_b16 {v(wfb(ks,h,c)+2*hh,2)}, v{16+c} offset:{h*8192+ks*4096+hh*512}")
        return L
    def mlist(ks):
        L = []
        for h in range(2):
            L.append(f"{MFMA} {v(184+4*h,4)}, v[20:23], {wf(ks,h,0)}, {v(184+4*h,4)}")
            for c in range(4):
                for b in range(2):
                    if h == 0: L.append(f"{MFMA} {acc(h,b,c)}, {xf(ks,b)}, {wf(ks,h,c)}, {acc(h,b,c)}")
                    else:      L.append(f"{MFMA} {acc(h,b,c)}, {wf(ks,h,c)}, {xf(ks,b)}, {acc(h,b,c)}")
        return L
    def phase(ks, rd, extra=()):
        M = mlist(ks); R = list(rd); X = list(extra)
        for i, m in enumerate(M):
            e(m)
            if R: e(R.pop(0))
            if R and i < 4: e(R.pop(0))
            elif X and not R:
                for _ in range(3):
                    if X: e(X.pop(0))
        for x in X: e(x)
    bump = [f"v_add_u32 v{r}, 0x8000, v{r}" for r in range(14, 20)]
    wrap = [f"v_and_b32 v{r}, 0x1ffff, v{r}" for r in range(14, 20)]
    e("s_lshl_b32 s43, s33, 6"); e(f"s_add_u32 s43, s43, {MISC+1024}"); e("v_lshl_add_u32 v196, v2, 2, s43")
    for c in range(4):
        e(f"s_xor_b32 s43, s33, {c}"); e(f"s_lshl_b32 s43, s43, 6"); e(f"s_add_u32 s43, s43, {MISC+1024}")
        e(f"v_lshl_add_u32 v{232+c}, v2, 2, s43"); e(f"v_lshl_add_u32 v{236+c}, v3, 4, s43")
    e("s_lshl_b32 s43, s33, 7"); e(f"s_add_u32 s43, s43, {MISC}")
    e("v_lshl_add_u32 v7, v2, 2, s43"); e("v_lshl_add_u32 v8, v3, 4, s43"); e(f"v_mov_b32 v9, {W_EPOCH}")
    k.stamp(1)
    e("s_mov_b32 s40, 10")
    e("s_barrier")
    k.stamp(2)
    for r in rlist(0): e(r)
    k.label("m_loop1")
    e("s_waitcnt lgkmcnt(0)")
    phase(0, rlist(1), bump + wrap)
    e("s_sub_u32 s40, s40, 1"); e("s_cmp_eq_u32 s40, 0")
    e("s_waitcnt lgkmcnt(0)")
    e(f"s_cbranch_scc1 m_tail1")
    e("s_barrier")
    phase(1, rlist(0))
    e(f"s_branch m_loop1")
    k.label(f"m_tail1")
    phase(1, [])
    e("s_setprio 2")
    k.stamp(3)
    epoch_poll = None
    e("ds_write_b32 v196, v184"); e("ds_write_b32 v196, v188 offset:256")
    e("s_waitcnt lgkmcnt(0)")
    e("s_barrier")
    e("ds_read_b128 v[24:27], v8"); e("ds_read_b128 v[28:31], v8 offset:64")
    e("ds_read_b128 v[32:35], v8 offset:512"); e("ds_read_b128 v[36:39], v8 offset:576")
    for c in range(4): e(f"ds_read_b32 v{40+2*c}, v{232+c}")
    e("ds_read_b32 v229, v9")
    for c in range(4): e(f"ds_read_b128 {v(64+4*c,4)}, v{236+c} offset:256")
    e("ds_read_b32 v80, v7"); e("ds_read_b32 v82, v7 offset:64"); e("ds_read_b32 v84, v7 offset:512"); e("ds_read_b32 v86, v7 offset:576")
    e(f"v_mov_b32 v88, {f32(GC1)}"); e(f"v_mov_b32 v90, {f32(GC0)}")
    e("s_waitcnt lgkmcnt(8)")
    e("v_readfirstlane_b32 s3, v229")
    e("s_cmp_lg_u32 s36, 0"); e("s_cbranch_scc1 m_nomask")
    for c in range(4):
        e(f"v_and_b32 v{40+2*c}, s{50+c}, v{40+2*c}")
        for b in range(2):
            for r in range(4): e(f"v_and_b32 v{accb(0,b,c)+r}, s{50+c}, v{accb(0,b,c)+r}")
    k.label("m_nomask")
    def gelu_pairs(A):
        n = len(A); T = [48 + 2*i for i in range(n)]
        for i in range(n): e(f"v_pk_mul_f32 {pr(T[i])}, {pr(A[i])}, {pr(A[i])}")
        for i in range(n): e(f"v_pk_fma_f32 {pr(T[i])}, {pr(T[i])}, v[88:89], v[90:91] op_sel_hi:[1,0,0]")
        for i in range(n): e(f"v_pk_mul_f32 {pr(T[i])}, {pr(T[i])}, {pr(A[i])}")
        for i in range(n): e(f"v_exp_f32 v{T[i]}, v{T[i]}"); e(f"v_exp_f32 v{T[i]+1}, v{T[i]+1}")
        for i in range(n): e(f"v_pk_add_f32 {pr(T[i])}, {pr(T[i])}, 1.0 op_sel_hi:[1,0]")
        for i in range(n): e(f"v_rcp_f32 v{T[i]}, v{T[i]}"); e(f"v_rcp_f32 v{T[i]+1}, v{T[i]+1}")
        for i in range(n): e(f"v_pk_mul_f32 {pr(A[i])}, {pr(A[i])}, {pr(T[i])}")
    for c0 in (0, 2):
        A = [accb(0, b, c) + 2*p for c in (c0, c0+1) for b in range(2) for p in range(2)]
        M = [24 + 4*b + 2*p for c in (c0, c0+1) for b in range(2) for p in range(2)]
        C = [40 + 2*c for c in (c0, c0+1) for b in range(2) for p in range(2)]
        for i in range(8): e(f"v_pk_fma_f32 {pr(A[i])}, {pr(M[i])}, {pr(C[i])}, {pr(A[i])} op_sel_hi:[1,0,1] neg_lo:[1,0,0] neg_hi:[1,0,0]")
        for i in range(8): e(f"v_pk_mul_f32 {pr(A[i])}, {pr(A[i])}, {pr(M[i]+8)}")
        gelu_pairs(A)
        for i in range(8):
            n = (i % 4) * 2
            e(f"v_pk_add_f32 {pr(168+n)}, {pr(168+n)}, {pr(A[i])}")
            e(f"v_pk_fma_f32 {pr(176+n)}, {pr(A[i])}, {pr(A[i])}, {pr(176+n)}")
    e("s_nop 0")
    for n in range(8): e(f"v_add_f32_dpp v{48+n}, v{168+n}, v{168+n} row_ror:8 row_mask:0xf bank_mask:0x3")
    for n in range(8): e(f"v_add_f32_dpp v{48+n}, v{176+n}, v{176+n} row_ror:8 row_mask:0xf bank_mask:0xc")
    for n in range(4): e(f"v_add_f32_dpp v{168+n}, v{48+n}, v{48+n} row_half_mirror row_mask:0xf bank_mask:0x5")
    for n in range(4): e(f"v_add_f32_dpp v{168+n}, v{52+n}, v{52+n} row_half_mirror row_mask:0xf bank_mask:0xa")
    for n in range(2):
        e(f"v_cndmask_b32 v{172+n}, v{170+n}, v{168+n}, s[54:55]")
        e(f"v_cndmask_b32 v{174+n}, v{168+n}, v{170+n}, s[54:55]")
    e("s_nop 0")
    for n in range(2): e(f"v_add_f32_dpp v{176+n}, v{172+n}, v{174+n} quad_perm:[2,3,0,1] row_mask:0xf bank_mask:0xf")
    e("v_cndmask_b32 v172, v177, v176, s[56:57]"); e("v_cndmask_b32 v174, v176, v177, s[56:57]")
    e("s_nop 1")
    e("v_add_f32_dpp v228, v172, v174 quad_perm:[1,0,3,2] row_mask:0xf bank_mask:0xf")
    e("buffer_store_dwordx2 v[228:229], v230, s[28:31], s73 offen sc1")
    e("s_setprio 0")
    k.stamp(4)
    e("s_waitcnt lgkmcnt(0)")
    P1 = 168
    for c0 in (0, 2):
        A = [accb(1, b, c) + 2*p for c in (c0, c0+1) for b in range(2) for p in range(2)]
        M = [80 + 2*b for c in (c0, c0+1) for b in range(2) for p in range(2)]
        C = [64 + 4*c + 2*p for c in (c0, c0+1) for b in range(2) for p in range(2)]
        for i in range(8): e(f"v_pk_fma_f32 {pr(A[i])}, {pr(M[i])}, {pr(C[i])}, {pr(A[i])} op_sel_hi:[0,1,1] neg_lo:[1,0,0] neg_hi:[1,0,0]")
        for i in range(8): e(f"v_pk_mul_f32 {pr(A[i])}, {pr(A[i])}, {pr(M[i]+4)} op_sel_hi:[1,0]")
        gelu_pairs(A)
        i = 0
        for c in (c0, c0+1):
            for b in range(2):
                for p in range(2):
                    e(f"v_cvt_pk_bf16_f32 v{P1+b*8+c*2+p}, v{A[i]}, v{A[i]+1}"); i += 1
        if c0 == 0: poll_loads()
    e("s_bitcmp1_b32 s33, 0"); e("s_cbranch_scc0 m_noswap")
    for b in range(2):
        for g in range(2):
            for p in range(2):
                r0 = P1 + b*8 + g*4 + p
                e(f"v_swap_b32 v{r0}, v{r0+2}")
    k.label("m_noswap")
    e("s_setprio 2")
    e("s_mov_b32 s40, 0")
    e("s_waitcnt vmcnt(0)")
    for b in range(2):
        for g in range(2):
            e(f"buffer_store_dwordx4 {v(P1+b*8+g*4,4)}, v12, s[20:23], s{68+b*2+g} offen sc1")
    e("s_branch m_check")
    k.label("m_poll")
    poll_loads()
    e("s_waitcnt vmcnt(0)")
    k.label("m_check")
    e(f"v_xor_b32 v4, v{PL+1}, v229"); e(f"v_xor_b32 v5, v{PL+3}, v229")
    for i in range(1, 7):
        e(f"v_xor_b32 v9, v{PL+1+4*i}, v229"); e(f"v_xor_b32 v10, v{PL+3+4*i}, v229")
        e("v_or3_b32 v4, v4, v9, v10")
    e("v_or_b32 v4, v4, v5")
    e("v_cmp_ne_u32 vcc, 0, v4")
    e("s_add_u32 s40, s40, 1")
    e("s_nop 0")
    e("s_cbranch_vccz m_poll_done")
    e(f"s_cmp_lt_u32 s40, {SPIN}"); e("s_cbranch_scc1 m_poll")
    k.label("m_poll_done")
    k.stamp(5)
    for i in range(1, 7):
        e(f"v_add_f32 v{PL}, v{PL}, v{PL+4*i}"); e(f"v_add_f32 v{PL+2}, v{PL+2}, v{PL+2+4*i}")
    e(f"v_mov_b32 v{PL+1}, v{PL}"); e(f"v_mov_b32 v{PL+3}, v{PL+2}"); e("s_nop 1")
    e(f"v_permlane32_swap_b32 v{PL}, v{PL+1}"); e(f"v_permlane32_swap_b32 v{PL+2}, v{PL+3}"); e("s_nop 1")
    e(f"v_add_f32 v24, v{PL}, v{PL+1}"); e(f"v_add_f32 v26, v{PL+2}, v{PL+3}")
    e(f"v_mul_f32 v24, {f32(1/864)}, v24"); e(f"v_mul_f32 v26, {f32(1/864)}, v26")
    e("v_fma_f32 v26, -v24, v24, v26")
    ln_finish(k, "v24", "v26", "v25")
    e("s_lshl_b32 s43, s33, 8"); e(f"s_add_u32 s43, s43, {MISC+1536}")
    e("v_and_b32 v4, 31, v1"); e("v_lshl_add_u32 v4, v4, 2, s43"); e("v_lshl_add_u32 v5, v3, 5, s43")
    e("v_mul_f32 v24, v24, v26")
    e("ds_write_b32 v4, v24"); e("ds_write_b32 v4, v26 offset:128")
    e("ds_read_b128 v[28:31], v5"); e("ds_read_b128 v[32:35], v5 offset:16")
    e("ds_read_b128 v[36:39], v5 offset:128"); e("ds_read_b128 v[40:43], v5 offset:144")
    e("s_waitcnt lgkmcnt(0)")
    for c0 in (0, 2):
        A = [accb(0, b, c) + 2*p for c in (c0, c0+1) for b in range(2) for p in range(2)]
        M = [28 + (i % 4)*2 for i in range(8)]
        for i in range(8): e(f"v_pk_fma_f32 {pr(A[i])}, {pr(A[i])}, {pr(M[i]+8)}, {pr(M[i])} neg_lo:[0,0,1] neg_hi:[0,0,1]")
        for i in range(8): e(f"v_cvt_pk_bf16_f32 v{64+4*c0+i}, v{A[i]}, v{A[i]+1}")
        for c in (c0, c0+1): e(f"buffer_store_dwordx4 {v(64+4*c,4)}, v12, s[24:27], s{46+c} offen sc1")
    e("s_lshl_b32 s43, s36, 2")
    e("s_mov_b32 s44, 0x33221000"); e("s_mov_b32 s45, 0x00766554"); e("s_lshr_b64 s[44:45], s[44:45], s43"); e("s_and_b32 s46, s44, 15")
    e("s_mov_b32 s44, 0x44322110"); e("s_mov_b32 s45, 0x00776655"); e("s_lshr_b64 s[44:45], s[44:45], s43"); e("s_and_b32 s47, s44, 15")
    for r in (46, 47):
        e(f"s_lshl_b32 s43, s{r}, 2"); e("s_lshr_b32 s44, 0xca865310, s43"); e("s_and_b32 s44, s44, 15")
        e("s_sub_u32 s44, s36, s44"); e("s_lshl_b32 s44, s44, 4"); e("s_add_u32 s44, s44, s35"); e("s_lshl_b32 s44, s44, 2")
        e(f"s_lshl_b32 s{r}, s{r}, 8"); e(f"s_add_u32 s{r}, s{r}, s44")
    e("v_mov_b32 v6, s46"); e("v_mov_b32 v7, s47"); e("v_cmp_lt_u32 vcc, 31, v1"); e("v_and_b32 v8, 31, v1"); e("v_lshlrev_b32 v8, 11, v8")
    e("v_cndmask_b32 v6, v6, v7, vcc"); e("v_add_u32 v6, v6, v8")
    e(f"v_mov_b32 v4, {W_PF + 8}"); e("v_mov_b32 v5, 1"); e("v_mov_b32 v7, s3"); e(f"s_mov_b32 s44, {FZ2}")
    e("s_mov_b64 exec, 1")
    e("s_waitcnt vmcnt(0)")
    e("ds_add_rtn_u32 v8, v4, v5")
    e("s_waitcnt lgkmcnt(0)")
    e("v_readfirstlane_b32 s43, v8")
    e("s_mov_b64 exec, -1")
    e("s_cmp_lg_u32 s43, 3"); e("s_cbranch_scc1 m_P2")
    e("buffer_store_dword v7, v6, s[60:63], s44 offen sc1")
    gen_p2(k)
    gen_p3(k)
    gen_helper(k, epoch_poll)
    k.label("m_end")
    e("s_endpgm")
    return k.text(256, nsgpr=100)

def gen_p2(k):
    e = k.e
    k.label("m_P2")
    k.stamp(6)
    e("s_load_dwordx2 s[6:7], s[0:1], 80")
    e("s_lshr_b32 s35, s41, 1"); e("s_lshl_b32 s35, s35, 3"); e("s_lshr_b32 s43, s42, 2"); e("s_add_u32 s35, s35, s43")
    e("s_and_b32 s36, s42, 3")
    e("s_and_b32 s43, s41, 1"); e("s_mul_i32 s43, s43, 27"); e("s_mul_i32 s44, s36, 7"); e("s_add_u32 s37, s43, s44")
    e("v_and_b32 v240, 15, v1"); e("v_lshrrev_b32 v241, 4, v1"); e("v_mov_b32 v245, v1")
    e("v_lshrrev_b32 v2, 5, v1"); e("v_lshlrev_b32 v2, 3, v2"); e("v_bfe_u32 v3, v1, 3, 2"); e("v_add_u32 v2, v2, v3")
    e("v_lshlrev_b32 v2, 12, v2")
    e("v_and_b32 v3, 7, v1"); e("v_xor_b32 v3, v3, v241")
    e("v_lshl_add_u32 v242, v3, 4, v2")
    e("v_xor_b32 v3, 4, v3")
    e("v_lshl_add_u32 v243, v3, 4, v2"); e(f"v_add_u32 v243, {16*4096 - 1024}, v243")
    e("v_lshlrev_b32 v244, 4, v1")
    e("s_lshl_b32 s43, s35, 18"); e("s_lshl_b32 s44, s33, 10"); e("s_add_u32 s48, s43, s44")
    e(f"s_add_u32 s49, s48, {4*4096}"); e(f"s_add_u32 s50, s48, {32*4096}"); e(f"s_add_u32 s51, s48, {36*4096}")
    e("s_lshl_b32 s43, s37, 16"); e("s_lshl_b32 s44, s33, 14"); e("s_add_u32 s52, s43, s44")
    for c in range(1, 7): e(f"s_add_u32 s{52+c}, s52, {c*65536}")
    e("s_cmp_eq_u32 s36, 3"); e(f"s_cselect_b32 s58, {HUGE}, s58")
    e(f"s_mul_i32 s39, s33, {RING2}")
    k.srd(16, 10, 11, 2048*4096)
    k.srd(20, 14, 15, ZF_BYTES, WS_Z2F)
    k.srd(24, 14, 15, ZF_BYTES, WS_Z1F)
    k.srd(28, 14, 15, ZF_BYTES, WS_HF)
    def Z(st, c): return v(112 + st*28 + c*4, 4)
    def acc(c, sg): return v((c*4 + sg)*4, 4)
    def wf(sg): return v(224 + 4*sg, 4)
    def issueZ(n):
        if n % 4 == 0 and n:
            for c in range(7): e(f"s_add_u32 s{52+c}, s{52+c}, 4096")
        for c in range(7): k.vmem(f"buffer_load_dwordx4 {Z(n%4,c)}, v244, s[20:23], s{52+c} offen offset:{(n%4)*1024} sc1", f"Z{n}")
    def issueA(c):
        for t in range(4):
            e(f"s_add_u32 m0, s39, {(c%NSLOT)*8192 + t*2048}")
            e("s_nop 0")
            k.vmem(f"buffer_load_dwordx4 v242, s[16:19], s{48+t} offen lds", f"A{c}")
            k.vmem(f"buffer_load_dwordx4 v243, s[16:19], s{48+t} offen offset:1024 lds", f"A{c}")
        for t in range(4): e(f"s_add_u32 s{48+t}, s{48+t}, 128")
    k.vm = []
    e("v_lshrrev_b32 v5, 1, v240"); e("v_xor_b32 v5, v5, v241")
    e("v_lshlrev_b32 v4, 7, v240"); e("v_lshl_add_u32 v4, v5, 4, v4"); e("v_add_u32 v4, s39, v4")
    for sg in range(4):
        e(f"s_xor_b32 s43, s33, {sg}"); e("s_lshl_b32 s43, s43, 11")
        e(f"v_add_u32 v{246+sg}, s43, v4")
        e(f"v_xor_b32 v{250+sg}, 64, v{246+sg}")
    e("s_setprio 0")
    e(f"v_mov_b32 v4, {W_PF}")
    lds_wait(k, "m_wpf", "v4", "v5", sleep=1)
    k.srd(64, 6, 7, 4096)
    e("s_setprio 3")
    k.stamp(7); k.cyc(12)
    k.vm = []
    def issueZ1(n, c):
        if n % 4 == 0 and n and c == 0: e("v_add_u32 v254, 4096, v254"); e("v_and_b32 v254, 0x3fff, v254")
        k.vmem(f"buffer_load_dwordx4 {Z(n%4,c)}, v254, s[20:23], s{52+c} offen offset:{(n%4)*1024} sc1", f"Z{n}_{c}")
    def issueA1(c, t):
        e(f"s_add_u32 m0, s39, {(c%NSLOT)*8192 + t*2048}")
        e("s_nop 0")
        e(f"s_add_u32 s47, s{48+t}, s59")
        k.vmem(f"buffer_load_dwordx4 v242, s[16:19], s47 offen lds", f"A{c}")
        k.vmem(f"buffer_load_dwordx4 v243, s[16:19], s47 offen offset:1024 lds", f"A{c}")
        if t == 3: e("s_add_u32 s59, s59, 128"); e("s_and_b32 s59, s59, 1023")
    e(f"s_and_b32 s43, s35, {ROTM}"); e("s_lshl_b32 s59, s43, 8"); e("s_add_u32 s59, s59, 256"); e("s_and_b32 s59, s59, 1023")
    e("s_lshl_b32 s43, s43, 12"); e("v_add_u32 v254, s43, v244")
    for n in range(4):
        for c in range(7): issueZ1(n, c)
    for n in range(16):
        c, ks = n >> 1, n & 1
        if ks == 0 and f"A{c}" in k.vm: k.wait_vm(f"A{c}")
        for sg in range(4):
            e(f"ds_read_b128 {wf(sg)}, v{(250 if ks else 246)+sg} offset:{(c%NSLOT)*8192}")
        if n == 15:
            if f"Z{n}_6" in k.vm: k.wait_vm(f"Z{n}_6")
            e("s_waitcnt lgkmcnt(0)")
            for sg in (1, 3, 2, 0):
                for cc in range(7): e(f"{MFMA} {acc(cc,sg)}, {Z(n%4,cc)}, {wf(sg)}, {acc(cc,sg)}")
            continue
        for cc in range(7):
            if f"Z{n}_{cc}" in k.vm: k.wait_vm(f"Z{n}_{cc}")
            if n == 0 and cc == 0: k.stamp(8)
            for sg in range(4):
                if cc == 0: e(f"s_waitcnt lgkmcnt({3-sg})")
                e(f"{MFMA} {acc(cc,sg)}, {Z(n%4,cc)}, {wf(sg)}, {'0' if n == 0 else acc(cc,sg)}")
            if n + 4 < 16: issueZ1(n + 4, cc)
            if ks == 1 and c + NSLOT < 8 and cc in (0, 2, 4, 6): issueA1(c + NSLOT, cc // 2)
        if n == 12:
            e("s_lshl_b32 s43, s35, 2"); e("s_add_u32 s43, s43, s33"); e("s_mul_i32 s44, s43, 27648")
            for cc in range(7):
                e(f"s_add_u32 s45, s37, {cc}"); e("s_lshr_b32 s46, s45, 1"); e("s_lshl_b32 s46, s46, 10"); e("s_and_b32 s45, s45, 1"); e("s_lshl_b32 s45, s45, 3")
                e("s_add_u32 s45, s45, s46"); e(f"s_add_u32 s{52+cc}, s45, s44")
            e("s_cmp_eq_u32 s36, 3"); e(f"s_cselect_b32 s58, {HUGE}, s58")
            for cc in range(7): k.vmem(f"buffer_load_dwordx2 {v(112+2*cc,2)}, v244, s[24:27], s{52+cc} offen sc1", "z1")
            e("s_lshr_b32 s44, s43, 1"); e("s_lshl_b32 s44, s44, 5"); e("s_and_b32 s45, s43, 1"); e("s_lshl_b32 s45, s45, 2"); e("s_add_u32 s44, s44, s45")
            e("v_lshrrev_b32 v128, 2, v240"); e("v_and_b32 v129, 3, v240"); e("v_lshl_add_u32 v128, v128, 3, v129"); e("v_add_u32 v128, s44, v128")
            e("v_lshlrev_b32 v128, 1, v128")
            k.vmem("buffer_load_ushort v126, v128, s[64:67], 0 offen", "z1")
        if n == 12:
            e("s_lshl_b32 s43, s33, 2"); e(f"s_add_u32 s43, s43, {W_GL}"); e("v_mov_b32 v254, s43"); e("v_mov_b32 v255, 1")
            e("ds_write_b32 v254, v255")
    k.stamp(9); k.cyc(13)
    e("v_add_u32 v130, s39, v244")
    e("s_xor_b32 s43, s33, 1"); e(f"s_mul_i32 s43, s43, {RING2}"); e("v_add_u32 v131, s43, v244")
    e("s_xor_b32 s43, s33, 3"); e(f"s_mul_i32 s43, s43, {RING2}"); e("v_add_u32 v132, s43, v244")
    e(f"v_add_u32 v133, {W_R1 - W_GL}, v254")
    e("v_xor_b32 v134, 4, v133"); e("v_xor_b32 v135, 8, v133"); e("v_add_u32 v135, 16, v135")
    for c in range(7):
        for h in range(2): e(f"ds_write_b128 v130, {acc(c,1+2*h)} offset:{(c*2+h)*1024}")
    e("ds_write_b32 v133, v255")
    lds_wait(k, "m_wr1", "v134", "v136")
    T = 140
    for h in (1, 0):
        for c in range(7): e(f"ds_read_b128 {v(T+(c*2+h)*4,4)}, v131 offset:{(c*2+h)*1024}")
    e("s_waitcnt lgkmcnt(7)")
    for c in range(7):
        for p in range(2):
            a = (c*4 + 2)*4 + 2*p
            e(f"v_pk_add_f32 {pr(a)}, {pr(a)}, {pr(T+(c*2+1)*4+2*p)}")
    e("s_waitcnt lgkmcnt(0)")
    for c in range(7): e(f"ds_write_b128 v131, {acc(c,2)} offset:{c*1024}")
    e("ds_write_b32 v133, v255 offset:16")
    for c in range(7):
        for p in range(2):
            a = (c*4)*4 + 2*p
            e(f"v_pk_add_f32 {pr(a)}, {pr(a)}, {pr(T+(c*2)*4+2*p)}")
    lds_wait(k, "m_wr2", "v135", "v136")
    for c in range(7): e(f"ds_read_b128 {v(T+c*4,4)}, v132 offset:{c*1024}")
    e("s_waitcnt vmcnt(0)")
    k.vm = []
    e("v_lshlrev_b32 v126, 16, v126")
    for i in range(14): unpack(k, f"v{170+2*i}", f"v{171+2*i}", f"v{112+i}")
    k.srd(16, 14, 15, WOF_BYTES, WS_WOF)
    e("s_and_b32 s43, s41, 1"); e("s_lshl_b32 s43, s43, 2"); e("s_add_u32 s45, s36, s43")
    e("s_xor_b32 s43, s33, 3"); e("s_lshl_b32 s46, s43, 4"); e("s_sub_i32 s46, s46, 22"); e("s_max_i32 s46, s46, 0")
    e("s_cmp_eq_u32 s43, 1"); e("s_cselect_b32 s47, 10, 16"); e("s_cmp_eq_u32 s43, 0"); e("s_cselect_b32 s47, 0, s47")
    e("s_lshl_b32 s46, s46, 10"); e("s_mul_i32 s48, s45, 138240"); e("s_add_u32 s48, s48, s46"); e(f"s_add_u32 s46, s46, {IMG}")
    e(f"v_mov_b32 v136, {W_FX}")
    lds_wait(k, "m_wfw2", "v136", "v137")
    e("s_cmp_eq_u32 s47, 0"); e("s_cbranch_scc1 m_gwodone")
    k.label("m_gwoloop")
    e("s_mov_b32 m0, s46"); e("s_add_u32 s46, s46, 2048")
    e("buffer_load_dwordx4 v244, s[16:19], s48 offen sc1 lds"); e("buffer_load_dwordx4 v244, s[16:19], s48 offen offset:1024 sc1 lds")
    e("s_add_u32 s48, s48, 2048"); e("s_sub_u32 s47, s47, 2"); e("s_cmp_lg_u32 s47, 0"); e("s_cbranch_scc1 m_gwoloop")
    k.label("m_gwodone")
    A = [c*16 + 2*p for c in range(7) for p in range(2)]
    for i in range(14): e(f"v_pk_add_f32 {pr(A[i])}, {pr(A[i])}, {pr(T+2*i)}")
    for i in range(14): e(f"v_pk_add_f32 {pr(A[i])}, {pr(A[i])}, v[126:127] op_sel_hi:[1,0]")
    for i in range(14): e(f"v_pk_mul_f32 {pr(A[i])}, {pr(A[i])}, {pr(170+2*i)}")
    for i in range(14): e(f"v_cvt_pk_bf16_f32 v{200+i}, v{A[i]}, v{A[i]+1}")
    e("s_bitcmp1_b32 s37, 0"); e("s_cbranch_scc1 m_hodd")
    for c in (0, 2, 4): e(f"buffer_store_dwordx4 {v(200+2*c,4)}, v244, s[28:31], s{52+c} offen sc1")
    e(f"buffer_store_dwordx2 {v(212,2)}, v244, s[28:31], s58 offen sc1")
    e("s_branch m_hdone")
    k.label("m_hodd")
    e(f"buffer_store_dwordx2 {v(200,2)}, v244, s[28:31], s52 offen sc1")
    for c in (1, 3): e(f"buffer_store_dwordx4 {v(200+2*c,4)}, v244, s[28:31], s{52+c} offen sc1")
    e("s_cmp_eq_u32 s36, 3"); e("s_cbranch_scc1 m_hodd6")
    e(f"buffer_store_dwordx4 {v(210,4)}, v244, s[28:31], s57 offen sc1")
    e("s_branch m_hdone")
    k.label("m_hodd6")
    e(f"buffer_store_dwordx2 {v(210,2)}, v244, s[28:31], s57 offen sc1")
    k.label("m_hdone")
    e("v_mov_b32 v1, v245")
    e("s_and_b32 s43, s41, 1"); e("s_lshl_b32 s43, s43, 2"); e("s_add_u32 s36, s36, s43")
    e(f"v_mov_b32 v4, {W_PF + 4}"); e("v_mov_b32 v5, 1"); e("v_lshlrev_b32 v6, 7, v1"); e("v_mov_b32 v7, s3")
    e("s_lshl_b32 s44, s35, 10"); e("s_lshl_b32 s45, s36, 2"); e("s_add_u32 s44, s44, s45"); e(f"s_add_u32 s44, s44, {FH2}")
    e("s_mov_b64 exec, 1")
    e("s_waitcnt vmcnt(0)")
    e("ds_add_rtn_u32 v8, v4, v5")
    e("s_waitcnt lgkmcnt(0)")
    e("v_readfirstlane_b32 s43, v8")
    e("s_mov_b64 exec, 0xff")
    e("s_cmp_lg_u32 s43, 3"); e("s_cbranch_scc1 m_nopub")
    e("buffer_store_dword v7, v6, s[60:63], s44 offen sc1")
    k.label("m_nopub")
    e("s_mov_b64 exec, -1")
    e("s_setprio 0")
    e("v_and_b32 v2, 15, v1"); e("v_lshrrev_b32 v3, 4, v1")
    e("s_mov_b32 s47, 0"); e("s_mov_b32 s46, 0")

def gen_p3(k):
    e = k.e
    k.label("m_P3")
    k.stamp(10)
    e("s_lshr_b32 s34, s32, 2")
    e("v_lshlrev_b32 v15, 4, v1")
    k.srd(16, 14, 15, WOF_BYTES, WS_WOF)
    k.srd(20, 14, 15, ZF_BYTES, WS_HF)
    k.srd(24, 4, 5, 2048*1280)
    k.srd(28, 98, 99, 2048*1280)
    e("s_lshl_b32 s46, s46, 10"); e("s_mul_i32 s48, s36, 138240"); e("s_add_u32 s48, s48, s46"); e(f"s_add_u32 s46, s46, {IMG}")
    e("s_cmp_eq_u32 s47, 0"); e("s_cbranch_scc1 m_wodone")
    k.label("m_woloop")
    e("s_mov_b32 m0, s46"); e("s_add_u32 s46, s46, 1024")
    e("buffer_load_dwordx4 v15, s[16:19], s48 offen sc1 lds")
    e("s_add_u32 s48, s48, 1024"); e("s_sub_u32 s47, s47, 1"); e("s_cmp_lg_u32 s47, 0"); e("s_cbranch_scc1 m_woloop")
    k.label("m_wodone")
    def H(g, sg): return v(16 + (g*2 + sg)*4, 4)
    def WF(g, db): return v(72 + (g*5 + db)*4, 4)
    def acc(sg, db): return v(212 + (sg*5 + db)*4, 4)
    e("s_cmp_eq_u32 s33, 3"); e(f"s_cselect_b32 s45, {HUGE}, 6144")
    e("s_and_b32 s43, s33, 1"); e("s_lshl_b32 s44, s34, 1"); e("s_add_u32 s57, s43, s44")
    e("s_lshr_b32 s58, s33, 1"); e("s_mul_i32 s58, s58, 3")
    e("s_lshr_b32 s43, s57, 1"); e("s_lshl_b32 s43, s43, 5"); e("s_and_b32 s44, s57, 1"); e("s_lshl_b32 s44, s44, 2"); e("s_add_u32 s59, s43, s44")
    e("s_lshl_b32 s43, s35, 6"); e("s_add_u32 s43, s43, s59")
    e("v_lshrrev_b32 v6, 2, v2"); e("v_and_b32 v7, 3, v2"); e("v_lshl_add_u32 v6, v6, 3, v7"); e("v_add_u32 v6, s43, v6")
    e("v_mul_u32_u24 v6, 1280, v6"); e("v_lshl_add_u32 v6, v3, 3, v6"); e("s_mul_i32 s43, s36, 160"); e("v_add_u32 v14, s43, v6")
    for i in range(3):
        e(f"s_add_u32 s43, s58, {i}"); e(f"s_min_u32 s{68+i}, s43, 4")
        e(f"s_lshl_b32 s{72+i}, s{68+i}, 5")
    k.srd(64, 14, 15, XT_BYTES, WS_YT)
    e("s_lshl_b32 s43, s35, 2"); e("s_lshl_b32 s44, s34, 1"); e("s_add_u32 s43, s43, s44"); e("s_mul_i32 s43, s43, 27"); e("s_mul_i32 s44, s33, 7"); e("s_add_u32 s43, s43, s44")
    e("s_lshl_b32 s46, s43, 10"); e("s_add_u32 s47, s46, 27648")
    e("s_add_u32 s48, s46, 4096"); e("s_add_u32 s49, s47, 4096"); e("s_add_u32 s50, s46, s45"); e("s_add_u32 s51, s47, s45")
    e("s_mul_i32 s43, s33, 35840"); e(f"s_add_u32 s43, s43, {IMG}"); e("v_add_u32 v252, s43, v15")
    e("s_cmp_eq_u32 s33, 3"); e("s_cselect_b32 s43, 5120, 0"); e("v_subrev_u32 v253, s43, v252")
    e("v_and_b32 v4, 7, v1"); e("v_lshlrev_b32 v4, 2, v4")
    e("s_lshl_b32 s44, s35, 10"); e("s_lshl_b32 s43, s36, 7"); e("s_add_u32 s44, s44, s43"); e(f"s_add_u32 s44, s44, {FH2}")
    e("v_min_u32 v254, 39, v1"); e("v_lshlrev_b32 v254, 3, v254")
    e("s_mul_i32 s52, s36, 320"); e(f"s_add_u32 s52, s52, {FY}")
    e("s_cmp_ge_u32 s32, 4"); e("s_cbranch_scc1 m_nwv")
    e("s_waitcnt vmcnt(0)")
    k.label("m_nwv")
    e("s_barrier")
    k.stamp(4)
    e("s_cmp_lg_u32 s32, 3"); e("s_cbranch_scc1 m_nhp")
    e("buffer_load_dword v5, v4, s[60:63], s44 offen sc1")
    k.label("m_nhp")
    e("s_cmp_lg_u32 s32, 2"); e("s_cbranch_scc1 m_nyp")
    e("buffer_load_dwordx2 v[248:249], v254, s[60:63], s52 offen sc1")
    k.label("m_nyp")
    for g in range(7):
        for db in range(5): e(f"ds_read_b128 {WF(g,db)}, v{253 if g == 6 else 252} offset:{g*5120 + db*1024}")
    for i in range(3): e(f"buffer_load_dwordx2 {v(8+2*i,2)}, v14, s[24:27], s{72+i} offen")
    e("v_lshrrev_b32 v244, 3, v1"); e("v_lshlrev_b32 v244, 12, v244"); e("v_and_b32 v245, 7, v1"); e("v_lshl_add_u32 v244, v245, 4, v244")
    e("s_mul_i32 s53, s36, 80"); e("s_lshl_b32 s43, s32, 3"); e("s_add_u32 s53, s53, s43"); e("s_lshl_b32 s53, s53, 12"); e("s_lshl_b32 s43, s35, 7"); e("s_add_u32 s53, s53, s43")
    e("s_cmp_lt_u32 s32, 2"); e(f"s_cselect_b32 s54, {64*4096}, 0"); e("s_cselect_b32 s55, 8192, 0"); e("s_add_u32 s54, s54, s53")
    e("s_lshl_b32 s43, s32, 10"); e(f"s_add_u32 s43, s43, {YTILE}"); e("v_add_u32 v246, s43, v15"); e("v_add_u32 v247, s55, v246")
    e("s_cmp_lg_u32 s32, 3"); e("s_cbranch_scc1 m_hw")
    poll_flags(k, "m_pollh", "v4", FLS, 1, 5, "v6", soff="s44", sleep=2, preloaded=True)
    k.label("m_hw")
    e("s_cmp_lg_u32 s32, 2"); e("s_cbranch_scc1 m_noy")
    poll_flags(k, "m_polly", "v254", FLS, 2, 248, "v5", soff="s52", sleep=8, preloaded=True)
    k.label("m_noy")
    e("s_waitcnt lgkmcnt(0)")
    e("s_barrier")
    k.stamp(11)
    k.vm = []
    k.vmem("buffer_load_dwordx4 v[236:239], v244, s[64:67], s53 offen sc1", "y")
    k.vmem("buffer_load_dwordx4 v[240:243], v244, s[64:67], s54 offen sc1", "y")
    for g in range(7):
        for sg in range(2):
            so = 46 + sg + (0 if g < 4 else 2 if g < 6 else 4)
            k.vmem(f"buffer_load_dwordx4 {H(g,sg)}, v15, s[20:23], s{so} offen offset:{(g%4)*1024 if g < 6 else 0} sc1", f"h{g}")
    e("s_mul_i32 s43, s32, 10240"); e("v_add_u32 v252, s43, v15")
    e("s_mul_i32 s43, s34, 40960"); e("s_and_b32 s44, s33, 1"); e("s_mul_i32 s44, s44, 5120"); e("s_add_u32 s43, s43, s44")
    e("v_bfe_u32 v4, v1, 2, 2"); e("v_lshl_add_u32 v4, v3, 2, v4"); e("v_lshlrev_b32 v4, 7, v4")
    e("v_and_b32 v5, 3, v1"); e("v_lshl_add_u32 v4, v5, 4, v4")
    e("s_lshl_b32 s44, s59, 1"); e(f"s_add_u32 s44, s44, {YTILE}"); e("v_add_u32 v4, s44, v4")
    for i in range(3):
        e(f"s_lshl_b32 s44, s{68+i}, 10"); e("s_add_u32 s44, s44, s43"); e(f"v_add_u32 v{253+i}, s44, v15")
        e(f"s_lshl_b32 s44, s{68+i}, 11"); e(f"v_add_u32 v{5+i}, s44, v4")
    for g in range(7):
        k.wait_vm(f"h{g}")
        if g == 0: e("ds_write_b128 v246, v[236:239]"); e("ds_write_b128 v247, v[240:243]"); e("s_waitcnt lgkmcnt(0)")
        for db in range(5):
            for sg in range(2):
                e(f"{MFMA} {acc(sg,db)}, {WF(g,db)}, {H(g,sg)}, {'0' if g == 0 else acc(sg,db)}")
    e("s_nop 2")
    e("s_nop 1")
    for db in range(5):
        for sg in range(2): e(f"ds_write_b128 v252, {acc(sg,db)} offset:{(sg*5+db)*1024}")
    for i in range(6): unpack(k, f"v{96+2*i}", f"v{97+2*i}", f"v{8+i}")
    e("s_waitcnt lgkmcnt(0)")
    e("s_barrier")
    for i in range(3): e(f"ds_read_b64_tr_b16 {v(24+2*i,2)}, v{5+i}")
    for i in range(3):
        for kq in range(4): e(f"ds_read_b128 {v(32+(i*4+kq)*4,4)}, v{253+i} offset:{kq*10240}")
    e("s_waitcnt lgkmcnt(12)")
    for n in range(6): unpack(k, f"v{112+2*n}", f"v{113+2*n}", f"v{24+n}")
    for n in range(6): e(f"v_pk_add_f32 {pr(96+2*n)}, {pr(96+2*n)}, {pr(112+2*n)}")
    e("s_waitcnt lgkmcnt(0)")
    A = [32 + i*16 + 2*p for i in range(3) for p in range(2)]
    for n in range(6): e(f"v_pk_add_f32 {pr(A[n])}, {pr(A[n])}, {pr(A[n]+4)}"); e(f"v_pk_add_f32 {pr(A[n]+8)}, {pr(A[n]+8)}, {pr(A[n]+12)}")
    for n in range(6): e(f"v_pk_add_f32 {pr(A[n])}, {pr(A[n])}, {pr(A[n]+8)}")
    for n in range(6): e(f"v_pk_add_f32 {pr(A[n])}, {pr(A[n])}, {pr(96+2*n)}")
    for n in range(6): e(f"v_cvt_pk_bf16_f32 v{24+n}, v{A[n]}, v{A[n]+1}")
    for i in range(3): e(f"buffer_store_dwordx2 {v(24+2*i,2)}, v14, s[28:31], s{72+i} offen")
    e("s_lshl_b32 s43, s2, 3"); e("s_add_u32 s43, s43, s32"); e("s_cmp_lg_u32 s43, 4"); e("s_cbranch_scc1 m_fin")
    k.srd(64, 12, 13, 256)
    e("v_mov_b32 v4, 0"); e("s_mov_b64 exec, 1")
    e("buffer_store_dword v4, v4, s[64:67], 0 offen sc1")
    k.label("m_fin")
    k.end(0)

def gen_helper(k, epoch_poll):
    e = k.e
    k.label("m_helper")
    e("s_lshl_b32 s35, s41, 2"); e("s_add_u32 s35, s35, s42"); e("s_sub_u32 s35, s35, 28")
    e("v_and_b32 v2, 15, v1"); e("v_lshrrev_b32 v3, 4, v1")
    e("s_lshl_b32 s43, s32, 3")
    e("v_add_u32 v4, s43, v3")
    e("s_lshl_b32 s44, s35, 6")
    e("v_add_u32 v5, s44, v4"); e("v_mul_u32_u24 v5, 1280, v5"); e("v_lshl_add_u32 v5, v2, 4, v5")
    e("v_add_u32 v6, 5120, v5")
    e("v_mul_u32_u24 v7, 1296, v4"); e("v_lshl_add_u32 v7, v2, 4, v7")
    e("v_mov_b32 v110, 0")
    e("v_and_b32 v4, 31, v1"); e(f"v_lshlrev_b32 v4, 2, v4"); e(f"v_add_u32 v4, {W_EPOCH}, v4")
    e("s_cmp_lg_u32 s32, 4"); e("s_cbranch_scc1 m_hnoclr")
    e("ds_write_b32 v4, v110")
    k.label("m_hnoclr")
    e("s_waitcnt lgkmcnt(0)")
    k.srd(16, 4, 5, 2048*1280)
    k.srd(28, 14, 15, XT_BYTES, WS_XNT)
    k.srd(64, 12, 13, 256)
    k.srd(FLS, 14, 15, FL_BYTES, WS_FL)
    k.srd(20, 96, 97, 864*1280)
    k.vm = []
    for g in range(2):
        for n in range(5):
            k.vmem(f"buffer_load_dwordx4 {v(8+g*20+n*4,4)}, v{5+g}, s[16:19], 0 offen offset:{n*256}", f"x{g}")
    XB = (48, 128)
    for g in range(2):
        k.stamp(1+2*g)
        k.wait_vm(f"x{g}")
        if g == 0: k.vmem("buffer_load_dword v111, v110, s[64:67], 0 offen sc1", "ep")
        X = XB[g]; src = 8 + g*20; M, R = 112 + 4*g, 114 + 4*g
        for n in range(20): unpack(k, f"v{X+2*n}", f"v{X+2*n+1}", f"v{src+n}")
        e(f"v_pk_add_f32 v[88:89], {pr(X)}, {pr(X+4)}"); e(f"v_pk_add_f32 v[90:91], {pr(X+2)}, {pr(X+6)}")
        for n in range(4, 20): e(f"v_pk_add_f32 {pr(88+2*(n%2))}, {pr(88+2*(n%2))}, {pr(X+2*n)}")
        e("v_pk_add_f32 v[88:89], v[88:89], v[90:91]"); e("s_nop 0"); e("v_add_f32 v88, v88, v89")
        for sh in (8, 4, 2, 1):
            e("s_nop 1"); e(f"v_add_f32_dpp v88, v88, v88 row_ror:{sh} row_mask:0xf bank_mask:0xf")
        e(f"v_mul_f32 v{M}, {f32(1/640)}, v88")
        for a_ in range(4): e(f"v_mov_b32 v{92+a_}, 0")
        for n0 in range(0, 20, 4):
            for a_ in range(4): e(f"v_pk_add_f32 {pr(96+2*a_)}, {pr(X+2*(n0+a_))}, {pr(M)} op_sel_hi:[1,0] neg_lo:[0,1] neg_hi:[0,1]")
            for a_ in range(4): e(f"v_pk_fma_f32 {pr(92+2*(a_%2))}, {pr(96+2*a_)}, {pr(96+2*a_)}, {pr(92+2*(a_%2))}")
        e("v_pk_add_f32 v[92:93], v[92:93], v[94:95]"); e("s_nop 0"); e("v_add_f32 v92, v92, v93")
        for sh in (8, 4, 2, 1):
            e("s_nop 1"); e(f"v_add_f32_dpp v92, v92, v92 row_ror:{sh} row_mask:0xf bank_mask:0xf")
        e(f"v_mul_f32 v{R}, {f32(1/640)}, v92")
        ln_finish(k, f"v{M}", f"v{R}", "v89")
    e("s_mov_b32 s40, 0")
    k.label("m_hep")
    e("s_waitcnt vmcnt(0)")
    e("v_readfirstlane_b32 s3, v111")
    e("s_add_u32 s40, s40, 1")
    e("s_cmp_lg_u32 s3, 0"); e("s_cbranch_scc1 m_hepok")
    e("buffer_load_dword v111, v110, s[64:67], 0 offen sc1")
    e(f"s_cmp_lt_u32 s40, {SPIN}"); e("s_cbranch_scc1 m_hep")
    k.label("m_hepok")
    k.vm = []
    k.srd(24, 14, 15, 32768, WS_ST1)
    for r in (113, 115, 117, 119): e(f"v_mov_b32 v{r}, v111")
    e("s_lshl_b32 s43, s35, 10"); e("s_lshl_b32 s44, s32, 7"); e("s_add_u32 s43, s43, s44"); e("v_lshlrev_b32 v5, 4, v3")
    e("v_cmp_eq_u32 vcc, 0, v2"); e("s_and_saveexec_b64 s[44:45], vcc")
    e("buffer_store_dwordx4 v[112:115], v5, s[24:27], s43 offen sc1"); e("buffer_store_dwordx4 v[116:119], v5, s[24:27], s43 offen offset:64 sc1")
    e("s_mov_b64 exec, -1")
    k.stamp(2)
    e("v_lshlrev_b32 v120, 4, v1")
    e("s_lshl_b32 s43, s35, 3"); e("s_add_u32 s43, s43, s32"); e("s_mul_i32 s43, s43, 4352")
    for n in range(4): e(f"buffer_load_dwordx4 v[124:127], v120, s[20:23], s43 offen offset:{n*1024}")
    e("s_add_u32 s43, s43, 4096")
    e(f"buffer_load_dwordx4 v[124:127], v120, s[20:23], s43 offen")
    for g in range(2):
        X = XB[g]; src = 8 + g*20; M, R = 112 + 4*g, 114 + 4*g
        for n in range(20): e(f"v_pk_add_f32 {pr(X+2*n)}, {pr(X+2*n)}, {pr(M)} op_sel_hi:[1,0] neg_lo:[0,1] neg_hi:[0,1]")
        for n in range(20): e(f"v_pk_mul_f32 {pr(X+2*n)}, {pr(X+2*n)}, {pr(R)} op_sel_hi:[1,0]")
        for n in range(20): e(f"v_cvt_pk_bf16_f32 v{src+n}, v{X+2*n}, v{X+2*n+1}")
        for n in range(5):
            e(f"ds_write_b128 v7, {v(src+4*n,4)} offset:{g*4*1296 + n*256}")
    e(f"v_mov_b32 v9, {W_EPOCH}")
    e("s_cmp_lg_u32 s32, 4"); e("s_cbranch_scc1 m_hepdone")
    e("ds_write_b32 v9, v111")
    k.label("m_hepdone")
    e("s_waitcnt lgkmcnt(0)")
    e("s_barrier")
    k.stamp(4)
    e("v_bfe_u32 v4, v1, 2, 2"); e("v_lshl_add_u32 v4, v3, 3, v4"); e("v_mul_u32_u24 v4, 1296, v4")
    e("v_and_b32 v5, 3, v1"); e("v_lshl_add_u32 v4, v5, 3, v4")
    e("s_lshl_b32 s43, s32, 5"); e("v_add_u32 v4, s43, v4")
    e(f"v_add_u32 v5, {32*1296}, v4")
    for n in range(5):
        for th in range(2):
            for hh in range(2):
                e(f"ds_read_b64_tr_b16 {v(16+(n*2+th)*4+hh*2,2)}, v{4+th} offset:{hh*4*1296 + n*256}")
    e("s_mul_i32 s43, s32, 4608"); e("s_add_u32 s43, s43, 90112")
    e("v_mul_u32_u24 v5, 144, v2"); e("v_lshl_add_u32 v5, v3, 4, v5"); e("v_add_u32 v5, s43, v5")
    e("v_lshrrev_b32 v4, 3, v1"); e("v_lshlrev_b32 v6, 12, v4"); e("v_mul_u32_u24 v4, 144, v4"); e("v_and_b32 v7, 7, v1"); e("v_lshl_add_u32 v4, v7, 4, v4"); e("v_add_u32 v4, s43, v4")
    e("v_lshl_add_u32 v6, v7, 4, v6")
    e("s_lshl_b32 s46, s32, 16"); e("s_lshl_b32 s44, s35, 7"); e("s_add_u32 s46, s46, s44"); e("s_add_u32 s47, s46, 32768")
    e("s_waitcnt vmcnt(0) lgkmcnt(0)")
    for n in range(5):
        o = (n % 2) * 2304
        for th in range(2): e(f"ds_write_b128 v5, {v(16+(n*2+th)*4,4)} offset:{o + th*64}")
        for hf in range(2): e(f"ds_read_b128 {v(56+(n*2+hf)*4,4)}, v4 offset:{o + hf*8*144}")
    for n in range(5):
        e(f"s_waitcnt lgkmcnt({min(15, 4*(4-n))})")
        for hf in range(2):
            e(f"buffer_store_dwordx4 {v(56+(n*2+hf)*4,4)}, v6, s[28:31], s{46+hf} offen" + ("" if "wb" in EXP else " sc1"))
        e(f"s_add_u32 s46, s46, {8*65536}"); e(f"s_add_u32 s47, s47, {8*65536}")
    def publish(imm, tag):
        e("s_waitcnt vmcnt(0) lgkmcnt(0)")
        e("s_barrier")
        e("s_cmp_lg_u32 s32, 4"); e(f"s_cbranch_scc1 m_hnp{tag}")
        e("s_lshl_b32 s45, s35, 2"); e(f"s_add_u32 s45, s45, {FX}")
        set_flag(k, FLS, "s45", 0, "v7", "v8")
        k.label(f"m_hnp{tag}")
    e("s_load_dwordx8 s[64:71], s[0:1], 8")
    e("s_load_dwordx4 s[72:75], s[0:1], 40")
    e("s_cmp_ge_u32 s32, 4"); e("s_cbranch_scc1 m_hG")
    conv_params(k)
    k.label("m_hG")
    publish(192, "x")
    k.stamp(5)
    e("s_cmp_lt_u32 s32, 4"); e("s_cbranch_scc1 m_Lpost")
    e(f"v_mov_b32 v4, {W_PF + 8}"); e("v_mov_b32 v5, 4"); e("ds_write_b32 v4, v5")
    k.srd(24, 14, 15, WOF_BYTES, WS_WOF)
    e("s_lshl_b32 s36, s35, 2"); e("s_add_u32 s36, s36, s33")
    e("v_lshrrev_b32 v4, 3, v1"); e("v_mul_u32_u24 v111, 1280, v4"); e("v_and_b32 v5, 7, v1"); e("v_lshl_add_u32 v111, v5, 4, v111")
    e("s_mul_i32 s43, s33, 4608"); e(f"s_add_u32 s43, s43, {CONV0 + 3*CONV_B}")
    e("v_mul_u32_u24 v4, 144, v4"); e("v_lshl_add_u32 v4, v5, 4, v4"); e("v_add_u32 v4, s43, v4")
    e("v_bfe_u32 v5, v1, 2, 2"); e("v_lshl_add_u32 v5, v3, 2, v5"); e("v_mul_u32_u24 v5, 144, v5"); e("v_and_b32 v6, 3, v1"); e("v_lshl_add_u32 v5, v6, 3, v5"); e("v_add_u32 v5, s43, v5")
    e("v_lshlrev_b32 v6, 4, v1")
    k.vm = []
    for it in range(3):
        e(f"s_add_u32 s43, s36, {128*it}"); e("s_mul_i32 s44, s43, 205"); e("s_lshr_b32 s44, s44, 11"); e("s_mul_i32 s45, s44, 10"); e("s_sub_u32 s45, s43, s45")
        e("s_mul_i32 s46, s44, 40960"); e("s_lshl_b32 s47, s45, 7"); e("s_add_u32 s46, s46, s47")
        for d in range(4):
            e(f"s_lshl_b32 s47, s45, 2"); e(f"s_add_u32 s47, s47, {d}"); e("s_mul_i32 s34, s47, 52"); e("s_lshr_b32 s34, s34, 8")
            e("s_mul_i32 s34, s34, 130"); e("s_add_u32 s47, s47, s34"); e("s_mul_i32 s34, s44, 5"); e("s_add_u32 s47, s47, s34"); e("s_lshl_b32 s47, s47, 10")
            e("s_cmp_lt_u32 s43, 270"); e(f"s_cselect_b32 s{48+it*4+d}, s47, {HUGE}")
        for n in range(4):
            k.vmem(f"buffer_load_dwordx4 {v(16+it*16+n*4,4)}, v111, s[20:23], s46 offen", f"wo{it}")
            e("s_add_u32 s46, s46, 10240")
    for it in range(3):
        k.wait_vm(f"wo{it}")
        for n in range(4): e(f"ds_write_b128 v4, {v(16+it*16+n*4,4)} offset:{n*8*144}")
        for d in range(4):
            for hh in range(2): e(f"ds_read_b64_tr_b16 {v(64+it*16+d*4+hh*2,2)}, v5 offset:{hh*16*144 + d*32}")
    e("s_waitcnt lgkmcnt(0)")
    for it in range(3):
        for d in range(4): e(f"buffer_store_dwordx4 {v(64+it*16+d*4,4)}, v6, s[24:27], s{48+it*4+d} offen sc1")
    e(f"v_mov_b32 v4, {W_FX + 8}"); e("v_mov_b32 v5, 1"); e("v_lshlrev_b32 v7, 9, v1"); e("v_mov_b32 v9, s3")
    e("s_lshl_b32 s44, s35, 2"); e(f"s_add_u32 s44, s44, {FZ2}")
    e("s_mov_b64 exec, 1")
    e("s_waitcnt vmcnt(0)")
    e("ds_add_rtn_u32 v8, v4, v5")
    e("s_waitcnt lgkmcnt(0)")
    e("v_readfirstlane_b32 s43, v8")
    e("s_mov_b64 exec, -1")
    e("s_cmp_lg_u32 s43, 3"); e("s_cbranch_scc1 m_P2")
    e("s_lshl_b32 s45, s35, 2"); e(f"s_add_u32 s45, s45, {FK}")
    set_flag(k, FLS, "s45", 0, "v7", "v8")
    e("s_branch m_P2")

if __name__ == "__main__":
    import sys
    NAME = "parallel_sum__ssm_conv_s4d__mixer_gmlp__prompt"
    path = sys.argv[1] if len(sys.argv) > 1 else f"cdna_kernels/{NAME}.s"
    t, kd = gen_mega(NAME + "_kernel")
    hdr = open(f"cdna_kernels/{NAME}.s.ref").read().split("; Override launch")[0]
    lst = os.environ.get("LIST", "0") == "1"
    out = hdr + (f"; @launch kernel={NAME}_kernel grid=(256,1,1) block=(512,1,1) lds={LDS_TOTAL}\n" if lst else f"; @launch grid=(256,1,1) block=(512,1,1) lds={LDS_TOTAL}\n")
    out += '.amdgcn_target "amdgcn-amd-amdhsa--gfx950"\n.text\n' + t + '\ntext_end:\n.section .rodata,"a"\n.p2align 6\n' + kd + "\n"
    open(path, "w").write(out)
```

```python
from mega_common import *
FLS = 60
WS_ST1 = 27*MB
RING2 = 16384
CONV0 = 65536
CONV_B = 15360
YTILE = 81920
IMG = 22528
NSLOT = 2
ZD = int(os.environ.get('ZD', '24'))
ZSL = int(os.environ.get('ZSL', '2'))
ROTM = int(os.environ.get('ROTM', '0'))
WS_KC = 26*MB
KC_BYTES = 640 * 1536

def conv_params(k):
    e = k.e
    e("s_lshl_b32 s34, s2, 1"); e("s_add_u32 s34, s34, s32")
    e("s_lshl_b32 s56, s41, 4"); e("s_lshr_b32 s57, s42, 1"); e("s_add_u32 s56, s56, s57"); e("s_add_u32 s56, s56, 512")
    e("s_bitcmp1_b32 s42, 0"); e("s_cselect_b32 s56, s56, 1000")
    e("s_cmp_eq_u32 s32, 2"); e("s_cselect_b32 s34, s56, s34")
    e("s_cmp_eq_u32 s32, 3"); e("s_cselect_b32 s34, 1000, s34")
    e("s_lshl_b32 s56, s34, 8"); e("s_lshl_b32 s57, s34, 1")
    e("v_lshlrev_b32 v4, 2, v1"); e("v_mov_b32 v5, 0")
    e("s_waitcnt lgkmcnt(0)")
    for a in range(4):
        k.srd(28, 64+2*a, 65+2*a, 640*256)
        e(f"buffer_load_dword v{164+a}, v4, s[28:31], s56 offen")
    k.srd(28, 72, 73, 1280); e("buffer_load_ushort v13, v5, s[28:31], s57 offen")
    k.srd(28, 74, 75, 1280); e("buffer_load_ushort v14, v5, s[28:31], s57 offen")

def gen_mega(name):
    k = Kern(name)
    e = k.e
    e("s_cmp_ge_u32 s2, 256"); e("s_cbranch_scc1 m_end")
    k.stamp_init()
    e("s_load_dwordx2 s[4:5], s[0:1], 0")
    e("s_load_dwordx4 s[8:11], s[0:1], 64")
    e("s_load_dwordx4 s[12:15], s[0:1], 104")
    e("s_load_dwordx4 s[96:99], s[0:1], 88")
    e("v_and_b32 v1, 63, v0")
    e("v_lshrrev_b32 v2, 6, v0")
    e("s_and_b32 s41, s2, 7")
    e("v_readfirstlane_b32 s32, v2")
    e("s_lshr_b32 s42, s2, 3")
    e("s_and_b32 s33, s32, 3")
    e("s_cmp_ge_u32 s42, 28"); e("s_cbranch_scc1 m_helper")
    e("s_mul_i32 s43, s42, 37"); e("s_lshr_b32 s43, s43, 8")
    e("s_mul_i32 s44, s43, 7"); e("s_sub_u32 s44, s42, s44")
    e("s_lshr_b32 s35, s41, 1"); e("s_lshl_b32 s35, s35, 2"); e("s_add_u32 s35, s35, s43")
    e("s_and_b32 s36, s41, 1"); e("s_mul_i32 s36, s36, 7"); e("s_add_u32 s36, s36, s44")
    e("s_cmp_ge_u32 s32, 4"); e("s_cbranch_scc1 m_gemm1")
    e("s_mul_i32 s45, s44, 3"); e("s_mul_i32 s46, s43, 5"); e("s_lshr_b32 s46, s46, 1"); e("s_add_u32 s45, s45, s46")
    e("s_cmp_ge_u32 s45, 20"); e("s_cselect_b32 s46, 20, 0"); e("s_sub_u32 s45, s45, s46")
    e("s_cmp_ge_u32 s45, 10"); e("s_cselect_b32 s46, 10, 0"); e("s_sub_u32 s45, s45, s46")
    e("s_load_dwordx8 s[64:71], s[0:1], 8")
    e("s_load_dwordx4 s[72:75], s[0:1], 40")
    e("v_and_b32 v3, 7, v1")
    e("s_lshl_b32 s39, s32, 13")
    e("s_cmp_ge_u32 s32, 2"); e("s_cbranch_scc1 m_ldB")
    e("s_lshl_b32 s43, s35, 7"); e("s_lshl_b32 s44, s32, 6"); e("s_add_u32 s43, s43, s44")
    e("v_lshrrev_b32 v2, 5, v1"); e("v_lshlrev_b32 v2, 3, v2")
    e("v_bfe_u32 v4, v1, 3, 2"); e("v_add3_u32 v2, v2, v4, s43")
    e("v_mul_u32_u24 v2, 1280, v2")
    e("v_lshrrev_b32 v4, 4, v1"); e("v_xor_b32 v3, v3, v4")
    e("v_lshl_add_u32 v4, v3, 4, v2")
    e("v_xor_b32 v3, 4, v3"); e("v_lshl_add_u32 v5, v3, 4, v2")
    for n in range(8):
        ee, b, Pp = n & 1, (n >> 1) & 1, n >> 2
        e(f"v_add_u32 v{16+n}, {(32*Pp + 4*b + 16*ee)*1280 - (n & 3)*1024}, v{4+ee}")
    e("s_waitcnt lgkmcnt(0)")
    k.srd(16, 4, 5, 2048*1280)
    e("s_mov_b32 s38, 128")
    e("s_branch m_ld")
    k.label("m_ldB")
    e("v_lshrrev_b32 v2, 3, v1"); e("v_mul_u32_u24 v2, 3456, v2")
    e("s_cmp_eq_u32 s32, 2"); e("s_cselect_b32 s44, 1664, 0")
    e("s_lshl_b32 s43, s36, 7"); e("s_add_u32 s43, s43, s44"); e("v_add_u32 v2, s43, v2")
    e("v_bfe_u32 v4, v1, 4, 1"); e("v_lshlrev_b32 v4, 1, v4"); e("v_xor_b32 v3, v3, v4")
    e("v_lshl_add_u32 v4, v3, 4, v2")
    e("v_xor_b32 v3, 4, v3"); e("v_lshl_add_u32 v5, v3, 4, v2")
    for n in range(8):
        e(f"v_add_u32 v{16+n}, {8*n*3456 - (n & 3)*1024}, v{4+(n & 1)}")
    e("s_waitcnt lgkmcnt(0)")
    k.srd(16, 8, 9, 640*3456)
    e(f"s_mov_b32 s38, {64*3456}")
    k.label("m_ld")
    if "norot" in EXP: e("s_mov_b32 s45, 0")
    if "rot2" in EXP: e("s_and_b32 s45, s42, 1"); e("s_mul_i32 s45, s45, 5")
    if "rot3" in EXP: e("s_mul_i32 s45, s42, 86"); e("s_lshr_b32 s45, s45, 8"); e("s_mul_i32 s45, s45, 3"); e("s_sub_u32 s45, s42, s45"); e("s_mul_i32 s45, s45, 3")
    e("s_mul_i32 s37, s45, s38"); e("s_mul_i32 s46, s38, 10"); e("s_mov_b32 s40, 0")
    k.label("m_ldloop")
    e("s_cmp_lt_u32 s40, 3"); e("s_cbranch_scc1 m_ldissue")
    e("s_waitcnt vmcnt(16)")
    e("s_barrier")
    k.label("m_ldissue")
    for g in range(2):
        e(f"s_add_u32 m0, s39, {g*4096}")
        e("s_nop 0")
        for n in range(4): e(f"buffer_load_dwordx4 v{16+g*4+n}, s[16:19], s37 offen offset:{n*1024} lds")
    e("s_add_u32 s39, s39, 32768"); e("s_and_b32 s39, s39, 0x1ffff")
    e("s_add_u32 s37, s37, s38"); e("s_cmp_eq_u32 s37, s46"); e("s_cselect_b32 s37, 0, s37")
    e("s_add_u32 s40, s40, 1"); e("s_cmp_lt_u32 s40, 10"); e("s_cbranch_scc1 m_ldloop")
    k.stamp(1)
    k.srd(24, 14, 15, 32768, WS_ST1)
    k.srd(48, 12, 13, 256)
    e("v_bfe_u32 v4, v1, 2, 2"); e("v_lshlrev_b32 v4, 3, v4"); e("v_bfe_u32 v5, v1, 4, 1"); e("v_lshl_add_u32 v4, v5, 2, v4")
    e("v_and_b32 v5, 0x23, v1"); e("v_add_u32 v4, v4, v5"); e("v_lshlrev_b32 v232, 4, v4"); e("v_mov_b32 v233, 0")
    e("s_lshl_b32 s52, s35, 11"); e("s_and_b32 s43, s32, 1"); e("s_lshl_b32 s43, s43, 10"); e("s_add_u32 s52, s52, s43")
    e("buffer_load_dword v234, v233, s[48:51], 0 offen sc1")
    e("buffer_load_dwordx4 v[236:239], v232, s[24:27], s52 offen sc1")
    conv_params(k)
    e("s_getpc_b64 s[44:45]")
    k.label("m_pc")
    e(f"s_sub_u32 s44, s44, m_pc-{name}"); e("s_subb_u32 s45, s45, 0")
    e(f"s_mov_b32 s46, text_end-{name}"); e("s_mov_b32 s47, 0x00020000")
    e("s_and_b32 s43, s42, 15"); e("s_lshl_b32 s43, s43, 2"); e("s_add_u32 s43, s43, s33"); e("s_lshl_b32 s43, s43, 10")
    e("v_lshlrev_b32 v2, 4, v1")
    e("buffer_load_dwordx4 v[224:227], v2, s[44:47], s43 offen")
    TW = 1 if "tlb" in EXP else 0
    if TW:
        e("s_bitcmp1_b32 s32, 0"); e("s_cselect_b32 s44, s98, s14"); e("s_cselect_b32 s45, s99, s15"); e("s_cselect_b32 s43, 16, 19")
        e(f"s_mov_b32 s46, {2048*1280}"); e(f"s_cselect_b32 s46, s46, {28*MB}"); e("s_mov_b32 s47, 0x00020000")
        e("v_lshlrev_b32 v2, s43, v1")
        e("buffer_load_dword v228, v2, s[44:47], 0 offen")
    k.srd(20, 10, 11, 2048*4096)
    e("s_lshl_b32 s43, s42, 2"); e("s_add_u32 s43, s43, s32"); e(f"s_mul_i32 s43, s43, {9*1024+384}")
    e("s_lshl_b32 s44, s41, 20"); e("s_add_u32 s43, s43, s44")
    e("v_lshlrev_b32 v2, 4, v1")
    def pf(n):
        for i in range(n):
            e(f"buffer_load_dwordx4 v[224:227], v2, s[20:23], s43 offen offset:{(i%4)*1024}")
            if i % 4 == 3 or i == n - 1: e(f"s_add_u32 s43, s43, {(i%4+1)*1024}")
    if "pfe" in EXP:
        pf(10)
        e(f"s_waitcnt vmcnt({35+TW})"); e("s_barrier")
        e(f"s_waitcnt vmcnt({27+TW})"); e("s_barrier")
    else:
        e(f"s_waitcnt vmcnt({25+TW})"); e("s_barrier"); pf(4)
        e(f"s_waitcnt vmcnt({21+TW})"); e("s_barrier"); pf(6)
    e(f"s_waitcnt vmcnt({19+TW})"); e("s_barrier")
    e("s_cmp_ge_u32 s32, 2"); e("s_cbranch_scc1 m_st1ok")
    e(f"s_waitcnt vmcnt({17+TW})")
    e("s_mov_b32 s40, 0")
    e("s_branch m_st1chk")
    k.label("m_st1poll")
    e("buffer_load_dword v234, v233, s[48:51], 0 offen sc1")
    e("buffer_load_dwordx4 v[236:239], v232, s[24:27], s52 offen sc1")
    e("s_waitcnt vmcnt(0)")
    k.label("m_st1chk")
    e("v_xor_b32 v4, v237, v234"); e("v_xor_b32 v5, v239, v234"); e("v_or_b32 v4, v4, v5")
    e("v_cmp_ne_u32 vcc, 0, v4"); e("v_cmp_eq_u32 s[44:45], 0, v234"); e("s_add_u32 s40, s40, 1")
    e("s_or_b64 vcc, vcc, s[44:45]")
    e(f"s_cmp_ge_u32 s40, {SPIN}"); e("s_cbranch_scc1 m_st1w")
    e("s_cbranch_vccnz m_st1poll")
    k.label("m_st1w")
    e("s_lshl_b32 s44, s32, 8"); e(f"s_add_u32 s44, s44, {MISC}"); e("v_lshl_add_u32 v4, v1, 2, s44"); e(f"v_mov_b32 v5, {W_EPOCH}")
    e("ds_write_b32 v4, v236"); e("ds_write_b32 v4, v238 offset:512"); e("ds_write_b32 v5, v234")
    e("s_waitcnt lgkmcnt(0)")
    k.label("m_st1ok")
    e("s_barrier")
    k.label("m_Lpost")
    k.stamp(2)
    e(f"v_mov_b32 v4, {W_EPOCH}"); e("ds_read_b32 v5, v4")
    k.srd(FLS, 14, 15, FL_BYTES, WS_FL)
    e("v_and_b32 v2, 15, v1"); e("v_lshrrev_b32 v3, 4, v1")
    e("s_lshr_b32 s35, s41, 1"); e("s_lshl_b32 s35, s35, 3"); e("s_lshr_b32 s43, s42, 2"); e("s_add_u32 s35, s35, s43")
    e("s_waitcnt lgkmcnt(0)")
    e("v_readfirstlane_b32 s3, v5")
    e("s_cmp_lg_u32 s32, 3"); e("s_cbranch_scc1 m_conv")
    k.srd(16, 10, 11, 2048*4096)
    e("v_lshrrev_b32 v4, 5, v1"); e("v_lshlrev_b32 v4, 3, v4"); e("v_bfe_u32 v5, v1, 3, 2"); e("v_add_u32 v4, v4, v5")
    e("v_lshlrev_b32 v4, 12, v4")
    e("v_and_b32 v5, 7, v1"); e("v_xor_b32 v5, v5, v3")
    e("v_lshl_add_u32 v6, v5, 4, v4")
    e("v_xor_b32 v5, 4, v5"); e("v_lshl_add_u32 v7, v5, 4, v4")
    for n in range(8):
        ee, t = n & 1, n >> 1
        e(f"v_add_u32 v{16+n}, {(32*(t >> 1) + 4*(t & 1) + 16*ee)*4096 - (n & 3)*1024}, v{6+ee}")
    e("s_lshl_b32 s37, s35, 18")
    e(f"s_and_b32 s43, s35, {ROTM}"); e("s_lshl_b32 s43, s43, 8"); e("s_add_u32 s37, s37, s43")
    LATE = "late" in EXP
    def pfloop():
        e("s_mov_b32 s40, 0")
        k.label("m_pfloop")
        e("s_and_b32 s43, s40, 3"); e("s_lshr_b32 s44, s40, 2")
        e(f"s_mul_i32 s49, s43, {RING2}"); e("s_lshl_b32 s46, s44, 13"); e("s_add_u32 s49, s49, s46")
        e("s_lshl_b32 s43, s43, 10"); e("s_lshl_b32 s44, s44, 7"); e("s_add_u32 s43, s43, s44"); e("s_add_u32 s43, s43, s37")
        for g in range(2):
            e(f"s_add_u32 m0, s49, {g*4096}")
            e("s_nop 0")
            for n in range(4): e(f"buffer_load_dwordx4 v{16+g*4+n}, s[16:19], s43 offen offset:{n*1024} lds")
        e(f"s_waitcnt vmcnt({48 if LATE else 16})")
        e("s_add_u32 s40, s40, 1"); e("s_cmp_lt_u32 s40, 8"); e("s_cbranch_scc1 m_pfloop")
    if not LATE: pfloop()
    k.stamp(3)
    e("s_and_b32 s36, s41, 1"); e("s_lshl_b32 s36, s36, 2"); e("s_and_b32 s43, s42, 3"); e("s_add_u32 s36, s36, s43")
    e("s_cmp_eq_u32 s36, 7"); e("s_cselect_b32 s43, 31, 47")
    e("v_min_u32 v7, s43, v1"); e("v_lshlrev_b32 v7, 2, v7")
    e("s_lshl_b32 s45, s35, 3"); e("s_add_u32 s45, s45, s36"); e("s_lshl_b32 s45, s45, 8"); e(f"s_add_u32 s45, s45, {FZ2}")
    e(f"v_mov_b32 v4, {W_PF + 8}")
    lds_wait_ge(k, "m_wown1", "v4", 5, 1, 4, sleep=2)
    if LATE: pfloop()
    elif ZD: e(f"s_sleep {ZD}")
    poll_flags(k, "m_pollz", "v7", FLS, 1, 5, "v6", soff="s45", sleep=ZSL)
    e(f"v_mov_b32 v4, {W_PF}"); e("v_mov_b32 v5, 1")
    e("ds_write_b32 v4, v5")
    k.stamp(4)
    e("s_sleep 64")
    e("v_and_b32 v4, 31, v1"); e("v_lshlrev_b32 v4, 2, v4"); e(f"s_mov_b32 s44, {FK}")
    poll_flags(k, "m_pollx3", "v4", FLS, 1, 5, "v6", soff="s44", sleep=64)
    e(f"v_mov_b32 v4, {W_FX}"); e("v_mov_b32 v5, 1"); e("ds_write_b32 v4, v5")
    e("s_branch m_L3prep")
    k.label("m_conv")
    e("s_cmp_ge_u32 s34, 640"); e("s_cbranch_scc1 m_L3prep")
    e(f"s_mul_i32 s39, s32, {CONV_B}"); e(f"s_add_u32 s39, s39, {CONV0}")
    e("s_waitcnt vmcnt(10)")
    kgen_dt(k, "v13")
    kgen_addr(k, "s39", "v2", "v3", "v1")
    e("s_mov_b32 s40, 2")
    kgen_loop(k, 164, "v13", "s40")
    k.stamp(3)
    UO, KC = 8320, 12928
    e("v_lshlrev_b32 v15, 4, v1")
    e(f"s_mov_b32 s44, {FX}")
    e("v_and_b32 v220, 31, v1"); e("v_lshlrev_b32 v220, 2, v220")
    e("buffer_load_dword v216, v220, s[60:63], s44 offen sc1")
    e(f"s_add_u32 s43, s39, {KC}")
    e("v_max_u32 v4, 1, v3"); e("v_sub_u32 v4, 5, v4")
    e("v_lshlrev_b32 v5, v4, v2")
    e("v_lshlrev_b32 v6, 3, v3")
    e("v_mov_b32 v7, 512"); e("v_cmp_eq_u32 vcc, 2, v3"); e("s_nop 1"); e("v_cndmask_b32 v6, v6, v7, vcc")
    e("v_mov_b32 v7, 768"); e("v_mov_b32 v8, 4"); e("v_mov_b32 v9, 128"); e("v_cmp_eq_u32 vcc, 3, v3"); e("s_nop 1")
    e("v_cndmask_b32 v6, v6, v7, vcc"); e("v_cndmask_b32 v8, v8, v9, vcc")
    e("v_add3_u32 v5, v5, v6, s43")
    e("v_lshlrev_b32 v6, v4, 16"); e("v_add_u32 v6, v5, v6")
    e("v_add_u32 v7, v5, v8"); e("v_add_u32 v8, v6, v8")
    for n in range(8): e(f"v_cvt_pk_bf16_f32 v{24+n}, v{136+2*n}, v{137+2*n}")
    e("ds_write_b32 v5, v24"); e("ds_write_b32 v7, v25"); e("ds_write_b32 v6, v26"); e("ds_write_b32 v8, v27")
    e("v_lshlrev_b32 v9, 6, v2"); e("v_lshl_add_u32 v9, v3, 3, v9"); e("v_add_u32 v9, s43, v9")
    e("v_mov_b32 v20, 0"); e("v_mov_b32 v21, 0"); e("v_mov_b32 v22, 0"); e("v_mov_b32 v23, 0")
    e("v_add_u32 v16, s39, v15")
    e("v_lshl_add_u32 v17, v1, 3, s39")
    e(f"ds_write_b64 v17, v[20:21] offset:{UO}")
    e("v_cmp_gt_u32 vcc, 5, v2"); e("s_and_saveexec_b64 s[46:47], vcc")
    e("ds_write_b64 v9, v[28:29] offset:1024"); e("ds_write_b64 v9, v[30:31] offset:1056")
    e("s_mov_b64 exec, 3")
    e("ds_write_b128 v16, v[20:23] offset:4096"); e(f"ds_write_b128 v16, v[20:23] offset:{4160+4096}")
    e("s_mov_b64 exec, -1")
    e(f"s_add_u32 s44, s39, {KC + 256 - 2*0x4300}")
    e(f"v_mov_b32 v31, {f32(128.0)}")
    e("v_lshlrev_b32 v18, 3, v1"); e("v_cvt_f32_u32 v18, v18")
    e("s_waitcnt lgkmcnt(0)")
    for m in range(4):
        for el in range(10): e(f"v_sub_f32 v{96+el}, {f32(2047 - 512*m - el)}, v18")
        if m == 3: e("v_max_f32 v104, 0, v104")
        for p in range(5): e(f"v_cvt_pk_bf16_f32 v{108+p}, v{96+2*p}, v{97+2*p}")
        for el in range(9):
            a = f"v{114+el}"
            if el % 2 == 0: e(f"v_and_b32 {a}, 0xffff, v{108+el//2}")
            else: e(f"v_lshrrev_b32 {a}, 16, v{108+el//2}")
            e(f"v_lshl_add_u32 {a}, {a}, 1, s44")
            if m == 3:
                e(f"v_cvt_u32_f32 v19, v{96+el}"); e("v_lshl_add_u32 v19, v19, 1, s43")
                e(f"v_cmp_lt_f32 vcc, v{96+el}, v31"); e("s_nop 1"); e(f"v_cndmask_b32 {a}, {a}, v19, vcc")
        for el in range(9): e(f"ds_read_u16 v{144+9*m+el}, v{114+el}")
    e(f"s_mov_b32 s46, {FX}")
    poll_flags(k, "m_pollx", "v220", FLS, 1, 216, "v4", soff="s46", sleep=32, preloaded=True)
    k.stamp(4)
    k.srd(20, 14, 15, XT_BYTES, WS_XNT)
    k.srd(24, 14, 15, XT_BYTES, WS_YT)
    e("s_lshl_b32 s45, s34, 12")
    for n in range(4): e(f"buffer_load_dwordx4 {v(200+4*n,4)}, v15, s[20:23], s45 offen offset:{n*1024} sc1")
    e("s_waitcnt lgkmcnt(0)")
    e("v_cmp_eq_u32 vcc, 63, v1"); e("s_nop 1"); e(f"v_cndmask_b32 v{144+35}, v{144+35}, v20, vcc")
    for m in range(4):
        W = 32 + 16*m; E = 144 + 9*m
        for p in range(4):
            e(f"v_lshl_or_b32 v{W+p}, v{E+2*p+1}, 16, v{E+2*p}")
            e(f"v_lshl_or_b32 v{W+8+p}, v{E+2*p+2}, 16, v{E+2*p+1}")
        e(f"ds_write_b128 v16, {v(W,4)} offset:{1024*m}")
        e(f"ds_write_b128 v16, {v(W+8,4)} offset:{4160+1024*m}")
    e("s_waitcnt vmcnt(0)")
    for n in range(4): e(f"ds_write_b128 v16, {v(200+4*n,4)} offset:{UO+512+1024*n}")
    k.stamp(5)
    e("v_and_b32 v4, 1, v2"); e("v_xor_b32 v4, 1, v4"); e("v_mul_u32_u24 v4, 4160, v4")
    e("v_lshrrev_b32 v5, 1, v2"); e("v_lshlrev_b32 v6, 2, v3"); e("v_sub_u32 v5, v6, v5")
    e("v_lshl_add_u32 v4, v5, 2, v4"); e("v_add_u32 v4, s39, v4")
    for mp in range(4): e(f"v_add_u32 v{24+mp}, {4*(1023 - 8 - 128*(2*mp+1))}, v4")
    e("v_lshlrev_b32 v5, 5, v2"); e("v_lshl_add_u32 v5, v3, 4, v5")
    e(f"s_add_u32 s43, s39, {UO+480}"); e("v_add_u32 v28, s43, v5")
    def Af(m): return 32 + 4*m
    def Bf(r): return 64 + 4*r
    def ac(cb): return v(96 + 4*cb, 4)
    for i in range(32): e(f"v_mov_b32 v{96+i}, 0")
    e("v_lshlrev_b32 v14, 16, v14")
    e("s_waitcnt lgkmcnt(0)")
    def rdA(m):
        o = 0 if m & 1 else 128
        e(f"ds_read2_b32 {v(Af(m),2)}, v{24+m//2} offset0:{o} offset1:{o+1}"); e(f"ds_read2_b32 {v(Af(m)+2,2)}, v{24+m//2} offset0:{o+2} offset1:{o+3}")
    def rdB(r): e(f"ds_read_b128 {v(Bf(r),4)}, v28 offset:{512*r}")
    for m in range(8): rdA(m); rdB(7-m)
    e("s_mov_b32 s40, 8")
    k.label("m_cloop")
    for r in range(24, 29): e(f"v_subrev_u32 v{r}, 64, v{r}")
    for m in range(8):
        for cb in (range(7, -1, -1) if m == 0 else range(m, 8)):
            if m == 0: e(f"s_waitcnt lgkmcnt({min(3*cb, 15)})")
            e(f"{MFMA} {ac(cb)}, {v(Af(m),4)}, {v(Bf(cb-m),4)}, {ac(cb)}")
        rdA(m); rdB(7-m)
    e("s_sub_u32 s40, s40, 1"); e("s_cmp_lg_u32 s40, 0"); e("s_cbranch_scc1 m_cloop")
    k.stamp(6)
    e("s_waitcnt lgkmcnt(0)")
    e("v_lshlrev_b32 v20, 5, v2"); e("v_lshl_add_u32 v20, v3, 3, v20")
    e(f"s_add_u32 s43, s39, {UO+512}"); e("v_add_u32 v21, s43, v20")
    for cb in range(8): e(f"ds_read_b64 {v(32+2*cb,2)}, v21 offset:{512*cb}")
    e("s_waitcnt lgkmcnt(0)")
    for c0 in (0, 4):
        A = [96 + 4*cb + 2*p for cb in range(c0, c0+4) for p in range(2)]
        U = [32 + 2*cb + p for cb in range(c0, c0+4) for p in range(2)]
        for i in range(8): unpack(k, f"v{72+2*i}", f"v{73+2*i}", f"v{U[i]}")
        for i in range(8): e(f"v_pk_fma_f32 {pr(A[i])}, {pr(72+2*i)}, v[14:15], {pr(A[i])} op_sel_hi:[1,0,1]")
        for i in range(8): e(f"v_cvt_pk_bf16_f32 v{U[i]}, v{A[i]}, v{A[i]+1}")
        for cb in range(c0, c0+4): e(f"ds_write_b64 v21, {v(32+2*cb,2)} offset:{512*cb}")
    for n in range(4): e(f"ds_read_b128 {v(64+4*n,4)}, v16 offset:{UO+512+1024*n}")
    for n in range(4):
        e(f"s_waitcnt lgkmcnt({3-n})")
        e(f"buffer_store_dwordx4 {v(64+4*n,4)}, v15, s[24:27], s45 offen offset:{1024*n} sc1")
    e("s_lshl_b32 s43, s34, 2"); e(f"s_add_u32 s43, s43, {FY}")
    set_flag(k, FLS, "s43", 0, "v4", "v5")
    k.stamp(7)
    k.label("m_L3prep")
    e("s_and_b32 s36, s41, 1"); e("s_lshl_b32 s36, s36, 2"); e("s_and_b32 s43, s42, 3"); e("s_add_u32 s36, s36, s43")
    e("s_lshl_b32 s43, s33, 2"); e(f"s_add_u32 s43, s43, {W_GL}"); e("v_mov_b32 v4, s43")
    lds_wait(k, "m_wgl", "v4", "v5", sleep=8)
    e(f"v_mov_b32 v4, {W_FX}")
    lds_wait(k, "m_wfw", "v4", "v5")
    k.stamp(8)
    e("s_mul_i32 s46, s33, 15"); e("s_add_u32 s46, s46, 42")
    e("s_cmp_eq_u32 s33, 3"); e("s_cselect_b32 s47, 48, 15")
    e("s_branch m_P3")

    k.label("m_gemm1")
    e("v_and_b32 v2, 15, v1"); e("v_lshrrev_b32 v3, 4, v1")
    e("v_lshlrev_b32 v12, 4, v1")
    e("v_add_u32 v13, 4096, v12")
    PL = 200
    def poll_loads():
        for i in range(7):
            e(f"buffer_load_dwordx4 {v(PL+4*i,4)}, v{12 if i < 4 else 13}, s[28:31], s72 offen offset:{(i%4)*1024} sc1")
    e("v_mov_b32 v10, 0")
    e("v_and_b32 v4, 31, v1"); e(f"v_lshlrev_b32 v4, 2, v4"); e(f"v_add_u32 v4, {W_EPOCH}, v4")
    e("ds_write_b32 v4, v10")
    e("s_waitcnt lgkmcnt(0)")
    k.srd(64, 12, 13, 256)
    e("s_cmp_lg_u32 s2, 0"); e("s_cbranch_scc1 m_noep")
    e("s_cmp_lg_u32 s32, 4"); e("s_cbranch_scc1 m_noep")
    e("s_memrealtime s[44:45]"); e("s_waitcnt lgkmcnt(0)"); e("s_or_b32 s44, s44, 1"); e("v_mov_b32 v4, s44")
    e("s_mov_b64 exec, 1")
    e("buffer_store_dword v4, v10, s[64:67], 0 offen sc1")
    e("s_mov_b64 exec, -1")
    k.label("m_noep")
    e("s_lshl_b32 s43, s35, 2"); e("s_add_u32 s43, s43, s33"); e(f"s_mul_i32 s72, s43, {14*512}")
    e("s_lshl_b32 s44, s36, 9"); e("s_add_u32 s73, s72, s44")
    e("s_lshl_b32 s74, s36, 6"); e("s_add_u32 s74, s74, s43"); e("s_lshl_b32 s74, s74, 2")
    e("v_and_b32 v4, 7, v1"); e("v_lshl_add_u32 v4, v3, 3, v4"); e("v_bfe_u32 v5, v1, 3, 1"); e("v_lshlrev_b32 v5, 3, v5")
    e("v_lshl_add_u32 v230, v4, 4, v5")
    k.srd(28, 14, 15, ST2_BYTES, WS_ST2)
    k.srd(24, 14, 15, ZF_BYTES, WS_Z2F)
    k.srd(20, 14, 15, ZF_BYTES, WS_Z1F)
    k.srd(FLS, 14, 15, FL_BYTES, WS_FL)
    for c in range(4):
        e(f"s_xor_b32 s43, s33, {c}")
        e("s_lshl_b32 s44, s36, 2"); e("s_add_u32 s43, s43, s44"); e("s_sub_u32 s43, s43, 2")
        e(f"s_cmp_lt_u32 s43, 54"); e(f"s_cselect_b32 s{50+c}, -1, 0")
        e("s_cselect_b32 s43, s43, 60")
        e(f"s_lshl_b32 s{46+c}, s43, 16")
        e("s_lshl_b32 s44, s35, 2"); e("s_add_u32 s44, s44, s33"); e("s_lshl_b32 s44, s44, 10")
        e(f"s_add_u32 s{46+c}, s{46+c}, s44")
    for b in range(2):
        for g in range(2):
            e("s_lshr_b32 s43, s33, 1"); e(f"s_xor_b32 s43, s43, {g}"); e("s_lshl_b32 s44, s36, 1"); e("s_add_u32 s43, s43, s44")
            e("s_lshl_b32 s44, s35, 3"); e("s_lshl_b32 s45, s33, 1"); e("s_add_u32 s44, s44, s45"); e(f"s_add_u32 s44, s44, {b}")
            e("s_mul_i32 s44, s44, 27"); e("s_add_u32 s44, s44, s43"); e("s_lshl_b32 s44, s44, 10")
            e("s_cmp_lt_u32 s43, 27"); e(f"s_cselect_b32 s{68+b*2+g}, s44, {HUGE}")
    e("v_and_b32 v4, 2, v1"); e("v_and_b32 v5, 1, v1")
    e("v_cmp_ne_u32 s[54:55], 0, v4"); e("v_cmp_ne_u32 s[56:57], 0, v5")
    e("s_lshl_b32 s43, s33, 5")
    e("v_add_u32 v4, s43, v2"); e("v_lshlrev_b32 v4, 7, v4")
    e("v_lshrrev_b32 v5, 1, v2"); e("v_xor_b32 v5, v5, v3")
    e("v_lshl_add_u32 v14, v5, 4, v4")
    e("v_xor_b32 v15, 64, v14")
    e("v_bfe_u32 v4, v1, 2, 2")
    e("v_lshl_add_u32 v5, v3, 3, v4"); e("v_lshlrev_b32 v5, 7, v5")
    e("v_and_b32 v6, 3, v1"); e("v_lshl_add_u32 v5, v6, 3, v5")
    e("v_add_u32 v5, 16384, v5")
    e("v_lshrrev_b32 v6, 1, v4"); e("v_and_b32 v7, 1, v3"); e("v_lshl_or_b32 v6, v7, 1, v6")
    e("v_xor_b32 v6, s33, v6")
    for c in range(4):
        e(f"v_xor_b32 v7, {c}, v6"); e(f"v_lshl_add_u32 v{16+c}, v7, 5, v5")
    for i in range(4): e(f"v_mov_b32 v{20+i}, 0x3f803f80")
    ACC = 104
    for i in range(ACC, 192): e(f"v_mov_b32 v{i}, 0")
    def xf(ks, b): return v(24 + 40*ks + 4*b, 4)
    def wfb(ks, h, c): return 24 + 40*ks + 8 + 16*h + 4*c
    def wf(ks, h, c): return v(wfb(ks, h, c), 4)
    def accb(h, b, c): return ACC + 32*h + (b*4 + c)*4
    def acc(h, b, c): return v(accb(h, b, c), 4)
    def rlist(ks):
        L = [f"ds_read_b128 {xf(ks,b)}, v{14+ks} offset:{2048*b}" for b in range(2)]
        for h in range(2):
            for c in range(4):
                for hh in range(2):
                    L.append(f"ds_read_b64_tr_b16 {v(wfb(ks,h,c)+2*hh,2)}, v{16+c} offset:{h*8192+ks*4096+hh*512}")
        return L
    def mlist(ks):
        L = []
        for h in range(2):
            L.append(f"{MFMA} {v(184+4*h,4)}, v[20:23], {wf(ks,h,0)}, {v(184+4*h,4)}")
            for c in range(4):
                for b in range(2):
                    if h == 0: L.append(f"{MFMA} {acc(h,b,c)}, {xf(ks,b)}, {wf(ks,h,c)}, {acc(h,b,c)}")
                    else:      L.append(f"{MFMA} {acc(h,b,c)}, {wf(ks,h,c)}, {xf(ks,b)}, {acc(h,b,c)}")
        return L
    def phase(ks, rd, extra=()):
        M = mlist(ks); R = list(rd); X = list(extra)
        for i, m in enumerate(M):
            e(m)
            if R: e(R.pop(0))
            if R and i < 4: e(R.pop(0))
            elif X and not R:
                for _ in range(3):
                    if X: e(X.pop(0))
        for x in X: e(x)
    bump = [f"v_add_u32 v{r}, 0x8000, v{r}" for r in range(14, 20)]
    wrap = [f"v_and_b32 v{r}, 0x1ffff, v{r}" for r in range(14, 20)]
    e("s_lshl_b32 s43, s33, 6"); e(f"s_add_u32 s43, s43, {MISC+1024}"); e("v_lshl_add_u32 v196, v2, 2, s43")
    for c in range(4):
        e(f"s_xor_b32 s43, s33, {c}"); e(f"s_lshl_b32 s43, s43, 6"); e(f"s_add_u32 s43, s43, {MISC+1024}")
        e(f"v_lshl_add_u32 v{232+c}, v2, 2, s43"); e(f"v_lshl_add_u32 v{236+c}, v3, 4, s43")
    e("s_lshl_b32 s43, s33, 7"); e(f"s_add_u32 s43, s43, {MISC}")
    e("v_lshl_add_u32 v7, v2, 2, s43"); e("v_lshl_add_u32 v8, v3, 4, s43"); e(f"v_mov_b32 v9, {W_EPOCH}")
    k.stamp(1)
    e("s_mov_b32 s40, 10")
    e("s_barrier")
    k.stamp(2)
    for r in rlist(0): e(r)
    k.label("m_loop1")
    e("s_waitcnt lgkmcnt(0)")
    phase(0, rlist(1), bump + wrap)
    e("s_sub_u32 s40, s40, 1"); e("s_cmp_eq_u32 s40, 0")
    e("s_waitcnt lgkmcnt(0)")
    e(f"s_cbranch_scc1 m_tail1")
    e("s_barrier")
    phase(1, rlist(0))
    e(f"s_branch m_loop1")
    k.label(f"m_tail1")
    phase(1, [])
    e("s_setprio 2")
    k.stamp(3)
    epoch_poll = None
    e("ds_write_b32 v196, v184"); e("ds_write_b32 v196, v188 offset:256")
    e("s_waitcnt lgkmcnt(0)")
    e("s_barrier")
    e("ds_read_b128 v[24:27], v8"); e("ds_read_b128 v[28:31], v8 offset:64")
    e("ds_read_b128 v[32:35], v8 offset:512"); e("ds_read_b128 v[36:39], v8 offset:576")
    for c in range(4): e(f"ds_read_b32 v{40+2*c}, v{232+c}")
    e("ds_read_b32 v229, v9")
    for c in range(4): e(f"ds_read_b128 {v(64+4*c,4)}, v{236+c} offset:256")
    e("ds_read_b32 v80, v7"); e("ds_read_b32 v82, v7 offset:64"); e("ds_read_b32 v84, v7 offset:512"); e("ds_read_b32 v86, v7 offset:576")
    e(f"v_mov_b32 v88, {f32(GC1)}"); e(f"v_mov_b32 v90, {f32(GC0)}")
    e("s_waitcnt lgkmcnt(8)")
    e("v_readfirstlane_b32 s3, v229")
    e("s_cmp_lg_u32 s36, 0"); e("s_cbranch_scc1 m_nomask")
    for c in range(4):
        e(f"v_and_b32 v{40+2*c}, s{50+c}, v{40+2*c}")
        for b in range(2):
            for r in range(4): e(f"v_and_b32 v{accb(0,b,c)+r}, s{50+c}, v{accb(0,b,c)+r}")
    k.label("m_nomask")
    def gelu_pairs(A):
        n = len(A); T = [48 + 2*i for i in range(n)]
        for i in range(n): e(f"v_pk_mul_f32 {pr(T[i])}, {pr(A[i])}, {pr(A[i])}")
        for i in range(n): e(f"v_pk_fma_f32 {pr(T[i])}, {pr(T[i])}, v[88:89], v[90:91] op_sel_hi:[1,0,0]")
        for i in range(n): e(f"v_pk_mul_f32 {pr(T[i])}, {pr(T[i])}, {pr(A[i])}")
        for i in range(n): e(f"v_exp_f32 v{T[i]}, v{T[i]}"); e(f"v_exp_f32 v{T[i]+1}, v{T[i]+1}")
        for i in range(n): e(f"v_pk_add_f32 {pr(T[i])}, {pr(T[i])}, 1.0 op_sel_hi:[1,0]")
        for i in range(n): e(f"v_rcp_f32 v{T[i]}, v{T[i]}"); e(f"v_rcp_f32 v{T[i]+1}, v{T[i]+1}")
        for i in range(n): e(f"v_pk_mul_f32 {pr(A[i])}, {pr(A[i])}, {pr(T[i])}")
    for c0 in (0, 2):
        A = [accb(0, b, c) + 2*p for c in (c0, c0+1) for b in range(2) for p in range(2)]
        M = [24 + 4*b + 2*p for c in (c0, c0+1) for b in range(2) for p in range(2)]
        C = [40 + 2*c for c in (c0, c0+1) for b in range(2) for p in range(2)]
        for i in range(8): e(f"v_pk_fma_f32 {pr(A[i])}, {pr(M[i])}, {pr(C[i])}, {pr(A[i])} op_sel_hi:[1,0,1] neg_lo:[1,0,0] neg_hi:[1,0,0]")
        for i in range(8): e(f"v_pk_mul_f32 {pr(A[i])}, {pr(A[i])}, {pr(M[i]+8)}")
        gelu_pairs(A)
        for i in range(8):
            n = (i % 4) * 2
            e(f"v_pk_add_f32 {pr(168+n)}, {pr(168+n)}, {pr(A[i])}")
            e(f"v_pk_fma_f32 {pr(176+n)}, {pr(A[i])}, {pr(A[i])}, {pr(176+n)}")
    e("s_nop 0")
    for n in range(8): e(f"v_add_f32_dpp v{48+n}, v{168+n}, v{168+n} row_ror:8 row_mask:0xf bank_mask:0x3")
    for n in range(8): e(f"v_add_f32_dpp v{48+n}, v{176+n}, v{176+n} row_ror:8 row_mask:0xf bank_mask:0xc")
    for n in range(4): e(f"v_add_f32_dpp v{168+n}, v{48+n}, v{48+n} row_half_mirror row_mask:0xf bank_mask:0x5")
    for n in range(4): e(f"v_add_f32_dpp v{168+n}, v{52+n}, v{52+n} row_half_mirror row_mask:0xf bank_mask:0xa")
    for n in range(2):
        e(f"v_cndmask_b32 v{172+n}, v{170+n}, v{168+n}, s[54:55]")
        e(f"v_cndmask_b32 v{174+n}, v{168+n}, v{170+n}, s[54:55]")
    e("s_nop 0")
    for n in range(2): e(f"v_add_f32_dpp v{176+n}, v{172+n}, v{174+n} quad_perm:[2,3,0,1] row_mask:0xf bank_mask:0xf")
    e("v_cndmask_b32 v172, v177, v176, s[56:57]"); e("v_cndmask_b32 v174, v176, v177, s[56:57]")
    e("s_nop 1")
    e("v_add_f32_dpp v228, v172, v174 quad_perm:[1,0,3,2] row_mask:0xf bank_mask:0xf")
    e("buffer_store_dwordx2 v[228:229], v230, s[28:31], s73 offen sc1")
    e("s_setprio 0")
    k.stamp(4)
    e("s_waitcnt lgkmcnt(0)")
    P1 = 168
    for c0 in (0, 2):
        A = [accb(1, b, c) + 2*p for c in (c0, c0+1) for b in range(2) for p in range(2)]
        M = [80 + 2*b for c in (c0, c0+1) for b in range(2) for p in range(2)]
        C = [64 + 4*c + 2*p for c in (c0, c0+1) for b in range(2) for p in range(2)]
        for i in range(8): e(f"v_pk_fma_f32 {pr(A[i])}, {pr(M[i])}, {pr(C[i])}, {pr(A[i])} op_sel_hi:[0,1,1] neg_lo:[1,0,0] neg_hi:[1,0,0]")
        for i in range(8): e(f"v_pk_mul_f32 {pr(A[i])}, {pr(A[i])}, {pr(M[i]+4)} op_sel_hi:[1,0]")
        gelu_pairs(A)
        i = 0
        for c in (c0, c0+1):
            for b in range(2):
                for p in range(2):
                    e(f"v_cvt_pk_bf16_f32 v{P1+b*8+c*2+p}, v{A[i]}, v{A[i]+1}"); i += 1
        if c0 == 0: poll_loads()
    e("s_bitcmp1_b32 s33, 0"); e("s_cbranch_scc0 m_noswap")
    for b in range(2):
        for g in range(2):
            for p in range(2):
                r0 = P1 + b*8 + g*4 + p
                e(f"v_swap_b32 v{r0}, v{r0+2}")
    k.label("m_noswap")
    e("s_setprio 2")
    e("s_mov_b32 s40, 0")
    e("s_waitcnt vmcnt(0)")
    for b in range(2):
        for g in range(2):
            e(f"buffer_store_dwordx4 {v(P1+b*8+g*4,4)}, v12, s[20:23], s{68+b*2+g} offen sc1")
    e("s_branch m_check")
    k.label("m_poll")
    poll_loads()
    e("s_waitcnt vmcnt(0)")
    k.label("m_check")
    e(f"v_xor_b32 v4, v{PL+1}, v229"); e(f"v_xor_b32 v5, v{PL+3}, v229")
    for i in range(1, 7):
        e(f"v_xor_b32 v9, v{PL+1+4*i}, v229"); e(f"v_xor_b32 v10, v{PL+3+4*i}, v229")
        e("v_or3_b32 v4, v4, v9, v10")
    e("v_or_b32 v4, v4, v5")
    e("v_cmp_ne_u32 vcc, 0, v4")
    e("s_add_u32 s40, s40, 1")
    e("s_nop 0")
    e("s_cbranch_vccz m_poll_done")
    e(f"s_cmp_lt_u32 s40, {SPIN}"); e("s_cbranch_scc1 m_poll")
    k.label("m_poll_done")
    k.stamp(5)
    for i in range(1, 7):
        e(f"v_add_f32 v{PL}, v{PL}, v{PL+4*i}"); e(f"v_add_f32 v{PL+2}, v{PL+2}, v{PL+2+4*i}")
    e(f"v_mov_b32 v{PL+1}, v{PL}"); e(f"v_mov_b32 v{PL+3}, v{PL+2}"); e("s_nop 1")
    e(f"v_permlane32_swap_b32 v{PL}, v{PL+1}"); e(f"v_permlane32_swap_b32 v{PL+2}, v{PL+3}"); e("s_nop 1")
    e(f"v_add_f32 v24, v{PL}, v{PL+1}"); e(f"v_add_f32 v26, v{PL+2}, v{PL+3}")
    e(f"v_mul_f32 v24, {f32(1/864)}, v24"); e(f"v_mul_f32 v26, {f32(1/864)}, v26")
    e("v_fma_f32 v26, -v24, v24, v26")
    ln_finish(k, "v24", "v26", "v25")
    e("s_lshl_b32 s43, s33, 8"); e(f"s_add_u32 s43, s43, {MISC+1536}")
    e("v_and_b32 v4, 31, v1"); e("v_lshl_add_u32 v4, v4, 2, s43"); e("v_lshl_add_u32 v5, v3, 5, s43")
    e("v_mul_f32 v24, v24, v26")
    e("ds_write_b32 v4, v24"); e("ds_write_b32 v4, v26 offset:128")
    e("ds_read_b128 v[28:31], v5"); e("ds_read_b128 v[32:35], v5 offset:16")
    e("ds_read_b128 v[36:39], v5 offset:128"); e("ds_read_b128 v[40:43], v5 offset:144")
    e("s_waitcnt lgkmcnt(0)")
    for c0 in (0, 2):
        A = [accb(0, b, c) + 2*p for c in (c0, c0+1) for b in range(2) for p in range(2)]
        M = [28 + (i % 4)*2 for i in range(8)]
        for i in range(8): e(f"v_pk_fma_f32 {pr(A[i])}, {pr(A[i])}, {pr(M[i]+8)}, {pr(M[i])} neg_lo:[0,0,1] neg_hi:[0,0,1]")
        for i in range(8): e(f"v_cvt_pk_bf16_f32 v{64+4*c0+i}, v{A[i]}, v{A[i]+1}")
        for c in (c0, c0+1): e(f"buffer_store_dwordx4 {v(64+4*c,4)}, v12, s[24:27], s{46+c} offen sc1")
    e("s_lshl_b32 s43, s36, 2")
    e("s_mov_b32 s44, 0x33221000"); e("s_mov_b32 s45, 0x00766554"); e("s_lshr_b64 s[44:45], s[44:45], s43"); e("s_and_b32 s46, s44, 15")
    e("s_mov_b32 s44, 0x44322110"); e("s_mov_b32 s45, 0x00776655"); e("s_lshr_b64 s[44:45], s[44:45], s43"); e("s_and_b32 s47, s44, 15")
    for r in (46, 47):
        e(f"s_lshl_b32 s43, s{r}, 2"); e("s_lshr_b32 s44, 0xca865310, s43"); e("s_and_b32 s44, s44, 15")
        e("s_sub_u32 s44, s36, s44"); e("s_lshl_b32 s44, s44, 4"); e("s_add_u32 s44, s44, s35"); e("s_lshl_b32 s44, s44, 2")
        e(f"s_lshl_b32 s{r}, s{r}, 8"); e(f"s_add_u32 s{r}, s{r}, s44")
    e("v_mov_b32 v6, s46"); e("v_mov_b32 v7, s47"); e("v_cmp_lt_u32 vcc, 31, v1"); e("v_and_b32 v8, 31, v1"); e("v_lshlrev_b32 v8, 11, v8")
    e("v_cndmask_b32 v6, v6, v7, vcc"); e("v_add_u32 v6, v6, v8")
    e(f"v_mov_b32 v4, {W_PF + 8}"); e("v_mov_b32 v5, 1"); e("v_mov_b32 v7, s3"); e(f"s_mov_b32 s44, {FZ2}")
    e("s_mov_b64 exec, 1")
    e("s_waitcnt vmcnt(0)")
    e("ds_add_rtn_u32 v8, v4, v5")
    e("s_waitcnt lgkmcnt(0)")
    e("v_readfirstlane_b32 s43, v8")
    e("s_mov_b64 exec, -1")
    e("s_cmp_lg_u32 s43, 3"); e("s_cbranch_scc1 m_P2")
    e("buffer_store_dword v7, v6, s[60:63], s44 offen sc1")
    gen_p2(k)
    gen_p3(k)
    gen_helper(k, epoch_poll)
    k.label("m_end")
    e("s_endpgm")
    return k.text(256, nsgpr=100)

def gen_p2(k):
    e = k.e
    k.label("m_P2")
    k.stamp(6)
    e("s_load_dwordx2 s[6:7], s[0:1], 80")
    e("s_lshr_b32 s35, s41, 1"); e("s_lshl_b32 s35, s35, 3"); e("s_lshr_b32 s43, s42, 2"); e("s_add_u32 s35, s35, s43")
    e("s_and_b32 s36, s42, 3")
    e("s_and_b32 s43, s41, 1"); e("s_mul_i32 s43, s43, 27"); e("s_mul_i32 s44, s36, 7"); e("s_add_u32 s37, s43, s44")
    e("v_and_b32 v240, 15, v1"); e("v_lshrrev_b32 v241, 4, v1"); e("v_mov_b32 v245, v1")
    e("v_lshrrev_b32 v2, 5, v1"); e("v_lshlrev_b32 v2, 3, v2"); e("v_bfe_u32 v3, v1, 3, 2"); e("v_add_u32 v2, v2, v3")
    e("v_lshlrev_b32 v2, 12, v2")
    e("v_and_b32 v3, 7, v1"); e("v_xor_b32 v3, v3, v241")
    e("v_lshl_add_u32 v242, v3, 4, v2")
    e("v_xor_b32 v3, 4, v3")
    e("v_lshl_add_u32 v243, v3, 4, v2"); e(f"v_add_u32 v243, {16*4096 - 1024}, v243")
    e("v_lshlrev_b32 v244, 4, v1")
    e("s_lshl_b32 s43, s35, 18"); e("s_lshl_b32 s44, s33, 10"); e("s_add_u32 s48, s43, s44")
    e(f"s_add_u32 s49, s48, {4*4096}"); e(f"s_add_u32 s50, s48, {32*4096}"); e(f"s_add_u32 s51, s48, {36*4096}")
    e("s_lshl_b32 s43, s37, 16"); e("s_lshl_b32 s44, s33, 14"); e("s_add_u32 s52, s43, s44")
    for c in range(1, 7): e(f"s_add_u32 s{52+c}, s52, {c*65536}")
    e("s_cmp_eq_u32 s36, 3"); e(f"s_cselect_b32 s58, {HUGE}, s58")
    e(f"s_mul_i32 s39, s33, {RING2}")
    k.srd(16, 10, 11, 2048*4096)
    k.srd(20, 14, 15, ZF_BYTES, WS_Z2F)
    k.srd(24, 14, 15, ZF_BYTES, WS_Z1F)
    k.srd(28, 14, 15, ZF_BYTES, WS_HF)
    def Z(st, c): return v(112 + st*28 + c*4, 4)
    def acc(c, sg): return v((c*4 + sg)*4, 4)
    def wf(sg): return v(224 + 4*sg, 4)
    def issueZ(n):
        if n % 4 == 0 and n:
            for c in range(7): e(f"s_add_u32 s{52+c}, s{52+c}, 4096")
        for c in range(7): k.vmem(f"buffer_load_dwordx4 {Z(n%4,c)}, v244, s[20:23], s{52+c} offen offset:{(n%4)*1024} sc1", f"Z{n}")
    def issueA(c):
        for t in range(4):
            e(f"s_add_u32 m0, s39, {(c%NSLOT)*8192 + t*2048}")
            e("s_nop 0")
            k.vmem(f"buffer_load_dwordx4 v242, s[16:19], s{48+t} offen lds", f"A{c}")
            k.vmem(f"buffer_load_dwordx4 v243, s[16:19], s{48+t} offen offset:1024 lds", f"A{c}")
        for t in range(4): e(f"s_add_u32 s{48+t}, s{48+t}, 128")
    k.vm = []
    e("v_lshrrev_b32 v5, 1, v240"); e("v_xor_b32 v5, v5, v241")
    e("v_lshlrev_b32 v4, 7, v240"); e("v_lshl_add_u32 v4, v5, 4, v4"); e("v_add_u32 v4, s39, v4")
    for sg in range(4):
        e(f"s_xor_b32 s43, s33, {sg}"); e("s_lshl_b32 s43, s43, 11")
        e(f"v_add_u32 v{246+sg}, s43, v4")
        e(f"v_xor_b32 v{250+sg}, 64, v{246+sg}")
    e("s_setprio 0")
    e(f"v_mov_b32 v4, {W_PF}")
    lds_wait(k, "m_wpf", "v4", "v5", sleep=1)
    k.srd(64, 6, 7, 4096)
    e("s_setprio 3")
    k.stamp(7); k.cyc(12)
    k.vm = []
    def issueZ1(n, c):
        if n % 4 == 0 and n and c == 0: e("v_add_u32 v254, 4096, v254"); e("v_and_b32 v254, 0x3fff, v254")
        k.vmem(f"buffer_load_dwordx4 {Z(n%4,c)}, v254, s[20:23], s{52+c} offen offset:{(n%4)*1024} sc1", f"Z{n}_{c}")
    def issueA1(c, t):
        e(f"s_add_u32 m0, s39, {(c%NSLOT)*8192 + t*2048}")
        e("s_nop 0")
        e(f"s_add_u32 s47, s{48+t}, s59")
        k.vmem(f"buffer_load_dwordx4 v242, s[16:19], s47 offen lds", f"A{c}")
        k.vmem(f"buffer_load_dwordx4 v243, s[16:19], s47 offen offset:1024 lds", f"A{c}")
        if t == 3: e("s_add_u32 s59, s59, 128"); e("s_and_b32 s59, s59, 1023")
    e(f"s_and_b32 s43, s35, {ROTM}"); e("s_lshl_b32 s59, s43, 8"); e("s_add_u32 s59, s59, 256"); e("s_and_b32 s59, s59, 1023")
    e("s_lshl_b32 s43, s43, 12"); e("v_add_u32 v254, s43, v244")
    for n in range(4):
        for c in range(7): issueZ1(n, c)
    for n in range(16):
        c, ks = n >> 1, n & 1
        if ks == 0 and f"A{c}" in k.vm: k.wait_vm(f"A{c}")
        for sg in range(4):
            e(f"ds_read_b128 {wf(sg)}, v{(250 if ks else 246)+sg} offset:{(c%NSLOT)*8192}")
        if n == 15:
            if f"Z{n}_6" in k.vm: k.wait_vm(f"Z{n}_6")
            e("s_waitcnt lgkmcnt(0)")
            for sg in (1, 3, 2, 0):
                for cc in range(7): e(f"{MFMA} {acc(cc,sg)}, {Z(n%4,cc)}, {wf(sg)}, {acc(cc,sg)}")
            continue
        for cc in range(7):
            if f"Z{n}_{cc}" in k.vm: k.wait_vm(f"Z{n}_{cc}")
            if n == 0 and cc == 0: k.stamp(8)
            for sg in range(4):
                if cc == 0: e(f"s_waitcnt lgkmcnt({3-sg})")
                e(f"{MFMA} {acc(cc,sg)}, {Z(n%4,cc)}, {wf(sg)}, {'0' if n == 0 else acc(cc,sg)}")
            if n + 4 < 16: issueZ1(n + 4, cc)
            if ks == 1 and c + NSLOT < 8 and cc in (0, 2, 4, 6): issueA1(c + NSLOT, cc // 2)
        if n == 12:
            e("s_lshl_b32 s43, s35, 2"); e("s_add_u32 s43, s43, s33"); e("s_mul_i32 s44, s43, 27648")
            for cc in range(7):
                e(f"s_add_u32 s45, s37, {cc}"); e("s_lshr_b32 s46, s45, 1"); e("s_lshl_b32 s46, s46, 10"); e("s_and_b32 s45, s45, 1"); e("s_lshl_b32 s45, s45, 3")
                e("s_add_u32 s45, s45, s46"); e(f"s_add_u32 s{52+cc}, s45, s44")
            e("s_cmp_eq_u32 s36, 3"); e(f"s_cselect_b32 s58, {HUGE}, s58")
            for cc in range(7): k.vmem(f"buffer_load_dwordx2 {v(112+2*cc,2)}, v244, s[24:27], s{52+cc} offen sc1", "z1")
            e("s_lshr_b32 s44, s43, 1"); e("s_lshl_b32 s44, s44, 5"); e("s_and_b32 s45, s43, 1"); e("s_lshl_b32 s45, s45, 2"); e("s_add_u32 s44, s44, s45")
            e("v_lshrrev_b32 v128, 2, v240"); e("v_and_b32 v129, 3, v240"); e("v_lshl_add_u32 v128, v128, 3, v129"); e("v_add_u32 v128, s44, v128")
            e("v_lshlrev_b32 v128, 1, v128")
            k.vmem("buffer_load_ushort v126, v128, s[64:67], 0 offen", "z1")
        if n == 12:
            e("s_lshl_b32 s43, s33, 2"); e(f"s_add_u32 s43, s43, {W_GL}"); e("v_mov_b32 v254, s43"); e("v_mov_b32 v255, 1")
            e("ds_write_b32 v254, v255")
    k.stamp(9); k.cyc(13)
    e("v_add_u32 v130, s39, v244")
    e("s_xor_b32 s43, s33, 1"); e(f"s_mul_i32 s43, s43, {RING2}"); e("v_add_u32 v131, s43, v244")
    e("s_xor_b32 s43, s33, 3"); e(f"s_mul_i32 s43, s43, {RING2}"); e("v_add_u32 v132, s43, v244")
    e(f"v_add_u32 v133, {W_R1 - W_GL}, v254")
    e("v_xor_b32 v134, 4, v133"); e("v_xor_b32 v135, 8, v133"); e("v_add_u32 v135, 16, v135")
    for c in range(7):
        for h in range(2): e(f"ds_write_b128 v130, {acc(c,1+2*h)} offset:{(c*2+h)*1024}")
    e("ds_write_b32 v133, v255")
    lds_wait(k, "m_wr1", "v134", "v136")
    T = 140
    for h in (1, 0):
        for c in range(7): e(f"ds_read_b128 {v(T+(c*2+h)*4,4)}, v131 offset:{(c*2+h)*1024}")
    e("s_waitcnt lgkmcnt(7)")
    for c in range(7):
        for p in range(2):
            a = (c*4 + 2)*4 + 2*p
            e(f"v_pk_add_f32 {pr(a)}, {pr(a)}, {pr(T+(c*2+1)*4+2*p)}")
    e("s_waitcnt lgkmcnt(0)")
    for c in range(7): e(f"ds_write_b128 v131, {acc(c,2)} offset:{c*1024}")
    e("ds_write_b32 v133, v255 offset:16")
    for c in range(7):
        for p in range(2):
            a = (c*4)*4 + 2*p
            e(f"v_pk_add_f32 {pr(a)}, {pr(a)}, {pr(T+(c*2)*4+2*p)}")
    lds_wait(k, "m_wr2", "v135", "v136")
    for c in range(7): e(f"ds_read_b128 {v(T+c*4,4)}, v132 offset:{c*1024}")
    e("s_waitcnt vmcnt(0)")
    k.vm = []
    e("v_lshlrev_b32 v126, 16, v126")
    for i in range(14): unpack(k, f"v{170+2*i}", f"v{171+2*i}", f"v{112+i}")
    k.srd(16, 14, 15, WOF_BYTES, WS_WOF)
    e("s_and_b32 s43, s41, 1"); e("s_lshl_b32 s43, s43, 2"); e("s_add_u32 s45, s36, s43")
    e("s_xor_b32 s43, s33, 3"); e("s_lshl_b32 s46, s43, 4"); e("s_sub_i32 s46, s46, 22"); e("s_max_i32 s46, s46, 0")
    e("s_cmp_eq_u32 s43, 1"); e("s_cselect_b32 s47, 10, 16"); e("s_cmp_eq_u32 s43, 0"); e("s_cselect_b32 s47, 0, s47")
    e("s_lshl_b32 s46, s46, 10"); e("s_mul_i32 s48, s45, 138240"); e("s_add_u32 s48, s48, s46"); e(f"s_add_u32 s46, s46, {IMG}")
    e(f"v_mov_b32 v136, {W_FX}")
    lds_wait(k, "m_wfw2", "v136", "v137")
    e("s_cmp_eq_u32 s47, 0"); e("s_cbranch_scc1 m_gwodone")
    k.label("m_gwoloop")
    e("s_mov_b32 m0, s46"); e("s_add_u32 s46, s46, 2048")
    e("buffer_load_dwordx4 v244, s[16:19], s48 offen sc1 lds"); e("buffer_load_dwordx4 v244, s[16:19], s48 offen offset:1024 sc1 lds")
    e("s_add_u32 s48, s48, 2048"); e("s_sub_u32 s47, s47, 2"); e("s_cmp_lg_u32 s47, 0"); e("s_cbranch_scc1 m_gwoloop")
    k.label("m_gwodone")
    A = [c*16 + 2*p for c in range(7) for p in range(2)]
    for i in range(14): e(f"v_pk_add_f32 {pr(A[i])}, {pr(A[i])}, {pr(T+2*i)}")
    for i in range(14): e(f"v_pk_add_f32 {pr(A[i])}, {pr(A[i])}, v[126:127] op_sel_hi:[1,0]")
    for i in range(14): e(f"v_pk_mul_f32 {pr(A[i])}, {pr(A[i])}, {pr(170+2*i)}")
    for i in range(14): e(f"v_cvt_pk_bf16_f32 v{200+i}, v{A[i]}, v{A[i]+1}")
    e("s_bitcmp1_b32 s37, 0"); e("s_cbranch_scc1 m_hodd")
    for c in (0, 2, 4): e(f"buffer_store_dwordx4 {v(200+2*c,4)}, v244, s[28:31], s{52+c} offen sc1")
    e(f"buffer_store_dwordx2 {v(212,2)}, v244, s[28:31], s58 offen sc1")
    e("s_branch m_hdone")
    k.label("m_hodd")
    e(f"buffer_store_dwordx2 {v(200,2)}, v244, s[28:31], s52 offen sc1")
    for c in (1, 3): e(f"buffer_store_dwordx4 {v(200+2*c,4)}, v244, s[28:31], s{52+c} offen sc1")
    e("s_cmp_eq_u32 s36, 3"); e("s_cbranch_scc1 m_hodd6")
    e(f"buffer_store_dwordx4 {v(210,4)}, v244, s[28:31], s57 offen sc1")
    e("s_branch m_hdone")
    k.label("m_hodd6")
    e(f"buffer_store_dwordx2 {v(210,2)}, v244, s[28:31], s57 offen sc1")
    k.label("m_hdone")
    e("v_mov_b32 v1, v245")
    e("s_and_b32 s43, s41, 1"); e("s_lshl_b32 s43, s43, 2"); e("s_add_u32 s36, s36, s43")
    e(f"v_mov_b32 v4, {W_PF + 4}"); e("v_mov_b32 v5, 1"); e("v_lshlrev_b32 v6, 7, v1"); e("v_mov_b32 v7, s3")
    e("s_lshl_b32 s44, s35, 10"); e("s_lshl_b32 s45, s36, 2"); e("s_add_u32 s44, s44, s45"); e(f"s_add_u32 s44, s44, {FH2}")
    e("s_mov_b64 exec, 1")
    e("s_waitcnt vmcnt(0)")
    e("ds_add_rtn_u32 v8, v4, v5")
    e("s_waitcnt lgkmcnt(0)")
    e("v_readfirstlane_b32 s43, v8")
    e("s_mov_b64 exec, 0xff")
    e("s_cmp_lg_u32 s43, 3"); e("s_cbranch_scc1 m_nopub")
    e("buffer_store_dword v7, v6, s[60:63], s44 offen sc1")
    k.label("m_nopub")
    e("s_mov_b64 exec, -1")
    e("s_setprio 0")
    e("v_and_b32 v2, 15, v1"); e("v_lshrrev_b32 v3, 4, v1")
    e("s_mov_b32 s47, 0"); e("s_mov_b32 s46, 0")

def gen_p3(k):
    e = k.e
    k.label("m_P3")
    k.stamp(10)
    e("s_lshr_b32 s34, s32, 2")
    e("v_lshlrev_b32 v15, 4, v1")
    k.srd(16, 14, 15, WOF_BYTES, WS_WOF)
    k.srd(20, 14, 15, ZF_BYTES, WS_HF)
    k.srd(24, 4, 5, 2048*1280)
    k.srd(28, 98, 99, 2048*1280)
    e("s_lshl_b32 s46, s46, 10"); e("s_mul_i32 s48, s36, 138240"); e("s_add_u32 s48, s48, s46"); e(f"s_add_u32 s46, s46, {IMG}")
    e("s_cmp_eq_u32 s47, 0"); e("s_cbranch_scc1 m_wodone")
    k.label("m_woloop")
    e("s_mov_b32 m0, s46"); e("s_add_u32 s46, s46, 1024")
    e("buffer_load_dwordx4 v15, s[16:19], s48 offen sc1 lds")
    e("s_add_u32 s48, s48, 1024"); e("s_sub_u32 s47, s47, 1"); e("s_cmp_lg_u32 s47, 0"); e("s_cbranch_scc1 m_woloop")
    k.label("m_wodone")
    def H(g, sg): return v(16 + (g*2 + sg)*4, 4)
    def WF(g, db): return v(72 + (g*5 + db)*4, 4)
    def acc(sg, db): return v(212 + (sg*5 + db)*4, 4)
    e("s_cmp_eq_u32 s33, 3"); e(f"s_cselect_b32 s45, {HUGE}, 6144")
    e("s_and_b32 s43, s33, 1"); e("s_lshl_b32 s44, s34, 1"); e("s_add_u32 s57, s43, s44")
    e("s_lshr_b32 s58, s33, 1"); e("s_mul_i32 s58, s58, 3")
    e("s_lshr_b32 s43, s57, 1"); e("s_lshl_b32 s43, s43, 5"); e("s_and_b32 s44, s57, 1"); e("s_lshl_b32 s44, s44, 2"); e("s_add_u32 s59, s43, s44")
    e("s_lshl_b32 s43, s35, 6"); e("s_add_u32 s43, s43, s59")
    e("v_lshrrev_b32 v6, 2, v2"); e("v_and_b32 v7, 3, v2"); e("v_lshl_add_u32 v6, v6, 3, v7"); e("v_add_u32 v6, s43, v6")
    e("v_mul_u32_u24 v6, 1280, v6"); e("v_lshl_add_u32 v6, v3, 3, v6"); e("s_mul_i32 s43, s36, 160"); e("v_add_u32 v14, s43, v6")
    for i in range(3):
        e(f"s_add_u32 s43, s58, {i}"); e(f"s_min_u32 s{68+i}, s43, 4")
        e(f"s_lshl_b32 s{72+i}, s{68+i}, 5")
    k.srd(64, 14, 15, XT_BYTES, WS_YT)
    e("s_lshl_b32 s43, s35, 2"); e("s_lshl_b32 s44, s34, 1"); e("s_add_u32 s43, s43, s44"); e("s_mul_i32 s43, s43, 27"); e("s_mul_i32 s44, s33, 7"); e("s_add_u32 s43, s43, s44")
    e("s_lshl_b32 s46, s43, 10"); e("s_add_u32 s47, s46, 27648")
    e("s_add_u32 s48, s46, 4096"); e("s_add_u32 s49, s47, 4096"); e("s_add_u32 s50, s46, s45"); e("s_add_u32 s51, s47, s45")
    e("s_mul_i32 s43, s33, 35840"); e(f"s_add_u32 s43, s43, {IMG}"); e("v_add_u32 v252, s43, v15")
    e("s_cmp_eq_u32 s33, 3"); e("s_cselect_b32 s43, 5120, 0"); e("v_subrev_u32 v253, s43, v252")
    e("v_and_b32 v4, 7, v1"); e("v_lshlrev_b32 v4, 2, v4")
    e("s_lshl_b32 s44, s35, 10"); e("s_lshl_b32 s43, s36, 7"); e("s_add_u32 s44, s44, s43"); e(f"s_add_u32 s44, s44, {FH2}")
    e("v_min_u32 v254, 39, v1"); e("v_lshlrev_b32 v254, 3, v254")
    e("s_mul_i32 s52, s36, 320"); e(f"s_add_u32 s52, s52, {FY}")
    e("s_cmp_ge_u32 s32, 4"); e("s_cbranch_scc1 m_nwv")
    e("s_waitcnt vmcnt(0)")
    k.label("m_nwv")
    e("s_barrier")
    k.stamp(4)
    e("s_cmp_lg_u32 s32, 3"); e("s_cbranch_scc1 m_nhp")
    e("buffer_load_dword v5, v4, s[60:63], s44 offen sc1")
    k.label("m_nhp")
    e("s_cmp_lg_u32 s32, 2"); e("s_cbranch_scc1 m_nyp")
    e("buffer_load_dwordx2 v[248:249], v254, s[60:63], s52 offen sc1")
    k.label("m_nyp")
    for g in range(7):
        for db in range(5): e(f"ds_read_b128 {WF(g,db)}, v{253 if g == 6 else 252} offset:{g*5120 + db*1024}")
    for i in range(3): e(f"buffer_load_dwordx2 {v(8+2*i,2)}, v14, s[24:27], s{72+i} offen")
    e("v_lshrrev_b32 v244, 3, v1"); e("v_lshlrev_b32 v244, 12, v244"); e("v_and_b32 v245, 7, v1"); e("v_lshl_add_u32 v244, v245, 4, v244")
    e("s_mul_i32 s53, s36, 80"); e("s_lshl_b32 s43, s32, 3"); e("s_add_u32 s53, s53, s43"); e("s_lshl_b32 s53, s53, 12"); e("s_lshl_b32 s43, s35, 7"); e("s_add_u32 s53, s53, s43")
    e("s_cmp_lt_u32 s32, 2"); e(f"s_cselect_b32 s54, {64*4096}, 0"); e("s_cselect_b32 s55, 8192, 0"); e("s_add_u32 s54, s54, s53")
    e("s_lshl_b32 s43, s32, 10"); e(f"s_add_u32 s43, s43, {YTILE}"); e("v_add_u32 v246, s43, v15"); e("v_add_u32 v247, s55, v246")
    e("s_cmp_lg_u32 s32, 3"); e("s_cbranch_scc1 m_hw")
    poll_flags(k, "m_pollh", "v4", FLS, 1, 5, "v6", soff="s44", sleep=2, preloaded=True)
    k.label("m_hw")
    e("s_cmp_lg_u32 s32, 2"); e("s_cbranch_scc1 m_noy")
    poll_flags(k, "m_polly", "v254", FLS, 2, 248, "v5", soff="s52", sleep=8, preloaded=True)
    k.label("m_noy")
    e("s_waitcnt lgkmcnt(0)")
    e("s_barrier")
    k.stamp(11)
    k.vm = []
    k.vmem("buffer_load_dwordx4 v[236:239], v244, s[64:67], s53 offen sc1", "y")
    k.vmem("buffer_load_dwordx4 v[240:243], v244, s[64:67], s54 offen sc1", "y")
    for g in range(7):
        for sg in range(2):
            so = 46 + sg + (0 if g < 4 else 2 if g < 6 else 4)
            k.vmem(f"buffer_load_dwordx4 {H(g,sg)}, v15, s[20:23], s{so} offen offset:{(g%4)*1024 if g < 6 else 0} sc1", f"h{g}")
    e("s_mul_i32 s43, s32, 10240"); e("v_add_u32 v252, s43, v15")
    e("s_mul_i32 s43, s34, 40960"); e("s_and_b32 s44, s33, 1"); e("s_mul_i32 s44, s44, 5120"); e("s_add_u32 s43, s43, s44")
    e("v_bfe_u32 v4, v1, 2, 2"); e("v_lshl_add_u32 v4, v3, 2, v4"); e("v_lshlrev_b32 v4, 7, v4")
    e("v_and_b32 v5, 3, v1"); e("v_lshl_add_u32 v4, v5, 4, v4")
    e("s_lshl_b32 s44, s59, 1"); e(f"s_add_u32 s44, s44, {YTILE}"); e("v_add_u32 v4, s44, v4")
    for i in range(3):
        e(f"s_lshl_b32 s44, s{68+i}, 10"); e("s_add_u32 s44, s44, s43"); e(f"v_add_u32 v{253+i}, s44, v15")
        e(f"s_lshl_b32 s44, s{68+i}, 11"); e(f"v_add_u32 v{5+i}, s44, v4")
    for g in range(7):
        k.wait_vm(f"h{g}")
        if g == 0: e("ds_write_b128 v246, v[236:239]"); e("ds_write_b128 v247, v[240:243]"); e("s_waitcnt lgkmcnt(0)")
        for db in range(5):
            for sg in range(2):
                e(f"{MFMA} {acc(sg,db)}, {WF(g,db)}, {H(g,sg)}, {'0' if g == 0 else acc(sg,db)}")
    e("s_nop 2")
    e("s_nop 1")
    for db in range(5):
        for sg in range(2): e(f"ds_write_b128 v252, {acc(sg,db)} offset:{(sg*5+db)*1024}")
    for i in range(6): unpack(k, f"v{96+2*i}", f"v{97+2*i}", f"v{8+i}")
    e("s_waitcnt lgkmcnt(0)")
    e("s_barrier")
    for i in range(3): e(f"ds_read_b64_tr_b16 {v(24+2*i,2)}, v{5+i}")
    for i in range(3):
        for kq in range(4): e(f"ds_read_b128 {v(32+(i*4+kq)*4,4)}, v{253+i} offset:{kq*10240}")
    e("s_waitcnt lgkmcnt(12)")
    for n in range(6): unpack(k, f"v{112+2*n}", f"v{113+2*n}", f"v{24+n}")
    for n in range(6): e(f"v_pk_add_f32 {pr(96+2*n)}, {pr(96+2*n)}, {pr(112+2*n)}")
    e("s_waitcnt lgkmcnt(0)")
    A = [32 + i*16 + 2*p for i in range(3) for p in range(2)]
    for n in range(6): e(f"v_pk_add_f32 {pr(A[n])}, {pr(A[n])}, {pr(A[n]+4)}"); e(f"v_pk_add_f32 {pr(A[n]+8)}, {pr(A[n]+8)}, {pr(A[n]+12)}")
    for n in range(6): e(f"v_pk_add_f32 {pr(A[n])}, {pr(A[n])}, {pr(A[n]+8)}")
    for n in range(6): e(f"v_pk_add_f32 {pr(A[n])}, {pr(A[n])}, {pr(96+2*n)}")
    for n in range(6): e(f"v_cvt_pk_bf16_f32 v{24+n}, v{A[n]}, v{A[n]+1}")
    for i in range(3): e(f"buffer_store_dwordx2 {v(24+2*i,2)}, v14, s[28:31], s{72+i} offen")
    e("s_lshl_b32 s43, s2, 3"); e("s_add_u32 s43, s43, s32"); e("s_cmp_lg_u32 s43, 4"); e("s_cbranch_scc1 m_fin")
    k.srd(64, 12, 13, 256)
    e("v_mov_b32 v4, 0"); e("s_mov_b64 exec, 1")
    e("buffer_store_dword v4, v4, s[64:67], 0 offen sc1")
    k.label("m_fin")
    k.end(0)

def gen_helper(k, epoch_poll):
    e = k.e
    k.label("m_helper")
    e("s_lshl_b32 s35, s41, 2"); e("s_add_u32 s35, s35, s42"); e("s_sub_u32 s35, s35, 28")
    e("v_and_b32 v2, 15, v1"); e("v_lshrrev_b32 v3, 4, v1")
    e("s_lshl_b32 s43, s32, 3")
    e("v_add_u32 v4, s43, v3")
    e("s_lshl_b32 s44, s35, 6")
    e("v_add_u32 v5, s44, v4"); e("v_mul_u32_u24 v5, 1280, v5"); e("v_lshl_add_u32 v5, v2, 4, v5")
    e("v_add_u32 v6, 5120, v5")
    e("v_mul_u32_u24 v7, 1296, v4"); e("v_lshl_add_u32 v7, v2, 4, v7")
    e("v_mov_b32 v110, 0")
    e("v_and_b32 v4, 31, v1"); e(f"v_lshlrev_b32 v4, 2, v4"); e(f"v_add_u32 v4, {W_EPOCH}, v4")
    e("s_cmp_lg_u32 s32, 4"); e("s_cbranch_scc1 m_hnoclr")
    e("ds_write_b32 v4, v110")
    k.label("m_hnoclr")
    e("s_waitcnt lgkmcnt(0)")
    k.srd(16, 4, 5, 2048*1280)
    k.srd(28, 14, 15, XT_BYTES, WS_XNT)
    k.srd(64, 12, 13, 256)
    k.srd(FLS, 14, 15, FL_BYTES, WS_FL)
    k.srd(20, 96, 97, 864*1280)
    k.vm = []
    for g in range(2):
        for n in range(5):
            k.vmem(f"buffer_load_dwordx4 {v(8+g*20+n*4,4)}, v{5+g}, s[16:19], 0 offen offset:{n*256}", f"x{g}")
    XB = (48, 128)
    for g in range(2):
        k.stamp(1+2*g)
        k.wait_vm(f"x{g}")
        if g == 0: k.vmem("buffer_load_dword v111, v110, s[64:67], 0 offen sc1", "ep")
        X = XB[g]; src = 8 + g*20; M, R = 112 + 4*g, 114 + 4*g
        for n in range(20): unpack(k, f"v{X+2*n}", f"v{X+2*n+1}", f"v{src+n}")
        e(f"v_pk_add_f32 v[88:89], {pr(X)}, {pr(X+4)}"); e(f"v_pk_add_f32 v[90:91], {pr(X+2)}, {pr(X+6)}")
        for n in range(4, 20): e(f"v_pk_add_f32 {pr(88+2*(n%2))}, {pr(88+2*(n%2))}, {pr(X+2*n)}")
        e("v_pk_add_f32 v[88:89], v[88:89], v[90:91]"); e("s_nop 0"); e("v_add_f32 v88, v88, v89")
        for sh in (8, 4, 2, 1):
            e("s_nop 1"); e(f"v_add_f32_dpp v88, v88, v88 row_ror:{sh} row_mask:0xf bank_mask:0xf")
        e(f"v_mul_f32 v{M}, {f32(1/640)}, v88")
        for a_ in range(4): e(f"v_mov_b32 v{92+a_}, 0")
        for n0 in range(0, 20, 4):
            for a_ in range(4): e(f"v_pk_add_f32 {pr(96+2*a_)}, {pr(X+2*(n0+a_))}, {pr(M)} op_sel_hi:[1,0] neg_lo:[0,1] neg_hi:[0,1]")
            for a_ in range(4): e(f"v_pk_fma_f32 {pr(92+2*(a_%2))}, {pr(96+2*a_)}, {pr(96+2*a_)}, {pr(92+2*(a_%2))}")
        e("v_pk_add_f32 v[92:93], v[92:93], v[94:95]"); e("s_nop 0"); e("v_add_f32 v92, v92, v93")
        for sh in (8, 4, 2, 1):
            e("s_nop 1"); e(f"v_add_f32_dpp v92, v92, v92 row_ror:{sh} row_mask:0xf bank_mask:0xf")
        e(f"v_mul_f32 v{R}, {f32(1/640)}, v92")
        ln_finish(k, f"v{M}", f"v{R}", "v89")
    e("s_mov_b32 s40, 0")
    k.label("m_hep")
    e("s_waitcnt vmcnt(0)")
    e("v_readfirstlane_b32 s3, v111")
    e("s_add_u32 s40, s40, 1")
    e("s_cmp_lg_u32 s3, 0"); e("s_cbranch_scc1 m_hepok")
    e("buffer_load_dword v111, v110, s[64:67], 0 offen sc1")
    e(f"s_cmp_lt_u32 s40, {SPIN}"); e("s_cbranch_scc1 m_hep")
    k.label("m_hepok")
    k.vm = []
    k.srd(24, 14, 15, 32768, WS_ST1)
    for r in (113, 115, 117, 119): e(f"v_mov_b32 v{r}, v111")
    e("s_lshl_b32 s43, s35, 10"); e("s_lshl_b32 s44, s32, 7"); e("s_add_u32 s43, s43, s44"); e("v_lshlrev_b32 v5, 4, v3")
    e("v_cmp_eq_u32 vcc, 0, v2"); e("s_and_saveexec_b64 s[44:45], vcc")
    e("buffer_store_dwordx4 v[112:115], v5, s[24:27], s43 offen sc1"); e("buffer_store_dwordx4 v[116:119], v5, s[24:27], s43 offen offset:64 sc1")
    e("s_mov_b64 exec, -1")
    k.stamp(2)
    e("v_lshlrev_b32 v120, 4, v1")
    e("s_lshl_b32 s43, s35, 3"); e("s_add_u32 s43, s43, s32"); e("s_mul_i32 s43, s43, 4352")
    for n in range(4): e(f"buffer_load_dwordx4 v[124:127], v120, s[20:23], s43 offen offset:{n*1024}")
    e("s_add_u32 s43, s43, 4096")
    e(f"buffer_load_dwordx4 v[124:127], v120, s[20:23], s43 offen")
    for g in range(2):
        X = XB[g]; src = 8 + g*20; M, R = 112 + 4*g, 114 + 4*g
        for n in range(20): e(f"v_pk_add_f32 {pr(X+2*n)}, {pr(X+2*n)}, {pr(M)} op_sel_hi:[1,0] neg_lo:[0,1] neg_hi:[0,1]")
        for n in range(20): e(f"v_pk_mul_f32 {pr(X+2*n)}, {pr(X+2*n)}, {pr(R)} op_sel_hi:[1,0]")
        for n in range(20): e(f"v_cvt_pk_bf16_f32 v{src+n}, v{X+2*n}, v{X+2*n+1}")
        for n in range(5):
            e(f"ds_write_b128 v7, {v(src+4*n,4)} offset:{g*4*1296 + n*256}")
    e(f"v_mov_b32 v9, {W_EPOCH}")
    e("s_cmp_lg_u32 s32, 4"); e("s_cbranch_scc1 m_hepdone")
    e("ds_write_b32 v9, v111")
    k.label("m_hepdone")
    e("s_waitcnt lgkmcnt(0)")
    e("s_barrier")
    k.stamp(4)
    e("v_bfe_u32 v4, v1, 2, 2"); e("v_lshl_add_u32 v4, v3, 3, v4"); e("v_mul_u32_u24 v4, 1296, v4")
    e("v_and_b32 v5, 3, v1"); e("v_lshl_add_u32 v4, v5, 3, v4")
    e("s_lshl_b32 s43, s32, 5"); e("v_add_u32 v4, s43, v4")
    e(f"v_add_u32 v5, {32*1296}, v4")
    for n in range(5):
        for th in range(2):
            for hh in range(2):
                e(f"ds_read_b64_tr_b16 {v(16+(n*2+th)*4+hh*2,2)}, v{4+th} offset:{hh*4*1296 + n*256}")
    e("s_mul_i32 s43, s32, 4608"); e("s_add_u32 s43, s43, 90112")
    e("v_mul_u32_u24 v5, 144, v2"); e("v_lshl_add_u32 v5, v3, 4, v5"); e("v_add_u32 v5, s43, v5")
    e("v_lshrrev_b32 v4, 3, v1"); e("v_lshlrev_b32 v6, 12, v4"); e("v_mul_u32_u24 v4, 144, v4"); e("v_and_b32 v7, 7, v1"); e("v_lshl_add_u32 v4, v7, 4, v4"); e("v_add_u32 v4, s43, v4")
    e("v_lshl_add_u32 v6, v7, 4, v6")
    e("s_lshl_b32 s46, s32, 16"); e("s_lshl_b32 s44, s35, 7"); e("s_add_u32 s46, s46, s44"); e("s_add_u32 s47, s46, 32768")
    e("s_waitcnt vmcnt(0) lgkmcnt(0)")
    for n in range(5):
        o = (n % 2) * 2304
        for th in range(2): e(f"ds_write_b128 v5, {v(16+(n*2+th)*4,4)} offset:{o + th*64}")
        for hf in range(2): e(f"ds_read_b128 {v(56+(n*2+hf)*4,4)}, v4 offset:{o + hf*8*144}")
    for n in range(5):
        e(f"s_waitcnt lgkmcnt({min(15, 4*(4-n))})")
        for hf in range(2):
            e(f"buffer_store_dwordx4 {v(56+(n*2+hf)*4,4)}, v6, s[28:31], s{46+hf} offen" + ("" if "wb" in EXP else " sc1"))
        e(f"s_add_u32 s46, s46, {8*65536}"); e(f"s_add_u32 s47, s47, {8*65536}")
    def publish(imm, tag):
        e("s_waitcnt vmcnt(0) lgkmcnt(0)")
        e("s_barrier")
        e("s_cmp_lg_u32 s32, 4"); e(f"s_cbranch_scc1 m_hnp{tag}")
        e("s_lshl_b32 s45, s35, 2"); e(f"s_add_u32 s45, s45, {FX}")
        set_flag(k, FLS, "s45", 0, "v7", "v8")
        k.label(f"m_hnp{tag}")
    e("s_load_dwordx8 s[64:71], s[0:1], 8")
    e("s_load_dwordx4 s[72:75], s[0:1], 40")
    e("s_cmp_ge_u32 s32, 4"); e("s_cbranch_scc1 m_hG")
    conv_params(k)
    k.label("m_hG")
    publish(192, "x")
    k.stamp(5)
    e("s_cmp_lt_u32 s32, 4"); e("s_cbranch_scc1 m_Lpost")
    e(f"v_mov_b32 v4, {W_PF + 8}"); e("v_mov_b32 v5, 4"); e("ds_write_b32 v4, v5")
    k.srd(24, 14, 15, WOF_BYTES, WS_WOF)
    e("s_lshl_b32 s36, s35, 2"); e("s_add_u32 s36, s36, s33")
    e("v_lshrrev_b32 v4, 3, v1"); e("v_mul_u32_u24 v111, 1280, v4"); e("v_and_b32 v5, 7, v1"); e("v_lshl_add_u32 v111, v5, 4, v111")
    e("s_mul_i32 s43, s33, 4608"); e(f"s_add_u32 s43, s43, {CONV0 + 3*CONV_B}")
    e("v_mul_u32_u24 v4, 144, v4"); e("v_lshl_add_u32 v4, v5, 4, v4"); e("v_add_u32 v4, s43, v4")
    e("v_bfe_u32 v5, v1, 2, 2"); e("v_lshl_add_u32 v5, v3, 2, v5"); e("v_mul_u32_u24 v5, 144, v5"); e("v_and_b32 v6, 3, v1"); e("v_lshl_add_u32 v5, v6, 3, v5"); e("v_add_u32 v5, s43, v5")
    e("v_lshlrev_b32 v6, 4, v1")
    k.vm = []
    for it in range(3):
        e(f"s_add_u32 s43, s36, {128*it}"); e("s_mul_i32 s44, s43, 205"); e("s_lshr_b32 s44, s44, 11"); e("s_mul_i32 s45, s44, 10"); e("s_sub_u32 s45, s43, s45")
        e("s_mul_i32 s46, s44, 40960"); e("s_lshl_b32 s47, s45, 7"); e("s_add_u32 s46, s46, s47")
        for d in range(4):
            e(f"s_lshl_b32 s47, s45, 2"); e(f"s_add_u32 s47, s47, {d}"); e("s_mul_i32 s34, s47, 52"); e("s_lshr_b32 s34, s34, 8")
            e("s_mul_i32 s34, s34, 130"); e("s_add_u32 s47, s47, s34"); e("s_mul_i32 s34, s44, 5"); e("s_add_u32 s47, s47, s34"); e("s_lshl_b32 s47, s47, 10")
            e("s_cmp_lt_u32 s43, 270"); e(f"s_cselect_b32 s{48+it*4+d}, s47, {HUGE}")
        for n in range(4):
            k.vmem(f"buffer_load_dwordx4 {v(16+it*16+n*4,4)}, v111, s[20:23], s46 offen", f"wo{it}")
            e("s_add_u32 s46, s46, 10240")
    for it in range(3):
        k.wait_vm(f"wo{it}")
        for n in range(4): e(f"ds_write_b128 v4, {v(16+it*16+n*4,4)} offset:{n*8*144}")
        for d in range(4):
            for hh in range(2): e(f"ds_read_b64_tr_b16 {v(64+it*16+d*4+hh*2,2)}, v5 offset:{hh*16*144 + d*32}")
    e("s_waitcnt lgkmcnt(0)")
    for it in range(3):
        for d in range(4): e(f"buffer_store_dwordx4 {v(64+it*16+d*4,4)}, v6, s[24:27], s{48+it*4+d} offen sc1")
    e(f"v_mov_b32 v4, {W_FX + 8}"); e("v_mov_b32 v5, 1"); e("v_lshlrev_b32 v7, 9, v1"); e("v_mov_b32 v9, s3")
    e("s_lshl_b32 s44, s35, 2"); e(f"s_add_u32 s44, s44, {FZ2}")
    e("s_mov_b64 exec, 1")
    e("s_waitcnt vmcnt(0)")
    e("ds_add_rtn_u32 v8, v4, v5")
    e("s_waitcnt lgkmcnt(0)")
    e("v_readfirstlane_b32 s43, v8")
    e("s_mov_b64 exec, -1")
    e("s_cmp_lg_u32 s43, 3"); e("s_cbranch_scc1 m_P2")
    e("s_lshl_b32 s45, s35, 2"); e(f"s_add_u32 s45, s45, {FK}")
    set_flag(k, FLS, "s45", 0, "v7", "v8")
    e("s_branch m_P2")

if __name__ == "__main__":
    import sys
    NAME = "parallel_sum__ssm_conv_s4d__mixer_gmlp__prompt"
    path = sys.argv[1] if len(sys.argv) > 1 else f"cdna_kernels/{NAME}.s"
    t, kd = gen_mega(NAME + "_kernel")
    hdr = open(f"cdna_kernels/{NAME}.s.ref").read().split("; Override launch")[0]
    lst = os.environ.get("LIST", "0") == "1"
    out = hdr + (f"; @launch kernel={NAME}_kernel grid=(256,1,1) block=(512,1,1) lds={LDS_TOTAL}\n" if lst else f"; @launch grid=(256,1,1) block=(512,1,1) lds={LDS_TOTAL}\n")
    out += '.amdgcn_target "amdgcn-amd-amdhsa--gfx950"\n.text\n' + t + '\ntext_end:\n.section .rodata,"a"\n.p2align 6\n' + kd + "\n"
    open(path, "w").write(out)
```

```python
from mega_common import *
FLS = 60
WS_ST1 = 27*MB
RING2 = 16384
CONV0 = 65536
CONV_B = 15360
YTILE = 81920
IMG = 22528
NSLOT = 2
ZD = int(os.environ.get('ZD', '24'))
ZSL = int(os.environ.get('ZSL', '2'))
ROTM = int(os.environ.get('ROTM', '0'))
WS_KC = 26*MB
KC_BYTES = 640 * 1536

def conv_params(k):
    e = k.e
    e("s_lshl_b32 s34, s2, 1"); e("s_add_u32 s34, s34, s32")
    e("s_lshl_b32 s56, s41, 4"); e("s_lshr_b32 s57, s42, 1"); e("s_add_u32 s56, s56, s57"); e("s_add_u32 s56, s56, 512")
    e("s_bitcmp1_b32 s42, 0"); e("s_cselect_b32 s56, s56, 1000")
    e("s_cmp_eq_u32 s32, 2"); e("s_cselect_b32 s34, s56, s34")
    e("s_cmp_eq_u32 s32, 3"); e("s_cselect_b32 s34, 1000, s34")
    e("s_lshl_b32 s56, s34, 8"); e("s_lshl_b32 s57, s34, 1")
    e("v_lshlrev_b32 v4, 2, v1"); e("v_mov_b32 v5, 0")
    e("s_waitcnt lgkmcnt(0)")
    for a in range(4):
        k.srd(28, 64+2*a, 65+2*a, 640*256)
        e(f"buffer_load_dword v{164+a}, v4, s[28:31], s56 offen")
    k.srd(28, 72, 73, 1280); e("buffer_load_ushort v13, v5, s[28:31], s57 offen")
    k.srd(28, 74, 75, 1280); e("buffer_load_ushort v14, v5, s[28:31], s57 offen")

def gen_mega(name):
    k = Kern(name)
    e = k.e
    e("s_cmp_ge_u32 s2, 256"); e("s_cbranch_scc1 m_end")
    k.stamp_init()
    e("s_load_dwordx2 s[4:5], s[0:1], 0")
    e("s_load_dwordx4 s[8:11], s[0:1], 64")
    e("s_load_dwordx4 s[12:15], s[0:1], 104")
    e("s_load_dwordx4 s[96:99], s[0:1], 88")
    e("v_and_b32 v1, 63, v0")
    e("v_lshrrev_b32 v2, 6, v0")
    e("s_and_b32 s41, s2, 7")
    e("v_readfirstlane_b32 s32, v2")
    e("s_lshr_b32 s42, s2, 3")
    e("s_and_b32 s33, s32, 3")
    e("s_cmp_ge_u32 s42, 28"); e("s_cbranch_scc1 m_helper")
    e("s_mul_i32 s43, s42, 37"); e("s_lshr_b32 s43, s43, 8")
    e("s_mul_i32 s44, s43, 7"); e("s_sub_u32 s44, s42, s44")
    e("s_lshr_b32 s35, s41, 1"); e("s_lshl_b32 s35, s35, 2"); e("s_add_u32 s35, s35, s43")
    e("s_and_b32 s36, s41, 1"); e("s_mul_i32 s36, s36, 7"); e("s_add_u32 s36, s36, s44")
    e("s_cmp_ge_u32 s32, 4"); e("s_cbranch_scc1 m_gemm1")
    e("s_mul_i32 s45, s44, 3"); e("s_mul_i32 s46, s43, 5"); e("s_lshr_b32 s46, s46, 1"); e("s_add_u32 s45, s45, s46")
    e("s_cmp_ge_u32 s45, 20"); e("s_cselect_b32 s46, 20, 0"); e("s_sub_u32 s45, s45, s46")
    e("s_cmp_ge_u32 s45, 10"); e("s_cselect_b32 s46, 10, 0"); e("s_sub_u32 s45, s45, s46")
    e("s_load_dwordx8 s[64:71], s[0:1], 8")
    e("s_load_dwordx4 s[72:75], s[0:1], 40")
    e("v_and_b32 v3, 7, v1")
    e("s_lshl_b32 s39, s32, 13")
    e("s_cmp_ge_u32 s32, 2"); e("s_cbranch_scc1 m_ldB")
    e("s_lshl_b32 s43, s35, 7"); e("s_lshl_b32 s44, s32, 6"); e("s_add_u32 s43, s43, s44")
    e("v_lshrrev_b32 v2, 5, v1"); e("v_lshlrev_b32 v2, 3, v2")
    e("v_bfe_u32 v4, v1, 3, 2"); e("v_add3_u32 v2, v2, v4, s43")
    e("v_mul_u32_u24 v2, 1280, v2")
    e("v_lshrrev_b32 v4, 4, v1"); e("v_xor_b32 v3, v3, v4")
    e("v_lshl_add_u32 v4, v3, 4, v2")
    e("v_xor_b32 v3, 4, v3"); e("v_lshl_add_u32 v5, v3, 4, v2")
    for n in range(8):
        ee, b, Pp = n & 1, (n >> 1) & 1, n >> 2
        e(f"v_add_u32 v{16+n}, {(32*Pp + 4*b + 16*ee)*1280 - (n & 3)*1024}, v{4+ee}")
    e("s_waitcnt lgkmcnt(0)")
    k.srd(16, 4, 5, 2048*1280)
    e("s_mov_b32 s38, 128")
    e("s_branch m_ld")
    k.label("m_ldB")
    e("v_lshrrev_b32 v2, 3, v1"); e("v_mul_u32_u24 v2, 3456, v2")
    e("s_cmp_eq_u32 s32, 2"); e("s_cselect_b32 s44, 1664, 0")
    e("s_lshl_b32 s43, s36, 7"); e("s_add_u32 s43, s43, s44"); e("v_add_u32 v2, s43, v2")
    e("v_bfe_u32 v4, v1, 4, 1"); e("v_lshlrev_b32 v4, 1, v4"); e("v_xor_b32 v3, v3, v4")
    e("v_lshl_add_u32 v4, v3, 4, v2")
    e("v_xor_b32 v3, 4, v3"); e("v_lshl_add_u32 v5, v3, 4, v2")
    for n in range(8):
        e(f"v_add_u32 v{16+n}, {8*n*3456 - (n & 3)*1024}, v{4+(n & 1)}")
    e("s_waitcnt lgkmcnt(0)")
    k.srd(16, 8, 9, 640*3456)
    e(f"s_mov_b32 s38, {64*3456}")
    k.label("m_ld")
    if "norot" in EXP: e("s_mov_b32 s45, 0")
    if "rotx" in EXP:
        e("s_lshr_b32 s45, s41, 1"); e("s_mul_i32 s45, s45, 5"); e("s_lshr_b32 s45, s45, 1"); e("s_and_b32 s46, s41, 1"); e("s_mul_i32 s46, s46, 5"); e("s_add_u32 s45, s45, s46")
        if "rotxa" in EXP: e("s_and_b32 s46, s42, 1"); e("s_mul_i32 s46, s46, 3"); e("s_add_u32 s45, s45, s46")
        if "rotxb" in EXP: e("s_and_b32 s46, s42, 1"); e("s_mul_i32 s46, s46, 5"); e("s_add_u32 s45, s45, s46")
        e("s_cmp_ge_u32 s45, 10"); e("s_cselect_b32 s46, 10, 0"); e("s_sub_u32 s45, s45, s46")
    if "rot2" in EXP: e("s_and_b32 s45, s42, 1"); e("s_mul_i32 s45, s45, 5")
    if "rot3" in EXP: e("s_mul_i32 s45, s42, 86"); e("s_lshr_b32 s45, s45, 8"); e("s_mul_i32 s45, s45, 3"); e("s_sub_u32 s45, s42, s45"); e("s_mul_i32 s45, s45, 3")
    e("s_mul_i32 s37, s45, s38"); e("s_mul_i32 s46, s38, 10"); e("s_mov_b32 s40, 0")
    k.label("m_ldloop")
    e("s_cmp_lt_u32 s40, 3"); e("s_cbranch_scc1 m_ldissue")
    e("s_waitcnt vmcnt(16)")
    e("s_barrier")
    k.label("m_ldissue")
    for g in range(2):
        e(f"s_add_u32 m0, s39, {g*4096}")
        e("s_nop 0")
        for n in range(4): e(f"buffer_load_dwordx4 v{16+g*4+n}, s[16:19], s37 offen offset:{n*1024} lds")
    e("s_add_u32 s39, s39, 32768"); e("s_and_b32 s39, s39, 0x1ffff")
    e("s_add_u32 s37, s37, s38"); e("s_cmp_eq_u32 s37, s46"); e("s_cselect_b32 s37, 0, s37")
    e("s_add_u32 s40, s40, 1"); e("s_cmp_lt_u32 s40, 10"); e("s_cbranch_scc1 m_ldloop")
    k.stamp(1)
    k.srd(24, 14, 15, 32768, WS_ST1)
    k.srd(48, 12, 13, 256)
    e("v_bfe_u32 v4, v1, 2, 2"); e("v_lshlrev_b32 v4, 3, v4"); e("v_bfe_u32 v5, v1, 4, 1"); e("v_lshl_add_u32 v4, v5, 2, v4")
    e("v_and_b32 v5, 0x23, v1"); e("v_add_u32 v4, v4, v5"); e("v_lshlrev_b32 v232, 4, v4"); e("v_mov_b32 v233, 0")
    e("s_lshl_b32 s52, s35, 11"); e("s_and_b32 s43, s32, 1"); e("s_lshl_b32 s43, s43, 10"); e("s_add_u32 s52, s52, s43")
    e("buffer_load_dword v234, v233, s[48:51], 0 offen sc1")
    e("buffer_load_dwordx4 v[236:239], v232, s[24:27], s52 offen sc1")
    conv_params(k)
    e("s_getpc_b64 s[44:45]")
    k.label("m_pc")
    e(f"s_sub_u32 s44, s44, m_pc-{name}"); e("s_subb_u32 s45, s45, 0")
    e(f"s_mov_b32 s46, text_end-{name}"); e("s_mov_b32 s47, 0x00020000")
    e("s_and_b32 s43, s42, 15"); e("s_lshl_b32 s43, s43, 2"); e("s_add_u32 s43, s43, s33"); e("s_lshl_b32 s43, s43, 10")
    e("v_lshlrev_b32 v2, 4, v1")
    e("buffer_load_dwordx4 v[224:227], v2, s[44:47], s43 offen")
    TW = 1 if "tlb" in EXP else 0
    if TW:
        e("s_bitcmp1_b32 s32, 0"); e("s_cselect_b32 s44, s98, s14"); e("s_cselect_b32 s45, s99, s15"); e("s_cselect_b32 s43, 16, 19")
        e(f"s_mov_b32 s46, {2048*1280}"); e(f"s_cselect_b32 s46, s46, {28*MB}"); e("s_mov_b32 s47, 0x00020000")
        e("v_lshlrev_b32 v2, s43, v1")
        e("buffer_load_dword v228, v2, s[44:47], 0 offen")
    k.srd(20, 10, 11, 2048*4096)
    e("s_lshl_b32 s43, s42, 2"); e("s_add_u32 s43, s43, s32"); e(f"s_mul_i32 s43, s43, {9*1024+384}")
    e("s_lshl_b32 s44, s41, 20"); e("s_add_u32 s43, s43, s44")
    e("v_lshlrev_b32 v2, 4, v1")
    def pf(n):
        for i in range(n):
            e(f"buffer_load_dwordx4 v[224:227], v2, s[20:23], s43 offen offset:{(i%4)*1024}")
            if i % 4 == 3 or i == n - 1: e(f"s_add_u32 s43, s43, {(i%4+1)*1024}")
    if "pfe" in EXP:
        pf(10)
        e(f"s_waitcnt vmcnt({35+TW})"); e("s_barrier")
        e(f"s_waitcnt vmcnt({27+TW})"); e("s_barrier")
    else:
        e(f"s_waitcnt vmcnt({25+TW})"); e("s_barrier"); pf(4)
        e(f"s_waitcnt vmcnt({21+TW})"); e("s_barrier"); pf(6)
    e(f"s_waitcnt vmcnt({19+TW})"); e("s_barrier")
    e("s_cmp_ge_u32 s32, 2"); e("s_cbranch_scc1 m_st1ok")
    e(f"s_waitcnt vmcnt({17+TW})")
    e("s_mov_b32 s40, 0")
    e("s_branch m_st1chk")
    k.label("m_st1poll")
    e("buffer_load_dword v234, v233, s[48:51], 0 offen sc1")
    e("buffer_load_dwordx4 v[236:239], v232, s[24:27], s52 offen sc1")
    e("s_waitcnt vmcnt(0)")
    k.label("m_st1chk")
    e("v_xor_b32 v4, v237, v234"); e("v_xor_b32 v5, v239, v234"); e("v_or_b32 v4, v4, v5")
    e("v_cmp_ne_u32 vcc, 0, v4"); e("v_cmp_eq_u32 s[44:45], 0, v234"); e("s_add_u32 s40, s40, 1")
    e("s_or_b64 vcc, vcc, s[44:45]")
    e(f"s_cmp_ge_u32 s40, {SPIN}"); e("s_cbranch_scc1 m_st1w")
    e("s_cbranch_vccnz m_st1poll")
    k.label("m_st1w")
    e("s_lshl_b32 s44, s32, 8"); e(f"s_add_u32 s44, s44, {MISC}"); e("v_lshl_add_u32 v4, v1, 2, s44"); e(f"v_mov_b32 v5, {W_EPOCH}")
    e("ds_write_b32 v4, v236"); e("ds_write_b32 v4, v238 offset:512"); e("ds_write_b32 v5, v234")
    e("s_waitcnt lgkmcnt(0)")
    k.label("m_st1ok")
    e("s_barrier")
    k.label("m_Lpost")
    k.stamp(2)
    e(f"v_mov_b32 v4, {W_EPOCH}"); e("ds_read_b32 v5, v4")
    k.srd(FLS, 14, 15, FL_BYTES, WS_FL)
    e("v_and_b32 v2, 15, v1"); e("v_lshrrev_b32 v3, 4, v1")
    e("s_lshr_b32 s35, s41, 1"); e("s_lshl_b32 s35, s35, 3"); e("s_lshr_b32 s43, s42, 2"); e("s_add_u32 s35, s35, s43")
    e("s_waitcnt lgkmcnt(0)")
    e("v_readfirstlane_b32 s3, v5")
    e("s_cmp_lg_u32 s32, 3"); e("s_cbranch_scc1 m_conv")
    k.srd(16, 10, 11, 2048*4096)
    e("v_lshrrev_b32 v4, 5, v1"); e("v_lshlrev_b32 v4, 3, v4"); e("v_bfe_u32 v5, v1, 3, 2"); e("v_add_u32 v4, v4, v5")
    e("v_lshlrev_b32 v4, 12, v4")
    e("v_and_b32 v5, 7, v1"); e("v_xor_b32 v5, v5, v3")
    e("v_lshl_add_u32 v6, v5, 4, v4")
    e("v_xor_b32 v5, 4, v5"); e("v_lshl_add_u32 v7, v5, 4, v4")
    for n in range(8):
        ee, t = n & 1, n >> 1
        e(f"v_add_u32 v{16+n}, {(32*(t >> 1) + 4*(t & 1) + 16*ee)*4096 - (n & 3)*1024}, v{6+ee}")
    e("s_lshl_b32 s37, s35, 18")
    e(f"s_and_b32 s43, s35, {ROTM}"); e("s_lshl_b32 s43, s43, 8"); e("s_add_u32 s37, s37, s43")
    LATE = "late" in EXP
    def pfloop():
        e("s_mov_b32 s40, 0")
        k.label("m_pfloop")
        e("s_and_b32 s43, s40, 3"); e("s_lshr_b32 s44, s40, 2")
        e(f"s_mul_i32 s49, s43, {RING2}"); e("s_lshl_b32 s46, s44, 13"); e("s_add_u32 s49, s49, s46")
        e("s_lshl_b32 s43, s43, 10"); e("s_lshl_b32 s44, s44, 7"); e("s_add_u32 s43, s43, s44"); e("s_add_u32 s43, s43, s37")
        for g in range(2):
            e(f"s_add_u32 m0, s49, {g*4096}")
            e("s_nop 0")
            for n in range(4): e(f"buffer_load_dwordx4 v{16+g*4+n}, s[16:19], s43 offen offset:{n*1024} lds")
        e(f"s_waitcnt vmcnt({48 if LATE else 16})")
        e("s_add_u32 s40, s40, 1"); e("s_cmp_lt_u32 s40, 8"); e("s_cbranch_scc1 m_pfloop")
    if not LATE: pfloop()
    k.stamp(3)
    e("s_and_b32 s36, s41, 1"); e("s_lshl_b32 s36, s36, 2"); e("s_and_b32 s43, s42, 3"); e("s_add_u32 s36, s36, s43")
    e("s_cmp_eq_u32 s36, 7"); e("s_cselect_b32 s43, 31, 47")
    e("v_min_u32 v7, s43, v1"); e("v_lshlrev_b32 v7, 2, v7")
    e("s_lshl_b32 s45, s35, 3"); e("s_add_u32 s45, s45, s36"); e("s_lshl_b32 s45, s45, 8"); e(f"s_add_u32 s45, s45, {FZ2}")
    e(f"v_mov_b32 v4, {W_PF + 8}")
    lds_wait_ge(k, "m_wown1", "v4", 5, 1, 4, sleep=2)
    if LATE: pfloop()
    elif ZD: e(f"s_sleep {ZD}")
    poll_flags(k, "m_pollz", "v7", FLS, 1, 5, "v6", soff="s45", sleep=ZSL)
    e(f"v_mov_b32 v4, {W_PF}"); e("v_mov_b32 v5, 1")
    e("ds_write_b32 v4, v5")
    k.stamp(4)
    e("s_sleep 64")
    e("v_and_b32 v4, 31, v1"); e("v_lshlrev_b32 v4, 2, v4"); e(f"s_mov_b32 s44, {FK}")
    poll_flags(k, "m_pollx3", "v4", FLS, 1, 5, "v6", soff="s44", sleep=64)
    e(f"v_mov_b32 v4, {W_FX}"); e("v_mov_b32 v5, 1"); e("ds_write_b32 v4, v5")
    e("s_branch m_L3prep")
    k.label("m_conv")
    e("s_cmp_ge_u32 s34, 640"); e("s_cbranch_scc1 m_L3prep")
    e(f"s_mul_i32 s39, s32, {CONV_B}"); e(f"s_add_u32 s39, s39, {CONV0}")
    e("s_waitcnt vmcnt(10)")
    kgen_dt(k, "v13")
    kgen_addr(k, "s39", "v2", "v3", "v1")
    e("s_mov_b32 s40, 2")
    kgen_loop(k, 164, "v13", "s40")
    k.stamp(3)
    UO, KC = 8320, 12928
    e("v_lshlrev_b32 v15, 4, v1")
    e(f"s_mov_b32 s44, {FX}")
    e("v_and_b32 v220, 31, v1"); e("v_lshlrev_b32 v220, 2, v220")
    e("buffer_load_dword v216, v220, s[60:63], s44 offen sc1")
    e(f"s_add_u32 s43, s39, {KC}")
    e("v_max_u32 v4, 1, v3"); e("v_sub_u32 v4, 5, v4")
    e("v_lshlrev_b32 v5, v4, v2")
    e("v_lshlrev_b32 v6, 3, v3")
    e("v_mov_b32 v7, 512"); e("v_cmp_eq_u32 vcc, 2, v3"); e("s_nop 1"); e("v_cndmask_b32 v6, v6, v7, vcc")
    e("v_mov_b32 v7, 768"); e("v_mov_b32 v8, 4"); e("v_mov_b32 v9, 128"); e("v_cmp_eq_u32 vcc, 3, v3"); e("s_nop 1")
    e("v_cndmask_b32 v6, v6, v7, vcc"); e("v_cndmask_b32 v8, v8, v9, vcc")
    e("v_add3_u32 v5, v5, v6, s43")
    e("v_lshlrev_b32 v6, v4, 16"); e("v_add_u32 v6, v5, v6")
    e("v_add_u32 v7, v5, v8"); e("v_add_u32 v8, v6, v8")
    for n in range(8): e(f"v_cvt_pk_bf16_f32 v{24+n}, v{136+2*n}, v{137+2*n}")
    e("ds_write_b32 v5, v24"); e("ds_write_b32 v7, v25"); e("ds_write_b32 v6, v26"); e("ds_write_b32 v8, v27")
    e("v_lshlrev_b32 v9, 6, v2"); e("v_lshl_add_u32 v9, v3, 3, v9"); e("v_add_u32 v9, s43, v9")
    e("v_mov_b32 v20, 0"); e("v_mov_b32 v21, 0"); e("v_mov_b32 v22, 0"); e("v_mov_b32 v23, 0")
    e("v_add_u32 v16, s39, v15")
    e("v_lshl_add_u32 v17, v1, 3, s39")
    e(f"ds_write_b64 v17, v[20:21] offset:{UO}")
    e("v_cmp_gt_u32 vcc, 5, v2"); e("s_and_saveexec_b64 s[46:47], vcc")
    e("ds_write_b64 v9, v[28:29] offset:1024"); e("ds_write_b64 v9, v[30:31] offset:1056")
    e("s_mov_b64 exec, 3")
    e("ds_write_b128 v16, v[20:23] offset:4096"); e(f"ds_write_b128 v16, v[20:23] offset:{4160+4096}")
    e("s_mov_b64 exec, -1")
    e(f"s_add_u32 s44, s39, {KC + 256 - 2*0x4300}")
    e(f"v_mov_b32 v31, {f32(128.0)}")
    e("v_lshlrev_b32 v18, 3, v1"); e("v_cvt_f32_u32 v18, v18")
    e("s_waitcnt lgkmcnt(0)")
    for m in range(4):
        for el in range(10): e(f"v_sub_f32 v{96+el}, {f32(2047 - 512*m - el)}, v18")
        if m == 3: e("v_max_f32 v104, 0, v104")
        for p in range(5): e(f"v_cvt_pk_bf16_f32 v{108+p}, v{96+2*p}, v{97+2*p}")
        for el in range(9):
            a = f"v{114+el}"
            if el % 2 == 0: e(f"v_and_b32 {a}, 0xffff, v{108+el//2}")
            else: e(f"v_lshrrev_b32 {a}, 16, v{108+el//2}")
            e(f"v_lshl_add_u32 {a}, {a}, 1, s44")
            if m == 3:
                e(f"v_cvt_u32_f32 v19, v{96+el}"); e("v_lshl_add_u32 v19, v19, 1, s43")
                e(f"v_cmp_lt_f32 vcc, v{96+el}, v31"); e("s_nop 1"); e(f"v_cndmask_b32 {a}, {a}, v19, vcc")
        for el in range(9): e(f"ds_read_u16 v{144+9*m+el}, v{114+el}")
    e(f"s_mov_b32 s46, {FX}")
    poll_flags(k, "m_pollx", "v220", FLS, 1, 216, "v4", soff="s46", sleep=32, preloaded=True)
    k.stamp(4)
    k.srd(20, 14, 15, XT_BYTES, WS_XNT)
    k.srd(24, 14, 15, XT_BYTES, WS_YT)
    e("s_lshl_b32 s45, s34, 12")
    for n in range(4): e(f"buffer_load_dwordx4 {v(200+4*n,4)}, v15, s[20:23], s45 offen offset:{n*1024} sc1")
    e("s_waitcnt lgkmcnt(0)")
    e("v_cmp_eq_u32 vcc, 63, v1"); e("s_nop 1"); e(f"v_cndmask_b32 v{144+35}, v{144+35}, v20, vcc")
    for m in range(4):
        W = 32 + 16*m; E = 144 + 9*m
        for p in range(4):
            e(f"v_lshl_or_b32 v{W+p}, v{E+2*p+1}, 16, v{E+2*p}")
            e(f"v_lshl_or_b32 v{W+8+p}, v{E+2*p+2}, 16, v{E+2*p+1}")
        e(f"ds_write_b128 v16, {v(W,4)} offset:{1024*m}")
        e(f"ds_write_b128 v16, {v(W+8,4)} offset:{4160+1024*m}")
    e("s_waitcnt vmcnt(0)")
    for n in range(4): e(f"ds_write_b128 v16, {v(200+4*n,4)} offset:{UO+512+1024*n}")
    k.stamp(5)
    e("v_and_b32 v4, 1, v2"); e("v_xor_b32 v4, 1, v4"); e("v_mul_u32_u24 v4, 4160, v4")
    e("v_lshrrev_b32 v5, 1, v2"); e("v_lshlrev_b32 v6, 2, v3"); e("v_sub_u32 v5, v6, v5")
    e("v_lshl_add_u32 v4, v5, 2, v4"); e("v_add_u32 v4, s39, v4")
    for mp in range(4): e(f"v_add_u32 v{24+mp}, {4*(1023 - 8 - 128*(2*mp+1))}, v4")
    e("v_lshlrev_b32 v5, 5, v2"); e("v_lshl_add_u32 v5, v3, 4, v5")
    e(f"s_add_u32 s43, s39, {UO+480}"); e("v_add_u32 v28, s43, v5")
    def Af(m): return 32 + 4*m
    def Bf(r): return 64 + 4*r
    def ac(cb): return v(96 + 4*cb, 4)
    for i in range(32): e(f"v_mov_b32 v{96+i}, 0")
    e("v_lshlrev_b32 v14, 16, v14")
    e("s_waitcnt lgkmcnt(0)")
    def rdA(m):
        o = 0 if m & 1 else 128
        e(f"ds_read2_b32 {v(Af(m),2)}, v{24+m//2} offset0:{o} offset1:{o+1}"); e(f"ds_read2_b32 {v(Af(m)+2,2)}, v{24+m//2} offset0:{o+2} offset1:{o+3}")
    def rdB(r): e(f"ds_read_b128 {v(Bf(r),4)}, v28 offset:{512*r}")
    for m in range(8): rdA(m); rdB(7-m)
    e("s_mov_b32 s40, 8")
    k.label("m_cloop")
    for r in range(24, 29): e(f"v_subrev_u32 v{r}, 64, v{r}")
    for m in range(8):
        for cb in (range(7, -1, -1) if m == 0 else range(m, 8)):
            if m == 0: e(f"s_waitcnt lgkmcnt({min(3*cb, 15)})")
            e(f"{MFMA} {ac(cb)}, {v(Af(m),4)}, {v(Bf(cb-m),4)}, {ac(cb)}")
        rdA(m); rdB(7-m)
    e("s_sub_u32 s40, s40, 1"); e("s_cmp_lg_u32 s40, 0"); e("s_cbranch_scc1 m_cloop")
    k.stamp(6)
    e("s_waitcnt lgkmcnt(0)")
    e("v_lshlrev_b32 v20, 5, v2"); e("v_lshl_add_u32 v20, v3, 3, v20")
    e(f"s_add_u32 s43, s39, {UO+512}"); e("v_add_u32 v21, s43, v20")
    for cb in range(8): e(f"ds_read_b64 {v(32+2*cb,2)}, v21 offset:{512*cb}")
    e("s_waitcnt lgkmcnt(0)")
    for c0 in (0, 4):
        A = [96 + 4*cb + 2*p for cb in range(c0, c0+4) for p in range(2)]
        U = [32 + 2*cb + p for cb in range(c0, c0+4) for p in range(2)]
        for i in range(8): unpack(k, f"v{72+2*i}", f"v{73+2*i}", f"v{U[i]}")
        for i in range(8): e(f"v_pk_fma_f32 {pr(A[i])}, {pr(72+2*i)}, v[14:15], {pr(A[i])} op_sel_hi:[1,0,1]")
        for i in range(8): e(f"v_cvt_pk_bf16_f32 v{U[i]}, v{A[i]}, v{A[i]+1}")
        for cb in range(c0, c0+4): e(f"ds_write_b64 v21, {v(32+2*cb,2)} offset:{512*cb}")
    for n in range(4): e(f"ds_read_b128 {v(64+4*n,4)}, v16 offset:{UO+512+1024*n}")
    for n in range(4):
        e(f"s_waitcnt lgkmcnt({3-n})")
        e(f"buffer_store_dwordx4 {v(64+4*n,4)}, v15, s[24:27], s45 offen offset:{1024*n} sc1")
    e("s_lshl_b32 s43, s34, 2"); e(f"s_add_u32 s43, s43, {FY}")
    set_flag(k, FLS, "s43", 0, "v4", "v5")
    k.stamp(7)
    k.label("m_L3prep")
    e("s_and_b32 s36, s41, 1"); e("s_lshl_b32 s36, s36, 2"); e("s_and_b32 s43, s42, 3"); e("s_add_u32 s36, s36, s43")
    e("s_lshl_b32 s43, s33, 2"); e(f"s_add_u32 s43, s43, {W_GL}"); e("v_mov_b32 v4, s43")
    lds_wait(k, "m_wgl", "v4", "v5", sleep=8)
    e(f"v_mov_b32 v4, {W_FX}")
    lds_wait(k, "m_wfw", "v4", "v5")
    k.stamp(8)
    e("s_mul_i32 s46, s33, 15"); e("s_add_u32 s46, s46, 42")
    e("s_cmp_eq_u32 s33, 3"); e("s_cselect_b32 s47, 48, 15")
    e("s_branch m_P3")

    k.label("m_gemm1")
    e("v_and_b32 v2, 15, v1"); e("v_lshrrev_b32 v3, 4, v1")
    e("v_lshlrev_b32 v12, 4, v1")
    e("v_add_u32 v13, 4096, v12")
    PL = 200
    def poll_loads():
        for i in range(7):
            e(f"buffer_load_dwordx4 {v(PL+4*i,4)}, v{12 if i < 4 else 13}, s[28:31], s72 offen offset:{(i%4)*1024} sc1")
    e("v_mov_b32 v10, 0")
    e("v_and_b32 v4, 31, v1"); e(f"v_lshlrev_b32 v4, 2, v4"); e(f"v_add_u32 v4, {W_EPOCH}, v4")
    e("ds_write_b32 v4, v10")
    e("s_waitcnt lgkmcnt(0)")
    k.srd(64, 12, 13, 256)
    e("s_cmp_lg_u32 s2, 0"); e("s_cbranch_scc1 m_noep")
    e("s_cmp_lg_u32 s32, 4"); e("s_cbranch_scc1 m_noep")
    e("s_memrealtime s[44:45]"); e("s_waitcnt lgkmcnt(0)"); e("s_or_b32 s44, s44, 1"); e("v_mov_b32 v4, s44")
    e("s_mov_b64 exec, 1")
    e("buffer_store_dword v4, v10, s[64:67], 0 offen sc1")
    e("s_mov_b64 exec, -1")
    k.label("m_noep")
    e("s_lshl_b32 s43, s35, 2"); e("s_add_u32 s43, s43, s33"); e(f"s_mul_i32 s72, s43, {14*512}")
    e("s_lshl_b32 s44, s36, 9"); e("s_add_u32 s73, s72, s44")
    e("s_lshl_b32 s74, s36, 6"); e("s_add_u32 s74, s74, s43"); e("s_lshl_b32 s74, s74, 2")
    e("v_and_b32 v4, 7, v1"); e("v_lshl_add_u32 v4, v3, 3, v4"); e("v_bfe_u32 v5, v1, 3, 1"); e("v_lshlrev_b32 v5, 3, v5")
    e("v_lshl_add_u32 v230, v4, 4, v5")
    k.srd(28, 14, 15, ST2_BYTES, WS_ST2)
    k.srd(24, 14, 15, ZF_BYTES, WS_Z2F)
    k.srd(20, 14, 15, ZF_BYTES, WS_Z1F)
    k.srd(FLS, 14, 15, FL_BYTES, WS_FL)
    for c in range(4):
        e(f"s_xor_b32 s43, s33, {c}")
        e("s_lshl_b32 s44, s36, 2"); e("s_add_u32 s43, s43, s44"); e("s_sub_u32 s43, s43, 2")
        e(f"s_cmp_lt_u32 s43, 54"); e(f"s_cselect_b32 s{50+c}, -1, 0")
        e("s_cselect_b32 s43, s43, 60")
        e(f"s_lshl_b32 s{46+c}, s43, 16")
        e("s_lshl_b32 s44, s35, 2"); e("s_add_u32 s44, s44, s33"); e("s_lshl_b32 s44, s44, 10")
        e(f"s_add_u32 s{46+c}, s{46+c}, s44")
    for b in range(2):
        for g in range(2):
            e("s_lshr_b32 s43, s33, 1"); e(f"s_xor_b32 s43, s43, {g}"); e("s_lshl_b32 s44, s36, 1"); e("s_add_u32 s43, s43, s44")
            e("s_lshl_b32 s44, s35, 3"); e("s_lshl_b32 s45, s33, 1"); e("s_add_u32 s44, s44, s45"); e(f"s_add_u32 s44, s44, {b}")
            e("s_mul_i32 s44, s44, 27"); e("s_add_u32 s44, s44, s43"); e("s_lshl_b32 s44, s44, 10")
            e("s_cmp_lt_u32 s43, 27"); e(f"s_cselect_b32 s{68+b*2+g}, s44, {HUGE}")
    e("v_and_b32 v4, 2, v1"); e("v_and_b32 v5, 1, v1")
    e("v_cmp_ne_u32 s[54:55], 0, v4"); e("v_cmp_ne_u32 s[56:57], 0, v5")
    e("s_lshl_b32 s43, s33, 5")
    e("v_add_u32 v4, s43, v2"); e("v_lshlrev_b32 v4, 7, v4")
    e("v_lshrrev_b32 v5, 1, v2"); e("v_xor_b32 v5, v5, v3")
    e("v_lshl_add_u32 v14, v5, 4, v4")
    e("v_xor_b32 v15, 64, v14")
    e("v_bfe_u32 v4, v1, 2, 2")
    e("v_lshl_add_u32 v5, v3, 3, v4"); e("v_lshlrev_b32 v5, 7, v5")
    e("v_and_b32 v6, 3, v1"); e("v_lshl_add_u32 v5, v6, 3, v5")
    e("v_add_u32 v5, 16384, v5")
    e("v_lshrrev_b32 v6, 1, v4"); e("v_and_b32 v7, 1, v3"); e("v_lshl_or_b32 v6, v7, 1, v6")
    e("v_xor_b32 v6, s33, v6")
    for c in range(4):
        e(f"v_xor_b32 v7, {c}, v6"); e(f"v_lshl_add_u32 v{16+c}, v7, 5, v5")
    for i in range(4): e(f"v_mov_b32 v{20+i}, 0x3f803f80")
    ACC = 104
    for i in range(ACC, 192): e(f"v_mov_b32 v{i}, 0")
    def xf(ks, b): return v(24 + 40*ks + 4*b, 4)
    def wfb(ks, h, c): return 24 + 40*ks + 8 + 16*h + 4*c
    def wf(ks, h, c): return v(wfb(ks, h, c), 4)
    def accb(h, b, c): return ACC + 32*h + (b*4 + c)*4
    def acc(h, b, c): return v(accb(h, b, c), 4)
    def rlist(ks):
        L = [f"ds_read_b128 {xf(ks,b)}, v{14+ks} offset:{2048*b}" for b in range(2)]
        for h in range(2):
            for c in range(4):
                for hh in range(2):
                    L.append(f"ds_read_b64_tr_b16 {v(wfb(ks,h,c)+2*hh,2)}, v{16+c} offset:{h*8192+ks*4096+hh*512}")
        return L
    def mlist(ks):
        L = []
        for h in range(2):
            L.append(f"{MFMA} {v(184+4*h,4)}, v[20:23], {wf(ks,h,0)}, {v(184+4*h,4)}")
            for c in range(4):
                for b in range(2):
                    if h == 0: L.append(f"{MFMA} {acc(h,b,c)}, {xf(ks,b)}, {wf(ks,h,c)}, {acc(h,b,c)}")
                    else:      L.append(f"{MFMA} {acc(h,b,c)}, {wf(ks,h,c)}, {xf(ks,b)}, {acc(h,b,c)}")
        return L
    def phase(ks, rd, extra=()):
        M = mlist(ks); R = list(rd); X = list(extra)
        for i, m in enumerate(M):
            e(m)
            if R: e(R.pop(0))
            if R and i < 4: e(R.pop(0))
            elif X and not R:
                for _ in range(3):
                    if X: e(X.pop(0))
        for x in X: e(x)
    bump = [f"v_add_u32 v{r}, 0x8000, v{r}" for r in range(14, 20)]
    wrap = [f"v_and_b32 v{r}, 0x1ffff, v{r}" for r in range(14, 20)]
    e("s_lshl_b32 s43, s33, 6"); e(f"s_add_u32 s43, s43, {MISC+1024}"); e("v_lshl_add_u32 v196, v2, 2, s43")
    for c in range(4):
        e(f"s_xor_b32 s43, s33, {c}"); e(f"s_lshl_b32 s43, s43, 6"); e(f"s_add_u32 s43, s43, {MISC+1024}")
        e(f"v_lshl_add_u32 v{232+c}, v2, 2, s43"); e(f"v_lshl_add_u32 v{236+c}, v3, 4, s43")
    e("s_lshl_b32 s43, s33, 7"); e(f"s_add_u32 s43, s43, {MISC}")
    e("v_lshl_add_u32 v7, v2, 2, s43"); e("v_lshl_add_u32 v8, v3, 4, s43"); e(f"v_mov_b32 v9, {W_EPOCH}")
    k.stamp(1)
    e("s_mov_b32 s40, 10")
    e("s_barrier")
    k.stamp(2)
    for r in rlist(0): e(r)
    k.label("m_loop1")
    e("s_waitcnt lgkmcnt(0)")
    phase(0, rlist(1), bump + wrap)
    e("s_sub_u32 s40, s40, 1"); e("s_cmp_eq_u32 s40, 0")
    e("s_waitcnt lgkmcnt(0)")
    e(f"s_cbranch_scc1 m_tail1")
    e("s_barrier")
    phase(1, rlist(0))
    e(f"s_branch m_loop1")
    k.label(f"m_tail1")
    phase(1, [])
    e("s_setprio 2")
    k.stamp(3)
    epoch_poll = None
    e("ds_write_b32 v196, v184"); e("ds_write_b32 v196, v188 offset:256")
    e("s_waitcnt lgkmcnt(0)")
    e("s_barrier")
    e("ds_read_b128 v[24:27], v8"); e("ds_read_b128 v[28:31], v8 offset:64")
    e("ds_read_b128 v[32:35], v8 offset:512"); e("ds_read_b128 v[36:39], v8 offset:576")
    for c in range(4): e(f"ds_read_b32 v{40+2*c}, v{232+c}")
    e("ds_read_b32 v229, v9")
    for c in range(4): e(f"ds_read_b128 {v(64+4*c,4)}, v{236+c} offset:256")
    e("ds_read_b32 v80, v7"); e("ds_read_b32 v82, v7 offset:64"); e("ds_read_b32 v84, v7 offset:512"); e("ds_read_b32 v86, v7 offset:576")
    e(f"v_mov_b32 v88, {f32(GC1)}"); e(f"v_mov_b32 v90, {f32(GC0)}")
    e("s_waitcnt lgkmcnt(8)")
    e("v_readfirstlane_b32 s3, v229")
    e("s_cmp_lg_u32 s36, 0"); e("s_cbranch_scc1 m_nomask")
    for c in range(4):
        e(f"v_and_b32 v{40+2*c}, s{50+c}, v{40+2*c}")
        for b in range(2):
            for r in range(4): e(f"v_and_b32 v{accb(0,b,c)+r}, s{50+c}, v{accb(0,b,c)+r}")
    k.label("m_nomask")
    def gelu_pairs(A):
        n = len(A); T = [48 + 2*i for i in range(n)]
        for i in range(n): e(f"v_pk_mul_f32 {pr(T[i])}, {pr(A[i])}, {pr(A[i])}")
        for i in range(n): e(f"v_pk_fma_f32 {pr(T[i])}, {pr(T[i])}, v[88:89], v[90:91] op_sel_hi:[1,0,0]")
        for i in range(n): e(f"v_pk_mul_f32 {pr(T[i])}, {pr(T[i])}, {pr(A[i])}")
        for i in range(n): e(f"v_exp_f32 v{T[i]}, v{T[i]}"); e(f"v_exp_f32 v{T[i]+1}, v{T[i]+1}")
        for i in range(n): e(f"v_pk_add_f32 {pr(T[i])}, {pr(T[i])}, 1.0 op_sel_hi:[1,0]")
        for i in range(n): e(f"v_rcp_f32 v{T[i]}, v{T[i]}"); e(f"v_rcp_f32 v{T[i]+1}, v{T[i]+1}")
        for i in range(n): e(f"v_pk_mul_f32 {pr(A[i])}, {pr(A[i])}, {pr(T[i])}")
    for c0 in (0, 2):
        A = [accb(0, b, c) + 2*p for c in (c0, c0+1) for b in range(2) for p in range(2)]
        M = [24 + 4*b + 2*p for c in (c0, c0+1) for b in range(2) for p in range(2)]
        C = [40 + 2*c for c in (c0, c0+1) for b in range(2) for p in range(2)]
        for i in range(8): e(f"v_pk_fma_f32 {pr(A[i])}, {pr(M[i])}, {pr(C[i])}, {pr(A[i])} op_sel_hi:[1,0,1] neg_lo:[1,0,0] neg_hi:[1,0,0]")
        for i in range(8): e(f"v_pk_mul_f32 {pr(A[i])}, {pr(A[i])}, {pr(M[i]+8)}")
        gelu_pairs(A)
        for i in range(8):
            n = (i % 4) * 2
            e(f"v_pk_add_f32 {pr(168+n)}, {pr(168+n)}, {pr(A[i])}")
            e(f"v_pk_fma_f32 {pr(176+n)}, {pr(A[i])}, {pr(A[i])}, {pr(176+n)}")
    e("s_nop 0")
    for n in range(8): e(f"v_add_f32_dpp v{48+n}, v{168+n}, v{168+n} row_ror:8 row_mask:0xf bank_mask:0x3")
    for n in range(8): e(f"v_add_f32_dpp v{48+n}, v{176+n}, v{176+n} row_ror:8 row_mask:0xf bank_mask:0xc")
    for n in range(4): e(f"v_add_f32_dpp v{168+n}, v{48+n}, v{48+n} row_half_mirror row_mask:0xf bank_mask:0x5")
    for n in range(4): e(f"v_add_f32_dpp v{168+n}, v{52+n}, v{52+n} row_half_mirror row_mask:0xf bank_mask:0xa")
    for n in range(2):
        e(f"v_cndmask_b32 v{172+n}, v{170+n}, v{168+n}, s[54:55]")
        e(f"v_cndmask_b32 v{174+n}, v{168+n}, v{170+n}, s[54:55]")
    e("s_nop 0")
    for n in range(2): e(f"v_add_f32_dpp v{176+n}, v{172+n}, v{174+n} quad_perm:[2,3,0,1] row_mask:0xf bank_mask:0xf")
    e("v_cndmask_b32 v172, v177, v176, s[56:57]"); e("v_cndmask_b32 v174, v176, v177, s[56:57]")
    e("s_nop 1")
    e("v_add_f32_dpp v228, v172, v174 quad_perm:[1,0,3,2] row_mask:0xf bank_mask:0xf")
    e("buffer_store_dwordx2 v[228:229], v230, s[28:31], s73 offen sc1")
    e("s_setprio 0")
    k.stamp(4)
    e("s_waitcnt lgkmcnt(0)")
    P1 = 168
    for c0 in (0, 2):
        A = [accb(1, b, c) + 2*p for c in (c0, c0+1) for b in range(2) for p in range(2)]
        M = [80 + 2*b for c in (c0, c0+1) for b in range(2) for p in range(2)]
        C = [64 + 4*c + 2*p for c in (c0, c0+1) for b in range(2) for p in range(2)]
        for i in range(8): e(f"v_pk_fma_f32 {pr(A[i])}, {pr(M[i])}, {pr(C[i])}, {pr(A[i])} op_sel_hi:[0,1,1] neg_lo:[1,0,0] neg_hi:[1,0,0]")
        for i in range(8): e(f"v_pk_mul_f32 {pr(A[i])}, {pr(A[i])}, {pr(M[i]+4)} op_sel_hi:[1,0]")
        gelu_pairs(A)
        i = 0
        for c in (c0, c0+1):
            for b in range(2):
                for p in range(2):
                    e(f"v_cvt_pk_bf16_f32 v{P1+b*8+c*2+p}, v{A[i]}, v{A[i]+1}"); i += 1
        if c0 == 0: poll_loads()
    e("s_bitcmp1_b32 s33, 0"); e("s_cbranch_scc0 m_noswap")
    for b in range(2):
        for g in range(2):
            for p in range(2):
                r0 = P1 + b*8 + g*4 + p
                e(f"v_swap_b32 v{r0}, v{r0+2}")
    k.label("m_noswap")
    e("s_setprio 2")
    e("s_mov_b32 s40, 0")
    e("s_waitcnt vmcnt(0)")
    for b in range(2):
        for g in range(2):
            e(f"buffer_store_dwordx4 {v(P1+b*8+g*4,4)}, v12, s[20:23], s{68+b*2+g} offen sc1")
    e("s_branch m_check")
    k.label("m_poll")
    poll_loads()
    e("s_waitcnt vmcnt(0)")
    k.label("m_check")
    e(f"v_xor_b32 v4, v{PL+1}, v229"); e(f"v_xor_b32 v5, v{PL+3}, v229")
    for i in range(1, 7):
        e(f"v_xor_b32 v9, v{PL+1+4*i}, v229"); e(f"v_xor_b32 v10, v{PL+3+4*i}, v229")
        e("v_or3_b32 v4, v4, v9, v10")
    e("v_or_b32 v4, v4, v5")
    e("v_cmp_ne_u32 vcc, 0, v4")
    e("s_add_u32 s40, s40, 1")
    e("s_nop 0")
    e("s_cbranch_vccz m_poll_done")
    e(f"s_cmp_lt_u32 s40, {SPIN}"); e("s_cbranch_scc1 m_poll")
    k.label("m_poll_done")
    k.stamp(5)
    for i in range(1, 7):
        e(f"v_add_f32 v{PL}, v{PL}, v{PL+4*i}"); e(f"v_add_f32 v{PL+2}, v{PL+2}, v{PL+2+4*i}")
    e(f"v_mov_b32 v{PL+1}, v{PL}"); e(f"v_mov_b32 v{PL+3}, v{PL+2}"); e("s_nop 1")
    e(f"v_permlane32_swap_b32 v{PL}, v{PL+1}"); e(f"v_permlane32_swap_b32 v{PL+2}, v{PL+3}"); e("s_nop 1")
    e(f"v_add_f32 v24, v{PL}, v{PL+1}"); e(f"v_add_f32 v26, v{PL+2}, v{PL+3}")
    e(f"v_mul_f32 v24, {f32(1/864)}, v24"); e(f"v_mul_f32 v26, {f32(1/864)}, v26")
    e("v_fma_f32 v26, -v24, v24, v26")
    ln_finish(k, "v24", "v26", "v25")
    e("s_lshl_b32 s43, s33, 8"); e(f"s_add_u32 s43, s43, {MISC+1536}")
    e("v_and_b32 v4, 31, v1"); e("v_lshl_add_u32 v4, v4, 2, s43"); e("v_lshl_add_u32 v5, v3, 5, s43")
    e("v_mul_f32 v24, v24, v26")
    e("ds_write_b32 v4, v24"); e("ds_write_b32 v4, v26 offset:128")
    e("ds_read_b128 v[28:31], v5"); e("ds_read_b128 v[32:35], v5 offset:16")
    e("ds_read_b128 v[36:39], v5 offset:128"); e("ds_read_b128 v[40:43], v5 offset:144")
    e("s_waitcnt lgkmcnt(0)")
    for c0 in (0, 2):
        A = [accb(0, b, c) + 2*p for c in (c0, c0+1) for b in range(2) for p in range(2)]
        M = [28 + (i % 4)*2 for i in range(8)]
        for i in range(8): e(f"v_pk_fma_f32 {pr(A[i])}, {pr(A[i])}, {pr(M[i]+8)}, {pr(M[i])} neg_lo:[0,0,1] neg_hi:[0,0,1]")
        for i in range(8): e(f"v_cvt_pk_bf16_f32 v{64+4*c0+i}, v{A[i]}, v{A[i]+1}")
        for c in (c0, c0+1): e(f"buffer_store_dwordx4 {v(64+4*c,4)}, v12, s[24:27], s{46+c} offen sc1")
    e("s_lshl_b32 s43, s36, 2")
    e("s_mov_b32 s44, 0x33221000"); e("s_mov_b32 s45, 0x00766554"); e("s_lshr_b64 s[44:45], s[44:45], s43"); e("s_and_b32 s46, s44, 15")
    e("s_mov_b32 s44, 0x44322110"); e("s_mov_b32 s45, 0x00776655"); e("s_lshr_b64 s[44:45], s[44:45], s43"); e("s_and_b32 s47, s44, 15")
    for r in (46, 47):
        e(f"s_lshl_b32 s43, s{r}, 2"); e("s_lshr_b32 s44, 0xca865310, s43"); e("s_and_b32 s44, s44, 15")
        e("s_sub_u32 s44, s36, s44"); e("s_lshl_b32 s44, s44, 4"); e("s_add_u32 s44, s44, s35"); e("s_lshl_b32 s44, s44, 2")
        e(f"s_lshl_b32 s{r}, s{r}, 8"); e(f"s_add_u32 s{r}, s{r}, s44")
    e("v_mov_b32 v6, s46"); e("v_mov_b32 v7, s47"); e("v_cmp_lt_u32 vcc, 31, v1"); e("v_and_b32 v8, 31, v1"); e("v_lshlrev_b32 v8, 11, v8")
    e("v_cndmask_b32 v6, v6, v7, vcc"); e("v_add_u32 v6, v6, v8")
    e(f"v_mov_b32 v4, {W_PF + 8}"); e("v_mov_b32 v5, 1"); e("v_mov_b32 v7, s3"); e(f"s_mov_b32 s44, {FZ2}")
    e("s_mov_b64 exec, 1")
    e("s_waitcnt vmcnt(0)")
    e("ds_add_rtn_u32 v8, v4, v5")
    e("s_waitcnt lgkmcnt(0)")
    e("v_readfirstlane_b32 s43, v8")
    e("s_mov_b64 exec, -1")
    e("s_cmp_lg_u32 s43, 3"); e("s_cbranch_scc1 m_P2")
    e("buffer_store_dword v7, v6, s[60:63], s44 offen sc1")
    gen_p2(k)
    gen_p3(k)
    gen_helper(k, epoch_poll)
    k.label("m_end")
    e("s_endpgm")
    return k.text(256, nsgpr=100)

def gen_p2(k):
    e = k.e
    k.label("m_P2")
    k.stamp(6)
    e("s_load_dwordx2 s[6:7], s[0:1], 80")
    e("s_lshr_b32 s35, s41, 1"); e("s_lshl_b32 s35, s35, 3"); e("s_lshr_b32 s43, s42, 2"); e("s_add_u32 s35, s35, s43")
    e("s_and_b32 s36, s42, 3")
    e("s_and_b32 s43, s41, 1"); e("s_mul_i32 s43, s43, 27"); e("s_mul_i32 s44, s36, 7"); e("s_add_u32 s37, s43, s44")
    e("v_and_b32 v240, 15, v1"); e("v_lshrrev_b32 v241, 4, v1"); e("v_mov_b32 v245, v1")
    e("v_lshrrev_b32 v2, 5, v1"); e("v_lshlrev_b32 v2, 3, v2"); e("v_bfe_u32 v3, v1, 3, 2"); e("v_add_u32 v2, v2, v3")
    e("v_lshlrev_b32 v2, 12, v2")
    e("v_and_b32 v3, 7, v1"); e("v_xor_b32 v3, v3, v241")
    e("v_lshl_add_u32 v242, v3, 4, v2")
    e("v_xor_b32 v3, 4, v3")
    e("v_lshl_add_u32 v243, v3, 4, v2"); e(f"v_add_u32 v243, {16*4096 - 1024}, v243")
    e("v_lshlrev_b32 v244, 4, v1")
    e("s_lshl_b32 s43, s35, 18"); e("s_lshl_b32 s44, s33, 10"); e("s_add_u32 s48, s43, s44")
    e(f"s_add_u32 s49, s48, {4*4096}"); e(f"s_add_u32 s50, s48, {32*4096}"); e(f"s_add_u32 s51, s48, {36*4096}")
    e("s_lshl_b32 s43, s37, 16"); e("s_lshl_b32 s44, s33, 14"); e("s_add_u32 s52, s43, s44")
    for c in range(1, 7): e(f"s_add_u32 s{52+c}, s52, {c*65536}")
    e("s_cmp_eq_u32 s36, 3"); e(f"s_cselect_b32 s58, {HUGE}, s58")
    e(f"s_mul_i32 s39, s33, {RING2}")
    k.srd(16, 10, 11, 2048*4096)
    k.srd(20, 14, 15, ZF_BYTES, WS_Z2F)
    k.srd(24, 14, 15, ZF_BYTES, WS_Z1F)
    k.srd(28, 14, 15, ZF_BYTES, WS_HF)
    def Z(st, c): return v(112 + st*28 + c*4, 4)
    def acc(c, sg): return v((c*4 + sg)*4, 4)
    def wf(sg): return v(224 + 4*sg, 4)
    def issueZ(n):
        if n % 4 == 0 and n:
            for c in range(7): e(f"s_add_u32 s{52+c}, s{52+c}, 4096")
        for c in range(7): k.vmem(f"buffer_load_dwordx4 {Z(n%4,c)}, v244, s[20:23], s{52+c} offen offset:{(n%4)*1024} sc1", f"Z{n}")
    def issueA(c):
        for t in range(4):
            e(f"s_add_u32 m0, s39, {(c%NSLOT)*8192 + t*2048}")
            e("s_nop 0")
            k.vmem(f"buffer_load_dwordx4 v242, s[16:19], s{48+t} offen lds", f"A{c}")
            k.vmem(f"buffer_load_dwordx4 v243, s[16:19], s{48+t} offen offset:1024 lds", f"A{c}")
        for t in range(4): e(f"s_add_u32 s{48+t}, s{48+t}, 128")
    k.vm = []
    e("v_lshrrev_b32 v5, 1, v240"); e("v_xor_b32 v5, v5, v241")
    e("v_lshlrev_b32 v4, 7, v240"); e("v_lshl_add_u32 v4, v5, 4, v4"); e("v_add_u32 v4, s39, v4")
    for sg in range(4):
        e(f"s_xor_b32 s43, s33, {sg}"); e("s_lshl_b32 s43, s43, 11")
        e(f"v_add_u32 v{246+sg}, s43, v4")
        e(f"v_xor_b32 v{250+sg}, 64, v{246+sg}")
    e("s_setprio 0")
    e(f"v_mov_b32 v4, {W_PF}")
    lds_wait(k, "m_wpf", "v4", "v5", sleep=1)
    k.srd(64, 6, 7, 4096)
    e("s_setprio 3")
    k.stamp(7); k.cyc(12)
    k.vm = []
    def issueZ1(n, c):
        if n % 4 == 0 and n and c == 0: e("v_add_u32 v254, 4096, v254"); e("v_and_b32 v254, 0x3fff, v254")
        k.vmem(f"buffer_load_dwordx4 {Z(n%4,c)}, v254, s[20:23], s{52+c} offen offset:{(n%4)*1024} sc1", f"Z{n}_{c}")
    def issueA1(c, t):
        e(f"s_add_u32 m0, s39, {(c%NSLOT)*8192 + t*2048}")
        e("s_nop 0")
        e(f"s_add_u32 s47, s{48+t}, s59")
        k.vmem(f"buffer_load_dwordx4 v242, s[16:19], s47 offen lds", f"A{c}")
        k.vmem(f"buffer_load_dwordx4 v243, s[16:19], s47 offen offset:1024 lds", f"A{c}")
        if t == 3: e("s_add_u32 s59, s59, 128"); e("s_and_b32 s59, s59, 1023")
    e(f"s_and_b32 s43, s35, {ROTM}"); e("s_lshl_b32 s59, s43, 8"); e("s_add_u32 s59, s59, 256"); e("s_and_b32 s59, s59, 1023")
    e("s_lshl_b32 s43, s43, 12"); e("v_add_u32 v254, s43, v244")
    for n in range(4):
        for c in range(7): issueZ1(n, c)
    for n in range(16):
        c, ks = n >> 1, n & 1
        if ks == 0 and f"A{c}" in k.vm: k.wait_vm(f"A{c}")
        for sg in range(4):
            e(f"ds_read_b128 {wf(sg)}, v{(250 if ks else 246)+sg} offset:{(c%NSLOT)*8192}")
        if n == 15:
            if f"Z{n}_6" in k.vm: k.wait_vm(f"Z{n}_6")
            e("s_waitcnt lgkmcnt(0)")
            for sg in (1, 3, 2, 0):
                for cc in range(7): e(f"{MFMA} {acc(cc,sg)}, {Z(n%4,cc)}, {wf(sg)}, {acc(cc,sg)}")
            continue
        for cc in range(7):
            if f"Z{n}_{cc}" in k.vm: k.wait_vm(f"Z{n}_{cc}")
            if n == 0 and cc == 0: k.stamp(8)
            for sg in range(4):
                if cc == 0: e(f"s_waitcnt lgkmcnt({3-sg})")
                e(f"{MFMA} {acc(cc,sg)}, {Z(n%4,cc)}, {wf(sg)}, {'0' if n == 0 else acc(cc,sg)}")
            if n + 4 < 16: issueZ1(n + 4, cc)
            if ks == 1 and c + NSLOT < 8 and cc in (0, 2, 4, 6): issueA1(c + NSLOT, cc // 2)
        if n == 12:
            e("s_lshl_b32 s43, s35, 2"); e("s_add_u32 s43, s43, s33"); e("s_mul_i32 s44, s43, 27648")
            for cc in range(7):
                e(f"s_add_u32 s45, s37, {cc}"); e("s_lshr_b32 s46, s45, 1"); e("s_lshl_b32 s46, s46, 10"); e("s_and_b32 s45, s45, 1"); e("s_lshl_b32 s45, s45, 3")
                e("s_add_u32 s45, s45, s46"); e(f"s_add_u32 s{52+cc}, s45, s44")
            e("s_cmp_eq_u32 s36, 3"); e(f"s_cselect_b32 s58, {HUGE}, s58")
            for cc in range(7): k.vmem(f"buffer_load_dwordx2 {v(112+2*cc,2)}, v244, s[24:27], s{52+cc} offen sc1", "z1")
            e("s_lshr_b32 s44, s43, 1"); e("s_lshl_b32 s44, s44, 5"); e("s_and_b32 s45, s43, 1"); e("s_lshl_b32 s45, s45, 2"); e("s_add_u32 s44, s44, s45")
            e("v_lshrrev_b32 v128, 2, v240"); e("v_and_b32 v129, 3, v240"); e("v_lshl_add_u32 v128, v128, 3, v129"); e("v_add_u32 v128, s44, v128")
            e("v_lshlrev_b32 v128, 1, v128")
            k.vmem("buffer_load_ushort v126, v128, s[64:67], 0 offen", "z1")
        if n == 12:
            e("s_lshl_b32 s43, s33, 2"); e(f"s_add_u32 s43, s43, {W_GL}"); e("v_mov_b32 v254, s43"); e("v_mov_b32 v255, 1")
            e("ds_write_b32 v254, v255")
    k.stamp(9); k.cyc(13)
    e("v_add_u32 v130, s39, v244")
    e("s_xor_b32 s43, s33, 1"); e(f"s_mul_i32 s43, s43, {RING2}"); e("v_add_u32 v131, s43, v244")
    e("s_xor_b32 s43, s33, 3"); e(f"s_mul_i32 s43, s43, {RING2}"); e("v_add_u32 v132, s43, v244")
    e(f"v_add_u32 v133, {W_R1 - W_GL}, v254")
    e("v_xor_b32 v134, 4, v133"); e("v_xor_b32 v135, 8, v133"); e("v_add_u32 v135, 16, v135")
    for c in range(7):
        for h in range(2): e(f"ds_write_b128 v130, {acc(c,1+2*h)} offset:{(c*2+h)*1024}")
    e("ds_write_b32 v133, v255")
    lds_wait(k, "m_wr1", "v134", "v136")
    T = 140
    for h in (1, 0):
        for c in range(7): e(f"ds_read_b128 {v(T+(c*2+h)*4,4)}, v131 offset:{(c*2+h)*1024}")
    e("s_waitcnt lgkmcnt(7)")
    for c in range(7):
        for p in range(2):
            a = (c*4 + 2)*4 + 2*p
            e(f"v_pk_add_f32 {pr(a)}, {pr(a)}, {pr(T+(c*2+1)*4+2*p)}")
    e("s_waitcnt lgkmcnt(0)")
    for c in range(7): e(f"ds_write_b128 v131, {acc(c,2)} offset:{c*1024}")
    e("ds_write_b32 v133, v255 offset:16")
    for c in range(7):
        for p in range(2):
            a = (c*4)*4 + 2*p
            e(f"v_pk_add_f32 {pr(a)}, {pr(a)}, {pr(T+(c*2)*4+2*p)}")
    lds_wait(k, "m_wr2", "v135", "v136")
    for c in range(7): e(f"ds_read_b128 {v(T+c*4,4)}, v132 offset:{c*1024}")
    e("s_waitcnt vmcnt(0)")
    k.vm = []
    e("v_lshlrev_b32 v126, 16, v126")
    for i in range(14): unpack(k, f"v{170+2*i}", f"v{171+2*i}", f"v{112+i}")
    k.srd(16, 14, 15, WOF_BYTES, WS_WOF)
    e("s_and_b32 s43, s41, 1"); e("s_lshl_b32 s43, s43, 2"); e("s_add_u32 s45, s36, s43")
    e("s_xor_b32 s43, s33, 3"); e("s_lshl_b32 s46, s43, 4"); e("s_sub_i32 s46, s46, 22"); e("s_max_i32 s46, s46, 0")
    e("s_cmp_eq_u32 s43, 1"); e("s_cselect_b32 s47, 10, 16"); e("s_cmp_eq_u32 s43, 0"); e("s_cselect_b32 s47, 0, s47")
    e("s_lshl_b32 s46, s46, 10"); e("s_mul_i32 s48, s45, 138240"); e("s_add_u32 s48, s48, s46"); e(f"s_add_u32 s46, s46, {IMG}")
    e(f"v_mov_b32 v136, {W_FX}")
    lds_wait(k, "m_wfw2", "v136", "v137")
    e("s_cmp_eq_u32 s47, 0"); e("s_cbranch_scc1 m_gwodone")
    k.label("m_gwoloop")
    e("s_mov_b32 m0, s46"); e("s_add_u32 s46, s46, 2048")
    e("buffer_load_dwordx4 v244, s[16:19], s48 offen sc1 lds"); e("buffer_load_dwordx4 v244, s[16:19], s48 offen offset:1024 sc1 lds")
    e("s_add_u32 s48, s48, 2048"); e("s_sub_u32 s47, s47, 2"); e("s_cmp_lg_u32 s47, 0"); e("s_cbranch_scc1 m_gwoloop")
    k.label("m_gwodone")
    A = [c*16 + 2*p for c in range(7) for p in range(2)]
    for i in range(14): e(f"v_pk_add_f32 {pr(A[i])}, {pr(A[i])}, {pr(T+2*i)}")
    for i in range(14): e(f"v_pk_add_f32 {pr(A[i])}, {pr(A[i])}, v[126:127] op_sel_hi:[1,0]")
    for i in range(14): e(f"v_pk_mul_f32 {pr(A[i])}, {pr(A[i])}, {pr(170+2*i)}")
    for i in range(14): e(f"v_cvt_pk_bf16_f32 v{200+i}, v{A[i]}, v{A[i]+1}")
    e("s_bitcmp1_b32 s37, 0"); e("s_cbranch_scc1 m_hodd")
    for c in (0, 2, 4): e(f"buffer_store_dwordx4 {v(200+2*c,4)}, v244, s[28:31], s{52+c} offen sc1")
    e(f"buffer_store_dwordx2 {v(212,2)}, v244, s[28:31], s58 offen sc1")
    e("s_branch m_hdone")
    k.label("m_hodd")
    e(f"buffer_store_dwordx2 {v(200,2)}, v244, s[28:31], s52 offen sc1")
    for c in (1, 3): e(f"buffer_store_dwordx4 {v(200+2*c,4)}, v244, s[28:31], s{52+c} offen sc1")
    e("s_cmp_eq_u32 s36, 3"); e("s_cbranch_scc1 m_hodd6")
    e(f"buffer_store_dwordx4 {v(210,4)}, v244, s[28:31], s57 offen sc1")
    e("s_branch m_hdone")
    k.label("m_hodd6")
    e(f"buffer_store_dwordx2 {v(210,2)}, v244, s[28:31], s57 offen sc1")
    k.label("m_hdone")
    e("v_mov_b32 v1, v245")
    e("s_and_b32 s43, s41, 1"); e("s_lshl_b32 s43, s43, 2"); e("s_add_u32 s36, s36, s43")
    e(f"v_mov_b32 v4, {W_PF + 4}"); e("v_mov_b32 v5, 1"); e("v_lshlrev_b32 v6, 7, v1"); e("v_mov_b32 v7, s3")
    e("s_lshl_b32 s44, s35, 10"); e("s_lshl_b32 s45, s36, 2"); e("s_add_u32 s44, s44, s45"); e(f"s_add_u32 s44, s44, {FH2}")
    e("s_mov_b64 exec, 1")
    e("s_waitcnt vmcnt(0)")
    e("ds_add_rtn_u32 v8, v4, v5")
    e("s_waitcnt lgkmcnt(0)")
    e("v_readfirstlane_b32 s43, v8")
    e("s_mov_b64 exec, 0xff")
    e("s_cmp_lg_u32 s43, 3"); e("s_cbranch_scc1 m_nopub")
    e("buffer_store_dword v7, v6, s[60:63], s44 offen sc1")
    k.label("m_nopub")
    e("s_mov_b64 exec, -1")
    e("s_setprio 0")
    e("v_and_b32 v2, 15, v1"); e("v_lshrrev_b32 v3, 4, v1")
    e("s_mov_b32 s47, 0"); e("s_mov_b32 s46, 0")

def gen_p3(k):
    e = k.e
    k.label("m_P3")
    k.stamp(10)
    e("s_lshr_b32 s34, s32, 2")
    e("v_lshlrev_b32 v15, 4, v1")
    k.srd(16, 14, 15, WOF_BYTES, WS_WOF)
    k.srd(20, 14, 15, ZF_BYTES, WS_HF)
    k.srd(24, 4, 5, 2048*1280)
    k.srd(28, 98, 99, 2048*1280)
    e("s_lshl_b32 s46, s46, 10"); e("s_mul_i32 s48, s36, 138240"); e("s_add_u32 s48, s48, s46"); e(f"s_add_u32 s46, s46, {IMG}")
    e("s_cmp_eq_u32 s47, 0"); e("s_cbranch_scc1 m_wodone")
    k.label("m_woloop")
    e("s_mov_b32 m0, s46"); e("s_add_u32 s46, s46, 1024")
    e("buffer_load_dwordx4 v15, s[16:19], s48 offen sc1 lds")
    e("s_add_u32 s48, s48, 1024"); e("s_sub_u32 s47, s47, 1"); e("s_cmp_lg_u32 s47, 0"); e("s_cbranch_scc1 m_woloop")
    k.label("m_wodone")
    def H(g, sg): return v(16 + (g*2 + sg)*4, 4)
    def WF(g, db): return v(72 + (g*5 + db)*4, 4)
    def acc(sg, db): return v(212 + (sg*5 + db)*4, 4)
    e("s_cmp_eq_u32 s33, 3"); e(f"s_cselect_b32 s45, {HUGE}, 6144")
    e("s_and_b32 s43, s33, 1"); e("s_lshl_b32 s44, s34, 1"); e("s_add_u32 s57, s43, s44")
    e("s_lshr_b32 s58, s33, 1"); e("s_mul_i32 s58, s58, 3")
    e("s_lshr_b32 s43, s57, 1"); e("s_lshl_b32 s43, s43, 5"); e("s_and_b32 s44, s57, 1"); e("s_lshl_b32 s44, s44, 2"); e("s_add_u32 s59, s43, s44")
    e("s_lshl_b32 s43, s35, 6"); e("s_add_u32 s43, s43, s59")
    e("v_lshrrev_b32 v6, 2, v2"); e("v_and_b32 v7, 3, v2"); e("v_lshl_add_u32 v6, v6, 3, v7"); e("v_add_u32 v6, s43, v6")
    e("v_mul_u32_u24 v6, 1280, v6"); e("v_lshl_add_u32 v6, v3, 3, v6"); e("s_mul_i32 s43, s36, 160"); e("v_add_u32 v14, s43, v6")
    for i in range(3):
        e(f"s_add_u32 s43, s58, {i}"); e(f"s_min_u32 s{68+i}, s43, 4")
        e(f"s_lshl_b32 s{72+i}, s{68+i}, 5")
    k.srd(64, 14, 15, XT_BYTES, WS_YT)
    e("s_lshl_b32 s43, s35, 2"); e("s_lshl_b32 s44, s34, 1"); e("s_add_u32 s43, s43, s44"); e("s_mul_i32 s43, s43, 27"); e("s_mul_i32 s44, s33, 7"); e("s_add_u32 s43, s43, s44")
    e("s_lshl_b32 s46, s43, 10"); e("s_add_u32 s47, s46, 27648")
    e("s_add_u32 s48, s46, 4096"); e("s_add_u32 s49, s47, 4096"); e("s_add_u32 s50, s46, s45"); e("s_add_u32 s51, s47, s45")
    e("s_mul_i32 s43, s33, 35840"); e(f"s_add_u32 s43, s43, {IMG}"); e("v_add_u32 v252, s43, v15")
    e("s_cmp_eq_u32 s33, 3"); e("s_cselect_b32 s43, 5120, 0"); e("v_subrev_u32 v253, s43, v252")
    e("v_and_b32 v4, 7, v1"); e("v_lshlrev_b32 v4, 2, v4")
    e("s_lshl_b32 s44, s35, 10"); e("s_lshl_b32 s43, s36, 7"); e("s_add_u32 s44, s44, s43"); e(f"s_add_u32 s44, s44, {FH2}")
    e("v_min_u32 v254, 39, v1"); e("v_lshlrev_b32 v254, 3, v254")
    e("s_mul_i32 s52, s36, 320"); e(f"s_add_u32 s52, s52, {FY}")
    e("s_cmp_ge_u32 s32, 4"); e("s_cbranch_scc1 m_nwv")
    e("s_waitcnt vmcnt(0)")
    k.label("m_nwv")
    e("s_barrier")
    k.stamp(4)
    e("s_cmp_lg_u32 s32, 3"); e("s_cbranch_scc1 m_nhp")
    e("buffer_load_dword v5, v4, s[60:63], s44 offen sc1")
    k.label("m_nhp")
    e("s_cmp_lg_u32 s32, 2"); e("s_cbranch_scc1 m_nyp")
    e("buffer_load_dwordx2 v[248:249], v254, s[60:63], s52 offen sc1")
    k.label("m_nyp")
    for g in range(7):
        for db in range(5): e(f"ds_read_b128 {WF(g,db)}, v{253 if g == 6 else 252} offset:{g*5120 + db*1024}")
    for i in range(3): e(f"buffer_load_dwordx2 {v(8+2*i,2)}, v14, s[24:27], s{72+i} offen")
    e("v_lshrrev_b32 v244, 3, v1"); e("v_lshlrev_b32 v244, 12, v244"); e("v_and_b32 v245, 7, v1"); e("v_lshl_add_u32 v244, v245, 4, v244")
    e("s_mul_i32 s53, s36, 80"); e("s_lshl_b32 s43, s32, 3"); e("s_add_u32 s53, s53, s43"); e("s_lshl_b32 s53, s53, 12"); e("s_lshl_b32 s43, s35, 7"); e("s_add_u32 s53, s53, s43")
    e("s_cmp_lt_u32 s32, 2"); e(f"s_cselect_b32 s54, {64*4096}, 0"); e("s_cselect_b32 s55, 8192, 0"); e("s_add_u32 s54, s54, s53")
    e("s_lshl_b32 s43, s32, 10"); e(f"s_add_u32 s43, s43, {YTILE}"); e("v_add_u32 v246, s43, v15"); e("v_add_u32 v247, s55, v246")
    e("s_cmp_lg_u32 s32, 3"); e("s_cbranch_scc1 m_hw")
    poll_flags(k, "m_pollh", "v4", FLS, 1, 5, "v6", soff="s44", sleep=2, preloaded=True)
    k.label("m_hw")
    e("s_cmp_lg_u32 s32, 2"); e("s_cbranch_scc1 m_noy")
    poll_flags(k, "m_polly", "v254", FLS, 2, 248, "v5", soff="s52", sleep=8, preloaded=True)
    k.label("m_noy")
    e("s_waitcnt lgkmcnt(0)")
    e("s_barrier")
    k.stamp(11)
    k.vm = []
    k.vmem("buffer_load_dwordx4 v[236:239], v244, s[64:67], s53 offen sc1", "y")
    k.vmem("buffer_load_dwordx4 v[240:243], v244, s[64:67], s54 offen sc1", "y")
    for g in range(7):
        for sg in range(2):
            so = 46 + sg + (0 if g < 4 else 2 if g < 6 else 4)
            k.vmem(f"buffer_load_dwordx4 {H(g,sg)}, v15, s[20:23], s{so} offen offset:{(g%4)*1024 if g < 6 else 0} sc1", f"h{g}")
    e("s_mul_i32 s43, s32, 10240"); e("v_add_u32 v252, s43, v15")
    e("s_mul_i32 s43, s34, 40960"); e("s_and_b32 s44, s33, 1"); e("s_mul_i32 s44, s44, 5120"); e("s_add_u32 s43, s43, s44")
    e("v_bfe_u32 v4, v1, 2, 2"); e("v_lshl_add_u32 v4, v3, 2, v4"); e("v_lshlrev_b32 v4, 7, v4")
    e("v_and_b32 v5, 3, v1"); e("v_lshl_add_u32 v4, v5, 4, v4")
    e("s_lshl_b32 s44, s59, 1"); e(f"s_add_u32 s44, s44, {YTILE}"); e("v_add_u32 v4, s44, v4")
    for i in range(3):
        e(f"s_lshl_b32 s44, s{68+i}, 10"); e("s_add_u32 s44, s44, s43"); e(f"v_add_u32 v{253+i}, s44, v15")
        e(f"s_lshl_b32 s44, s{68+i}, 11"); e(f"v_add_u32 v{5+i}, s44, v4")
    for g in range(7):
        k.wait_vm(f"h{g}")
        if g == 0: e("ds_write_b128 v246, v[236:239]"); e("ds_write_b128 v247, v[240:243]"); e("s_waitcnt lgkmcnt(0)")
        for db in range(5):
            for sg in range(2):
                e(f"{MFMA} {acc(sg,db)}, {WF(g,db)}, {H(g,sg)}, {'0' if g == 0 else acc(sg,db)}")
    e("s_nop 2")
    e("s_nop 1")
    for db in range(5):
        for sg in range(2): e(f"ds_write_b128 v252, {acc(sg,db)} offset:{(sg*5+db)*1024}")
    for i in range(6): unpack(k, f"v{96+2*i}", f"v{97+2*i}", f"v{8+i}")
    e("s_waitcnt lgkmcnt(0)")
    e("s_barrier")
    for i in range(3): e(f"ds_read_b64_tr_b16 {v(24+2*i,2)}, v{5+i}")
    for i in range(3):
        for kq in range(4): e(f"ds_read_b128 {v(32+(i*4+kq)*4,4)}, v{253+i} offset:{kq*10240}")
    e("s_waitcnt lgkmcnt(12)")
    for n in range(6): unpack(k, f"v{112+2*n}", f"v{113+2*n}", f"v{24+n}")
    for n in range(6): e(f"v_pk_add_f32 {pr(96+2*n)}, {pr(96+2*n)}, {pr(112+2*n)}")
    e("s_waitcnt lgkmcnt(0)")
    A = [32 + i*16 + 2*p for i in range(3) for p in range(2)]
    for n in range(6): e(f"v_pk_add_f32 {pr(A[n])}, {pr(A[n])}, {pr(A[n]+4)}"); e(f"v_pk_add_f32 {pr(A[n]+8)}, {pr(A[n]+8)}, {pr(A[n]+12)}")
    for n in range(6): e(f"v_pk_add_f32 {pr(A[n])}, {pr(A[n])}, {pr(A[n]+8)}")
    for n in range(6): e(f"v_pk_add_f32 {pr(A[n])}, {pr(A[n])}, {pr(96+2*n)}")
    for n in range(6): e(f"v_cvt_pk_bf16_f32 v{24+n}, v{A[n]}, v{A[n]+1}")
    for i in range(3): e(f"buffer_store_dwordx2 {v(24+2*i,2)}, v14, s[28:31], s{72+i} offen")
    e("s_lshl_b32 s43, s2, 3"); e("s_add_u32 s43, s43, s32"); e("s_cmp_lg_u32 s43, 4"); e("s_cbranch_scc1 m_fin")
    k.srd(64, 12, 13, 256)
    e("v_mov_b32 v4, 0"); e("s_mov_b64 exec, 1")
    e("buffer_store_dword v4, v4, s[64:67], 0 offen sc1")
    k.label("m_fin")
    k.end(0)

def gen_helper(k, epoch_poll):
    e = k.e
    k.label("m_helper")
    e("s_lshl_b32 s35, s41, 2"); e("s_add_u32 s35, s35, s42"); e("s_sub_u32 s35, s35, 28")
    e("v_and_b32 v2, 15, v1"); e("v_lshrrev_b32 v3, 4, v1")
    e("s_lshl_b32 s43, s32, 3")
    e("v_add_u32 v4, s43, v3")
    e("s_lshl_b32 s44, s35, 6")
    e("v_add_u32 v5, s44, v4"); e("v_mul_u32_u24 v5, 1280, v5"); e("v_lshl_add_u32 v5, v2, 4, v5")
    e("v_add_u32 v6, 5120, v5")
    e("v_mul_u32_u24 v7, 1296, v4"); e("v_lshl_add_u32 v7, v2, 4, v7")
    e("v_mov_b32 v110, 0")
    e("v_and_b32 v4, 31, v1"); e(f"v_lshlrev_b32 v4, 2, v4"); e(f"v_add_u32 v4, {W_EPOCH}, v4")
    e("s_cmp_lg_u32 s32, 4"); e("s_cbranch_scc1 m_hnoclr")
    e("ds_write_b32 v4, v110")
    k.label("m_hnoclr")
    e("s_waitcnt lgkmcnt(0)")
    k.srd(16, 4, 5, 2048*1280)
    k.srd(28, 14, 15, XT_BYTES, WS_XNT)
    k.srd(64, 12, 13, 256)
    k.srd(FLS, 14, 15, FL_BYTES, WS_FL)
    k.srd(20, 96, 97, 864*1280)
    k.vm = []
    for g in range(2):
        for n in range(5):
            k.vmem(f"buffer_load_dwordx4 {v(8+g*20+n*4,4)}, v{5+g}, s[16:19], 0 offen offset:{n*256}", f"x{g}")
    XB = (48, 128)
    for g in range(2):
        k.stamp(1+2*g)
        k.wait_vm(f"x{g}")
        if g == 0: k.vmem("buffer_load_dword v111, v110, s[64:67], 0 offen sc1", "ep")
        X = XB[g]; src = 8 + g*20; M, R = 112 + 4*g, 114 + 4*g
        for n in range(20): unpack(k, f"v{X+2*n}", f"v{X+2*n+1}", f"v{src+n}")
        e(f"v_pk_add_f32 v[88:89], {pr(X)}, {pr(X+4)}"); e(f"v_pk_add_f32 v[90:91], {pr(X+2)}, {pr(X+6)}")
        for n in range(4, 20): e(f"v_pk_add_f32 {pr(88+2*(n%2))}, {pr(88+2*(n%2))}, {pr(X+2*n)}")
        e("v_pk_add_f32 v[88:89], v[88:89], v[90:91]"); e("s_nop 0"); e("v_add_f32 v88, v88, v89")
        for sh in (8, 4, 2, 1):
            e("s_nop 1"); e(f"v_add_f32_dpp v88, v88, v88 row_ror:{sh} row_mask:0xf bank_mask:0xf")
        e(f"v_mul_f32 v{M}, {f32(1/640)}, v88")
        for a_ in range(4): e(f"v_mov_b32 v{92+a_}, 0")
        for n0 in range(0, 20, 4):
            for a_ in range(4): e(f"v_pk_add_f32 {pr(96+2*a_)}, {pr(X+2*(n0+a_))}, {pr(M)} op_sel_hi:[1,0] neg_lo:[0,1] neg_hi:[0,1]")
            for a_ in range(4): e(f"v_pk_fma_f32 {pr(92+2*(a_%2))}, {pr(96+2*a_)}, {pr(96+2*a_)}, {pr(92+2*(a_%2))}")
        e("v_pk_add_f32 v[92:93], v[92:93], v[94:95]"); e("s_nop 0"); e("v_add_f32 v92, v92, v93")
        for sh in (8, 4, 2, 1):
            e("s_nop 1"); e(f"v_add_f32_dpp v92, v92, v92 row_ror:{sh} row_mask:0xf bank_mask:0xf")
        e(f"v_mul_f32 v{R}, {f32(1/640)}, v92")
        ln_finish(k, f"v{M}", f"v{R}", "v89")
    e("s_mov_b32 s40, 0")
    k.label("m_hep")
    e("s_waitcnt vmcnt(0)")
    e("v_readfirstlane_b32 s3, v111")
    e("s_add_u32 s40, s40, 1")
    e("s_cmp_lg_u32 s3, 0"); e("s_cbranch_scc1 m_hepok")
    e("buffer_load_dword v111, v110, s[64:67], 0 offen sc1")
    e(f"s_cmp_lt_u32 s40, {SPIN}"); e("s_cbranch_scc1 m_hep")
    k.label("m_hepok")
    k.vm = []
    k.srd(24, 14, 15, 32768, WS_ST1)
    for r in (113, 115, 117, 119): e(f"v_mov_b32 v{r}, v111")
    e("s_lshl_b32 s43, s35, 10"); e("s_lshl_b32 s44, s32, 7"); e("s_add_u32 s43, s43, s44"); e("v_lshlrev_b32 v5, 4, v3")
    e("v_cmp_eq_u32 vcc, 0, v2"); e("s_and_saveexec_b64 s[44:45], vcc")
    e("buffer_store_dwordx4 v[112:115], v5, s[24:27], s43 offen sc1"); e("buffer_store_dwordx4 v[116:119], v5, s[24:27], s43 offen offset:64 sc1")
    e("s_mov_b64 exec, -1")
    k.stamp(2)
    e("v_lshlrev_b32 v120, 4, v1")
    e("s_lshl_b32 s43, s35, 3"); e("s_add_u32 s43, s43, s32"); e("s_mul_i32 s43, s43, 4352")
    for n in range(4): e(f"buffer_load_dwordx4 v[124:127], v120, s[20:23], s43 offen offset:{n*1024}")
    e("s_add_u32 s43, s43, 4096")
    e(f"buffer_load_dwordx4 v[124:127], v120, s[20:23], s43 offen")
    for g in range(2):
        X = XB[g]; src = 8 + g*20; M, R = 112 + 4*g, 114 + 4*g
        for n in range(20): e(f"v_pk_add_f32 {pr(X+2*n)}, {pr(X+2*n)}, {pr(M)} op_sel_hi:[1,0] neg_lo:[0,1] neg_hi:[0,1]")
        for n in range(20): e(f"v_pk_mul_f32 {pr(X+2*n)}, {pr(X+2*n)}, {pr(R)} op_sel_hi:[1,0]")
        for n in range(20): e(f"v_cvt_pk_bf16_f32 v{src+n}, v{X+2*n}, v{X+2*n+1}")
        for n in range(5):
            e(f"ds_write_b128 v7, {v(src+4*n,4)} offset:{g*4*1296 + n*256}")
    e(f"v_mov_b32 v9, {W_EPOCH}")
    e("s_cmp_lg_u32 s32, 4"); e("s_cbranch_scc1 m_hepdone")
    e("ds_write_b32 v9, v111")
    k.label("m_hepdone")
    e("s_waitcnt lgkmcnt(0)")
    e("s_barrier")
    k.stamp(4)
    e("v_bfe_u32 v4, v1, 2, 2"); e("v_lshl_add_u32 v4, v3, 3, v4"); e("v_mul_u32_u24 v4, 1296, v4")
    e("v_and_b32 v5, 3, v1"); e("v_lshl_add_u32 v4, v5, 3, v4")
    e("s_lshl_b32 s43, s32, 5"); e("v_add_u32 v4, s43, v4")
    e(f"v_add_u32 v5, {32*1296}, v4")
    for n in range(5):
        for th in range(2):
            for hh in range(2):
                e(f"ds_read_b64_tr_b16 {v(16+(n*2+th)*4+hh*2,2)}, v{4+th} offset:{hh*4*1296 + n*256}")
    e("s_mul_i32 s43, s32, 4608"); e("s_add_u32 s43, s43, 90112")
    e("v_mul_u32_u24 v5, 144, v2"); e("v_lshl_add_u32 v5, v3, 4, v5"); e("v_add_u32 v5, s43, v5")
    e("v_lshrrev_b32 v4, 3, v1"); e("v_lshlrev_b32 v6, 12, v4"); e("v_mul_u32_u24 v4, 144, v4"); e("v_and_b32 v7, 7, v1"); e("v_lshl_add_u32 v4, v7, 4, v4"); e("v_add_u32 v4, s43, v4")
    e("v_lshl_add_u32 v6, v7, 4, v6")
    e("s_lshl_b32 s46, s32, 16"); e("s_lshl_b32 s44, s35, 7"); e("s_add_u32 s46, s46, s44"); e("s_add_u32 s47, s46, 32768")
    e("s_waitcnt vmcnt(0) lgkmcnt(0)")
    for n in range(5):
        o = (n % 2) * 2304
        for th in range(2): e(f"ds_write_b128 v5, {v(16+(n*2+th)*4,4)} offset:{o + th*64}")
        for hf in range(2): e(f"ds_read_b128 {v(56+(n*2+hf)*4,4)}, v4 offset:{o + hf*8*144}")
    for n in range(5):
        e(f"s_waitcnt lgkmcnt({min(15, 4*(4-n))})")
        for hf in range(2):
            e(f"buffer_store_dwordx4 {v(56+(n*2+hf)*4,4)}, v6, s[28:31], s{46+hf} offen" + ("" if "wb" in EXP else " sc1"))
        e(f"s_add_u32 s46, s46, {8*65536}"); e(f"s_add_u32 s47, s47, {8*65536}")
    def publish(imm, tag):
        e("s_waitcnt vmcnt(0) lgkmcnt(0)")
        e("s_barrier")
        e("s_cmp_lg_u32 s32, 4"); e(f"s_cbranch_scc1 m_hnp{tag}")
        e("s_lshl_b32 s45, s35, 2"); e(f"s_add_u32 s45, s45, {FX}")
        set_flag(k, FLS, "s45", 0, "v7", "v8")
        k.label(f"m_hnp{tag}")
    e("s_load_dwordx8 s[64:71], s[0:1], 8")
    e("s_load_dwordx4 s[72:75], s[0:1], 40")
    e("s_cmp_ge_u32 s32, 4"); e("s_cbranch_scc1 m_hG")
    conv_params(k)
    k.label("m_hG")
    publish(192, "x")
    k.stamp(5)
    e("s_cmp_lt_u32 s32, 4"); e("s_cbranch_scc1 m_Lpost")
    e(f"v_mov_b32 v4, {W_PF + 8}"); e("v_mov_b32 v5, 4"); e("ds_write_b32 v4, v5")
    k.srd(24, 14, 15, WOF_BYTES, WS_WOF)
    e("s_lshl_b32 s36, s35, 2"); e("s_add_u32 s36, s36, s33")
    e("v_lshrrev_b32 v4, 3, v1"); e("v_mul_u32_u24 v111, 1280, v4"); e("v_and_b32 v5, 7, v1"); e("v_lshl_add_u32 v111, v5, 4, v111")
    e("s_mul_i32 s43, s33, 4608"); e(f"s_add_u32 s43, s43, {CONV0 + 3*CONV_B}")
    e("v_mul_u32_u24 v4, 144, v4"); e("v_lshl_add_u32 v4, v5, 4, v4"); e("v_add_u32 v4, s43, v4")
    e("v_bfe_u32 v5, v1, 2, 2"); e("v_lshl_add_u32 v5, v3, 2, v5"); e("v_mul_u32_u24 v5, 144, v5"); e("v_and_b32 v6, 3, v1"); e("v_lshl_add_u32 v5, v6, 3, v5"); e("v_add_u32 v5, s43, v5")
    e("v_lshlrev_b32 v6, 4, v1")
    k.vm = []
    for it in range(3):
        e(f"s_add_u32 s43, s36, {128*it}"); e("s_mul_i32 s44, s43, 205"); e("s_lshr_b32 s44, s44, 11"); e("s_mul_i32 s45, s44, 10"); e("s_sub_u32 s45, s43, s45")
        e("s_mul_i32 s46, s44, 40960"); e("s_lshl_b32 s47, s45, 7"); e("s_add_u32 s46, s46, s47")
        for d in range(4):
            e(f"s_lshl_b32 s47, s45, 2"); e(f"s_add_u32 s47, s47, {d}"); e("s_mul_i32 s34, s47, 52"); e("s_lshr_b32 s34, s34, 8")
            e("s_mul_i32 s34, s34, 130"); e("s_add_u32 s47, s47, s34"); e("s_mul_i32 s34, s44, 5"); e("s_add_u32 s47, s47, s34"); e("s_lshl_b32 s47, s47, 10")
            e("s_cmp_lt_u32 s43, 270"); e(f"s_cselect_b32 s{48+it*4+d}, s47, {HUGE}")
        for n in range(4):
            k.vmem(f"buffer_load_dwordx4 {v(16+it*16+n*4,4)}, v111, s[20:23], s46 offen", f"wo{it}")
            e("s_add_u32 s46, s46, 10240")
    for it in range(3):
        k.wait_vm(f"wo{it}")
        for n in range(4): e(f"ds_write_b128 v4, {v(16+it*16+n*4,4)} offset:{n*8*144}")
        for d in range(4):
            for hh in range(2): e(f"ds_read_b64_tr_b16 {v(64+it*16+d*4+hh*2,2)}, v5 offset:{hh*16*144 + d*32}")
    e("s_waitcnt lgkmcnt(0)")
    for it in range(3):
        for d in range(4): e(f"buffer_store_dwordx4 {v(64+it*16+d*4,4)}, v6, s[24:27], s{48+it*4+d} offen sc1")
    e(f"v_mov_b32 v4, {W_FX + 8}"); e("v_mov_b32 v5, 1"); e("v_lshlrev_b32 v7, 9, v1"); e("v_mov_b32 v9, s3")
    e("s_lshl_b32 s44, s35, 2"); e(f"s_add_u32 s44, s44, {FZ2}")
    e("s_mov_b64 exec, 1")
    e("s_waitcnt vmcnt(0)")
    e("ds_add_rtn_u32 v8, v4, v5")
    e("s_waitcnt lgkmcnt(0)")
    e("v_readfirstlane_b32 s43, v8")
    e("s_mov_b64 exec, -1")
    e("s_cmp_lg_u32 s43, 3"); e("s_cbranch_scc1 m_P2")
    e("s_lshl_b32 s45, s35, 2"); e(f"s_add_u32 s45, s45, {FK}")
    set_flag(k, FLS, "s45", 0, "v7", "v8")
    e("s_branch m_P2")

if __name__ == "__main__":
    import sys
    NAME = "parallel_sum__ssm_conv_s4d__mixer_gmlp__prompt"
    path = sys.argv[1] if len(sys.argv) > 1 else f"cdna_kernels/{NAME}.s"
    t, kd = gen_mega(NAME + "_kernel")
    hdr = open(f"cdna_kernels/{NAME}.s.ref").read().split("; Override launch")[0]
    lst = os.environ.get("LIST", "0") == "1"
    out = hdr + (f"; @launch kernel={NAME}_kernel grid=(256,1,1) block=(512,1,1) lds={LDS_TOTAL}\n" if lst else f"; @launch grid=(256,1,1) block=(512,1,1) lds={LDS_TOTAL}\n")
    out += '.amdgcn_target "amdgcn-amd-amdhsa--gfx950"\n.text\n' + t + '\ntext_end:\n.section .rodata,"a"\n.p2align 6\n' + kd + "\n"
    open(path, "w").write(out)
```

```python
from mega_common import *
FLS = 60
WS_ST1 = 27*MB
RING2 = 16384
CONV0 = 65536
CONV_B = 15360
YTILE = 81920
IMG = 22528
NSLOT = 2
ZD = int(os.environ.get('ZD', '24'))
ZSL = int(os.environ.get('ZSL', '2'))
ROTM = int(os.environ.get('ROTM', '0'))
WS_KC = 26*MB
KC_BYTES = 640 * 1536

def conv_params(k):
    e = k.e
    e("s_lshl_b32 s34, s2, 1"); e("s_add_u32 s34, s34, s32")
    e("s_lshl_b32 s56, s41, 4"); e("s_lshr_b32 s57, s42, 1"); e("s_add_u32 s56, s56, s57"); e("s_add_u32 s56, s56, 512")
    e("s_bitcmp1_b32 s42, 0"); e("s_cselect_b32 s56, s56, 1000")
    e("s_cmp_eq_u32 s32, 2"); e("s_cselect_b32 s34, s56, s34")
    e("s_cmp_eq_u32 s32, 3"); e("s_cselect_b32 s34, 1000, s34")
    e("s_lshl_b32 s56, s34, 8"); e("s_lshl_b32 s57, s34, 1")
    e("v_lshlrev_b32 v4, 2, v1"); e("v_mov_b32 v5, 0")
    e("s_waitcnt lgkmcnt(0)")
    for a in range(4):
        k.srd(28, 64+2*a, 65+2*a, 640*256)
        e(f"buffer_load_dword v{164+a}, v4, s[28:31], s56 offen")
    k.srd(28, 72, 73, 1280); e("buffer_load_ushort v13, v5, s[28:31], s57 offen")
    k.srd(28, 74, 75, 1280); e("buffer_load_ushort v14, v5, s[28:31], s57 offen")

def gen_mega(name):
    k = Kern(name)
    e = k.e
    e("s_cmp_ge_u32 s2, 256"); e("s_cbranch_scc1 m_end")
    k.stamp_init()
    e("s_load_dwordx2 s[4:5], s[0:1], 0")
    e("s_load_dwordx4 s[8:11], s[0:1], 64")
    e("s_load_dwordx4 s[12:15], s[0:1], 104")
    e("s_load_dwordx4 s[96:99], s[0:1], 88")
    e("v_and_b32 v1, 63, v0")
    e("v_lshrrev_b32 v2, 6, v0")
    e("s_and_b32 s41, s2, 7")
    e("v_readfirstlane_b32 s32, v2")
    e("s_lshr_b32 s42, s2, 3")
    e("s_and_b32 s33, s32, 3")
    e("s_cmp_ge_u32 s42, 28"); e("s_cbranch_scc1 m_helper")
    e("s_mul_i32 s43, s42, 37"); e("s_lshr_b32 s43, s43, 8")
    e("s_mul_i32 s44, s43, 7"); e("s_sub_u32 s44, s42, s44")
    e("s_lshr_b32 s35, s41, 1"); e("s_lshl_b32 s35, s35, 2"); e("s_add_u32 s35, s35, s43")
    e("s_and_b32 s36, s41, 1"); e("s_mul_i32 s36, s36, 7"); e("s_add_u32 s36, s36, s44")
    e("s_cmp_ge_u32 s32, 4"); e("s_cbranch_scc1 m_gemm1")
    e("s_mul_i32 s45, s44, 3"); e("s_mul_i32 s46, s43, 5"); e("s_lshr_b32 s46, s46, 1"); e("s_add_u32 s45, s45, s46")
    e("s_cmp_ge_u32 s45, 20"); e("s_cselect_b32 s46, 20, 0"); e("s_sub_u32 s45, s45, s46")
    e("s_cmp_ge_u32 s45, 10"); e("s_cselect_b32 s46, 10, 0"); e("s_sub_u32 s45, s45, s46")
    e("s_load_dwordx8 s[64:71], s[0:1], 8")
    e("s_load_dwordx4 s[72:75], s[0:1], 40")
    e("v_and_b32 v3, 7, v1")
    e("s_lshl_b32 s39, s32, 13")
    e("s_cmp_ge_u32 s32, 2"); e("s_cbranch_scc1 m_ldB")
    e("s_lshl_b32 s43, s35, 7"); e("s_lshl_b32 s44, s32, 6"); e("s_add_u32 s43, s43, s44")
    e("v_lshrrev_b32 v2, 5, v1"); e("v_lshlrev_b32 v2, 3, v2")
    e("v_bfe_u32 v4, v1, 3, 2"); e("v_add3_u32 v2, v2, v4, s43")
    e("v_mul_u32_u24 v2, 1280, v2")
    e("v_lshrrev_b32 v4, 4, v1"); e("v_xor_b32 v3, v3, v4")
    e("v_lshl_add_u32 v4, v3, 4, v2")
    e("v_xor_b32 v3, 4, v3"); e("v_lshl_add_u32 v5, v3, 4, v2")
    for n in range(8):
        ee, b, Pp = n & 1, (n >> 1) & 1, n >> 2
        e(f"v_add_u32 v{16+n}, {(32*Pp + 4*b + 16*ee)*1280 - (n & 3)*1024}, v{4+ee}")
    e("s_waitcnt lgkmcnt(0)")
    k.srd(16, 4, 5, 2048*1280)
    e("s_mov_b32 s38, 128")
    e("s_branch m_ld")
    k.label("m_ldB")
    e("v_lshrrev_b32 v2, 3, v1"); e("v_mul_u32_u24 v2, 3456, v2")
    e("s_cmp_eq_u32 s32, 2"); e("s_cselect_b32 s44, 1664, 0")
    e("s_lshl_b32 s43, s36, 7"); e("s_add_u32 s43, s43, s44"); e("v_add_u32 v2, s43, v2")
    e("v_bfe_u32 v4, v1, 4, 1"); e("v_lshlrev_b32 v4, 1, v4"); e("v_xor_b32 v3, v3, v4")
    e("v_lshl_add_u32 v4, v3, 4, v2")
    e("v_xor_b32 v3, 4, v3"); e("v_lshl_add_u32 v5, v3, 4, v2")
    for n in range(8):
        e(f"v_add_u32 v{16+n}, {8*n*3456 - (n & 3)*1024}, v{4+(n & 1)}")
    e("s_waitcnt lgkmcnt(0)")
    k.srd(16, 8, 9, 640*3456)
    e(f"s_mov_b32 s38, {64*3456}")
    k.label("m_ld")
    if "norot" in EXP: e("s_mov_b32 s45, 0")
    if "rotold" not in EXP:
        e("s_lshr_b32 s45, s41, 1"); e("s_mul_i32 s45, s45, 5"); e("s_lshr_b32 s45, s45, 1"); e("s_and_b32 s46, s41, 1"); e("s_mul_i32 s46, s46, 5"); e("s_add_u32 s45, s45, s46")
        if "rotxa" in EXP: e("s_and_b32 s46, s42, 1"); e("s_mul_i32 s46, s46, 3"); e("s_add_u32 s45, s45, s46")
        if "rotxa" not in EXP: e("s_and_b32 s46, s42, 1"); e("s_mul_i32 s46, s46, 5"); e("s_add_u32 s45, s45, s46")
        e("s_cmp_ge_u32 s45, 10"); e("s_cselect_b32 s46, 10, 0"); e("s_sub_u32 s45, s45, s46")
    if "rot2" in EXP: e("s_and_b32 s45, s42, 1"); e("s_mul_i32 s45, s45, 5")
    if "rot3" in EXP: e("s_mul_i32 s45, s42, 86"); e("s_lshr_b32 s45, s45, 8"); e("s_mul_i32 s45, s45, 3"); e("s_sub_u32 s45, s42, s45"); e("s_mul_i32 s45, s45, 3")
    e("s_mul_i32 s37, s45, s38"); e("s_mul_i32 s46, s38, 10"); e("s_mov_b32 s40, 0")
    k.label("m_ldloop")
    e("s_cmp_lt_u32 s40, 3"); e("s_cbranch_scc1 m_ldissue")
    e("s_waitcnt vmcnt(16)")
    e("s_barrier")
    k.label("m_ldissue")
    for g in range(2):
        e(f"s_add_u32 m0, s39, {g*4096}")
        e("s_nop 0")
        for n in range(4): e(f"buffer_load_dwordx4 v{16+g*4+n}, s[16:19], s37 offen offset:{n*1024} lds")
    e("s_add_u32 s39, s39, 32768"); e("s_and_b32 s39, s39, 0x1ffff")
    e("s_add_u32 s37, s37, s38"); e("s_cmp_eq_u32 s37, s46"); e("s_cselect_b32 s37, 0, s37")
    e("s_add_u32 s40, s40, 1"); e("s_cmp_lt_u32 s40, 10"); e("s_cbranch_scc1 m_ldloop")
    k.stamp(1)
    k.srd(24, 14, 15, 32768, WS_ST1)
    k.srd(48, 12, 13, 256)
    e("v_bfe_u32 v4, v1, 2, 2"); e("v_lshlrev_b32 v4, 3, v4"); e("v_bfe_u32 v5, v1, 4, 1"); e("v_lshl_add_u32 v4, v5, 2, v4")
    e("v_and_b32 v5, 0x23, v1"); e("v_add_u32 v4, v4, v5"); e("v_lshlrev_b32 v232, 4, v4"); e("v_mov_b32 v233, 0")
    e("s_lshl_b32 s52, s35, 11"); e("s_and_b32 s43, s32, 1"); e("s_lshl_b32 s43, s43, 10"); e("s_add_u32 s52, s52, s43")
    e("buffer_load_dword v234, v233, s[48:51], 0 offen sc1")
    e("buffer_load_dwordx4 v[236:239], v232, s[24:27], s52 offen sc1")
    conv_params(k)
    e("s_getpc_b64 s[44:45]")
    k.label("m_pc")
    e(f"s_sub_u32 s44, s44, m_pc-{name}"); e("s_subb_u32 s45, s45, 0")
    e(f"s_mov_b32 s46, text_end-{name}"); e("s_mov_b32 s47, 0x00020000")
    e("s_and_b32 s43, s42, 15"); e("s_lshl_b32 s43, s43, 2"); e("s_add_u32 s43, s43, s33"); e("s_lshl_b32 s43, s43, 10")
    e("v_lshlrev_b32 v2, 4, v1")
    e("buffer_load_dwordx4 v[224:227], v2, s[44:47], s43 offen")
    TW = 1 if "tlb" in EXP else 0
    if TW:
        e("s_bitcmp1_b32 s32, 0"); e("s_cselect_b32 s44, s98, s14"); e("s_cselect_b32 s45, s99, s15"); e("s_cselect_b32 s43, 16, 19")
        e(f"s_mov_b32 s46, {2048*1280}"); e(f"s_cselect_b32 s46, s46, {28*MB}"); e("s_mov_b32 s47, 0x00020000")
        e("v_lshlrev_b32 v2, s43, v1")
        e("buffer_load_dword v228, v2, s[44:47], 0 offen")
    k.srd(20, 10, 11, 2048*4096)
    e("s_lshl_b32 s43, s42, 2"); e("s_add_u32 s43, s43, s32"); e(f"s_mul_i32 s43, s43, {9*1024+384}")
    e("s_lshl_b32 s44, s41, 20"); e("s_add_u32 s43, s43, s44"); e("s_xor_b32 s53, s43, 0x100000")
    e("v_lshlrev_b32 v2, 4, v1")
    def pf(n):
        for i in range(n):
            e(f"buffer_load_dwordx4 v[224:227], v2, s[20:23], s43 offen offset:{(i%4)*1024}")
            if i % 4 == 3 or i == n - 1: e(f"s_add_u32 s43, s43, {(i%4+1)*1024}")
    if "pfe" in EXP:
        pf(10)
        e(f"s_waitcnt vmcnt({35+TW})"); e("s_barrier")
        e(f"s_waitcnt vmcnt({27+TW})"); e("s_barrier")
    else:
        e(f"s_waitcnt vmcnt({25+TW})"); e("s_barrier"); pf(4)
        e(f"s_waitcnt vmcnt({21+TW})"); e("s_barrier"); pf(6)
    e(f"s_waitcnt vmcnt({19+TW})"); e("s_barrier")
    e("s_cmp_ge_u32 s32, 2"); e("s_cbranch_scc1 m_st1ok")
    e(f"s_waitcnt vmcnt({17+TW})")
    e("s_mov_b32 s40, 0")
    e("s_branch m_st1chk")
    k.label("m_st1poll")
    e("buffer_load_dword v234, v233, s[48:51], 0 offen sc1")
    e("buffer_load_dwordx4 v[236:239], v232, s[24:27], s52 offen sc1")
    e("s_waitcnt vmcnt(0)")
    k.label("m_st1chk")
    e("v_xor_b32 v4, v237, v234"); e("v_xor_b32 v5, v239, v234"); e("v_or_b32 v4, v4, v5")
    e("v_cmp_ne_u32 vcc, 0, v4"); e("v_cmp_eq_u32 s[44:45], 0, v234"); e("s_add_u32 s40, s40, 1")
    e("s_or_b64 vcc, vcc, s[44:45]")
    e(f"s_cmp_ge_u32 s40, {SPIN}"); e("s_cbranch_scc1 m_st1w")
    e("s_cbranch_vccnz m_st1poll")
    k.label("m_st1w")
    e("s_lshl_b32 s44, s32, 8"); e(f"s_add_u32 s44, s44, {MISC}"); e("v_lshl_add_u32 v4, v1, 2, s44"); e(f"v_mov_b32 v5, {W_EPOCH}")
    e("ds_write_b32 v4, v236"); e("ds_write_b32 v4, v238 offset:512"); e("ds_write_b32 v5, v234")
    e("s_waitcnt lgkmcnt(0)")
    k.label("m_st1ok")
    e("s_barrier")
    if "pf2" in EXP:
        e("s_mov_b32 s43, s53"); pf(10)
    k.label("m_Lpost")
    k.stamp(2)
    e(f"v_mov_b32 v4, {W_EPOCH}"); e("ds_read_b32 v5, v4")
    k.srd(FLS, 14, 15, FL_BYTES, WS_FL)
    e("v_and_b32 v2, 15, v1"); e("v_lshrrev_b32 v3, 4, v1")
    e("s_lshr_b32 s35, s41, 1"); e("s_lshl_b32 s35, s35, 3"); e("s_lshr_b32 s43, s42, 2"); e("s_add_u32 s35, s35, s43")
    e("s_waitcnt lgkmcnt(0)")
    e("v_readfirstlane_b32 s3, v5")
    e("s_cmp_lg_u32 s32, 3"); e("s_cbranch_scc1 m_conv")
    k.srd(16, 10, 11, 2048*4096)
    e("v_lshrrev_b32 v4, 5, v1"); e("v_lshlrev_b32 v4, 3, v4"); e("v_bfe_u32 v5, v1, 3, 2"); e("v_add_u32 v4, v4, v5")
    e("v_lshlrev_b32 v4, 12, v4")
    e("v_and_b32 v5, 7, v1"); e("v_xor_b32 v5, v5, v3")
    e("v_lshl_add_u32 v6, v5, 4, v4")
    e("v_xor_b32 v5, 4, v5"); e("v_lshl_add_u32 v7, v5, 4, v4")
    for n in range(8):
        ee, t = n & 1, n >> 1
        e(f"v_add_u32 v{16+n}, {(32*(t >> 1) + 4*(t & 1) + 16*ee)*4096 - (n & 3)*1024}, v{6+ee}")
    e("s_lshl_b32 s37, s35, 18")
    e(f"s_and_b32 s43, s35, {ROTM}"); e("s_lshl_b32 s43, s43, 8"); e("s_add_u32 s37, s37, s43")
    LATE = "late" in EXP
    def pfloop():
        e("s_mov_b32 s40, 0")
        k.label("m_pfloop")
        e("s_and_b32 s43, s40, 3"); e("s_lshr_b32 s44, s40, 2")
        e(f"s_mul_i32 s49, s43, {RING2}"); e("s_lshl_b32 s46, s44, 13"); e("s_add_u32 s49, s49, s46")
        e("s_lshl_b32 s43, s43, 10"); e("s_lshl_b32 s44, s44, 7"); e("s_add_u32 s43, s43, s44"); e("s_add_u32 s43, s43, s37")
        for g in range(2):
            e(f"s_add_u32 m0, s49, {g*4096}")
            e("s_nop 0")
            for n in range(4): e(f"buffer_load_dwordx4 v{16+g*4+n}, s[16:19], s43 offen offset:{n*1024} lds")
        e(f"s_waitcnt vmcnt({48 if LATE else 16})")
        e("s_add_u32 s40, s40, 1"); e("s_cmp_lt_u32 s40, 8"); e("s_cbranch_scc1 m_pfloop")
    if not LATE: pfloop()
    k.stamp(3)
    e("s_and_b32 s36, s41, 1"); e("s_lshl_b32 s36, s36, 2"); e("s_and_b32 s43, s42, 3"); e("s_add_u32 s36, s36, s43")
    e("s_cmp_eq_u32 s36, 7"); e("s_cselect_b32 s43, 31, 47")
    e("v_min_u32 v7, s43, v1"); e("v_lshlrev_b32 v7, 2, v7")
    e("s_lshl_b32 s45, s35, 3"); e("s_add_u32 s45, s45, s36"); e("s_lshl_b32 s45, s45, 8"); e(f"s_add_u32 s45, s45, {FZ2}")
    e(f"v_mov_b32 v4, {W_PF + 8}")
    lds_wait_ge(k, "m_wown1", "v4", 5, 1, 4, sleep=2)
    if LATE: pfloop()
    elif ZD: e(f"s_sleep {ZD}")
    poll_flags(k, "m_pollz", "v7", FLS, 1, 5, "v6", soff="s45", sleep=ZSL)
    e(f"v_mov_b32 v4, {W_PF}"); e("v_mov_b32 v5, 1")
    e("ds_write_b32 v4, v5")
    k.stamp(4)
    e("s_sleep 64")
    e("v_and_b32 v4, 31, v1"); e("v_lshlrev_b32 v4, 2, v4"); e(f"s_mov_b32 s44, {FK}")
    poll_flags(k, "m_pollx3", "v4", FLS, 1, 5, "v6", soff="s44", sleep=64)
    e(f"v_mov_b32 v4, {W_FX}"); e("v_mov_b32 v5, 1"); e("ds_write_b32 v4, v5")
    e("s_branch m_L3prep")
    k.label("m_conv")
    e("s_cmp_ge_u32 s34, 640"); e("s_cbranch_scc1 m_L3prep")
    e(f"s_mul_i32 s39, s32, {CONV_B}"); e(f"s_add_u32 s39, s39, {CONV0}")
    e(f"s_waitcnt vmcnt({20 if 'pf2' in EXP else 10})")
    kgen_dt(k, "v13")
    kgen_addr(k, "s39", "v2", "v3", "v1")
    e("s_mov_b32 s40, 2")
    kgen_loop(k, 164, "v13", "s40")
    k.stamp(3)
    UO, KC = 8320, 12928
    e("v_lshlrev_b32 v15, 4, v1")
    e(f"s_mov_b32 s44, {FX}")
    e("v_and_b32 v220, 31, v1"); e("v_lshlrev_b32 v220, 2, v220")
    e("buffer_load_dword v216, v220, s[60:63], s44 offen sc1")
    e(f"s_add_u32 s43, s39, {KC}")
    e("v_max_u32 v4, 1, v3"); e("v_sub_u32 v4, 5, v4")
    e("v_lshlrev_b32 v5, v4, v2")
    e("v_lshlrev_b32 v6, 3, v3")
    e("v_mov_b32 v7, 512"); e("v_cmp_eq_u32 vcc, 2, v3"); e("s_nop 1"); e("v_cndmask_b32 v6, v6, v7, vcc")
    e("v_mov_b32 v7, 768"); e("v_mov_b32 v8, 4"); e("v_mov_b32 v9, 128"); e("v_cmp_eq_u32 vcc, 3, v3"); e("s_nop 1")
    e("v_cndmask_b32 v6, v6, v7, vcc"); e("v_cndmask_b32 v8, v8, v9, vcc")
    e("v_add3_u32 v5, v5, v6, s43")
    e("v_lshlrev_b32 v6, v4, 16"); e("v_add_u32 v6, v5, v6")
    e("v_add_u32 v7, v5, v8"); e("v_add_u32 v8, v6, v8")
    for n in range(8): e(f"v_cvt_pk_bf16_f32 v{24+n}, v{136+2*n}, v{137+2*n}")
    e("ds_write_b32 v5, v24"); e("ds_write_b32 v7, v25"); e("ds_write_b32 v6, v26"); e("ds_write_b32 v8, v27")
    e("v_lshlrev_b32 v9, 6, v2"); e("v_lshl_add_u32 v9, v3, 3, v9"); e("v_add_u32 v9, s43, v9")
    e("v_mov_b32 v20, 0"); e("v_mov_b32 v21, 0"); e("v_mov_b32 v22, 0"); e("v_mov_b32 v23, 0")
    e("v_add_u32 v16, s39, v15")
    e("v_lshl_add_u32 v17, v1, 3, s39")
    e(f"ds_write_b64 v17, v[20:21] offset:{UO}")
    e("v_cmp_gt_u32 vcc, 5, v2"); e("s_and_saveexec_b64 s[46:47], vcc")
    e("ds_write_b64 v9, v[28:29] offset:1024"); e("ds_write_b64 v9, v[30:31] offset:1056")
    e("s_mov_b64 exec, 3")
    e("ds_write_b128 v16, v[20:23] offset:4096"); e(f"ds_write_b128 v16, v[20:23] offset:{4160+4096}")
    e("s_mov_b64 exec, -1")
    e(f"s_add_u32 s44, s39, {KC + 256 - 2*0x4300}")
    e(f"v_mov_b32 v31, {f32(128.0)}")
    e("v_lshlrev_b32 v18, 3, v1"); e("v_cvt_f32_u32 v18, v18")
    e("s_waitcnt lgkmcnt(0)")
    for m in range(4):
        for el in range(10): e(f"v_sub_f32 v{96+el}, {f32(2047 - 512*m - el)}, v18")
        if m == 3: e("v_max_f32 v104, 0, v104")
        for p in range(5): e(f"v_cvt_pk_bf16_f32 v{108+p}, v{96+2*p}, v{97+2*p}")
        for el in range(9):
            a = f"v{114+el}"
            if el % 2 == 0: e(f"v_and_b32 {a}, 0xffff, v{108+el//2}")
            else: e(f"v_lshrrev_b32 {a}, 16, v{108+el//2}")
            e(f"v_lshl_add_u32 {a}, {a}, 1, s44")
            if m == 3:
                e(f"v_cvt_u32_f32 v19, v{96+el}"); e("v_lshl_add_u32 v19, v19, 1, s43")
                e(f"v_cmp_lt_f32 vcc, v{96+el}, v31"); e("s_nop 1"); e(f"v_cndmask_b32 {a}, {a}, v19, vcc")
        for el in range(9): e(f"ds_read_u16 v{144+9*m+el}, v{114+el}")
    e(f"s_mov_b32 s46, {FX}")
    poll_flags(k, "m_pollx", "v220", FLS, 1, 216, "v4", soff="s46", sleep=32, preloaded=True)
    k.stamp(4)
    k.srd(20, 14, 15, XT_BYTES, WS_XNT)
    k.srd(24, 14, 15, XT_BYTES, WS_YT)
    e("s_lshl_b32 s45, s34, 12")
    for n in range(4): e(f"buffer_load_dwordx4 {v(200+4*n,4)}, v15, s[20:23], s45 offen offset:{n*1024} sc1")
    e("s_waitcnt lgkmcnt(0)")
    e("v_cmp_eq_u32 vcc, 63, v1"); e("s_nop 1"); e(f"v_cndmask_b32 v{144+35}, v{144+35}, v20, vcc")
    for m in range(4):
        W = 32 + 16*m; E = 144 + 9*m
        for p in range(4):
            e(f"v_lshl_or_b32 v{W+p}, v{E+2*p+1}, 16, v{E+2*p}")
            e(f"v_lshl_or_b32 v{W+8+p}, v{E+2*p+2}, 16, v{E+2*p+1}")
        e(f"ds_write_b128 v16, {v(W,4)} offset:{1024*m}")
        e(f"ds_write_b128 v16, {v(W+8,4)} offset:{4160+1024*m}")
    e("s_waitcnt vmcnt(0)")
    for n in range(4): e(f"ds_write_b128 v16, {v(200+4*n,4)} offset:{UO+512+1024*n}")
    k.stamp(5)
    e("v_and_b32 v4, 1, v2"); e("v_xor_b32 v4, 1, v4"); e("v_mul_u32_u24 v4, 4160, v4")
    e("v_lshrrev_b32 v5, 1, v2"); e("v_lshlrev_b32 v6, 2, v3"); e("v_sub_u32 v5, v6, v5")
    e("v_lshl_add_u32 v4, v5, 2, v4"); e("v_add_u32 v4, s39, v4")
    for mp in range(4): e(f"v_add_u32 v{24+mp}, {4*(1023 - 8 - 128*(2*mp+1))}, v4")
    e("v_lshlrev_b32 v5, 5, v2"); e("v_lshl_add_u32 v5, v3, 4, v5")
    e(f"s_add_u32 s43, s39, {UO+480}"); e("v_add_u32 v28, s43, v5")
    def Af(m): return 32 + 4*m
    def Bf(r): return 64 + 4*r
    def ac(cb): return v(96 + 4*cb, 4)
    for i in range(32): e(f"v_mov_b32 v{96+i}, 0")
    e("v_lshlrev_b32 v14, 16, v14")
    e("s_waitcnt lgkmcnt(0)")
    def rdA(m):
        o = 0 if m & 1 else 128
        e(f"ds_read2_b32 {v(Af(m),2)}, v{24+m//2} offset0:{o} offset1:{o+1}"); e(f"ds_read2_b32 {v(Af(m)+2,2)}, v{24+m//2} offset0:{o+2} offset1:{o+3}")
    def rdB(r): e(f"ds_read_b128 {v(Bf(r),4)}, v28 offset:{512*r}")
    for m in range(8): rdA(m); rdB(7-m)
    e("s_mov_b32 s40, 8")
    k.label("m_cloop")
    for r in range(24, 29): e(f"v_subrev_u32 v{r}, 64, v{r}")
    for m in range(8):
        for cb in (range(7, -1, -1) if m == 0 else range(m, 8)):
            if m == 0: e(f"s_waitcnt lgkmcnt({min(3*cb, 15)})")
            e(f"{MFMA} {ac(cb)}, {v(Af(m),4)}, {v(Bf(cb-m),4)}, {ac(cb)}")
        rdA(m); rdB(7-m)
    e("s_sub_u32 s40, s40, 1"); e("s_cmp_lg_u32 s40, 0"); e("s_cbranch_scc1 m_cloop")
    k.stamp(6)
    e("s_waitcnt lgkmcnt(0)")
    e("v_lshlrev_b32 v20, 5, v2"); e("v_lshl_add_u32 v20, v3, 3, v20")
    e(f"s_add_u32 s43, s39, {UO+512}"); e("v_add_u32 v21, s43, v20")
    for cb in range(8): e(f"ds_read_b64 {v(32+2*cb,2)}, v21 offset:{512*cb}")
    e("s_waitcnt lgkmcnt(0)")
    for c0 in (0, 4):
        A = [96 + 4*cb + 2*p for cb in range(c0, c0+4) for p in range(2)]
        U = [32 + 2*cb + p for cb in range(c0, c0+4) for p in range(2)]
        for i in range(8): unpack(k, f"v{72+2*i}", f"v{73+2*i}", f"v{U[i]}")
        for i in range(8): e(f"v_pk_fma_f32 {pr(A[i])}, {pr(72+2*i)}, v[14:15], {pr(A[i])} op_sel_hi:[1,0,1]")
        for i in range(8): e(f"v_cvt_pk_bf16_f32 v{U[i]}, v{A[i]}, v{A[i]+1}")
        for cb in range(c0, c0+4): e(f"ds_write_b64 v21, {v(32+2*cb,2)} offset:{512*cb}")
    for n in range(4): e(f"ds_read_b128 {v(64+4*n,4)}, v16 offset:{UO+512+1024*n}")
    for n in range(4):
        e(f"s_waitcnt lgkmcnt({3-n})")
        e(f"buffer_store_dwordx4 {v(64+4*n,4)}, v15, s[24:27], s45 offen offset:{1024*n} sc1")
    e("s_lshl_b32 s43, s34, 2"); e(f"s_add_u32 s43, s43, {FY}")
    set_flag(k, FLS, "s43", 0, "v4", "v5")
    k.stamp(7)
    k.label("m_L3prep")
    e("s_and_b32 s36, s41, 1"); e("s_lshl_b32 s36, s36, 2"); e("s_and_b32 s43, s42, 3"); e("s_add_u32 s36, s36, s43")
    e("s_lshl_b32 s43, s33, 2"); e(f"s_add_u32 s43, s43, {W_GL}"); e("v_mov_b32 v4, s43")
    lds_wait(k, "m_wgl", "v4", "v5", sleep=8)
    e(f"v_mov_b32 v4, {W_FX}")
    lds_wait(k, "m_wfw", "v4", "v5")
    k.stamp(8)
    e("s_mul_i32 s46, s33, 15"); e("s_add_u32 s46, s46, 42")
    e("s_cmp_eq_u32 s33, 3"); e("s_cselect_b32 s47, 48, 15")
    e("s_branch m_P3")

    k.label("m_gemm1")
    e("v_and_b32 v2, 15, v1"); e("v_lshrrev_b32 v3, 4, v1")
    e("v_lshlrev_b32 v12, 4, v1")
    e("v_add_u32 v13, 4096, v12")
    PL = 200
    def poll_loads():
        for i in range(7):
            e(f"buffer_load_dwordx4 {v(PL+4*i,4)}, v{12 if i < 4 else 13}, s[28:31], s72 offen offset:{(i%4)*1024} sc1")
    e("v_mov_b32 v10, 0")
    e("v_and_b32 v4, 31, v1"); e(f"v_lshlrev_b32 v4, 2, v4"); e(f"v_add_u32 v4, {W_EPOCH}, v4")
    e("ds_write_b32 v4, v10")
    e("s_waitcnt lgkmcnt(0)")
    k.srd(64, 12, 13, 256)
    e("s_cmp_lg_u32 s2, 0"); e("s_cbranch_scc1 m_noep")
    e("s_cmp_lg_u32 s32, 4"); e("s_cbranch_scc1 m_noep")
    e("s_memrealtime s[44:45]"); e("s_waitcnt lgkmcnt(0)"); e("s_or_b32 s44, s44, 1"); e("v_mov_b32 v4, s44")
    e("s_mov_b64 exec, 1")
    e("buffer_store_dword v4, v10, s[64:67], 0 offen sc1")
    e("s_mov_b64 exec, -1")
    k.label("m_noep")
    e("s_lshl_b32 s43, s35, 2"); e("s_add_u32 s43, s43, s33"); e(f"s_mul_i32 s72, s43, {14*512}")
    e("s_lshl_b32 s44, s36, 9"); e("s_add_u32 s73, s72, s44")
    e("s_lshl_b32 s74, s36, 6"); e("s_add_u32 s74, s74, s43"); e("s_lshl_b32 s74, s74, 2")
    e("v_and_b32 v4, 7, v1"); e("v_lshl_add_u32 v4, v3, 3, v4"); e("v_bfe_u32 v5, v1, 3, 1"); e("v_lshlrev_b32 v5, 3, v5")
    e("v_lshl_add_u32 v230, v4, 4, v5")
    k.srd(28, 14, 15, ST2_BYTES, WS_ST2)
    k.srd(24, 14, 15, ZF_BYTES, WS_Z2F)
    k.srd(20, 14, 15, ZF_BYTES, WS_Z1F)
    k.srd(FLS, 14, 15, FL_BYTES, WS_FL)
    for c in range(4):
        e(f"s_xor_b32 s43, s33, {c}")
        e("s_lshl_b32 s44, s36, 2"); e("s_add_u32 s43, s43, s44"); e("s_sub_u32 s43, s43, 2")
        e(f"s_cmp_lt_u32 s43, 54"); e(f"s_cselect_b32 s{50+c}, -1, 0")
        e("s_cselect_b32 s43, s43, 60")
        e(f"s_lshl_b32 s{46+c}, s43, 16")
        e("s_lshl_b32 s44, s35, 2"); e("s_add_u32 s44, s44, s33"); e("s_lshl_b32 s44, s44, 10")
        e(f"s_add_u32 s{46+c}, s{46+c}, s44")
    for b in range(2):
        for g in range(2):
            e("s_lshr_b32 s43, s33, 1"); e(f"s_xor_b32 s43, s43, {g}"); e("s_lshl_b32 s44, s36, 1"); e("s_add_u32 s43, s43, s44")
            e("s_lshl_b32 s44, s35, 3"); e("s_lshl_b32 s45, s33, 1"); e("s_add_u32 s44, s44, s45"); e(f"s_add_u32 s44, s44, {b}")
            e("s_mul_i32 s44, s44, 27"); e("s_add_u32 s44, s44, s43"); e("s_lshl_b32 s44, s44, 10")
            e("s_cmp_lt_u32 s43, 27"); e(f"s_cselect_b32 s{68+b*2+g}, s44, {HUGE}")
    e("v_and_b32 v4, 2, v1"); e("v_and_b32 v5, 1, v1")
    e("v_cmp_ne_u32 s[54:55], 0, v4"); e("v_cmp_ne_u32 s[56:57], 0, v5")
    e("s_lshl_b32 s43, s33, 5")
    e("v_add_u32 v4, s43, v2"); e("v_lshlrev_b32 v4, 7, v4")
    e("v_lshrrev_b32 v5, 1, v2"); e("v_xor_b32 v5, v5, v3")
    e("v_lshl_add_u32 v14, v5, 4, v4")
    e("v_xor_b32 v15, 64, v14")
    e("v_bfe_u32 v4, v1, 2, 2")
    e("v_lshl_add_u32 v5, v3, 3, v4"); e("v_lshlrev_b32 v5, 7, v5")
    e("v_and_b32 v6, 3, v1"); e("v_lshl_add_u32 v5, v6, 3, v5")
    e("v_add_u32 v5, 16384, v5")
    e("v_lshrrev_b32 v6, 1, v4"); e("v_and_b32 v7, 1, v3"); e("v_lshl_or_b32 v6, v7, 1, v6")
    e("v_xor_b32 v6, s33, v6")
    for c in range(4):
        e(f"v_xor_b32 v7, {c}, v6"); e(f"v_lshl_add_u32 v{16+c}, v7, 5, v5")
    for i in range(4): e(f"v_mov_b32 v{20+i}, 0x3f803f80")
    ACC = 104
    for i in range(ACC, 192): e(f"v_mov_b32 v{i}, 0")
    def xf(ks, b): return v(24 + 40*ks + 4*b, 4)
    def wfb(ks, h, c): return 24 + 40*ks + 8 + 16*h + 4*c
    def wf(ks, h, c): return v(wfb(ks, h, c), 4)
    def accb(h, b, c): return ACC + 32*h + (b*4 + c)*4
    def acc(h, b, c): return v(accb(h, b, c), 4)
    def rlist(ks):
        L = [f"ds_read_b128 {xf(ks,b)}, v{14+ks} offset:{2048*b}" for b in range(2)]
        for h in range(2):
            for c in range(4):
                for hh in range(2):
                    L.append(f"ds_read_b64_tr_b16 {v(wfb(ks,h,c)+2*hh,2)}, v{16+c} offset:{h*8192+ks*4096+hh*512}")
        return L
    def mlist(ks):
        L = []
        for h in range(2):
            L.append(f"{MFMA} {v(184+4*h,4)}, v[20:23], {wf(ks,h,0)}, {v(184+4*h,4)}")
            for c in range(4):
                for b in range(2):
                    if h == 0: L.append(f"{MFMA} {acc(h,b,c)}, {xf(ks,b)}, {wf(ks,h,c)}, {acc(h,b,c)}")
                    else:      L.append(f"{MFMA} {acc(h,b,c)}, {wf(ks,h,c)}, {xf(ks,b)}, {acc(h,b,c)}")
        return L
    def phase(ks, rd, extra=()):
        M = mlist(ks); R = list(rd); X = list(extra)
        for i, m in enumerate(M):
            e(m)
            if R: e(R.pop(0))
            if R and i < 4: e(R.pop(0))
            elif X and not R:
                for _ in range(3):
                    if X: e(X.pop(0))
        for x in X: e(x)
    bump = [f"v_add_u32 v{r}, 0x8000, v{r}" for r in range(14, 20)]
    wrap = [f"v_and_b32 v{r}, 0x1ffff, v{r}" for r in range(14, 20)]
    e("s_lshl_b32 s43, s33, 6"); e(f"s_add_u32 s43, s43, {MISC+1024}"); e("v_lshl_add_u32 v196, v2, 2, s43")
    for c in range(4):
        e(f"s_xor_b32 s43, s33, {c}"); e(f"s_lshl_b32 s43, s43, 6"); e(f"s_add_u32 s43, s43, {MISC+1024}")
        e(f"v_lshl_add_u32 v{232+c}, v2, 2, s43"); e(f"v_lshl_add_u32 v{236+c}, v3, 4, s43")
    e("s_lshl_b32 s43, s33, 7"); e(f"s_add_u32 s43, s43, {MISC}")
    e("v_lshl_add_u32 v7, v2, 2, s43"); e("v_lshl_add_u32 v8, v3, 4, s43"); e(f"v_mov_b32 v9, {W_EPOCH}")
    k.stamp(1)
    e("s_mov_b32 s40, 10")
    e("s_barrier")
    k.stamp(2)
    for r in rlist(0): e(r)
    k.label("m_loop1")
    e("s_waitcnt lgkmcnt(0)")
    phase(0, rlist(1), bump + wrap)
    e("s_sub_u32 s40, s40, 1"); e("s_cmp_eq_u32 s40, 0")
    e("s_waitcnt lgkmcnt(0)")
    e(f"s_cbranch_scc1 m_tail1")
    e("s_barrier")
    phase(1, rlist(0))
    e(f"s_branch m_loop1")
    k.label(f"m_tail1")
    phase(1, [])
    e("s_setprio 2")
    k.stamp(3)
    epoch_poll = None
    e("ds_write_b32 v196, v184"); e("ds_write_b32 v196, v188 offset:256")
    e("s_waitcnt lgkmcnt(0)")
    e("s_barrier")
    e("ds_read_b128 v[24:27], v8"); e("ds_read_b128 v[28:31], v8 offset:64")
    e("ds_read_b128 v[32:35], v8 offset:512"); e("ds_read_b128 v[36:39], v8 offset:576")
    for c in range(4): e(f"ds_read_b32 v{40+2*c}, v{232+c}")
    e("ds_read_b32 v229, v9")
    for c in range(4): e(f"ds_read_b128 {v(64+4*c,4)}, v{236+c} offset:256")
    e("ds_read_b32 v80, v7"); e("ds_read_b32 v82, v7 offset:64"); e("ds_read_b32 v84, v7 offset:512"); e("ds_read_b32 v86, v7 offset:576")
    e(f"v_mov_b32 v88, {f32(GC1)}"); e(f"v_mov_b32 v90, {f32(GC0)}")
    e("s_waitcnt lgkmcnt(8)")
    e("v_readfirstlane_b32 s3, v229")
    e("s_cmp_lg_u32 s36, 0"); e("s_cbranch_scc1 m_nomask")
    for c in range(4):
        e(f"v_and_b32 v{40+2*c}, s{50+c}, v{40+2*c}")
        for b in range(2):
            for r in range(4): e(f"v_and_b32 v{accb(0,b,c)+r}, s{50+c}, v{accb(0,b,c)+r}")
    k.label("m_nomask")
    def gelu_pairs(A):
        n = len(A); T = [48 + 2*i for i in range(n)]
        for i in range(n): e(f"v_pk_mul_f32 {pr(T[i])}, {pr(A[i])}, {pr(A[i])}")
        for i in range(n): e(f"v_pk_fma_f32 {pr(T[i])}, {pr(T[i])}, v[88:89], v[90:91] op_sel_hi:[1,0,0]")
        for i in range(n): e(f"v_pk_mul_f32 {pr(T[i])}, {pr(T[i])}, {pr(A[i])}")
        for i in range(n): e(f"v_exp_f32 v{T[i]}, v{T[i]}"); e(f"v_exp_f32 v{T[i]+1}, v{T[i]+1}")
        for i in range(n): e(f"v_pk_add_f32 {pr(T[i])}, {pr(T[i])}, 1.0 op_sel_hi:[1,0]")
        for i in range(n): e(f"v_rcp_f32 v{T[i]}, v{T[i]}"); e(f"v_rcp_f32 v{T[i]+1}, v{T[i]+1}")
        for i in range(n): e(f"v_pk_mul_f32 {pr(A[i])}, {pr(A[i])}, {pr(T[i])}")
    for c0 in (0, 2):
        A = [accb(0, b, c) + 2*p for c in (c0, c0+1) for b in range(2) for p in range(2)]
        M = [24 + 4*b + 2*p for c in (c0, c0+1) for b in range(2) for p in range(2)]
        C = [40 + 2*c for c in (c0, c0+1) for b in range(2) for p in range(2)]
        for i in range(8): e(f"v_pk_fma_f32 {pr(A[i])}, {pr(M[i])}, {pr(C[i])}, {pr(A[i])} op_sel_hi:[1,0,1] neg_lo:[1,0,0] neg_hi:[1,0,0]")
        for i in range(8): e(f"v_pk_mul_f32 {pr(A[i])}, {pr(A[i])}, {pr(M[i]+8)}")
        gelu_pairs(A)
        for i in range(8):
            n = (i % 4) * 2
            e(f"v_pk_add_f32 {pr(168+n)}, {pr(168+n)}, {pr(A[i])}")
            e(f"v_pk_fma_f32 {pr(176+n)}, {pr(A[i])}, {pr(A[i])}, {pr(176+n)}")
    e("s_nop 0")
    for n in range(8): e(f"v_add_f32_dpp v{48+n}, v{168+n}, v{168+n} row_ror:8 row_mask:0xf bank_mask:0x3")
    for n in range(8): e(f"v_add_f32_dpp v{48+n}, v{176+n}, v{176+n} row_ror:8 row_mask:0xf bank_mask:0xc")
    for n in range(4): e(f"v_add_f32_dpp v{168+n}, v{48+n}, v{48+n} row_half_mirror row_mask:0xf bank_mask:0x5")
    for n in range(4): e(f"v_add_f32_dpp v{168+n}, v{52+n}, v{52+n} row_half_mirror row_mask:0xf bank_mask:0xa")
    for n in range(2):
        e(f"v_cndmask_b32 v{172+n}, v{170+n}, v{168+n}, s[54:55]")
        e(f"v_cndmask_b32 v{174+n}, v{168+n}, v{170+n}, s[54:55]")
    e("s_nop 0")
    for n in range(2): e(f"v_add_f32_dpp v{176+n}, v{172+n}, v{174+n} quad_perm:[2,3,0,1] row_mask:0xf bank_mask:0xf")
    e("v_cndmask_b32 v172, v177, v176, s[56:57]"); e("v_cndmask_b32 v174, v176, v177, s[56:57]")
    e("s_nop 1")
    e("v_add_f32_dpp v228, v172, v174 quad_perm:[1,0,3,2] row_mask:0xf bank_mask:0xf")
    e("buffer_store_dwordx2 v[228:229], v230, s[28:31], s73 offen sc1")
    e("s_setprio 0")
    k.stamp(4)
    e("s_waitcnt lgkmcnt(0)")
    P1 = 168
    for c0 in (0, 2):
        A = [accb(1, b, c) + 2*p for c in (c0, c0+1) for b in range(2) for p in range(2)]
        M = [80 + 2*b for c in (c0, c0+1) for b in range(2) for p in range(2)]
        C = [64 + 4*c + 2*p for c in (c0, c0+1) for b in range(2) for p in range(2)]
        for i in range(8): e(f"v_pk_fma_f32 {pr(A[i])}, {pr(M[i])}, {pr(C[i])}, {pr(A[i])} op_sel_hi:[0,1,1] neg_lo:[1,0,0] neg_hi:[1,0,0]")
        for i in range(8): e(f"v_pk_mul_f32 {pr(A[i])}, {pr(A[i])}, {pr(M[i]+4)} op_sel_hi:[1,0]")
        gelu_pairs(A)
        i = 0
        for c in (c0, c0+1):
            for b in range(2):
                for p in range(2):
                    e(f"v_cvt_pk_bf16_f32 v{P1+b*8+c*2+p}, v{A[i]}, v{A[i]+1}"); i += 1
        if c0 == 0: poll_loads()
    e("s_bitcmp1_b32 s33, 0"); e("s_cbranch_scc0 m_noswap")
    for b in range(2):
        for g in range(2):
            for p in range(2):
                r0 = P1 + b*8 + g*4 + p
                e(f"v_swap_b32 v{r0}, v{r0+2}")
    k.label("m_noswap")
    e("s_setprio 2")
    e("s_mov_b32 s40, 0")
    e("s_waitcnt vmcnt(0)")
    for b in range(2):
        for g in range(2):
            e(f"buffer_store_dwordx4 {v(P1+b*8+g*4,4)}, v12, s[20:23], s{68+b*2+g} offen sc1")
    e("s_branch m_check")
    k.label("m_poll")
    poll_loads()
    e("s_waitcnt vmcnt(0)")
    k.label("m_check")
    e(f"v_xor_b32 v4, v{PL+1}, v229"); e(f"v_xor_b32 v5, v{PL+3}, v229")
    for i in range(1, 7):
        e(f"v_xor_b32 v9, v{PL+1+4*i}, v229"); e(f"v_xor_b32 v10, v{PL+3+4*i}, v229")
        e("v_or3_b32 v4, v4, v9, v10")
    e("v_or_b32 v4, v4, v5")
    e("v_cmp_ne_u32 vcc, 0, v4")
    e("s_add_u32 s40, s40, 1")
    e("s_nop 0")
    e("s_cbranch_vccz m_poll_done")
    e(f"s_cmp_lt_u32 s40, {SPIN}"); e("s_cbranch_scc1 m_poll")
    k.label("m_poll_done")
    k.stamp(5)
    for i in range(1, 7):
        e(f"v_add_f32 v{PL}, v{PL}, v{PL+4*i}"); e(f"v_add_f32 v{PL+2}, v{PL+2}, v{PL+2+4*i}")
    e(f"v_mov_b32 v{PL+1}, v{PL}"); e(f"v_mov_b32 v{PL+3}, v{PL+2}"); e("s_nop 1")
    e(f"v_permlane32_swap_b32 v{PL}, v{PL+1}"); e(f"v_permlane32_swap_b32 v{PL+2}, v{PL+3}"); e("s_nop 1")
    e(f"v_add_f32 v24, v{PL}, v{PL+1}"); e(f"v_add_f32 v26, v{PL+2}, v{PL+3}")
    e(f"v_mul_f32 v24, {f32(1/864)}, v24"); e(f"v_mul_f32 v26, {f32(1/864)}, v26")
    e("v_fma_f32 v26, -v24, v24, v26")
    ln_finish(k, "v24", "v26", "v25")
    e("s_lshl_b32 s43, s33, 8"); e(f"s_add_u32 s43, s43, {MISC+1536}")
    e("v_and_b32 v4, 31, v1"); e("v_lshl_add_u32 v4, v4, 2, s43"); e("v_lshl_add_u32 v5, v3, 5, s43")
    e("v_mul_f32 v24, v24, v26")
    e("ds_write_b32 v4, v24"); e("ds_write_b32 v4, v26 offset:128")
    e("ds_read_b128 v[28:31], v5"); e("ds_read_b128 v[32:35], v5 offset:16")
    e("ds_read_b128 v[36:39], v5 offset:128"); e("ds_read_b128 v[40:43], v5 offset:144")
    e("s_waitcnt lgkmcnt(0)")
    for c0 in (0, 2):
        A = [accb(0, b, c) + 2*p for c in (c0, c0+1) for b in range(2) for p in range(2)]
        M = [28 + (i % 4)*2 for i in range(8)]
        for i in range(8): e(f"v_pk_fma_f32 {pr(A[i])}, {pr(A[i])}, {pr(M[i]+8)}, {pr(M[i])} neg_lo:[0,0,1] neg_hi:[0,0,1]")
        for i in range(8): e(f"v_cvt_pk_bf16_f32 v{64+4*c0+i}, v{A[i]}, v{A[i]+1}")
        for c in (c0, c0+1): e(f"buffer_store_dwordx4 {v(64+4*c,4)}, v12, s[24:27], s{46+c} offen sc1")
    e("s_lshl_b32 s43, s36, 2")
    e("s_mov_b32 s44, 0x33221000"); e("s_mov_b32 s45, 0x00766554"); e("s_lshr_b64 s[44:45], s[44:45], s43"); e("s_and_b32 s46, s44, 15")
    e("s_mov_b32 s44, 0x44322110"); e("s_mov_b32 s45, 0x00776655"); e("s_lshr_b64 s[44:45], s[44:45], s43"); e("s_and_b32 s47, s44, 15")
    for r in (46, 47):
        e(f"s_lshl_b32 s43, s{r}, 2"); e("s_lshr_b32 s44, 0xca865310, s43"); e("s_and_b32 s44, s44, 15")
        e("s_sub_u32 s44, s36, s44"); e("s_lshl_b32 s44, s44, 4"); e("s_add_u32 s44, s44, s35"); e("s_lshl_b32 s44, s44, 2")
        e(f"s_lshl_b32 s{r}, s{r}, 8"); e(f"s_add_u32 s{r}, s{r}, s44")
    e("v_mov_b32 v6, s46"); e("v_mov_b32 v7, s47"); e("v_cmp_lt_u32 vcc, 31, v1"); e("v_and_b32 v8, 31, v1"); e("v_lshlrev_b32 v8, 11, v8")
    e("v_cndmask_b32 v6, v6, v7, vcc"); e("v_add_u32 v6, v6, v8")
    e(f"v_mov_b32 v4, {W_PF + 8}"); e("v_mov_b32 v5, 1"); e("v_mov_b32 v7, s3"); e(f"s_mov_b32 s44, {FZ2}")
    e("s_mov_b64 exec, 1")
    e("s_waitcnt vmcnt(0)")
    e("ds_add_rtn_u32 v8, v4, v5")
    e("s_waitcnt lgkmcnt(0)")
    e("v_readfirstlane_b32 s43, v8")
    e("s_mov_b64 exec, -1")
    e("s_cmp_lg_u32 s43, 3"); e("s_cbranch_scc1 m_P2")
    e("buffer_store_dword v7, v6, s[60:63], s44 offen sc1")
    gen_p2(k)
    gen_p3(k)
    gen_helper(k, epoch_poll)
    k.label("m_end")
    e("s_endpgm")
    return k.text(256, nsgpr=100)

def gen_p2(k):
    e = k.e
    k.label("m_P2")
    k.stamp(6)
    e("s_load_dwordx2 s[6:7], s[0:1], 80")
    e("s_lshr_b32 s35, s41, 1"); e("s_lshl_b32 s35, s35, 3"); e("s_lshr_b32 s43, s42, 2"); e("s_add_u32 s35, s35, s43")
    e("s_and_b32 s36, s42, 3")
    e("s_and_b32 s43, s41, 1"); e("s_mul_i32 s43, s43, 27"); e("s_mul_i32 s44, s36, 7"); e("s_add_u32 s37, s43, s44")
    e("v_and_b32 v240, 15, v1"); e("v_lshrrev_b32 v241, 4, v1"); e("v_mov_b32 v245, v1")
    e("v_lshrrev_b32 v2, 5, v1"); e("v_lshlrev_b32 v2, 3, v2"); e("v_bfe_u32 v3, v1, 3, 2"); e("v_add_u32 v2, v2, v3")
    e("v_lshlrev_b32 v2, 12, v2")
    e("v_and_b32 v3, 7, v1"); e("v_xor_b32 v3, v3, v241")
    e("v_lshl_add_u32 v242, v3, 4, v2")
    e("v_xor_b32 v3, 4, v3")
    e("v_lshl_add_u32 v243, v3, 4, v2"); e(f"v_add_u32 v243, {16*4096 - 1024}, v243")
    e("v_lshlrev_b32 v244, 4, v1")
    e("s_lshl_b32 s43, s35, 18"); e("s_lshl_b32 s44, s33, 10"); e("s_add_u32 s48, s43, s44")
    e(f"s_add_u32 s49, s48, {4*4096}"); e(f"s_add_u32 s50, s48, {32*4096}"); e(f"s_add_u32 s51, s48, {36*4096}")
    e("s_lshl_b32 s43, s37, 16"); e("s_lshl_b32 s44, s33, 14"); e("s_add_u32 s52, s43, s44")
    for c in range(1, 7): e(f"s_add_u32 s{52+c}, s52, {c*65536}")
    e("s_cmp_eq_u32 s36, 3"); e(f"s_cselect_b32 s58, {HUGE}, s58")
    e(f"s_mul_i32 s39, s33, {RING2}")
    k.srd(16, 10, 11, 2048*4096)
    k.srd(20, 14, 15, ZF_BYTES, WS_Z2F)
    k.srd(24, 14, 15, ZF_BYTES, WS_Z1F)
    k.srd(28, 14, 15, ZF_BYTES, WS_HF)
    def Z(st, c): return v(112 + st*28 + c*4, 4)
    def acc(c, sg): return v((c*4 + sg)*4, 4)
    def wf(sg): return v(224 + 4*sg, 4)
    def issueZ(n):
        if n % 4 == 0 and n:
            for c in range(7): e(f"s_add_u32 s{52+c}, s{52+c}, 4096")
        for c in range(7): k.vmem(f"buffer_load_dwordx4 {Z(n%4,c)}, v244, s[20:23], s{52+c} offen offset:{(n%4)*1024} sc1", f"Z{n}")
    def issueA(c):
        for t in range(4):
            e(f"s_add_u32 m0, s39, {(c%NSLOT)*8192 + t*2048}")
            e("s_nop 0")
            k.vmem(f"buffer_load_dwordx4 v242, s[16:19], s{48+t} offen lds", f"A{c}")
            k.vmem(f"buffer_load_dwordx4 v243, s[16:19], s{48+t} offen offset:1024 lds", f"A{c}")
        for t in range(4): e(f"s_add_u32 s{48+t}, s{48+t}, 128")
    k.vm = []
    e("v_lshrrev_b32 v5, 1, v240"); e("v_xor_b32 v5, v5, v241")
    e("v_lshlrev_b32 v4, 7, v240"); e("v_lshl_add_u32 v4, v5, 4, v4"); e("v_add_u32 v4, s39, v4")
    for sg in range(4):
        e(f"s_xor_b32 s43, s33, {sg}"); e("s_lshl_b32 s43, s43, 11")
        e(f"v_add_u32 v{246+sg}, s43, v4")
        e(f"v_xor_b32 v{250+sg}, 64, v{246+sg}")
    e("s_setprio 0")
    e(f"v_mov_b32 v4, {W_PF}")
    lds_wait(k, "m_wpf", "v4", "v5", sleep=1)
    k.srd(64, 6, 7, 4096)
    e("s_setprio 3")
    k.stamp(7); k.cyc(12)
    k.vm = []
    def issueZ1(n, c):
        if n % 4 == 0 and n and c == 0: e("v_add_u32 v254, 4096, v254"); e("v_and_b32 v254, 0x3fff, v254")
        k.vmem(f"buffer_load_dwordx4 {Z(n%4,c)}, v254, s[20:23], s{52+c} offen offset:{(n%4)*1024} sc1", f"Z{n}_{c}")
    def issueA1(c, t):
        e(f"s_add_u32 m0, s39, {(c%NSLOT)*8192 + t*2048}")
        e("s_nop 0")
        e(f"s_add_u32 s47, s{48+t}, s59")
        k.vmem(f"buffer_load_dwordx4 v242, s[16:19], s47 offen lds", f"A{c}")
        k.vmem(f"buffer_load_dwordx4 v243, s[16:19], s47 offen offset:1024 lds", f"A{c}")
        if t == 3: e("s_add_u32 s59, s59, 128"); e("s_and_b32 s59, s59, 1023")
    e(f"s_and_b32 s43, s35, {ROTM}"); e("s_lshl_b32 s59, s43, 8"); e("s_add_u32 s59, s59, 256"); e("s_and_b32 s59, s59, 1023")
    e("s_lshl_b32 s43, s43, 12"); e("v_add_u32 v254, s43, v244")
    for n in range(4):
        for c in range(7): issueZ1(n, c)
    for n in range(16):
        c, ks = n >> 1, n & 1
        if ks == 0 and f"A{c}" in k.vm: k.wait_vm(f"A{c}")
        for sg in range(4):
            e(f"ds_read_b128 {wf(sg)}, v{(250 if ks else 246)+sg} offset:{(c%NSLOT)*8192}")
        if n == 15:
            if f"Z{n}_6" in k.vm: k.wait_vm(f"Z{n}_6")
            e("s_waitcnt lgkmcnt(0)")
            for sg in (1, 3, 2, 0):
                for cc in range(7): e(f"{MFMA} {acc(cc,sg)}, {Z(n%4,cc)}, {wf(sg)}, {acc(cc,sg)}")
            continue
        for cc in range(7):
            if f"Z{n}_{cc}" in k.vm: k.wait_vm(f"Z{n}_{cc}")
            if n == 0 and cc == 0: k.stamp(8)
            for sg in range(4):
                if cc == 0: e(f"s_waitcnt lgkmcnt({3-sg})")
                e(f"{MFMA} {acc(cc,sg)}, {Z(n%4,cc)}, {wf(sg)}, {'0' if n == 0 else acc(cc,sg)}")
            if n + 4 < 16: issueZ1(n + 4, cc)
            if ks == 1 and c + NSLOT < 8 and cc in (0, 2, 4, 6): issueA1(c + NSLOT, cc // 2)
        if n == 12:
            e("s_lshl_b32 s43, s35, 2"); e("s_add_u32 s43, s43, s33"); e("s_mul_i32 s44, s43, 27648")
            for cc in range(7):
                e(f"s_add_u32 s45, s37, {cc}"); e("s_lshr_b32 s46, s45, 1"); e("s_lshl_b32 s46, s46, 10"); e("s_and_b32 s45, s45, 1"); e("s_lshl_b32 s45, s45, 3")
                e("s_add_u32 s45, s45, s46"); e(f"s_add_u32 s{52+cc}, s45, s44")
            e("s_cmp_eq_u32 s36, 3"); e(f"s_cselect_b32 s58, {HUGE}, s58")
            for cc in range(7): k.vmem(f"buffer_load_dwordx2 {v(112+2*cc,2)}, v244, s[24:27], s{52+cc} offen sc1", "z1")
            e("s_lshr_b32 s44, s43, 1"); e("s_lshl_b32 s44, s44, 5"); e("s_and_b32 s45, s43, 1"); e("s_lshl_b32 s45, s45, 2"); e("s_add_u32 s44, s44, s45")
            e("v_lshrrev_b32 v128, 2, v240"); e("v_and_b32 v129, 3, v240"); e("v_lshl_add_u32 v128, v128, 3, v129"); e("v_add_u32 v128, s44, v128")
            e("v_lshlrev_b32 v128, 1, v128")
            k.vmem("buffer_load_ushort v126, v128, s[64:67], 0 offen", "z1")
        if n == 12:
            e("s_lshl_b32 s43, s33, 2"); e(f"s_add_u32 s43, s43, {W_GL}"); e("v_mov_b32 v254, s43"); e("v_mov_b32 v255, 1")
            e("ds_write_b32 v254, v255")
    k.stamp(9); k.cyc(13)
    e("v_add_u32 v130, s39, v244")
    e("s_xor_b32 s43, s33, 1"); e(f"s_mul_i32 s43, s43, {RING2}"); e("v_add_u32 v131, s43, v244")
    e("s_xor_b32 s43, s33, 3"); e(f"s_mul_i32 s43, s43, {RING2}"); e("v_add_u32 v132, s43, v244")
    e(f"v_add_u32 v133, {W_R1 - W_GL}, v254")
    e("v_xor_b32 v134, 4, v133"); e("v_xor_b32 v135, 8, v133"); e("v_add_u32 v135, 16, v135")
    for c in range(7):
        for h in range(2): e(f"ds_write_b128 v130, {acc(c,1+2*h)} offset:{(c*2+h)*1024}")
    e("ds_write_b32 v133, v255")
    lds_wait(k, "m_wr1", "v134", "v136")
    T = 140
    for h in (1, 0):
        for c in range(7): e(f"ds_read_b128 {v(T+(c*2+h)*4,4)}, v131 offset:{(c*2+h)*1024}")
    e("s_waitcnt lgkmcnt(7)")
    for c in range(7):
        for p in range(2):
            a = (c*4 + 2)*4 + 2*p
            e(f"v_pk_add_f32 {pr(a)}, {pr(a)}, {pr(T+(c*2+1)*4+2*p)}")
    e("s_waitcnt lgkmcnt(0)")
    for c in range(7): e(f"ds_write_b128 v131, {acc(c,2)} offset:{c*1024}")
    e("ds_write_b32 v133, v255 offset:16")
    for c in range(7):
        for p in range(2):
            a = (c*4)*4 + 2*p
            e(f"v_pk_add_f32 {pr(a)}, {pr(a)}, {pr(T+(c*2)*4+2*p)}")
    lds_wait(k, "m_wr2", "v135", "v136")
    for c in range(7): e(f"ds_read_b128 {v(T+c*4,4)}, v132 offset:{c*1024}")
    e("s_waitcnt vmcnt(0)")
    k.vm = []
    e("v_lshlrev_b32 v126, 16, v126")
    for i in range(14): unpack(k, f"v{170+2*i}", f"v{171+2*i}", f"v{112+i}")
    k.srd(16, 14, 15, WOF_BYTES, WS_WOF)
    e("s_and_b32 s43, s41, 1"); e("s_lshl_b32 s43, s43, 2"); e("s_add_u32 s45, s36, s43")
    e("s_xor_b32 s43, s33, 3"); e("s_lshl_b32 s46, s43, 4"); e("s_sub_i32 s46, s46, 22"); e("s_max_i32 s46, s46, 0")
    e("s_cmp_eq_u32 s43, 1"); e("s_cselect_b32 s47, 10, 16"); e("s_cmp_eq_u32 s43, 0"); e("s_cselect_b32 s47, 0, s47")
    e("s_lshl_b32 s46, s46, 10"); e("s_mul_i32 s48, s45, 138240"); e("s_add_u32 s48, s48, s46"); e(f"s_add_u32 s46, s46, {IMG}")
    e(f"v_mov_b32 v136, {W_FX}")
    lds_wait(k, "m_wfw2", "v136", "v137")
    e("s_cmp_eq_u32 s47, 0"); e("s_cbranch_scc1 m_gwodone")
    k.label("m_gwoloop")
    e("s_mov_b32 m0, s46"); e("s_add_u32 s46, s46, 2048")
    e("buffer_load_dwordx4 v244, s[16:19], s48 offen sc1 lds"); e("buffer_load_dwordx4 v244, s[16:19], s48 offen offset:1024 sc1 lds")
    e("s_add_u32 s48, s48, 2048"); e("s_sub_u32 s47, s47, 2"); e("s_cmp_lg_u32 s47, 0"); e("s_cbranch_scc1 m_gwoloop")
    k.label("m_gwodone")
    A = [c*16 + 2*p for c in range(7) for p in range(2)]
    for i in range(14): e(f"v_pk_add_f32 {pr(A[i])}, {pr(A[i])}, {pr(T+2*i)}")
    for i in range(14): e(f"v_pk_add_f32 {pr(A[i])}, {pr(A[i])}, v[126:127] op_sel_hi:[1,0]")
    for i in range(14): e(f"v_pk_mul_f32 {pr(A[i])}, {pr(A[i])}, {pr(170+2*i)}")
    for i in range(14): e(f"v_cvt_pk_bf16_f32 v{200+i}, v{A[i]}, v{A[i]+1}")
    e("s_bitcmp1_b32 s37, 0"); e("s_cbranch_scc1 m_hodd")
    for c in (0, 2, 4): e(f"buffer_store_dwordx4 {v(200+2*c,4)}, v244, s[28:31], s{52+c} offen sc1")
    e(f"buffer_store_dwordx2 {v(212,2)}, v244, s[28:31], s58 offen sc1")
    e("s_branch m_hdone")
    k.label("m_hodd")
    e(f"buffer_store_dwordx2 {v(200,2)}, v244, s[28:31], s52 offen sc1")
    for c in (1, 3): e(f"buffer_store_dwordx4 {v(200+2*c,4)}, v244, s[28:31], s{52+c} offen sc1")
    e("s_cmp_eq_u32 s36, 3"); e("s_cbranch_scc1 m_hodd6")
    e(f"buffer_store_dwordx4 {v(210,4)}, v244, s[28:31], s57 offen sc1")
    e("s_branch m_hdone")
    k.label("m_hodd6")
    e(f"buffer_store_dwordx2 {v(210,2)}, v244, s[28:31], s57 offen sc1")
    k.label("m_hdone")
    e("v_mov_b32 v1, v245")
    e("s_and_b32 s43, s41, 1"); e("s_lshl_b32 s43, s43, 2"); e("s_add_u32 s36, s36, s43")
    e(f"v_mov_b32 v4, {W_PF + 4}"); e("v_mov_b32 v5, 1"); e("v_lshlrev_b32 v6, 7, v1"); e("v_mov_b32 v7, s3")
    e("s_lshl_b32 s44, s35, 10"); e("s_lshl_b32 s45, s36, 2"); e("s_add_u32 s44, s44, s45"); e(f"s_add_u32 s44, s44, {FH2}")
    e("s_mov_b64 exec, 1")
    e("s_waitcnt vmcnt(0)")
    e("ds_add_rtn_u32 v8, v4, v5")
    e("s_waitcnt lgkmcnt(0)")
    e("v_readfirstlane_b32 s43, v8")
    e("s_mov_b64 exec, 0xff")
    e("s_cmp_lg_u32 s43, 3"); e("s_cbranch_scc1 m_nopub")
    e("buffer_store_dword v7, v6, s[60:63], s44 offen sc1")
    k.label("m_nopub")
    e("s_mov_b64 exec, -1")
    e("s_setprio 0")
    e("v_and_b32 v2, 15, v1"); e("v_lshrrev_b32 v3, 4, v1")
    e("s_mov_b32 s47, 0"); e("s_mov_b32 s46, 0")

def gen_p3(k):
    e = k.e
    k.label("m_P3")
    k.stamp(10)
    e("s_lshr_b32 s34, s32, 2")
    e("v_lshlrev_b32 v15, 4, v1")
    k.srd(16, 14, 15, WOF_BYTES, WS_WOF)
    k.srd(20, 14, 15, ZF_BYTES, WS_HF)
    k.srd(24, 4, 5, 2048*1280)
    k.srd(28, 98, 99, 2048*1280)
    e("s_lshl_b32 s46, s46, 10"); e("s_mul_i32 s48, s36, 138240"); e("s_add_u32 s48, s48, s46"); e(f"s_add_u32 s46, s46, {IMG}")
    e("s_cmp_eq_u32 s47, 0"); e("s_cbranch_scc1 m_wodone")
    k.label("m_woloop")
    e("s_mov_b32 m0, s46"); e("s_add_u32 s46, s46, 1024")
    e("buffer_load_dwordx4 v15, s[16:19], s48 offen sc1 lds")
    e("s_add_u32 s48, s48, 1024"); e("s_sub_u32 s47, s47, 1"); e("s_cmp_lg_u32 s47, 0"); e("s_cbranch_scc1 m_woloop")
    k.label("m_wodone")
    def H(g, sg): return v(16 + (g*2 + sg)*4, 4)
    def WF(g, db): return v(72 + (g*5 + db)*4, 4)
    def acc(sg, db): return v(212 + (sg*5 + db)*4, 4)
    e("s_cmp_eq_u32 s33, 3"); e(f"s_cselect_b32 s45, {HUGE}, 6144")
    e("s_and_b32 s43, s33, 1"); e("s_lshl_b32 s44, s34, 1"); e("s_add_u32 s57, s43, s44")
    e("s_lshr_b32 s58, s33, 1"); e("s_mul_i32 s58, s58, 3")
    e("s_lshr_b32 s43, s57, 1"); e("s_lshl_b32 s43, s43, 5"); e("s_and_b32 s44, s57, 1"); e("s_lshl_b32 s44, s44, 2"); e("s_add_u32 s59, s43, s44")
    e("s_lshl_b32 s43, s35, 6"); e("s_add_u32 s43, s43, s59")
    e("v_lshrrev_b32 v6, 2, v2"); e("v_and_b32 v7, 3, v2"); e("v_lshl_add_u32 v6, v6, 3, v7"); e("v_add_u32 v6, s43, v6")
    e("v_mul_u32_u24 v6, 1280, v6"); e("v_lshl_add_u32 v6, v3, 3, v6"); e("s_mul_i32 s43, s36, 160"); e("v_add_u32 v14, s43, v6")
    for i in range(3):
        e(f"s_add_u32 s43, s58, {i}"); e(f"s_min_u32 s{68+i}, s43, 4")
        e(f"s_lshl_b32 s{72+i}, s{68+i}, 5")
    k.srd(64, 14, 15, XT_BYTES, WS_YT)
    e("s_lshl_b32 s43, s35, 2"); e("s_lshl_b32 s44, s34, 1"); e("s_add_u32 s43, s43, s44"); e("s_mul_i32 s43, s43, 27"); e("s_mul_i32 s44, s33, 7"); e("s_add_u32 s43, s43, s44")
    e("s_lshl_b32 s46, s43, 10"); e("s_add_u32 s47, s46, 27648")
    e("s_add_u32 s48, s46, 4096"); e("s_add_u32 s49, s47, 4096"); e("s_add_u32 s50, s46, s45"); e("s_add_u32 s51, s47, s45")
    e("s_mul_i32 s43, s33, 35840"); e(f"s_add_u32 s43, s43, {IMG}"); e("v_add_u32 v252, s43, v15")
    e("s_cmp_eq_u32 s33, 3"); e("s_cselect_b32 s43, 5120, 0"); e("v_subrev_u32 v253, s43, v252")
    e("v_and_b32 v4, 7, v1"); e("v_lshlrev_b32 v4, 2, v4")
    e("s_lshl_b32 s44, s35, 10"); e("s_lshl_b32 s43, s36, 7"); e("s_add_u32 s44, s44, s43"); e(f"s_add_u32 s44, s44, {FH2}")
    e("v_min_u32 v254, 39, v1"); e("v_lshlrev_b32 v254, 3, v254")
    e("s_mul_i32 s52, s36, 320"); e(f"s_add_u32 s52, s52, {FY}")
    e("s_cmp_ge_u32 s32, 4"); e("s_cbranch_scc1 m_nwv")
    e("s_waitcnt vmcnt(0)")
    k.label("m_nwv")
    e("s_barrier")
    k.stamp(4)
    e("s_cmp_lg_u32 s32, 3"); e("s_cbranch_scc1 m_nhp")
    e("buffer_load_dword v5, v4, s[60:63], s44 offen sc1")
    k.label("m_nhp")
    e("s_cmp_lg_u32 s32, 2"); e("s_cbranch_scc1 m_nyp")
    e("buffer_load_dwordx2 v[248:249], v254, s[60:63], s52 offen sc1")
    k.label("m_nyp")
    for g in range(7):
        for db in range(5): e(f"ds_read_b128 {WF(g,db)}, v{253 if g == 6 else 252} offset:{g*5120 + db*1024}")
    for i in range(3): e(f"buffer_load_dwordx2 {v(8+2*i,2)}, v14, s[24:27], s{72+i} offen")
    e("v_lshrrev_b32 v244, 3, v1"); e("v_lshlrev_b32 v244, 12, v244"); e("v_and_b32 v245, 7, v1"); e("v_lshl_add_u32 v244, v245, 4, v244")
    e("s_mul_i32 s53, s36, 80"); e("s_lshl_b32 s43, s32, 3"); e("s_add_u32 s53, s53, s43"); e("s_lshl_b32 s53, s53, 12"); e("s_lshl_b32 s43, s35, 7"); e("s_add_u32 s53, s53, s43")
    e("s_cmp_lt_u32 s32, 2"); e(f"s_cselect_b32 s54, {64*4096}, 0"); e("s_cselect_b32 s55, 8192, 0"); e("s_add_u32 s54, s54, s53")
    e("s_lshl_b32 s43, s32, 10"); e(f"s_add_u32 s43, s43, {YTILE}"); e("v_add_u32 v246, s43, v15"); e("v_add_u32 v247, s55, v246")
    e("s_cmp_lg_u32 s32, 3"); e("s_cbranch_scc1 m_hw")
    poll_flags(k, "m_pollh", "v4", FLS, 1, 5, "v6", soff="s44", sleep=2, preloaded=True)
    k.label("m_hw")
    e("s_cmp_lg_u32 s32, 2"); e("s_cbranch_scc1 m_noy")
    poll_flags(k, "m_polly", "v254", FLS, 2, 248, "v5", soff="s52", sleep=8, preloaded=True)
    k.label("m_noy")
    e("s_waitcnt lgkmcnt(0)")
    e("s_barrier")
    k.stamp(11)
    k.vm = []
    k.vmem("buffer_load_dwordx4 v[236:239], v244, s[64:67], s53 offen sc1", "y")
    k.vmem("buffer_load_dwordx4 v[240:243], v244, s[64:67], s54 offen sc1", "y")
    for g in range(7):
        for sg in range(2):
            so = 46 + sg + (0 if g < 4 else 2 if g < 6 else 4)
            k.vmem(f"buffer_load_dwordx4 {H(g,sg)}, v15, s[20:23], s{so} offen offset:{(g%4)*1024 if g < 6 else 0} sc1", f"h{g}")
    e("s_mul_i32 s43, s32, 10240"); e("v_add_u32 v252, s43, v15")
    e("s_mul_i32 s43, s34, 40960"); e("s_and_b32 s44, s33, 1"); e("s_mul_i32 s44, s44, 5120"); e("s_add_u32 s43, s43, s44")
    e("v_bfe_u32 v4, v1, 2, 2"); e("v_lshl_add_u32 v4, v3, 2, v4"); e("v_lshlrev_b32 v4, 7, v4")
    e("v_and_b32 v5, 3, v1"); e("v_lshl_add_u32 v4, v5, 4, v4")
    e("s_lshl_b32 s44, s59, 1"); e(f"s_add_u32 s44, s44, {YTILE}"); e("v_add_u32 v4, s44, v4")
    for i in range(3):
        e(f"s_lshl_b32 s44, s{68+i}, 10"); e("s_add_u32 s44, s44, s43"); e(f"v_add_u32 v{253+i}, s44, v15")
        e(f"s_lshl_b32 s44, s{68+i}, 11"); e(f"v_add_u32 v{5+i}, s44, v4")
    for g in range(7):
        k.wait_vm(f"h{g}")
        if g == 0: e("ds_write_b128 v246, v[236:239]"); e("ds_write_b128 v247, v[240:243]"); e("s_waitcnt lgkmcnt(0)")
        for db in range(5):
            for sg in range(2):
                e(f"{MFMA} {acc(sg,db)}, {WF(g,db)}, {H(g,sg)}, {'0' if g == 0 else acc(sg,db)}")
    e("s_nop 2")
    e("s_nop 1")
    for db in range(5):
        for sg in range(2): e(f"ds_write_b128 v252, {acc(sg,db)} offset:{(sg*5+db)*1024}")
    for i in range(6): unpack(k, f"v{96+2*i}", f"v{97+2*i}", f"v{8+i}")
    e("s_waitcnt lgkmcnt(0)")
    e("s_barrier")
    for i in range(3): e(f"ds_read_b64_tr_b16 {v(24+2*i,2)}, v{5+i}")
    for i in range(3):
        for kq in range(4): e(f"ds_read_b128 {v(32+(i*4+kq)*4,4)}, v{253+i} offset:{kq*10240}")
    e("s_waitcnt lgkmcnt(12)")
    for n in range(6): unpack(k, f"v{112+2*n}", f"v{113+2*n}", f"v{24+n}")
    for n in range(6): e(f"v_pk_add_f32 {pr(96+2*n)}, {pr(96+2*n)}, {pr(112+2*n)}")
    e("s_waitcnt lgkmcnt(0)")
    A = [32 + i*16 + 2*p for i in range(3) for p in range(2)]
    for n in range(6): e(f"v_pk_add_f32 {pr(A[n])}, {pr(A[n])}, {pr(A[n]+4)}"); e(f"v_pk_add_f32 {pr(A[n]+8)}, {pr(A[n]+8)}, {pr(A[n]+12)}")
    for n in range(6): e(f"v_pk_add_f32 {pr(A[n])}, {pr(A[n])}, {pr(A[n]+8)}")
    for n in range(6): e(f"v_pk_add_f32 {pr(A[n])}, {pr(A[n])}, {pr(96+2*n)}")
    for n in range(6): e(f"v_cvt_pk_bf16_f32 v{24+n}, v{A[n]}, v{A[n]+1}")
    for i in range(3): e(f"buffer_store_dwordx2 {v(24+2*i,2)}, v14, s[28:31], s{72+i} offen")
    e("s_lshl_b32 s43, s2, 3"); e("s_add_u32 s43, s43, s32"); e("s_cmp_lg_u32 s43, 4"); e("s_cbranch_scc1 m_fin")
    k.srd(64, 12, 13, 256)
    e("v_mov_b32 v4, 0"); e("s_mov_b64 exec, 1")
    e("buffer_store_dword v4, v4, s[64:67], 0 offen sc1")
    k.label("m_fin")
    k.end(0)

def gen_helper(k, epoch_poll):
    e = k.e
    k.label("m_helper")
    e("s_lshl_b32 s35, s41, 2"); e("s_add_u32 s35, s35, s42"); e("s_sub_u32 s35, s35, 28")
    e("v_and_b32 v2, 15, v1"); e("v_lshrrev_b32 v3, 4, v1")
    e("s_lshl_b32 s43, s32, 3")
    e("v_add_u32 v4, s43, v3")
    e("s_lshl_b32 s44, s35, 6")
    e("v_add_u32 v5, s44, v4"); e("v_mul_u32_u24 v5, 1280, v5"); e("v_lshl_add_u32 v5, v2, 4, v5")
    e("v_add_u32 v6, 5120, v5")
    e("v_mul_u32_u24 v7, 1296, v4"); e("v_lshl_add_u32 v7, v2, 4, v7")
    e("v_mov_b32 v110, 0")
    e("v_and_b32 v4, 31, v1"); e(f"v_lshlrev_b32 v4, 2, v4"); e(f"v_add_u32 v4, {W_EPOCH}, v4")
    e("s_cmp_lg_u32 s32, 4"); e("s_cbranch_scc1 m_hnoclr")
    e("ds_write_b32 v4, v110")
    k.label("m_hnoclr")
    e("s_waitcnt lgkmcnt(0)")
    k.srd(16, 4, 5, 2048*1280)
    k.srd(28, 14, 15, XT_BYTES, WS_XNT)
    k.srd(64, 12, 13, 256)
    k.srd(FLS, 14, 15, FL_BYTES, WS_FL)
    k.srd(20, 96, 97, 864*1280)
    k.vm = []
    for g in range(2):
        for n in range(5):
            k.vmem(f"buffer_load_dwordx4 {v(8+g*20+n*4,4)}, v{5+g}, s[16:19], 0 offen offset:{n*256}", f"x{g}")
    XB = (48, 128)
    for g in range(2):
        k.stamp(1+2*g)
        k.wait_vm(f"x{g}")
        if g == 0: k.vmem("buffer_load_dword v111, v110, s[64:67], 0 offen sc1", "ep")
        X = XB[g]; src = 8 + g*20; M, R = 112 + 4*g, 114 + 4*g
        for n in range(20): unpack(k, f"v{X+2*n}", f"v{X+2*n+1}", f"v{src+n}")
        e(f"v_pk_add_f32 v[88:89], {pr(X)}, {pr(X+4)}"); e(f"v_pk_add_f32 v[90:91], {pr(X+2)}, {pr(X+6)}")
        for n in range(4, 20): e(f"v_pk_add_f32 {pr(88+2*(n%2))}, {pr(88+2*(n%2))}, {pr(X+2*n)}")
        e("v_pk_add_f32 v[88:89], v[88:89], v[90:91]"); e("s_nop 0"); e("v_add_f32 v88, v88, v89")
        for sh in (8, 4, 2, 1):
            e("s_nop 1"); e(f"v_add_f32_dpp v88, v88, v88 row_ror:{sh} row_mask:0xf bank_mask:0xf")
        e(f"v_mul_f32 v{M}, {f32(1/640)}, v88")
        for a_ in range(4): e(f"v_mov_b32 v{92+a_}, 0")
        for n0 in range(0, 20, 4):
            for a_ in range(4): e(f"v_pk_add_f32 {pr(96+2*a_)}, {pr(X+2*(n0+a_))}, {pr(M)} op_sel_hi:[1,0] neg_lo:[0,1] neg_hi:[0,1]")
            for a_ in range(4): e(f"v_pk_fma_f32 {pr(92+2*(a_%2))}, {pr(96+2*a_)}, {pr(96+2*a_)}, {pr(92+2*(a_%2))}")
        e("v_pk_add_f32 v[92:93], v[92:93], v[94:95]"); e("s_nop 0"); e("v_add_f32 v92, v92, v93")
        for sh in (8, 4, 2, 1):
            e("s_nop 1"); e(f"v_add_f32_dpp v92, v92, v92 row_ror:{sh} row_mask:0xf bank_mask:0xf")
        e(f"v_mul_f32 v{R}, {f32(1/640)}, v92")
        ln_finish(k, f"v{M}", f"v{R}", "v89")
    e("s_mov_b32 s40, 0")
    k.label("m_hep")
    e("s_waitcnt vmcnt(0)")
    e("v_readfirstlane_b32 s3, v111")
    e("s_add_u32 s40, s40, 1")
    e("s_cmp_lg_u32 s3, 0"); e("s_cbranch_scc1 m_hepok")
    e("buffer_load_dword v111, v110, s[64:67], 0 offen sc1")
    e(f"s_cmp_lt_u32 s40, {SPIN}"); e("s_cbranch_scc1 m_hep")
    k.label("m_hepok")
    k.vm = []
    k.srd(24, 14, 15, 32768, WS_ST1)
    for r in (113, 115, 117, 119): e(f"v_mov_b32 v{r}, v111")
    e("s_lshl_b32 s43, s35, 10"); e("s_lshl_b32 s44, s32, 7"); e("s_add_u32 s43, s43, s44"); e("v_lshlrev_b32 v5, 4, v3")
    e("v_cmp_eq_u32 vcc, 0, v2"); e("s_and_saveexec_b64 s[44:45], vcc")
    e("buffer_store_dwordx4 v[112:115], v5, s[24:27], s43 offen sc1"); e("buffer_store_dwordx4 v[116:119], v5, s[24:27], s43 offen offset:64 sc1")
    e("s_mov_b64 exec, -1")
    k.stamp(2)
    e("v_lshlrev_b32 v120, 4, v1")
    e("s_lshl_b32 s43, s35, 3"); e("s_add_u32 s43, s43, s32"); e("s_mul_i32 s43, s43, 4352")
    for n in range(4): e(f"buffer_load_dwordx4 v[124:127], v120, s[20:23], s43 offen offset:{n*1024}")
    e("s_add_u32 s43, s43, 4096")
    e(f"buffer_load_dwordx4 v[124:127], v120, s[20:23], s43 offen")
    for g in range(2):
        X = XB[g]; src = 8 + g*20; M, R = 112 + 4*g, 114 + 4*g
        for n in range(20): e(f"v_pk_add_f32 {pr(X+2*n)}, {pr(X+2*n)}, {pr(M)} op_sel_hi:[1,0] neg_lo:[0,1] neg_hi:[0,1]")
        for n in range(20): e(f"v_pk_mul_f32 {pr(X+2*n)}, {pr(X+2*n)}, {pr(R)} op_sel_hi:[1,0]")
        for n in range(20): e(f"v_cvt_pk_bf16_f32 v{src+n}, v{X+2*n}, v{X+2*n+1}")
        for n in range(5):
            e(f"ds_write_b128 v7, {v(src+4*n,4)} offset:{g*4*1296 + n*256}")
    e(f"v_mov_b32 v9, {W_EPOCH}")
    e("s_cmp_lg_u32 s32, 4"); e("s_cbranch_scc1 m_hepdone")
    e("ds_write_b32 v9, v111")
    k.label("m_hepdone")
    e("s_waitcnt lgkmcnt(0)")
    e("s_barrier")
    k.stamp(4)
    e("v_bfe_u32 v4, v1, 2, 2"); e("v_lshl_add_u32 v4, v3, 3, v4"); e("v_mul_u32_u24 v4, 1296, v4")
    e("v_and_b32 v5, 3, v1"); e("v_lshl_add_u32 v4, v5, 3, v4")
    e("s_lshl_b32 s43, s32, 5"); e("v_add_u32 v4, s43, v4")
    e(f"v_add_u32 v5, {32*1296}, v4")
    for n in range(5):
        for th in range(2):
            for hh in range(2):
                e(f"ds_read_b64_tr_b16 {v(16+(n*2+th)*4+hh*2,2)}, v{4+th} offset:{hh*4*1296 + n*256}")
    e("s_mul_i32 s43, s32, 4608"); e("s_add_u32 s43, s43, 90112")
    e("v_mul_u32_u24 v5, 144, v2"); e("v_lshl_add_u32 v5, v3, 4, v5"); e("v_add_u32 v5, s43, v5")
    e("v_lshrrev_b32 v4, 3, v1"); e("v_lshlrev_b32 v6, 12, v4"); e("v_mul_u32_u24 v4, 144, v4"); e("v_and_b32 v7, 7, v1"); e("v_lshl_add_u32 v4, v7, 4, v4"); e("v_add_u32 v4, s43, v4")
    e("v_lshl_add_u32 v6, v7, 4, v6")
    e("s_lshl_b32 s46, s32, 16"); e("s_lshl_b32 s44, s35, 7"); e("s_add_u32 s46, s46, s44"); e("s_add_u32 s47, s46, 32768")
    e("s_waitcnt vmcnt(0) lgkmcnt(0)")
    for n in range(5):
        o = (n % 2) * 2304
        for th in range(2): e(f"ds_write_b128 v5, {v(16+(n*2+th)*4,4)} offset:{o + th*64}")
        for hf in range(2): e(f"ds_read_b128 {v(56+(n*2+hf)*4,4)}, v4 offset:{o + hf*8*144}")
    for n in range(5):
        e(f"s_waitcnt lgkmcnt({min(15, 4*(4-n))})")
        for hf in range(2):
            e(f"buffer_store_dwordx4 {v(56+(n*2+hf)*4,4)}, v6, s[28:31], s{46+hf} offen" + ("" if "wb" in EXP else " sc1"))
        e(f"s_add_u32 s46, s46, {8*65536}"); e(f"s_add_u32 s47, s47, {8*65536}")
    def publish(imm, tag):
        e("s_waitcnt vmcnt(0) lgkmcnt(0)")
        e("s_barrier")
        e("s_cmp_lg_u32 s32, 4"); e(f"s_cbranch_scc1 m_hnp{tag}")
        e("s_lshl_b32 s45, s35, 2"); e(f"s_add_u32 s45, s45, {FX}")
        set_flag(k, FLS, "s45", 0, "v7", "v8")
        k.label(f"m_hnp{tag}")
    e("s_load_dwordx8 s[64:71], s[0:1], 8")
    e("s_load_dwordx4 s[72:75], s[0:1], 40")
    e("s_cmp_ge_u32 s32, 4"); e("s_cbranch_scc1 m_hG")
    conv_params(k)
    k.label("m_hG")
    publish(192, "x")
    k.stamp(5)
    e("s_cmp_lt_u32 s32, 4"); e("s_cbranch_scc1 m_Lpost")
    e(f"v_mov_b32 v4, {W_PF + 8}"); e("v_mov_b32 v5, 4"); e("ds_write_b32 v4, v5")
    k.srd(24, 14, 15, WOF_BYTES, WS_WOF)
    e("s_lshl_b32 s36, s35, 2"); e("s_add_u32 s36, s36, s33")
    e("v_lshrrev_b32 v4, 3, v1"); e("v_mul_u32_u24 v111, 1280, v4"); e("v_and_b32 v5, 7, v1"); e("v_lshl_add_u32 v111, v5, 4, v111")
    e("s_mul_i32 s43, s33, 4608"); e(f"s_add_u32 s43, s43, {CONV0 + 3*CONV_B}")
    e("v_mul_u32_u24 v4, 144, v4"); e("v_lshl_add_u32 v4, v5, 4, v4"); e("v_add_u32 v4, s43, v4")
    e("v_bfe_u32 v5, v1, 2, 2"); e("v_lshl_add_u32 v5, v3, 2, v5"); e("v_mul_u32_u24 v5, 144, v5"); e("v_and_b32 v6, 3, v1"); e("v_lshl_add_u32 v5, v6, 3, v5"); e("v_add_u32 v5, s43, v5")
    e("v_lshlrev_b32 v6, 4, v1")
    k.vm = []
    for it in range(3):
        e(f"s_add_u32 s43, s36, {128*it}"); e("s_mul_i32 s44, s43, 205"); e("s_lshr_b32 s44, s44, 11"); e("s_mul_i32 s45, s44, 10"); e("s_sub_u32 s45, s43, s45")
        e("s_mul_i32 s46, s44, 40960"); e("s_lshl_b32 s47, s45, 7"); e("s_add_u32 s46, s46, s47")
        for d in range(4):
            e(f"s_lshl_b32 s47, s45, 2"); e(f"s_add_u32 s47, s47, {d}"); e("s_mul_i32 s34, s47, 52"); e("s_lshr_b32 s34, s34, 8")
            e("s_mul_i32 s34, s34, 130"); e("s_add_u32 s47, s47, s34"); e("s_mul_i32 s34, s44, 5"); e("s_add_u32 s47, s47, s34"); e("s_lshl_b32 s47, s47, 10")
            e("s_cmp_lt_u32 s43, 270"); e(f"s_cselect_b32 s{48+it*4+d}, s47, {HUGE}")
        for n in range(4):
            k.vmem(f"buffer_load_dwordx4 {v(16+it*16+n*4,4)}, v111, s[20:23], s46 offen", f"wo{it}")
            e("s_add_u32 s46, s46, 10240")
    for it in range(3):
        k.wait_vm(f"wo{it}")
        for n in range(4): e(f"ds_write_b128 v4, {v(16+it*16+n*4,4)} offset:{n*8*144}")
        for d in range(4):
            for hh in range(2): e(f"ds_read_b64_tr_b16 {v(64+it*16+d*4+hh*2,2)}, v5 offset:{hh*16*144 + d*32}")
    e("s_waitcnt lgkmcnt(0)")
    for it in range(3):
        for d in range(4): e(f"buffer_store_dwordx4 {v(64+it*16+d*4,4)}, v6, s[24:27], s{48+it*4+d} offen sc1")
    e(f"v_mov_b32 v4, {W_FX + 8}"); e("v_mov_b32 v5, 1"); e("v_lshlrev_b32 v7, 9, v1"); e("v_mov_b32 v9, s3")
    e("s_lshl_b32 s44, s35, 2"); e(f"s_add_u32 s44, s44, {FZ2}")
    e("s_mov_b64 exec, 1")
    e("s_waitcnt vmcnt(0)")
    e("ds_add_rtn_u32 v8, v4, v5")
    e("s_waitcnt lgkmcnt(0)")
    e("v_readfirstlane_b32 s43, v8")
    e("s_mov_b64 exec, -1")
    e("s_cmp_lg_u32 s43, 3"); e("s_cbranch_scc1 m_P2")
    e("s_lshl_b32 s45, s35, 2"); e(f"s_add_u32 s45, s45, {FK}")
    set_flag(k, FLS, "s45", 0, "v7", "v8")
    e("s_branch m_P2")

if __name__ == "__main__":
    import sys
    NAME = "parallel_sum__ssm_conv_s4d__mixer_gmlp__prompt"
    path = sys.argv[1] if len(sys.argv) > 1 else f"cdna_kernels/{NAME}.s"
    t, kd = gen_mega(NAME + "_kernel")
    hdr = open(f"cdna_kernels/{NAME}.s.ref").read().split("; Override launch")[0]
    lst = os.environ.get("LIST", "0") == "1"
    out = hdr + (f"; @launch kernel={NAME}_kernel grid=(256,1,1) block=(512,1,1) lds={LDS_TOTAL}\n" if lst else f"; @launch grid=(256,1,1) block=(512,1,1) lds={LDS_TOTAL}\n")
    out += '.amdgcn_target "amdgcn-amd-amdhsa--gfx950"\n.text\n' + t + '\ntext_end:\n.section .rodata,"a"\n.p2align 6\n' + kd + "\n"
    open(path, "w").write(out)
```

```python
from asmlib import *
import os
import numpy as np
MB = 1 << 20
WS_XNT, WS_Z2F, WS_Z1F, WS_HF, WS_YT, WS_ST2, WS_WOF, WS_FL = 0, 4*MB, 8*MB, 12*MB, 16*MB, 20*MB, 22*MB, 24*MB
ZF_BYTES = 54 * 65536
XT_BYTES = 640 * 4096
ST2_BYTES = 64 * 14 * 512
WOF_BYTES = 40 * 27 * 1024
FZ, FX, FK, FY, FH = 0, 4096, 5120, 6144, 10240
FL_BYTES = 262144
FZ2 = 65536
FH2 = 16384
HUGE = 0x40000000
GC0 = -2.0 * 0.7978845608028654 * 1.4426950408889634
GC1 = GC0 * 0.044715
MFMA = "v_mfma_f32_16x16x32_bf16"
LOG2E = 1.4426950408889634
L_HI = float(np.float32(LOG2E)); L_LO = LOG2E - L_HI
EXP = os.environ.get("EXP", "")
LDS_TOTAL = 163840
RING2 = 24576
CONV0 = 98304; CONV_B = 14592
YTILE = CONV0 + 3 * CONV_B
MISC = 161152
W_EPOCH, W_PF, W_GL, W_R1, W_R2 = MISC + 2560, MISC + 2564, MISC + 2576, MISC + 2592, MISC + 2608
W_FX = MISC + 2624
SPIN = 0x40000

def exp_precise(k, dst, x, t0, t1):
    e = k.e
    e(f"v_mul_f32 {t0}, {f32(L_HI)}, {x}")
    e(f"v_mov_b32 {t1}, {f32(L_HI)}")
    e(f"v_fma_f32 {t1}, {x}, {t1}, -{t0}")
    e(f"v_fmac_f32 {t1}, {f32(L_LO)}, {x}")
    e(f"v_exp_f32 {t0}, {t0}")
    e(f"v_mul_f32 {t1}, {f32(0.6931471805599453)}, {t1}")
    e(f"v_fma_f32 {dst}, {t0}, {t1}, {t0}")

def ln_finish(k, mean, var, t):
    k.e(f"v_max_f32 {var}, 0, {var}")
    k.e(f"v_cvt_pk_bf16_f32 {t}, {mean}, {var}")
    k.e(f"v_lshlrev_b32 {mean}, 16, {t}")
    k.e(f"v_and_b32 {var}, 0xffff0000, {t}")
    k.e(f"v_add_f32 {var}, {f32(1e-5)}, {var}")
    k.e(f"v_cvt_pk_bf16_f32 {t}, {var}, {var}")
    k.e(f"v_and_b32 {var}, 0xffff0000, {t}")
    k.e(f"v_sqrt_f32 {var}, {var}")
    k.e("s_nop 0")
    k.e(f"v_cvt_pk_bf16_f32 {t}, {var}, {var}")
    k.e(f"v_and_b32 {var}, 0xffff0000, {t}")
    k.e(f"v_rcp_f32 {var}, {var}")
    k.e("s_nop 0")

def unpack(k, lo, hi, src):
    k.e(f"v_lshlrev_b32 {lo}, 16, {src}"); k.e(f"v_and_b32 {hi}, 0xffff0000, {src}")
def pr(r): return f"v[{r}:{r+1}]"

def poll_flags(k, name, voff, srd, ndw, dst, tmp, soff="0", imm=0, sleep=0, preloaded=False):
    e = k.e
    e("s_mov_b32 s40, 0")
    if preloaded: e(f"s_branch {name}_pre")
    elif sleep: e(f"s_branch {name}_1st")
    k.label(name)
    if sleep:
        e(f"s_sleep {sleep}"); k.label(name + "_1st")
    sfx = {1: "dword", 2: "dwordx2", 4: "dwordx4"}[ndw]
    e(f"buffer_load_{sfx} {v(dst, ndw)}, {voff}, s[{srd}:{srd+3}], {soff} offen offset:{imm} sc1")
    e("s_add_u32 s40, s40, 1")
    if preloaded: k.label(name + "_pre")
    e("s_waitcnt vmcnt(0)")
    e(f"v_xor_b32 {tmp}, s3, v{dst}")
    for i in range(1, ndw):
        e(f"v_xor_b32 v{dst+i}, s3, v{dst+i}"); e(f"v_or_b32 {tmp}, {tmp}, v{dst+i}")
    e(f"v_cmp_ne_u32 vcc, 0, {tmp}")
    e(f"s_cmp_ge_u32 s40, {SPIN}")
    e(f"s_cbranch_scc1 {name}_ok")
    e(f"s_cbranch_vccnz {name}")
    k.label(name + "_ok")
    k.vm = []

def set_flag(k, srd, soff, imm, va, vb):
    e = k.e
    e(f"v_mov_b32 {va}, 0"); e(f"v_mov_b32 {vb}, s3")
    e("s_waitcnt vmcnt(0)")
    e("s_mov_b64 exec, 1")
    e(f"buffer_store_dword {vb}, {va}, s[{srd}:{srd+3}], {soff} offen offset:{imm} sc1")
    e("s_mov_b64 exec, -1")
    k.vm = [None]

def lds_wait(k, name, vaddr, vt, sleep=0):
    e = k.e
    e("s_mov_b32 s40, 0")
    k.label(name)
    if sleep: e(f"s_sleep {sleep}")
    e(f"ds_read_b32 {vt}, {vaddr}")
    e("s_add_u32 s40, s40, 1")
    e("s_waitcnt lgkmcnt(0)")
    e(f"v_readfirstlane_b32 s43, {vt}")
    e(f"s_cmp_ge_u32 s40, {SPIN*8}")
    e(f"s_cbranch_scc1 {name}_ok")
    e("s_cmp_eq_u32 s43, 0")
    e(f"s_cbranch_scc1 {name}")
    k.label(name + "_ok")
    k.lg = []

def lds_wait_ge(k, name, vaddr, vt, ndw, val, sleep=0, preloaded=False):
    e = k.e
    e("s_mov_b32 s75, 0")
    if preloaded: e(f"s_branch {name}_chk")
    k.label(name)
    if sleep: e(f"s_sleep {sleep}")
    e(f"ds_read_b{32*ndw} {v(vt, ndw)}, {vaddr}")
    e("s_add_u32 s75, s75, 1")
    e("s_waitcnt lgkmcnt(0)")
    e(f"s_cmp_ge_u32 s75, {SPIN*8}")
    e(f"s_cbranch_scc1 {name}_ok")
    k.label(name + "_chk")
    if ndw == 4: e(f"v_min_u32 v{vt}, v{vt}, v{vt+2}"); e(f"v_min_u32 v{vt+1}, v{vt+1}, v{vt+3}")
    if ndw >= 2: e(f"v_min_u32 v{vt}, v{vt}, v{vt+1}"); e("s_nop 0")
    e(f"v_readfirstlane_b32 s43, v{vt}")
    e(f"s_cmp_lt_u32 s43, {val}")
    e(f"s_cbranch_scc1 {name}")
    k.label(name + "_ok")
    k.lg = []

KG_PITCH = 272
KGW, KGR = 'v8', 'v9'
KG_HOLD = 168
def kgen_dt(k, dtv):
    e = k.e
    e(f"v_lshlrev_b32 {dtv}, 16, {dtv}")
    exp_precise(k, dtv, dtv, "v4", "v5")
    e(f"v_cvt_pk_bf16_f32 {dtv}, {dtv}, {dtv}"); e(f"v_and_b32 {dtv}, 0xffff0000, {dtv}")

def kgen_chains(k, par, dtv, hf, hold):
    e = k.e
    names = {}; nxt = [24]; held = []
    def pair(n):
        if n not in names:
            names[n] = nxt[0]; nxt[0] += 2; assert nxt[0] <= 136
        return names[n]
    def P(n): r = pair(n); return f"v[{r}:{r+1}]"
    urow = {"U0":0,"U1":1,"U2":2,"U3":3,"U4":4,"U5":5,"U6":6,"U7":7,"R256":8,"R258":9,"R260":10,"R262":11,"R512":12,"R516":13,"R768":14,"R772":15,
            "R1024":16,"R1280":17,"R1536":18,"R1792":19,"R2048":20}
    tmp = [0]
    def out(n, row, neg):
        r = pair(n)
        t = (KG_HOLD + tmp[0]) if hold else (152 + tmp[0] % 12)
        tmp[0] += 1
        e(f"v_cvt_pk_bf16_f32 v{t}, v{r}, {'-' if neg else ''}v{r+1}")
        held.append((t, row))
        return None if hold else f"ds_write_b32 {KGW}, v{t} offset:{row*KG_PITCH}"
    def level(ops):
        for d, a, b in ops: e(f"v_pk_mul_f32 {P('t_'+str(ops.index((d,a,b))))}, {P(a)}, {P(b)} op_sel:[0,0] op_sel_hi:[1,0]")
        for d, a, b in ops: e(f"v_pk_fma_f32 {P(d)}, {P(a)}, {P(b)}, {P('t_'+str(ops.index((d,a,b))))} op_sel:[1,1,0] op_sel_hi:[0,1,1] neg_lo:[0,1,0]")
    def unp(dst, src): e(f"v_lshlrev_b32 {dst}, 16, {src}" if hf == 0 else f"v_and_b32 {dst}, 0xffff0000, {src}")
    unp("v6", f"v{par}")
    exp_precise(k, "v6", "v6", "v4", "v5")
    e("v_cvt_pk_bf16_f32 v6, v6, v6"); e("v_and_b32 v6, 0xffff0000, v6")
    e(f"v_mul_f32 v6, v6, {dtv}"); e(f"v_mul_f32 v6, {f32(-LOG2E)}, v6")
    unp("v7", f"v{par+1}"); e(f"v_mul_f32 v7, v7, {dtv}"); e("v_mul_f32 v7, 0.15915494, v7")
    u0 = pair("U0")
    unp(f"v{u0}", f"v{par+2}"); unp(f"v{u0+1}", f"v{par+3}")
    e(f"v_mul_f32 v{u0}, v{u0}, {dtv}"); e(f"v_mul_f32 v{u0+1}, v{u0+1}, {dtv}")
    e(f"v_add_f32 v{u0}, v{u0}, v{u0}"); e(f"v_add_f32 v{u0+1}, v{u0+1}, v{u0+1}")
    seqs = []
    for n, (nm, pw) in enumerate((("Z1", 1.0), ("W1", 8.0), ("Z256", 256.0))):
        r = pair(nm); a, b = 152 + 2*n, 153 + 2*n
        seqs.append([f"v_mul_f32 v{a}, {f32(pw)}, v6", f"v_mul_f32 v{b}, {f32(pw)}, v7", f"v_exp_f32 v{a}, v{a}", f"v_fract_f32 v{b}, v{b}",
                     f"v_cos_f32 v{r}, v{b}", f"v_sin_f32 v{r+1}, v{b}", f"v_mul_f32 v{r}, v{r}, v{a}", f"v_mul_f32 v{r+1}, v{r+1}, v{a}"])
    k.batch(seqs)
    def emit_out(lst):
        ws = [out(n, row, neg) for n, row, neg in lst]
        for w in ws:
            if w: e(w)
    emit_out([("U0", 0, True), ("W1", 22, False)])
    levels = [
        [("U1","U0","Z1"), ("Z2","Z1","Z1"), ("W2","W1","W1"), ("Z512","Z256","Z256"), ("R256","U0","Z256")],
        [("U2","U0","Z2"), ("U3","U1","Z2"), ("Z4","Z2","Z2"), ("W3","W2","W1"), ("Y4","W2","W2"), ("R512","U0","Z512")],
        [("U4","U0","Z4"), ("U5","U1","Z4"), ("U6","U2","Z4"), ("U7","U3","Z4"), ("R258","U2","Z256"), ("R768","R512","Z256"), ("R1024","R512","Z512"),
         ("W1","W1","Y4"), ("W2","W2","Y4"), ("W3","W3","Y4"), ("W4","Y4","Y4")],
        [("R260","U4","Z256"), ("R262","U6","Z256"), ("R516","U4","Z512"), ("R1280","R768","Z512"), ("R1536","R1024","Z512"),
         ("W1","W1","Y4"), ("W2","W2","Y4"), ("W3","W3","Y4"), ("W4","W4","Y4")],
        [("R772","R516","Z256"), ("R1792","R1280","Z512"), ("R2048","R1536","Z512"),
         ("W1","W1","Y4"), ("W2","W2","Y4"), ("W3","W3","Y4"), ("W4","W4","Y4")],
    ] + [[("W1","W1","Y4"), ("W2","W2","Y4"), ("W3","W3","Y4"), ("W4","W4","Y4")]] * 3 + [[("W1","W1","Y4"), ("W2","W2","Y4"), ("W3","W3","Y4")]]
    vidx = {"W1": 1, "W2": -2, "W3": -1, "W4": 4}
    for lv in levels:
        level(lv)
        lst = []
        for d, a, b in lv:
            if d in urow: lst.append((d, urow[d], True))
            elif d == "Y4": lst.append((d, 21 + 4, False))
            elif d in vidx:
                vidx[d] += 4; lst.append((d, 21 + vidx[d], False))
        emit_out(lst)
    return held

def kgen_mm(k, first, toff=0, F0=24):
    e = k.e
    for st in range(4):
        for f, row in enumerate((0, 16, 21, 37)):
            e(f"ds_read_b128 {v(F0+st*16+f*4,4)}, {KGR} offset:{toff + row*KG_PITCH + st*64}")
    for st in range(4):
        e(f"s_waitcnt lgkmcnt({12 - 4*st})")
        F = F0 + st*16
        for bb in range(2):
            e(f"{MFMA} {v(136+4*bb,4)}, {v(F,4)}, {v(F+8+4*bb,4)}, {v(136+4*bb,4)}")
            e(f"{MFMA} {v(144+4*bb,4)}, {v(F+8+4*bb,4)}, {v(F+4,4)}, {v(144+4*bb,4)}")

def kgen_addr(k, tab_s, lane_i, lane_q, lane):
    e = k.e
    e(f"v_lshl_add_u32 {KGW}, {lane}, 2, {tab_s}")
    e(f"v_mul_u32_u24 {KGR}, {KG_PITCH}, {lane_i}"); e(f"v_lshl_add_u32 {KGR}, {lane_q}, 4, {KGR}"); e(f"v_add_u32 {KGR}, {tab_s}, {KGR}")
    e("v_mov_b32 v4, 0x00003f80")
    e(f"ds_write_b32 {KGW}, v4 offset:{21*KG_PITCH}")

def kgen_loop(k, par, dtv, npass_s, mid=(), top=()):
    e = k.e
    for i in range(136, 152): e(f"v_mov_b32 v{i}, 0")
    lab = k.newlabel("kg"); k.label(lab)
    if "kgp" in EXP: e("s_mov_b32 s77, s85"); k.stamp(9)
    for m_ in top: e(m_)
    kgen_chains(k, par, dtv, 0, False)
    if "kgp" in EXP: e("s_mov_b32 s88, s89"); k.stamp(13)
    for a in range(4): e(f"v_lshrrev_b32 v{par+a}, 16, v{par+a}")
    for m_ in mid: e(m_)
    kgen_mm(k, False, 0)
    e(f"s_sub_u32 {npass_s}, {npass_s}, 1"); e(f"s_cmp_lg_u32 {npass_s}, 0"); e(f"s_cbranch_scc1 {lab}")

def compact_to_lds(k, kc_s):
    e = k.e
    e("v_max_u32 v4, 1, v3"); e("v_sub_u32 v4, 5, v4")
    e("v_lshlrev_b32 v5, v4, v2")
    e("v_lshlrev_b32 v6, 3, v3")
    e("v_mov_b32 v7, 512"); e("v_cmp_eq_u32 vcc, 2, v3"); e("s_nop 1"); e("v_cndmask_b32 v6, v6, v7, vcc")
    e("v_mov_b32 v7, 768"); e("v_mov_b32 v8, 4"); e("v_mov_b32 v9, 128"); e("v_cmp_eq_u32 vcc, 3, v3"); e("s_nop 1")
    e("v_cndmask_b32 v6, v6, v7, vcc"); e("v_cndmask_b32 v8, v8, v9, vcc")
    e(f"v_add3_u32 v5, v5, v6, {kc_s}")
    e("v_lshlrev_b32 v6, v4, 16"); e("v_add_u32 v6, v5, v6")
    e("v_add_u32 v7, v5, v8"); e("v_add_u32 v8, v6, v8")
    for n in range(8): e(f"v_cvt_pk_bf16_f32 v{24+n}, v{136+2*n}, v{137+2*n}")
    e("ds_write_b32 v5, v24"); e("ds_write_b32 v7, v25"); e("ds_write_b32 v6, v26"); e("ds_write_b32 v8, v27")
    e("v_lshlrev_b32 v9, 6, v2"); e("v_lshl_add_u32 v9, v3, 3, v9"); e(f"v_add_u32 v9, {kc_s}, v9")
    e("v_cmp_gt_u32 vcc, 5, v2"); e("s_and_saveexec_b64 s[46:47], vcc")
    e("ds_write_b64 v9, v[28:29] offset:1024"); e("ds_write_b64 v9, v[30:31] offset:1056")
    e("s_mov_b64 exec, -1")
```

```python
from mega_common import *
FLS = 60
WS_ST1 = 27*MB
RING2 = 16384
CONV0 = 65536
CONV_B = 15360
YTILE = 81920
IMG = 22528
NSLOT = 3
XB = 111616
ZD = int(os.environ.get('ZD', '24'))
ZSL = int(os.environ.get('ZSL', '2'))
ROTM = int(os.environ.get('ROTM', '0'))
WS_KC = 26*MB
KC_BYTES = 640 * 1536

def conv_params(k):
    e = k.e
    e("s_lshl_b32 s34, s2, 1"); e("s_add_u32 s34, s34, s32")
    e("s_lshl_b32 s56, s41, 4"); e("s_lshr_b32 s57, s42, 1"); e("s_add_u32 s56, s56, s57"); e("s_add_u32 s56, s56, 512")
    e("s_bitcmp1_b32 s42, 0"); e("s_cselect_b32 s56, s56, 1000")
    e("s_cmp_eq_u32 s32, 2"); e("s_cselect_b32 s34, s56, s34")
    e("s_cmp_eq_u32 s32, 3"); e("s_cselect_b32 s34, 1000, s34")
    e("s_lshl_b32 s56, s34, 8"); e("s_lshl_b32 s57, s34, 1")
    e("v_lshlrev_b32 v4, 2, v1"); e("v_mov_b32 v5, 0")
    e("s_waitcnt lgkmcnt(0)")
    for a in range(4):
        k.srd(28, 64+2*a, 65+2*a, 640*256)
        e(f"buffer_load_dword v{164+a}, v4, s[28:31], s56 offen")
    k.srd(28, 72, 73, 1280); e("buffer_load_ushort v13, v5, s[28:31], s57 offen")
    k.srd(28, 74, 75, 1280); e("buffer_load_ushort v14, v5, s[28:31], s57 offen")

def gen_mega(name):
    k = Kern(name)
    e = k.e
    e("s_cmp_ge_u32 s2, 256"); e("s_cbranch_scc1 m_end")
    k.stamp_init()
    e("s_load_dwordx2 s[4:5], s[0:1], 0")
    e("s_load_dwordx4 s[8:11], s[0:1], 64")
    e("s_load_dwordx4 s[12:15], s[0:1], 104")
    e("s_load_dwordx4 s[96:99], s[0:1], 88")
    e("v_and_b32 v1, 63, v0")
    e("v_lshrrev_b32 v2, 6, v0")
    e("s_and_b32 s41, s2, 7")
    e("v_readfirstlane_b32 s32, v2")
    e("s_lshr_b32 s42, s2, 3")
    e("s_and_b32 s33, s32, 3")
    e("s_cmp_ge_u32 s42, 28"); e("s_cbranch_scc1 m_helper")
    e("s_mul_i32 s43, s42, 37"); e("s_lshr_b32 s43, s43, 8")
    e("s_mul_i32 s44, s43, 7"); e("s_sub_u32 s44, s42, s44")
    e("s_lshr_b32 s35, s41, 1"); e("s_lshl_b32 s35, s35, 2"); e("s_add_u32 s35, s35, s43")
    e("s_and_b32 s36, s41, 1"); e("s_mul_i32 s36, s36, 7"); e("s_add_u32 s36, s36, s44")
    e("s_cmp_ge_u32 s32, 4"); e("s_cbranch_scc1 m_gemm1")
    e("s_mul_i32 s45, s44, 3"); e("s_mul_i32 s46, s43, 5"); e("s_lshr_b32 s46, s46, 1"); e("s_add_u32 s45, s45, s46")
    e("s_cmp_ge_u32 s45, 20"); e("s_cselect_b32 s46, 20, 0"); e("s_sub_u32 s45, s45, s46")
    e("s_cmp_ge_u32 s45, 10"); e("s_cselect_b32 s46, 10, 0"); e("s_sub_u32 s45, s45, s46")
    e("s_load_dwordx8 s[64:71], s[0:1], 8")
    e("s_load_dwordx4 s[72:75], s[0:1], 40")
    e("v_and_b32 v3, 7, v1")
    e("s_lshl_b32 s39, s32, 13")
    e("s_cmp_ge_u32 s32, 2"); e("s_cbranch_scc1 m_ldB")
    e("s_lshl_b32 s43, s35, 7"); e("s_lshl_b32 s44, s32, 6"); e("s_add_u32 s43, s43, s44")
    e("v_lshrrev_b32 v2, 5, v1"); e("v_lshlrev_b32 v2, 3, v2")
    e("v_bfe_u32 v4, v1, 3, 2"); e("v_add3_u32 v2, v2, v4, s43")
    e("v_mul_u32_u24 v2, 1280, v2")
    e("v_lshrrev_b32 v4, 4, v1"); e("v_xor_b32 v3, v3, v4")
    e("v_lshl_add_u32 v4, v3, 4, v2")
    e("v_xor_b32 v3, 4, v3"); e("v_lshl_add_u32 v5, v3, 4, v2")
    for n in range(8):
        ee, b, Pp = n & 1, (n >> 1) & 1, n >> 2
        e(f"v_add_u32 v{16+n}, {(32*Pp + 4*b + 16*ee)*1280 - (n & 3)*1024}, v{4+ee}")
    e("s_waitcnt lgkmcnt(0)")
    k.srd(16, 4, 5, 2048*1280)
    e("s_mov_b32 s38, 128")
    e("s_branch m_ld")
    k.label("m_ldB")
    e("v_lshrrev_b32 v2, 3, v1"); e("v_mul_u32_u24 v2, 3456, v2")
    e("s_cmp_eq_u32 s32, 2"); e("s_cselect_b32 s44, 1664, 0")
    e("s_lshl_b32 s43, s36, 7"); e("s_add_u32 s43, s43, s44"); e("v_add_u32 v2, s43, v2")
    e("v_bfe_u32 v4, v1, 4, 1"); e("v_lshlrev_b32 v4, 1, v4"); e("v_xor_b32 v3, v3, v4")
    e("v_lshl_add_u32 v4, v3, 4, v2")
    e("v_xor_b32 v3, 4, v3"); e("v_lshl_add_u32 v5, v3, 4, v2")
    for n in range(8):
        e(f"v_add_u32 v{16+n}, {8*n*3456 - (n & 3)*1024}, v{4+(n & 1)}")
    e("s_waitcnt lgkmcnt(0)")
    k.srd(16, 8, 9, 640*3456)
    e(f"s_mov_b32 s38, {64*3456}")
    k.label("m_ld")
    if "norot" in EXP: e("s_mov_b32 s45, 0")
    if "rotold" not in EXP:
        e("s_lshr_b32 s45, s41, 1"); e("s_mul_i32 s45, s45, 5"); e("s_lshr_b32 s45, s45, 1"); e("s_and_b32 s46, s41, 1"); e("s_mul_i32 s46, s46, 5"); e("s_add_u32 s45, s45, s46")
        if "rotxa" in EXP: e("s_and_b32 s46, s42, 1"); e("s_mul_i32 s46, s46, 3"); e("s_add_u32 s45, s45, s46")
        if "rotxa" not in EXP: e("s_and_b32 s46, s42, 1"); e("s_mul_i32 s46, s46, 5"); e("s_add_u32 s45, s45, s46")
        e("s_cmp_ge_u32 s45, 10"); e("s_cselect_b32 s46, 10, 0"); e("s_sub_u32 s45, s45, s46")
    if "rot2" in EXP: e("s_and_b32 s45, s42, 1"); e("s_mul_i32 s45, s45, 5")
    if "rot3" in EXP: e("s_mul_i32 s45, s42, 86"); e("s_lshr_b32 s45, s45, 8"); e("s_mul_i32 s45, s45, 3"); e("s_sub_u32 s45, s42, s45"); e("s_mul_i32 s45, s45, 3")
    e("s_mul_i32 s37, s45, s38"); e("s_mul_i32 s46, s38, 10"); e("s_mov_b32 s40, 0")
    k.label("m_ldloop")
    e("s_cmp_lt_u32 s40, 3"); e("s_cbranch_scc1 m_ldissue")
    e("s_waitcnt vmcnt(16)")
    e("s_barrier")
    k.label("m_ldissue")
    for g in range(2):
        e(f"s_add_u32 m0, s39, {g*4096}")
        e("s_nop 0")
        for n in range(4): e(f"buffer_load_dwordx4 v{16+g*4+n}, s[16:19], s37 offen offset:{n*1024} lds")
    e("s_add_u32 s39, s39, 32768"); e("s_and_b32 s39, s39, 0x1ffff")
    e("s_add_u32 s37, s37, s38"); e("s_cmp_eq_u32 s37, s46"); e("s_cselect_b32 s37, 0, s37")
    e("s_add_u32 s40, s40, 1"); e("s_cmp_lt_u32 s40, 10"); e("s_cbranch_scc1 m_ldloop")
    k.stamp(1)
    k.srd(24, 14, 15, 32768, WS_ST1)
    k.srd(48, 12, 13, 256)
    e("v_bfe_u32 v4, v1, 2, 2"); e("v_lshlrev_b32 v4, 3, v4"); e("v_bfe_u32 v5, v1, 4, 1"); e("v_lshl_add_u32 v4, v5, 2, v4")
    e("v_and_b32 v5, 0x23, v1"); e("v_add_u32 v4, v4, v5"); e("v_lshlrev_b32 v232, 4, v4"); e("v_mov_b32 v233, 0")
    e("s_lshl_b32 s52, s35, 11"); e("s_and_b32 s43, s32, 1"); e("s_lshl_b32 s43, s43, 10"); e("s_add_u32 s52, s52, s43")
    e("buffer_load_dword v234, v233, s[48:51], 0 offen sc1")
    e("buffer_load_dwordx4 v[236:239], v232, s[24:27], s52 offen sc1")
    conv_params(k)
    e("s_getpc_b64 s[44:45]")
    k.label("m_pc")
    e(f"s_sub_u32 s44, s44, m_pc-{name}"); e("s_subb_u32 s45, s45, 0")
    e(f"s_mov_b32 s46, text_end-{name}"); e("s_mov_b32 s47, 0x00020000")
    e("s_and_b32 s43, s42, 15"); e("s_lshl_b32 s43, s43, 2"); e("s_add_u32 s43, s43, s33"); e("s_lshl_b32 s43, s43, 10")
    e("v_lshlrev_b32 v2, 4, v1")
    e("buffer_load_dwordx4 v[224:227], v2, s[44:47], s43 offen")
    TW = 1 if "tlb" in EXP else 0
    if TW:
        e("s_bitcmp1_b32 s32, 0"); e("s_cselect_b32 s44, s98, s14"); e("s_cselect_b32 s45, s99, s15"); e("s_cselect_b32 s43, 16, 19")
        e(f"s_mov_b32 s46, {2048*1280}"); e(f"s_cselect_b32 s46, s46, {28*MB}"); e("s_mov_b32 s47, 0x00020000")
        e("v_lshlrev_b32 v2, s43, v1")
        e("buffer_load_dword v228, v2, s[44:47], 0 offen")
    k.srd(20, 10, 11, 2048*4096)
    e("s_lshl_b32 s43, s42, 2"); e("s_add_u32 s43, s43, s32"); e(f"s_mul_i32 s43, s43, {9*1024+384}")
    e("s_lshl_b32 s44, s41, 20"); e("s_add_u32 s43, s43, s44"); e("s_xor_b32 s53, s43, 0x100000")
    e("v_lshlrev_b32 v2, 4, v1")
    def pf(n):
        for i in range(n):
            e(f"buffer_load_dwordx4 v[224:227], v2, s[20:23], s43 offen offset:{(i%4)*1024}")
            if i % 4 == 3 or i == n - 1: e(f"s_add_u32 s43, s43, {(i%4+1)*1024}")
    if "pfe" in EXP:
        pf(10)
        e(f"s_waitcnt vmcnt({35+TW})"); e("s_barrier")
        e(f"s_waitcnt vmcnt({27+TW})"); e("s_barrier")
    else:
        e(f"s_waitcnt vmcnt({25+TW})"); e("s_barrier"); pf(4)
        e(f"s_waitcnt vmcnt({21+TW})"); e("s_barrier"); pf(6)
    e(f"s_waitcnt vmcnt({19+TW})"); e("s_barrier")
    e("s_cmp_ge_u32 s32, 2"); e("s_cbranch_scc1 m_st1ok")
    e(f"s_waitcnt vmcnt({17+TW})")
    e("s_mov_b32 s40, 0")
    e("s_branch m_st1chk")
    k.label("m_st1poll")
    e("buffer_load_dword v234, v233, s[48:51], 0 offen sc1")
    e("buffer_load_dwordx4 v[236:239], v232, s[24:27], s52 offen sc1")
    e("s_waitcnt vmcnt(0)")
    k.label("m_st1chk")
    e("v_xor_b32 v4, v237, v234"); e("v_xor_b32 v5, v239, v234"); e("v_or_b32 v4, v4, v5")
    e("v_cmp_ne_u32 vcc, 0, v4"); e("v_cmp_eq_u32 s[44:45], 0, v234"); e("s_add_u32 s40, s40, 1")
    e("s_or_b64 vcc, vcc, s[44:45]")
    e(f"s_cmp_ge_u32 s40, {SPIN}"); e("s_cbranch_scc1 m_st1w")
    e("s_cbranch_vccnz m_st1poll")
    k.label("m_st1w")
    e("s_lshl_b32 s44, s32, 8"); e(f"s_add_u32 s44, s44, {MISC}"); e("v_lshl_add_u32 v4, v1, 2, s44"); e(f"v_mov_b32 v5, {W_EPOCH}")
    e("ds_write_b32 v4, v236"); e("ds_write_b32 v4, v238 offset:512"); e("ds_write_b32 v5, v234")
    e("s_waitcnt lgkmcnt(0)")
    k.label("m_st1ok")
    e("s_barrier")
    if "pf2" in EXP:
        e("s_mov_b32 s43, s53"); pf(10)
    k.label("m_Lpost")
    k.stamp(2)
    e(f"v_mov_b32 v4, {W_EPOCH}"); e("ds_read_b32 v5, v4")
    k.srd(FLS, 14, 15, FL_BYTES, WS_FL)
    e("v_and_b32 v2, 15, v1"); e("v_lshrrev_b32 v3, 4, v1")
    e("s_lshr_b32 s35, s41, 1"); e("s_lshl_b32 s35, s35, 3"); e("s_lshr_b32 s43, s42, 2"); e("s_add_u32 s35, s35, s43")
    e("s_waitcnt lgkmcnt(0)")
    e("v_readfirstlane_b32 s3, v5")
    e("s_cmp_lg_u32 s32, 3"); e("s_cbranch_scc1 m_conv")
    k.srd(16, 10, 11, 2048*4096)
    e("v_lshrrev_b32 v4, 5, v1"); e("v_lshlrev_b32 v4, 3, v4"); e("v_bfe_u32 v5, v1, 3, 2"); e("v_add_u32 v4, v4, v5")
    e("v_lshlrev_b32 v4, 12, v4")
    e("v_and_b32 v5, 7, v1"); e("v_xor_b32 v5, v5, v3")
    e("v_lshl_add_u32 v6, v5, 4, v4")
    e("v_xor_b32 v5, 4, v5"); e("v_lshl_add_u32 v7, v5, 4, v4")
    for n in range(8):
        ee, t = n & 1, n >> 1
        e(f"v_add_u32 v{16+n}, {(32*(t >> 1) + 4*(t & 1) + 16*ee)*4096 - (n & 3)*1024}, v{6+ee}")
    e("s_lshl_b32 s37, s35, 18")
    e(f"s_and_b32 s43, s35, {ROTM}"); e("s_lshl_b32 s43, s43, 8"); e("s_add_u32 s37, s37, s43")
    LATE = "late" in EXP
    def pfloop():
        e("s_mov_b32 s40, 0")
        k.label("m_pfloop")
        e("s_and_b32 s43, s40, 3"); e("s_lshr_b32 s44, s40, 2")
        e(f"s_mul_i32 s49, s43, {RING2}"); e("s_lshl_b32 s46, s44, 13"); e("s_add_u32 s49, s49, s46")
        e("s_lshl_b32 s46, s43, 13"); e(f"s_add_u32 s46, s46, {XB}"); e("s_cmp_eq_u32 s44, 2"); e("s_cselect_b32 s49, s46, s49")
        e("s_lshl_b32 s43, s43, 10"); e("s_lshl_b32 s44, s44, 7"); e("s_add_u32 s43, s43, s44"); e("s_add_u32 s43, s43, s37")
        for g in range(2):
            e(f"s_add_u32 m0, s49, {g*4096}")
            e("s_nop 0")
            for n in range(4): e(f"buffer_load_dwordx4 v{16+g*4+n}, s[16:19], s43 offen offset:{n*1024} lds")
        e(f"s_waitcnt vmcnt({48 if LATE else int(os.environ.get('THR', '40'))})")
        e("s_add_u32 s40, s40, 1"); e("s_cmp_lt_u32 s40, 12"); e("s_cbranch_scc1 m_pfloop")
    if not LATE: pfloop()
    e(f"v_mov_b32 v4, {W_FX + 12}"); e("v_mov_b32 v5, 1"); e("s_waitcnt vmcnt(0)"); e("ds_write_b32 v4, v5")
    k.stamp(3)
    e("s_and_b32 s36, s41, 1"); e("s_lshl_b32 s36, s36, 2"); e("s_and_b32 s43, s42, 3"); e("s_add_u32 s36, s36, s43")
    e("s_cmp_eq_u32 s36, 7"); e("s_cselect_b32 s43, 31, 47")
    e("v_min_u32 v7, s43, v1"); e("v_lshlrev_b32 v7, 2, v7")
    e("s_lshl_b32 s45, s35, 3"); e("s_add_u32 s45, s45, s36"); e("s_lshl_b32 s45, s45, 8"); e(f"s_add_u32 s45, s45, {FZ2}")
    e(f"v_mov_b32 v4, {W_PF + 8}")
    lds_wait_ge(k, "m_wown1", "v4", 5, 1, 4, sleep=2)
    if LATE: pfloop()
    elif ZD: e(f"s_sleep {ZD}")
    poll_flags(k, "m_pollz", "v7", FLS, 1, 5, "v6", soff="s45", sleep=ZSL)
    e(f"v_mov_b32 v4, {W_PF}"); e("v_mov_b32 v5, 1")
    e("ds_write_b32 v4, v5")
    k.stamp(4)
    e("s_sleep 64")
    e("v_and_b32 v4, 31, v1"); e("v_lshlrev_b32 v4, 2, v4"); e(f"s_mov_b32 s44, {FK}")
    poll_flags(k, "m_pollx3", "v4", FLS, 1, 5, "v6", soff="s44", sleep=64)
    e(f"v_mov_b32 v4, {W_FX}"); e("v_mov_b32 v5, 1"); e("ds_write_b32 v4, v5")
    e("s_branch m_L3prep")
    k.label("m_conv")
    e("s_cmp_ge_u32 s34, 640"); e("s_cbranch_scc1 m_L3prep")
    e(f"s_mul_i32 s39, s32, {CONV_B}"); e(f"s_add_u32 s39, s39, {CONV0}")
    e(f"s_waitcnt vmcnt({20 if 'pf2' in EXP else 10})")
    kgen_dt(k, "v13")
    kgen_addr(k, "s39", "v2", "v3", "v1")
    e("s_mov_b32 s40, 2")
    e(f"s_mov_b32 s50, {FX}"); e("v_and_b32 v220, 31, v1"); e("v_lshlrev_b32 v220, 2, v220")
    e("v_lshlrev_b32 v15, 4, v1"); e("s_mov_b32 s51, 0")
    k.srd(20, 14, 15, XT_BYTES, WS_XNT)
    k.srd(24, 14, 15, XT_BYTES, WS_YT)
    e("s_lshl_b32 s45, s34, 12")
    uld = [f"buffer_load_dwordx4 {v(200+4*n,4)}, v15, s[20:23], s45 offen offset:{n*1024} sc1" for n in range(4)]
    kgen_loop(k, 164, "v13", "s40",
              top=["s_cmp_lg_u32 s40, 1", "s_cbranch_scc1 m_noprobe", "buffer_load_dword v216, v220, s[60:63], s50 offen sc1", "m_noprobe:"],
              mid=["s_cmp_lg_u32 s40, 1", "s_cbranch_scc1 m_nochk", "s_waitcnt vmcnt(0)", "v_cmp_ne_u32 vcc, s3, v216", "s_nop 1", "s_cbranch_vccnz m_nochk", "s_mov_b32 s51, 1"] + uld + ["m_nochk:"])
    k.stamp(3)
    UO, KC = 8320, 12928
    e(f"s_add_u32 s43, s39, {KC}")
    e("v_max_u32 v4, 1, v3"); e("v_sub_u32 v4, 5, v4")
    e("v_lshlrev_b32 v5, v4, v2")
    e("v_lshlrev_b32 v6, 3, v3")
    e("v_mov_b32 v7, 512"); e("v_cmp_eq_u32 vcc, 2, v3"); e("s_nop 1"); e("v_cndmask_b32 v6, v6, v7, vcc")
    e("v_mov_b32 v7, 768"); e("v_mov_b32 v8, 4"); e("v_mov_b32 v9, 128"); e("v_cmp_eq_u32 vcc, 3, v3"); e("s_nop 1")
    e("v_cndmask_b32 v6, v6, v7, vcc"); e("v_cndmask_b32 v8, v8, v9, vcc")
    e("v_add3_u32 v5, v5, v6, s43")
    e("v_lshlrev_b32 v6, v4, 16"); e("v_add_u32 v6, v5, v6")
    e("v_add_u32 v7, v5, v8"); e("v_add_u32 v8, v6, v8")
    for n in range(8): e(f"v_cvt_pk_bf16_f32 v{24+n}, v{136+2*n}, v{137+2*n}")
    e("ds_write_b32 v5, v24"); e("ds_write_b32 v7, v25"); e("ds_write_b32 v6, v26"); e("ds_write_b32 v8, v27")
    e("v_lshlrev_b32 v9, 6, v2"); e("v_lshl_add_u32 v9, v3, 3, v9"); e("v_add_u32 v9, s43, v9")
    e("v_mov_b32 v20, 0"); e("v_mov_b32 v21, 0"); e("v_mov_b32 v22, 0"); e("v_mov_b32 v23, 0")
    e("v_add_u32 v16, s39, v15")
    e("v_lshl_add_u32 v17, v1, 3, s39")
    e(f"ds_write_b64 v17, v[20:21] offset:{UO}")
    e("v_cmp_gt_u32 vcc, 5, v2"); e("s_and_saveexec_b64 s[46:47], vcc")
    e("ds_write_b64 v9, v[28:29] offset:1024"); e("ds_write_b64 v9, v[30:31] offset:1056")
    e("s_mov_b64 exec, 3")
    e("ds_write_b128 v16, v[20:23] offset:4096"); e(f"ds_write_b128 v16, v[20:23] offset:{4160+4096}")
    e("s_mov_b64 exec, -1")
    e("v_lshlrev_b32 v18, 1, v1"); e(f"s_add_u32 s44, s43, {2*575}"); e("v_sub_u32 v96, s44, v18")
    e("v_and_b32 v19, 1, v1"); e("v_xor_b32 v19, 1, v19"); e("v_lshl_add_u32 v97, v19, 1, v96")
    e("v_lshlrev_b32 v18, 2, v1"); e("s_add_u32 s44, s43, 1020"); e("v_sub_u32 v98, s44, v18")
    e("v_lshlrev_b32 v18, 3, v1"); e(f"s_add_u32 s44, s43, {2*380 - 2}"); e("v_sub_u32 v99, s44, v18")
    e("v_lshlrev_b32 v18, 4, v1"); e(f"s_add_u32 s44, s43, {2*504 - 2}"); e("v_sub_u32 v100, s44, v18")
    EM = []
    for m in range(2):
        o = 128 * (1 - m); A_, B_, X_ = 144 + 3*m, 145 + 3*m, 146 + 3*m
        e(f"ds_read_u16 v{A_}, v96 offset:{o}"); e(f"ds_read_u16 v{B_}, v96 offset:{o+2}"); e(f"ds_read_u16 v{X_}, v97 offset:{o}")
        EM.append([B_, B_, B_, X_, A_, A_, A_, A_, A_])
    for i in range(3): e(f"ds_read_u16 v{150+i}, v98 offset:{2*i}")
    EM.append([152, 152, 151, 151, 151, 150, 150, 150, 150])
    e("s_mov_b32 exec_hi, 0")
    for el, io in enumerate((4, 3, 2, 2, 2, 1, 0, 0, 0)): e(f"ds_read_u16 v{153+el}, v99 offset:{2*io + 2}")
    e("s_mov_b32 exec_lo, 0x80000000")
    e("ds_read_u16 v161, v99")
    e("s_mov_b32 exec_lo, 0"); e("s_mov_b32 exec_hi, -1")
    for el in range(9): e(f"ds_read_u16 v{153+el}, v100 offset:{2*(7 - el) + 2}")
    e("s_mov_b64 exec, -1")
    EM.append(list(range(153, 162)))
    e("v_cmp_eq_u32 vcc, 63, v1"); e("s_nop 0")
    e("s_waitcnt lgkmcnt(0)")
    e("v_cndmask_b32 v161, v161, v20, vcc")
    for m in range(4):
        W = 32 + 16*m; E = EM[m]
        for p in range(4):
            e(f"v_lshl_or_b32 v{W+p}, v{E[2*p+1]}, 16, v{E[2*p]}")
            e(f"v_lshl_or_b32 v{W+8+p}, v{E[2*p+2]}, 16, v{E[2*p+1]}")
        e(f"ds_write_b128 v16, {v(W,4)} offset:{1024*m}")
        e(f"ds_write_b128 v16, {v(W+8,4)} offset:{4160+1024*m}")
    e("s_cmp_eq_u32 s51, 1"); e("s_cbranch_scc1 m_uok")
    poll_flags(k, "m_pollx", "v220", FLS, 1, 216, "v4", soff="s50", sleep=32)
    for u_ in uld: e(u_)
    k.label("m_uok")
    e("s_waitcnt vmcnt(0)")
    for n in range(4): e(f"ds_write_b128 v16, {v(200+4*n,4)} offset:{UO+512+1024*n}")
    k.stamp(5)
    e("v_and_b32 v4, 1, v2"); e("v_xor_b32 v4, 1, v4"); e("v_mul_u32_u24 v4, 4160, v4")
    e("v_lshrrev_b32 v5, 1, v2"); e("v_lshlrev_b32 v6, 2, v3"); e("v_sub_u32 v5, v6, v5")
    e("v_lshl_add_u32 v4, v5, 2, v4"); e("v_add_u32 v4, s39, v4")
    for mp in range(4): e(f"v_add_u32 v{24+mp}, {4*(1023 - 8 - 128*(2*mp+1))}, v4")
    e("v_lshlrev_b32 v5, 5, v2"); e("v_lshl_add_u32 v5, v3, 4, v5")
    e(f"s_add_u32 s43, s39, {UO+480}"); e("v_add_u32 v28, s43, v5")
    def Af(m): return 32 + 4*m
    def Bf(r): return 64 + 4*r
    def ac(cb): return v(96 + 4*cb, 4)
    for i in range(32): e(f"v_mov_b32 v{96+i}, 0")
    e("v_lshlrev_b32 v14, 16, v14")
    e("s_waitcnt lgkmcnt(0)")
    def rdA(m):
        o = 0 if m & 1 else 128
        e(f"ds_read2_b32 {v(Af(m),2)}, v{24+m//2} offset0:{o} offset1:{o+1}"); e(f"ds_read2_b32 {v(Af(m)+2,2)}, v{24+m//2} offset0:{o+2} offset1:{o+3}")
    def rdB(r): e(f"ds_read_b128 {v(Bf(r),4)}, v28 offset:{512*r}")
    for m in range(8): rdA(m); rdB(7-m)
    e("s_mov_b32 s40, 8")
    k.label("m_cloop")
    for r in range(24, 29): e(f"v_subrev_u32 v{r}, 64, v{r}")
    for m in range(8):
        for cb in (range(7, -1, -1) if m == 0 else range(m, 8)):
            if m == 0: e(f"s_waitcnt lgkmcnt({min(3*cb, 15)})")
            e(f"{MFMA} {ac(cb)}, {v(Af(m),4)}, {v(Bf(cb-m),4)}, {ac(cb)}")
        rdA(m); rdB(7-m)
    e("s_sub_u32 s40, s40, 1"); e("s_cmp_lg_u32 s40, 0"); e("s_cbranch_scc1 m_cloop")
    k.stamp(6)
    e("s_waitcnt lgkmcnt(0)")
    e("v_lshlrev_b32 v20, 5, v2"); e("v_lshl_add_u32 v20, v3, 3, v20")
    e(f"s_add_u32 s43, s39, {UO+512}"); e("v_add_u32 v21, s43, v20")
    for cb in range(8): e(f"ds_read_b64 {v(32+2*cb,2)}, v21 offset:{512*cb}")
    e("s_waitcnt lgkmcnt(0)")
    for c0 in (0, 4):
        A = [96 + 4*cb + 2*p for cb in range(c0, c0+4) for p in range(2)]
        U = [32 + 2*cb + p for cb in range(c0, c0+4) for p in range(2)]
        for i in range(8): unpack(k, f"v{72+2*i}", f"v{73+2*i}", f"v{U[i]}")
        for i in range(8): e(f"v_pk_fma_f32 {pr(A[i])}, {pr(72+2*i)}, v[14:15], {pr(A[i])} op_sel_hi:[1,0,1]")
        for i in range(8): e(f"v_cvt_pk_bf16_f32 v{U[i]}, v{A[i]}, v{A[i]+1}")
        for cb in range(c0, c0+4): e(f"ds_write_b64 v21, {v(32+2*cb,2)} offset:{512*cb}")
    for n in range(4): e(f"ds_read_b128 {v(64+4*n,4)}, v16 offset:{UO+512+1024*n}")
    for n in range(4):
        e(f"s_waitcnt lgkmcnt({3-n})")
        e(f"buffer_store_dwordx4 {v(64+4*n,4)}, v15, s[24:27], s45 offen offset:{1024*n} sc1")
    e("s_lshl_b32 s43, s34, 2"); e(f"s_add_u32 s43, s43, {FY}")
    set_flag(k, FLS, "s43", 0, "v4", "v5")
    k.stamp(7)
    k.label("m_L3prep")
    e("s_and_b32 s36, s41, 1"); e("s_lshl_b32 s36, s36, 2"); e("s_and_b32 s43, s42, 3"); e("s_add_u32 s36, s36, s43")
    e(f"v_mov_b32 v4, {W_GL}")
    lds_wait_ge(k, "m_wgl", "v4", 8, 4, 1, sleep=8)
    e(f"v_mov_b32 v4, {W_FX}")
    lds_wait(k, "m_wfw", "v4", "v5")
    k.stamp(8)
    k.srd(16, 14, 15, WOF_BYTES, WS_WOF)
    e("v_lshlrev_b32 v15, 4, v1")
    def wo_load(name):
        e("s_lshl_b32 s46, s46, 10"); e("s_mul_i32 s48, s36, 138240"); e("s_add_u32 s48, s48, s46"); e(f"s_add_u32 s46, s46, {IMG}")
        k.label(name)
        e("s_mov_b32 m0, s46"); e("s_add_u32 s46, s46, 1024")
        e("buffer_load_dwordx4 v15, s[16:19], s48 offen sc1 lds")
        e("s_add_u32 s48, s48, 1024"); e("s_sub_u32 s47, s47, 1"); e("s_cmp_lg_u32 s47, 0"); e(f"s_cbranch_scc1 {name}")
    e("s_mul_i32 s46, s33, 15"); e("s_add_u32 s46, s46, 42"); e("s_mov_b32 s47, 15")
    e("s_cmp_eq_u32 s33, 3"); e("s_cselect_b32 s46, 119, s46"); e("s_cselect_b32 s47, 16, s47")
    wo_load("m_wo1")
    e(f"v_mov_b32 v4, {W_R2}")
    lds_wait_ge(k, "m_wr3", "v4", 8, 4, 1, sleep=1)
    e("s_mul_i32 s46, s33, 21"); e("s_mov_b32 s47, 21")
    e("s_lshl_b32 s43, s33, 4"); e("s_add_u32 s43, s43, 55")
    e("s_cmp_ge_u32 s33, 2"); e("s_cselect_b32 s46, s43, s46"); e("s_cselect_b32 s47, 16, s47")
    wo_load("m_wo2")
    e("s_branch m_P3")

    k.label("m_gemm1")
    e("v_and_b32 v2, 15, v1"); e("v_lshrrev_b32 v3, 4, v1")
    e("v_lshlrev_b32 v12, 4, v1")
    e("v_add_u32 v13, 4096, v12")
    PL = 200
    def poll_loads():
        for i in range(7):
            e(f"buffer_load_dwordx4 {v(PL+4*i,4)}, v{12 if i < 4 else 13}, s[28:31], s72 offen offset:{(i%4)*1024} sc1")
    e("v_mov_b32 v10, 0")
    e("v_and_b32 v4, 31, v1"); e(f"v_lshlrev_b32 v4, 2, v4"); e(f"v_add_u32 v4, {W_EPOCH}, v4")
    e("ds_write_b32 v4, v10")
    e("s_waitcnt lgkmcnt(0)")
    k.srd(64, 12, 13, 256)
    e("s_cmp_lg_u32 s2, 0"); e("s_cbranch_scc1 m_noep")
    e("s_cmp_lg_u32 s32, 4"); e("s_cbranch_scc1 m_noep")
    e("s_memrealtime s[44:45]"); e("s_waitcnt lgkmcnt(0)"); e("s_or_b32 s44, s44, 1"); e("v_mov_b32 v4, s44")
    e("s_mov_b64 exec, 1")
    e("buffer_store_dword v4, v10, s[64:67], 0 offen sc1")
    e("s_mov_b64 exec, -1")
    k.label("m_noep")
    e("s_lshl_b32 s43, s35, 2"); e("s_add_u32 s43, s43, s33"); e(f"s_mul_i32 s72, s43, {14*512}")
    e("s_lshl_b32 s44, s36, 9"); e("s_add_u32 s73, s72, s44")
    e("s_lshl_b32 s74, s36, 6"); e("s_add_u32 s74, s74, s43"); e("s_lshl_b32 s74, s74, 2")
    e("v_and_b32 v4, 7, v1"); e("v_lshl_add_u32 v4, v3, 3, v4"); e("v_bfe_u32 v5, v1, 3, 1"); e("v_lshlrev_b32 v5, 3, v5")
    e("v_lshl_add_u32 v230, v4, 4, v5")
    k.srd(28, 14, 15, ST2_BYTES, WS_ST2)
    k.srd(24, 14, 15, ZF_BYTES, WS_Z2F)
    k.srd(20, 14, 15, ZF_BYTES, WS_Z1F)
    k.srd(FLS, 14, 15, FL_BYTES, WS_FL)
    for c in range(4):
        e(f"s_xor_b32 s43, s33, {c}")
        e("s_lshl_b32 s44, s36, 2"); e("s_add_u32 s43, s43, s44"); e("s_sub_u32 s43, s43, 2")
        e(f"s_cmp_lt_u32 s43, 54"); e(f"s_cselect_b32 s{50+c}, -1, 0")
        e("s_cselect_b32 s43, s43, 60")
        e(f"s_lshl_b32 s{46+c}, s43, 16")
        e("s_lshl_b32 s44, s35, 2"); e("s_add_u32 s44, s44, s33"); e("s_lshl_b32 s44, s44, 10")
        e(f"s_add_u32 s{46+c}, s{46+c}, s44")
    for b in range(2):
        for g in range(2):
            e("s_lshr_b32 s43, s33, 1"); e(f"s_xor_b32 s43, s43, {g}"); e("s_lshl_b32 s44, s36, 1"); e("s_add_u32 s43, s43, s44")
            e("s_lshl_b32 s44, s35, 3"); e("s_lshl_b32 s45, s33, 1"); e("s_add_u32 s44, s44, s45"); e(f"s_add_u32 s44, s44, {b}")
            e("s_mul_i32 s44, s44, 27"); e("s_add_u32 s44, s44, s43"); e("s_lshl_b32 s44, s44, 10")
            e("s_cmp_lt_u32 s43, 27"); e(f"s_cselect_b32 s{68+b*2+g}, s44, {HUGE}")
    e("v_and_b32 v4, 2, v1"); e("v_and_b32 v5, 1, v1")
    e("v_cmp_ne_u32 s[54:55], 0, v4"); e("v_cmp_ne_u32 s[56:57], 0, v5")
    e("s_lshl_b32 s43, s33, 5")
    e("v_add_u32 v4, s43, v2"); e("v_lshlrev_b32 v4, 7, v4")
    e("v_lshrrev_b32 v5, 1, v2"); e("v_xor_b32 v5, v5, v3")
    e("v_lshl_add_u32 v14, v5, 4, v4")
    e("v_xor_b32 v15, 64, v14")
    e("v_bfe_u32 v4, v1, 2, 2")
    e("v_lshl_add_u32 v5, v3, 3, v4"); e("v_lshlrev_b32 v5, 7, v5")
    e("v_and_b32 v6, 3, v1"); e("v_lshl_add_u32 v5, v6, 3, v5")
    e("v_add_u32 v5, 16384, v5")
    e("v_lshrrev_b32 v6, 1, v4"); e("v_and_b32 v7, 1, v3"); e("v_lshl_or_b32 v6, v7, 1, v6")
    e("v_xor_b32 v6, s33, v6")
    for c in range(4):
        e(f"v_xor_b32 v7, {c}, v6"); e(f"v_lshl_add_u32 v{16+c}, v7, 5, v5")
    for i in range(4): e(f"v_mov_b32 v{20+i}, 0x3f803f80")
    ACC = 104
    for i in range(ACC, 192): e(f"v_mov_b32 v{i}, 0")
    def xf(ks, b): return v(24 + 40*ks + 4*b, 4)
    def wfb(ks, h, c): return 24 + 40*ks + 8 + 16*h + 4*c
    def wf(ks, h, c): return v(wfb(ks, h, c), 4)
    def accb(h, b, c): return ACC + 32*h + (b*4 + c)*4
    def acc(h, b, c): return v(accb(h, b, c), 4)
    def rlist(ks):
        L = [f"ds_read_b128 {xf(ks,b)}, v{14+ks} offset:{2048*b}" for b in range(2)]
        for h in range(2):
            for c in range(4):
                for hh in range(2):
                    L.append(f"ds_read_b64_tr_b16 {v(wfb(ks,h,c)+2*hh,2)}, v{16+c} offset:{h*8192+ks*4096+hh*512}")
        return L
    def mlist(ks):
        L = []
        for h in range(2):
            L.append(f"{MFMA} {v(184+4*h,4)}, v[20:23], {wf(ks,h,0)}, {v(184+4*h,4)}")
            for c in range(4):
                for b in range(2):
                    if h == 0: L.append(f"{MFMA} {acc(h,b,c)}, {xf(ks,b)}, {wf(ks,h,c)}, {acc(h,b,c)}")
                    else:      L.append(f"{MFMA} {acc(h,b,c)}, {wf(ks,h,c)}, {xf(ks,b)}, {acc(h,b,c)}")
        return L
    def phase(ks, rd, extra=()):
        M = mlist(ks); R = list(rd); X = list(extra)
        for i, m in enumerate(M):
            e(m)
            if R: e(R.pop(0))
            if R and i < 4: e(R.pop(0))
            elif X and not R:
                for _ in range(3):
                    if X: e(X.pop(0))
        for x in X: e(x)
    bump = [f"v_add_u32 v{r}, 0x8000, v{r}" for r in range(14, 20)]
    wrap = [f"v_and_b32 v{r}, 0x1ffff, v{r}" for r in range(14, 20)]
    e("s_lshl_b32 s43, s33, 6"); e(f"s_add_u32 s43, s43, {MISC+1024}"); e("v_lshl_add_u32 v196, v2, 2, s43")
    for c in range(4):
        e(f"s_xor_b32 s43, s33, {c}"); e(f"s_lshl_b32 s43, s43, 6"); e(f"s_add_u32 s43, s43, {MISC+1024}")
        e(f"v_lshl_add_u32 v{232+c}, v2, 2, s43"); e(f"v_lshl_add_u32 v{236+c}, v3, 4, s43")
    e("s_lshl_b32 s43, s33, 7"); e(f"s_add_u32 s43, s43, {MISC}")
    e("v_lshl_add_u32 v7, v2, 2, s43"); e("v_lshl_add_u32 v8, v3, 4, s43"); e(f"v_mov_b32 v9, {W_EPOCH}")
    k.stamp(1)
    e("s_mov_b32 s40, 10")
    e("s_barrier")
    k.stamp(2)
    for r in rlist(0): e(r)
    k.label("m_loop1")
    e("s_waitcnt lgkmcnt(0)")
    phase(0, rlist(1), bump + wrap)
    e("s_sub_u32 s40, s40, 1"); e("s_cmp_eq_u32 s40, 0")
    e("s_waitcnt lgkmcnt(0)")
    e(f"s_cbranch_scc1 m_tail1")
    e("s_barrier")
    phase(1, rlist(0))
    e(f"s_branch m_loop1")
    k.label(f"m_tail1")
    phase(1, [])
    e("s_setprio 2")
    k.stamp(3)
    epoch_poll = None
    e("ds_write_b32 v196, v184"); e("ds_write_b32 v196, v188 offset:256")
    e("s_waitcnt lgkmcnt(0)")
    e("s_barrier")
    e("ds_read_b128 v[24:27], v8"); e("ds_read_b128 v[28:31], v8 offset:64")
    e("ds_read_b128 v[32:35], v8 offset:512"); e("ds_read_b128 v[36:39], v8 offset:576")
    for c in range(4): e(f"ds_read_b32 v{40+2*c}, v{232+c}")
    e("ds_read_b32 v229, v9")
    for c in range(4): e(f"ds_read_b128 {v(64+4*c,4)}, v{236+c} offset:256")
    e("ds_read_b32 v80, v7"); e("ds_read_b32 v82, v7 offset:64"); e("ds_read_b32 v84, v7 offset:512"); e("ds_read_b32 v86, v7 offset:576")
    e(f"v_mov_b32 v88, {f32(GC1)}"); e(f"v_mov_b32 v90, {f32(GC0)}")
    e("s_waitcnt lgkmcnt(8)")
    e("v_readfirstlane_b32 s3, v229")
    e("s_cmp_lg_u32 s36, 0"); e("s_cbranch_scc1 m_nomask")
    for c in range(4):
        e(f"v_and_b32 v{40+2*c}, s{50+c}, v{40+2*c}")
        for b in range(2):
            for r in range(4): e(f"v_and_b32 v{accb(0,b,c)+r}, s{50+c}, v{accb(0,b,c)+r}")
    k.label("m_nomask")
    def gelu_pairs(A):
        n = len(A); T = [48 + 2*i for i in range(n)]
        for i in range(n): e(f"v_pk_mul_f32 {pr(T[i])}, {pr(A[i])}, {pr(A[i])}")
        for i in range(n): e(f"v_pk_fma_f32 {pr(T[i])}, {pr(T[i])}, v[88:89], v[90:91] op_sel_hi:[1,0,0]")
        for i in range(n): e(f"v_pk_mul_f32 {pr(T[i])}, {pr(T[i])}, {pr(A[i])}")
        for i in range(n): e(f"v_exp_f32 v{T[i]}, v{T[i]}"); e(f"v_exp_f32 v{T[i]+1}, v{T[i]+1}")
        for i in range(n): e(f"v_pk_add_f32 {pr(T[i])}, {pr(T[i])}, 1.0 op_sel_hi:[1,0]")
        for i in range(n): e(f"v_rcp_f32 v{T[i]}, v{T[i]}"); e(f"v_rcp_f32 v{T[i]+1}, v{T[i]+1}")
        for i in range(n): e(f"v_pk_mul_f32 {pr(A[i])}, {pr(A[i])}, {pr(T[i])}")
    for c0 in (0, 2):
        A = [accb(0, b, c) + 2*p for c in (c0, c0+1) for b in range(2) for p in range(2)]
        M = [24 + 4*b + 2*p for c in (c0, c0+1) for b in range(2) for p in range(2)]
        C = [40 + 2*c for c in (c0, c0+1) for b in range(2) for p in range(2)]
        for i in range(8): e(f"v_pk_fma_f32 {pr(A[i])}, {pr(M[i])}, {pr(C[i])}, {pr(A[i])} op_sel_hi:[1,0,1] neg_lo:[1,0,0] neg_hi:[1,0,0]")
        for i in range(8): e(f"v_pk_mul_f32 {pr(A[i])}, {pr(A[i])}, {pr(M[i]+8)}")
        gelu_pairs(A)
        for i in range(8):
            n = (i % 4) * 2
            e(f"v_pk_add_f32 {pr(168+n)}, {pr(168+n)}, {pr(A[i])}")
            e(f"v_pk_fma_f32 {pr(176+n)}, {pr(A[i])}, {pr(A[i])}, {pr(176+n)}")
    e("s_nop 0")
    for n in range(8): e(f"v_add_f32_dpp v{48+n}, v{168+n}, v{168+n} row_ror:8 row_mask:0xf bank_mask:0x3")
    for n in range(8): e(f"v_add_f32_dpp v{48+n}, v{176+n}, v{176+n} row_ror:8 row_mask:0xf bank_mask:0xc")
    for n in range(4): e(f"v_add_f32_dpp v{168+n}, v{48+n}, v{48+n} row_half_mirror row_mask:0xf bank_mask:0x5")
    for n in range(4): e(f"v_add_f32_dpp v{168+n}, v{52+n}, v{52+n} row_half_mirror row_mask:0xf bank_mask:0xa")
    for n in range(2):
        e(f"v_cndmask_b32 v{172+n}, v{170+n}, v{168+n}, s[54:55]")
        e(f"v_cndmask_b32 v{174+n}, v{168+n}, v{170+n}, s[54:55]")
    e("s_nop 0")
    for n in range(2): e(f"v_add_f32_dpp v{176+n}, v{172+n}, v{174+n} quad_perm:[2,3,0,1] row_mask:0xf bank_mask:0xf")
    e("v_cndmask_b32 v172, v177, v176, s[56:57]"); e("v_cndmask_b32 v174, v176, v177, s[56:57]")
    e("s_nop 1")
    e("v_add_f32_dpp v228, v172, v174 quad_perm:[1,0,3,2] row_mask:0xf bank_mask:0xf")
    e("buffer_store_dwordx2 v[228:229], v230, s[28:31], s73 offen sc1")
    e("s_setprio 0")
    k.stamp(4)
    e("s_waitcnt lgkmcnt(0)")
    P1 = 168
    for c0 in (0, 2):
        A = [accb(1, b, c) + 2*p for c in (c0, c0+1) for b in range(2) for p in range(2)]
        M = [80 + 2*b for c in (c0, c0+1) for b in range(2) for p in range(2)]
        C = [64 + 4*c + 2*p for c in (c0, c0+1) for b in range(2) for p in range(2)]
        for i in range(8): e(f"v_pk_fma_f32 {pr(A[i])}, {pr(M[i])}, {pr(C[i])}, {pr(A[i])} op_sel_hi:[0,1,1] neg_lo:[1,0,0] neg_hi:[1,0,0]")
        for i in range(8): e(f"v_pk_mul_f32 {pr(A[i])}, {pr(A[i])}, {pr(M[i]+4)} op_sel_hi:[1,0]")
        gelu_pairs(A)
        i = 0
        for c in (c0, c0+1):
            for b in range(2):
                for p in range(2):
                    e(f"v_cvt_pk_bf16_f32 v{P1+b*8+c*2+p}, v{A[i]}, v{A[i]+1}"); i += 1
        if c0 == 0: poll_loads()
    e("s_bitcmp1_b32 s33, 0"); e("s_cbranch_scc0 m_noswap")
    for b in range(2):
        for g in range(2):
            for p in range(2):
                r0 = P1 + b*8 + g*4 + p
                e(f"v_swap_b32 v{r0}, v{r0+2}")
    k.label("m_noswap")
    e("s_setprio 2")
    e("s_mov_b32 s40, 0")
    e("s_waitcnt vmcnt(0)")
    for b in range(2):
        for g in range(2):
            e(f"buffer_store_dwordx4 {v(P1+b*8+g*4,4)}, v12, s[20:23], s{68+b*2+g} offen sc1")
    e("s_branch m_check")
    k.label("m_poll")
    poll_loads()
    e("s_waitcnt vmcnt(0)")
    k.label("m_check")
    e(f"v_xor_b32 v4, v{PL+1}, v229"); e(f"v_xor_b32 v5, v{PL+3}, v229")
    for i in range(1, 7):
        e(f"v_xor_b32 v9, v{PL+1+4*i}, v229"); e(f"v_xor_b32 v10, v{PL+3+4*i}, v229")
        e("v_or3_b32 v4, v4, v9, v10")
    e("v_or_b32 v4, v4, v5")
    e("v_cmp_ne_u32 vcc, 0, v4")
    e("s_add_u32 s40, s40, 1")
    e("s_nop 0")
    e("s_cbranch_vccz m_poll_done")
    e(f"s_cmp_lt_u32 s40, {SPIN}"); e("s_cbranch_scc1 m_poll")
    k.label("m_poll_done")
    k.stamp(5)
    for i in range(1, 7):
        e(f"v_add_f32 v{PL}, v{PL}, v{PL+4*i}"); e(f"v_add_f32 v{PL+2}, v{PL+2}, v{PL+2+4*i}")
    e(f"v_mov_b32 v{PL+1}, v{PL}"); e(f"v_mov_b32 v{PL+3}, v{PL+2}"); e("s_nop 1")
    e(f"v_permlane32_swap_b32 v{PL}, v{PL+1}"); e(f"v_permlane32_swap_b32 v{PL+2}, v{PL+3}"); e("s_nop 1")
    e(f"v_add_f32 v24, v{PL}, v{PL+1}"); e(f"v_add_f32 v26, v{PL+2}, v{PL+3}")
    e(f"v_mul_f32 v24, {f32(1/864)}, v24"); e(f"v_mul_f32 v26, {f32(1/864)}, v26")
    e("v_fma_f32 v26, -v24, v24, v26")
    ln_finish(k, "v24", "v26", "v25")
    e("s_lshl_b32 s43, s33, 8"); e(f"s_add_u32 s43, s43, {MISC+1536}")
    e("v_and_b32 v4, 31, v1"); e("v_lshl_add_u32 v4, v4, 2, s43"); e("v_lshl_add_u32 v5, v3, 5, s43")
    e("v_mul_f32 v24, v24, v26")
    e("ds_write_b32 v4, v24"); e("ds_write_b32 v4, v26 offset:128")
    e("ds_read_b128 v[28:31], v5"); e("ds_read_b128 v[32:35], v5 offset:16")
    e("ds_read_b128 v[36:39], v5 offset:128"); e("ds_read_b128 v[40:43], v5 offset:144")
    e("s_waitcnt lgkmcnt(0)")
    for c0 in (0, 2):
        A = [accb(0, b, c) + 2*p for c in (c0, c0+1) for b in range(2) for p in range(2)]
        M = [28 + (i % 4)*2 for i in range(8)]
        for i in range(8): e(f"v_pk_fma_f32 {pr(A[i])}, {pr(A[i])}, {pr(M[i]+8)}, {pr(M[i])} neg_lo:[0,0,1] neg_hi:[0,0,1]")
        for i in range(8): e(f"v_cvt_pk_bf16_f32 v{64+4*c0+i}, v{A[i]}, v{A[i]+1}")
        for c in (c0, c0+1): e(f"buffer_store_dwordx4 {v(64+4*c,4)}, v12, s[24:27], s{46+c} offen sc1")
    e("s_lshl_b32 s43, s36, 2")
    e("s_mov_b32 s44, 0x33221000"); e("s_mov_b32 s45, 0x00766554"); e("s_lshr_b64 s[44:45], s[44:45], s43"); e("s_and_b32 s46, s44, 15")
    e("s_mov_b32 s44, 0x44322110"); e("s_mov_b32 s45, 0x00776655"); e("s_lshr_b64 s[44:45], s[44:45], s43"); e("s_and_b32 s47, s44, 15")
    for r in (46, 47):
        e(f"s_lshl_b32 s43, s{r}, 2"); e("s_lshr_b32 s44, 0xca865310, s43"); e("s_and_b32 s44, s44, 15")
        e("s_sub_u32 s44, s36, s44"); e("s_lshl_b32 s44, s44, 4"); e("s_add_u32 s44, s44, s35"); e("s_lshl_b32 s44, s44, 2")
        e(f"s_lshl_b32 s{r}, s{r}, 8"); e(f"s_add_u32 s{r}, s{r}, s44")
    e("v_mov_b32 v6, s46"); e("v_mov_b32 v7, s47"); e("v_cmp_lt_u32 vcc, 31, v1"); e("v_and_b32 v8, 31, v1"); e("v_lshlrev_b32 v8, 11, v8")
    e("v_cndmask_b32 v6, v6, v7, vcc"); e("v_add_u32 v6, v6, v8")
    e(f"v_mov_b32 v4, {W_PF + 8}"); e("v_mov_b32 v5, 1"); e("v_mov_b32 v7, s3"); e(f"s_mov_b32 s44, {FZ2}")
    e("s_mov_b64 exec, 1")
    e("s_waitcnt vmcnt(0)")
    e("ds_add_rtn_u32 v8, v4, v5")
    e("s_waitcnt lgkmcnt(0)")
    e("v_readfirstlane_b32 s43, v8")
    e("s_mov_b64 exec, -1")
    e("s_cmp_lg_u32 s43, 3"); e("s_cbranch_scc1 m_P2")
    e("buffer_store_dword v7, v6, s[60:63], s44 offen sc1")
    gen_p2(k)
    gen_p3(k)
    gen_helper(k, epoch_poll)
    k.label("m_end")
    e("s_endpgm")
    return k.text(256, nsgpr=100)

def gen_p2(k):
    e = k.e
    k.label("m_P2")
    k.stamp(6)
    e("s_load_dwordx2 s[6:7], s[0:1], 80")
    e("s_lshr_b32 s35, s41, 1"); e("s_lshl_b32 s35, s35, 3"); e("s_lshr_b32 s43, s42, 2"); e("s_add_u32 s35, s35, s43")
    e("s_and_b32 s36, s42, 3")
    e("s_and_b32 s43, s41, 1"); e("s_mul_i32 s43, s43, 27"); e("s_mul_i32 s44, s36, 7"); e("s_add_u32 s37, s43, s44")
    e("v_and_b32 v240, 15, v1"); e("v_lshrrev_b32 v241, 4, v1"); e("v_mov_b32 v245, v1")
    e("v_lshrrev_b32 v2, 5, v1"); e("v_lshlrev_b32 v2, 3, v2"); e("v_bfe_u32 v3, v1, 3, 2"); e("v_add_u32 v2, v2, v3")
    e("v_lshlrev_b32 v2, 12, v2")
    e("v_and_b32 v3, 7, v1"); e("v_xor_b32 v3, v3, v241")
    e("v_lshl_add_u32 v242, v3, 4, v2")
    e("v_xor_b32 v3, 4, v3")
    e("v_lshl_add_u32 v243, v3, 4, v2"); e(f"v_add_u32 v243, {16*4096 - 1024}, v243")
    e("v_lshlrev_b32 v244, 4, v1")
    e("s_lshl_b32 s43, s35, 18"); e("s_lshl_b32 s44, s33, 10"); e("s_add_u32 s48, s43, s44")
    e(f"s_add_u32 s49, s48, {4*4096}"); e(f"s_add_u32 s50, s48, {32*4096}"); e(f"s_add_u32 s51, s48, {36*4096}")
    e("s_lshl_b32 s43, s37, 16"); e("s_lshl_b32 s44, s33, 14"); e("s_add_u32 s52, s43, s44")
    for c in range(1, 7): e(f"s_add_u32 s{52+c}, s52, {c*65536}")
    e("s_cmp_eq_u32 s36, 3"); e(f"s_cselect_b32 s58, {HUGE}, s58")
    e(f"s_mul_i32 s39, s33, {RING2}")
    k.srd(16, 10, 11, 2048*4096)
    k.srd(20, 14, 15, ZF_BYTES, WS_Z2F)
    k.srd(24, 14, 15, ZF_BYTES, WS_Z1F)
    k.srd(28, 14, 15, ZF_BYTES, WS_HF)
    def Z(st, c): return v(112 + st*28 + c*4, 4)
    def acc(c, sg): return v((c*4 + sg)*4, 4)
    def wf(sg): return v(224 + 4*sg, 4)
    def issueZ(n):
        if n % 4 == 0 and n:
            for c in range(7): e(f"s_add_u32 s{52+c}, s{52+c}, 4096")
        for c in range(7): k.vmem(f"buffer_load_dwordx4 {Z(n%4,c)}, v244, s[20:23], s{52+c} offen offset:{(n%4)*1024} sc1", f"Z{n}")
    def issueA(c):
        for t in range(4):
            e(f"s_add_u32 m0, s39, {(c%NSLOT)*8192 + t*2048}")
            e("s_nop 0")
            k.vmem(f"buffer_load_dwordx4 v242, s[16:19], s{48+t} offen lds", f"A{c}")
            k.vmem(f"buffer_load_dwordx4 v243, s[16:19], s{48+t} offen offset:1024 lds", f"A{c}")
        for t in range(4): e(f"s_add_u32 s{48+t}, s{48+t}, 128")
    k.vm = []
    e("v_lshrrev_b32 v5, 1, v240"); e("v_xor_b32 v5, v5, v241")
    e("v_lshlrev_b32 v4, 7, v240"); e("v_lshl_add_u32 v4, v5, 4, v4"); e("v_add_u32 v4, s39, v4")
    for sg in range(4):
        e(f"s_xor_b32 s43, s33, {sg}"); e("s_lshl_b32 s43, s43, 11")
        e(f"v_add_u32 v{246+sg}, s43, v4")
        e(f"v_xor_b32 v{250+sg}, 64, v{246+sg}")
    e("s_setprio 0")
    def issueZ1(n, c):
        if n % 4 == 0 and n: e(f"s_add_u32 s{52+c}, s{52+c}, 4096")
        off = (n % 4) * 1024
        if n == 3: e(f"s_sub_u32 s47, s{52+c}, 4096")
        k.vmem(f"buffer_load_dwordx4 {Z(n%4,c)}, v244, s[20:23], s{47 if n == 3 else 52+c} offen offset:{off} sc1", f"Z{n}_{c}")
    def issueA1(c, t):
        if c % NSLOT == 2: e(f"s_add_u32 m0, s38, {t*2048}")
        else: e(f"s_add_u32 m0, s39, {(c%NSLOT)*8192 + t*2048}")
        e("s_nop 0")
        k.vmem(f"buffer_load_dwordx4 v242, s[16:19], s{48+t} offen lds", f"A{c}")
        k.vmem(f"buffer_load_dwordx4 v243, s[16:19], s{48+t} offen offset:1024 lds", f"A{c}")
        e(f"s_add_u32 s{48+t}, s{48+t}, 128")
    e("s_lshl_b32 s38, s33, 13"); e(f"s_add_u32 s38, s38, {XB}"); e("s_sub_u32 s59, s38, s39")
    for t in range(4): e(f"s_add_u32 s{48+t}, s{48+t}, 384")
    def wf1(sg): return v(112 + 3*28 + 4*sg, 4)
    e(f"v_mov_b32 v4, {W_FX + 12}")
    lds_wait(k, "m_wpf0", "v4", "v5", sleep=1)
    for sg in range(4): e(f"ds_read_b128 {wf(sg)}, v{246+sg}")
    for sg in range(4): e(f"ds_read_b128 {wf1(sg)}, v{250+sg}")
    e("s_waitcnt lgkmcnt(0)")
    k.vm = []
    for t in range(4): issueA1(3, t)
    e(f"v_mov_b32 v4, {W_PF}")
    lds_wait(k, "m_wpf", "v4", "v5", sleep=1)
    k.srd(64, 6, 7, 4096)
    e("s_setprio 3")
    k.stamp(7); k.cyc(12)
    for n in range(3):
        for c in range(7): issueZ1(n, c)
    for n in range(16):
        c, ks = n >> 1, n & 1
        W = wf1 if n == 1 else wf
        if ks == 0 and f"A{c}" in k.vm: k.wait_vm(f"A{c}")
        if n >= 2:
            base = 250 if ks else 246
            if c % NSLOT == 2:
                for sg in range(4): e(f"v_add_u32 v{base+sg}, s59, v{base+sg}")
            for sg in range(4):
                e(f"ds_read_b128 {wf(sg)}, v{base+sg} offset:{0 if c % NSLOT == 2 else (c%NSLOT)*8192}")
            if c % NSLOT == 2:
                for sg in range(4): e(f"v_subrev_u32 v{base+sg}, s59, v{base+sg}")
        if n == 15:
            e("v_add_u32 v130, s39, v244"); e("v_add_u32 v131, s38, v244")
            e(f"v_add_u32 v133, {W_R1 - W_GL}, v254")
            if f"Z{n}_6" in k.vm: k.wait_vm(f"Z{n}_6")
            e("s_waitcnt lgkmcnt(0)")
            def pw(sg, cc): return (f"ds_write_b128 v131, {acc(cc,sg)} offset:{cc*1024}" if sg == 3 else f"ds_write_b128 v130, {acc(cc,sg)} offset:{((sg-1)*7+cc)*1024}")
            pend = []
            for sg in (1, 2, 3, 0):
                for cc in range(7):
                    e(f"{MFMA} {acc(cc,sg)}, {Z(n%4,cc)}, {wf(sg)}, {acc(cc,sg)}")
                    if len(pend) > 8 or (sg == 0 and pend and len(pend) + cc > 8): e(pend.pop(0))
                    if sg: pend.append(pw(sg, cc))
            for p_ in pend: e(p_)
            e("ds_write_b32 v133, v255")
            continue
        for cc in range(7):
            if f"Z{n}_{cc}" in k.vm: k.wait_vm(f"Z{n}_{cc}")
            if n == 0 and cc == 0: k.stamp(8)
            for sg in range(4):
                if cc == 0 and n >= 2: e(f"s_waitcnt lgkmcnt({3-sg})")
                e(f"{MFMA} {acc(cc,sg)}, {Z(n%4,cc)}, {W(sg)}, {'0' if n == 0 else acc(cc,sg)}")
            if n + 4 < 16 and n != 1: issueZ1(n + 4, cc)
            if ks == 1 and 0 < c and c + NSLOT < 8 and cc in (0, 2, 4, 6): issueA1(c + NSLOT, cc // 2)
        if n == 1:
            for cc in range(7): issueZ1(3, cc)
            for cc in range(7): issueZ1(5, cc)
        if n == 12:
            e("s_lshl_b32 s43, s35, 2"); e("s_add_u32 s43, s43, s33"); e("s_mul_i32 s44, s43, 27648")
            for cc in range(7):
                e(f"s_add_u32 s45, s37, {cc}"); e("s_lshr_b32 s46, s45, 1"); e("s_lshl_b32 s46, s46, 10"); e("s_and_b32 s45, s45, 1"); e("s_lshl_b32 s45, s45, 3")
                e("s_add_u32 s45, s45, s46"); e(f"s_add_u32 s{52+cc}, s45, s44")
            e("s_cmp_eq_u32 s36, 3"); e(f"s_cselect_b32 s58, {HUGE}, s58")
            for cc in range(7): k.vmem(f"buffer_load_dwordx2 {v(112+2*cc,2)}, v244, s[24:27], s{52+cc} offen sc1", "z1")
            e("s_lshr_b32 s44, s43, 1"); e("s_lshl_b32 s44, s44, 5"); e("s_and_b32 s45, s43, 1"); e("s_lshl_b32 s45, s45, 2"); e("s_add_u32 s44, s44, s45")
            e("v_lshrrev_b32 v128, 2, v240"); e("v_and_b32 v129, 3, v240"); e("v_lshl_add_u32 v128, v128, 3, v129"); e("v_add_u32 v128, s44, v128")
            e("v_lshlrev_b32 v128, 1, v128")
            k.vmem("buffer_load_ushort v126, v128, s[64:67], 0 offen", "z1")
        if n == 12:
            e("s_lshl_b32 s43, s33, 2"); e(f"s_add_u32 s43, s43, {W_GL}"); e("v_mov_b32 v254, s43"); e("v_mov_b32 v255, 1")
            e("ds_write_b32 v254, v255")
    k.stamp(9); k.cyc(13)
    T = 140
    e("s_xor_b32 s43, s33, 1"); e(f"s_mul_i32 s43, s43, {RING2}"); e("v_add_u32 v130, s43, v244")
    e("s_xor_b32 s43, s33, 2"); e(f"s_mul_i32 s43, s43, {RING2}"); e("v_add_u32 v131, s43, v244")
    e("s_xor_b32 s43, s33, 3"); e("s_lshl_b32 s43, s43, 13"); e(f"s_add_u32 s43, s43, {XB}"); e("v_add_u32 v132, s43, v244")
    e(f"v_mov_b32 v134, {W_R1}")
    e("s_waitcnt vmcnt(0)")
    k.vm = []
    e("v_lshlrev_b32 v126, 16, v126")
    A = [c*16 + 2*p for c in range(7) for p in range(2)]
    Z1 = [c*16 + 4 + 2*p for c in range(7) for p in range(2)]
    e("s_waitcnt lgkmcnt(0)")
    for i in range(14): unpack(k, f"v{Z1[i]}", f"v{Z1[i]+1}", f"v{112+i}")
    for i in range(14): e(f"v_pk_add_f32 {pr(A[i])}, {pr(A[i])}, v[126:127] op_sel_hi:[1,0]")
    lds_wait_ge(k, "m_wr1", "v134", 136, 4, 1)
    for sg in range(3):
        for c in range(7): e(f"ds_read_b128 {v(T+(sg*7+c)*4,4)}, v{130+sg} offset:{(7*1024 if sg == 1 else 0) + c*1024}")
    for sg in range(3):
        e(f"s_waitcnt lgkmcnt({14 - 7*sg})")
        if sg == 2: e("ds_write_b32 v133, v255 offset:16")
        for i in range(14): e(f"v_pk_add_f32 {pr(A[i])}, {pr(A[i])}, {pr(T+sg*28+2*i)}")
    for i in range(14): e(f"v_pk_mul_f32 {pr(A[i])}, {pr(A[i])}, {pr(Z1[i])}")
    for i in range(14): e(f"v_cvt_pk_bf16_f32 v{200+i}, v{A[i]}, v{A[i]+1}")
    e("s_bitcmp1_b32 s37, 0"); e("s_cbranch_scc1 m_hodd")
    for c in (0, 2, 4): e(f"buffer_store_dwordx4 {v(200+2*c,4)}, v244, s[28:31], s{52+c} offen sc1")
    e(f"buffer_store_dwordx2 {v(212,2)}, v244, s[28:31], s58 offen sc1")
    e("s_branch m_hdone")
    k.label("m_hodd")
    e(f"buffer_store_dwordx2 {v(200,2)}, v244, s[28:31], s52 offen sc1")
    for c in (1, 3): e(f"buffer_store_dwordx4 {v(200+2*c,4)}, v244, s[28:31], s{52+c} offen sc1")
    e("s_cmp_eq_u32 s36, 3"); e("s_cbranch_scc1 m_hodd6")
    e(f"buffer_store_dwordx4 {v(210,4)}, v244, s[28:31], s57 offen sc1")
    e("s_branch m_hdone")
    k.label("m_hodd6")
    e(f"buffer_store_dwordx2 {v(210,2)}, v244, s[28:31], s57 offen sc1")
    k.label("m_hdone")
    e("v_mov_b32 v1, v245")
    e("s_and_b32 s43, s41, 1"); e("s_lshl_b32 s43, s43, 2"); e("s_add_u32 s36, s36, s43")
    e(f"v_mov_b32 v4, {W_PF + 4}"); e("v_mov_b32 v5, 1"); e("v_lshlrev_b32 v6, 7, v1"); e("v_mov_b32 v7, s3")
    e("s_lshl_b32 s44, s35, 10"); e("s_lshl_b32 s45, s36, 2"); e("s_add_u32 s44, s44, s45"); e(f"s_add_u32 s44, s44, {FH2}")
    e("s_mov_b64 exec, 1")
    e("s_waitcnt vmcnt(0)")
    e("ds_add_rtn_u32 v8, v4, v5")
    e("s_waitcnt lgkmcnt(0)")
    e("v_readfirstlane_b32 s43, v8")
    e("s_mov_b64 exec, 0xff")
    e("s_cmp_lg_u32 s43, 3"); e("s_cbranch_scc1 m_nopub")
    e("buffer_store_dword v7, v6, s[60:63], s44 offen sc1")
    k.label("m_nopub")
    e("s_mov_b64 exec, -1")
    e("s_setprio 0")
    e("v_and_b32 v2, 15, v1"); e("v_lshrrev_b32 v3, 4, v1")
    e("s_mov_b32 s47, 0"); e("s_mov_b32 s46, 0")

def gen_p3(k):
    e = k.e
    k.label("m_P3")
    k.stamp(10)
    e("s_lshr_b32 s34, s32, 2")
    e("v_lshlrev_b32 v15, 4, v1")
    k.srd(16, 14, 15, WOF_BYTES, WS_WOF)
    k.srd(20, 14, 15, ZF_BYTES, WS_HF)
    k.srd(24, 4, 5, 2048*1280)
    k.srd(28, 98, 99, 2048*1280)
    def H(g, sg): return v(16 + (g*2 + sg)*4, 4)
    def WF(g, db): return v(72 + (g*5 + db)*4, 4)
    def acc(sg, db): return v(212 + (sg*5 + db)*4, 4)
    e("s_cmp_eq_u32 s33, 3"); e(f"s_cselect_b32 s45, {HUGE}, 6144")
    e("s_and_b32 s43, s33, 1"); e("s_lshl_b32 s44, s34, 1"); e("s_add_u32 s57, s43, s44")
    e("s_lshr_b32 s58, s33, 1"); e("s_mul_i32 s58, s58, 3")
    e("s_lshr_b32 s43, s57, 1"); e("s_lshl_b32 s43, s43, 5"); e("s_and_b32 s44, s57, 1"); e("s_lshl_b32 s44, s44, 2"); e("s_add_u32 s59, s43, s44")
    e("s_lshl_b32 s43, s35, 6"); e("s_add_u32 s43, s43, s59")
    e("v_lshrrev_b32 v6, 2, v2"); e("v_and_b32 v7, 3, v2"); e("v_lshl_add_u32 v6, v6, 3, v7"); e("v_add_u32 v6, s43, v6")
    e("v_mul_u32_u24 v6, 1280, v6"); e("v_lshl_add_u32 v6, v3, 3, v6"); e("s_mul_i32 s43, s36, 160"); e("v_add_u32 v14, s43, v6")
    for i in range(3):
        e(f"s_add_u32 s43, s58, {i}"); e(f"s_min_u32 s{68+i}, s43, 4")
        e(f"s_lshl_b32 s{72+i}, s{68+i}, 5")
    k.srd(64, 14, 15, XT_BYTES, WS_YT)
    e("s_lshl_b32 s43, s35, 2"); e("s_lshl_b32 s44, s34, 1"); e("s_add_u32 s43, s43, s44"); e("s_mul_i32 s43, s43, 27"); e("s_mul_i32 s44, s33, 7"); e("s_add_u32 s43, s43, s44")
    e("s_lshl_b32 s46, s43, 10"); e("s_add_u32 s47, s46, 27648")
    e("s_add_u32 s48, s46, 4096"); e("s_add_u32 s49, s47, 4096"); e("s_add_u32 s50, s46, s45"); e("s_add_u32 s51, s47, s45")
    e("s_mul_i32 s43, s33, 35840"); e(f"s_add_u32 s43, s43, {IMG}"); e("v_add_u32 v252, s43, v15")
    e("s_cmp_eq_u32 s33, 3"); e("s_cselect_b32 s43, 5120, 0"); e("v_subrev_u32 v253, s43, v252")
    e("v_and_b32 v4, 7, v1"); e("v_lshlrev_b32 v4, 2, v4")
    e("s_lshl_b32 s44, s35, 10"); e("s_lshl_b32 s43, s36, 7"); e("s_add_u32 s44, s44, s43"); e(f"s_add_u32 s44, s44, {FH2}")
    e("v_min_u32 v254, 39, v1"); e("v_lshlrev_b32 v254, 3, v254")
    e("s_mul_i32 s52, s36, 320"); e(f"s_add_u32 s52, s52, {FY}")
    e("s_cmp_ge_u32 s32, 4"); e("s_cbranch_scc1 m_nwv")
    e("s_waitcnt vmcnt(0)")
    k.label("m_nwv")
    e("s_barrier")
    k.stamp(4)
    e("s_cmp_lg_u32 s32, 3"); e("s_cbranch_scc1 m_nhp")
    e("buffer_load_dword v5, v4, s[60:63], s44 offen sc1")
    k.label("m_nhp")
    e("s_cmp_lg_u32 s32, 2"); e("s_cbranch_scc1 m_nyp")
    e("buffer_load_dwordx2 v[248:249], v254, s[60:63], s52 offen sc1")
    k.label("m_nyp")
    for g in range(7):
        for db in range(5): e(f"ds_read_b128 {WF(g,db)}, v{253 if g == 6 else 252} offset:{g*5120 + db*1024}")
    for i in range(3): e(f"buffer_load_dwordx2 {v(8+2*i,2)}, v14, s[24:27], s{72+i} offen")
    e("v_lshrrev_b32 v244, 3, v1"); e("v_lshlrev_b32 v244, 12, v244"); e("v_and_b32 v245, 7, v1"); e("v_lshl_add_u32 v244, v245, 4, v244")
    e("s_mul_i32 s53, s36, 80"); e("s_lshl_b32 s43, s32, 3"); e("s_add_u32 s53, s53, s43"); e("s_lshl_b32 s53, s53, 12"); e("s_lshl_b32 s43, s35, 7"); e("s_add_u32 s53, s53, s43")
    e("s_cmp_lt_u32 s32, 2"); e(f"s_cselect_b32 s54, {64*4096}, 0"); e("s_cselect_b32 s55, 8192, 0"); e("s_add_u32 s54, s54, s53")
    e("s_lshl_b32 s43, s32, 10"); e(f"s_add_u32 s43, s43, {YTILE}"); e("v_add_u32 v246, s43, v15"); e("v_add_u32 v247, s55, v246")
    e("s_cmp_lg_u32 s32, 3"); e("s_cbranch_scc1 m_hw")
    poll_flags(k, "m_pollh", "v4", FLS, 1, 5, "v6", soff="s44", sleep=2, preloaded=True)
    k.label("m_hw")
    e("s_cmp_lg_u32 s32, 2"); e("s_cbranch_scc1 m_noy")
    poll_flags(k, "m_polly", "v254", FLS, 2, 248, "v5", soff="s52", sleep=8, preloaded=True)
    k.label("m_noy")
    e("s_waitcnt lgkmcnt(0)")
    e("s_barrier")
    k.stamp(11)
    k.vm = []
    k.vmem("buffer_load_dwordx4 v[236:239], v244, s[64:67], s53 offen sc1", "y")
    k.vmem("buffer_load_dwordx4 v[240:243], v244, s[64:67], s54 offen sc1", "y")
    for g in range(7):
        for sg in range(2):
            so = 46 + sg + (0 if g < 4 else 2 if g < 6 else 4)
            k.vmem(f"buffer_load_dwordx4 {H(g,sg)}, v15, s[20:23], s{so} offen offset:{(g%4)*1024 if g < 6 else 0} sc1", f"h{g}")
    e("s_mul_i32 s43, s32, 10240"); e("v_add_u32 v252, s43, v15")
    e("s_mul_i32 s43, s34, 40960"); e("s_and_b32 s44, s33, 1"); e("s_mul_i32 s44, s44, 5120"); e("s_add_u32 s43, s43, s44")
    e("v_bfe_u32 v4, v1, 2, 2"); e("v_lshl_add_u32 v4, v3, 2, v4"); e("v_lshlrev_b32 v4, 7, v4")
    e("v_and_b32 v5, 3, v1"); e("v_lshl_add_u32 v4, v5, 4, v4")
    e("s_lshl_b32 s44, s59, 1"); e(f"s_add_u32 s44, s44, {YTILE}"); e("v_add_u32 v4, s44, v4")
    for i in range(3):
        e(f"s_lshl_b32 s44, s{68+i}, 10"); e("s_add_u32 s44, s44, s43"); e(f"v_add_u32 v{253+i}, s44, v15")
        e(f"s_lshl_b32 s44, s{68+i}, 11"); e(f"v_add_u32 v{5+i}, s44, v4")
    for g in range(7):
        k.wait_vm(f"h{g}")
        if g == 0: e("ds_write_b128 v246, v[236:239]"); e("ds_write_b128 v247, v[240:243]"); e("s_waitcnt lgkmcnt(0)")
        for db in range(5):
            for sg in range(2):
                e(f"{MFMA} {acc(sg,db)}, {WF(g,db)}, {H(g,sg)}, {'0' if g == 0 else acc(sg,db)}")
    e("s_nop 2")
    e("s_nop 1")
    for db in range(5):
        for sg in range(2): e(f"ds_write_b128 v252, {acc(sg,db)} offset:{(sg*5+db)*1024}")
    for i in range(6): unpack(k, f"v{96+2*i}", f"v{97+2*i}", f"v{8+i}")
    e("s_waitcnt lgkmcnt(0)")
    e("s_barrier")
    for i in range(3): e(f"ds_read_b64_tr_b16 {v(24+2*i,2)}, v{5+i}")
    for i in range(3):
        for kq in range(4): e(f"ds_read_b128 {v(32+(i*4+kq)*4,4)}, v{253+i} offset:{kq*10240}")
    e("s_waitcnt lgkmcnt(12)")
    for n in range(6): unpack(k, f"v{112+2*n}", f"v{113+2*n}", f"v{24+n}")
    for n in range(6): e(f"v_pk_add_f32 {pr(96+2*n)}, {pr(96+2*n)}, {pr(112+2*n)}")
    e("s_waitcnt lgkmcnt(0)")
    A = [32 + i*16 + 2*p for i in range(3) for p in range(2)]
    for n in range(6): e(f"v_pk_add_f32 {pr(A[n])}, {pr(A[n])}, {pr(A[n]+4)}"); e(f"v_pk_add_f32 {pr(A[n]+8)}, {pr(A[n]+8)}, {pr(A[n]+12)}")
    for n in range(6): e(f"v_pk_add_f32 {pr(A[n])}, {pr(A[n])}, {pr(A[n]+8)}")
    for n in range(6): e(f"v_pk_add_f32 {pr(A[n])}, {pr(A[n])}, {pr(96+2*n)}")
    for n in range(6): e(f"v_cvt_pk_bf16_f32 v{24+n}, v{A[n]}, v{A[n]+1}")
    for i in range(3): e(f"buffer_store_dwordx2 {v(24+2*i,2)}, v14, s[28:31], s{72+i} offen")
    e("s_lshl_b32 s43, s2, 3"); e("s_add_u32 s43, s43, s32"); e("s_cmp_lg_u32 s43, 4"); e("s_cbranch_scc1 m_fin")
    k.srd(64, 12, 13, 256)
    e("v_mov_b32 v4, 0"); e("s_mov_b64 exec, 1")
    e("buffer_store_dword v4, v4, s[64:67], 0 offen sc1")
    k.label("m_fin")
    k.end(0)

def gen_helper(k, epoch_poll):
    e = k.e
    k.label("m_helper")
    e("s_lshl_b32 s35, s41, 2"); e("s_add_u32 s35, s35, s42"); e("s_sub_u32 s35, s35, 28")
    e("v_and_b32 v2, 15, v1"); e("v_lshrrev_b32 v3, 4, v1")
    e("s_lshl_b32 s43, s32, 3")
    e("v_add_u32 v4, s43, v3")
    e("s_lshl_b32 s44, s35, 6")
    e("v_add_u32 v5, s44, v4"); e("v_mul_u32_u24 v5, 1280, v5"); e("v_lshl_add_u32 v5, v2, 4, v5")
    e("v_add_u32 v6, 5120, v5")
    e("v_mul_u32_u24 v7, 1296, v4"); e("v_lshl_add_u32 v7, v2, 4, v7")
    e("v_mov_b32 v110, 0")
    e("v_and_b32 v4, 31, v1"); e(f"v_lshlrev_b32 v4, 2, v4"); e(f"v_add_u32 v4, {W_EPOCH}, v4")
    e("s_cmp_lg_u32 s32, 4"); e("s_cbranch_scc1 m_hnoclr")
    e("ds_write_b32 v4, v110")
    k.label("m_hnoclr")
    e("s_waitcnt lgkmcnt(0)")
    k.srd(16, 4, 5, 2048*1280)
    k.srd(28, 14, 15, XT_BYTES, WS_XNT)
    k.srd(64, 12, 13, 256)
    k.srd(FLS, 14, 15, FL_BYTES, WS_FL)
    k.srd(20, 96, 97, 864*1280)
    k.vm = []
    for g in range(2):
        for n in range(5):
            k.vmem(f"buffer_load_dwordx4 {v(8+g*20+n*4,4)}, v{5+g}, s[16:19], 0 offen offset:{n*256}", f"x{g}")
    XB = (48, 128)
    for g in range(2):
        k.stamp(1+2*g)
        k.wait_vm(f"x{g}")
        if g == 0: k.vmem("buffer_load_dword v111, v110, s[64:67], 0 offen sc1", "ep")
        X = XB[g]; src = 8 + g*20; M, R = 112 + 4*g, 114 + 4*g
        for n in range(20): unpack(k, f"v{X+2*n}", f"v{X+2*n+1}", f"v{src+n}")
        e(f"v_pk_add_f32 v[88:89], {pr(X)}, {pr(X+4)}"); e(f"v_pk_add_f32 v[90:91], {pr(X+2)}, {pr(X+6)}")
        for n in range(4, 20): e(f"v_pk_add_f32 {pr(88+2*(n%2))}, {pr(88+2*(n%2))}, {pr(X+2*n)}")
        e("v_pk_add_f32 v[88:89], v[88:89], v[90:91]"); e("s_nop 0"); e("v_add_f32 v88, v88, v89")
        for sh in (8, 4, 2, 1):
            e("s_nop 1"); e(f"v_add_f32_dpp v88, v88, v88 row_ror:{sh} row_mask:0xf bank_mask:0xf")
        e(f"v_mul_f32 v{M}, {f32(1/640)}, v88")
        for a_ in range(4): e(f"v_mov_b32 v{92+a_}, 0")
        for n0 in range(0, 20, 4):
            for a_ in range(4): e(f"v_pk_add_f32 {pr(96+2*a_)}, {pr(X+2*(n0+a_))}, {pr(M)} op_sel_hi:[1,0] neg_lo:[0,1] neg_hi:[0,1]")
            for a_ in range(4): e(f"v_pk_fma_f32 {pr(92+2*(a_%2))}, {pr(96+2*a_)}, {pr(96+2*a_)}, {pr(92+2*(a_%2))}")
        e("v_pk_add_f32 v[92:93], v[92:93], v[94:95]"); e("s_nop 0"); e("v_add_f32 v92, v92, v93")
        for sh in (8, 4, 2, 1):
            e("s_nop 1"); e(f"v_add_f32_dpp v92, v92, v92 row_ror:{sh} row_mask:0xf bank_mask:0xf")
        e(f"v_mul_f32 v{R}, {f32(1/640)}, v92")
        ln_finish(k, f"v{M}", f"v{R}", "v89")
    e("s_mov_b32 s40, 0")
    k.label("m_hep")
    e("s_waitcnt vmcnt(0)")
    e("v_readfirstlane_b32 s3, v111")
    e("s_add_u32 s40, s40, 1")
    e("s_cmp_lg_u32 s3, 0"); e("s_cbranch_scc1 m_hepok")
    e("buffer_load_dword v111, v110, s[64:67], 0 offen sc1")
    e(f"s_cmp_lt_u32 s40, {SPIN}"); e("s_cbranch_scc1 m_hep")
    k.label("m_hepok")
    k.vm = []
    k.srd(24, 14, 15, 32768, WS_ST1)
    for r in (113, 115, 117, 119): e(f"v_mov_b32 v{r}, v111")
    e("s_lshl_b32 s43, s35, 10"); e("s_lshl_b32 s44, s32, 7"); e("s_add_u32 s43, s43, s44"); e("v_lshlrev_b32 v5, 4, v3")
    e("v_cmp_eq_u32 vcc, 0, v2"); e("s_and_saveexec_b64 s[44:45], vcc")
    e("buffer_store_dwordx4 v[112:115], v5, s[24:27], s43 offen sc1"); e("buffer_store_dwordx4 v[116:119], v5, s[24:27], s43 offen offset:64 sc1")
    e("s_mov_b64 exec, -1")
    k.stamp(2)
    e("v_lshlrev_b32 v120, 4, v1")
    e("s_lshl_b32 s43, s35, 3"); e("s_add_u32 s43, s43, s32"); e("s_mul_i32 s43, s43, 4352")
    for n in range(4): e(f"buffer_load_dwordx4 v[124:127], v120, s[20:23], s43 offen offset:{n*1024}")
    e("s_add_u32 s43, s43, 4096")
    e(f"buffer_load_dwordx4 v[124:127], v120, s[20:23], s43 offen")
    for g in range(2):
        X = XB[g]; src = 8 + g*20; M, R = 112 + 4*g, 114 + 4*g
        for n in range(20): e(f"v_pk_add_f32 {pr(X+2*n)}, {pr(X+2*n)}, {pr(M)} op_sel_hi:[1,0] neg_lo:[0,1] neg_hi:[0,1]")
        for n in range(20): e(f"v_pk_mul_f32 {pr(X+2*n)}, {pr(X+2*n)}, {pr(R)} op_sel_hi:[1,0]")
        for n in range(20): e(f"v_cvt_pk_bf16_f32 v{src+n}, v{X+2*n}, v{X+2*n+1}")
        for n in range(5):
            e(f"ds_write_b128 v7, {v(src+4*n,4)} offset:{g*4*1296 + n*256}")
    e(f"v_mov_b32 v9, {W_EPOCH}")
    e("s_cmp_lg_u32 s32, 4"); e("s_cbranch_scc1 m_hepdone")
    e("ds_write_b32 v9, v111")
    k.label("m_hepdone")
    e("s_waitcnt lgkmcnt(0)")
    e("s_barrier")
    k.stamp(4)
    e("v_bfe_u32 v4, v1, 2, 2"); e("v_lshl_add_u32 v4, v3, 3, v4"); e("v_mul_u32_u24 v4, 1296, v4")
    e("v_and_b32 v5, 3, v1"); e("v_lshl_add_u32 v4, v5, 3, v4")
    e("s_lshl_b32 s43, s32, 5"); e("v_add_u32 v4, s43, v4")
    e(f"v_add_u32 v5, {32*1296}, v4")
    for n in range(5):
        for th in range(2):
            for hh in range(2):
                e(f"ds_read_b64_tr_b16 {v(16+(n*2+th)*4+hh*2,2)}, v{4+th} offset:{hh*4*1296 + n*256}")
    e("s_mul_i32 s43, s32, 4608"); e("s_add_u32 s43, s43, 90112")
    e("v_mul_u32_u24 v5, 144, v2"); e("v_lshl_add_u32 v5, v3, 4, v5"); e("v_add_u32 v5, s43, v5")
    e("v_lshrrev_b32 v4, 3, v1"); e("v_lshlrev_b32 v6, 12, v4"); e("v_mul_u32_u24 v4, 144, v4"); e("v_and_b32 v7, 7, v1"); e("v_lshl_add_u32 v4, v7, 4, v4"); e("v_add_u32 v4, s43, v4")
    e("v_lshl_add_u32 v6, v7, 4, v6")
    e("s_lshl_b32 s46, s32, 16"); e("s_lshl_b32 s44, s35, 7"); e("s_add_u32 s46, s46, s44"); e("s_add_u32 s47, s46, 32768")
    e("s_waitcnt vmcnt(0) lgkmcnt(0)")
    for n in range(5):
        o = (n % 2) * 2304
        for th in range(2): e(f"ds_write_b128 v5, {v(16+(n*2+th)*4,4)} offset:{o + th*64}")
        for hf in range(2): e(f"ds_read_b128 {v(56+(n*2+hf)*4,4)}, v4 offset:{o + hf*8*144}")
    for n in range(5):
        e(f"s_waitcnt lgkmcnt({min(15, 4*(4-n))})")
        for hf in range(2):
            e(f"buffer_store_dwordx4 {v(56+(n*2+hf)*4,4)}, v6, s[28:31], s{46+hf} offen" + ("" if "wb" in EXP else " sc1"))
        e(f"s_add_u32 s46, s46, {8*65536}"); e(f"s_add_u32 s47, s47, {8*65536}")
    def publish(imm, tag):
        e("s_waitcnt vmcnt(0) lgkmcnt(0)")
        e("s_barrier")
        e("s_cmp_lg_u32 s32, 4"); e(f"s_cbranch_scc1 m_hnp{tag}")
        e("s_lshl_b32 s45, s35, 2"); e(f"s_add_u32 s45, s45, {FX}")
        set_flag(k, FLS, "s45", 0, "v7", "v8")
        k.label(f"m_hnp{tag}")
    e("s_load_dwordx8 s[64:71], s[0:1], 8")
    e("s_load_dwordx4 s[72:75], s[0:1], 40")
    e("s_cmp_ge_u32 s32, 4"); e("s_cbranch_scc1 m_hG")
    conv_params(k)
    k.label("m_hG")
    publish(192, "x")
    k.stamp(5)
    e("s_cmp_lt_u32 s32, 4"); e("s_cbranch_scc1 m_Lpost")
    e(f"v_mov_b32 v4, {W_PF + 8}"); e("v_mov_b32 v5, 4"); e("ds_write_b32 v4, v5")
    k.srd(24, 14, 15, WOF_BYTES, WS_WOF)
    e("s_lshl_b32 s36, s35, 2"); e("s_add_u32 s36, s36, s33")
    e("v_lshrrev_b32 v4, 3, v1"); e("v_mul_u32_u24 v111, 1280, v4"); e("v_and_b32 v5, 7, v1"); e("v_lshl_add_u32 v111, v5, 4, v111")
    e("s_lshl_b32 s43, s33, 12"); e(f"s_add_u32 s43, s43, {111616 + 32768}")
    e("v_mul_u32_u24 v4, 128, v4"); e("v_lshl_add_u32 v4, v5, 4, v4"); e("v_add_u32 v4, s43, v4")
    e("v_bfe_u32 v5, v1, 2, 2"); e("v_lshl_add_u32 v5, v3, 2, v5"); e("v_mul_u32_u24 v5, 128, v5"); e("v_and_b32 v6, 3, v1"); e("v_lshl_add_u32 v5, v6, 3, v5"); e("v_add_u32 v5, s43, v5")
    e("v_lshlrev_b32 v6, 4, v1")
    k.vm = []
    for it in range(3):
        e(f"s_add_u32 s43, s36, {128*it}"); e("s_mul_i32 s44, s43, 205"); e("s_lshr_b32 s44, s44, 11"); e("s_mul_i32 s45, s44, 10"); e("s_sub_u32 s45, s43, s45")
        e("s_mul_i32 s46, s44, 40960"); e("s_lshl_b32 s47, s45, 7"); e("s_add_u32 s46, s46, s47")
        for d in range(4):
            e(f"s_lshl_b32 s47, s45, 2"); e(f"s_add_u32 s47, s47, {d}"); e("s_mul_i32 s34, s47, 52"); e("s_lshr_b32 s34, s34, 8")
            e("s_mul_i32 s34, s34, 130"); e("s_add_u32 s47, s47, s34"); e("s_mul_i32 s34, s44, 5"); e("s_add_u32 s47, s47, s34"); e("s_lshl_b32 s47, s47, 10")
            e("s_cmp_lt_u32 s43, 270"); e(f"s_cselect_b32 s{48+it*4+d}, s47, {HUGE}")
        for n in range(4):
            k.vmem(f"buffer_load_dwordx4 {v(16+it*16+n*4,4)}, v111, s[20:23], s46 offen", f"wo{it}")
            e("s_add_u32 s46, s46, 10240")
    for it in range(3):
        k.wait_vm(f"wo{it}")
        for n in range(4): e(f"ds_write_b128 v4, {v(16+it*16+n*4,4)} offset:{n*8*128}")
        for d in range(4):
            for hh in range(2): e(f"ds_read_b64_tr_b16 {v(64+it*16+d*4+hh*2,2)}, v5 offset:{hh*16*128 + d*32}")
    e("s_waitcnt lgkmcnt(0)")
    for it in range(3):
        for d in range(4): e(f"buffer_store_dwordx4 {v(64+it*16+d*4,4)}, v6, s[24:27], s{48+it*4+d} offen sc1")
    e(f"v_mov_b32 v4, {W_FX + 8}"); e("v_mov_b32 v5, 1"); e("v_lshlrev_b32 v7, 9, v1"); e("v_mov_b32 v9, s3")
    e("s_lshl_b32 s44, s35, 2"); e(f"s_add_u32 s44, s44, {FZ2}")
    e("s_mov_b64 exec, 1")
    e("s_waitcnt vmcnt(0)")
    e("ds_add_rtn_u32 v8, v4, v5")
    e("s_waitcnt lgkmcnt(0)")
    e("v_readfirstlane_b32 s43, v8")
    e("s_mov_b64 exec, -1")
    e("s_cmp_lg_u32 s43, 3"); e("s_cbranch_scc1 m_P2")
    e("s_lshl_b32 s45, s35, 2"); e(f"s_add_u32 s45, s45, {FK}")
    set_flag(k, FLS, "s45", 0, "v7", "v8")
    e("s_branch m_P2")

if __name__ == "__main__":
    import sys
    NAME = "parallel_sum__ssm_conv_s4d__mixer_gmlp__prompt"
    path = sys.argv[1] if len(sys.argv) > 1 else f"cdna_kernels/{NAME}.s"
    t, kd = gen_mega(NAME + "_kernel")
    hdr = open(f"cdna_kernels/{NAME}.s.ref").read().split("; Override launch")[0]
    lst = os.environ.get("LIST", "0") == "1"
    out = hdr + (f"; @launch kernel={NAME}_kernel grid=(256,1,1) block=(512,1,1) lds={LDS_TOTAL}\n" if lst else f"; @launch grid=(256,1,1) block=(512,1,1) lds={LDS_TOTAL}\n")
    out += '.amdgcn_target "amdgcn-amd-amdhsa--gfx950"\n.text\n' + t + '\ntext_end:\n.section .rodata,"a"\n.p2align 6\n' + kd + "\n"
    open(path, "w").write(out)
```

```python
import sys, re
src = open(sys.argv[1]).read(); i = int(sys.argv[3]); wlo = int(sys.argv[4]);
N = "parallel_sum__ssm_conv_s4d__mixer_gmlp__prompt_kernel"
src = re.sub(r"; @launch grid=.*\n", f"; @launch kernel={N} grid=(256,1,1) block=(512,1,1) lds=163840\n; @launch kernel=probe_kernel grid=(1,1,1) block=(64,1,1) lds=0\n", src)
body = ""
for n in range(16):
    body += f"    buffer_load_dword v{8+n}, v1, s[16:19], s20 offen offset:{4*i + wlo*64}\n    buffer_load_dword v{24+n}, v1, s[16:19], s20 offen offset:{wlo*64}\n    s_add_u32 s20, s20, 16384\n"
red = ""
for n in range(16):
    red += f"    v_cmp_eq_u32 vcc, 0, v{8+n}\n    v_subrev_u32 v{8+n}, s6, v{8+n}\n    v_subrev_u32 v{24+n}, s6, v{24+n}\n    v_cndmask_b32 v{8+n}, v{8+n}, v2, vcc\n    v_max_u32 v3, v3, v{8+n}\n    v_min_u32 v4, v4, v{24+n}\n"
lanes = ""
for l in range(64):
    lanes += f"    v_readlane_b32 s7, v3, {l}\n    v_readlane_b32 s13, v4, {l}\n    s_nop 1\n    s_max_u32 s14, s14, s7\n    s_min_u32 s15, s15, s13\n"
probe = f""".globl probe_kernel
.p2align 8
.type probe_kernel,@function
probe_kernel:
    s_cmp_lg_u32 s2, 0
    s_cbranch_scc1 pend
    s_load_dwordx2 s[4:5], s[0:1], 112
    v_lshrrev_b32 v1, 2, v0
    v_lshlrev_b32 v1, 10, v1
    v_and_b32 v2, 3, v0
    v_lshl_add_u32 v1, v2, 6, v1
    s_waitcnt lgkmcnt(0)
    s_add_u32 s16, s4, {32 << 20}
    s_addc_u32 s17, s5, 0
    s_mov_b32 s18, {1 << 20}
    s_mov_b32 s19, 0x00020000
    s_load_dword s6, s[16:17], 0
    s_mov_b32 s20, 0
{body}
    s_waitcnt vmcnt(0) lgkmcnt(0)
    s_sub_u32 s6, s6, 1000
    v_mov_b32 v2, 0
    v_mov_b32 v3, 0
    v_mov_b32 v4, -1
{red}
    s_mov_b32 s14, 0
    s_mov_b32 s15, -1
{lanes}
    s_sub_u32 s6, s14, s15
    s_min_u32 s6, s6, 20000
    s_memrealtime s[8:9]
    s_waitcnt lgkmcnt(0)
pl:
    s_memrealtime s[10:11]
    s_waitcnt lgkmcnt(0)
    s_sub_u32 s12, s10, s8
    s_cmp_lt_u32 s12, s6
    s_cbranch_scc1 pl
pend:
    s_endpgm
"""
kd = """.p2align 6
.amdhsa_kernel probe_kernel
  .amdhsa_next_free_vgpr 48
  .amdhsa_next_free_sgpr 32
  .amdhsa_accum_offset 48
  .amdhsa_group_segment_fixed_size 0
  .amdhsa_kernarg_size 120
  .amdhsa_user_sgpr_count 2
  .amdhsa_user_sgpr_kernarg_segment_ptr 1
  .amdhsa_system_sgpr_workgroup_id_x 1
.end_amdhsa_kernel
"""
src = src.replace('.section .rodata,"a"', probe + '.section .rodata,"a"') + kd
open(sys.argv[2], "w").write(src)
```

```python
from mega_common import *
FLS = 60
WS_ST1 = 27*MB
RING2 = 16384
CONV0 = 65536
CONV_B = 15360
YTILE = 81920
IMG = 22528
NSLOT = 3
XB = 111616
ZD = int(os.environ.get('ZD', '24'))
ZSL = int(os.environ.get('ZSL', '2'))
ROTM = int(os.environ.get('ROTM', '0'))
WS_KC = 26*MB
KC_BYTES = 640 * 1536

def conv_params(k):
    e = k.e
    e("s_mul_i32 s34, s41, 28"); e("s_add_u32 s34, s34, s42"); e("s_lshl_b32 s34, s34, 1"); e("s_add_u32 s34, s34, s32")
    e("s_mul_i32 s56, s41, 24"); e("s_add_u32 s56, s56, s42"); e("s_add_u32 s56, s56, 448")
    e("s_cmp_lt_u32 s42, 24"); e("s_cselect_b32 s56, s56, 1000")
    e("s_cmp_eq_u32 s32, 2"); e("s_cselect_b32 s34, s56, s34")
    e("s_cmp_eq_u32 s32, 3"); e("s_cselect_b32 s34, 1000, s34")
    e("s_lshl_b32 s56, s34, 8"); e("s_lshl_b32 s57, s34, 1")
    e("v_lshlrev_b32 v4, 2, v1"); e("v_mov_b32 v5, 0")
    e("s_waitcnt lgkmcnt(0)")
    for a in range(4):
        k.srd(28, 64+2*a, 65+2*a, 640*256)
        e(f"buffer_load_dword v{164+a}, v4, s[28:31], s56 offen")
    k.srd(28, 72, 73, 1280); e("buffer_load_ushort v13, v5, s[28:31], s57 offen")
    k.srd(28, 74, 75, 1280); e("buffer_load_ushort v14, v5, s[28:31], s57 offen")

def gen_mega(name):
    k = Kern(name)
    e = k.e
    e("s_cmp_ge_u32 s2, 256"); e("s_cbranch_scc1 m_end")
    k.stamp_init()
    e("s_load_dwordx2 s[4:5], s[0:1], 0")
    e("s_load_dwordx4 s[8:11], s[0:1], 64")
    e("s_load_dwordx4 s[12:15], s[0:1], 104")
    e("s_load_dwordx4 s[96:99], s[0:1], 88")
    e("v_and_b32 v1, 63, v0")
    e("v_lshrrev_b32 v2, 6, v0")
    e("s_and_b32 s41, s2, 7")
    e("v_readfirstlane_b32 s32, v2")
    e("s_lshr_b32 s42, s2, 3")
    e("s_and_b32 s33, s32, 3")
    e("s_cmp_ge_u32 s42, 28"); e("s_cbranch_scc1 m_helper")
    e("s_mul_i32 s43, s42, 37"); e("s_lshr_b32 s43, s43, 8")
    e("s_mul_i32 s44, s43, 7"); e("s_sub_u32 s44, s42, s44")
    e("s_lshr_b32 s35, s41, 1"); e("s_lshl_b32 s35, s35, 2"); e("s_add_u32 s35, s35, s43")
    e("s_and_b32 s36, s41, 1"); e("s_mul_i32 s36, s36, 7"); e("s_add_u32 s36, s36, s44")
    e("s_cmp_ge_u32 s32, 4"); e("s_cbranch_scc1 m_gemm1")
    e("s_mul_i32 s45, s44, 3"); e("s_mul_i32 s46, s43, 5"); e("s_lshr_b32 s46, s46, 1"); e("s_add_u32 s45, s45, s46")
    e("s_cmp_ge_u32 s45, 20"); e("s_cselect_b32 s46, 20, 0"); e("s_sub_u32 s45, s45, s46")
    e("s_cmp_ge_u32 s45, 10"); e("s_cselect_b32 s46, 10, 0"); e("s_sub_u32 s45, s45, s46")
    e("s_load_dwordx8 s[64:71], s[0:1], 8")
    e("s_load_dwordx4 s[72:75], s[0:1], 40")
    e("v_and_b32 v3, 7, v1")
    e("s_lshl_b32 s39, s32, 13")
    e("s_cmp_ge_u32 s32, 2"); e("s_cbranch_scc1 m_ldB")
    e("s_lshl_b32 s43, s35, 7"); e("s_lshl_b32 s44, s32, 6"); e("s_add_u32 s43, s43, s44")
    e("v_lshrrev_b32 v2, 5, v1"); e("v_lshlrev_b32 v2, 3, v2")
    e("v_bfe_u32 v4, v1, 3, 2"); e("v_add3_u32 v2, v2, v4, s43")
    e("v_mul_u32_u24 v2, 1280, v2")
    e("v_lshrrev_b32 v4, 4, v1"); e("v_xor_b32 v3, v3, v4")
    e("v_lshl_add_u32 v4, v3, 4, v2")
    e("v_xor_b32 v3, 4, v3"); e("v_lshl_add_u32 v5, v3, 4, v2")
    for n in range(8):
        ee, b, Pp = n & 1, (n >> 1) & 1, n >> 2
        e(f"v_add_u32 v{16+n}, {(32*Pp + 4*b + 16*ee)*1280 - (n & 3)*1024}, v{4+ee}")
    e("s_waitcnt lgkmcnt(0)")
    k.srd(16, 4, 5, 2048*1280)
    e("s_mov_b32 s38, 128")
    e("s_branch m_ld")
    k.label("m_ldB")
    e("v_lshrrev_b32 v2, 3, v1"); e("v_mul_u32_u24 v2, 3456, v2")
    e("s_cmp_eq_u32 s32, 2"); e("s_cselect_b32 s44, 1664, 0")
    e("s_lshl_b32 s43, s36, 7"); e("s_add_u32 s43, s43, s44"); e("v_add_u32 v2, s43, v2")
    e("v_bfe_u32 v4, v1, 4, 1"); e("v_lshlrev_b32 v4, 1, v4"); e("v_xor_b32 v3, v3, v4")
    e("v_lshl_add_u32 v4, v3, 4, v2")
    e("v_xor_b32 v3, 4, v3"); e("v_lshl_add_u32 v5, v3, 4, v2")
    for n in range(8):
        e(f"v_add_u32 v{16+n}, {8*n*3456 - (n & 3)*1024}, v{4+(n & 1)}")
    e("s_waitcnt lgkmcnt(0)")
    k.srd(16, 8, 9, 640*3456)
    e(f"s_mov_b32 s38, {64*3456}")
    k.label("m_ld")
    if "norot" in EXP: e("s_mov_b32 s45, 0")
    if "rotold" not in EXP:
        e("s_lshr_b32 s45, s41, 1"); e("s_mul_i32 s45, s45, 5"); e("s_lshr_b32 s45, s45, 1"); e("s_and_b32 s46, s41, 1"); e("s_mul_i32 s46, s46, 5"); e("s_add_u32 s45, s45, s46")
        if "rotxa" in EXP: e("s_and_b32 s46, s42, 1"); e("s_mul_i32 s46, s46, 3"); e("s_add_u32 s45, s45, s46")
        if "rotxa" not in EXP: e("s_and_b32 s46, s42, 1"); e("s_mul_i32 s46, s46, 5"); e("s_add_u32 s45, s45, s46")
        e("s_cmp_ge_u32 s45, 10"); e("s_cselect_b32 s46, 10, 0"); e("s_sub_u32 s45, s45, s46")
    if "rot2" in EXP: e("s_and_b32 s45, s42, 1"); e("s_mul_i32 s45, s45, 5")
    if "rot3" in EXP: e("s_mul_i32 s45, s42, 86"); e("s_lshr_b32 s45, s45, 8"); e("s_mul_i32 s45, s45, 3"); e("s_sub_u32 s45, s42, s45"); e("s_mul_i32 s45, s45, 3")
    e("s_mul_i32 s37, s45, s38"); e("s_mul_i32 s46, s38, 10"); e("s_mov_b32 s40, 0")
    k.label("m_ldloop")
    e("s_cmp_lt_u32 s40, 3"); e("s_cbranch_scc1 m_ldissue")
    e("s_waitcnt vmcnt(16)")
    e("s_barrier")
    k.label("m_ldissue")
    for g in range(2):
        e(f"s_add_u32 m0, s39, {g*4096}")
        e("s_nop 0")
        for n in range(4): e(f"buffer_load_dwordx4 v{16+g*4+n}, s[16:19], s37 offen offset:{n*1024} lds")
    e("s_add_u32 s39, s39, 32768"); e("s_and_b32 s39, s39, 0x1ffff")
    e("s_add_u32 s37, s37, s38"); e("s_cmp_eq_u32 s37, s46"); e("s_cselect_b32 s37, 0, s37")
    e("s_add_u32 s40, s40, 1"); e("s_cmp_lt_u32 s40, 10"); e("s_cbranch_scc1 m_ldloop")
    k.stamp(1)
    k.srd(24, 14, 15, 32768, WS_ST1)
    k.srd(48, 12, 13, 256)
    e("v_bfe_u32 v4, v1, 2, 2"); e("v_lshlrev_b32 v4, 3, v4"); e("v_bfe_u32 v5, v1, 4, 1"); e("v_lshl_add_u32 v4, v5, 2, v4")
    e("v_and_b32 v5, 0x23, v1"); e("v_add_u32 v4, v4, v5"); e("v_lshlrev_b32 v232, 4, v4"); e("v_mov_b32 v233, 0")
    e("s_lshl_b32 s52, s35, 11"); e("s_and_b32 s43, s32, 1"); e("s_lshl_b32 s43, s43, 10"); e("s_add_u32 s52, s52, s43")
    e("buffer_load_dword v234, v233, s[48:51], 0 offen sc1")
    e("buffer_load_dwordx4 v[236:239], v232, s[24:27], s52 offen sc1")
    conv_params(k)
    e("s_getpc_b64 s[44:45]")
    k.label("m_pc")
    e(f"s_sub_u32 s44, s44, m_pc-{name}"); e("s_subb_u32 s45, s45, 0")
    e(f"s_mov_b32 s46, text_end-{name}"); e("s_mov_b32 s47, 0x00020000")
    e("s_and_b32 s43, s42, 15"); e("s_lshl_b32 s43, s43, 2"); e("s_add_u32 s43, s43, s33"); e("s_lshl_b32 s43, s43, 10")
    e("v_lshlrev_b32 v2, 4, v1")
    e("buffer_load_dwordx4 v[224:227], v2, s[44:47], s43 offen")
    TW = 1 if "tlb" in EXP else 0
    if TW:
        e("s_bitcmp1_b32 s32, 0"); e("s_cselect_b32 s44, s98, s14"); e("s_cselect_b32 s45, s99, s15"); e("s_cselect_b32 s43, 16, 19")
        e(f"s_mov_b32 s46, {2048*1280}"); e(f"s_cselect_b32 s46, s46, {28*MB}"); e("s_mov_b32 s47, 0x00020000")
        e("v_lshlrev_b32 v2, s43, v1")
        e("buffer_load_dword v228, v2, s[44:47], 0 offen")
    k.srd(20, 10, 11, 2048*4096)
    e("s_lshl_b32 s43, s42, 2"); e("s_add_u32 s43, s43, s32"); e(f"s_mul_i32 s43, s43, {9*1024+384}")
    e("s_lshl_b32 s44, s41, 20"); e("s_add_u32 s43, s43, s44"); e("s_xor_b32 s53, s43, 0x100000")
    e("v_lshlrev_b32 v2, 4, v1")
    def pf(n):
        for i in range(n):
            e(f"buffer_load_dwordx4 v[224:227], v2, s[20:23], s43 offen offset:{(i%4)*1024}")
            if i % 4 == 3 or i == n - 1: e(f"s_add_u32 s43, s43, {(i%4+1)*1024}")
    if "pfe" in EXP:
        pf(10)
        e(f"s_waitcnt vmcnt({35+TW})"); e("s_barrier")
        e(f"s_waitcnt vmcnt({27+TW})"); e("s_barrier")
    else:
        e(f"s_waitcnt vmcnt({25+TW})"); e("s_barrier"); pf(4)
        e(f"s_waitcnt vmcnt({21+TW})"); e("s_barrier"); pf(6)
    e(f"s_waitcnt vmcnt({19+TW})"); e("s_barrier")
    e("s_cmp_ge_u32 s32, 2"); e("s_cbranch_scc1 m_st1ok")
    e(f"s_waitcnt vmcnt({17+TW})")
    e("s_mov_b32 s40, 0")
    e("s_branch m_st1chk")
    k.label("m_st1poll")
    e("buffer_load_dword v234, v233, s[48:51], 0 offen sc1")
    e("buffer_load_dwordx4 v[236:239], v232, s[24:27], s52 offen sc1")
    e("s_waitcnt vmcnt(0)")
    k.label("m_st1chk")
    e("v_xor_b32 v4, v237, v234"); e("v_xor_b32 v5, v239, v234"); e("v_or_b32 v4, v4, v5")
    e("v_cmp_ne_u32 vcc, 0, v4"); e("v_cmp_eq_u32 s[44:45], 0, v234"); e("s_add_u32 s40, s40, 1")
    e("s_or_b64 vcc, vcc, s[44:45]")
    e(f"s_cmp_ge_u32 s40, {SPIN}"); e("s_cbranch_scc1 m_st1w")
    e("s_cbranch_vccnz m_st1poll")
    k.label("m_st1w")
    e("s_lshl_b32 s44, s32, 8"); e(f"s_add_u32 s44, s44, {MISC}"); e("v_lshl_add_u32 v4, v1, 2, s44"); e(f"v_mov_b32 v5, {W_EPOCH}")
    e("ds_write_b32 v4, v236"); e("ds_write_b32 v4, v238 offset:512"); e("ds_write_b32 v5, v234")
    e("s_waitcnt lgkmcnt(0)")
    k.label("m_st1ok")
    e("s_barrier")
    if "pf2" in EXP:
        e("s_mov_b32 s43, s53"); pf(10)
    k.label("m_Lpost")
    k.stamp(2)
    e(f"v_mov_b32 v4, {W_EPOCH}"); e("ds_read_b32 v5, v4")
    k.srd(FLS, 14, 15, FL_BYTES, WS_FL)
    e("v_and_b32 v2, 15, v1"); e("v_lshrrev_b32 v3, 4, v1")
    e("s_lshr_b32 s35, s41, 1"); e("s_lshl_b32 s35, s35, 3"); e("s_lshr_b32 s43, s42, 2"); e("s_add_u32 s35, s35, s43")
    e("s_waitcnt lgkmcnt(0)")
    e("v_readfirstlane_b32 s3, v5")
    e("s_cmp_lg_u32 s32, 3"); e("s_cbranch_scc1 m_conv")
    k.srd(16, 10, 11, 2048*4096)
    e("v_lshrrev_b32 v4, 5, v1"); e("v_lshlrev_b32 v4, 3, v4"); e("v_bfe_u32 v5, v1, 3, 2"); e("v_add_u32 v4, v4, v5")
    e("v_lshlrev_b32 v4, 12, v4")
    e("v_and_b32 v5, 7, v1"); e("v_xor_b32 v5, v5, v3")
    e("v_lshl_add_u32 v6, v5, 4, v4")
    e("v_xor_b32 v5, 4, v5"); e("v_lshl_add_u32 v7, v5, 4, v4")
    for n in range(8):
        ee, t = n & 1, n >> 1
        e(f"v_add_u32 v{16+n}, {(32*(t >> 1) + 4*(t & 1) + 16*ee)*4096 - (n & 3)*1024}, v{6+ee}")
    e("s_lshl_b32 s37, s35, 18")
    e(f"s_and_b32 s43, s35, {ROTM}"); e("s_lshl_b32 s43, s43, 8"); e("s_add_u32 s37, s37, s43")
    LATE = "late" in EXP
    def pfloop():
        e("s_mov_b32 s40, 0")
        k.label("m_pfloop")
        e("s_and_b32 s43, s40, 3"); e("s_lshr_b32 s44, s40, 2")
        e(f"s_mul_i32 s49, s43, {RING2}"); e("s_lshl_b32 s46, s44, 13"); e("s_add_u32 s49, s49, s46")
        e("s_lshl_b32 s46, s43, 13"); e(f"s_add_u32 s46, s46, {XB}"); e("s_cmp_eq_u32 s44, 2"); e("s_cselect_b32 s49, s46, s49")
        e("s_lshl_b32 s43, s43, 10"); e("s_lshl_b32 s44, s44, 7"); e("s_add_u32 s43, s43, s44"); e("s_add_u32 s43, s43, s37")
        for g in range(2):
            e(f"s_add_u32 m0, s49, {g*4096}")
            e("s_nop 0")
            for n in range(4): e(f"buffer_load_dwordx4 v{16+g*4+n}, s[16:19], s43 offen offset:{n*1024} lds")
        e(f"s_waitcnt vmcnt({48 if LATE else int(os.environ.get('THR', '40'))})")
        e("s_add_u32 s40, s40, 1"); e("s_cmp_lt_u32 s40, 12"); e("s_cbranch_scc1 m_pfloop")
    if not LATE: pfloop()
    e(f"v_mov_b32 v4, {W_FX + 12}"); e("v_mov_b32 v5, 1"); e("s_waitcnt vmcnt(0)"); e("ds_write_b32 v4, v5")
    k.stamp(3)
    e("s_and_b32 s36, s41, 1"); e("s_lshl_b32 s36, s36, 2"); e("s_and_b32 s43, s42, 3"); e("s_add_u32 s36, s36, s43")
    e("s_cmp_eq_u32 s36, 7"); e("s_cselect_b32 s43, 31, 47")
    e("v_min_u32 v7, s43, v1"); e("v_lshlrev_b32 v7, 2, v7")
    e("s_lshl_b32 s45, s35, 3"); e("s_add_u32 s45, s45, s36"); e("s_lshl_b32 s45, s45, 8"); e(f"s_add_u32 s45, s45, {FZ2}")
    e(f"v_mov_b32 v4, {W_PF + 8}")
    lds_wait_ge(k, "m_wown1", "v4", 5, 1, 4, sleep=2)
    if LATE: pfloop()
    elif ZD: e(f"s_sleep {ZD}")
    poll_flags(k, "m_pollz", "v7", FLS, 1, 5, "v6", soff="s45", sleep=ZSL)
    e(f"v_mov_b32 v4, {W_PF}"); e("v_mov_b32 v5, 1")
    e("ds_write_b32 v4, v5")
    k.stamp(4)
    k.srd(24, 14, 15, WOF_BYTES, WS_WOF)
    k.srd(20, 96, 97, 864*1280); e("s_mov_b32 s38, s2")
    e("v_lshrrev_b32 v4, 3, v1"); e("v_mul_u32_u24 v111, 1280, v4"); e("v_and_b32 v5, 7, v1"); e("v_lshl_add_u32 v111, v5, 4, v111")
    e(f"s_mov_b32 s43, {111616 + 32768}")
    e("v_mul_u32_u24 v4, 128, v4"); e("v_lshl_add_u32 v4, v5, 4, v4"); e("v_add_u32 v4, s43, v4")
    e("v_bfe_u32 v5, v1, 2, 2"); e("v_lshl_add_u32 v5, v3, 2, v5"); e("v_mul_u32_u24 v5, 128, v5"); e("v_and_b32 v6, 3, v1"); e("v_lshl_add_u32 v5, v6, 3, v5"); e("v_add_u32 v5, s43, v5")
    e("v_lshlrev_b32 v6, 4, v1")
    k.vm = []
    for it in range(2):
        e(f"s_add_u32 s43, s38, {256*it}"); e("s_mul_i32 s44, s43, 205"); e("s_lshr_b32 s44, s44, 11"); e("s_mul_i32 s45, s44, 10"); e("s_sub_u32 s45, s43, s45")
        e("s_mul_i32 s46, s44, 40960"); e("s_lshl_b32 s47, s45, 7"); e("s_add_u32 s46, s46, s47")
        for d in range(4):
            e(f"s_lshl_b32 s47, s45, 2"); e(f"s_add_u32 s47, s47, {d}"); e("s_mul_i32 s39, s47, 52"); e("s_lshr_b32 s39, s39, 8")
            e("s_mul_i32 s39, s39, 130"); e("s_add_u32 s47, s47, s39"); e("s_mul_i32 s39, s44, 5"); e("s_add_u32 s47, s47, s39"); e("s_lshl_b32 s47, s47, 10")
            e("s_cmp_lt_u32 s43, 270"); e(f"s_cselect_b32 s{48+it*4+d}, s47, {HUGE}")
        for n in range(4):
            k.vmem(f"buffer_load_dwordx4 {v(16+it*16+n*4,4)}, v111, s[20:23], s46 offen", f"wo{it}")
            e("s_add_u32 s46, s46, 10240")
    for it in range(2):
        k.wait_vm(f"wo{it}")
        for n in range(4): e(f"ds_write_b128 v4, {v(16+it*16+n*4,4)} offset:{n*8*128}")
        for d in range(4):
            for hh in range(2): e(f"ds_read_b64_tr_b16 {v(64+it*16+d*4+hh*2,2)}, v5 offset:{hh*16*128 + d*32}")
    e("s_waitcnt lgkmcnt(0)")
    for it in range(2):
        for d in range(4): e(f"buffer_store_dwordx4 {v(64+it*16+d*4,4)}, v6, s[24:27], s{48+it*4+d} offen sc1")
    e("s_lshl_b32 s45, s2, 2"); e(f"s_add_u32 s45, s45, {FK}")
    set_flag(k, FLS, "s45", 0, "v7", "v8")
    e(f"v_mov_b32 v4, {W_GL}")
    lds_wait_ge(k, "m_wgl3", "v4", 8, 4, 1, sleep=8)
    e(f"s_mov_b32 s44, {FK}")
    poll_flags(k, "m_pollx3", "v6", FLS, 4, 8, "v5", soff="s44", sleep=16)
    e(f"v_mov_b32 v4, {W_FX}"); e("v_mov_b32 v5, 1"); e("ds_write_b32 v4, v5")
    e("s_branch m_L3prep")
    k.label("m_conv")
    e("s_cmp_ge_u32 s34, 640"); e("s_cbranch_scc1 m_L3prep")
    e(f"s_mul_i32 s39, s32, {CONV_B}"); e(f"s_add_u32 s39, s39, {CONV0}")
    e(f"s_waitcnt vmcnt({20 if 'pf2' in EXP else 10})")
    kgen_dt(k, "v13")
    kgen_addr(k, "s39", "v2", "v3", "v1")
    e("s_mov_b32 s40, 2")
    e(f"s_mov_b32 s50, {FX}"); e("v_and_b32 v220, 31, v1"); e("v_lshlrev_b32 v220, 2, v220")
    e("v_lshlrev_b32 v15, 4, v1"); e("s_mov_b32 s51, 0")
    k.srd(20, 14, 15, XT_BYTES, WS_XNT)
    k.srd(24, 14, 15, XT_BYTES, WS_YT)
    e("s_lshl_b32 s45, s34, 12")
    uld = [f"buffer_load_dwordx4 {v(200+4*n,4)}, v15, s[20:23], s45 offen offset:{n*1024} sc1" for n in range(4)]
    kgen_loop(k, 164, "v13", "s40",
              top=["s_cmp_lg_u32 s40, 1", "s_cbranch_scc1 m_noprobe", "buffer_load_dword v216, v220, s[60:63], s50 offen sc1", "m_noprobe:"],
              mid=["s_cmp_lg_u32 s40, 1", "s_cbranch_scc1 m_nochk", "s_waitcnt vmcnt(0)", "v_cmp_ne_u32 vcc, s3, v216", "s_nop 1", "s_cbranch_vccnz m_nochk", "s_mov_b32 s51, 1"] + uld + ["m_nochk:"])
    k.stamp(3)
    UO, KC = 8320, 12928
    e(f"s_add_u32 s43, s39, {KC}")
    e("v_max_u32 v4, 1, v3"); e("v_sub_u32 v4, 5, v4")
    e("v_lshlrev_b32 v5, v4, v2")
    e("v_lshlrev_b32 v6, 3, v3")
    e("v_mov_b32 v7, 512"); e("v_cmp_eq_u32 vcc, 2, v3"); e("s_nop 1"); e("v_cndmask_b32 v6, v6, v7, vcc")
    e("v_mov_b32 v7, 768"); e("v_mov_b32 v8, 4"); e("v_mov_b32 v9, 128"); e("v_cmp_eq_u32 vcc, 3, v3"); e("s_nop 1")
    e("v_cndmask_b32 v6, v6, v7, vcc"); e("v_cndmask_b32 v8, v8, v9, vcc")
    e("v_add3_u32 v5, v5, v6, s43")
    e("v_lshlrev_b32 v6, v4, 16"); e("v_add_u32 v6, v5, v6")
    e("v_add_u32 v7, v5, v8"); e("v_add_u32 v8, v6, v8")
    for n in range(8): e(f"v_cvt_pk_bf16_f32 v{24+n}, v{136+2*n}, v{137+2*n}")
    e("ds_write_b32 v5, v24"); e("ds_write_b32 v7, v25"); e("ds_write_b32 v6, v26"); e("ds_write_b32 v8, v27")
    e("v_lshlrev_b32 v9, 6, v2"); e("v_lshl_add_u32 v9, v3, 3, v9"); e("v_add_u32 v9, s43, v9")
    e("v_mov_b32 v20, 0"); e("v_mov_b32 v21, 0"); e("v_mov_b32 v22, 0"); e("v_mov_b32 v23, 0")
    e("v_add_u32 v16, s39, v15")
    e("v_lshl_add_u32 v17, v1, 3, s39")
    e(f"ds_write_b64 v17, v[20:21] offset:{UO}")
    e("v_cmp_gt_u32 vcc, 5, v2"); e("s_and_saveexec_b64 s[46:47], vcc")
    e("ds_write_b64 v9, v[28:29] offset:1024"); e("ds_write_b64 v9, v[30:31] offset:1056")
    e("s_mov_b64 exec, 3")
    e("ds_write_b128 v16, v[20:23] offset:4096"); e(f"ds_write_b128 v16, v[20:23] offset:{4160+4096}")
    e("s_mov_b64 exec, -1")
    e("v_lshlrev_b32 v18, 1, v1"); e(f"s_add_u32 s44, s43, {2*575}"); e("v_sub_u32 v96, s44, v18")
    e("v_and_b32 v19, 1, v1"); e("v_xor_b32 v19, 1, v19"); e("v_lshl_add_u32 v97, v19, 1, v96")
    e("v_lshlrev_b32 v18, 2, v1"); e("s_add_u32 s44, s43, 1020"); e("v_sub_u32 v98, s44, v18")
    e("v_lshlrev_b32 v18, 3, v1"); e(f"s_add_u32 s44, s43, {2*380 - 2}"); e("v_sub_u32 v99, s44, v18")
    e("v_lshlrev_b32 v18, 4, v1"); e(f"s_add_u32 s44, s43, {2*504 - 2}"); e("v_sub_u32 v100, s44, v18")
    EM = []
    for m in range(2):
        o = 128 * (1 - m); A_, B_, X_ = 144 + 3*m, 145 + 3*m, 146 + 3*m
        e(f"ds_read_u16 v{A_}, v96 offset:{o}"); e(f"ds_read_u16 v{B_}, v96 offset:{o+2}"); e(f"ds_read_u16 v{X_}, v97 offset:{o}")
        EM.append([B_, B_, B_, X_, A_, A_, A_, A_, A_])
    for i in range(3): e(f"ds_read_u16 v{150+i}, v98 offset:{2*i}")
    EM.append([152, 152, 151, 151, 151, 150, 150, 150, 150])
    e("s_mov_b32 exec_hi, 0")
    for el, io in enumerate((4, 3, 2, 2, 2, 1, 0, 0, 0)): e(f"ds_read_u16 v{153+el}, v99 offset:{2*io + 2}")
    e("s_mov_b32 exec_lo, 0x80000000")
    e("ds_read_u16 v161, v99")
    e("s_mov_b32 exec_lo, 0"); e("s_mov_b32 exec_hi, -1")
    for el in range(9): e(f"ds_read_u16 v{153+el}, v100 offset:{2*(7 - el) + 2}")
    e("s_mov_b64 exec, -1")
    EM.append(list(range(153, 162)))
    e("v_cmp_eq_u32 vcc, 63, v1"); e("s_nop 0")
    e("s_waitcnt lgkmcnt(0)")
    e("v_cndmask_b32 v161, v161, v20, vcc")
    for m in range(4):
        W = 32 + 16*m; E = EM[m]
        for p in range(4):
            e(f"v_lshl_or_b32 v{W+p}, v{E[2*p+1]}, 16, v{E[2*p]}")
            e(f"v_lshl_or_b32 v{W+8+p}, v{E[2*p+2]}, 16, v{E[2*p+1]}")
        e(f"ds_write_b128 v16, {v(W,4)} offset:{1024*m}")
        e(f"ds_write_b128 v16, {v(W+8,4)} offset:{4160+1024*m}")
    e("s_cmp_eq_u32 s51, 1"); e("s_cbranch_scc1 m_uok")
    poll_flags(k, "m_pollx", "v220", FLS, 1, 216, "v4", soff="s50", sleep=32)
    for u_ in uld: e(u_)
    k.label("m_uok")
    e("s_waitcnt vmcnt(0)")
    for n in range(4): e(f"ds_write_b128 v16, {v(200+4*n,4)} offset:{UO+512+1024*n}")
    k.stamp(5)
    e("v_and_b32 v4, 1, v2"); e("v_xor_b32 v4, 1, v4"); e("v_mul_u32_u24 v4, 4160, v4")
    e("v_lshrrev_b32 v5, 1, v2"); e("v_lshlrev_b32 v6, 2, v3"); e("v_sub_u32 v5, v6, v5")
    e("v_lshl_add_u32 v4, v5, 2, v4"); e("v_add_u32 v4, s39, v4")
    for mp in range(4): e(f"v_add_u32 v{24+mp}, {4*(1023 - 8 - 128*(2*mp+1))}, v4")
    e("v_lshlrev_b32 v5, 5, v2"); e("v_lshl_add_u32 v5, v3, 4, v5")
    e(f"s_add_u32 s43, s39, {UO+480}"); e("v_add_u32 v28, s43, v5")
    def Af(m): return 32 + 4*m
    def Bf(r): return 64 + 4*r
    def ac(cb): return v(96 + 4*cb, 4)
    for i in range(32): e(f"v_mov_b32 v{96+i}, 0")
    e("v_lshlrev_b32 v14, 16, v14")
    e("s_waitcnt lgkmcnt(0)")
    def rdA(m):
        o = 0 if m & 1 else 128
        e(f"ds_read2_b32 {v(Af(m),2)}, v{24+m//2} offset0:{o} offset1:{o+1}"); e(f"ds_read2_b32 {v(Af(m)+2,2)}, v{24+m//2} offset0:{o+2} offset1:{o+3}")
    def rdB(r): e(f"ds_read_b128 {v(Bf(r),4)}, v28 offset:{512*r}")
    for m in range(8): rdA(m); rdB(7-m)
    e("s_mov_b32 s40, 8")
    k.label("m_cloop")
    for r in range(24, 29): e(f"v_subrev_u32 v{r}, 64, v{r}")
    for m in range(8):
        for cb in (range(7, -1, -1) if m == 0 else range(m, 8)):
            if m == 0: e(f"s_waitcnt lgkmcnt({min(3*cb, 15)})")
            e(f"{MFMA} {ac(cb)}, {v(Af(m),4)}, {v(Bf(cb-m),4)}, {ac(cb)}")
        rdA(m); rdB(7-m)
    e("s_sub_u32 s40, s40, 1"); e("s_cmp_lg_u32 s40, 0"); e("s_cbranch_scc1 m_cloop")
    k.stamp(6)
    e("s_waitcnt lgkmcnt(0)")
    e("v_lshlrev_b32 v20, 5, v2"); e("v_lshl_add_u32 v20, v3, 3, v20")
    e(f"s_add_u32 s43, s39, {UO+512}"); e("v_add_u32 v21, s43, v20")
    for cb in range(8): e(f"ds_read_b64 {v(32+2*cb,2)}, v21 offset:{512*cb}")
    e("s_waitcnt lgkmcnt(0)")
    for c0 in (0, 4):
        A = [96 + 4*cb + 2*p for cb in range(c0, c0+4) for p in range(2)]
        U = [32 + 2*cb + p for cb in range(c0, c0+4) for p in range(2)]
        for i in range(8): unpack(k, f"v{72+2*i}", f"v{73+2*i}", f"v{U[i]}")
        for i in range(8): e(f"v_pk_fma_f32 {pr(A[i])}, {pr(72+2*i)}, v[14:15], {pr(A[i])} op_sel_hi:[1,0,1]")
        for i in range(8): e(f"v_cvt_pk_bf16_f32 v{U[i]}, v{A[i]}, v{A[i]+1}")
        for cb in range(c0, c0+4): e(f"ds_write_b64 v21, {v(32+2*cb,2)} offset:{512*cb}")
    for n in range(4): e(f"ds_read_b128 {v(64+4*n,4)}, v16 offset:{UO+512+1024*n}")
    for n in range(4):
        e(f"s_waitcnt lgkmcnt({3-n})")
        e(f"buffer_store_dwordx4 {v(64+4*n,4)}, v15, s[24:27], s45 offen offset:{1024*n} sc1")
    e("s_lshl_b32 s43, s34, 2"); e(f"s_add_u32 s43, s43, {FY}")
    set_flag(k, FLS, "s43", 0, "v4", "v5")
    k.stamp(7)
    k.label("m_L3prep")
    e("s_and_b32 s36, s41, 1"); e("s_lshl_b32 s36, s36, 2"); e("s_and_b32 s43, s42, 3"); e("s_add_u32 s36, s36, s43")
    e(f"v_mov_b32 v4, {W_GL}")
    lds_wait_ge(k, "m_wgl", "v4", 8, 4, 2, sleep=8)
    e(f"v_mov_b32 v4, {W_FX}")
    lds_wait(k, "m_wfw", "v4", "v5", sleep=2)
    k.stamp(8)
    k.srd(16, 14, 15, WOF_BYTES, WS_WOF)
    e("v_lshlrev_b32 v15, 4, v1")
    def wo_load(name):
        e("s_lshl_b32 s46, s46, 10"); e("s_mul_i32 s48, s36, 138240"); e("s_add_u32 s48, s48, s46"); e(f"s_add_u32 s46, s46, {IMG}")
        k.label(name)
        e("s_mov_b32 m0, s46"); e("s_add_u32 s46, s46, 1024")
        e("buffer_load_dwordx4 v15, s[16:19], s48 offen sc1 lds")
        e("s_add_u32 s48, s48, 1024"); e("s_sub_u32 s47, s47, 1"); e("s_cmp_lg_u32 s47, 0"); e(f"s_cbranch_scc1 {name}")
    e("s_mul_i32 s46, s33, 15"); e("s_add_u32 s46, s46, 42"); e("s_mov_b32 s47, 15")
    e("s_cmp_eq_u32 s33, 3"); e("s_cselect_b32 s46, 119, s46"); e("s_cselect_b32 s47, 16, s47")
    wo_load("m_wo1")
    e(f"v_mov_b32 v4, {W_R2}")
    lds_wait_ge(k, "m_wr3", "v4", 8, 4, 1, sleep=1)
    e("s_mul_i32 s46, s33, 21"); e("s_mov_b32 s47, 21")
    e("s_lshl_b32 s43, s33, 4"); e("s_add_u32 s43, s43, 55")
    e("s_cmp_ge_u32 s33, 2"); e("s_cselect_b32 s46, s43, s46"); e("s_cselect_b32 s47, 16, s47")
    wo_load("m_wo2")
    e("s_branch m_P3")

    k.label("m_gemm1")
    e("v_and_b32 v2, 15, v1"); e("v_lshrrev_b32 v3, 4, v1")
    e("v_lshlrev_b32 v12, 4, v1")
    e("v_add_u32 v13, 4096, v12")
    PL = 200
    def poll_loads():
        for i in range(7):
            e(f"buffer_load_dwordx4 {v(PL+4*i,4)}, v{12 if i < 4 else 13}, s[28:31], s72 offen offset:{(i%4)*1024} sc1")
    e("v_mov_b32 v10, 0")
    e("v_and_b32 v4, 31, v1"); e(f"v_lshlrev_b32 v4, 2, v4"); e(f"v_add_u32 v4, {W_EPOCH}, v4")
    e("ds_write_b32 v4, v10")
    e("s_waitcnt lgkmcnt(0)")
    k.srd(64, 12, 13, 256)
    e("s_cmp_lg_u32 s2, 0"); e("s_cbranch_scc1 m_noep")
    e("s_cmp_lg_u32 s32, 4"); e("s_cbranch_scc1 m_noep")
    e("s_memrealtime s[44:45]"); e("s_waitcnt lgkmcnt(0)"); e("s_or_b32 s44, s44, 1"); e("v_mov_b32 v4, s44")
    e("s_mov_b64 exec, 1")
    e("buffer_store_dword v4, v10, s[64:67], 0 offen sc1")
    e("s_mov_b64 exec, -1")
    k.label("m_noep")
    e("s_lshl_b32 s43, s35, 2"); e("s_add_u32 s43, s43, s33"); e(f"s_mul_i32 s72, s43, {14*512}")
    e("s_lshl_b32 s44, s36, 9"); e("s_add_u32 s73, s72, s44")
    e("s_lshl_b32 s74, s36, 6"); e("s_add_u32 s74, s74, s43"); e("s_lshl_b32 s74, s74, 2")
    e("v_and_b32 v4, 7, v1"); e("v_lshl_add_u32 v4, v3, 3, v4"); e("v_bfe_u32 v5, v1, 3, 1"); e("v_lshlrev_b32 v5, 3, v5")
    e("v_lshl_add_u32 v230, v4, 4, v5")
    k.srd(28, 14, 15, ST2_BYTES, WS_ST2)
    k.srd(24, 14, 15, ZF_BYTES, WS_Z2F)
    k.srd(20, 14, 15, ZF_BYTES, WS_Z1F)
    k.srd(FLS, 14, 15, FL_BYTES, WS_FL)
    for c in range(4):
        e(f"s_xor_b32 s43, s33, {c}")
        e("s_lshl_b32 s44, s36, 2"); e("s_add_u32 s43, s43, s44"); e("s_sub_u32 s43, s43, 2")
        e(f"s_cmp_lt_u32 s43, 54"); e(f"s_cselect_b32 s{50+c}, -1, 0")
        e("s_cselect_b32 s43, s43, 60")
        e(f"s_lshl_b32 s{46+c}, s43, 16")
        e("s_lshl_b32 s44, s35, 2"); e("s_add_u32 s44, s44, s33"); e("s_lshl_b32 s44, s44, 10")
        e(f"s_add_u32 s{46+c}, s{46+c}, s44")
    for b in range(2):
        for g in range(2):
            e("s_lshr_b32 s43, s33, 1"); e(f"s_xor_b32 s43, s43, {g}"); e("s_lshl_b32 s44, s36, 1"); e("s_add_u32 s43, s43, s44")
            e("s_lshl_b32 s44, s35, 3"); e("s_lshl_b32 s45, s33, 1"); e("s_add_u32 s44, s44, s45"); e(f"s_add_u32 s44, s44, {b}")
            e("s_mul_i32 s44, s44, 27"); e("s_add_u32 s44, s44, s43"); e("s_lshl_b32 s44, s44, 10")
            e("s_cmp_lt_u32 s43, 27"); e(f"s_cselect_b32 s{68+b*2+g}, s44, {HUGE}")
    e("v_and_b32 v4, 2, v1"); e("v_and_b32 v5, 1, v1")
    e("v_cmp_ne_u32 s[54:55], 0, v4"); e("v_cmp_ne_u32 s[56:57], 0, v5")
    e("s_lshl_b32 s43, s33, 5")
    e("v_add_u32 v4, s43, v2"); e("v_lshlrev_b32 v4, 7, v4")
    e("v_lshrrev_b32 v5, 1, v2"); e("v_xor_b32 v5, v5, v3")
    e("v_lshl_add_u32 v14, v5, 4, v4")
    e("v_xor_b32 v15, 64, v14")
    e("v_bfe_u32 v4, v1, 2, 2")
    e("v_lshl_add_u32 v5, v3, 3, v4"); e("v_lshlrev_b32 v5, 7, v5")
    e("v_and_b32 v6, 3, v1"); e("v_lshl_add_u32 v5, v6, 3, v5")
    e("v_add_u32 v5, 16384, v5")
    e("v_lshrrev_b32 v6, 1, v4"); e("v_and_b32 v7, 1, v3"); e("v_lshl_or_b32 v6, v7, 1, v6")
    e("v_xor_b32 v6, s33, v6")
    for c in range(4):
        e(f"v_xor_b32 v7, {c}, v6"); e(f"v_lshl_add_u32 v{16+c}, v7, 5, v5")
    for i in range(4): e(f"v_mov_b32 v{20+i}, 0x3f803f80")
    ACC = 104
    for i in range(ACC, 192): e(f"v_mov_b32 v{i}, 0")
    def xf(ks, b): return v(24 + 40*ks + 4*b, 4)
    def wfb(ks, h, c): return 24 + 40*ks + 8 + 16*h + 4*c
    def wf(ks, h, c): return v(wfb(ks, h, c), 4)
    def accb(h, b, c): return ACC + 32*h + (b*4 + c)*4
    def acc(h, b, c): return v(accb(h, b, c), 4)
    def rlist(ks):
        L = [f"ds_read_b128 {xf(ks,b)}, v{14+ks} offset:{2048*b}" for b in range(2)]
        for h in range(2):
            for c in range(4):
                for hh in range(2):
                    L.append(f"ds_read_b64_tr_b16 {v(wfb(ks,h,c)+2*hh,2)}, v{16+c} offset:{h*8192+ks*4096+hh*512}")
        return L
    def mlist(ks):
        L = []
        for h in range(2):
            L.append(f"{MFMA} {v(184+4*h,4)}, v[20:23], {wf(ks,h,0)}, {v(184+4*h,4)}")
            for c in range(4):
                for b in range(2):
                    if h == 0: L.append(f"{MFMA} {acc(h,b,c)}, {xf(ks,b)}, {wf(ks,h,c)}, {acc(h,b,c)}")
                    else:      L.append(f"{MFMA} {acc(h,b,c)}, {wf(ks,h,c)}, {xf(ks,b)}, {acc(h,b,c)}")
        return L
    def phase(ks, rd, extra=()):
        M = mlist(ks); R = list(rd); X = list(extra)
        for i, m in enumerate(M):
            e(m)
            if R: e(R.pop(0))
            if R and i < 4: e(R.pop(0))
            elif X and not R:
                for _ in range(3):
                    if X: e(X.pop(0))
        for x in X: e(x)
    bump = [f"v_add_u32 v{r}, 0x8000, v{r}" for r in range(14, 20)]
    wrap = [f"v_and_b32 v{r}, 0x1ffff, v{r}" for r in range(14, 20)]
    e("s_lshl_b32 s43, s33, 6"); e(f"s_add_u32 s43, s43, {MISC+1024}"); e("v_lshl_add_u32 v196, v2, 2, s43")
    for c in range(4):
        e(f"s_xor_b32 s43, s33, {c}"); e(f"s_lshl_b32 s43, s43, 6"); e(f"s_add_u32 s43, s43, {MISC+1024}")
        e(f"v_lshl_add_u32 v{232+c}, v2, 2, s43"); e(f"v_lshl_add_u32 v{236+c}, v3, 4, s43")
    e("s_lshl_b32 s43, s33, 7"); e(f"s_add_u32 s43, s43, {MISC}")
    e("v_lshl_add_u32 v7, v2, 2, s43"); e("v_lshl_add_u32 v8, v3, 4, s43"); e(f"v_mov_b32 v9, {W_EPOCH}")
    k.stamp(1)
    e("s_mov_b32 s40, 10")
    e("s_barrier")
    k.stamp(2)
    for r in rlist(0): e(r)
    k.label("m_loop1")
    e("s_waitcnt lgkmcnt(0)")
    phase(0, rlist(1), bump + wrap)
    e("s_sub_u32 s40, s40, 1"); e("s_cmp_eq_u32 s40, 0")
    e("s_waitcnt lgkmcnt(0)")
    e(f"s_cbranch_scc1 m_tail1")
    e("s_barrier")
    phase(1, rlist(0))
    e(f"s_branch m_loop1")
    k.label(f"m_tail1")
    phase(1, [])
    e("s_setprio 2")
    k.stamp(3)
    epoch_poll = None
    e("ds_write_b32 v196, v184"); e("ds_write_b32 v196, v188 offset:256")
    e("s_waitcnt lgkmcnt(0)")
    e("s_barrier")
    e("ds_read_b128 v[24:27], v8"); e("ds_read_b128 v[28:31], v8 offset:64")
    e("ds_read_b128 v[32:35], v8 offset:512"); e("ds_read_b128 v[36:39], v8 offset:576")
    for c in range(4): e(f"ds_read_b32 v{40+2*c}, v{232+c}")
    e("ds_read_b32 v229, v9")
    for c in range(4): e(f"ds_read_b128 {v(64+4*c,4)}, v{236+c} offset:256")
    e("ds_read_b32 v80, v7"); e("ds_read_b32 v82, v7 offset:64"); e("ds_read_b32 v84, v7 offset:512"); e("ds_read_b32 v86, v7 offset:576")
    e(f"v_mov_b32 v88, {f32(GC1)}"); e(f"v_mov_b32 v90, {f32(GC0)}")
    e("s_waitcnt lgkmcnt(8)")
    e("v_readfirstlane_b32 s3, v229")
    e("s_cmp_lg_u32 s36, 0"); e("s_cbranch_scc1 m_nomask")
    for c in range(4):
        e(f"v_and_b32 v{40+2*c}, s{50+c}, v{40+2*c}")
        for b in range(2):
            for r in range(4): e(f"v_and_b32 v{accb(0,b,c)+r}, s{50+c}, v{accb(0,b,c)+r}")
    k.label("m_nomask")
    def gelu_pairs(A):
        n = len(A); T = [48 + 2*i for i in range(n)]
        for i in range(n): e(f"v_pk_mul_f32 {pr(T[i])}, {pr(A[i])}, {pr(A[i])}")
        for i in range(n): e(f"v_pk_fma_f32 {pr(T[i])}, {pr(T[i])}, v[88:89], v[90:91] op_sel_hi:[1,0,0]")
        for i in range(n): e(f"v_pk_mul_f32 {pr(T[i])}, {pr(T[i])}, {pr(A[i])}")
        for i in range(n): e(f"v_exp_f32 v{T[i]}, v{T[i]}"); e(f"v_exp_f32 v{T[i]+1}, v{T[i]+1}")
        for i in range(n): e(f"v_pk_add_f32 {pr(T[i])}, {pr(T[i])}, 1.0 op_sel_hi:[1,0]")
        for i in range(n): e(f"v_rcp_f32 v{T[i]}, v{T[i]}"); e(f"v_rcp_f32 v{T[i]+1}, v{T[i]+1}")
        for i in range(n): e(f"v_pk_mul_f32 {pr(A[i])}, {pr(A[i])}, {pr(T[i])}")
    for c0 in (0, 2):
        A = [accb(0, b, c) + 2*p for c in (c0, c0+1) for b in range(2) for p in range(2)]
        M = [24 + 4*b + 2*p for c in (c0, c0+1) for b in range(2) for p in range(2)]
        C = [40 + 2*c for c in (c0, c0+1) for b in range(2) for p in range(2)]
        for i in range(8): e(f"v_pk_fma_f32 {pr(A[i])}, {pr(M[i])}, {pr(C[i])}, {pr(A[i])} op_sel_hi:[1,0,1] neg_lo:[1,0,0] neg_hi:[1,0,0]")
        for i in range(8): e(f"v_pk_mul_f32 {pr(A[i])}, {pr(A[i])}, {pr(M[i]+8)}")
        gelu_pairs(A)
        for i in range(8):
            n = (i % 4) * 2
            e(f"v_pk_add_f32 {pr(168+n)}, {pr(168+n)}, {pr(A[i])}")
            e(f"v_pk_fma_f32 {pr(176+n)}, {pr(A[i])}, {pr(A[i])}, {pr(176+n)}")
    e("s_nop 0")
    for n in range(8): e(f"v_add_f32_dpp v{48+n}, v{168+n}, v{168+n} row_ror:8 row_mask:0xf bank_mask:0x3")
    for n in range(8): e(f"v_add_f32_dpp v{48+n}, v{176+n}, v{176+n} row_ror:8 row_mask:0xf bank_mask:0xc")
    for n in range(4): e(f"v_add_f32_dpp v{168+n}, v{48+n}, v{48+n} row_half_mirror row_mask:0xf bank_mask:0x5")
    for n in range(4): e(f"v_add_f32_dpp v{168+n}, v{52+n}, v{52+n} row_half_mirror row_mask:0xf bank_mask:0xa")
    for n in range(2):
        e(f"v_cndmask_b32 v{172+n}, v{170+n}, v{168+n}, s[54:55]")
        e(f"v_cndmask_b32 v{174+n}, v{168+n}, v{170+n}, s[54:55]")
    e("s_nop 0")
    for n in range(2): e(f"v_add_f32_dpp v{176+n}, v{172+n}, v{174+n} quad_perm:[2,3,0,1] row_mask:0xf bank_mask:0xf")
    e("v_cndmask_b32 v172, v177, v176, s[56:57]"); e("v_cndmask_b32 v174, v176, v177, s[56:57]")
    e("s_nop 1")
    e("v_add_f32_dpp v228, v172, v174 quad_perm:[1,0,3,2] row_mask:0xf bank_mask:0xf")
    e("buffer_store_dwordx2 v[228:229], v230, s[28:31], s73 offen sc1")
    e("s_setprio 0")
    k.stamp(4)
    e("s_waitcnt lgkmcnt(0)")
    P1 = 168
    for c0 in (0, 2):
        A = [accb(1, b, c) + 2*p for c in (c0, c0+1) for b in range(2) for p in range(2)]
        M = [80 + 2*b for c in (c0, c0+1) for b in range(2) for p in range(2)]
        C = [64 + 4*c + 2*p for c in (c0, c0+1) for b in range(2) for p in range(2)]
        for i in range(8): e(f"v_pk_fma_f32 {pr(A[i])}, {pr(M[i])}, {pr(C[i])}, {pr(A[i])} op_sel_hi:[0,1,1] neg_lo:[1,0,0] neg_hi:[1,0,0]")
        for i in range(8): e(f"v_pk_mul_f32 {pr(A[i])}, {pr(A[i])}, {pr(M[i]+4)} op_sel_hi:[1,0]")
        gelu_pairs(A)
        i = 0
        for c in (c0, c0+1):
            for b in range(2):
                for p in range(2):
                    e(f"v_cvt_pk_bf16_f32 v{P1+b*8+c*2+p}, v{A[i]}, v{A[i]+1}"); i += 1
        if c0 == 0: poll_loads()
    e("s_bitcmp1_b32 s33, 0"); e("s_cbranch_scc0 m_noswap")
    for b in range(2):
        for g in range(2):
            for p in range(2):
                r0 = P1 + b*8 + g*4 + p
                e(f"v_swap_b32 v{r0}, v{r0+2}")
    k.label("m_noswap")
    e("s_setprio 2")
    e("s_mov_b32 s40, 0")
    e("s_waitcnt vmcnt(0)")
    for b in range(2):
        for g in range(2):
            e(f"buffer_store_dwordx4 {v(P1+b*8+g*4,4)}, v12, s[20:23], s{68+b*2+g} offen sc1")
    e("s_branch m_check")
    k.label("m_poll")
    poll_loads()
    e("s_waitcnt vmcnt(0)")
    k.label("m_check")
    e(f"v_xor_b32 v4, v{PL+1}, v229"); e(f"v_xor_b32 v5, v{PL+3}, v229")
    for i in range(1, 7):
        e(f"v_xor_b32 v9, v{PL+1+4*i}, v229"); e(f"v_xor_b32 v10, v{PL+3+4*i}, v229")
        e("v_or3_b32 v4, v4, v9, v10")
    e("v_or_b32 v4, v4, v5")
    e("v_cmp_ne_u32 vcc, 0, v4")
    e("s_add_u32 s40, s40, 1")
    e("s_nop 0")
    e("s_cbranch_vccz m_poll_done")
    e(f"s_cmp_lt_u32 s40, {SPIN}"); e("s_cbranch_scc1 m_poll")
    k.label("m_poll_done")
    k.stamp(5)
    for i in range(1, 7):
        e(f"v_add_f32 v{PL}, v{PL}, v{PL+4*i}"); e(f"v_add_f32 v{PL+2}, v{PL+2}, v{PL+2+4*i}")
    e(f"v_mov_b32 v{PL+1}, v{PL}"); e(f"v_mov_b32 v{PL+3}, v{PL+2}"); e("s_nop 1")
    e(f"v_permlane32_swap_b32 v{PL}, v{PL+1}"); e(f"v_permlane32_swap_b32 v{PL+2}, v{PL+3}"); e("s_nop 1")
    e(f"v_add_f32 v24, v{PL}, v{PL+1}"); e(f"v_add_f32 v26, v{PL+2}, v{PL+3}")
    e(f"v_mul_f32 v24, {f32(1/864)}, v24"); e(f"v_mul_f32 v26, {f32(1/864)}, v26")
    e("v_fma_f32 v26, -v24, v24, v26")
    ln_finish(k, "v24", "v26", "v25")
    e("s_lshl_b32 s43, s33, 8"); e(f"s_add_u32 s43, s43, {MISC+1536}")
    e("v_and_b32 v4, 31, v1"); e("v_lshl_add_u32 v4, v4, 2, s43"); e("v_lshl_add_u32 v5, v3, 5, s43")
    e("v_mul_f32 v24, v24, v26")
    e("ds_write_b32 v4, v24"); e("ds_write_b32 v4, v26 offset:128")
    e("ds_read_b128 v[28:31], v5"); e("ds_read_b128 v[32:35], v5 offset:16")
    e("ds_read_b128 v[36:39], v5 offset:128"); e("ds_read_b128 v[40:43], v5 offset:144")
    e("s_waitcnt lgkmcnt(0)")
    for c0 in (0, 2):
        A = [accb(0, b, c) + 2*p for c in (c0, c0+1) for b in range(2) for p in range(2)]
        M = [28 + (i % 4)*2 for i in range(8)]
        for i in range(8): e(f"v_pk_fma_f32 {pr(A[i])}, {pr(A[i])}, {pr(M[i]+8)}, {pr(M[i])} neg_lo:[0,0,1] neg_hi:[0,0,1]")
        for i in range(8): e(f"v_cvt_pk_bf16_f32 v{64+4*c0+i}, v{A[i]}, v{A[i]+1}")
        for c in (c0, c0+1): e(f"buffer_store_dwordx4 {v(64+4*c,4)}, v12, s[24:27], s{46+c} offen sc1")
    e("s_lshl_b32 s43, s36, 2")
    e("s_mov_b32 s44, 0x33221000"); e("s_mov_b32 s45, 0x00766554"); e("s_lshr_b64 s[44:45], s[44:45], s43"); e("s_and_b32 s46, s44, 15")
    e("s_mov_b32 s44, 0x44322110"); e("s_mov_b32 s45, 0x00776655"); e("s_lshr_b64 s[44:45], s[44:45], s43"); e("s_and_b32 s47, s44, 15")
    for r in (46, 47):
        e(f"s_lshl_b32 s43, s{r}, 2"); e("s_lshr_b32 s44, 0xca865310, s43"); e("s_and_b32 s44, s44, 15")
        e("s_sub_u32 s44, s36, s44"); e("s_lshl_b32 s44, s44, 4"); e("s_add_u32 s44, s44, s35"); e("s_lshl_b32 s44, s44, 2")
        e(f"s_lshl_b32 s{r}, s{r}, 8"); e(f"s_add_u32 s{r}, s{r}, s44")
    e("v_mov_b32 v6, s46"); e("v_mov_b32 v7, s47"); e("v_cmp_lt_u32 vcc, 31, v1"); e("v_and_b32 v8, 31, v1"); e("v_lshlrev_b32 v8, 11, v8")
    e("v_cndmask_b32 v6, v6, v7, vcc"); e("v_add_u32 v6, v6, v8")
    e(f"v_mov_b32 v4, {W_PF + 8}"); e("v_mov_b32 v5, 1"); e("v_mov_b32 v7, s3"); e(f"s_mov_b32 s44, {FZ2}")
    e("s_mov_b64 exec, 1")
    e("s_waitcnt vmcnt(0)")
    e("ds_add_rtn_u32 v8, v4, v5")
    e("s_waitcnt lgkmcnt(0)")
    e("v_readfirstlane_b32 s43, v8")
    e("s_mov_b64 exec, -1")
    e("s_cmp_lg_u32 s43, 3"); e("s_cbranch_scc1 m_P2")
    e("buffer_store_dword v7, v6, s[60:63], s44 offen sc1")
    gen_p2(k)
    gen_p3(k)
    gen_helper(k, epoch_poll)
    k.label("m_end")
    e("s_endpgm")
    return k.text(256, nsgpr=100)

def gen_p2(k):
    e = k.e
    k.label("m_P2")
    k.stamp(6)
    e("s_load_dwordx2 s[6:7], s[0:1], 80")
    e("s_lshr_b32 s35, s41, 1"); e("s_lshl_b32 s35, s35, 3"); e("s_lshr_b32 s43, s42, 2"); e("s_add_u32 s35, s35, s43")
    e("s_and_b32 s36, s42, 3")
    e("s_and_b32 s43, s41, 1"); e("s_mul_i32 s43, s43, 27"); e("s_mul_i32 s44, s36, 7"); e("s_add_u32 s37, s43, s44")
    e("v_and_b32 v240, 15, v1"); e("v_lshrrev_b32 v241, 4, v1"); e("v_mov_b32 v245, v1")
    e("v_lshrrev_b32 v2, 5, v1"); e("v_lshlrev_b32 v2, 3, v2"); e("v_bfe_u32 v3, v1, 3, 2"); e("v_add_u32 v2, v2, v3")
    e("v_lshlrev_b32 v2, 12, v2")
    e("v_and_b32 v3, 7, v1"); e("v_xor_b32 v3, v3, v241")
    e("v_lshl_add_u32 v242, v3, 4, v2")
    e("v_xor_b32 v3, 4, v3")
    e("v_lshl_add_u32 v243, v3, 4, v2"); e(f"v_add_u32 v243, {16*4096 - 1024}, v243")
    e("v_lshlrev_b32 v244, 4, v1")
    e("s_lshl_b32 s43, s35, 18"); e("s_lshl_b32 s44, s33, 10"); e("s_add_u32 s48, s43, s44")
    e(f"s_add_u32 s49, s48, {4*4096}"); e(f"s_add_u32 s50, s48, {32*4096}"); e(f"s_add_u32 s51, s48, {36*4096}")
    e("s_lshl_b32 s43, s37, 16"); e("s_lshl_b32 s44, s33, 14"); e("s_add_u32 s52, s43, s44")
    for c in range(1, 7): e(f"s_add_u32 s{52+c}, s52, {c*65536}")
    e("s_cmp_eq_u32 s36, 3"); e(f"s_cselect_b32 s58, {HUGE}, s58")
    e(f"s_mul_i32 s39, s33, {RING2}")
    k.srd(16, 10, 11, 2048*4096)
    k.srd(20, 14, 15, ZF_BYTES, WS_Z2F)
    k.srd(24, 14, 15, ZF_BYTES, WS_Z1F)
    k.srd(28, 14, 15, ZF_BYTES, WS_HF)
    def Z(st, c): return v(112 + st*28 + c*4, 4)
    def acc(c, sg): return v((c*4 + sg)*4, 4)
    def wf(sg): return v(224 + 4*sg, 4)
    def issueZ(n):
        if n % 4 == 0 and n:
            for c in range(7): e(f"s_add_u32 s{52+c}, s{52+c}, 4096")
        for c in range(7): k.vmem(f"buffer_load_dwordx4 {Z(n%4,c)}, v244, s[20:23], s{52+c} offen offset:{(n%4)*1024} sc1", f"Z{n}")
    def issueA(c):
        for t in range(4):
            e(f"s_add_u32 m0, s39, {(c%NSLOT)*8192 + t*2048}")
            e("s_nop 0")
            k.vmem(f"buffer_load_dwordx4 v242, s[16:19], s{48+t} offen lds", f"A{c}")
            k.vmem(f"buffer_load_dwordx4 v243, s[16:19], s{48+t} offen offset:1024 lds", f"A{c}")
        for t in range(4): e(f"s_add_u32 s{48+t}, s{48+t}, 128")
    k.vm = []
    e("v_lshrrev_b32 v5, 1, v240"); e("v_xor_b32 v5, v5, v241")
    e("v_lshlrev_b32 v4, 7, v240"); e("v_lshl_add_u32 v4, v5, 4, v4"); e("v_add_u32 v4, s39, v4")
    for sg in range(4):
        e(f"s_xor_b32 s43, s33, {sg}"); e("s_lshl_b32 s43, s43, 11")
        e(f"v_add_u32 v{246+sg}, s43, v4")
        e(f"v_xor_b32 v{250+sg}, 64, v{246+sg}")
    e("s_setprio 0")
    def issueZ1(n, c):
        if n % 4 == 0 and n: e(f"s_add_u32 s{52+c}, s{52+c}, 4096")
        off = (n % 4) * 1024
        if n == 3: e(f"s_sub_u32 s47, s{52+c}, 4096")
        k.vmem(f"buffer_load_dwordx4 {Z(n%4,c)}, v244, s[20:23], s{47 if n == 3 else 52+c} offen offset:{off} sc1", f"Z{n}_{c}")
    def issueA1(c, t):
        if c % NSLOT == 2: e(f"s_add_u32 m0, s38, {t*2048}")
        else: e(f"s_add_u32 m0, s39, {(c%NSLOT)*8192 + t*2048}")
        e("s_nop 0")
        k.vmem(f"buffer_load_dwordx4 v242, s[16:19], s{48+t} offen lds", f"A{c}")
        k.vmem(f"buffer_load_dwordx4 v243, s[16:19], s{48+t} offen offset:1024 lds", f"A{c}")
        e(f"s_add_u32 s{48+t}, s{48+t}, 128")
    e("s_lshl_b32 s38, s33, 13"); e(f"s_add_u32 s38, s38, {XB}"); e("s_sub_u32 s59, s38, s39")
    for t in range(4): e(f"s_add_u32 s{48+t}, s{48+t}, 384")
    def wf1(sg): return v(112 + 3*28 + 4*sg, 4)
    e(f"v_mov_b32 v4, {W_FX + 12}")
    lds_wait(k, "m_wpf0", "v4", "v5", sleep=1)
    for sg in range(4): e(f"ds_read_b128 {wf(sg)}, v{246+sg}")
    for sg in range(4): e(f"ds_read_b128 {wf1(sg)}, v{250+sg}")
    e("s_waitcnt lgkmcnt(0)")
    k.vm = []
    for t in range(4): issueA1(3, t)
    e(f"v_mov_b32 v4, {W_PF}")
    lds_wait(k, "m_wpf", "v4", "v5", sleep=1)
    k.srd(64, 6, 7, 4096)
    e("s_setprio 3")
    k.stamp(7); k.cyc(12)
    for n in range(3):
        for c in range(7): issueZ1(n, c)
    for n in range(16):
        c, ks = n >> 1, n & 1
        W = wf1 if n == 1 else wf
        if ks == 0 and f"A{c}" in k.vm: k.wait_vm(f"A{c}")
        if n >= 2:
            base = 250 if ks else 246
            if c % NSLOT == 2:
                for sg in range(4): e(f"v_add_u32 v{base+sg}, s59, v{base+sg}")
            for sg in range(4):
                e(f"ds_read_b128 {wf(sg)}, v{base+sg} offset:{0 if c % NSLOT == 2 else (c%NSLOT)*8192}")
            if c % NSLOT == 2:
                for sg in range(4): e(f"v_subrev_u32 v{base+sg}, s59, v{base+sg}")
        if n == 15:
            e("v_add_u32 v130, s39, v244"); e("v_add_u32 v131, s38, v244")
            e(f"v_add_u32 v133, {W_R1 - W_GL}, v254")
            if f"Z{n}_6" in k.vm: k.wait_vm(f"Z{n}_6")
            e("s_waitcnt lgkmcnt(0)")
            def pw(sg, cc): return (f"ds_write_b128 v131, {acc(cc,sg)} offset:{cc*1024}" if sg == 3 else f"ds_write_b128 v130, {acc(cc,sg)} offset:{((sg-1)*7+cc)*1024}")
            pend = []
            for sg in (1, 2, 3, 0):
                for cc in range(7):
                    e(f"{MFMA} {acc(cc,sg)}, {Z(n%4,cc)}, {wf(sg)}, {acc(cc,sg)}")
                    if len(pend) > 8 or (sg == 0 and pend and len(pend) + cc > 8): e(pend.pop(0))
                    if sg: pend.append(pw(sg, cc))
            for p_ in pend: e(p_)
            e("ds_write_b32 v133, v255")
            continue
        for cc in range(7):
            if f"Z{n}_{cc}" in k.vm: k.wait_vm(f"Z{n}_{cc}")
            if n == 0 and cc == 0: k.stamp(8)
            for sg in range(4):
                if cc == 0 and n >= 2: e(f"s_waitcnt lgkmcnt({3-sg})")
                e(f"{MFMA} {acc(cc,sg)}, {Z(n%4,cc)}, {W(sg)}, {'0' if n == 0 else acc(cc,sg)}")
            if n + 4 < 16 and n != 1: issueZ1(n + 4, cc)
            if ks == 1 and 0 < c and c + NSLOT < 8 and cc in (0, 2, 4, 6): issueA1(c + NSLOT, cc // 2)
        if n == 1:
            for cc in range(7): issueZ1(3, cc)
            for cc in range(7): issueZ1(5, cc)
        if n == 12:
            e("s_lshl_b32 s43, s35, 2"); e("s_add_u32 s43, s43, s33"); e("s_mul_i32 s44, s43, 27648")
            for cc in range(7):
                e(f"s_add_u32 s45, s37, {cc}"); e("s_lshr_b32 s46, s45, 1"); e("s_lshl_b32 s46, s46, 10"); e("s_and_b32 s45, s45, 1"); e("s_lshl_b32 s45, s45, 3")
                e("s_add_u32 s45, s45, s46"); e(f"s_add_u32 s{52+cc}, s45, s44")
            e("s_cmp_eq_u32 s36, 3"); e(f"s_cselect_b32 s58, {HUGE}, s58")
            for cc in range(7): k.vmem(f"buffer_load_dwordx2 {v(112+2*cc,2)}, v244, s[24:27], s{52+cc} offen sc1", "z1")
            e("s_lshr_b32 s44, s43, 1"); e("s_lshl_b32 s44, s44, 5"); e("s_and_b32 s45, s43, 1"); e("s_lshl_b32 s45, s45, 2"); e("s_add_u32 s44, s44, s45")
            e("v_lshrrev_b32 v128, 2, v240"); e("v_and_b32 v129, 3, v240"); e("v_lshl_add_u32 v128, v128, 3, v129"); e("v_add_u32 v128, s44, v128")
            e("v_lshlrev_b32 v128, 1, v128")
            k.vmem("buffer_load_ushort v126, v128, s[64:67], 0 offen", "z1")
        if n == 8:
            e("s_lshl_b32 s43, s33, 2"); e(f"s_add_u32 s43, s43, {W_GL}"); e("v_mov_b32 v254, s43"); e("v_mov_b32 v255, 1")
            e("ds_write_b32 v254, v255")
        if n == 12:
            e("v_mov_b32 v255, 2"); e("ds_write_b32 v254, v255")
    k.stamp(9); k.cyc(13)
    T = 140
    e("s_xor_b32 s43, s33, 1"); e(f"s_mul_i32 s43, s43, {RING2}"); e("v_add_u32 v130, s43, v244")
    e("s_xor_b32 s43, s33, 2"); e(f"s_mul_i32 s43, s43, {RING2}"); e("v_add_u32 v131, s43, v244")
    e("s_xor_b32 s43, s33, 3"); e("s_lshl_b32 s43, s43, 13"); e(f"s_add_u32 s43, s43, {XB}"); e("v_add_u32 v132, s43, v244")
    e(f"v_mov_b32 v134, {W_R1}")
    e("s_waitcnt vmcnt(0)")
    k.vm = []
    e("v_lshlrev_b32 v126, 16, v126")
    A = [c*16 + 2*p for c in range(7) for p in range(2)]
    Z1 = [c*16 + 4 + 2*p for c in range(7) for p in range(2)]
    e("s_waitcnt lgkmcnt(0)")
    for i in range(14): unpack(k, f"v{Z1[i]}", f"v{Z1[i]+1}", f"v{112+i}")
    for i in range(14): e(f"v_pk_add_f32 {pr(A[i])}, {pr(A[i])}, v[126:127] op_sel_hi:[1,0]")
    lds_wait_ge(k, "m_wr1", "v134", 136, 4, 1)
    for sg in range(3):
        for c in range(7): e(f"ds_read_b128 {v(T+(sg*7+c)*4,4)}, v{130+sg} offset:{(7*1024 if sg == 1 else 0) + c*1024}")
    for sg in range(3):
        e(f"s_waitcnt lgkmcnt({14 - 7*sg})")
        if sg == 2: e("ds_write_b32 v133, v255 offset:16")
        for i in range(14): e(f"v_pk_add_f32 {pr(A[i])}, {pr(A[i])}, {pr(T+sg*28+2*i)}")
    for i in range(14): e(f"v_pk_mul_f32 {pr(A[i])}, {pr(A[i])}, {pr(Z1[i])}")
    for i in range(14): e(f"v_cvt_pk_bf16_f32 v{200+i}, v{A[i]}, v{A[i]+1}")
    e("s_bitcmp1_b32 s37, 0"); e("s_cbranch_scc1 m_hodd")
    for c in (0, 2, 4): e(f"buffer_store_dwordx4 {v(200+2*c,4)}, v244, s[28:31], s{52+c} offen sc1")
    e(f"buffer_store_dwordx2 {v(212,2)}, v244, s[28:31], s58 offen sc1")
    e("s_branch m_hdone")
    k.label("m_hodd")
    e(f"buffer_store_dwordx2 {v(200,2)}, v244, s[28:31], s52 offen sc1")
    for c in (1, 3): e(f"buffer_store_dwordx4 {v(200+2*c,4)}, v244, s[28:31], s{52+c} offen sc1")
    e("s_cmp_eq_u32 s36, 3"); e("s_cbranch_scc1 m_hodd6")
    e(f"buffer_store_dwordx4 {v(210,4)}, v244, s[28:31], s57 offen sc1")
    e("s_branch m_hdone")
    k.label("m_hodd6")
    e(f"buffer_store_dwordx2 {v(210,2)}, v244, s[28:31], s57 offen sc1")
    k.label("m_hdone")
    e("v_mov_b32 v1, v245")
    e("s_and_b32 s43, s41, 1"); e("s_lshl_b32 s43, s43, 2"); e("s_add_u32 s36, s36, s43")
    e(f"v_mov_b32 v4, {W_PF + 4}"); e("v_mov_b32 v5, 1"); e("v_lshlrev_b32 v6, 7, v1"); e("v_mov_b32 v7, s3")
    e("s_lshl_b32 s44, s35, 10"); e("s_lshl_b32 s45, s36, 2"); e("s_add_u32 s44, s44, s45"); e(f"s_add_u32 s44, s44, {FH2}")
    e("s_mov_b64 exec, 1")
    e("s_waitcnt vmcnt(0)")
    e("ds_add_rtn_u32 v8, v4, v5")
    e("s_waitcnt lgkmcnt(0)")
    e("v_readfirstlane_b32 s43, v8")
    e("s_mov_b64 exec, 0xff")
    e("s_cmp_lg_u32 s43, 3"); e("s_cbranch_scc1 m_nopub")
    e("buffer_store_dword v7, v6, s[60:63], s44 offen sc1")
    k.label("m_nopub")
    e("s_mov_b64 exec, -1")
    e("s_setprio 0")
    e("v_and_b32 v2, 15, v1"); e("v_lshrrev_b32 v3, 4, v1")
    e("s_mov_b32 s47, 0"); e("s_mov_b32 s46, 0")

def gen_p3(k):
    e = k.e
    k.label("m_P3")
    k.stamp(10)
    e("s_lshr_b32 s34, s32, 2")
    e("v_lshlrev_b32 v15, 4, v1")
    k.srd(16, 14, 15, WOF_BYTES, WS_WOF)
    k.srd(20, 14, 15, ZF_BYTES, WS_HF)
    k.srd(24, 4, 5, 2048*1280)
    k.srd(28, 98, 99, 2048*1280)
    def H(g, sg): return v(16 + (g*2 + sg)*4, 4)
    def WF(g, db): return v(72 + (g*5 + db)*4, 4)
    def acc(sg, db): return v(212 + (sg*5 + db)*4, 4)
    e("s_cmp_eq_u32 s33, 3"); e(f"s_cselect_b32 s45, {HUGE}, 6144")
    e("s_and_b32 s43, s33, 1"); e("s_lshl_b32 s44, s34, 1"); e("s_add_u32 s57, s43, s44")
    e("s_lshr_b32 s58, s33, 1"); e("s_mul_i32 s58, s58, 3")
    e("s_lshr_b32 s43, s57, 1"); e("s_lshl_b32 s43, s43, 5"); e("s_and_b32 s44, s57, 1"); e("s_lshl_b32 s44, s44, 2"); e("s_add_u32 s59, s43, s44")
    e("s_lshl_b32 s43, s35, 6"); e("s_add_u32 s43, s43, s59")
    e("v_lshrrev_b32 v6, 2, v2"); e("v_and_b32 v7, 3, v2"); e("v_lshl_add_u32 v6, v6, 3, v7"); e("v_add_u32 v6, s43, v6")
    e("v_mul_u32_u24 v6, 1280, v6"); e("v_lshl_add_u32 v6, v3, 3, v6"); e("s_mul_i32 s43, s36, 160"); e("v_add_u32 v14, s43, v6")
    for i in range(3):
        e(f"s_add_u32 s43, s58, {i}"); e(f"s_min_u32 s{68+i}, s43, 4")
        e(f"s_lshl_b32 s{72+i}, s{68+i}, 5")
    k.srd(64, 14, 15, XT_BYTES, WS_YT)
    e("s_lshl_b32 s43, s35, 2"); e("s_lshl_b32 s44, s34, 1"); e("s_add_u32 s43, s43, s44"); e("s_mul_i32 s43, s43, 27"); e("s_mul_i32 s44, s33, 7"); e("s_add_u32 s43, s43, s44")
    e("s_lshl_b32 s46, s43, 10"); e("s_add_u32 s47, s46, 27648")
    e("s_add_u32 s48, s46, 4096"); e("s_add_u32 s49, s47, 4096"); e("s_add_u32 s50, s46, s45"); e("s_add_u32 s51, s47, s45")
    e("s_mul_i32 s43, s33, 35840"); e(f"s_add_u32 s43, s43, {IMG}"); e("v_add_u32 v252, s43, v15")
    e("s_cmp_eq_u32 s33, 3"); e("s_cselect_b32 s43, 5120, 0"); e("v_subrev_u32 v253, s43, v252")
    e("v_and_b32 v4, 7, v1"); e("v_lshlrev_b32 v4, 2, v4")
    e("s_lshl_b32 s44, s35, 10"); e("s_lshl_b32 s43, s36, 7"); e("s_add_u32 s44, s44, s43"); e(f"s_add_u32 s44, s44, {FH2}")
    e("v_min_u32 v254, 39, v1"); e("v_lshlrev_b32 v254, 3, v254")
    e("s_mul_i32 s52, s36, 320"); e(f"s_add_u32 s52, s52, {FY}")
    e("s_cmp_ge_u32 s32, 4"); e("s_cbranch_scc1 m_nwv")
    e("s_waitcnt vmcnt(0)")
    k.label("m_nwv")
    e("s_barrier")
    k.stamp(4)
    e("s_cmp_lg_u32 s32, 3"); e("s_cbranch_scc1 m_nhp")
    e("buffer_load_dword v5, v4, s[60:63], s44 offen sc1")
    k.label("m_nhp")
    e("s_cmp_lg_u32 s32, 2"); e("s_cbranch_scc1 m_nyp")
    e("buffer_load_dwordx2 v[248:249], v254, s[60:63], s52 offen sc1")
    k.label("m_nyp")
    for g in range(7):
        for db in range(5): e(f"ds_read_b128 {WF(g,db)}, v{253 if g == 6 else 252} offset:{g*5120 + db*1024}")
    for i in range(3): e(f"buffer_load_dwordx2 {v(8+2*i,2)}, v14, s[24:27], s{72+i} offen")
    e("v_lshrrev_b32 v244, 3, v1"); e("v_lshlrev_b32 v244, 12, v244"); e("v_and_b32 v245, 7, v1"); e("v_lshl_add_u32 v244, v245, 4, v244")
    e("s_mul_i32 s53, s36, 80"); e("s_lshl_b32 s43, s32, 3"); e("s_add_u32 s53, s53, s43"); e("s_lshl_b32 s53, s53, 12"); e("s_lshl_b32 s43, s35, 7"); e("s_add_u32 s53, s53, s43")
    e("s_cmp_lt_u32 s32, 2"); e(f"s_cselect_b32 s54, {64*4096}, 0"); e("s_cselect_b32 s55, 8192, 0"); e("s_add_u32 s54, s54, s53")
    e("s_lshl_b32 s43, s32, 10"); e(f"s_add_u32 s43, s43, {YTILE}"); e("v_add_u32 v246, s43, v15"); e("v_add_u32 v247, s55, v246")
    e("s_cmp_lg_u32 s32, 3"); e("s_cbranch_scc1 m_hw")
    poll_flags(k, "m_pollh", "v4", FLS, 1, 5, "v6", soff="s44", sleep=2, preloaded=True)
    k.label("m_hw")
    e("s_cmp_lg_u32 s32, 2"); e("s_cbranch_scc1 m_noy")
    poll_flags(k, "m_polly", "v254", FLS, 2, 248, "v5", soff="s52", sleep=8, preloaded=True)
    k.label("m_noy")
    e("s_waitcnt lgkmcnt(0)")
    e("s_barrier")
    k.stamp(11)
    k.vm = []
    k.vmem("buffer_load_dwordx4 v[236:239], v244, s[64:67], s53 offen sc1", "y")
    k.vmem("buffer_load_dwordx4 v[240:243], v244, s[64:67], s54 offen sc1", "y")
    for g in range(7):
        for sg in range(2):
            so = 46 + sg + (0 if g < 4 else 2 if g < 6 else 4)
            k.vmem(f"buffer_load_dwordx4 {H(g,sg)}, v15, s[20:23], s{so} offen offset:{(g%4)*1024 if g < 6 else 0} sc1", f"h{g}")
    e("s_mul_i32 s43, s32, 10240"); e("v_add_u32 v252, s43, v15")
    e("s_mul_i32 s43, s34, 40960"); e("s_and_b32 s44, s33, 1"); e("s_mul_i32 s44, s44, 5120"); e("s_add_u32 s43, s43, s44")
    e("v_bfe_u32 v4, v1, 2, 2"); e("v_lshl_add_u32 v4, v3, 2, v4"); e("v_lshlrev_b32 v4, 7, v4")
    e("v_and_b32 v5, 3, v1"); e("v_lshl_add_u32 v4, v5, 4, v4")
    e("s_lshl_b32 s44, s59, 1"); e(f"s_add_u32 s44, s44, {YTILE}"); e("v_add_u32 v4, s44, v4")
    for i in range(3):
        e(f"s_lshl_b32 s44, s{68+i}, 10"); e("s_add_u32 s44, s44, s43"); e(f"v_add_u32 v{253+i}, s44, v15")
        e(f"s_lshl_b32 s44, s{68+i}, 11"); e(f"v_add_u32 v{5+i}, s44, v4")
    for g in range(7):
        k.wait_vm(f"h{g}")
        if g == 0: e("ds_write_b128 v246, v[236:239]"); e("ds_write_b128 v247, v[240:243]"); e("s_waitcnt lgkmcnt(0)")
        for db in range(5):
            for sg in range(2):
                e(f"{MFMA} {acc(sg,db)}, {WF(g,db)}, {H(g,sg)}, {'0' if g == 0 else acc(sg,db)}")
    e("s_nop 2")
    e("s_nop 1")
    for db in range(5):
        for sg in range(2): e(f"ds_write_b128 v252, {acc(sg,db)} offset:{(sg*5+db)*1024}")
    for i in range(6): unpack(k, f"v{96+2*i}", f"v{97+2*i}", f"v{8+i}")
    e("s_waitcnt lgkmcnt(0)")
    e("s_barrier")
    for i in range(3): e(f"ds_read_b64_tr_b16 {v(24+2*i,2)}, v{5+i}")
    for i in range(3):
        for kq in range(4): e(f"ds_read_b128 {v(32+(i*4+kq)*4,4)}, v{253+i} offset:{kq*10240}")
    e("s_waitcnt lgkmcnt(12)")
    for n in range(6): unpack(k, f"v{112+2*n}", f"v{113+2*n}", f"v{24+n}")
    for n in range(6): e(f"v_pk_add_f32 {pr(96+2*n)}, {pr(96+2*n)}, {pr(112+2*n)}")
    e("s_waitcnt lgkmcnt(0)")
    A = [32 + i*16 + 2*p for i in range(3) for p in range(2)]
    for n in range(6): e(f"v_pk_add_f32 {pr(A[n])}, {pr(A[n])}, {pr(A[n]+4)}"); e(f"v_pk_add_f32 {pr(A[n]+8)}, {pr(A[n]+8)}, {pr(A[n]+12)}")
    for n in range(6): e(f"v_pk_add_f32 {pr(A[n])}, {pr(A[n])}, {pr(A[n]+8)}")
    for n in range(6): e(f"v_pk_add_f32 {pr(A[n])}, {pr(A[n])}, {pr(96+2*n)}")
    for n in range(6): e(f"v_cvt_pk_bf16_f32 v{24+n}, v{A[n]}, v{A[n]+1}")
    for i in range(3): e(f"buffer_store_dwordx2 {v(24+2*i,2)}, v14, s[28:31], s{72+i} offen")
    e("s_lshl_b32 s43, s2, 3"); e("s_add_u32 s43, s43, s32"); e("s_cmp_lg_u32 s43, 4"); e("s_cbranch_scc1 m_fin")
    k.srd(64, 12, 13, 256)
    e("v_mov_b32 v4, 0"); e("s_mov_b64 exec, 1")
    e("buffer_store_dword v4, v4, s[64:67], 0 offen sc1")
    k.label("m_fin")
    k.end(0)

def gen_helper(k, epoch_poll):
    e = k.e
    k.label("m_helper")
    e("s_lshl_b32 s35, s41, 2"); e("s_add_u32 s35, s35, s42"); e("s_sub_u32 s35, s35, 28")
    e("v_and_b32 v2, 15, v1"); e("v_lshrrev_b32 v3, 4, v1")
    e("s_lshl_b32 s43, s32, 3")
    e("v_add_u32 v4, s43, v3")
    e("s_lshl_b32 s44, s35, 6")
    e("v_add_u32 v5, s44, v4"); e("v_mul_u32_u24 v5, 1280, v5"); e("v_lshl_add_u32 v5, v2, 4, v5")
    e("v_add_u32 v6, 5120, v5")
    e("v_mul_u32_u24 v7, 1296, v4"); e("v_lshl_add_u32 v7, v2, 4, v7")
    e("v_mov_b32 v110, 0")
    e("v_and_b32 v4, 31, v1"); e(f"v_lshlrev_b32 v4, 2, v4"); e(f"v_add_u32 v4, {W_EPOCH}, v4")
    e("s_cmp_lg_u32 s32, 4"); e("s_cbranch_scc1 m_hnoclr")
    e("ds_write_b32 v4, v110")
    k.label("m_hnoclr")
    e("s_waitcnt lgkmcnt(0)")
    k.srd(16, 4, 5, 2048*1280)
    k.srd(28, 14, 15, XT_BYTES, WS_XNT)
    k.srd(64, 12, 13, 256)
    k.srd(FLS, 14, 15, FL_BYTES, WS_FL)
    k.srd(20, 96, 97, 864*1280)
    k.vm = []
    for g in range(2):
        for n in range(5):
            k.vmem(f"buffer_load_dwordx4 {v(8+g*20+n*4,4)}, v{5+g}, s[16:19], 0 offen offset:{n*256}", f"x{g}")
    XB = (48, 128)
    for g in range(2):
        k.stamp(1+2*g)
        k.wait_vm(f"x{g}")
        if g == 0: k.vmem("buffer_load_dword v111, v110, s[64:67], 0 offen sc1", "ep")
        X = XB[g]; src = 8 + g*20; M, R = 112 + 4*g, 114 + 4*g
        for n in range(20): unpack(k, f"v{X+2*n}", f"v{X+2*n+1}", f"v{src+n}")
        e(f"v_pk_add_f32 v[88:89], {pr(X)}, {pr(X+4)}"); e(f"v_pk_add_f32 v[90:91], {pr(X+2)}, {pr(X+6)}")
        for n in range(4, 20): e(f"v_pk_add_f32 {pr(88+2*(n%2))}, {pr(88+2*(n%2))}, {pr(X+2*n)}")
        e("v_pk_add_f32 v[88:89], v[88:89], v[90:91]"); e("s_nop 0"); e("v_add_f32 v88, v88, v89")
        for sh in (8, 4, 2, 1):
            e("s_nop 1"); e(f"v_add_f32_dpp v88, v88, v88 row_ror:{sh} row_mask:0xf bank_mask:0xf")
        e(f"v_mul_f32 v{M}, {f32(1/640)}, v88")
        for a_ in range(4): e(f"v_mov_b32 v{92+a_}, 0")
        for n0 in range(0, 20, 4):
            for a_ in range(4): e(f"v_pk_add_f32 {pr(96+2*a_)}, {pr(X+2*(n0+a_))}, {pr(M)} op_sel_hi:[1,0] neg_lo:[0,1] neg_hi:[0,1]")
            for a_ in range(4): e(f"v_pk_fma_f32 {pr(92+2*(a_%2))}, {pr(96+2*a_)}, {pr(96+2*a_)}, {pr(92+2*(a_%2))}")
        e("v_pk_add_f32 v[92:93], v[92:93], v[94:95]"); e("s_nop 0"); e("v_add_f32 v92, v92, v93")
        for sh in (8, 4, 2, 1):
            e("s_nop 1"); e(f"v_add_f32_dpp v92, v92, v92 row_ror:{sh} row_mask:0xf bank_mask:0xf")
        e(f"v_mul_f32 v{R}, {f32(1/640)}, v92")
        ln_finish(k, f"v{M}", f"v{R}", "v89")
    e("s_mov_b32 s40, 0")
    k.label("m_hep")
    e("s_waitcnt vmcnt(0)")
    e("v_readfirstlane_b32 s3, v111")
    e("s_add_u32 s40, s40, 1")
    e("s_cmp_lg_u32 s3, 0"); e("s_cbranch_scc1 m_hepok")
    e("buffer_load_dword v111, v110, s[64:67], 0 offen sc1")
    e(f"s_cmp_lt_u32 s40, {SPIN}"); e("s_cbranch_scc1 m_hep")
    k.label("m_hepok")
    k.vm = []
    k.srd(24, 14, 15, 32768, WS_ST1)
    for r in (113, 115, 117, 119): e(f"v_mov_b32 v{r}, v111")
    e("s_lshl_b32 s43, s35, 10"); e("s_lshl_b32 s44, s32, 7"); e("s_add_u32 s43, s43, s44"); e("v_lshlrev_b32 v5, 4, v3")
    e("v_cmp_eq_u32 vcc, 0, v2"); e("s_and_saveexec_b64 s[44:45], vcc")
    e("buffer_store_dwordx4 v[112:115], v5, s[24:27], s43 offen sc1"); e("buffer_store_dwordx4 v[116:119], v5, s[24:27], s43 offen offset:64 sc1")
    e("s_mov_b64 exec, -1")
    k.stamp(2)
    e("v_lshlrev_b32 v120, 4, v1")
    e("s_lshl_b32 s43, s35, 3"); e("s_add_u32 s43, s43, s32"); e("s_mul_i32 s43, s43, 4352")
    for n in range(4): e(f"buffer_load_dwordx4 v[124:127], v120, s[20:23], s43 offen offset:{n*1024}")
    e("s_add_u32 s43, s43, 4096")
    e(f"buffer_load_dwordx4 v[124:127], v120, s[20:23], s43 offen")
    for g in range(2):
        X = XB[g]; src = 8 + g*20; M, R = 112 + 4*g, 114 + 4*g
        for n in range(20): e(f"v_pk_add_f32 {pr(X+2*n)}, {pr(X+2*n)}, {pr(M)} op_sel_hi:[1,0] neg_lo:[0,1] neg_hi:[0,1]")
        for n in range(20): e(f"v_pk_mul_f32 {pr(X+2*n)}, {pr(X+2*n)}, {pr(R)} op_sel_hi:[1,0]")
        for n in range(20): e(f"v_cvt_pk_bf16_f32 v{src+n}, v{X+2*n}, v{X+2*n+1}")
        for n in range(5):
            e(f"ds_write_b128 v7, {v(src+4*n,4)} offset:{g*4*1296 + n*256}")
    e(f"v_mov_b32 v9, {W_EPOCH}")
    e("s_cmp_lg_u32 s32, 4"); e("s_cbranch_scc1 m_hepdone")
    e("ds_write_b32 v9, v111")
    k.label("m_hepdone")
    e("s_waitcnt lgkmcnt(0)")
    e("s_barrier")
    k.stamp(4)
    e("v_bfe_u32 v4, v1, 2, 2"); e("v_lshl_add_u32 v4, v3, 3, v4"); e("v_mul_u32_u24 v4, 1296, v4")
    e("v_and_b32 v5, 3, v1"); e("v_lshl_add_u32 v4, v5, 3, v4")
    e("s_lshl_b32 s43, s32, 5"); e("v_add_u32 v4, s43, v4")
    e(f"v_add_u32 v5, {32*1296}, v4")
    for n in range(5):
        for th in range(2):
            for hh in range(2):
                e(f"ds_read_b64_tr_b16 {v(16+(n*2+th)*4+hh*2,2)}, v{4+th} offset:{hh*4*1296 + n*256}")
    e("s_mul_i32 s43, s32, 4608"); e("s_add_u32 s43, s43, 90112")
    e("v_mul_u32_u24 v5, 144, v2"); e("v_lshl_add_u32 v5, v3, 4, v5"); e("v_add_u32 v5, s43, v5")
    e("v_lshrrev_b32 v4, 3, v1"); e("v_lshlrev_b32 v6, 12, v4"); e("v_mul_u32_u24 v4, 144, v4"); e("v_and_b32 v7, 7, v1"); e("v_lshl_add_u32 v4, v7, 4, v4"); e("v_add_u32 v4, s43, v4")
    e("v_lshl_add_u32 v6, v7, 4, v6")
    e("s_lshl_b32 s46, s32, 16"); e("s_lshl_b32 s44, s35, 7"); e("s_add_u32 s46, s46, s44"); e("s_add_u32 s47, s46, 32768")
    e("s_waitcnt vmcnt(0) lgkmcnt(0)")
    for n in range(5):
        o = (n % 2) * 2304
        for th in range(2): e(f"ds_write_b128 v5, {v(16+(n*2+th)*4,4)} offset:{o + th*64}")
        for hf in range(2): e(f"ds_read_b128 {v(56+(n*2+hf)*4,4)}, v4 offset:{o + hf*8*144}")
    for n in range(5):
        e(f"s_waitcnt lgkmcnt({min(15, 4*(4-n))})")
        for hf in range(2):
            e(f"buffer_store_dwordx4 {v(56+(n*2+hf)*4,4)}, v6, s[28:31], s{46+hf} offen" + ("" if "wb" in EXP else " sc1"))
        e(f"s_add_u32 s46, s46, {8*65536}"); e(f"s_add_u32 s47, s47, {8*65536}")
    def publish(imm, tag):
        e("s_waitcnt vmcnt(0) lgkmcnt(0)")
        e("s_barrier")
        e("s_cmp_lg_u32 s32, 4"); e(f"s_cbranch_scc1 m_hnp{tag}")
        e("s_lshl_b32 s45, s35, 2"); e(f"s_add_u32 s45, s45, {FX}")
        set_flag(k, FLS, "s45", 0, "v7", "v8")
        k.label(f"m_hnp{tag}")
    e("s_mov_b32 s34, 1000")
    publish(192, "x")
    k.stamp(5)
    e("s_cmp_lt_u32 s32, 4"); e("s_cbranch_scc1 m_Lpost")
    e(f"v_mov_b32 v4, {W_PF + 8}"); e("v_mov_b32 v5, 4"); e("ds_write_b32 v4, v5")
    e("s_branch m_P2")

if __name__ == "__main__":
    import sys
    NAME = "parallel_sum__ssm_conv_s4d__mixer_gmlp__prompt"
    path = sys.argv[1] if len(sys.argv) > 1 else f"cdna_kernels/{NAME}.s"
    t, kd = gen_mega(NAME + "_kernel")
    hdr = open(f"cdna_kernels/{NAME}.s.ref").read().split("; Override launch")[0]
    lst = os.environ.get("LIST", "0") == "1"
    out = hdr + (f"; @launch kernel={NAME}_kernel grid=(256,1,1) block=(512,1,1) lds={LDS_TOTAL}\n" if lst else f"; @launch grid=(256,1,1) block=(512,1,1) lds={LDS_TOTAL}\n")
    out += '.amdgcn_target "amdgcn-amd-amdhsa--gfx950"\n.text\n' + t + '\ntext_end:\n.section .rodata,"a"\n.p2align 6\n' + kd + "\n"
    open(path, "w").write(out)
```

```python
from mega_common import *
FLS = 60
WS_ST1 = 27*MB
RING2 = 16384
CONV0 = 65536
CONV_B = 15360
YTILE = 81920
IMG = 22528
NSLOT = 3
XB = 111616
ZD = int(os.environ.get('ZD', '24'))
ZSL = int(os.environ.get('ZSL', '2'))
ROTM = int(os.environ.get('ROTM', '0'))
WS_KC = 26*MB
KC_BYTES = 640 * 1536

def conv_params(k):
    e = k.e
    e("s_mul_i32 s34, s41, 28"); e("s_add_u32 s34, s34, s42"); e("s_lshl_b32 s34, s34, 1"); e("s_add_u32 s34, s34, s32")
    e("s_mul_i32 s56, s41, 24"); e("s_add_u32 s56, s56, s42"); e("s_add_u32 s56, s56, 448")
    e("s_cmp_lt_u32 s42, 24"); e("s_cselect_b32 s56, s56, 1000")
    e("s_cmp_eq_u32 s32, 2"); e("s_cselect_b32 s34, s56, s34")
    e("s_cmp_eq_u32 s32, 3"); e("s_cselect_b32 s34, 1000, s34")
    e("s_lshl_b32 s56, s34, 8"); e("s_lshl_b32 s57, s34, 1")
    e("v_lshlrev_b32 v4, 2, v1"); e("v_mov_b32 v5, 0")
    e("s_waitcnt lgkmcnt(0)")
    for a in range(4):
        k.srd(28, 64+2*a, 65+2*a, 640*256)
        e(f"buffer_load_dword v{164+a}, v4, s[28:31], s56 offen")
    k.srd(28, 72, 73, 1280); e("buffer_load_ushort v13, v5, s[28:31], s57 offen")
    k.srd(28, 74, 75, 1280); e("buffer_load_ushort v14, v5, s[28:31], s57 offen")

def gen_mega(name):
    k = Kern(name)
    e = k.e
    e("s_cmp_ge_u32 s2, 256"); e("s_cbranch_scc1 m_end")
    k.stamp_init()
    e("s_load_dwordx2 s[4:5], s[0:1], 0")
    e("s_load_dwordx4 s[8:11], s[0:1], 64")
    e("s_load_dwordx4 s[12:15], s[0:1], 104")
    e("s_load_dwordx4 s[96:99], s[0:1], 88")
    e("v_and_b32 v1, 63, v0")
    e("v_lshrrev_b32 v2, 6, v0")
    e("s_and_b32 s41, s2, 7")
    e("v_readfirstlane_b32 s32, v2")
    e("s_lshr_b32 s42, s2, 3")
    e("s_and_b32 s33, s32, 3")
    e("s_cmp_ge_u32 s42, 28"); e("s_cbranch_scc1 m_helper")
    e("s_mul_i32 s43, s42, 37"); e("s_lshr_b32 s43, s43, 8")
    e("s_mul_i32 s44, s43, 7"); e("s_sub_u32 s44, s42, s44")
    e("s_lshr_b32 s35, s41, 1"); e("s_lshl_b32 s35, s35, 2"); e("s_add_u32 s35, s35, s43")
    e("s_and_b32 s36, s41, 1"); e("s_mul_i32 s36, s36, 7"); e("s_add_u32 s36, s36, s44")
    e("s_cmp_ge_u32 s32, 4"); e("s_cbranch_scc1 m_gemm1")
    e("s_load_dwordx8 s[64:71], s[0:1], 8")
    e("s_load_dwordx4 s[72:75], s[0:1], 40")
    e("v_and_b32 v3, 7, v1")
    e("s_lshl_b32 s39, s32, 13")
    e("s_cmp_ge_u32 s32, 2"); e("s_cbranch_scc1 m_ldB")
    e("s_lshl_b32 s43, s35, 7"); e("s_lshl_b32 s44, s32, 6"); e("s_add_u32 s43, s43, s44")
    e("v_lshrrev_b32 v2, 5, v1"); e("v_lshlrev_b32 v2, 3, v2")
    e("v_bfe_u32 v4, v1, 3, 2"); e("v_add3_u32 v2, v2, v4, s43")
    e("v_mul_u32_u24 v2, 1280, v2")
    e("v_lshrrev_b32 v4, 4, v1"); e("v_xor_b32 v3, v3, v4")
    e("v_lshl_add_u32 v4, v3, 4, v2")
    e("v_xor_b32 v3, 4, v3"); e("v_lshl_add_u32 v5, v3, 4, v2")
    for n in range(8):
        ee, b, Pp = n & 1, (n >> 1) & 1, n >> 2
        e(f"v_add_u32 v{16+n}, {(32*Pp + 4*b + 16*ee)*1280 - (n & 3)*1024}, v{4+ee}")
    e("s_waitcnt lgkmcnt(0)")
    k.srd(16, 4, 5, 2048*1280)
    e("s_mov_b32 s38, 128")
    e("s_branch m_ld")
    k.label("m_ldB")
    e("v_lshrrev_b32 v2, 3, v1"); e("v_mul_u32_u24 v2, 3456, v2")
    e("s_cmp_eq_u32 s32, 2"); e("s_cselect_b32 s44, 1664, 0")
    e("s_lshl_b32 s43, s36, 7"); e("s_add_u32 s43, s43, s44"); e("v_add_u32 v2, s43, v2")
    e("v_bfe_u32 v4, v1, 4, 1"); e("v_lshlrev_b32 v4, 1, v4"); e("v_xor_b32 v3, v3, v4")
    e("v_lshl_add_u32 v4, v3, 4, v2")
    e("v_xor_b32 v3, 4, v3"); e("v_lshl_add_u32 v5, v3, 4, v2")
    for n in range(8):
        e(f"v_add_u32 v{16+n}, {8*n*3456 - (n & 3)*1024}, v{4+(n & 1)}")
    e("s_waitcnt lgkmcnt(0)")
    k.srd(16, 8, 9, 640*3456)
    e(f"s_mov_b32 s38, {64*3456}")
    k.label("m_ld")
    e("s_lshr_b32 s45, s41, 1"); e("s_mul_i32 s45, s45, 5"); e("s_lshr_b32 s45, s45, 1"); e("s_and_b32 s46, s41, 1"); e("s_mul_i32 s46, s46, 5"); e("s_add_u32 s45, s45, s46")
    e("s_and_b32 s46, s42, 1"); e("s_mul_i32 s46, s46, 5"); e("s_add_u32 s45, s45, s46")
    e("s_cmp_ge_u32 s45, 10"); e("s_cselect_b32 s46, 10, 0"); e("s_sub_u32 s45, s45, s46")
    e("s_mul_i32 s37, s45, s38"); e("s_mov_b32 s40, 0")
    for n3 in range(2):
        for g in range(2):
            e(f"s_add_u32 m0, s39, {g*4096}")
            e("s_nop 0")
            for n in range(4): e(f"buffer_load_dwordx4 v{16+g*4+n}, s[16:19], s37 offen offset:{n*1024} lds")
        e("s_add_u32 s39, s39, 32768"); e("s_add_u32 s45, s45, 1"); e("s_cmp_eq_u32 s45, 10"); e("s_cselect_b32 s45, 0, s45"); e("s_mul_i32 s37, s45, s38")
    for g in range(2):
        e(f"s_add_u32 m0, s39, {g*4096}")
        e("s_nop 0")
        for n in range(4): e(f"buffer_load_dwordx4 v{16+g*4+n}, s[16:19], s37 offen offset:{n*1024} lds")
    e("s_add_u32 s39, s39, 32768"); e("s_add_u32 s45, s45, 1"); e("s_cmp_eq_u32 s45, 10"); e("s_cselect_b32 s45, 0, s45"); e("s_mul_i32 s37, s45, s38")
    e("s_mov_b32 s40, 3")
    k.srd(24, 14, 15, 32768, WS_ST1)
    k.srd(48, 12, 13, 256)
    k.srd(20, 10, 11, 2048*4096)
    e("v_bfe_u32 v4, v1, 2, 2"); e("v_lshlrev_b32 v4, 3, v4"); e("v_bfe_u32 v5, v1, 4, 1"); e("v_lshl_add_u32 v4, v5, 2, v4")
    e("v_and_b32 v5, 0x23, v1"); e("v_add_u32 v4, v4, v5"); e("v_lshlrev_b32 v232, 4, v4"); e("v_mov_b32 v233, 0")
    e("s_lshl_b32 s52, s35, 11"); e("s_and_b32 s43, s32, 1"); e("s_lshl_b32 s43, s43, 10"); e("s_add_u32 s52, s52, s43")
    e("s_mul_i32 s34, s41, 28"); e("s_add_u32 s34, s34, s42"); e("s_lshl_b32 s34, s34, 1"); e("s_add_u32 s34, s34, s32")
    e("s_mul_i32 s56, s41, 24"); e("s_add_u32 s56, s56, s42"); e("s_add_u32 s56, s56, 448")
    e("s_cmp_lt_u32 s42, 24"); e("s_cselect_b32 s56, s56, 1000")
    e("s_cmp_eq_u32 s32, 2"); e("s_cselect_b32 s34, s56, s34")
    e("s_cmp_eq_u32 s32, 3"); e("s_cselect_b32 s34, 1000, s34")
    e("s_min_u32 s57, s34, 639"); e("s_lshl_b32 s56, s57, 8"); e("s_lshl_b32 s57, s57, 1")
    e("v_lshl_add_u32 v230, v1, 2, s56"); e("v_mov_b32 v231, s57")
    e("s_getpc_b64 s[28:29]")
    k.label("m_pc")
    e(f"s_sub_u32 s28, s28, m_pc-{name}"); e("s_subb_u32 s29, s29, 0")
    e(f"s_mov_b32 s30, text_end-{name}"); e("s_mov_b32 s31, 0x00020000")
    e("s_and_b32 s54, s42, 15"); e("s_lshl_b32 s54, s54, 2"); e("s_add_u32 s54, s54, s33"); e("s_lshl_b32 s54, s54, 10")
    e("s_lshl_b32 s53, s42, 2"); e("s_add_u32 s53, s53, s32"); e(f"s_mul_i32 s53, s53, {9*1024+384}")
    e("s_lshl_b32 s43, s41, 20"); e("s_add_u32 s53, s53, s43")
    e("v_lshlrev_b32 v2, 4, v1")
    e("s_lshl_b32 s43, s32, 8"); e(f"s_add_u32 s43, s43, {MISC}"); e("v_lshl_add_u32 v6, v1, 2, s43"); e(f"v_mov_b32 v7, {W_EPOCH}")
    k.label("m_ldloop")
    e("s_waitcnt vmcnt(16)")
    e("s_barrier")
    for g in range(2):
        e(f"s_add_u32 m0, s39, {g*4096}")
        e("s_nop 0")
        for n in range(4): e(f"buffer_load_dwordx4 v{16+g*4+n}, s[16:19], s37 offen offset:{n*1024} lds")
    e("s_add_u32 s39, s39, 32768"); e("s_and_b32 s39, s39, 0x1ffff")
    e("s_add_u32 s45, s45, 1"); e("s_cmp_eq_u32 s45, 10"); e("s_cselect_b32 s45, 0, s45"); e("s_mul_i32 s37, s45, s38")
    e("s_add_u32 s40, s40, 1"); e("s_cmp_lt_u32 s40, 10"); e("s_cbranch_scc1 m_ldloop")
    k.stamp(1)
    def pf(n):
        for i in range(n):
            e(f"buffer_load_dwordx4 v[224:227], v2, s[20:23], s53 offen offset:{(i%4)*1024}")
            if i % 4 == 3 or i == n - 1: e(f"s_add_u32 s53, s53, {(i%4+1)*1024}")
    e("buffer_load_dword v234, v233, s[48:51], 0 offen sc1")
    e("buffer_load_dwordx4 v[236:239], v232, s[24:27], s52 offen sc1")
    e("s_waitcnt vmcnt(18)"); e("s_barrier")
    for a_ in range(4): e(f"global_load_dword v{164+a_}, v230, s[{64+2*a_}:{65+2*a_}]")
    e("global_load_ushort v13, v231, s[72:73]"); e("global_load_ushort v14, v231, s[74:75]")
    e("buffer_load_dwordx4 v[224:227], v2, s[28:31], s54 offen")
    P1_, P2_ = (3, 7) if "pfa" in EXP else (0, 5)
    pf(P1_)
    e(f"s_waitcnt vmcnt({17+P1_})"); e("s_barrier")
    pf(P2_)
    e(f"s_waitcnt vmcnt({9+P1_+P2_})"); e("s_barrier")
    e("s_cmp_ge_u32 s32, 2"); e("s_cbranch_scc1 m_st1ok")
    e(f"s_waitcnt vmcnt({7+P1_+P2_})")
    e("s_mov_b32 s40, 0")
    e("s_branch m_st1chk")
    k.label("m_st1poll")
    e("buffer_load_dword v234, v233, s[48:51], 0 offen sc1")
    e("buffer_load_dwordx4 v[236:239], v232, s[24:27], s52 offen sc1")
    e("s_waitcnt vmcnt(0)")
    k.label("m_st1chk")
    e("v_xor_b32 v4, v237, v234"); e("v_xor_b32 v5, v239, v234"); e("v_or_b32 v4, v4, v5")
    e("v_cmp_ne_u32 vcc, 0, v4"); e("v_cmp_eq_u32 s[44:45], 0, v234"); e("s_add_u32 s40, s40, 1")
    e("s_or_b64 vcc, vcc, s[44:45]")
    e(f"s_cmp_ge_u32 s40, {SPIN}"); e("s_cbranch_scc1 m_st1w")
    e("s_cbranch_vccnz m_st1poll")
    k.label("m_st1w")
    e("ds_write_b32 v6, v236"); e("ds_write_b32 v6, v238 offset:512"); e("ds_write_b32 v7, v234")
    k.label("m_st1ok")
    pf(10 - P1_ - P2_)
    e("s_waitcnt lgkmcnt(0)")
    e("s_barrier")
    k.label("m_Lpost")
    k.stamp(2)
    e(f"v_mov_b32 v4, {W_EPOCH}"); e("ds_read_b32 v5, v4")
    k.srd(FLS, 14, 15, FL_BYTES, WS_FL)
    e("v_and_b32 v2, 15, v1"); e("v_lshrrev_b32 v3, 4, v1")
    e("s_lshr_b32 s35, s41, 1"); e("s_lshl_b32 s35, s35, 3"); e("s_lshr_b32 s43, s42, 2"); e("s_add_u32 s35, s35, s43")
    e("s_waitcnt lgkmcnt(0)")
    e("v_readfirstlane_b32 s3, v5")
    e("s_cmp_lg_u32 s32, 3"); e("s_cbranch_scc1 m_conv")
    k.srd(16, 10, 11, 2048*4096)
    e("v_lshrrev_b32 v4, 5, v1"); e("v_lshlrev_b32 v4, 3, v4"); e("v_bfe_u32 v5, v1, 3, 2"); e("v_add_u32 v4, v4, v5")
    e("v_lshlrev_b32 v4, 12, v4")
    e("v_and_b32 v5, 7, v1"); e("v_xor_b32 v5, v5, v3")
    e("v_lshl_add_u32 v6, v5, 4, v4")
    e("v_xor_b32 v5, 4, v5"); e("v_lshl_add_u32 v7, v5, 4, v4")
    for n in range(8):
        ee, t = n & 1, n >> 1
        e(f"v_add_u32 v{16+n}, {(32*(t >> 1) + 4*(t & 1) + 16*ee)*4096 - (n & 3)*1024}, v{6+ee}")
    e("s_lshl_b32 s37, s35, 18")
    e(f"s_and_b32 s43, s35, {ROTM}"); e("s_lshl_b32 s43, s43, 8"); e("s_add_u32 s37, s37, s43")
    LATE = "late" in EXP
    def pfloop():
        e("s_mov_b32 s40, 0")
        k.label("m_pfloop")
        e("s_and_b32 s43, s40, 3"); e("s_lshr_b32 s44, s40, 2")
        e(f"s_mul_i32 s49, s43, {RING2}"); e("s_lshl_b32 s46, s44, 13"); e("s_add_u32 s49, s49, s46")
        e("s_lshl_b32 s46, s43, 13"); e(f"s_add_u32 s46, s46, {XB}"); e("s_cmp_eq_u32 s44, 2"); e("s_cselect_b32 s49, s46, s49")
        e("s_lshl_b32 s43, s43, 10"); e("s_lshl_b32 s44, s44, 7"); e("s_add_u32 s43, s43, s44"); e("s_add_u32 s43, s43, s37")
        for g in range(2):
            e(f"s_add_u32 m0, s49, {g*4096}")
            e("s_nop 0")
            for n in range(4): e(f"buffer_load_dwordx4 v{16+g*4+n}, s[16:19], s43 offen offset:{n*1024} lds")
        e(f"s_waitcnt vmcnt({48 if LATE else int(os.environ.get('THR', '40'))})")
        e("s_add_u32 s40, s40, 1"); e("s_cmp_lt_u32 s40, 12"); e("s_cbranch_scc1 m_pfloop")
    if not LATE: pfloop()
    e(f"v_mov_b32 v4, {W_FX + 12}"); e("v_mov_b32 v5, 1"); e("s_waitcnt vmcnt(0)"); e("ds_write_b32 v4, v5")
    k.stamp(3)
    e("s_and_b32 s36, s41, 1"); e("s_lshl_b32 s36, s36, 2"); e("s_and_b32 s43, s42, 3"); e("s_add_u32 s36, s36, s43")
    e("s_cmp_eq_u32 s36, 7"); e("s_cselect_b32 s43, 31, 47")
    e("v_min_u32 v7, s43, v1"); e("v_lshlrev_b32 v7, 2, v7")
    e("s_lshl_b32 s45, s35, 3"); e("s_add_u32 s45, s45, s36"); e("s_lshl_b32 s45, s45, 8"); e(f"s_add_u32 s45, s45, {FZ2}")
    e(f"v_mov_b32 v4, {W_PF + 8}")
    lds_wait_ge(k, "m_wown1", "v4", 5, 1, 4, sleep=2)
    if LATE: pfloop()
    elif ZD: e(f"s_sleep {ZD}")
    poll_flags(k, "m_pollz", "v7", FLS, 1, 5, "v6", soff="s45", sleep=ZSL)
    e(f"v_mov_b32 v4, {W_PF}"); e("v_mov_b32 v5, 1")
    e("ds_write_b32 v4, v5")
    k.stamp(4)
    k.srd(24, 14, 15, WOF_BYTES, WS_WOF)
    k.srd(20, 96, 97, 864*1280); e("s_mov_b32 s38, s2")
    e("v_lshrrev_b32 v4, 3, v1"); e("v_mul_u32_u24 v111, 1280, v4"); e("v_and_b32 v5, 7, v1"); e("v_lshl_add_u32 v111, v5, 4, v111")
    e(f"s_mov_b32 s43, {111616 + 32768}")
    e("v_mul_u32_u24 v4, 128, v4"); e("v_lshl_add_u32 v4, v5, 4, v4"); e("v_add_u32 v4, s43, v4")
    e("v_bfe_u32 v5, v1, 2, 2"); e("v_lshl_add_u32 v5, v3, 2, v5"); e("v_mul_u32_u24 v5, 128, v5"); e("v_and_b32 v6, 3, v1"); e("v_lshl_add_u32 v5, v6, 3, v5"); e("v_add_u32 v5, s43, v5")
    e("v_lshlrev_b32 v6, 4, v1")
    k.vm = []
    for it in range(2):
        e(f"s_add_u32 s43, s38, {256*it}"); e("s_mul_i32 s44, s43, 205"); e("s_lshr_b32 s44, s44, 11"); e("s_mul_i32 s45, s44, 10"); e("s_sub_u32 s45, s43, s45")
        e("s_mul_i32 s46, s44, 40960"); e("s_lshl_b32 s47, s45, 7"); e("s_add_u32 s46, s46, s47")
        for d in range(4):
            e(f"s_lshl_b32 s47, s45, 2"); e(f"s_add_u32 s47, s47, {d}"); e("s_mul_i32 s39, s47, 52"); e("s_lshr_b32 s39, s39, 8")
            e("s_mul_i32 s39, s39, 130"); e("s_add_u32 s47, s47, s39"); e("s_mul_i32 s39, s44, 5"); e("s_add_u32 s47, s47, s39"); e("s_lshl_b32 s47, s47, 10")
            e("s_cmp_lt_u32 s43, 270"); e(f"s_cselect_b32 s{48+it*4+d}, s47, {HUGE}")
        for n in range(4):
            k.vmem(f"buffer_load_dwordx4 {v(16+it*16+n*4,4)}, v111, s[20:23], s46 offen", f"wo{it}")
            e("s_add_u32 s46, s46, 10240")
    for it in range(2):
        k.wait_vm(f"wo{it}")
        for n in range(4): e(f"ds_write_b128 v4, {v(16+it*16+n*4,4)} offset:{n*8*128}")
        for d in range(4):
            for hh in range(2): e(f"ds_read_b64_tr_b16 {v(64+it*16+d*4+hh*2,2)}, v5 offset:{hh*16*128 + d*32}")
    e("s_waitcnt lgkmcnt(0)")
    for it in range(2):
        for d in range(4): e(f"buffer_store_dwordx4 {v(64+it*16+d*4,4)}, v6, s[24:27], s{48+it*4+d} offen sc1")
    e("s_lshl_b32 s45, s2, 2"); e(f"s_add_u32 s45, s45, {FK}")
    set_flag(k, FLS, "s45", 0, "v7", "v8")
    e(f"v_mov_b32 v4, {W_GL}")
    lds_wait_ge(k, "m_wgl3", "v4", 8, 4, 1, sleep=8)
    e(f"s_mov_b32 s44, {FK}")
    poll_flags(k, "m_pollx3", "v6", FLS, 4, 8, "v5", soff="s44", sleep=16)
    e(f"v_mov_b32 v4, {W_FX}"); e("v_mov_b32 v5, 1"); e("ds_write_b32 v4, v5")
    e("s_branch m_L3prep")
    k.label("m_conv")
    e("s_cmp_ge_u32 s34, 640"); e("s_cbranch_scc1 m_L3prep")
    e(f"s_mul_i32 s39, s32, {CONV_B}"); e(f"s_add_u32 s39, s39, {CONV0}")
    e(f"s_waitcnt vmcnt({20 if 'pf2' in EXP else 10})")
    kgen_dt(k, "v13")
    kgen_addr(k, "s39", "v2", "v3", "v1")
    e("s_mov_b32 s40, 2")
    e(f"s_mov_b32 s50, {FX}"); e("v_and_b32 v220, 31, v1"); e("v_lshlrev_b32 v220, 2, v220")
    e("v_lshlrev_b32 v15, 4, v1"); e("s_mov_b32 s51, 0")
    k.srd(20, 14, 15, XT_BYTES, WS_XNT)
    k.srd(24, 14, 15, XT_BYTES, WS_YT)
    e("s_lshl_b32 s45, s34, 12")
    uld = [f"buffer_load_dwordx4 {v(200+4*n,4)}, v15, s[20:23], s45 offen offset:{n*1024} sc1" for n in range(4)]
    kgen_loop(k, 164, "v13", "s40",
              top=["s_cmp_lg_u32 s40, 1", "s_cbranch_scc1 m_noprobe", "buffer_load_dword v216, v220, s[60:63], s50 offen sc1", "m_noprobe:"],
              mid=["s_cmp_lg_u32 s40, 1", "s_cbranch_scc1 m_nochk", "s_waitcnt vmcnt(0)", "v_cmp_ne_u32 vcc, s3, v216", "s_nop 1", "s_cbranch_vccnz m_nochk", "s_mov_b32 s51, 1"] + uld + ["m_nochk:"])
    k.stamp(3)
    UO, KC = 8320, 12928
    e(f"s_add_u32 s43, s39, {KC}")
    e("v_max_u32 v4, 1, v3"); e("v_sub_u32 v4, 5, v4")
    e("v_lshlrev_b32 v5, v4, v2")
    e("v_lshlrev_b32 v6, 3, v3")
    e("v_mov_b32 v7, 512"); e("v_cmp_eq_u32 vcc, 2, v3"); e("s_nop 1"); e("v_cndmask_b32 v6, v6, v7, vcc")
    e("v_mov_b32 v7, 768"); e("v_mov_b32 v8, 4"); e("v_mov_b32 v9, 128"); e("v_cmp_eq_u32 vcc, 3, v3"); e("s_nop 1")
    e("v_cndmask_b32 v6, v6, v7, vcc"); e("v_cndmask_b32 v8, v8, v9, vcc")
    e("v_add3_u32 v5, v5, v6, s43")
    e("v_lshlrev_b32 v6, v4, 16"); e("v_add_u32 v6, v5, v6")
    e("v_add_u32 v7, v5, v8"); e("v_add_u32 v8, v6, v8")
    for n in range(8): e(f"v_cvt_pk_bf16_f32 v{24+n}, v{136+2*n}, v{137+2*n}")
    e("ds_write_b32 v5, v24"); e("ds_write_b32 v7, v25"); e("ds_write_b32 v6, v26"); e("ds_write_b32 v8, v27")
    e("v_lshlrev_b32 v9, 6, v2"); e("v_lshl_add_u32 v9, v3, 3, v9"); e("v_add_u32 v9, s43, v9")
    e("v_mov_b32 v20, 0"); e("v_mov_b32 v21, 0"); e("v_mov_b32 v22, 0"); e("v_mov_b32 v23, 0")
    e("v_add_u32 v16, s39, v15")
    e("v_lshl_add_u32 v17, v1, 3, s39")
    e(f"ds_write_b64 v17, v[20:21] offset:{UO}")
    e("v_cmp_gt_u32 vcc, 5, v2"); e("s_and_saveexec_b64 s[46:47], vcc")
    e("ds_write_b64 v9, v[28:29] offset:1024"); e("ds_write_b64 v9, v[30:31] offset:1056")
    e("s_mov_b64 exec, 3")
    e("ds_write_b128 v16, v[20:23] offset:4096"); e(f"ds_write_b128 v16, v[20:23] offset:{4160+4096}")
    e("s_mov_b64 exec, -1")
    e("v_lshlrev_b32 v18, 1, v1"); e(f"s_add_u32 s44, s43, {2*575}"); e("v_sub_u32 v96, s44, v18")
    e("v_and_b32 v19, 1, v1"); e("v_xor_b32 v19, 1, v19"); e("v_lshl_add_u32 v97, v19, 1, v96")
    e("v_lshlrev_b32 v18, 2, v1"); e("s_add_u32 s44, s43, 1020"); e("v_sub_u32 v98, s44, v18")
    e("v_lshlrev_b32 v18, 3, v1"); e(f"s_add_u32 s44, s43, {2*380 - 2}"); e("v_sub_u32 v99, s44, v18")
    e("v_lshlrev_b32 v18, 4, v1"); e(f"s_add_u32 s44, s43, {2*504 - 2}"); e("v_sub_u32 v100, s44, v18")
    EM = []
    for m in range(2):
        o = 128 * (1 - m); A_, B_, X_ = 144 + 3*m, 145 + 3*m, 146 + 3*m
        e(f"ds_read_u16 v{A_}, v96 offset:{o}"); e(f"ds_read_u16 v{B_}, v96 offset:{o+2}"); e(f"ds_read_u16 v{X_}, v97 offset:{o}")
        EM.append([B_, B_, B_, X_, A_, A_, A_, A_, A_])
    for i in range(3): e(f"ds_read_u16 v{150+i}, v98 offset:{2*i}")
    EM.append([152, 152, 151, 151, 151, 150, 150, 150, 150])
    e("s_mov_b32 exec_hi, 0")
    for el, io in enumerate((4, 3, 2, 2, 2, 1, 0, 0, 0)): e(f"ds_read_u16 v{153+el}, v99 offset:{2*io + 2}")
    e("s_mov_b32 exec_lo, 0x80000000")
    e("ds_read_u16 v161, v99")
    e("s_mov_b32 exec_lo, 0"); e("s_mov_b32 exec_hi, -1")
    for el in range(9): e(f"ds_read_u16 v{153+el}, v100 offset:{2*(7 - el) + 2}")
    e("s_mov_b64 exec, -1")
    EM.append(list(range(153, 162)))
    e("v_cmp_eq_u32 vcc, 63, v1"); e("s_nop 0")
    e("s_waitcnt lgkmcnt(0)")
    e("v_cndmask_b32 v161, v161, v20, vcc")
    for m in range(4):
        W = 32 + 16*m; E = EM[m]
        for p in range(4):
            e(f"v_lshl_or_b32 v{W+p}, v{E[2*p+1]}, 16, v{E[2*p]}")
            e(f"v_lshl_or_b32 v{W+8+p}, v{E[2*p+2]}, 16, v{E[2*p+1]}")
        e(f"ds_write_b128 v16, {v(W,4)} offset:{1024*m}")
        e(f"ds_write_b128 v16, {v(W+8,4)} offset:{4160+1024*m}")
    e("s_cmp_eq_u32 s51, 1"); e("s_cbranch_scc1 m_uok")
    poll_flags(k, "m_pollx", "v220", FLS, 1, 216, "v4", soff="s50", sleep=32)
    for u_ in uld: e(u_)
    k.label("m_uok")
    e("s_waitcnt vmcnt(0)")
    for n in range(4): e(f"ds_write_b128 v16, {v(200+4*n,4)} offset:{UO+512+1024*n}")
    k.stamp(5)
    e("v_and_b32 v4, 1, v2"); e("v_xor_b32 v4, 1, v4"); e("v_mul_u32_u24 v4, 4160, v4")
    e("v_lshrrev_b32 v5, 1, v2"); e("v_lshlrev_b32 v6, 2, v3"); e("v_sub_u32 v5, v6, v5")
    e("v_lshl_add_u32 v4, v5, 2, v4"); e("v_add_u32 v4, s39, v4")
    for mp in range(4): e(f"v_add_u32 v{24+mp}, {4*(1023 - 8 - 128*(2*mp+1))}, v4")
    e("v_lshlrev_b32 v5, 5, v2"); e("v_lshl_add_u32 v5, v3, 4, v5")
    e(f"s_add_u32 s43, s39, {UO+480}"); e("v_add_u32 v28, s43, v5")
    def Af(m): return 32 + 4*m
    def Bf(r): return 64 + 4*r
    def ac(cb): return v(96 + 4*cb, 4)
    for i in range(32): e(f"v_mov_b32 v{96+i}, 0")
    e("v_lshlrev_b32 v14, 16, v14")
    e("s_waitcnt lgkmcnt(0)")
    def rdA(m):
        o = 0 if m & 1 else 128
        e(f"ds_read2_b32 {v(Af(m),2)}, v{24+m//2} offset0:{o} offset1:{o+1}"); e(f"ds_read2_b32 {v(Af(m)+2,2)}, v{24+m//2} offset0:{o+2} offset1:{o+3}")
    def rdB(r): e(f"ds_read_b128 {v(Bf(r),4)}, v28 offset:{512*r}")
    for m in range(8): rdA(m); rdB(7-m)
    e("s_mov_b32 s40, 8")
    k.label("m_cloop")
    for r in range(24, 29): e(f"v_subrev_u32 v{r}, 64, v{r}")
    for m in range(8):
        for cb in (range(7, -1, -1) if m == 0 else range(m, 8)):
            if m == 0: e(f"s_waitcnt lgkmcnt({min(3*cb, 15)})")
            e(f"{MFMA} {ac(cb)}, {v(Af(m),4)}, {v(Bf(cb-m),4)}, {ac(cb)}")
        rdA(m); rdB(7-m)
    e("s_sub_u32 s40, s40, 1"); e("s_cmp_lg_u32 s40, 0"); e("s_cbranch_scc1 m_cloop")
    k.stamp(6)
    e("s_waitcnt lgkmcnt(0)")
    e("v_lshlrev_b32 v20, 5, v2"); e("v_lshl_add_u32 v20, v3, 3, v20")
    e(f"s_add_u32 s43, s39, {UO+512}"); e("v_add_u32 v21, s43, v20")
    for cb in range(8): e(f"ds_read_b64 {v(32+2*cb,2)}, v21 offset:{512*cb}")
    e("s_waitcnt lgkmcnt(0)")
    for c0 in (0, 4):
        A = [96 + 4*cb + 2*p for cb in range(c0, c0+4) for p in range(2)]
        U = [32 + 2*cb + p for cb in range(c0, c0+4) for p in range(2)]
        for i in range(8): unpack(k, f"v{72+2*i}", f"v{73+2*i}", f"v{U[i]}")
        for i in range(8): e(f"v_pk_fma_f32 {pr(A[i])}, {pr(72+2*i)}, v[14:15], {pr(A[i])} op_sel_hi:[1,0,1]")
        for i in range(8): e(f"v_cvt_pk_bf16_f32 v{U[i]}, v{A[i]}, v{A[i]+1}")
        for cb in range(c0, c0+4): e(f"ds_write_b64 v21, {v(32+2*cb,2)} offset:{512*cb}")
    for n in range(4): e(f"ds_read_b128 {v(64+4*n,4)}, v16 offset:{UO+512+1024*n}")
    for n in range(4):
        e(f"s_waitcnt lgkmcnt({3-n})")
        e(f"buffer_store_dwordx4 {v(64+4*n,4)}, v15, s[24:27], s45 offen offset:{1024*n} sc1")
    e("s_lshl_b32 s43, s34, 2"); e(f"s_add_u32 s43, s43, {FY}")
    set_flag(k, FLS, "s43", 0, "v4", "v5")
    k.stamp(7)
    k.label("m_L3prep")
    e("s_and_b32 s36, s41, 1"); e("s_lshl_b32 s36, s36, 2"); e("s_and_b32 s43, s42, 3"); e("s_add_u32 s36, s36, s43")
    e(f"v_mov_b32 v4, {W_GL}")
    lds_wait_ge(k, "m_wgl", "v4", 8, 4, 2, sleep=8)
    e(f"v_mov_b32 v4, {W_FX}")
    lds_wait(k, "m_wfw", "v4", "v5", sleep=2)
    k.stamp(8)
    k.srd(16, 14, 15, WOF_BYTES, WS_WOF)
    e("v_lshlrev_b32 v15, 4, v1")
    def wo_load(name):
        e("s_lshl_b32 s46, s46, 10"); e("s_mul_i32 s48, s36, 138240"); e("s_add_u32 s48, s48, s46"); e(f"s_add_u32 s46, s46, {IMG}")
        k.label(name)
        e("s_mov_b32 m0, s46"); e("s_add_u32 s46, s46, 1024")
        e("buffer_load_dwordx4 v15, s[16:19], s48 offen sc1 lds")
        e("s_add_u32 s48, s48, 1024"); e("s_sub_u32 s47, s47, 1"); e("s_cmp_lg_u32 s47, 0"); e(f"s_cbranch_scc1 {name}")
    e("s_mul_i32 s46, s33, 15"); e("s_add_u32 s46, s46, 42"); e("s_mov_b32 s47, 15")
    e("s_cmp_eq_u32 s33, 3"); e("s_cselect_b32 s46, 119, s46"); e("s_cselect_b32 s47, 16, s47")
    wo_load("m_wo1")
    e(f"v_mov_b32 v4, {W_R2}")
    lds_wait_ge(k, "m_wr3", "v4", 8, 4, 1, sleep=1)
    e("s_mul_i32 s46, s33, 21"); e("s_mov_b32 s47, 21")
    e("s_lshl_b32 s43, s33, 4"); e("s_add_u32 s43, s43, 55")
    e("s_cmp_ge_u32 s33, 2"); e("s_cselect_b32 s46, s43, s46"); e("s_cselect_b32 s47, 16, s47")
    wo_load("m_wo2")
    e("s_branch m_P3")

    k.label("m_gemm1")
    e("v_and_b32 v2, 15, v1"); e("v_lshrrev_b32 v3, 4, v1")
    e("v_lshlrev_b32 v12, 4, v1")
    e("v_add_u32 v13, 4096, v12")
    PL = 200
    def poll_loads():
        for i in range(7):
            e(f"buffer_load_dwordx4 {v(PL+4*i,4)}, v{12 if i < 4 else 13}, s[28:31], s72 offen offset:{(i%4)*1024} sc1")
    e("v_mov_b32 v10, 0")
    e("v_and_b32 v4, 31, v1"); e(f"v_lshlrev_b32 v4, 2, v4"); e(f"v_add_u32 v4, {W_EPOCH}, v4")
    e("ds_write_b32 v4, v10")
    e("s_waitcnt lgkmcnt(0)")
    k.srd(64, 12, 13, 256)
    e("s_cmp_lg_u32 s2, 0"); e("s_cbranch_scc1 m_noep")
    e("s_cmp_lg_u32 s32, 4"); e("s_cbranch_scc1 m_noep")
    e("s_memrealtime s[44:45]"); e("s_waitcnt lgkmcnt(0)"); e("s_or_b32 s44, s44, 1"); e("v_mov_b32 v4, s44")
    e("s_mov_b64 exec, 1")
    e("buffer_store_dword v4, v10, s[64:67], 0 offen sc1")
    e("s_mov_b64 exec, -1")
    k.label("m_noep")
    e("s_lshl_b32 s43, s35, 2"); e("s_add_u32 s43, s43, s33"); e(f"s_mul_i32 s72, s43, {14*512}")
    e("s_lshl_b32 s44, s36, 9"); e("s_add_u32 s73, s72, s44")
    e("s_lshl_b32 s74, s36, 6"); e("s_add_u32 s74, s74, s43"); e("s_lshl_b32 s74, s74, 2")
    e("v_and_b32 v4, 7, v1"); e("v_lshl_add_u32 v4, v3, 3, v4"); e("v_bfe_u32 v5, v1, 3, 1"); e("v_lshlrev_b32 v5, 3, v5")
    e("v_lshl_add_u32 v230, v4, 4, v5")
    k.srd(28, 14, 15, ST2_BYTES, WS_ST2)
    k.srd(24, 14, 15, ZF_BYTES, WS_Z2F)
    k.srd(20, 14, 15, ZF_BYTES, WS_Z1F)
    k.srd(FLS, 14, 15, FL_BYTES, WS_FL)
    for c in range(4):
        e(f"s_xor_b32 s43, s33, {c}")
        e("s_lshl_b32 s44, s36, 2"); e("s_add_u32 s43, s43, s44"); e("s_sub_u32 s43, s43, 2")
        e(f"s_cmp_lt_u32 s43, 54"); e(f"s_cselect_b32 s{50+c}, -1, 0")
        e("s_cselect_b32 s43, s43, 60")
        e(f"s_lshl_b32 s{46+c}, s43, 16")
        e("s_lshl_b32 s44, s35, 2"); e("s_add_u32 s44, s44, s33"); e("s_lshl_b32 s44, s44, 10")
        e(f"s_add_u32 s{46+c}, s{46+c}, s44")
    for b in range(2):
        for g in range(2):
            e("s_lshr_b32 s43, s33, 1"); e(f"s_xor_b32 s43, s43, {g}"); e("s_lshl_b32 s44, s36, 1"); e("s_add_u32 s43, s43, s44")
            e("s_lshl_b32 s44, s35, 3"); e("s_lshl_b32 s45, s33, 1"); e("s_add_u32 s44, s44, s45"); e(f"s_add_u32 s44, s44, {b}")
            e("s_mul_i32 s44, s44, 27"); e("s_add_u32 s44, s44, s43"); e("s_lshl_b32 s44, s44, 10")
            e("s_cmp_lt_u32 s43, 27"); e(f"s_cselect_b32 s{68+b*2+g}, s44, {HUGE}")
    e("v_and_b32 v4, 2, v1"); e("v_and_b32 v5, 1, v1")
    e("v_cmp_ne_u32 s[54:55], 0, v4"); e("v_cmp_ne_u32 s[56:57], 0, v5")
    e("s_lshl_b32 s43, s33, 5")
    e("v_add_u32 v4, s43, v2"); e("v_lshlrev_b32 v4, 7, v4")
    e("v_lshrrev_b32 v5, 1, v2"); e("v_xor_b32 v5, v5, v3")
    e("v_lshl_add_u32 v14, v5, 4, v4")
    e("v_xor_b32 v15, 64, v14")
    e("v_bfe_u32 v4, v1, 2, 2")
    e("v_lshl_add_u32 v5, v3, 3, v4"); e("v_lshlrev_b32 v5, 7, v5")
    e("v_and_b32 v6, 3, v1"); e("v_lshl_add_u32 v5, v6, 3, v5")
    e("v_add_u32 v5, 16384, v5")
    e("v_lshrrev_b32 v6, 1, v4"); e("v_and_b32 v7, 1, v3"); e("v_lshl_or_b32 v6, v7, 1, v6")
    e("v_xor_b32 v6, s33, v6")
    for c in range(4):
        e(f"v_xor_b32 v7, {c}, v6"); e(f"v_lshl_add_u32 v{16+c}, v7, 5, v5")
    for i in range(4): e(f"v_mov_b32 v{20+i}, 0x3f803f80")
    ACC = 104
    for i in range(ACC, 192): e(f"v_mov_b32 v{i}, 0")
    def xf(ks, b): return v(24 + 40*ks + 4*b, 4)
    def wfb(ks, h, c): return 24 + 40*ks + 8 + 16*h + 4*c
    def wf(ks, h, c): return v(wfb(ks, h, c), 4)
    def accb(h, b, c): return ACC + 32*h + (b*4 + c)*4
    def acc(h, b, c): return v(accb(h, b, c), 4)
    def rlist(ks):
        L = [f"ds_read_b128 {xf(ks,b)}, v{14+ks} offset:{2048*b}" for b in range(2)]
        for h in range(2):
            for c in range(4):
                for hh in range(2):
                    L.append(f"ds_read_b64_tr_b16 {v(wfb(ks,h,c)+2*hh,2)}, v{16+c} offset:{h*8192+ks*4096+hh*512}")
        if "few" in EXP: L = L[:2] + L[:2] + L[2:10]
        if "zerord" in EXP: L = L[:1]
        return L
    def mlist(ks):
        L = []
        for h in range(2):
            L.append(f"{MFMA} {v(184+4*h,4)}, v[20:23], {wf(ks,h,0)}, {v(184+4*h,4)}")
            for c in range(4):
                for b in range(2):
                    if h == 0: L.append(f"{MFMA} {acc(h,b,c)}, {xf(ks,b)}, {wf(ks,h,c)}, {acc(h,b,c)}")
                    else:      L.append(f"{MFMA} {acc(h,b,c)}, {wf(ks,h,c)}, {xf(ks,b)}, {acc(h,b,c)}")
        return L
    def phase(ks, rd, extra=()):
        M = mlist(ks); R = list(rd); X = list(extra)
        for i, m in enumerate(M):
            e(m)
            if R: e(R.pop(0))
            if R and i < 4: e(R.pop(0))
            elif X and not R:
                for _ in range(3):
                    if X: e(X.pop(0))
        for x in X: e(x)
    bump = [f"v_add_u32 v{r}, 0x8000, v{r}" for r in range(14, 20)]
    wrap = [f"v_and_b32 v{r}, 0x1ffff, v{r}" for r in range(14, 20)]
    e("s_lshl_b32 s43, s33, 6"); e(f"s_add_u32 s43, s43, {MISC+1024}"); e("v_lshl_add_u32 v196, v2, 2, s43")
    for c in range(4):
        e(f"s_xor_b32 s43, s33, {c}"); e(f"s_lshl_b32 s43, s43, 6"); e(f"s_add_u32 s43, s43, {MISC+1024}")
        e(f"v_lshl_add_u32 v{232+c}, v2, 2, s43"); e(f"v_lshl_add_u32 v{236+c}, v3, 4, s43")
    e("s_lshl_b32 s43, s33, 7"); e(f"s_add_u32 s43, s43, {MISC}")
    e("v_lshl_add_u32 v7, v2, 2, s43"); e("v_lshl_add_u32 v8, v3, 4, s43"); e(f"v_mov_b32 v9, {W_EPOCH}")
    k.stamp(1)
    e("s_mov_b32 s40, 10")
    e("s_barrier")
    k.stamp(2)
    for r in rlist(0): e(r)
    k.label("m_loop1")
    e("s_waitcnt lgkmcnt(0)")
    phase(0, rlist(1), bump + wrap)
    e("s_sub_u32 s40, s40, 1"); e("s_cmp_eq_u32 s40, 0")
    e("s_waitcnt lgkmcnt(0)")
    e(f"s_cbranch_scc1 m_tail1")
    e("s_barrier")
    phase(1, rlist(0))
    e(f"s_branch m_loop1")
    k.label(f"m_tail1")
    phase(1, [])
    e("s_setprio 2")
    k.stamp(3)
    epoch_poll = None
    e("ds_write_b32 v196, v184"); e("ds_write_b32 v196, v188 offset:256")
    e("s_waitcnt lgkmcnt(0)")
    e("s_barrier")
    e("ds_read_b128 v[24:27], v8"); e("ds_read_b128 v[28:31], v8 offset:64")
    e("ds_read_b128 v[32:35], v8 offset:512"); e("ds_read_b128 v[36:39], v8 offset:576")
    for c in range(4): e(f"ds_read_b32 v{40+2*c}, v{232+c}")
    e("ds_read_b32 v229, v9")
    for c in range(4): e(f"ds_read_b128 {v(64+4*c,4)}, v{236+c} offset:256")
    e("ds_read_b32 v80, v7"); e("ds_read_b32 v82, v7 offset:64"); e("ds_read_b32 v84, v7 offset:512"); e("ds_read_b32 v86, v7 offset:576")
    e(f"v_mov_b32 v88, {f32(GC1)}"); e(f"v_mov_b32 v90, {f32(GC0)}")
    e("s_waitcnt lgkmcnt(8)")
    e("v_readfirstlane_b32 s3, v229")
    e("s_cmp_lg_u32 s36, 0"); e("s_cbranch_scc1 m_nomask")
    for c in range(4):
        e(f"v_and_b32 v{40+2*c}, s{50+c}, v{40+2*c}")
        for b in range(2):
            for r in range(4): e(f"v_and_b32 v{accb(0,b,c)+r}, s{50+c}, v{accb(0,b,c)+r}")
    k.label("m_nomask")
    def gelu_pairs(A):
        n = len(A); T = [48 + 2*i for i in range(n)]
        for i in range(n): e(f"v_pk_mul_f32 {pr(T[i])}, {pr(A[i])}, {pr(A[i])}")
        for i in range(n): e(f"v_pk_fma_f32 {pr(T[i])}, {pr(T[i])}, v[88:89], v[90:91] op_sel_hi:[1,0,0]")
        for i in range(n): e(f"v_pk_mul_f32 {pr(T[i])}, {pr(T[i])}, {pr(A[i])}")
        for i in range(n): e(f"v_exp_f32 v{T[i]}, v{T[i]}"); e(f"v_exp_f32 v{T[i]+1}, v{T[i]+1}")
        for i in range(n): e(f"v_pk_add_f32 {pr(T[i])}, {pr(T[i])}, 1.0 op_sel_hi:[1,0]")
        for i in range(n): e(f"v_rcp_f32 v{T[i]}, v{T[i]}"); e(f"v_rcp_f32 v{T[i]+1}, v{T[i]+1}")
        for i in range(n): e(f"v_pk_mul_f32 {pr(A[i])}, {pr(A[i])}, {pr(T[i])}")
    for c0 in (0, 2):
        A = [accb(0, b, c) + 2*p for c in (c0, c0+1) for b in range(2) for p in range(2)]
        M = [24 + 4*b + 2*p for c in (c0, c0+1) for b in range(2) for p in range(2)]
        C = [40 + 2*c for c in (c0, c0+1) for b in range(2) for p in range(2)]
        for i in range(8): e(f"v_pk_fma_f32 {pr(A[i])}, {pr(M[i])}, {pr(C[i])}, {pr(A[i])} op_sel_hi:[1,0,1] neg_lo:[1,0,0] neg_hi:[1,0,0]")
        for i in range(8): e(f"v_pk_mul_f32 {pr(A[i])}, {pr(A[i])}, {pr(M[i]+8)}")
        gelu_pairs(A)
        for i in range(8):
            n = (i % 4) * 2
            e(f"v_pk_add_f32 {pr(168+n)}, {pr(168+n)}, {pr(A[i])}")
            e(f"v_pk_fma_f32 {pr(176+n)}, {pr(A[i])}, {pr(A[i])}, {pr(176+n)}")
    e("s_nop 0")
    for n in range(8): e(f"v_add_f32_dpp v{48+n}, v{168+n}, v{168+n} row_ror:8 row_mask:0xf bank_mask:0x3")
    for n in range(8): e(f"v_add_f32_dpp v{48+n}, v{176+n}, v{176+n} row_ror:8 row_mask:0xf bank_mask:0xc")
    for n in range(4): e(f"v_add_f32_dpp v{168+n}, v{48+n}, v{48+n} row_half_mirror row_mask:0xf bank_mask:0x5")
    for n in range(4): e(f"v_add_f32_dpp v{168+n}, v{52+n}, v{52+n} row_half_mirror row_mask:0xf bank_mask:0xa")
    for n in range(2):
        e(f"v_cndmask_b32 v{172+n}, v{170+n}, v{168+n}, s[54:55]")
        e(f"v_cndmask_b32 v{174+n}, v{168+n}, v{170+n}, s[54:55]")
    e("s_nop 0")
    for n in range(2): e(f"v_add_f32_dpp v{176+n}, v{172+n}, v{174+n} quad_perm:[2,3,0,1] row_mask:0xf bank_mask:0xf")
    e("v_cndmask_b32 v172, v177, v176, s[56:57]"); e("v_cndmask_b32 v174, v176, v177, s[56:57]")
    e("s_nop 1")
    e("v_add_f32_dpp v228, v172, v174 quad_perm:[1,0,3,2] row_mask:0xf bank_mask:0xf")
    e("buffer_store_dwordx2 v[228:229], v230, s[28:31], s73 offen sc1")
    if "nolowp" not in EXP: e("s_setprio 0")
    k.stamp(4)
    e("s_waitcnt lgkmcnt(0)")
    P1 = 168
    for c0 in (0, 2):
        A = [accb(1, b, c) + 2*p for c in (c0, c0+1) for b in range(2) for p in range(2)]
        M = [80 + 2*b for c in (c0, c0+1) for b in range(2) for p in range(2)]
        C = [64 + 4*c + 2*p for c in (c0, c0+1) for b in range(2) for p in range(2)]
        for i in range(8): e(f"v_pk_fma_f32 {pr(A[i])}, {pr(M[i])}, {pr(C[i])}, {pr(A[i])} op_sel_hi:[0,1,1] neg_lo:[1,0,0] neg_hi:[1,0,0]")
        for i in range(8): e(f"v_pk_mul_f32 {pr(A[i])}, {pr(A[i])}, {pr(M[i]+4)} op_sel_hi:[1,0]")
        gelu_pairs(A)
        i = 0
        for c in (c0, c0+1):
            for b in range(2):
                for p in range(2):
                    e(f"v_cvt_pk_bf16_f32 v{P1+b*8+c*2+p}, v{A[i]}, v{A[i]+1}"); i += 1
        if c0 == (2 if 'pt1' in EXP else 0): poll_loads()
    e("s_bitcmp1_b32 s33, 0"); e("s_cbranch_scc0 m_noswap")
    for b in range(2):
        for g in range(2):
            for p in range(2):
                r0 = P1 + b*8 + g*4 + p
                e(f"v_swap_b32 v{r0}, v{r0+2}")
    k.label("m_noswap")
    e("s_setprio 2")
    def z1st():
        for b in range(2):
            for g in range(2):
                e(f"buffer_store_dwordx4 {v(P1+b*8+g*4,4)}, v12, s[20:23], s{68+b*2+g} offen sc1")
    def chk():
        e(f"v_xor_b32 v4, v{PL+1}, v229"); e(f"v_xor_b32 v5, v{PL+3}, v229")
        for i in range(1, 7):
            e(f"v_xor_b32 v9, v{PL+1+4*i}, v229"); e(f"v_xor_b32 v10, v{PL+3+4*i}, v229")
            e("v_or3_b32 v4, v4, v9, v10")
        e("v_or_b32 v4, v4, v5")
        e("v_cmp_ne_u32 vcc, 0, v4")
    e("s_mov_b32 s40, 0")
    e("s_waitcnt vmcnt(0)")
    chk()
    e("s_nop 1")
    e("s_cbranch_vccnz m_repoll")
    z1st()
    e("s_branch m_poll_done")
    k.label("m_repoll")
    poll_loads()
    z1st()
    e("s_waitcnt vmcnt(4)")
    e("s_branch m_check")
    k.label("m_poll")
    poll_loads()
    e("s_waitcnt vmcnt(0)")
    k.label("m_check")
    chk()
    e("s_add_u32 s40, s40, 1")
    e("s_nop 0")
    e("s_cbranch_vccz m_poll_done")
    e(f"s_cmp_lt_u32 s40, {SPIN}"); e("s_cbranch_scc1 m_poll")
    k.label("m_poll_done")
    k.stamp(5)
    for i in range(1, 7):
        e(f"v_add_f32 v{PL}, v{PL}, v{PL+4*i}"); e(f"v_add_f32 v{PL+2}, v{PL+2}, v{PL+2+4*i}")
    e(f"v_mov_b32 v{PL+1}, v{PL}"); e(f"v_mov_b32 v{PL+3}, v{PL+2}"); e("s_nop 1")
    e(f"v_permlane32_swap_b32 v{PL}, v{PL+1}"); e(f"v_permlane32_swap_b32 v{PL+2}, v{PL+3}"); e("s_nop 1")
    e(f"v_add_f32 v24, v{PL}, v{PL+1}"); e(f"v_add_f32 v26, v{PL+2}, v{PL+3}")
    e(f"v_mul_f32 v24, {f32(1/864)}, v24"); e(f"v_mul_f32 v26, {f32(1/864)}, v26")
    e("v_fma_f32 v26, -v24, v24, v26")
    ln_finish(k, "v24", "v26", "v25")
    e("s_lshl_b32 s43, s33, 8"); e(f"s_add_u32 s43, s43, {MISC+1536}")
    e("v_and_b32 v4, 31, v1"); e("v_lshl_add_u32 v4, v4, 2, s43"); e("v_lshl_add_u32 v5, v3, 5, s43")
    e("v_mul_f32 v24, v24, v26")
    e("ds_write_b32 v4, v24"); e("ds_write_b32 v4, v26 offset:128")
    e("ds_read_b128 v[28:31], v5"); e("ds_read_b128 v[32:35], v5 offset:16")
    e("ds_read_b128 v[36:39], v5 offset:128"); e("ds_read_b128 v[40:43], v5 offset:144")
    e("s_waitcnt lgkmcnt(0)")
    for c0 in (0, 2):
        A = [accb(0, b, c) + 2*p for c in (c0, c0+1) for b in range(2) for p in range(2)]
        M = [28 + (i % 4)*2 for i in range(8)]
        for i in range(8): e(f"v_pk_fma_f32 {pr(A[i])}, {pr(A[i])}, {pr(M[i]+8)}, {pr(M[i])} neg_lo:[0,0,1] neg_hi:[0,0,1]")
        for i in range(8): e(f"v_cvt_pk_bf16_f32 v{64+4*c0+i}, v{A[i]}, v{A[i]+1}")
        for c in (c0, c0+1): e(f"buffer_store_dwordx4 {v(64+4*c,4)}, v12, s[24:27], s{46+c} offen sc1")
    e("s_lshl_b32 s43, s36, 2")
    e("s_mov_b32 s44, 0x33221000"); e("s_mov_b32 s45, 0x00766554"); e("s_lshr_b64 s[44:45], s[44:45], s43"); e("s_and_b32 s46, s44, 15")
    e("s_mov_b32 s44, 0x44322110"); e("s_mov_b32 s45, 0x00776655"); e("s_lshr_b64 s[44:45], s[44:45], s43"); e("s_and_b32 s47, s44, 15")
    for r in (46, 47):
        e(f"s_lshl_b32 s43, s{r}, 2"); e("s_lshr_b32 s44, 0xca865310, s43"); e("s_and_b32 s44, s44, 15")
        e("s_sub_u32 s44, s36, s44"); e("s_lshl_b32 s44, s44, 4"); e("s_add_u32 s44, s44, s35"); e("s_lshl_b32 s44, s44, 2")
        e(f"s_lshl_b32 s{r}, s{r}, 8"); e(f"s_add_u32 s{r}, s{r}, s44")
    e("v_mov_b32 v6, s46"); e("v_mov_b32 v7, s47"); e("v_cmp_lt_u32 vcc, 31, v1"); e("v_and_b32 v8, 31, v1"); e("v_lshlrev_b32 v8, 11, v8")
    e("v_cndmask_b32 v6, v6, v7, vcc"); e("v_add_u32 v6, v6, v8")
    e(f"v_mov_b32 v4, {W_PF + 8}"); e("v_mov_b32 v5, 1"); e("v_mov_b32 v7, s3"); e(f"s_mov_b32 s44, {FZ2}")
    e("s_mov_b64 exec, 1")
    e("s_waitcnt vmcnt(0)")
    e("ds_add_rtn_u32 v8, v4, v5")
    e("s_waitcnt lgkmcnt(0)")
    e("v_readfirstlane_b32 s43, v8")
    e("s_mov_b64 exec, -1")
    e("s_cmp_lg_u32 s43, 3"); e("s_cbranch_scc1 m_P2")
    e("buffer_store_dword v7, v6, s[60:63], s44 offen sc1")
    gen_p2(k)
    gen_p3(k)
    gen_helper(k, epoch_poll)
    k.label("m_end")
    e("s_endpgm")
    return k.text(256, nsgpr=100)

def gen_p2(k):
    e = k.e
    k.label("m_P2")
    k.stamp(6)
    e("s_load_dwordx2 s[6:7], s[0:1], 80")
    e("s_lshr_b32 s35, s41, 1"); e("s_lshl_b32 s35, s35, 3"); e("s_lshr_b32 s43, s42, 2"); e("s_add_u32 s35, s35, s43")
    e("s_and_b32 s36, s42, 3")
    e("s_and_b32 s43, s41, 1"); e("s_mul_i32 s43, s43, 27"); e("s_mul_i32 s44, s36, 7"); e("s_add_u32 s37, s43, s44")
    e("v_and_b32 v240, 15, v1"); e("v_lshrrev_b32 v241, 4, v1"); e("v_mov_b32 v245, v1")
    e("v_lshrrev_b32 v2, 5, v1"); e("v_lshlrev_b32 v2, 3, v2"); e("v_bfe_u32 v3, v1, 3, 2"); e("v_add_u32 v2, v2, v3")
    e("v_lshlrev_b32 v2, 12, v2")
    e("v_and_b32 v3, 7, v1"); e("v_xor_b32 v3, v3, v241")
    e("v_lshl_add_u32 v242, v3, 4, v2")
    e("v_xor_b32 v3, 4, v3")
    e("v_lshl_add_u32 v243, v3, 4, v2"); e(f"v_add_u32 v243, {16*4096 - 1024}, v243")
    e("v_lshlrev_b32 v244, 4, v1")
    e("s_lshl_b32 s43, s35, 18"); e("s_lshl_b32 s44, s33, 10"); e("s_add_u32 s48, s43, s44")
    e(f"s_add_u32 s49, s48, {4*4096}"); e(f"s_add_u32 s50, s48, {32*4096}"); e(f"s_add_u32 s51, s48, {36*4096}")
    e("s_lshl_b32 s43, s37, 16"); e("s_lshl_b32 s44, s33, 14"); e("s_add_u32 s52, s43, s44")
    for c in range(1, 7): e(f"s_add_u32 s{52+c}, s52, {c*65536}")
    e("s_cmp_eq_u32 s36, 3"); e(f"s_cselect_b32 s58, {HUGE}, s58")
    e(f"s_mul_i32 s39, s33, {RING2}")
    k.srd(16, 10, 11, 2048*4096)
    k.srd(20, 14, 15, ZF_BYTES, WS_Z2F)
    k.srd(24, 14, 15, ZF_BYTES, WS_Z1F)
    k.srd(28, 14, 15, ZF_BYTES, WS_HF)
    def Z(st, c): return v(112 + st*28 + c*4, 4)
    def acc(c, sg): return v((c*4 + sg)*4, 4)
    def wf(sg): return v(224 + 4*sg, 4)
    def issueZ(n):
        if n % 4 == 0 and n:
            for c in range(7): e(f"s_add_u32 s{52+c}, s{52+c}, 4096")
        for c in range(7): k.vmem(f"buffer_load_dwordx4 {Z(n%4,c)}, v244, s[20:23], s{52+c} offen offset:{(n%4)*1024} sc1", f"Z{n}")
    def issueA(c):
        for t in range(4):
            e(f"s_add_u32 m0, s39, {(c%NSLOT)*8192 + t*2048}")
            e("s_nop 0")
            k.vmem(f"buffer_load_dwordx4 v242, s[16:19], s{48+t} offen lds", f"A{c}")
            k.vmem(f"buffer_load_dwordx4 v243, s[16:19], s{48+t} offen offset:1024 lds", f"A{c}")
        for t in range(4): e(f"s_add_u32 s{48+t}, s{48+t}, 128")
    k.vm = []
    e("v_lshrrev_b32 v5, 1, v240"); e("v_xor_b32 v5, v5, v241")
    e("v_lshlrev_b32 v4, 7, v240"); e("v_lshl_add_u32 v4, v5, 4, v4"); e("v_add_u32 v4, s39, v4")
    for sg in range(4):
        e(f"s_xor_b32 s43, s33, {sg}"); e("s_lshl_b32 s43, s43, 11")
        e(f"v_add_u32 v{246+sg}, s43, v4")
        e(f"v_xor_b32 v{250+sg}, 64, v{246+sg}")
    e("s_setprio 0")
    def issueZ1(n, c):
        if n % 4 == 0 and n: e(f"s_add_u32 s{52+c}, s{52+c}, 4096")
        off = (n % 4) * 1024
        if n == 3: e(f"s_sub_u32 s47, s{52+c}, 4096")
        k.vmem(f"buffer_load_dwordx4 {Z(n%4,c)}, v244, s[20:23], s{47 if n == 3 else 52+c} offen offset:{off} sc1", f"Z{n}_{c}")
    def issueA1(c, t):
        if c % NSLOT == 2: e(f"s_add_u32 m0, s38, {t*2048}")
        else: e(f"s_add_u32 m0, s39, {(c%NSLOT)*8192 + t*2048}")
        e("s_nop 0")
        k.vmem(f"buffer_load_dwordx4 v242, s[16:19], s{48+t} offen lds", f"A{c}")
        k.vmem(f"buffer_load_dwordx4 v243, s[16:19], s{48+t} offen offset:1024 lds", f"A{c}")
        e(f"s_add_u32 s{48+t}, s{48+t}, 128")
    e("s_lshl_b32 s38, s33, 13"); e(f"s_add_u32 s38, s38, {XB}"); e("s_sub_u32 s59, s38, s39")
    for t in range(4): e(f"s_add_u32 s{48+t}, s{48+t}, 384")
    def wf1(sg): return v(112 + 3*28 + 4*sg, 4)
    e(f"v_mov_b32 v4, {W_FX + 12}")
    lds_wait(k, "m_wpf0", "v4", "v5", sleep=1)
    for sg in range(4): e(f"ds_read_b128 {wf(sg)}, v{246+sg}")
    for sg in range(4): e(f"ds_read_b128 {wf1(sg)}, v{250+sg}")
    e("s_waitcnt lgkmcnt(0)")
    k.vm = []
    for t in range(4): issueA1(3, t)
    e(f"v_mov_b32 v4, {W_PF}")
    lds_wait(k, "m_wpf", "v4", "v5", sleep=1)
    k.srd(64, 6, 7, 4096)
    e("s_setprio 3")
    k.stamp(7); k.cyc(12)
    for n in range(3):
        for c in range(7): issueZ1(n, c)
    for n in range(16):
        c, ks = n >> 1, n & 1
        W = wf1 if n == 1 else wf
        if ks == 0 and f"A{c}" in k.vm: k.wait_vm(f"A{c}")
        if n >= 2:
            base = 250 if ks else 246
            if c % NSLOT == 2:
                for sg in range(4): e(f"v_add_u32 v{base+sg}, s59, v{base+sg}")
            for sg in range(4):
                e(f"ds_read_b128 {wf(sg)}, v{base+sg} offset:{0 if c % NSLOT == 2 else (c%NSLOT)*8192}")
            if c % NSLOT == 2:
                for sg in range(4): e(f"v_subrev_u32 v{base+sg}, s59, v{base+sg}")
        if n == 15:
            e("v_add_u32 v130, s39, v244"); e("v_add_u32 v131, s38, v244")
            e(f"v_add_u32 v133, {W_R1 - W_GL}, v254")
            if f"Z{n}_6" in k.vm: k.wait_vm(f"Z{n}_6")
            e("s_waitcnt lgkmcnt(0)")
            def pw(sg, cc): return (f"ds_write_b128 v131, {acc(cc,sg)} offset:{cc*1024}" if sg == 3 else f"ds_write_b128 v130, {acc(cc,sg)} offset:{((sg-1)*7+cc)*1024}")
            pend = []
            for sg in (1, 2, 3, 0):
                for cc in range(7):
                    e(f"{MFMA} {acc(cc,sg)}, {Z(n%4,cc)}, {wf(sg)}, {acc(cc,sg)}")
                    if len(pend) > 8 or (sg == 0 and pend and len(pend) + cc > 8): e(pend.pop(0))
                    if sg: pend.append(pw(sg, cc))
            for p_ in pend: e(p_)
            e("ds_write_b32 v133, v255")
            continue
        for cc in range(7):
            if f"Z{n}_{cc}" in k.vm: k.wait_vm(f"Z{n}_{cc}")
            if n == 0 and cc == 0: k.stamp(8)
            for sg in range(4):
                if cc == 0 and n >= 2: e(f"s_waitcnt lgkmcnt({3-sg})")
                e(f"{MFMA} {acc(cc,sg)}, {Z(n%4,cc)}, {W(sg)}, {'0' if n == 0 else acc(cc,sg)}")
            if n + 4 < 16 and n != 1: issueZ1(n + 4, cc)
            if ks == 1 and 0 < c and c + NSLOT < 8 and cc in (0, 2, 4, 6): issueA1(c + NSLOT, cc // 2)
        if n == 1:
            for cc in range(7): issueZ1(3, cc)
            for cc in range(7): issueZ1(5, cc)
        if n == 12:
            e("s_lshl_b32 s43, s35, 2"); e("s_add_u32 s43, s43, s33"); e("s_mul_i32 s44, s43, 27648")
            for cc in range(7):
                e(f"s_add_u32 s45, s37, {cc}"); e("s_lshr_b32 s46, s45, 1"); e("s_lshl_b32 s46, s46, 10"); e("s_and_b32 s45, s45, 1"); e("s_lshl_b32 s45, s45, 3")
                e("s_add_u32 s45, s45, s46"); e(f"s_add_u32 s{52+cc}, s45, s44")
            e("s_cmp_eq_u32 s36, 3"); e(f"s_cselect_b32 s58, {HUGE}, s58")
            for cc in range(7): k.vmem(f"buffer_load_dwordx2 {v(112+2*cc,2)}, v244, s[24:27], s{52+cc} offen sc1", "z1")
            e("s_lshr_b32 s44, s43, 1"); e("s_lshl_b32 s44, s44, 5"); e("s_and_b32 s45, s43, 1"); e("s_lshl_b32 s45, s45, 2"); e("s_add_u32 s44, s44, s45")
            e("v_lshrrev_b32 v128, 2, v240"); e("v_and_b32 v129, 3, v240"); e("v_lshl_add_u32 v128, v128, 3, v129"); e("v_add_u32 v128, s44, v128")
            e("v_lshlrev_b32 v128, 1, v128")
            k.vmem("buffer_load_ushort v126, v128, s[64:67], 0 offen", "z1")
        if n == 8:
            e("s_lshl_b32 s43, s33, 2"); e(f"s_add_u32 s43, s43, {W_GL}"); e("v_mov_b32 v254, s43"); e("v_mov_b32 v255, 1")
            e("ds_write_b32 v254, v255")
        if n == 12:
            e("v_mov_b32 v255, 2"); e("ds_write_b32 v254, v255")
    k.stamp(9); k.cyc(13)
    T = 140
    e("s_xor_b32 s43, s33, 1"); e(f"s_mul_i32 s43, s43, {RING2}"); e("v_add_u32 v130, s43, v244")
    e("s_xor_b32 s43, s33, 2"); e(f"s_mul_i32 s43, s43, {RING2}"); e("v_add_u32 v131, s43, v244")
    e("s_xor_b32 s43, s33, 3"); e("s_lshl_b32 s43, s43, 13"); e(f"s_add_u32 s43, s43, {XB}"); e("v_add_u32 v132, s43, v244")
    e(f"v_mov_b32 v134, {W_R1}")
    e("s_waitcnt vmcnt(0)")
    k.vm = []
    e("v_lshlrev_b32 v126, 16, v126")
    A = [c*16 + 2*p for c in range(7) for p in range(2)]
    Z1 = [c*16 + 4 + 2*p for c in range(7) for p in range(2)]
    e("s_waitcnt lgkmcnt(0)")
    for i in range(14): unpack(k, f"v{Z1[i]}", f"v{Z1[i]+1}", f"v{112+i}")
    for i in range(14): e(f"v_pk_add_f32 {pr(A[i])}, {pr(A[i])}, v[126:127] op_sel_hi:[1,0]")
    lds_wait_ge(k, "m_wr1", "v134", 136, 4, 1)
    for sg in range(3):
        for c in range(7): e(f"ds_read_b128 {v(T+(sg*7+c)*4,4)}, v{130+sg} offset:{(7*1024 if sg == 1 else 0) + c*1024}")
    for sg in range(3):
        e(f"s_waitcnt lgkmcnt({14 - 7*sg})")
        if sg == 2: e("ds_write_b32 v133, v255 offset:16")
        for i in range(14): e(f"v_pk_add_f32 {pr(A[i])}, {pr(A[i])}, {pr(T+sg*28+2*i)}")
    for i in range(14): e(f"v_pk_mul_f32 {pr(A[i])}, {pr(A[i])}, {pr(Z1[i])}")
    for i in range(14): e(f"v_cvt_pk_bf16_f32 v{200+i}, v{A[i]}, v{A[i]+1}")
    e("s_bitcmp1_b32 s37, 0"); e("s_cbranch_scc1 m_hodd")
    for c in (0, 2, 4): e(f"buffer_store_dwordx4 {v(200+2*c,4)}, v244, s[28:31], s{52+c} offen sc1")
    e(f"buffer_store_dwordx2 {v(212,2)}, v244, s[28:31], s58 offen sc1")
    e("s_branch m_hdone")
    k.label("m_hodd")
    e(f"buffer_store_dwordx2 {v(200,2)}, v244, s[28:31], s52 offen sc1")
    for c in (1, 3): e(f"buffer_store_dwordx4 {v(200+2*c,4)}, v244, s[28:31], s{52+c} offen sc1")
    e("s_cmp_eq_u32 s36, 3"); e("s_cbranch_scc1 m_hodd6")
    e(f"buffer_store_dwordx4 {v(210,4)}, v244, s[28:31], s57 offen sc1")
    e("s_branch m_hdone")
    k.label("m_hodd6")
    e(f"buffer_store_dwordx2 {v(210,2)}, v244, s[28:31], s57 offen sc1")
    k.label("m_hdone")
    e("v_mov_b32 v1, v245")
    e("s_and_b32 s43, s41, 1"); e("s_lshl_b32 s43, s43, 2"); e("s_add_u32 s36, s36, s43")
    e(f"v_mov_b32 v4, {W_PF + 4}"); e("v_mov_b32 v5, 1"); e("v_lshlrev_b32 v6, 7, v1"); e("v_mov_b32 v7, s3")
    e("s_lshl_b32 s44, s35, 10"); e("s_lshl_b32 s45, s36, 2"); e("s_add_u32 s44, s44, s45"); e(f"s_add_u32 s44, s44, {FH2}")
    e("s_mov_b64 exec, 1")
    e("s_waitcnt vmcnt(0)")
    e("ds_add_rtn_u32 v8, v4, v5")
    e("s_waitcnt lgkmcnt(0)")
    e("v_readfirstlane_b32 s43, v8")
    e("s_mov_b64 exec, 0xff")
    e("s_cmp_lg_u32 s43, 3"); e("s_cbranch_scc1 m_nopub")
    e("buffer_store_dword v7, v6, s[60:63], s44 offen sc1")
    k.label("m_nopub")
    e("s_mov_b64 exec, -1")
    e("s_setprio 0")
    e("v_and_b32 v2, 15, v1"); e("v_lshrrev_b32 v3, 4, v1")
    e("s_mov_b32 s47, 0"); e("s_mov_b32 s46, 0")

def gen_p3(k):
    e = k.e
    k.label("m_P3")
    k.stamp(10)
    e("s_lshr_b32 s34, s32, 2")
    e("v_lshlrev_b32 v15, 4, v1")
    k.srd(16, 14, 15, WOF_BYTES, WS_WOF)
    k.srd(20, 14, 15, ZF_BYTES, WS_HF)
    k.srd(24, 4, 5, 2048*1280)
    k.srd(28, 98, 99, 2048*1280)
    def H(g, sg): return v(16 + (g*2 + sg)*4, 4)
    def WF(g, db): return v(72 + (g*5 + db)*4, 4)
    def acc(sg, db): return v(212 + (sg*5 + db)*4, 4)
    e("s_cmp_eq_u32 s33, 3"); e(f"s_cselect_b32 s45, {HUGE}, 6144")
    e("s_and_b32 s43, s33, 1"); e("s_lshl_b32 s44, s34, 1"); e("s_add_u32 s57, s43, s44")
    e("s_lshr_b32 s58, s33, 1"); e("s_mul_i32 s58, s58, 3")
    e("s_lshr_b32 s43, s57, 1"); e("s_lshl_b32 s43, s43, 5"); e("s_and_b32 s44, s57, 1"); e("s_lshl_b32 s44, s44, 2"); e("s_add_u32 s59, s43, s44")
    e("s_lshl_b32 s43, s35, 6"); e("s_add_u32 s43, s43, s59")
    e("v_lshrrev_b32 v6, 2, v2"); e("v_and_b32 v7, 3, v2"); e("v_lshl_add_u32 v6, v6, 3, v7"); e("v_add_u32 v6, s43, v6")
    e("v_mul_u32_u24 v6, 1280, v6"); e("v_lshl_add_u32 v6, v3, 3, v6"); e("s_mul_i32 s43, s36, 160"); e("v_add_u32 v14, s43, v6")
    for i in range(3):
        e(f"s_add_u32 s43, s58, {i}"); e(f"s_min_u32 s{68+i}, s43, 4")
        e(f"s_lshl_b32 s{72+i}, s{68+i}, 5")
    k.srd(64, 14, 15, XT_BYTES, WS_YT)
    e("s_lshl_b32 s43, s35, 2"); e("s_lshl_b32 s44, s34, 1"); e("s_add_u32 s43, s43, s44"); e("s_mul_i32 s43, s43, 27"); e("s_mul_i32 s44, s33, 7"); e("s_add_u32 s43, s43, s44")
    e("s_lshl_b32 s46, s43, 10"); e("s_add_u32 s47, s46, 27648")
    e("s_add_u32 s48, s46, 4096"); e("s_add_u32 s49, s47, 4096"); e("s_add_u32 s50, s46, s45"); e("s_add_u32 s51, s47, s45")
    e("s_mul_i32 s43, s33, 35840"); e(f"s_add_u32 s43, s43, {IMG}"); e("v_add_u32 v252, s43, v15")
    e("s_cmp_eq_u32 s33, 3"); e("s_cselect_b32 s43, 5120, 0"); e("v_subrev_u32 v253, s43, v252")
    e("v_and_b32 v4, 7, v1"); e("v_lshlrev_b32 v4, 2, v4")
    e("s_lshl_b32 s44, s35, 10"); e("s_lshl_b32 s43, s36, 7"); e("s_add_u32 s44, s44, s43"); e(f"s_add_u32 s44, s44, {FH2}")
    e("v_min_u32 v254, 39, v1"); e("v_lshlrev_b32 v254, 3, v254")
    e("s_mul_i32 s52, s36, 320"); e(f"s_add_u32 s52, s52, {FY}")
    e("s_cmp_ge_u32 s32, 4"); e("s_cbranch_scc1 m_nwv")
    e("s_waitcnt vmcnt(0)")
    k.label("m_nwv")
    e("s_barrier")
    k.stamp(4)
    e("s_cmp_lg_u32 s32, 3"); e("s_cbranch_scc1 m_nhp")
    e("buffer_load_dword v5, v4, s[60:63], s44 offen sc1")
    k.label("m_nhp")
    e("s_cmp_lg_u32 s32, 2"); e("s_cbranch_scc1 m_nyp")
    e("buffer_load_dwordx2 v[248:249], v254, s[60:63], s52 offen sc1")
    k.label("m_nyp")
    for g in range(7):
        for db in range(5): e(f"ds_read_b128 {WF(g,db)}, v{253 if g == 6 else 252} offset:{g*5120 + db*1024}")
    for i in range(3): e(f"buffer_load_dwordx2 {v(8+2*i,2)}, v14, s[24:27], s{72+i} offen")
    e("v_lshrrev_b32 v244, 3, v1"); e("v_lshlrev_b32 v244, 12, v244"); e("v_and_b32 v245, 7, v1"); e("v_lshl_add_u32 v244, v245, 4, v244")
    e("s_mul_i32 s53, s36, 80"); e("s_lshl_b32 s43, s32, 3"); e("s_add_u32 s53, s53, s43"); e("s_lshl_b32 s53, s53, 12"); e("s_lshl_b32 s43, s35, 7"); e("s_add_u32 s53, s53, s43")
    e("s_cmp_lt_u32 s32, 2"); e(f"s_cselect_b32 s54, {64*4096}, 0"); e("s_cselect_b32 s55, 8192, 0"); e("s_add_u32 s54, s54, s53")
    e("s_lshl_b32 s43, s32, 10"); e(f"s_add_u32 s43, s43, {YTILE}"); e("v_add_u32 v246, s43, v15"); e("v_add_u32 v247, s55, v246")
    e("s_cmp_lg_u32 s32, 3"); e("s_cbranch_scc1 m_hw")
    poll_flags(k, "m_pollh", "v4", FLS, 1, 5, "v6", soff="s44", sleep=2, preloaded=True)
    k.label("m_hw")
    e("s_cmp_lg_u32 s32, 2"); e("s_cbranch_scc1 m_noy")
    poll_flags(k, "m_polly", "v254", FLS, 2, 248, "v5", soff="s52", sleep=8, preloaded=True)
    k.label("m_noy")
    e("s_waitcnt lgkmcnt(0)")
    e("s_barrier")
    k.stamp(11)
    k.vm = []
    k.vmem("buffer_load_dwordx4 v[236:239], v244, s[64:67], s53 offen sc1", "y")
    k.vmem("buffer_load_dwordx4 v[240:243], v244, s[64:67], s54 offen sc1", "y")
    for g in range(7):
        for sg in range(2):
            so = 46 + sg + (0 if g < 4 else 2 if g < 6 else 4)
            k.vmem(f"buffer_load_dwordx4 {H(g,sg)}, v15, s[20:23], s{so} offen offset:{(g%4)*1024 if g < 6 else 0} sc1", f"h{g}")
    e("s_mul_i32 s43, s32, 10240"); e("v_add_u32 v252, s43, v15")
    e("s_mul_i32 s43, s34, 40960"); e("s_and_b32 s44, s33, 1"); e("s_mul_i32 s44, s44, 5120"); e("s_add_u32 s43, s43, s44")
    e("v_bfe_u32 v4, v1, 2, 2"); e("v_lshl_add_u32 v4, v3, 2, v4"); e("v_lshlrev_b32 v4, 7, v4")
    e("v_and_b32 v5, 3, v1"); e("v_lshl_add_u32 v4, v5, 4, v4")
    e("s_lshl_b32 s44, s59, 1"); e(f"s_add_u32 s44, s44, {YTILE}"); e("v_add_u32 v4, s44, v4")
    for i in range(3):
        e(f"s_lshl_b32 s44, s{68+i}, 10"); e("s_add_u32 s44, s44, s43"); e(f"v_add_u32 v{253+i}, s44, v15")
        e(f"s_lshl_b32 s44, s{68+i}, 11"); e(f"v_add_u32 v{5+i}, s44, v4")
    for g in range(7):
        k.wait_vm(f"h{g}")
        if g == 0: e("ds_write_b128 v246, v[236:239]"); e("ds_write_b128 v247, v[240:243]"); e("s_waitcnt lgkmcnt(0)")
        for db in range(5):
            for sg in range(2):
                e(f"{MFMA} {acc(sg,db)}, {WF(g,db)}, {H(g,sg)}, {'0' if g == 0 else acc(sg,db)}")
    e("s_nop 2")
    e("s_nop 1")
    for db in range(5):
        for sg in range(2): e(f"ds_write_b128 v252, {acc(sg,db)} offset:{(sg*5+db)*1024}")
    for i in range(6): unpack(k, f"v{96+2*i}", f"v{97+2*i}", f"v{8+i}")
    e("s_waitcnt lgkmcnt(0)")
    e("s_barrier")
    for i in range(3): e(f"ds_read_b64_tr_b16 {v(24+2*i,2)}, v{5+i}")
    for i in range(3):
        for kq in range(4): e(f"ds_read_b128 {v(32+(i*4+kq)*4,4)}, v{253+i} offset:{kq*10240}")
    e("s_waitcnt lgkmcnt(12)")
    for n in range(6): unpack(k, f"v{112+2*n}", f"v{113+2*n}", f"v{24+n}")
    for n in range(6): e(f"v_pk_add_f32 {pr(96+2*n)}, {pr(96+2*n)}, {pr(112+2*n)}")
    e("s_waitcnt lgkmcnt(0)")
    A = [32 + i*16 + 2*p for i in range(3) for p in range(2)]
    for n in range(6): e(f"v_pk_add_f32 {pr(A[n])}, {pr(A[n])}, {pr(A[n]+4)}"); e(f"v_pk_add_f32 {pr(A[n]+8)}, {pr(A[n]+8)}, {pr(A[n]+12)}")
    for n in range(6): e(f"v_pk_add_f32 {pr(A[n])}, {pr(A[n])}, {pr(A[n]+8)}")
    for n in range(6): e(f"v_pk_add_f32 {pr(A[n])}, {pr(A[n])}, {pr(96+2*n)}")
    for n in range(6): e(f"v_cvt_pk_bf16_f32 v{24+n}, v{A[n]}, v{A[n]+1}")
    for i in range(3): e(f"buffer_store_dwordx2 {v(24+2*i,2)}, v14, s[28:31], s{72+i} offen")
    e("s_lshl_b32 s43, s2, 3"); e("s_add_u32 s43, s43, s32"); e("s_cmp_lg_u32 s43, 4"); e("s_cbranch_scc1 m_fin")
    k.srd(64, 12, 13, 256)
    e("v_mov_b32 v4, 0"); e("s_mov_b64 exec, 1")
    e("buffer_store_dword v4, v4, s[64:67], 0 offen sc1")
    k.label("m_fin")
    k.end(0)

def gen_helper(k, epoch_poll):
    e = k.e
    k.label("m_helper")
    e("s_lshl_b32 s35, s41, 2"); e("s_add_u32 s35, s35, s42"); e("s_sub_u32 s35, s35, 28")
    e("v_and_b32 v2, 15, v1"); e("v_lshrrev_b32 v3, 4, v1")
    e("s_lshl_b32 s43, s32, 3")
    e("v_add_u32 v4, s43, v3")
    e("s_lshl_b32 s44, s35, 6")
    e("v_add_u32 v5, s44, v4"); e("v_mul_u32_u24 v5, 1280, v5"); e("v_lshl_add_u32 v5, v2, 4, v5")
    e("v_add_u32 v6, 5120, v5")
    e("v_mul_u32_u24 v7, 1296, v4"); e("v_lshl_add_u32 v7, v2, 4, v7")
    e("v_mov_b32 v110, 0")
    e("v_and_b32 v4, 31, v1"); e(f"v_lshlrev_b32 v4, 2, v4"); e(f"v_add_u32 v4, {W_EPOCH}, v4")
    e("s_cmp_lg_u32 s32, 4"); e("s_cbranch_scc1 m_hnoclr")
    e("ds_write_b32 v4, v110")
    k.label("m_hnoclr")
    e("s_waitcnt lgkmcnt(0)")
    k.srd(16, 4, 5, 2048*1280)
    k.srd(28, 14, 15, XT_BYTES, WS_XNT)
    k.srd(64, 12, 13, 256)
    k.srd(FLS, 14, 15, FL_BYTES, WS_FL)
    k.srd(20, 96, 97, 864*1280)
    k.vm = []
    for g in range(2):
        for n in range(5):
            k.vmem(f"buffer_load_dwordx4 {v(8+g*20+n*4,4)}, v{5+g}, s[16:19], 0 offen offset:{n*256}", f"x{g}")
    XB = (48, 128)
    for g in range(2):
        k.stamp(1+2*g)
        k.wait_vm(f"x{g}")
        if g == 0: k.vmem("buffer_load_dword v111, v110, s[64:67], 0 offen sc1", "ep")
        X = XB[g]; src = 8 + g*20; M, R = 112 + 4*g, 114 + 4*g
        for n in range(20): unpack(k, f"v{X+2*n}", f"v{X+2*n+1}", f"v{src+n}")
        e(f"v_pk_add_f32 v[88:89], {pr(X)}, {pr(X+4)}"); e(f"v_pk_add_f32 v[90:91], {pr(X+2)}, {pr(X+6)}")
        for n in range(4, 20): e(f"v_pk_add_f32 {pr(88+2*(n%2))}, {pr(88+2*(n%2))}, {pr(X+2*n)}")
        e("v_pk_add_f32 v[88:89], v[88:89], v[90:91]"); e("s_nop 0"); e("v_add_f32 v88, v88, v89")
        for sh in (8, 4, 2, 1):
            e("s_nop 1"); e(f"v_add_f32_dpp v88, v88, v88 row_ror:{sh} row_mask:0xf bank_mask:0xf")
        e(f"v_mul_f32 v{M}, {f32(1/640)}, v88")
        for a_ in range(4): e(f"v_mov_b32 v{92+a_}, 0")
        for n0 in range(0, 20, 4):
            for a_ in range(4): e(f"v_pk_add_f32 {pr(96+2*a_)}, {pr(X+2*(n0+a_))}, {pr(M)} op_sel_hi:[1,0] neg_lo:[0,1] neg_hi:[0,1]")
            for a_ in range(4): e(f"v_pk_fma_f32 {pr(92+2*(a_%2))}, {pr(96+2*a_)}, {pr(96+2*a_)}, {pr(92+2*(a_%2))}")
        e("v_pk_add_f32 v[92:93], v[92:93], v[94:95]"); e("s_nop 0"); e("v_add_f32 v92, v92, v93")
        for sh in (8, 4, 2, 1):
            e("s_nop 1"); e(f"v_add_f32_dpp v92, v92, v92 row_ror:{sh} row_mask:0xf bank_mask:0xf")
        e(f"v_mul_f32 v{R}, {f32(1/640)}, v92")
        ln_finish(k, f"v{M}", f"v{R}", "v89")
    e("s_mov_b32 s40, 0")
    k.label("m_hep")
    e("s_waitcnt vmcnt(0)")
    e("v_readfirstlane_b32 s3, v111")
    e("s_add_u32 s40, s40, 1")
    e("s_cmp_lg_u32 s3, 0"); e("s_cbranch_scc1 m_hepok")
    e("buffer_load_dword v111, v110, s[64:67], 0 offen sc1")
    e(f"s_cmp_lt_u32 s40, {SPIN}"); e("s_cbranch_scc1 m_hep")
    k.label("m_hepok")
    k.vm = []
    k.srd(24, 14, 15, 32768, WS_ST1)
    for r in (113, 115, 117, 119): e(f"v_mov_b32 v{r}, v111")
    e("s_lshl_b32 s43, s35, 10"); e("s_lshl_b32 s44, s32, 7"); e("s_add_u32 s43, s43, s44"); e("v_lshlrev_b32 v5, 4, v3")
    e("v_cmp_eq_u32 vcc, 0, v2"); e("s_and_saveexec_b64 s[44:45], vcc")
    e("buffer_store_dwordx4 v[112:115], v5, s[24:27], s43 offen sc1"); e("buffer_store_dwordx4 v[116:119], v5, s[24:27], s43 offen offset:64 sc1")
    e("s_mov_b64 exec, -1")
    k.stamp(2)
    e("v_lshlrev_b32 v120, 4, v1")
    e("s_lshl_b32 s43, s35, 3"); e("s_add_u32 s43, s43, s32"); e("s_mul_i32 s43, s43, 4352")
    for n in range(4): e(f"buffer_load_dwordx4 v[124:127], v120, s[20:23], s43 offen offset:{n*1024}")
    e("s_add_u32 s43, s43, 4096")
    e(f"buffer_load_dwordx4 v[124:127], v120, s[20:23], s43 offen")
    for g in range(2):
        X = XB[g]; src = 8 + g*20; M, R = 112 + 4*g, 114 + 4*g
        for n in range(20): e(f"v_pk_add_f32 {pr(X+2*n)}, {pr(X+2*n)}, {pr(M)} op_sel_hi:[1,0] neg_lo:[0,1] neg_hi:[0,1]")
        for n in range(20): e(f"v_pk_mul_f32 {pr(X+2*n)}, {pr(X+2*n)}, {pr(R)} op_sel_hi:[1,0]")
        for n in range(20): e(f"v_cvt_pk_bf16_f32 v{src+n}, v{X+2*n}, v{X+2*n+1}")
        for n in range(5):
            e(f"ds_write_b128 v7, {v(src+4*n,4)} offset:{g*4*1296 + n*256}")
    e(f"v_mov_b32 v9, {W_EPOCH}")
    e("s_cmp_lg_u32 s32, 4"); e("s_cbranch_scc1 m_hepdone")
    e("ds_write_b32 v9, v111")
    k.label("m_hepdone")
    e("s_waitcnt lgkmcnt(0)")
    e("s_barrier")
    k.stamp(4)
    e("v_bfe_u32 v4, v1, 2, 2"); e("v_lshl_add_u32 v4, v3, 3, v4"); e("v_mul_u32_u24 v4, 1296, v4")
    e("v_and_b32 v5, 3, v1"); e("v_lshl_add_u32 v4, v5, 3, v4")
    e("s_lshl_b32 s43, s32, 5"); e("v_add_u32 v4, s43, v4")
    e(f"v_add_u32 v5, {32*1296}, v4")
    for n in range(5):
        for th in range(2):
            for hh in range(2):
                e(f"ds_read_b64_tr_b16 {v(16+(n*2+th)*4+hh*2,2)}, v{4+th} offset:{hh*4*1296 + n*256}")
    e("s_mul_i32 s43, s32, 4608"); e("s_add_u32 s43, s43, 90112")
    e("v_mul_u32_u24 v5, 144, v2"); e("v_lshl_add_u32 v5, v3, 4, v5"); e("v_add_u32 v5, s43, v5")
    e("v_lshrrev_b32 v4, 3, v1"); e("v_lshlrev_b32 v6, 12, v4"); e("v_mul_u32_u24 v4, 144, v4"); e("v_and_b32 v7, 7, v1"); e("v_lshl_add_u32 v4, v7, 4, v4"); e("v_add_u32 v4, s43, v4")
    e("v_lshl_add_u32 v6, v7, 4, v6")
    e("s_lshl_b32 s46, s32, 16"); e("s_lshl_b32 s44, s35, 7"); e("s_add_u32 s46, s46, s44"); e("s_add_u32 s47, s46, 32768")
    e("s_waitcnt vmcnt(0) lgkmcnt(0)")
    for n in range(5):
        o = (n % 2) * 2304
        for th in range(2): e(f"ds_write_b128 v5, {v(16+(n*2+th)*4,4)} offset:{o + th*64}")
        for hf in range(2): e(f"ds_read_b128 {v(56+(n*2+hf)*4,4)}, v4 offset:{o + hf*8*144}")
    for n in range(5):
        e(f"s_waitcnt lgkmcnt({min(15, 4*(4-n))})")
        for hf in range(2):
            e(f"buffer_store_dwordx4 {v(56+(n*2+hf)*4,4)}, v6, s[28:31], s{46+hf} offen" + ("" if "wb" in EXP else " sc1"))
        e(f"s_add_u32 s46, s46, {8*65536}"); e(f"s_add_u32 s47, s47, {8*65536}")
    def publish(imm, tag):
        e("s_waitcnt vmcnt(0) lgkmcnt(0)")
        e("s_barrier")
        e("s_cmp_lg_u32 s32, 4"); e(f"s_cbranch_scc1 m_hnp{tag}")
        e("s_lshl_b32 s45, s35, 2"); e(f"s_add_u32 s45, s45, {FX}")
        set_flag(k, FLS, "s45", 0, "v7", "v8")
        k.label(f"m_hnp{tag}")
    e("s_mov_b32 s34, 1000")
    publish(192, "x")
    k.stamp(5)
    e("s_cmp_lt_u32 s32, 4"); e("s_cbranch_scc1 m_Lpost")
    e(f"v_mov_b32 v4, {W_PF + 8}"); e("v_mov_b32 v5, 4"); e("ds_write_b32 v4, v5")
    e("s_branch m_P2")

if __name__ == "__main__":
    import sys
    NAME = "parallel_sum__ssm_conv_s4d__mixer_gmlp__prompt"
    path = sys.argv[1] if len(sys.argv) > 1 else f"cdna_kernels/{NAME}.s"
    t, kd = gen_mega(NAME + "_kernel")
    hdr = open(f"cdna_kernels/{NAME}.s.ref").read().split("; Override launch")[0]
    lst = os.environ.get("LIST", "0") == "1"
    out = hdr + (f"; @launch kernel={NAME}_kernel grid=(256,1,1) block=(512,1,1) lds={LDS_TOTAL}\n" if lst else f"; @launch grid=(256,1,1) block=(512,1,1) lds={LDS_TOTAL}\n")
    out += '.amdgcn_target "amdgcn-amd-amdhsa--gfx950"\n.text\n' + t + '\ntext_end:\n.section .rodata,"a"\n.p2align 6\n' + kd + "\n"
    open(path, "w").write(out)
```

```python
from mega_common import *
FLS = 60
WS_ST1 = 27*MB
RING2 = 16384
CONV0 = 65536
CONV_B = 15360
YTILE = 0 if 'nossh' not in EXP else 81920
PB = 24576 if 'nossh' not in EXP else 0
IMG = 22528
NSLOT = 3
XB = 111616
ZD = int(os.environ.get('ZD', '24'))
ZSL = int(os.environ.get('ZSL', '2'))
ROTM = int(os.environ.get('ROTM', '0'))
WS_KC = 26*MB
KC_BYTES = 640 * 1536

def emit_rt(k):
    e = k.e
    if "m81" in EXP: e("s_lshl_b32 s35, s41, 2"); e("s_lshr_b32 s43, s42, 3"); e("s_add_u32 s35, s35, s43")
    else: e("s_lshr_b32 s35, s41, 1"); e("s_lshl_b32 s35, s35, 3"); e("s_lshr_b32 s43, s42, 2"); e("s_add_u32 s35, s35, s43")
def emit_half(k):
    if "m81" in EXP: k.e("s_bfe_u32 s43, s42, 0x10002")
    else: k.e("s_and_b32 s43, s41, 1")

def conv_params(k):
    e = k.e
    e("s_mul_i32 s34, s41, 28"); e("s_add_u32 s34, s34, s42"); e("s_lshl_b32 s34, s34, 1"); e("s_add_u32 s34, s34, s32")
    e("s_mul_i32 s56, s41, 24"); e("s_add_u32 s56, s56, s42"); e("s_add_u32 s56, s56, 448")
    e("s_cmp_lt_u32 s42, 24"); e("s_cselect_b32 s56, s56, 1000")
    e("s_cmp_eq_u32 s32, 2"); e("s_cselect_b32 s34, s56, s34")
    e("s_cmp_eq_u32 s32, 3"); e("s_cselect_b32 s34, 1000, s34")
    e("s_lshl_b32 s56, s34, 8"); e("s_lshl_b32 s57, s34, 1")
    e("v_lshlrev_b32 v4, 2, v1"); e("v_mov_b32 v5, 0")
    e("s_waitcnt lgkmcnt(0)")
    for a in range(4):
        k.srd(28, 64+2*a, 65+2*a, 640*256)
        e(f"buffer_load_dword v{164+a}, v4, s[28:31], s56 offen")
    k.srd(28, 72, 73, 1280); e("buffer_load_ushort v13, v5, s[28:31], s57 offen")
    k.srd(28, 74, 75, 1280); e("buffer_load_ushort v14, v5, s[28:31], s57 offen")

def gen_mega(name):
    k = Kern(name)
    e = k.e
    e("s_cmp_ge_u32 s2, 256"); e("s_cbranch_scc1 m_end")
    k.stamp_init()
    e("s_load_dwordx2 s[4:5], s[0:1], 0")
    e("s_load_dwordx4 s[8:11], s[0:1], 64")
    e("s_load_dwordx4 s[12:15], s[0:1], 104")
    e("s_load_dwordx4 s[96:99], s[0:1], 88")
    e("v_and_b32 v1, 63, v0")
    e("v_lshrrev_b32 v2, 6, v0")
    e("s_and_b32 s41, s2, 7")
    e("v_readfirstlane_b32 s32, v2")
    e("s_lshr_b32 s42, s2, 3")
    e("s_and_b32 s33, s32, 3")
    e("s_cmp_ge_u32 s42, 28"); e("s_cbranch_scc1 m_helper")
    e("s_mul_i32 s43, s42, 37"); e("s_lshr_b32 s43, s43, 8")
    e("s_mul_i32 s44, s43, 7"); e("s_sub_u32 s44, s42, s44")
    e("s_lshr_b32 s35, s41, 1"); e("s_lshl_b32 s35, s35, 2"); e("s_add_u32 s35, s35, s43")
    e("s_and_b32 s36, s41, 1"); e("s_mul_i32 s36, s36, 7"); e("s_add_u32 s36, s36, s44")
    e("s_cmp_ge_u32 s32, 4"); e("s_cbranch_scc1 m_gemm1")
    e("s_load_dwordx8 s[64:71], s[0:1], 8")
    e("s_load_dwordx4 s[72:75], s[0:1], 40")
    e("v_and_b32 v3, 7, v1")
    e("s_lshl_b32 s39, s32, 13")
    e("s_cmp_ge_u32 s32, 2"); e("s_cbranch_scc1 m_ldB")
    e("s_lshl_b32 s43, s35, 7"); e("s_lshl_b32 s44, s32, 6"); e("s_add_u32 s43, s43, s44")
    e("v_lshrrev_b32 v2, 5, v1"); e("v_lshlrev_b32 v2, 3, v2")
    e("v_bfe_u32 v4, v1, 3, 2"); e("v_add3_u32 v2, v2, v4, s43")
    e("v_mul_u32_u24 v2, 1280, v2")
    e("v_lshrrev_b32 v4, 4, v1"); e("v_xor_b32 v3, v3, v4")
    e("v_lshl_add_u32 v4, v3, 4, v2")
    e("v_xor_b32 v3, 4, v3"); e("v_lshl_add_u32 v5, v3, 4, v2")
    for n in range(8):
        ee, b, Pp = n & 1, (n >> 1) & 1, n >> 2
        e(f"v_add_u32 v{16+n}, {(32*Pp + 4*b + 16*ee)*1280 - (n & 3)*1024}, v{4+ee}")
    e("s_waitcnt lgkmcnt(0)")
    k.srd(16, 4, 5, 2048*1280)
    e("s_mov_b32 s38, 128")
    e("s_branch m_ld")
    k.label("m_ldB")
    e("v_lshrrev_b32 v2, 3, v1"); e("v_mul_u32_u24 v2, 3456, v2")
    e("s_cmp_eq_u32 s32, 2"); e("s_cselect_b32 s44, 1664, 0")
    e("s_lshl_b32 s43, s36, 7"); e("s_add_u32 s43, s43, s44"); e("v_add_u32 v2, s43, v2")
    e("v_bfe_u32 v4, v1, 4, 1"); e("v_lshlrev_b32 v4, 1, v4"); e("v_xor_b32 v3, v3, v4")
    e("v_lshl_add_u32 v4, v3, 4, v2")
    e("v_xor_b32 v3, 4, v3"); e("v_lshl_add_u32 v5, v3, 4, v2")
    for n in range(8):
        e(f"v_add_u32 v{16+n}, {8*n*3456 - (n & 3)*1024}, v{4+(n & 1)}")
    e("s_waitcnt lgkmcnt(0)")
    k.srd(16, 8, 9, 640*3456)
    e(f"s_mov_b32 s38, {64*3456}")
    k.label("m_ld")
    e("s_lshr_b32 s45, s41, 1"); e("s_mul_i32 s45, s45, 5"); e("s_lshr_b32 s45, s45, 1"); e("s_and_b32 s46, s41, 1"); e("s_mul_i32 s46, s46, 5"); e("s_add_u32 s45, s45, s46")
    e("s_and_b32 s46, s42, 1"); e("s_mul_i32 s46, s46, 5"); e("s_add_u32 s45, s45, s46")
    e("s_cmp_ge_u32 s45, 10"); e("s_cselect_b32 s46, 10, 0"); e("s_sub_u32 s45, s45, s46")
    e("s_mul_i32 s37, s45, s38"); e("s_mov_b32 s40, 0")
    for n3 in range(2):
        for g in range(2):
            e(f"s_add_u32 m0, s39, {g*4096}")
            e("s_nop 0")
            for n in range(4): e(f"buffer_load_dwordx4 v{16+g*4+n}, s[16:19], s37 offen offset:{n*1024} lds")
        e("s_add_u32 s39, s39, 32768"); e("s_add_u32 s45, s45, 1"); e("s_cmp_eq_u32 s45, 10"); e("s_cselect_b32 s45, 0, s45"); e("s_mul_i32 s37, s45, s38")
    for g in range(2):
        e(f"s_add_u32 m0, s39, {g*4096}")
        e("s_nop 0")
        for n in range(4): e(f"buffer_load_dwordx4 v{16+g*4+n}, s[16:19], s37 offen offset:{n*1024} lds")
    e("s_add_u32 s39, s39, 32768"); e("s_add_u32 s45, s45, 1"); e("s_cmp_eq_u32 s45, 10"); e("s_cselect_b32 s45, 0, s45"); e("s_mul_i32 s37, s45, s38")
    e("s_mov_b32 s40, 3")
    k.srd(24, 14, 15, 32768, WS_ST1)
    k.srd(48, 12, 13, 256)
    k.srd(20, 10, 11, 2048*4096)
    e("v_bfe_u32 v4, v1, 2, 2"); e("v_lshlrev_b32 v4, 3, v4"); e("v_bfe_u32 v5, v1, 4, 1"); e("v_lshl_add_u32 v4, v5, 2, v4")
    e("v_and_b32 v5, 0x23, v1"); e("v_add_u32 v4, v4, v5"); e("v_lshlrev_b32 v232, 4, v4"); e("v_mov_b32 v233, 0")
    e("s_lshl_b32 s52, s35, 11"); e("s_and_b32 s43, s32, 1"); e("s_lshl_b32 s43, s43, 10"); e("s_add_u32 s52, s52, s43")
    e("s_mul_i32 s34, s41, 28"); e("s_add_u32 s34, s34, s42"); e("s_lshl_b32 s34, s34, 1"); e("s_add_u32 s34, s34, s32")
    e("s_mul_i32 s56, s41, 24"); e("s_add_u32 s56, s56, s42"); e("s_add_u32 s56, s56, 448")
    e("s_cmp_lt_u32 s42, 24"); e("s_cselect_b32 s56, s56, 1000")
    e("s_cmp_eq_u32 s32, 2"); e("s_cselect_b32 s34, s56, s34")
    e("s_cmp_eq_u32 s32, 3"); e("s_cselect_b32 s34, 1000, s34")
    e("s_min_u32 s57, s34, 639"); e("s_lshl_b32 s56, s57, 8"); e("s_lshl_b32 s57, s57, 1")
    e("v_lshl_add_u32 v230, v1, 2, s56"); e("v_mov_b32 v231, s57")
    e("s_getpc_b64 s[28:29]")
    k.label("m_pc")
    e(f"s_sub_u32 s28, s28, m_pc-{name}"); e("s_subb_u32 s29, s29, 0")
    e(f"s_mov_b32 s30, text_end-{name}"); e("s_mov_b32 s31, 0x00020000")
    e("s_and_b32 s54, s42, 15"); e("s_lshl_b32 s54, s54, 2"); e("s_add_u32 s54, s54, s33"); e("s_lshl_b32 s54, s54, 10")
    e("s_lshl_b32 s53, s42, 2"); e("s_add_u32 s53, s53, s32"); e(f"s_mul_i32 s53, s53, {9*1024+384}")
    e("s_lshl_b32 s43, s41, 20"); e("s_add_u32 s53, s53, s43")
    e("v_lshlrev_b32 v2, 4, v1")
    e("s_lshl_b32 s43, s32, 8"); e(f"s_add_u32 s43, s43, {MISC}"); e("v_lshl_add_u32 v6, v1, 2, s43"); e(f"v_mov_b32 v7, {W_EPOCH}")
    k.label("m_ldloop")
    e("s_waitcnt vmcnt(16)")
    e("s_barrier")
    for g in range(2):
        e(f"s_add_u32 m0, s39, {g*4096}")
        e("s_nop 0")
        for n in range(4): e(f"buffer_load_dwordx4 v{16+g*4+n}, s[16:19], s37 offen offset:{n*1024} lds")
    e("s_add_u32 s39, s39, 32768"); e("s_and_b32 s39, s39, 0x1ffff")
    e("s_add_u32 s45, s45, 1"); e("s_cmp_eq_u32 s45, 10"); e("s_cselect_b32 s45, 0, s45"); e("s_mul_i32 s37, s45, s38")
    e("s_add_u32 s40, s40, 1"); e("s_cmp_lt_u32 s40, 10"); e("s_cbranch_scc1 m_ldloop")
    k.stamp(1)
    def pf(n):
        for i in range(n):
            e(f"buffer_load_dwordx4 v[224:227], v2, s[20:23], s53 offen offset:{(i%4)*1024}")
            if i % 4 == 3 or i == n - 1: e(f"s_add_u32 s53, s53, {(i%4+1)*1024}")
    e("buffer_load_dword v234, v233, s[48:51], 0 offen sc1")
    e("buffer_load_dwordx4 v[236:239], v232, s[24:27], s52 offen sc1")
    e("s_waitcnt vmcnt(18)"); e("s_barrier")
    for a_ in range(4): e(f"global_load_dword v{164+a_}, v230, s[{64+2*a_}:{65+2*a_}]")
    e("global_load_ushort v13, v231, s[72:73]"); e("global_load_ushort v14, v231, s[74:75]")
    e("buffer_load_dwordx4 v[224:227], v2, s[28:31], s54 offen")
    P1_, P2_ = (3, 7) if "pfa" in EXP else (0, 5)
    pf(P1_)
    e(f"s_waitcnt vmcnt({17+P1_})"); e("s_barrier")
    pf(P2_)
    e(f"s_waitcnt vmcnt({9+P1_+P2_})"); e("s_barrier")
    e("s_cmp_ge_u32 s32, 2"); e("s_cbranch_scc1 m_st1ok")
    e(f"s_waitcnt vmcnt({7+P1_+P2_})")
    e("s_mov_b32 s40, 0")
    e("s_branch m_st1chk")
    k.label("m_st1poll")
    e("buffer_load_dword v234, v233, s[48:51], 0 offen sc1")
    e("buffer_load_dwordx4 v[236:239], v232, s[24:27], s52 offen sc1")
    e("s_waitcnt vmcnt(0)")
    k.label("m_st1chk")
    e("v_xor_b32 v4, v237, v234"); e("v_xor_b32 v5, v239, v234"); e("v_or_b32 v4, v4, v5")
    e("v_cmp_ne_u32 vcc, 0, v4"); e("v_cmp_eq_u32 s[44:45], 0, v234"); e("s_add_u32 s40, s40, 1")
    e("s_or_b64 vcc, vcc, s[44:45]")
    e(f"s_cmp_ge_u32 s40, {SPIN}"); e("s_cbranch_scc1 m_st1w")
    e("s_cbranch_vccnz m_st1poll")
    k.label("m_st1w")
    e("ds_write_b32 v6, v236"); e("ds_write_b32 v6, v238 offset:512"); e("ds_write_b32 v7, v234")
    k.label("m_st1ok")
    pf(10 - P1_ - P2_)
    e("s_waitcnt lgkmcnt(0)")
    e("s_barrier")
    k.label("m_Lpost")
    k.stamp(2)
    e(f"v_mov_b32 v4, {W_EPOCH}"); e("ds_read_b32 v5, v4")
    k.srd(FLS, 14, 15, FL_BYTES, WS_FL)
    e("v_and_b32 v2, 15, v1"); e("v_lshrrev_b32 v3, 4, v1")
    emit_rt(k)
    e("s_waitcnt lgkmcnt(0)")
    e("v_readfirstlane_b32 s3, v5")
    e("s_cmp_lg_u32 s32, 3"); e("s_cbranch_scc1 m_conv")
    k.srd(16, 10, 11, 2048*4096)
    e("v_lshrrev_b32 v4, 5, v1"); e("v_lshlrev_b32 v4, 3, v4"); e("v_bfe_u32 v5, v1, 3, 2"); e("v_add_u32 v4, v4, v5")
    e("v_lshlrev_b32 v4, 12, v4")
    e("v_and_b32 v5, 7, v1"); e("v_xor_b32 v5, v5, v3")
    e("v_lshl_add_u32 v6, v5, 4, v4")
    e("v_xor_b32 v5, 4, v5"); e("v_lshl_add_u32 v7, v5, 4, v4")
    for n in range(8):
        ee, t = n & 1, n >> 1
        e(f"v_add_u32 v{16+n}, {(32*(t >> 1) + 4*(t & 1) + 16*ee)*4096 - (n & 3)*1024}, v{6+ee}")
    e("s_lshl_b32 s37, s35, 18")
    e(f"s_and_b32 s43, s35, {ROTM}"); e("s_lshl_b32 s43, s43, 8"); e("s_add_u32 s37, s37, s43")
    LATE = "late" in EXP
    def pfloop():
        e("s_mov_b32 s40, 0")
        k.label("m_pfloop")
        e("s_and_b32 s43, s40, 3"); e("s_lshr_b32 s44, s40, 2")
        e(f"s_mul_i32 s49, s43, {RING2}"); e("s_lshl_b32 s46, s44, 13"); e("s_add_u32 s49, s49, s46")
        e("s_lshl_b32 s46, s43, 13"); e(f"s_add_u32 s46, s46, {XB}"); e("s_cmp_eq_u32 s44, 2"); e("s_cselect_b32 s49, s46, s49")
        e("s_lshl_b32 s43, s43, 10"); e("s_lshl_b32 s44, s44, 7"); e("s_add_u32 s43, s43, s44"); e("s_add_u32 s43, s43, s37")
        for g in range(2):
            e(f"s_add_u32 m0, s49, {g*4096}")
            e("s_nop 0")
            for n in range(4): e(f"buffer_load_dwordx4 v{16+g*4+n}, s[16:19], s43 offen offset:{n*1024} lds")
        e(f"s_waitcnt vmcnt({48 if LATE else int(os.environ.get('THR', '40'))})")
        e("s_add_u32 s40, s40, 1"); e("s_cmp_lt_u32 s40, 12"); e("s_cbranch_scc1 m_pfloop")
    if not LATE: pfloop()
    e(f"v_mov_b32 v4, {W_FX + 12}"); e("v_mov_b32 v5, 1"); e("s_waitcnt vmcnt(0)"); e("ds_write_b32 v4, v5")
    k.stamp(3)
    emit_half(k); e("s_lshl_b32 s36, s43, 2"); e("s_and_b32 s43, s42, 3"); e("s_add_u32 s36, s36, s43")
    e("s_cmp_eq_u32 s36, 7"); e("s_cselect_b32 s43, 31, 47")
    e("v_min_u32 v7, s43, v1"); e("v_lshlrev_b32 v7, 2, v7")
    e("s_lshl_b32 s45, s35, 3"); e("s_add_u32 s45, s45, s36"); e("s_lshl_b32 s45, s45, 8"); e(f"s_add_u32 s45, s45, {FZ2}")
    e(f"v_mov_b32 v4, {W_PF + 8}")
    lds_wait_ge(k, "m_wown1", "v4", 5, 1, 4, sleep=2)
    if LATE: pfloop()
    elif ZD: e(f"s_sleep {ZD}")
    poll_flags(k, "m_pollz", "v7", FLS, 1, 5, "v6", soff="s45", sleep=ZSL)
    e(f"v_mov_b32 v4, {W_PF}"); e("v_mov_b32 v5, 1")
    e("ds_write_b32 v4, v5")
    k.stamp(4)
    k.srd(24, 14, 15, WOF_BYTES, WS_WOF)
    k.srd(20, 96, 97, 864*1280); e("s_mov_b32 s38, s2")
    e("v_lshrrev_b32 v4, 3, v1"); e("v_mul_u32_u24 v111, 1280, v4"); e("v_and_b32 v5, 7, v1"); e("v_lshl_add_u32 v111, v5, 4, v111")
    e(f"s_mov_b32 s43, {111616 + 32768}")
    e("v_mul_u32_u24 v4, 128, v4"); e("v_lshl_add_u32 v4, v5, 4, v4"); e("v_add_u32 v4, s43, v4")
    e("v_bfe_u32 v5, v1, 2, 2"); e("v_lshl_add_u32 v5, v3, 2, v5"); e("v_mul_u32_u24 v5, 128, v5"); e("v_and_b32 v6, 3, v1"); e("v_lshl_add_u32 v5, v6, 3, v5"); e("v_add_u32 v5, s43, v5")
    e("v_lshlrev_b32 v6, 4, v1")
    k.vm = []
    for it in range(2):
        e(f"s_add_u32 s43, s38, {256*it}"); e("s_mul_i32 s44, s43, 205"); e("s_lshr_b32 s44, s44, 11"); e("s_mul_i32 s45, s44, 10"); e("s_sub_u32 s45, s43, s45")
        e("s_mul_i32 s46, s44, 40960"); e("s_lshl_b32 s47, s45, 7"); e("s_add_u32 s46, s46, s47")
        for d in range(4):
            e(f"s_lshl_b32 s47, s45, 2"); e(f"s_add_u32 s47, s47, {d}"); e("s_mul_i32 s39, s47, 52"); e("s_lshr_b32 s39, s39, 8")
            e("s_mul_i32 s39, s39, 130"); e("s_add_u32 s47, s47, s39"); e("s_mul_i32 s39, s44, 5"); e("s_add_u32 s47, s47, s39"); e("s_lshl_b32 s47, s47, 10")
            e("s_cmp_lt_u32 s43, 270"); e(f"s_cselect_b32 s{48+it*4+d}, s47, {HUGE}")
        for n in range(4):
            k.vmem(f"buffer_load_dwordx4 {v(16+it*16+n*4,4)}, v111, s[20:23], s46 offen", f"wo{it}")
            e("s_add_u32 s46, s46, 10240")
    for it in range(2):
        k.wait_vm(f"wo{it}")
        for n in range(4): e(f"ds_write_b128 v4, {v(16+it*16+n*4,4)} offset:{n*8*128}")
        for d in range(4):
            for hh in range(2): e(f"ds_read_b64_tr_b16 {v(64+it*16+d*4+hh*2,2)}, v5 offset:{hh*16*128 + d*32}")
    e("s_waitcnt lgkmcnt(0)")
    for it in range(2):
        for d in range(4): e(f"buffer_store_dwordx4 {v(64+it*16+d*4,4)}, v6, s[24:27], s{48+it*4+d} offen sc1")
    if "nossh" not in EXP:
        k.srd(28, 14, 15, ZF_BYTES, WS_HF)
        for i in range(4): e(f"v_mov_b32 v{16+i}, -1")
        e("s_lshl_b32 s43, s35, 2"); e("s_lshr_b32 s44, s36, 1"); e("s_add_u32 s43, s43, s44"); e("s_mul_i32 s43, s43, 27")
        e("s_and_b32 s44, s36, 1"); e("s_mul_i32 s44, s44, 13"); e("s_add_u32 s43, s43, s44"); e("s_lshl_b32 s43, s43, 10")
        for i in range(14):
            e(f"buffer_store_dwordx4 v[16:19], v6, s[28:31], s43 offen offset:{(i%4)*1024} sc1")
            if i % 4 == 3: e("s_add_u32 s43, s43, 4096")
    e("s_lshl_b32 s45, s2, 2"); e(f"s_add_u32 s45, s45, {FK}")
    set_flag(k, FLS, "s45", 0, "v7", "v8")
    e(f"v_mov_b32 v4, {W_GL}")
    lds_wait_ge(k, "m_wgl3", "v4", 8, 4, 1, sleep=8)
    e(f"s_mov_b32 s44, {FK}")
    poll_flags(k, "m_pollx3", "v6", FLS, 4, 8, "v5", soff="s44", sleep=16)
    e(f"v_mov_b32 v4, {W_FX}"); e("v_mov_b32 v5, 1"); e("ds_write_b32 v4, v5")
    e("s_branch m_L3prep")
    k.label("m_conv")
    e("s_cmp_ge_u32 s34, 640"); e("s_cbranch_scc1 m_L3prep")
    e(f"s_mul_i32 s39, s32, {CONV_B}"); e(f"s_add_u32 s39, s39, {CONV0}")
    e(f"s_waitcnt vmcnt({20 if 'pf2' in EXP else 10})")
    kgen_dt(k, "v13")
    kgen_addr(k, "s39", "v2", "v3", "v1")
    e("s_mov_b32 s40, 2")
    e(f"s_mov_b32 s50, {FX}"); e("v_and_b32 v220, 31, v1"); e("v_lshlrev_b32 v220, 2, v220")
    e("v_lshlrev_b32 v15, 4, v1"); e("s_mov_b32 s51, 0")
    k.srd(20, 14, 15, XT_BYTES, WS_XNT)
    k.srd(24, 14, 15, XT_BYTES, WS_YT)
    e("s_lshl_b32 s45, s34, 12")
    uld = [f"buffer_load_dwordx4 {v(200+4*n,4)}, v15, s[20:23], s45 offen offset:{n*1024} sc1" for n in range(4)]
    kgen_loop(k, 164, "v13", "s40",
              top=["s_cmp_lg_u32 s40, 1", "s_cbranch_scc1 m_noprobe", "buffer_load_dword v216, v220, s[60:63], s50 offen sc1", "m_noprobe:"],
              mid=["s_cmp_lg_u32 s40, 1", "s_cbranch_scc1 m_nochk", "s_waitcnt vmcnt(0)", "v_cmp_ne_u32 vcc, s3, v216", "s_nop 1", "s_cbranch_vccnz m_nochk", "s_mov_b32 s51, 1"] + uld + ["m_nochk:"])
    k.stamp(3)
    UO, KC = 8320, 12928
    e(f"s_add_u32 s43, s39, {KC}")
    e("v_max_u32 v4, 1, v3"); e("v_sub_u32 v4, 5, v4")
    e("v_lshlrev_b32 v5, v4, v2")
    e("v_lshlrev_b32 v6, 3, v3")
    e("v_mov_b32 v7, 512"); e("v_cmp_eq_u32 vcc, 2, v3"); e("s_nop 1"); e("v_cndmask_b32 v6, v6, v7, vcc")
    e("v_mov_b32 v7, 768"); e("v_mov_b32 v8, 4"); e("v_mov_b32 v9, 128"); e("v_cmp_eq_u32 vcc, 3, v3"); e("s_nop 1")
    e("v_cndmask_b32 v6, v6, v7, vcc"); e("v_cndmask_b32 v8, v8, v9, vcc")
    e("v_add3_u32 v5, v5, v6, s43")
    e("v_lshlrev_b32 v6, v4, 16"); e("v_add_u32 v6, v5, v6")
    e("v_add_u32 v7, v5, v8"); e("v_add_u32 v8, v6, v8")
    for n in range(8): e(f"v_cvt_pk_bf16_f32 v{24+n}, v{136+2*n}, v{137+2*n}")
    e("ds_write_b32 v5, v24"); e("ds_write_b32 v7, v25"); e("ds_write_b32 v6, v26"); e("ds_write_b32 v8, v27")
    e("v_lshlrev_b32 v9, 6, v2"); e("v_lshl_add_u32 v9, v3, 3, v9"); e("v_add_u32 v9, s43, v9")
    e("v_mov_b32 v20, 0"); e("v_mov_b32 v21, 0"); e("v_mov_b32 v22, 0"); e("v_mov_b32 v23, 0")
    e("v_add_u32 v16, s39, v15")
    e("v_lshl_add_u32 v17, v1, 3, s39")
    e(f"ds_write_b64 v17, v[20:21] offset:{UO}")
    e("v_cmp_gt_u32 vcc, 5, v2"); e("s_and_saveexec_b64 s[46:47], vcc")
    e("ds_write_b64 v9, v[28:29] offset:1024"); e("ds_write_b64 v9, v[30:31] offset:1056")
    e("s_mov_b64 exec, 3")
    e("ds_write_b128 v16, v[20:23] offset:4096"); e(f"ds_write_b128 v16, v[20:23] offset:{4160+4096}")
    e("s_mov_b64 exec, -1")
    e("v_lshlrev_b32 v18, 1, v1"); e(f"s_add_u32 s44, s43, {2*575}"); e("v_sub_u32 v96, s44, v18")
    e("v_and_b32 v19, 1, v1"); e("v_xor_b32 v19, 1, v19"); e("v_lshl_add_u32 v97, v19, 1, v96")
    e("v_lshlrev_b32 v18, 2, v1"); e("s_add_u32 s44, s43, 1020"); e("v_sub_u32 v98, s44, v18")
    e("v_lshlrev_b32 v18, 3, v1"); e(f"s_add_u32 s44, s43, {2*380 - 2}"); e("v_sub_u32 v99, s44, v18")
    e("v_lshlrev_b32 v18, 4, v1"); e(f"s_add_u32 s44, s43, {2*504 - 2}"); e("v_sub_u32 v100, s44, v18")
    EM = []
    for m in range(2):
        o = 128 * (1 - m); A_, B_, X_ = 144 + 3*m, 145 + 3*m, 146 + 3*m
        e(f"ds_read_u16 v{A_}, v96 offset:{o}"); e(f"ds_read_u16 v{B_}, v96 offset:{o+2}"); e(f"ds_read_u16 v{X_}, v97 offset:{o}")
        EM.append([B_, B_, B_, X_, A_, A_, A_, A_, A_])
    for i in range(3): e(f"ds_read_u16 v{150+i}, v98 offset:{2*i}")
    EM.append([152, 152, 151, 151, 151, 150, 150, 150, 150])
    e("s_mov_b32 exec_hi, 0")
    for el, io in enumerate((4, 3, 2, 2, 2, 1, 0, 0, 0)): e(f"ds_read_u16 v{153+el}, v99 offset:{2*io + 2}")
    e("s_mov_b32 exec_lo, 0x80000000")
    e("ds_read_u16 v161, v99")
    e("s_mov_b32 exec_lo, 0"); e("s_mov_b32 exec_hi, -1")
    for el in range(9): e(f"ds_read_u16 v{153+el}, v100 offset:{2*(7 - el) + 2}")
    e("s_mov_b64 exec, -1")
    EM.append(list(range(153, 162)))
    e("v_cmp_eq_u32 vcc, 63, v1"); e("s_nop 0")
    e("s_waitcnt lgkmcnt(0)")
    e("v_cndmask_b32 v161, v161, v20, vcc")
    for m in range(4):
        W = 32 + 16*m; E = EM[m]
        for p in range(4):
            e(f"v_lshl_or_b32 v{W+p}, v{E[2*p+1]}, 16, v{E[2*p]}")
            e(f"v_lshl_or_b32 v{W+8+p}, v{E[2*p+2]}, 16, v{E[2*p+1]}")
        e(f"ds_write_b128 v16, {v(W,4)} offset:{1024*m}")
        e(f"ds_write_b128 v16, {v(W+8,4)} offset:{4160+1024*m}")
    e("s_cmp_eq_u32 s51, 1"); e("s_cbranch_scc1 m_uok")
    poll_flags(k, "m_pollx", "v220", FLS, 1, 216, "v4", soff="s50", sleep=32)
    for u_ in uld: e(u_)
    k.label("m_uok")
    e("s_waitcnt vmcnt(0)")
    for n in range(4): e(f"ds_write_b128 v16, {v(200+4*n,4)} offset:{UO+512+1024*n}")
    k.stamp(5)
    e("v_and_b32 v4, 1, v2"); e("v_xor_b32 v4, 1, v4"); e("v_mul_u32_u24 v4, 4160, v4")
    e("v_lshrrev_b32 v5, 1, v2"); e("v_lshlrev_b32 v6, 2, v3"); e("v_sub_u32 v5, v6, v5")
    e("v_lshl_add_u32 v4, v5, 2, v4"); e("v_add_u32 v4, s39, v4")
    for mp in range(4): e(f"v_add_u32 v{24+mp}, {4*(1023 - 8 - 128*(2*mp+1))}, v4")
    e("v_lshlrev_b32 v5, 5, v2"); e("v_lshl_add_u32 v5, v3, 4, v5")
    e(f"s_add_u32 s43, s39, {UO+480}"); e("v_add_u32 v28, s43, v5")
    def Af(m): return 32 + 4*m
    def Bf(r): return 64 + 4*r
    def ac(cb): return v(96 + 4*cb, 4)
    for i in range(32): e(f"v_mov_b32 v{96+i}, 0")
    e("v_lshlrev_b32 v14, 16, v14")
    e("s_waitcnt lgkmcnt(0)")
    def rdA(m):
        o = 0 if m & 1 else 128
        e(f"ds_read2_b32 {v(Af(m),2)}, v{24+m//2} offset0:{o} offset1:{o+1}"); e(f"ds_read2_b32 {v(Af(m)+2,2)}, v{24+m//2} offset0:{o+2} offset1:{o+3}")
    def rdB(r): e(f"ds_read_b128 {v(Bf(r),4)}, v28 offset:{512*r}")
    for m in range(8): rdA(m); rdB(7-m)
    e("s_mov_b32 s40, 8")
    k.label("m_cloop")
    for r in range(24, 29): e(f"v_subrev_u32 v{r}, 64, v{r}")
    for m in range(8):
        for cb in (range(7, -1, -1) if m == 0 else range(m, 8)):
            if m == 0: e(f"s_waitcnt lgkmcnt({min(3*cb, 15)})")
            e(f"{MFMA} {ac(cb)}, {v(Af(m),4)}, {v(Bf(cb-m),4)}, {ac(cb)}")
        rdA(m); rdB(7-m)
    e("s_sub_u32 s40, s40, 1"); e("s_cmp_lg_u32 s40, 0"); e("s_cbranch_scc1 m_cloop")
    k.stamp(6)
    e("s_waitcnt lgkmcnt(0)")
    e("v_lshlrev_b32 v20, 5, v2"); e("v_lshl_add_u32 v20, v3, 3, v20")
    e(f"s_add_u32 s43, s39, {UO+512}"); e("v_add_u32 v21, s43, v20")
    for cb in range(8): e(f"ds_read_b64 {v(32+2*cb,2)}, v21 offset:{512*cb}")
    e("s_waitcnt lgkmcnt(0)")
    for c0 in (0, 4):
        A = [96 + 4*cb + 2*p for cb in range(c0, c0+4) for p in range(2)]
        U = [32 + 2*cb + p for cb in range(c0, c0+4) for p in range(2)]
        for i in range(8): unpack(k, f"v{72+2*i}", f"v{73+2*i}", f"v{U[i]}")
        for i in range(8): e(f"v_pk_fma_f32 {pr(A[i])}, {pr(72+2*i)}, v[14:15], {pr(A[i])} op_sel_hi:[1,0,1]")
        for i in range(8): e(f"v_cvt_pk_bf16_f32 v{U[i]}, v{A[i]}, v{A[i]+1}")
        for cb in range(c0, c0+4): e(f"ds_write_b64 v21, {v(32+2*cb,2)} offset:{512*cb}")
    for n in range(4): e(f"ds_read_b128 {v(64+4*n,4)}, v16 offset:{UO+512+1024*n}")
    for n in range(4):
        e(f"s_waitcnt lgkmcnt({3-n})")
        e(f"buffer_store_dwordx4 {v(64+4*n,4)}, v15, s[24:27], s45 offen offset:{1024*n} sc1")
    e("s_lshl_b32 s43, s34, 2"); e(f"s_add_u32 s43, s43, {FY}")
    set_flag(k, FLS, "s43", 0, "v4", "v5")
    k.stamp(7)
    k.label("m_L3prep")
    e("s_waitcnt vmcnt(0)")
    emit_half(k); e("s_lshl_b32 s36, s43, 2"); e("s_and_b32 s43, s42, 3"); e("s_add_u32 s36, s36, s43")
    e(f"v_mov_b32 v4, {W_GL}")
    lds_wait_ge(k, "m_wgl", "v4", 8, 4, 2, sleep=8)
    e(f"v_mov_b32 v4, {W_FX}")
    lds_wait(k, "m_wfw", "v4", "v5", sleep=2)
    k.stamp(8)
    k.srd(16, 14, 15, WOF_BYTES, WS_WOF)
    e("v_lshlrev_b32 v15, 4, v1")
    def wo_load(name):
        e("s_lshl_b32 s46, s46, 10"); e("s_mul_i32 s48, s36, 138240"); e("s_add_u32 s48, s48, s46"); e(f"s_add_u32 s46, s46, {IMG}")
        k.label(name)
        e("s_mov_b32 m0, s46"); e("s_add_u32 s46, s46, 1024")
        e("buffer_load_dwordx4 v15, s[16:19], s48 offen sc1 lds")
        e("s_add_u32 s48, s48, 1024"); e("s_sub_u32 s47, s47, 1"); e("s_cmp_lg_u32 s47, 0"); e(f"s_cbranch_scc1 {name}")
    e("s_mul_i32 s46, s33, 15"); e("s_add_u32 s46, s46, 42"); e("s_mov_b32 s47, 15")
    e("s_cmp_eq_u32 s33, 3"); e("s_cselect_b32 s46, 119, s46"); e("s_cselect_b32 s47, 16, s47")
    wo_load("m_wo1")
    if "stg" in EXP:
        e("s_mul_i32 s46, s33, 21"); e("s_mul_i32 s43, s33, 11"); e("s_add_u32 s43, s43, 65")
        e("s_cmp_ge_u32 s33, 2"); e("s_cselect_b32 s46, s43, s46")
        e("s_lshl_b32 s46, s46, 10"); e("s_mul_i32 s48, s36, 138240"); e("s_add_u32 s48, s48, s46"); e(f"s_add_u32 s46, s46, {IMG}")
        e("v_add_u32 v6, s46, v15")
        for i in range(21):
            e(f"buffer_load_dwordx4 {v(72+4*i,4)}, v15, s[16:19], s48 offen offset:{(i%4)*1024} sc1")
            if i % 4 == 3: e("s_add_u32 s48, s48, 4096")
        e(f"v_mov_b32 v4, {W_R2}")
        lds_wait_ge(k, "m_wr3", "v4", 8, 4, 1, sleep=1)
        e("s_waitcnt vmcnt(0)")
        for i in range(21): e(f"ds_write_b128 v6, {v(72+4*i,4)} offset:{i*1024}")
    else:
        e(f"v_mov_b32 v4, {W_R2}")
        lds_wait_ge(k, "m_wr3", "v4", 8, 4, 1, sleep=1)
        e("s_mul_i32 s46, s33, 21"); e("s_mov_b32 s47, 21")
        e("s_lshl_b32 s43, s33, 4"); e("s_add_u32 s43, s43, 55")
        e("s_cmp_ge_u32 s33, 2"); e("s_cselect_b32 s46, s43, s46"); e("s_cselect_b32 s47, 16, s47")
        wo_load("m_wo2")
    e("s_branch m_P3")

    k.label("m_gemm1")
    e("v_and_b32 v2, 15, v1"); e("v_lshrrev_b32 v3, 4, v1")
    e("v_lshlrev_b32 v12, 4, v1")
    e("v_add_u32 v13, 4096, v12")
    PL = 200
    def poll_loads():
        for i in range(7):
            e(f"buffer_load_dwordx4 {v(PL+4*i,4)}, v{12 if i < 4 else 13}, s[28:31], s72 offen offset:{(i%4)*1024} sc1")
    e("v_mov_b32 v10, 0")
    e("v_and_b32 v4, 31, v1"); e(f"v_lshlrev_b32 v4, 2, v4"); e(f"v_add_u32 v4, {W_EPOCH}, v4")
    e("ds_write_b32 v4, v10")
    e("s_waitcnt lgkmcnt(0)")
    k.srd(64, 12, 13, 256)
    e("s_cmp_lg_u32 s2, 0"); e("s_cbranch_scc1 m_noep")
    e("s_cmp_lg_u32 s32, 4"); e("s_cbranch_scc1 m_noep")
    e("s_memrealtime s[44:45]"); e("s_waitcnt lgkmcnt(0)"); e("s_or_b32 s44, s44, 1"); e("v_mov_b32 v4, s44")
    e("s_mov_b64 exec, 1")
    e("buffer_store_dword v4, v10, s[64:67], 0 offen sc1")
    e("s_mov_b64 exec, -1")
    k.label("m_noep")
    e("s_lshl_b32 s43, s35, 2"); e("s_add_u32 s43, s43, s33"); e(f"s_mul_i32 s72, s43, {14*512}")
    e("s_lshl_b32 s44, s36, 9"); e("s_add_u32 s73, s72, s44")
    e("s_lshl_b32 s74, s36, 6"); e("s_add_u32 s74, s74, s43"); e("s_lshl_b32 s74, s74, 2")
    e("v_and_b32 v4, 7, v1"); e("v_lshl_add_u32 v4, v3, 3, v4"); e("v_bfe_u32 v5, v1, 3, 1"); e("v_lshlrev_b32 v5, 3, v5")
    e("v_lshl_add_u32 v230, v4, 4, v5")
    k.srd(28, 14, 15, ST2_BYTES, WS_ST2)
    k.srd(24, 14, 15, ZF_BYTES, WS_Z2F)
    k.srd(20, 14, 15, ZF_BYTES, WS_Z1F)
    k.srd(FLS, 14, 15, FL_BYTES, WS_FL)
    for c in range(4):
        e(f"s_xor_b32 s43, s33, {c}")
        e("s_lshl_b32 s44, s36, 2"); e("s_add_u32 s43, s43, s44"); e("s_sub_u32 s43, s43, 2")
        e(f"s_cmp_lt_u32 s43, 54"); e(f"s_cselect_b32 s{50+c}, -1, 0")
        e("s_cselect_b32 s43, s43, 60")
        e(f"s_lshl_b32 s{46+c}, s43, 16")
        e("s_lshl_b32 s44, s35, 2"); e("s_add_u32 s44, s44, s33"); e("s_lshl_b32 s44, s44, 10")
        e(f"s_add_u32 s{46+c}, s{46+c}, s44")
    for b in range(2):
        for g in range(2):
            e("s_lshr_b32 s43, s33, 1"); e(f"s_xor_b32 s43, s43, {g}"); e("s_lshl_b32 s44, s36, 1"); e("s_add_u32 s43, s43, s44")
            e("s_lshl_b32 s44, s35, 3"); e("s_lshl_b32 s45, s33, 1"); e("s_add_u32 s44, s44, s45"); e(f"s_add_u32 s44, s44, {b}")
            e("s_mul_i32 s44, s44, 27"); e("s_add_u32 s44, s44, s43"); e("s_lshl_b32 s44, s44, 10")
            e("s_cmp_lt_u32 s43, 27"); e(f"s_cselect_b32 s{68+b*2+g}, s44, {HUGE}")
    e("v_and_b32 v4, 2, v1"); e("v_and_b32 v5, 1, v1")
    e("v_cmp_ne_u32 s[54:55], 0, v4"); e("v_cmp_ne_u32 s[56:57], 0, v5")
    e("s_lshl_b32 s43, s33, 5")
    e("v_add_u32 v4, s43, v2"); e("v_lshlrev_b32 v4, 7, v4")
    e("v_lshrrev_b32 v5, 1, v2"); e("v_xor_b32 v5, v5, v3")
    e("v_lshl_add_u32 v14, v5, 4, v4")
    e("v_xor_b32 v15, 64, v14")
    e("v_bfe_u32 v4, v1, 2, 2")
    e("v_lshl_add_u32 v5, v3, 3, v4"); e("v_lshlrev_b32 v5, 7, v5")
    e("v_and_b32 v6, 3, v1"); e("v_lshl_add_u32 v5, v6, 3, v5")
    e("v_add_u32 v5, 16384, v5")
    e("v_lshrrev_b32 v6, 1, v4"); e("v_and_b32 v7, 1, v3"); e("v_lshl_or_b32 v6, v7, 1, v6")
    e("v_xor_b32 v6, s33, v6")
    for c in range(4):
        e(f"v_xor_b32 v7, {c}, v6"); e(f"v_lshl_add_u32 v{16+c}, v7, 5, v5")
    for i in range(4): e(f"v_mov_b32 v{20+i}, 0x3f803f80")
    ACC = 104
    for i in range(ACC, 192): e(f"v_mov_b32 v{i}, 0")
    def xf(ks, b): return v(24 + 40*ks + 4*b, 4)
    def wfb(ks, h, c): return 24 + 40*ks + 8 + 16*h + 4*c
    def wf(ks, h, c): return v(wfb(ks, h, c), 4)
    def accb(h, b, c): return ACC + 32*h + (b*4 + c)*4
    def acc(h, b, c): return v(accb(h, b, c), 4)
    def rlist(ks):
        L = [f"ds_read_b128 {xf(ks,b)}, v{14+ks} offset:{2048*b}" for b in range(2)]
        for h in range(2):
            for c in range(4):
                for hh in range(2):
                    L.append(f"ds_read_b64_tr_b16 {v(wfb(ks,h,c)+2*hh,2)}, v{16+c} offset:{h*8192+ks*4096+hh*512}")
        if "few" in EXP: L = L[:2] + L[:2] + L[2:10]
        if "zerord" in EXP: L = L[:1]
        return L
    def mlist(ks):
        L = []
        for h in range(2):
            L.append(f"{MFMA} {v(184+4*h,4)}, v[20:23], {wf(ks,h,0)}, {v(184+4*h,4)}")
            for c in range(4):
                for b in range(2):
                    if h == 0: L.append(f"{MFMA} {acc(h,b,c)}, {xf(ks,b)}, {wf(ks,h,c)}, {acc(h,b,c)}")
                    else:      L.append(f"{MFMA} {acc(h,b,c)}, {wf(ks,h,c)}, {xf(ks,b)}, {acc(h,b,c)}")
        return L
    def phase(ks, rd, extra=()):
        M = mlist(ks); R = list(rd); X = list(extra)
        for i, m in enumerate(M):
            e(m)
            if R: e(R.pop(0))
            if R and i < 4: e(R.pop(0))
            elif X and not R:
                for _ in range(3):
                    if X: e(X.pop(0))
        for x in X: e(x)
    bump = [f"v_add_u32 v{r}, 0x8000, v{r}" for r in range(14, 20)]
    wrap = [f"v_and_b32 v{r}, 0x1ffff, v{r}" for r in range(14, 20)]
    e("s_lshl_b32 s43, s33, 6"); e(f"s_add_u32 s43, s43, {MISC+1024}"); e("v_lshl_add_u32 v196, v2, 2, s43")
    for c in range(4):
        e(f"s_xor_b32 s43, s33, {c}"); e(f"s_lshl_b32 s43, s43, 6"); e(f"s_add_u32 s43, s43, {MISC+1024}")
        e(f"v_lshl_add_u32 v{232+c}, v2, 2, s43"); e(f"v_lshl_add_u32 v{236+c}, v3, 4, s43")
    e("s_lshl_b32 s43, s33, 7"); e(f"s_add_u32 s43, s43, {MISC}")
    e("v_lshl_add_u32 v7, v2, 2, s43"); e("v_lshl_add_u32 v8, v3, 4, s43"); e(f"v_mov_b32 v9, {W_EPOCH}")
    k.stamp(1)
    e("s_mov_b32 s40, 10")
    e("s_barrier")
    k.stamp(2)
    for r in rlist(0): e(r)
    k.label("m_loop1")
    e("s_waitcnt lgkmcnt(0)")
    phase(0, rlist(1), bump + wrap)
    e("s_sub_u32 s40, s40, 1"); e("s_cmp_eq_u32 s40, 0")
    e("s_waitcnt lgkmcnt(0)")
    e(f"s_cbranch_scc1 m_tail1")
    e("s_barrier")
    phase(1, rlist(0))
    e(f"s_branch m_loop1")
    k.label(f"m_tail1")
    phase(1, [])
    e("s_setprio 2")
    k.stamp(3)
    epoch_poll = None
    e("ds_write_b32 v196, v184"); e("ds_write_b32 v196, v188 offset:256")
    e("s_waitcnt lgkmcnt(0)")
    e("s_barrier")
    e("ds_read_b128 v[24:27], v8"); e("ds_read_b128 v[28:31], v8 offset:64")
    e("ds_read_b128 v[32:35], v8 offset:512"); e("ds_read_b128 v[36:39], v8 offset:576")
    for c in range(4): e(f"ds_read_b32 v{40+2*c}, v{232+c}")
    e("ds_read_b32 v229, v9")
    for c in range(4): e(f"ds_read_b128 {v(64+4*c,4)}, v{236+c} offset:256")
    e("ds_read_b32 v80, v7"); e("ds_read_b32 v82, v7 offset:64"); e("ds_read_b32 v84, v7 offset:512"); e("ds_read_b32 v86, v7 offset:576")
    e(f"v_mov_b32 v88, {f32(GC1)}"); e(f"v_mov_b32 v90, {f32(GC0)}")
    e("s_waitcnt lgkmcnt(8)")
    e("v_readfirstlane_b32 s3, v229")
    e("s_cmp_lg_u32 s36, 0"); e("s_cbranch_scc1 m_nomask")
    for c in range(4):
        e(f"v_and_b32 v{40+2*c}, s{50+c}, v{40+2*c}")
        for b in range(2):
            for r in range(4): e(f"v_and_b32 v{accb(0,b,c)+r}, s{50+c}, v{accb(0,b,c)+r}")
    k.label("m_nomask")
    def gelu_pairs(A):
        n = len(A); T = [48 + 2*i for i in range(n)]
        for i in range(n): e(f"v_pk_mul_f32 {pr(T[i])}, {pr(A[i])}, {pr(A[i])}")
        for i in range(n): e(f"v_pk_fma_f32 {pr(T[i])}, {pr(T[i])}, v[88:89], v[90:91] op_sel_hi:[1,0,0]")
        for i in range(n): e(f"v_pk_mul_f32 {pr(T[i])}, {pr(T[i])}, {pr(A[i])}")
        for i in range(n): e(f"v_exp_f32 v{T[i]}, v{T[i]}"); e(f"v_exp_f32 v{T[i]+1}, v{T[i]+1}")
        for i in range(n): e(f"v_pk_add_f32 {pr(T[i])}, {pr(T[i])}, 1.0 op_sel_hi:[1,0]")
        for i in range(n): e(f"v_rcp_f32 v{T[i]}, v{T[i]}"); e(f"v_rcp_f32 v{T[i]+1}, v{T[i]+1}")
        for i in range(n): e(f"v_pk_mul_f32 {pr(A[i])}, {pr(A[i])}, {pr(T[i])}")
    for c0 in (0, 2):
        A = [accb(0, b, c) + 2*p for c in (c0, c0+1) for b in range(2) for p in range(2)]
        M = [24 + 4*b + 2*p for c in (c0, c0+1) for b in range(2) for p in range(2)]
        C = [40 + 2*c for c in (c0, c0+1) for b in range(2) for p in range(2)]
        for i in range(8): e(f"v_pk_fma_f32 {pr(A[i])}, {pr(M[i])}, {pr(C[i])}, {pr(A[i])} op_sel_hi:[1,0,1] neg_lo:[1,0,0] neg_hi:[1,0,0]")
        for i in range(8): e(f"v_pk_mul_f32 {pr(A[i])}, {pr(A[i])}, {pr(M[i]+8)}")
        gelu_pairs(A)
        for i in range(8):
            n = (i % 4) * 2
            e(f"v_pk_add_f32 {pr(168+n)}, {pr(168+n)}, {pr(A[i])}")
            e(f"v_pk_fma_f32 {pr(176+n)}, {pr(A[i])}, {pr(A[i])}, {pr(176+n)}")
    e("s_nop 0")
    for n in range(8): e(f"v_add_f32_dpp v{48+n}, v{168+n}, v{168+n} row_ror:8 row_mask:0xf bank_mask:0x3")
    for n in range(8): e(f"v_add_f32_dpp v{48+n}, v{176+n}, v{176+n} row_ror:8 row_mask:0xf bank_mask:0xc")
    for n in range(4): e(f"v_add_f32_dpp v{168+n}, v{48+n}, v{48+n} row_half_mirror row_mask:0xf bank_mask:0x5")
    for n in range(4): e(f"v_add_f32_dpp v{168+n}, v{52+n}, v{52+n} row_half_mirror row_mask:0xf bank_mask:0xa")
    for n in range(2):
        e(f"v_cndmask_b32 v{172+n}, v{170+n}, v{168+n}, s[54:55]")
        e(f"v_cndmask_b32 v{174+n}, v{168+n}, v{170+n}, s[54:55]")
    e("s_nop 0")
    for n in range(2): e(f"v_add_f32_dpp v{176+n}, v{172+n}, v{174+n} quad_perm:[2,3,0,1] row_mask:0xf bank_mask:0xf")
    e("v_cndmask_b32 v172, v177, v176, s[56:57]"); e("v_cndmask_b32 v174, v176, v177, s[56:57]")
    e("s_nop 1")
    e("v_add_f32_dpp v228, v172, v174 quad_perm:[1,0,3,2] row_mask:0xf bank_mask:0xf")
    e("buffer_store_dwordx2 v[228:229], v230, s[28:31], s73 offen sc1")
    if "lowp" in EXP: e("s_setprio 0")
    k.stamp(4)
    e("s_waitcnt lgkmcnt(0)")
    P1 = 168
    for c0 in (0, 2):
        A = [accb(1, b, c) + 2*p for c in (c0, c0+1) for b in range(2) for p in range(2)]
        M = [80 + 2*b for c in (c0, c0+1) for b in range(2) for p in range(2)]
        C = [64 + 4*c + 2*p for c in (c0, c0+1) for b in range(2) for p in range(2)]
        for i in range(8): e(f"v_pk_fma_f32 {pr(A[i])}, {pr(M[i])}, {pr(C[i])}, {pr(A[i])} op_sel_hi:[0,1,1] neg_lo:[1,0,0] neg_hi:[1,0,0]")
        for i in range(8): e(f"v_pk_mul_f32 {pr(A[i])}, {pr(A[i])}, {pr(M[i]+4)} op_sel_hi:[1,0]")
        gelu_pairs(A)
        i = 0
        for c in (c0, c0+1):
            for b in range(2):
                for p in range(2):
                    e(f"v_cvt_pk_bf16_f32 v{P1+b*8+c*2+p}, v{A[i]}, v{A[i]+1}"); i += 1
        if c0 == (2 if 'pt1' in EXP else 0): poll_loads()
    e("s_bitcmp1_b32 s33, 0"); e("s_cbranch_scc0 m_noswap")
    for b in range(2):
        for g in range(2):
            for p in range(2):
                r0 = P1 + b*8 + g*4 + p
                e(f"v_swap_b32 v{r0}, v{r0+2}")
    k.label("m_noswap")
    e("s_setprio 2")
    def z1st():
        for b in range(2):
            for g in range(2):
                e(f"buffer_store_dwordx4 {v(P1+b*8+g*4,4)}, v12, s[20:23], s{68+b*2+g} offen sc1")
    def chk():
        e(f"v_xor_b32 v4, v{PL+1}, v229"); e(f"v_xor_b32 v5, v{PL+3}, v229")
        for i in range(1, 7):
            e(f"v_xor_b32 v9, v{PL+1+4*i}, v229"); e(f"v_xor_b32 v10, v{PL+3+4*i}, v229")
            e("v_or3_b32 v4, v4, v9, v10")
        e("v_or_b32 v4, v4, v5")
        e("v_cmp_ne_u32 vcc, 0, v4")
    e("s_mov_b32 s40, 0")
    e("s_waitcnt vmcnt(0)")
    chk()
    e("s_nop 1")
    e("s_cbranch_vccnz m_repoll")
    z1st()
    e("s_branch m_poll_done")
    k.label("m_repoll")
    poll_loads()
    z1st()
    e("s_waitcnt vmcnt(4)")
    e("s_branch m_check")
    k.label("m_poll")
    poll_loads()
    e("s_waitcnt vmcnt(0)")
    k.label("m_check")
    chk()
    e("s_add_u32 s40, s40, 1")
    e("s_nop 0")
    e("s_cbranch_vccz m_poll_done")
    e(f"s_cmp_lt_u32 s40, {SPIN}"); e("s_cbranch_scc1 m_poll")
    k.label("m_poll_done")
    k.stamp(5)
    for i in range(1, 7):
        e(f"v_add_f32 v{PL}, v{PL}, v{PL+4*i}"); e(f"v_add_f32 v{PL+2}, v{PL+2}, v{PL+2+4*i}")
    e(f"v_mov_b32 v{PL+1}, v{PL}"); e(f"v_mov_b32 v{PL+3}, v{PL+2}"); e("s_nop 1")
    e(f"v_permlane32_swap_b32 v{PL}, v{PL+1}"); e(f"v_permlane32_swap_b32 v{PL+2}, v{PL+3}"); e("s_nop 1")
    e(f"v_add_f32 v24, v{PL}, v{PL+1}"); e(f"v_add_f32 v26, v{PL+2}, v{PL+3}")
    e(f"v_mul_f32 v24, {f32(1/864)}, v24"); e(f"v_mul_f32 v26, {f32(1/864)}, v26")
    e("v_fma_f32 v26, -v24, v24, v26")
    ln_finish(k, "v24", "v26", "v25")
    e("s_lshl_b32 s43, s33, 8"); e(f"s_add_u32 s43, s43, {MISC+1536}")
    e("v_and_b32 v4, 31, v1"); e("v_lshl_add_u32 v4, v4, 2, s43"); e("v_lshl_add_u32 v5, v3, 5, s43")
    e("v_mul_f32 v24, v24, v26")
    e("ds_write_b32 v4, v24"); e("ds_write_b32 v4, v26 offset:128")
    e("ds_read_b128 v[28:31], v5"); e("ds_read_b128 v[32:35], v5 offset:16")
    e("ds_read_b128 v[36:39], v5 offset:128"); e("ds_read_b128 v[40:43], v5 offset:144")
    e("s_waitcnt lgkmcnt(0)")
    for c0 in (0, 2):
        A = [accb(0, b, c) + 2*p for c in (c0, c0+1) for b in range(2) for p in range(2)]
        M = [28 + (i % 4)*2 for i in range(8)]
        for i in range(8): e(f"v_pk_fma_f32 {pr(A[i])}, {pr(A[i])}, {pr(M[i]+8)}, {pr(M[i])} neg_lo:[0,0,1] neg_hi:[0,0,1]")
        for i in range(8): e(f"v_cvt_pk_bf16_f32 v{64+4*c0+i}, v{A[i]}, v{A[i]+1}")
        for c in (c0, c0+1): e(f"buffer_store_dwordx4 {v(64+4*c,4)}, v12, s[24:27], s{46+c} offen sc1")
    e("s_lshl_b32 s43, s36, 2")
    e("s_mov_b32 s44, 0x33221000"); e("s_mov_b32 s45, 0x00766554"); e("s_lshr_b64 s[44:45], s[44:45], s43"); e("s_and_b32 s46, s44, 15")
    e("s_mov_b32 s44, 0x44322110"); e("s_mov_b32 s45, 0x00776655"); e("s_lshr_b64 s[44:45], s[44:45], s43"); e("s_and_b32 s47, s44, 15")
    for r in (46, 47):
        e(f"s_lshl_b32 s43, s{r}, 2"); e("s_lshr_b32 s44, 0xca865310, s43"); e("s_and_b32 s44, s44, 15")
        e("s_sub_u32 s44, s36, s44"); e("s_lshl_b32 s44, s44, 4"); e("s_add_u32 s44, s44, s35"); e("s_lshl_b32 s44, s44, 2")
        e(f"s_lshl_b32 s{r}, s{r}, 8"); e(f"s_add_u32 s{r}, s{r}, s44")
    e("v_mov_b32 v6, s46"); e("v_mov_b32 v7, s47"); e("v_cmp_lt_u32 vcc, 31, v1"); e("v_and_b32 v8, 31, v1"); e("v_lshlrev_b32 v8, 11, v8")
    e("v_cndmask_b32 v6, v6, v7, vcc"); e("v_add_u32 v6, v6, v8")
    e(f"v_mov_b32 v4, {W_PF + 8}"); e("v_mov_b32 v5, 1"); e("v_mov_b32 v7, s3"); e(f"s_mov_b32 s44, {FZ2}")
    e("s_mov_b64 exec, 1")
    e("s_waitcnt vmcnt(0)")
    e("ds_add_rtn_u32 v8, v4, v5")
    e("s_waitcnt lgkmcnt(0)")
    e("v_readfirstlane_b32 s43, v8")
    e("s_mov_b64 exec, -1")
    e("s_cmp_lg_u32 s43, 3"); e("s_cbranch_scc1 m_P2")
    e("buffer_store_dword v7, v6, s[60:63], s44 offen sc1")
    gen_p2(k)
    gen_p3(k)
    gen_helper(k, epoch_poll)
    k.label("m_end")
    e("s_endpgm")
    return k.text(256, nsgpr=100)

def gen_p2(k):
    e = k.e
    k.label("m_P2")
    k.stamp(6)
    e("s_load_dwordx2 s[6:7], s[0:1], 80")
    emit_rt(k)
    e("s_and_b32 s36, s42, 3")
    emit_half(k); e("s_mul_i32 s43, s43, 27"); e("s_mul_i32 s44, s36, 7"); e("s_add_u32 s37, s43, s44")
    e("v_and_b32 v240, 15, v1"); e("v_lshrrev_b32 v241, 4, v1"); e("v_mov_b32 v245, v1")
    e("v_lshrrev_b32 v2, 5, v1"); e("v_lshlrev_b32 v2, 3, v2"); e("v_bfe_u32 v3, v1, 3, 2"); e("v_add_u32 v2, v2, v3")
    e("v_lshlrev_b32 v2, 12, v2")
    e("v_and_b32 v3, 7, v1"); e("v_xor_b32 v3, v3, v241")
    e("v_lshl_add_u32 v242, v3, 4, v2")
    e("v_xor_b32 v3, 4, v3")
    e("v_lshl_add_u32 v243, v3, 4, v2"); e(f"v_add_u32 v243, {16*4096 - 1024}, v243")
    e("v_lshlrev_b32 v244, 4, v1")
    e("s_lshl_b32 s43, s35, 18"); e("s_lshl_b32 s44, s33, 10"); e("s_add_u32 s48, s43, s44")
    e(f"s_add_u32 s49, s48, {4*4096}"); e(f"s_add_u32 s50, s48, {32*4096}"); e(f"s_add_u32 s51, s48, {36*4096}")
    e("s_lshl_b32 s43, s37, 16"); e("s_lshl_b32 s44, s33, 14"); e("s_add_u32 s52, s43, s44")
    for c in range(1, 7): e(f"s_add_u32 s{52+c}, s52, {c*65536}")
    e("s_cmp_eq_u32 s36, 3"); e(f"s_cselect_b32 s58, {HUGE}, s58")
    e(f"s_mul_i32 s39, s33, {RING2}")
    k.srd(16, 10, 11, 2048*4096)
    k.srd(20, 14, 15, ZF_BYTES, WS_Z2F)
    k.srd(24, 14, 15, ZF_BYTES, WS_Z1F)
    k.srd(28, 14, 15, ZF_BYTES, WS_HF)
    def Z(st, c): return v(112 + st*28 + c*4, 4)
    def acc(c, sg): return v((c*4 + sg)*4, 4)
    def wf(sg): return v(224 + 4*sg, 4)
    def issueZ(n):
        if n % 4 == 0 and n:
            for c in range(7): e(f"s_add_u32 s{52+c}, s{52+c}, 4096")
        for c in range(7): k.vmem(f"buffer_load_dwordx4 {Z(n%4,c)}, v244, s[20:23], s{52+c} offen offset:{(n%4)*1024} sc1", f"Z{n}")
    def issueA(c):
        for t in range(4):
            e(f"s_add_u32 m0, s39, {(c%NSLOT)*8192 + t*2048}")
            e("s_nop 0")
            k.vmem(f"buffer_load_dwordx4 v242, s[16:19], s{48+t} offen lds", f"A{c}")
            k.vmem(f"buffer_load_dwordx4 v243, s[16:19], s{48+t} offen offset:1024 lds", f"A{c}")
        for t in range(4): e(f"s_add_u32 s{48+t}, s{48+t}, 128")
    k.vm = []
    e("v_lshrrev_b32 v5, 1, v240"); e("v_xor_b32 v5, v5, v241")
    e("v_lshlrev_b32 v4, 7, v240"); e("v_lshl_add_u32 v4, v5, 4, v4"); e("v_add_u32 v4, s39, v4")
    for sg in range(4):
        e(f"s_xor_b32 s43, s33, {sg}"); e("s_lshl_b32 s43, s43, 11")
        e(f"v_add_u32 v{246+sg}, s43, v4")
        e(f"v_xor_b32 v{250+sg}, 64, v{246+sg}")
    e("s_setprio 0")
    def issueZ1(n, c):
        if n % 4 == 0 and n: e(f"s_add_u32 s{52+c}, s{52+c}, 4096")
        off = (n % 4) * 1024
        if n == 3: e(f"s_sub_u32 s47, s{52+c}, 4096")
        k.vmem(f"buffer_load_dwordx4 {Z(n%4,c)}, v244, s[20:23], s{47 if n == 3 else 52+c} offen offset:{off} sc1", f"Z{n}_{c}")
    def issueA1(c, t):
        if c % NSLOT == 2: e(f"s_add_u32 m0, s38, {t*2048}")
        else: e(f"s_add_u32 m0, s39, {(c%NSLOT)*8192 + t*2048}")
        e("s_nop 0")
        k.vmem(f"buffer_load_dwordx4 v242, s[16:19], s{48+t} offen lds", f"A{c}")
        k.vmem(f"buffer_load_dwordx4 v243, s[16:19], s{48+t} offen offset:1024 lds", f"A{c}")
        e(f"s_add_u32 s{48+t}, s{48+t}, 128")
    e("s_lshl_b32 s38, s33, 13"); e(f"s_add_u32 s38, s38, {XB}"); e("s_sub_u32 s59, s38, s39")
    for t in range(4): e(f"s_add_u32 s{48+t}, s{48+t}, 384")
    def wf1(sg): return v(112 + 3*28 + 4*sg, 4)
    e(f"v_mov_b32 v4, {W_FX + 12}")
    lds_wait(k, "m_wpf0", "v4", "v5", sleep=1)
    for sg in range(4): e(f"ds_read_b128 {wf(sg)}, v{246+sg}")
    for sg in range(4): e(f"ds_read_b128 {wf1(sg)}, v{250+sg}")
    e("s_waitcnt lgkmcnt(0)")
    k.vm = []
    for t in range(4): issueA1(3, t)
    e(f"v_mov_b32 v4, {W_PF}")
    lds_wait(k, "m_wpf", "v4", "v5", sleep=1)
    k.srd(64, 6, 7, 4096)
    e("s_setprio 3")
    k.stamp(7); k.cyc(12)
    for n in range(3):
        for c in range(7): issueZ1(n, c)
    for n in range(16):
        c, ks = n >> 1, n & 1
        W = wf1 if n == 1 else wf
        if ks == 0 and f"A{c}" in k.vm: k.wait_vm(f"A{c}")
        if n >= 2:
            base = 250 if ks else 246
            if c % NSLOT == 2:
                for sg in range(4): e(f"v_add_u32 v{base+sg}, s59, v{base+sg}")
            for sg in range(4):
                e(f"ds_read_b128 {wf(sg)}, v{base+sg} offset:{0 if c % NSLOT == 2 else (c%NSLOT)*8192}")
            if c % NSLOT == 2:
                for sg in range(4): e(f"v_subrev_u32 v{base+sg}, s59, v{base+sg}")
        if n == 15:
            e("v_add_u32 v130, s39, v244"); e("v_add_u32 v131, s38, v244")
            e(f"v_add_u32 v133, {W_R1 - W_GL}, v254")
            if f"Z{n}_6" in k.vm: k.wait_vm(f"Z{n}_6")
            e("s_waitcnt lgkmcnt(0)")
            def pw(sg, cc): return (f"ds_write_b128 v131, {acc(cc,sg)} offset:{cc*1024}" if sg == 3 else f"ds_write_b128 v130, {acc(cc,sg)} offset:{((sg-1)*7+cc)*1024}")
            pend = []
            for sg in (1, 2, 3, 0):
                for cc in range(7):
                    e(f"{MFMA} {acc(cc,sg)}, {Z(n%4,cc)}, {wf(sg)}, {acc(cc,sg)}")
                    if len(pend) > 8 or (sg == 0 and pend and len(pend) + cc > 8): e(pend.pop(0))
                    if sg: pend.append(pw(sg, cc))
            for p_ in pend: e(p_)
            e("ds_write_b32 v133, v255")
            continue
        for cc in range(7):
            if f"Z{n}_{cc}" in k.vm: k.wait_vm(f"Z{n}_{cc}")
            if n == 0 and cc == 0: k.stamp(8)
            for sg in range(4):
                if cc == 0 and n >= 2: e(f"s_waitcnt lgkmcnt({3-sg})")
                e(f"{MFMA} {acc(cc,sg)}, {Z(n%4,cc)}, {W(sg)}, {'0' if n == 0 else acc(cc,sg)}")
            if n + 4 < 16 and n != 1: issueZ1(n + 4, cc)
            if ks == 1 and 0 < c and c + NSLOT < 8 and cc in (0, 2, 4, 6): issueA1(c + NSLOT, cc // 2)
        if n == 1:
            for cc in range(7): issueZ1(3, cc)
            for cc in range(7): issueZ1(5, cc)
        if n == 12:
            e("s_lshl_b32 s43, s35, 2"); e("s_add_u32 s43, s43, s33"); e("s_mul_i32 s44, s43, 27648")
            for cc in range(7):
                e(f"s_add_u32 s45, s37, {cc}"); e("s_lshr_b32 s46, s45, 1"); e("s_lshl_b32 s46, s46, 10"); e("s_and_b32 s45, s45, 1"); e("s_lshl_b32 s45, s45, 3")
                e("s_add_u32 s45, s45, s46"); e(f"s_add_u32 s{52+cc}, s45, s44")
            e("s_cmp_eq_u32 s36, 3"); e(f"s_cselect_b32 s58, {HUGE}, s58")
            for cc in range(7): k.vmem(f"buffer_load_dwordx2 {v(112+2*cc,2)}, v244, s[24:27], s{52+cc} offen sc1", "z1")
            e("s_lshr_b32 s44, s43, 1"); e("s_lshl_b32 s44, s44, 5"); e("s_and_b32 s45, s43, 1"); e("s_lshl_b32 s45, s45, 2"); e("s_add_u32 s44, s44, s45")
            e("v_lshrrev_b32 v128, 2, v240"); e("v_and_b32 v129, 3, v240"); e("v_lshl_add_u32 v128, v128, 3, v129"); e("v_add_u32 v128, s44, v128")
            e("v_lshlrev_b32 v128, 1, v128")
            k.vmem("buffer_load_ushort v126, v128, s[64:67], 0 offen", "z1")
        if n == 8:
            e("s_lshl_b32 s43, s33, 2"); e(f"s_add_u32 s43, s43, {W_GL}"); e("v_mov_b32 v254, s43"); e("v_mov_b32 v255, 1")
            e("ds_write_b32 v254, v255")
        if n == 12:
            e("v_mov_b32 v255, 2"); e("ds_write_b32 v254, v255")
    k.stamp(9); k.cyc(13)
    T = 140
    e("s_xor_b32 s43, s33, 1"); e(f"s_mul_i32 s43, s43, {RING2}"); e("v_add_u32 v130, s43, v244")
    e("s_xor_b32 s43, s33, 2"); e(f"s_mul_i32 s43, s43, {RING2}"); e("v_add_u32 v131, s43, v244")
    e("s_xor_b32 s43, s33, 3"); e("s_lshl_b32 s43, s43, 13"); e(f"s_add_u32 s43, s43, {XB}"); e("v_add_u32 v132, s43, v244")
    e(f"v_mov_b32 v134, {W_R1}")
    e("s_waitcnt vmcnt(0)")
    k.vm = []
    e("v_lshlrev_b32 v126, 16, v126")
    A = [c*16 + 2*p for c in range(7) for p in range(2)]
    Z1 = [c*16 + 4 + 2*p for c in range(7) for p in range(2)]
    e("s_waitcnt lgkmcnt(0)")
    for i in range(14): unpack(k, f"v{Z1[i]}", f"v{Z1[i]+1}", f"v{112+i}")
    for i in range(14): e(f"v_pk_add_f32 {pr(A[i])}, {pr(A[i])}, v[126:127] op_sel_hi:[1,0]")
    if "nossh" not in EXP:
        e(f"v_mov_b32 v135, {W_FX}")
        lds_wait(k, "m_wfk", "v135", "v136")
    lds_wait_ge(k, "m_wr1", "v134", 136, 4, 1)
    for sg in range(3):
        for c in range(7): e(f"ds_read_b128 {v(T+(sg*7+c)*4,4)}, v{130+sg} offset:{(7*1024 if sg == 1 else 0) + c*1024}")
    for sg in range(3):
        e(f"s_waitcnt lgkmcnt({14 - 7*sg})")
        if sg == 2: e("ds_write_b32 v133, v255 offset:16")
        for i in range(14): e(f"v_pk_add_f32 {pr(A[i])}, {pr(A[i])}, {pr(T+sg*28+2*i)}")
    for i in range(14): e(f"v_pk_mul_f32 {pr(A[i])}, {pr(A[i])}, {pr(Z1[i])}")
    for i in range(14): e(f"v_cvt_pk_bf16_f32 v{200+i}, v{A[i]}, v{A[i]+1}")
    if "nossh" not in EXP:
        for i in range(14): e(f"v_min_u32 v{200+i}, -2, v{200+i}")
    e("s_bitcmp1_b32 s37, 0"); e("s_cbranch_scc1 m_hodd")
    for c in (0, 2, 4): e(f"buffer_store_dwordx4 {v(200+2*c,4)}, v244, s[28:31], s{52+c} offen sc1")
    e(f"buffer_store_dwordx2 {v(212,2)}, v244, s[28:31], s58 offen sc1")
    e("s_branch m_hdone")
    k.label("m_hodd")
    e(f"buffer_store_dwordx2 {v(200,2)}, v244, s[28:31], s52 offen sc1")
    for c in (1, 3): e(f"buffer_store_dwordx4 {v(200+2*c,4)}, v244, s[28:31], s{52+c} offen sc1")
    e("s_cmp_eq_u32 s36, 3"); e("s_cbranch_scc1 m_hodd6")
    e(f"buffer_store_dwordx4 {v(210,4)}, v244, s[28:31], s57 offen sc1")
    e("s_branch m_hdone")
    k.label("m_hodd6")
    e(f"buffer_store_dwordx2 {v(210,2)}, v244, s[28:31], s57 offen sc1")
    k.label("m_hdone")
    e("v_mov_b32 v1, v245")
    emit_half(k); e("s_lshl_b32 s43, s43, 2"); e("s_add_u32 s36, s36, s43")
    if "nossh" in EXP:
        e(f"v_mov_b32 v4, {W_PF + 4}"); e("v_mov_b32 v5, 1"); e("v_lshlrev_b32 v6, 7, v1"); e("v_mov_b32 v7, s3")
        e("s_lshl_b32 s44, s35, 10"); e("s_lshl_b32 s45, s36, 2"); e("s_add_u32 s44, s44, s45"); e(f"s_add_u32 s44, s44, {FH2}")
        e("s_mov_b64 exec, 1")
        e("s_waitcnt vmcnt(0)")
        e("ds_add_rtn_u32 v8, v4, v5")
        e("s_waitcnt lgkmcnt(0)")
        e("v_readfirstlane_b32 s43, v8")
        e("s_mov_b64 exec, 0xff")
        e("s_cmp_lg_u32 s43, 3"); e("s_cbranch_scc1 m_nopub")
        e("buffer_store_dword v7, v6, s[60:63], s44 offen sc1")
        k.label("m_nopub")
        e("s_mov_b64 exec, -1")
    e("s_setprio 0")
    e("v_and_b32 v2, 15, v1"); e("v_lshrrev_b32 v3, 4, v1")
    e("s_mov_b32 s47, 0"); e("s_mov_b32 s46, 0")

def gen_p3(k):
    e = k.e
    k.label("m_P3")
    k.stamp(10)
    e("s_lshr_b32 s34, s32, 2")
    e("v_lshlrev_b32 v15, 4, v1")
    k.srd(16, 14, 15, WOF_BYTES, WS_WOF)
    k.srd(20, 14, 15, ZF_BYTES, WS_HF)
    k.srd(24, 4, 5, 2048*1280)
    k.srd(28, 98, 99, 2048*1280)
    def H(g, sg): return v(16 + (g*2 + sg)*4, 4)
    def WF(g, db): return v(72 + (g*5 + db)*4, 4)
    def acc(sg, db): return v(212 + (sg*5 + db)*4, 4)
    e("s_cmp_eq_u32 s33, 3"); e(f"s_cselect_b32 s45, {HUGE}, 6144")
    e("s_and_b32 s43, s33, 1"); e("s_lshl_b32 s44, s34, 1"); e("s_add_u32 s57, s43, s44")
    e("s_lshr_b32 s58, s33, 1"); e("s_mul_i32 s58, s58, 3")
    e("s_lshr_b32 s43, s57, 1"); e("s_lshl_b32 s43, s43, 5"); e("s_and_b32 s44, s57, 1"); e("s_lshl_b32 s44, s44, 2"); e("s_add_u32 s59, s43, s44")
    e("s_lshl_b32 s43, s35, 6"); e("s_add_u32 s43, s43, s59")
    e("v_lshrrev_b32 v6, 2, v2"); e("v_and_b32 v7, 3, v2"); e("v_lshl_add_u32 v6, v6, 3, v7"); e("v_add_u32 v6, s43, v6")
    e("v_mul_u32_u24 v6, 1280, v6"); e("v_lshl_add_u32 v6, v3, 3, v6"); e("s_mul_i32 s43, s36, 160"); e("v_add_u32 v14, s43, v6")
    for i in range(3):
        e(f"s_add_u32 s43, s58, {i}"); e(f"s_min_u32 s{68+i}, s43, 4")
        e(f"s_lshl_b32 s{72+i}, s{68+i}, 5")
    k.srd(64, 14, 15, XT_BYTES, WS_YT)
    e("s_lshl_b32 s43, s35, 2"); e("s_lshl_b32 s44, s34, 1"); e("s_add_u32 s43, s43, s44"); e("s_mul_i32 s43, s43, 27"); e("s_mul_i32 s44, s33, 7"); e("s_add_u32 s43, s43, s44")
    e("s_lshl_b32 s46, s43, 10"); e("s_add_u32 s47, s46, 27648")
    e("s_add_u32 s48, s46, 4096"); e("s_add_u32 s49, s47, 4096"); e("s_add_u32 s50, s46, s45"); e("s_add_u32 s51, s47, s45")
    e("s_mul_i32 s43, s33, 35840"); e(f"s_add_u32 s43, s43, {IMG}"); e("v_add_u32 v252, s43, v15")
    e("s_cmp_eq_u32 s33, 3"); e("s_cselect_b32 s43, 5120, 0"); e("v_subrev_u32 v253, s43, v252")
    e("v_and_b32 v4, 7, v1"); e("v_lshlrev_b32 v4, 2, v4")
    e("s_lshl_b32 s44, s35, 10"); e("s_lshl_b32 s43, s36, 7"); e("s_add_u32 s44, s44, s43"); e(f"s_add_u32 s44, s44, {FH2}")
    e("v_min_u32 v254, 39, v1"); e("v_lshlrev_b32 v254, 3, v254")
    e("s_mul_i32 s52, s36, 320"); e(f"s_add_u32 s52, s52, {FY}")
    e("s_cmp_ge_u32 s32, 4"); e("s_cbranch_scc1 m_nwv")
    e("s_waitcnt vmcnt(0) lgkmcnt(0)")
    k.label("m_nwv")
    e("s_barrier")
    k.stamp(4)
    def hld(g, tag=True):
        for sg in range(2):
            so = 46 + sg + (0 if g < 4 else 2 if g < 6 else 4)
            t_ = f"buffer_load_dwordx4 {H(g,sg)}, v15, s[20:23], s{so} offen offset:{(g%4)*1024 if g < 6 else 0} sc1"
            k.vmem(t_, f"h{g}") if tag else e(t_)
    if "nossh" not in EXP:
        e("s_cmp_lg_u32 s32, 2"); e("s_cbranch_scc1 m_nyp")
        e("buffer_load_dwordx2 v[248:249], v254, s[60:63], s52 offen sc1")
        k.label("m_nyp")
        k.vm = []
        for g in range(7):
            hld(g)
            for db in range(5): e(f"ds_read_b128 {WF(g,db)}, v{253 if g == 6 else 252} offset:{g*5120 + db*1024}")
        for i in range(3): k.vmem(f"buffer_load_dwordx2 {v(8+2*i,2)}, v14, s[24:27], s{72+i} offen", "x")
        e("v_lshrrev_b32 v244, 3, v1"); e("v_lshlrev_b32 v244, 12, v244"); e("v_and_b32 v245, 7, v1"); e("v_lshl_add_u32 v0, v245, 4, v244")
        e("s_mul_i32 s53, s36, 80"); e("s_lshl_b32 s43, s32, 3"); e("s_add_u32 s53, s53, s43"); e("s_lshl_b32 s53, s53, 12"); e("s_lshl_b32 s43, s35, 7"); e("s_add_u32 s53, s53, s43")
        e("s_cmp_lt_u32 s32, 2"); e(f"s_cselect_b32 s54, {64*4096}, 0"); e("s_cselect_b32 s55, 8192, 0"); e("s_add_u32 s54, s54, s53")
        e("s_cmp_lg_u32 s32, 2"); e("s_cbranch_scc1 m_noy")
        e("s_waitcnt vmcnt(17)")
        e("v_xor_b32 v248, s3, v248"); e("v_xor_b32 v249, s3, v249"); e("v_or_b32 v248, v248, v249")
        e("v_cmp_ne_u32 vcc, 0, v248"); e("s_nop 1"); e("s_cbranch_vccz m_yok")
        sv = list(k.vm)
        poll_flags(k, "m_polly", "v254", FLS, 2, 248, "v5", soff="s52", sleep=8)
        k.vm = sv
        k.label("m_yok")
        e(f"v_mov_b32 v4, {W_FX + 16}"); e("v_mov_b32 v5, 1"); e("ds_write_b32 v4, v5")
        k.label("m_noy")
        k.stamp(11)
    else:
        e("s_cmp_lg_u32 s32, 3"); e("s_cbranch_scc1 m_nhp")
        e("buffer_load_dword v5, v4, s[60:63], s44 offen sc1")
        k.label("m_nhp")
        e("s_cmp_lg_u32 s32, 2"); e("s_cbranch_scc1 m_nyp")
        e("buffer_load_dwordx2 v[248:249], v254, s[60:63], s52 offen sc1")
        k.label("m_nyp")
        for g in range(7):
            for db in range(5): e(f"ds_read_b128 {WF(g,db)}, v{253 if g == 6 else 252} offset:{g*5120 + db*1024}")
        for i in range(3): e(f"buffer_load_dwordx2 {v(8+2*i,2)}, v14, s[24:27], s{72+i} offen")
        e("v_lshrrev_b32 v244, 3, v1"); e("v_lshlrev_b32 v244, 12, v244"); e("v_and_b32 v245, 7, v1"); e("v_lshl_add_u32 v244, v245, 4, v244")
        e("s_mul_i32 s53, s36, 80"); e("s_lshl_b32 s43, s32, 3"); e("s_add_u32 s53, s53, s43"); e("s_lshl_b32 s53, s53, 12"); e("s_lshl_b32 s43, s35, 7"); e("s_add_u32 s53, s53, s43")
        e("s_cmp_lt_u32 s32, 2"); e(f"s_cselect_b32 s54, {64*4096}, 0"); e("s_cselect_b32 s55, 8192, 0"); e("s_add_u32 s54, s54, s53")
        e("s_lshl_b32 s43, s32, 10"); e(f"s_add_u32 s43, s43, {YTILE}"); e("v_add_u32 v246, s43, v15"); e("v_add_u32 v247, s55, v246")
        e("s_cmp_lg_u32 s32, 3"); e("s_cbranch_scc1 m_hw")
        poll_flags(k, "m_pollh", "v4", FLS, 1, 5, "v6", soff="s44", sleep=2, preloaded=True)
        k.label("m_hw")
        e("s_cmp_lg_u32 s32, 2"); e("s_cbranch_scc1 m_noy")
        poll_flags(k, "m_polly", "v254", FLS, 2, 248, "v5", soff="s52", sleep=8, preloaded=True)
        k.label("m_noy")
        e("s_waitcnt lgkmcnt(0)")
        e("s_barrier")
        k.stamp(11)
        k.vm = []
        k.vmem("buffer_load_dwordx4 v[236:239], v244, s[64:67], s53 offen sc1", "y")
        k.vmem("buffer_load_dwordx4 v[240:243], v244, s[64:67], s54 offen sc1", "y")
        for g in range(7):
            for sg in range(2):
                so = 46 + sg + (0 if g < 4 else 2 if g < 6 else 4)
                k.vmem(f"buffer_load_dwordx4 {H(g,sg)}, v15, s[20:23], s{so} offen offset:{(g%4)*1024 if g < 6 else 0} sc1", f"h{g}")
    e("s_mul_i32 s43, s32, 10240"); e(f"s_add_u32 s43, s43, {PB}"); e("v_add_u32 v252, s43, v15")
    e("s_mul_i32 s43, s34, 40960"); e("s_and_b32 s44, s33, 1"); e("s_mul_i32 s44, s44, 5120"); e("s_add_u32 s43, s43, s44"); e(f"s_add_u32 s43, s43, {PB}")
    e("v_bfe_u32 v4, v1, 2, 2"); e("v_lshl_add_u32 v4, v3, 2, v4"); e("v_lshlrev_b32 v4, 7, v4")
    e("v_and_b32 v5, 3, v1"); e("v_lshl_add_u32 v4, v5, 4, v4")
    e("s_lshl_b32 s44, s59, 1"); e(f"s_add_u32 s44, s44, {YTILE}"); e("v_add_u32 v4, s44, v4")
    for i in range(3):
        e(f"s_lshl_b32 s44, s{68+i}, 10"); e("s_add_u32 s44, s44, s43"); e(f"v_add_u32 v{253+i}, s44, v15")
        e(f"s_lshl_b32 s44, s{68+i}, 11"); e(f"v_add_u32 v{5+i}, s44, v4")
    if "nossh" not in EXP:
        e(f"v_mov_b32 v2, {W_FX + 20}"); e("v_mov_b32 v3, 1")
        e("s_mov_b64 exec, 1"); e("ds_add_u32 v2, v3"); e("s_mov_b64 exec, -1")
        e("s_waitcnt lgkmcnt(0)")
        for g in range(7):
            k.wait_vm(f"h{g}")
            r0 = 16 + g*8
            lab = f"m_hc{g}"
            e("s_mov_b32 s40, 0")
            k.label(lab)
            e(f"v_max3_u32 v2, v{r0}, v{r0+1}, v{r0+2}"); e(f"v_max3_u32 v3, v{r0+3}, v{r0+4}, v{r0+5}"); e(f"v_max3_u32 v2, v{r0+6}, v{r0+7}, v2")
            e("v_max_u32 v2, v2, v3"); e("v_cmp_eq_u32 vcc, -1, v2"); e("s_add_u32 s40, s40, 1"); e("s_nop 0")
            e(f"s_cbranch_vccz {lab}_ok")
            e("s_sleep 4")
            hld(g, False)
            e("s_waitcnt vmcnt(0)")
            e(f"s_cmp_lt_u32 s40, {SPIN}"); e(f"s_cbranch_scc1 {lab}")
            k.label(lab + "_ok")
            for db in range(5):
                for sg in range(2):
                    e(f"{MFMA} {acc(sg,db)}, {WF(g,db)}, {H(g,sg)}, {'0' if g == 0 else acc(sg,db)}")
            if g == 1:
                e(f"v_mov_b32 v2, {W_FX + 16}")
                lds_wait(k, "m_wy", "v2", "v3", sleep=1)
                k.vmem("buffer_load_dwordx4 v[72:75], v0, s[64:67], s53 offen sc1", "y")
                k.vmem("buffer_load_dwordx4 v[76:79], v0, s[64:67], s54 offen sc1", "y")
                e("s_lshl_b32 s43, s32, 10"); e(f"s_add_u32 s43, s43, {YTILE}"); e("v_add_u32 v80, s43, v15"); e("v_add_u32 v81, s55, v80")
        k.wait_vm("y")
        e("ds_write_b128 v80, v[72:75]"); e("ds_write_b128 v81, v[76:79]")
        e(f"v_mov_b32 v2, {W_FX + 20}")
        lds_wait_ge(k, "m_wrd", "v2", 3, 1, 8)
    else:
        for g in range(7):
            k.wait_vm(f"h{g}")
            if g == 0: e("ds_write_b128 v246, v[236:239]"); e("ds_write_b128 v247, v[240:243]"); e("s_waitcnt lgkmcnt(0)")
            for db in range(5):
                for sg in range(2):
                    e(f"{MFMA} {acc(sg,db)}, {WF(g,db)}, {H(g,sg)}, {'0' if g == 0 else acc(sg,db)}")
        e("s_nop 2")
        e("s_nop 1")
    for db in range(5):
        for sg in range(2): e(f"ds_write_b128 v252, {acc(sg,db)} offset:{(sg*5+db)*1024}")
    for i in range(6): unpack(k, f"v{96+2*i}", f"v{97+2*i}", f"v{8+i}")
    e("s_waitcnt lgkmcnt(0)")
    e("s_barrier")
    for i in range(3): e(f"ds_read_b64_tr_b16 {v(24+2*i,2)}, v{5+i}")
    for i in range(3):
        for kq in range(4): e(f"ds_read_b128 {v(32+(i*4+kq)*4,4)}, v{253+i} offset:{kq*10240}")
    e("s_waitcnt lgkmcnt(12)")
    for n in range(6): unpack(k, f"v{112+2*n}", f"v{113+2*n}", f"v{24+n}")
    for n in range(6): e(f"v_pk_add_f32 {pr(96+2*n)}, {pr(96+2*n)}, {pr(112+2*n)}")
    e("s_waitcnt lgkmcnt(0)")
    A = [32 + i*16 + 2*p for i in range(3) for p in range(2)]
    for n in range(6): e(f"v_pk_add_f32 {pr(A[n])}, {pr(A[n])}, {pr(A[n]+4)}"); e(f"v_pk_add_f32 {pr(A[n]+8)}, {pr(A[n]+8)}, {pr(A[n]+12)}")
    for n in range(6): e(f"v_pk_add_f32 {pr(A[n])}, {pr(A[n])}, {pr(A[n]+8)}")
    for n in range(6): e(f"v_pk_add_f32 {pr(A[n])}, {pr(A[n])}, {pr(96+2*n)}")
    for n in range(6): e(f"v_cvt_pk_bf16_f32 v{24+n}, v{A[n]}, v{A[n]+1}")
    for i in range(3): e(f"buffer_store_dwordx2 {v(24+2*i,2)}, v14, s[28:31], s{72+i} offen")
    e("s_lshl_b32 s43, s2, 3"); e("s_add_u32 s43, s43, s32"); e("s_cmp_lg_u32 s43, 4"); e("s_cbranch_scc1 m_fin")
    k.srd(64, 12, 13, 256)
    e("v_mov_b32 v4, 0"); e("s_mov_b64 exec, 1")
    e("buffer_store_dword v4, v4, s[64:67], 0 offen sc1")
    k.label("m_fin")
    k.end(0)

def gen_helper(k, epoch_poll):
    e = k.e
    k.label("m_helper")
    e("s_lshl_b32 s35, s41, 2"); e("s_add_u32 s35, s35, s42"); e("s_sub_u32 s35, s35, 28")
    e("v_and_b32 v2, 15, v1"); e("v_lshrrev_b32 v3, 4, v1")
    e("s_lshl_b32 s43, s32, 3")
    e("v_add_u32 v4, s43, v3")
    e("s_lshl_b32 s44, s35, 6")
    e("v_add_u32 v5, s44, v4"); e("v_mul_u32_u24 v5, 1280, v5"); e("v_lshl_add_u32 v5, v2, 4, v5")
    e("v_add_u32 v6, 5120, v5")
    e("v_mul_u32_u24 v7, 1296, v4"); e("v_lshl_add_u32 v7, v2, 4, v7")
    e("v_mov_b32 v110, 0")
    e("v_and_b32 v4, 31, v1"); e(f"v_lshlrev_b32 v4, 2, v4"); e(f"v_add_u32 v4, {W_EPOCH}, v4")
    e("s_cmp_lg_u32 s32, 4"); e("s_cbranch_scc1 m_hnoclr")
    e("ds_write_b32 v4, v110")
    k.label("m_hnoclr")
    e("s_waitcnt lgkmcnt(0)")
    k.srd(16, 4, 5, 2048*1280)
    k.srd(28, 14, 15, XT_BYTES, WS_XNT)
    k.srd(64, 12, 13, 256)
    k.srd(FLS, 14, 15, FL_BYTES, WS_FL)
    k.srd(20, 96, 97, 864*1280)
    k.vm = []
    for g in range(2):
        for n in range(5):
            k.vmem(f"buffer_load_dwordx4 {v(8+g*20+n*4,4)}, v{5+g}, s[16:19], 0 offen offset:{n*256}", f"x{g}")
    XB = (48, 128)
    for g in range(2):
        k.stamp(1+2*g)
        k.wait_vm(f"x{g}")
        if g == 0: k.vmem("buffer_load_dword v111, v110, s[64:67], 0 offen sc1", "ep")
        X = XB[g]; src = 8 + g*20; M, R = 112 + 4*g, 114 + 4*g
        for n in range(20): unpack(k, f"v{X+2*n}", f"v{X+2*n+1}", f"v{src+n}")
        e(f"v_pk_add_f32 v[88:89], {pr(X)}, {pr(X+4)}"); e(f"v_pk_add_f32 v[90:91], {pr(X+2)}, {pr(X+6)}")
        for n in range(4, 20): e(f"v_pk_add_f32 {pr(88+2*(n%2))}, {pr(88+2*(n%2))}, {pr(X+2*n)}")
        e("v_pk_add_f32 v[88:89], v[88:89], v[90:91]"); e("s_nop 0"); e("v_add_f32 v88, v88, v89")
        for sh in (8, 4, 2, 1):
            e("s_nop 1"); e(f"v_add_f32_dpp v88, v88, v88 row_ror:{sh} row_mask:0xf bank_mask:0xf")
        e(f"v_mul_f32 v{M}, {f32(1/640)}, v88")
        for a_ in range(4): e(f"v_mov_b32 v{92+a_}, 0")
        for n0 in range(0, 20, 4):
            for a_ in range(4): e(f"v_pk_add_f32 {pr(96+2*a_)}, {pr(X+2*(n0+a_))}, {pr(M)} op_sel_hi:[1,0] neg_lo:[0,1] neg_hi:[0,1]")
            for a_ in range(4): e(f"v_pk_fma_f32 {pr(92+2*(a_%2))}, {pr(96+2*a_)}, {pr(96+2*a_)}, {pr(92+2*(a_%2))}")
        e("v_pk_add_f32 v[92:93], v[92:93], v[94:95]"); e("s_nop 0"); e("v_add_f32 v92, v92, v93")
        for sh in (8, 4, 2, 1):
            e("s_nop 1"); e(f"v_add_f32_dpp v92, v92, v92 row_ror:{sh} row_mask:0xf bank_mask:0xf")
        e(f"v_mul_f32 v{R}, {f32(1/640)}, v92")
        ln_finish(k, f"v{M}", f"v{R}", "v89")
    e("s_mov_b32 s40, 0")
    k.label("m_hep")
    e("s_waitcnt vmcnt(0)")
    e("v_readfirstlane_b32 s3, v111")
    e("s_add_u32 s40, s40, 1")
    e("s_cmp_lg_u32 s3, 0"); e("s_cbranch_scc1 m_hepok")
    e("buffer_load_dword v111, v110, s[64:67], 0 offen sc1")
    e(f"s_cmp_lt_u32 s40, {SPIN}"); e("s_cbranch_scc1 m_hep")
    k.label("m_hepok")
    k.vm = []
    k.srd(24, 14, 15, 32768, WS_ST1)
    for r in (113, 115, 117, 119): e(f"v_mov_b32 v{r}, v111")
    e("s_lshl_b32 s43, s35, 10"); e("s_lshl_b32 s44, s32, 7"); e("s_add_u32 s43, s43, s44"); e("v_lshlrev_b32 v5, 4, v3")
    e("v_cmp_eq_u32 vcc, 0, v2"); e("s_and_saveexec_b64 s[44:45], vcc")
    e("buffer_store_dwordx4 v[112:115], v5, s[24:27], s43 offen sc1"); e("buffer_store_dwordx4 v[116:119], v5, s[24:27], s43 offen offset:64 sc1")
    e("s_mov_b64 exec, -1")
    k.stamp(2)
    e("v_lshlrev_b32 v120, 4, v1")
    e("s_lshl_b32 s43, s35, 3"); e("s_add_u32 s43, s43, s32"); e("s_mul_i32 s43, s43, 4352")
    for n in range(4): e(f"buffer_load_dwordx4 v[124:127], v120, s[20:23], s43 offen offset:{n*1024}")
    e("s_add_u32 s43, s43, 4096")
    e(f"buffer_load_dwordx4 v[124:127], v120, s[20:23], s43 offen")
    for g in range(2):
        X = XB[g]; src = 8 + g*20; M, R = 112 + 4*g, 114 + 4*g
        for n in range(20): e(f"v_pk_add_f32 {pr(X+2*n)}, {pr(X+2*n)}, {pr(M)} op_sel_hi:[1,0] neg_lo:[0,1] neg_hi:[0,1]")
        for n in range(20): e(f"v_pk_mul_f32 {pr(X+2*n)}, {pr(X+2*n)}, {pr(R)} op_sel_hi:[1,0]")
        for n in range(20): e(f"v_cvt_pk_bf16_f32 v{src+n}, v{X+2*n}, v{X+2*n+1}")
        for n in range(5):
            e(f"ds_write_b128 v7, {v(src+4*n,4)} offset:{g*4*1296 + n*256}")
    e(f"v_mov_b32 v9, {W_EPOCH}")
    e("s_cmp_lg_u32 s32, 4"); e("s_cbranch_scc1 m_hepdone")
    e("ds_write_b32 v9, v111")
    k.label("m_hepdone")
    e("s_waitcnt lgkmcnt(0)")
    e("s_barrier")
    k.stamp(4)
    e("v_bfe_u32 v4, v1, 2, 2"); e("v_lshl_add_u32 v4, v3, 3, v4"); e("v_mul_u32_u24 v4, 1296, v4")
    e("v_and_b32 v5, 3, v1"); e("v_lshl_add_u32 v4, v5, 3, v4")
    e("s_lshl_b32 s43, s32, 5"); e("v_add_u32 v4, s43, v4")
    e(f"v_add_u32 v5, {32*1296}, v4")
    for n in range(5):
        for th in range(2):
            for hh in range(2):
                e(f"ds_read_b64_tr_b16 {v(16+(n*2+th)*4+hh*2,2)}, v{4+th} offset:{hh*4*1296 + n*256}")
    e("s_mul_i32 s43, s32, 4608"); e("s_add_u32 s43, s43, 90112")
    e("v_mul_u32_u24 v5, 144, v2"); e("v_lshl_add_u32 v5, v3, 4, v5"); e("v_add_u32 v5, s43, v5")
    e("v_lshrrev_b32 v4, 3, v1"); e("v_lshlrev_b32 v6, 12, v4"); e("v_mul_u32_u24 v4, 144, v4"); e("v_and_b32 v7, 7, v1"); e("v_lshl_add_u32 v4, v7, 4, v4"); e("v_add_u32 v4, s43, v4")
    e("v_lshl_add_u32 v6, v7, 4, v6")
    e("s_lshl_b32 s46, s32, 16"); e("s_lshl_b32 s44, s35, 7"); e("s_add_u32 s46, s46, s44"); e("s_add_u32 s47, s46, 32768")
    e("s_waitcnt vmcnt(0) lgkmcnt(0)")
    for n in range(5):
        o = (n % 2) * 2304
        for th in range(2): e(f"ds_write_b128 v5, {v(16+(n*2+th)*4,4)} offset:{o + th*64}")
        for hf in range(2): e(f"ds_read_b128 {v(56+(n*2+hf)*4,4)}, v4 offset:{o + hf*8*144}")
    for n in range(5):
        e(f"s_waitcnt lgkmcnt({min(15, 4*(4-n))})")
        for hf in range(2):
            e(f"buffer_store_dwordx4 {v(56+(n*2+hf)*4,4)}, v6, s[28:31], s{46+hf} offen" + ("" if "wb" in EXP else " sc1"))
        e(f"s_add_u32 s46, s46, {8*65536}"); e(f"s_add_u32 s47, s47, {8*65536}")
    def publish(imm, tag):
        e("s_waitcnt vmcnt(0) lgkmcnt(0)")
        e("s_barrier")
        e("s_cmp_lg_u32 s32, 4"); e(f"s_cbranch_scc1 m_hnp{tag}")
        e("s_lshl_b32 s45, s35, 2"); e(f"s_add_u32 s45, s45, {FX}")
        set_flag(k, FLS, "s45", 0, "v7", "v8")
        k.label(f"m_hnp{tag}")
    e("s_mov_b32 s34, 1000")
    publish(192, "x")
    k.stamp(5)
    e("s_cmp_lt_u32 s32, 4"); e("s_cbranch_scc1 m_Lpost")
    e(f"v_mov_b32 v4, {W_PF + 8}"); e("v_mov_b32 v5, 4"); e("ds_write_b32 v4, v5")
    e("s_branch m_P2")

if __name__ == "__main__":
    import sys
    NAME = "parallel_sum__ssm_conv_s4d__mixer_gmlp__prompt"
    path = sys.argv[1] if len(sys.argv) > 1 else f"cdna_kernels/{NAME}.s"
    t, kd = gen_mega(NAME + "_kernel")
    hdr = open(f"cdna_kernels/{NAME}.s.ref").read().split("; Override launch")[0]
    lst = os.environ.get("LIST", "0") == "1"
    out = hdr + (f"; @launch kernel={NAME}_kernel grid=(256,1,1) block=(512,1,1) lds={LDS_TOTAL}\n" if lst else f"; @launch grid=(256,1,1) block=(512,1,1) lds={LDS_TOTAL}\n")
    out += '.amdgcn_target "amdgcn-amd-amdhsa--gfx950"\n.text\n' + t + '\ntext_end:\n.section .rodata,"a"\n.p2align 6\n' + kd + "\n"
    open(path, "w").write(out)
```

```python
from mega_common import *
FLS = 60
WS_ST1 = 27*MB
RING2 = 16384
CONV0 = 65536
CONV_B = 15360
YTILE = 81920
IMG = 22528
NSLOT = 3
XB = 111616
ZD = int(os.environ.get('ZD', '24'))
ZSL = int(os.environ.get('ZSL', '2'))
ROTM = int(os.environ.get('ROTM', '0'))
WS_KC = 26*MB
KC_BYTES = 640 * 1536

def conv_params(k):
    e = k.e
    e("s_mul_i32 s34, s41, 28"); e("s_add_u32 s34, s34, s42"); e("s_lshl_b32 s34, s34, 1"); e("s_add_u32 s34, s34, s32")
    e("s_mul_i32 s56, s41, 24"); e("s_add_u32 s56, s56, s42"); e("s_add_u32 s56, s56, 448")
    e("s_cmp_lt_u32 s42, 24"); e("s_cselect_b32 s56, s56, 1000")
    e("s_cmp_eq_u32 s32, 2"); e("s_cselect_b32 s34, s56, s34")
    e("s_cmp_eq_u32 s32, 3"); e("s_cselect_b32 s34, 1000, s34")
    e("s_lshl_b32 s56, s34, 8"); e("s_lshl_b32 s57, s34, 1")
    e("v_lshlrev_b32 v4, 2, v1"); e("v_mov_b32 v5, 0")
    e("s_waitcnt lgkmcnt(0)")
    for a in range(4):
        k.srd(28, 64+2*a, 65+2*a, 640*256)
        e(f"buffer_load_dword v{164+a}, v4, s[28:31], s56 offen")
    k.srd(28, 72, 73, 1280); e("buffer_load_ushort v13, v5, s[28:31], s57 offen")
    k.srd(28, 74, 75, 1280); e("buffer_load_ushort v14, v5, s[28:31], s57 offen")

def gen_mega(name):
    k = Kern(name)
    e = k.e
    e("s_cmp_ge_u32 s2, 256"); e("s_cbranch_scc1 m_end")
    k.stamp_init()
    e("s_load_dwordx2 s[4:5], s[0:1], 0")
    e("s_load_dwordx4 s[8:11], s[0:1], 64")
    e("s_load_dwordx4 s[12:15], s[0:1], 104")
    e("s_load_dwordx4 s[96:99], s[0:1], 88")
    e("v_and_b32 v1, 63, v0")
    e("v_lshrrev_b32 v2, 6, v0")
    e("s_and_b32 s41, s2, 7")
    e("v_readfirstlane_b32 s32, v2")
    e("s_lshr_b32 s42, s2, 3")
    e("s_and_b32 s33, s32, 3")
    e("s_cmp_ge_u32 s42, 28"); e("s_cbranch_scc1 m_helper")
    e("s_mul_i32 s43, s42, 37"); e("s_lshr_b32 s43, s43, 8")
    e("s_mul_i32 s44, s43, 7"); e("s_sub_u32 s44, s42, s44")
    e("s_lshr_b32 s35, s41, 1"); e("s_lshl_b32 s35, s35, 2"); e("s_add_u32 s35, s35, s43")
    e("s_and_b32 s36, s41, 1"); e("s_mul_i32 s36, s36, 7"); e("s_add_u32 s36, s36, s44")
    e("s_cmp_ge_u32 s32, 4"); e("s_cbranch_scc1 m_gemm1")
    e("s_load_dwordx8 s[64:71], s[0:1], 8")
    e("s_load_dwordx4 s[72:75], s[0:1], 40")
    e("v_and_b32 v3, 7, v1")
    e("s_lshl_b32 s39, s32, 13")
    e("s_cmp_ge_u32 s32, 2"); e("s_cbranch_scc1 m_ldB")
    e("s_lshl_b32 s43, s35, 7"); e("s_lshl_b32 s44, s32, 6"); e("s_add_u32 s43, s43, s44")
    e("v_lshrrev_b32 v2, 5, v1"); e("v_lshlrev_b32 v2, 3, v2")
    e("v_bfe_u32 v4, v1, 3, 2"); e("v_add3_u32 v2, v2, v4, s43")
    e("v_mul_u32_u24 v2, 1280, v2")
    e("v_lshrrev_b32 v4, 4, v1"); e("v_xor_b32 v3, v3, v4")
    e("v_lshl_add_u32 v4, v3, 4, v2")
    e("v_xor_b32 v3, 4, v3"); e("v_lshl_add_u32 v5, v3, 4, v2")
    for n in range(8):
        ee, b, Pp = n & 1, (n >> 1) & 1, n >> 2
        e(f"v_add_u32 v{16+n}, {(32*Pp + 4*b + 16*ee)*1280 - (n & 3)*1024}, v{4+ee}")
    e("s_waitcnt lgkmcnt(0)")
    k.srd(16, 4, 5, 2048*1280)
    e("s_mov_b32 s38, 128")
    e("s_branch m_ld")
    k.label("m_ldB")
    e("v_lshrrev_b32 v2, 3, v1"); e("v_mul_u32_u24 v2, 3456, v2")
    e("s_cmp_eq_u32 s32, 2"); e("s_cselect_b32 s44, 1664, 0")
    e("s_lshl_b32 s43, s36, 7"); e("s_add_u32 s43, s43, s44"); e("v_add_u32 v2, s43, v2")
    e("v_bfe_u32 v4, v1, 4, 1"); e("v_lshlrev_b32 v4, 1, v4"); e("v_xor_b32 v3, v3, v4")
    e("v_lshl_add_u32 v4, v3, 4, v2")
    e("v_xor_b32 v3, 4, v3"); e("v_lshl_add_u32 v5, v3, 4, v2")
    for n in range(8):
        e(f"v_add_u32 v{16+n}, {8*n*3456 - (n & 3)*1024}, v{4+(n & 1)}")
    e("s_waitcnt lgkmcnt(0)")
    k.srd(16, 8, 9, 640*3456)
    e(f"s_mov_b32 s38, {64*3456}")
    k.label("m_ld")
    e("s_lshr_b32 s45, s41, 1"); e("s_mul_i32 s45, s45, 5"); e("s_lshr_b32 s45, s45, 1"); e("s_and_b32 s46, s41, 1"); e("s_mul_i32 s46, s46, 5"); e("s_add_u32 s45, s45, s46")
    e("s_and_b32 s46, s42, 1"); e("s_mul_i32 s46, s46, 5"); e("s_add_u32 s45, s45, s46")
    e("s_cmp_ge_u32 s45, 10"); e("s_cselect_b32 s46, 10, 0"); e("s_sub_u32 s45, s45, s46")
    e("s_mul_i32 s37, s45, s38"); e("s_mov_b32 s40, 0")
    for n3 in range(2):
        for g in range(2):
            e(f"s_add_u32 m0, s39, {g*4096}")
            e("s_nop 0")
            for n in range(4): e(f"buffer_load_dwordx4 v{16+g*4+n}, s[16:19], s37 offen offset:{n*1024} lds")
        e("s_add_u32 s39, s39, 32768"); e("s_add_u32 s45, s45, 1"); e("s_cmp_eq_u32 s45, 10"); e("s_cselect_b32 s45, 0, s45"); e("s_mul_i32 s37, s45, s38")
    for g in range(2):
        e(f"s_add_u32 m0, s39, {g*4096}")
        e("s_nop 0")
        for n in range(4): e(f"buffer_load_dwordx4 v{16+g*4+n}, s[16:19], s37 offen offset:{n*1024} lds")
    e("s_add_u32 s39, s39, 32768"); e("s_add_u32 s45, s45, 1"); e("s_cmp_eq_u32 s45, 10"); e("s_cselect_b32 s45, 0, s45"); e("s_mul_i32 s37, s45, s38")
    e("s_mov_b32 s40, 3")
    k.srd(24, 14, 15, 32768, WS_ST1)
    k.srd(48, 12, 13, 256)
    k.srd(20, 10, 11, 2048*4096)
    e("v_bfe_u32 v4, v1, 2, 2"); e("v_lshlrev_b32 v4, 3, v4"); e("v_bfe_u32 v5, v1, 4, 1"); e("v_lshl_add_u32 v4, v5, 2, v4")
    e("v_and_b32 v5, 0x23, v1"); e("v_add_u32 v4, v4, v5"); e("v_lshlrev_b32 v232, 4, v4"); e("v_mov_b32 v233, 0")
    e("s_lshl_b32 s52, s35, 11"); e("s_and_b32 s43, s32, 1"); e("s_lshl_b32 s43, s43, 10"); e("s_add_u32 s52, s52, s43")
    e("s_mul_i32 s34, s41, 28"); e("s_add_u32 s34, s34, s42"); e("s_lshl_b32 s34, s34, 1"); e("s_add_u32 s34, s34, s32")
    e("s_mul_i32 s56, s41, 24"); e("s_add_u32 s56, s56, s42"); e("s_add_u32 s56, s56, 448")
    e("s_cmp_lt_u32 s42, 24"); e("s_cselect_b32 s56, s56, 1000")
    e("s_cmp_eq_u32 s32, 2"); e("s_cselect_b32 s34, s56, s34")
    e("s_cmp_eq_u32 s32, 3"); e("s_cselect_b32 s34, 1000, s34")
    e("s_min_u32 s57, s34, 639"); e("s_lshl_b32 s56, s57, 8"); e("s_lshl_b32 s57, s57, 1")
    e("v_lshl_add_u32 v230, v1, 2, s56"); e("v_mov_b32 v231, s57")
    e("s_getpc_b64 s[28:29]")
    k.label("m_pc")
    e(f"s_sub_u32 s28, s28, m_pc-{name}"); e("s_subb_u32 s29, s29, 0")
    e(f"s_mov_b32 s30, text_end-{name}"); e("s_mov_b32 s31, 0x00020000")
    e("s_and_b32 s54, s42, 15"); e("s_lshl_b32 s54, s54, 2"); e("s_add_u32 s54, s54, s33"); e("s_lshl_b32 s54, s54, 10")
    e("s_lshl_b32 s53, s42, 2"); e("s_add_u32 s53, s53, s32"); e(f"s_mul_i32 s53, s53, {9*1024+384}")
    e("s_lshl_b32 s43, s41, 20"); e("s_add_u32 s53, s53, s43")
    e("v_lshlrev_b32 v2, 4, v1")
    e("s_lshl_b32 s43, s32, 8"); e(f"s_add_u32 s43, s43, {MISC}"); e("v_lshl_add_u32 v6, v1, 2, s43"); e(f"v_mov_b32 v7, {W_EPOCH}")
    k.label("m_ldloop")
    e("s_waitcnt vmcnt(16)")
    e("s_barrier")
    for g in range(2):
        e(f"s_add_u32 m0, s39, {g*4096}")
        e("s_nop 0")
        for n in range(4): e(f"buffer_load_dwordx4 v{16+g*4+n}, s[16:19], s37 offen offset:{n*1024} lds")
    e("s_add_u32 s39, s39, 32768"); e("s_and_b32 s39, s39, 0x1ffff")
    e("s_add_u32 s45, s45, 1"); e("s_cmp_eq_u32 s45, 10"); e("s_cselect_b32 s45, 0, s45"); e("s_mul_i32 s37, s45, s38")
    e("s_add_u32 s40, s40, 1"); e("s_cmp_lt_u32 s40, 10"); e("s_cbranch_scc1 m_ldloop")
    k.stamp(1)
    def pf(n):
        for i in range(n):
            e(f"buffer_load_dwordx4 v[224:227], v2, s[20:23], s53 offen offset:{(i%4)*1024}")
            if i % 4 == 3 or i == n - 1: e(f"s_add_u32 s53, s53, {(i%4+1)*1024}")
    e("buffer_load_dword v234, v233, s[48:51], 0 offen sc1")
    e("buffer_load_dwordx4 v[236:239], v232, s[24:27], s52 offen sc1")
    e("s_waitcnt vmcnt(18)"); e("s_barrier")
    for a_ in range(4): e(f"global_load_dword v{164+a_}, v230, s[{64+2*a_}:{65+2*a_}]")
    e("global_load_ushort v13, v231, s[72:73]"); e("global_load_ushort v14, v231, s[74:75]")
    e("buffer_load_dwordx4 v[224:227], v2, s[28:31], s54 offen")
    P1_, P2_ = (3, 7) if "pfa" in EXP else (0, 5)
    pf(P1_)
    e(f"s_waitcnt vmcnt({17+P1_})"); e("s_barrier")
    pf(P2_)
    e(f"s_waitcnt vmcnt({9+P1_+P2_})"); e("s_barrier")
    e("s_cmp_ge_u32 s32, 2"); e("s_cbranch_scc1 m_st1ok")
    e(f"s_waitcnt vmcnt({7+P1_+P2_})")
    e("s_mov_b32 s40, 0")
    e("s_branch m_st1chk")
    k.label("m_st1poll")
    e("buffer_load_dword v234, v233, s[48:51], 0 offen sc1")
    e("buffer_load_dwordx4 v[236:239], v232, s[24:27], s52 offen sc1")
    e("s_waitcnt vmcnt(0)")
    k.label("m_st1chk")
    e("v_xor_b32 v4, v237, v234"); e("v_xor_b32 v5, v239, v234"); e("v_or_b32 v4, v4, v5")
    e("v_cmp_ne_u32 vcc, 0, v4"); e("v_cmp_eq_u32 s[44:45], 0, v234"); e("s_add_u32 s40, s40, 1")
    e("s_or_b64 vcc, vcc, s[44:45]")
    e(f"s_cmp_ge_u32 s40, {SPIN}"); e("s_cbranch_scc1 m_st1w")
    e("s_cbranch_vccnz m_st1poll")
    k.label("m_st1w")
    e("ds_write_b32 v6, v236"); e("ds_write_b32 v6, v238 offset:512"); e("ds_write_b32 v7, v234")
    k.label("m_st1ok")
    pf(10 - P1_ - P2_)
    e("s_waitcnt lgkmcnt(0)")
    e("s_barrier")
    k.label("m_Lpost")
    k.stamp(2)
    e(f"v_mov_b32 v4, {W_EPOCH}"); e("ds_read_b32 v5, v4")
    k.srd(FLS, 14, 15, FL_BYTES, WS_FL)
    e("v_and_b32 v2, 15, v1"); e("v_lshrrev_b32 v3, 4, v1")
    e("s_lshr_b32 s35, s41, 1"); e("s_lshl_b32 s35, s35, 3"); e("s_lshr_b32 s43, s42, 2"); e("s_add_u32 s35, s35, s43")
    e("s_waitcnt lgkmcnt(0)")
    e("v_readfirstlane_b32 s3, v5")
    e("s_cmp_lg_u32 s32, 3"); e("s_cbranch_scc1 m_conv")
    k.srd(16, 10, 11, 2048*4096)
    e("v_lshrrev_b32 v4, 5, v1"); e("v_lshlrev_b32 v4, 3, v4"); e("v_bfe_u32 v5, v1, 3, 2"); e("v_add_u32 v4, v4, v5")
    e("v_lshlrev_b32 v4, 12, v4")
    e("v_and_b32 v5, 7, v1"); e("v_xor_b32 v5, v5, v3")
    e("v_lshl_add_u32 v6, v5, 4, v4")
    e("v_xor_b32 v5, 4, v5"); e("v_lshl_add_u32 v7, v5, 4, v4")
    for n in range(8):
        ee, t = n & 1, n >> 1
        e(f"v_add_u32 v{16+n}, {(32*(t >> 1) + 4*(t & 1) + 16*ee)*4096 - (n & 3)*1024}, v{6+ee}")
    e("s_lshl_b32 s37, s35, 18")
    e(f"s_and_b32 s43, s35, {ROTM}"); e("s_lshl_b32 s43, s43, 8"); e("s_add_u32 s37, s37, s43")
    LATE = "late" in EXP
    def pfloop():
        e("s_mov_b32 s40, 0")
        k.label("m_pfloop")
        e("s_and_b32 s43, s40, 3"); e("s_lshr_b32 s44, s40, 2")
        e(f"s_mul_i32 s49, s43, {RING2}"); e("s_lshl_b32 s46, s44, 13"); e("s_add_u32 s49, s49, s46")
        e("s_lshl_b32 s46, s43, 13"); e(f"s_add_u32 s46, s46, {XB}"); e("s_cmp_eq_u32 s44, 2"); e("s_cselect_b32 s49, s46, s49")
        e("s_lshl_b32 s43, s43, 10"); e("s_lshl_b32 s44, s44, 7"); e("s_add_u32 s43, s43, s44"); e("s_add_u32 s43, s43, s37")
        for g in range(2):
            e(f"s_add_u32 m0, s49, {g*4096}")
            e("s_nop 0")
            for n in range(4): e(f"buffer_load_dwordx4 v{16+g*4+n}, s[16:19], s43 offen offset:{n*1024} lds")
        e(f"s_waitcnt vmcnt({48 if LATE else int(os.environ.get('THR', '40'))})")
        e("s_add_u32 s40, s40, 1"); e("s_cmp_lt_u32 s40, 12"); e("s_cbranch_scc1 m_pfloop")
    if not LATE: pfloop()
    e(f"v_mov_b32 v4, {W_FX + 12}"); e("v_mov_b32 v5, 1"); e("s_waitcnt vmcnt(0)"); e("ds_write_b32 v4, v5")
    k.stamp(3)
    e("s_and_b32 s36, s41, 1"); e("s_lshl_b32 s36, s36, 2"); e("s_and_b32 s43, s42, 3"); e("s_add_u32 s36, s36, s43")
    e("s_cmp_eq_u32 s36, 7"); e("s_cselect_b32 s43, 31, 47")
    e("v_min_u32 v7, s43, v1"); e("v_lshlrev_b32 v7, 2, v7")
    e("s_lshl_b32 s45, s35, 3"); e("s_add_u32 s45, s45, s36"); e("s_lshl_b32 s45, s45, 8"); e(f"s_add_u32 s45, s45, {FZ2}")
    e(f"v_mov_b32 v4, {W_PF + 8}")
    lds_wait_ge(k, "m_wown1", "v4", 5, 1, 4, sleep=2)
    if LATE: pfloop()
    elif ZD: e(f"s_sleep {ZD}")
    poll_flags(k, "m_pollz", "v7", FLS, 1, 5, "v6", soff="s45", sleep=ZSL)
    e(f"v_mov_b32 v4, {W_PF}"); e("v_mov_b32 v5, 1")
    e("ds_write_b32 v4, v5")
    k.stamp(4)
    k.srd(24, 14, 15, WOF_BYTES, WS_WOF)
    k.srd(20, 96, 97, 864*1280); e("s_mov_b32 s38, s2")
    e("v_lshrrev_b32 v4, 3, v1"); e("v_mul_u32_u24 v111, 1280, v4"); e("v_and_b32 v5, 7, v1"); e("v_lshl_add_u32 v111, v5, 4, v111")
    e(f"s_mov_b32 s43, {111616 + 32768}")
    e("v_mul_u32_u24 v4, 128, v4"); e("v_lshl_add_u32 v4, v5, 4, v4"); e("v_add_u32 v4, s43, v4")
    e("v_bfe_u32 v5, v1, 2, 2"); e("v_lshl_add_u32 v5, v3, 2, v5"); e("v_mul_u32_u24 v5, 128, v5"); e("v_and_b32 v6, 3, v1"); e("v_lshl_add_u32 v5, v6, 3, v5"); e("v_add_u32 v5, s43, v5")
    e("v_lshlrev_b32 v6, 4, v1")
    k.vm = []
    for it in range(2):
        e(f"s_add_u32 s43, s38, {256*it}"); e("s_mul_i32 s44, s43, 205"); e("s_lshr_b32 s44, s44, 11"); e("s_mul_i32 s45, s44, 10"); e("s_sub_u32 s45, s43, s45")
        e("s_mul_i32 s46, s44, 40960"); e("s_lshl_b32 s47, s45, 7"); e("s_add_u32 s46, s46, s47")
        for d in range(4):
            e(f"s_lshl_b32 s47, s45, 2"); e(f"s_add_u32 s47, s47, {d}"); e("s_mul_i32 s39, s47, 52"); e("s_lshr_b32 s39, s39, 8")
            e("s_mul_i32 s39, s39, 130"); e("s_add_u32 s47, s47, s39"); e("s_mul_i32 s39, s44, 5"); e("s_add_u32 s47, s47, s39"); e("s_lshl_b32 s47, s47, 10")
            e("s_cmp_lt_u32 s43, 270"); e(f"s_cselect_b32 s{48+it*4+d}, s47, {HUGE}")
        for n in range(4):
            k.vmem(f"buffer_load_dwordx4 {v(16+it*16+n*4,4)}, v111, s[20:23], s46 offen", f"wo{it}")
            e("s_add_u32 s46, s46, 10240")
    for it in range(2):
        k.wait_vm(f"wo{it}")
        for n in range(4): e(f"ds_write_b128 v4, {v(16+it*16+n*4,4)} offset:{n*8*128}")
        for d in range(4):
            for hh in range(2): e(f"ds_read_b64_tr_b16 {v(64+it*16+d*4+hh*2,2)}, v5 offset:{hh*16*128 + d*32}")
    e("s_waitcnt lgkmcnt(0)")
    for it in range(2):
        for d in range(4): e(f"buffer_store_dwordx4 {v(64+it*16+d*4,4)}, v6, s[24:27], s{48+it*4+d} offen sc1")
    e("s_lshl_b32 s45, s2, 2"); e(f"s_add_u32 s45, s45, {FK}")
    set_flag(k, FLS, "s45", 0, "v7", "v8")
    e(f"v_mov_b32 v4, {W_GL}")
    lds_wait_ge(k, "m_wgl3", "v4", 8, 4, 1, sleep=8)
    e(f"s_mov_b32 s44, {FK}")
    poll_flags(k, "m_pollx3", "v6", FLS, 4, 8, "v5", soff="s44", sleep=16)
    e(f"v_mov_b32 v4, {W_FX}"); e("v_mov_b32 v5, 1"); e("ds_write_b32 v4, v5")
    e("s_branch m_L3prep")
    k.label("m_conv")
    e("s_cmp_ge_u32 s34, 640"); e("s_cbranch_scc1 m_L3prep")
    e(f"s_mul_i32 s39, s32, {CONV_B}"); e(f"s_add_u32 s39, s39, {CONV0}")
    e(f"s_waitcnt vmcnt({20 if 'pf2' in EXP else 10})")
    kgen_dt(k, "v13")
    kgen_addr(k, "s39", "v2", "v3", "v1")
    e("s_mov_b32 s40, 2")
    e(f"s_mov_b32 s50, {FX}"); e("v_and_b32 v220, 31, v1"); e("v_lshlrev_b32 v220, 2, v220")
    e("v_lshlrev_b32 v15, 4, v1"); e("s_mov_b32 s51, 0")
    k.srd(20, 14, 15, XT_BYTES, WS_XNT)
    k.srd(24, 14, 15, XT_BYTES, WS_YT)
    e("s_lshl_b32 s45, s34, 12")
    uld = [f"buffer_load_dwordx4 {v(200+4*n,4)}, v15, s[20:23], s45 offen offset:{n*1024} sc1" for n in range(4)]
    kgen_loop(k, 164, "v13", "s40",
              top=["s_cmp_lg_u32 s40, 1", "s_cbranch_scc1 m_noprobe", "buffer_load_dword v216, v220, s[60:63], s50 offen sc1", "m_noprobe:"],
              mid=["s_cmp_lg_u32 s40, 1", "s_cbranch_scc1 m_nochk", "s_waitcnt vmcnt(0)", "v_cmp_ne_u32 vcc, s3, v216", "s_nop 1", "s_cbranch_vccnz m_nochk", "s_mov_b32 s51, 1"] + uld + ["m_nochk:"])
    k.stamp(3)
    UO, KC = 8320, 12928
    e(f"s_add_u32 s43, s39, {KC}")
    e("v_max_u32 v4, 1, v3"); e("v_sub_u32 v4, 5, v4")
    e("v_lshlrev_b32 v5, v4, v2")
    e("v_lshlrev_b32 v6, 3, v3")
    e("v_mov_b32 v7, 512"); e("v_cmp_eq_u32 vcc, 2, v3"); e("s_nop 1"); e("v_cndmask_b32 v6, v6, v7, vcc")
    e("v_mov_b32 v7, 768"); e("v_mov_b32 v8, 4"); e("v_mov_b32 v9, 128"); e("v_cmp_eq_u32 vcc, 3, v3"); e("s_nop 1")
    e("v_cndmask_b32 v6, v6, v7, vcc"); e("v_cndmask_b32 v8, v8, v9, vcc")
    e("v_add3_u32 v5, v5, v6, s43")
    e("v_lshlrev_b32 v6, v4, 16"); e("v_add_u32 v6, v5, v6")
    e("v_add_u32 v7, v5, v8"); e("v_add_u32 v8, v6, v8")
    for n in range(8): e(f"v_cvt_pk_bf16_f32 v{24+n}, v{136+2*n}, v{137+2*n}")
    e("ds_write_b32 v5, v24"); e("ds_write_b32 v7, v25"); e("ds_write_b32 v6, v26"); e("ds_write_b32 v8, v27")
    e("v_lshlrev_b32 v9, 6, v2"); e("v_lshl_add_u32 v9, v3, 3, v9"); e("v_add_u32 v9, s43, v9")
    e("v_mov_b32 v20, 0"); e("v_mov_b32 v21, 0"); e("v_mov_b32 v22, 0"); e("v_mov_b32 v23, 0")
    e("v_add_u32 v16, s39, v15")
    e("v_lshl_add_u32 v17, v1, 3, s39")
    e(f"ds_write_b64 v17, v[20:21] offset:{UO}")
    e("v_cmp_gt_u32 vcc, 5, v2"); e("s_and_saveexec_b64 s[46:47], vcc")
    e("ds_write_b64 v9, v[28:29] offset:1024"); e("ds_write_b64 v9, v[30:31] offset:1056")
    e("s_mov_b64 exec, 3")
    e("ds_write_b128 v16, v[20:23] offset:4096"); e(f"ds_write_b128 v16, v[20:23] offset:{4160+4096}")
    e("s_mov_b64 exec, -1")
    e("v_lshlrev_b32 v18, 1, v1"); e(f"s_add_u32 s44, s43, {2*575}"); e("v_sub_u32 v96, s44, v18")
    e("v_and_b32 v19, 1, v1"); e("v_xor_b32 v19, 1, v19"); e("v_lshl_add_u32 v97, v19, 1, v96")
    e("v_lshlrev_b32 v18, 2, v1"); e("s_add_u32 s44, s43, 1020"); e("v_sub_u32 v98, s44, v18")
    e("v_lshlrev_b32 v18, 3, v1"); e(f"s_add_u32 s44, s43, {2*380 - 2}"); e("v_sub_u32 v99, s44, v18")
    e("v_lshlrev_b32 v18, 4, v1"); e(f"s_add_u32 s44, s43, {2*504 - 2}"); e("v_sub_u32 v100, s44, v18")
    EM = []
    for m in range(2):
        o = 128 * (1 - m); A_, B_, X_ = 144 + 3*m, 145 + 3*m, 146 + 3*m
        e(f"ds_read_u16 v{A_}, v96 offset:{o}"); e(f"ds_read_u16 v{B_}, v96 offset:{o+2}"); e(f"ds_read_u16 v{X_}, v97 offset:{o}")
        EM.append([B_, B_, B_, X_, A_, A_, A_, A_, A_])
    for i in range(3): e(f"ds_read_u16 v{150+i}, v98 offset:{2*i}")
    EM.append([152, 152, 151, 151, 151, 150, 150, 150, 150])
    e("s_mov_b32 exec_hi, 0")
    for el, io in enumerate((4, 3, 2, 2, 2, 1, 0, 0, 0)): e(f"ds_read_u16 v{153+el}, v99 offset:{2*io + 2}")
    e("s_mov_b32 exec_lo, 0x80000000")
    e("ds_read_u16 v161, v99")
    e("s_mov_b32 exec_lo, 0"); e("s_mov_b32 exec_hi, -1")
    for el in range(9): e(f"ds_read_u16 v{153+el}, v100 offset:{2*(7 - el) + 2}")
    e("s_mov_b64 exec, -1")
    EM.append(list(range(153, 162)))
    e("v_cmp_eq_u32 vcc, 63, v1"); e("s_nop 0")
    e("s_waitcnt lgkmcnt(0)")
    e("v_cndmask_b32 v161, v161, v20, vcc")
    for m in range(4):
        W = 32 + 16*m; E = EM[m]
        for p in range(4):
            e(f"v_lshl_or_b32 v{W+p}, v{E[2*p+1]}, 16, v{E[2*p]}")
            e(f"v_lshl_or_b32 v{W+8+p}, v{E[2*p+2]}, 16, v{E[2*p+1]}")
        e(f"ds_write_b128 v16, {v(W,4)} offset:{1024*m}")
        e(f"ds_write_b128 v16, {v(W+8,4)} offset:{4160+1024*m}")
    e("s_cmp_eq_u32 s51, 1"); e("s_cbranch_scc1 m_uok")
    poll_flags(k, "m_pollx", "v220", FLS, 1, 216, "v4", soff="s50", sleep=32)
    for u_ in uld: e(u_)
    k.label("m_uok")
    e("s_waitcnt vmcnt(0)")
    for n in range(4): e(f"ds_write_b128 v16, {v(200+4*n,4)} offset:{UO+512+1024*n}")
    k.stamp(5)
    e("v_and_b32 v4, 1, v2"); e("v_xor_b32 v4, 1, v4"); e("v_mul_u32_u24 v4, 4160, v4")
    e("v_lshrrev_b32 v5, 1, v2"); e("v_lshlrev_b32 v6, 2, v3"); e("v_sub_u32 v5, v6, v5")
    e("v_lshl_add_u32 v4, v5, 2, v4"); e("v_add_u32 v4, s39, v4")
    for mp in range(4): e(f"v_add_u32 v{24+mp}, {4*(1023 - 8 - 128*(2*mp+1))}, v4")
    e("v_lshlrev_b32 v5, 5, v2"); e("v_lshl_add_u32 v5, v3, 4, v5")
    e(f"s_add_u32 s43, s39, {UO+480}"); e("v_add_u32 v28, s43, v5")
    def Af(m): return 32 + 4*m
    def Bf(r): return 64 + 4*r
    def ac(cb): return v(96 + 4*cb, 4)
    for i in range(32): e(f"v_mov_b32 v{96+i}, 0")
    e("v_lshlrev_b32 v14, 16, v14")
    e("s_waitcnt lgkmcnt(0)")
    def rdA(m):
        o = 0 if m & 1 else 128
        e(f"ds_read2_b32 {v(Af(m),2)}, v{24+m//2} offset0:{o} offset1:{o+1}"); e(f"ds_read2_b32 {v(Af(m)+2,2)}, v{24+m//2} offset0:{o+2} offset1:{o+3}")
    def rdB(r): e(f"ds_read_b128 {v(Bf(r),4)}, v28 offset:{512*r}")
    for m in range(8): rdA(m); rdB(7-m)
    e("s_mov_b32 s40, 8")
    k.label("m_cloop")
    for r in range(24, 29): e(f"v_subrev_u32 v{r}, 64, v{r}")
    for m in range(8):
        for cb in (range(7, -1, -1) if m == 0 else range(m, 8)):
            if m == 0: e(f"s_waitcnt lgkmcnt({min(3*cb, 15)})")
            e(f"{MFMA} {ac(cb)}, {v(Af(m),4)}, {v(Bf(cb-m),4)}, {ac(cb)}")
        rdA(m); rdB(7-m)
    e("s_sub_u32 s40, s40, 1"); e("s_cmp_lg_u32 s40, 0"); e("s_cbranch_scc1 m_cloop")
    k.stamp(6)
    e("s_waitcnt lgkmcnt(0)")
    e("v_lshlrev_b32 v20, 5, v2"); e("v_lshl_add_u32 v20, v3, 3, v20")
    e(f"s_add_u32 s43, s39, {UO+512}"); e("v_add_u32 v21, s43, v20")
    for cb in range(8): e(f"ds_read_b64 {v(32+2*cb,2)}, v21 offset:{512*cb}")
    e("s_waitcnt lgkmcnt(0)")
    for c0 in (0, 4):
        A = [96 + 4*cb + 2*p for cb in range(c0, c0+4) for p in range(2)]
        U = [32 + 2*cb + p for cb in range(c0, c0+4) for p in range(2)]
        for i in range(8): unpack(k, f"v{72+2*i}", f"v{73+2*i}", f"v{U[i]}")
        for i in range(8): e(f"v_pk_fma_f32 {pr(A[i])}, {pr(72+2*i)}, v[14:15], {pr(A[i])} op_sel_hi:[1,0,1]")
        for i in range(8): e(f"v_cvt_pk_bf16_f32 v{U[i]}, v{A[i]}, v{A[i]+1}")
        for cb in range(c0, c0+4): e(f"ds_write_b64 v21, {v(32+2*cb,2)} offset:{512*cb}")
    for n in range(4): e(f"ds_read_b128 {v(64+4*n,4)}, v16 offset:{UO+512+1024*n}")
    for n in range(4):
        e(f"s_waitcnt lgkmcnt({3-n})")
        e(f"buffer_store_dwordx4 {v(64+4*n,4)}, v15, s[24:27], s45 offen offset:{1024*n} sc1")
    e("s_lshl_b32 s43, s34, 2"); e(f"s_add_u32 s43, s43, {FY}")
    set_flag(k, FLS, "s43", 0, "v4", "v5")
    k.stamp(7)
    k.label("m_L3prep")
    e("s_and_b32 s36, s41, 1"); e("s_lshl_b32 s36, s36, 2"); e("s_and_b32 s43, s42, 3"); e("s_add_u32 s36, s36, s43")
    e(f"v_mov_b32 v4, {W_GL}")
    lds_wait_ge(k, "m_wgl", "v4", 8, 4, 2, sleep=8)
    e(f"v_mov_b32 v4, {W_FX}")
    lds_wait(k, "m_wfw", "v4", "v5", sleep=2)
    k.stamp(8)
    k.srd(16, 14, 15, WOF_BYTES, WS_WOF)
    e("v_lshlrev_b32 v15, 4, v1")
    def wo_load(name):
        e("s_lshl_b32 s46, s46, 10"); e("s_mul_i32 s48, s36, 138240"); e("s_add_u32 s48, s48, s46"); e(f"s_add_u32 s46, s46, {IMG}")
        k.label(name)
        e("s_mov_b32 m0, s46"); e("s_add_u32 s46, s46, 1024")
        e("buffer_load_dwordx4 v15, s[16:19], s48 offen sc1 lds")
        e("s_add_u32 s48, s48, 1024"); e("s_sub_u32 s47, s47, 1"); e("s_cmp_lg_u32 s47, 0"); e(f"s_cbranch_scc1 {name}")
    e("s_mul_i32 s46, s33, 15"); e("s_add_u32 s46, s46, 42"); e("s_mov_b32 s47, 15")
    e("s_cmp_eq_u32 s33, 3"); e("s_cselect_b32 s46, 119, s46"); e("s_cselect_b32 s47, 16, s47")
    wo_load("m_wo1")
    e(f"v_mov_b32 v4, {W_R2}")
    lds_wait_ge(k, "m_wr3", "v4", 8, 4, 1, sleep=1)
    e("s_mul_i32 s46, s33, 21"); e("s_mov_b32 s47, 21")
    e("s_lshl_b32 s43, s33, 4"); e("s_add_u32 s43, s43, 55")
    e("s_cmp_ge_u32 s33, 2"); e("s_cselect_b32 s46, s43, s46"); e("s_cselect_b32 s47, 16, s47")
    wo_load("m_wo2")
    e("s_branch m_P3")

    k.label("m_gemm1")
    e("v_and_b32 v2, 15, v1"); e("v_lshrrev_b32 v3, 4, v1")
    e("v_lshlrev_b32 v12, 4, v1")
    e("v_add_u32 v13, 4096, v12")
    PL = 200
    def poll_loads():
        for i in range(7):
            e(f"buffer_load_dwordx4 {v(PL+4*i,4)}, v{12 if i < 4 else 13}, s[28:31], s72 offen offset:{(i%4)*1024} sc1")
    e("v_mov_b32 v10, 0")
    e("v_and_b32 v4, 31, v1"); e(f"v_lshlrev_b32 v4, 2, v4"); e(f"v_add_u32 v4, {W_EPOCH}, v4")
    e("ds_write_b32 v4, v10")
    e("s_waitcnt lgkmcnt(0)")
    k.srd(64, 12, 13, 256)
    e("s_cmp_lg_u32 s2, 0"); e("s_cbranch_scc1 m_noep")
    e("s_cmp_lg_u32 s32, 4"); e("s_cbranch_scc1 m_noep")
    e("s_memrealtime s[44:45]"); e("s_waitcnt lgkmcnt(0)"); e("s_or_b32 s44, s44, 1"); e("v_mov_b32 v4, s44")
    e("s_mov_b64 exec, 1")
    e("buffer_store_dword v4, v10, s[64:67], 0 offen sc1")
    e("s_mov_b64 exec, -1")
    k.label("m_noep")
    e("s_lshl_b32 s43, s35, 2"); e("s_add_u32 s43, s43, s33"); e(f"s_mul_i32 s72, s43, {14*512}")
    e("s_lshl_b32 s44, s36, 9"); e("s_add_u32 s73, s72, s44")
    e("s_lshl_b32 s74, s36, 6"); e("s_add_u32 s74, s74, s43"); e("s_lshl_b32 s74, s74, 2")
    e("v_and_b32 v4, 7, v1"); e("v_lshl_add_u32 v4, v3, 3, v4"); e("v_bfe_u32 v5, v1, 3, 1"); e("v_lshlrev_b32 v5, 3, v5")
    e("v_lshl_add_u32 v230, v4, 4, v5")
    k.srd(28, 14, 15, ST2_BYTES, WS_ST2)
    k.srd(24, 14, 15, ZF_BYTES, WS_Z2F)
    k.srd(20, 14, 15, ZF_BYTES, WS_Z1F)
    k.srd(FLS, 14, 15, FL_BYTES, WS_FL)
    for c in range(4):
        e(f"s_xor_b32 s43, s33, {c}")
        e("s_lshl_b32 s44, s36, 2"); e("s_add_u32 s43, s43, s44"); e("s_sub_u32 s43, s43, 2")
        e(f"s_cmp_lt_u32 s43, 54"); e(f"s_cselect_b32 s{50+c}, -1, 0")
        e("s_cselect_b32 s43, s43, 60")
        e(f"s_lshl_b32 s{46+c}, s43, 16")
        e("s_lshl_b32 s44, s35, 2"); e("s_add_u32 s44, s44, s33"); e("s_lshl_b32 s44, s44, 10")
        e(f"s_add_u32 s{46+c}, s{46+c}, s44")
    for b in range(2):
        for g in range(2):
            e("s_lshr_b32 s43, s33, 1"); e(f"s_xor_b32 s43, s43, {g}"); e("s_lshl_b32 s44, s36, 1"); e("s_add_u32 s43, s43, s44")
            e("s_lshl_b32 s44, s35, 3"); e("s_lshl_b32 s45, s33, 1"); e("s_add_u32 s44, s44, s45"); e(f"s_add_u32 s44, s44, {b}")
            e("s_mul_i32 s44, s44, 27"); e("s_add_u32 s44, s44, s43"); e("s_lshl_b32 s44, s44, 10")
            e("s_cmp_lt_u32 s43, 27"); e(f"s_cselect_b32 s{68+b*2+g}, s44, {HUGE}")
    e("v_and_b32 v4, 2, v1"); e("v_and_b32 v5, 1, v1")
    e("v_cmp_ne_u32 s[54:55], 0, v4"); e("v_cmp_ne_u32 s[56:57], 0, v5")
    e("s_lshl_b32 s43, s33, 5")
    e("v_add_u32 v4, s43, v2"); e("v_lshlrev_b32 v4, 7, v4")
    e("v_lshrrev_b32 v5, 1, v2"); e("v_xor_b32 v5, v5, v3")
    e("v_lshl_add_u32 v14, v5, 4, v4")
    e("v_xor_b32 v15, 64, v14")
    e("v_bfe_u32 v4, v1, 2, 2")
    e("v_lshl_add_u32 v5, v3, 3, v4"); e("v_lshlrev_b32 v5, 7, v5")
    e("v_and_b32 v6, 3, v1"); e("v_lshl_add_u32 v5, v6, 3, v5")
    e("v_add_u32 v5, 16384, v5")
    e("v_lshrrev_b32 v6, 1, v4"); e("v_and_b32 v7, 1, v3"); e("v_lshl_or_b32 v6, v7, 1, v6")
    e("v_xor_b32 v6, s33, v6")
    for c in range(4):
        e(f"v_xor_b32 v7, {c}, v6"); e(f"v_lshl_add_u32 v{16+c}, v7, 5, v5")
    for i in range(4): e(f"v_mov_b32 v{20+i}, 0x3f803f80")
    ACC = 104
    for i in range(ACC, 192): e(f"v_mov_b32 v{i}, 0")
    def xf(ks, b): return v(24 + 40*ks + 4*b, 4)
    def wfb(ks, h, c): return 24 + 40*ks + 8 + 16*h + 4*c
    def wf(ks, h, c): return v(wfb(ks, h, c), 4)
    def accb(h, b, c): return ACC + 32*h + (b*4 + c)*4
    def acc(h, b, c): return v(accb(h, b, c), 4)
    def rlist(ks):
        L = [f"ds_read_b128 {xf(ks,b)}, v{14+ks} offset:{2048*b}" for b in range(2)]
        for h in range(2):
            for c in range(4):
                for hh in range(2):
                    L.append(f"ds_read_b64_tr_b16 {v(wfb(ks,h,c)+2*hh,2)}, v{16+c} offset:{h*8192+ks*4096+hh*512}")
        if "few" in EXP: L = L[:2] + L[:2] + L[2:10]
        if "zerord" in EXP: L = L[:1]
        return L
    def mlist(ks):
        L = []
        for h in range(2):
            L.append(f"{MFMA} {v(184+4*h,4)}, v[20:23], {wf(ks,h,0)}, {v(184+4*h,4)}")
            for c in range(4):
                for b in range(2):
                    if h == 0: L.append(f"{MFMA} {acc(h,b,c)}, {xf(ks,b)}, {wf(ks,h,c)}, {acc(h,b,c)}")
                    else:      L.append(f"{MFMA} {acc(h,b,c)}, {wf(ks,h,c)}, {xf(ks,b)}, {acc(h,b,c)}")
        return L
    def phase(ks, rd, extra=()):
        M = mlist(ks); R = list(rd); X = list(extra)
        for i, m in enumerate(M):
            e(m)
            if R: e(R.pop(0))
            if R and i < 4: e(R.pop(0))
            elif X and not R:
                for _ in range(3):
                    if X: e(X.pop(0))
        for x in X: e(x)
    bump = [f"v_add_u32 v{r}, 0x8000, v{r}" for r in range(14, 20)]
    wrap = [f"v_and_b32 v{r}, 0x1ffff, v{r}" for r in range(14, 20)]
    e("s_lshl_b32 s43, s33, 6"); e(f"s_add_u32 s43, s43, {MISC+1024}"); e("v_lshl_add_u32 v196, v2, 2, s43")
    for c in range(4):
        e(f"s_xor_b32 s43, s33, {c}"); e(f"s_lshl_b32 s43, s43, 6"); e(f"s_add_u32 s43, s43, {MISC+1024}")
        e(f"v_lshl_add_u32 v{232+c}, v2, 2, s43"); e(f"v_lshl_add_u32 v{236+c}, v3, 4, s43")
    e("s_lshl_b32 s43, s33, 7"); e(f"s_add_u32 s43, s43, {MISC}")
    e("v_lshl_add_u32 v7, v2, 2, s43"); e("v_lshl_add_u32 v8, v3, 4, s43"); e(f"v_mov_b32 v9, {W_EPOCH}")
    k.stamp(1)
    e("s_mov_b32 s40, 10")
    e("s_barrier")
    k.stamp(2)
    for r in rlist(0): e(r)
    k.label("m_loop1")
    e("s_waitcnt lgkmcnt(0)")
    phase(0, rlist(1), bump + wrap)
    e("s_sub_u32 s40, s40, 1"); e("s_cmp_eq_u32 s40, 0")
    e("s_waitcnt lgkmcnt(0)")
    e(f"s_cbranch_scc1 m_tail1")
    e("s_barrier")
    phase(1, rlist(0))
    e(f"s_branch m_loop1")
    k.label(f"m_tail1")
    phase(1, [])
    e("s_setprio 2")
    k.stamp(3)
    epoch_poll = None
    e("ds_write_b32 v196, v184"); e("ds_write_b32 v196, v188 offset:256")
    e("s_waitcnt lgkmcnt(0)")
    e("s_barrier")
    e("ds_read_b128 v[24:27], v8"); e("ds_read_b128 v[28:31], v8 offset:64")
    e("ds_read_b128 v[32:35], v8 offset:512"); e("ds_read_b128 v[36:39], v8 offset:576")
    for c in range(4): e(f"ds_read_b32 v{40+2*c}, v{232+c}")
    e("ds_read_b32 v229, v9")
    for c in range(4): e(f"ds_read_b128 {v(64+4*c,4)}, v{236+c} offset:256")
    e("ds_read_b32 v80, v7"); e("ds_read_b32 v82, v7 offset:64"); e("ds_read_b32 v84, v7 offset:512"); e("ds_read_b32 v86, v7 offset:576")
    e(f"v_mov_b32 v88, {f32(GC1)}"); e(f"v_mov_b32 v90, {f32(GC0)}")
    e("s_waitcnt lgkmcnt(8)")
    e("v_readfirstlane_b32 s3, v229")
    e("s_cmp_lg_u32 s36, 0"); e("s_cbranch_scc1 m_nomask")
    for c in range(4):
        e(f"v_and_b32 v{40+2*c}, s{50+c}, v{40+2*c}")
        for b in range(2):
            for r in range(4): e(f"v_and_b32 v{accb(0,b,c)+r}, s{50+c}, v{accb(0,b,c)+r}")
    k.label("m_nomask")
    def gelu_pairs(A):
        n = len(A); T = [48 + 2*i for i in range(n)]
        for i in range(n): e(f"v_pk_mul_f32 {pr(T[i])}, {pr(A[i])}, {pr(A[i])}")
        for i in range(n): e(f"v_pk_fma_f32 {pr(T[i])}, {pr(T[i])}, v[88:89], v[90:91] op_sel_hi:[1,0,0]")
        for i in range(n): e(f"v_pk_mul_f32 {pr(T[i])}, {pr(T[i])}, {pr(A[i])}")
        for i in range(n): e(f"v_exp_f32 v{T[i]}, v{T[i]}"); e(f"v_exp_f32 v{T[i]+1}, v{T[i]+1}")
        for i in range(n): e(f"v_pk_add_f32 {pr(T[i])}, {pr(T[i])}, 1.0 op_sel_hi:[1,0]")
        for i in range(n): e(f"v_rcp_f32 v{T[i]}, v{T[i]}"); e(f"v_rcp_f32 v{T[i]+1}, v{T[i]+1}")
        for i in range(n): e(f"v_pk_mul_f32 {pr(A[i])}, {pr(A[i])}, {pr(T[i])}")
    for c0 in (0, 2):
        A = [accb(0, b, c) + 2*p for c in (c0, c0+1) for b in range(2) for p in range(2)]
        M = [24 + 4*b + 2*p for c in (c0, c0+1) for b in range(2) for p in range(2)]
        C = [40 + 2*c for c in (c0, c0+1) for b in range(2) for p in range(2)]
        for i in range(8): e(f"v_pk_fma_f32 {pr(A[i])}, {pr(M[i])}, {pr(C[i])}, {pr(A[i])} op_sel_hi:[1,0,1] neg_lo:[1,0,0] neg_hi:[1,0,0]")
        for i in range(8): e(f"v_pk_mul_f32 {pr(A[i])}, {pr(A[i])}, {pr(M[i]+8)}")
        gelu_pairs(A)
        for i in range(8):
            n = (i % 4) * 2
            e(f"v_pk_add_f32 {pr(168+n)}, {pr(168+n)}, {pr(A[i])}")
            e(f"v_pk_fma_f32 {pr(176+n)}, {pr(A[i])}, {pr(A[i])}, {pr(176+n)}")
    e("s_nop 0")
    for n in range(8): e(f"v_add_f32_dpp v{48+n}, v{168+n}, v{168+n} row_ror:8 row_mask:0xf bank_mask:0x3")
    for n in range(8): e(f"v_add_f32_dpp v{48+n}, v{176+n}, v{176+n} row_ror:8 row_mask:0xf bank_mask:0xc")
    for n in range(4): e(f"v_add_f32_dpp v{168+n}, v{48+n}, v{48+n} row_half_mirror row_mask:0xf bank_mask:0x5")
    for n in range(4): e(f"v_add_f32_dpp v{168+n}, v{52+n}, v{52+n} row_half_mirror row_mask:0xf bank_mask:0xa")
    for n in range(2):
        e(f"v_cndmask_b32 v{172+n}, v{170+n}, v{168+n}, s[54:55]")
        e(f"v_cndmask_b32 v{174+n}, v{168+n}, v{170+n}, s[54:55]")
    e("s_nop 0")
    for n in range(2): e(f"v_add_f32_dpp v{176+n}, v{172+n}, v{174+n} quad_perm:[2,3,0,1] row_mask:0xf bank_mask:0xf")
    e("v_cndmask_b32 v172, v177, v176, s[56:57]"); e("v_cndmask_b32 v174, v176, v177, s[56:57]")
    e("s_nop 1")
    e("v_add_f32_dpp v228, v172, v174 quad_perm:[1,0,3,2] row_mask:0xf bank_mask:0xf")
    e("buffer_store_dwordx2 v[228:229], v230, s[28:31], s73 offen sc1")
    if "lowp" in EXP: e("s_setprio 0")
    k.stamp(4)
    e("s_waitcnt lgkmcnt(0)")
    P1 = 168
    for c0 in (0, 2):
        A = [accb(1, b, c) + 2*p for c in (c0, c0+1) for b in range(2) for p in range(2)]
        M = [80 + 2*b for c in (c0, c0+1) for b in range(2) for p in range(2)]
        C = [64 + 4*c + 2*p for c in (c0, c0+1) for b in range(2) for p in range(2)]
        for i in range(8): e(f"v_pk_fma_f32 {pr(A[i])}, {pr(M[i])}, {pr(C[i])}, {pr(A[i])} op_sel_hi:[0,1,1] neg_lo:[1,0,0] neg_hi:[1,0,0]")
        for i in range(8): e(f"v_pk_mul_f32 {pr(A[i])}, {pr(A[i])}, {pr(M[i]+4)} op_sel_hi:[1,0]")
        gelu_pairs(A)
        i = 0
        for c in (c0, c0+1):
            for b in range(2):
                for p in range(2):
                    e(f"v_cvt_pk_bf16_f32 v{P1+b*8+c*2+p}, v{A[i]}, v{A[i]+1}"); i += 1
        if c0 == (2 if 'pt1' in EXP else 0): poll_loads()
    e("s_bitcmp1_b32 s33, 0"); e("s_cbranch_scc0 m_noswap")
    for b in range(2):
        for g in range(2):
            for p in range(2):
                r0 = P1 + b*8 + g*4 + p
                e(f"v_swap_b32 v{r0}, v{r0+2}")
    k.label("m_noswap")
    e("s_setprio 2")
    def z1st():
        for b in range(2):
            for g in range(2):
                e(f"buffer_store_dwordx4 {v(P1+b*8+g*4,4)}, v12, s[20:23], s{68+b*2+g} offen sc1")
    def chk():
        e(f"v_xor_b32 v4, v{PL+1}, v229"); e(f"v_xor_b32 v5, v{PL+3}, v229")
        for i in range(1, 7):
            e(f"v_xor_b32 v9, v{PL+1+4*i}, v229"); e(f"v_xor_b32 v10, v{PL+3+4*i}, v229")
            e("v_or3_b32 v4, v4, v9, v10")
        e("v_or_b32 v4, v4, v5")
        e("v_cmp_ne_u32 vcc, 0, v4")
    e("s_mov_b32 s40, 0")
    e("s_waitcnt vmcnt(0)")
    chk()
    e("s_nop 1")
    e("s_cbranch_vccnz m_repoll")
    z1st()
    e("s_branch m_poll_done")
    k.label("m_repoll")
    poll_loads()
    z1st()
    e("s_waitcnt vmcnt(4)")
    e("s_branch m_check")
    k.label("m_poll")
    poll_loads()
    e("s_waitcnt vmcnt(0)")
    k.label("m_check")
    chk()
    e("s_add_u32 s40, s40, 1")
    e("s_nop 0")
    e("s_cbranch_vccz m_poll_done")
    e(f"s_cmp_lt_u32 s40, {SPIN}"); e("s_cbranch_scc1 m_poll")
    k.label("m_poll_done")
    k.stamp(5)
    for i in range(1, 7):
        e(f"v_add_f32 v{PL}, v{PL}, v{PL+4*i}"); e(f"v_add_f32 v{PL+2}, v{PL+2}, v{PL+2+4*i}")
    e(f"v_mov_b32 v{PL+1}, v{PL}"); e(f"v_mov_b32 v{PL+3}, v{PL+2}"); e("s_nop 1")
    e(f"v_permlane32_swap_b32 v{PL}, v{PL+1}"); e(f"v_permlane32_swap_b32 v{PL+2}, v{PL+3}"); e("s_nop 1")
    e(f"v_add_f32 v24, v{PL}, v{PL+1}"); e(f"v_add_f32 v26, v{PL+2}, v{PL+3}")
    e(f"v_mul_f32 v24, {f32(1/864)}, v24"); e(f"v_mul_f32 v26, {f32(1/864)}, v26")
    e("v_fma_f32 v26, -v24, v24, v26")
    ln_finish(k, "v24", "v26", "v25")
    e("s_lshl_b32 s43, s33, 8"); e(f"s_add_u32 s43, s43, {MISC+1536}")
    e("v_and_b32 v4, 31, v1"); e("v_lshl_add_u32 v4, v4, 2, s43"); e("v_lshl_add_u32 v5, v3, 5, s43")
    e("v_mul_f32 v24, v24, v26")
    e("ds_write_b32 v4, v24"); e("ds_write_b32 v4, v26 offset:128")
    e("ds_read_b128 v[28:31], v5"); e("ds_read_b128 v[32:35], v5 offset:16")
    e("ds_read_b128 v[36:39], v5 offset:128"); e("ds_read_b128 v[40:43], v5 offset:144")
    e("s_waitcnt lgkmcnt(0)")
    for c0 in (0, 2):
        A = [accb(0, b, c) + 2*p for c in (c0, c0+1) for b in range(2) for p in range(2)]
        M = [28 + (i % 4)*2 for i in range(8)]
        for i in range(8): e(f"v_pk_fma_f32 {pr(A[i])}, {pr(A[i])}, {pr(M[i]+8)}, {pr(M[i])} neg_lo:[0,0,1] neg_hi:[0,0,1]")
        for i in range(8): e(f"v_cvt_pk_bf16_f32 v{64+4*c0+i}, v{A[i]}, v{A[i]+1}")
        for c in (c0, c0+1): e(f"buffer_store_dwordx4 {v(64+4*c,4)}, v12, s[24:27], s{46+c} offen sc1")
    e("s_lshl_b32 s43, s36, 2")
    e("s_mov_b32 s44, 0x33221000"); e("s_mov_b32 s45, 0x00766554"); e("s_lshr_b64 s[44:45], s[44:45], s43"); e("s_and_b32 s46, s44, 15")
    e("s_mov_b32 s44, 0x44322110"); e("s_mov_b32 s45, 0x00776655"); e("s_lshr_b64 s[44:45], s[44:45], s43"); e("s_and_b32 s47, s44, 15")
    for r in (46, 47):
        e(f"s_lshl_b32 s43, s{r}, 2"); e("s_lshr_b32 s44, 0xca865310, s43"); e("s_and_b32 s44, s44, 15")
        e("s_sub_u32 s44, s36, s44"); e("s_lshl_b32 s44, s44, 4"); e("s_add_u32 s44, s44, s35"); e("s_lshl_b32 s44, s44, 2")
        e(f"s_lshl_b32 s{r}, s{r}, 8"); e(f"s_add_u32 s{r}, s{r}, s44")
    e("v_mov_b32 v6, s46"); e("v_mov_b32 v7, s47"); e("v_cmp_lt_u32 vcc, 31, v1"); e("v_and_b32 v8, 31, v1"); e("v_lshlrev_b32 v8, 11, v8")
    e("v_cndmask_b32 v6, v6, v7, vcc"); e("v_add_u32 v6, v6, v8")
    e(f"v_mov_b32 v4, {W_PF + 8}"); e("v_mov_b32 v5, 1"); e("v_mov_b32 v7, s3"); e(f"s_mov_b32 s44, {FZ2}")
    e("s_mov_b64 exec, 1")
    e("s_waitcnt vmcnt(0)")
    e("ds_add_rtn_u32 v8, v4, v5")
    e("s_waitcnt lgkmcnt(0)")
    e("v_readfirstlane_b32 s43, v8")
    e("s_mov_b64 exec, -1")
    e("s_cmp_lg_u32 s43, 3"); e("s_cbranch_scc1 m_P2")
    e("buffer_store_dword v7, v6, s[60:63], s44 offen sc1")
    gen_p2(k)
    gen_p3(k)
    gen_helper(k, epoch_poll)
    k.label("m_end")
    e("s_endpgm")
    return k.text(256, nsgpr=100)

def gen_p2(k):
    e = k.e
    k.label("m_P2")
    k.stamp(6)
    e("s_load_dwordx2 s[6:7], s[0:1], 80")
    e("s_lshr_b32 s35, s41, 1"); e("s_lshl_b32 s35, s35, 3"); e("s_lshr_b32 s43, s42, 2"); e("s_add_u32 s35, s35, s43")
    e("s_and_b32 s36, s42, 3")
    e("s_and_b32 s43, s41, 1"); e("s_mul_i32 s43, s43, 27"); e("s_mul_i32 s44, s36, 7"); e("s_add_u32 s37, s43, s44")
    e("v_and_b32 v240, 15, v1"); e("v_lshrrev_b32 v241, 4, v1"); e("v_mov_b32 v245, v1")
    e("v_lshrrev_b32 v2, 5, v1"); e("v_lshlrev_b32 v2, 3, v2"); e("v_bfe_u32 v3, v1, 3, 2"); e("v_add_u32 v2, v2, v3")
    e("v_lshlrev_b32 v2, 12, v2")
    e("v_and_b32 v3, 7, v1"); e("v_xor_b32 v3, v3, v241")
    e("v_lshl_add_u32 v242, v3, 4, v2")
    e("v_xor_b32 v3, 4, v3")
    e("v_lshl_add_u32 v243, v3, 4, v2"); e(f"v_add_u32 v243, {16*4096 - 1024}, v243")
    e("v_lshlrev_b32 v244, 4, v1")
    e("s_lshl_b32 s43, s35, 18"); e("s_lshl_b32 s44, s33, 10"); e("s_add_u32 s48, s43, s44")
    e(f"s_add_u32 s49, s48, {4*4096}"); e(f"s_add_u32 s50, s48, {32*4096}"); e(f"s_add_u32 s51, s48, {36*4096}")
    e("s_lshl_b32 s43, s37, 16"); e("s_lshl_b32 s44, s33, 14"); e("s_add_u32 s52, s43, s44")
    for c in range(1, 7): e(f"s_add_u32 s{52+c}, s52, {c*65536}")
    e("s_cmp_eq_u32 s36, 3"); e(f"s_cselect_b32 s58, {HUGE}, s58")
    e(f"s_mul_i32 s39, s33, {RING2}")
    k.srd(16, 10, 11, 2048*4096)
    k.srd(20, 14, 15, ZF_BYTES, WS_Z2F)
    k.srd(24, 14, 15, ZF_BYTES, WS_Z1F)
    k.srd(28, 14, 15, ZF_BYTES, WS_HF)
    def Z(st, c): return v(112 + st*28 + c*4, 4)
    def acc(c, sg): return v((c*4 + sg)*4, 4)
    def wf(sg): return v(224 + 4*sg, 4)
    def issueZ(n):
        if n % 4 == 0 and n:
            for c in range(7): e(f"s_add_u32 s{52+c}, s{52+c}, 4096")
        for c in range(7): k.vmem(f"buffer_load_dwordx4 {Z(n%4,c)}, v244, s[20:23], s{52+c} offen offset:{(n%4)*1024} sc1", f"Z{n}")
    def issueA(c):
        for t in range(4):
            e(f"s_add_u32 m0, s39, {(c%NSLOT)*8192 + t*2048}")
            e("s_nop 0")
            k.vmem(f"buffer_load_dwordx4 v242, s[16:19], s{48+t} offen lds", f"A{c}")
            k.vmem(f"buffer_load_dwordx4 v243, s[16:19], s{48+t} offen offset:1024 lds", f"A{c}")
        for t in range(4): e(f"s_add_u32 s{48+t}, s{48+t}, 128")
    k.vm = []
    e("v_lshrrev_b32 v5, 1, v240"); e("v_xor_b32 v5, v5, v241")
    e("v_lshlrev_b32 v4, 7, v240"); e("v_lshl_add_u32 v4, v5, 4, v4"); e("v_add_u32 v4, s39, v4")
    for sg in range(4):
        e(f"s_xor_b32 s43, s33, {sg}"); e("s_lshl_b32 s43, s43, 11")
        e(f"v_add_u32 v{246+sg}, s43, v4")
        e(f"v_xor_b32 v{250+sg}, 64, v{246+sg}")
    e("s_setprio 0")
    def issueZ1(n, c):
        if n % 4 == 0 and n: e(f"s_add_u32 s{52+c}, s{52+c}, 4096")
        off = (n % 4) * 1024
        if n == 3: e(f"s_sub_u32 s47, s{52+c}, 4096")
        k.vmem(f"buffer_load_dwordx4 {Z(n%4,c)}, v244, s[20:23], s{47 if n == 3 else 52+c} offen offset:{off} sc1", f"Z{n}_{c}")
    def issueA1(c, t):
        if c % NSLOT == 2: e(f"s_add_u32 m0, s38, {t*2048}")
        else: e(f"s_add_u32 m0, s39, {(c%NSLOT)*8192 + t*2048}")
        e("s_nop 0")
        k.vmem(f"buffer_load_dwordx4 v242, s[16:19], s{48+t} offen lds", f"A{c}")
        k.vmem(f"buffer_load_dwordx4 v243, s[16:19], s{48+t} offen offset:1024 lds", f"A{c}")
        e(f"s_add_u32 s{48+t}, s{48+t}, 128")
    e("s_lshl_b32 s38, s33, 13"); e(f"s_add_u32 s38, s38, {XB}"); e("s_sub_u32 s59, s38, s39")
    for t in range(4): e(f"s_add_u32 s{48+t}, s{48+t}, 384")
    def wf1(sg): return v(112 + 3*28 + 4*sg, 4)
    e(f"v_mov_b32 v4, {W_FX + 12}")
    lds_wait(k, "m_wpf0", "v4", "v5", sleep=1)
    for sg in range(4): e(f"ds_read_b128 {wf(sg)}, v{246+sg}")
    for sg in range(4): e(f"ds_read_b128 {wf1(sg)}, v{250+sg}")
    e("s_waitcnt lgkmcnt(0)")
    k.vm = []
    for t in range(4): issueA1(3, t)
    e(f"v_mov_b32 v4, {W_PF}")
    lds_wait(k, "m_wpf", "v4", "v5", sleep=1)
    k.srd(64, 6, 7, 4096)
    e("s_setprio 3")
    k.stamp(7); k.cyc(12)
    for n in range(3):
        for c in range(7): issueZ1(n, c)
    for n in range(16):
        c, ks = n >> 1, n & 1
        W = wf1 if n == 1 else wf
        if ks == 0 and f"A{c}" in k.vm: k.wait_vm(f"A{c}")
        if n >= 2:
            base = 250 if ks else 246
            if c % NSLOT == 2:
                for sg in range(4): e(f"v_add_u32 v{base+sg}, s59, v{base+sg}")
            for sg in range(4):
                e(f"ds_read_b128 {wf(sg)}, v{base+sg} offset:{0 if c % NSLOT == 2 else (c%NSLOT)*8192}")
            if c % NSLOT == 2:
                for sg in range(4): e(f"v_subrev_u32 v{base+sg}, s59, v{base+sg}")
        if n == 15:
            e("v_add_u32 v130, s39, v244"); e("v_add_u32 v131, s38, v244")
            e(f"v_add_u32 v133, {W_R1 - W_GL}, v254")
            if f"Z{n}_6" in k.vm: k.wait_vm(f"Z{n}_6")
            e("s_waitcnt lgkmcnt(0)")
            def pw(sg, cc): return (f"ds_write_b128 v131, {acc(cc,sg)} offset:{cc*1024}" if sg == 3 else f"ds_write_b128 v130, {acc(cc,sg)} offset:{((sg-1)*7+cc)*1024}")
            pend = []
            for sg in (1, 2, 3, 0):
                for cc in range(7):
                    e(f"{MFMA} {acc(cc,sg)}, {Z(n%4,cc)}, {wf(sg)}, {acc(cc,sg)}")
                    if len(pend) > 8 or (sg == 0 and pend and len(pend) + cc > 8): e(pend.pop(0))
                    if sg: pend.append(pw(sg, cc))
            for p_ in pend: e(p_)
            e("ds_write_b32 v133, v255")
            continue
        for cc in range(7):
            if f"Z{n}_{cc}" in k.vm: k.wait_vm(f"Z{n}_{cc}")
            if n == 0 and cc == 0: k.stamp(8)
            for sg in range(4):
                if cc == 0 and n >= 2: e(f"s_waitcnt lgkmcnt({3-sg})")
                e(f"{MFMA} {acc(cc,sg)}, {Z(n%4,cc)}, {W(sg)}, {'0' if n == 0 else acc(cc,sg)}")
            if n + 4 < 16 and n != 1: issueZ1(n + 4, cc)
            if ks == 1 and 0 < c and c + NSLOT < 8 and cc in (0, 2, 4, 6): issueA1(c + NSLOT, cc // 2)
        if n == 1:
            for cc in range(7): issueZ1(3, cc)
            for cc in range(7): issueZ1(5, cc)
        if n == 12:
            e("s_lshl_b32 s43, s35, 2"); e("s_add_u32 s43, s43, s33"); e("s_mul_i32 s44, s43, 27648")
            for cc in range(7):
                e(f"s_add_u32 s45, s37, {cc}"); e("s_lshr_b32 s46, s45, 1"); e("s_lshl_b32 s46, s46, 10"); e("s_and_b32 s45, s45, 1"); e("s_lshl_b32 s45, s45, 3")
                e("s_add_u32 s45, s45, s46"); e(f"s_add_u32 s{52+cc}, s45, s44")
            e("s_cmp_eq_u32 s36, 3"); e(f"s_cselect_b32 s58, {HUGE}, s58")
            for cc in range(7): k.vmem(f"buffer_load_dwordx2 {v(112+2*cc,2)}, v244, s[24:27], s{52+cc} offen sc1", "z1")
            e("s_lshr_b32 s44, s43, 1"); e("s_lshl_b32 s44, s44, 5"); e("s_and_b32 s45, s43, 1"); e("s_lshl_b32 s45, s45, 2"); e("s_add_u32 s44, s44, s45")
            e("v_lshrrev_b32 v128, 2, v240"); e("v_and_b32 v129, 3, v240"); e("v_lshl_add_u32 v128, v128, 3, v129"); e("v_add_u32 v128, s44, v128")
            e("v_lshlrev_b32 v128, 1, v128")
            k.vmem("buffer_load_ushort v126, v128, s[64:67], 0 offen", "z1")
        if n == 8:
            e("s_lshl_b32 s43, s33, 2"); e(f"s_add_u32 s43, s43, {W_GL}"); e("v_mov_b32 v254, s43"); e("v_mov_b32 v255, 1")
            e("ds_write_b32 v254, v255")
        if n == 12:
            e("v_mov_b32 v255, 2"); e("ds_write_b32 v254, v255")
    k.stamp(9); k.cyc(13)
    T = 140
    e("s_xor_b32 s43, s33, 1"); e(f"s_mul_i32 s43, s43, {RING2}"); e("v_add_u32 v130, s43, v244")
    e("s_xor_b32 s43, s33, 2"); e(f"s_mul_i32 s43, s43, {RING2}"); e("v_add_u32 v131, s43, v244")
    e("s_xor_b32 s43, s33, 3"); e("s_lshl_b32 s43, s43, 13"); e(f"s_add_u32 s43, s43, {XB}"); e("v_add_u32 v132, s43, v244")
    e(f"v_mov_b32 v134, {W_R1}")
    e("s_waitcnt vmcnt(0)")
    k.vm = []
    e("v_lshlrev_b32 v126, 16, v126")
    A = [c*16 + 2*p for c in range(7) for p in range(2)]
    Z1 = [c*16 + 4 + 2*p for c in range(7) for p in range(2)]
    e("s_waitcnt lgkmcnt(0)")
    for i in range(14): unpack(k, f"v{Z1[i]}", f"v{Z1[i]+1}", f"v{112+i}")
    for i in range(14): e(f"v_pk_add_f32 {pr(A[i])}, {pr(A[i])}, v[126:127] op_sel_hi:[1,0]")
    lds_wait_ge(k, "m_wr1", "v134", 136, 4, 1)
    for sg in range(3):
        for c in range(7): e(f"ds_read_b128 {v(T+(sg*7+c)*4,4)}, v{130+sg} offset:{(7*1024 if sg == 1 else 0) + c*1024}")
    for sg in range(3):
        e(f"s_waitcnt lgkmcnt({14 - 7*sg})")
        if sg == 2: e("ds_write_b32 v133, v255 offset:16")
        for i in range(14): e(f"v_pk_add_f32 {pr(A[i])}, {pr(A[i])}, {pr(T+sg*28+2*i)}")
    for i in range(14): e(f"v_pk_mul_f32 {pr(A[i])}, {pr(A[i])}, {pr(Z1[i])}")
    for i in range(14): e(f"v_cvt_pk_bf16_f32 v{200+i}, v{A[i]}, v{A[i]+1}")
    e("s_bitcmp1_b32 s37, 0"); e("s_cbranch_scc1 m_hodd")
    for c in (0, 2, 4): e(f"buffer_store_dwordx4 {v(200+2*c,4)}, v244, s[28:31], s{52+c} offen sc1")
    e(f"buffer_store_dwordx2 {v(212,2)}, v244, s[28:31], s58 offen sc1")
    e("s_branch m_hdone")
    k.label("m_hodd")
    e(f"buffer_store_dwordx2 {v(200,2)}, v244, s[28:31], s52 offen sc1")
    for c in (1, 3): e(f"buffer_store_dwordx4 {v(200+2*c,4)}, v244, s[28:31], s{52+c} offen sc1")
    e("s_cmp_eq_u32 s36, 3"); e("s_cbranch_scc1 m_hodd6")
    e(f"buffer_store_dwordx4 {v(210,4)}, v244, s[28:31], s57 offen sc1")
    e("s_branch m_hdone")
    k.label("m_hodd6")
    e(f"buffer_store_dwordx2 {v(210,2)}, v244, s[28:31], s57 offen sc1")
    k.label("m_hdone")
    e("v_mov_b32 v1, v245")
    e("s_and_b32 s43, s41, 1"); e("s_lshl_b32 s43, s43, 2"); e("s_add_u32 s36, s36, s43")
    e(f"v_mov_b32 v4, {W_PF + 4}"); e("v_mov_b32 v5, 1"); e("v_lshlrev_b32 v6, 7, v1"); e("v_mov_b32 v7, s3")
    e("s_lshl_b32 s44, s35, 10"); e("s_lshl_b32 s45, s36, 2"); e("s_add_u32 s44, s44, s45"); e(f"s_add_u32 s44, s44, {FH2}")
    e("s_mov_b64 exec, 1")
    e("s_waitcnt vmcnt(0)")
    e("ds_add_rtn_u32 v8, v4, v5")
    e("s_waitcnt lgkmcnt(0)")
    e("v_readfirstlane_b32 s43, v8")
    e("s_mov_b64 exec, 0xff")
    e("s_cmp_lg_u32 s43, 3"); e("s_cbranch_scc1 m_nopub")
    e("buffer_store_dword v7, v6, s[60:63], s44 offen sc1")
    k.label("m_nopub")
    e("s_mov_b64 exec, -1")
    e("s_setprio 0")
    e("v_and_b32 v2, 15, v1"); e("v_lshrrev_b32 v3, 4, v1")
    e("s_mov_b32 s47, 0"); e("s_mov_b32 s46, 0")

def gen_p3(k):
    e = k.e
    k.label("m_P3")
    k.stamp(10)
    e("s_lshr_b32 s34, s32, 2")
    e("v_lshlrev_b32 v15, 4, v1")
    k.srd(16, 14, 15, WOF_BYTES, WS_WOF)
    k.srd(20, 14, 15, ZF_BYTES, WS_HF)
    k.srd(24, 4, 5, 2048*1280)
    k.srd(28, 98, 99, 2048*1280)
    def H(g, sg): return v(16 + (g*2 + sg)*4, 4)
    def WF(g, db): return v(72 + (g*5 + db)*4, 4)
    def acc(sg, db): return v(212 + (sg*5 + db)*4, 4)
    e("s_cmp_eq_u32 s33, 3"); e(f"s_cselect_b32 s45, {HUGE}, 6144")
    e("s_and_b32 s43, s33, 1"); e("s_lshl_b32 s44, s34, 1"); e("s_add_u32 s57, s43, s44")
    e("s_lshr_b32 s58, s33, 1"); e("s_mul_i32 s58, s58, 3")
    e("s_lshr_b32 s43, s57, 1"); e("s_lshl_b32 s43, s43, 5"); e("s_and_b32 s44, s57, 1"); e("s_lshl_b32 s44, s44, 2"); e("s_add_u32 s59, s43, s44")
    e("s_lshl_b32 s43, s35, 6"); e("s_add_u32 s43, s43, s59")
    e("v_lshrrev_b32 v6, 2, v2"); e("v_and_b32 v7, 3, v2"); e("v_lshl_add_u32 v6, v6, 3, v7"); e("v_add_u32 v6, s43, v6")
    e("v_mul_u32_u24 v6, 1280, v6"); e("v_lshl_add_u32 v6, v3, 3, v6"); e("s_mul_i32 s43, s36, 160"); e("v_add_u32 v14, s43, v6")
    for i in range(3):
        e(f"s_add_u32 s43, s58, {i}"); e(f"s_min_u32 s{68+i}, s43, 4")
        e(f"s_lshl_b32 s{72+i}, s{68+i}, 5")
    k.srd(64, 14, 15, XT_BYTES, WS_YT)
    e("s_lshl_b32 s43, s35, 2"); e("s_lshl_b32 s44, s34, 1"); e("s_add_u32 s43, s43, s44"); e("s_mul_i32 s43, s43, 27"); e("s_mul_i32 s44, s33, 7"); e("s_add_u32 s43, s43, s44")
    e("s_lshl_b32 s46, s43, 10"); e("s_add_u32 s47, s46, 27648")
    e("s_add_u32 s48, s46, 4096"); e("s_add_u32 s49, s47, 4096"); e("s_add_u32 s50, s46, s45"); e("s_add_u32 s51, s47, s45")
    e("s_mul_i32 s43, s33, 35840"); e(f"s_add_u32 s43, s43, {IMG}"); e("v_add_u32 v252, s43, v15")
    e("s_cmp_eq_u32 s33, 3"); e("s_cselect_b32 s43, 5120, 0"); e("v_subrev_u32 v253, s43, v252")
    e("v_and_b32 v4, 7, v1"); e("v_lshlrev_b32 v4, 2, v4")
    e("s_lshl_b32 s44, s35, 10"); e("s_lshl_b32 s43, s36, 7"); e("s_add_u32 s44, s44, s43"); e(f"s_add_u32 s44, s44, {FH2}")
    e("v_min_u32 v254, 39, v1"); e("v_lshlrev_b32 v254, 3, v254")
    e("s_mul_i32 s52, s36, 320"); e(f"s_add_u32 s52, s52, {FY}")
    e("s_cmp_ge_u32 s32, 4"); e("s_cbranch_scc1 m_nwv")
    e("s_waitcnt vmcnt(0)")
    k.label("m_nwv")
    e("s_barrier")
    k.stamp(4)
    e("s_cmp_lg_u32 s32, 3"); e("s_cbranch_scc1 m_nhp")
    e("buffer_load_dword v5, v4, s[60:63], s44 offen sc1")
    k.label("m_nhp")
    e("s_cmp_lg_u32 s32, 2"); e("s_cbranch_scc1 m_nyp")
    e("buffer_load_dwordx2 v[248:249], v254, s[60:63], s52 offen sc1")
    k.label("m_nyp")
    for g in range(7):
        for db in range(5): e(f"ds_read_b128 {WF(g,db)}, v{253 if g == 6 else 252} offset:{g*5120 + db*1024}")
    for i in range(3): e(f"buffer_load_dwordx2 {v(8+2*i,2)}, v14, s[24:27], s{72+i} offen")
    e("v_lshrrev_b32 v244, 3, v1"); e("v_lshlrev_b32 v244, 12, v244"); e("v_and_b32 v245, 7, v1"); e("v_lshl_add_u32 v244, v245, 4, v244")
    e("s_mul_i32 s53, s36, 80"); e("s_lshl_b32 s43, s32, 3"); e("s_add_u32 s53, s53, s43"); e("s_lshl_b32 s53, s53, 12"); e("s_lshl_b32 s43, s35, 7"); e("s_add_u32 s53, s53, s43")
    e("s_cmp_lt_u32 s32, 2"); e(f"s_cselect_b32 s54, {64*4096}, 0"); e("s_cselect_b32 s55, 8192, 0"); e("s_add_u32 s54, s54, s53")
    e("s_lshl_b32 s43, s32, 10"); e(f"s_add_u32 s43, s43, {YTILE}"); e("v_add_u32 v246, s43, v15"); e("v_add_u32 v247, s55, v246")
    e("s_cmp_lg_u32 s32, 3"); e("s_cbranch_scc1 m_hw")
    poll_flags(k, "m_pollh", "v4", FLS, 1, 5, "v6", soff="s44", sleep=2, preloaded=True)
    k.label("m_hw")
    e("s_cmp_lg_u32 s32, 2"); e("s_cbranch_scc1 m_noy")
    poll_flags(k, "m_polly", "v254", FLS, 2, 248, "v5", soff="s52", sleep=8, preloaded=True)
    k.label("m_noy")
    e("s_waitcnt lgkmcnt(0)")
    e("s_barrier")
    k.stamp(11)
    k.vm = []
    k.vmem("buffer_load_dwordx4 v[236:239], v244, s[64:67], s53 offen sc1", "y")
    k.vmem("buffer_load_dwordx4 v[240:243], v244, s[64:67], s54 offen sc1", "y")
    for g in range(7):
        for sg in range(2):
            so = 46 + sg + (0 if g < 4 else 2 if g < 6 else 4)
            k.vmem(f"buffer_load_dwordx4 {H(g,sg)}, v15, s[20:23], s{so} offen offset:{(g%4)*1024 if g < 6 else 0} sc1", f"h{g}")
    e("s_mul_i32 s43, s32, 10240"); e("v_add_u32 v252, s43, v15")
    e("s_mul_i32 s43, s34, 40960"); e("s_and_b32 s44, s33, 1"); e("s_mul_i32 s44, s44, 5120"); e("s_add_u32 s43, s43, s44")
    e("v_bfe_u32 v4, v1, 2, 2"); e("v_lshl_add_u32 v4, v3, 2, v4"); e("v_lshlrev_b32 v4, 7, v4")
    e("v_and_b32 v5, 3, v1"); e("v_lshl_add_u32 v4, v5, 4, v4")
    e("s_lshl_b32 s44, s59, 1"); e(f"s_add_u32 s44, s44, {YTILE}"); e("v_add_u32 v4, s44, v4")
    for i in range(3):
        e(f"s_lshl_b32 s44, s{68+i}, 10"); e("s_add_u32 s44, s44, s43"); e(f"v_add_u32 v{253+i}, s44, v15")
        e(f"s_lshl_b32 s44, s{68+i}, 11"); e(f"v_add_u32 v{5+i}, s44, v4")
    for g in range(7):
        k.wait_vm(f"h{g}")
        if g == 0: e("ds_write_b128 v246, v[236:239]"); e("ds_write_b128 v247, v[240:243]"); e("s_waitcnt lgkmcnt(0)")
        for db in range(5):
            for sg in range(2):
                e(f"{MFMA} {acc(sg,db)}, {WF(g,db)}, {H(g,sg)}, {'0' if g == 0 else acc(sg,db)}")
    e("s_nop 2")
    e("s_nop 1")
    for db in range(5):
        for sg in range(2): e(f"ds_write_b128 v252, {acc(sg,db)} offset:{(sg*5+db)*1024}")
    for i in range(6): unpack(k, f"v{96+2*i}", f"v{97+2*i}", f"v{8+i}")
    e("s_waitcnt lgkmcnt(0)")
    e("s_barrier")
    for i in range(3): e(f"ds_read_b64_tr_b16 {v(24+2*i,2)}, v{5+i}")
    for i in range(3):
        for kq in range(4): e(f"ds_read_b128 {v(32+(i*4+kq)*4,4)}, v{253+i} offset:{kq*10240}")
    e("s_waitcnt lgkmcnt(12)")
    for n in range(6): unpack(k, f"v{112+2*n}", f"v{113+2*n}", f"v{24+n}")
    for n in range(6): e(f"v_pk_add_f32 {pr(96+2*n)}, {pr(96+2*n)}, {pr(112+2*n)}")
    e("s_waitcnt lgkmcnt(0)")
    A = [32 + i*16 + 2*p for i in range(3) for p in range(2)]
    for n in range(6): e(f"v_pk_add_f32 {pr(A[n])}, {pr(A[n])}, {pr(A[n]+4)}"); e(f"v_pk_add_f32 {pr(A[n]+8)}, {pr(A[n]+8)}, {pr(A[n]+12)}")
    for n in range(6): e(f"v_pk_add_f32 {pr(A[n])}, {pr(A[n])}, {pr(A[n]+8)}")
    for n in range(6): e(f"v_pk_add_f32 {pr(A[n])}, {pr(A[n])}, {pr(96+2*n)}")
    for n in range(6): e(f"v_cvt_pk_bf16_f32 v{24+n}, v{A[n]}, v{A[n]+1}")
    for i in range(3): e(f"buffer_store_dwordx2 {v(24+2*i,2)}, v14, s[28:31], s{72+i} offen")
    e("s_lshl_b32 s43, s2, 3"); e("s_add_u32 s43, s43, s32"); e("s_cmp_lg_u32 s43, 4"); e("s_cbranch_scc1 m_fin")
    k.srd(64, 12, 13, 256)
    e("v_mov_b32 v4, 0"); e("s_mov_b64 exec, 1")
    e("buffer_store_dword v4, v4, s[64:67], 0 offen sc1")
    k.label("m_fin")
    k.end(0)

def gen_helper(k, epoch_poll):
    e = k.e
    k.label("m_helper")
    e("s_lshl_b32 s35, s41, 2"); e("s_add_u32 s35, s35, s42"); e("s_sub_u32 s35, s35, 28")
    e("v_and_b32 v2, 15, v1"); e("v_lshrrev_b32 v3, 4, v1")
    e("s_lshl_b32 s43, s32, 3")
    e("v_add_u32 v4, s43, v3")
    e("s_lshl_b32 s44, s35, 6")
    e("v_add_u32 v5, s44, v4"); e("v_mul_u32_u24 v5, 1280, v5"); e("v_lshl_add_u32 v5, v2, 4, v5")
    e("v_add_u32 v6, 5120, v5")
    e("v_mul_u32_u24 v7, 1296, v4"); e("v_lshl_add_u32 v7, v2, 4, v7")
    e("v_mov_b32 v110, 0")
    e("v_and_b32 v4, 31, v1"); e(f"v_lshlrev_b32 v4, 2, v4"); e(f"v_add_u32 v4, {W_EPOCH}, v4")
    e("s_cmp_lg_u32 s32, 4"); e("s_cbranch_scc1 m_hnoclr")
    e("ds_write_b32 v4, v110")
    k.label("m_hnoclr")
    e("s_waitcnt lgkmcnt(0)")
    k.srd(16, 4, 5, 2048*1280)
    k.srd(28, 14, 15, XT_BYTES, WS_XNT)
    k.srd(64, 12, 13, 256)
    k.srd(FLS, 14, 15, FL_BYTES, WS_FL)
    k.srd(20, 96, 97, 864*1280)
    k.vm = []
    for g in range(2):
        for n in range(5):
            k.vmem(f"buffer_load_dwordx4 {v(8+g*20+n*4,4)}, v{5+g}, s[16:19], 0 offen offset:{n*256}", f"x{g}")
    XB = (48, 128)
    for g in range(2):
        k.stamp(1+2*g)
        k.wait_vm(f"x{g}")
        if g == 0: k.vmem("buffer_load_dword v111, v110, s[64:67], 0 offen sc1", "ep")
        X = XB[g]; src = 8 + g*20; M, R = 112 + 4*g, 114 + 4*g
        for n in range(20): unpack(k, f"v{X+2*n}", f"v{X+2*n+1}", f"v{src+n}")
        e(f"v_pk_add_f32 v[88:89], {pr(X)}, {pr(X+4)}"); e(f"v_pk_add_f32 v[90:91], {pr(X+2)}, {pr(X+6)}")
        for n in range(4, 20): e(f"v_pk_add_f32 {pr(88+2*(n%2))}, {pr(88+2*(n%2))}, {pr(X+2*n)}")
        e("v_pk_add_f32 v[88:89], v[88:89], v[90:91]"); e("s_nop 0"); e("v_add_f32 v88, v88, v89")
        for sh in (8, 4, 2, 1):
            e("s_nop 1"); e(f"v_add_f32_dpp v88, v88, v88 row_ror:{sh} row_mask:0xf bank_mask:0xf")
        e(f"v_mul_f32 v{M}, {f32(1/640)}, v88")
        for a_ in range(4): e(f"v_mov_b32 v{92+a_}, 0")
        for n0 in range(0, 20, 4):
            for a_ in range(4): e(f"v_pk_add_f32 {pr(96+2*a_)}, {pr(X+2*(n0+a_))}, {pr(M)} op_sel_hi:[1,0] neg_lo:[0,1] neg_hi:[0,1]")
            for a_ in range(4): e(f"v_pk_fma_f32 {pr(92+2*(a_%2))}, {pr(96+2*a_)}, {pr(96+2*a_)}, {pr(92+2*(a_%2))}")
        e("v_pk_add_f32 v[92:93], v[92:93], v[94:95]"); e("s_nop 0"); e("v_add_f32 v92, v92, v93")
        for sh in (8, 4, 2, 1):
            e("s_nop 1"); e(f"v_add_f32_dpp v92, v92, v92 row_ror:{sh} row_mask:0xf bank_mask:0xf")
        e(f"v_mul_f32 v{R}, {f32(1/640)}, v92")
        ln_finish(k, f"v{M}", f"v{R}", "v89")
    e("s_mov_b32 s40, 0")
    k.label("m_hep")
    e("s_waitcnt vmcnt(0)")
    e("v_readfirstlane_b32 s3, v111")
    e("s_add_u32 s40, s40, 1")
    e("s_cmp_lg_u32 s3, 0"); e("s_cbranch_scc1 m_hepok")
    e("buffer_load_dword v111, v110, s[64:67], 0 offen sc1")
    e(f"s_cmp_lt_u32 s40, {SPIN}"); e("s_cbranch_scc1 m_hep")
    k.label("m_hepok")
    k.vm = []
    k.srd(24, 14, 15, 32768, WS_ST1)
    for r in (113, 115, 117, 119): e(f"v_mov_b32 v{r}, v111")
    e("s_lshl_b32 s43, s35, 10"); e("s_lshl_b32 s44, s32, 7"); e("s_add_u32 s43, s43, s44"); e("v_lshlrev_b32 v5, 4, v3")
    e("v_cmp_eq_u32 vcc, 0, v2"); e("s_and_saveexec_b64 s[44:45], vcc")
    e("buffer_store_dwordx4 v[112:115], v5, s[24:27], s43 offen sc1"); e("buffer_store_dwordx4 v[116:119], v5, s[24:27], s43 offen offset:64 sc1")
    e("s_mov_b64 exec, -1")
    k.stamp(2)
    e("v_lshlrev_b32 v120, 4, v1")
    e("s_lshl_b32 s43, s35, 3"); e("s_add_u32 s43, s43, s32"); e("s_mul_i32 s43, s43, 4352")
    for n in range(4): e(f"buffer_load_dwordx4 v[124:127], v120, s[20:23], s43 offen offset:{n*1024}")
    e("s_add_u32 s43, s43, 4096")
    e(f"buffer_load_dwordx4 v[124:127], v120, s[20:23], s43 offen")
    for g in range(2):
        X = XB[g]; src = 8 + g*20; M, R = 112 + 4*g, 114 + 4*g
        for n in range(20): e(f"v_pk_add_f32 {pr(X+2*n)}, {pr(X+2*n)}, {pr(M)} op_sel_hi:[1,0] neg_lo:[0,1] neg_hi:[0,1]")
        for n in range(20): e(f"v_pk_mul_f32 {pr(X+2*n)}, {pr(X+2*n)}, {pr(R)} op_sel_hi:[1,0]")
        for n in range(20): e(f"v_cvt_pk_bf16_f32 v{src+n}, v{X+2*n}, v{X+2*n+1}")
        for n in range(5):
            e(f"ds_write_b128 v7, {v(src+4*n,4)} offset:{g*4*1296 + n*256}")
    e(f"v_mov_b32 v9, {W_EPOCH}")
    e("s_cmp_lg_u32 s32, 4"); e("s_cbranch_scc1 m_hepdone")
    e("ds_write_b32 v9, v111")
    k.label("m_hepdone")
    e("s_waitcnt lgkmcnt(0)")
    e("s_barrier")
    k.stamp(4)
    e("v_bfe_u32 v4, v1, 2, 2"); e("v_lshl_add_u32 v4, v3, 3, v4"); e("v_mul_u32_u24 v4, 1296, v4")
    e("v_and_b32 v5, 3, v1"); e("v_lshl_add_u32 v4, v5, 3, v4")
    e("s_lshl_b32 s43, s32, 5"); e("v_add_u32 v4, s43, v4")
    e(f"v_add_u32 v5, {32*1296}, v4")
    for n in range(5):
        for th in range(2):
            for hh in range(2):
                e(f"ds_read_b64_tr_b16 {v(16+(n*2+th)*4+hh*2,2)}, v{4+th} offset:{hh*4*1296 + n*256}")
    e("s_mul_i32 s43, s32, 4608"); e("s_add_u32 s43, s43, 90112")
    e("v_mul_u32_u24 v5, 144, v2"); e("v_lshl_add_u32 v5, v3, 4, v5"); e("v_add_u32 v5, s43, v5")
    e("v_lshrrev_b32 v4, 3, v1"); e("v_lshlrev_b32 v6, 12, v4"); e("v_mul_u32_u24 v4, 144, v4"); e("v_and_b32 v7, 7, v1"); e("v_lshl_add_u32 v4, v7, 4, v4"); e("v_add_u32 v4, s43, v4")
    e("v_lshl_add_u32 v6, v7, 4, v6")
    e("s_lshl_b32 s46, s32, 16"); e("s_lshl_b32 s44, s35, 7"); e("s_add_u32 s46, s46, s44"); e("s_add_u32 s47, s46, 32768")
    e("s_waitcnt vmcnt(0) lgkmcnt(0)")
    for n in range(5):
        o = (n % 2) * 2304
        for th in range(2): e(f"ds_write_b128 v5, {v(16+(n*2+th)*4,4)} offset:{o + th*64}")
        for hf in range(2): e(f"ds_read_b128 {v(56+(n*2+hf)*4,4)}, v4 offset:{o + hf*8*144}")
    for n in range(5):
        e(f"s_waitcnt lgkmcnt({min(15, 4*(4-n))})")
        for hf in range(2):
            e(f"buffer_store_dwordx4 {v(56+(n*2+hf)*4,4)}, v6, s[28:31], s{46+hf} offen" + ("" if "wb" in EXP else " sc1"))
        e(f"s_add_u32 s46, s46, {8*65536}"); e(f"s_add_u32 s47, s47, {8*65536}")
    def publish(imm, tag):
        e("s_waitcnt vmcnt(0) lgkmcnt(0)")
        e("s_barrier")
        e("s_cmp_lg_u32 s32, 4"); e(f"s_cbranch_scc1 m_hnp{tag}")
        e("s_lshl_b32 s45, s35, 2"); e(f"s_add_u32 s45, s45, {FX}")
        set_flag(k, FLS, "s45", 0, "v7", "v8")
        k.label(f"m_hnp{tag}")
    e("s_mov_b32 s34, 1000")
    publish(192, "x")
    k.stamp(5)
    e("s_cmp_lt_u32 s32, 4"); e("s_cbranch_scc1 m_Lpost")
    e(f"v_mov_b32 v4, {W_PF + 8}"); e("v_mov_b32 v5, 4"); e("ds_write_b32 v4, v5")
    e("s_branch m_P2")

if __name__ == "__main__":
    import sys
    NAME = "parallel_sum__ssm_conv_s4d__mixer_gmlp__prompt"
    path = sys.argv[1] if len(sys.argv) > 1 else f"cdna_kernels/{NAME}.s"
    t, kd = gen_mega(NAME + "_kernel")
    hdr = open(f"cdna_kernels/{NAME}.s.ref").read().split("; Override launch")[0]
    lst = os.environ.get("LIST", "0") == "1"
    out = hdr + (f"; @launch kernel={NAME}_kernel grid=(256,1,1) block=(512,1,1) lds={LDS_TOTAL}\n" if lst else f"; @launch grid=(256,1,1) block=(512,1,1) lds={LDS_TOTAL}\n")
    out += '.amdgcn_target "amdgcn-amd-amdhsa--gfx950"\n.text\n' + t + '\ntext_end:\n.section .rodata,"a"\n.p2align 6\n' + kd + "\n"
    open(path, "w").write(out)
```
